```python
import torch

def _softmax(x, axis=-1):
    return torch.softmax(x, dim=axis)
def _gelu(x):
    return torch.nn.functional.gelu(x, approximate="tanh")
def _silu(x):
    return torch.nn.functional.silu(x)
def _sigmoid(x):
    return torch.sigmoid(x)
def _layernorm(x, axis=-1, eps=1e-5):
    m = x.mean(dim=axis, keepdim=True)
    v = x.var(dim=axis, keepdim=True, unbiased=False)
    return (x - m) / torch.sqrt(v + eps)
def _scatter_add(tgt, idx, src, axis=0):
    return tgt.clone().index_add_(axis, idx, src)
def _segment_sum(src, seg, n):
    out = torch.zeros((n,) + src.shape[1:], dtype=src.dtype)
    return out.index_add_(0, seg, src)
def _pad(x, pw):
    flat = tuple(v for pair in reversed(pw) for v in pair)
    return torch.nn.functional.pad(x, flat)

kernel_name = 'gated_mix__ssm_conv_s5__swiglu_ffn__prompt'

def setup_inputs():

    _w = (lambda a: (lambda t: t.to(torch.bfloat16) if t.is_floating_point() else t)(torch.as_tensor(a)))
    def _A_setup():
        B, S, D = 1, 2048, 512
        P = D
        Lambda_re = -0.5 * (lambda _x: torch.exp(torch.as_tensor(_x)))((lambda *s: torch.randn(*s, dtype=torch.bfloat16) * 0.2)(P))
        Lambda_im = (lambda *s: torch.randn(*s, dtype=torch.bfloat16) * 0.4)(P) * 1.0
        B_re = (lambda *s: torch.randn(*s, dtype=torch.bfloat16) * 0.2)(P, D) * (D ** -0.5)
        B_im = (lambda *s: torch.randn(*s, dtype=torch.bfloat16) * 0.2)(P, D) * (D ** -0.5)
        C_re = (lambda *s: torch.randn(*s, dtype=torch.bfloat16) * 0.2)(D, P) * (P ** -0.5)
        C_im = (lambda *s: torch.randn(*s, dtype=torch.bfloat16) * 0.2)(D, P) * (P ** -0.5)
        log_dt = (lambda *s: torch.randn(*s, dtype=torch.bfloat16) * 0.2)(P) * 0.3 - 2.0
        Dskip = (lambda *s: torch.randn(*s, dtype=torch.bfloat16) * 0.05)(D)
        return {
            "x": _w((lambda *s: torch.randn(*s, dtype=torch.bfloat16) * 0.05)(B, S, D)),
            "Lambda_re": _w(Lambda_re),
            "Lambda_im": _w(Lambda_im),
            "B_re": _w(B_re),
            "B_im": _w(B_im),
            "C_re": _w(C_re),
            "C_im": _w(C_im),
            "log_dt": _w(log_dt),
            "Dskip": _w(Dskip),
        }
    _A_in = _A_setup()

    def _B_setup():
        B, S, D, F = 1, 2048, 512, 1376
        return {
            "x": _w((lambda *s: torch.randn(*s, dtype=torch.bfloat16) * 0.05)(B, S, D)),
            "w_gate": _w((lambda *s: torch.randn(*s, dtype=torch.bfloat16) * 0.05)(D, F)),
            "w_up": _w((lambda *s: torch.randn(*s, dtype=torch.bfloat16) * 0.05)(D, F)),
            "w_down": _w((lambda *s: torch.randn(*s, dtype=torch.bfloat16) * 0.05)(F, D)),
        }
    _B_in = _B_setup()

    return {
        "A_x": _A_in["x"],
        "A_Lambda_re": _A_in["Lambda_re"],
        "A_Lambda_im": _A_in["Lambda_im"],
        "A_B_re": _A_in["B_re"],
        "A_B_im": _A_in["B_im"],
        "A_C_re": _A_in["C_re"],
        "A_C_im": _A_in["C_im"],
        "A_log_dt": _A_in["log_dt"],
        "A_Dskip": _A_in["Dskip"],
        "B_x": _B_in["x"],
        "B_w_gate": _B_in["w_gate"],
        "B_w_up": _B_in["w_up"],
        "B_w_down": _B_in["w_down"],
        "gate_w": _w((lambda *s: torch.randn(*s, dtype=torch.bfloat16) * 0.05)(512) * 16.0),
    }

def reference(A_x, A_Lambda_re, A_Lambda_im, A_B_re, A_B_im, A_C_re, A_C_im, A_log_dt, A_Dskip, B_x, B_w_gate, B_w_up, B_w_down, gate_w):
    def _A_ref(x, Lambda_re, Lambda_im, B_re, B_im, C_re, C_im, log_dt, Dskip):
        Bsz, L, H = x.shape
        Lam = Lambda_re + 1j * Lambda_im
        Bmat = B_re + 1j * B_im
        Cmat = C_re + 1j * C_im
        dt = torch.exp(log_dt)
        Lam_bar = torch.exp(dt * Lam)
        B_bar = ((Lam_bar - 1.0) / Lam)[:, None] * Bmat
        Bu = torch.einsum("bld,pd->blp", x + 0j, B_bar)
        h = torch.zeros_like(Bu[:, 0, :])
        hs = []
        for t in range(L):
            h = Lam_bar[None, :] * h + Bu[:, t, :]
            hs.append(h)
        hseq = torch.stack(hs, 1)
        y = 2.0 * torch.einsum("blp,dp->bld", hseq, Cmat).real + x * Dskip[None, None, :]
        return y

    def _B_ref(x, w_gate, w_up, w_down):
        g = _silu(x @ w_gate)
        u = x @ w_up
        return (g * u) @ w_down

    x = A_x
    g = _sigmoid((x * gate_w).sum(-1, keepdims=True))
    a = _A_ref(x, A_Lambda_re, A_Lambda_im, A_B_re, A_B_im, A_C_re, A_C_im, A_log_dt, A_Dskip)
    b = _B_ref(x, B_w_gate, B_w_up, B_w_down)
    return g * a + (1 - g) * b
```

```python
import re

_OPRE = re.compile(r'^-?(?:abs\()?([vs])(?:\[(\d+):(\d+)\]|(\d+))\)?$')

TRANS = ('v_exp_f32', 'v_log_f32', 'v_rcp_f32', 'v_rsq_f32', 'v_sqrt_f32', 'v_sin_f32', 'v_cos_f32')
NODEF_S = ('s_cmp', 's_waitcnt', 's_barrier', 's_nop', 's_cbranch', 's_branch', 's_endpgm', 's_setprio', 's_sleep')


def regs_of(tok):
    tok = tok.strip()
    if tok in ('vcc', 'vcc_lo', 'vcc_hi'):
        return {('s', 'vcc')}
    if tok in ('exec', 'exec_lo', 'exec_hi'):
        return {('s', 'exec')}
    if tok == 'm0':
        return {('s', 'm0')}
    m = _OPRE.match(tok)
    if not m:
        return set()
    k = m.group(1)
    if m.group(4) is not None:
        return {(k, int(m.group(4)))}
    return {(k, i) for i in range(int(m.group(2)), int(m.group(3)) + 1)}


class Ins:
    def __init__(self, text):
        self.text = text
        body = text.split(';')[0].strip()
        parts = body.split(None, 1)
        self.mn = parts[0]
        rest = parts[1] if len(parts) > 1 else ''
        toks = [t.strip() for t in rest.split(',')] if rest else []
        self.mods = ''
        if toks:
            for i, t in enumerate(toks):
                if ' ' in t:
                    a, b = t.split(None, 1)
                    self.mods = b + ',' + ','.join(toks[i + 1:])
                    toks = toks[:i] + [a]
                    break
        self.ops = [regs_of(t) for t in toks]
        mn = self.mn
        self.slots = 1
        self.defs = set()
        self.uses = set()
        allr = lambda L: set().union(*L) if L else set()
        self.kind = None
        if mn.startswith('v_mfma'):
            self.kind = 'mfma'
            self.defs = self.ops[0]
            self.ab = self.ops[1] | self.ops[2]
            self.c = self.ops[3]
            self.uses = self.ab | self.c
        elif mn.startswith('v_'):
            self.kind = 'valu'
            base = mn.replace('_e32', '').replace('_e64', '').replace('_dpp', '')
            self.trans = base in TRANS
            self.dpp = mn.endswith('_dpp')
            self.perm = base.startswith('v_permlane')
            self.lane = base in ('v_readfirstlane_b32', 'v_readlane_b32')
            if self.perm:
                self.defs = self.ops[0] | self.ops[1]
                self.uses = set(self.defs)
            else:
                self.defs = self.ops[0]
                self.uses = allr(self.ops[1:])
                if base.startswith('v_fmac') or self.dpp or base.startswith('v_dot2c'):
                    self.uses |= self.ops[0]
        elif mn.startswith('buffer_') or mn.startswith('global_'):
            self.kind = 'vmem'
            self.lds = bool(re.search(r'\blds\b', self.mods))
            self.store = '_store' in mn or '_atomic' in mn
            self.wide = self.store and ('x4' in mn or 'x3' in mn)
            if self.store:
                self.uses = allr(self.ops)
                self.data = self.ops[0] if mn.startswith('buffer_') else self.ops[1]
            elif self.lds:
                self.uses = allr(self.ops) | {('s', 'm0')}
            else:
                self.defs = self.ops[0]
                self.uses = allr(self.ops[1:])
        elif mn.startswith('ds_'):
            self.kind = 'ds'
            if mn.startswith('ds_read'):
                self.defs = self.ops[0]
                self.uses = allr(self.ops[1:])
            else:
                self.uses = allr(self.ops)
        elif mn.startswith('s_'):
            self.kind = 'salu'
            if mn == 's_nop':
                self.slots = int(rest) + 1
            elif any(mn.startswith(p) for p in NODEF_S):
                self.uses = allr(self.ops)
            else:
                self.defs = self.ops[0] if self.ops else set()
                self.uses = allr(self.ops[1:])
        else:
            raise ValueError('unknown instruction: ' + text)


def need(p, c):
    n = 0
    vd = {r for r in p.defs if r[0] == 'v'}
    sd = {r for r in p.defs if r[0] == 's'}
    if p.kind == 'valu':
        if c.kind == 'mfma' and vd & c.uses:
            n = max(n, 2)
        if c.kind == 'valu':
            if p.trans and (vd & c.uses):
                n = max(n, 1)
            if c.perm and vd & c.uses:
                n = max(n, 2)
            if c.dpp and vd & c.uses:
                n = max(n, 2)
            if c.lane and vd & c.uses:
                n = max(n, 1)
            if sd & c.uses:
                n = max(n, 4 if c.lane else 2)
        if c.kind == 'vmem' and sd & c.uses:
            n = max(n, 5)
        if c.kind == 'salu' and sd & c.uses:
            n = max(n, 2)
    elif p.kind == 'mfma':
        if c.kind == 'mfma':
            if p.defs & c.ab:
                n = max(n, 12)
            if p.defs & c.c and p.defs != c.c:
                n = max(n, 10)
            if p.defs & c.defs and p.defs != c.c:
                n = max(n, 12)
        elif c.kind in ('valu', 'vmem', 'ds'):
            if p.defs & (c.uses | c.defs):
                n = max(n, 12)
            if c.kind == 'valu' and p.c & c.defs:
                n = max(n, 7)
    elif p.kind == 'salu':
        if ('s', 'm0') in p.defs and c.kind == 'vmem' and c.lds:
            n = max(n, 1)
    elif p.kind == 'vmem':
        if p.wide and p.data & c.defs:
            n = max(n, 2)
    return n


class Em:
    def __init__(self):
        self.lines = []
        self.hist = []
        self.vm = []
        self.lg = []
        self.count = {}
        self.nops = 0

    def raw(self, text):
        self.lines.append(text)

    def label(self, name):
        self.lines.append(name + ':')

    def I(self, text, tag=None):
        for t in text.split('\n'):
            t = t.strip()
            if t:
                self._one(t, tag)

    def _one(self, text, tag):
        ins = Ins(text)
        dist = 0
        pad = 0
        for p in reversed(self.hist):
            if dist >= 12:
                break
            pad = max(pad, need(p, ins) - dist)
            dist += p.slots
        if pad > 0:
            self.nops += pad
            nop = Ins('s_nop %d' % (pad - 1))
            self.lines.append('    ' + nop.text)
            self.hist.append(nop)
        self.lines.append('    ' + text)
        self.hist.append(ins)
        self.hist = self.hist[-16:]
        self.count[ins.kind] = self.count.get(ins.kind, 0) + 1
        if ins.kind == 'vmem':
            self.vm.append(tag)
        elif ins.kind == 'ds':
            self.lg.append(tag)

    def settle(self):
        dist = 0
        pad = 0
        for p in reversed(self.hist):
            w = 12 if p.kind == 'mfma' else 5 if p.kind == 'valu' else 2 if p.kind == 'vmem' else 1 if p.kind == 'salu' and p.defs else 0
            pad = max(pad, w - dist)
            dist += p.slots
        if pad > 0:
            self.I('s_nop %d' % (pad - 1))

    @staticmethod
    def _n_after(q, tag):
        tags = tag if isinstance(tag, (list, set)) else [tag]
        idx = -1
        for i, t in enumerate(q):
            if t in tags:
                idx = i
        return idx

    def wait(self, vm=None, lg=None):
        parts = []
        if vm is not None:
            idx = len(self.vm) - 1 if vm == 'all' else self._n_after(self.vm, vm)
            if idx >= 0:
                n = len(self.vm) - 1 - idx
                if n > 63:
                    n = 63
                parts.append('vmcnt(%d)' % n)
                self.vm = self.vm[len(self.vm) - n:] if n else []
        if lg is not None:
            idx = len(self.lg) - 1 if lg == 'all' else self._n_after(self.lg, lg)
            if idx >= 0:
                n = len(self.lg) - 1 - idx
                if n > 15:
                    n = 15
                parts.append('lgkmcnt(%d)' % n)
                self.lg = self.lg[len(self.lg) - n:] if n else []
        if parts:
            self.I('s_waitcnt ' + ' '.join(parts))

    def wait_smem(self):
        self.I('s_waitcnt lgkmcnt(0)')
        self.lg = []

    def text(self):
        return '\n'.join(self.lines)


def weave(main, fill):
    out = []
    n = len(main)
    k = 0
    for i, m in enumerate(main):
        out.append(m)
        tgt = (len(fill) * (i + 1) + n - 1) // n
        while k < tgt:
            out.append(fill[k])
            k += 1
    return out
```

```python
import sys, os
sys.path.insert(0, os.path.dirname(os.path.abspath(__file__)))
from em import Em, weave

BASE = 'gated_mix__ssm_conv_s5__swiglu_ffn__prompt'
NAME = BASE + '_kernel'

ACT_OFF = 0
H_OFF = 0x600000
E_OFF = 0xA00000
G_OFF = 0xA20000
HF_OFF = 0xA24000
AF_OFF = 0xA30000
EPOCH_OFF = 0xA48000
STAMP_OFF = 0xA50000
WS_SIZE = 0xA80000
OOB = 0x2000000
FS = 32
PHI = 0x9E3779B9

SLOT = 24576
WIN = 49152
SCR = 147456
SPART = 98304
LDS_BYTES = 163840

P_X, P_LRE, P_LIM, P_BRE, P_BIM, P_CRE, P_CIM, P_LDT = 4, 6, 8, 10, 12, 14, 16, 18
P_DSK, P_BX, P_WG, P_WU, P_WD, P_GW, P_OUT, P_DBG, P_WS = 20, 22, 24, 26, 28, 30, 32, 34, 36
SX, SWS = 40, 44
SBM, SW, SWD = 48, 52, 56
SC1, SC2, SOUT, SCODE = 48, 52, 56, 60
sWAVE, sW, sRB, sCB, sK0, sRT, sCT, sNONCE, sSG0 = 64, 65, 66, 67, 68, 69, 70, 71, 72
T0, T1, T2, T3, T4, T5, T6 = 73, 74, 75, 76, 77, 78, 79
sNL2E = 80
sMA, sMB = 82, 84
sTBL = 86
sCNT = 97
sTS, sTW, sTD = 98, 99, 100
sMX, sMBm, sMW = 60, 61, 62
SPIN_MAX = 200000

LOG2E = 0x3fb8aa3b
NLOG2E = 0xbfb8aa3b


class Cfg:
    mimic = False
    stamps = False
    rot1 = 8
    rot2 = True
    prewarm = True


def srd(r):
    return 's[%d:%d]' % (r, r + 3)


def vr(a, n):
    return 'v[%d:%d]' % (a, a + n - 1) if n > 1 else 'v%d' % a


def mk_srd(e, r, p, nbytes):
    e.I('s_mov_b32 s%d, s%d\ns_mov_b32 s%d, s%d\ns_mov_b32 s%d, 0x%x\ns_mov_b32 s%d, 0x20000' %
        (r, p, r + 1, p + 1, r + 2, nbytes, r + 3))


def mk_srd_sel(e, r, p1, p0, nbytes):
    e.I('s_cselect_b32 s%d, s%d, s%d\ns_cselect_b32 s%d, s%d, s%d\ns_mov_b32 s%d, 0x%x\ns_mov_b32 s%d, 0x20000' %
        (r, p1, p0, r + 1, p1 + 1, p0 + 1, r + 2, nbytes, r + 3))


def mfma(e, d, a, b, first):
    e.I('v_mfma_f32_32x32x16_bf16 %s, %s, %s, %s' % (vr(d, 16), vr(a, 4), vr(b, 4), '0' if first else vr(d, 16)))


class Stamps:
    def __init__(self, cfg, regs):
        self.on = cfg.stamps
        self.regs = regs
        self.names = []

    def __call__(self, e, name):
        if not self.on:
            return
        r = self.regs[len(self.names)]
        self.names.append(name)
        e.I('s_memrealtime s[%d:%d]' % (r, r + 1))

    def flush(self, e):
        if not self.on:
            return
        e.wait_smem()
        e.I('s_lshl_b32 s%d, s2, 3\ns_add_u32 s%d, s%d, s%d\ns_lshl_b32 s%d, s%d, 6\ns_add_u32 s%d, s%d, 0x%x' %
            (T0, T0, T0, sWAVE, T0, T0, T0, T0, STAMP_OFF))
        e.I('s_mov_b64 exec, 1')
        for k in range(len(self.names)):
            e.I('v_mov_b32 v2, s%d' % self.regs[k])
            e.I('buffer_store_dword v2, off, %s, s%d offset:%d' % (srd(SWS), T0, 4 * k))


def run(items):
    for it in items:
        it()


def poll(e, label, vt, vaddr, soff, mask):
    e.I('s_mov_b64 exec, %s' % mask)
    e.I('s_mov_b32 s%d, 0' % sCNT)
    e.settle()
    e.label(label)
    e.I('buffer_load_dword v%d, v%d, %s, s%d offen sc1' % (vt, vaddr, srd(SWS), soff))
    e.I('s_add_u32 s%d, s%d, 1' % (sCNT, sCNT))
    e.wait(vm='all')
    e.I('v_cmp_ne_u32 vcc, s%d, v%d' % (sNONCE, vt))
    e.I('s_cmp_gt_u32 s%d, %d' % (sCNT, SPIN_MAX))
    e.I('s_cbranch_scc1 %s_out' % label)
    e.I('s_cmp_lg_u64 vcc, 0')
    e.I('s_cbranch_scc1 %s' % label)
    e.label(label + '_out')
    e.I('s_mov_b64 exec, -1')


def flag_store(e, vt, soff):
    e.I('s_mov_b64 exec, 1')
    e.I('buffer_store_dword v%d, off, %s, s%d sc1' % (vt, srd(SWS), soff), tag='flag')
    e.I('s_mov_b64 exec, -1')


def frag_addr(e, dst, t0, t1):
    e.I('v_lshrrev_b32 v%d, 5, v0' % t0)
    e.I('v_bfe_u32 v%d, v0, 1, 3' % t1)
    e.I('v_xor_b32 v%d, v%d, v%d' % (t0, t0, t1))
    e.I('v_and_b32 v%d, 31, v0' % t1)
    e.I('v_lshlrev_b32 v%d, 7, v%d' % (t1, t1))
    e.I('v_lshl_add_u32 v%d, v%d, 4, v%d' % (dst, t0, t1))
    for s in range(1, 4):
        e.I('v_xor_b32 v%d, %d, v%d' % (dst + s, 32 * s, dst))


def w_tr_addr(e, d0, d1, d2, t0, t1):
    e.I('v_lshrrev_b32 v%d, 5, v0' % t0)
    e.I('v_bfe_u32 v%d, v0, 2, 2' % t1)
    e.I('v_lshl_add_u32 v%d, v%d, 3, v%d' % (t0, t0, t1))
    e.I('v_mul_u32_u24 v%d, 192, v%d' % (t0, t0))
    e.I('v_bfe_u32 v%d, v0, 4, 1' % t1)
    e.I('v_lshl_add_u32 v%d, v%d, 5, v%d' % (t0, t1, t0))
    e.I('v_and_b32 v%d, 3, v0' % t1)
    e.I('v_lshl_add_u32 v%d, v%d, 3, v%d' % (d0, t1, t0))
    e.I('v_add_u32 v%d, %d, v%d' % (d1, WIN, d0))
    e.I('v_add_u32 v%d, %d, v%d' % (d2, 2 * WIN, d0))


W_SLOT = [4, 5, 0, 1, 2, 3, 4, 5]


def w_frag_read(e, dst, wins, j, s, mat, g, tag):
    slot = W_SLOT[j]
    for mm in range(2):
        off = (slot & 1) * SLOT + mat * 12288 + (16 * s + 4 * mm) * 192 + g * 64
        e.I('ds_read_b64_tr_b16 %s, v%d offset:%d' % (vr(dst + 2 * mm, 2), wins[slot >> 1], off), tag=tag)


def act_items(e, cfg, G, U, tmp, out):
    items = []
    add = lambda t: items.append(lambda t=t: e.I(t))
    for b in range(2):
        g, u, o = G + 8 * b, U + 8 * b, out + 4 * b
        if cfg.mimic:
            for src in (g, u):
                for p in range(4):
                    add('v_cvt_pk_bf16_f32 v%d, v%d, v%d' % (tmp + p, src + 2 * p, src + 2 * p + 1))
                for p in range(4):
                    add('v_lshlrev_b32 v%d, 16, v%d' % (src + 2 * p, tmp + p))
                    add('v_and_b32 v%d, 0xffff0000, v%d' % (src + 2 * p + 1, tmp + p))
        for p in range(4):
            add('v_pk_mul_f32 %s, %s, s[%d:%d]' % (vr(tmp + 2 * p, 2), vr(g + 2 * p, 2), sNL2E, sNL2E + 1))
        for p in range(8):
            add('v_exp_f32 v%d, v%d' % (tmp + p, tmp + p))
        for p in range(4):
            add('v_pk_add_f32 %s, %s, 1.0 op_sel_hi:[1,0]' % (vr(tmp + 2 * p, 2), vr(tmp + 2 * p, 2)))
        for p in range(8):
            add('v_rcp_f32 v%d, v%d' % (tmp + p, tmp + p))
        for p in range(4):
            add('v_pk_mul_f32 %s, %s, %s' % (vr(g + 2 * p, 2), vr(g + 2 * p, 2), vr(tmp + 2 * p, 2)))
        if cfg.mimic:
            for p in range(4):
                add('v_cvt_pk_bf16_f32 v%d, v%d, v%d' % (tmp + p, g + 2 * p, g + 2 * p + 1))
            for p in range(4):
                add('v_lshlrev_b32 v%d, 16, v%d' % (g + 2 * p, tmp + p))
                add('v_and_b32 v%d, 0xffff0000, v%d' % (g + 2 * p + 1, tmp + p))
        for p in range(4):
            add('v_pk_mul_f32 %s, %s, %s' % (vr(u + 2 * p, 2), vr(g + 2 * p, 2), vr(u + 2 * p, 2)))
        for p in range(4):
            add('v_cvt_pk_bf16_f32 v%d, v%d, v%d' % (o + p, u + 2 * p, u + 2 * p + 1))
    return items


def act_offsets(e, k, s_data, s_flag, valid_scc=False):
    e.I('s_lshl_b32 s%d, s%d, 2\ns_add_u32 s%d, s%d, s%d' % (T0, sRB, T0, T0, sW))
    e.I('s_mul_i32 s%d, s%d, 43\ns_add_u32 s%d, s%d, s%d\ns_add_u32 s%d, s%d, %d\ns_lshl_b32 s%d, s%d, 11' %
        (T1, T0, T1, T1, sSG0, T1, T1, k, s_data, T1))
    e.I('s_lshr_b32 s%d, s%d, 1\ns_mul_i32 s%d, s%d, 44\ns_add_u32 s%d, s%d, s%d\ns_add_u32 s%d, s%d, %d' %
        (T1, T0, T1, T1, T1, T1, sSG0, T1, T1, k))
    e.I('s_lshl_b32 s%d, s%d, 1\ns_and_b32 s%d, s%d, 1\ns_add_u32 s%d, s%d, s%d\ns_mul_i32 s%d, s%d, %d\ns_add_u32 s%d, s%d, 0x%x' %
        (T1, T1, T0, T0, T1, T1, T0, T1, T1, FS, s_flag, T1, AF_OFF))


def part_write_addr(e, dst, t0, t1, piece_stride, wave_stride, base):
    e.I('v_lshrrev_b32 v%d, 5, v0' % t0)
    e.I('v_and_b32 v%d, 7, v0' % t1)
    e.I('v_xor_b32 v%d, v%d, v%d' % (t0, t0, t1))
    e.I('v_lshlrev_b32 v%d, 4, v%d' % (dst, t0))
    e.I('v_bfe_u32 v%d, v0, 3, 2' % t0)
    e.I('v_and_b32 v%d, 3, v0' % t1)
    e.I('v_lshl_add_u32 v%d, v%d, 2, v%d' % (t0, t0, t1))
    e.I('v_lshl_add_u32 v%d, v%d, 8, v%d' % (dst, t0, dst))
    e.I('v_bfe_u32 v%d, v0, 2, 1' % t0)
    e.I('v_mul_u32_u24 v%d, %d, v%d' % (t0, piece_stride, t0))
    e.I('s_mul_i32 s%d, s%d, %d\ns_add_u32 s%d, s%d, %d' % (T0, sW, wave_stride, T0, T0, base))
    e.I('v_add3_u32 v%d, v%d, v%d, s%d' % (dst, dst, t0, T0))
    for a in range(1, 4):
        e.I('v_xor_b32 v%d, %d, v%d' % (dst + a, 32 * a, dst))


def part_write(e, addr, piece_stride):
    for tt in range(2):
        for dt in range(2):
            for a in range(4):
                e.I('ds_write_b128 v%d, %s offset:%d' % (addr + a, vr(64 + 16 * (2 * dt + tt) + 4 * a, 4),
                                                         tt * 2 * piece_stride + dt * 128), tag='pw')


def gen_entry(e, cfg, st):
    e.I('s_cmp_ge_u32 s2, 256\ns_cbranch_scc1 L_end')
    e.I('s_load_dwordx16 s[4:19], s[0:1], 0\ns_load_dwordx16 s[20:35], s[0:1], 64\ns_load_dwordx2 s[36:37], s[0:1], 128')
    st(e, 'start')
    e.I('v_lshrrev_b32 v1, 6, v0\nv_and_b32 v0, 63, v0')
    e.I('v_readfirstlane_b32 s%d, v1' % sWAVE)
    e.I('s_and_b32 s%d, s2, 7\ns_lshr_b32 s%d, s2, 3' % (T0, T1))
    e.I('s_and_b32 s%d, s%d, 7\ns_lshr_b32 s%d, s%d, 3' % (T2, T1, T3, T1))
    e.I('s_and_b32 s%d, s%d, 1\ns_lshl_b32 s%d, s%d, 3\ns_add_u32 s%d, s%d, s%d' % (sRB, T0, sRB, sRB, sRB, sRB, T2))
    e.I('s_lshr_b32 s%d, s%d, 1' % (T4, T0))
    e.I('s_lshl_b32 s%d, s%d, 2\ns_add_u32 s%d, s%d, s%d' % (sCB, T4, sCB, sCB, T3))
    if cfg.rot1 == 8:
        e.I('s_lshl_b32 s%d, s%d, 1\ns_add_u32 s%d, s%d, s%d\ns_and_b32 s%d, s%d, 7' % (sK0, T3, sK0, sK0, T2, sK0, sK0))
    elif cfg.rot1 == 1:
        e.I('s_mov_b32 s%d, 0' % sK0)
    else:
        e.I('s_add_u32 s%d, s%d, s%d\ns_and_b32 s%d, s%d, %d\ns_mul_i32 s%d, s%d, %d' %
            (sK0, T2, T3, sK0, sK0, cfg.rot1 - 1, sK0, sK0, 8 // cfg.rot1))
    e.I('s_mul_i32 s%d, s%d, 11\ns_mul_i32 s%d, s%d, 3\ns_add_u32 s%d, s%d, s%d' % (sSG0, T4, T5, T3, sSG0, sSG0, T5))
    e.I('s_cmp_eq_u32 s%d, 15\ns_subb_u32 s%d, s%d, 0' % (sCB, sSG0, sSG0))
    e.I('s_lshl_b32 s%d, s%d, 2\ns_and_b32 s%d, s%d, 3\ns_add_u32 s%d, s%d, s%d\ns_lshr_b32 s%d, s%d, 2' %
        (sRT, T0, T5, T1, sRT, sRT, T5, sCT, T1))
    e.I('s_and_b32 s%d, s%d, 3' % (sW, sWAVE))
    e.I('s_cmp_lt_u32 s%d, 4\ns_cbranch_scc1 L_A' % sWAVE)


def gen_B(e, cfg, st):
    XV, BV, WV = 16, 20, 22
    WIN3 = [25, 26, 27]
    WDV = 28
    EP = 30
    XA = 32
    e.I('v_lshrrev_b32 v2, 3, v0')
    e.I('v_and_b32 v3, 7, v0')
    e.I('v_lshrrev_b32 v4, 4, v0')
    e.I('v_xor_b32 v4, v3, v4\nv_lshlrev_b32 v4, 4, v4')
    e.I('v_lshrrev_b32 v5, 5, v0\nv_and_b32 v6, 3, v2\nv_lshl_add_u32 v5, v5, 4, v6')
    e.I('s_lshl_b32 s%d, s%d, 2\ns_add_u32 s%d, s%d, s%d\ns_lshl_b32 s%d, s%d, 15' % (T0, sRB, T0, T0, sW, T0, T0))
    e.I('v_lshl_add_u32 v5, v5, 10, s%d' % T0)
    e.I('v_add_u32 v%d, v5, v4' % XV)
    e.I('v_xor_b32 v7, 64, v%d' % XV)
    e.I('v_add_u32 v%d, 3072, v7\nv_add_u32 v%d, 6144, v%d\nv_add_u32 v%d, 9216, v7' % (XV + 1, XV + 2, XV, XV + 3))
    e.I('s_and_b32 s%d, s%d, 1' % (T1, sW))
    e.I('s_lshl_b32 s%d, s%d, 1\ns_add_u32 s%d, s%d, s%d\ns_lshl_b32 s%d, s%d, 14' % (T0, sCB, T0, T0, T1, T0, T0))
    e.I('v_lshl_add_u32 v5, v2, 10, s%d' % T0)
    e.I('v_add_u32 v%d, v5, v4' % BV)
    e.I('v_xor_b32 v7, 64, v%d\nv_add_u32 v%d, 7168, v7' % (BV, BV + 1))
    e.I('s_lshl_b32 s%d, s%d, 12' % (sMX, sW))
    e.I('s_lshl_b32 s%d, s%d, 11\ns_add_u32 s%d, s%d, 16384' % (sMBm, sW, sMBm, sMBm))
    e.I('s_lshl_b32 s%d, s%d, 7' % (T6, sK0))
    e.wait_smem()
    mk_srd(e, SX, P_X, 2048 * 1024)
    e.I('s_cmp_ge_u32 s%d, 2' % sW)
    mk_srd_sel(e, SBM, P_BIM, P_BRE, 512 * 1024)

    def dma_S(i):
        slot = (i % 4) * SLOT
        its = []
        for q in range(4):
            def f(q=q):
                if q == 0:
                    e.I('s_add_u32 s%d, s%d, %d\ns_and_b32 s%d, s%d, 1023' % (sTS, T6, i * 128, sTS, sTS))
                    e.I('s_add_u32 m0, s%d, %d' % (sMX, slot))
                e.I('buffer_load_dwordx4 v%d, %s, s%d offen offset:%d lds' % (XV + q, srd(SX), sTS, 1024 * q), tag=('st', i))
            its.append(f)
        for q in range(2):
            def f(q=q):
                if q == 0:
                    e.I('s_add_u32 m0, s%d, %d' % (sMBm, slot))
                e.I('buffer_load_dwordx4 v%d, %s, s%d offen offset:%d lds' % (BV + q, srd(SBM), sTS, 1024 * q), tag=('st', i))
            its.append(f)
        return its

    run(dma_S(0))
    st(e, 'dma0')
    run(dma_S(1))
    e.I('s_cmp_ge_u32 s%d, 2' % sW)
    mk_srd_sel(e, SW, P_WU, P_WG, 512 * 2752)
    mk_srd(e, SWS, P_WS, WS_SIZE)
    mk_srd(e, SWD, P_WD, 1376 * 1024)
    e.I('s_mov_b32 s%d, 0x%x' % (T0, EPOCH_OFF))
    e.I('buffer_load_dword v%d, off, %s, s%d sc1' % (EP, srd(SWS), T0), tag='ep')
    e.I('s_mul_i32 s%d, s%d, %d\ns_lshl_b32 s%d, s%d, 6\ns_add_u32 s%d, s%d, s%d' % (T0, T1, 32 * 2752, T2, sSG0, T0, T0, T2))
    for q in range(3):
        e.I('v_add_u32 v5, %d, v0\nv_mul_u32_u24 v6, 171, v5\nv_lshrrev_b32 v6, 11, v6' % (64 * q))
        e.I('v_mul_u32_u24 v7, %d, v6' % (2752 - 192))
        e.I('v_lshl_add_u32 v7, v0, 4, v7')
        e.I('v_add_u32 v%d, s%d, v7' % (WV + q, T0))
    e.I('s_mul_i32 s%d, s%d, 6144' % (sMW, sW))
    frag_addr(e, XA, 5, 6)
    for s in range(4):
        e.I('v_add_u32 v%d, s%d, v%d' % (XA + s, sMX, XA + s))
        e.I('v_add_u32 v%d, %d, v%d' % (XA + 4 + s, WIN, XA + s))
    w_tr_addr(e, WIN3[0], WIN3[1], WIN3[2], 5, 6)
    e.I('v_bfe_u32 v5, v0, 4, 1\nv_lshlrev_b32 v5, 2, v5\nv_xor_b32 v5, v5, v3\nv_lshlrev_b32 v5, 4, v5')
    e.I('v_lshl_add_u32 v5, v2, 10, v5')
    e.I('s_lshl_b32 s%d, s%d, 7' % (T0, sCT))
    e.I('v_add_u32 v%d, s%d, v5\nv_add_u32 v%d, 7168, v%d' % (WDV, T0, WDV + 1, WDV))
    e.I('v_lshlrev_b32 v1, 4, v0')

    def dma_W(j):
        slot = W_SLOT[j] * SLOT
        its = []
        for grp in range(2):
            for q in range(3):
                def f(grp=grp, q=q):
                    if q == 0 and grp == 0:
                        e.I('s_add_u32 s%d, s%d, %d\ns_and_b32 s%d, s%d, 7\ns_mul_i32 s%d, s%d, %d' %
                            (sTW, sK0, j, sTW, sTW, sTW, sTW, 64 * 2752))
                    if q == 0 and grp == 1:
                        e.I('s_add_u32 s%d, s%d, %d' % (sTW, sTW, 16 * 2752))
                    if q == 0:
                        e.I('s_add_u32 m0, s%d, %d' % (sMW, slot + grp * 3072))
                    e.I('buffer_load_dwordx4 v%d, %s, s%d offen offset:%d lds' % (WV + q, srd(SW), sTW, 1024 * q), tag=('st', 8 + j))
                its.append(f)
        return its

    def ring_off(n):
        ent = n % 12
        return (ent // 3), (ent % 3) * 2048

    def dma_D(n):
        sl, pos = ring_off(n)
        its = []
        for q in range(2):
            def f(q=q):
                if q == 0:
                    e.I('s_lshl_b32 s%d, s%d, 4' % (sTD, sTBL + n // 2))
                    if n & 1:
                        e.I('s_add_u32 s%d, s%d, 16384' % (sTD, sTD))
                    e.I('s_add_u32 m0, s%d, %d' % (sMW, sl * SLOT + pos))
                e.I('buffer_load_dwordx4 v%d, %s, s%d offen offset:%d lds' % (WDV + q, srd(SWD), sTD, 1024 * q), tag=('wd', n))
            its.append(f)
        return its

    def table_items():
        its = []
        def head():
            e.I('s_cmp_eq_u32 s%d, 3\ns_cselect_b32 s%d, 10, 11' % (sW, T3))
            if cfg.rot2:
                e.I('s_add_u32 s%d, s%d, s%d\ns_and_b32 s%d, s%d, 3\ns_mul_i32 s%d, s%d, 3' % (T4, sRT, sCT, T4, T4, T4, T4))
            else:
                e.I('s_mov_b32 s%d, 0' % T4)
            e.I('s_mul_i32 s%d, s%d, 11' % (T5, sW))
        its.append(head)
        for j in range(11):
            def f(j=j):
                e.I('s_add_u32 s%d, s%d, s%d\ns_lshl_b32 s%d, s%d, 11' % (T0, T4, T5, sTBL + j, T0))
                if j < 10:
                    e.I('s_add_u32 s%d, s%d, 1\ns_cmp_ge_u32 s%d, s%d\ns_cselect_b32 s%d, 0, s%d' % (T4, T4, T4, T3, T4, T4))
                else:
                    e.I('s_cmp_eq_u32 s%d, 3\ns_cselect_b32 s%d, 0x%x, s%d' % (sW, sTBL + j, OOB, sTBL + j))
            its.append(f)
        return its

    e.wait(vm=('st', 0))
    e.I('s_barrier')
    st(e, 'b0')
    tbl = table_items()
    for i in range(8):
        run(dma_S(i + 2) if i < 6 else dma_W(i - 6))
        for s in range(4):
            slot = i % 4
            e.I('ds_read_b128 %s, v%d offset:%d' % (vr(128 + 4 * (4 * i + s), 4), XA + 4 * (slot >> 1) + s, (slot & 1) * SLOT), tag='x')
        if i == 0:
            e.wait(vm='ep')
            e.I('v_readfirstlane_b32 s%d, v%d' % (sNONCE, EP))
            e.I('s_add_u32 s%d, s%d, 0x%x' % (sNONCE, sNONCE, PHI))
            e.I('s_mov_b32 s%d, 0x%x\ns_mov_b32 s%d, 0x%x' % (sNL2E, NLOG2E, sNL2E + 1, NLOG2E))
        if 1 <= i <= 4:
            run(tbl[3 * (i - 1):3 * i])
        if i < 7:
            e.wait(vm=('st', i + 1), lg='all')
            e.I('s_barrier')
    ACC = [64, 80, 96, 112]
    FR = [(0, 1), (1, 1), (0, 2), (1, 2)]

    def rd(n, k):
        mat, g = FR[k]
        w_frag_read(e, 32 + 16 * (n & 1) + 4 * k, WIN3, n >> 2, n & 3, mat, g, ('wf', n, k))

    def mm(n, k):
        e.wait(lg=('wf', n, k))
        mfma(e, ACC[k], 32 + 16 * (n & 1) + 4 * k, 128 + 4 * n, n == 0)

    wq = []
    for j in range(2, 8):
        wq += dma_W(j)
    quota = {0: wq[0:6], 1: wq[6:15], 2: wq[15:24], 3: wq[24:33],
             4: wq[33:36] + dma_D(0) + dma_D(1) + dma_D(2),
             5: dma_D(3) + dma_D(4) + dma_D(5),
             6: dma_D(6) + dma_D(7) + dma_D(8),
             7: dma_D(9) + dma_D(10) + dma_D(11)}
    e.wait(vm=('st', 8), lg='all')
    e.I('s_barrier')
    st(e, 'b8')
    for k in range(4):
        rd(0, k)
    for j in range(8):
        fill = list(quota[j])
        slots = []
        for s in range(4):
            n = 4 * j + s
            if s < 3:
                for k in range(4):
                    slots.append(lambda n=n, k=k: (mm(n, k), rd(n + 1, k)))
            else:
                slots.append(lambda n=n: mm(n, 0))
                slots.append(lambda n=n: mm(n, 1))
        run(weave(slots[:13], fill) + slots[13:])
        n = 4 * j + 3
        if j < 7:
            e.wait(vm=('st', 9 + j))
            e.I('s_barrier')
            rd(n + 1, 0); rd(n + 1, 1)
            mm(n, 2)
            rd(n + 1, 2); rd(n + 1, 3)
            mm(n, 3)
        else:
            mm(n, 2); mm(n, 3)
    st(e, 'f1end')
    DA = 2
    e.I('v_lshrrev_b32 v6, 5, v0\nv_bfe_u32 v7, v0, 2, 2\nv_lshl_add_u32 v6, v6, 2, v7\nv_lshlrev_b32 v6, 7, v6')
    e.I('v_bfe_u32 v7, v0, 3, 1\nv_lshl_add_u32 v6, v7, 6, v6')
    e.I('v_bfe_u32 v7, v0, 4, 1\nv_lshl_add_u32 v6, v7, 5, v6')
    e.I('v_and_b32 v7, 3, v0\nv_lshl_add_u32 v6, v7, 3, v6')
    e.I('v_add_u32 v%d, s%d, v6\nv_xor_b32 v%d, 64, v%d' % (DA, sMW, DA + 1, DA))
    e.I('v_add_u32 v%d, %d, v%d\nv_add_u32 v%d, %d, v%d' % (DA + 2, WIN, DA, DA + 3, WIN, DA + 1))
    sD1, sF1, sD2, sF2 = T2, T3, T4, T5
    act_offsets(e, 1, sD1, sF1)
    e.I('s_add_u32 s%d, s%d, 2048\ns_add_u32 s%d, s%d, %d' % (sD2, sD1, sF2, sF1, 2 * FS))
    e.I('s_and_b32 s%d, s%d, 3\ns_cmp_eq_u32 s%d, 3\ns_cselect_b32 s%d, 1, 0\ns_cmp_eq_u32 s%d, 14\ns_cselect_b32 s%d, 1, s%d\ns_cmp_eq_u32 s%d, 1' %
        (T0, sCB, T0, T0, sCB, T0, T0, T0))
    e.I('s_cselect_b32 s%d, 0x%x, s%d\ns_cselect_b32 s%d, 0x%x, s%d' % (sD2, OOB, sD2, sF2, OOB, sF2))
    e.I('v_mov_b32 v%d, s%d' % (EP, sNONCE))

    def wd_reg(n):
        return 128 + 8 * n if n < 10 else 32 + 8 * (n & 3)

    def wd_read(n):
        sl, pos = ring_off(n)
        e.wait(vm=('wd', n))
        for dt in range(2):
            for mq in range(2):
                e.I('ds_read_b64_tr_b16 %s, v%d offset:%d' % (vr(wd_reg(n) + 4 * dt + 2 * mq, 2), DA + 2 * (sl >> 1) + dt,
                                                             (sl & 1) * SLOT + pos + mq * 1024), tag=('wr', n))

    def refill(n):
        e.wait(lg=('wr', n - 12))
        run(dma_D(n))

    def act_store(o, sD):
        for m in range(2):
            e.I('buffer_store_dwordx4 %s, v1, %s, s%d offen offset:%d sc1' % (vr(o + 4 * m, 4), srd(SWS), sD, 1024 * m), tag=('as', sD))

    a1 = act_items(e, cfg, 64, 80, 8, 40)
    a2 = act_items(e, cfg, 96, 112, 8, 48)
    run(a1)
    act_store(40, sD1)
    e.I('s_barrier')
    run(a2)
    act_store(48, sD2)
    st(e, 'actst')
    for n in range(10):
        wd_read(n)
    e.wait(vm=('as', sD1))
    flag_store(e, EP, sF1)
    e.wait(vm=('as', sD2))
    flag_store(e, EP, sF2)
    st(e, 'flagged')
    for n in range(12, 22):
        refill(n)
    AV = 6
    e.I('s_mul_i32 s%d, s%d, %d' % (T0, sRT, 2 * 88064))
    e.I('v_add_u32 v%d, s%d, v1\nv_add_u32 v%d, 88064, v%d' % (AV, T0, AV + 1, AV))
    PW = 8
    part_write_addr(e, PW, 12, 13, SLOT, 6144, 0)
    e.I('s_mul_i32 s%d, s%d, 44\ns_mul_i32 s%d, s%d, 11\ns_add_u32 s%d, s%d, s%d\ns_mul_i32 s%d, s%d, %d\ns_add_u32 s%d, s%d, 0x%x' %
        (T0, sRT, T1, sW, T0, T0, T1, T0, T0, 2 * FS, T0, T0, AF_OFF))
    e.I('v_mul_u32_u24 v12, %d, v0' % FS)
    e.I('s_mov_b32 s%d, 0x3fffff\ns_cmp_eq_u32 s%d, 3\ns_cselect_b32 s%d, 0xfffff, s%d\ns_mov_b32 s%d, 0' % (sMA, sW, sMA, sMA, sMA + 1))
    poll(e, 'L_pollA', 13, 12, T0, 's[%d:%d]' % (sMA, sMA + 1))
    st(e, 'actrdy')

    def a_reg(n):
        return 208 + 8 * (n % 6)

    def a_load(n):
        for tt in range(2):
            e.I('buffer_load_dwordx4 %s, v%d, %s, s%d offen offset:%d sc1' % (vr(a_reg(n) + 4 * tt, 4), AV + tt, srd(SWS),
                                                                                sTBL + n // 2, 1024 * (n & 1)), tag=('a', n, tt))
    for n in range(6):
        a_load(n)
    wd_read(10)
    wd_read(11)
    for n in range(22):
        if n == 18:
            e.I('s_barrier')
        e.wait(lg=('wr', n))
        for tt in range(2):
            e.wait(vm=('a', n, tt))
            for dt in range(2):
                mfma(e, 64 + 16 * (2 * dt + tt), wd_reg(n) + 4 * dt, a_reg(n) + 4 * tt, n == 0)
        if n + 6 < 22:
            a_load(n + 6)
        if n >= 10 and n + 2 < 22:
            wd_read(n + 2)
    st(e, 'f2end')
    part_write(e, PW, SLOT)
    e.wait(lg='all')
    e.I('s_barrier')
    st(e, 'end')
    st.flush(e)
    e.I('s_endpgm')


def gen_A(e, cfg, st):
    LR, LI, L16, L128, L256, L16S, KAP, PP = 48, 49, 50, 52, 54, 56, 58, 60
    WIN3 = [62, 63, 2]
    SIDX = 3
    RE, IM = 64, 80
    XA, BA = 32, 40
    sHD, sHF, sAD, sAF, sES, sEL, sROT = 86, 87, 88, 89, 90, 91, 92
    if cfg.prewarm:
        e.I('s_getpc_b64 s[%d:%d]' % (SCODE, SCODE + 1))
        e.label('L_pc')
        e.I('s_sub_u32 s%d, s%d, L_pc-%s\ns_subb_u32 s%d, s%d, 0' % (SCODE, SCODE, NAME, SCODE + 1, SCODE + 1))
        e.I('s_mov_b32 s%d, L_end-%s\ns_mov_b32 s%d, 0x20000' % (SCODE + 2, NAME, SCODE + 3))
        e.I('s_lshr_b32 s%d, s2, 3\ns_and_b32 s%d, s%d, 7\ns_lshl_b32 s%d, s%d, 2\ns_add_u32 s%d, s%d, s%d\ns_lshl_b32 s%d, s%d, 10' %
            (T0, T0, T0, T0, T0, T0, T0, sW, T0, T0))
        e.I('v_lshlrev_b32 v4, 7, v0')
        e.I('s_mov_b64 exec, 0xff')
        e.I('buffer_load_dword v20, v4, %s, s%d offen' % (srd(SCODE), T0), tag='pw')
        e.I('s_mov_b64 exec, -1')
    e.I('v_lshlrev_b32 v1, 4, v0')
    e.I('v_and_b32 v21, 31, v0')
    e.I('s_lshl_b32 s%d, s%d, 6' % (T0, sCB))
    e.I('v_lshl_add_u32 v21, v21, 1, s%d' % T0)
    e.I('s_lshl_b32 s%d, s%d, 2\ns_add_u32 s%d, s%d, s%d\ns_lshl_b32 s%d, s%d, 4\ns_add_u32 s%d, s%d, s%d' %
        (T1, sRB, T1, T1, sW, T1, T1, T1, T1, sCB))
    e.I('s_lshl_b32 s%d, s%d, 11' % (T2, T1))
    frag_addr(e, BA, 4, 5)
    e.wait_smem()
    mk_srd(e, SX, P_X, 2048 * 1024)
    mk_srd(e, SWS, P_WS, WS_SIZE)
    e.I('s_mov_b32 s%d, 0x%x' % (T0, EPOCH_OFF))
    e.I('buffer_load_dword v19, off, %s, s%d sc1' % (srd(SWS), T0), tag='ep')
    e.I('global_load_ushort v16, v21, s[%d:%d]' % (P_LRE, P_LRE + 1), tag='par')
    e.I('global_load_ushort v17, v21, s[%d:%d]' % (P_LIM, P_LIM + 1), tag='par')
    e.I('global_load_ushort v18, v21, s[%d:%d]' % (P_LDT, P_LDT + 1), tag='par')
    e.I('global_load_dwordx4 v[12:15], v1, s[%d:%d]' % (P_GW, P_GW + 1), tag='g')
    e.I('buffer_load_dwordx4 v[4:7], v1, %s, s%d offen' % (srd(SX), T2), tag='g')
    e.I('buffer_load_dwordx4 v[8:11], v1, %s, s%d offen offset:1024' % (srd(SX), T2), tag='g')
    e.I('s_lshl_b32 s%d, s%d, 3\ns_add_u32 s%d, s%d, 0x%x' % (T6, T1, T6, T6, G_OFF))
    e.I('s_lshl_b32 s%d, s%d, 12' % (T0, sW))
    for s in range(4):
        e.I('v_add_u32 v%d, s%d, v%d' % (XA + s, T0, BA + s))
        e.I('v_add_u32 v%d, %d, v%d' % (XA + 4 + s, WIN, XA + s))
        e.I('v_add_u32 v%d, %d, v%d' % (BA + 4 + s, WIN, BA + s))
    w_tr_addr(e, WIN3[0], WIN3[1], WIN3[2], 22, 23)
    e.I('v_lshrrev_b32 v22, 5, v0\ns_lshl_b32 s%d, s%d, 1' % (T0, sW))
    e.I('v_add_u32 v%d, s%d, v22' % (SIDX, T0))
    if cfg.rot2:
        e.I('s_add_u32 s%d, s%d, s%d\ns_and_b32 s%d, s%d, 3' % (sROT, sRT, sCT, sROT, sROT))
    else:
        e.I('s_mov_b32 s%d, 0' % sROT)
    e.I('s_bitcmp1_b32 s%d, 0' % sROT)
    mk_srd_sel(e, SC1, P_CIM, P_CRE, 512 * 1024)
    mk_srd_sel(e, SC2, P_CRE, P_CIM, 512 * 1024)
    mk_srd(e, SOUT, P_OUT, 2048 * 2048)
    act_offsets(e, 0, sAD, sAF)
    e.I('s_lshl_b32 s%d, s%d, 2\ns_add_u32 s%d, s%d, s%d' % (T0, sRB, T0, T0, sW))
    e.I('s_lshl_b32 s%d, s%d, 16\ns_lshr_b32 s%d, s%d, 1\ns_lshl_b32 s%d, s%d, 13\ns_add_u32 s%d, s%d, s%d' %
        (sHD, T0, T1, sCB, T1, T1, sHD, sHD, T1))
    e.I('s_and_b32 s%d, s%d, 1\ns_lshl_b32 s%d, s%d, 11\ns_add_u32 s%d, s%d, s%d\ns_add_u32 s%d, s%d, 0x%x' %
        (T1, sCB, T1, T1, sHD, sHD, T1, sHD, sHD, H_OFF))
    e.I('s_lshr_b32 s%d, s%d, 1\ns_lshl_b32 s%d, s%d, 4\ns_add_u32 s%d, s%d, s%d\ns_lshl_b32 s%d, s%d, 1' %
        (T1, T0, T1, T1, T1, T1, sCB, T1, T1))
    e.I('s_and_b32 s%d, s%d, 1\ns_add_u32 s%d, s%d, s%d\ns_mul_i32 s%d, s%d, %d\ns_add_u32 s%d, s%d, 0x%x' %
        (T0, T0, T1, T1, T0, T1, T1, FS, sHF, T1, HF_OFF))
    e.I('s_lshl_b32 s%d, s%d, 13\ns_add_u32 s%d, s%d, 0x%x' % (sEL, sCB, sEL, sEL, E_OFF))
    e.I('s_lshl_b32 s%d, s%d, 9\ns_add_u32 s%d, s%d, s%d\ns_cmp_eq_u32 s%d, 0\ns_cselect_b32 s%d, s%d, 0x%x' %
        (sES, sRB, sES, sES, sEL, sW, sES, sES, OOB))
    e.I('s_mov_b32 s%d, 0x%x\ns_mov_b32 s%d, 0x%x' % (sNL2E, NLOG2E, sNL2E + 1, NLOG2E))

    pro = []
    add = lambda t: [pro.append(lambda x=x: e.I(x)) for x in t.split('\n')]

    def csq(d, a):
        add('v_mul_f32 v30, v%d, v%d\nv_mul_f32 v31, v%d, v%d\nv_fma_f32 v%d, -v%d, v%d, v30\nv_add_f32 v%d, v31, v31' %
            (a, a, a, a + 1, d, a + 1, a + 1, d + 1))

    def cmul(d, a, b):
        add('v_mul_f32 v30, v%d, v%d\nv_mul_f32 v31, v%d, v%d\nv_fma_f32 v30, -v%d, v%d, v30\nv_fma_f32 v%d, v%d, v%d, v31\nv_mov_b32 v%d, v30' %
            (a, b, a, b + 1, a + 1, b + 1, d + 1, a + 1, b, d))

    pro.append(lambda: e.wait(vm=['ep', 'par']))
    add('v_readfirstlane_b32 s%d, v19' % sNONCE)
    add('v_lshlrev_b32 v16, 16, v16\nv_lshlrev_b32 v17, 16, v17\nv_lshlrev_b32 v18, 16, v18')
    add('s_add_u32 s%d, s%d, 0x%x' % (sNONCE, sNONCE, PHI))
    add('v_mul_f32 v18, 0x%x, v18\nv_exp_f32 v18, v18\nv_cvt_pk_bf16_f32 v18, v18, v18\nv_lshlrev_b32 v18, 16, v18' % LOG2E)
    add('v_mul_f32 v21, v18, v16\nv_mul_f32 v22, v18, v17')
    add('v_mul_f32 v21, 0x%x, v21\nv_exp_f32 v21, v21' % LOG2E)
    add('v_mul_f32 v22, 0.15915494, v22\nv_rndne_f32 v23, v22\nv_sub_f32 v22, v22, v23\nv_sin_f32 v23, v22\nv_cos_f32 v22, v22')
    add('v_mul_f32 v%d, v21, v23\nv_mul_f32 v%d, v21, v22' % (LI, LR))
    add('v_mul_f32 v21, v16, v16\nv_fmac_f32 v21, v17, v17\nv_rcp_f32 v21, v21\nv_add_f32 v22, -1.0, v%d\nv_add_f32 v21, v21, v21' % LR)
    add('v_mul_f32 v23, v22, v16\nv_fmac_f32 v23, v%d, v17\nv_mul_f32 v%d, v23, v21' % (LI, KAP))
    add('v_mul_f32 v23, v%d, v16\nv_fma_f32 v23, -v22, v17, v23\nv_mul_f32 v%d, v23, v21' % (LI, KAP + 1))
    csq(22, LR); csq(22, 22); csq(22, 22); csq(L16, 22)
    csq(22, L16); csq(24, 22); csq(L128, 24); csq(L256, L128)
    for bit, src, dst in ((1, L16, L16S), (2, 22, 22), (4, 24, 24)):
        add('v_and_b32 v26, %d, v%d\nv_cmp_ne_u32 vcc, 0, v26' % (bit, SIDX))
        add('v_cndmask_b32 v%d, 1.0, v%d, vcc\nv_cndmask_b32 v%d, 0, v%d, vcc' % (dst, src, dst + 1, src + 1))
    cmul(L16S, L16S, 22); cmul(L16S, L16S, 24)
    pro.append(lambda: e.wait(vm='g'))
    for k in range(4):
        add('v_lshlrev_b32 v21, 16, v%d\nv_and_b32 v22, 0xffff0000, v%d' % (12 + k, 12 + k))
        for row in range(2):
            x = 4 + 4 * row + k
            add('v_lshlrev_b32 v23, 16, v%d\nv_and_b32 v24, 0xffff0000, v%d' % (x, x))
            add('v_mul_f32 v23, v23, v21\nv_mul_f32 v24, v24, v22\nv_cvt_pk_bf16_f32 v23, v23, v24')
            add('v_lshlrev_b32 v24, 16, v23\nv_and_b32 v23, 0xffff0000, v23')
            if k == 0:
                add('v_add_f32 v%d, v23, v24' % (28 + row))
            else:
                add('v_add_f32 v23, v23, v24\nv_add_f32 v%d, v%d, v23' % (28 + row, 28 + row))
    for mod in ('row_shr:1 row_mask:0xf', 'row_shr:2 row_mask:0xf', 'row_shr:4 row_mask:0xf', 'row_shr:8 row_mask:0xf',
                'row_bcast:15 row_mask:0xa', 'row_bcast:31 row_mask:0xc'):
        for row in range(2):
            add('v_add_f32_dpp v%d, v%d, v%d %s bank_mask:0xf' % (28 + row, 28 + row, 28 + row, mod))
    add('v_cvt_pk_bf16_f32 v23, v28, v29\nv_lshlrev_b32 v28, 16, v23\nv_and_b32 v29, 0xffff0000, v23')
    add('v_mul_f32 v28, 0x%x, v28\nv_mul_f32 v29, 0x%x, v29\nv_exp_f32 v28, v28\nv_exp_f32 v29, v29' % (NLOG2E, NLOG2E))
    add('v_add_f32 v28, 1.0, v28\nv_add_f32 v29, 1.0, v29\nv_rcp_f32 v28, v28\nv_rcp_f32 v29, v29')
    add('v_cvt_pk_bf16_f32 v23, v28, v29\nv_lshlrev_b32 v28, 16, v23\nv_and_b32 v29, 0xffff0000, v23')

    def g_store():
        e.I('s_mov_b32 exec_lo, 0\ns_mov_b32 exec_hi, 0x80000000')
        e.I('buffer_store_dwordx2 v[28:29], off, %s, s%d sc1' % (srd(SWS), T6), tag='gs')
        e.I('s_mov_b64 exec, -1')
    pro.append(g_store)

    def s_read(n):
        i, s = n >> 2, n & 3
        slot = i % 4
        if s == 0:
            e.I('s_barrier')
            if i in (0, 7):
                st(e, 'b%d' % i)
        off = (slot & 1) * SLOT
        e.I('ds_read_b128 %s, v%d offset:%d' % (vr(128 + 4 * n, 4), XA + 4 * (slot >> 1) + s, off), tag=('s', n, 0))
        for part in range(2):
            e.I('ds_read_b128 %s, v%d offset:%d' % (vr(96 + 8 * (n & 3) + 4 * part, 4), BA + 4 * (slot >> 1) + s,
                                                    off + 16384 + part * 4096), tag=('s', n, part))

    def s_mm(n, part):
        e.wait(lg=('s', n, part))
        mfma(e, RE + 16 * part, 128 + 4 * n, 96 + 8 * (n & 3) + 4 * part, n == 0)

    D = 2
    seq = []
    for n in range(32):
        seq.append(lambda n=n: (s_mm(n, 0), s_read(n + D) if n + D < 32 else None))
        seq.append(lambda n=n: s_mm(n, 1))
    for n in range(D):
        s_read(n)
    run(pro[:2])
    run(weave(seq[:52], pro[2:]) + seq[52:])
    st(e, 's1end')

    e.I('s_barrier')
    e.I('s_lshl_b32 s%d, s%d, 9\ns_add_u32 s%d, s%d, %d' % (T0, sW, T0, T0, SCR))
    e.I('v_lshl_add_u32 v24, v0, 3, s%d' % T0)
    e.I('v_and_b32 v25, 31, v0\nv_lshlrev_b32 v26, 4, v25\nv_lshlrev_b32 v25, 3, v25\nv_add_u32 v25, %d, v25' % SCR)
    prev = (RE, IM)
    for r in range(1, 16):
        cur = (20 + 2 * (r & 1), 21 + 2 * (r & 1))
        e.I('v_fma_f32 v%d, v%d, v%d, v%d' % (cur[0], LR, prev[0], RE + r))
        e.I('v_fma_f32 v%d, v%d, v%d, v%d' % (cur[1], LR, prev[1], IM + r))
        e.I('v_fma_f32 v%d, -v%d, v%d, v%d' % (cur[0], LI, prev[1], cur[0]))
        e.I('v_fmac_f32 v%d, v%d, v%d' % (cur[1], LI, prev[0]))
        prev = cur
    e.I('ds_write_b64 v24, %s' % vr(prev[0], 2), tag='ex')
    e.wait(lg='all')

    def f_items(j):
        its = []
        def rd(n):
            for mat in range(2):
                w_frag_read(e, 32 + 8 * (n & 1) + 4 * mat, WIN3, n >> 2, n & 3, mat, 0, ('wf', n, mat))
        def mm(n, mat):
            e.wait(lg=('wf', n, mat))
            mfma(e, 96 + 16 * mat, 32 + 8 * (n & 1) + 4 * mat, 128 + 4 * n, n == 0)
        its.append(lambda: rd(4 * j))
        for s in range(4):
            n = 4 * j + s
            if s < 3:
                its.append(lambda n=n: rd(n + 1))
            its.append(lambda n=n: mm(n, 0))
            its.append(lambda n=n: mm(n, 1))
        return its

    def cfma(d, l, a, c):
        e.I('v_fma_f32 v%d, v%d, v%d, v%d' % (d, l, a, c))
        e.I('v_fma_f32 v%d, v%d, v%d, v%d' % (d + 1, l, a + 1, c + 1))
        e.I('v_fma_f32 v%d, -v%d, v%d, v%d' % (d, l + 1, a + 1, d))
        e.I('v_fmac_f32 v%d, v%d, v%d' % (d + 1, l + 1, a))

    e.I('s_barrier')
    for s in range(8):
        e.I('ds_read_b64 %s, v25 offset:%d' % (vr(4 + 2 * s, 2), 256 * s), tag=('e', s))
    e.I('v_mov_b32 v%d, 0\nv_mov_b32 v%d, 0' % (PP, PP + 1))
    for s in range(1, 8):
        e.I('v_cmp_eq_u32 vcc, %d, v%d' % (s, SIDX))
        e.wait(lg=('e', s))
        cfma(4 + 2 * s, L16, 2 + 2 * s, 4 + 2 * s)
        e.I('v_cndmask_b32 v%d, v%d, v%d, vcc\nv_cndmask_b32 v%d, v%d, v%d, vcc' % (PP, PP, 2 + 2 * s, PP + 1, PP + 1, 3 + 2 * s))
    e.I('v_mov_b32 v20, s%d\nv_mov_b32 v21, s%d' % (sNONCE, sNONCE))
    e.I('s_mov_b32 exec_hi, 0')
    e.I('buffer_store_dwordx4 v[18:21], v26, %s, s%d offen sc1' % (srd(SWS), sES), tag='es')
    e.I('s_mov_b32 exec_hi, -1')
    st(e, 'epub')
    run(f_items(0))
    sc = []
    for r in range(16):
        for t in ('v_mul_f32 v4, v%d, v%d' % (KAP + 1, IM + r),
                  'v_mul_f32 v5, v%d, v%d' % (KAP + 1, RE + r),
                  'v_fma_f32 v%d, v%d, v%d, -v4' % (RE + r, KAP, RE + r),
                  'v_fma_f32 v%d, v%d, v%d, v5' % (IM + r, KAP, IM + r)):
            sc.append(lambda t=t: e.I(t))
    e.I('s_barrier')
    run(weave(f_items(1), sc[:40]))
    e.I('s_barrier')
    run(weave(f_items(2), sc[40:]))
    e.I('s_sub_u32 s%d, s%d, 1' % (T0, sRB))
    e.I('v_lshlrev_b32 v27, 1, v%d\nv_sub_u32 v27, s%d, v27' % (SIDX, T0))
    e.I('v_cmp_le_i32 s[%d:%d], 0, v27\nv_cmp_lt_i32 s[%d:%d], 0, v27' % (sMA, sMA + 1, sMB, sMB + 1))
    e.I('v_lshl_add_u32 v27, v27, 9, v26\nv_subrev_u32 v28, 512, v27\nv_mov_b32 v29, 0x%x' % OOB)
    e.I('v_cndmask_b32 v27, v29, v27, s[%d:%d]\nv_cndmask_b32 v28, v29, v28, s[%d:%d]' % (sMA, sMA + 1, sMB, sMB + 1))
    e.I('s_barrier')
    run(f_items(3))
    e.I('s_mov_b32 s%d, 0' % sCNT)
    e.settle()
    e.label('L_pollE')
    e.I('buffer_load_dwordx4 v[4:7], v27, %s, s%d offen sc1' % (srd(SWS), sEL))
    e.I('buffer_load_dwordx4 v[8:11], v28, %s, s%d offen sc1' % (srd(SWS), sEL))
    e.I('s_add_u32 s%d, s%d, 1' % (sCNT, sCNT))
    e.wait(vm='all')
    e.I('v_cmp_ne_u32 vcc, s%d, v6' % sNONCE)
    e.I('v_cmp_ne_u32 s[%d:%d], s%d, v10' % (T1, T1 + 1, sNONCE))
    e.I('s_cmp_gt_u32 s%d, %d\ns_cbranch_scc1 L_pollE_out' % (sCNT, SPIN_MAX))
    e.I('s_and_b64 vcc, vcc, s[%d:%d]\ns_and_b64 s[%d:%d], s[%d:%d], s[%d:%d]\ns_or_b64 vcc, vcc, s[%d:%d]' %
        (sMA, sMA + 1, T1, T1 + 1, T1, T1 + 1, sMB, sMB + 1, T1, T1 + 1))
    e.I('s_cbranch_scc1 L_pollE')
    e.label('L_pollE_out')
    st(e, 'egot')
    cfma(4, L128, 8, 4)
    e.I('ds_write_b64 v24, v[4:5]', tag='ex')
    e.wait(lg='all')
    e.I('s_barrier')
    for s in range(7, -1, -1):
        e.I('ds_read_b64 %s, v25 offset:%d' % (vr(4 + 2 * s, 2), 256 * s), tag=('e', s))
    for s in range(6, -1, -1):
        e.wait(lg=('e', s))
        cfma(4 + 2 * s, L256, 6 + 2 * s, 4 + 2 * s)
    cfma(PP, L16S, 4, PP)
    e.I('v_mul_f32 v6, v%d, v%d\nv_mul_f32 v7, v%d, v%d' % (KAP, PP, KAP, PP + 1))
    e.I('v_fma_f32 v6, -v%d, v%d, v6\nv_fmac_f32 v7, v%d, v%d' % (KAP + 1, PP + 1, KAP + 1, PP))
    p2 = []
    prev = (6, 7)
    for r in range(16):
        for t in ('v_fmac_f32 v%d, v%d, v%d' % (RE + r, LR, prev[0]),
                  'v_fmac_f32 v%d, v%d, v%d' % (IM + r, LR, prev[1]),
                  'v_fma_f32 v%d, -v%d, v%d, v%d' % (RE + r, LI, prev[1], RE + r),
                  'v_fmac_f32 v%d, v%d, v%d' % (IM + r, LI, prev[0])):
            p2.append(lambda t=t: e.I(t))
        prev = (RE + r, IM + r)
    for k in range(8):
        p2.append(lambda k=k: e.I('v_cvt_pk_bf16_f32 v%d, v%d, v%d' % (8 + k, RE + 2 * k, RE + 2 * k + 1)))
        p2.append(lambda k=k: e.I('v_cvt_pk_bf16_f32 v%d, -v%d, -v%d' % (16 + k, IM + 2 * k, IM + 2 * k + 1)))
    run(weave(f_items(4), p2))
    e.I('s_lshl_b32 s%d, s%d, 12\ns_add_u32 s%d, s%d, %d' % (T0, sW, T0, T0, SCR))
    e.I('v_lshrrev_b32 v4, 5, v0\nv_lshlrev_b32 v5, 2, v26\nv_lshl_add_u32 v5, v4, 5, v5\nv_add_u32 v24, s%d, v5' % T0)
    e.I('v_bfe_u32 v5, v0, 2, 2\nv_lshl_add_u32 v4, v4, 3, v5\nv_lshlrev_b32 v4, 6, v4')
    e.I('v_and_b32 v5, 1, v0\nv_lshl_add_u32 v4, v5, 5, v4\nv_bfe_u32 v5, v0, 4, 1\nv_lshl_add_u32 v4, v5, 4, v4')
    e.I('v_bfe_u32 v5, v0, 1, 1\nv_lshl_add_u32 v4, v5, 3, v4\nv_add_u32 v25, s%d, v4' % T0)
    e.I('s_barrier')
    for part in range(2):
        for k in range(2):
            e.I('ds_write_b128 v24, %s offset:%d' % (vr(8 + 8 * part + 4 * k, 4), part * 2048 + 16 * k), tag='tw')
    e.wait(lg='all')
    for part in range(2):
        for m in range(2):
            for mq in range(2):
                e.I('ds_read_b64_tr_b16 %s, v25 offset:%d' % (vr(64 + 8 * part + 4 * m + 2 * mq, 2), part * 2048 + m * 1024 + mq * 256),
                    tag=('t', part, m))
    e.I('s_add_u32 s%d, s%d, 4096' % (T0, sHD))
    for part in range(2):
        for m in range(2):
            e.wait(lg=('t', part, m))
            e.I('buffer_store_dwordx4 %s, v1, %s, s%d offen offset:%d sc1' % (vr(64 + 8 * part + 4 * m, 4), srd(SWS),
                                                                               T0 if part else sHD, 1024 * m), tag='hs')
    st(e, 'hst')
    run(f_items(5))
    CV = 4
    e.I('v_and_b32 v5, 15, v0\nv_lshlrev_b32 v5, 10, v5\nv_bfe_u32 v6, v0, 4, 1\nv_lshl_add_u32 v5, v6, 5, v5')
    e.I('v_lshrrev_b32 v6, 5, v0\nv_lshl_add_u32 v5, v6, 4, v5')
    e.I('s_lshl_b32 s%d, s%d, 16\ns_lshl_b32 s%d, s%d, 8\ns_add_u32 s%d, s%d, s%d' % (T0, sCT, T1, sW, T0, T0, T1))
    e.I('v_add_u32 v%d, s%d, v5' % (CV, T0))
    e.I('v_mov_b32 v5, s%d' % sNONCE)
    e.I('s_lshr_b32 s%d, s%d, 1\ns_lshl_b32 s%d, s%d, 7\ns_xor_b32 s%d, s%d, 128' % (T2, sROT, T2, T2, T3, T2))

    def c_reg(u, cbl, dt):
        return 128 + 32 * u + 16 * cbl + 8 * dt

    def c_loads(u):
        its = []
        for dt in range(2):
            for i2 in range(2):
                def f(dt=dt, i2=i2):
                    e.I('s_add_u32 s%d, s%d, %d' % (T4, T2 + (u >> 1), (2 * dt + i2) * 16384))
                    for cbl in range(2):
                        e.I('buffer_load_dwordx4 %s, v%d, %s, s%d offen offset:%d' %
                            (vr(c_reg(u, cbl, dt) + 4 * i2, 4), CV, srd(SC2 if u & 1 else SC1), T4, 64 * cbl), tag=('c', u))
                its.append(f)
        return its

    e.I('s_barrier')
    e.wait(vm='hs')
    flag_store(e, 5, sHF)
    st(e, 'hflag')
    run(weave(f_items(6), c_loads(0) + c_loads(1)))
    run(weave(f_items(7), c_loads(2)))
    e.I('s_barrier')
    st(e, 'f1end')
    run(c_loads(3))
    run(act_items(e, cfg, 96, 112, 8, 16))
    for m in range(2):
        e.I('buffer_store_dwordx4 %s, v1, %s, s%d offen offset:%d sc1' % (vr(16 + 4 * m, 4), srd(SWS), sAD, 1024 * m), tag='as')
    for u in range(4):
        e.wait(vm=('c', u))
        for cbl in range(2):
            for dt in range(2):
                for k in range(4):
                    e.I('v_permlane16_swap_b32 v%d, v%d' % (c_reg(u, cbl, dt) + k, c_reg(u, cbl, dt) + 4 + k))
    e.wait(vm='as')
    flag_store(e, 5, sAF)
    st(e, 'aflag')
    HV = 6
    e.I('s_lshl_b32 s%d, s%d, 17\ns_lshl_b32 s%d, s%d, 14\ns_add_u32 s%d, s%d, s%d\ns_add_u32 s%d, s%d, 0x%x' %
        (T0, sRT, T1, sW, T0, T0, T1, T0, T0, H_OFF))
    e.I('v_add_u32 v%d, s%d, v1\nv_add_u32 v%d, 0x10000, v%d' % (HV, T0, HV + 1, HV))
    for u in range(4):
        e.I('s_xor_b32 s%d, s%d, %d\ns_lshl_b32 s%d, s%d, 12' % (93 + u, sROT, u, 93 + u, 93 + u))
    PW = 8
    part_write_addr(e, PW, 12, 13, 16384, 4096, SPART)
    e.I('s_lshl_b32 s%d, s%d, 2\ns_add_u32 s%d, s%d, s%d\ns_mul_i32 s%d, s%d, %d\ns_add_u32 s%d, s%d, 0x%x' %
        (T0, sRT, T0, T0, sW, T0, T0, 8 * FS, T0, T0, HF_OFF))
    e.I('v_mul_u32_u24 v12, %d, v0' % FS)
    poll(e, 'L_pollH', 13, 12, T0, '0xff')
    st(e, 'hrdy')

    def h_reg(n):
        return 16 + 8 * (n % 6)

    def h_load(n):
        for tt in range(2):
            e.I('buffer_load_dwordx4 %s, v%d, %s, s%d offen offset:%d sc1' % (vr(h_reg(n) + 4 * tt, 4), HV + tt, srd(SWS),
                                                                                93 + (n >> 2), 1024 * (n & 3)), tag=('h', n, tt))
    for n in range(6):
        h_load(n)
    for n in range(16):
        u, cbl, m = n >> 2, (n >> 1) & 1, n & 1
        for tt in range(2):
            e.wait(vm=('h', n, tt))
            for dt in range(2):
                mfma(e, 64 + 16 * (2 * dt + tt), c_reg(u, cbl, dt) + 4 * m, h_reg(n) + 4 * tt, n == 0)
        if n + 6 < 16:
            h_load(n + 6)
    st(e, 's2end')
    XO, RA, GV = 2, 3, 4
    e.I('s_lshl_b32 s%d, s%d, 2\ns_add_u32 s%d, s%d, s%d\ns_lshl_b32 s%d, s%d, 4' % (T0, sRT, T0, T0, sW, T0, T0))
    e.I('v_lshrrev_b32 v12, 4, v0\nv_add_u32 v13, s%d, v12' % T0)
    e.I('v_and_b32 v14, 15, v0\ns_lshl_b32 s%d, s%d, 7' % (T1, sCT))
    e.I('v_lshl_add_u32 v15, v14, 3, s%d' % T1)
    e.I('v_lshl_add_u32 v%d, v13, 10, v15' % XO)
    e.I('v_lshlrev_b32 v%d, 2, v13\nv_add_u32 v%d, 0x%x, v%d' % (GV, GV, G_OFF, GV))
    e.I('global_load_dwordx2 v[24:25], v15, s[%d:%d]' % (P_DSK, P_DSK + 1), tag='fx')
    for n in range(4):
        e.I('s_mov_b32 s%d, %d' % (T2, 4096 * n))
        e.I('buffer_load_dwordx2 %s, v%d, %s, s%d offen' % (vr(16 + 2 * n, 2), XO, srd(SX), T2), tag='fx')
    e.I('s_and_b32 s%d, s%d, 1\ns_lshl_b32 s%d, s%d, 2' % (T1, sW, T1, T1))
    e.I('v_or_b32 v13, s%d, v12\nv_xor_b32 v13, v13, v14\nv_lshlrev_b32 v13, 4, v13\nv_lshl_add_u32 v13, v12, 8, v13' % T1)
    e.I('s_lshl_b32 s%d, s%d, 14\ns_add_u32 s%d, s%d, %d\ns_mul_i32 s%d, s%d, %d' % (T1, sW, T1, T1, SPART, T2, sW, SLOT))
    e.I('v_add_u32 v%d, s%d, v13\nv_add_u32 v14, s%d, v13' % (RA, T1, T2))
    part_write(e, PW, 16384)
    e.wait(lg='all')
    e.I('s_barrier')
    for n in range(4):
        e.I('buffer_load_dword v%d, v%d, %s, 0 offen offset:%d sc1' % (26 + n, GV, srd(SWS), 16 * n), tag='fg')
    e.I('s_lshl_b32 s%d, s%d, 5\ns_add_u32 s%d, s%d, s%d\ns_lshl_b32 s%d, s%d, 8\ns_add_u32 s%d, s%d, s%d' %
        (T0, sCT, T0, T0, sRT, T1, sW, T0, T0, T1))
    e.I('s_cmp_eq_u32 s%d, 31\ns_cselect_b32 s%d, 0x%x, s%d' % (T0, T0, EPOCH_OFF, SWS + 2))
    flag_store(e, 5, T0)

    def reduce4(addr, stride, dst):
        for n in range(4):
            for w in range(4):
                e.I('ds_read_b128 %s, v%d offset:%d' % (vr(64 + 16 * n + 4 * w, 4), addr, w * stride + n * 1024), tag=('r', n))
        for n in range(4):
            e.wait(lg=('r', n))
            b = 64 + 16 * n
            for k in range(2):
                e.I('v_pk_add_f32 %s, %s, %s' % (vr(b + 2 * k, 2), vr(b + 2 * k, 2), vr(b + 4 + 2 * k, 2)))
                e.I('v_pk_add_f32 %s, %s, %s' % (vr(b + 8 + 2 * k, 2), vr(b + 8 + 2 * k, 2), vr(b + 12 + 2 * k, 2)))
            for k in range(2):
                e.I('v_pk_add_f32 %s, %s, %s' % (vr(dst + 4 * n + 2 * k, 2), vr(b + 2 * k, 2), vr(b + 8 + 2 * k, 2)))

    BS = 32
    reduce4(RA, 4096, BS)
    e.wait(vm='fx')
    e.I('v_lshlrev_b32 v8, 16, v24\nv_and_b32 v9, 0xffff0000, v24\nv_lshlrev_b32 v10, 16, v25\nv_and_b32 v11, 0xffff0000, v25')
    for n in range(4):
        for k in range(2):
            x = 16 + 2 * n + k
            e.I('v_lshlrev_b32 v12, 16, v%d\nv_and_b32 v13, 0xffff0000, v%d' % (x, x))
            e.I('v_pk_mul_f32 v[12:13], v[12:13], %s' % vr(8 + 2 * k, 2))
            e.I('v_cvt_pk_bf16_f32 v13, v12, v13')
            e.I('v_lshlrev_b32 v12, 16, v13\nv_and_b32 v13, 0xffff0000, v13')
            e.I('v_pk_add_f32 %s, %s, v[12:13]' % (vr(BS + 4 * n + 2 * k, 2), vr(BS + 4 * n + 2 * k, 2)))
    e.wait(vm='fg')
    for n in range(4):
        for k in range(4):
            e.I('v_mul_f32 v%d, v%d, v%d' % (BS + 4 * n + k, 26 + n, BS + 4 * n + k))
        e.I('v_sub_f32 v%d, 1.0, v%d' % (26 + n, 26 + n))
        e.I('v_cvt_pk_bf16_f32 v%d, v%d, v%d\nv_lshlrev_b32 v%d, 16, v%d' % (26 + n, 26 + n, 26 + n, 26 + n, 26 + n))
    e.I('v_lshlrev_b32 v%d, 1, v%d' % (XO, XO))
    st(e, 'pre')
    e.I('s_barrier')
    st(e, 'Z')
    FB = 48
    reduce4(14, 6144, FB)
    for n in range(4):
        for k in range(2):
            f = FB + 4 * n + 2 * k
            e.I('v_cvt_pk_bf16_f32 v%d, v%d, v%d' % (f + 1, f, f + 1))
            e.I('v_lshlrev_b32 v%d, 16, v%d\nv_and_b32 v%d, 0xffff0000, v%d' % (f, f + 1, f + 1, f + 1))
            e.I('v_mul_f32 v%d, v%d, v%d\nv_mul_f32 v%d, v%d, v%d' % (f, 26 + n, f, f + 1, 26 + n, f + 1))
            e.I('v_cvt_pk_bf16_f32 v%d, v%d, v%d' % (f + 1, f, f + 1))
            e.I('v_lshlrev_b32 v%d, 16, v%d\nv_and_b32 v%d, 0xffff0000, v%d' % (f, f + 1, f + 1, f + 1))
            e.I('v_pk_add_f32 %s, %s, %s' % (vr(f, 2), vr(f, 2), vr(BS + 4 * n + 2 * k, 2)))
        e.I('s_mov_b32 s%d, %d' % (T2, 8192 * n))
        e.I('buffer_store_dwordx4 %s, v%d, %s, s%d offen' % (vr(FB + 4 * n, 4), XO, srd(SOUT), T2), tag='out')
    st(e, 'end')
    st.flush(e)


HEADER = open(os.path.join(os.path.dirname(os.path.abspath(__file__)), '..', 'cdna_kernels', BASE + '.s.ref')).read()


def generate(cfg):
    hdr = []
    for line in HEADER.split('\n'):
        if not line.startswith(';'):
            break
        if '@launch' in line:
            line = '; @launch grid=(256,1,1) block=(512,1,1) lds=%d' % LDS_BYTES
        hdr.append(line)
    stB = Stamps(cfg, [38, 6, 8, 14, 16, 18, 20, 22, 30, 32, 34, 4, 10, 12])
    stA = Stamps(cfg, [38, 10, 12, 22, 24, 26, 28, 34, 6, 8, 18, 30, 14, 16, 32, 4])
    e = Em()
    gen_entry(e, cfg, stB)
    stA.names = list(stB.names)
    eA = Em()
    eA.hist = list(e.hist)
    gen_B(e, cfg, stB)
    gen_A(eA, cfg, stA)
    txt = '\n'.join(hdr) + '\n'
    txt += '.amdgcn_target "amdgcn-amd-amdhsa--gfx950"\n.text\n.globl %s\n.p2align 8\n.type %s,@function\n%s:\n' % (NAME, NAME, NAME)
    txt += e.text() + '\n.p2align 6\nL_A:\n' + eA.text() + '\nL_end:\n    s_endpgm\n'
    txt += '''.section .rodata,"a"
.p2align 6
.amdhsa_kernel %s
  .amdhsa_next_free_vgpr 256
  .amdhsa_next_free_sgpr 102
  .amdhsa_accum_offset 256
  .amdhsa_group_segment_fixed_size 0
  .amdhsa_kernarg_size 136
  .amdhsa_user_sgpr_count 2
  .amdhsa_user_sgpr_kernarg_segment_ptr 1
  .amdhsa_system_sgpr_workgroup_id_x 1
  .amdhsa_float_denorm_mode_32 3
.end_amdhsa_kernel
''' % NAME
    info = dict(A=eA.count, B=e.count, nopsA=eA.nops, nopsB=e.nops, stampsA=stA.names, stampsB=stB.names)
    return txt, info


def cfg_from(args):
    cfg = Cfg()
    for a in args:
        k, v = a.split('=')
        setattr(cfg, k, eval(v))
    return cfg


if __name__ == '__main__':
    out = sys.argv[1]
    cfg = cfg_from(sys.argv[2:])
    txt, info = generate(cfg)
    open(out, 'w').write(txt)
    print(info)
```

```python
import sys, os
sys.path.insert(0, os.path.dirname(os.path.abspath(__file__)))
from em import Em, weave

BASE = 'gated_mix__ssm_conv_s5__swiglu_ffn__prompt'
NAME = BASE + '_kernel'

ACT_OFF = 0
H_OFF = 0x600000
E_OFF = 0xA00000
G_OFF = 0xA20000
HF_OFF = 0xA24000
AF_OFF = 0xA30000
EPOCH_OFF = 0xA48000
STAMP_OFF = 0xA50000
WS_SIZE = 0xA80000
OOB = 0x2000000
FS = 32
PHI = 0x9E3779B9

SLOT = 24576
WIN = 49152
SCR = 147456
SPART = 98304
LDS_BYTES = 163840

P_X, P_LRE, P_LIM, P_BRE, P_BIM, P_CRE, P_CIM, P_LDT = 4, 6, 8, 10, 12, 14, 16, 18
P_DSK, P_BX, P_WG, P_WU, P_WD, P_GW, P_OUT, P_DBG, P_WS = 20, 22, 24, 26, 28, 30, 32, 34, 36
SX, SWS = 40, 44
SBM, SW, SWD = 48, 52, 56
SC1, SC2, SOUT, SCODE = 48, 52, 56, 60
sWAVE, sW, sRB, sCB, sK0, sRT, sCT, sNONCE, sSG0 = 64, 65, 66, 67, 68, 69, 70, 71, 72
T0, T1, T2, T3, T4, T5, T6 = 73, 74, 75, 76, 77, 78, 79
sNL2E = 80
sMA, sMB = 82, 84
sTBL = 86
sCNT = 97
sTS, sTW, sTD = 98, 99, 100
sMX, sMBm, sMW = 60, 61, 62
SPIN_MAX = 200000

LOG2E = 0x3fb8aa3b
NLOG2E = 0xbfb8aa3b


class Cfg:
    mimic = False
    stamps = False
    rot1 = 8
    rot2 = True
    prewarm = True
    amp = None


def srd(r):
    return 's[%d:%d]' % (r, r + 3)


def vr(a, n):
    return 'v[%d:%d]' % (a, a + n - 1) if n > 1 else 'v%d' % a


def mk_srd(e, r, p, nbytes):
    e.I('s_mov_b32 s%d, s%d\ns_mov_b32 s%d, s%d\ns_mov_b32 s%d, 0x%x\ns_mov_b32 s%d, 0x20000' %
        (r, p, r + 1, p + 1, r + 2, nbytes, r + 3))


def mk_srd_sel(e, r, p1, p0, nbytes):
    e.I('s_cselect_b32 s%d, s%d, s%d\ns_cselect_b32 s%d, s%d, s%d\ns_mov_b32 s%d, 0x%x\ns_mov_b32 s%d, 0x20000' %
        (r, p1, p0, r + 1, p1 + 1, p0 + 1, r + 2, nbytes, r + 3))


def mfma(e, d, a, b, first):
    e.I('v_mfma_f32_32x32x16_bf16 %s, %s, %s, %s' % (vr(d, 16), vr(a, 4), vr(b, 4), '0' if first else vr(d, 16)))


class Stamps:
    def __init__(self, cfg, regs, role):
        self.amp = cfg.amp if cfg.amp else None
        self.role = role
        self.on = cfg.stamps or bool(self.amp)
        self.regs = regs
        self.names = []

    def __call__(self, e, name):
        if not self.on:
            return
        r = self.regs[len(self.names)]
        self.names.append(name)
        if self.amp and name not in ('start', 'end', self.amp[1], self.amp[2]):
            return
        e.I('s_memrealtime s[%d:%d]' % (r, r + 1))

    def flush(self, e):
        if not self.on:
            return
        e.wait_smem()
        if self.amp:
            if self.amp[0] == self.role:
                R = dict(zip(self.names, self.regs))
                e.I('s_sub_u32 s%d, s%d, s%d\ns_mul_i32 s%d, s%d, %d\ns_min_u32 s%d, s%d, 50000' %
                    (T0, R[self.amp[2]], R[self.amp[1]], T0, T0, self.amp[3], T0, T0))
                e.label('L_amp')
                e.I('s_memrealtime s[%d:%d]' % (T1, T1 + 1))
                e.wait_smem()
                e.I('s_sub_u32 s%d, s%d, s%d\ns_cmp_lt_u32 s%d, s%d\ns_cbranch_scc1 L_amp' % (T1, T1, R['end'], T1, T0))
            return
        e.I('s_lshl_b32 s%d, s2, 3\ns_add_u32 s%d, s%d, s%d\ns_lshl_b32 s%d, s%d, 6\ns_add_u32 s%d, s%d, 0x%x' %
            (T0, T0, T0, sWAVE, T0, T0, T0, T0, STAMP_OFF))
        e.I('s_mov_b64 exec, 1')
        for k in range(len(self.names)):
            e.I('v_mov_b32 v2, s%d' % self.regs[k])
            e.I('buffer_store_dword v2, off, %s, s%d offset:%d' % (srd(SWS), T0, 4 * k))


def run(items):
    for it in items:
        it()


def poll(e, label, vt, vaddr, soff, mask):
    e.I('s_mov_b64 exec, %s' % mask)
    e.I('s_mov_b32 s%d, 0' % sCNT)
    e.settle()
    e.label(label)
    e.I('buffer_load_dword v%d, v%d, %s, s%d offen sc1' % (vt, vaddr, srd(SWS), soff))
    e.I('s_add_u32 s%d, s%d, 1' % (sCNT, sCNT))
    e.wait(vm='all')
    e.I('v_cmp_ne_u32 vcc, s%d, v%d' % (sNONCE, vt))
    e.I('s_cmp_gt_u32 s%d, %d' % (sCNT, SPIN_MAX))
    e.I('s_cbranch_scc1 %s_out' % label)
    e.I('s_cmp_lg_u64 vcc, 0')
    e.I('s_cbranch_scc1 %s' % label)
    e.label(label + '_out')
    e.I('s_mov_b64 exec, -1')


def flag_store(e, vt, soff):
    e.I('s_mov_b64 exec, 1')
    e.I('buffer_store_dword v%d, off, %s, s%d sc1' % (vt, srd(SWS), soff), tag='flag')
    e.I('s_mov_b64 exec, -1')


def frag_addr(e, dst, t0, t1):
    e.I('v_lshrrev_b32 v%d, 5, v0' % t0)
    e.I('v_bfe_u32 v%d, v0, 1, 3' % t1)
    e.I('v_xor_b32 v%d, v%d, v%d' % (t0, t0, t1))
    e.I('v_and_b32 v%d, 31, v0' % t1)
    e.I('v_lshlrev_b32 v%d, 7, v%d' % (t1, t1))
    e.I('v_lshl_add_u32 v%d, v%d, 4, v%d' % (dst, t0, t1))
    for s in range(1, 4):
        e.I('v_xor_b32 v%d, %d, v%d' % (dst + s, 32 * s, dst))


def w_tr_addr(e, d0, d1, d2, t0, t1):
    e.I('v_lshrrev_b32 v%d, 5, v0' % t0)
    e.I('v_bfe_u32 v%d, v0, 2, 2' % t1)
    e.I('v_lshl_add_u32 v%d, v%d, 3, v%d' % (t0, t0, t1))
    e.I('v_mul_u32_u24 v%d, 192, v%d' % (t0, t0))
    e.I('v_bfe_u32 v%d, v0, 4, 1' % t1)
    e.I('v_lshl_add_u32 v%d, v%d, 5, v%d' % (t0, t1, t0))
    e.I('v_and_b32 v%d, 3, v0' % t1)
    e.I('v_lshl_add_u32 v%d, v%d, 3, v%d' % (d0, t1, t0))
    e.I('v_add_u32 v%d, %d, v%d' % (d1, WIN, d0))
    e.I('v_add_u32 v%d, %d, v%d' % (d2, 2 * WIN, d0))


W_SLOT = [4, 5, 0, 1, 2, 3, 4, 5]


def w_frag_read(e, dst, wins, j, s, mat, g, tag):
    slot = W_SLOT[j]
    for mm in range(2):
        off = (slot & 1) * SLOT + mat * 12288 + (16 * s + 4 * mm) * 192 + g * 64
        e.I('ds_read_b64_tr_b16 %s, v%d offset:%d' % (vr(dst + 2 * mm, 2), wins[slot >> 1], off), tag=tag)


def act_items(e, cfg, G, U, tmp, out):
    items = []
    add = lambda t: items.append(lambda t=t: e.I(t))
    for b in range(2):
        g, u, o = G + 8 * b, U + 8 * b, out + 4 * b
        if cfg.mimic:
            for src in (g, u):
                for p in range(4):
                    add('v_cvt_pk_bf16_f32 v%d, v%d, v%d' % (tmp + p, src + 2 * p, src + 2 * p + 1))
                for p in range(4):
                    add('v_lshlrev_b32 v%d, 16, v%d' % (src + 2 * p, tmp + p))
                    add('v_and_b32 v%d, 0xffff0000, v%d' % (src + 2 * p + 1, tmp + p))
        for p in range(4):
            add('v_pk_mul_f32 %s, %s, s[%d:%d]' % (vr(tmp + 2 * p, 2), vr(g + 2 * p, 2), sNL2E, sNL2E + 1))
        for p in range(8):
            add('v_exp_f32 v%d, v%d' % (tmp + p, tmp + p))
        for p in range(4):
            add('v_pk_add_f32 %s, %s, 1.0 op_sel_hi:[1,0]' % (vr(tmp + 2 * p, 2), vr(tmp + 2 * p, 2)))
        for p in range(8):
            add('v_rcp_f32 v%d, v%d' % (tmp + p, tmp + p))
        for p in range(4):
            add('v_pk_mul_f32 %s, %s, %s' % (vr(g + 2 * p, 2), vr(g + 2 * p, 2), vr(tmp + 2 * p, 2)))
        if cfg.mimic:
            for p in range(4):
                add('v_cvt_pk_bf16_f32 v%d, v%d, v%d' % (tmp + p, g + 2 * p, g + 2 * p + 1))
            for p in range(4):
                add('v_lshlrev_b32 v%d, 16, v%d' % (g + 2 * p, tmp + p))
                add('v_and_b32 v%d, 0xffff0000, v%d' % (g + 2 * p + 1, tmp + p))
        for p in range(4):
            add('v_pk_mul_f32 %s, %s, %s' % (vr(u + 2 * p, 2), vr(g + 2 * p, 2), vr(u + 2 * p, 2)))
        for p in range(4):
            add('v_cvt_pk_bf16_f32 v%d, v%d, v%d' % (o + p, u + 2 * p, u + 2 * p + 1))
    return items


def act_offsets(e, k, s_data, s_flag, valid_scc=False):
    e.I('s_lshl_b32 s%d, s%d, 2\ns_add_u32 s%d, s%d, s%d' % (T0, sRB, T0, T0, sW))
    e.I('s_mul_i32 s%d, s%d, 43\ns_add_u32 s%d, s%d, s%d\ns_add_u32 s%d, s%d, %d\ns_lshl_b32 s%d, s%d, 11' %
        (T1, T0, T1, T1, sSG0, T1, T1, k, s_data, T1))
    e.I('s_lshr_b32 s%d, s%d, 1\ns_mul_i32 s%d, s%d, 44\ns_add_u32 s%d, s%d, s%d\ns_add_u32 s%d, s%d, %d' %
        (T1, T0, T1, T1, T1, T1, sSG0, T1, T1, k))
    e.I('s_lshl_b32 s%d, s%d, 1\ns_and_b32 s%d, s%d, 1\ns_add_u32 s%d, s%d, s%d\ns_mul_i32 s%d, s%d, %d\ns_add_u32 s%d, s%d, 0x%x' %
        (T1, T1, T0, T0, T1, T1, T0, T1, T1, FS, s_flag, T1, AF_OFF))


def part_write_addr(e, dst, t0, t1, piece_stride, wave_stride, base):
    e.I('v_lshrrev_b32 v%d, 5, v0' % t0)
    e.I('v_and_b32 v%d, 7, v0' % t1)
    e.I('v_xor_b32 v%d, v%d, v%d' % (t0, t0, t1))
    e.I('v_lshlrev_b32 v%d, 4, v%d' % (dst, t0))
    e.I('v_bfe_u32 v%d, v0, 3, 2' % t0)
    e.I('v_and_b32 v%d, 3, v0' % t1)
    e.I('v_lshl_add_u32 v%d, v%d, 2, v%d' % (t0, t0, t1))
    e.I('v_lshl_add_u32 v%d, v%d, 8, v%d' % (dst, t0, dst))
    e.I('v_bfe_u32 v%d, v0, 2, 1' % t0)
    e.I('v_mul_u32_u24 v%d, %d, v%d' % (t0, piece_stride, t0))
    e.I('s_mul_i32 s%d, s%d, %d\ns_add_u32 s%d, s%d, %d' % (T0, sW, wave_stride, T0, T0, base))
    e.I('v_add3_u32 v%d, v%d, v%d, s%d' % (dst, dst, t0, T0))
    for a in range(1, 4):
        e.I('v_xor_b32 v%d, %d, v%d' % (dst + a, 32 * a, dst))


def part_write(e, addr, piece_stride):
    for tt in range(2):
        for dt in range(2):
            for a in range(4):
                e.I('ds_write_b128 v%d, %s offset:%d' % (addr + a, vr(64 + 16 * (2 * dt + tt) + 4 * a, 4),
                                                         tt * 2 * piece_stride + dt * 128), tag='pw')


def gen_entry(e, cfg, st):
    e.I('s_cmp_ge_u32 s2, 256\ns_cbranch_scc1 L_end')
    e.I('s_load_dwordx16 s[4:19], s[0:1], 0\ns_load_dwordx16 s[20:35], s[0:1], 64\ns_load_dwordx2 s[36:37], s[0:1], 128')
    st(e, 'start')
    e.I('v_lshrrev_b32 v1, 6, v0\nv_and_b32 v0, 63, v0')
    e.I('v_readfirstlane_b32 s%d, v1' % sWAVE)
    e.I('s_and_b32 s%d, s2, 7\ns_lshr_b32 s%d, s2, 3' % (T0, T1))
    e.I('s_and_b32 s%d, s%d, 7\ns_lshr_b32 s%d, s%d, 3' % (T2, T1, T3, T1))
    e.I('s_and_b32 s%d, s%d, 1\ns_lshl_b32 s%d, s%d, 3\ns_add_u32 s%d, s%d, s%d' % (sRB, T0, sRB, sRB, sRB, sRB, T2))
    e.I('s_lshr_b32 s%d, s%d, 1' % (T4, T0))
    e.I('s_lshl_b32 s%d, s%d, 2\ns_add_u32 s%d, s%d, s%d' % (sCB, T4, sCB, sCB, T3))
    if cfg.rot1 == 8:
        e.I('s_lshl_b32 s%d, s%d, 1\ns_add_u32 s%d, s%d, s%d\ns_and_b32 s%d, s%d, 7' % (sK0, T3, sK0, sK0, T2, sK0, sK0))
    elif cfg.rot1 == 1:
        e.I('s_mov_b32 s%d, 0' % sK0)
    else:
        e.I('s_add_u32 s%d, s%d, s%d\ns_and_b32 s%d, s%d, %d\ns_mul_i32 s%d, s%d, %d' %
            (sK0, T2, T3, sK0, sK0, cfg.rot1 - 1, sK0, sK0, 8 // cfg.rot1))
    e.I('s_mul_i32 s%d, s%d, 11\ns_mul_i32 s%d, s%d, 3\ns_add_u32 s%d, s%d, s%d' % (sSG0, T4, T5, T3, sSG0, sSG0, T5))
    e.I('s_cmp_eq_u32 s%d, 15\ns_subb_u32 s%d, s%d, 0' % (sCB, sSG0, sSG0))
    e.I('s_lshl_b32 s%d, s%d, 2\ns_and_b32 s%d, s%d, 3\ns_add_u32 s%d, s%d, s%d\ns_lshr_b32 s%d, s%d, 2' %
        (sRT, T0, T5, T1, sRT, sRT, T5, sCT, T1))
    e.I('s_and_b32 s%d, s%d, 3' % (sW, sWAVE))
    e.I('s_cmp_lt_u32 s%d, 4\ns_cbranch_scc1 L_A' % sWAVE)


def gen_B(e, cfg, st):
    XV, BV, WV = 16, 20, 22
    WIN3 = [25, 26, 27]
    WDV = 28
    EP = 30
    XA = 32
    e.I('v_lshrrev_b32 v2, 3, v0')
    e.I('v_and_b32 v3, 7, v0')
    e.I('v_lshrrev_b32 v4, 4, v0')
    e.I('v_xor_b32 v4, v3, v4\nv_lshlrev_b32 v4, 4, v4')
    e.I('v_lshrrev_b32 v5, 5, v0\nv_and_b32 v6, 3, v2\nv_lshl_add_u32 v5, v5, 4, v6')
    e.I('s_lshl_b32 s%d, s%d, 2\ns_add_u32 s%d, s%d, s%d\ns_lshl_b32 s%d, s%d, 15' % (T0, sRB, T0, T0, sW, T0, T0))
    e.I('v_lshl_add_u32 v5, v5, 10, s%d' % T0)
    e.I('v_add_u32 v%d, v5, v4' % XV)
    e.I('v_xor_b32 v7, 64, v%d' % XV)
    e.I('v_add_u32 v%d, 3072, v7\nv_add_u32 v%d, 6144, v%d\nv_add_u32 v%d, 9216, v7' % (XV + 1, XV + 2, XV, XV + 3))
    e.I('s_and_b32 s%d, s%d, 1' % (T1, sW))
    e.I('s_lshl_b32 s%d, s%d, 1\ns_add_u32 s%d, s%d, s%d\ns_lshl_b32 s%d, s%d, 14' % (T0, sCB, T0, T0, T1, T0, T0))
    e.I('v_lshl_add_u32 v5, v2, 10, s%d' % T0)
    e.I('v_add_u32 v%d, v5, v4' % BV)
    e.I('v_xor_b32 v7, 64, v%d\nv_add_u32 v%d, 7168, v7' % (BV, BV + 1))
    e.I('s_lshl_b32 s%d, s%d, 12' % (sMX, sW))
    e.I('s_lshl_b32 s%d, s%d, 11\ns_add_u32 s%d, s%d, 16384' % (sMBm, sW, sMBm, sMBm))
    e.I('s_lshl_b32 s%d, s%d, 7' % (T6, sK0))
    e.wait_smem()
    mk_srd(e, SX, P_X, 2048 * 1024)
    e.I('s_cmp_ge_u32 s%d, 2' % sW)
    mk_srd_sel(e, SBM, P_BIM, P_BRE, 512 * 1024)

    def dma_S(i):
        slot = (i % 4) * SLOT
        its = []
        for q in range(4):
            def f(q=q):
                if q == 0:
                    e.I('s_add_u32 s%d, s%d, %d\ns_and_b32 s%d, s%d, 1023' % (sTS, T6, i * 128, sTS, sTS))
                    e.I('s_add_u32 m0, s%d, %d' % (sMX, slot))
                e.I('buffer_load_dwordx4 v%d, %s, s%d offen offset:%d lds' % (XV + q, srd(SX), sTS, 1024 * q), tag=('st', i))
            its.append(f)
        for q in range(2):
            def f(q=q):
                if q == 0:
                    e.I('s_add_u32 m0, s%d, %d' % (sMBm, slot))
                e.I('buffer_load_dwordx4 v%d, %s, s%d offen offset:%d lds' % (BV + q, srd(SBM), sTS, 1024 * q), tag=('st', i))
            its.append(f)
        return its

    run(dma_S(0))
    st(e, 'dma0')
    run(dma_S(1))
    e.I('s_cmp_ge_u32 s%d, 2' % sW)
    mk_srd_sel(e, SW, P_WU, P_WG, 512 * 2752)
    mk_srd(e, SWS, P_WS, WS_SIZE)
    mk_srd(e, SWD, P_WD, 1376 * 1024)
    e.I('s_mov_b32 s%d, 0x%x' % (T0, EPOCH_OFF))
    e.I('buffer_load_dword v%d, off, %s, s%d sc1' % (EP, srd(SWS), T0), tag='ep')
    e.I('s_mul_i32 s%d, s%d, %d\ns_lshl_b32 s%d, s%d, 6\ns_add_u32 s%d, s%d, s%d' % (T0, T1, 32 * 2752, T2, sSG0, T0, T0, T2))
    for q in range(3):
        e.I('v_add_u32 v5, %d, v0\nv_mul_u32_u24 v6, 171, v5\nv_lshrrev_b32 v6, 11, v6' % (64 * q))
        e.I('v_mul_u32_u24 v7, %d, v6' % (2752 - 192))
        e.I('v_lshl_add_u32 v7, v0, 4, v7')
        e.I('v_add_u32 v%d, s%d, v7' % (WV + q, T0))
    e.I('s_mul_i32 s%d, s%d, 6144' % (sMW, sW))
    frag_addr(e, XA, 5, 6)
    for s in range(4):
        e.I('v_add_u32 v%d, s%d, v%d' % (XA + s, sMX, XA + s))
        e.I('v_add_u32 v%d, %d, v%d' % (XA + 4 + s, WIN, XA + s))
    w_tr_addr(e, WIN3[0], WIN3[1], WIN3[2], 5, 6)
    e.I('v_bfe_u32 v5, v0, 4, 1\nv_lshlrev_b32 v5, 2, v5\nv_xor_b32 v5, v5, v3\nv_lshlrev_b32 v5, 4, v5')
    e.I('v_lshl_add_u32 v5, v2, 10, v5')
    e.I('s_lshl_b32 s%d, s%d, 7' % (T0, sCT))
    e.I('v_add_u32 v%d, s%d, v5\nv_add_u32 v%d, 7168, v%d' % (WDV, T0, WDV + 1, WDV))
    e.I('v_lshlrev_b32 v1, 4, v0')

    def dma_W(j):
        slot = W_SLOT[j] * SLOT
        its = []
        for grp in range(2):
            for q in range(3):
                def f(grp=grp, q=q):
                    if q == 0 and grp == 0:
                        e.I('s_add_u32 s%d, s%d, %d\ns_and_b32 s%d, s%d, 7\ns_mul_i32 s%d, s%d, %d' %
                            (sTW, sK0, j, sTW, sTW, sTW, sTW, 64 * 2752))
                    if q == 0 and grp == 1:
                        e.I('s_add_u32 s%d, s%d, %d' % (sTW, sTW, 16 * 2752))
                    if q == 0:
                        e.I('s_add_u32 m0, s%d, %d' % (sMW, slot + grp * 3072))
                    e.I('buffer_load_dwordx4 v%d, %s, s%d offen offset:%d lds' % (WV + q, srd(SW), sTW, 1024 * q), tag=('st', 8 + j))
                its.append(f)
        return its

    def ring_off(n):
        ent = n % 12
        return (ent // 3), (ent % 3) * 2048

    def dma_D(n):
        sl, pos = ring_off(n)
        its = []
        for q in range(2):
            def f(q=q):
                if q == 0:
                    e.I('s_lshl_b32 s%d, s%d, 4' % (sTD, sTBL + n // 2))
                    if n & 1:
                        e.I('s_add_u32 s%d, s%d, 16384' % (sTD, sTD))
                    e.I('s_add_u32 m0, s%d, %d' % (sMW, sl * SLOT + pos))
                e.I('buffer_load_dwordx4 v%d, %s, s%d offen offset:%d lds' % (WDV + q, srd(SWD), sTD, 1024 * q), tag=('wd', n))
            its.append(f)
        return its

    def table_items():
        its = []
        def head():
            e.I('s_cmp_eq_u32 s%d, 3\ns_cselect_b32 s%d, 10, 11' % (sW, T3))
            if cfg.rot2:
                e.I('s_add_u32 s%d, s%d, s%d\ns_and_b32 s%d, s%d, 3\ns_mul_i32 s%d, s%d, 3' % (T4, sRT, sCT, T4, T4, T4, T4))
            else:
                e.I('s_mov_b32 s%d, 0' % T4)
            e.I('s_mul_i32 s%d, s%d, 11' % (T5, sW))
        its.append(head)
        for j in range(11):
            def f(j=j):
                e.I('s_add_u32 s%d, s%d, s%d\ns_lshl_b32 s%d, s%d, 11' % (T0, T4, T5, sTBL + j, T0))
                if j < 10:
                    e.I('s_add_u32 s%d, s%d, 1\ns_cmp_ge_u32 s%d, s%d\ns_cselect_b32 s%d, 0, s%d' % (T4, T4, T4, T3, T4, T4))
                else:
                    e.I('s_cmp_eq_u32 s%d, 3\ns_cselect_b32 s%d, 0x%x, s%d' % (sW, sTBL + j, OOB, sTBL + j))
            its.append(f)
        return its

    e.wait(vm=('st', 0))
    e.I('s_barrier')
    st(e, 'b0')
    tbl = table_items()
    for i in range(8):
        run(dma_S(i + 2) if i < 6 else dma_W(i - 6))
        for s in range(4):
            slot = i % 4
            e.I('ds_read_b128 %s, v%d offset:%d' % (vr(128 + 4 * (4 * i + s), 4), XA + 4 * (slot >> 1) + s, (slot & 1) * SLOT), tag='x')
        if i == 0:
            e.wait(vm='ep')
            e.I('v_readfirstlane_b32 s%d, v%d' % (sNONCE, EP))
            e.I('s_add_u32 s%d, s%d, 0x%x' % (sNONCE, sNONCE, PHI))
            e.I('s_mov_b32 s%d, 0x%x\ns_mov_b32 s%d, 0x%x' % (sNL2E, NLOG2E, sNL2E + 1, NLOG2E))
        if 1 <= i <= 4:
            run(tbl[3 * (i - 1):3 * i])
        if i < 7:
            e.wait(vm=('st', i + 1), lg='all')
            e.I('s_barrier')
    ACC = [64, 80, 96, 112]
    FR = [(0, 1), (1, 1), (0, 2), (1, 2)]

    def rd(n, k):
        mat, g = FR[k]
        w_frag_read(e, 32 + 16 * (n & 1) + 4 * k, WIN3, n >> 2, n & 3, mat, g, ('wf', n, k))

    def mm(n, k):
        e.wait(lg=('wf', n, k))
        mfma(e, ACC[k], 32 + 16 * (n & 1) + 4 * k, 128 + 4 * n, n == 0)

    wq = []
    for j in range(2, 8):
        wq += dma_W(j)
    quota = {0: wq[0:6], 1: wq[6:15], 2: wq[15:24], 3: wq[24:33],
             4: wq[33:36] + dma_D(0) + dma_D(1) + dma_D(2),
             5: dma_D(3) + dma_D(4) + dma_D(5),
             6: dma_D(6) + dma_D(7) + dma_D(8),
             7: dma_D(9) + dma_D(10) + dma_D(11)}
    e.wait(vm=('st', 8), lg='all')
    e.I('s_barrier')
    st(e, 'b8')
    for k in range(4):
        rd(0, k)
    for j in range(8):
        fill = list(quota[j])
        slots = []
        for s in range(4):
            n = 4 * j + s
            if s < 3:
                for k in range(4):
                    slots.append(lambda n=n, k=k: (mm(n, k), rd(n + 1, k)))
            else:
                slots.append(lambda n=n: mm(n, 0))
                slots.append(lambda n=n: mm(n, 1))
        run(weave(slots[:13], fill) + slots[13:])
        n = 4 * j + 3
        if j < 7:
            e.wait(vm=('st', 9 + j))
            e.I('s_barrier')
            rd(n + 1, 0); rd(n + 1, 1)
            mm(n, 2)
            rd(n + 1, 2); rd(n + 1, 3)
            mm(n, 3)
        else:
            mm(n, 2); mm(n, 3)
    st(e, 'f1end')
    DA = 2
    e.I('v_lshrrev_b32 v6, 5, v0\nv_bfe_u32 v7, v0, 2, 2\nv_lshl_add_u32 v6, v6, 2, v7\nv_lshlrev_b32 v6, 7, v6')
    e.I('v_bfe_u32 v7, v0, 3, 1\nv_lshl_add_u32 v6, v7, 6, v6')
    e.I('v_bfe_u32 v7, v0, 4, 1\nv_lshl_add_u32 v6, v7, 5, v6')
    e.I('v_and_b32 v7, 3, v0\nv_lshl_add_u32 v6, v7, 3, v6')
    e.I('v_add_u32 v%d, s%d, v6\nv_xor_b32 v%d, 64, v%d' % (DA, sMW, DA + 1, DA))
    e.I('v_add_u32 v%d, %d, v%d\nv_add_u32 v%d, %d, v%d' % (DA + 2, WIN, DA, DA + 3, WIN, DA + 1))
    sD1, sF1, sD2, sF2 = T2, T3, T4, T5
    act_offsets(e, 1, sD1, sF1)
    e.I('s_add_u32 s%d, s%d, 2048\ns_add_u32 s%d, s%d, %d' % (sD2, sD1, sF2, sF1, 2 * FS))
    e.I('s_and_b32 s%d, s%d, 3\ns_cmp_eq_u32 s%d, 3\ns_cselect_b32 s%d, 1, 0\ns_cmp_eq_u32 s%d, 14\ns_cselect_b32 s%d, 1, s%d\ns_cmp_eq_u32 s%d, 1' %
        (T0, sCB, T0, T0, sCB, T0, T0, T0))
    e.I('s_cselect_b32 s%d, 0x%x, s%d\ns_cselect_b32 s%d, 0x%x, s%d' % (sD2, OOB, sD2, sF2, OOB, sF2))
    e.I('v_mov_b32 v%d, s%d' % (EP, sNONCE))

    def wd_reg(n):
        return 128 + 8 * n if n < 10 else 32 + 8 * (n & 3)

    def wd_read(n):
        sl, pos = ring_off(n)
        e.wait(vm=('wd', n))
        for dt in range(2):
            for mq in range(2):
                e.I('ds_read_b64_tr_b16 %s, v%d offset:%d' % (vr(wd_reg(n) + 4 * dt + 2 * mq, 2), DA + 2 * (sl >> 1) + dt,
                                                             (sl & 1) * SLOT + pos + mq * 1024), tag=('wr', n))

    def refill(n):
        e.wait(lg=('wr', n - 12))
        run(dma_D(n))

    def act_store(o, sD):
        for m in range(2):
            e.I('buffer_store_dwordx4 %s, v1, %s, s%d offen offset:%d sc1' % (vr(o + 4 * m, 4), srd(SWS), sD, 1024 * m), tag=('as', sD))

    a1 = act_items(e, cfg, 64, 80, 8, 40)
    a2 = act_items(e, cfg, 96, 112, 8, 48)
    run(a1)
    act_store(40, sD1)
    e.I('s_barrier')
    run(a2)
    act_store(48, sD2)
    st(e, 'actst')
    for n in range(10):
        wd_read(n)
    e.wait(vm=('as', sD1))
    flag_store(e, EP, sF1)
    e.wait(vm=('as', sD2))
    flag_store(e, EP, sF2)
    st(e, 'flagged')
    for n in range(12, 22):
        refill(n)
    AV = 6
    e.I('s_mul_i32 s%d, s%d, %d' % (T0, sRT, 2 * 88064))
    e.I('v_add_u32 v%d, s%d, v1\nv_add_u32 v%d, 88064, v%d' % (AV, T0, AV + 1, AV))
    PW = 8
    part_write_addr(e, PW, 12, 13, SLOT, 6144, 0)
    e.I('s_mul_i32 s%d, s%d, 44\ns_mul_i32 s%d, s%d, 11\ns_add_u32 s%d, s%d, s%d\ns_mul_i32 s%d, s%d, %d\ns_add_u32 s%d, s%d, 0x%x' %
        (T0, sRT, T1, sW, T0, T0, T1, T0, T0, 2 * FS, T0, T0, AF_OFF))
    e.I('v_mul_u32_u24 v12, %d, v0' % FS)
    e.I('s_mov_b32 s%d, 0x3fffff\ns_cmp_eq_u32 s%d, 3\ns_cselect_b32 s%d, 0xfffff, s%d\ns_mov_b32 s%d, 0' % (sMA, sW, sMA, sMA, sMA + 1))
    poll(e, 'L_pollA', 13, 12, T0, 's[%d:%d]' % (sMA, sMA + 1))
    st(e, 'actrdy')

    def a_reg(n):
        return 208 + 8 * (n % 6)

    def a_load(n):
        for tt in range(2):
            e.I('buffer_load_dwordx4 %s, v%d, %s, s%d offen offset:%d sc1' % (vr(a_reg(n) + 4 * tt, 4), AV + tt, srd(SWS),
                                                                                sTBL + n // 2, 1024 * (n & 1)), tag=('a', n, tt))
    for n in range(6):
        a_load(n)
    wd_read(10)
    wd_read(11)
    for n in range(22):
        if n == 18:
            e.I('s_barrier')
        e.wait(lg=('wr', n))
        for tt in range(2):
            e.wait(vm=('a', n, tt))
            for dt in range(2):
                mfma(e, 64 + 16 * (2 * dt + tt), wd_reg(n) + 4 * dt, a_reg(n) + 4 * tt, n == 0)
        if n + 6 < 22:
            a_load(n + 6)
        if n >= 10 and n + 2 < 22:
            wd_read(n + 2)
    st(e, 'f2end')
    part_write(e, PW, SLOT)
    e.wait(lg='all')
    e.I('s_barrier')
    st(e, 'end')
    st.flush(e)
    e.I('s_endpgm')


def gen_A(e, cfg, st):
    LR, LI, L16, L128, L256, L16S, KAP, PP = 48, 49, 50, 52, 54, 56, 58, 60
    WIN3 = [62, 63, 2]
    SIDX = 3
    RE, IM = 64, 80
    XA, BA = 32, 40
    sHD, sHF, sAD, sAF, sES, sEL, sROT = 86, 87, 88, 89, 90, 91, 92
    if cfg.prewarm:
        e.I('s_getpc_b64 s[%d:%d]' % (SCODE, SCODE + 1))
        e.label('L_pc')
        e.I('s_sub_u32 s%d, s%d, L_pc-%s\ns_subb_u32 s%d, s%d, 0' % (SCODE, SCODE, NAME, SCODE + 1, SCODE + 1))
        e.I('s_mov_b32 s%d, L_end-%s\ns_mov_b32 s%d, 0x20000' % (SCODE + 2, NAME, SCODE + 3))
        e.I('s_lshr_b32 s%d, s2, 3\ns_and_b32 s%d, s%d, 7\ns_lshl_b32 s%d, s%d, 2\ns_add_u32 s%d, s%d, s%d\ns_lshl_b32 s%d, s%d, 10' %
            (T0, T0, T0, T0, T0, T0, T0, sW, T0, T0))
        e.I('v_lshlrev_b32 v4, 7, v0')
        e.I('s_mov_b64 exec, 0xff')
        e.I('buffer_load_dword v20, v4, %s, s%d offen' % (srd(SCODE), T0), tag='pw')
        e.I('s_mov_b64 exec, -1')
    e.I('v_lshlrev_b32 v1, 4, v0')
    e.I('v_and_b32 v21, 31, v0')
    e.I('s_lshl_b32 s%d, s%d, 6' % (T0, sCB))
    e.I('v_lshl_add_u32 v21, v21, 1, s%d' % T0)
    e.I('s_lshl_b32 s%d, s%d, 2\ns_add_u32 s%d, s%d, s%d\ns_lshl_b32 s%d, s%d, 4\ns_add_u32 s%d, s%d, s%d' %
        (T1, sRB, T1, T1, sW, T1, T1, T1, T1, sCB))
    e.I('s_lshl_b32 s%d, s%d, 11' % (T2, T1))
    frag_addr(e, BA, 4, 5)
    e.wait_smem()
    mk_srd(e, SX, P_X, 2048 * 1024)
    mk_srd(e, SWS, P_WS, WS_SIZE)
    e.I('s_mov_b32 s%d, 0x%x' % (T0, EPOCH_OFF))
    e.I('buffer_load_dword v19, off, %s, s%d sc1' % (srd(SWS), T0), tag='ep')
    e.I('global_load_ushort v16, v21, s[%d:%d]' % (P_LRE, P_LRE + 1), tag='par')
    e.I('global_load_ushort v17, v21, s[%d:%d]' % (P_LIM, P_LIM + 1), tag='par')
    e.I('global_load_ushort v18, v21, s[%d:%d]' % (P_LDT, P_LDT + 1), tag='par')
    e.I('global_load_dwordx4 v[12:15], v1, s[%d:%d]' % (P_GW, P_GW + 1), tag='g')
    e.I('buffer_load_dwordx4 v[4:7], v1, %s, s%d offen' % (srd(SX), T2), tag='g')
    e.I('buffer_load_dwordx4 v[8:11], v1, %s, s%d offen offset:1024' % (srd(SX), T2), tag='g')
    e.I('s_lshl_b32 s%d, s%d, 3\ns_add_u32 s%d, s%d, 0x%x' % (T6, T1, T6, T6, G_OFF))
    e.I('s_lshl_b32 s%d, s%d, 12' % (T0, sW))
    for s in range(4):
        e.I('v_add_u32 v%d, s%d, v%d' % (XA + s, T0, BA + s))
        e.I('v_add_u32 v%d, %d, v%d' % (XA + 4 + s, WIN, XA + s))
        e.I('v_add_u32 v%d, %d, v%d' % (BA + 4 + s, WIN, BA + s))
    w_tr_addr(e, WIN3[0], WIN3[1], WIN3[2], 22, 23)
    e.I('v_lshrrev_b32 v22, 5, v0\ns_lshl_b32 s%d, s%d, 1' % (T0, sW))
    e.I('v_add_u32 v%d, s%d, v22' % (SIDX, T0))
    if cfg.rot2:
        e.I('s_add_u32 s%d, s%d, s%d\ns_and_b32 s%d, s%d, 3' % (sROT, sRT, sCT, sROT, sROT))
    else:
        e.I('s_mov_b32 s%d, 0' % sROT)
    e.I('s_bitcmp1_b32 s%d, 0' % sROT)
    mk_srd_sel(e, SC1, P_CIM, P_CRE, 512 * 1024)
    mk_srd_sel(e, SC2, P_CRE, P_CIM, 512 * 1024)
    mk_srd(e, SOUT, P_OUT, 2048 * 2048)
    act_offsets(e, 0, sAD, sAF)
    e.I('s_lshl_b32 s%d, s%d, 2\ns_add_u32 s%d, s%d, s%d' % (T0, sRB, T0, T0, sW))
    e.I('s_lshl_b32 s%d, s%d, 16\ns_lshr_b32 s%d, s%d, 1\ns_lshl_b32 s%d, s%d, 13\ns_add_u32 s%d, s%d, s%d' %
        (sHD, T0, T1, sCB, T1, T1, sHD, sHD, T1))
    e.I('s_and_b32 s%d, s%d, 1\ns_lshl_b32 s%d, s%d, 11\ns_add_u32 s%d, s%d, s%d\ns_add_u32 s%d, s%d, 0x%x' %
        (T1, sCB, T1, T1, sHD, sHD, T1, sHD, sHD, H_OFF))
    e.I('s_lshr_b32 s%d, s%d, 1\ns_lshl_b32 s%d, s%d, 4\ns_add_u32 s%d, s%d, s%d\ns_lshl_b32 s%d, s%d, 1' %
        (T1, T0, T1, T1, T1, T1, sCB, T1, T1))
    e.I('s_and_b32 s%d, s%d, 1\ns_add_u32 s%d, s%d, s%d\ns_mul_i32 s%d, s%d, %d\ns_add_u32 s%d, s%d, 0x%x' %
        (T0, T0, T1, T1, T0, T1, T1, FS, sHF, T1, HF_OFF))
    e.I('s_lshl_b32 s%d, s%d, 13\ns_add_u32 s%d, s%d, 0x%x' % (sEL, sCB, sEL, sEL, E_OFF))
    e.I('s_lshl_b32 s%d, s%d, 9\ns_add_u32 s%d, s%d, s%d\ns_cmp_eq_u32 s%d, 0\ns_cselect_b32 s%d, s%d, 0x%x' %
        (sES, sRB, sES, sES, sEL, sW, sES, sES, OOB))
    e.I('s_mov_b32 s%d, 0x%x\ns_mov_b32 s%d, 0x%x' % (sNL2E, NLOG2E, sNL2E + 1, NLOG2E))

    pro = []
    add = lambda t: [pro.append(lambda x=x: e.I(x)) for x in t.split('\n')]

    def csq(d, a):
        add('v_mul_f32 v30, v%d, v%d\nv_mul_f32 v31, v%d, v%d\nv_fma_f32 v%d, -v%d, v%d, v30\nv_add_f32 v%d, v31, v31' %
            (a, a, a, a + 1, d, a + 1, a + 1, d + 1))

    def cmul(d, a, b):
        add('v_mul_f32 v30, v%d, v%d\nv_mul_f32 v31, v%d, v%d\nv_fma_f32 v30, -v%d, v%d, v30\nv_fma_f32 v%d, v%d, v%d, v31\nv_mov_b32 v%d, v30' %
            (a, b, a, b + 1, a + 1, b + 1, d + 1, a + 1, b, d))

    pro.append(lambda: e.wait(vm=['ep', 'par']))
    add('v_readfirstlane_b32 s%d, v19' % sNONCE)
    add('v_lshlrev_b32 v16, 16, v16\nv_lshlrev_b32 v17, 16, v17\nv_lshlrev_b32 v18, 16, v18')
    add('s_add_u32 s%d, s%d, 0x%x' % (sNONCE, sNONCE, PHI))
    add('v_mul_f32 v18, 0x%x, v18\nv_exp_f32 v18, v18\nv_cvt_pk_bf16_f32 v18, v18, v18\nv_lshlrev_b32 v18, 16, v18' % LOG2E)
    add('v_mul_f32 v21, v18, v16\nv_mul_f32 v22, v18, v17')
    add('v_mul_f32 v21, 0x%x, v21\nv_exp_f32 v21, v21' % LOG2E)
    add('v_mul_f32 v22, 0.15915494, v22\nv_rndne_f32 v23, v22\nv_sub_f32 v22, v22, v23\nv_sin_f32 v23, v22\nv_cos_f32 v22, v22')
    add('v_mul_f32 v%d, v21, v23\nv_mul_f32 v%d, v21, v22' % (LI, LR))
    add('v_mul_f32 v21, v16, v16\nv_fmac_f32 v21, v17, v17\nv_rcp_f32 v21, v21\nv_add_f32 v22, -1.0, v%d\nv_add_f32 v21, v21, v21' % LR)
    add('v_mul_f32 v23, v22, v16\nv_fmac_f32 v23, v%d, v17\nv_mul_f32 v%d, v23, v21' % (LI, KAP))
    add('v_mul_f32 v23, v%d, v16\nv_fma_f32 v23, -v22, v17, v23\nv_mul_f32 v%d, v23, v21' % (LI, KAP + 1))
    csq(22, LR); csq(22, 22); csq(22, 22); csq(L16, 22)
    csq(22, L16); csq(24, 22); csq(L128, 24); csq(L256, L128)
    for bit, src, dst in ((1, L16, L16S), (2, 22, 22), (4, 24, 24)):
        add('v_and_b32 v26, %d, v%d\nv_cmp_ne_u32 vcc, 0, v26' % (bit, SIDX))
        add('v_cndmask_b32 v%d, 1.0, v%d, vcc\nv_cndmask_b32 v%d, 0, v%d, vcc' % (dst, src, dst + 1, src + 1))
    cmul(L16S, L16S, 22); cmul(L16S, L16S, 24)
    pro.append(lambda: e.wait(vm='g'))
    for k in range(4):
        add('v_lshlrev_b32 v21, 16, v%d\nv_and_b32 v22, 0xffff0000, v%d' % (12 + k, 12 + k))
        for row in range(2):
            x = 4 + 4 * row + k
            add('v_lshlrev_b32 v23, 16, v%d\nv_and_b32 v24, 0xffff0000, v%d' % (x, x))
            add('v_mul_f32 v23, v23, v21\nv_mul_f32 v24, v24, v22\nv_cvt_pk_bf16_f32 v23, v23, v24')
            add('v_lshlrev_b32 v24, 16, v23\nv_and_b32 v23, 0xffff0000, v23')
            if k == 0:
                add('v_add_f32 v%d, v23, v24' % (28 + row))
            else:
                add('v_add_f32 v23, v23, v24\nv_add_f32 v%d, v%d, v23' % (28 + row, 28 + row))
    for mod in ('row_shr:1 row_mask:0xf', 'row_shr:2 row_mask:0xf', 'row_shr:4 row_mask:0xf', 'row_shr:8 row_mask:0xf',
                'row_bcast:15 row_mask:0xa', 'row_bcast:31 row_mask:0xc'):
        for row in range(2):
            add('v_add_f32_dpp v%d, v%d, v%d %s bank_mask:0xf' % (28 + row, 28 + row, 28 + row, mod))
    add('v_cvt_pk_bf16_f32 v23, v28, v29\nv_lshlrev_b32 v28, 16, v23\nv_and_b32 v29, 0xffff0000, v23')
    add('v_mul_f32 v28, 0x%x, v28\nv_mul_f32 v29, 0x%x, v29\nv_exp_f32 v28, v28\nv_exp_f32 v29, v29' % (NLOG2E, NLOG2E))
    add('v_add_f32 v28, 1.0, v28\nv_add_f32 v29, 1.0, v29\nv_rcp_f32 v28, v28\nv_rcp_f32 v29, v29')
    add('v_cvt_pk_bf16_f32 v23, v28, v29\nv_lshlrev_b32 v28, 16, v23\nv_and_b32 v29, 0xffff0000, v23')

    def g_store():
        e.I('s_mov_b32 exec_lo, 0\ns_mov_b32 exec_hi, 0x80000000')
        e.I('buffer_store_dwordx2 v[28:29], off, %s, s%d sc1' % (srd(SWS), T6), tag='gs')
        e.I('s_mov_b64 exec, -1')
    pro.append(g_store)

    def s_read(n):
        i, s = n >> 2, n & 3
        slot = i % 4
        if s == 0:
            e.I('s_barrier')
            if i in (0, 7):
                st(e, 'b%d' % i)
        off = (slot & 1) * SLOT
        e.I('ds_read_b128 %s, v%d offset:%d' % (vr(128 + 4 * n, 4), XA + 4 * (slot >> 1) + s, off), tag=('s', n, 0))
        for part in range(2):
            e.I('ds_read_b128 %s, v%d offset:%d' % (vr(96 + 8 * (n & 3) + 4 * part, 4), BA + 4 * (slot >> 1) + s,
                                                    off + 16384 + part * 4096), tag=('s', n, part))

    def s_mm(n, part):
        e.wait(lg=('s', n, part))
        mfma(e, RE + 16 * part, 128 + 4 * n, 96 + 8 * (n & 3) + 4 * part, n == 0)

    D = 2
    seq = []
    for n in range(32):
        seq.append(lambda n=n: (s_mm(n, 0), s_read(n + D) if n + D < 32 else None))
        seq.append(lambda n=n: s_mm(n, 1))
    for n in range(D):
        s_read(n)
    run(pro[:2])
    run(weave(seq[:52], pro[2:]) + seq[52:])
    st(e, 's1end')

    e.I('s_barrier')
    e.I('s_lshl_b32 s%d, s%d, 9\ns_add_u32 s%d, s%d, %d' % (T0, sW, T0, T0, SCR))
    e.I('v_lshl_add_u32 v24, v0, 3, s%d' % T0)
    e.I('v_and_b32 v25, 31, v0\nv_lshlrev_b32 v26, 4, v25\nv_lshlrev_b32 v25, 3, v25\nv_add_u32 v25, %d, v25' % SCR)
    prev = (RE, IM)
    for r in range(1, 16):
        cur = (20 + 2 * (r & 1), 21 + 2 * (r & 1))
        e.I('v_fma_f32 v%d, v%d, v%d, v%d' % (cur[0], LR, prev[0], RE + r))
        e.I('v_fma_f32 v%d, v%d, v%d, v%d' % (cur[1], LR, prev[1], IM + r))
        e.I('v_fma_f32 v%d, -v%d, v%d, v%d' % (cur[0], LI, prev[1], cur[0]))
        e.I('v_fmac_f32 v%d, v%d, v%d' % (cur[1], LI, prev[0]))
        prev = cur
    e.I('ds_write_b64 v24, %s' % vr(prev[0], 2), tag='ex')
    e.wait(lg='all')

    def f_items(j):
        its = []
        def rd(n):
            for mat in range(2):
                w_frag_read(e, 32 + 8 * (n & 1) + 4 * mat, WIN3, n >> 2, n & 3, mat, 0, ('wf', n, mat))
        def mm(n, mat):
            e.wait(lg=('wf', n, mat))
            mfma(e, 96 + 16 * mat, 32 + 8 * (n & 1) + 4 * mat, 128 + 4 * n, n == 0)
        its.append(lambda: rd(4 * j))
        for s in range(4):
            n = 4 * j + s
            if s < 3:
                its.append(lambda n=n: rd(n + 1))
            its.append(lambda n=n: mm(n, 0))
            its.append(lambda n=n: mm(n, 1))
        return its

    def cfma(d, l, a, c):
        e.I('v_fma_f32 v%d, v%d, v%d, v%d' % (d, l, a, c))
        e.I('v_fma_f32 v%d, v%d, v%d, v%d' % (d + 1, l, a + 1, c + 1))
        e.I('v_fma_f32 v%d, -v%d, v%d, v%d' % (d, l + 1, a + 1, d))
        e.I('v_fmac_f32 v%d, v%d, v%d' % (d + 1, l + 1, a))

    e.I('s_barrier')
    for s in range(8):
        e.I('ds_read_b64 %s, v25 offset:%d' % (vr(4 + 2 * s, 2), 256 * s), tag=('e', s))
    e.I('v_mov_b32 v%d, 0\nv_mov_b32 v%d, 0' % (PP, PP + 1))
    for s in range(1, 8):
        e.I('v_cmp_eq_u32 vcc, %d, v%d' % (s, SIDX))
        e.wait(lg=('e', s))
        cfma(4 + 2 * s, L16, 2 + 2 * s, 4 + 2 * s)
        e.I('v_cndmask_b32 v%d, v%d, v%d, vcc\nv_cndmask_b32 v%d, v%d, v%d, vcc' % (PP, PP, 2 + 2 * s, PP + 1, PP + 1, 3 + 2 * s))
    e.I('v_mov_b32 v20, s%d\nv_mov_b32 v21, s%d' % (sNONCE, sNONCE))
    e.I('s_mov_b32 exec_hi, 0')
    e.I('buffer_store_dwordx4 v[18:21], v26, %s, s%d offen sc1' % (srd(SWS), sES), tag='es')
    e.I('s_mov_b32 exec_hi, -1')
    st(e, 'epub')
    run(f_items(0))
    sc = []
    for r in range(16):
        for t in ('v_mul_f32 v4, v%d, v%d' % (KAP + 1, IM + r),
                  'v_mul_f32 v5, v%d, v%d' % (KAP + 1, RE + r),
                  'v_fma_f32 v%d, v%d, v%d, -v4' % (RE + r, KAP, RE + r),
                  'v_fma_f32 v%d, v%d, v%d, v5' % (IM + r, KAP, IM + r)):
            sc.append(lambda t=t: e.I(t))
    e.I('s_barrier')
    run(weave(f_items(1), sc[:40]))
    e.I('s_barrier')
    run(weave(f_items(2), sc[40:]))
    e.I('s_sub_u32 s%d, s%d, 1' % (T0, sRB))
    e.I('v_lshlrev_b32 v27, 1, v%d\nv_sub_u32 v27, s%d, v27' % (SIDX, T0))
    e.I('v_cmp_le_i32 s[%d:%d], 0, v27\nv_cmp_lt_i32 s[%d:%d], 0, v27' % (sMA, sMA + 1, sMB, sMB + 1))
    e.I('v_lshl_add_u32 v27, v27, 9, v26\nv_subrev_u32 v28, 512, v27\nv_mov_b32 v29, 0x%x' % OOB)
    e.I('v_cndmask_b32 v27, v29, v27, s[%d:%d]\nv_cndmask_b32 v28, v29, v28, s[%d:%d]' % (sMA, sMA + 1, sMB, sMB + 1))
    e.I('s_barrier')
    run(f_items(3))
    e.I('s_mov_b32 s%d, 0' % sCNT)
    e.settle()
    e.label('L_pollE')
    e.I('buffer_load_dwordx4 v[4:7], v27, %s, s%d offen sc1' % (srd(SWS), sEL))
    e.I('buffer_load_dwordx4 v[8:11], v28, %s, s%d offen sc1' % (srd(SWS), sEL))
    e.I('s_add_u32 s%d, s%d, 1' % (sCNT, sCNT))
    e.wait(vm='all')
    e.I('v_cmp_ne_u32 vcc, s%d, v6' % sNONCE)
    e.I('v_cmp_ne_u32 s[%d:%d], s%d, v10' % (T1, T1 + 1, sNONCE))
    e.I('s_cmp_gt_u32 s%d, %d\ns_cbranch_scc1 L_pollE_out' % (sCNT, SPIN_MAX))
    e.I('s_and_b64 vcc, vcc, s[%d:%d]\ns_and_b64 s[%d:%d], s[%d:%d], s[%d:%d]\ns_or_b64 vcc, vcc, s[%d:%d]' %
        (sMA, sMA + 1, T1, T1 + 1, T1, T1 + 1, sMB, sMB + 1, T1, T1 + 1))
    e.I('s_cbranch_scc1 L_pollE')
    e.label('L_pollE_out')
    st(e, 'egot')
    cfma(4, L128, 8, 4)
    e.I('ds_write_b64 v24, v[4:5]', tag='ex')
    e.wait(lg='all')
    e.I('s_barrier')
    for s in range(7, -1, -1):
        e.I('ds_read_b64 %s, v25 offset:%d' % (vr(4 + 2 * s, 2), 256 * s), tag=('e', s))
    for s in range(6, -1, -1):
        e.wait(lg=('e', s))
        cfma(4 + 2 * s, L256, 6 + 2 * s, 4 + 2 * s)
    cfma(PP, L16S, 4, PP)
    e.I('v_mul_f32 v6, v%d, v%d\nv_mul_f32 v7, v%d, v%d' % (KAP, PP, KAP, PP + 1))
    e.I('v_fma_f32 v6, -v%d, v%d, v6\nv_fmac_f32 v7, v%d, v%d' % (KAP + 1, PP + 1, KAP + 1, PP))
    p2 = []
    prev = (6, 7)
    for r in range(16):
        for t in ('v_fmac_f32 v%d, v%d, v%d' % (RE + r, LR, prev[0]),
                  'v_fmac_f32 v%d, v%d, v%d' % (IM + r, LR, prev[1]),
                  'v_fma_f32 v%d, -v%d, v%d, v%d' % (RE + r, LI, prev[1], RE + r),
                  'v_fmac_f32 v%d, v%d, v%d' % (IM + r, LI, prev[0])):
            p2.append(lambda t=t: e.I(t))
        prev = (RE + r, IM + r)
    for k in range(8):
        p2.append(lambda k=k: e.I('v_cvt_pk_bf16_f32 v%d, v%d, v%d' % (8 + k, RE + 2 * k, RE + 2 * k + 1)))
        p2.append(lambda k=k: e.I('v_cvt_pk_bf16_f32 v%d, -v%d, -v%d' % (16 + k, IM + 2 * k, IM + 2 * k + 1)))
    run(weave(f_items(4), p2))
    e.I('s_lshl_b32 s%d, s%d, 12\ns_add_u32 s%d, s%d, %d' % (T0, sW, T0, T0, SCR))
    e.I('v_lshrrev_b32 v4, 5, v0\nv_lshlrev_b32 v5, 2, v26\nv_lshl_add_u32 v5, v4, 5, v5\nv_add_u32 v24, s%d, v5' % T0)
    e.I('v_bfe_u32 v5, v0, 2, 2\nv_lshl_add_u32 v4, v4, 3, v5\nv_lshlrev_b32 v4, 6, v4')
    e.I('v_and_b32 v5, 1, v0\nv_lshl_add_u32 v4, v5, 5, v4\nv_bfe_u32 v5, v0, 4, 1\nv_lshl_add_u32 v4, v5, 4, v4')
    e.I('v_bfe_u32 v5, v0, 1, 1\nv_lshl_add_u32 v4, v5, 3, v4\nv_add_u32 v25, s%d, v4' % T0)
    e.I('s_barrier')
    for part in range(2):
        for k in range(2):
            e.I('ds_write_b128 v24, %s offset:%d' % (vr(8 + 8 * part + 4 * k, 4), part * 2048 + 16 * k), tag='tw')
    e.wait(lg='all')
    for part in range(2):
        for m in range(2):
            for mq in range(2):
                e.I('ds_read_b64_tr_b16 %s, v25 offset:%d' % (vr(64 + 8 * part + 4 * m + 2 * mq, 2), part * 2048 + m * 1024 + mq * 256),
                    tag=('t', part, m))
    e.I('s_add_u32 s%d, s%d, 4096' % (T0, sHD))
    for part in range(2):
        for m in range(2):
            e.wait(lg=('t', part, m))
            e.I('buffer_store_dwordx4 %s, v1, %s, s%d offen offset:%d sc1' % (vr(64 + 8 * part + 4 * m, 4), srd(SWS),
                                                                               T0 if part else sHD, 1024 * m), tag='hs')
    st(e, 'hst')
    run(f_items(5))
    CV = 4
    e.I('v_and_b32 v5, 15, v0\nv_lshlrev_b32 v5, 10, v5\nv_bfe_u32 v6, v0, 4, 1\nv_lshl_add_u32 v5, v6, 5, v5')
    e.I('v_lshrrev_b32 v6, 5, v0\nv_lshl_add_u32 v5, v6, 4, v5')
    e.I('s_lshl_b32 s%d, s%d, 16\ns_lshl_b32 s%d, s%d, 8\ns_add_u32 s%d, s%d, s%d' % (T0, sCT, T1, sW, T0, T0, T1))
    e.I('v_add_u32 v%d, s%d, v5' % (CV, T0))
    e.I('v_mov_b32 v5, s%d' % sNONCE)
    e.I('s_lshr_b32 s%d, s%d, 1\ns_lshl_b32 s%d, s%d, 7\ns_xor_b32 s%d, s%d, 128' % (T2, sROT, T2, T2, T3, T2))

    def c_reg(u, cbl, dt):
        return 128 + 32 * u + 16 * cbl + 8 * dt

    def c_loads(u):
        its = []
        for dt in range(2):
            for i2 in range(2):
                def f(dt=dt, i2=i2):
                    e.I('s_add_u32 s%d, s%d, %d' % (T4, T2 + (u >> 1), (2 * dt + i2) * 16384))
                    for cbl in range(2):
                        e.I('buffer_load_dwordx4 %s, v%d, %s, s%d offen offset:%d' %
                            (vr(c_reg(u, cbl, dt) + 4 * i2, 4), CV, srd(SC2 if u & 1 else SC1), T4, 64 * cbl), tag=('c', u))
                its.append(f)
        return its

    e.I('s_barrier')
    e.wait(vm='hs')
    flag_store(e, 5, sHF)
    st(e, 'hflag')
    run(weave(f_items(6), c_loads(0) + c_loads(1)))
    run(weave(f_items(7), c_loads(2)))
    e.I('s_barrier')
    st(e, 'f1end')
    run(c_loads(3))
    run(act_items(e, cfg, 96, 112, 8, 16))
    for m in range(2):
        e.I('buffer_store_dwordx4 %s, v1, %s, s%d offen offset:%d sc1' % (vr(16 + 4 * m, 4), srd(SWS), sAD, 1024 * m), tag='as')
    for u in range(4):
        e.wait(vm=('c', u))
        for cbl in range(2):
            for dt in range(2):
                for k in range(4):
                    e.I('v_permlane16_swap_b32 v%d, v%d' % (c_reg(u, cbl, dt) + k, c_reg(u, cbl, dt) + 4 + k))
    e.wait(vm='as')
    flag_store(e, 5, sAF)
    st(e, 'aflag')
    HV = 6
    e.I('s_lshl_b32 s%d, s%d, 17\ns_lshl_b32 s%d, s%d, 14\ns_add_u32 s%d, s%d, s%d\ns_add_u32 s%d, s%d, 0x%x' %
        (T0, sRT, T1, sW, T0, T0, T1, T0, T0, H_OFF))
    e.I('v_add_u32 v%d, s%d, v1\nv_add_u32 v%d, 0x10000, v%d' % (HV, T0, HV + 1, HV))
    for u in range(4):
        e.I('s_xor_b32 s%d, s%d, %d\ns_lshl_b32 s%d, s%d, 12' % (93 + u, sROT, u, 93 + u, 93 + u))
    PW = 8
    part_write_addr(e, PW, 12, 13, 16384, 4096, SPART)
    e.I('s_lshl_b32 s%d, s%d, 2\ns_add_u32 s%d, s%d, s%d\ns_mul_i32 s%d, s%d, %d\ns_add_u32 s%d, s%d, 0x%x' %
        (T0, sRT, T0, T0, sW, T0, T0, 8 * FS, T0, T0, HF_OFF))
    e.I('v_mul_u32_u24 v12, %d, v0' % FS)
    poll(e, 'L_pollH', 13, 12, T0, '0xff')
    st(e, 'hrdy')

    def h_reg(n):
        return 16 + 8 * (n % 6)

    def h_load(n):
        for tt in range(2):
            e.I('buffer_load_dwordx4 %s, v%d, %s, s%d offen offset:%d sc1' % (vr(h_reg(n) + 4 * tt, 4), HV + tt, srd(SWS),
                                                                                93 + (n >> 2), 1024 * (n & 3)), tag=('h', n, tt))
    for n in range(6):
        h_load(n)
    for n in range(16):
        u, cbl, m = n >> 2, (n >> 1) & 1, n & 1
        for tt in range(2):
            e.wait(vm=('h', n, tt))
            for dt in range(2):
                mfma(e, 64 + 16 * (2 * dt + tt), c_reg(u, cbl, dt) + 4 * m, h_reg(n) + 4 * tt, n == 0)
        if n + 6 < 16:
            h_load(n + 6)
    st(e, 's2end')
    XO, RA, GV = 2, 3, 4
    e.I('s_lshl_b32 s%d, s%d, 2\ns_add_u32 s%d, s%d, s%d\ns_lshl_b32 s%d, s%d, 4' % (T0, sRT, T0, T0, sW, T0, T0))
    e.I('v_lshrrev_b32 v12, 4, v0\nv_add_u32 v13, s%d, v12' % T0)
    e.I('v_and_b32 v14, 15, v0\ns_lshl_b32 s%d, s%d, 7' % (T1, sCT))
    e.I('v_lshl_add_u32 v15, v14, 3, s%d' % T1)
    e.I('v_lshl_add_u32 v%d, v13, 10, v15' % XO)
    e.I('v_lshlrev_b32 v%d, 2, v13\nv_add_u32 v%d, 0x%x, v%d' % (GV, GV, G_OFF, GV))
    e.I('global_load_dwordx2 v[24:25], v15, s[%d:%d]' % (P_DSK, P_DSK + 1), tag='fx')
    for n in range(4):
        e.I('s_mov_b32 s%d, %d' % (T2, 4096 * n))
        e.I('buffer_load_dwordx2 %s, v%d, %s, s%d offen' % (vr(16 + 2 * n, 2), XO, srd(SX), T2), tag='fx')
    e.I('s_and_b32 s%d, s%d, 1\ns_lshl_b32 s%d, s%d, 2' % (T1, sW, T1, T1))
    e.I('v_or_b32 v13, s%d, v12\nv_xor_b32 v13, v13, v14\nv_lshlrev_b32 v13, 4, v13\nv_lshl_add_u32 v13, v12, 8, v13' % T1)
    e.I('s_lshl_b32 s%d, s%d, 14\ns_add_u32 s%d, s%d, %d\ns_mul_i32 s%d, s%d, %d' % (T1, sW, T1, T1, SPART, T2, sW, SLOT))
    e.I('v_add_u32 v%d, s%d, v13\nv_add_u32 v14, s%d, v13' % (RA, T1, T2))
    part_write(e, PW, 16384)
    e.wait(lg='all')
    e.I('s_barrier')
    for n in range(4):
        e.I('buffer_load_dword v%d, v%d, %s, 0 offen offset:%d sc1' % (26 + n, GV, srd(SWS), 16 * n), tag='fg')
    e.I('s_lshl_b32 s%d, s%d, 5\ns_add_u32 s%d, s%d, s%d\ns_lshl_b32 s%d, s%d, 8\ns_add_u32 s%d, s%d, s%d' %
        (T0, sCT, T0, T0, sRT, T1, sW, T0, T0, T1))
    e.I('s_cmp_eq_u32 s%d, 31\ns_cselect_b32 s%d, 0x%x, s%d' % (T0, T0, EPOCH_OFF, SWS + 2))
    flag_store(e, 5, T0)

    def reduce4(addr, stride, dst):
        for n in range(4):
            for w in range(4):
                e.I('ds_read_b128 %s, v%d offset:%d' % (vr(64 + 16 * n + 4 * w, 4), addr, w * stride + n * 1024), tag=('r', n))
        for n in range(4):
            e.wait(lg=('r', n))
            b = 64 + 16 * n
            for k in range(2):
                e.I('v_pk_add_f32 %s, %s, %s' % (vr(b + 2 * k, 2), vr(b + 2 * k, 2), vr(b + 4 + 2 * k, 2)))
                e.I('v_pk_add_f32 %s, %s, %s' % (vr(b + 8 + 2 * k, 2), vr(b + 8 + 2 * k, 2), vr(b + 12 + 2 * k, 2)))
            for k in range(2):
                e.I('v_pk_add_f32 %s, %s, %s' % (vr(dst + 4 * n + 2 * k, 2), vr(b + 2 * k, 2), vr(b + 8 + 2 * k, 2)))

    BS = 32
    reduce4(RA, 4096, BS)
    e.wait(vm='fx')
    e.I('v_lshlrev_b32 v8, 16, v24\nv_and_b32 v9, 0xffff0000, v24\nv_lshlrev_b32 v10, 16, v25\nv_and_b32 v11, 0xffff0000, v25')
    for n in range(4):
        for k in range(2):
            x = 16 + 2 * n + k
            e.I('v_lshlrev_b32 v12, 16, v%d\nv_and_b32 v13, 0xffff0000, v%d' % (x, x))
            e.I('v_pk_mul_f32 v[12:13], v[12:13], %s' % vr(8 + 2 * k, 2))
            e.I('v_cvt_pk_bf16_f32 v13, v12, v13')
            e.I('v_lshlrev_b32 v12, 16, v13\nv_and_b32 v13, 0xffff0000, v13')
            e.I('v_pk_add_f32 %s, %s, v[12:13]' % (vr(BS + 4 * n + 2 * k, 2), vr(BS + 4 * n + 2 * k, 2)))
    e.wait(vm='fg')
    for n in range(4):
        for k in range(4):
            e.I('v_mul_f32 v%d, v%d, v%d' % (BS + 4 * n + k, 26 + n, BS + 4 * n + k))
        e.I('v_sub_f32 v%d, 1.0, v%d' % (26 + n, 26 + n))
        e.I('v_cvt_pk_bf16_f32 v%d, v%d, v%d\nv_lshlrev_b32 v%d, 16, v%d' % (26 + n, 26 + n, 26 + n, 26 + n, 26 + n))
    e.I('v_lshlrev_b32 v%d, 1, v%d' % (XO, XO))
    st(e, 'pre')
    e.I('s_barrier')
    st(e, 'Z')
    FB = 48
    reduce4(14, 6144, FB)
    for n in range(4):
        for k in range(2):
            f = FB + 4 * n + 2 * k
            e.I('v_cvt_pk_bf16_f32 v%d, v%d, v%d' % (f + 1, f, f + 1))
            e.I('v_lshlrev_b32 v%d, 16, v%d\nv_and_b32 v%d, 0xffff0000, v%d' % (f, f + 1, f + 1, f + 1))
            e.I('v_mul_f32 v%d, v%d, v%d\nv_mul_f32 v%d, v%d, v%d' % (f, 26 + n, f, f + 1, 26 + n, f + 1))
            e.I('v_cvt_pk_bf16_f32 v%d, v%d, v%d' % (f + 1, f, f + 1))
            e.I('v_lshlrev_b32 v%d, 16, v%d\nv_and_b32 v%d, 0xffff0000, v%d' % (f, f + 1, f + 1, f + 1))
            e.I('v_pk_add_f32 %s, %s, %s' % (vr(f, 2), vr(f, 2), vr(BS + 4 * n + 2 * k, 2)))
        e.I('s_mov_b32 s%d, %d' % (T2, 8192 * n))
        e.I('buffer_store_dwordx4 %s, v%d, %s, s%d offen' % (vr(FB + 4 * n, 4), XO, srd(SOUT), T2), tag='out')
    st(e, 'end')
    st.flush(e)


HEADER = open(os.path.join(os.path.dirname(os.path.abspath(__file__)), '..', 'cdna_kernels', BASE + '.s.ref')).read()


def generate(cfg):
    hdr = []
    for line in HEADER.split('\n'):
        if not line.startswith(';'):
            break
        if '@launch' in line:
            line = '; @launch grid=(256,1,1) block=(512,1,1) lds=%d' % LDS_BYTES
        hdr.append(line)
    stB = Stamps(cfg, [38, 6, 8, 14, 16, 18, 20, 22, 30, 32, 34, 4, 10, 12], 'B')
    stA = Stamps(cfg, [38, 10, 12, 22, 24, 26, 28, 34, 6, 8, 18, 30, 14, 16, 32, 4], 'A')
    e = Em()
    gen_entry(e, cfg, stB)
    stA.names = list(stB.names)
    eA = Em()
    eA.hist = list(e.hist)
    gen_B(e, cfg, stB)
    gen_A(eA, cfg, stA)
    txt = '\n'.join(hdr) + '\n'
    txt += '.amdgcn_target "amdgcn-amd-amdhsa--gfx950"\n.text\n.globl %s\n.p2align 8\n.type %s,@function\n%s:\n' % (NAME, NAME, NAME)
    txt += e.text() + '\n.p2align 6\nL_A:\n' + eA.text() + '\nL_end:\n    s_endpgm\n'
    txt += '''.section .rodata,"a"
.p2align 6
.amdhsa_kernel %s
  .amdhsa_next_free_vgpr 256
  .amdhsa_next_free_sgpr 102
  .amdhsa_accum_offset 256
  .amdhsa_group_segment_fixed_size 0
  .amdhsa_kernarg_size 136
  .amdhsa_user_sgpr_count 2
  .amdhsa_user_sgpr_kernarg_segment_ptr 1
  .amdhsa_system_sgpr_workgroup_id_x 1
  .amdhsa_float_denorm_mode_32 3
.end_amdhsa_kernel
''' % NAME
    info = dict(A=eA.count, B=e.count, nopsA=eA.nops, nopsB=e.nops, stampsA=stA.names, stampsB=stB.names)
    return txt, info


def cfg_from(args):
    cfg = Cfg()
    for a in args:
        k, v = a.split('=')
        setattr(cfg, k, eval(v))
    return cfg


if __name__ == '__main__':
    out = sys.argv[1]
    cfg = cfg_from(sys.argv[2:])
    txt, info = generate(cfg)
    open(out, 'w').write(txt)
    print(info)
```

```python
import re

_OPRE = re.compile(r'^-?(?:abs\()?([vs])(?:\[(\d+):(\d+)\]|(\d+))\)?$')

TRANS = ('v_exp_f32', 'v_log_f32', 'v_rcp_f32', 'v_rsq_f32', 'v_sqrt_f32', 'v_sin_f32', 'v_cos_f32')
NODEF_S = ('s_cmp', 's_waitcnt', 's_barrier', 's_nop', 's_cbranch', 's_branch', 's_endpgm', 's_setprio', 's_sleep')


def regs_of(tok):
    tok = tok.strip()
    if tok in ('vcc', 'vcc_lo', 'vcc_hi'):
        return {('s', 'vcc')}
    if tok in ('exec', 'exec_lo', 'exec_hi'):
        return {('s', 'exec')}
    if tok == 'm0':
        return {('s', 'm0')}
    m = _OPRE.match(tok)
    if not m:
        return set()
    k = m.group(1)
    if m.group(4) is not None:
        return {(k, int(m.group(4)))}
    return {(k, i) for i in range(int(m.group(2)), int(m.group(3)) + 1)}


class Ins:
    def __init__(self, text):
        self.text = text
        body = text.split(';')[0].strip()
        parts = body.split(None, 1)
        self.mn = parts[0]
        rest = parts[1] if len(parts) > 1 else ''
        toks = [t.strip() for t in rest.split(',')] if rest else []
        self.mods = ''
        if toks:
            for i, t in enumerate(toks):
                if ' ' in t:
                    a, b = t.split(None, 1)
                    self.mods = b + ',' + ','.join(toks[i + 1:])
                    toks = toks[:i] + [a]
                    break
        self.ops = [regs_of(t) for t in toks]
        mn = self.mn
        self.slots = 1
        self.defs = set()
        self.uses = set()
        allr = lambda L: set().union(*L) if L else set()
        self.kind = None
        if mn.startswith('v_mfma'):
            self.kind = 'mfma'
            self.defs = self.ops[0]
            self.ab = self.ops[1] | self.ops[2]
            self.c = self.ops[3]
            self.uses = self.ab | self.c
        elif mn.startswith('v_'):
            self.kind = 'valu'
            base = mn.replace('_e32', '').replace('_e64', '').replace('_dpp', '')
            self.trans = base in TRANS
            self.dpp = mn.endswith('_dpp')
            self.perm = base.startswith('v_permlane')
            self.lane = base in ('v_readfirstlane_b32', 'v_readlane_b32')
            if self.perm:
                self.defs = self.ops[0] | self.ops[1]
                self.uses = set(self.defs)
            else:
                self.defs = self.ops[0]
                self.uses = allr(self.ops[1:])
                if base.startswith('v_fmac') or self.dpp or base.startswith('v_dot2c'):
                    self.uses |= self.ops[0]
        elif mn.startswith('buffer_') or mn.startswith('global_'):
            self.kind = 'vmem'
            self.lds = bool(re.search(r'\blds\b', self.mods))
            self.store = '_store' in mn or '_atomic' in mn
            self.wide = self.store and ('x4' in mn or 'x3' in mn)
            if self.store:
                self.uses = allr(self.ops)
                self.data = self.ops[0] if mn.startswith('buffer_') else self.ops[1]
            elif self.lds:
                self.uses = allr(self.ops) | {('s', 'm0')}
            else:
                self.defs = self.ops[0]
                self.uses = allr(self.ops[1:])
        elif mn.startswith('ds_'):
            self.kind = 'ds'
            if mn.startswith('ds_read'):
                self.defs = self.ops[0]
                self.uses = allr(self.ops[1:])
            else:
                self.uses = allr(self.ops)
        elif mn.startswith('s_'):
            self.kind = 'salu'
            if mn == 's_nop':
                self.slots = int(rest) + 1
            elif any(mn.startswith(p) for p in NODEF_S):
                self.uses = allr(self.ops)
                if 'vcc' in mn:
                    self.uses = self.uses | {('s', 'vcc')}
            else:
                self.defs = self.ops[0] if self.ops else set()
                self.uses = allr(self.ops[1:])
        else:
            raise ValueError('unknown instruction: ' + text)


def need(p, c):
    n = 0
    vd = {r for r in p.defs if r[0] == 'v'}
    sd = {r for r in p.defs if r[0] == 's'}
    if p.kind == 'valu':
        if c.kind == 'mfma' and vd & c.uses:
            n = max(n, 2)
        if c.kind == 'valu':
            if p.trans and (vd & c.uses):
                n = max(n, 1)
            if c.perm and vd & c.uses:
                n = max(n, 2)
            if c.dpp and vd & c.uses:
                n = max(n, 2)
            if c.lane and vd & c.uses:
                n = max(n, 1)
            if sd & c.uses:
                n = max(n, 4 if c.lane else 2)
        if c.kind == 'vmem' and sd & c.uses:
            n = max(n, 5)
        if c.kind == 'salu' and sd & c.uses:
            n = max(n, 2)
    elif p.kind == 'mfma':
        if c.kind == 'mfma':
            if p.defs & c.ab:
                n = max(n, 12)
            if p.defs & c.c and p.defs != c.c:
                n = max(n, 10)
            if p.defs & c.defs and p.defs != c.c:
                n = max(n, 12)
        elif c.kind in ('valu', 'vmem', 'ds'):
            if p.defs & (c.uses | c.defs):
                n = max(n, 12)
            if c.kind == 'valu' and p.c & c.defs:
                n = max(n, 7)
    elif p.kind == 'salu':
        if ('s', 'm0') in p.defs and c.kind == 'vmem' and c.lds:
            n = max(n, 1)
    elif p.kind == 'vmem':
        if p.wide and p.data & c.defs:
            n = max(n, 2)
    return n


class Em:
    def __init__(self):
        self.lines = []
        self.hist = []
        self.vm = []
        self.lg = []
        self.count = {}
        self.nops = 0
        self.cold = []

    def cold_block(self):
        em = self

        class Ctx:
            def __enter__(s):
                s.sv = (em.lines, list(em.hist), list(em.vm), list(em.lg))
                em.lines = em.cold

            def __exit__(s, *a):
                em.lines, em.hist, em.vm, em.lg = s.sv
        return Ctx()

    def raw(self, text):
        self.lines.append(text)

    def label(self, name):
        self.lines.append(name + ':')

    def I(self, text, tag=None):
        for t in text.split('\n'):
            t = t.strip()
            if t:
                self._one(t, tag)

    def _one(self, text, tag):
        ins = Ins(text)
        dist = 0
        pad = 0
        for p in reversed(self.hist):
            if dist >= 12:
                break
            pad = max(pad, need(p, ins) - dist)
            dist += p.slots
        if pad > 0:
            self.nops += pad
            nop = Ins('s_nop %d' % (pad - 1))
            self.lines.append('    ' + nop.text)
            self.hist.append(nop)
        self.lines.append('    ' + text)
        self.hist.append(ins)
        self.hist = self.hist[-16:]
        self.count[ins.kind] = self.count.get(ins.kind, 0) + 1
        if ins.kind == 'vmem':
            self.vm.append(tag)
        elif ins.kind == 'ds':
            self.lg.append(tag)

    def settle(self):
        dist = 0
        pad = 0
        for p in reversed(self.hist):
            w = 12 if p.kind == 'mfma' else 5 if p.kind == 'valu' else 2 if p.kind == 'vmem' else 1 if p.kind == 'salu' and p.defs else 0
            pad = max(pad, w - dist)
            dist += p.slots
        if pad > 0:
            self.I('s_nop %d' % (pad - 1))

    @staticmethod
    def _n_after(q, tag):
        tags = tag if isinstance(tag, (list, set)) else [tag]
        idx = -1
        for i, t in enumerate(q):
            if t in tags:
                idx = i
        return idx

    def wait(self, vm=None, lg=None):
        parts = []
        if vm is not None:
            idx = len(self.vm) - 1 if vm == 'all' else self._n_after(self.vm, vm)
            if idx >= 0:
                n = len(self.vm) - 1 - idx
                if n > 63:
                    n = 63
                parts.append('vmcnt(%d)' % n)
                self.vm = self.vm[len(self.vm) - n:] if n else []
        if lg is not None:
            idx = len(self.lg) - 1 if lg == 'all' else self._n_after(self.lg, lg)
            if idx >= 0:
                n = len(self.lg) - 1 - idx
                if n > 15:
                    n = 15
                parts.append('lgkmcnt(%d)' % n)
                self.lg = self.lg[len(self.lg) - n:] if n else []
        if parts:
            self.I('s_waitcnt ' + ' '.join(parts))

    def wait_smem(self):
        self.I('s_waitcnt lgkmcnt(0)')
        self.lg = []

    def text(self):
        return '\n'.join(self.lines)


def weave(main, fill):
    out = []
    n = len(main)
    k = 0
    for i, m in enumerate(main):
        out.append(m)
        tgt = (len(fill) * (i + 1) + n - 1) // n
        while k < tgt:
            out.append(fill[k])
            k += 1
    return out
```

```python
import sys, os
sys.path.insert(0, os.path.dirname(os.path.abspath(__file__)))
from em import Em, weave

BASE = 'gated_mix__ssm_conv_s5__swiglu_ffn__prompt'
NAME = BASE + '_kernel'

ACT_OFF = 0
H_OFF = 0x600000
E_OFF = 0xA00000
G_OFF = 0xA20000
HF_OFF = 0xA24000
AF_OFF = 0xA30000
EPOCH_OFF = 0xA48000
STAMP_OFF = 0xA50000
WS_SIZE = 0xA80000
OOB = 0x2000000
FS = 32
PHI = 0x9E3779B8

SLOT = 24576
WIN = 49152
SCR = 147456
SPART = 98304
L_E, L_FL, L_EG = SCR, SCR + 4096, SCR + 8192
L_P2 = 3 * SLOT + 4096
LDS_BYTES = 163840

P_X, P_LRE, P_LIM, P_BRE, P_BIM, P_CRE, P_CIM, P_LDT = 4, 6, 8, 10, 12, 14, 16, 18
P_DSK, P_BX, P_WG, P_WU, P_WD, P_GW, P_OUT, P_DBG, P_WS = 20, 22, 24, 26, 28, 30, 32, 34, 36
SX, SWS = 40, 44
SBM, SW, SWD = 48, 52, 56
SC1, SC2, SOUT, SCODE = 48, 52, 56, 60
SWA = 60
sWAVE, sW, sRB, sCB, sK0, sRT, sCT, sNONCE, sSG0 = 64, 65, 66, 67, 68, 69, 70, 71, 72
T0, T1, T2, T3, T4, T5, T6 = 73, 74, 75, 76, 77, 78, 79
sNL2E = 80
sMA, sMB = 82, 84
sTBL = 86
sCNT = 97
sTS, sTW, sTD = 98, 99, 100
sMX, sMBm = 60, 61
sMW = 101
SPIN_MAX = 200000

SLEEP = [0, 0]
LOG2E = 0x3fb8aa3b
NLOG2E = 0xbfb8aa3b


class Cfg:
    mimic = False
    stamps = False
    rot1 = (1, 2)
    rot2 = 7
    map2 = 84
    prewarm = True
    NT = 0
    early = 200
    JL = 7
    prog = 'W2,T0|;T1,W3|sel;T2,W4,C0|;E0,T3,W5|;W6,D0|P0;W7,D1,D2|P1;|H;C1,C2|F'
    p2cut = 50
    cbuf = (4, 0, 1, 4, 0, 1, 4, 0)
    tplan = (('A', 0, 0, 8), ('A', 1, 8, 16), ('A', 2, 16, 27), ('A', 3, 27, 38))
    zfill = True
    prioB = 0
    LA = 4
    posX = 8
    pren = 4
    hnow = 4
    sleep = (1, 1)
    skip = ''
    flagpos = (0, 2, 5)
    apoll = 3
    outflags = ''
    selA = None
    selB = None
    prioA = 0
    amp = None


def srd(r):
    return 's[%d:%d]' % (r, r + 3)


def vr(a, n):
    return 'v[%d:%d]' % (a, a + n - 1) if n > 1 else 'v%d' % a


def mk_srd(e, r, p, nbytes):
    e.I('s_mov_b32 s%d, s%d\ns_mov_b32 s%d, s%d\ns_mov_b32 s%d, 0x%x\ns_mov_b32 s%d, 0x20000' %
        (r, p, r + 1, p + 1, r + 2, nbytes, r + 3))


def mk_srd_sel(e, r, p1, p0, nbytes):
    e.I('s_cselect_b32 s%d, s%d, s%d\ns_cselect_b32 s%d, s%d, s%d\ns_mov_b32 s%d, 0x%x\ns_mov_b32 s%d, 0x20000' %
        (r, p1, p0, r + 1, p1 + 1, p0 + 1, r + 2, nbytes, r + 3))


def mfma(e, d, a, b, first):
    e.I('v_mfma_f32_32x32x16_bf16 %s, %s, %s, %s' % (vr(d, 16), vr(a, 4), vr(b, 4), '0' if first else vr(d, 16)))


class Stamps:
    def __init__(self, cfg, regs, role):
        self.amp = cfg.amp if cfg.amp else None
        self.role = role
        self.sel = (cfg.selA if role == 'A' else cfg.selB)
        if self.sel is not None:
            self.sel = self.sel.split(',')
        self.ins = 's_memtime' if cfg.stamps == 'cyc' else 's_memrealtime'
        self.on = cfg.stamps or bool(self.amp)
        self.regs = regs
        self.names = []

    def __call__(self, e, name):
        if not self.on:
            return
        if self.sel is not None:
            if name != 'start' and name not in self.sel:
                return
        elif name.startswith('_'):
            return
        r = self.regs[len(self.names)]
        self.names.append(name)
        if self.amp and name not in ('start', 'end', self.amp[1], self.amp[2]):
            return
        e.I('%s s[%d:%d]' % (self.ins, r, r + 1))

    def flush(self, e):
        if not self.on:
            return
        e.wait_smem()
        if self.amp:
            if self.amp[0] == self.role:
                R = dict(zip(self.names, self.regs))
                e.I('s_sub_u32 s%d, s%d, s%d\ns_mul_i32 s%d, s%d, %d\ns_min_u32 s%d, s%d, 50000' %
                    (T0, R[self.amp[2]], R[self.amp[1]], T0, T0, self.amp[3], T0, T0))
                e.label('L_amp')
                e.I('s_memrealtime s[%d:%d]' % (T1, T1 + 1))
                e.wait_smem()
                e.I('s_sub_u32 s%d, s%d, s%d\ns_cmp_lt_u32 s%d, s%d\ns_cbranch_scc1 L_amp' % (T1, T1, R['end'], T1, T0))
            return
        e.I('s_lshl_b32 s%d, s2, 3\ns_add_u32 s%d, s%d, s%d\ns_lshl_b32 s%d, s%d, 6\ns_add_u32 s%d, s%d, 0x%x' %
            (T0, T0, T0, sWAVE, T0, T0, T0, T0, STAMP_OFF))
        e.I('s_mov_b64 exec, 1')
        for k in range(len(self.names)):
            e.I('v_mov_b32 v2, s%d' % self.regs[k])
            e.I('buffer_store_dword v2, off, %s, s%d offset:%d' % (srd(SWS), T0, 4 * k))


def run(items):
    for it in items:
        it()


def poll(e, label, vt, vaddr, soff, mask, between=None):
    def look(tag=None):
        e.I('s_mov_b64 exec, %s' % mask)
        e.I('buffer_load_dword v%d, v%d, %s, s%d offen sc1' % (vt, vaddr, srd(SWS), soff), tag=tag)
        e.I('s_mov_b64 exec, -1')

    def check():
        e.I('v_cmp_ne_u32 vcc, s%d, v%d' % (sNONCE, vt))
        e.I('s_and_b64 vcc, vcc, %s' % mask)
    spin(e, label, look, check, between)


def spin(e, label, look, check, between):
    look('look')
    if between:
        between()
    e.wait(vm='look')
    check()
    e.I('s_cbranch_scc1 %s' % label)
    e.label(label + '_out')
    with e.cold_block():
        e.label(label)
        e.I('s_mov_b32 s%d, 0' % sCNT)
        e.label(label + '_l')
        if SLEEP[0]:
            e.I('s_sleep %d' % SLEEP[0])
        look()
        e.I('s_add_u32 s%d, s%d, 1' % (sCNT, sCNT))
        e.I('s_cmp_gt_u32 s%d, %d' % (sCNT, SPIN_MAX))
        e.wait(vm='all')
        e.I('s_cbranch_scc1 %s_out' % label)
        check()
        e.I('s_cbranch_scc1 %s_l' % label)
        e.I('s_branch %s_out' % label)


def rot2_calc(e, cfg, dst):
    if cfg.map2 == 84:
        e.I('s_and_b32 s%d, s%d, %d' % (dst, sRT, cfg.rot2))
    else:
        e.I('s_lshl_b32 s%d, s%d, 1\ns_and_b32 s%d, s%d, %d' % (dst, sRT, dst, dst, cfg.rot2))


def step_start(e, cfg, cur, beg, end, shift):
    rot2_calc(e, cfg, cur)
    e.I('s_cmp_eq_u32 s%d, 3\ns_cselect_b32 s%d, 20, 22' % (sW, end))
    e.I('s_mul_i32 s%d, s%d, s%d\ns_lshr_b32 s%d, s%d, 3\ns_mul_i32 s%d, s%d, 22' % (cur, cur, end, cur, cur, beg, sW))
    e.I('s_add_u32 s%d, s%d, s%d\ns_add_u32 s%d, s%d, s%d' % (cur, cur, beg, end, end, beg))
    for r in (cur, beg, end):
        e.I('s_lshl_b32 s%d, s%d, %d' % (r, r, shift))


def step_next(e, n, cur, beg, end, shift):
    e.I('s_add_u32 s%d, s%d, %d\ns_cmp_eq_u32 s%d, s%d\ns_cselect_b32 s%d, s%d, s%d' % (cur, cur, 1 << shift, cur, end, cur, beg, cur))
    if n == 20:
        e.I('s_cmp_eq_u32 s%d, 3\ns_cselect_b32 s%d, 0x%x, s%d' % (sW, cur, OOB, cur))


def set_m0(e, base, off):
    if getattr(e, 'm0', None) != (base, off):
        e.I('s_add_u32 m0, s%d, %d' % (base, off))
        e.m0 = (base, off)


def wd_lane_offsets(e, WDV, t0, t1):
    txt = 'v_bfe_u32 v%d, v0, 4, 1\nv_lshlrev_b32 v%d, 2, v%d\nv_and_b32 v%d, 7, v0\nv_xor_b32 v%d, v%d, v%d\nv_lshlrev_b32 v%d, 4, v%d\n' % (
        t0, t0, t0, t1, t0, t0, t1, t0, t0)
    txt += 'v_lshrrev_b32 v%d, 3, v0\nv_lshl_add_u32 v%d, v%d, 10, v%d\n' % (t1, t0, t1, t0)
    txt += 's_lshl_b32 s%d, s%d, 7\n' % (T0, sCT)
    txt += 'v_add_u32 v%d, s%d, v%d\nv_add_u32 v%d, 7168, v%d' % (WDV, T0, t0, WDV + 1, WDV)
    return txt


RING = [(5, n) for n in range(3)] + [(2 + n // 3, n % 3) for n in range(6)] + [(4, n) for n in range(3)] \
    + [(n // 3, n % 3) for n in range(6)] + [(2, n) for n in range(3)] + [(3, 0)]
PREV = {18: 3, 19: 4, 20: 5, 21: 6}


class Touch:
    def __init__(self, e, cfg, role):
        self.e, self.role = e, role
        self.plan = [p for p in cfg.tplan if p[0] == role]
        it = []
        for par in range(2):
            for p in (P_CRE, P_CIM):
                it += [(p, 128 * k + 64 * par) for k in range(4)]
        for par in range(2):
            it += [(P_WD, 128 * k + 64 * par) for k in range(11)]
        self.items = it

    def setup(self):
        if not self.plan:
            return
        e = self.e
        used = {self.items[k][0] for p in self.plan for k in range(p[2], p[3])}
        e.I('s_lshl_b32 s%d, s2, 2\ns_add_u32 s%d, s%d, s%d' % (T0, T0, T0, sW))
        for p in sorted(used):
            e.I('s_mul_i32 s%d, s%d, %d' % (T1, T0, 1376 if p == P_WD else 512))
            e.I('s_add_u32 s%d, s%d, s%d\ns_addc_u32 s%d, s%d, 0' % (p, p, T1, p + 1, p + 1))

    def at(self, place):
        for p in self.plan:
            if p[1] == place:
                for k in range(p[2], p[3]):
                    self.e.I('s_load_dword s3, s[%d:%d], %d' % (self.items[k][0], self.items[k][0] + 1, self.items[k][1]))


def flag_store(e, vt, soff, imm=0):
    e.I('s_mov_b64 exec, 1')
    e.I('buffer_store_dword v%d, off, %s, s%d offset:%d sc1' % (vt, srd(SWS), soff, imm), tag='flag')
    e.I('s_mov_b64 exec, -1')


def frag_addr(e, dst, t0, t1):
    e.I('v_lshrrev_b32 v%d, 5, v0' % t0)
    e.I('v_bfe_u32 v%d, v0, 1, 3' % t1)
    e.I('v_xor_b32 v%d, v%d, v%d' % (t0, t0, t1))
    e.I('v_and_b32 v%d, 31, v0' % t1)
    e.I('v_lshlrev_b32 v%d, 7, v%d' % (t1, t1))
    e.I('v_lshl_add_u32 v%d, v%d, 4, v%d' % (dst, t0, t1))
    for s in range(1, 4):
        e.I('v_xor_b32 v%d, %d, v%d' % (dst + s, 32 * s, dst))


def w_tr_addr(e, d0, d1, d2, t0, t1):
    e.I('v_lshrrev_b32 v%d, 5, v0' % t0)
    e.I('v_bfe_u32 v%d, v0, 2, 2' % t1)
    e.I('v_lshl_add_u32 v%d, v%d, 3, v%d' % (t0, t0, t1))
    e.I('v_mul_u32_u24 v%d, 192, v%d' % (t0, t0))
    e.I('v_bfe_u32 v%d, v0, 4, 1' % t1)
    e.I('v_lshl_add_u32 v%d, v%d, 5, v%d' % (t0, t1, t0))
    e.I('v_and_b32 v%d, 3, v0' % t1)
    e.I('v_lshl_add_u32 v%d, v%d, 3, v%d' % (d0, t1, t0))
    e.I('v_add_u32 v%d, %d, v%d' % (d1, WIN, d0))
    e.I('v_add_u32 v%d, %d, v%d' % (d2, 2 * WIN, d0))


W_SLOT = [0, 1, 2, 3, 0, 1, 2, 3]


def w_frag_read(e, dst, wins, j, s, mat, g, tag):
    slot = W_SLOT[j]
    for mm in range(2):
        off = (slot & 1) * SLOT + mat * 12288 + (16 * s + 4 * mm) * 192 + g * 64
        e.I('ds_read_b64_tr_b16 %s, v%d offset:%d' % (vr(dst + 2 * mm, 2), wins[slot >> 1], off), tag=tag)


def act_items(e, cfg, G, U, tmp, out):
    items = []
    add = lambda t: items.append(lambda t=t: e.I(t))
    for b in range(2):
        g, u, o = G + 8 * b, U + 8 * b, out + 4 * b
        if cfg.mimic:
            for src in (g, u):
                for p in range(4):
                    add('v_cvt_pk_bf16_f32 v%d, v%d, v%d' % (tmp + p, src + 2 * p, src + 2 * p + 1))
                for p in range(4):
                    add('v_lshlrev_b32 v%d, 16, v%d' % (src + 2 * p, tmp + p))
                    add('v_and_b32 v%d, 0xffff0000, v%d' % (src + 2 * p + 1, tmp + p))
        for p in range(4):
            add('v_pk_mul_f32 %s, %s, s[%d:%d]' % (vr(tmp + 2 * p, 2), vr(g + 2 * p, 2), sNL2E, sNL2E + 1))
        for p in range(8):
            add('v_exp_f32 v%d, v%d' % (tmp + p, tmp + p))
        for p in range(4):
            add('v_pk_add_f32 %s, %s, 1.0 op_sel_hi:[1,0]' % (vr(tmp + 2 * p, 2), vr(tmp + 2 * p, 2)))
        for p in range(8):
            add('v_rcp_f32 v%d, v%d' % (tmp + p, tmp + p))
        for p in range(4):
            add('v_pk_mul_f32 %s, %s, %s' % (vr(g + 2 * p, 2), vr(g + 2 * p, 2), vr(tmp + 2 * p, 2)))
        if cfg.mimic:
            for p in range(4):
                add('v_cvt_pk_bf16_f32 v%d, v%d, v%d' % (tmp + p, g + 2 * p, g + 2 * p + 1))
            for p in range(4):
                add('v_lshlrev_b32 v%d, 16, v%d' % (g + 2 * p, tmp + p))
                add('v_and_b32 v%d, 0xffff0000, v%d' % (g + 2 * p + 1, tmp + p))
        for p in range(4):
            add('v_pk_mul_f32 %s, %s, %s' % (vr(u + 2 * p, 2), vr(g + 2 * p, 2), vr(u + 2 * p, 2)))
        for p in range(4):
            add('v_cvt_pk_bf16_f32 v%d, v%d, v%d' % (o + p, u + 2 * p, u + 2 * p + 1))
    return items


def act_items_scalar(e, cfg, G, U, tmp, out):
    if cfg.mimic:
        return act_items(e, cfg, G, U, tmp, out)
    items = []
    add = lambda t: items.append(lambda t=t: e.I(t))
    for b in range(4):
        g, u, o = G + 4 * b, U + 4 * b, out + 2 * b
        for p in range(4):
            add('v_mul_f32 v%d, s%d, v%d' % (tmp + p, sNL2E, g + p))
        for p in range(4):
            add('v_exp_f32 v%d, v%d' % (tmp + p, tmp + p))
            add('v_mul_f32 v%d, v%d, v%d' % (u + p, g + p, u + p))
        for p in range(4):
            add('v_add_f32 v%d, 1.0, v%d' % (tmp + p, tmp + p))
        for p in range(4):
            add('v_rcp_f32 v%d, v%d' % (tmp + p, tmp + p))
        for p in range(4):
            add('v_mul_f32 v%d, v%d, v%d' % (u + p, tmp + p, u + p))
        for p in range(2):
            add('v_cvt_pk_bf16_f32 v%d, v%d, v%d' % (o + p, u + 2 * p, u + 2 * p + 1))
    return items


def light_scc(e):
    e.I('s_and_b32 s%d, s%d, 3\ns_cmp_eq_u32 s%d, 3\ns_cselect_b32 s%d, 14, s%d\ns_cmp_eq_u32 s%d, 14' % (T0, sCB, T0, T0, sCB, T0))


def w_lane_offsets(e, cfg, WV, t0, t1):
    if cfg.zfill:
        light_scc(e)
        e.I('s_cselect_b32 s%d, 8, 12' % sTW)
    e.I('s_and_b32 s%d, s%d, 1' % (T1, sW))
    e.I('s_mul_i32 s%d, s%d, %d\ns_lshl_b32 s%d, s%d, 6\ns_add_u32 s%d, s%d, s%d' % (T0, T1, 32 * 2752, T1, sSG0, T0, T0, T1))
    for q in range(3):
        e.I('v_add_u32 v%d, %d, v0\nv_mul_u32_u24 v%d, 171, v%d\nv_lshrrev_b32 v%d, 11, v%d' % (t1, 64 * q, t0, t1, t0, t0))
        if cfg.zfill:
            e.I('v_mul_u32_u24 v%d, 12, v%d\nv_sub_u32 v%d, v%d, v%d\nv_cmp_gt_u32 vcc, s%d, v%d' % (WV + q, t0, t1, t1, WV + q, sTW, t1))
        e.I('v_mul_u32_u24 v%d, %d, v%d' % (t0, 2752 - 192, t0))
        e.I('v_lshl_add_u32 v%d, v0, 4, v%d' % (t0, t0))
        e.I('v_add_u32 v%d, s%d, v%d' % (WV + q, T0, t0))
        if cfg.zfill:
            e.I('v_mov_b32 v%d, 0x%x\nv_cndmask_b32 v%d, v%d, v%d, vcc' % (t0, OOB, WV + q, t0, WV + q))
    e.I('s_mul_i32 s%d, s%d, 6144' % (sMW, sW))


def dma_W(e, WV, SWR, j):
    slot = W_SLOT[j] * SLOT
    its = []
    for grp in range(2):
        for q in range(3):
            def f(grp=grp, q=q):
                set_m0(e, sMW, slot + grp * 3072)
                if q == 0 and grp == 0:
                    e.I('s_add_u32 s%d, s%d, %d\ns_and_b32 s%d, s%d, 7\ns_mul_i32 s%d, s%d, %d' %
                        (sTW, sK0, j, sTW, sTW, sTW, sTW, 64 * 2752))
                if q == 0 and grp == 1:
                    e.I('s_add_u32 s%d, s%d, %d' % (sTW, sTW, 16 * 2752))
                e.I('buffer_load_dwordx4 v%d, %s, s%d offen offset:%d lds' % (WV + q, srd(SWR), sTW, 1024 * q), tag=('st', 8 + j))
            its.append(f)
    return its


C_LAND, C_CONS, C_Q, C_DONEA = 0, 32, 64, 68


def cnt_add(e, va, vone, off):
    e.I('s_mov_b64 exec, 1')
    e.I('ds_add_u32 v%d, v%d offset:%d' % (va, vone, off), tag='sig')
    e.I('s_mov_b64 exec, -1')


def cnt_look(e, va, vt, off, tag):
    e.I('ds_read_b32 v%d, v%d offset:%d' % (vt, va, off), tag=tag)


def cnt_check(e, label, va, vt, off, tag):
    e.wait(lg=tag)
    e.I('v_cmp_ne_u32 vcc, 4, v%d' % vt)
    e.I('s_cbranch_vccnz %s' % label)
    e.label(label + '_out')
    with e.cold_block():
        e.label(label)
        e.I('s_mov_b32 s%d, 0' % sCNT)
        e.label(label + '_l')
        if SLEEP[1]:
            e.I('s_sleep %d' % SLEEP[1])
        cnt_look(e, va, vt, off, None)
        e.I('s_add_u32 s%d, s%d, 1' % (sCNT, sCNT))
        e.I('s_cmp_gt_u32 s%d, %d' % (sCNT, 20 * SPIN_MAX))
        e.wait(lg='all')
        e.I('s_cbranch_scc1 %s_out' % label)
        e.I('v_cmp_ne_u32 vcc, 4, v%d' % vt)
        e.I('s_cbranch_vccnz %s_l' % label)
        e.I('s_branch %s_out' % label)


def cnt_spin(e, label, va, vt, off):
    cnt_look(e, va, vt, off, 'look')
    cnt_check(e, label, va, vt, off, 'look')


def act_offsets(e, k, s_data, s_flag, valid_scc=False):
    e.I('s_lshl_b32 s%d, s%d, 2\ns_add_u32 s%d, s%d, s%d' % (T0, sRB, T0, T0, sW))
    e.I('s_mul_i32 s%d, s%d, 43\ns_add_u32 s%d, s%d, s%d\ns_add_u32 s%d, s%d, %d\ns_lshl_b32 s%d, s%d, 11' %
        (T1, T0, T1, T1, sSG0, T1, T1, k, s_data, T1))
    e.I('s_lshr_b32 s%d, s%d, 1\ns_mul_i32 s%d, s%d, 44\ns_add_u32 s%d, s%d, s%d\ns_add_u32 s%d, s%d, %d' %
        (T1, T0, T1, T1, T1, T1, sSG0, T1, T1, k))
    e.I('s_lshl_b32 s%d, s%d, 1\ns_and_b32 s%d, s%d, 1\ns_add_u32 s%d, s%d, s%d\ns_mul_i32 s%d, s%d, %d\ns_add_u32 s%d, s%d, 0x%x' %
        (T1, T1, T0, T0, T1, T1, T0, T1, T1, FS, s_flag, T1, AF_OFF))


def part_write_addr(e, dst, t0, t1, piece_stride, wave_stride, base):
    e.I('v_lshrrev_b32 v%d, 5, v0' % t0)
    e.I('v_and_b32 v%d, 7, v0' % t1)
    e.I('v_xor_b32 v%d, v%d, v%d' % (t0, t0, t1))
    e.I('v_lshlrev_b32 v%d, 4, v%d' % (dst, t0))
    e.I('v_bfe_u32 v%d, v0, 3, 2' % t0)
    e.I('v_and_b32 v%d, 3, v0' % t1)
    e.I('v_lshl_add_u32 v%d, v%d, 2, v%d' % (t0, t0, t1))
    e.I('v_lshl_add_u32 v%d, v%d, 8, v%d' % (dst, t0, dst))
    e.I('v_bfe_u32 v%d, v0, 2, 1' % t0)
    e.I('v_mul_u32_u24 v%d, %d, v%d' % (t0, piece_stride, t0))
    e.I('s_mul_i32 s%d, s%d, %d\ns_add_u32 s%d, s%d, %d' % (T0, sW, wave_stride, T0, T0, base))
    e.I('v_add3_u32 v%d, v%d, v%d, s%d' % (dst, dst, t0, T0))
    for a in range(1, 4):
        e.I('v_xor_b32 v%d, %d, v%d' % (dst + a, 32 * a, dst))


def part_write(e, addr, piece_stride, addr1=None):
    for tt in range(2):
        for dt in range(2):
            for a in range(4):
                ad_, off = (addr + a, dt * 128) if addr1 is None or dt == 0 else (addr1 + a, 0)
                e.I('ds_write_b128 v%d, %s offset:%d' % (ad_, vr(64 + 16 * (2 * dt + tt) + 4 * a, 4),
                                                         tt * 2 * piece_stride + off), tag='pw')


def gen_entry(e, cfg, st):
    e.I('s_cmp_ge_u32 s2, 256\ns_cbranch_scc1 L_end')
    e.I('s_load_dwordx16 s[4:19], s[0:1], 0\ns_load_dwordx16 s[20:35], s[0:1], 64\ns_load_dwordx2 s[36:37], s[0:1], 128')
    st(e, 'start')
    e.I('v_lshrrev_b32 v1, 6, v0\nv_and_b32 v0, 63, v0')
    e.I('v_readfirstlane_b32 s%d, v1' % sWAVE)
    e.I('s_and_b32 s%d, s2, 7\ns_lshr_b32 s%d, s2, 3' % (T0, T1))
    e.I('s_and_b32 s%d, s%d, 7\ns_lshr_b32 s%d, s%d, 3' % (T2, T1, T3, T1))
    e.I('s_and_b32 s%d, s%d, 1\ns_lshl_b32 s%d, s%d, 3\ns_add_u32 s%d, s%d, s%d' % (sRB, T0, sRB, sRB, sRB, sRB, T2))
    e.I('s_lshr_b32 s%d, s%d, 1' % (T4, T0))
    e.I('s_lshl_b32 s%d, s%d, 2\ns_add_u32 s%d, s%d, s%d' % (sCB, T4, sCB, sCB, T3))
    e.I('s_mul_i32 s%d, s%d, %d\ns_mul_i32 s%d, s%d, %d\ns_add_u32 s%d, s%d, s%d\ns_and_b32 s%d, s%d, 7' %
        (sK0, T2, cfg.rot1[0], T5, T3, cfg.rot1[1], sK0, sK0, T5, sK0, sK0))
    e.I('s_mul_i32 s%d, s%d, 11\ns_mul_i32 s%d, s%d, 3\ns_add_u32 s%d, s%d, s%d' % (sSG0, T4, T5, T3, sSG0, sSG0, T5))
    e.I('s_cmp_eq_u32 s%d, 15\ns_subb_u32 s%d, s%d, 0' % (sCB, sSG0, sSG0))
    if cfg.map2 == 84:
        e.I('s_lshl_b32 s%d, s%d, 3\ns_add_u32 s%d, s%d, s%d' % (sRT, T4, sRT, sRT, T2))
        e.I('s_and_b32 s%d, s%d, 1\ns_lshl_b32 s%d, s%d, 2\ns_add_u32 s%d, s%d, s%d' % (sCT, T0, sCT, sCT, sCT, sCT, T3))
    else:
        e.I('s_lshl_b32 s%d, s%d, 2\ns_and_b32 s%d, s%d, 3\ns_add_u32 s%d, s%d, s%d\ns_lshr_b32 s%d, s%d, 2' %
            (sRT, T0, T5, T1, sRT, sRT, T5, sCT, T1))
    e.I('s_and_b32 s%d, s%d, 3' % (sW, sWAVE))
    e.I('s_cmp_lt_u32 s%d, 4\ns_cbranch_scc1 L_A' % sWAVE)


def gen_B(e, cfg, st):
    NPRE = cfg.prog.count('D')
    WIN3 = [2, 3, 4]
    EP = 5
    XV, BV, WV, XA = 32, 36, 38, 44
    e.I('v_lshrrev_b32 v8, 3, v0')
    e.I('v_and_b32 v9, 7, v0')
    e.I('v_lshrrev_b32 v10, 4, v0')
    e.I('v_xor_b32 v10, v9, v10\nv_lshlrev_b32 v10, 4, v10')
    e.I('v_lshrrev_b32 v11, 5, v0\nv_and_b32 v12, 3, v8\nv_lshl_add_u32 v11, v11, 4, v12')
    e.I('s_lshl_b32 s%d, s%d, 2\ns_add_u32 s%d, s%d, s%d\ns_lshl_b32 s%d, s%d, 15' % (T0, sRB, T0, T0, sW, T0, T0))
    e.I('v_lshl_add_u32 v11, v11, 10, s%d' % T0)
    e.I('v_add_u32 v%d, v11, v10' % XV)
    e.I('v_xor_b32 v13, 64, v%d' % XV)
    e.I('v_add_u32 v%d, 3072, v13\nv_add_u32 v%d, 6144, v%d\nv_add_u32 v%d, 9216, v13' % (XV + 1, XV + 2, XV, XV + 3))
    e.I('s_and_b32 s%d, s%d, 1' % (T1, sW))
    e.I('s_lshl_b32 s%d, s%d, 1\ns_add_u32 s%d, s%d, s%d\ns_lshl_b32 s%d, s%d, 14' % (T0, sCB, T0, T0, T1, T0, T0))
    e.I('v_lshrrev_b32 v11, 5, v0\nv_lshl_add_u32 v11, v11, 3, v12')
    e.I('v_lshl_add_u32 v11, v11, 10, s%d' % T0)
    e.I('v_add_u32 v%d, v11, v10' % BV)
    e.I('v_xor_b32 v13, 64, v%d\nv_add_u32 v%d, 3072, v13' % (BV, BV + 1))
    e.I('s_lshl_b32 s%d, s%d, 12' % (sMX, sW))
    e.I('s_lshl_b32 s%d, s%d, 11\ns_add_u32 s%d, s%d, 16384' % (sMBm, sW, sMBm, sMBm))
    e.I('s_lshl_b32 s%d, s%d, 7' % (T6, sK0))
    e.wait_smem()
    st(e, 'karg')
    mk_srd(e, SX, P_X, 2048 * 1024)
    e.I('s_cmp_ge_u32 s%d, 2' % sW)
    mk_srd_sel(e, SBM, P_BIM, P_BRE, 512 * 1024)

    def dma_S(i):
        slot = (i % 4) * SLOT
        its = []
        for q in range(4):
            def f(q=q):
                if q == 0:
                    set_m0(e, sMX, slot)
                    e.I('s_add_u32 s%d, s%d, %d\ns_and_b32 s%d, s%d, 1023' % (sTS, T6, i * 128, sTS, sTS))
                e.I('buffer_load_dwordx4 v%d, %s, s%d offen offset:%d lds' % (XV + q, srd(SX), sTS, 1024 * q), tag=('st', i))
            its.append(f)
        for q in range(2):
            def f(q=q):
                if q == 0:
                    set_m0(e, sMBm, slot)
                e.I('buffer_load_dwordx4 v%d, %s, s%d offen offset:%d lds' % (BV + q, srd(SBM), sTS, 1024 * q), tag=('st', i))
            its.append(f)
        return its

    run(dma_S(0))
    st(e, 'dma0')
    run(dma_S(1))
    e.I('s_cmp_ge_u32 s%d, 2' % sW)
    mk_srd_sel(e, SW, P_WU, P_WG, 512 * 2752)
    mk_srd(e, SWS, P_WS, WS_SIZE)
    mk_srd(e, SWD, P_WD, 1376 * 1024)
    e.I('s_mov_b32 s%d, 0x%x' % (T0, EPOCH_OFF))
    e.I('buffer_load_dword v%d, off, %s, s%d sc1' % (EP, srd(SWS), T0), tag='ep')
    w_lane_offsets(e, cfg, WV, 11, 12)
    frag_addr(e, XA, 11, 12)
    for s in range(4):
        e.I('v_add_u32 v%d, s%d, v%d' % (XA + s, sMX, XA + s))
        e.I('v_add_u32 v%d, %d, v%d' % (XA + 4 + s, WIN, XA + s))
    w_tr_addr(e, WIN3[0], WIN3[1], WIN3[2], 11, 12)
    e.I('v_lshlrev_b32 v1, 4, v0')
    e.I('v_lshlrev_b32 v11, 2, v0\nv_add_u32 v11, %d, v11\nv_mov_b32 v12, 0' % L_FL)
    e.I('ds_write_b32 v11, v12', tag='init')
    e.wait(lg='all')
    tch = Touch(e, cfg, 'B')
    tch.setup()
    tch.at(-1)

    sDC, sDB, sDE, sAC, sAB, sAE = 86, 87, 88, 89, 90, 91
    sD0, sF0, sD2, sF2 = T2, T3, T4, T5
    e.wait(vm=('st', 0), lg='all')
    e.I('s_barrier')
    st(e, 'b0')
    for i in range(8):
        run(dma_S(i + 2) if i < 6 else dma_W(e, WV, SW, i - 6))
        for s in range(4):
            slot = i % 4
            e.I('ds_read_b128 %s, v%d offset:%d' % (vr(128 + 4 * (4 * i + s), 4), XA + 4 * (slot >> 1) + s, (slot & 1) * SLOT), tag='x')
        if i == 0:
            e.wait(vm='ep')
            e.I('v_readfirstlane_b32 s%d, v%d' % (sNONCE, EP))
            e.I('s_add_u32 s%d, s%d, 0x%x\ns_or_b32 s%d, s%d, 1' % (sNONCE, sNONCE, PHI, sNONCE, sNONCE))
            e.I('s_mov_b32 s%d, 0x%x\ns_mov_b32 s%d, 0x%x' % (sNL2E, NLOG2E, sNL2E + 1, NLOG2E))
            e.I('v_mov_b32 v%d, s%d' % (EP, sNONCE))
        if i == 2:
            step_start(e, cfg, sAC, sAB, sAE, 10)
        if i == 3:
            for k in range(3):
                e.I('s_lshl_b32 s%d, s%d, 4' % (sDC + k, sAC + k))
            for n in range(1, NPRE):
                step_next(e, n, sDC, sDB, sDE, 14)
        if i == 5:
            act_offsets(e, 0, sD0, sF0)
        if i == 6:
            e.I('s_add_u32 s%d, s%d, 4096\ns_add_u32 s%d, s%d, %d' % (sD2, sD0, sF2, sF0, 4 * FS))
            light_scc(e)
            e.I('s_cselect_b32 s%d, 0x%x, s%d\ns_cselect_b32 s%d, 0x%x, s%d' % (sD2, OOB, sD2, sF2, OOB, sF2))
            e.I('v_mov_b32 v7, %d\nv_mov_b32 v6, 1' % L_FL)
        if i < 7:
            e.wait(vm=('st', i + 1), lg='all')
            e.I('s_barrier')
            if i == 0:
                st(e, 'b1')
    NT = cfg.NT
    ops = []
    for j in range(8 - NT):
        for s in range(4):
            for g in range(3):
                for mat in range(2):
                    ops.append((j, s, g, mat))
    tail0 = len(ops)
    for g in range(3):
        for j in range(8 - NT, 8):
            for s in range(4):
                for mat in range(2):
                    ops.append((j, s, g, mat))
    NB, LA = 6, cfg.LA
    first = {j: min(q for q in range(len(ops)) if ops[q][0] == j) for j in range(8)}
    last = {j: max(q for q in range(len(ops)) if ops[q][0] == j) for j in range(8)}
    VL = 4

    def rd(q):
        j, s, g, mat = ops[q]
        if q == first[j] and j <= cfg.JL:
            e.wait(vm=('st', 8 + j), lg='x')
            st(e, '_a%d' % j)
            e.I('s_barrier')
            st(e, '_d%d' % j)
            if j in (0, 4, cfg.JL):
                st(e, 'b%d' % (8 + j))
            if j == 0 and cfg.prioB:
                e.I('s_setprio %d' % cfg.prioB)
        w_frag_read(e, 8 + 4 * (q % NB), WIN3, j, s, mat, g, ('wf', q))
        if q == last[7]:
            cnt_add(e, 7, 6, C_CONS + 28)

    def mm(q):
        j, s, g, mat = ops[q]
        if mat == 0:
            e.wait(lg=('wf', q + 1))
        mfma(e, 32 + 32 * g + 16 * mat, 8 + 4 * (q % NB), 128 + 4 * (4 * j + s), j == 0 and s == 0)
        if q + LA < len(ops):
            rd(q + LA)

    def act_store(k):
        for m in range(2):
            e.I('buffer_store_dwordx4 %s, v1, %s, s%d offen offset:%d sc1' %
                (vr(136 + 8 * k + 4 * m, 4), srd(SWS), sD2 if k == 2 else sD0, 1024 * m + (2048 if k == 1 else 0)), tag=('as', k))

    def act_flag(k):
        e.wait(vm=('as', k))
        flag_store(e, EP, sF2 if k == 2 else sF0, 2 * FS if k == 1 else 0)

    for q in range(LA):
        rd(q)
    per = 8 * NT
    for q in range(tail0 + per):
        mm(q)
    flagged = 0
    if NT:
        for g in (1, 2):
            main = [lambda q=q: mm(q) for q in range(tail0 + g * per, tail0 + (g + 1) * per)]
            fill = act_items_scalar(e, cfg, 32 * g, 32 * g + 16, 128, 136 + 8 * (g - 1)) + [lambda g=g: act_store(g - 1)]
            run(main[:2] + weave(main[2:], fill))
        st(e, 'f1end')
        run(act_items(e, cfg, 96, 112, 128, 152))
        act_store(2)
    else:
        st(e, 'f1end')
        for g in range(3):
            run(act_items(e, cfg, 32 + 32 * g, 48 + 32 * g, 128, 136 + 8 * g))
            act_store(g)
    if cfg.prioB:
        e.I('s_setprio 0')
    st(e, 'actst')
    DA, AV, PW, WDV = 6, 12, 14, 18
    e.I(wd_lane_offsets(e, WDV, 20, 21))
    e.I('v_mov_b32 v22, %d' % L_FL)
    cnt_spin(e, 'L_spinB', 22, 24, C_CONS + 28)
    st(e, 'ldsfree')

    def dma_D(n):
        sl, pos = RING[n]
        if n in PREV:
            e.wait(lg=('wr', PREV[n]))
        set_m0(e, sMW, sl * SLOT + pos * 2048)
        if n:
            step_next(e, n, sDC, sDB, sDE, 14)
        for q in range(2):
            e.I('buffer_load_dwordx4 v%d, %s, s%d offen offset:%d lds' % (WDV + q, srd(SWD), sDC, 1024 * q), tag=('wd', n))

    def wd_reg(n):
        return 128 + 8 * n if n < 10 else 32 + 8 * (n & 3)

    def wd_read(n):
        sl, pos = RING[n]
        e.wait(vm=('wd', n))
        for dt in range(2):
            for mq in range(2):
                e.I('ds_read_b64_tr_b16 %s, v%d offset:%d' % (vr(wd_reg(n) + 4 * dt + 2 * mq, 2), DA + 2 * (sl >> 1) + dt,
                                                             (sl & 1) * SLOT + pos * 2048 + mq * 1024), tag=('wr', n))

    for n in range(NPRE, 9):
        for k in range(3):
            if cfg.flagpos[k] + NPRE == n:
                act_flag(k)
                if k == 2:
                    st(e, 'flagged')
        dma_D(n)
    e.I('v_lshrrev_b32 v20, 5, v0\nv_bfe_u32 v21, v0, 2, 2\nv_lshl_add_u32 v20, v20, 2, v21\nv_lshlrev_b32 v20, 7, v20')
    e.I('v_bfe_u32 v21, v0, 3, 1\nv_lshl_add_u32 v20, v21, 6, v20')
    e.I('v_bfe_u32 v21, v0, 4, 1\nv_lshl_add_u32 v20, v21, 5, v20')
    e.I('v_and_b32 v21, 3, v0\nv_lshl_add_u32 v20, v21, 3, v20')
    e.I('v_add_u32 v%d, s%d, v20\nv_xor_b32 v%d, 64, v%d' % (DA, sMW, DA + 1, DA))
    for k in (1, 2):
        e.I('v_add_u32 v%d, %d, v%d\nv_add_u32 v%d, %d, v%d' % (DA + 2 * k, k * WIN, DA, DA + 2 * k + 1, k * WIN, DA + 1))
    e.I('s_mul_i32 s%d, s%d, %d' % (T0, sRT, 2 * 88064))
    e.I('v_add_u32 v%d, s%d, v1\nv_add_u32 v%d, 88064, v%d' % (AV, T0, AV + 1, AV))
    part_write_addr(e, PW, 20, 21, SLOT, 6144, 0)
    e.I('s_mul_i32 s%d, s%d, 44\ns_mul_i32 s%d, s%d, 11\ns_add_u32 s%d, s%d, s%d\ns_mul_i32 s%d, s%d, %d\ns_add_u32 s%d, s%d, 0x%x' %
        (T0, sRT, T1, sW, T0, T0, T1, T0, T0, 2 * FS, T0, T0, AF_OFF))
    e.I('v_mul_u32_u24 v20, %d, v0' % FS)
    e.I('s_mov_b32 s%d, 0x3fffff\ns_cmp_eq_u32 s%d, 3\ns_cselect_b32 s%d, 0xfffff, s%d\ns_mov_b32 s%d, 0' % (sMA, sW, sMA, sMA, sMA + 1))
    e.I('s_add_u32 s%d, s%d, %d' % (T1, sMW, L_P2))
    e.I('v_mov_b32 v25, s%d\nv_mov_b32 v26, 0' % T1)
    cnt_spin(e, 'L_spinB2', 22, 24, C_DONEA)
    assert cfg.apoll <= 5
    for n in range(9, 22 - cfg.apoll):
        dma_D(n)
        if n - 9 < 5:
            wd_read(2 * (n - 9))
            wd_read(2 * (n - 9) + 1)
        if n == 15:
            wd_read(10)
            wd_read(11)
            e.I('ds_write_b32 v25, v26', tag='init')
        if n == 16:
            e.wait(lg='all')
            st(e, '_aX')
            e.I('s_barrier')
    st(e, 'wdiss')
    poll(e, 'L_pollA', 21, 20, T0, 's[%d:%d]' % (sMA, sMA + 1), lambda: [dma_D(n) for n in range(22 - cfg.apoll, 22)])
    st(e, 'actrdy')

    def a_reg(n):
        return 208 + 8 * (n % 6)

    def a_load(n):
        if n:
            step_next(e, n, sAC, sAB, sAE, 10)
        for tt in range(2):
            e.I('buffer_load_dwordx4 %s, v%d, %s, s%d offen sc1' % (vr(a_reg(n) + 4 * tt, 4), AV + tt, srd(SWS), sAC), tag=('a', n, tt))
    for n in range(6):
        a_load(n)
    for n in range(12, 14):
        wd_read(n)
    for n in range(22):
        st(e, '_n%d' % n)
        e.wait(lg=('wr', n))
        for tt in range(2):
            e.wait(vm=('a', n, tt))
            for dt in range(2):
                mfma(e, 64 + 16 * (2 * dt + tt), wd_reg(n) + 4 * dt, a_reg(n) + 4 * tt, n == 0)
        if n + 6 < 22:
            a_load(n + 6)
        if n >= 10 and n + 4 < 22:
            wd_read(n + 4)
    st(e, 'f2end')
    part_write(e, PW, SLOT)
    e.wait(lg='all')
    e.I('s_barrier')
    st(e, 'end')
    st.flush(e)
    e.I('s_endpgm')


def gen_A(e, cfg, st):
    LR, LI, L16, L128, L256, L16S, KAP, WV = 48, 49, 50, 52, 54, 56, 58, 60
    PP = 32
    SIDX = 3
    RE, IM = 64, 80
    XA, BA = 32, 40
    sHD, sHF, sES, sEL, sROT, sDTX = 86, 87, 90, 91, 92, 80
    sDC, sDB, sDE = 93, 94, 95
    if cfg.prewarm:
        e.I('s_getpc_b64 s[%d:%d]' % (SCODE, SCODE + 1))
        e.label('L_pc')
        e.I('s_sub_u32 s%d, s%d, L_pc-%s\ns_subb_u32 s%d, s%d, 0' % (SCODE, SCODE, NAME, SCODE + 1, SCODE + 1))
        e.I('s_mov_b32 s%d, L_end-%s\ns_mov_b32 s%d, 0x20000' % (SCODE + 2, NAME, SCODE + 3))
        e.I('s_lshr_b32 s%d, s2, 3\ns_and_b32 s%d, s%d, 7\ns_lshl_b32 s%d, s%d, 2\ns_add_u32 s%d, s%d, s%d\ns_lshl_b32 s%d, s%d, 10' %
            (T0, T0, T0, T0, T0, T0, T0, sW, T0, T0))
        e.I('v_lshlrev_b32 v4, 7, v0')
        e.I('s_mov_b64 exec, 0xff')
        e.I('buffer_load_dword v63, v4, %s, s%d offen' % (srd(SCODE), T0), tag='pw')
        e.I('s_mov_b64 exec, -1')
    e.I('v_lshlrev_b32 v1, 4, v0')
    e.I('v_and_b32 v21, 0x13, v0\nv_bfe_u32 v22, v0, 2, 1\nv_lshl_add_u32 v21, v22, 3, v21\nv_bfe_u32 v22, v0, 3, 1\nv_lshl_add_u32 v21, v22, 2, v21')
    e.I('s_lshl_b32 s%d, s%d, 6' % (T0, sCB))
    e.I('v_lshl_add_u32 v21, v21, 1, s%d' % T0)
    e.I('s_lshl_b32 s%d, s%d, 2\ns_add_u32 s%d, s%d, s%d\ns_lshl_b32 s%d, s%d, 4\ns_add_u32 s%d, s%d, s%d' %
        (T3, sRB, T3, T3, sW, T3, T3, T3, T3, sCB))
    e.I('s_lshl_b32 s%d, s%d, 11' % (T2, T3))
    frag_addr(e, BA, 4, 5)
    e.wait_smem()
    mk_srd(e, SX, P_X, 2048 * 1024)
    mk_srd(e, SWS, P_WS, WS_SIZE)
    e.I('s_mov_b32 s%d, 0x%x' % (T0, EPOCH_OFF))
    e.I('buffer_load_dword v19, off, %s, s%d sc1' % (srd(SWS), T0), tag='ep')
    e.I('global_load_ushort v16, v21, s[%d:%d]' % (P_LRE, P_LRE + 1), tag='par')
    e.I('global_load_ushort v17, v21, s[%d:%d]' % (P_LIM, P_LIM + 1), tag='par')
    e.I('global_load_ushort v18, v21, s[%d:%d]' % (P_LDT, P_LDT + 1), tag='par')
    e.I('global_load_dwordx4 v[12:15], v1, s[%d:%d]' % (P_GW, P_GW + 1), tag='g')
    e.I('buffer_load_dwordx4 v[4:7], v1, %s, s%d offen' % (srd(SX), T2), tag='g')
    e.I('buffer_load_dwordx4 v[8:11], v1, %s, s%d offen offset:1024' % (srd(SX), T2), tag='g')
    e.I('s_lshl_b32 s%d, s%d, 3\ns_add_u32 s%d, s%d, 0x%x' % (T6, T3, T6, T6, G_OFF))

    e.I('s_lshl_b32 s%d, s%d, 12' % (T0, sW))
    for s in range(4):
        e.I('v_add_u32 v%d, s%d, v%d' % (XA + s, T0, BA + s))
        e.I('v_add_u32 v%d, %d, v%d' % (XA + 4 + s, WIN, XA + s))
        e.I('v_add_u32 v%d, %d, v%d' % (BA + 4 + s, WIN, BA + s))
    w_lane_offsets(e, cfg, WV, 24, 25)
    e.I('v_lshrrev_b32 v24, 5, v0\ns_lshl_b32 s%d, s%d, 1' % (T0, sW))
    e.I('v_add_u32 v%d, s%d, v24' % (SIDX, T0))
    rot2_calc(e, cfg, sROT)
    e.I('s_and_b32 s%d, s%d, 1\ns_lshr_b32 s%d, s%d, 1' % (sDTX, sROT, sROT, sROT))
    e.I('s_bitcmp1_b32 s%d, 0' % sROT)
    mk_srd_sel(e, SC1, P_CIM, P_CRE, 512 * 1024)
    mk_srd_sel(e, SC2, P_CRE, P_CIM, 512 * 1024)
    mk_srd(e, SWD, P_WD, 1376 * 1024)
    step_start(e, cfg, sDC, sDB, sDE, 14)
    e.I('s_cmp_ge_u32 s%d, 2' % sW)
    mk_srd_sel(e, SWA, P_WU, P_WG, 512 * 2752)
    e.I('s_lshl_b32 s%d, s%d, 2\ns_add_u32 s%d, s%d, s%d' % (T0, sRB, T0, T0, sW))
    e.I('s_lshl_b32 s%d, s%d, 16\ns_lshr_b32 s%d, s%d, 1\ns_lshl_b32 s%d, s%d, 13\ns_add_u32 s%d, s%d, s%d' %
        (sHD, T0, T1, sCB, T1, T1, sHD, sHD, T1))
    e.I('s_and_b32 s%d, s%d, 1\ns_lshl_b32 s%d, s%d, 11\ns_add_u32 s%d, s%d, s%d\ns_add_u32 s%d, s%d, 0x%x' %
        (T1, sCB, T1, T1, sHD, sHD, T1, sHD, sHD, H_OFF))
    e.I('s_lshr_b32 s%d, s%d, 1\ns_lshl_b32 s%d, s%d, 4\ns_add_u32 s%d, s%d, s%d\ns_lshl_b32 s%d, s%d, 1' %
        (T1, T0, T1, T1, T1, T1, sCB, T1, T1))
    e.I('s_and_b32 s%d, s%d, 1\ns_add_u32 s%d, s%d, s%d\ns_mul_i32 s%d, s%d, %d\ns_add_u32 s%d, s%d, 0x%x' %
        (T0, T0, T1, T1, T0, T1, T1, FS, sHF, T1, HF_OFF))
    e.I('s_lshl_b32 s%d, s%d, 13\ns_add_u32 s%d, s%d, 0x%x' % (sEL, sCB, sEL, sEL, E_OFF))
    e.I('s_lshl_b32 s%d, s%d, 9\ns_add_u32 s%d, s%d, s%d\ns_cmp_eq_u32 s%d, 0\ns_cselect_b32 s%d, s%d, 0x%x' %
        (sES, sRB, sES, sES, sEL, sW, sES, sES, OOB))
    e.I('s_sub_u32 s%d, s%d, 1024' % (sEL, sEL))

    tch = Touch(e, cfg, 'A')
    tch.setup()
    tch.at(-1)

    pro = []
    add = lambda t: [pro.append(lambda x=x: e.I(x)) for x in t.split('\n')]

    def csq(d, a):
        add('v_mul_f32 v30, v%d, v%d\nv_mul_f32 v31, v%d, v%d\nv_fma_f32 v%d, -v%d, v%d, v30\nv_add_f32 v%d, v31, v31' %
            (a, a, a, a + 1, d, a + 1, a + 1, d + 1))

    def cmul(d, a, b):
        add('v_mul_f32 v30, v%d, v%d\nv_mul_f32 v31, v%d, v%d\nv_fma_f32 v30, -v%d, v%d, v30\nv_fma_f32 v%d, v%d, v%d, v31\nv_mov_b32 v%d, v30' %
            (a, b, a, b + 1, a + 1, b + 1, d + 1, a + 1, b, d))

    pro.append(lambda: e.wait(vm=['ep', 'par']))
    add('v_readfirstlane_b32 s%d, v19' % sNONCE)
    add('v_lshlrev_b32 v16, 16, v16\nv_lshlrev_b32 v17, 16, v17\nv_lshlrev_b32 v18, 16, v18')
    add('s_add_u32 s%d, s%d, 0x%x\ns_or_b32 s%d, s%d, 1' % (sNONCE, sNONCE, PHI, sNONCE, sNONCE))
    add('v_mul_f32 v18, 0x%x, v18\nv_exp_f32 v18, v18\nv_cvt_pk_bf16_f32 v18, v18, v18\nv_lshlrev_b32 v18, 16, v18' % LOG2E)
    add('v_mul_f32 v21, v18, v16\nv_mul_f32 v22, v18, v17')
    add('v_mul_f32 v21, 0x%x, v21\nv_exp_f32 v21, v21' % LOG2E)
    add('v_mul_f32 v22, 0.15915494, v22\nv_rndne_f32 v23, v22\nv_sub_f32 v22, v22, v23\nv_sin_f32 v23, v22\nv_cos_f32 v22, v22')
    add('v_mul_f32 v%d, v21, v23\nv_mul_f32 v%d, v21, v22' % (LI, LR))
    add('v_mul_f32 v21, v16, v16\nv_fmac_f32 v21, v17, v17\nv_rcp_f32 v21, v21\nv_add_f32 v22, -1.0, v%d\nv_add_f32 v21, v21, v21' % LR)
    add('v_mul_f32 v23, v22, v16\nv_fmac_f32 v23, v%d, v17\nv_mul_f32 v%d, v23, v21' % (LI, KAP))
    add('v_mul_f32 v23, v%d, v16\nv_fma_f32 v23, -v22, v17, v23\nv_mul_f32 v%d, v23, v21' % (LI, KAP + 1))
    csq(22, LR); csq(22, 22); csq(22, 22); csq(L16, 22)
    csq(22, L16); csq(24, 22); csq(L128, 24); csq(L256, L128); csq(L256, L256); csq(L256, L256)
    for bit, src, dst in ((1, L16, L16S), (2, 22, 22), (4, 24, 24)):
        add('v_and_b32 v26, %d, v%d\nv_cmp_ne_u32 vcc, 0, v26' % (bit, SIDX))
        add('v_cndmask_b32 v%d, 1.0, v%d, vcc\nv_cndmask_b32 v%d, 0, v%d, vcc' % (dst, src, dst + 1, src + 1))
    cmul(L16S, L16S, 22); cmul(L16S, L16S, 24)
    pro.append(lambda: e.wait(vm='g'))
    for k in range(4):
        add('v_lshlrev_b32 v21, 16, v%d\nv_and_b32 v22, 0xffff0000, v%d' % (12 + k, 12 + k))
        for row in range(2):
            x = 4 + 4 * row + k
            add('v_lshlrev_b32 v23, 16, v%d\nv_and_b32 v24, 0xffff0000, v%d' % (x, x))
            add('v_mul_f32 v23, v23, v21\nv_mul_f32 v24, v24, v22\nv_cvt_pk_bf16_f32 v23, v23, v24')
            add('v_lshlrev_b32 v24, 16, v23\nv_and_b32 v23, 0xffff0000, v23')
            if k == 0:
                add('v_add_f32 v%d, v23, v24' % (28 + row))
            else:
                add('v_add_f32 v23, v23, v24\nv_add_f32 v%d, v%d, v23' % (28 + row, 28 + row))
    for mod in ('row_shr:1 row_mask:0xf', 'row_shr:2 row_mask:0xf', 'row_shr:4 row_mask:0xf', 'row_shr:8 row_mask:0xf',
                'row_bcast:15 row_mask:0xa', 'row_bcast:31 row_mask:0xc'):
        for row in range(2):
            add('v_add_f32_dpp v%d, v%d, v%d %s bank_mask:0xf' % (28 + row, 28 + row, 28 + row, mod))
    add('v_cvt_pk_bf16_f32 v23, v28, v29\nv_lshlrev_b32 v28, 16, v23\nv_and_b32 v29, 0xffff0000, v23')
    add('v_mul_f32 v28, 0x%x, v28\nv_mul_f32 v29, 0x%x, v29\nv_exp_f32 v28, v28\nv_exp_f32 v29, v29' % (NLOG2E, NLOG2E))
    add('v_add_f32 v28, 1.0, v28\nv_add_f32 v29, 1.0, v29\nv_rcp_f32 v28, v28\nv_rcp_f32 v29, v29')
    add('v_cvt_pk_bf16_f32 v23, v28, v29\nv_lshlrev_b32 v28, 16, v23\nv_and_b32 v29, 0xffff0000, v23')
    add('s_lshl_b32 s%d, s%d, 9\ns_add_u32 s%d, s%d, %d' % (T0, sW, T0, T0, L_E))
    add('v_lshl_add_u32 v24, v0, 3, s%d' % T0)
    add('v_and_b32 v25, 31, v0\nv_lshlrev_b32 v26, 4, v25\nv_lshlrev_b32 v25, 3, v25\nv_add_u32 v25, %d, v25' % L_E)

    SEL = 216
    add('v_and_b32 v21, 3, v0\nv_bfe_u32 v22, v0, 3, 2\nv_lshl_add_u32 v21, v22, 2, v21')
    add('v_bfe_u32 v22, v0, 2, 1\nv_lshrrev_b32 v23, 5, v0\nv_xor_b32 v22, v22, v23\nv_lshl_add_u32 v21, v22, 4, v21')
    add('v_and_b32 v22, 1, v0\nv_lshlrev_b32 v22, 4, v22\nv_mov_b32 v23, 0x3f80\nv_lshlrev_b32 v22, v22, v23\nv_lshrrev_b32 v21, 1, v21')
    for n in range(8):
        add('v_cmp_eq_u32 vcc, %d, v21\nv_cndmask_b32 v%d, 0, v22, vcc' % (n, SEL + n))

    def g_store():
        e.I('s_mov_b32 exec_lo, 0\ns_mov_b32 exec_hi, 0x80000000')
        e.I('buffer_store_dwordx2 v[28:29], off, %s, s%d sc1' % (srd(SWS), T6), tag='gs')
        e.I('s_mov_b64 exec, -1')

    def s_read(n):
        i, s = n >> 2, n & 3
        slot = i % 4
        if s == 0:
            e.I('s_barrier')
            if i in (0, 7):
                st(e, 'b%d' % i)
        off = (slot & 1) * SLOT
        b = 96 + 12 * (n & 3)
        e.I('ds_read_b128 %s, v%d offset:%d' % (vr(b + 8, 4), XA + 4 * (slot >> 1) + s, off), tag=('s', n, 0))
        for part in range(2):
            e.I('ds_read_b128 %s, v%d offset:%d' % (vr(b + 4 * part, 4), BA + 4 * (slot >> 1) + s,
                                                    off + 16384 + part * 4096), tag=('s', n, part))

    def s_mm(n, part):
        e.wait(lg=('s', n, part))
        b = 96 + 12 * (n & 3)
        mfma(e, RE + 16 * part, b + 8, b + 4 * part, n == 0)

    D = 2
    seq = []
    for n in range(32):
        seq.append(lambda n=n: (s_mm(n, 0), s_read(n + D) if n + D < 32 else None))
        seq.append(lambda n=n: s_mm(n, 1))
    for n in range(D):
        s_read(n)
    run(pro[:2])
    run(weave(seq[:52], pro[2:]) + seq[52:])
    st(e, 's1end')
    if cfg.prioA:
        e.I('s_setprio %d' % cfg.prioA)

    def items(txt):
        return [lambda t=t: e.I(t) for t in txt.split('\n')]

    def cfma(d, l, a, c):
        return items('v_fma_f32 v%d, v%d, v%d, v%d\nv_fma_f32 v%d, v%d, v%d, v%d\nv_fma_f32 v%d, -v%d, v%d, v%d\nv_fmac_f32 v%d, v%d, v%d' %
                     (d, l, a, c, d + 1, l, a + 1, c + 1, d, l + 1, a + 1, d, d + 1, l + 1, a))

    prev = (RE, IM)
    for r in range(1, 16):
        cur = (20 + 2 * (r & 1), 21 + 2 * (r & 1))
        e.I('v_fma_f32 v%d, v%d, v%d, v%d' % (cur[0], LR, prev[0], RE + r))
        e.I('v_fma_f32 v%d, v%d, v%d, v%d' % (cur[1], LR, prev[1], IM + r))
        e.I('v_fma_f32 v%d, -v%d, v%d, v%d' % (cur[0], LI, prev[1], cur[0]))
        e.I('v_fmac_f32 v%d, v%d, v%d' % (cur[1], LI, prev[0]))
        prev = cur
    e.I('ds_write_b64 v24, %s' % vr(prev[0], 2), tag='ex')
    e.wait(lg='all')

    CV = 44
    CA = 40
    def c_reg(u, s, dt):
        return 128 + 32 * u + 8 * s + 4 * dt

    CA4, WDV = 96, 100
    CBUF = cfg.cbuf
    CPREV = {i: max(k for k in range(i) if CBUF[k] == CBUF[i]) for i in range(8) if CBUF[i] in CBUF[:i]}
    cdone = set()
    hdone = []

    def c_read(i):
        if i in cdone:
            return
        cdone.add(i)
        assert i < 4 or hdone
        e.wait(vm=('c', i))
        for s in range(4):
            a_, off = (CA4 + s, 0) if CBUF[i] == 4 else (CA + s, CBUF[i] * SLOT)
            e.I('ds_read_b128 %s, v%d offset:%d' % (vr(c_reg(i >> 1, s, i & 1), 4), a_, off), tag=('cr', i))

    def c_loads(i):
        u, dt = i >> 1, i & 1
        its = []
        for q in range(4):
            def f(q=q):
                if q == 0:
                    if i in CPREV:
                        c_read(CPREV[i])
                        e.wait(lg=('cr', CPREV[i]))
                    elif CBUF[i] != 4 and 6 + CBUF[i] > cfg.JL:
                        cnt_spin(e, 'L_cb%d' % i, 39, 37, C_CONS + 28)
                    e.I('s_xor_b32 s%d, s%d, %d' % (sTD, 88 + (u >> 1), dt * 32768))
                set_m0(e, sMW, CBUF[i] * SLOT)
                e.I('buffer_load_dwordx4 v%d, %s, s%d offen offset:%d lds' % (CV + q, srd(SC2 if u & 1 else SC1), sTD, 1024 * q), tag=('c', i))
                if q == 3 and i >= 2:
                    c_read(i - 2)
            its.append(f)
        return its

    def d_loads(n):
        sl, pos = RING[n]
        its = []
        for q in range(2):
            def f(q=q):
                set_m0(e, sMW, sl * SLOT + pos * 2048)
                if q == 0 and n:
                    step_next(e, n, sDC, sDB, sDE, 14)
                e.I('buffer_load_dwordx4 v%d, %s, s%d offen offset:%d lds' % (WDV + q, srd(SWD), sDC, 1024 * q), tag='wd')
            its.append(f)
        return its

    wl = {j: dma_W(e, WV, SWA, j) for j in range(2, 8)}
    planned = set()

    def e_loads():
        its = []
        for q in range(2):
            def f(q=q):
                set_m0(e, T5, L_EG)
                e.I('buffer_load_dwordx4 v%d, %s, s%d offen offset:%d sc1 lds' % (31 if q else 27, srd(SWS), sEL, 1024 * q), tag='eg')
            its.append(f)
        return its

    def expand(toks, k):
        r = []
        for t in toks.split(','):
            if not t:
                continue
            n = int(t[1])
            planned.add(t)
            if t[0] == 'W':
                assert n < 4 or k >= n - 2
                r += wl[n][:3] if t[2:] == 'a' else wl[n][3:] if t[2:] == 'b' else wl[n]
            elif t[0] == 'C':
                assert CBUF[n] == 4 or k >= min(6 + CBUF[n], cfg.JL)
                r += c_loads(n)
            elif t[0] == 'D':
                r += d_loads(n)
            elif t[0] == 'E':
                r += e_loads()
            elif t[0] == 'T':
                r.append(lambda n=n: tch.at(n))
        return r

    def bar(k, extra=()):
        kk = 7 if k == cfg.JL else k
        assert kk < 2 or 'W%d' % kk in planned or 'W%db' % kk in planned
        e.wait(vm=[('st', 8 + kk)] + list(extra))
        st(e, '_a%d' % k)
        e.I('s_barrier')
        st(e, '_d%d' % k)

    sc = []
    for r in range(16):
        sc += items('v_mul_f32 v4, v%d, v%d\nv_mul_f32 v5, v%d, v%d\nv_fma_f32 v%d, v%d, v%d, -v4\nv_fma_f32 v%d, v%d, v%d, v5' %
                    (KAP + 1, IM + r, KAP + 1, RE + r, RE + r, KAP, RE + r, IM + r, KAP, IM + r))
    ad = []
    ad += items('v_and_b32 v6, 7, v0\nv_lshrrev_b32 v7, 4, v0\nv_xor_b32 v6, v6, v7\nv_lshlrev_b32 v6, 4, v6')
    ad += items('v_lshrrev_b32 v7, 3, v0\nv_lshl_add_u32 v6, v7, 10, v6')
    ad += items('s_lshl_b32 s%d, s%d, 16\ns_lshl_b32 s%d, s%d, 8\ns_add_u32 s%d, s%d, s%d' % (T0, sCT, T1, sW, T0, T0, T1))
    ad += items('v_add_u32 v%d, s%d, v6\nv_xor_b32 v7, 64, v%d' % (CV, T0, CV))
    ad += items('v_add_u32 v%d, 7168, v7\nv_add_u32 v%d, 14336, v%d\nv_add_u32 v%d, 21504, v7' % (CV + 1, CV + 2, CV, CV + 3))
    for s in range(4):
        ad += items('v_add_u32 v%d, s%d, v%d' % (CA + s, sMW, CA + s))
        ad += items('v_add_u32 v%d, %d, v%d' % (CA4 + s, 4 * SLOT, CA + s))
    ad += items('s_lshr_b32 s88, s%d, 1\ns_lshl_b32 s88, s88, 7\ns_lshl_b32 s89, s%d, 15\ns_add_u32 s88, s88, s89\ns_xor_b32 s89, s88, 128' % (sROT, sDTX))
    ad += items(wd_lane_offsets(e, WDV, 6, 7))
    ad += items('s_lshl_b32 s%d, s%d, 2\ns_sub_u32 s%d, s%d, s%d\ns_sub_u32 s%d, s%d, 1\ns_lshl_b32 s%d, s%d, 11' % (T0, sW, T0, sRB, T0, T0, T0, T5, sW))
    ad += items('v_lshrrev_b32 v6, 5, v0\nv_sub_u32 v27, s%d, v6' % T0)
    ad += items('v_cmp_le_i32 s[%d:%d], 0, v27\nv_cmp_le_i32 s[%d:%d], 2, v27' % (sMA, sMA + 1, sMB, sMB + 1))
    ad += items('v_lshl_add_u32 v27, v27, 9, v26\nv_add_u32 v27, 1024, v27\nv_subrev_u32 v31, 2048, v27\nv_mov_b32 v30, 0x%x' % OOB)
    ad += items('v_cndmask_b32 v27, v30, v27, s[%d:%d]\nv_cndmask_b32 v31, v30, v31, s[%d:%d]' % (sMA, sMA + 1, sMB, sMB + 1))
    ad += items('v_lshl_add_u32 v35, v6, 12, v26\nv_add_u32 v35, %d, v35' % L_EG)
    ad += items('v_lshlrev_b32 v6, 3, v6\nv_sub_u32 v34, s%d, v6\nv_med3_i32 v36, v34, 0, 8\nv_mul_lo_u32 v36, v36, s%d' % (sRB, sNONCE))
    ad += items('v_mov_b32 v38, 1\nv_mov_b32 v39, %d\nv_mov_b32 v2, s%d' % (L_FL, sNONCE))
    early = ad + sc
    run(early[:cfg.early])
    late = early[cfg.early:]
    bar(0)
    work = []
    for s in range(8):
        e.I('ds_read_b64 %s, v25 offset:%d' % (vr(4 + 2 * s, 2), 256 * s), tag=('e', s))
    pf = []
    for s in range(1, 8):
        pf.append(lambda s=s: e.wait(lg=('e', s)))
        pf += cfma(4 + 2 * s, L16, 2 + 2 * s, 4 + 2 * s)
    segs = [sg.split('|') for sg in cfg.prog.split(';')]
    q0 = expand(segs[0][0], 0)
    run(weave(q0[:cfg.pren], pf))
    e.I('v_mov_b32 v20, s%d\nv_mov_b32 v21, s%d' % (sNONCE, sNONCE))
    e.I('s_mov_b32 exec_hi, 0')
    e.I('buffer_store_dwordx4 v[18:21], v26, %s, s%d offen sc1' % (srd(SWS), sES), tag='es')
    e.I('s_mov_b32 exec_hi, -1')
    st(e, 'epub')
    run(q0[cfg.pren:])
    g_store()
    sel = items('v_mov_b32 v%d, 0\nv_mov_b32 v%d, 0' % (PP, PP + 1))
    for s in range(1, 8):
        sel.append(lambda s=s: e.I('v_cmp_eq_u32 vcc, %d, v%d\nv_cndmask_b32 v%d, v%d, v%d, vcc\nv_cndmask_b32 v%d, v%d, v%d, vcc' %
                                   (s, SIDX, PP, PP, 2 + 2 * s, PP + 1, PP + 1, 3 + 2 * s)))
    EG = 224

    def e_check():
        e.I('v_add3_u32 v4, v%d, v%d, v%d\nv_add3_u32 v5, v%d, v%d, v%d' % tuple(EG + 4 * k + 2 for k in range(6)))
        e.I('v_add3_u32 v4, v4, v%d, v%d\nv_add_u32 v4, v4, v5' % (EG + 26, EG + 30))
        e.I('v_cmp_ne_u32 vcc, v4, v36')

    def e_verify():
        e.wait(lg='eg')
        e_check()
        e.I('s_cbranch_vccnz L_pollE')
        e.label('L_pollE_out')
        st(e, 'egot')
        with e.cold_block():
            e.label('L_pollE')
            e.I('s_mov_b32 s%d, 0' % sCNT)
            e.label('L_pollE_l')
            for k in range(8):
                e.I('v_subrev_u32 v4, %d, v34\nv_cmp_le_i32 vcc, 2, v4\nv_lshl_add_u32 v4, v4, 9, v26\nv_cndmask_b32 v4, v30, v4, vcc' % (k - 1))
                e.I('buffer_load_dwordx4 %s, v4, %s, s%d offen sc1' % (vr(EG + 4 * k, 4), srd(SWS), sEL))
            e.I('s_add_u32 s%d, s%d, 1' % (sCNT, sCNT))
            e.I('s_cmp_gt_u32 s%d, %d' % (sCNT, SPIN_MAX))
            e.wait(vm='all')
            e.I('s_cbranch_scc1 L_pollE_out')
            e_check()
            e.I('s_cbranch_vccnz L_pollE_l')
            e.I('s_branch L_pollE_out')

    def second_pass():
        p2 = []
        p2.append(lambda: [e.I('ds_read_b128 %s, v35 offset:%d' % (vr(EG + 4 * k, 4), 512 * k), tag='eg') for k in range(8)])
        p2.append(e_verify)
        for k in range(6, -1, -1):
            p2 += cfma(EG + 4 * k, L128, EG + 4 * k + 4, EG + 4 * k)
        p2 += items('v_mov_b32 v4, v%d\nv_mov_b32 v5, v%d\nv_permlane32_swap_b32 v4, v%d\nv_permlane32_swap_b32 v5, v%d' % (EG, EG + 1, EG, EG + 1))
        p2 += cfma(4, L256, EG, 4)
        p2 += cfma(PP, L16S, 4, PP)
        p2 += items('v_mul_f32 v6, v%d, v%d\nv_mul_f32 v7, v%d, v%d' % (KAP, PP, KAP, PP + 1))
        p2 += items('v_fma_f32 v6, -v%d, v%d, v6\nv_fmac_f32 v7, v%d, v%d' % (KAP + 1, PP + 1, KAP + 1, PP))
        prev = (6, 7)
        for r in range(16):
            p2 += items('v_fmac_f32 v%d, v%d, v%d\nv_fmac_f32 v%d, v%d, v%d\nv_fma_f32 v%d, -v%d, v%d, v%d\nv_fmac_f32 v%d, v%d, v%d' %
                        (RE + r, LR, prev[0], IM + r, LR, prev[1], RE + r, LI, prev[1], RE + r, IM + r, LI, prev[0]))
            prev = (RE + r, IM + r)
        return p2

    def store_h(loads):
        for part in range(2):
            for k in range(8):
                sg_ = '-' if part else ''
                e.I('v_cvt_pk_bf16_f32 v%d, %sv%d, %sv%d' % (8 + 8 * part + k, sg_, RE + 16 * part + 2 * k, sg_, RE + 16 * part + 2 * k + 1))
            for m in range(2):
                mfma(e, RE + 16 * part, 8 + 8 * part + 4 * m, SEL + 4 * m, m == 0)
        hdone.append(1)
        run(loads)
        e.I('s_add_u32 s%d, s%d, 4096' % (T0, sHD))
        for part in range(2):
            for m in range(2):
                o = 8 + 8 * part + 4 * m
                for k in range(4):
                    e.I('v_cvt_pk_bf16_f32 v%d, v%d, v%d' % (o + k, RE + 16 * part + 8 * m + 2 * k, RE + 16 * part + 8 * m + 2 * k + 1))
                hq.append(lambda o=o, part=part, m=m: e.I('buffer_store_dwordx4 %s, v1, %s, s%d offen offset:%d sc1' %
                                                         (vr(o, 4), srd(SWS), T0 if part else sHD, 1024 * m), tag='hs'))
                if len(hq) <= cfg.hnow:
                    hq[-1]()

    hq = []
    p2 = second_pass()
    for k, (toks, work) in enumerate(segs):
        if k == 0:
            continue
        if k <= cfg.JL:
            bar(k, ['eg'] if work[:1] == 'P' else [])
        q = expand(toks, k)
        if work == 'sel':
            run(weave(q, sel + late))
        elif work[:1] == 'P':
            assert k <= cfg.JL or work != 'P0'
            part = p2 if work == 'P' else p2[:cfg.p2cut] if work == 'P0' else p2[cfg.p2cut:]
            run(part[:1] + (weave(q, part[1:]) if q else part[1:]))
        elif work == 'H':
            st(e, 'p2done')
            store_h(q)
        elif work == 'F':
            run(hq[cfg.hnow:])
            st(e, 'hst')
            run(q)
            e.wait(vm='hs')
            flag_store(e, 2, sHF)
            st(e, 'hflag')
        else:
            run(q)
    assert len(segs) > cfg.JL
    for i in range(8):
        if 'C%d' % i not in planned:
            run(c_loads(i))
    for i in range(8):
        c_read(i)
    e.wait(vm='wd')
    cnt_add(e, 39, 38, C_DONEA)
    HV = 6
    e.I('s_lshl_b32 s%d, s%d, 17\ns_lshl_b32 s%d, s%d, 14\ns_add_u32 s%d, s%d, s%d\ns_add_u32 s%d, s%d, 0x%x' %
        (T0, sRT, T1, sW, T0, T0, T1, T0, T0, H_OFF))
    e.I('v_add_u32 v%d, s%d, v1\nv_add_u32 v%d, 0x10000, v%d' % (HV, T0, HV + 1, HV))
    for u in range(4):
        e.I('s_xor_b32 s%d, s%d, %d\ns_lshl_b32 s%d, s%d, 12' % (93 + u, sROT, u, 93 + u, 93 + u))
    PW = 8
    part_write_addr(e, PW, 12, 13, 16384, 4096, SPART)
    mk_srd(e, SOUT, P_OUT, 2048 * 2048)
    e.wait(lg='all')
    st(e, 'cgot')
    e.I('s_lshl_b32 s%d, s%d, 2\ns_add_u32 s%d, s%d, s%d\ns_mul_i32 s%d, s%d, %d\ns_add_u32 s%d, s%d, 0x%x' %
        (T0, sRT, T0, T0, sW, T0, T0, 8 * FS, T0, T0, HF_OFF))
    e.I('v_mul_u32_u24 v12, %d, v0\nv_mov_b32 v5, v2' % FS)
    if cfg.posX < 0:
        e.I('s_barrier')
    poll(e, 'L_pollH', 13, 12, T0, '0xff')
    st(e, 'hrdy')

    def h_reg(n):
        return 16 + 8 * (n % 6)

    def h_load(n):
        for tt in range(2):
            e.I('buffer_load_dwordx4 %s, v%d, %s, s%d offen offset:%d sc1' % (vr(h_reg(n) + 4 * tt, 4), HV + tt, srd(SWS),
                                                                                93 + (n >> 2), 1024 * (n & 3)), tag=('h', n, tt))
    for n in range(6):
        h_load(n)
    for n in range(16):
        if n == cfg.posX:
            e.I('s_barrier')
        for tt in range(2):
            e.wait(vm=('h', n, tt))
            for dt in range(2):
                mfma(e, 64 + 16 * (2 * dt + tt), c_reg(n >> 2, n & 3, dt), h_reg(n) + 4 * tt, n == 0)
        if n + 6 < 16:
            h_load(n + 6)
    st(e, 's2end')
    XO, RA, GV = 2, 3, 4
    e.I('s_lshl_b32 s%d, s%d, 2\ns_add_u32 s%d, s%d, s%d\ns_lshl_b32 s%d, s%d, 4' % (T0, sRT, T0, T0, sW, T0, T0))
    e.I('v_lshrrev_b32 v12, 4, v0\nv_add_u32 v13, s%d, v12' % T0)
    e.I('v_and_b32 v14, 15, v0\ns_lshl_b32 s%d, s%d, 7' % (T1, sCT))
    e.I('v_lshl_add_u32 v15, v14, 3, s%d' % T1)
    e.I('v_lshl_add_u32 v%d, v13, 10, v15' % XO)
    e.I('v_lshlrev_b32 v%d, 2, v13\nv_add_u32 v%d, 0x%x, v%d' % (GV, GV, G_OFF, GV))
    e.I('global_load_dwordx2 v[24:25], v15, s[%d:%d]' % (P_DSK, P_DSK + 1), tag='fx')
    for n in range(4):
        e.I('s_mov_b32 s%d, %d' % (T2, 4096 * n))
        e.I('buffer_load_dwordx2 %s, v%d, %s, s%d offen' % (vr(16 + 2 * n, 2), XO, srd(SX), T2), tag='fx')
    e.I('s_and_b32 s%d, s%d, 1\ns_lshl_b32 s%d, s%d, 2' % (T1, sW, T1, T1))
    e.I('v_or_b32 v13, s%d, v12\nv_xor_b32 v13, v13, v14\nv_lshlrev_b32 v13, 4, v13\nv_lshl_add_u32 v13, v12, 8, v13' % T1)
    e.I('s_lshl_b32 s%d, s%d, 14\ns_add_u32 s%d, s%d, %d\ns_mul_i32 s%d, s%d, %d' % (T1, sW, T1, T1, SPART, T2, sW, SLOT))
    e.I('v_add_u32 v%d, s%d, v13\nv_add_u32 v14, s%d, v13' % (RA, T1, T2))
    e.I('s_lshl_b32 s%d, s%d, 7' % (T0, sDTX))
    for a in range(4):
        e.I('v_xor_b32 v%d, s%d, v%d\nv_xor_b32 v%d, 0x80, v%d' % (PW + a, T0, PW + a, 32 + a, PW + a))
    e.I('v_mov_b32 v36, %d\nv_mov_b32 v37, 1' % L_P2)
    part_write(e, PW, 16384, 32)
    cnt_add(e, 36, 37, 0)
    cnt_spin(e, 'L_spinM', 36, 38, 0)
    e.wait(lg='all')
    for n in range(4):
        e.I('buffer_load_dword v%d, v%d, %s, 0 offen offset:%d sc1' % (26 + n, GV, srd(SWS), 16 * n), tag='fg')
    e.I('s_lshl_b32 s%d, s%d, 5\ns_add_u32 s%d, s%d, s%d\ns_lshl_b32 s%d, s%d, 8\ns_add_u32 s%d, s%d, s%d' %
        (T0, sCT, T0, T0, sRT, T1, sW, T0, T0, T1))
    e.I('s_cmp_eq_u32 s%d, 31\ns_cselect_b32 s%d, 0x%x, s%d' % (T0, T0, EPOCH_OFF, SWS + 2))
    flag_store(e, 5, T0)

    def add2(d, a, b, pk):
        if pk:
            e.I('v_pk_add_f32 %s, %s, %s' % (vr(d, 2), vr(a, 2), vr(b, 2)))
        else:
            e.I('v_add_f32 v%d, v%d, v%d\nv_add_f32 v%d, v%d, v%d' % (d, a, b, d + 1, a + 1, b + 1))

    def reduce4(addr, stride, dst, pk):
        for n in range(4):
            for w in range(4):
                e.I('ds_read_b128 %s, v%d offset:%d' % (vr(64 + 16 * n + 4 * w, 4), addr, w * stride + n * 1024), tag=('r', n))
        for n in range(4):
            e.wait(lg=('r', n))
            b = 64 + 16 * n
            for k in range(2):
                add2(b + 2 * k, b + 2 * k, b + 4 + 2 * k, pk)
                add2(b + 8 + 2 * k, b + 8 + 2 * k, b + 12 + 2 * k, pk)
            for k in range(2):
                add2(dst + 4 * n + 2 * k, b + 2 * k, b + 8 + 2 * k, pk)

    BS = 32
    reduce4(RA, 4096, BS, False)
    e.wait(vm='fx')
    e.I('v_lshlrev_b32 v8, 16, v24\nv_and_b32 v9, 0xffff0000, v24\nv_lshlrev_b32 v10, 16, v25\nv_and_b32 v11, 0xffff0000, v25')
    for n in range(4):
        for k in range(2):
            x = 16 + 2 * n + k
            e.I('v_lshlrev_b32 v12, 16, v%d\nv_and_b32 v13, 0xffff0000, v%d' % (x, x))
            e.I('v_mul_f32 v12, v12, v%d\nv_mul_f32 v13, v13, v%d' % (8 + 2 * k, 9 + 2 * k))
            e.I('v_cvt_pk_bf16_f32 v13, v12, v13')
            e.I('v_lshlrev_b32 v12, 16, v13\nv_and_b32 v13, 0xffff0000, v13')
            add2(BS + 4 * n + 2 * k, BS + 4 * n + 2 * k, 12, False)
    e.wait(vm='fg')
    for n in range(4):
        for k in range(4):
            e.I('v_mul_f32 v%d, v%d, v%d' % (BS + 4 * n + k, 26 + n, BS + 4 * n + k))
        e.I('v_sub_f32 v%d, 1.0, v%d' % (26 + n, 26 + n))
        e.I('v_cvt_pk_bf16_f32 v%d, v%d, v%d\nv_lshlrev_b32 v%d, 16, v%d' % (26 + n, 26 + n, 26 + n, 26 + n, 26 + n))
    e.I('v_lshlrev_b32 v%d, 1, v%d' % (XO, XO))
    st(e, 'pre')
    e.I('s_barrier')
    st(e, 'Z')
    FB = 48
    reduce4(14, 6144, FB, True)
    for n in range(4):
        for k in range(2):
            f = FB + 4 * n + 2 * k
            e.I('v_cvt_pk_bf16_f32 v%d, v%d, v%d' % (f + 1, f, f + 1))
            e.I('v_lshlrev_b32 v%d, 16, v%d\nv_and_b32 v%d, 0xffff0000, v%d' % (f, f + 1, f + 1, f + 1))
            e.I('v_mul_f32 v%d, v%d, v%d\nv_mul_f32 v%d, v%d, v%d' % (f, 26 + n, f, f + 1, 26 + n, f + 1))
            e.I('v_cvt_pk_bf16_f32 v%d, v%d, v%d' % (f + 1, f, f + 1))
            e.I('v_lshlrev_b32 v%d, 16, v%d\nv_and_b32 v%d, 0xffff0000, v%d' % (f, f + 1, f + 1, f + 1))
            e.I('v_pk_add_f32 %s, %s, %s' % (vr(f, 2), vr(f, 2), vr(BS + 4 * n + 2 * k, 2)))
        e.I('s_mov_b32 s%d, %d' % (T2, 8192 * n))
        e.I('buffer_store_dwordx4 %s, v%d, %s, s%d offen %s' % (vr(FB + 4 * n, 4), XO, srd(SOUT), T2, cfg.outflags), tag='out')
    st(e, 'end')
    st.flush(e)


HEADER = open(os.path.join(os.path.dirname(os.path.abspath(__file__)), '..', 'cdna_kernels', BASE + '.s.ref')).read()


def generate(cfg):
    SLEEP[:] = cfg.sleep
    hdr = []
    for line in HEADER.split('\n'):
        if not line.startswith(';'):
            break
        if '@launch' in line:
            line = '; @launch grid=(256,1,1) block=(512,1,1) lds=%d' % LDS_BYTES
        hdr.append(line)
    stB = Stamps(cfg, [38, 6, 8, 14, 16, 18, 20, 22, 30, 32, 34, 4, 10, 12, 24, 26], 'B')
    stA = Stamps(cfg, [38, 10, 12, 22, 34, 6, 8, 18, 30, 24, 26, 28, 14, 16, 36, 4], 'A')
    e = Em()
    gen_entry(e, cfg, stB)
    stA.names = list(stB.names)
    eA = Em()
    eA.hist = list(e.hist)
    gen_B(e, cfg, stB)
    gen_A(eA, cfg, stA)
    txt = '\n'.join(hdr) + '\n'
    txt += '.amdgcn_target "amdgcn-amd-amdhsa--gfx950"\n.text\n.globl %s\n.p2align 8\n.type %s,@function\n%s:\n' % (NAME, NAME, NAME)
    txt += e.text() + '\n' + '\n'.join(e.cold) + '\n.p2align 6\nL_A:\n' + eA.text() + '\n    s_endpgm\n' + '\n'.join(eA.cold) + '\nL_end:\n    s_endpgm\n'
    txt += '''.section .rodata,"a"
.p2align 6
.amdhsa_kernel %s
  .amdhsa_next_free_vgpr 256
  .amdhsa_next_free_sgpr 102
  .amdhsa_accum_offset 256
  .amdhsa_group_segment_fixed_size 0
  .amdhsa_kernarg_size 136
  .amdhsa_user_sgpr_count 2
  .amdhsa_user_sgpr_kernarg_segment_ptr 1
  .amdhsa_system_sgpr_workgroup_id_x 1
  .amdhsa_float_denorm_mode_32 3
.end_amdhsa_kernel
''' % NAME
    info = dict(A=eA.count, B=e.count, nopsA=eA.nops, nopsB=e.nops, stampsA=stA.names, stampsB=stB.names)
    return txt, info


def cfg_from(args):
    cfg = Cfg()
    for a in args:
        k, v = a.split('=')
        setattr(cfg, k, eval(v))
    return cfg


if __name__ == '__main__':
    out = sys.argv[1]
    cfg = cfg_from(sys.argv[2:])
    txt, info = generate(cfg)
    open(out, 'w').write(txt)
    print(info)
```

```python
import sys, os
sys.path.insert(0, os.path.dirname(os.path.abspath(__file__)))
from em import Em, weave

BASE = 'gated_mix__ssm_conv_s5__swiglu_ffn__prompt'
NAME = BASE + '_kernel'

ACT_OFF = 0
H_OFF = 0x600000
E_OFF = 0xA00000
G_OFF = 0xA20000
HF_OFF = 0xA24000
AF_OFF = 0xA30000
EPOCH_OFF = 0xA48000
STAMP_OFF = 0xA50000
WS_SIZE = 0xA80000
OOB = 0x2000000
FS = 32
PHI = 0x9E3779B8

SLOT = 24576
WIN = 49152
SCR = 147456
SPART = 98304
L_E, L_FL, L_EG = SCR, SCR + 4096, SCR + 8192
L_P2 = 3 * SLOT + 4096
LDS_BYTES = 163840

P_X, P_LRE, P_LIM, P_BRE, P_BIM, P_CRE, P_CIM, P_LDT = 4, 6, 8, 10, 12, 14, 16, 18
P_DSK, P_BX, P_WG, P_WU, P_WD, P_GW, P_OUT, P_DBG, P_WS = 20, 22, 24, 26, 28, 30, 32, 34, 36
SX, SWS = 40, 44
SBM, SW, SWD = 48, 52, 56
SC1, SC2, SOUT, SCODE = 48, 52, 56, 60
SWA = 60
sWAVE, sW, sRB, sCB, sK0, sRT, sCT, sNONCE, sSG0 = 64, 65, 66, 67, 68, 69, 70, 71, 72
T0, T1, T2, T3, T4, T5, T6 = 73, 74, 75, 76, 77, 78, 79
sNL2E = 80
sMA, sMB = 82, 84
sTBL = 86
sCNT = 97
sTS, sTW, sTD = 98, 99, 100
sMX, sMBm = 60, 61
sMW = 101
SPIN_MAX = 200000

SLEEP = [0, 0]
LOG2E = 0x3fb8aa3b
NLOG2E = 0xbfb8aa3b


class Cfg:
    mimic = False
    mimic2 = False
    stamps = False
    rot1 = (2, 0, 2, 1)
    rot2 = 7
    map2 = 84
    prewarm = True
    NT = 2
    early = 200
    w0pos = None
    s1a = 2
    smallpos = 2
    tlb = False
    lag = 0
    lagr = 4
    JL = 7
    prog = 'W2,G0|;W3,C0|sel;W4|g0;E0,W5,D0,D1,D2|g1;W6|P0;W7|P1;C1|H;C2|F'
    p2cut = 50
    cbuf = (4, 0, 1, 4, 0, 1, 4, 0)
    tplan = ()
    zfill = True
    prioB = 1
    LA = 4
    posX = 8
    pren = 4
    hnow = 4
    sleep = (1, 1)
    skip = ''
    flagpos = (0, 0, 3)
    alook = 18
    abet = 3
    posXB = -16
    NV = 12
    TL = 4
    outflags = 'sc1'
    selA = None
    selB = None
    prioA = 0
    amp = None


def srd(r):
    return 's[%d:%d]' % (r, r + 3)


def vr(a, n):
    return 'v[%d:%d]' % (a, a + n - 1) if n > 1 else 'v%d' % a


def mk_srd(e, r, p, nbytes):
    e.I('s_mov_b32 s%d, s%d\ns_mov_b32 s%d, s%d\ns_mov_b32 s%d, 0x%x\ns_mov_b32 s%d, 0x20000' %
        (r, p, r + 1, p + 1, r + 2, nbytes, r + 3))


def mk_srd_sel(e, r, p1, p0, nbytes):
    e.I('s_cselect_b32 s%d, s%d, s%d\ns_cselect_b32 s%d, s%d, s%d\ns_mov_b32 s%d, 0x%x\ns_mov_b32 s%d, 0x20000' %
        (r, p1, p0, r + 1, p1 + 1, p0 + 1, r + 2, nbytes, r + 3))


def mfma(e, d, a, b, first):
    e.I('v_mfma_f32_32x32x16_bf16 %s, %s, %s, %s' % (vr(d, 16), vr(a, 4), vr(b, 4), '0' if first else vr(d, 16)))


class Stamps:
    def __init__(self, cfg, regs, role):
        self.amp = cfg.amp if cfg.amp else None
        self.role = role
        self.sel = (cfg.selA if role == 'A' else cfg.selB)
        if self.sel is not None:
            self.sel = self.sel.split(',')
        self.ins = 's_memtime' if cfg.stamps == 'cyc' else 's_memrealtime'
        self.on = cfg.stamps or bool(self.amp)
        self.regs = regs
        self.names = []

    def __call__(self, e, name):
        if not self.on:
            return
        if self.sel is not None:
            if name != 'start' and name not in self.sel:
                return
        elif name.startswith('_'):
            return
        r = self.regs[len(self.names)]
        self.names.append(name)
        if self.amp and name not in ('start', 'end', self.amp[1], self.amp[2]):
            return
        e.I('%s s[%d:%d]' % (self.ins, r, r + 1))

    def flush(self, e):
        if not self.on:
            return
        e.wait_smem()
        if self.amp:
            if self.amp[0] == self.role:
                R = dict(zip(self.names, self.regs))
                e.I('s_sub_u32 s%d, s%d, s%d\ns_mul_i32 s%d, s%d, %d\ns_min_u32 s%d, s%d, 50000' %
                    (T0, R[self.amp[2]], R[self.amp[1]], T0, T0, self.amp[3], T0, T0))
                e.label('L_amp')
                e.I('s_memrealtime s[%d:%d]' % (T1, T1 + 1))
                e.wait_smem()
                e.I('s_sub_u32 s%d, s%d, s%d\ns_cmp_lt_u32 s%d, s%d\ns_cbranch_scc1 L_amp' % (T1, T1, R['end'], T1, T0))
            return
        e.I('s_lshl_b32 s%d, s2, 3\ns_add_u32 s%d, s%d, s%d\ns_lshl_b32 s%d, s%d, 6\ns_add_u32 s%d, s%d, 0x%x' %
            (T0, T0, T0, sWAVE, T0, T0, T0, T0, STAMP_OFF))
        e.I('s_mov_b64 exec, 1')
        for k in range(len(self.names)):
            e.I('v_mov_b32 v2, s%d' % self.regs[k])
            e.I('buffer_store_dword v2, off, %s, s%d offset:%d' % (srd(SWS), T0, 4 * k))


def run(items):
    for it in items:
        it()


def poll(e, label, vt, vaddr, soff, mask, between=None):
    def look(tag=None):
        e.I('s_mov_b64 exec, %s' % mask)
        e.I('buffer_load_dword v%d, v%d, %s, s%d offen sc1' % (vt, vaddr, srd(SWS), soff), tag=tag)
        e.I('s_mov_b64 exec, -1')

    def check():
        e.I('v_cmp_ne_u32 vcc, s%d, v%d' % (sNONCE, vt))
        e.I('s_and_b64 vcc, vcc, %s' % mask)
    spin(e, label, look, check, between)


def spin(e, label, look, check, between):
    look('look')
    if between:
        between()
    e.wait(vm='look')
    check()
    e.I('s_cbranch_scc1 %s' % label)
    e.label(label + '_out')
    with e.cold_block():
        e.label(label)
        e.I('s_mov_b32 s%d, 0' % sCNT)
        e.label(label + '_l')
        if SLEEP[0]:
            e.I('s_sleep %d' % SLEEP[0])
        look()
        e.I('s_add_u32 s%d, s%d, 1' % (sCNT, sCNT))
        e.I('s_cmp_gt_u32 s%d, %d' % (sCNT, SPIN_MAX))
        e.wait(vm='all')
        e.I('s_cbranch_scc1 %s_out' % label)
        check()
        e.I('s_cbranch_scc1 %s_l' % label)
        e.I('s_branch %s_out' % label)


def code_touch(e, tag):
    e.I('s_getpc_b64 s[%d:%d]' % (sMA, sMA + 1))
    e.label('L_pc' + tag)
    e.I('s_sub_u32 s%d, s%d, L_pc%s-%s\ns_subb_u32 s%d, s%d, 0' % (sMA, sMA, tag, NAME, sMA + 1, sMA + 1))
    e.I('s_and_b32 s%d, s2, 0xf8\ns_add_u32 s%d, s%d, s%d\ns_lshl_b32 s%d, s%d, 6' % (T0, T0, T0, sWAVE, T0, T0))
    e.I('s_load_dword s3, s[%d:%d], s%d' % (sMA, sMA + 1, T0))
    e.I('s_add_u32 s%d, s%d, 16384\ns_min_u32 s%d, s%d, L_end-%s' % (T0, T0, T0, T0, NAME))
    e.I('s_load_dword s3, s[%d:%d], s%d' % (sMA, sMA + 1, T0))


def rot2_calc(e, cfg, dst):
    if cfg.map2 == 84:
        e.I('s_and_b32 s%d, s%d, %d' % (dst, sRT, cfg.rot2))
    else:
        e.I('s_lshl_b32 s%d, s%d, 1\ns_and_b32 s%d, s%d, %d' % (dst, sRT, dst, dst, cfg.rot2))


def step_start(e, cfg, cur, beg, end, shift):
    rot2_calc(e, cfg, cur)
    e.I('s_cmp_eq_u32 s%d, 3\ns_cselect_b32 s%d, 20, 22' % (sW, end))
    e.I('s_mul_i32 s%d, s%d, s%d\ns_lshr_b32 s%d, s%d, 3\ns_mul_i32 s%d, s%d, 22' % (cur, cur, end, cur, cur, beg, sW))
    e.I('s_add_u32 s%d, s%d, s%d\ns_add_u32 s%d, s%d, s%d' % (cur, cur, beg, end, end, beg))
    for r in (cur, beg, end):
        e.I('s_lshl_b32 s%d, s%d, %d' % (r, r, shift))


def step_next(e, n, cur, beg, end, shift):
    e.I('s_add_u32 s%d, s%d, %d\ns_cmp_eq_u32 s%d, s%d\ns_cselect_b32 s%d, s%d, s%d' % (cur, cur, 1 << shift, cur, end, cur, beg, cur))
    if n == 20:
        e.I('s_cmp_eq_u32 s%d, 3\ns_cselect_b32 s%d, 0x%x, s%d' % (sW, cur, OOB, cur))


def set_m0(e, base, off):
    if getattr(e, 'm0', None) != (base, off):
        e.I('s_add_u32 m0, s%d, %d' % (base, off))
        e.m0 = (base, off)


def wd_lane_offsets(e, WDV, t0, t1):
    txt = 'v_bfe_u32 v%d, v0, 4, 1\nv_lshlrev_b32 v%d, 2, v%d\nv_and_b32 v%d, 7, v0\nv_xor_b32 v%d, v%d, v%d\nv_lshlrev_b32 v%d, 4, v%d\n' % (
        t0, t0, t0, t1, t0, t0, t1, t0, t0)
    txt += 'v_lshrrev_b32 v%d, 3, v0\nv_lshl_add_u32 v%d, v%d, 10, v%d\n' % (t1, t0, t1, t0)
    txt += 's_lshl_b32 s%d, s%d, 7\n' % (T0, sCT)
    txt += 'v_add_u32 v%d, s%d, v%d\nv_add_u32 v%d, 7168, v%d' % (WDV, T0, t0, WDV + 1, WDV)
    return txt


RING = [(5, n) for n in range(3)] + [(2 + n // 3, n % 3) for n in range(6)] + [(4, n) for n in range(3)] \
    + [(n // 3, n % 3) for n in range(6)] + [(2, n) for n in range(3)] + [(3, 0)]
PREV = {18: 3, 19: 4, 20: 5, 21: 6}


class Touch:
    def __init__(self, e, cfg, role):
        self.e, self.role = e, role
        self.plan = [p for p in cfg.tplan if p[0] == role]
        it = []
        for par in range(2):
            for p in (P_CRE, P_CIM):
                it += [(p, 128 * k + 64 * par) for k in range(4)]
        for par in range(2):
            it += [(P_WD, 128 * k + 64 * par) for k in range(11)]
        self.items = it

    def setup(self):
        if not self.plan:
            return
        e = self.e
        used = {self.items[k][0] for p in self.plan for k in range(p[2], p[3])}
        e.I('s_lshl_b32 s%d, s2, 2\ns_add_u32 s%d, s%d, s%d' % (T0, T0, T0, sW))
        for p in sorted(used):
            e.I('s_mul_i32 s%d, s%d, %d' % (T1, T0, 1376 if p == P_WD else 512))
            e.I('s_add_u32 s%d, s%d, s%d\ns_addc_u32 s%d, s%d, 0' % (p, p, T1, p + 1, p + 1))

    def at(self, place):
        for p in self.plan:
            if p[1] == place:
                for k in range(p[2], p[3]):
                    self.e.I('s_load_dword s3, s[%d:%d], %d' % (self.items[k][0], self.items[k][0] + 1, self.items[k][1]))


def flag_store(e, vt, soff, imm=0):
    e.I('s_mov_b64 exec, 1')
    e.I('buffer_store_dword v%d, off, %s, s%d offset:%d sc1' % (vt, srd(SWS), soff, imm), tag='flag')
    e.I('s_mov_b64 exec, -1')


def frag_addr(e, dst, t0, t1):
    e.I('v_lshrrev_b32 v%d, 5, v0' % t0)
    e.I('v_bfe_u32 v%d, v0, 1, 3' % t1)
    e.I('v_xor_b32 v%d, v%d, v%d' % (t0, t0, t1))
    e.I('v_and_b32 v%d, 31, v0' % t1)
    e.I('v_lshlrev_b32 v%d, 7, v%d' % (t1, t1))
    e.I('v_lshl_add_u32 v%d, v%d, 4, v%d' % (dst, t0, t1))
    for s in range(1, 4):
        e.I('v_xor_b32 v%d, %d, v%d' % (dst + s, 32 * s, dst))


def w_tr_addr(e, d0, d1, d2, t0, t1):
    e.I('v_lshrrev_b32 v%d, 5, v0' % t0)
    e.I('v_bfe_u32 v%d, v0, 2, 2' % t1)
    e.I('v_lshl_add_u32 v%d, v%d, 3, v%d' % (t0, t0, t1))
    e.I('v_mul_u32_u24 v%d, 192, v%d' % (t0, t0))
    e.I('v_bfe_u32 v%d, v0, 4, 1' % t1)
    e.I('v_lshl_add_u32 v%d, v%d, 5, v%d' % (t0, t1, t0))
    e.I('v_and_b32 v%d, 3, v0' % t1)
    e.I('v_lshl_add_u32 v%d, v%d, 3, v%d' % (d0, t1, t0))
    e.I('v_add_u32 v%d, %d, v%d' % (d1, WIN, d0))
    e.I('v_add_u32 v%d, %d, v%d' % (d2, 2 * WIN, d0))


W_SLOT = [0, 1, 2, 3, 0, 1, 2, 3]
S_SHIFT = [0]


def s_slot(i):
    return (i + 4) % 6 if S_SHIFT[0] < 0 else (i + S_SHIFT[0]) % 4


def w_frag_read(e, dst, wins, j, s, mat, g, tag):
    slot = W_SLOT[j]
    for mm in range(2):
        off = (slot & 1) * SLOT + mat * 12288 + (16 * s + 4 * mm) * 192 + g * 64
        e.I('ds_read_b64_tr_b16 %s, v%d offset:%d' % (vr(dst + 2 * mm, 2), wins[slot >> 1], off), tag=tag)


def act_items(e, cfg, G, U, tmp, out):
    items = []
    add = lambda t: items.append(lambda t=t: e.I(t))
    for b in range(2):
        g, u, o = G + 8 * b, U + 8 * b, out + 4 * b
        if cfg.mimic:
            for src in (g, u):
                for p in range(4):
                    add('v_cvt_pk_bf16_f32 v%d, v%d, v%d' % (tmp + p, src + 2 * p, src + 2 * p + 1))
                for p in range(4):
                    add('v_lshlrev_b32 v%d, 16, v%d' % (src + 2 * p, tmp + p))
                    add('v_and_b32 v%d, 0xffff0000, v%d' % (src + 2 * p + 1, tmp + p))
        for p in range(4):
            add('v_pk_mul_f32 %s, %s, s[%d:%d]' % (vr(tmp + 2 * p, 2), vr(g + 2 * p, 2), sNL2E, sNL2E + 1))
        for p in range(8):
            add('v_exp_f32 v%d, v%d' % (tmp + p, tmp + p))
        for p in range(4):
            add('v_pk_add_f32 %s, %s, 1.0 op_sel_hi:[1,0]' % (vr(tmp + 2 * p, 2), vr(tmp + 2 * p, 2)))
        for p in range(8):
            add('v_rcp_f32 v%d, v%d' % (tmp + p, tmp + p))
        for p in range(4):
            add('v_pk_mul_f32 %s, %s, %s' % (vr(g + 2 * p, 2), vr(g + 2 * p, 2), vr(tmp + 2 * p, 2)))
        if cfg.mimic:
            for p in range(4):
                add('v_cvt_pk_bf16_f32 v%d, v%d, v%d' % (tmp + p, g + 2 * p, g + 2 * p + 1))
            for p in range(4):
                add('v_lshlrev_b32 v%d, 16, v%d' % (g + 2 * p, tmp + p))
                add('v_and_b32 v%d, 0xffff0000, v%d' % (g + 2 * p + 1, tmp + p))
        for p in range(4):
            add('v_pk_mul_f32 %s, %s, %s' % (vr(u + 2 * p, 2), vr(g + 2 * p, 2), vr(u + 2 * p, 2)))
        for p in range(4):
            add('v_cvt_pk_bf16_f32 v%d, v%d, v%d' % (o + p, u + 2 * p, u + 2 * p + 1))
    return items


def act_items_scalar(e, cfg, G, U, tmp, out):
    if cfg.mimic:
        return act_items(e, cfg, G, U, tmp, out)
    items = []
    add = lambda t: items.append(lambda t=t: e.I(t))
    for b in range(4):
        g, u, o = G + 4 * b, U + 4 * b, out + 2 * b
        for p in range(4):
            add('v_mul_f32 v%d, s%d, v%d' % (tmp + p, sNL2E, g + p))
        for p in range(4):
            add('v_exp_f32 v%d, v%d' % (tmp + p, tmp + p))
            add('v_mul_f32 v%d, v%d, v%d' % (u + p, g + p, u + p))
        for p in range(4):
            add('v_add_f32 v%d, 1.0, v%d' % (tmp + p, tmp + p))
        for p in range(4):
            add('v_rcp_f32 v%d, v%d' % (tmp + p, tmp + p))
        for p in range(4):
            add('v_mul_f32 v%d, v%d, v%d' % (u + p, tmp + p, u + p))
        for p in range(2):
            add('v_cvt_pk_bf16_f32 v%d, v%d, v%d' % (o + p, u + 2 * p, u + 2 * p + 1))
    return items


def light_scc(e):
    e.I('s_and_b32 s%d, s%d, 3\ns_cmp_eq_u32 s%d, 3\ns_cselect_b32 s%d, 14, s%d\ns_cmp_eq_u32 s%d, 14' % (T0, sCB, T0, T0, sCB, T0))


def w_lane_offsets(e, cfg, WV, t0, t1):
    if cfg.zfill:
        light_scc(e)
        e.I('s_cselect_b32 s%d, 8, 12' % sTW)
    e.I('s_and_b32 s%d, s%d, 1' % (T1, sW))
    e.I('s_mul_i32 s%d, s%d, %d\ns_lshl_b32 s%d, s%d, 6\ns_add_u32 s%d, s%d, s%d' % (T0, T1, 32 * 2752, T1, sSG0, T0, T0, T1))
    for q in range(3):
        e.I('v_add_u32 v%d, %d, v0\nv_mul_u32_u24 v%d, 171, v%d\nv_lshrrev_b32 v%d, 11, v%d' % (t1, 64 * q, t0, t1, t0, t0))
        if cfg.zfill:
            e.I('v_mul_u32_u24 v%d, 12, v%d\nv_sub_u32 v%d, v%d, v%d\nv_cmp_gt_u32 vcc, s%d, v%d' % (WV + q, t0, t1, t1, WV + q, sTW, t1))
        e.I('v_mul_u32_u24 v%d, %d, v%d' % (t0, 2752 - 192, t0))
        e.I('v_lshl_add_u32 v%d, v0, 4, v%d' % (t0, t0))
        e.I('v_add_u32 v%d, s%d, v%d' % (WV + q, T0, t0))
        if cfg.zfill:
            e.I('v_mov_b32 v%d, 0x%x\nv_cndmask_b32 v%d, v%d, v%d, vcc' % (t0, OOB, WV + q, t0, WV + q))
    e.I('s_mul_i32 s%d, s%d, 6144' % (sMW, sW))


def dma_W(e, WV, SWR, j):
    slot = W_SLOT[j] * SLOT
    its = []
    for grp in range(2):
        for q in range(3):
            def f(grp=grp, q=q):
                set_m0(e, sMW, slot + grp * 3072)
                if q == 0 and grp == 0:
                    e.I('s_add_u32 s%d, s%d, %d\ns_and_b32 s%d, s%d, 7\ns_mul_i32 s%d, s%d, %d' %
                        (sTW, sK0, j, sTW, sTW, sTW, sTW, 64 * 2752))
                if q == 0 and grp == 1:
                    e.I('s_add_u32 s%d, s%d, %d' % (sTW, sTW, 16 * 2752))
                e.I('buffer_load_dwordx4 v%d, %s, s%d offen offset:%d lds' % (WV + q, srd(SWR), sTW, 1024 * q), tag=('st', 8 + j))
            its.append(f)
    return its


C_LAND, C_CONS, C_Q, C_DONEA = 0, 32, 64, 68


def cnt_add(e, va, vone, off):
    e.I('s_mov_b64 exec, 1')
    e.I('ds_add_u32 v%d, v%d offset:%d' % (va, vone, off), tag='sig')
    e.I('s_mov_b64 exec, -1')


def cnt_look(e, va, vt, off, tag):
    e.I('ds_read_b32 v%d, v%d offset:%d' % (vt, va, off), tag=tag)


def cnt_check(e, label, va, vt, off, tag):
    e.wait(lg=tag)
    e.I('v_cmp_ne_u32 vcc, 4, v%d' % vt)
    e.I('s_cbranch_vccnz %s' % label)
    e.label(label + '_out')
    with e.cold_block():
        e.label(label)
        e.I('s_mov_b32 s%d, 0' % sCNT)
        e.label(label + '_l')
        if SLEEP[1]:
            e.I('s_sleep %d' % SLEEP[1])
        cnt_look(e, va, vt, off, None)
        e.I('s_add_u32 s%d, s%d, 1' % (sCNT, sCNT))
        e.I('s_cmp_gt_u32 s%d, %d' % (sCNT, 20 * SPIN_MAX))
        e.wait(lg='all')
        e.I('s_cbranch_scc1 %s_out' % label)
        e.I('v_cmp_ne_u32 vcc, 4, v%d' % vt)
        e.I('s_cbranch_vccnz %s_l' % label)
        e.I('s_branch %s_out' % label)


def cnt_spin(e, label, va, vt, off):
    cnt_look(e, va, vt, off, 'look')
    cnt_check(e, label, va, vt, off, 'look')


def act_offsets(e, k, s_data, s_flag, valid_scc=False):
    e.I('s_lshl_b32 s%d, s%d, 2\ns_add_u32 s%d, s%d, s%d' % (T0, sRB, T0, T0, sW))
    e.I('s_mul_i32 s%d, s%d, 43\ns_add_u32 s%d, s%d, s%d\ns_add_u32 s%d, s%d, %d\ns_lshl_b32 s%d, s%d, 11' %
        (T1, T0, T1, T1, sSG0, T1, T1, k, s_data, T1))
    e.I('s_lshr_b32 s%d, s%d, 1\ns_mul_i32 s%d, s%d, 44\ns_add_u32 s%d, s%d, s%d\ns_add_u32 s%d, s%d, %d' %
        (T1, T0, T1, T1, T1, T1, sSG0, T1, T1, k))
    e.I('s_lshl_b32 s%d, s%d, 1\ns_and_b32 s%d, s%d, 1\ns_add_u32 s%d, s%d, s%d\ns_mul_i32 s%d, s%d, %d\ns_add_u32 s%d, s%d, 0x%x' %
        (T1, T1, T0, T0, T1, T1, T0, T1, T1, FS, s_flag, T1, AF_OFF))


def part_write_addr(e, dst, t0, t1, piece_stride, wave_stride, base):
    e.I('v_lshrrev_b32 v%d, 5, v0' % t0)
    e.I('v_and_b32 v%d, 7, v0' % t1)
    e.I('v_xor_b32 v%d, v%d, v%d' % (t0, t0, t1))
    e.I('v_lshlrev_b32 v%d, 4, v%d' % (dst, t0))
    e.I('v_bfe_u32 v%d, v0, 3, 2' % t0)
    e.I('v_and_b32 v%d, 3, v0' % t1)
    e.I('v_lshl_add_u32 v%d, v%d, 2, v%d' % (t0, t0, t1))
    e.I('v_lshl_add_u32 v%d, v%d, 8, v%d' % (dst, t0, dst))
    e.I('v_bfe_u32 v%d, v0, 2, 1' % t0)
    e.I('v_mul_u32_u24 v%d, %d, v%d' % (t0, piece_stride, t0))
    e.I('s_mul_i32 s%d, s%d, %d\ns_add_u32 s%d, s%d, %d' % (T0, sW, wave_stride, T0, T0, base))
    e.I('v_add3_u32 v%d, v%d, v%d, s%d' % (dst, dst, t0, T0))
    for a in range(1, 4):
        e.I('v_xor_b32 v%d, %d, v%d' % (dst + a, 32 * a, dst))


def part_write(e, addr, piece_stride, tt, addr1=None):
    its = []
    for dt in range(2):
        for a in range(4):
            ad_, off = (addr + a, dt * 128) if addr1 is None or dt == 0 else (addr1 + a, 0)
            its.append(lambda ad_=ad_, off=off, dt=dt, a=a:
                       e.I('ds_write_b128 v%d, %s offset:%d' % (ad_, vr(64 + 16 * (2 * dt + tt) + 4 * a, 4), tt * 2 * piece_stride + off), tag=('pw', tt)))
    return its


def gen_entry(e, cfg, st):
    e.I('s_cmp_ge_u32 s2, 256\ns_cbranch_scc1 L_end')
    e.I('s_load_dwordx16 s[4:19], s[0:1], 0\ns_load_dwordx16 s[20:35], s[0:1], 64\ns_load_dwordx2 s[36:37], s[0:1], 128')
    st(e, 'start')
    e.I('v_lshrrev_b32 v1, 6, v0\nv_and_b32 v0, 63, v0')
    e.I('v_readfirstlane_b32 s%d, v1' % sWAVE)
    e.I('s_and_b32 s%d, s2, 7\ns_lshr_b32 s%d, s2, 3' % (T0, T1))
    e.I('s_and_b32 s%d, s%d, 7\ns_lshr_b32 s%d, s%d, 3' % (T2, T1, T3, T1))
    e.I('s_and_b32 s%d, s%d, 1\ns_lshl_b32 s%d, s%d, 3\ns_add_u32 s%d, s%d, s%d' % (sRB, T0, sRB, sRB, sRB, sRB, T2))
    e.I('s_lshr_b32 s%d, s%d, 1' % (T4, T0))
    e.I('s_lshl_b32 s%d, s%d, 2\ns_add_u32 s%d, s%d, s%d' % (sCB, T4, sCB, sCB, T3))
    e.I('s_mul_i32 s%d, s%d, %d' % (sK0, T2, cfg.rot1[0]))
    for src, mul in zip((T3, T4, None), cfg.rot1[1:]):
        if mul:
            if src is None:
                e.I('s_and_b32 s%d, s%d, 1' % (T5, T0))
            e.I('s_mul_i32 s%d, s%d, %d\ns_add_u32 s%d, s%d, s%d' % (T5, T5 if src is None else src, mul, sK0, sK0, T5))
    e.I('s_and_b32 s%d, s%d, 7' % (sK0, sK0))
    e.I('s_mul_i32 s%d, s%d, 11\ns_mul_i32 s%d, s%d, 3\ns_add_u32 s%d, s%d, s%d' % (sSG0, T4, T5, T3, sSG0, sSG0, T5))
    e.I('s_cmp_eq_u32 s%d, 15\ns_subb_u32 s%d, s%d, 0' % (sCB, sSG0, sSG0))
    if cfg.map2 == 84:
        e.I('s_lshl_b32 s%d, s%d, 3\ns_add_u32 s%d, s%d, s%d' % (sRT, T4, sRT, sRT, T2))
        e.I('s_and_b32 s%d, s%d, 1\ns_lshl_b32 s%d, s%d, 2\ns_add_u32 s%d, s%d, s%d' % (sCT, T0, sCT, sCT, sCT, sCT, T3))
    else:
        e.I('s_lshl_b32 s%d, s%d, 2\ns_and_b32 s%d, s%d, 3\ns_add_u32 s%d, s%d, s%d\ns_lshr_b32 s%d, s%d, 2' %
            (sRT, T0, T5, T1, sRT, sRT, T5, sCT, T1))
    e.I('s_and_b32 s%d, s%d, 3' % (sW, sWAVE))
    e.I('s_cmp_lt_u32 s%d, 4\ns_cbranch_scc1 L_A' % sWAVE)


def gen_B(e, cfg, st):
    NPRE = cfg.prog.count('D')
    WIN3 = [2, 3, 4]
    EP = 5
    XV, BV, WV, XA = 32, 36, 38, 44
    e.I('v_lshrrev_b32 v8, 3, v0')
    e.I('v_and_b32 v9, 7, v0')
    e.I('v_lshrrev_b32 v10, 4, v0')
    e.I('v_xor_b32 v10, v9, v10\nv_lshlrev_b32 v10, 4, v10')
    e.I('v_lshrrev_b32 v11, 5, v0\nv_and_b32 v12, 3, v8\nv_lshl_add_u32 v11, v11, 4, v12')
    e.I('s_lshl_b32 s%d, s%d, 2\ns_add_u32 s%d, s%d, s%d\ns_lshl_b32 s%d, s%d, 15' % (T0, sRB, T0, T0, sW, T0, T0))
    e.I('v_lshl_add_u32 v11, v11, 10, s%d' % T0)
    e.I('v_add_u32 v%d, v11, v10' % XV)
    e.I('v_xor_b32 v13, 64, v%d' % XV)
    e.I('v_add_u32 v%d, 3072, v13\nv_add_u32 v%d, 6144, v%d\nv_add_u32 v%d, 9216, v13' % (XV + 1, XV + 2, XV, XV + 3))
    e.I('s_and_b32 s%d, s%d, 1' % (T1, sW))
    e.I('s_lshl_b32 s%d, s%d, 1\ns_add_u32 s%d, s%d, s%d\ns_lshl_b32 s%d, s%d, 14' % (T0, sCB, T0, T0, T1, T0, T0))
    e.I('v_lshrrev_b32 v11, 5, v0\nv_lshl_add_u32 v11, v11, 3, v12')
    e.I('v_lshl_add_u32 v11, v11, 10, s%d' % T0)
    e.I('v_add_u32 v%d, v11, v10' % BV)
    e.I('v_xor_b32 v13, 64, v%d\nv_add_u32 v%d, 3072, v13' % (BV, BV + 1))
    e.I('s_lshl_b32 s%d, s%d, 12' % (sMX, sW))
    e.I('s_lshl_b32 s%d, s%d, 11\ns_add_u32 s%d, s%d, 16384' % (sMBm, sW, sMBm, sMBm))
    e.I('s_lshl_b32 s%d, s%d, 7' % (T6, sK0))
    e.wait_smem()
    st(e, 'karg')
    mk_srd(e, SX, P_X, 2048 * 1024)
    e.I('s_cmp_ge_u32 s%d, 2' % sW)
    mk_srd_sel(e, SBM, P_BIM, P_BRE, 512 * 1024)

    def dma_S(i):
        slot = s_slot(i) * SLOT
        its = []
        for q in range(4):
            def f(q=q):
                if q == 0:
                    set_m0(e, sMX, slot)
                    e.I('s_add_u32 s%d, s%d, %d\ns_and_b32 s%d, s%d, 1023' % (sTS, T6, i * 128, sTS, sTS))
                e.I('buffer_load_dwordx4 v%d, %s, s%d offen offset:%d lds' % (XV + q, srd(SX), sTS, 1024 * q), tag=('st', i))
            its.append(f)
        for q in range(2):
            def f(q=q):
                if q == 0:
                    set_m0(e, sMBm, slot)
                e.I('buffer_load_dwordx4 v%d, %s, s%d offen offset:%d lds' % (BV + q, srd(SBM), sTS, 1024 * q), tag=('st', i))
            its.append(f)
        return its

    run(dma_S(0))
    st(e, 'dma0')
    s1 = dma_S(1)
    run(s1[:cfg.s1a])
    e.I('v_lshlrev_b32 v11, 2, v0\nv_add_u32 v11, %d, v11\nv_mov_b32 v12, 0' % L_FL)
    e.I('ds_write_b32 v11, v12', tag='init')
    if cfg.prewarm:
        code_touch(e, 'B')
    e.I('s_cmp_ge_u32 s%d, 2' % sW)
    mk_srd_sel(e, SW, P_WU, P_WG, 512 * 2752)
    mk_srd(e, SWS, P_WS, WS_SIZE)
    mk_srd(e, SWD, P_WD, 1376 * 1024)
    if cfg.tlb:
        for p in (P_WG, P_WU, P_WD, P_CRE, P_CIM, P_OUT):
            e.I('s_load_dword s3, s[%d:%d], 0' % (p, p + 1))
    w_lane_offsets(e, cfg, WV, 11, 12)
    frag_addr(e, XA, 11, 12)
    for s in range(4):
        e.I('v_add_u32 v%d, s%d, v%d' % (XA + s, sMX, XA + s))
        e.I('v_add_u32 v%d, %d, v%d' % (XA + 4 + s, WIN, XA + s))
        if cfg.lag:
            e.I('v_add_u32 v%d, %d, v%d' % (XA + 8 + s, 2 * WIN, XA + s))
    w_tr_addr(e, WIN3[0], WIN3[1], WIN3[2], 11, 12)
    e.I('v_lshlrev_b32 v1, 4, v0')
    tch = Touch(e, cfg, 'B')
    tch.setup()
    tch.at(-1)

    sDC, sDB, sDE, sAC, sAB, sAE = 86, 87, 88, 89, 90, 91
    sD0, sF0, sD2, sF2 = T2, T3, T4, T5
    st(e, '_pro')
    sP0 = 92
    if isinstance(cfg.w0pos, tuple):
        tab = sum(p << (4 * r) for r, p in enumerate(cfg.w0pos))
        e.I('s_and_b32 s%d, s%d, 7\ns_lshl_b32 s%d, s%d, 2\ns_lshr_b32 s%d, 0x%x, s%d\ns_and_b32 s%d, s%d, 15' %
            (T0, sRB, T0, T0, sP0, tab, T0, sP0, sP0))

    def w0_hook(p):
        if cfg.w0pos == p:
            run(dma_W(e, WV, SW, 0))
        elif isinstance(cfg.w0pos, tuple) and p in cfg.w0pos:
            e.I('s_cmp_eq_u32 s%d, %d\ns_cbranch_scc1 L_w0_%d' % (sP0, p, p))
            e.label('L_w0_%d_out' % p)
            with e.cold_block():
                e.label('L_w0_%d' % p)
                run(dma_W(e, WV, SW, 0))
                e.I('s_branch L_w0_%d_out' % p)
            e.m0 = None
    run(s1[cfg.s1a:])
    st(e, '_dma1')
    w0_hook(1)
    e.wait(vm=('st', 0))
    st(e, '_sa0')
    e.I('s_barrier')
    st(e, 'b0')
    for i in range(8):
        if i == 1:
            e.I('s_mov_b32 s%d, 0x%x' % (T0, EPOCH_OFF))
            e.I('buffer_load_dword v%d, off, %s, s%d sc1' % (EP, srd(SWS), T0), tag='ep')
        if i < 6:
            run(dma_S(i + 2))
            w0_hook(i + 2)
        elif cfg.w0pos is None:
            run(dma_W(e, WV, SW, i - 6))
        elif i == 6 or 'W2' not in cfg.prog:
            run(dma_W(e, WV, SW, i - 5))
        for s in range(4):
            slot = s_slot(i)
            e.I('ds_read_b128 %s, v%d offset:%d' % (vr(128 + 4 * (4 * i + s), 4), XA + 4 * (slot >> 1) + s, (slot & 1) * SLOT), tag='x')
        if i == 4:
            e.wait(vm='ep')
            e.I('v_readfirstlane_b32 s%d, v%d' % (sNONCE, EP))
            e.I('s_add_u32 s%d, s%d, 0x%x\ns_or_b32 s%d, s%d, 1' % (sNONCE, sNONCE, PHI, sNONCE, sNONCE))
            e.I('s_mov_b32 s%d, 0x%x\ns_mov_b32 s%d, 0x%x' % (sNL2E, NLOG2E, sNL2E + 1, NLOG2E))
            e.I('v_mov_b32 v%d, s%d' % (EP, sNONCE))
        if i == 2:
            step_start(e, cfg, sAC, sAB, sAE, 10)
        if i == 3:
            for k in range(3):
                e.I('s_lshl_b32 s%d, s%d, 4' % (sDC + k, sAC + k))
            for n in range(1, NPRE):
                step_next(e, n, sDC, sDB, sDE, 14)
        if i == 5:
            act_offsets(e, 0, sD0, sF0)
        if i == 6:
            e.I('s_add_u32 s%d, s%d, 4096\ns_add_u32 s%d, s%d, %d' % (sD2, sD0, sF2, sF0, 4 * FS))
            light_scc(e)
            e.I('s_cselect_b32 s%d, 0x%x, s%d\ns_cselect_b32 s%d, 0x%x, s%d' % (sD2, OOB, sD2, sF2, OOB, sF2))
            e.I('v_mov_b32 v7, %d\nv_mov_b32 v6, 1' % L_FL)
        if i < 7:
            e.wait(vm=('st', i + 1), lg='all')
            st(e, '_sa%d' % (i + 1))
            e.I('s_barrier')
            st(e, '_sd%d' % (i + 1))
            if i == 0:
                st(e, 'b1')
    NT = cfg.NT
    ops = []
    for j in range(8 - NT):
        for s in range(4):
            for g in range(3):
                for mat in range(2):
                    ops.append((j, s, g, mat))
    tail0 = len(ops)
    for g in range(3):
        for j in range(8 - NT, 8):
            for s in range(4):
                for mat in range(2):
                    ops.append((j, s, g, mat))
    NB, LA = 6, cfg.LA
    first = {j: min(q for q in range(len(ops)) if ops[q][0] == j) for j in range(8)}
    last = {j: max(q for q in range(len(ops)) if ops[q][0] == j) for j in range(8)}
    VL = 4

    def rd(q):
        j, s, g, mat = ops[q]
        if q == first[j] and j <= cfg.JL:
            e.wait(vm=('st', 8 + j), lg='x')
            st(e, '_a%d' % j)
            e.I('s_barrier')
            st(e, '_d%d' % j)
            if j in (0, 4, cfg.JL):
                st(e, 'b%d' % (8 + j))
            if j == 0 and cfg.prioB:
                e.I('s_setprio %d' % cfg.prioB)
        w_frag_read(e, 8 + 4 * (q % NB), WIN3, j, s, mat, g, ('wf', q))
        if q == last[7]:
            cnt_add(e, 7, 6, C_CONS + 28)

    def mm(q):
        j, s, g, mat = ops[q]
        if mat == 0:
            e.wait(lg=('wf', q + 1))
        mfma(e, 32 + 32 * g + 16 * mat, 8 + 4 * (q % NB), 128 + 4 * (4 * j + s), j == 0 and s == 0)
        if q + LA < len(ops):
            rd(q + LA)

    def act_store(k):
        for m in range(2):
            e.I('buffer_store_dwordx4 %s, v1, %s, s%d offen offset:%d sc1' %
                (vr(136 + 8 * k + 4 * m, 4), srd(SWS), sD2 if k == 2 else sD0, 1024 * m + (2048 if k == 1 else 0)), tag=('as', k))

    def act_flag(k):
        e.wait(vm=('as', k))
        flag_store(e, EP, sF2 if k == 2 else sF0, 2 * FS if k == 1 else 0)

    for q in range(LA):
        rd(q)
    per = 8 * NT
    for q in range(tail0 + per):
        mm(q)
    flagged = 0
    if NT:
        for g in (1, 2):
            main = [lambda q=q: mm(q) for q in range(tail0 + g * per, tail0 + (g + 1) * per)]
            fill = act_items_scalar(e, cfg, 32 * g, 32 * g + 16, 128, 136 + 8 * (g - 1)) + [lambda g=g: act_store(g - 1)]
            run(main[:2] + weave(main[2:], fill))
        st(e, 'f1end')
        run(act_items(e, cfg, 96, 112, 128, 152))
        act_store(2)
    else:
        st(e, 'f1end')
        for g in range(3):
            run(act_items(e, cfg, 32 + 32 * g, 48 + 32 * g, 128, 136 + 8 * g))
            act_store(g)
    if cfg.prioB:
        e.I('s_setprio 0')
    st(e, 'actst')
    DA, AV, PW, WDV = 6, 12, 14, 18
    e.I(wd_lane_offsets(e, WDV, 20, 21))
    e.I('v_mov_b32 v22, %d' % L_FL)
    cnt_spin(e, 'L_spinB', 22, 24, C_CONS + 28)
    st(e, 'ldsfree')

    def dma_D(n):
        sl, pos = RING[n]
        if n in PREV:
            e.wait(lg=('wr', PREV[n]))
        set_m0(e, sMW, sl * SLOT + pos * 2048)
        if n:
            step_next(e, n, sDC, sDB, sDE, 14)
        for q in range(2):
            e.I('buffer_load_dwordx4 v%d, %s, s%d offen offset:%d lds' % (WDV + q, srd(SWD), sDC, 1024 * q), tag=('wd', n))

    def wd_reg(n):
        return 128 + 8 * n if n < 10 else 32 + 8 * (n & 3)

    def wd_read(n):
        sl, pos = RING[n]
        e.wait(vm=('wd', n))
        for dt in range(2):
            for mq in range(2):
                e.I('ds_read_b64_tr_b16 %s, v%d offset:%d' % (vr(wd_reg(n) + 4 * dt + 2 * mq, 2), DA + 2 * (sl >> 1) + dt,
                                                             (sl & 1) * SLOT + pos * 2048 + mq * 1024), tag=('wr', n))

    for n in range(NPRE, 9):
        for k in range(3):
            if cfg.flagpos[k] + NPRE == n:
                act_flag(k)
                if k == 2:
                    st(e, 'flagged')
        dma_D(n)
    e.I('v_lshrrev_b32 v20, 5, v0\nv_bfe_u32 v21, v0, 2, 2\nv_lshl_add_u32 v20, v20, 2, v21\nv_lshlrev_b32 v20, 7, v20')
    e.I('v_bfe_u32 v21, v0, 3, 1\nv_lshl_add_u32 v20, v21, 6, v20')
    e.I('v_bfe_u32 v21, v0, 4, 1\nv_lshl_add_u32 v20, v21, 5, v20')
    e.I('v_and_b32 v21, 3, v0\nv_lshl_add_u32 v20, v21, 3, v20')
    e.I('v_add_u32 v%d, s%d, v20\nv_xor_b32 v%d, 64, v%d' % (DA, sMW, DA + 1, DA))
    for k in (1, 2):
        e.I('v_add_u32 v%d, %d, v%d\nv_add_u32 v%d, %d, v%d' % (DA + 2 * k, k * WIN, DA, DA + 2 * k + 1, k * WIN, DA + 1))
    e.I('s_mul_i32 s%d, s%d, %d' % (T0, sRT, 2 * 88064))
    e.I('v_add_u32 v%d, s%d, v1\nv_add_u32 v%d, 88064, v%d' % (AV, T0, AV + 1, AV))
    part_write_addr(e, PW, 20, 21, SLOT, 6144, 0)
    e.I('s_mul_i32 s%d, s%d, 44\ns_mul_i32 s%d, s%d, 11\ns_add_u32 s%d, s%d, s%d\ns_mul_i32 s%d, s%d, %d\ns_add_u32 s%d, s%d, 0x%x' %
        (T0, sRT, T1, sW, T0, T0, T1, T0, T0, 2 * FS, T0, T0, AF_OFF))
    e.I('v_mul_u32_u24 v20, %d, v0' % FS)
    e.I('s_mov_b32 s%d, 0x3fffff\ns_cmp_eq_u32 s%d, 3\ns_cselect_b32 s%d, 0xfffff, s%d\ns_mov_b32 s%d, 0' % (sMA, sW, sMA, sMA, sMA + 1))
    e.I('s_add_u32 s%d, s%d, %d' % (T1, sMW, L_P2))
    e.I('v_mov_b32 v25, s%d\nv_mov_b32 v26, 0' % T1)
    cnt_spin(e, 'L_spinB2', 22, 24, C_DONEA)
    pulled = [0]

    def d_step(n):
        dma_D(n)
        while pulled[0] < min(14, 2 * (n - 8), n - 3):
            wd_read(pulled[0])
            pulled[0] += 1
            if pulled[0] == 9:
                e.I('ds_write_b32 v25, v26', tag='init')
        if n == -cfg.posXB:
            bar_X()

    def bar_X():
        assert pulled[0] >= 12
        e.wait(lg=[('wr', 11), 'init'])
        st(e, '_aX')
        e.I('s_barrier')

    for n in range(9, cfg.alook):
        d_step(n)
    st(e, 'wdiss')
    nd = cfg.alook + cfg.abet
    poll(e, 'L_pollA', 21, 20, T0, 's[%d:%d]' % (sMA, sMA + 1), lambda: [d_step(n) for n in range(cfg.alook, nd)])
    st(e, 'actrdy')

    def a_reg(n):
        return 208 + 8 * (n % 6) if n < 22 - TL else 128 + 8 * (n - (22 - TL))

    TL = cfg.TL
    sSV = 92

    def a_load(n, tts=(0, 1)):
        if n and 0 in tts:
            step_next(e, n, sAC, sAB, sAE, 10)
        so = sAC
        if n >= 22 - TL:
            so = sSV + n - (22 - TL)
            if 0 in tts:
                e.I('s_mov_b32 s%d, s%d' % (so, sAC))
        for tt in tts:
            e.I('buffer_load_dwordx4 %s, v%d, %s, s%d offen sc1' % (vr(a_reg(n) + 4 * tt, 4), AV + tt, srd(SWS), so), tag=('a', n, tt))

    lq = []
    for n in range(22 - TL):
        lq.append(('a', n, (0, 1)))
        if nd < 22:
            lq.append(('d', nd))
            nd += 1
    lq += [('a', n, (tt,)) for tt in range(2) for n in range(22 - TL, 22)]

    def issue(n, tt):
        while lq:
            t = lq[0]
            tag = ('a', n, tt)
            if tag in issued and (tag not in e.vm or len(e.vm) - 1 - e.vm.index(tag) >= cfg.NV - 1 - tt):
                if tag in e.vm or len(e.vm) >= cfg.NV:
                    return
            if t[0] == 'a' and (t[1] >= n + 6 if t[1] < 22 - TL else n <= TL):
                return
            lq.pop(0)
            if t[0] == 'a':
                a_load(t[1], t[2])
                issued.update(('a', t[1], k) for k in t[2])
            else:
                d_step(t[1])
                dn[0] = t[1]

    issued = set()
    dn = [cfg.alook + cfg.abet - 1]

    def mm2(n, tt):
        assert ('a', n, tt) in issued
        e.wait(vm=('a', n, tt), lg=('wr', n))
        for dt in range(2):
            mfma(e, 64 + 16 * (2 * dt + tt), wd_reg(n) + 4 * dt, a_reg(n) + 4 * tt, n == 0)

    for n in range(22 - TL):
        issue(n, 0)
        st(e, '_n%d' % n)
        while pulled[0] <= min(n + 4, 13):
            assert dn[0] >= pulled[0]
            wd_read(pulled[0])
            pulled[0] += 1
        if n == cfg.posXB:
            bar_X()
        for tt in range(2):
            mm2(n, tt)
        if n >= 10 and n + 4 < 22:
            assert dn[0] >= n + 4 and pulled[0] == 14
            wd_read(n + 4)
    cfg_nv, cfg.NV = cfg.NV, 99
    issue(22 - TL, 0)
    cfg.NV = cfg_nv
    assert not lq
    for n in range(22 - TL, 22):
        mm2(n, 0)
    e.wait(lg='all')
    second = [lambda n=n: mm2(n, 1) for n in range(22 - TL, 22)]
    pw0 = part_write(e, PW, SLOT, 0)
    run(second[:1] + weave(second[1:], pw0) if TL > 1 else second + pw0)
    st(e, 'f2end')
    pw1 = part_write(e, PW, SLOT, 1)
    run(pw1[:2])
    e.wait(lg=('pw', 0))
    e.I('s_barrier')
    run(pw1[2:])
    e.wait(lg='all')
    e.I('s_barrier')
    st(e, 'end')
    st.flush(e)
    e.I('s_endpgm')


def gen_A(e, cfg, st):
    LR, LI, L16, L128, L256, L16S, KAP, WV = 48, 49, 50, 52, 54, 56, 58, 60
    PP = 32
    SIDX = 3
    RE, IM = 64, 80
    XA, BA = 192, 204
    CV, CA, CA4, WDV = 96, 100, 104, 108
    EV0, EV1, EOOB, ERD, ECNT, EEXP, ONE, FLA, XW, XR, P16 = range(110, 121)
    SEL = 216
    RING0 = 144
    sHD, sHF, sES, sEL, sROT, sDTX = 86, 87, 90, 91, 92, 80
    sDC, sDB, sDE = 93, 94, 95
    e.I('v_lshlrev_b32 v1, 4, v0')
    e.I('v_and_b32 v21, 0x13, v0\nv_bfe_u32 v22, v0, 2, 1\nv_lshl_add_u32 v21, v22, 3, v21\nv_bfe_u32 v22, v0, 3, 1\nv_lshl_add_u32 v21, v22, 2, v21')
    e.I('s_lshl_b32 s%d, s%d, 6' % (T0, sCB))
    e.I('v_lshl_add_u32 v21, v21, 1, s%d' % T0)
    e.I('s_lshl_b32 s%d, s%d, 2\ns_add_u32 s%d, s%d, s%d\ns_lshl_b32 s%d, s%d, 4\ns_add_u32 s%d, s%d, s%d' %
        (T3, sRB, T3, T3, sW, T3, T3, T3, T3, sCB))
    e.I('s_lshl_b32 s%d, s%d, 11' % (T2, T3))
    frag_addr(e, BA, 4, 5)
    e.wait_smem()
    st(e, '_karg')
    mk_srd(e, SX, P_X, 2048 * 1024)
    mk_srd(e, SWS, P_WS, WS_SIZE)
    e.I('s_mov_b32 s%d, 0x%x\ns_lshl_b32 s%d, s%d, 6' % (T4, EPOCH_OFF, T0, sCB))
    e.I('s_load_dword s3, s[%d:%d], s%d' % (P_WS, P_WS + 1, T4))
    for p in (P_LRE, P_LIM, P_LDT):
        e.I('s_load_dword s3, s[%d:%d], s%d' % (p, p + 1, T0))
    e.I('s_lshr_b32 s%d, s2, 3\ns_lshl_b32 s%d, s%d, 2\ns_add_u32 s%d, s%d, s%d\ns_and_b32 s%d, s%d, 15\ns_lshl_b32 s%d, s%d, 6' %
        (T0, T0, T0, T0, T0, sW, T0, T0, T0, T0))
    for p in (P_GW, P_DSK):
        e.I('s_load_dword s3, s[%d:%d], s%d' % (p, p + 1, T0))
    if cfg.prewarm:
        code_touch(e, 'A')

    def small0():
        e.I('buffer_load_dword v19, off, %s, s%d sc1' % (srd(SWS), T4), tag='ep')
        e.I('global_load_ushort v16, v21, s[%d:%d]' % (P_LRE, P_LRE + 1), tag='par')
        e.I('global_load_ushort v17, v21, s[%d:%d]' % (P_LIM, P_LIM + 1), tag='par')
        e.I('global_load_ushort v18, v21, s[%d:%d]' % (P_LDT, P_LDT + 1), tag='par')

    small1 = [lambda: e.I('global_load_dwordx4 v[44:47], v1, s[%d:%d]' % (P_GW, P_GW + 1), tag='g'),
              lambda: e.I('buffer_load_dwordx4 v[36:39], v1, %s, s%d offen' % (srd(SX), T2), tag='g'),
              lambda: e.I('buffer_load_dwordx4 v[40:43], v1, %s, s%d offen offset:1024' % (srd(SX), T2), tag='g')]
    e.I('s_lshl_b32 s%d, s%d, 3\ns_add_u32 s%d, s%d, 0x%x' % (T6, T3, T6, T6, G_OFF))

    e.I('s_lshl_b32 s%d, s%d, 12' % (T0, sW))
    for s in range(4):
        e.I('v_add_u32 v%d, s%d, v%d' % (XA + s, T0, BA + s))
        e.I('v_add_u32 v%d, %d, v%d' % (XA + 4 + s, WIN, XA + s))
        e.I('v_add_u32 v%d, %d, v%d' % (BA + 4 + s, WIN, BA + s))
        if cfg.lag:
            e.I('v_add_u32 v%d, %d, v%d\nv_add_u32 v%d, %d, v%d' % (XA + 8 + s, 2 * WIN, XA + s, BA + 8 + s, 2 * WIN, BA + s))
    w_lane_offsets(e, cfg, WV, 24, 25)
    e.I('v_lshrrev_b32 v24, 5, v0\ns_lshl_b32 s%d, s%d, 1' % (T0, sW))
    e.I('v_add_u32 v%d, s%d, v24' % (SIDX, T0))
    rot2_calc(e, cfg, sROT)
    e.I('s_and_b32 s%d, s%d, 1\ns_lshr_b32 s%d, s%d, 1' % (sDTX, sROT, sROT, sROT))
    e.I('s_bitcmp1_b32 s%d, 0' % sROT)
    mk_srd_sel(e, SC1, P_CIM, P_CRE, 512 * 1024)
    mk_srd_sel(e, SC2, P_CRE, P_CIM, 512 * 1024)
    mk_srd(e, SWD, P_WD, 1376 * 1024)
    step_start(e, cfg, sDC, sDB, sDE, 14)
    e.I('s_cmp_ge_u32 s%d, 2' % sW)
    mk_srd_sel(e, SWA, P_WU, P_WG, 512 * 2752)
    e.I('s_lshl_b32 s%d, s%d, 2\ns_add_u32 s%d, s%d, s%d' % (T0, sRB, T0, T0, sW))
    e.I('s_lshl_b32 s%d, s%d, 16\ns_lshr_b32 s%d, s%d, 1\ns_lshl_b32 s%d, s%d, 13\ns_add_u32 s%d, s%d, s%d' %
        (sHD, T0, T1, sCB, T1, T1, sHD, sHD, T1))
    e.I('s_and_b32 s%d, s%d, 1\ns_lshl_b32 s%d, s%d, 11\ns_add_u32 s%d, s%d, s%d\ns_add_u32 s%d, s%d, 0x%x' %
        (T1, sCB, T1, T1, sHD, sHD, T1, sHD, sHD, H_OFF))
    e.I('s_lshr_b32 s%d, s%d, 1\ns_lshl_b32 s%d, s%d, 4\ns_add_u32 s%d, s%d, s%d\ns_lshl_b32 s%d, s%d, 1' %
        (T1, T0, T1, T1, T1, T1, sCB, T1, T1))
    e.I('s_and_b32 s%d, s%d, 1\ns_add_u32 s%d, s%d, s%d\ns_mul_i32 s%d, s%d, %d\ns_add_u32 s%d, s%d, 0x%x' %
        (T0, T0, T1, T1, T0, T1, T1, FS, sHF, T1, HF_OFF))
    e.I('s_lshl_b32 s%d, s%d, 13\ns_add_u32 s%d, s%d, 0x%x' % (sEL, sCB, sEL, sEL, E_OFF))
    e.I('s_lshl_b32 s%d, s%d, 9\ns_add_u32 s%d, s%d, s%d\ns_cmp_eq_u32 s%d, 0\ns_cselect_b32 s%d, s%d, 0x%x' %
        (sES, sRB, sES, sES, sEL, sW, sES, sES, OOB))
    e.I('s_sub_u32 s%d, s%d, 1024' % (sEL, sEL))

    tch = Touch(e, cfg, 'A')
    tch.setup()
    tch.at(-1)

    e.I('s_lshl_b32 s%d, s%d, 9\ns_add_u32 s%d, s%d, %d' % (T0, sW, T0, T0, L_E))
    e.I('v_lshl_add_u32 v%d, v0, 3, s%d' % (XW, T0))
    e.I('v_and_b32 v6, 31, v0\nv_lshlrev_b32 v%d, 4, v6\nv_lshlrev_b32 v6, 3, v6\nv_add_u32 v%d, %d, v6' % (P16, XR, L_E))
    e.I('v_and_b32 v4, 3, v0\nv_bfe_u32 v5, v0, 3, 2\nv_lshl_add_u32 v4, v5, 2, v4')
    e.I('v_bfe_u32 v5, v0, 2, 1\nv_lshrrev_b32 v6, 5, v0\nv_xor_b32 v5, v5, v6\nv_lshl_add_u32 v4, v5, 4, v4')
    e.I('v_and_b32 v5, 1, v0\nv_lshlrev_b32 v5, 4, v5\nv_mov_b32 v6, 0x3f80\nv_lshlrev_b32 v5, v5, v6\nv_lshrrev_b32 v4, 1, v4')
    for n in range(8):
        e.I('v_cmp_eq_u32 vcc, %d, v4\nv_cndmask_b32 v%d, 0, v5, vcc' % (n, SEL + n))
    e.I('v_and_b32 v6, 7, v0\nv_lshrrev_b32 v7, 4, v0\nv_xor_b32 v6, v6, v7\nv_lshlrev_b32 v6, 4, v6')
    e.I('v_lshrrev_b32 v7, 3, v0\nv_lshl_add_u32 v6, v7, 10, v6')
    e.I('s_lshl_b32 s%d, s%d, 16\ns_lshl_b32 s%d, s%d, 8\ns_add_u32 s%d, s%d, s%d' % (T0, sCT, T1, sW, T0, T0, T1))
    e.I('v_add_u32 v%d, s%d, v6\nv_xor_b32 v7, 64, v%d' % (CV, T0, CV))
    e.I('v_add_u32 v%d, 7168, v7\nv_add_u32 v%d, 14336, v%d\nv_add_u32 v%d, 21504, v7' % (CV + 1, CV + 2, CV, CV + 3))
    for s in range(4):
        e.I('v_add_u32 v%d, s%d, v%d' % (CA + s, sMW, BA + s))
        e.I('v_add_u32 v%d, %d, v%d' % (CA4 + s, 4 * SLOT, CA + s))
    e.I('s_lshr_b32 s88, s%d, 1\ns_lshl_b32 s88, s88, 7\ns_lshl_b32 s89, s%d, 15\ns_add_u32 s88, s88, s89\ns_xor_b32 s89, s88, 128' % (sROT, sDTX))
    e.I(wd_lane_offsets(e, WDV, 6, 7))
    e.I('s_lshl_b32 s%d, s%d, 2\ns_sub_u32 s%d, s%d, s%d\ns_sub_u32 s%d, s%d, 1\ns_lshl_b32 s%d, s%d, 11' % (T0, sW, T0, sRB, T0, T0, T0, T5, sW))
    e.I('v_lshrrev_b32 v6, 5, v0\nv_sub_u32 v7, s%d, v6' % T0)
    e.I('v_cmp_le_i32 vcc, 0, v7\nv_cmp_le_i32 s[%d:%d], 2, v7' % (sMB, sMB + 1))
    e.I('v_lshl_add_u32 v7, v7, 9, v%d\nv_add_u32 v7, 1024, v7\nv_subrev_u32 v5, 2048, v7\nv_mov_b32 v%d, 0x%x' % (P16, EOOB, OOB))
    e.I('v_cndmask_b32 v%d, v%d, v7, vcc\nv_cndmask_b32 v%d, v%d, v5, s[%d:%d]' % (EV0, EOOB, EV1, EOOB, sMB, sMB + 1))
    e.I('v_lshl_add_u32 v7, v6, 12, v%d\nv_add_u32 v%d, %d, v7' % (P16, ERD, L_EG))
    e.I('v_lshlrev_b32 v6, 3, v6\nv_sub_u32 v%d, s%d, v6\nv_med3_i32 v%d, v%d, 0, 8' % (ECNT, sRB, EEXP, ECNT))
    e.I('v_mov_b32 v%d, 1\nv_mov_b32 v%d, %d' % (ONE, FLA, L_FL))

    pro = []
    add = lambda t: [pro.append(lambda x=x: e.I(x)) for x in t.split('\n')]

    def csq(d, a):
        add('v_mul_f32 v30, v%d, v%d\nv_mul_f32 v31, v%d, v%d\nv_fma_f32 v%d, -v%d, v%d, v30\nv_add_f32 v%d, v31, v31' %
            (a, a, a, a + 1, d, a + 1, a + 1, d + 1))

    def cmul(d, a, b):
        add('v_mul_f32 v30, v%d, v%d\nv_mul_f32 v31, v%d, v%d\nv_fma_f32 v30, -v%d, v%d, v30\nv_fma_f32 v%d, v%d, v%d, v31\nv_mov_b32 v%d, v30' %
            (a, b, a, b + 1, a + 1, b + 1, d + 1, a + 1, b, d))

    pro.append(lambda: e.wait(vm=['ep', 'par']))
    add('v_readfirstlane_b32 s%d, v19' % sNONCE)
    add('v_lshlrev_b32 v16, 16, v16\nv_lshlrev_b32 v17, 16, v17\nv_lshlrev_b32 v18, 16, v18')
    add('s_add_u32 s%d, s%d, 0x%x\ns_or_b32 s%d, s%d, 1' % (sNONCE, sNONCE, PHI, sNONCE, sNONCE))
    add('v_mul_f32 v18, 0x%x, v18\nv_exp_f32 v18, v18\nv_cvt_pk_bf16_f32 v18, v18, v18\nv_lshlrev_b32 v18, 16, v18' % LOG2E)
    add('v_mul_f32 v21, v18, v16\nv_mul_f32 v22, v18, v17')
    add('v_mul_f32 v21, 0x%x, v21\nv_exp_f32 v21, v21' % LOG2E)
    add('v_mul_f32 v22, 0.15915494, v22\nv_rndne_f32 v23, v22\nv_sub_f32 v22, v22, v23\nv_sin_f32 v23, v22\nv_cos_f32 v22, v22')
    add('v_mul_f32 v%d, v21, v23\nv_mul_f32 v%d, v21, v22' % (LI, LR))
    add('v_mul_f32 v21, v16, v16\nv_fmac_f32 v21, v17, v17\nv_rcp_f32 v21, v21\nv_add_f32 v22, -1.0, v%d\nv_add_f32 v21, v21, v21' % LR)
    add('v_mul_f32 v23, v22, v16\nv_fmac_f32 v23, v%d, v17\nv_mul_f32 v%d, v23, v21' % (LI, KAP))
    add('v_mul_f32 v23, v%d, v16\nv_fma_f32 v23, -v22, v17, v23\nv_mul_f32 v%d, v23, v21' % (LI, KAP + 1))
    csq(22, LR); csq(22, 22); csq(22, 22); csq(L16, 22)
    csq(22, L16); csq(24, 22); csq(L128, 24); csq(L256, L128); csq(L256, L256); csq(L256, L256)
    for bit, src, dst in ((1, L16, L16S), (2, 22, 22), (4, 24, 24)):
        add('v_and_b32 v26, %d, v%d\nv_cmp_ne_u32 vcc, 0, v26' % (bit, SIDX))
        add('v_cndmask_b32 v%d, 1.0, v%d, vcc\nv_cndmask_b32 v%d, 0, v%d, vcc' % (dst, src, dst + 1, src + 1))
    cmul(L16S, L16S, 22); cmul(L16S, L16S, 24)
    add('v_mul_lo_u32 v%d, v%d, s%d\nv_mov_b32 v2, s%d' % (EEXP, EEXP, sNONCE, sNONCE))

    par, pro = pro, []
    pro.append(lambda: e.wait(vm='g'))
    for k in range(4):
        add('v_lshlrev_b32 v24, 16, v%d\nv_and_b32 v25, 0xffff0000, v%d' % (44 + k, 44 + k))
        for row in range(2):
            x = 36 + 4 * row + k
            add('v_lshlrev_b32 v26, 16, v%d\nv_and_b32 v27, 0xffff0000, v%d' % (x, x))
            add('v_mul_f32 v26, v26, v24\nv_mul_f32 v27, v27, v25\nv_cvt_pk_bf16_f32 v26, v26, v27')
            add('v_lshlrev_b32 v27, 16, v26\nv_and_b32 v26, 0xffff0000, v26')
            if k == 0:
                add('v_add_f32 v%d, v26, v27' % (28 + row))
            else:
                add('v_add_f32 v26, v26, v27\nv_add_f32 v%d, v%d, v26' % (28 + row, 28 + row))
    for mod in ('row_shr:1 row_mask:0xf', 'row_shr:2 row_mask:0xf', 'row_shr:4 row_mask:0xf', 'row_shr:8 row_mask:0xf',
                'row_bcast:15 row_mask:0xa', 'row_bcast:31 row_mask:0xc'):
        for row in range(2):
            add('v_add_f32_dpp v%d, v%d, v%d %s bank_mask:0xf' % (28 + row, 28 + row, 28 + row, mod))
    add('v_cvt_pk_bf16_f32 v26, v28, v29\nv_lshlrev_b32 v28, 16, v26\nv_and_b32 v29, 0xffff0000, v26')
    add('v_mul_f32 v28, 0x%x, v28\nv_mul_f32 v29, 0x%x, v29\nv_exp_f32 v28, v28\nv_exp_f32 v29, v29' % (NLOG2E, NLOG2E))
    add('v_add_f32 v28, 1.0, v28\nv_add_f32 v29, 1.0, v29\nv_rcp_f32 v28, v28\nv_rcp_f32 v29, v29')
    add('v_cvt_pk_bf16_f32 v26, v28, v29\nv_lshlrev_b32 v28, 16, v26\nv_and_b32 v29, 0xffff0000, v26')
    gate, pro = pro, par

    def g_store():
        e.I('s_mov_b32 exec_lo, 0\ns_mov_b32 exec_hi, 0x80000000')
        e.I('buffer_store_dwordx2 v[28:29], off, %s, s%d sc1' % (srd(SWS), T6), tag='gs')
        e.I('s_mov_b64 exec, -1')

    nbar = [0]

    def s_bar(i):
        assert nbar[0] == i
        nbar[0] += 1
        e.I('s_barrier')
        if i in (0, 7):
            st(e, 'b%d' % i)

    def s_read(n):
        i, s = n >> 2, n & 3
        slot = s_slot(i)
        if s == 0 and not cfg.lag:
            s_bar(i)
        assert nbar[0] > i
        off = (slot & 1) * SLOT
        b = RING0 + 12 * (n & 3)
        e.I('ds_read_b128 %s, v%d offset:%d' % (vr(b + 8, 4), XA + 4 * (slot >> 1) + s, off), tag=('s', n, 0))
        for part in range(2):
            e.I('ds_read_b128 %s, v%d offset:%d' % (vr(b + 4 * part, 4), BA + 4 * (slot >> 1) + s,
                                                    off + 16384 + part * 4096), tag=('s', n, part))

    def s_mm(n, part):
        e.wait(lg=('s', n, part))
        b = RING0 + 12 * (n & 3)
        mfma(e, RE + 16 * part, b + 8, b + 4 * part, n == 0)

    D = 2
    seq = []
    for n in range(32):
        seq.append(lambda n=n: (s_mm(n, 0), s_read(n + D) if n + D < 32 else None))
        seq.append(lambda n=n: s_mm(n, 1))
    st(e, '_pro')
    if cfg.lag:
        L = cfg.lag
        npar = len(pro) // max(L - 1, 1) + 1
        for i in range(L):
            s_bar(i)
            tch.at(10 + i)
            if i == 0:
                small0()
            if i >= 1:
                run(pro[(i - 1) * npar:i * npar])
        s_bar(L)
        for n in range(D):
            s_read(n)
        r2 = 2 * cfg.lagr
        for k, it in enumerate(seq):
            it()
            i = L + (k + 1) // r2
            if (k + 1) % r2 == 0 and i <= 7:
                assert (k + 1) // 2 >= 4 * (i - 3)
                s_bar(i)
    else:
        for n in range(D):
            s_read(n)
        p0 = 2 * cfg.smallpos
        run(seq[:p0])
        small0()
        run(seq[p0:p0 + 10])
        run(weave(seq[p0 + 10:56], pro) + seq[56:])
    assert nbar[0] == 8
    st(e, 's1end')
    if cfg.prioA:
        e.I('s_setprio %d' % cfg.prioA)

    def items(txt):
        return [lambda t=t: e.I(t) for t in txt.split('\n')]

    def cfma(d, l, a, c):
        return items('v_fma_f32 v%d, v%d, v%d, v%d\nv_fma_f32 v%d, v%d, v%d, v%d\nv_fma_f32 v%d, -v%d, v%d, v%d\nv_fmac_f32 v%d, v%d, v%d' %
                     (d, l, a, c, d + 1, l, a + 1, c + 1, d, l + 1, a + 1, d, d + 1, l + 1, a))

    prev = (RE, IM)
    for r in range(1, 16):
        cur = (20 + 2 * (r & 1), 21 + 2 * (r & 1))
        e.I('v_fma_f32 v%d, v%d, v%d, v%d' % (cur[0], LR, prev[0], RE + r))
        e.I('v_fma_f32 v%d, v%d, v%d, v%d' % (cur[1], LR, prev[1], IM + r))
        e.I('v_fma_f32 v%d, -v%d, v%d, v%d' % (cur[0], LI, prev[1], cur[0]))
        e.I('v_fmac_f32 v%d, v%d, v%d' % (cur[1], LI, prev[0]))
        prev = cur
    e.I('ds_write_b64 v%d, %s' % (XW, vr(prev[0], 2)), tag='ex')
    e.wait(lg='all')

    def c_reg(u, s, dt):
        return 128 + 32 * u + 8 * s + 4 * dt

    CBUF = cfg.cbuf
    CPREV = {i: max(k for k in range(i) if CBUF[k] == CBUF[i]) for i in range(8) if CBUF[i] in CBUF[:i]}
    cdone = set()
    hdone = []

    def c_read(i):
        if i in cdone:
            return
        cdone.add(i)
        assert i < 4 or hdone
        e.wait(vm=('c', i))
        for s in range(4):
            a_, off = (CA4 + s, 0) if CBUF[i] == 4 else (CA + s, CBUF[i] * SLOT)
            e.I('ds_read_b128 %s, v%d offset:%d' % (vr(c_reg(i >> 1, s, i & 1), 4), a_, off), tag=('cr', i))

    def c_loads(i):
        u, dt = i >> 1, i & 1
        its = []
        for q in range(4):
            def f(q=q):
                if q == 0:
                    if i in CPREV:
                        c_read(CPREV[i])
                        e.wait(lg=('cr', CPREV[i]))
                    elif CBUF[i] != 4 and 6 + CBUF[i] > cfg.JL:
                        cnt_spin(e, 'L_cb%d' % i, FLA, 37, C_CONS + 28)
                    e.I('s_xor_b32 s%d, s%d, %d' % (sTD, 88 + (u >> 1), dt * 32768))
                set_m0(e, sMW, CBUF[i] * SLOT)
                e.I('buffer_load_dwordx4 v%d, %s, s%d offen offset:%d lds' % (CV + q, srd(SC2 if u & 1 else SC1), sTD, 1024 * q), tag=('c', i))
                if q == 3 and i >= 2:
                    c_read(i - 2)
            its.append(f)
        return its

    def d_loads(n):
        sl, pos = RING[n]
        its = []
        for q in range(2):
            def f(q=q):
                set_m0(e, sMW, sl * SLOT + pos * 2048)
                if q == 0 and n:
                    step_next(e, n, sDC, sDB, sDE, 14)
                e.I('buffer_load_dwordx4 v%d, %s, s%d offen offset:%d lds' % (WDV + q, srd(SWD), sDC, 1024 * q), tag='wd')
            its.append(f)
        return its

    wl = {j: dma_W(e, WV, SWA, j) for j in range(2, 8)}
    planned = set()

    def e_loads():
        its = []
        for q in range(2):
            def f(q=q):
                set_m0(e, T5, L_EG)
                e.I('buffer_load_dwordx4 v%d, %s, s%d offen offset:%d sc1 lds' % (EV0 + q, srd(SWS), sEL, 1024 * q), tag='eg')
            its.append(f)
        return its

    def expand(toks, k):
        r = []
        for t in toks.split(','):
            if not t:
                continue
            n = int(t[1])
            planned.add(t)
            if t[0] == 'W':
                assert n < 4 or k >= n - 2 or (n == 4 and cfg.w0pos is not None)
                r += wl[n][:3] if t[2:] == 'a' else wl[n][3:] if t[2:] == 'b' else wl[n]
            elif t[0] == 'C':
                assert CBUF[n] == 4 or k >= min(6 + CBUF[n], cfg.JL)
                assert k >= 2 or cfg.w0pos is None
                r += c_loads(n)
            elif t[0] == 'D':
                r += d_loads(n)
            elif t[0] == 'G':
                r += small1
            elif t[0] == 'E':
                r += e_loads()
            elif t[0] == 'T':
                r.append(lambda n=n: tch.at(n))
        return r

    def bar(k, extra=()):
        kk = 7 if k == cfg.JL else k
        assert kk < 2 or 'W%d' % kk in planned or 'W%db' % kk in planned or (kk == 2 and cfg.w0pos is not None)
        e.wait(vm=[('st', 8 + kk)] + list(extra))
        st(e, '_a%d' % k)
        e.I('s_barrier')
        st(e, '_d%d' % k)

    sc = []
    for r in range(16):
        sc += items('v_mul_f32 v4, v%d, v%d\nv_mul_f32 v5, v%d, v%d\nv_fma_f32 v%d, v%d, v%d, -v4\nv_fma_f32 v%d, v%d, v%d, v5' %
                    (KAP + 1, IM + r, KAP + 1, RE + r, RE + r, KAP, RE + r, IM + r, KAP, IM + r))
    early = sc
    run(early[:cfg.early])
    late = early[cfg.early:]
    bar(0)
    work = []
    for s in range(8):
        e.I('ds_read_b64 %s, v%d offset:%d' % (vr(4 + 2 * s, 2), XR, 256 * s), tag=('e', s))
    pf = []
    for s in range(1, 8):
        pf.append(lambda s=s: e.wait(lg=('e', s)))
        pf += cfma(4 + 2 * s, L16, 2 + 2 * s, 4 + 2 * s)
    segs = [sg.split('|') for sg in cfg.prog.split(';')]
    q0 = expand(segs[0][0], 0)
    run(weave(q0[:cfg.pren], pf))
    e.I('v_mov_b32 v20, s%d\nv_mov_b32 v21, s%d' % (sNONCE, sNONCE))
    e.I('s_mov_b32 exec_hi, 0')
    e.I('buffer_store_dwordx4 v[18:21], v%d, %s, s%d offen sc1' % (P16, srd(SWS), sES), tag='es')
    e.I('s_mov_b32 exec_hi, -1')
    st(e, 'epub')
    run(q0[cfg.pren:])
    gate.append(g_store)
    sel = items('v_mov_b32 v%d, 0\nv_mov_b32 v%d, 0' % (PP, PP + 1))
    for s in range(1, 8):
        sel.append(lambda s=s: e.I('v_cmp_eq_u32 vcc, %d, v%d\nv_cndmask_b32 v%d, v%d, v%d, vcc\nv_cndmask_b32 v%d, v%d, v%d, vcc' %
                                   (s, SIDX, PP, PP, 2 + 2 * s, PP + 1, PP + 1, 3 + 2 * s)))
    EG = 224

    def e_check():
        e.I('v_add3_u32 v4, v%d, v%d, v%d\nv_add3_u32 v5, v%d, v%d, v%d' % tuple(EG + 4 * k + 2 for k in range(6)))
        e.I('v_add3_u32 v4, v4, v%d, v%d\nv_add_u32 v4, v4, v5' % (EG + 26, EG + 30))
        e.I('v_cmp_ne_u32 vcc, v4, v%d' % EEXP)

    def e_verify():
        e.wait(lg='eg')
        e_check()
        e.I('s_cbranch_vccnz L_pollE')
        e.label('L_pollE_out')
        st(e, 'egot')
        with e.cold_block():
            e.label('L_pollE')
            e.I('s_mov_b32 s%d, 0' % sCNT)
            e.label('L_pollE_l')
            for k in range(8):
                e.I('v_subrev_u32 v4, %d, v%d\nv_cmp_le_i32 vcc, 2, v4\nv_lshl_add_u32 v4, v4, 9, v%d\nv_cndmask_b32 v4, v%d, v4, vcc' % (k - 1, ECNT, P16, EOOB))
                e.I('buffer_load_dwordx4 %s, v4, %s, s%d offen sc1' % (vr(EG + 4 * k, 4), srd(SWS), sEL))
            e.I('s_add_u32 s%d, s%d, 1' % (sCNT, sCNT))
            e.I('s_cmp_gt_u32 s%d, %d' % (sCNT, SPIN_MAX))
            e.wait(vm='all')
            e.I('s_cbranch_scc1 L_pollE_out')
            e_check()
            e.I('s_cbranch_vccnz L_pollE_l')
            e.I('s_branch L_pollE_out')

    def second_pass():
        p2 = []
        p2.append(lambda: [e.I('ds_read_b128 %s, v%d offset:%d' % (vr(EG + 4 * k, 4), ERD, 512 * k), tag='eg') for k in range(8)])
        p2.append(e_verify)
        for k in range(6, -1, -1):
            p2 += cfma(EG + 4 * k, L128, EG + 4 * k + 4, EG + 4 * k)
        p2 += items('v_mov_b32 v4, v%d\nv_mov_b32 v5, v%d\nv_permlane32_swap_b32 v4, v%d\nv_permlane32_swap_b32 v5, v%d' % (EG, EG + 1, EG, EG + 1))
        p2 += cfma(4, L256, EG, 4)
        p2 += cfma(PP, L16S, 4, PP)
        p2 += items('v_mul_f32 v6, v%d, v%d\nv_mul_f32 v7, v%d, v%d' % (KAP, PP, KAP, PP + 1))
        p2 += items('v_fma_f32 v6, -v%d, v%d, v6\nv_fmac_f32 v7, v%d, v%d' % (KAP + 1, PP + 1, KAP + 1, PP))
        prev = (6, 7)
        for r in range(16):
            p2 += items('v_fmac_f32 v%d, v%d, v%d\nv_fmac_f32 v%d, v%d, v%d\nv_fma_f32 v%d, -v%d, v%d, v%d\nv_fmac_f32 v%d, v%d, v%d' %
                        (RE + r, LR, prev[0], IM + r, LR, prev[1], RE + r, LI, prev[1], RE + r, IM + r, LI, prev[0]))
            prev = (RE + r, IM + r)
        return p2

    def store_h(loads):
        for part in range(2):
            for k in range(8):
                sg_ = '-' if part else ''
                e.I('v_cvt_pk_bf16_f32 v%d, %sv%d, %sv%d' % (8 + 8 * part + k, sg_, RE + 16 * part + 2 * k, sg_, RE + 16 * part + 2 * k + 1))
            for m in range(2):
                mfma(e, RE + 16 * part, 8 + 8 * part + 4 * m, SEL + 4 * m, m == 0)
        hdone.append(1)
        run(loads)
        e.I('s_add_u32 s%d, s%d, 4096' % (T0, sHD))
        for part in range(2):
            for m in range(2):
                o = 8 + 8 * part + 4 * m
                for k in range(4):
                    e.I('v_cvt_pk_bf16_f32 v%d, v%d, v%d' % (o + k, RE + 16 * part + 8 * m + 2 * k, RE + 16 * part + 8 * m + 2 * k + 1))
                hq.append(lambda o=o, part=part, m=m: e.I('buffer_store_dwordx4 %s, v1, %s, s%d offen offset:%d sc1' %
                                                         (vr(o, 4), srd(SWS), T0 if part else sHD, 1024 * m), tag='hs'))
                if len(hq) <= cfg.hnow:
                    hq[-1]()

    hq = []
    p2 = second_pass()
    for k, (toks, work) in enumerate(segs):
        if k == 0:
            continue
        if k <= cfg.JL:
            bar(k, ['eg'] if work[:1] == 'P' else [])
        q = expand(toks, k)
        if work == 'sel':
            run(weave(q, sel + ([] if 'late' in cfg.prog else late)))
        elif work[:1] == 'g':
            hg = len(gate) // 2
            run(weave(q, gate if work == 'g' else gate[:hg] if work == 'g0' else gate[hg:]))
        elif work == 'late':
            run(weave(q, late))
        elif work[:1] == 'P':
            assert k <= cfg.JL or work != 'P0'
            part = p2 if work == 'P' else p2[:cfg.p2cut] if work == 'P0' else p2[cfg.p2cut:]
            run(part[:1] + (weave(q, part[1:]) if q else part[1:]))
        elif work == 'H':
            st(e, 'p2done')
            store_h(q)
        elif work == 'F':
            run(hq[cfg.hnow:])
            st(e, 'hst')
            run(q)
            e.wait(vm='hs')
            flag_store(e, 2, sHF)
            st(e, 'hflag')
        else:
            run(q)
    assert len(segs) > cfg.JL
    for i in range(8):
        if 'C%d' % i not in planned:
            run(c_loads(i))
    for i in range(8):
        c_read(i)
    e.wait(vm='wd')
    cnt_add(e, FLA, ONE, C_DONEA)
    HV = 6
    e.I('s_lshl_b32 s%d, s%d, 17\ns_lshl_b32 s%d, s%d, 14\ns_add_u32 s%d, s%d, s%d\ns_add_u32 s%d, s%d, 0x%x' %
        (T0, sRT, T1, sW, T0, T0, T1, T0, T0, H_OFF))
    e.I('v_add_u32 v%d, s%d, v1\nv_add_u32 v%d, 0x10000, v%d' % (HV, T0, HV + 1, HV))
    for u in range(4):
        e.I('s_xor_b32 s%d, s%d, %d\ns_lshl_b32 s%d, s%d, 12' % (93 + u, sROT, u, 93 + u, 93 + u))
    PW = 8
    part_write_addr(e, PW, 12, 13, 16384, 4096, SPART)
    mk_srd(e, SOUT, P_OUT, 2048 * 2048)
    e.wait(lg='all')
    st(e, 'cgot')
    e.I('s_lshl_b32 s%d, s%d, 2\ns_add_u32 s%d, s%d, s%d\ns_mul_i32 s%d, s%d, %d\ns_add_u32 s%d, s%d, 0x%x' %
        (T0, sRT, T0, T0, sW, T0, T0, 8 * FS, T0, T0, HF_OFF))
    e.I('v_mul_u32_u24 v12, %d, v0\nv_mov_b32 v5, v2' % FS)
    if cfg.posX < 0:
        e.I('s_barrier')
    poll(e, 'L_pollH', 13, 12, T0, '0xff')
    st(e, 'hrdy')

    def h_reg(n):
        return 16 + 8 * (n % 6)

    def h_load(n):
        for tt in range(2):
            e.I('buffer_load_dwordx4 %s, v%d, %s, s%d offen offset:%d sc1' % (vr(h_reg(n) + 4 * tt, 4), HV + tt, srd(SWS),
                                                                                93 + (n >> 2), 1024 * (n & 3)), tag=('h', n, tt))
    for n in range(6):
        h_load(n)
    for n in range(16):
        if n == cfg.posX:
            e.I('s_barrier')
        for tt in range(2):
            e.wait(vm=('h', n, tt))
            for dt in range(2):
                mfma(e, 64 + 16 * (2 * dt + tt), c_reg(n >> 2, n & 3, dt), h_reg(n) + 4 * tt, n == 0)
        if n + 6 < 16:
            h_load(n + 6)
    st(e, 's2end')
    XO, RA, GV, RF = 2, 3, 4, 14
    ROWS = (0, 4, 32, 36)
    e.I('s_lshl_b32 s%d, s%d, 3\ns_add_u32 s%d, s%d, s%d\ns_lshl_b32 s%d, s%d, 3' % (T0, sRT, T0, T0, sW, T0, T0))
    e.I('v_lshrrev_b32 v12, 4, v0\nv_add_u32 v13, s%d, v12' % T0)
    e.I('v_and_b32 v14, 15, v0\ns_lshl_b32 s%d, s%d, 7' % (T1, sCT))
    e.I('v_lshl_add_u32 v15, v14, 3, s%d' % T1)
    e.I('v_lshl_add_u32 v%d, v13, 10, v15' % XO)
    e.I('v_lshlrev_b32 v%d, 2, v13\nv_add_u32 v%d, 0x%x, v%d' % (GV, GV, G_OFF, GV))
    e.I('global_load_dwordx2 v[24:25], v15, s[%d:%d]' % (P_DSK, P_DSK + 1), tag='fx')
    for n in range(4):
        e.I('s_mov_b32 s%d, %d' % (T2, 1024 * ROWS[n]))
        e.I('buffer_load_dwordx2 %s, v%d, %s, s%d offen' % (vr(16 + 2 * n, 2), XO, srd(SX), T2), tag='fx')
    e.I('s_lshr_b32 s%d, s%d, 1\ns_lshl_b32 s%d, s%d, 2\ns_and_b32 s%d, s%d, 1\ns_lshl_b32 s%d, s%d, 11' % (T3, sW, T1, T3, T2, sW, T2, T2))
    e.I('v_or_b32 v13, s%d, v12\nv_xor_b32 v13, v13, v14\nv_lshl_add_u32 v13, v13, 4, s%d\nv_lshl_add_u32 v13, v12, 8, v13' % (T1, T2))
    e.I('s_lshl_b32 s%d, s%d, 14\ns_add_u32 s%d, s%d, %d\ns_mul_i32 s%d, s%d, %d' % (T1, T3, T1, T1, SPART, T2, T3, SLOT))
    e.I('v_add_u32 v%d, s%d, v13\nv_add_u32 v%d, s%d, v13\nv_add_u32 v%d, %d, v%d' % (RA, T1, RF, T2, RF + 1, 2 * SLOT, RF))
    e.I('s_lshl_b32 s%d, s%d, 7' % (T0, sDTX))
    for a in range(4):
        e.I('v_xor_b32 v%d, s%d, v%d\nv_xor_b32 v%d, 0x80, v%d' % (PW + a, T0, PW + a, 32 + a, PW + a))
    e.I('v_mov_b32 v36, %d\nv_mov_b32 v37, 1' % L_P2)
    if cfg.posX == 16:
        e.I('s_barrier')
    st(e, '_X')
    run(part_write(e, PW, 16384, 0, 32) + part_write(e, PW, 16384, 1, 32))
    cnt_add(e, 36, 37, 0)
    XD = 40
    e.wait(vm='fx')
    e.I('v_lshlrev_b32 v8, 16, v24\nv_and_b32 v9, 0xffff0000, v24\nv_lshlrev_b32 v10, 16, v25\nv_and_b32 v11, 0xffff0000, v25')
    for n in range(4):
        for k in range(2):
            x = 16 + 2 * n + k
            e.I('v_lshlrev_b32 v12, 16, v%d\nv_and_b32 v13, 0xffff0000, v%d' % (x, x))
            e.I('v_mul_f32 v12, v12, v%d\nv_mul_f32 v13, v13, v%d' % (8 + 2 * k, 9 + 2 * k))
            e.I('v_cvt_pk_bf16_f32 v13, v12, v13')
            e.I('v_lshlrev_b32 v%d, 16, v13\nv_and_b32 v%d, 0xffff0000, v13' % (XD + 4 * n + 2 * k, XD + 4 * n + 2 * k + 1))
    cnt_spin(e, 'L_spinM', 36, 38, 0)
    e.wait(lg='all')
    for n in range(4):
        e.I('buffer_load_dword v%d, v%d, %s, 0 offen offset:%d sc1' % (26 + n, GV, srd(SWS), 4 * ROWS[n]), tag='fg')
    e.I('s_lshl_b32 s%d, s%d, 5\ns_add_u32 s%d, s%d, s%d\ns_lshl_b32 s%d, s%d, 8\ns_add_u32 s%d, s%d, s%d' %
        (T0, sCT, T0, T0, sRT, T1, sW, T0, T0, T1))
    e.I('s_cmp_eq_u32 s%d, 31\ns_cselect_b32 s%d, 0x%x, s%d' % (T0, T0, EPOCH_OFF, SWS + 2))
    flag_store(e, 5, T0)

    for n in range(4):
        for w in range(4):
            e.I('ds_read_b128 %s, v%d offset:%d' % (vr(64 + 16 * n + 4 * w, 4), RA, w * 4096 + (n & 1) * 1024 + (n >> 1) * 32768), tag=('r', n))
    for n in range(4):
        e.wait(lg=('r', n))
        b = 64 + 16 * n
        for k in range(4):
            e.I('v_add_f32 v%d, v%d, v%d\nv_add_f32 v%d, v%d, v%d' % (b + k, b + k, b + 4 + k, b + 8 + k, b + 8 + k, b + 12 + k))
        for k in range(4):
            e.I('v_add_f32 v%d, v%d, v%d' % (b + k, b + k, b + 8 + k))
        for k in range(4):
            e.I('v_add_f32 v%d, v%d, v%d' % (XD + 4 * n + k, b + k, XD + 4 * n + k))
    BS = XD
    e.wait(vm='fg')
    for n in range(4):
        for k in range(4):
            e.I('v_mul_f32 v%d, v%d, v%d' % (BS + 4 * n + k, 26 + n, BS + 4 * n + k))
        e.I('v_sub_f32 v%d, 1.0, v%d' % (26 + n, 26 + n))
        e.I('v_cvt_pk_bf16_f32 v%d, v%d, v%d\nv_lshlrev_b32 v%d, 16, v%d' % (26 + n, 26 + n, 26 + n, 26 + n, 26 + n))
    e.I('v_lshlrev_b32 v%d, 1, v%d' % (XO, XO))
    for n in range(4):
        e.I('s_mov_b32 s%d, %d' % (T2 + n, 2048 * ROWS[n]))
    st(e, 'pre')
    for half in range(2):
        e.I('s_barrier')
        st(e, 'Z' if half else '_Z0')
        for n in (2 * half, 2 * half + 1):
            for w in range(4):
                e.I('ds_read_b128 %s, v%d offset:%d' % (vr(64 + 16 * n + 4 * w, 4), RF + half, w * 6144 + (n & 1) * 1024), tag=('r', n))
        for n in (2 * half, 2 * half + 1):
            e.wait(lg=('r', n))
            b = 64 + 16 * n
            for k in (0, 2):
                e.I('v_pk_add_f32 %s, %s, %s' % (vr(b + k, 2), vr(b + k, 2), vr(b + 4 + k, 2)))
                e.I('v_pk_add_f32 %s, %s, %s' % (vr(b + 8 + k, 2), vr(b + 8 + k, 2), vr(b + 12 + k, 2)))
            for k in (0, 2):
                e.I('v_pk_add_f32 %s, %s, %s' % (vr(b + k, 2), vr(b + k, 2), vr(b + 8 + k, 2)))
            if cfg.mimic2:
                for rnd in range(2):
                    e.I('v_cvt_pk_bf16_f32 v%d, v%d, v%d\nv_cvt_pk_bf16_f32 v%d, v%d, v%d' % (b + 1, b, b + 1, b + 3, b + 2, b + 3))
                    for k in (0, 2):
                        e.I('v_lshlrev_b32 v%d, 16, v%d\nv_and_b32 v%d, 0xffff0000, v%d' % (b + k, b + k + 1, b + k + 1, b + k + 1))
                    if rnd == 0:
                        for k in range(4):
                            e.I('v_mul_f32 v%d, v%d, v%d' % (b + k, 26 + n, b + k))
                for k in (0, 2):
                    e.I('v_pk_add_f32 %s, %s, %s' % (vr(b + k, 2), vr(b + k, 2), vr(BS + 4 * n + k, 2)))
            else:
                for k in range(4):
                    e.I('v_fma_f32 v%d, v%d, v%d, v%d' % (b + k, 26 + n, b + k, BS + 4 * n + k))
            e.I('buffer_store_dwordx4 %s, v%d, %s, s%d offen %s' % (vr(b, 4), XO, srd(SOUT), T2 + n, cfg.outflags), tag='out')
    st(e, 'end')
    st.flush(e)


HEADER = open(os.path.join(os.path.dirname(os.path.abspath(__file__)), '..', 'cdna_kernels', BASE + '.s.ref')).read()


def generate(cfg):
    SLEEP[:] = cfg.sleep
    W_SLOT[0] = 0 if cfg.w0pos is None else 4
    S_SHIFT[0] = -1 if cfg.lag else 0 if cfg.w0pos is None else 1
    assert not (cfg.lag and cfg.w0pos is not None)
    hdr = []
    for line in HEADER.split('\n'):
        if not line.startswith(';'):
            break
        if '@launch' in line:
            line = '; @launch grid=(256,1,1) block=(512,1,1) lds=%d' % LDS_BYTES
        hdr.append(line)
    stB = Stamps(cfg, [38, 6, 8, 14, 16, 18, 20, 22, 30, 32, 34, 4, 10, 12, 24, 26], 'B')
    stA = Stamps(cfg, [38, 10, 12, 22, 34, 24, 26, 6, 8, 18, 28, 14, 16, 30, 36, 4], 'A')
    e = Em()
    gen_entry(e, cfg, stB)
    stA.names = list(stB.names)
    eA = Em()
    eA.hist = list(e.hist)
    gen_B(e, cfg, stB)
    gen_A(eA, cfg, stA)
    txt = '\n'.join(hdr) + '\n'
    txt += '.amdgcn_target "amdgcn-amd-amdhsa--gfx950"\n.text\n.globl %s\n.p2align 8\n.type %s,@function\n%s:\n' % (NAME, NAME, NAME)
    txt += e.text() + '\n' + '\n'.join(e.cold) + '\n.p2align 6\nL_A:\n' + eA.text() + '\n    s_endpgm\n' + '\n'.join(eA.cold) + '\nL_end:\n    s_endpgm\n'
    txt += '''.section .rodata,"a"
.p2align 6
.amdhsa_kernel %s
  .amdhsa_next_free_vgpr 256
  .amdhsa_next_free_sgpr 102
  .amdhsa_accum_offset 256
  .amdhsa_group_segment_fixed_size 0
  .amdhsa_kernarg_size 136
  .amdhsa_user_sgpr_count 2
  .amdhsa_user_sgpr_kernarg_segment_ptr 1
  .amdhsa_system_sgpr_workgroup_id_x 1
  .amdhsa_float_denorm_mode_32 3
.end_amdhsa_kernel
''' % NAME
    info = dict(A=eA.count, B=e.count, nopsA=eA.nops, nopsB=e.nops, stampsA=stA.names, stampsB=stB.names)
    return txt, info


def cfg_from(args):
    cfg = Cfg()
    for a in args:
        k, v = a.split('=')
        setattr(cfg, k, eval(v))
    return cfg


if __name__ == '__main__':
    out = sys.argv[1]
    cfg = cfg_from(sys.argv[2:])
    txt, info = generate(cfg)
    open(out, 'w').write(txt)
    print(info)
```

```python
import re

_OPRE = re.compile(r'^-?(?:abs\()?([vs])(?:\[(\d+):(\d+)\]|(\d+))\)?$')

TRANS = ('v_exp_f32', 'v_log_f32', 'v_rcp_f32', 'v_rsq_f32', 'v_sqrt_f32', 'v_sin_f32', 'v_cos_f32')
NODEF_S = ('s_cmp', 's_waitcnt', 's_barrier', 's_nop', 's_cbranch', 's_branch', 's_endpgm', 's_setprio', 's_sleep')


def regs_of(tok):
    tok = tok.strip()
    if tok in ('vcc', 'vcc_lo', 'vcc_hi'):
        return {('s', 'vcc')}
    if tok in ('exec', 'exec_lo', 'exec_hi'):
        return {('s', 'exec')}
    if tok == 'm0':
        return {('s', 'm0')}
    m = _OPRE.match(tok)
    if not m:
        return set()
    k = m.group(1)
    if m.group(4) is not None:
        return {(k, int(m.group(4)))}
    return {(k, i) for i in range(int(m.group(2)), int(m.group(3)) + 1)}


class Ins:
    def __init__(self, text):
        self.text = text
        body = text.split(';')[0].strip()
        parts = body.split(None, 1)
        self.mn = parts[0]
        rest = parts[1] if len(parts) > 1 else ''
        toks = [t.strip() for t in rest.split(',')] if rest else []
        self.mods = ''
        if toks:
            for i, t in enumerate(toks):
                if ' ' in t:
                    a, b = t.split(None, 1)
                    self.mods = b + ',' + ','.join(toks[i + 1:])
                    toks = toks[:i] + [a]
                    break
        self.ops = [regs_of(t) for t in toks]
        mn = self.mn
        self.slots = 1
        self.defs = set()
        self.uses = set()
        allr = lambda L: set().union(*L) if L else set()
        self.kind = None
        if mn.startswith('v_mfma'):
            self.kind = 'mfma'
            self.defs = self.ops[0]
            self.ab = self.ops[1] | self.ops[2]
            self.c = self.ops[3]
            self.uses = self.ab | self.c
        elif mn.startswith('v_'):
            self.kind = 'valu'
            base = mn.replace('_e32', '').replace('_e64', '').replace('_dpp', '')
            self.trans = base in TRANS
            self.dpp = mn.endswith('_dpp')
            self.perm = base.startswith('v_permlane')
            self.lane = base in ('v_readfirstlane_b32', 'v_readlane_b32')
            if self.perm:
                self.defs = self.ops[0] | self.ops[1]
                self.uses = set(self.defs)
            else:
                self.defs = self.ops[0]
                self.uses = allr(self.ops[1:])
                if base.startswith('v_fmac') or self.dpp or base.startswith('v_dot2c'):
                    self.uses |= self.ops[0]
        elif mn.startswith('buffer_') or mn.startswith('global_'):
            self.kind = 'vmem'
            self.lds = bool(re.search(r'\blds\b', self.mods))
            self.store = '_store' in mn or '_atomic' in mn
            self.wide = self.store and ('x4' in mn or 'x3' in mn)
            if self.store:
                self.uses = allr(self.ops)
                self.data = self.ops[0] if mn.startswith('buffer_') else self.ops[1]
            elif self.lds:
                self.uses = allr(self.ops) | {('s', 'm0')}
            else:
                self.defs = self.ops[0]
                self.uses = allr(self.ops[1:])
        elif mn.startswith('ds_'):
            self.kind = 'ds'
            if mn.startswith('ds_read'):
                self.defs = self.ops[0]
                self.uses = allr(self.ops[1:])
            else:
                self.uses = allr(self.ops)
        elif mn.startswith('s_'):
            self.kind = 'salu'
            if mn == 's_nop':
                self.slots = int(rest) + 1
            elif any(mn.startswith(p) for p in NODEF_S):
                self.uses = allr(self.ops)
                if 'vcc' in mn:
                    self.uses = self.uses | {('s', 'vcc')}
            else:
                self.defs = self.ops[0] if self.ops else set()
                self.uses = allr(self.ops[1:])
        else:
            raise ValueError('unknown instruction: ' + text)


def need(p, c):
    n = 0
    vd = {r for r in p.defs if r[0] == 'v'}
    sd = {r for r in p.defs if r[0] == 's'}
    if p.kind == 'valu':
        if c.kind == 'mfma' and vd & c.uses:
            n = max(n, 2)
        if c.kind == 'valu':
            if p.trans and (vd & c.uses):
                n = max(n, 1)
            if c.perm and vd & c.uses:
                n = max(n, 2)
            if c.dpp and vd & c.uses:
                n = max(n, 2)
            if c.lane and vd & c.uses:
                n = max(n, 1)
            if sd & c.uses:
                n = max(n, 4 if c.lane else 2)
        if c.kind == 'vmem' and sd & c.uses:
            n = max(n, 5)
        if c.kind == 'salu' and sd & c.uses:
            n = max(n, 2)
    elif p.kind == 'mfma':
        lat = 8 if '16x16x32' in p.mn else 12
        if c.kind == 'mfma':
            if p.defs & c.ab:
                n = max(n, lat)
            if p.defs & c.c and (p.defs != c.c or p.mn != c.mn):
                n = max(n, lat - 2)
            if p.defs & c.defs and p.defs != c.c:
                n = max(n, lat)
        elif c.kind in ('valu', 'vmem', 'ds'):
            if p.defs & (c.uses | c.defs):
                n = max(n, lat)
            if c.kind == 'valu' and p.c & c.defs:
                n = max(n, lat - 5)
    elif p.kind == 'salu':
        if ('s', 'm0') in p.defs and ((c.kind == 'vmem' and c.lds) or 'addtid' in c.mn):
            n = max(n, 1)
    elif p.kind == 'vmem':
        if p.wide and p.data & c.defs:
            n = max(n, 2)
    return n


class Em:
    def __init__(self):
        self.lines = []
        self.hist = []
        self.vm = []
        self.lg = []
        self.count = {}
        self.nops = 0
        self.cold = []

    def cold_block(self):
        em = self

        class Ctx:
            def __enter__(s):
                s.sv = (em.lines, list(em.hist), list(em.vm), list(em.lg))
                em.lines = em.cold

            def __exit__(s, *a):
                em.lines, em.hist, em.vm, em.lg = s.sv
        return Ctx()

    def raw(self, text):
        self.lines.append(text)

    def label(self, name):
        self.lines.append(name + ':')

    def I(self, text, tag=None):
        for t in text.split('\n'):
            t = t.strip()
            if t:
                self._one(t, tag)

    def _one(self, text, tag):
        ins = Ins(text)
        dist = 0
        pad = 0
        for p in reversed(self.hist):
            if dist >= 12:
                break
            pad = max(pad, need(p, ins) - dist)
            dist += p.slots
        if pad > 0:
            self.nops += pad
            nop = Ins('s_nop %d' % (pad - 1))
            self.lines.append('    ' + nop.text)
            self.hist.append(nop)
        self.lines.append('    ' + text)
        self.hist.append(ins)
        self.hist = self.hist[-16:]
        self.count[ins.kind] = self.count.get(ins.kind, 0) + 1
        if ins.kind == 'vmem':
            self.vm.append(tag)
        elif ins.kind == 'ds':
            self.lg.append(tag)

    def settle(self):
        dist = 0
        pad = 0
        for p in reversed(self.hist):
            w = 12 if p.kind == 'mfma' else 5 if p.kind == 'valu' else 2 if p.kind == 'vmem' else 1 if p.kind == 'salu' and p.defs else 0
            pad = max(pad, w - dist)
            dist += p.slots
        if pad > 0:
            self.I('s_nop %d' % (pad - 1))

    @staticmethod
    def _n_after(q, tag):
        tags = tag if isinstance(tag, (list, set)) else [tag]
        idx = -1
        for i, t in enumerate(q):
            if t in tags:
                idx = i
        return idx

    def wait(self, vm=None, lg=None):
        parts = []
        if vm is not None:
            idx = len(self.vm) - 1 if vm == 'all' else self._n_after(self.vm, vm)
            if idx >= 0:
                n = len(self.vm) - 1 - idx
                if n > 63:
                    n = 63
                parts.append('vmcnt(%d)' % n)
                self.vm = self.vm[len(self.vm) - n:] if n else []
        if lg is not None:
            idx = len(self.lg) - 1 if lg == 'all' else self._n_after(self.lg, lg)
            if idx >= 0:
                n = len(self.lg) - 1 - idx
                if n > 15:
                    n = 15
                parts.append('lgkmcnt(%d)' % n)
                self.lg = self.lg[len(self.lg) - n:] if n else []
        if parts:
            self.I('s_waitcnt ' + ' '.join(parts))

    def wait_smem(self):
        self.I('s_waitcnt lgkmcnt(0)')
        self.lg = []

    def text(self):
        return '\n'.join(self.lines)


def weave(main, fill):
    out = []
    n = len(main)
    k = 0
    for i, m in enumerate(main):
        out.append(m)
        tgt = (len(fill) * (i + 1) + n - 1) // n
        while k < tgt:
            out.append(fill[k])
            k += 1
    return out
```

```python
import sys, os
sys.path.insert(0, os.path.dirname(os.path.abspath(__file__)))
from em import Em, weave

BASE = 'gated_mix__ssm_conv_s5__swiglu_ffn__prompt'
NAME = BASE + '_kernel'

ACT_OFF = 0
H_OFF = 0x600000
E_OFF = 0xB00000
G_OFF = 0xB20000
HF_OFF = 0xB24000
AF_OFF = 0xB30000
EPOCH_OFF = 0xB48000
STAMP_OFF = 0xB50000
WS_SIZE = 0xB80000
OOB = 0x2000000
FS = 32
PHI = 0x9E3779B8

SLOT = 24576
WIN = 49152
SCR = 147456
SPART = 98304
L_E, L_FL, L_EG = SCR, SCR + 4096, SCR + 8192
L_P2 = 3 * SLOT + 4096
LDS_BYTES = 163840

P_X, P_LRE, P_LIM, P_BRE, P_BIM, P_CRE, P_CIM, P_LDT = 4, 6, 8, 10, 12, 14, 16, 18
P_DSK, P_BX, P_WG, P_WU, P_WD, P_GW, P_OUT, P_DBG, P_WS = 20, 22, 24, 26, 28, 30, 32, 34, 36
SX, SWS = 40, 44
SBM, SW, SWD = 48, 52, 56
SC1, SC2, SOUT, SCODE = 48, 52, 56, 60
SWA = 60
sWAVE, sW, sRB, sCB, sK0, sRT, sCT, sNONCE, sSG0 = 64, 65, 66, 67, 68, 69, 70, 71, 72
T0, T1, T2, T3, T4, T5, T6 = 73, 74, 75, 76, 77, 78, 79
sNL2E = 80
sMA, sMB = 82, 84
sTBL = 86
sCNT = 97
sTS, sTW, sTD = 98, 99, 100
sMX, sMBm = 60, 61
sMW = 101
SPIN_MAX = 200000

SLEEP = [0, 0]
LOG2E = 0x3fb8aa3b
NLOG2E = 0xbfb8aa3b


class Cfg:
    mimic = False
    mimic2 = False
    stamps = False
    rot1 = (2, 0, 2, 1)
    rot2 = 7
    rotF = 0
    rotS = None
    map2 = 84
    prewarm = True
    NT = 2
    early = 200
    w0pos = None
    s1a = 2
    smallpos = 2
    tlb = False
    lag = 0
    lagr = 4
    JL = 7
    prog = 'W2,G0|;W3,C0|sel;W4|g0;E0,W5,D0,D1,D2,D3|g1;W6|P0;W7|P1;C1|H;C2|F'
    p2cut = 50
    cbuf = (4, 0, 1, 4, 0, 1, 4, 0)
    tplan = ()
    zfill = True
    prioB = 0
    LA = 4
    posX = 8
    pren = 4
    hpad = (0, 0)
    hlook = 9
    hearly = 0
    hnow = 4
    sleep = (1, 1)
    skip = ''
    flagpos = (0, 0, 3)
    alook = 18
    abet = 3
    posXB = -17
    fine = True
    prioF2 = 1
    NVA = 11
    NV0 = (12, 0)
    xdpos = 32
    NV = 12
    TL = 2
    pull0 = 3
    outflags = 'sc1'
    selA = None
    selB = None
    prioA = 0
    amp = None


def srd(r):
    return 's[%d:%d]' % (r, r + 3)


def vr(a, n):
    return 'v[%d:%d]' % (a, a + n - 1) if n > 1 else 'v%d' % a


def mk_srd(e, r, p, nbytes):
    e.I('s_mov_b32 s%d, s%d\ns_mov_b32 s%d, s%d\ns_mov_b32 s%d, 0x%x\ns_mov_b32 s%d, 0x20000' %
        (r, p, r + 1, p + 1, r + 2, nbytes, r + 3))


def mk_srd_sel(e, r, p1, p0, nbytes):
    e.I('s_cselect_b32 s%d, s%d, s%d\ns_cselect_b32 s%d, s%d, s%d\ns_mov_b32 s%d, 0x%x\ns_mov_b32 s%d, 0x20000' %
        (r, p1, p0, r + 1, p1 + 1, p0 + 1, r + 2, nbytes, r + 3))


def mfma(e, d, a, b, first):
    e.I('v_mfma_f32_32x32x16_bf16 %s, %s, %s, %s' % (vr(d, 16), vr(a, 4), vr(b, 4), '0' if first else vr(d, 16)))


def mfma16(e, d, a, b, first):
    e.I('v_mfma_f32_16x16x32_bf16 %s, %s, %s, %s' % (vr(d, 4), vr(a, 4), vr(b, 4), '0' if first else vr(d, 4)))


class Stamps:
    def __init__(self, cfg, regs, role):
        self.amp = cfg.amp if cfg.amp else None
        self.role = role
        self.sel = (cfg.selA if role == 'A' else cfg.selB)
        if self.sel is not None:
            self.sel = self.sel.split(',')
        self.ins = 's_memtime' if cfg.stamps == 'cyc' else 's_memrealtime'
        self.on = cfg.stamps or bool(self.amp)
        self.regs = regs
        self.names = []

    def __call__(self, e, name):
        if not self.on:
            return
        if self.sel is not None:
            if name != 'start' and name not in self.sel:
                return
        elif name.startswith('_'):
            return
        r = self.regs[len(self.names)]
        self.names.append(name)
        if self.amp and name not in ('start', 'end', self.amp[1], self.amp[2]):
            return
        e.I('%s s[%d:%d]' % (self.ins, r, r + 1))

    def flush(self, e):
        if not self.on:
            return
        e.wait_smem()
        if self.amp:
            if self.amp[0] == self.role:
                R = dict(zip(self.names, self.regs))
                e.I('s_sub_u32 s%d, s%d, s%d\ns_mul_i32 s%d, s%d, %d\ns_min_u32 s%d, s%d, 50000' %
                    (T0, R[self.amp[2]], R[self.amp[1]], T0, T0, self.amp[3], T0, T0))
                e.label('L_amp')
                e.I('s_memrealtime s[%d:%d]' % (T1, T1 + 1))
                e.wait_smem()
                e.I('s_sub_u32 s%d, s%d, s%d\ns_cmp_lt_u32 s%d, s%d\ns_cbranch_scc1 L_amp' % (T1, T1, R['end'], T1, T0))
            return
        e.I('s_lshl_b32 s%d, s2, 3\ns_add_u32 s%d, s%d, s%d\ns_lshl_b32 s%d, s%d, 6\ns_add_u32 s%d, s%d, 0x%x' %
            (T0, T0, T0, sWAVE, T0, T0, T0, T0, STAMP_OFF))
        e.I('s_mov_b64 exec, 1')
        for k in range(len(self.names)):
            e.I('v_mov_b32 v2, s%d' % self.regs[k])
            e.I('buffer_store_dword v2, off, %s, s%d offset:%d' % (srd(SWS), T0, 4 * k))


def run(items):
    for it in items:
        it()


def poll(e, label, vt, vaddr, soff, mask, between=None):
    def look(tag=None):
        e.I('s_mov_b64 exec, %s' % mask)
        e.I('buffer_load_dword v%d, v%d, %s, s%d offen sc1' % (vt, vaddr, srd(SWS), soff), tag=tag)
        e.I('s_mov_b64 exec, -1')

    def check():
        e.I('v_cmp_ne_u32 vcc, s%d, v%d' % (sNONCE, vt))
        e.I('s_and_b64 vcc, vcc, %s' % mask)
    spin(e, label, look, check, between)


def spin(e, label, look, check, between):
    look('look')
    if between:
        between()
    e.wait(vm='look')
    check()
    e.I('s_cbranch_scc1 %s' % label)
    e.label(label + '_out')
    with e.cold_block():
        e.label(label)
        e.I('s_mov_b32 s%d, 0' % sCNT)
        e.label(label + '_l')
        if SLEEP[0]:
            e.I('s_sleep %d' % SLEEP[0])
        look()
        e.I('s_add_u32 s%d, s%d, 1' % (sCNT, sCNT))
        e.I('s_cmp_gt_u32 s%d, %d' % (sCNT, SPIN_MAX))
        e.wait(vm='all')
        e.I('s_cbranch_scc1 %s_out' % label)
        check()
        e.I('s_cbranch_scc1 %s_l' % label)
        e.I('s_branch %s_out' % label)


def code_touch(e, tag):
    e.I('s_getpc_b64 s[%d:%d]' % (sMA, sMA + 1))
    e.label('L_pc' + tag)
    e.I('s_sub_u32 s%d, s%d, L_pc%s-%s\ns_subb_u32 s%d, s%d, 0' % (sMA, sMA, tag, NAME, sMA + 1, sMA + 1))
    e.I('s_and_b32 s%d, s2, 0xf8\ns_add_u32 s%d, s%d, s%d\ns_lshl_b32 s%d, s%d, 6' % (T0, T0, T0, sWAVE, T0, T0))
    e.I('s_load_dword s3, s[%d:%d], s%d' % (sMA, sMA + 1, T0))
    e.I('s_add_u32 s%d, s%d, 16384\ns_min_u32 s%d, s%d, L_end-%s' % (T0, T0, T0, T0, NAME))
    e.I('s_load_dword s3, s[%d:%d], s%d' % (sMA, sMA + 1, T0))


def rot2_calc(e, cfg, dst, b):
    e.I('s_mul_i32 s%d, s%d, %d' % (dst, sCT, b))
    for k in range(1 if cfg.map2 == 84 else 2):
        e.I('s_add_u32 s%d, s%d, s%d' % (dst, dst, sRT))
    e.I('s_and_b32 s%d, s%d, %d' % (dst, dst, cfg.rot2))


def step_start(e, cfg, cur, beg, end, shift):
    rot2_calc(e, cfg, cur, cfg.rotF)
    e.I('s_cmp_eq_u32 s%d, 3\ns_cselect_b32 s%d, 10, 11' % (sW, end))
    e.I('s_mul_i32 s%d, s%d, s%d\ns_lshr_b32 s%d, s%d, 3\ns_mul_i32 s%d, s%d, 11' % (cur, cur, end, cur, cur, beg, sW))
    e.I('s_add_u32 s%d, s%d, s%d\ns_add_u32 s%d, s%d, s%d' % (cur, cur, beg, end, end, beg))
    for r in (cur, beg, end):
        e.I('s_lshl_b32 s%d, s%d, %d' % (r, r, shift))


def step_next(e, cur, beg, end, inc, wrap=True, last=False):
    e.I('s_add_u32 s%d, s%d, %d' % (cur, cur, inc))
    if wrap:
        e.I('s_cmp_eq_u32 s%d, s%d\ns_cselect_b32 s%d, s%d, s%d' % (cur, end, cur, beg, cur))
    if last:
        e.I('s_cmp_eq_u32 s%d, 3\ns_cselect_b32 s%d, 0x%x, s%d' % (sW, cur, OOB, cur))


def wd_next(e, n, cur, beg, end):
    step_next(e, cur, beg, end, 16384, n % 2 == 0, n == 20)


def set_m0(e, base, off):
    if getattr(e, 'm0', None) != (base, off):
        e.I('s_add_u32 m0, s%d, %d' % (base, off))
        e.m0 = (base, off)


def wd_lane_offsets(e, WDV, t0, t1):
    txt = 'v_lshrrev_b32 v%d, 4, v0\nv_lshlrev_b32 v%d, 1, v%d\nv_and_b32 v%d, 7, v0\nv_xor_b32 v%d, v%d, v%d\nv_lshlrev_b32 v%d, 4, v%d\n' % (
        t0, t0, t0, t1, t0, t0, t1, t0, t0)
    txt += 'v_lshrrev_b32 v%d, 3, v0\nv_lshl_add_u32 v%d, v%d, 10, v%d\n' % (t1, t0, t1, t0)
    txt += 's_lshl_b32 s%d, s%d, 7\n' % (T0, sCT)
    txt += 'v_add_u32 v%d, s%d, v%d\nv_add_u32 v%d, 7168, v%d' % (WDV, T0, t0, WDV + 1, WDV)
    return txt


RING = [(5, n) for n in range(3)] + [(4, 2)] + [(2 + n // 3, n % 3) for n in range(6)] + [(4, n) for n in range(2)] \
    + [(n // 3, n % 3) for n in range(6)] + [(2, n) for n in range(3)] + [(3, 0)]
PREV = {18: 4, 19: 5, 20: 6, 21: 7}


class Touch:
    def __init__(self, e, cfg, role):
        self.e, self.role = e, role
        self.plan = [p for p in cfg.tplan if p[0] == role]
        it = []
        for par in range(2):
            for p in (P_CRE, P_CIM):
                it += [(p, 128 * k + 64 * par) for k in range(4)]
        for par in range(2):
            it += [(P_WD, 128 * k + 64 * par) for k in range(11)]
        self.items = it

    def setup(self):
        if not self.plan:
            return
        e = self.e
        used = {self.items[k][0] for p in self.plan for k in range(p[2], p[3])}
        e.I('s_lshl_b32 s%d, s2, 2\ns_add_u32 s%d, s%d, s%d' % (T0, T0, T0, sW))
        for p in sorted(used):
            e.I('s_mul_i32 s%d, s%d, %d' % (T1, T0, 1376 if p == P_WD else 512))
            e.I('s_add_u32 s%d, s%d, s%d\ns_addc_u32 s%d, s%d, 0' % (p, p, T1, p + 1, p + 1))

    def at(self, place):
        for p in self.plan:
            if p[1] == place:
                for k in range(p[2], p[3]):
                    self.e.I('s_load_dword s3, s[%d:%d], %d' % (self.items[k][0], self.items[k][0] + 1, self.items[k][1]))


def flag_store(e, vt, soff, imm=0):
    e.I('s_mov_b64 exec, 1')
    e.I('buffer_store_dword v%d, off, %s, s%d offset:%d sc1' % (vt, srd(SWS), soff, imm), tag='flag')
    e.I('s_mov_b64 exec, -1')


def frag_addr(e, dst, t0, t1):
    e.I('v_lshrrev_b32 v%d, 5, v0' % t0)
    e.I('v_bfe_u32 v%d, v0, 1, 3' % t1)
    e.I('v_xor_b32 v%d, v%d, v%d' % (t0, t0, t1))
    e.I('v_and_b32 v%d, 31, v0' % t1)
    e.I('v_lshlrev_b32 v%d, 7, v%d' % (t1, t1))
    e.I('v_lshl_add_u32 v%d, v%d, 4, v%d' % (dst, t0, t1))
    for s in range(1, 4):
        e.I('v_xor_b32 v%d, %d, v%d' % (dst + s, 32 * s, dst))


def frag16_addr(e, dst, t0, t1):
    e.I('v_lshrrev_b32 v%d, 4, v0' % t0)
    e.I('v_bfe_u32 v%d, v0, 1, 3' % t1)
    e.I('v_xor_b32 v%d, v%d, v%d' % (t0, t0, t1))
    e.I('v_and_b32 v%d, 15, v0' % t1)
    e.I('v_lshlrev_b32 v%d, 7, v%d' % (t1, t1))
    e.I('v_lshl_add_u32 v%d, v%d, 4, v%d' % (dst, t0, t1))
    e.I('v_xor_b32 v%d, 64, v%d' % (dst + 1, dst))


def w_tr_addr(e, d, t0, t1):
    e.I('v_lshrrev_b32 v%d, 4, v0' % t0)
    e.I('v_bfe_u32 v%d, v0, 2, 2' % t1)
    e.I('v_lshl_add_u32 v%d, v%d, 3, v%d' % (t0, t0, t1))
    e.I('v_mul_u32_u24 v%d, 192, v%d' % (t0, t0))
    e.I('v_bfe_u32 v%d, v0, 4, 1' % t1)
    e.I('v_lshl_add_u32 v%d, v%d, 5, v%d' % (t0, t1, t0))
    e.I('v_and_b32 v%d, 3, v0' % t1)
    e.I('v_lshl_add_u32 v%d, v%d, 3, v%d' % (d, t1, t0))
    e.I('v_xor_b32 v%d, 32, v%d' % (d + 1, d))
    e.I('v_add_u32 v%d, %d, v%d\nv_add_u32 v%d, %d, v%d' % (d + 2, WIN, d, d + 3, WIN, d + 1))


W_SLOT = [0, 1, 2, 3, 0, 1, 2, 3]
S_SHIFT = [0]


def s_slot(i):
    return (i + 4) % 6 if S_SHIFT[0] < 0 else (i + S_SHIFT[0]) % 4


def w_frag_read(e, dst, wa, j, s2, g, mat, fh, mm, tag):
    slot = W_SLOT[j]
    off = (slot & 1) * SLOT + mat * 12288 + (32 * s2 + 4 * mm) * 192 + g * 64
    e.I('ds_read_b64_tr_b16 %s, v%d offset:%d' % (vr(dst + 2 * mm, 2), wa + 2 * (slot >> 1) + fh, off), tag=tag)


def act_items(e, cfg, G, U, tmp, out):
    items = []
    add = lambda t: items.append(lambda t=t: e.I(t))
    for b in range(2):
        g, u, o = G + 8 * b, U + 8 * b, out + 4 * b
        if cfg.mimic:
            for src in (g, u):
                for p in range(4):
                    add('v_cvt_pk_bf16_f32 v%d, v%d, v%d' % (tmp + p, src + 2 * p, src + 2 * p + 1))
                for p in range(4):
                    add('v_lshlrev_b32 v%d, 16, v%d' % (src + 2 * p, tmp + p))
                    add('v_and_b32 v%d, 0xffff0000, v%d' % (src + 2 * p + 1, tmp + p))
        for p in range(4):
            add('v_pk_mul_f32 %s, %s, s[%d:%d]' % (vr(tmp + 2 * p, 2), vr(g + 2 * p, 2), sNL2E, sNL2E + 1))
        for p in range(8):
            add('v_exp_f32 v%d, v%d' % (tmp + p, tmp + p))
        for p in range(4):
            add('v_pk_add_f32 %s, %s, 1.0 op_sel_hi:[1,0]' % (vr(tmp + 2 * p, 2), vr(tmp + 2 * p, 2)))
        for p in range(8):
            add('v_rcp_f32 v%d, v%d' % (tmp + p, tmp + p))
        for p in range(4):
            add('v_pk_mul_f32 %s, %s, %s' % (vr(g + 2 * p, 2), vr(g + 2 * p, 2), vr(tmp + 2 * p, 2)))
        if cfg.mimic:
            for p in range(4):
                add('v_cvt_pk_bf16_f32 v%d, v%d, v%d' % (tmp + p, g + 2 * p, g + 2 * p + 1))
            for p in range(4):
                add('v_lshlrev_b32 v%d, 16, v%d' % (g + 2 * p, tmp + p))
                add('v_and_b32 v%d, 0xffff0000, v%d' % (g + 2 * p + 1, tmp + p))
        for p in range(4):
            add('v_pk_mul_f32 %s, %s, %s' % (vr(u + 2 * p, 2), vr(g + 2 * p, 2), vr(u + 2 * p, 2)))
        for p in range(4):
            add('v_cvt_pk_bf16_f32 v%d, v%d, v%d' % (o + p, u + 2 * p, u + 2 * p + 1))
    return items


def act_items_scalar(e, cfg, G, U, tmp, out):
    if cfg.mimic:
        return act_items(e, cfg, G, U, tmp, out)
    items = []
    add = lambda t: items.append(lambda t=t: e.I(t))
    for b in range(4):
        g, u, o = G + 4 * b, U + 4 * b, out + 2 * b
        for p in range(4):
            add('v_mul_f32 v%d, s%d, v%d' % (tmp + p, sNL2E, g + p))
        for p in range(4):
            add('v_exp_f32 v%d, v%d' % (tmp + p, tmp + p))
            add('v_mul_f32 v%d, v%d, v%d' % (u + p, g + p, u + p))
        for p in range(4):
            add('v_add_f32 v%d, 1.0, v%d' % (tmp + p, tmp + p))
        for p in range(4):
            add('v_rcp_f32 v%d, v%d' % (tmp + p, tmp + p))
        for p in range(4):
            add('v_mul_f32 v%d, v%d, v%d' % (u + p, tmp + p, u + p))
        for p in range(2):
            add('v_cvt_pk_bf16_f32 v%d, v%d, v%d' % (o + p, u + 2 * p, u + 2 * p + 1))
    return items


def light_scc(e):
    e.I('s_and_b32 s%d, s%d, 3\ns_cmp_eq_u32 s%d, 3\ns_cselect_b32 s%d, 14, s%d\ns_cmp_eq_u32 s%d, 14' % (T0, sCB, T0, T0, sCB, T0))


def w_lane_offsets(e, cfg, WV, t0, t1):
    if cfg.zfill:
        light_scc(e)
        e.I('s_cselect_b32 s%d, 8, 12' % sTW)
    e.I('s_and_b32 s%d, s%d, 1' % (T1, sW))
    e.I('s_mul_i32 s%d, s%d, %d\ns_lshl_b32 s%d, s%d, 6\ns_add_u32 s%d, s%d, s%d' % (T0, T1, 32 * 2752, T1, sSG0, T0, T0, T1))
    for q in range(3):
        e.I('v_add_u32 v%d, %d, v0\nv_mul_u32_u24 v%d, 171, v%d\nv_lshrrev_b32 v%d, 11, v%d' % (t1, 64 * q, t0, t1, t0, t0))
        if cfg.zfill:
            e.I('v_mul_u32_u24 v%d, 12, v%d\nv_sub_u32 v%d, v%d, v%d\nv_cmp_gt_u32 vcc, s%d, v%d' % (WV + q, t0, t1, t1, WV + q, sTW, t1))
        e.I('v_lshrrev_b32 v%d, 3, v%d\nv_lshlrev_b32 v%d, 1, v%d\nv_xor_b32 v%d, v0, v%d' % (t1, t0, t1, t1, t1, t1))
        e.I('v_mul_u32_u24 v%d, %d, v%d' % (t0, 2752 - 192, t0))
        e.I('v_lshl_add_u32 v%d, v%d, 4, v%d' % (t0, t1, t0))
        e.I('v_add_u32 v%d, s%d, v%d' % (WV + q, T0, t0))
        if cfg.zfill:
            e.I('v_mov_b32 v%d, 0x%x\nv_cndmask_b32 v%d, v%d, v%d, vcc' % (t0, OOB, WV + q, t0, WV + q))
    e.I('s_mul_i32 s%d, s%d, 6144' % (sMW, sW))


def dma_W(e, WV, SWR, j):
    slot = W_SLOT[j] * SLOT
    its = []
    for grp in range(2):
        for q in range(3):
            def f(grp=grp, q=q):
                set_m0(e, sMW, slot + grp * 3072)
                if q == 0 and grp == 0:
                    e.I('s_add_u32 s%d, s%d, %d\ns_and_b32 s%d, s%d, 7\ns_mul_i32 s%d, s%d, %d' %
                        (sTW, sK0, j, sTW, sTW, sTW, sTW, 64 * 2752))
                if q == 0 and grp == 1:
                    e.I('s_add_u32 s%d, s%d, %d' % (sTW, sTW, 16 * 2752))
                e.I('buffer_load_dwordx4 v%d, %s, s%d offen offset:%d lds' % (WV + q, srd(SWR), sTW, 1024 * q), tag=('st', 8 + j))
            its.append(f)
    return its


C_LAND, C_CONS, C_Q, C_DONEA = 0, 32, 64, 68


def cnt_add(e, va, vone, off):
    e.I('s_mov_b64 exec, 1')
    e.I('ds_add_u32 v%d, v%d offset:%d' % (va, vone, off), tag='sig')
    e.I('s_mov_b64 exec, -1')


def cnt_look(e, va, vt, off, tag):
    e.I('ds_read_b32 v%d, v%d offset:%d' % (vt, va, off), tag=tag)


def cnt_check(e, label, va, vt, off, tag):
    e.wait(lg=tag)
    e.I('v_cmp_ne_u32 vcc, 4, v%d' % vt)
    e.I('s_cbranch_vccnz %s' % label)
    e.label(label + '_out')
    with e.cold_block():
        e.label(label)
        e.I('s_mov_b32 s%d, 0' % sCNT)
        e.label(label + '_l')
        if SLEEP[1]:
            e.I('s_sleep %d' % SLEEP[1])
        cnt_look(e, va, vt, off, None)
        e.I('s_add_u32 s%d, s%d, 1' % (sCNT, sCNT))
        e.I('s_cmp_gt_u32 s%d, %d' % (sCNT, 20 * SPIN_MAX))
        e.wait(lg='all')
        e.I('s_cbranch_scc1 %s_out' % label)
        e.I('v_cmp_ne_u32 vcc, 4, v%d' % vt)
        e.I('s_cbranch_vccnz %s_l' % label)
        e.I('s_branch %s_out' % label)


def cnt_spin(e, label, va, vt, off):
    cnt_look(e, va, vt, off, 'look')
    cnt_check(e, label, va, vt, off, 'look')


def act_offsets(e, k, s_data, s_flag, valid_scc=False):
    e.I('s_lshl_b32 s%d, s%d, 2\ns_add_u32 s%d, s%d, s%d' % (T0, sRB, T0, T0, sW))
    e.I('s_mul_i32 s%d, s%d, 43\ns_add_u32 s%d, s%d, s%d\ns_add_u32 s%d, s%d, %d\ns_lshl_b32 s%d, s%d, 11' %
        (T1, T0, T1, T1, sSG0, T1, T1, k, s_data, T1))
    e.I('s_lshr_b32 s%d, s%d, 1\ns_mul_i32 s%d, s%d, 44\ns_add_u32 s%d, s%d, s%d\ns_add_u32 s%d, s%d, %d' %
        (T1, T0, T1, T1, T1, T1, sSG0, T1, T1, k))
    e.I('s_lshl_b32 s%d, s%d, 1\ns_and_b32 s%d, s%d, 1\ns_add_u32 s%d, s%d, s%d\ns_mul_i32 s%d, s%d, %d\ns_add_u32 s%d, s%d, 0x%x' %
        (T1, T1, T0, T0, T1, T1, T0, T1, T1, FS, s_flag, T1, AF_OFF))


def part_write_addr(e, dst, t0, t1, piece_stride, wave_stride, base):
    e.I('v_lshrrev_b32 v%d, 4, v0' % t0)
    e.I('v_and_b32 v%d, 7, v0' % t1)
    e.I('v_xor_b32 v%d, v%d, v%d' % (t0, t0, t1))
    e.I('v_lshlrev_b32 v%d, 4, v%d' % (dst, t0))
    e.I('v_bfe_u32 v%d, v0, 3, 1' % t0)
    e.I('v_and_b32 v%d, 3, v0' % t1)
    e.I('v_lshl_add_u32 v%d, v%d, 2, v%d' % (t0, t0, t1))
    e.I('v_lshl_add_u32 v%d, v%d, 8, v%d' % (dst, t0, dst))
    e.I('v_bfe_u32 v%d, v0, 2, 1' % t0)
    e.I('v_mul_u32_u24 v%d, %d, v%d' % (t0, piece_stride, t0))
    e.I('s_mul_i32 s%d, s%d, %d\ns_add_u32 s%d, s%d, %d' % (T0, sW, wave_stride, T0, T0, base))
    e.I('v_add3_u32 v%d, v%d, v%d, s%d' % (dst, dst, t0, T0))
    e.I('v_xor_b32 v%d, 64, v%d' % (dst + 1, dst))


def acc2(t4, dq):
    return 64 + 16 * t4 + 4 * dq


def part_write(e, addr, piece_stride, tt, addr1=None):
    its = []
    for a in range(2):
        for dq in range(4):
            ad_, off = (addr + (dq & 1), (dq >> 1) * 128) if addr1 is None or dq < 2 else (addr1 + (dq & 1), 0)
            its.append(lambda ad_=ad_, off=off, dq=dq, a=a:
                       e.I('ds_write_b128 v%d, %s offset:%d' % (ad_, vr(acc2(2 * tt + a, dq), 4), tt * 2 * piece_stride + a * 2048 + off), tag=('pw', tt)))
    return its


def gen_entry(e, cfg, st):
    e.I('s_cmp_ge_u32 s2, 256\ns_cbranch_scc1 L_end')
    e.I('s_load_dwordx16 s[4:19], s[0:1], 0\ns_load_dwordx16 s[20:35], s[0:1], 64\ns_load_dwordx2 s[36:37], s[0:1], 128')
    st(e, 'start')
    e.I('v_lshrrev_b32 v1, 6, v0\nv_and_b32 v0, 63, v0')
    e.I('v_readfirstlane_b32 s%d, v1' % sWAVE)
    e.I('s_and_b32 s%d, s2, 7\ns_lshr_b32 s%d, s2, 3' % (T0, T1))
    e.I('s_and_b32 s%d, s%d, 7\ns_lshr_b32 s%d, s%d, 3' % (T2, T1, T3, T1))
    e.I('s_and_b32 s%d, s%d, 1\ns_lshl_b32 s%d, s%d, 3\ns_add_u32 s%d, s%d, s%d' % (sRB, T0, sRB, sRB, sRB, sRB, T2))
    e.I('s_lshr_b32 s%d, s%d, 1' % (T4, T0))
    e.I('s_lshl_b32 s%d, s%d, 2\ns_add_u32 s%d, s%d, s%d' % (sCB, T4, sCB, sCB, T3))
    e.I('s_mul_i32 s%d, s%d, %d' % (sK0, T2, cfg.rot1[0]))
    for src, mul in zip((T3, T4, None), cfg.rot1[1:]):
        if mul:
            if src is None:
                e.I('s_and_b32 s%d, s%d, 1' % (T5, T0))
            e.I('s_mul_i32 s%d, s%d, %d\ns_add_u32 s%d, s%d, s%d' % (T5, T5 if src is None else src, mul, sK0, sK0, T5))
    e.I('s_and_b32 s%d, s%d, 7' % (sK0, sK0))
    e.I('s_mul_i32 s%d, s%d, 11\ns_mul_i32 s%d, s%d, 3\ns_add_u32 s%d, s%d, s%d' % (sSG0, T4, T5, T3, sSG0, sSG0, T5))
    e.I('s_cmp_eq_u32 s%d, 15\ns_subb_u32 s%d, s%d, 0' % (sCB, sSG0, sSG0))
    if cfg.map2 == 84:
        e.I('s_lshl_b32 s%d, s%d, 3\ns_add_u32 s%d, s%d, s%d' % (sRT, T4, sRT, sRT, T2))
        e.I('s_and_b32 s%d, s%d, 1\ns_lshl_b32 s%d, s%d, 2\ns_add_u32 s%d, s%d, s%d' % (sCT, T0, sCT, sCT, sCT, sCT, T3))
    else:
        e.I('s_lshl_b32 s%d, s%d, 2\ns_and_b32 s%d, s%d, 3\ns_add_u32 s%d, s%d, s%d\ns_lshr_b32 s%d, s%d, 2' %
            (sRT, T0, T5, T1, sRT, sRT, T5, sCT, T1))
    e.I('s_and_b32 s%d, s%d, 3' % (sW, sWAVE))
    e.I('s_cmp_lt_u32 s%d, 4\ns_cbranch_scc1 L_A' % sWAVE)


def gen_B(e, cfg, st):
    NPRE = cfg.prog.count('D')
    WA = 2
    EP = 42
    XV, BV, WV, XA = 32, 36, 38, 44
    e.I('v_lshrrev_b32 v8, 3, v0')
    e.I('v_and_b32 v9, 7, v0')
    e.I('v_lshrrev_b32 v10, 4, v0')
    e.I('v_xor_b32 v10, v9, v10\nv_lshlrev_b32 v10, 4, v10')
    e.I('v_lshrrev_b32 v11, 5, v0\nv_and_b32 v12, 3, v8\nv_lshl_add_u32 v11, v11, 4, v12')
    e.I('s_lshl_b32 s%d, s%d, 2\ns_add_u32 s%d, s%d, s%d\ns_lshl_b32 s%d, s%d, 15' % (T0, sRB, T0, T0, sW, T0, T0))
    e.I('v_lshl_add_u32 v11, v11, 10, s%d' % T0)
    e.I('v_add_u32 v%d, v11, v10' % XV)
    e.I('v_xor_b32 v13, 64, v%d' % XV)
    e.I('v_add_u32 v%d, 3072, v13\nv_add_u32 v%d, 6144, v%d\nv_add_u32 v%d, 9216, v13' % (XV + 1, XV + 2, XV, XV + 3))
    e.I('s_and_b32 s%d, s%d, 1' % (T1, sW))
    e.I('s_lshl_b32 s%d, s%d, 1\ns_add_u32 s%d, s%d, s%d\ns_lshl_b32 s%d, s%d, 14' % (T0, sCB, T0, T0, T1, T0, T0))
    e.I('v_lshrrev_b32 v11, 5, v0\nv_lshl_add_u32 v11, v11, 3, v12')
    e.I('v_lshl_add_u32 v11, v11, 10, s%d' % T0)
    e.I('v_add_u32 v%d, v11, v10' % BV)
    e.I('v_xor_b32 v13, 64, v%d\nv_add_u32 v%d, 3072, v13' % (BV, BV + 1))
    e.I('s_lshl_b32 s%d, s%d, 12' % (sMX, sW))
    e.I('s_lshl_b32 s%d, s%d, 11\ns_add_u32 s%d, s%d, 16384' % (sMBm, sW, sMBm, sMBm))
    e.I('s_lshl_b32 s%d, s%d, 7' % (T6, sK0))
    e.wait_smem()
    st(e, 'karg')
    mk_srd(e, SX, P_X, 2048 * 1024)
    e.I('s_cmp_ge_u32 s%d, 2' % sW)
    mk_srd_sel(e, SBM, P_BIM, P_BRE, 512 * 1024)

    def dma_S(i):
        slot = s_slot(i) * SLOT
        its = []
        for q in range(4):
            def f(q=q):
                if q == 0:
                    set_m0(e, sMX, slot)
                    e.I('s_add_u32 s%d, s%d, %d\ns_and_b32 s%d, s%d, 1023' % (sTS, T6, i * 128, sTS, sTS))
                e.I('buffer_load_dwordx4 v%d, %s, s%d offen offset:%d lds' % (XV + q, srd(SX), sTS, 1024 * q), tag=('st', i))
            its.append(f)
        for q in range(2):
            def f(q=q):
                if q == 0:
                    set_m0(e, sMBm, slot)
                e.I('buffer_load_dwordx4 v%d, %s, s%d offen offset:%d lds' % (BV + q, srd(SBM), sTS, 1024 * q), tag=('st', i))
            its.append(f)
        return its

    run(dma_S(0))
    st(e, 'dma0')
    s1 = dma_S(1)
    run(s1[:cfg.s1a])
    e.I('v_lshlrev_b32 v11, 2, v0\nv_add_u32 v11, %d, v11\nv_mov_b32 v12, 0' % L_FL)
    e.I('ds_write_b32 v11, v12', tag='init')
    if cfg.prewarm:
        code_touch(e, 'B')
    e.I('s_cmp_ge_u32 s%d, 2' % sW)
    mk_srd_sel(e, SW, P_WU, P_WG, 512 * 2752)
    mk_srd(e, SWS, P_WS, WS_SIZE)
    mk_srd(e, SWD, P_WD, 1376 * 1024)
    if cfg.tlb:
        for p in (P_WG, P_WU, P_WD, P_CRE, P_CIM, P_OUT):
            e.I('s_load_dword s3, s[%d:%d], 0' % (p, p + 1))
    w_lane_offsets(e, cfg, WV, 11, 12)
    frag16_addr(e, XA, 11, 12)
    for s in range(2):
        e.I('v_add_u32 v%d, s%d, v%d' % (XA + s, sMX, XA + s))
        e.I('v_add_u32 v%d, %d, v%d' % (XA + 2 + s, WIN, XA + s))
        if cfg.lag:
            e.I('v_add_u32 v%d, %d, v%d' % (XA + 4 + s, 2 * WIN, XA + s))
    w_tr_addr(e, WA, 11, 12)
    e.I('v_lshlrev_b32 v1, 4, v0')
    tch = Touch(e, cfg, 'B')
    tch.setup()
    tch.at(-1)

    sDC, sDB, sDE, sAC, sAB, sAE = 86, 87, 88, 89, 90, 91
    sD0, sF0, sD2, sF2 = T2, T3, T4, T5
    st(e, '_pro')
    sP0 = 92
    if isinstance(cfg.w0pos, tuple):
        tab = sum(p << (4 * r) for r, p in enumerate(cfg.w0pos))
        e.I('s_and_b32 s%d, s%d, 7\ns_lshl_b32 s%d, s%d, 2\ns_lshr_b32 s%d, 0x%x, s%d\ns_and_b32 s%d, s%d, 15' %
            (T0, sRB, T0, T0, sP0, tab, T0, sP0, sP0))

    def w0_hook(p):
        if cfg.w0pos == p:
            run(dma_W(e, WV, SW, 0))
        elif isinstance(cfg.w0pos, tuple) and p in cfg.w0pos:
            e.I('s_cmp_eq_u32 s%d, %d\ns_cbranch_scc1 L_w0_%d' % (sP0, p, p))
            e.label('L_w0_%d_out' % p)
            with e.cold_block():
                e.label('L_w0_%d' % p)
                run(dma_W(e, WV, SW, 0))
                e.I('s_branch L_w0_%d_out' % p)
            e.m0 = None
    run(s1[cfg.s1a:])
    st(e, '_dma1')
    w0_hook(1)
    e.wait(vm=('st', 0))
    st(e, '_sa0')
    e.I('s_barrier')
    st(e, 'b0')
    for i in range(8):
        if i == 1:
            e.I('s_mov_b32 s%d, 0x%x' % (T0, EPOCH_OFF))
            e.I('buffer_load_dword v%d, off, %s, s%d sc1' % (EP, srd(SWS), T0), tag='ep')
        if i < 6:
            run(dma_S(i + 2))
            w0_hook(i + 2)
        elif cfg.w0pos is None:
            run(dma_W(e, WV, SW, i - 6))
        elif i == 6 or 'W2' not in cfg.prog:
            run(dma_W(e, WV, SW, i - 5))
        for s in range(4):
            slot = s_slot(i)
            e.I('ds_read_b128 %s, v%d offset:%d' % (vr(128 + 4 * (4 * i + s), 4), XA + 2 * (slot >> 1) + (s >> 1), (slot & 1) * SLOT + (s & 1) * 2048), tag='x')
        if i == 4:
            e.wait(vm='ep')
            e.I('v_readfirstlane_b32 s%d, v%d' % (sNONCE, EP))
            e.I('s_add_u32 s%d, s%d, 0x%x\ns_or_b32 s%d, s%d, 1' % (sNONCE, sNONCE, PHI, sNONCE, sNONCE))
            e.I('s_mov_b32 s%d, 0x%x\ns_mov_b32 s%d, 0x%x' % (sNL2E, NLOG2E, sNL2E + 1, NLOG2E))
        if i == 2:
            step_start(e, cfg, sAC, sAB, sAE, 11)
        if i == 3:
            for k in range(3):
                e.I('s_lshl_b32 s%d, s%d, 4' % (sDC + k, sAC + k))
            for n in range(1, NPRE):
                wd_next(e, n, sDC, sDB, sDE)
        if i == 5:
            act_offsets(e, 0, sD0, sF0)
        if i == 6:
            e.I('s_add_u32 s%d, s%d, 4096\ns_add_u32 s%d, s%d, %d' % (sD2, sD0, sF2, sF0, 4 * FS))
            light_scc(e)
            e.I('s_cselect_b32 s%d, 0x%x, s%d\ns_cselect_b32 s%d, 0x%x, s%d' % (sD2, OOB, sD2, sF2, OOB, sF2))
            e.I('v_mov_b32 v7, %d\nv_mov_b32 v6, 1' % L_FL)
        if i < 7:
            e.wait(vm=('st', i + 1), lg='all')
            st(e, '_sa%d' % (i + 1))
            e.I('s_barrier')
            st(e, '_sd%d' % (i + 1))
            if i == 0:
                st(e, 'b1')
    NT = cfg.NT
    ops = []
    for j in range(8 - NT):
        for s in range(2):
            for g in range(3):
                for mf in range(4):
                    ops.append((j, s, g, mf))
    tail0 = len(ops)
    for g in range(3):
        for j in range(8 - NT, 8):
            for s in range(2):
                for mf in range(4):
                    ops.append((j, s, g, mf))
    NB, LA = 6, cfg.LA
    first = {j: min(q for q in range(len(ops)) if ops[q][0] == j) for j in range(8)}
    last = {j: max(q for q in range(len(ops)) if ops[q][0] == j) for j in range(8)}

    def rd(q, half):
        if q >= len(ops):
            return
        j, s, g, mf = ops[q]
        if q == first[j] and j <= cfg.JL and half == 0:
            e.wait(vm=('st', 8 + j), lg='x')
            st(e, '_a%d' % j)
            e.I('s_barrier')
            st(e, '_d%d' % j)
            if j in (0, 4, cfg.JL):
                st(e, 'b%d' % (8 + j))
            if j == 0 and cfg.prioB:
                e.I('s_setprio %d' % cfg.prioB)
        w_frag_read(e, 8 + 4 * (q % NB), WA, j, s, g, mf >> 1, mf & 1, half, ('wf', q))
        if q == last[7] and half == 1:
            cnt_add(e, 7, 6, C_CONS + 28)

    def mm(q, a):
        j, s, g, mf = ops[q]
        if a == 0 and q % 2 == 0:
            e.wait(lg=('wf', q + 1))
        mfma16(e, 32 + 32 * g + 16 * (mf >> 1) + 8 * a + 4 * (mf & 1), 8 + 4 * (q % NB), 128 + 16 * j + 8 * s + 4 * a, j == 0 and s == 0)
        rd(q + LA, a)

    def act_store(k):
        for m in range(2):
            e.I('buffer_store_dwordx4 %s, v1, %s, s%d offen offset:%d sc1' %
                (vr(136 + 8 * k + 4 * m, 4), srd(SWS), sD2 if k == 2 else sD0, 1024 * m + (2048 if k == 1 else 0)), tag=('as', k))

    def act_flag(k):
        e.wait(vm=('as', k))
        flag_store(e, EP, sF2 if k == 2 else sF0, 2 * FS if k == 1 else 0)

    for q in range(LA):
        rd(q, 0)
        rd(q, 1)
    per = 8 * NT
    for q in range(tail0 + per):
        mm(q, 0)
        mm(q, 1)
    flagged = 0
    if NT:
        for g in (1, 2):
            main = [lambda q=q, a=a: mm(q, a) for q in range(tail0 + g * per, tail0 + (g + 1) * per) for a in range(2)]
            fill = act_items_scalar(e, cfg, 32 * g, 32 * g + 16, 128, 136 + 8 * (g - 1)) + [lambda g=g: act_store(g - 1)]
            run(main[:3] + weave(main[3:], fill))
        st(e, 'f1end')
        run(act_items(e, cfg, 96, 112, 128, 152))
        act_store(2)
    else:
        st(e, 'f1end')
        for g in range(3):
            run(act_items(e, cfg, 32 + 32 * g, 48 + 32 * g, 128, 136 + 8 * g))
            act_store(g)
    if cfg.prioB:
        e.I('s_setprio 0')
    st(e, 'actst')
    DA, AV, PW, WDV, EP = 2, 14, 16, 18, 23
    e.I('v_mov_b32 v%d, s%d' % (EP, sNONCE))
    e.I(wd_lane_offsets(e, WDV, 20, 21))
    e.I('v_mov_b32 v22, %d' % L_FL)
    cnt_spin(e, 'L_spinB', 22, 24, C_CONS + 28)
    st(e, 'ldsfree')

    def dma_D(n):
        sl, pos = RING[n]
        if n in PREV:
            e.wait(lg=('wr', PREV[n]))
        set_m0(e, sMW, sl * SLOT + pos * 2048)
        if n:
            wd_next(e, n, sDC, sDB, sDE)
        for q in range(2):
            e.I('buffer_load_dwordx4 v%d, %s, s%d offen offset:%d lds' % (WDV + q, srd(SWD), sDC, 1024 * q), tag=('wd', n))

    def wd_reg(n2):
        return 128 + 16 * n2 if n2 < 5 else 32 + 16 * (n2 - 5) if n2 < 7 else 128 + 16 * (n2 - 7)

    def wd_read(n, dqs=range(4)):
        sl, pos = RING[n]
        e.wait(vm=('wd', n))
        for dq in dqs:
            e.I('ds_read_b64_tr_b16 %s, v%d offset:%d' % (vr(wd_reg(n >> 1) + 4 * dq + 2 * (n & 1), 2), DA + 4 * (sl >> 1) + dq,
                                                         (sl & 1) * SLOT + pos * 2048), tag=('wr', n))

    def setup2():
        e.I('v_lshrrev_b32 v20, 2, v0\nv_lshlrev_b32 v20, 7, v20\nv_bfe_u32 v21, v0, 3, 2\nv_lshl_add_u32 v20, v21, 5, v20')
        e.I('v_and_b32 v21, 3, v0\nv_lshl_add_u32 v20, v21, 3, v20\nv_add_u32 v%d, s%d, v20' % (DA, sMW))
        for dq in range(1, 4):
            e.I('v_xor_b32 v%d, %d, v%d' % (DA + dq, 32 * dq, DA))
        for k in (1, 2):
            for dq in range(4):
                e.I('v_add_u32 v%d, %d, v%d' % (DA + 4 * k + dq, k * WIN, DA + dq))
        e.I('s_mul_i32 s%d, s%d, %d' % (T0, sRT, 2 * 88064))
        e.I('v_add_u32 v%d, s%d, v1\nv_add_u32 v%d, 88064, v%d' % (AV, T0, AV + 1, AV))
        part_write_addr(e, PW, 20, 21, SLOT, 6144, 0)
        e.I('s_mul_i32 s%d, s%d, 44\ns_mul_i32 s%d, s%d, 11\ns_add_u32 s%d, s%d, s%d\ns_mul_i32 s%d, s%d, %d\ns_add_u32 s%d, s%d, 0x%x' %
            (T0, sRT, T1, sW, T0, T0, T1, T0, T0, 2 * FS, T0, T0, AF_OFF))
        e.I('v_mul_u32_u24 v20, %d, v0' % FS)
        e.I('s_mov_b32 s%d, 0x3fffff\ns_cmp_eq_u32 s%d, 3\ns_cselect_b32 s%d, 0xfffff, s%d\ns_mov_b32 s%d, 0' % (sMA, sW, sMA, sMA, sMA + 1))

    for n in range(NPRE, 11):
        for k in range(3):
            if cfg.flagpos[k] + NPRE == n:
                if k == 2:
                    setup2()
                act_flag(k)
                if k == 2:
                    st(e, 'flagged')
        if n < 10:
            dma_D(n)
    cnt_spin(e, 'L_spinB2', 22, 24, C_DONEA)
    pulled = [0]

    def d_step(n):
        dma_D(n)
        while pulled[0] < min(14, 3 * (n - 9), n - 3):
            wd_read(pulled[0])
            pulled[0] += 1
        if n == 14:
            e.wait(lg=('wr', 9))
            set_m0(e, sMW, L_P2)
            e.I('s_mov_b64 exec, 1')
            e.I('buffer_load_dword off, %s, s%d lds' % (srd(SWD), SWD + 2), tag='init')
            e.I('s_mov_b64 exec, -1')
        if n == -cfg.posXB:
            bar_X()

    def bar_X():
        assert pulled[0] >= 12
        e.wait(vm='init', lg=('wr', 11))
        st(e, '_aX')
        e.I('s_barrier')

    for n in range(10, cfg.alook):
        d_step(n)
    st(e, 'wdiss')
    nd = cfg.alook + cfg.abet
    poll(e, 'L_pollA', 21, 20, T0, 's[%d:%d]' % (sMA, sMA + 1), lambda: [d_step(n) for n in range(cfg.alook, nd)])
    st(e, 'actrdy')
    if cfg.prioF2:
        e.I('s_setprio %d' % cfg.prioF2)

    TL = cfg.TL
    sSV = 92
    NM = 11 - TL

    def a_reg(n2, t4):
        return 208 + 4 * ((4 * n2 + t4) % 12) if n2 < NM else 32 + 16 * (t4 >> 1) + 8 * (n2 - NM) + 4 * (t4 & 1)

    pend = []
    rq = []

    def flush(n=99):
        for t in pend[:n]:
            e.I(t)
        del pend[:n]

    def a_load(n2, t4):
        if t4 == 0:
            flush()
        so = sAC if n2 < NM else sSV + n2 - NM
        e.I('buffer_load_dwordx4 %s, v%d, %s, s%d offen offset:%d sc1' % (vr(a_reg(n2, t4), 4), AV + (t4 >> 1), srd(SWS), so, 1024 * (t4 & 1)),
            tag=('a', n2, t4))
        if n2 < 10 and t4 == (3 if n2 < NM else 0):
            dst = sAC if n2 + 1 < NM else sSV + n2 + 1 - NM
            pend.append('s_add_u32 s%d, s%d, 2048' % (dst, so))
            pend.append('s_cmp_eq_u32 s%d, s%d\ns_cselect_b32 s%d, s%d, s%d' % (dst, sAE, dst, sAB, dst))
            if n2 == 9:
                pend.append('s_cmp_eq_u32 s%d, 3\ns_cselect_b32 s%d, 0x%x, s%d' % (sW, dst, OOB, dst))

    order = [(n2, t4) for n2 in range(NM) for t4 in range(4)] + [(n2, 2 * tt + a) for tt in range(2) for n2 in range(NM, 11) for a in range(2)]
    lq = []
    for k, t in enumerate(order):
        lq.append(('a', k))
        if k & 1 and nd < 22:
            lq.append(('d', nd))
            nd += 1
    dn = [cfg.alook + cfg.abet - 1]
    nis = [0]

    def issue(k, busy):
        while lq:
            t = lq[0]
            tag = ('a',) + order[k]
            nv = min(cfg.NV, cfg.NV0[0] + max(0, k - cfg.NV0[1]))
            if nis[0] > k and (len(e.vm) - 1 - e.vm.index(tag) >= nv - 1 if tag in e.vm else len(e.vm) >= nv):
                return
            if t[0] == 'a':
                if t[1] >= busy + 12:
                    return
                if t[1] >= 4 * NM and busy < 24 + 4 * (order[t[1]][1] >> 1):
                    return
                a_load(*order[t[1]])
                nis[0] = t[1] + 1
            else:
                d_step(t[1])
                dn[0] = t[1]
            lq.pop(0)

    def mm2(k):
        n2, t4 = order[k]
        if k == 0 or not cfg.fine:
            issue(k, k)
        while rq and (rq[0][0] >> 1 <= n2 + (t4 == 2) or not cfg.fine):
            t = rq.pop(0)
            wd_read(t[0], [t[1]])
        e.wait(vm=('a', n2, t4), lg=('wr', 2 * n2 + 1))
        for dq in range(4):
            mfma16(e, acc2(t4, dq), wd_reg(n2) + 4 * dq, a_reg(n2, t4), n2 == 0)
            if cfg.fine and dq == 0 and k + 1 < 44:
                issue(k + 1, k)
            if cfg.fine and dq in (1, 2):
                if pend:
                    flush(1)
                elif rq:
                    t = rq.pop(0)
                    wd_read(t[0], [t[1]])

    assert TL <= 2
    for n2 in range(NM):
        st(e, '_n%d' % n2)
        while pulled[0] <= min(2 * n2 + 5, 13):
            assert dn[0] >= pulled[0]
            wd_read(pulled[0])
            pulled[0] += 1
        if n2 == cfg.posXB:
            bar_X()
        for t4 in range(4):
            mm2(4 * n2 + t4)
        if cfg.pull0 <= n2 < cfg.pull0 + 4:
            m2 = n2 - cfg.pull0 + 7
            assert dn[0] >= 2 * m2 + 1
            rq.extend((2 * m2 + hf, dq) for hf in range(2) for dq in range(4))
    for k in range(4 * NM, 4 * NM + 2 * TL):
        mm2(k)
    assert not lq and not rq
    e.wait(lg='all')
    second = [lambda k=k: mm2(k) for k in range(4 * NM + 2 * TL, 44)]
    pw0 = part_write(e, PW, SLOT, 0)
    run(weave(second, pw0))
    if cfg.prioF2:
        e.I('s_setprio 0')
    st(e, 'f2end')
    pw1 = part_write(e, PW, SLOT, 1)
    run(pw1[:2])
    e.wait(lg=('pw', 0))
    e.I('s_barrier')
    run(pw1[2:])
    e.wait(lg='all')
    e.I('s_barrier')
    st(e, 'end')
    st.flush(e)
    e.I('s_endpgm')


def gen_A(e, cfg, st):
    LR, LI, L16, L128, L256, L16S, KAP, WV = 48, 49, 50, 52, 54, 56, 58, 60
    PP = 32
    SIDX = 3
    RE, IM = 64, 80
    XA, BA = 192, 204
    CV, CA, CA4, WDV = 96, 100, 104, 108
    EV0, EV1, EOOB, ERD, ECNT, EEXP, ONE, FLA, XW, XR, P16 = range(110, 121)
    SEL = 216
    RING0 = 144
    sHD, sHF, sES, sEL, sROT, sDTX = 86, 87, 90, 91, 92, 80
    sDC, sDB, sDE = 93, 94, 95
    e.I('v_lshlrev_b32 v1, 4, v0')
    e.I('v_and_b32 v21, 0x13, v0\nv_bfe_u32 v22, v0, 2, 1\nv_lshl_add_u32 v21, v22, 3, v21\nv_bfe_u32 v22, v0, 3, 1\nv_lshl_add_u32 v21, v22, 2, v21')
    e.I('s_lshl_b32 s%d, s%d, 6' % (T0, sCB))
    e.I('v_lshl_add_u32 v21, v21, 1, s%d' % T0)
    e.I('s_lshl_b32 s%d, s%d, 2\ns_add_u32 s%d, s%d, s%d\ns_lshl_b32 s%d, s%d, 4\ns_add_u32 s%d, s%d, s%d' %
        (T3, sRB, T3, T3, sW, T3, T3, T3, T3, sCB))
    e.I('s_lshl_b32 s%d, s%d, 11' % (T2, T3))
    frag_addr(e, BA, 4, 5)
    e.wait_smem()
    st(e, '_karg')
    mk_srd(e, SX, P_X, 2048 * 1024)
    mk_srd(e, SWS, P_WS, WS_SIZE)
    e.I('s_mov_b32 s%d, 0x%x\ns_lshl_b32 s%d, s%d, 6' % (T4, EPOCH_OFF, T0, sCB))
    e.I('s_load_dword s3, s[%d:%d], s%d' % (P_WS, P_WS + 1, T4))
    for p in (P_LRE, P_LIM, P_LDT):
        e.I('s_load_dword s3, s[%d:%d], s%d' % (p, p + 1, T0))
    e.I('s_lshr_b32 s%d, s2, 3\ns_lshl_b32 s%d, s%d, 2\ns_add_u32 s%d, s%d, s%d\ns_and_b32 s%d, s%d, 15\ns_lshl_b32 s%d, s%d, 6' %
        (T0, T0, T0, T0, T0, sW, T0, T0, T0, T0))
    for p in (P_GW, P_DSK):
        e.I('s_load_dword s3, s[%d:%d], s%d' % (p, p + 1, T0))
    if cfg.prewarm:
        code_touch(e, 'A')

    def small0():
        e.I('buffer_load_dword v19, off, %s, s%d sc1' % (srd(SWS), T4), tag='ep')
        e.I('global_load_ushort v16, v21, s[%d:%d]' % (P_LRE, P_LRE + 1), tag='par')
        e.I('global_load_ushort v17, v21, s[%d:%d]' % (P_LIM, P_LIM + 1), tag='par')
        e.I('global_load_ushort v18, v21, s[%d:%d]' % (P_LDT, P_LDT + 1), tag='par')

    small1 = [lambda: e.I('global_load_dwordx4 v[44:47], v1, s[%d:%d]' % (P_GW, P_GW + 1), tag='g'),
              lambda: e.I('buffer_load_dwordx4 v[36:39], v1, %s, s%d offen' % (srd(SX), T2), tag='g'),
              lambda: e.I('buffer_load_dwordx4 v[40:43], v1, %s, s%d offen offset:1024' % (srd(SX), T2), tag='g')]
    e.I('s_lshl_b32 s%d, s%d, 3\ns_add_u32 s%d, s%d, 0x%x' % (T6, T3, T6, T6, G_OFF))

    e.I('s_lshl_b32 s%d, s%d, 12' % (T0, sW))
    for s in range(4):
        e.I('v_add_u32 v%d, s%d, v%d' % (XA + s, T0, BA + s))
        e.I('v_add_u32 v%d, %d, v%d' % (XA + 4 + s, WIN, XA + s))
        e.I('v_add_u32 v%d, %d, v%d' % (BA + 4 + s, WIN, BA + s))
        if cfg.lag:
            e.I('v_add_u32 v%d, %d, v%d\nv_add_u32 v%d, %d, v%d' % (XA + 8 + s, 2 * WIN, XA + s, BA + 8 + s, 2 * WIN, BA + s))
    w_lane_offsets(e, cfg, WV, 24, 25)
    e.I('v_lshrrev_b32 v24, 5, v0\ns_lshl_b32 s%d, s%d, 1' % (T0, sW))
    e.I('v_add_u32 v%d, s%d, v24' % (SIDX, T0))
    rot2_calc(e, cfg, sROT, 0)
    if cfg.rotS:
        e.I('s_and_b32 s%d, s%d, %d\ns_lshl_b32 s%d, s%d, %d\ns_xor_b32 s%d, s%d, s%d' % (T0, sCT, cfg.rotS[0], T0, T0, cfg.rotS[1], sROT, sROT, T0))
    e.I('s_and_b32 s%d, s%d, 1\ns_lshr_b32 s%d, s%d, 1' % (sDTX, sROT, sROT, sROT))
    e.I('s_bitcmp1_b32 s%d, 0' % sROT)
    mk_srd_sel(e, SC1, P_CIM, P_CRE, 512 * 1024)
    mk_srd_sel(e, SC2, P_CRE, P_CIM, 512 * 1024)
    mk_srd(e, SWD, P_WD, 1376 * 1024)
    step_start(e, cfg, sDC, sDB, sDE, 15)
    e.I('s_cmp_ge_u32 s%d, 2' % sW)
    mk_srd_sel(e, SWA, P_WU, P_WG, 512 * 2752)
    e.I('s_lshl_b32 s%d, s%d, 2\ns_add_u32 s%d, s%d, s%d' % (T0, sRB, T0, T0, sW))
    HW_ = 16384 + cfg.hpad[0]
    HT_ = 4 * HW_ + cfg.hpad[1]
    assert H_OFF + 64 * HT_ <= E_OFF
    e.I('s_mul_i32 s%d, s%d, %d\ns_lshr_b32 s%d, s%d, 1\ns_lshl_b32 s%d, s%d, 13\ns_add_u32 s%d, s%d, s%d' %
        (sHD, T0, HT_, T1, sCB, T1, T1, sHD, sHD, T1))
    e.I('s_lshr_b32 s%d, s%d, 2\ns_mul_i32 s%d, s%d, %d\ns_add_u32 s%d, s%d, s%d' % (T1, sCB, T1, T1, cfg.hpad[0], sHD, sHD, T1))
    e.I('s_and_b32 s%d, s%d, 1\ns_lshl_b32 s%d, s%d, 11\ns_add_u32 s%d, s%d, s%d\ns_add_u32 s%d, s%d, 0x%x' %
        (T1, sCB, T1, T1, sHD, sHD, T1, sHD, sHD, H_OFF))
    e.I('s_lshr_b32 s%d, s%d, 1\ns_lshl_b32 s%d, s%d, 4\ns_add_u32 s%d, s%d, s%d\ns_lshl_b32 s%d, s%d, 1' %
        (T1, T0, T1, T1, T1, T1, sCB, T1, T1))
    e.I('s_and_b32 s%d, s%d, 1\ns_add_u32 s%d, s%d, s%d\ns_mul_i32 s%d, s%d, %d\ns_add_u32 s%d, s%d, 0x%x' %
        (T0, T0, T1, T1, T0, T1, T1, FS, sHF, T1, HF_OFF))
    e.I('s_lshl_b32 s%d, s%d, 13\ns_add_u32 s%d, s%d, 0x%x' % (sEL, sCB, sEL, sEL, E_OFF))
    e.I('s_lshl_b32 s%d, s%d, 9\ns_add_u32 s%d, s%d, s%d\ns_cmp_eq_u32 s%d, 0\ns_cselect_b32 s%d, s%d, 0x%x' %
        (sES, sRB, sES, sES, sEL, sW, sES, sES, OOB))
    e.I('s_sub_u32 s%d, s%d, 1024' % (sEL, sEL))

    tch = Touch(e, cfg, 'A')
    tch.setup()
    tch.at(-1)

    e.I('s_lshl_b32 s%d, s%d, 9\ns_add_u32 s%d, s%d, %d' % (T0, sW, T0, T0, L_E))
    e.I('v_lshl_add_u32 v%d, v0, 3, s%d' % (XW, T0))
    e.I('v_and_b32 v6, 31, v0\nv_lshlrev_b32 v%d, 4, v6\nv_lshlrev_b32 v6, 3, v6\nv_add_u32 v%d, %d, v6' % (P16, XR, L_E))
    e.I('v_and_b32 v4, 3, v0\nv_bfe_u32 v5, v0, 3, 2\nv_lshl_add_u32 v4, v5, 2, v4')
    e.I('v_bfe_u32 v5, v0, 2, 1\nv_lshrrev_b32 v6, 5, v0\nv_xor_b32 v5, v5, v6\nv_lshl_add_u32 v4, v5, 4, v4')
    e.I('v_and_b32 v5, 1, v0\nv_lshlrev_b32 v5, 4, v5\nv_mov_b32 v6, 0x3f80\nv_lshlrev_b32 v5, v5, v6\nv_lshrrev_b32 v4, 1, v4')
    for n in range(8):
        e.I('v_cmp_eq_u32 vcc, %d, v4\nv_cndmask_b32 v%d, 0, v5, vcc' % (n, SEL + n))
    e.I('v_and_b32 v6, 7, v0\nv_lshrrev_b32 v7, 4, v0\nv_xor_b32 v6, v6, v7\nv_lshlrev_b32 v6, 4, v6')
    e.I('v_lshrrev_b32 v7, 3, v0\nv_lshl_add_u32 v6, v7, 10, v6')
    e.I('s_lshl_b32 s%d, s%d, 16\ns_lshl_b32 s%d, s%d, 8\ns_add_u32 s%d, s%d, s%d' % (T0, sCT, T1, sW, T0, T0, T1))
    e.I('v_add_u32 v%d, s%d, v6\nv_xor_b32 v7, 64, v%d' % (CV, T0, CV))
    e.I('v_add_u32 v%d, 7168, v7\nv_add_u32 v%d, 14336, v%d\nv_add_u32 v%d, 21504, v7' % (CV + 1, CV + 2, CV, CV + 3))
    frag16_addr(e, CA, 6, 7)
    for s in range(2):
        e.I('v_add_u32 v%d, s%d, v%d' % (CA + s, sMW, CA + s))
        e.I('v_add_u32 v%d, %d, v%d' % (CA4 + s, 4 * SLOT, CA + s))
    HS = CA + 2
    e.I('v_and_b32 v6, 15, v0\nv_lshlrev_b32 v6, 4, v6\nv_bfe_u32 v7, v0, 4, 1\nv_lshl_add_u32 v6, v7, 10, v6')
    e.I('v_lshrrev_b32 v7, 5, v0\nv_lshl_add_u32 v%d, v7, 8, v6' % HS)
    e.I('s_lshr_b32 s88, s%d, 1\ns_lshl_b32 s88, s88, 7\ns_lshl_b32 s89, s%d, 15\ns_add_u32 s88, s88, s89\ns_xor_b32 s89, s88, 128' % (sROT, sDTX))
    e.I(wd_lane_offsets(e, WDV, 6, 7))
    e.I('s_lshl_b32 s%d, s%d, 2\ns_sub_u32 s%d, s%d, s%d\ns_sub_u32 s%d, s%d, 1\ns_lshl_b32 s%d, s%d, 11' % (T0, sW, T0, sRB, T0, T0, T0, T5, sW))
    e.I('v_lshrrev_b32 v6, 5, v0\nv_sub_u32 v7, s%d, v6' % T0)
    e.I('v_cmp_le_i32 vcc, 0, v7\nv_cmp_le_i32 s[%d:%d], 2, v7' % (sMB, sMB + 1))
    e.I('v_lshl_add_u32 v7, v7, 9, v%d\nv_add_u32 v7, 1024, v7\nv_subrev_u32 v5, 2048, v7\nv_mov_b32 v%d, 0x%x' % (P16, EOOB, OOB))
    e.I('v_cndmask_b32 v%d, v%d, v7, vcc\nv_cndmask_b32 v%d, v%d, v5, s[%d:%d]' % (EV0, EOOB, EV1, EOOB, sMB, sMB + 1))
    e.I('v_lshl_add_u32 v7, v6, 12, v%d\nv_add_u32 v%d, %d, v7' % (P16, ERD, L_EG))
    e.I('v_lshlrev_b32 v6, 3, v6\nv_sub_u32 v%d, s%d, v6\nv_med3_i32 v%d, v%d, 0, 8' % (ECNT, sRB, EEXP, ECNT))
    e.I('v_mov_b32 v%d, 1\nv_mov_b32 v%d, %d' % (ONE, FLA, L_FL))

    pro = []
    add = lambda t: [pro.append(lambda x=x: e.I(x)) for x in t.split('\n')]

    def csq(d, a):
        add('v_mul_f32 v30, v%d, v%d\nv_mul_f32 v31, v%d, v%d\nv_fma_f32 v%d, -v%d, v%d, v30\nv_add_f32 v%d, v31, v31' %
            (a, a, a, a + 1, d, a + 1, a + 1, d + 1))

    def cmul(d, a, b):
        add('v_mul_f32 v30, v%d, v%d\nv_mul_f32 v31, v%d, v%d\nv_fma_f32 v30, -v%d, v%d, v30\nv_fma_f32 v%d, v%d, v%d, v31\nv_mov_b32 v%d, v30' %
            (a, b, a, b + 1, a + 1, b + 1, d + 1, a + 1, b, d))

    pro.append(lambda: e.wait(vm=['ep', 'par']))
    add('v_readfirstlane_b32 s%d, v19' % sNONCE)
    add('v_lshlrev_b32 v16, 16, v16\nv_lshlrev_b32 v17, 16, v17\nv_lshlrev_b32 v18, 16, v18')
    add('s_add_u32 s%d, s%d, 0x%x\ns_or_b32 s%d, s%d, 1' % (sNONCE, sNONCE, PHI, sNONCE, sNONCE))
    add('v_mul_f32 v18, 0x%x, v18\nv_exp_f32 v18, v18\nv_cvt_pk_bf16_f32 v18, v18, v18\nv_lshlrev_b32 v18, 16, v18' % LOG2E)
    add('v_mul_f32 v21, v18, v16\nv_mul_f32 v22, v18, v17')
    add('v_mul_f32 v21, 0x%x, v21\nv_exp_f32 v21, v21' % LOG2E)
    add('v_mul_f32 v22, 0.15915494, v22\nv_rndne_f32 v23, v22\nv_sub_f32 v22, v22, v23\nv_sin_f32 v23, v22\nv_cos_f32 v22, v22')
    add('v_mul_f32 v%d, v21, v23\nv_mul_f32 v%d, v21, v22' % (LI, LR))
    add('v_mul_f32 v21, v16, v16\nv_fmac_f32 v21, v17, v17\nv_rcp_f32 v21, v21\nv_add_f32 v22, -1.0, v%d\nv_add_f32 v21, v21, v21' % LR)
    add('v_mul_f32 v23, v22, v16\nv_fmac_f32 v23, v%d, v17\nv_mul_f32 v%d, v23, v21' % (LI, KAP))
    add('v_mul_f32 v23, v%d, v16\nv_fma_f32 v23, -v22, v17, v23\nv_mul_f32 v%d, v23, v21' % (LI, KAP + 1))
    csq(22, LR); csq(22, 22); csq(22, 22); csq(L16, 22)
    csq(22, L16); csq(24, 22); csq(L128, 24); csq(L256, L128); csq(L256, L256); csq(L256, L256)
    for bit, src, dst in ((1, L16, L16S), (2, 22, 22), (4, 24, 24)):
        add('v_and_b32 v26, %d, v%d\nv_cmp_ne_u32 vcc, 0, v26' % (bit, SIDX))
        add('v_cndmask_b32 v%d, 1.0, v%d, vcc\nv_cndmask_b32 v%d, 0, v%d, vcc' % (dst, src, dst + 1, src + 1))
    cmul(L16S, L16S, 22); cmul(L16S, L16S, 24)
    add('v_mul_lo_u32 v%d, v%d, s%d\nv_mov_b32 v2, s%d' % (EEXP, EEXP, sNONCE, sNONCE))

    par, pro = pro, []
    pro.append(lambda: e.wait(vm='g'))
    for k in range(4):
        add('v_lshlrev_b32 v24, 16, v%d\nv_and_b32 v25, 0xffff0000, v%d' % (44 + k, 44 + k))
        for row in range(2):
            x = 36 + 4 * row + k
            add('v_lshlrev_b32 v26, 16, v%d\nv_and_b32 v27, 0xffff0000, v%d' % (x, x))
            add('v_mul_f32 v26, v26, v24\nv_mul_f32 v27, v27, v25\nv_cvt_pk_bf16_f32 v26, v26, v27')
            add('v_lshlrev_b32 v27, 16, v26\nv_and_b32 v26, 0xffff0000, v26')
            if k == 0:
                add('v_add_f32 v%d, v26, v27' % (28 + row))
            else:
                add('v_add_f32 v26, v26, v27\nv_add_f32 v%d, v%d, v26' % (28 + row, 28 + row))
    for mod in ('row_shr:1 row_mask:0xf', 'row_shr:2 row_mask:0xf', 'row_shr:4 row_mask:0xf', 'row_shr:8 row_mask:0xf',
                'row_bcast:15 row_mask:0xa', 'row_bcast:31 row_mask:0xc'):
        for row in range(2):
            add('v_add_f32_dpp v%d, v%d, v%d %s bank_mask:0xf' % (28 + row, 28 + row, 28 + row, mod))
    add('v_cvt_pk_bf16_f32 v26, v28, v29\nv_lshlrev_b32 v28, 16, v26\nv_and_b32 v29, 0xffff0000, v26')
    add('v_mul_f32 v28, 0x%x, v28\nv_mul_f32 v29, 0x%x, v29\nv_exp_f32 v28, v28\nv_exp_f32 v29, v29' % (NLOG2E, NLOG2E))
    add('v_add_f32 v28, 1.0, v28\nv_add_f32 v29, 1.0, v29\nv_rcp_f32 v28, v28\nv_rcp_f32 v29, v29')
    add('v_cvt_pk_bf16_f32 v26, v28, v29\nv_lshlrev_b32 v28, 16, v26\nv_and_b32 v29, 0xffff0000, v26')
    gate, pro = pro, par

    def g_store():
        e.I('s_mov_b32 exec_lo, 0\ns_mov_b32 exec_hi, 0x80000000')
        e.I('buffer_store_dwordx2 v[28:29], off, %s, s%d sc1' % (srd(SWS), T6), tag='gs')
        e.I('s_mov_b64 exec, -1')

    nbar = [0]

    def s_bar(i):
        assert nbar[0] == i
        nbar[0] += 1
        e.I('s_barrier')
        if i in (0, 7):
            st(e, 'b%d' % i)

    def s_read(n):
        i, s = n >> 2, n & 3
        slot = s_slot(i)
        if s == 0 and not cfg.lag:
            s_bar(i)
        assert nbar[0] > i
        off = (slot & 1) * SLOT
        b = RING0 + 12 * (n & 3)
        e.I('ds_read_b128 %s, v%d offset:%d' % (vr(b + 8, 4), XA + 4 * (slot >> 1) + s, off), tag=('s', n, 0))
        for part in range(2):
            e.I('ds_read_b128 %s, v%d offset:%d' % (vr(b + 4 * part, 4), BA + 4 * (slot >> 1) + s,
                                                    off + 16384 + part * 4096), tag=('s', n, part))

    def s_mm(n, part):
        e.wait(lg=('s', n, part))
        b = RING0 + 12 * (n & 3)
        mfma(e, RE + 16 * part, b + 8, b + 4 * part, n == 0)

    D = 2
    seq = []
    for n in range(32):
        seq.append(lambda n=n: (s_mm(n, 0), s_read(n + D) if n + D < 32 else None))
        seq.append(lambda n=n: s_mm(n, 1))
    st(e, '_pro')
    if cfg.lag:
        L = cfg.lag
        npar = len(pro) // max(L - 1, 1) + 1
        for i in range(L):
            s_bar(i)
            tch.at(10 + i)
            if i == 0:
                small0()
            if i >= 1:
                run(pro[(i - 1) * npar:i * npar])
        s_bar(L)
        for n in range(D):
            s_read(n)
        r2 = 2 * cfg.lagr
        for k, it in enumerate(seq):
            it()
            i = L + (k + 1) // r2
            if (k + 1) % r2 == 0 and i <= 7:
                assert (k + 1) // 2 >= 4 * (i - 3)
                s_bar(i)
    else:
        for n in range(D):
            s_read(n)
        p0 = 2 * cfg.smallpos
        run(seq[:p0])
        small0()
        run(seq[p0:p0 + 10])
        run(weave(seq[p0 + 10:56], pro) + seq[56:])
    assert nbar[0] == 8
    st(e, 's1end')
    if cfg.prioA:
        e.I('s_setprio %d' % cfg.prioA)

    def items(txt):
        return [lambda t=t: e.I(t) for t in txt.split('\n')]

    def cfma(d, l, a, c):
        return items('v_fma_f32 v%d, v%d, v%d, v%d\nv_fma_f32 v%d, v%d, v%d, v%d\nv_fma_f32 v%d, -v%d, v%d, v%d\nv_fmac_f32 v%d, v%d, v%d' %
                     (d, l, a, c, d + 1, l, a + 1, c + 1, d, l + 1, a + 1, d, d + 1, l + 1, a))

    prev = (RE, IM)
    for r in range(1, 16):
        cur = (20 + 2 * (r & 1), 21 + 2 * (r & 1))
        e.I('v_fma_f32 v%d, v%d, v%d, v%d' % (cur[0], LR, prev[0], RE + r))
        e.I('v_fma_f32 v%d, v%d, v%d, v%d' % (cur[1], LR, prev[1], IM + r))
        e.I('v_fma_f32 v%d, -v%d, v%d, v%d' % (cur[0], LI, prev[1], cur[0]))
        e.I('v_fmac_f32 v%d, v%d, v%d' % (cur[1], LI, prev[0]))
        prev = cur
    e.I('ds_write_b64 v%d, %s' % (XW, vr(prev[0], 2)), tag='ex')
    e.wait(lg='all')

    def c_reg(u, s2, dq):
        return 128 + 32 * u + 16 * s2 + 4 * dq

    CBUF = cfg.cbuf
    CPREV = {i: max(k for k in range(i) if CBUF[k] == CBUF[i]) for i in range(8) if CBUF[i] in CBUF[:i]}
    cdone = set()
    hdone = []

    def c_read(i):
        if i in cdone:
            return
        cdone.add(i)
        assert i < 4 or hdone
        e.wait(vm=('c', i))
        for s in range(4):
            a_, off = (CA4 + (s >> 1), 0) if CBUF[i] == 4 else (CA + (s >> 1), CBUF[i] * SLOT)
            e.I('ds_read_b128 %s, v%d offset:%d' % (vr(c_reg(i >> 1, s >> 1, 2 * (i & 1) + (s & 1)), 4), a_, off + (s & 1) * 2048), tag=('cr', i))

    def c_loads(i):
        u, dt = i >> 1, i & 1
        its = []
        for q in range(4):
            def f(q=q):
                if q == 0:
                    if i in CPREV:
                        c_read(CPREV[i])
                        e.wait(lg=('cr', CPREV[i]))
                    elif CBUF[i] != 4 and 6 + CBUF[i] > cfg.JL:
                        cnt_spin(e, 'L_cb%d' % i, FLA, 37, C_CONS + 28)
                    e.I('s_xor_b32 s%d, s%d, %d' % (sTD, 88 + (u >> 1), dt * 32768))
                set_m0(e, sMW, CBUF[i] * SLOT)
                e.I('buffer_load_dwordx4 v%d, %s, s%d offen offset:%d lds' % (CV + q, srd(SC2 if u & 1 else SC1), sTD, 1024 * q), tag=('c', i))
                if q == 3 and i >= 2:
                    c_read(i - 2)
            its.append(f)
        return its

    def d_loads(n):
        sl, pos = RING[n]
        its = []
        for q in range(2):
            def f(q=q):
                set_m0(e, sMW, sl * SLOT + pos * 2048)
                if q == 0 and n:
                    wd_next(e, n, sDC, sDB, sDE)
                e.I('buffer_load_dwordx4 v%d, %s, s%d offen offset:%d lds' % (WDV + q, srd(SWD), sDC, 1024 * q), tag='wd')
            its.append(f)
        return its

    wl = {j: dma_W(e, WV, SWA, j) for j in range(2, 8)}
    planned = set()

    def e_loads():
        its = []
        for q in range(2):
            def f(q=q):
                set_m0(e, T5, L_EG)
                e.I('buffer_load_dwordx4 v%d, %s, s%d offen offset:%d sc1 lds' % (EV0 + q, srd(SWS), sEL, 1024 * q), tag='eg')
            its.append(f)
        return its

    def expand(toks, k):
        r = []
        for t in toks.split(','):
            if not t:
                continue
            n = int(t[1])
            planned.add(t)
            if t[0] == 'W':
                assert n < 4 or k >= n - 2 or (n == 4 and cfg.w0pos is not None)
                r += wl[n][:3] if t[2:] == 'a' else wl[n][3:] if t[2:] == 'b' else wl[n]
            elif t[0] == 'C':
                assert CBUF[n] == 4 or k >= min(6 + CBUF[n], cfg.JL)
                assert k >= 2 or cfg.w0pos is None
                r += c_loads(n)
            elif t[0] == 'D':
                r += d_loads(n)
            elif t[0] == 'G':
                r += small1
            elif t[0] == 'E':
                r += e_loads()
            elif t[0] == 'T':
                r.append(lambda n=n: tch.at(n))
        return r

    def bar(k, extra=()):
        kk = 7 if k == cfg.JL else k
        assert kk < 2 or 'W%d' % kk in planned or 'W%db' % kk in planned or (kk == 2 and cfg.w0pos is not None)
        e.wait(vm=[('st', 8 + kk)] + list(extra))
        st(e, '_a%d' % k)
        e.I('s_barrier')
        st(e, '_d%d' % k)

    sc = []
    for r in range(16):
        sc += items('v_mul_f32 v4, v%d, v%d\nv_mul_f32 v5, v%d, v%d\nv_fma_f32 v%d, v%d, v%d, -v4\nv_fma_f32 v%d, v%d, v%d, v5' %
                    (KAP + 1, IM + r, KAP + 1, RE + r, RE + r, KAP, RE + r, IM + r, KAP, IM + r))
    early = sc
    run(early[:cfg.early])
    late = early[cfg.early:]
    bar(0)
    work = []
    for s in range(8):
        e.I('ds_read_b64 %s, v%d offset:%d' % (vr(4 + 2 * s, 2), XR, 256 * s), tag=('e', s))
    pf = []
    for s in range(1, 8):
        pf.append(lambda s=s: e.wait(lg=('e', s)))
        pf += cfma(4 + 2 * s, L16, 2 + 2 * s, 4 + 2 * s)
    segs = [sg.split('|') for sg in cfg.prog.split(';')]
    q0 = expand(segs[0][0], 0)
    run(weave(q0[:cfg.pren], pf))
    e.I('v_mov_b32 v20, s%d\nv_mov_b32 v21, s%d' % (sNONCE, sNONCE))
    e.I('s_mov_b32 exec_hi, 0')
    e.I('buffer_store_dwordx4 v[18:21], v%d, %s, s%d offen sc1' % (P16, srd(SWS), sES), tag='es')
    e.I('s_mov_b32 exec_hi, -1')
    st(e, 'epub')
    run(q0[cfg.pren:])
    gate.append(g_store)
    sel = items('v_mov_b32 v%d, 0\nv_mov_b32 v%d, 0' % (PP, PP + 1))
    for s in range(1, 8):
        sel.append(lambda s=s: e.I('v_cmp_eq_u32 vcc, %d, v%d\nv_cndmask_b32 v%d, v%d, v%d, vcc\nv_cndmask_b32 v%d, v%d, v%d, vcc' %
                                   (s, SIDX, PP, PP, 2 + 2 * s, PP + 1, PP + 1, 3 + 2 * s)))
    EG = 224

    def e_check():
        e.I('v_add3_u32 v4, v%d, v%d, v%d\nv_add3_u32 v5, v%d, v%d, v%d' % tuple(EG + 4 * k + 2 for k in range(6)))
        e.I('v_add3_u32 v4, v4, v%d, v%d\nv_add_u32 v4, v4, v5' % (EG + 26, EG + 30))
        e.I('v_cmp_ne_u32 vcc, v4, v%d' % EEXP)

    def e_verify():
        e.wait(lg='eg')
        e_check()
        e.I('s_cbranch_vccnz L_pollE')
        e.label('L_pollE_out')
        st(e, 'egot')
        with e.cold_block():
            e.label('L_pollE')
            e.I('s_mov_b32 s%d, 0' % sCNT)
            e.label('L_pollE_l')
            for k in range(8):
                e.I('v_subrev_u32 v4, %d, v%d\nv_cmp_le_i32 vcc, 2, v4\nv_lshl_add_u32 v4, v4, 9, v%d\nv_cndmask_b32 v4, v%d, v4, vcc' % (k - 1, ECNT, P16, EOOB))
                e.I('buffer_load_dwordx4 %s, v4, %s, s%d offen sc1' % (vr(EG + 4 * k, 4), srd(SWS), sEL))
            e.I('s_add_u32 s%d, s%d, 1' % (sCNT, sCNT))
            e.I('s_cmp_gt_u32 s%d, %d' % (sCNT, SPIN_MAX))
            e.wait(vm='all')
            e.I('s_cbranch_scc1 L_pollE_out')
            e_check()
            e.I('s_cbranch_vccnz L_pollE_l')
            e.I('s_branch L_pollE_out')

    def second_pass():
        p2 = []
        p2.append(lambda: [e.I('ds_read_b128 %s, v%d offset:%d' % (vr(EG + 4 * k, 4), ERD, 512 * k), tag='eg') for k in range(8)])
        p2.append(e_verify)
        for k in range(6, -1, -1):
            p2 += cfma(EG + 4 * k, L128, EG + 4 * k + 4, EG + 4 * k)
        p2 += items('v_mov_b32 v4, v%d\nv_mov_b32 v5, v%d\nv_permlane32_swap_b32 v4, v%d\nv_permlane32_swap_b32 v5, v%d' % (EG, EG + 1, EG, EG + 1))
        p2 += cfma(4, L256, EG, 4)
        p2 += cfma(PP, L16S, 4, PP)
        p2 += items('v_mul_f32 v6, v%d, v%d\nv_mul_f32 v7, v%d, v%d' % (KAP, PP, KAP, PP + 1))
        p2 += items('v_fma_f32 v6, -v%d, v%d, v6\nv_fmac_f32 v7, v%d, v%d' % (KAP + 1, PP + 1, KAP + 1, PP))
        prev = (6, 7)
        for r in range(16):
            p2 += items('v_fmac_f32 v%d, v%d, v%d\nv_fmac_f32 v%d, v%d, v%d\nv_fma_f32 v%d, -v%d, v%d, v%d\nv_fmac_f32 v%d, v%d, v%d' %
                        (RE + r, LR, prev[0], IM + r, LR, prev[1], RE + r, LI, prev[1], RE + r, IM + r, LI, prev[0]))
            prev = (RE + r, IM + r)
        return p2

    def store_h(loads):
        for part in range(2):
            for k in range(8):
                sg_ = '-' if part else ''
                e.I('v_cvt_pk_bf16_f32 v%d, %sv%d, %sv%d' % (8 + 8 * part + k, sg_, RE + 16 * part + 2 * k, sg_, RE + 16 * part + 2 * k + 1))
            for m in range(2):
                mfma(e, RE + 16 * part, 8 + 8 * part + 4 * m, SEL + 4 * m, m == 0)
        hdone.append(1)
        run(loads)
        e.I('s_add_u32 s%d, s%d, 4096' % (T0, sHD))
        for part in range(2):
            for m in range(2):
                o = 8 + 8 * part + 4 * m
                for k in range(4):
                    e.I('v_cvt_pk_bf16_f32 v%d, v%d, v%d' % (o + k, RE + 16 * part + 8 * m + 2 * k, RE + 16 * part + 8 * m + 2 * k + 1))
                hq.append(lambda o=o, part=part, m=m: e.I('buffer_store_dwordx4 %s, v%d, %s, s%d offen offset:%d sc1' %
                                                         (vr(o, 4), HS, srd(SWS), T0 if part else sHD, 512 * m), tag='hs'))
                if len(hq) <= cfg.hnow:
                    hq[-1]()

    hq = []
    p2 = second_pass()
    for k, (toks, work) in enumerate(segs):
        if k == 0:
            continue
        if k <= cfg.JL:
            bar(k, ['eg'] if work[:1] == 'P' else [])
        q = expand(toks, k)
        if work == 'sel':
            run(weave(q, sel + ([] if 'late' in cfg.prog else late)))
        elif work[:1] == 'g':
            hg = len(gate) // 2
            run(weave(q, gate if work == 'g' else gate[:hg] if work == 'g0' else gate[hg:]))
        elif work == 'late':
            run(weave(q, late))
        elif work[:1] == 'P':
            assert k <= cfg.JL or work != 'P0'
            part = p2 if work == 'P' else p2[:cfg.p2cut] if work == 'P0' else p2[cfg.p2cut:]
            run(part[:1] + (weave(q, part[1:]) if q else part[1:]))
        elif work == 'H':
            st(e, 'p2done')
            store_h(q)
        elif work == 'F':
            run(hq[cfg.hnow:])
            st(e, 'hst')
            run(q)
            e.wait(vm='hs')
            flag_store(e, 2, sHF)
            st(e, 'hflag')
        else:
            run(q)
    assert len(segs) > cfg.JL
    HV, PW = 6, 8
    rest = [i for i in range(8) if 'C%d' % i not in planned]
    run(c_loads(rest.pop(0)))
    e.I('s_mul_i32 s%d, s%d, %d\ns_mul_i32 s%d, s%d, %d\ns_add_u32 s%d, s%d, s%d\ns_add_u32 s%d, s%d, 0x%x' %
        (T0, sRT, 2 * HT_, T1, sW, HW_, T0, T0, T1, T0, T0, H_OFF))
    e.I('v_add_u32 v%d, s%d, v1\nv_add_u32 v%d, %d, v%d' % (HV, T0, HV + 1, HT_, HV))
    for u in range(4):
        e.I('s_xor_b32 s%d, s%d, %d\ns_lshl_b32 s%d, s%d, 12' % (93 + u, sROT, u, 93 + u, 93 + u))
    part_write_addr(e, PW, 12, 13, 16384, 4096, SPART)
    mk_srd(e, SOUT, P_OUT, 2048 * 2048)
    e.I('s_lshl_b32 s%d, s%d, 2\ns_add_u32 s%d, s%d, s%d\ns_mul_i32 s%d, s%d, %d\ns_add_u32 s%d, s%d, 0x%x' %
        (T0, sRT, T0, T0, sW, T0, T0, 8 * FS, T0, T0, HF_OFF))
    e.I('v_mul_u32_u24 v12, %d, v0\nv_mov_b32 v5, v2' % FS)

    def h_reg(k):
        return 16 + 4 * (k % 12)

    def h_load(k):
        n2, t4 = k >> 2, k & 3
        e.I('buffer_load_dwordx4 %s, v%d, %s, s%d offen offset:%d sc1' % (vr(h_reg(k), 4), HV + (t4 >> 1), srd(SWS), 93 + (n2 >> 1),
                                                                            2048 * (n2 & 1) + 1024 * (t4 & 1)), tag=('h', k))

    def c_finish():
        for i in range(8):
            c_read(i)
        e.wait(vm='wd')
        cnt_add(e, FLA, ONE, C_DONEA)
        st(e, 'cgot')

    while rest and rest[0] < cfg.hlook:
        run(c_loads(rest.pop(0)))
    if cfg.hlook > 8:
        c_finish()
    poll(e, 'L_pollH', 13, 12, T0, '0xff',
         lambda: ([run(c_loads(i)) for i in rest], c_finish() if cfg.hearly == 0 and cfg.hlook <= 8 else None))
    st(e, 'hrdy')
    XO, RA, GV, RF = 2, 3, 4, 14
    ROWS = (0, 4, 32, 36)
    XL, DL, GL, XD, PW1 = 128, 136, 138, 144, 10
    fin = items('s_lshl_b32 s%d, s%d, 3\ns_add_u32 s%d, s%d, s%d\ns_lshl_b32 s%d, s%d, 3' % (T0, sRT, T0, T0, sW, T0, T0))
    fin += items('v_lshrrev_b32 v12, 4, v0\nv_add_u32 v13, s%d, v12' % T0)
    fin += items('v_and_b32 v14, 15, v0\ns_lshl_b32 s%d, s%d, 7' % (T1, sCT))
    fin += items('v_lshl_add_u32 v1, v14, 3, s%d' % T1)
    fin += items('v_lshl_add_u32 v%d, v13, 10, v1' % XO)
    fin += items('v_lshlrev_b32 v%d, 2, v13\nv_add_u32 v%d, 0x%x, v%d' % (GV, GV, G_OFF, GV))
    fin += items('s_lshr_b32 s%d, s%d, 1\ns_lshl_b32 s%d, s%d, 2\ns_and_b32 s%d, s%d, 1\ns_lshl_b32 s%d, s%d, 11' % (T3, sW, T1, T3, T2, sW, T2, T2))
    fin += items('v_or_b32 v13, s%d, v12\nv_xor_b32 v13, v13, v14\nv_lshl_add_u32 v13, v13, 4, s%d\nv_lshl_add_u32 v13, v12, 8, v13' % (T1, T2))
    fin += items('s_lshl_b32 s%d, s%d, 14\ns_add_u32 s%d, s%d, %d\ns_mul_i32 s%d, s%d, %d' % (T1, T3, T1, T1, SPART, T2, T3, SLOT))
    fin += items('v_add_u32 v%d, s%d, v13\nv_add_u32 v%d, s%d, v13\nv_add_u32 v%d, %d, v%d' % (RA, T1, RF, T2, RF + 1, 2 * SLOT, RF))
    fin += items('s_lshl_b32 s%d, s%d, 7' % (T0, sDTX))
    for a in range(2):
        fin += items('v_xor_b32 v%d, s%d, v%d\nv_xor_b32 v%d, 0x80, v%d' % (PW + a, T0, PW + a, PW1 + a, PW + a))
    if cfg.posX < 0:
        run(fin)
    for k in range(cfg.NVA):
        if cfg.posX < 0 and k == -1 - cfg.posX:
            assert k >= cfg.hearly
            e.wait(lg='all')
            e.I('s_barrier')
        if k == cfg.hearly // 2 and k:
            c_read(6)
        if k == cfg.hearly and k:
            c_finish()
        h_load(k)
    e.wait(lg='all')
    if cfg.posX >= 0:
        run(fin)

    def fx_loads():
        e.I('global_load_dwordx2 %s, v1, s[%d:%d]' % (vr(DL, 2), P_DSK, P_DSK + 1), tag='fx')
        for n in range(4):
            e.I('s_mov_b32 s%d, %d' % (T2, 1024 * ROWS[n]))
            e.I('buffer_load_dwordx2 %s, v%d, %s, s%d offen' % (vr(XL + 2 * n, 2), XO, srd(SX), T2), tag='fx')

    def g_loads():
        for n in range(4):
            e.I('buffer_load_dword v%d, v%d, %s, 0 offen offset:%d sc1' % (GL + n, GV, srd(SWS), 4 * ROWS[n]), tag='fg')

    DU = 160
    xd = [lambda: e.wait(vm='fx')]
    xd += items('v_lshlrev_b32 v%d, 16, v%d\nv_and_b32 v%d, 0xffff0000, v%d\nv_lshlrev_b32 v%d, 16, v%d\nv_and_b32 v%d, 0xffff0000, v%d' %
                (DU, DL, DU + 1, DL, DU + 2, DL + 1, DU + 3, DL + 1))
    for n in range(4):
        for k in range(2):
            x = XL + 2 * n + k
            xd += items('v_lshlrev_b32 v12, 16, v%d\nv_and_b32 v13, 0xffff0000, v%d' % (x, x))
            xd += items('v_mul_f32 v12, v12, v%d\nv_mul_f32 v13, v13, v%d' % (DU + 2 * k, DU + 1 + 2 * k))
            xd += items('v_cvt_pk_bf16_f32 v13, v12, v13')
            xd += items('v_lshlrev_b32 v%d, 16, v13\nv_and_b32 v%d, 0xffff0000, v13' % (XD + 4 * n + 2 * k, XD + 4 * n + 2 * k + 1))
    xd += items('v_mov_b32 v12, %d\nv_mov_b32 v13, 1\nv_lshlrev_b32 v%d, 1, v%d' % (L_P2, XO, XO))

    def s2_step(k):
        n2, t4 = k >> 2, k & 3
        if k == 2 * cfg.posX:
            e.I('s_barrier')
        e.wait(vm=('h', k))
        for dq in range(4):
            mfma16(e, acc2(t4, dq), c_reg(n2 >> 1, n2 & 1, dq), h_reg(k), n2 == 0)
            if dq == (0 if cfg.NVA < 12 else 3) and k + cfg.NVA < 32:
                h_load(k + cfg.NVA)
        if k == 8:
            fx_loads()
        if k == max(8, 2 * cfg.posX):
            g_loads()
    steps = [lambda k=k: s2_step(k) for k in range(32)]
    if cfg.xdpos < 32:
        run(steps[:cfg.xdpos] + weave(steps[cfg.xdpos:], xd))
    else:
        run(steps + xd[-3:])
    st(e, 's2end')
    if cfg.posX == 16:
        e.I('s_barrier')
        g_loads()
    st(e, '_X')
    run(part_write(e, PW, 16384, 0, PW1) + part_write(e, PW, 16384, 1, PW1))
    cnt_add(e, 12, 13, 0)
    if cfg.xdpos >= 32:
        run(xd[:-1])
    OM = 164
    e.wait(vm='fg')
    for n in range(4):
        e.I('v_sub_f32 v%d, 1.0, v%d' % (OM + n, GL + n))
        e.I('v_cvt_pk_bf16_f32 v%d, v%d, v%d\nv_lshlrev_b32 v%d, 16, v%d' % (OM + n, OM + n, OM + n, OM + n, OM + n))
    for n in range(4):
        e.I('s_mov_b32 s%d, %d' % (T2 + n, 2048 * ROWS[n]))
    e.I('s_lshl_b32 s%d, s%d, 5\ns_add_u32 s%d, s%d, s%d\ns_lshl_b32 s%d, s%d, 8\ns_add_u32 s%d, s%d, s%d' %
        (T0, sCT, T0, T0, sRT, T1, sW, T0, T0, T1))
    e.I('s_cmp_eq_u32 s%d, 31\ns_cselect_b32 s%d, 0x%x, s%d' % (T0, T0, EPOCH_OFF, SWS + 2))
    flag_store(e, 5, T0)
    cnt_spin(e, 'L_spinM', 12, 16, 0)
    e.wait(lg='all')
    for n in range(4):
        for w in range(4):
            e.I('ds_read_b128 %s, v%d offset:%d' % (vr(64 + 16 * n + 4 * w, 4), RA, w * 4096 + (n & 1) * 1024 + (n >> 1) * 32768), tag=('r', n))
    BS = XD
    for n in range(4):
        e.wait(lg=('r', n))
        b = 64 + 16 * n
        for k in range(4):
            e.I('v_add_f32 v%d, v%d, v%d\nv_add_f32 v%d, v%d, v%d' % (b + k, b + k, b + 4 + k, b + 8 + k, b + 8 + k, b + 12 + k))
        for k in range(4):
            e.I('v_add_f32 v%d, v%d, v%d' % (b + k, b + k, b + 8 + k))
        for k in range(4):
            e.I('v_add_f32 v%d, v%d, v%d' % (b + k, b + k, XD + 4 * n + k))
        for k in range(4):
            e.I('v_mul_f32 v%d, v%d, v%d' % (BS + 4 * n + k, GL + n, b + k))
    st(e, 'pre')
    for half in range(2):
        e.I('s_barrier')
        st(e, 'Z' if half else '_Z0')
        for n in (2 * half, 2 * half + 1):
            for w in range(4):
                e.I('ds_read_b128 %s, v%d offset:%d' % (vr(64 + 16 * n + 4 * w, 4), RF + half, w * 6144 + (n & 1) * 1024), tag=('r', n))
        for n in (2 * half, 2 * half + 1):
            e.wait(lg=('r', n))
            b = 64 + 16 * n
            for k in (0, 2):
                e.I('v_pk_add_f32 %s, %s, %s' % (vr(b + k, 2), vr(b + k, 2), vr(b + 4 + k, 2)))
                e.I('v_pk_add_f32 %s, %s, %s' % (vr(b + 8 + k, 2), vr(b + 8 + k, 2), vr(b + 12 + k, 2)))
            for k in (0, 2):
                e.I('v_pk_add_f32 %s, %s, %s' % (vr(b + k, 2), vr(b + k, 2), vr(b + 8 + k, 2)))
            if cfg.mimic2:
                for rnd in range(2):
                    e.I('v_cvt_pk_bf16_f32 v%d, v%d, v%d\nv_cvt_pk_bf16_f32 v%d, v%d, v%d' % (b + 1, b, b + 1, b + 3, b + 2, b + 3))
                    for k in (0, 2):
                        e.I('v_lshlrev_b32 v%d, 16, v%d\nv_and_b32 v%d, 0xffff0000, v%d' % (b + k, b + k + 1, b + k + 1, b + k + 1))
                    if rnd == 0:
                        for k in range(4):
                            e.I('v_mul_f32 v%d, v%d, v%d' % (b + k, OM + n, b + k))
                for k in (0, 2):
                    e.I('v_pk_add_f32 %s, %s, %s' % (vr(b + k, 2), vr(b + k, 2), vr(BS + 4 * n + k, 2)))
            else:
                for k in range(4):
                    e.I('v_fma_f32 v%d, v%d, v%d, v%d' % (b + k, OM + n, b + k, BS + 4 * n + k))
            e.I('buffer_store_dwordx4 %s, v%d, %s, s%d offen %s' % (vr(b, 4), XO, srd(SOUT), T2 + n, cfg.outflags), tag='out')
    st(e, 'end')
    st.flush(e)


HEADER = open(os.path.join(os.path.dirname(os.path.abspath(__file__)), '..', 'cdna_kernels', BASE + '.s.ref')).read()


def generate(cfg):
    SLEEP[:] = cfg.sleep
    W_SLOT[0] = 0 if cfg.w0pos is None else 4
    S_SHIFT[0] = -1 if cfg.lag else 0 if cfg.w0pos is None else 1
    assert cfg.w0pos is None
    hdr = []
    for line in HEADER.split('\n'):
        if not line.startswith(';'):
            break
        if '@launch' in line:
            line = '; @launch grid=(256,1,1) block=(512,1,1) lds=%d' % LDS_BYTES
        hdr.append(line)
    stB = Stamps(cfg, [38, 6, 8, 14, 16, 18, 20, 22, 30, 32, 34, 4, 10, 12, 24, 26], 'B')
    stA = Stamps(cfg, [38, 10, 12, 22, 34, 24, 26, 6, 8, 18, 28, 14, 16, 30, 36, 4], 'A')
    e = Em()
    gen_entry(e, cfg, stB)
    stA.names = list(stB.names)
    eA = Em()
    eA.hist = list(e.hist)
    gen_B(e, cfg, stB)
    gen_A(eA, cfg, stA)
    txt = '\n'.join(hdr) + '\n'
    txt += '.amdgcn_target "amdgcn-amd-amdhsa--gfx950"\n.text\n.globl %s\n.p2align 8\n.type %s,@function\n%s:\n' % (NAME, NAME, NAME)
    txt += e.text() + '\n' + '\n'.join(e.cold) + '\n.p2align 6\nL_A:\n' + eA.text() + '\n    s_endpgm\n' + '\n'.join(eA.cold) + '\nL_end:\n    s_endpgm\n'
    txt += '''.section .rodata,"a"
.p2align 6
.amdhsa_kernel %s
  .amdhsa_next_free_vgpr 256
  .amdhsa_next_free_sgpr 102
  .amdhsa_accum_offset 256
  .amdhsa_group_segment_fixed_size 0
  .amdhsa_kernarg_size 136
  .amdhsa_user_sgpr_count 2
  .amdhsa_user_sgpr_kernarg_segment_ptr 1
  .amdhsa_system_sgpr_workgroup_id_x 1
  .amdhsa_float_denorm_mode_32 3
.end_amdhsa_kernel
''' % NAME
    info = dict(A=eA.count, B=e.count, nopsA=eA.nops, nopsB=e.nops, stampsA=stA.names, stampsB=stB.names)
    return txt, info


def cfg_from(args):
    cfg = Cfg()
    for a in args:
        k, v = a.split('=')
        setattr(cfg, k, eval(v))
    return cfg


if __name__ == '__main__':
    out = sys.argv[1]
    cfg = cfg_from(sys.argv[2:])
    txt, info = generate(cfg)
    open(out, 'w').write(txt)
    print(info)
```

```python
import sys, os
sys.path.insert(0, os.path.dirname(os.path.abspath(__file__)))
from em import Em, weave

BASE = 'gated_mix__ssm_conv_s5__swiglu_ffn__prompt'
NAME = BASE + '_kernel'

ACT_OFF = 0
H_OFF = 0x600000
E_OFF = 0xB00000
G_OFF = 0xB20000
HF_OFF = 0xB24000
AF_OFF = 0xB30000
EPOCH_OFF = 0xB48000
STAMP_OFF = 0xB50000
WS_SIZE = 0xB80000
OOB = 0x2000000
FS = 32
PHI = 0x9E3779B8

SLOT = 24576
WIN = 49152
SCR = 147456
SPART = 98304
L_E, L_FL, L_EG = SCR, SCR + 4096, SCR + 8192
L_P2 = 3 * SLOT + 4096
LDS_BYTES = 163840

P_X, P_LRE, P_LIM, P_BRE, P_BIM, P_CRE, P_CIM, P_LDT = 4, 6, 8, 10, 12, 14, 16, 18
P_DSK, P_BX, P_WG, P_WU, P_WD, P_GW, P_OUT, P_DBG, P_WS = 20, 22, 24, 26, 28, 30, 32, 34, 36
SX, SWS = 40, 44
SBM, SW, SWD = 48, 52, 56
SC1, SC2, SOUT, SCODE = 48, 52, 56, 60
SWA = 60
sWAVE, sW, sRB, sCB, sK0, sRT, sCT, sNONCE, sSG0 = 64, 65, 66, 67, 68, 69, 70, 71, 72
T0, T1, T2, T3, T4, T5, T6 = 73, 74, 75, 76, 77, 78, 79
sNL2E = 80
sMA, sMB = 82, 84
sTBL = 86
sCNT = 97
sTS, sTW, sTD = 98, 99, 100
sMX, sMBm = 60, 61
sMW = 101
SPIN_MAX = 200000

SLEEP = [0, 0]
LOG2E = 0x3fb8aa3b
NLOG2E = 0xbfb8aa3b


class Cfg:
    mimic = False
    mimic2 = False
    stamps = False
    rot1 = (2, 0, 2, 1)
    rot2 = 7
    rotF = 0
    rotS = None
    map2 = 84
    prewarm = True
    NT = 2
    early = 200
    w0pos = None
    s1a = 2
    smallpos = 2
    tlb = False
    pre_kernel = None
    lag = 0
    lagr = 4
    JL = 7
    prog = 'W2,G0|;W3,C0|sel;W4|g0;E0,W5,D0,D1,D2,D3|g1;W6|P0;W7|P1;C1|H;C2|F'
    p2cut = 50
    cbuf = (4, 0, 1, 4, 0, 1, 4, 0)
    tplan = ()
    zfill = True
    prioB = 0
    LA = 4
    posX = 8
    pren = 4
    hpad = (0, 0)
    hlook = 9
    hearly = 0
    hnow = 4
    sleep = (1, 1)
    skip = ''
    flagpos = (0, 0, 3)
    alook = 18
    abet = 3
    posXB = -17
    fine = True
    prioF2 = 1
    NVA = 11
    NV0 = (12, 0)
    xdpos = 32
    NV = 12
    TL = 2
    pull0 = 3
    outflags = 'sc1'
    selA = None
    selB = None
    prioA = 0
    amp = None


def srd(r):
    return 's[%d:%d]' % (r, r + 3)


def vr(a, n):
    return 'v[%d:%d]' % (a, a + n - 1) if n > 1 else 'v%d' % a


def mk_srd(e, r, p, nbytes):
    e.I('s_mov_b32 s%d, s%d\ns_mov_b32 s%d, s%d\ns_mov_b32 s%d, 0x%x\ns_mov_b32 s%d, 0x20000' %
        (r, p, r + 1, p + 1, r + 2, nbytes, r + 3))


def mk_srd_sel(e, r, p1, p0, nbytes):
    e.I('s_cselect_b32 s%d, s%d, s%d\ns_cselect_b32 s%d, s%d, s%d\ns_mov_b32 s%d, 0x%x\ns_mov_b32 s%d, 0x20000' %
        (r, p1, p0, r + 1, p1 + 1, p0 + 1, r + 2, nbytes, r + 3))


def mfma(e, d, a, b, first):
    e.I('v_mfma_f32_32x32x16_bf16 %s, %s, %s, %s' % (vr(d, 16), vr(a, 4), vr(b, 4), '0' if first else vr(d, 16)))


def mfma16(e, d, a, b, first):
    e.I('v_mfma_f32_16x16x32_bf16 %s, %s, %s, %s' % (vr(d, 4), vr(a, 4), vr(b, 4), '0' if first else vr(d, 4)))


class Stamps:
    def __init__(self, cfg, regs, role):
        self.amp = cfg.amp if cfg.amp else None
        self.role = role
        self.sel = (cfg.selA if role == 'A' else cfg.selB)
        if self.sel is not None:
            self.sel = self.sel.split(',')
        self.ins = 's_memtime' if cfg.stamps == 'cyc' else 's_memrealtime'
        self.on = cfg.stamps or bool(self.amp)
        self.regs = regs
        self.names = []

    def __call__(self, e, name):
        if not self.on:
            return
        if self.sel is not None:
            if name != 'start' and name not in self.sel:
                return
        elif name.startswith('_'):
            return
        r = self.regs[len(self.names)]
        self.names.append(name)
        if self.amp and name not in ('start', 'end', self.amp[1], self.amp[2]):
            return
        e.I('%s s[%d:%d]' % (self.ins, r, r + 1))

    def flush(self, e):
        if not self.on:
            return
        e.wait_smem()
        if self.amp:
            if self.amp[0] == self.role:
                R = dict(zip(self.names, self.regs))
                e.I('s_sub_u32 s%d, s%d, s%d\ns_mul_i32 s%d, s%d, %d\ns_min_u32 s%d, s%d, 50000' %
                    (T0, R[self.amp[2]], R[self.amp[1]], T0, T0, self.amp[3], T0, T0))
                e.label('L_amp')
                e.I('s_memrealtime s[%d:%d]' % (T1, T1 + 1))
                e.wait_smem()
                e.I('s_sub_u32 s%d, s%d, s%d\ns_cmp_lt_u32 s%d, s%d\ns_cbranch_scc1 L_amp' % (T1, T1, R['end'], T1, T0))
            return
        e.I('s_lshl_b32 s%d, s2, 3\ns_add_u32 s%d, s%d, s%d\ns_lshl_b32 s%d, s%d, 6\ns_add_u32 s%d, s%d, 0x%x' %
            (T0, T0, T0, sWAVE, T0, T0, T0, T0, STAMP_OFF))
        e.I('s_mov_b64 exec, 1')
        for k in range(len(self.names)):
            e.I('v_mov_b32 v2, s%d' % self.regs[k])
            e.I('buffer_store_dword v2, off, %s, s%d offset:%d' % (srd(SWS), T0, 4 * k))


def run(items):
    for it in items:
        it()


def poll(e, label, vt, vaddr, soff, mask, between=None):
    def look(tag=None):
        e.I('s_mov_b64 exec, %s' % mask)
        e.I('buffer_load_dword v%d, v%d, %s, s%d offen sc1' % (vt, vaddr, srd(SWS), soff), tag=tag)
        e.I('s_mov_b64 exec, -1')

    def check():
        e.I('v_cmp_ne_u32 vcc, s%d, v%d' % (sNONCE, vt))
        e.I('s_and_b64 vcc, vcc, %s' % mask)
    spin(e, label, look, check, between)


def spin(e, label, look, check, between):
    look('look')
    if between:
        between()
    e.wait(vm='look')
    check()
    e.I('s_cbranch_scc1 %s' % label)
    e.label(label + '_out')
    with e.cold_block():
        e.label(label)
        e.I('s_mov_b32 s%d, 0' % sCNT)
        e.label(label + '_l')
        if SLEEP[0]:
            e.I('s_sleep %d' % SLEEP[0])
        look()
        e.I('s_add_u32 s%d, s%d, 1' % (sCNT, sCNT))
        e.I('s_cmp_gt_u32 s%d, %d' % (sCNT, SPIN_MAX))
        e.wait(vm='all')
        e.I('s_cbranch_scc1 %s_out' % label)
        check()
        e.I('s_cbranch_scc1 %s_l' % label)
        e.I('s_branch %s_out' % label)


def code_touch(e, tag):
    e.I('s_getpc_b64 s[%d:%d]' % (sMA, sMA + 1))
    e.label('L_pc' + tag)
    e.I('s_sub_u32 s%d, s%d, L_pc%s-%s\ns_subb_u32 s%d, s%d, 0' % (sMA, sMA, tag, NAME, sMA + 1, sMA + 1))
    e.I('s_and_b32 s%d, s2, 0xf8\ns_add_u32 s%d, s%d, s%d\ns_lshl_b32 s%d, s%d, 6' % (T0, T0, T0, sWAVE, T0, T0))
    e.I('s_load_dword s3, s[%d:%d], s%d' % (sMA, sMA + 1, T0))
    e.I('s_add_u32 s%d, s%d, 16384\ns_min_u32 s%d, s%d, L_end-%s' % (T0, T0, T0, T0, NAME))
    e.I('s_load_dword s3, s[%d:%d], s%d' % (sMA, sMA + 1, T0))


def rot2_calc(e, cfg, dst, b):
    e.I('s_mul_i32 s%d, s%d, %d' % (dst, sCT, b))
    for k in range(1 if cfg.map2 == 84 else 2):
        e.I('s_add_u32 s%d, s%d, s%d' % (dst, dst, sRT))
    e.I('s_and_b32 s%d, s%d, %d' % (dst, dst, cfg.rot2))


def step_start(e, cfg, cur, beg, end, shift):
    rot2_calc(e, cfg, cur, cfg.rotF)
    e.I('s_cmp_eq_u32 s%d, 3\ns_cselect_b32 s%d, 10, 11' % (sW, end))
    e.I('s_mul_i32 s%d, s%d, s%d\ns_lshr_b32 s%d, s%d, 3\ns_mul_i32 s%d, s%d, 11' % (cur, cur, end, cur, cur, beg, sW))
    e.I('s_add_u32 s%d, s%d, s%d\ns_add_u32 s%d, s%d, s%d' % (cur, cur, beg, end, end, beg))
    for r in (cur, beg, end):
        e.I('s_lshl_b32 s%d, s%d, %d' % (r, r, shift))


def step_next(e, cur, beg, end, inc, wrap=True, last=False):
    e.I('s_add_u32 s%d, s%d, %d' % (cur, cur, inc))
    if wrap:
        e.I('s_cmp_eq_u32 s%d, s%d\ns_cselect_b32 s%d, s%d, s%d' % (cur, end, cur, beg, cur))
    if last:
        e.I('s_cmp_eq_u32 s%d, 3\ns_cselect_b32 s%d, 0x%x, s%d' % (sW, cur, OOB, cur))


def wd_next(e, n, cur, beg, end):
    step_next(e, cur, beg, end, 16384, n % 2 == 0, n == 20)


def set_m0(e, base, off):
    if getattr(e, 'm0', None) != (base, off):
        e.I('s_add_u32 m0, s%d, %d' % (base, off))
        e.m0 = (base, off)


def wd_lane_offsets(e, WDV, t0, t1):
    txt = 'v_lshrrev_b32 v%d, 4, v0\nv_lshlrev_b32 v%d, 1, v%d\nv_and_b32 v%d, 7, v0\nv_xor_b32 v%d, v%d, v%d\nv_lshlrev_b32 v%d, 4, v%d\n' % (
        t0, t0, t0, t1, t0, t0, t1, t0, t0)
    txt += 'v_lshrrev_b32 v%d, 3, v0\nv_lshl_add_u32 v%d, v%d, 10, v%d\n' % (t1, t0, t1, t0)
    txt += 's_lshl_b32 s%d, s%d, 7\n' % (T0, sCT)
    txt += 'v_add_u32 v%d, s%d, v%d\nv_add_u32 v%d, 7168, v%d' % (WDV, T0, t0, WDV + 1, WDV)
    return txt


RING = [(5, n) for n in range(3)] + [(4, 2)] + [(2 + n // 3, n % 3) for n in range(6)] + [(4, n) for n in range(2)] \
    + [(n // 3, n % 3) for n in range(6)] + [(2, n) for n in range(3)] + [(3, 0)]
PREV = {18: 4, 19: 5, 20: 6, 21: 7}


class Touch:
    def __init__(self, e, cfg, role):
        self.e, self.role = e, role
        self.plan = [p for p in cfg.tplan if p[0] == role]
        it = []
        for par in range(2):
            for p in (P_CRE, P_CIM):
                it += [(p, 128 * k + 64 * par) for k in range(4)]
        for par in range(2):
            it += [(P_WD, 128 * k + 64 * par) for k in range(11)]
        self.items = it

    def setup(self):
        if not self.plan:
            return
        e = self.e
        used = {self.items[k][0] for p in self.plan for k in range(p[2], p[3])}
        e.I('s_lshl_b32 s%d, s2, 2\ns_add_u32 s%d, s%d, s%d' % (T0, T0, T0, sW))
        for p in sorted(used):
            e.I('s_mul_i32 s%d, s%d, %d' % (T1, T0, 1376 if p == P_WD else 512))
            e.I('s_add_u32 s%d, s%d, s%d\ns_addc_u32 s%d, s%d, 0' % (p, p, T1, p + 1, p + 1))

    def at(self, place):
        for p in self.plan:
            if p[1] == place:
                for k in range(p[2], p[3]):
                    self.e.I('s_load_dword s3, s[%d:%d], %d' % (self.items[k][0], self.items[k][0] + 1, self.items[k][1]))


def flag_store(e, vt, soff, imm=0):
    e.I('s_mov_b64 exec, 1')
    e.I('buffer_store_dword v%d, off, %s, s%d offset:%d sc1' % (vt, srd(SWS), soff, imm), tag='flag')
    e.I('s_mov_b64 exec, -1')


def frag_addr(e, dst, t0, t1):
    e.I('v_lshrrev_b32 v%d, 5, v0' % t0)
    e.I('v_bfe_u32 v%d, v0, 1, 3' % t1)
    e.I('v_xor_b32 v%d, v%d, v%d' % (t0, t0, t1))
    e.I('v_and_b32 v%d, 31, v0' % t1)
    e.I('v_lshlrev_b32 v%d, 7, v%d' % (t1, t1))
    e.I('v_lshl_add_u32 v%d, v%d, 4, v%d' % (dst, t0, t1))
    for s in range(1, 4):
        e.I('v_xor_b32 v%d, %d, v%d' % (dst + s, 32 * s, dst))


def frag16_addr(e, dst, t0, t1):
    e.I('v_lshrrev_b32 v%d, 4, v0' % t0)
    e.I('v_bfe_u32 v%d, v0, 1, 3' % t1)
    e.I('v_xor_b32 v%d, v%d, v%d' % (t0, t0, t1))
    e.I('v_and_b32 v%d, 15, v0' % t1)
    e.I('v_lshlrev_b32 v%d, 7, v%d' % (t1, t1))
    e.I('v_lshl_add_u32 v%d, v%d, 4, v%d' % (dst, t0, t1))
    e.I('v_xor_b32 v%d, 64, v%d' % (dst + 1, dst))


def w_tr_addr(e, d, t0, t1):
    e.I('v_lshrrev_b32 v%d, 4, v0' % t0)
    e.I('v_bfe_u32 v%d, v0, 2, 2' % t1)
    e.I('v_lshl_add_u32 v%d, v%d, 3, v%d' % (t0, t0, t1))
    e.I('v_mul_u32_u24 v%d, 192, v%d' % (t0, t0))
    e.I('v_bfe_u32 v%d, v0, 4, 1' % t1)
    e.I('v_lshl_add_u32 v%d, v%d, 5, v%d' % (t0, t1, t0))
    e.I('v_and_b32 v%d, 3, v0' % t1)
    e.I('v_lshl_add_u32 v%d, v%d, 3, v%d' % (d, t1, t0))
    e.I('v_xor_b32 v%d, 32, v%d' % (d + 1, d))
    e.I('v_add_u32 v%d, %d, v%d\nv_add_u32 v%d, %d, v%d' % (d + 2, WIN, d, d + 3, WIN, d + 1))


W_SLOT = [0, 1, 2, 3, 0, 1, 2, 3]
S_SHIFT = [0]


def s_slot(i):
    return (i + 4) % 6 if S_SHIFT[0] < 0 else (i + S_SHIFT[0]) % 4


def w_frag_read(e, dst, wa, j, s2, g, mat, fh, mm, tag):
    slot = W_SLOT[j]
    off = (slot & 1) * SLOT + mat * 12288 + (32 * s2 + 4 * mm) * 192 + g * 64
    e.I('ds_read_b64_tr_b16 %s, v%d offset:%d' % (vr(dst + 2 * mm, 2), wa + 2 * (slot >> 1) + fh, off), tag=tag)


def act_items(e, cfg, G, U, tmp, out):
    items = []
    add = lambda t: items.append(lambda t=t: e.I(t))
    for b in range(2):
        g, u, o = G + 8 * b, U + 8 * b, out + 4 * b
        if cfg.mimic:
            for src in (g, u):
                for p in range(4):
                    add('v_cvt_pk_bf16_f32 v%d, v%d, v%d' % (tmp + p, src + 2 * p, src + 2 * p + 1))
                for p in range(4):
                    add('v_lshlrev_b32 v%d, 16, v%d' % (src + 2 * p, tmp + p))
                    add('v_and_b32 v%d, 0xffff0000, v%d' % (src + 2 * p + 1, tmp + p))
        for p in range(4):
            add('v_pk_mul_f32 %s, %s, s[%d:%d]' % (vr(tmp + 2 * p, 2), vr(g + 2 * p, 2), sNL2E, sNL2E + 1))
        for p in range(8):
            add('v_exp_f32 v%d, v%d' % (tmp + p, tmp + p))
        for p in range(4):
            add('v_pk_add_f32 %s, %s, 1.0 op_sel_hi:[1,0]' % (vr(tmp + 2 * p, 2), vr(tmp + 2 * p, 2)))
        for p in range(8):
            add('v_rcp_f32 v%d, v%d' % (tmp + p, tmp + p))
        for p in range(4):
            add('v_pk_mul_f32 %s, %s, %s' % (vr(g + 2 * p, 2), vr(g + 2 * p, 2), vr(tmp + 2 * p, 2)))
        if cfg.mimic:
            for p in range(4):
                add('v_cvt_pk_bf16_f32 v%d, v%d, v%d' % (tmp + p, g + 2 * p, g + 2 * p + 1))
            for p in range(4):
                add('v_lshlrev_b32 v%d, 16, v%d' % (g + 2 * p, tmp + p))
                add('v_and_b32 v%d, 0xffff0000, v%d' % (g + 2 * p + 1, tmp + p))
        for p in range(4):
            add('v_pk_mul_f32 %s, %s, %s' % (vr(u + 2 * p, 2), vr(g + 2 * p, 2), vr(u + 2 * p, 2)))
        for p in range(4):
            add('v_cvt_pk_bf16_f32 v%d, v%d, v%d' % (o + p, u + 2 * p, u + 2 * p + 1))
    return items


def act_items_scalar(e, cfg, G, U, tmp, out):
    if cfg.mimic:
        return act_items(e, cfg, G, U, tmp, out)
    items = []
    add = lambda t: items.append(lambda t=t: e.I(t))
    for b in range(4):
        g, u, o = G + 4 * b, U + 4 * b, out + 2 * b
        for p in range(4):
            add('v_mul_f32 v%d, s%d, v%d' % (tmp + p, sNL2E, g + p))
        for p in range(4):
            add('v_exp_f32 v%d, v%d' % (tmp + p, tmp + p))
            add('v_mul_f32 v%d, v%d, v%d' % (u + p, g + p, u + p))
        for p in range(4):
            add('v_add_f32 v%d, 1.0, v%d' % (tmp + p, tmp + p))
        for p in range(4):
            add('v_rcp_f32 v%d, v%d' % (tmp + p, tmp + p))
        for p in range(4):
            add('v_mul_f32 v%d, v%d, v%d' % (u + p, tmp + p, u + p))
        for p in range(2):
            add('v_cvt_pk_bf16_f32 v%d, v%d, v%d' % (o + p, u + 2 * p, u + 2 * p + 1))
    return items


def light_scc(e):
    e.I('s_and_b32 s%d, s%d, 3\ns_cmp_eq_u32 s%d, 3\ns_cselect_b32 s%d, 14, s%d\ns_cmp_eq_u32 s%d, 14' % (T0, sCB, T0, T0, sCB, T0))


def w_lane_offsets(e, cfg, WV, t0, t1):
    if cfg.zfill:
        light_scc(e)
        e.I('s_cselect_b32 s%d, 8, 12' % sTW)
    e.I('s_and_b32 s%d, s%d, 1' % (T1, sW))
    e.I('s_mul_i32 s%d, s%d, %d\ns_lshl_b32 s%d, s%d, 6\ns_add_u32 s%d, s%d, s%d' % (T0, T1, 32 * 2752, T1, sSG0, T0, T0, T1))
    for q in range(3):
        e.I('v_add_u32 v%d, %d, v0\nv_mul_u32_u24 v%d, 171, v%d\nv_lshrrev_b32 v%d, 11, v%d' % (t1, 64 * q, t0, t1, t0, t0))
        if cfg.zfill:
            e.I('v_mul_u32_u24 v%d, 12, v%d\nv_sub_u32 v%d, v%d, v%d\nv_cmp_gt_u32 vcc, s%d, v%d' % (WV + q, t0, t1, t1, WV + q, sTW, t1))
        e.I('v_lshrrev_b32 v%d, 3, v%d\nv_lshlrev_b32 v%d, 1, v%d\nv_xor_b32 v%d, v0, v%d' % (t1, t0, t1, t1, t1, t1))
        e.I('v_mul_u32_u24 v%d, %d, v%d' % (t0, 2752 - 192, t0))
        e.I('v_lshl_add_u32 v%d, v%d, 4, v%d' % (t0, t1, t0))
        e.I('v_add_u32 v%d, s%d, v%d' % (WV + q, T0, t0))
        if cfg.zfill:
            e.I('v_mov_b32 v%d, 0x%x\nv_cndmask_b32 v%d, v%d, v%d, vcc' % (t0, OOB, WV + q, t0, WV + q))
    e.I('s_mul_i32 s%d, s%d, 6144' % (sMW, sW))


def dma_W(e, WV, SWR, j):
    slot = W_SLOT[j] * SLOT
    its = []
    for grp in range(2):
        for q in range(3):
            def f(grp=grp, q=q):
                set_m0(e, sMW, slot + grp * 3072)
                if q == 0 and grp == 0:
                    e.I('s_add_u32 s%d, s%d, %d\ns_and_b32 s%d, s%d, 7\ns_mul_i32 s%d, s%d, %d' %
                        (sTW, sK0, j, sTW, sTW, sTW, sTW, 64 * 2752))
                if q == 0 and grp == 1:
                    e.I('s_add_u32 s%d, s%d, %d' % (sTW, sTW, 16 * 2752))
                e.I('buffer_load_dwordx4 v%d, %s, s%d offen offset:%d lds' % (WV + q, srd(SWR), sTW, 1024 * q), tag=('st', 8 + j))
            its.append(f)
    return its


C_LAND, C_CONS, C_Q, C_DONEA = 0, 32, 64, 68


def cnt_add(e, va, vone, off):
    e.I('s_mov_b64 exec, 1')
    e.I('ds_add_u32 v%d, v%d offset:%d' % (va, vone, off), tag='sig')
    e.I('s_mov_b64 exec, -1')


def cnt_look(e, va, vt, off, tag):
    e.I('ds_read_b32 v%d, v%d offset:%d' % (vt, va, off), tag=tag)


def cnt_check(e, label, va, vt, off, tag):
    e.wait(lg=tag)
    e.I('v_cmp_ne_u32 vcc, 4, v%d' % vt)
    e.I('s_cbranch_vccnz %s' % label)
    e.label(label + '_out')
    with e.cold_block():
        e.label(label)
        e.I('s_mov_b32 s%d, 0' % sCNT)
        e.label(label + '_l')
        if SLEEP[1]:
            e.I('s_sleep %d' % SLEEP[1])
        cnt_look(e, va, vt, off, None)
        e.I('s_add_u32 s%d, s%d, 1' % (sCNT, sCNT))
        e.I('s_cmp_gt_u32 s%d, %d' % (sCNT, 20 * SPIN_MAX))
        e.wait(lg='all')
        e.I('s_cbranch_scc1 %s_out' % label)
        e.I('v_cmp_ne_u32 vcc, 4, v%d' % vt)
        e.I('s_cbranch_vccnz %s_l' % label)
        e.I('s_branch %s_out' % label)


def cnt_spin(e, label, va, vt, off):
    cnt_look(e, va, vt, off, 'look')
    cnt_check(e, label, va, vt, off, 'look')


def act_offsets(e, k, s_data, s_flag, valid_scc=False):
    e.I('s_lshl_b32 s%d, s%d, 2\ns_add_u32 s%d, s%d, s%d' % (T0, sRB, T0, T0, sW))
    e.I('s_mul_i32 s%d, s%d, 43\ns_add_u32 s%d, s%d, s%d\ns_add_u32 s%d, s%d, %d\ns_lshl_b32 s%d, s%d, 11' %
        (T1, T0, T1, T1, sSG0, T1, T1, k, s_data, T1))
    e.I('s_lshr_b32 s%d, s%d, 1\ns_mul_i32 s%d, s%d, 44\ns_add_u32 s%d, s%d, s%d\ns_add_u32 s%d, s%d, %d' %
        (T1, T0, T1, T1, T1, T1, sSG0, T1, T1, k))
    e.I('s_lshl_b32 s%d, s%d, 1\ns_and_b32 s%d, s%d, 1\ns_add_u32 s%d, s%d, s%d\ns_mul_i32 s%d, s%d, %d\ns_add_u32 s%d, s%d, 0x%x' %
        (T1, T1, T0, T0, T1, T1, T0, T1, T1, FS, s_flag, T1, AF_OFF))


def part_write_addr(e, dst, t0, t1, piece_stride, wave_stride, base):
    e.I('v_lshrrev_b32 v%d, 4, v0' % t0)
    e.I('v_and_b32 v%d, 7, v0' % t1)
    e.I('v_xor_b32 v%d, v%d, v%d' % (t0, t0, t1))
    e.I('v_lshlrev_b32 v%d, 4, v%d' % (dst, t0))
    e.I('v_bfe_u32 v%d, v0, 3, 1' % t0)
    e.I('v_and_b32 v%d, 3, v0' % t1)
    e.I('v_lshl_add_u32 v%d, v%d, 2, v%d' % (t0, t0, t1))
    e.I('v_lshl_add_u32 v%d, v%d, 8, v%d' % (dst, t0, dst))
    e.I('v_bfe_u32 v%d, v0, 2, 1' % t0)
    e.I('v_mul_u32_u24 v%d, %d, v%d' % (t0, piece_stride, t0))
    e.I('s_mul_i32 s%d, s%d, %d\ns_add_u32 s%d, s%d, %d' % (T0, sW, wave_stride, T0, T0, base))
    e.I('v_add3_u32 v%d, v%d, v%d, s%d' % (dst, dst, t0, T0))
    e.I('v_xor_b32 v%d, 64, v%d' % (dst + 1, dst))


def acc2(t4, dq):
    return 64 + 16 * t4 + 4 * dq


def part_write(e, addr, piece_stride, tt, addr1=None):
    its = []
    for a in range(2):
        for dq in range(4):
            ad_, off = (addr + (dq & 1), (dq >> 1) * 128) if addr1 is None or dq < 2 else (addr1 + (dq & 1), 0)
            its.append(lambda ad_=ad_, off=off, dq=dq, a=a:
                       e.I('ds_write_b128 v%d, %s offset:%d' % (ad_, vr(acc2(2 * tt + a, dq), 4), tt * 2 * piece_stride + a * 2048 + off), tag=('pw', tt)))
    return its


def gen_entry(e, cfg, st):
    e.I('s_cmp_ge_u32 s2, 256\ns_cbranch_scc1 L_end')
    e.I('s_load_dwordx16 s[4:19], s[0:1], 0\ns_load_dwordx16 s[20:35], s[0:1], 64\ns_load_dwordx2 s[36:37], s[0:1], 128')
    st(e, 'start')
    e.I('v_lshrrev_b32 v1, 6, v0\nv_and_b32 v0, 63, v0')
    e.I('v_readfirstlane_b32 s%d, v1' % sWAVE)
    e.I('s_and_b32 s%d, s2, 7\ns_lshr_b32 s%d, s2, 3' % (T0, T1))
    e.I('s_and_b32 s%d, s%d, 7\ns_lshr_b32 s%d, s%d, 3' % (T2, T1, T3, T1))
    e.I('s_and_b32 s%d, s%d, 1\ns_lshl_b32 s%d, s%d, 3\ns_add_u32 s%d, s%d, s%d' % (sRB, T0, sRB, sRB, sRB, sRB, T2))
    e.I('s_lshr_b32 s%d, s%d, 1' % (T4, T0))
    e.I('s_lshl_b32 s%d, s%d, 2\ns_add_u32 s%d, s%d, s%d' % (sCB, T4, sCB, sCB, T3))
    e.I('s_mul_i32 s%d, s%d, %d' % (sK0, T2, cfg.rot1[0]))
    for src, mul in zip((T3, T4, None), cfg.rot1[1:]):
        if mul:
            if src is None:
                e.I('s_and_b32 s%d, s%d, 1' % (T5, T0))
            e.I('s_mul_i32 s%d, s%d, %d\ns_add_u32 s%d, s%d, s%d' % (T5, T5 if src is None else src, mul, sK0, sK0, T5))
    e.I('s_and_b32 s%d, s%d, 7' % (sK0, sK0))
    e.I('s_mul_i32 s%d, s%d, 11\ns_mul_i32 s%d, s%d, 3\ns_add_u32 s%d, s%d, s%d' % (sSG0, T4, T5, T3, sSG0, sSG0, T5))
    e.I('s_cmp_eq_u32 s%d, 15\ns_subb_u32 s%d, s%d, 0' % (sCB, sSG0, sSG0))
    if cfg.map2 == 84:
        e.I('s_lshl_b32 s%d, s%d, 3\ns_add_u32 s%d, s%d, s%d' % (sRT, T4, sRT, sRT, T2))
        e.I('s_and_b32 s%d, s%d, 1\ns_lshl_b32 s%d, s%d, 2\ns_add_u32 s%d, s%d, s%d' % (sCT, T0, sCT, sCT, sCT, sCT, T3))
    else:
        e.I('s_lshl_b32 s%d, s%d, 2\ns_and_b32 s%d, s%d, 3\ns_add_u32 s%d, s%d, s%d\ns_lshr_b32 s%d, s%d, 2' %
            (sRT, T0, T5, T1, sRT, sRT, T5, sCT, T1))
    e.I('s_and_b32 s%d, s%d, 3' % (sW, sWAVE))
    e.I('s_cmp_lt_u32 s%d, 4\ns_cbranch_scc1 L_A' % sWAVE)


def gen_B(e, cfg, st):
    NPRE = cfg.prog.count('D')
    WA = 2
    EP = 42
    XV, BV, WV, XA = 32, 36, 38, 44
    e.I('v_lshrrev_b32 v8, 3, v0')
    e.I('v_and_b32 v9, 7, v0')
    e.I('v_lshrrev_b32 v10, 4, v0')
    e.I('v_xor_b32 v10, v9, v10\nv_lshlrev_b32 v10, 4, v10')
    e.I('v_lshrrev_b32 v11, 5, v0\nv_and_b32 v12, 3, v8\nv_lshl_add_u32 v11, v11, 4, v12')
    e.I('s_lshl_b32 s%d, s%d, 2\ns_add_u32 s%d, s%d, s%d\ns_lshl_b32 s%d, s%d, 15' % (T0, sRB, T0, T0, sW, T0, T0))
    e.I('v_lshl_add_u32 v11, v11, 10, s%d' % T0)
    e.I('v_add_u32 v%d, v11, v10' % XV)
    e.I('v_xor_b32 v13, 64, v%d' % XV)
    e.I('v_add_u32 v%d, 3072, v13\nv_add_u32 v%d, 6144, v%d\nv_add_u32 v%d, 9216, v13' % (XV + 1, XV + 2, XV, XV + 3))
    e.I('s_and_b32 s%d, s%d, 1' % (T1, sW))
    e.I('s_lshl_b32 s%d, s%d, 1\ns_add_u32 s%d, s%d, s%d\ns_lshl_b32 s%d, s%d, 14' % (T0, sCB, T0, T0, T1, T0, T0))
    e.I('v_lshrrev_b32 v11, 5, v0\nv_lshl_add_u32 v11, v11, 3, v12')
    e.I('v_lshl_add_u32 v11, v11, 10, s%d' % T0)
    e.I('v_add_u32 v%d, v11, v10' % BV)
    e.I('v_xor_b32 v13, 64, v%d\nv_add_u32 v%d, 3072, v13' % (BV, BV + 1))
    e.I('s_lshl_b32 s%d, s%d, 12' % (sMX, sW))
    e.I('s_lshl_b32 s%d, s%d, 11\ns_add_u32 s%d, s%d, 16384' % (sMBm, sW, sMBm, sMBm))
    e.I('s_lshl_b32 s%d, s%d, 7' % (T6, sK0))
    e.wait_smem()
    st(e, 'karg')
    mk_srd(e, SX, P_X, 2048 * 1024)
    e.I('s_cmp_ge_u32 s%d, 2' % sW)
    mk_srd_sel(e, SBM, P_BIM, P_BRE, 512 * 1024)

    def dma_S(i):
        slot = s_slot(i) * SLOT
        its = []
        for q in range(4):
            def f(q=q):
                if q == 0:
                    set_m0(e, sMX, slot)
                    e.I('s_add_u32 s%d, s%d, %d\ns_and_b32 s%d, s%d, 1023' % (sTS, T6, i * 128, sTS, sTS))
                e.I('buffer_load_dwordx4 v%d, %s, s%d offen offset:%d lds' % (XV + q, srd(SX), sTS, 1024 * q), tag=('st', i))
            its.append(f)
        for q in range(2):
            def f(q=q):
                if q == 0:
                    set_m0(e, sMBm, slot)
                e.I('buffer_load_dwordx4 v%d, %s, s%d offen offset:%d lds' % (BV + q, srd(SBM), sTS, 1024 * q), tag=('st', i))
            its.append(f)
        return its

    run(dma_S(0))
    st(e, 'dma0')
    s1 = dma_S(1)
    run(s1[:cfg.s1a])
    e.I('v_lshlrev_b32 v11, 2, v0\nv_add_u32 v11, %d, v11\nv_mov_b32 v12, 0' % L_FL)
    e.I('ds_write_b32 v11, v12', tag='init')
    if cfg.prewarm:
        code_touch(e, 'B')
    e.I('s_cmp_ge_u32 s%d, 2' % sW)
    mk_srd_sel(e, SW, P_WU, P_WG, 512 * 2752)
    mk_srd(e, SWS, P_WS, WS_SIZE)
    mk_srd(e, SWD, P_WD, 1376 * 1024)
    if cfg.tlb:
        for p in (P_WG, P_WU, P_WD, P_CRE, P_CIM, P_OUT):
            e.I('s_load_dword s3, s[%d:%d], 0' % (p, p + 1))
    w_lane_offsets(e, cfg, WV, 11, 12)
    frag16_addr(e, XA, 11, 12)
    for s in range(2):
        e.I('v_add_u32 v%d, s%d, v%d' % (XA + s, sMX, XA + s))
        e.I('v_add_u32 v%d, %d, v%d' % (XA + 2 + s, WIN, XA + s))
        if cfg.lag:
            e.I('v_add_u32 v%d, %d, v%d' % (XA + 4 + s, 2 * WIN, XA + s))
    w_tr_addr(e, WA, 11, 12)
    e.I('v_lshlrev_b32 v1, 4, v0')
    tch = Touch(e, cfg, 'B')
    tch.setup()
    tch.at(-1)

    sDC, sDB, sDE, sAC, sAB, sAE = 86, 87, 88, 89, 90, 91
    sD0, sF0, sD2, sF2 = T2, T3, T4, T5
    st(e, '_pro')
    sP0 = 92
    if isinstance(cfg.w0pos, tuple):
        tab = sum(p << (4 * r) for r, p in enumerate(cfg.w0pos))
        e.I('s_and_b32 s%d, s%d, 7\ns_lshl_b32 s%d, s%d, 2\ns_lshr_b32 s%d, 0x%x, s%d\ns_and_b32 s%d, s%d, 15' %
            (T0, sRB, T0, T0, sP0, tab, T0, sP0, sP0))

    def w0_hook(p):
        if cfg.w0pos == p:
            run(dma_W(e, WV, SW, 0))
        elif isinstance(cfg.w0pos, tuple) and p in cfg.w0pos:
            e.I('s_cmp_eq_u32 s%d, %d\ns_cbranch_scc1 L_w0_%d' % (sP0, p, p))
            e.label('L_w0_%d_out' % p)
            with e.cold_block():
                e.label('L_w0_%d' % p)
                run(dma_W(e, WV, SW, 0))
                e.I('s_branch L_w0_%d_out' % p)
            e.m0 = None
    run(s1[cfg.s1a:])
    st(e, '_dma1')
    w0_hook(1)
    e.wait(vm=('st', 0))
    st(e, '_sa0')
    e.I('s_barrier')
    st(e, 'b0')
    for i in range(8):
        if i == 1:
            e.I('s_mov_b32 s%d, 0x%x' % (T0, EPOCH_OFF))
            e.I('buffer_load_dword v%d, off, %s, s%d sc1' % (EP, srd(SWS), T0), tag='ep')
        if i < 6:
            run(dma_S(i + 2))
            w0_hook(i + 2)
        elif cfg.w0pos is None:
            run(dma_W(e, WV, SW, i - 6))
        elif i == 6 or 'W2' not in cfg.prog:
            run(dma_W(e, WV, SW, i - 5))
        for s in range(4):
            slot = s_slot(i)
            e.I('ds_read_b128 %s, v%d offset:%d' % (vr(128 + 4 * (4 * i + s), 4), XA + 2 * (slot >> 1) + (s >> 1), (slot & 1) * SLOT + (s & 1) * 2048), tag='x')
        if i == 4:
            e.wait(vm='ep')
            e.I('v_readfirstlane_b32 s%d, v%d' % (sNONCE, EP))
            e.I('s_add_u32 s%d, s%d, 0x%x\ns_or_b32 s%d, s%d, 1' % (sNONCE, sNONCE, PHI, sNONCE, sNONCE))
            e.I('s_mov_b32 s%d, 0x%x\ns_mov_b32 s%d, 0x%x' % (sNL2E, NLOG2E, sNL2E + 1, NLOG2E))
        if i == 2:
            step_start(e, cfg, sAC, sAB, sAE, 11)
        if i == 3:
            for k in range(3):
                e.I('s_lshl_b32 s%d, s%d, 4' % (sDC + k, sAC + k))
            for n in range(1, NPRE):
                wd_next(e, n, sDC, sDB, sDE)
        if i == 5:
            act_offsets(e, 0, sD0, sF0)
        if i == 6:
            e.I('s_add_u32 s%d, s%d, 4096\ns_add_u32 s%d, s%d, %d' % (sD2, sD0, sF2, sF0, 4 * FS))
            light_scc(e)
            e.I('s_cselect_b32 s%d, 0x%x, s%d\ns_cselect_b32 s%d, 0x%x, s%d' % (sD2, OOB, sD2, sF2, OOB, sF2))
            e.I('v_mov_b32 v7, %d\nv_mov_b32 v6, 1' % L_FL)
        if i < 7:
            e.wait(vm=('st', i + 1), lg='all')
            st(e, '_sa%d' % (i + 1))
            e.I('s_barrier')
            st(e, '_sd%d' % (i + 1))
            if i == 0:
                st(e, 'b1')
    NT = cfg.NT
    ops = []
    for j in range(8 - NT):
        for s in range(2):
            for g in range(3):
                for mf in range(4):
                    ops.append((j, s, g, mf))
    tail0 = len(ops)
    for g in range(3):
        for j in range(8 - NT, 8):
            for s in range(2):
                for mf in range(4):
                    ops.append((j, s, g, mf))
    NB, LA = 6, cfg.LA
    first = {j: min(q for q in range(len(ops)) if ops[q][0] == j) for j in range(8)}
    last = {j: max(q for q in range(len(ops)) if ops[q][0] == j) for j in range(8)}

    def rd(q, half):
        if q >= len(ops):
            return
        j, s, g, mf = ops[q]
        if q == first[j] and j <= cfg.JL and half == 0:
            e.wait(vm=('st', 8 + j), lg='x')
            st(e, '_a%d' % j)
            e.I('s_barrier')
            st(e, '_d%d' % j)
            if j in (0, 4, cfg.JL):
                st(e, 'b%d' % (8 + j))
            if j == 0 and cfg.prioB:
                e.I('s_setprio %d' % cfg.prioB)
        w_frag_read(e, 8 + 4 * (q % NB), WA, j, s, g, mf >> 1, mf & 1, half, ('wf', q))
        if q == last[7] and half == 1:
            cnt_add(e, 7, 6, C_CONS + 28)

    def mm(q, a):
        j, s, g, mf = ops[q]
        if a == 0 and q % 2 == 0:
            e.wait(lg=('wf', q + 1))
        mfma16(e, 32 + 32 * g + 16 * (mf >> 1) + 8 * a + 4 * (mf & 1), 8 + 4 * (q % NB), 128 + 16 * j + 8 * s + 4 * a, j == 0 and s == 0)
        rd(q + LA, a)

    def act_store(k):
        for m in range(2):
            e.I('buffer_store_dwordx4 %s, v1, %s, s%d offen offset:%d sc1' %
                (vr(136 + 8 * k + 4 * m, 4), srd(SWS), sD2 if k == 2 else sD0, 1024 * m + (2048 if k == 1 else 0)), tag=('as', k))

    def act_flag(k):
        e.wait(vm=('as', k))
        flag_store(e, EP, sF2 if k == 2 else sF0, 2 * FS if k == 1 else 0)

    for q in range(LA):
        rd(q, 0)
        rd(q, 1)
    per = 8 * NT
    for q in range(tail0 + per):
        mm(q, 0)
        mm(q, 1)
    flagged = 0
    if NT:
        for g in (1, 2):
            main = [lambda q=q, a=a: mm(q, a) for q in range(tail0 + g * per, tail0 + (g + 1) * per) for a in range(2)]
            fill = act_items_scalar(e, cfg, 32 * g, 32 * g + 16, 128, 136 + 8 * (g - 1)) + [lambda g=g: act_store(g - 1)]
            run(main[:3] + weave(main[3:], fill))
        st(e, 'f1end')
        run(act_items(e, cfg, 96, 112, 128, 152))
        act_store(2)
    else:
        st(e, 'f1end')
        for g in range(3):
            run(act_items(e, cfg, 32 + 32 * g, 48 + 32 * g, 128, 136 + 8 * g))
            act_store(g)
    if cfg.prioB:
        e.I('s_setprio 0')
    st(e, 'actst')
    DA, AV, PW, WDV, EP = 2, 14, 16, 18, 23
    e.I('v_mov_b32 v%d, s%d' % (EP, sNONCE))
    e.I(wd_lane_offsets(e, WDV, 20, 21))
    e.I('v_mov_b32 v22, %d' % L_FL)
    cnt_spin(e, 'L_spinB', 22, 24, C_CONS + 28)
    st(e, 'ldsfree')

    def dma_D(n):
        sl, pos = RING[n]
        if n in PREV:
            e.wait(lg=('wr', PREV[n]))
        set_m0(e, sMW, sl * SLOT + pos * 2048)
        if n:
            wd_next(e, n, sDC, sDB, sDE)
        for q in range(2):
            e.I('buffer_load_dwordx4 v%d, %s, s%d offen offset:%d lds' % (WDV + q, srd(SWD), sDC, 1024 * q), tag=('wd', n))

    def wd_reg(n2):
        return 128 + 16 * n2 if n2 < 5 else 32 + 16 * (n2 - 5) if n2 < 7 else 128 + 16 * (n2 - 7)

    def wd_read(n, dqs=range(4)):
        sl, pos = RING[n]
        e.wait(vm=('wd', n))
        for dq in dqs:
            e.I('ds_read_b64_tr_b16 %s, v%d offset:%d' % (vr(wd_reg(n >> 1) + 4 * dq + 2 * (n & 1), 2), DA + 4 * (sl >> 1) + dq,
                                                         (sl & 1) * SLOT + pos * 2048), tag=('wr', n))

    def setup2():
        e.I('v_lshrrev_b32 v20, 2, v0\nv_lshlrev_b32 v20, 7, v20\nv_bfe_u32 v21, v0, 3, 2\nv_lshl_add_u32 v20, v21, 5, v20')
        e.I('v_and_b32 v21, 3, v0\nv_lshl_add_u32 v20, v21, 3, v20\nv_add_u32 v%d, s%d, v20' % (DA, sMW))
        for dq in range(1, 4):
            e.I('v_xor_b32 v%d, %d, v%d' % (DA + dq, 32 * dq, DA))
        for k in (1, 2):
            for dq in range(4):
                e.I('v_add_u32 v%d, %d, v%d' % (DA + 4 * k + dq, k * WIN, DA + dq))
        e.I('s_mul_i32 s%d, s%d, %d' % (T0, sRT, 2 * 88064))
        e.I('v_add_u32 v%d, s%d, v1\nv_add_u32 v%d, 88064, v%d' % (AV, T0, AV + 1, AV))
        part_write_addr(e, PW, 20, 21, SLOT, 6144, 0)
        e.I('s_mul_i32 s%d, s%d, 44\ns_mul_i32 s%d, s%d, 11\ns_add_u32 s%d, s%d, s%d\ns_mul_i32 s%d, s%d, %d\ns_add_u32 s%d, s%d, 0x%x' %
            (T0, sRT, T1, sW, T0, T0, T1, T0, T0, 2 * FS, T0, T0, AF_OFF))
        e.I('v_mul_u32_u24 v20, %d, v0' % FS)
        e.I('s_mov_b32 s%d, 0x3fffff\ns_cmp_eq_u32 s%d, 3\ns_cselect_b32 s%d, 0xfffff, s%d\ns_mov_b32 s%d, 0' % (sMA, sW, sMA, sMA, sMA + 1))

    for n in range(NPRE, 11):
        for k in range(3):
            if cfg.flagpos[k] + NPRE == n:
                if k == 2:
                    setup2()
                act_flag(k)
                if k == 2:
                    st(e, 'flagged')
        if n < 10:
            dma_D(n)
    cnt_spin(e, 'L_spinB2', 22, 24, C_DONEA)
    pulled = [0]

    def d_step(n):
        dma_D(n)
        while pulled[0] < min(14, 3 * (n - 9), n - 3):
            wd_read(pulled[0])
            pulled[0] += 1
        if n == 14:
            e.wait(lg=('wr', 9))
            set_m0(e, sMW, L_P2)
            e.I('s_mov_b64 exec, 1')
            e.I('buffer_load_dword off, %s, s%d lds' % (srd(SWD), SWD + 2), tag='init')
            e.I('s_mov_b64 exec, -1')
        if n == -cfg.posXB:
            bar_X()

    def bar_X():
        assert pulled[0] >= 12
        e.wait(vm='init', lg=('wr', 11))
        st(e, '_aX')
        e.I('s_barrier')

    for n in range(10, cfg.alook):
        d_step(n)
    st(e, 'wdiss')
    nd = cfg.alook + cfg.abet
    poll(e, 'L_pollA', 21, 20, T0, 's[%d:%d]' % (sMA, sMA + 1), lambda: [d_step(n) for n in range(cfg.alook, nd)])
    st(e, 'actrdy')
    if cfg.prioF2:
        e.I('s_setprio %d' % cfg.prioF2)

    TL = cfg.TL
    sSV = 92
    NM = 11 - TL

    def a_reg(n2, t4):
        return 208 + 4 * ((4 * n2 + t4) % 12) if n2 < NM else 32 + 16 * (t4 >> 1) + 8 * (n2 - NM) + 4 * (t4 & 1)

    pend = []
    rq = []

    def flush(n=99):
        for t in pend[:n]:
            e.I(t)
        del pend[:n]

    def a_load(n2, t4):
        if t4 == 0:
            flush()
        so = sAC if n2 < NM else sSV + n2 - NM
        e.I('buffer_load_dwordx4 %s, v%d, %s, s%d offen offset:%d sc1' % (vr(a_reg(n2, t4), 4), AV + (t4 >> 1), srd(SWS), so, 1024 * (t4 & 1)),
            tag=('a', n2, t4))
        if n2 < 10 and t4 == (3 if n2 < NM else 0):
            dst = sAC if n2 + 1 < NM else sSV + n2 + 1 - NM
            pend.append('s_add_u32 s%d, s%d, 2048' % (dst, so))
            pend.append('s_cmp_eq_u32 s%d, s%d\ns_cselect_b32 s%d, s%d, s%d' % (dst, sAE, dst, sAB, dst))
            if n2 == 9:
                pend.append('s_cmp_eq_u32 s%d, 3\ns_cselect_b32 s%d, 0x%x, s%d' % (sW, dst, OOB, dst))

    order = [(n2, t4) for n2 in range(NM) for t4 in range(4)] + [(n2, 2 * tt + a) for tt in range(2) for n2 in range(NM, 11) for a in range(2)]
    lq = []
    for k, t in enumerate(order):
        lq.append(('a', k))
        if k & 1 and nd < 22:
            lq.append(('d', nd))
            nd += 1
    dn = [cfg.alook + cfg.abet - 1]
    nis = [0]

    def issue(k, busy):
        while lq:
            t = lq[0]
            tag = ('a',) + order[k]
            nv = min(cfg.NV, cfg.NV0[0] + max(0, k - cfg.NV0[1]))
            if nis[0] > k and (len(e.vm) - 1 - e.vm.index(tag) >= nv - 1 if tag in e.vm else len(e.vm) >= nv):
                return
            if t[0] == 'a':
                if t[1] >= busy + 12:
                    return
                if t[1] >= 4 * NM and busy < 24 + 4 * (order[t[1]][1] >> 1):
                    return
                a_load(*order[t[1]])
                nis[0] = t[1] + 1
            else:
                d_step(t[1])
                dn[0] = t[1]
            lq.pop(0)

    def mm2(k):
        n2, t4 = order[k]
        if k == 0 or not cfg.fine:
            issue(k, k)
        while rq and (rq[0][0] >> 1 <= n2 + (t4 == 2) or not cfg.fine):
            t = rq.pop(0)
            wd_read(t[0], [t[1]])
        e.wait(vm=('a', n2, t4), lg=('wr', 2 * n2 + 1))
        for dq in range(4):
            mfma16(e, acc2(t4, dq), wd_reg(n2) + 4 * dq, a_reg(n2, t4), n2 == 0)
            if cfg.fine and dq == 0 and k + 1 < 44:
                issue(k + 1, k)
            if cfg.fine and dq in (1, 2):
                if pend:
                    flush(1)
                elif rq:
                    t = rq.pop(0)
                    wd_read(t[0], [t[1]])

    assert TL <= 2
    for n2 in range(NM):
        st(e, '_n%d' % n2)
        while pulled[0] <= min(2 * n2 + 5, 13):
            assert dn[0] >= pulled[0]
            wd_read(pulled[0])
            pulled[0] += 1
        if n2 == cfg.posXB:
            bar_X()
        for t4 in range(4):
            mm2(4 * n2 + t4)
        if cfg.pull0 <= n2 < cfg.pull0 + 4:
            m2 = n2 - cfg.pull0 + 7
            assert dn[0] >= 2 * m2 + 1
            rq.extend((2 * m2 + hf, dq) for hf in range(2) for dq in range(4))
    for k in range(4 * NM, 4 * NM + 2 * TL):
        mm2(k)
    assert not lq and not rq
    e.wait(lg='all')
    second = [lambda k=k: mm2(k) for k in range(4 * NM + 2 * TL, 44)]
    pw0 = part_write(e, PW, SLOT, 0)
    run(weave(second, pw0))
    if cfg.prioF2:
        e.I('s_setprio 0')
    st(e, 'f2end')
    pw1 = part_write(e, PW, SLOT, 1)
    run(pw1[:2])
    e.wait(lg=('pw', 0))
    e.I('s_barrier')
    run(pw1[2:])
    e.wait(lg='all')
    e.I('s_barrier')
    st(e, 'end')
    st.flush(e)
    e.I('s_endpgm')


def gen_A(e, cfg, st):
    LR, LI, L16, L128, L256, L16S, KAP, WV = 48, 49, 50, 52, 54, 56, 58, 60
    PP = 32
    SIDX = 3
    RE, IM = 64, 80
    XA, BA = 192, 204
    CV, CA, CA4, WDV = 96, 100, 104, 108
    EV0, EV1, EOOB, ERD, ECNT, EEXP, ONE, FLA, XW, XR, P16 = range(110, 121)
    SEL = 216
    RING0 = 144
    sHD, sHF, sES, sEL, sROT, sDTX = 86, 87, 90, 91, 92, 80
    sDC, sDB, sDE = 93, 94, 95
    e.I('v_lshlrev_b32 v1, 4, v0')
    e.I('v_and_b32 v21, 0x13, v0\nv_bfe_u32 v22, v0, 2, 1\nv_lshl_add_u32 v21, v22, 3, v21\nv_bfe_u32 v22, v0, 3, 1\nv_lshl_add_u32 v21, v22, 2, v21')
    e.I('s_lshl_b32 s%d, s%d, 6' % (T0, sCB))
    e.I('v_lshl_add_u32 v21, v21, 1, s%d' % T0)
    e.I('s_lshl_b32 s%d, s%d, 2\ns_add_u32 s%d, s%d, s%d\ns_lshl_b32 s%d, s%d, 4\ns_add_u32 s%d, s%d, s%d' %
        (T3, sRB, T3, T3, sW, T3, T3, T3, T3, sCB))
    e.I('s_lshl_b32 s%d, s%d, 11' % (T2, T3))
    frag_addr(e, BA, 4, 5)
    e.wait_smem()
    st(e, '_karg')
    mk_srd(e, SX, P_X, 2048 * 1024)
    mk_srd(e, SWS, P_WS, WS_SIZE)
    e.I('s_mov_b32 s%d, 0x%x\ns_lshl_b32 s%d, s%d, 6' % (T4, EPOCH_OFF, T0, sCB))
    e.I('s_load_dword s3, s[%d:%d], s%d' % (P_WS, P_WS + 1, T4))
    for p in (P_LRE, P_LIM, P_LDT):
        e.I('s_load_dword s3, s[%d:%d], s%d' % (p, p + 1, T0))
    e.I('s_lshr_b32 s%d, s2, 3\ns_lshl_b32 s%d, s%d, 2\ns_add_u32 s%d, s%d, s%d\ns_and_b32 s%d, s%d, 15\ns_lshl_b32 s%d, s%d, 6' %
        (T0, T0, T0, T0, T0, sW, T0, T0, T0, T0))
    for p in (P_GW, P_DSK):
        e.I('s_load_dword s3, s[%d:%d], s%d' % (p, p + 1, T0))
    if cfg.prewarm:
        code_touch(e, 'A')

    def small0():
        e.I('buffer_load_dword v19, off, %s, s%d sc1' % (srd(SWS), T4), tag='ep')
        e.I('global_load_ushort v16, v21, s[%d:%d]' % (P_LRE, P_LRE + 1), tag='par')
        e.I('global_load_ushort v17, v21, s[%d:%d]' % (P_LIM, P_LIM + 1), tag='par')
        e.I('global_load_ushort v18, v21, s[%d:%d]' % (P_LDT, P_LDT + 1), tag='par')

    small1 = [lambda: e.I('global_load_dwordx4 v[44:47], v1, s[%d:%d]' % (P_GW, P_GW + 1), tag='g'),
              lambda: e.I('buffer_load_dwordx4 v[36:39], v1, %s, s%d offen' % (srd(SX), T2), tag='g'),
              lambda: e.I('buffer_load_dwordx4 v[40:43], v1, %s, s%d offen offset:1024' % (srd(SX), T2), tag='g')]
    e.I('s_lshl_b32 s%d, s%d, 3\ns_add_u32 s%d, s%d, 0x%x' % (T6, T3, T6, T6, G_OFF))

    e.I('s_lshl_b32 s%d, s%d, 12' % (T0, sW))
    for s in range(4):
        e.I('v_add_u32 v%d, s%d, v%d' % (XA + s, T0, BA + s))
        e.I('v_add_u32 v%d, %d, v%d' % (XA + 4 + s, WIN, XA + s))
        e.I('v_add_u32 v%d, %d, v%d' % (BA + 4 + s, WIN, BA + s))
        if cfg.lag:
            e.I('v_add_u32 v%d, %d, v%d\nv_add_u32 v%d, %d, v%d' % (XA + 8 + s, 2 * WIN, XA + s, BA + 8 + s, 2 * WIN, BA + s))
    w_lane_offsets(e, cfg, WV, 24, 25)
    e.I('v_lshrrev_b32 v24, 5, v0\ns_lshl_b32 s%d, s%d, 1' % (T0, sW))
    e.I('v_add_u32 v%d, s%d, v24' % (SIDX, T0))
    rot2_calc(e, cfg, sROT, 0)
    if cfg.rotS:
        e.I('s_and_b32 s%d, s%d, %d\ns_lshl_b32 s%d, s%d, %d\ns_xor_b32 s%d, s%d, s%d' % (T0, sCT, cfg.rotS[0], T0, T0, cfg.rotS[1], sROT, sROT, T0))
    e.I('s_and_b32 s%d, s%d, 1\ns_lshr_b32 s%d, s%d, 1' % (sDTX, sROT, sROT, sROT))
    e.I('s_bitcmp1_b32 s%d, 0' % sROT)
    mk_srd_sel(e, SC1, P_CIM, P_CRE, 512 * 1024)
    mk_srd_sel(e, SC2, P_CRE, P_CIM, 512 * 1024)
    mk_srd(e, SWD, P_WD, 1376 * 1024)
    step_start(e, cfg, sDC, sDB, sDE, 15)
    e.I('s_cmp_ge_u32 s%d, 2' % sW)
    mk_srd_sel(e, SWA, P_WU, P_WG, 512 * 2752)
    e.I('s_lshl_b32 s%d, s%d, 2\ns_add_u32 s%d, s%d, s%d' % (T0, sRB, T0, T0, sW))
    HW_ = 16384 + cfg.hpad[0]
    HT_ = 4 * HW_ + cfg.hpad[1]
    assert H_OFF + 64 * HT_ <= E_OFF
    e.I('s_mul_i32 s%d, s%d, %d\ns_lshr_b32 s%d, s%d, 1\ns_lshl_b32 s%d, s%d, 13\ns_add_u32 s%d, s%d, s%d' %
        (sHD, T0, HT_, T1, sCB, T1, T1, sHD, sHD, T1))
    e.I('s_lshr_b32 s%d, s%d, 2\ns_mul_i32 s%d, s%d, %d\ns_add_u32 s%d, s%d, s%d' % (T1, sCB, T1, T1, cfg.hpad[0], sHD, sHD, T1))
    e.I('s_and_b32 s%d, s%d, 1\ns_lshl_b32 s%d, s%d, 11\ns_add_u32 s%d, s%d, s%d\ns_add_u32 s%d, s%d, 0x%x' %
        (T1, sCB, T1, T1, sHD, sHD, T1, sHD, sHD, H_OFF))
    e.I('s_lshr_b32 s%d, s%d, 1\ns_lshl_b32 s%d, s%d, 4\ns_add_u32 s%d, s%d, s%d\ns_lshl_b32 s%d, s%d, 1' %
        (T1, T0, T1, T1, T1, T1, sCB, T1, T1))
    e.I('s_and_b32 s%d, s%d, 1\ns_add_u32 s%d, s%d, s%d\ns_mul_i32 s%d, s%d, %d\ns_add_u32 s%d, s%d, 0x%x' %
        (T0, T0, T1, T1, T0, T1, T1, FS, sHF, T1, HF_OFF))
    e.I('s_lshl_b32 s%d, s%d, 13\ns_add_u32 s%d, s%d, 0x%x' % (sEL, sCB, sEL, sEL, E_OFF))
    e.I('s_lshl_b32 s%d, s%d, 9\ns_add_u32 s%d, s%d, s%d\ns_cmp_eq_u32 s%d, 0\ns_cselect_b32 s%d, s%d, 0x%x' %
        (sES, sRB, sES, sES, sEL, sW, sES, sES, OOB))
    e.I('s_sub_u32 s%d, s%d, 1024' % (sEL, sEL))

    tch = Touch(e, cfg, 'A')
    tch.setup()
    tch.at(-1)

    e.I('s_lshl_b32 s%d, s%d, 9\ns_add_u32 s%d, s%d, %d' % (T0, sW, T0, T0, L_E))
    e.I('v_lshl_add_u32 v%d, v0, 3, s%d' % (XW, T0))
    e.I('v_and_b32 v6, 31, v0\nv_lshlrev_b32 v%d, 4, v6\nv_lshlrev_b32 v6, 3, v6\nv_add_u32 v%d, %d, v6' % (P16, XR, L_E))
    e.I('v_and_b32 v4, 3, v0\nv_bfe_u32 v5, v0, 3, 2\nv_lshl_add_u32 v4, v5, 2, v4')
    e.I('v_bfe_u32 v5, v0, 2, 1\nv_lshrrev_b32 v6, 5, v0\nv_xor_b32 v5, v5, v6\nv_lshl_add_u32 v4, v5, 4, v4')
    e.I('v_and_b32 v5, 1, v0\nv_lshlrev_b32 v5, 4, v5\nv_mov_b32 v6, 0x3f80\nv_lshlrev_b32 v5, v5, v6\nv_lshrrev_b32 v4, 1, v4')
    for n in range(8):
        e.I('v_cmp_eq_u32 vcc, %d, v4\nv_cndmask_b32 v%d, 0, v5, vcc' % (n, SEL + n))
    e.I('v_and_b32 v6, 7, v0\nv_lshrrev_b32 v7, 4, v0\nv_xor_b32 v6, v6, v7\nv_lshlrev_b32 v6, 4, v6')
    e.I('v_lshrrev_b32 v7, 3, v0\nv_lshl_add_u32 v6, v7, 10, v6')
    e.I('s_lshl_b32 s%d, s%d, 16\ns_lshl_b32 s%d, s%d, 8\ns_add_u32 s%d, s%d, s%d' % (T0, sCT, T1, sW, T0, T0, T1))
    e.I('v_add_u32 v%d, s%d, v6\nv_xor_b32 v7, 64, v%d' % (CV, T0, CV))
    e.I('v_add_u32 v%d, 7168, v7\nv_add_u32 v%d, 14336, v%d\nv_add_u32 v%d, 21504, v7' % (CV + 1, CV + 2, CV, CV + 3))
    frag16_addr(e, CA, 6, 7)
    for s in range(2):
        e.I('v_add_u32 v%d, s%d, v%d' % (CA + s, sMW, CA + s))
        e.I('v_add_u32 v%d, %d, v%d' % (CA4 + s, 4 * SLOT, CA + s))
    HS = CA + 2
    e.I('v_and_b32 v6, 15, v0\nv_lshlrev_b32 v6, 4, v6\nv_bfe_u32 v7, v0, 4, 1\nv_lshl_add_u32 v6, v7, 10, v6')
    e.I('v_lshrrev_b32 v7, 5, v0\nv_lshl_add_u32 v%d, v7, 8, v6' % HS)
    e.I('s_lshr_b32 s88, s%d, 1\ns_lshl_b32 s88, s88, 7\ns_lshl_b32 s89, s%d, 15\ns_add_u32 s88, s88, s89\ns_xor_b32 s89, s88, 128' % (sROT, sDTX))
    e.I(wd_lane_offsets(e, WDV, 6, 7))
    e.I('s_lshl_b32 s%d, s%d, 2\ns_sub_u32 s%d, s%d, s%d\ns_sub_u32 s%d, s%d, 1\ns_lshl_b32 s%d, s%d, 11' % (T0, sW, T0, sRB, T0, T0, T0, T5, sW))
    e.I('v_lshrrev_b32 v6, 5, v0\nv_sub_u32 v7, s%d, v6' % T0)
    e.I('v_cmp_le_i32 vcc, 0, v7\nv_cmp_le_i32 s[%d:%d], 2, v7' % (sMB, sMB + 1))
    e.I('v_lshl_add_u32 v7, v7, 9, v%d\nv_add_u32 v7, 1024, v7\nv_subrev_u32 v5, 2048, v7\nv_mov_b32 v%d, 0x%x' % (P16, EOOB, OOB))
    e.I('v_cndmask_b32 v%d, v%d, v7, vcc\nv_cndmask_b32 v%d, v%d, v5, s[%d:%d]' % (EV0, EOOB, EV1, EOOB, sMB, sMB + 1))
    e.I('v_lshl_add_u32 v7, v6, 12, v%d\nv_add_u32 v%d, %d, v7' % (P16, ERD, L_EG))
    e.I('v_lshlrev_b32 v6, 3, v6\nv_sub_u32 v%d, s%d, v6\nv_med3_i32 v%d, v%d, 0, 8' % (ECNT, sRB, EEXP, ECNT))
    e.I('v_mov_b32 v%d, 1\nv_mov_b32 v%d, %d' % (ONE, FLA, L_FL))

    pro = []
    add = lambda t: [pro.append(lambda x=x: e.I(x)) for x in t.split('\n')]

    def csq(d, a):
        add('v_mul_f32 v30, v%d, v%d\nv_mul_f32 v31, v%d, v%d\nv_fma_f32 v%d, -v%d, v%d, v30\nv_add_f32 v%d, v31, v31' %
            (a, a, a, a + 1, d, a + 1, a + 1, d + 1))

    def cmul(d, a, b):
        add('v_mul_f32 v30, v%d, v%d\nv_mul_f32 v31, v%d, v%d\nv_fma_f32 v30, -v%d, v%d, v30\nv_fma_f32 v%d, v%d, v%d, v31\nv_mov_b32 v%d, v30' %
            (a, b, a, b + 1, a + 1, b + 1, d + 1, a + 1, b, d))

    pro.append(lambda: e.wait(vm=['ep', 'par']))
    add('v_readfirstlane_b32 s%d, v19' % sNONCE)
    add('v_lshlrev_b32 v16, 16, v16\nv_lshlrev_b32 v17, 16, v17\nv_lshlrev_b32 v18, 16, v18')
    add('s_add_u32 s%d, s%d, 0x%x\ns_or_b32 s%d, s%d, 1' % (sNONCE, sNONCE, PHI, sNONCE, sNONCE))
    add('v_mul_f32 v18, 0x%x, v18\nv_exp_f32 v18, v18\nv_cvt_pk_bf16_f32 v18, v18, v18\nv_lshlrev_b32 v18, 16, v18' % LOG2E)
    add('v_mul_f32 v21, v18, v16\nv_mul_f32 v22, v18, v17')
    add('v_mul_f32 v21, 0x%x, v21\nv_exp_f32 v21, v21' % LOG2E)
    add('v_mul_f32 v22, 0.15915494, v22\nv_rndne_f32 v23, v22\nv_sub_f32 v22, v22, v23\nv_sin_f32 v23, v22\nv_cos_f32 v22, v22')
    add('v_mul_f32 v%d, v21, v23\nv_mul_f32 v%d, v21, v22' % (LI, LR))
    add('v_mul_f32 v21, v16, v16\nv_fmac_f32 v21, v17, v17\nv_rcp_f32 v21, v21\nv_add_f32 v22, -1.0, v%d\nv_add_f32 v21, v21, v21' % LR)
    add('v_mul_f32 v23, v22, v16\nv_fmac_f32 v23, v%d, v17\nv_mul_f32 v%d, v23, v21' % (LI, KAP))
    add('v_mul_f32 v23, v%d, v16\nv_fma_f32 v23, -v22, v17, v23\nv_mul_f32 v%d, v23, v21' % (LI, KAP + 1))
    csq(22, LR); csq(22, 22); csq(22, 22); csq(L16, 22)
    csq(22, L16); csq(24, 22); csq(L128, 24); csq(L256, L128); csq(L256, L256); csq(L256, L256)
    for bit, src, dst in ((1, L16, L16S), (2, 22, 22), (4, 24, 24)):
        add('v_and_b32 v26, %d, v%d\nv_cmp_ne_u32 vcc, 0, v26' % (bit, SIDX))
        add('v_cndmask_b32 v%d, 1.0, v%d, vcc\nv_cndmask_b32 v%d, 0, v%d, vcc' % (dst, src, dst + 1, src + 1))
    cmul(L16S, L16S, 22); cmul(L16S, L16S, 24)
    add('v_mul_lo_u32 v%d, v%d, s%d\nv_mov_b32 v2, s%d' % (EEXP, EEXP, sNONCE, sNONCE))

    par, pro = pro, []
    pro.append(lambda: e.wait(vm='g'))
    for k in range(4):
        add('v_lshlrev_b32 v24, 16, v%d\nv_and_b32 v25, 0xffff0000, v%d' % (44 + k, 44 + k))
        for row in range(2):
            x = 36 + 4 * row + k
            add('v_lshlrev_b32 v26, 16, v%d\nv_and_b32 v27, 0xffff0000, v%d' % (x, x))
            add('v_mul_f32 v26, v26, v24\nv_mul_f32 v27, v27, v25\nv_cvt_pk_bf16_f32 v26, v26, v27')
            add('v_lshlrev_b32 v27, 16, v26\nv_and_b32 v26, 0xffff0000, v26')
            if k == 0:
                add('v_add_f32 v%d, v26, v27' % (28 + row))
            else:
                add('v_add_f32 v26, v26, v27\nv_add_f32 v%d, v%d, v26' % (28 + row, 28 + row))
    for mod in ('row_shr:1 row_mask:0xf', 'row_shr:2 row_mask:0xf', 'row_shr:4 row_mask:0xf', 'row_shr:8 row_mask:0xf',
                'row_bcast:15 row_mask:0xa', 'row_bcast:31 row_mask:0xc'):
        for row in range(2):
            add('v_add_f32_dpp v%d, v%d, v%d %s bank_mask:0xf' % (28 + row, 28 + row, 28 + row, mod))
    add('v_cvt_pk_bf16_f32 v26, v28, v29\nv_lshlrev_b32 v28, 16, v26\nv_and_b32 v29, 0xffff0000, v26')
    add('v_mul_f32 v28, 0x%x, v28\nv_mul_f32 v29, 0x%x, v29\nv_exp_f32 v28, v28\nv_exp_f32 v29, v29' % (NLOG2E, NLOG2E))
    add('v_add_f32 v28, 1.0, v28\nv_add_f32 v29, 1.0, v29\nv_rcp_f32 v28, v28\nv_rcp_f32 v29, v29')
    add('v_cvt_pk_bf16_f32 v26, v28, v29\nv_lshlrev_b32 v28, 16, v26\nv_and_b32 v29, 0xffff0000, v26')
    gate, pro = pro, par

    def g_store():
        e.I('s_mov_b32 exec_lo, 0\ns_mov_b32 exec_hi, 0x80000000')
        e.I('buffer_store_dwordx2 v[28:29], off, %s, s%d sc1' % (srd(SWS), T6), tag='gs')
        e.I('s_mov_b64 exec, -1')

    nbar = [0]

    def s_bar(i):
        assert nbar[0] == i
        nbar[0] += 1
        e.I('s_barrier')
        if i in (0, 7):
            st(e, 'b%d' % i)

    def s_read(n):
        i, s = n >> 2, n & 3
        slot = s_slot(i)
        if s == 0 and not cfg.lag:
            s_bar(i)
        assert nbar[0] > i
        off = (slot & 1) * SLOT
        b = RING0 + 12 * (n & 3)
        e.I('ds_read_b128 %s, v%d offset:%d' % (vr(b + 8, 4), XA + 4 * (slot >> 1) + s, off), tag=('s', n, 0))
        for part in range(2):
            e.I('ds_read_b128 %s, v%d offset:%d' % (vr(b + 4 * part, 4), BA + 4 * (slot >> 1) + s,
                                                    off + 16384 + part * 4096), tag=('s', n, part))

    def s_mm(n, part):
        e.wait(lg=('s', n, part))
        b = RING0 + 12 * (n & 3)
        mfma(e, RE + 16 * part, b + 8, b + 4 * part, n == 0)

    D = 2
    seq = []
    for n in range(32):
        seq.append(lambda n=n: (s_mm(n, 0), s_read(n + D) if n + D < 32 else None))
        seq.append(lambda n=n: s_mm(n, 1))
    st(e, '_pro')
    if cfg.lag:
        L = cfg.lag
        npar = len(pro) // max(L - 1, 1) + 1
        for i in range(L):
            s_bar(i)
            tch.at(10 + i)
            if i == 0:
                small0()
            if i >= 1:
                run(pro[(i - 1) * npar:i * npar])
        s_bar(L)
        for n in range(D):
            s_read(n)
        r2 = 2 * cfg.lagr
        for k, it in enumerate(seq):
            it()
            i = L + (k + 1) // r2
            if (k + 1) % r2 == 0 and i <= 7:
                assert (k + 1) // 2 >= 4 * (i - 3)
                s_bar(i)
    else:
        for n in range(D):
            s_read(n)
        p0 = 2 * cfg.smallpos
        run(seq[:p0])
        small0()
        run(seq[p0:p0 + 10])
        run(weave(seq[p0 + 10:56], pro) + seq[56:])
    assert nbar[0] == 8
    st(e, 's1end')
    if cfg.prioA:
        e.I('s_setprio %d' % cfg.prioA)

    def items(txt):
        return [lambda t=t: e.I(t) for t in txt.split('\n')]

    def cfma(d, l, a, c):
        return items('v_fma_f32 v%d, v%d, v%d, v%d\nv_fma_f32 v%d, v%d, v%d, v%d\nv_fma_f32 v%d, -v%d, v%d, v%d\nv_fmac_f32 v%d, v%d, v%d' %
                     (d, l, a, c, d + 1, l, a + 1, c + 1, d, l + 1, a + 1, d, d + 1, l + 1, a))

    prev = (RE, IM)
    for r in range(1, 16):
        cur = (20 + 2 * (r & 1), 21 + 2 * (r & 1))
        e.I('v_fma_f32 v%d, v%d, v%d, v%d' % (cur[0], LR, prev[0], RE + r))
        e.I('v_fma_f32 v%d, v%d, v%d, v%d' % (cur[1], LR, prev[1], IM + r))
        e.I('v_fma_f32 v%d, -v%d, v%d, v%d' % (cur[0], LI, prev[1], cur[0]))
        e.I('v_fmac_f32 v%d, v%d, v%d' % (cur[1], LI, prev[0]))
        prev = cur
    e.I('ds_write_b64 v%d, %s' % (XW, vr(prev[0], 2)), tag='ex')
    e.wait(lg='all')

    def c_reg(u, s2, dq):
        return 128 + 32 * u + 16 * s2 + 4 * dq

    CBUF = cfg.cbuf
    CPREV = {i: max(k for k in range(i) if CBUF[k] == CBUF[i]) for i in range(8) if CBUF[i] in CBUF[:i]}
    cdone = set()
    hdone = []

    def c_read(i):
        if i in cdone:
            return
        cdone.add(i)
        assert i < 4 or hdone
        e.wait(vm=('c', i))
        for s in range(4):
            a_, off = (CA4 + (s >> 1), 0) if CBUF[i] == 4 else (CA + (s >> 1), CBUF[i] * SLOT)
            e.I('ds_read_b128 %s, v%d offset:%d' % (vr(c_reg(i >> 1, s >> 1, 2 * (i & 1) + (s & 1)), 4), a_, off + (s & 1) * 2048), tag=('cr', i))

    def c_loads(i):
        u, dt = i >> 1, i & 1
        its = []
        for q in range(4):
            def f(q=q):
                if q == 0:
                    if i in CPREV:
                        c_read(CPREV[i])
                        e.wait(lg=('cr', CPREV[i]))
                    elif CBUF[i] != 4 and 6 + CBUF[i] > cfg.JL:
                        cnt_spin(e, 'L_cb%d' % i, FLA, 37, C_CONS + 28)
                    e.I('s_xor_b32 s%d, s%d, %d' % (sTD, 88 + (u >> 1), dt * 32768))
                set_m0(e, sMW, CBUF[i] * SLOT)
                e.I('buffer_load_dwordx4 v%d, %s, s%d offen offset:%d lds' % (CV + q, srd(SC2 if u & 1 else SC1), sTD, 1024 * q), tag=('c', i))
                if q == 3 and i >= 2:
                    c_read(i - 2)
            its.append(f)
        return its

    def d_loads(n):
        sl, pos = RING[n]
        its = []
        for q in range(2):
            def f(q=q):
                set_m0(e, sMW, sl * SLOT + pos * 2048)
                if q == 0 and n:
                    wd_next(e, n, sDC, sDB, sDE)
                e.I('buffer_load_dwordx4 v%d, %s, s%d offen offset:%d lds' % (WDV + q, srd(SWD), sDC, 1024 * q), tag='wd')
            its.append(f)
        return its

    wl = {j: dma_W(e, WV, SWA, j) for j in range(2, 8)}
    planned = set()

    def e_loads():
        its = []
        for q in range(2):
            def f(q=q):
                set_m0(e, T5, L_EG)
                e.I('buffer_load_dwordx4 v%d, %s, s%d offen offset:%d sc1 lds' % (EV0 + q, srd(SWS), sEL, 1024 * q), tag='eg')
            its.append(f)
        return its

    def expand(toks, k):
        r = []
        for t in toks.split(','):
            if not t:
                continue
            n = int(t[1])
            planned.add(t)
            if t[0] == 'W':
                assert n < 4 or k >= n - 2 or (n == 4 and cfg.w0pos is not None)
                r += wl[n][:3] if t[2:] == 'a' else wl[n][3:] if t[2:] == 'b' else wl[n]
            elif t[0] == 'C':
                assert CBUF[n] == 4 or k >= min(6 + CBUF[n], cfg.JL)
                assert k >= 2 or cfg.w0pos is None
                r += c_loads(n)
            elif t[0] == 'D':
                r += d_loads(n)
            elif t[0] == 'G':
                r += small1
            elif t[0] == 'E':
                r += e_loads()
            elif t[0] == 'T':
                r.append(lambda n=n: tch.at(n))
        return r

    def bar(k, extra=()):
        kk = 7 if k == cfg.JL else k
        assert kk < 2 or 'W%d' % kk in planned or 'W%db' % kk in planned or (kk == 2 and cfg.w0pos is not None)
        e.wait(vm=[('st', 8 + kk)] + list(extra))
        st(e, '_a%d' % k)
        e.I('s_barrier')
        st(e, '_d%d' % k)

    sc = []
    for r in range(16):
        sc += items('v_mul_f32 v4, v%d, v%d\nv_mul_f32 v5, v%d, v%d\nv_fma_f32 v%d, v%d, v%d, -v4\nv_fma_f32 v%d, v%d, v%d, v5' %
                    (KAP + 1, IM + r, KAP + 1, RE + r, RE + r, KAP, RE + r, IM + r, KAP, IM + r))
    early = sc
    run(early[:cfg.early])
    late = early[cfg.early:]
    bar(0)
    work = []
    for s in range(8):
        e.I('ds_read_b64 %s, v%d offset:%d' % (vr(4 + 2 * s, 2), XR, 256 * s), tag=('e', s))
    pf = []
    for s in range(1, 8):
        pf.append(lambda s=s: e.wait(lg=('e', s)))
        pf += cfma(4 + 2 * s, L16, 2 + 2 * s, 4 + 2 * s)
    segs = [sg.split('|') for sg in cfg.prog.split(';')]
    q0 = expand(segs[0][0], 0)
    run(weave(q0[:cfg.pren], pf))
    e.I('v_mov_b32 v20, s%d\nv_mov_b32 v21, s%d' % (sNONCE, sNONCE))
    e.I('s_mov_b32 exec_hi, 0')
    e.I('buffer_store_dwordx4 v[18:21], v%d, %s, s%d offen sc1' % (P16, srd(SWS), sES), tag='es')
    e.I('s_mov_b32 exec_hi, -1')
    st(e, 'epub')
    run(q0[cfg.pren:])
    gate.append(g_store)
    sel = items('v_mov_b32 v%d, 0\nv_mov_b32 v%d, 0' % (PP, PP + 1))
    for s in range(1, 8):
        sel.append(lambda s=s: e.I('v_cmp_eq_u32 vcc, %d, v%d\nv_cndmask_b32 v%d, v%d, v%d, vcc\nv_cndmask_b32 v%d, v%d, v%d, vcc' %
                                   (s, SIDX, PP, PP, 2 + 2 * s, PP + 1, PP + 1, 3 + 2 * s)))
    EG = 224

    def e_check():
        e.I('v_add3_u32 v4, v%d, v%d, v%d\nv_add3_u32 v5, v%d, v%d, v%d' % tuple(EG + 4 * k + 2 for k in range(6)))
        e.I('v_add3_u32 v4, v4, v%d, v%d\nv_add_u32 v4, v4, v5' % (EG + 26, EG + 30))
        e.I('v_cmp_ne_u32 vcc, v4, v%d' % EEXP)

    def e_verify():
        e.wait(lg='eg')
        e_check()
        e.I('s_cbranch_vccnz L_pollE')
        e.label('L_pollE_out')
        st(e, 'egot')
        with e.cold_block():
            e.label('L_pollE')
            e.I('s_mov_b32 s%d, 0' % sCNT)
            e.label('L_pollE_l')
            for k in range(8):
                e.I('v_subrev_u32 v4, %d, v%d\nv_cmp_le_i32 vcc, 2, v4\nv_lshl_add_u32 v4, v4, 9, v%d\nv_cndmask_b32 v4, v%d, v4, vcc' % (k - 1, ECNT, P16, EOOB))
                e.I('buffer_load_dwordx4 %s, v4, %s, s%d offen sc1' % (vr(EG + 4 * k, 4), srd(SWS), sEL))
            e.I('s_add_u32 s%d, s%d, 1' % (sCNT, sCNT))
            e.I('s_cmp_gt_u32 s%d, %d' % (sCNT, SPIN_MAX))
            e.wait(vm='all')
            e.I('s_cbranch_scc1 L_pollE_out')
            e_check()
            e.I('s_cbranch_vccnz L_pollE_l')
            e.I('s_branch L_pollE_out')

    def second_pass():
        p2 = []
        p2.append(lambda: [e.I('ds_read_b128 %s, v%d offset:%d' % (vr(EG + 4 * k, 4), ERD, 512 * k), tag='eg') for k in range(8)])
        p2.append(e_verify)
        for k in range(6, -1, -1):
            p2 += cfma(EG + 4 * k, L128, EG + 4 * k + 4, EG + 4 * k)
        p2 += items('v_mov_b32 v4, v%d\nv_mov_b32 v5, v%d\nv_permlane32_swap_b32 v4, v%d\nv_permlane32_swap_b32 v5, v%d' % (EG, EG + 1, EG, EG + 1))
        p2 += cfma(4, L256, EG, 4)
        p2 += cfma(PP, L16S, 4, PP)
        p2 += items('v_mul_f32 v6, v%d, v%d\nv_mul_f32 v7, v%d, v%d' % (KAP, PP, KAP, PP + 1))
        p2 += items('v_fma_f32 v6, -v%d, v%d, v6\nv_fmac_f32 v7, v%d, v%d' % (KAP + 1, PP + 1, KAP + 1, PP))
        prev = (6, 7)
        for r in range(16):
            p2 += items('v_fmac_f32 v%d, v%d, v%d\nv_fmac_f32 v%d, v%d, v%d\nv_fma_f32 v%d, -v%d, v%d, v%d\nv_fmac_f32 v%d, v%d, v%d' %
                        (RE + r, LR, prev[0], IM + r, LR, prev[1], RE + r, LI, prev[1], RE + r, IM + r, LI, prev[0]))
            prev = (RE + r, IM + r)
        return p2

    def store_h(loads):
        for part in range(2):
            for k in range(8):
                sg_ = '-' if part else ''
                e.I('v_cvt_pk_bf16_f32 v%d, %sv%d, %sv%d' % (8 + 8 * part + k, sg_, RE + 16 * part + 2 * k, sg_, RE + 16 * part + 2 * k + 1))
            for m in range(2):
                mfma(e, RE + 16 * part, 8 + 8 * part + 4 * m, SEL + 4 * m, m == 0)
        hdone.append(1)
        run(loads)
        e.I('s_add_u32 s%d, s%d, 4096' % (T0, sHD))
        for part in range(2):
            for m in range(2):
                o = 8 + 8 * part + 4 * m
                for k in range(4):
                    e.I('v_cvt_pk_bf16_f32 v%d, v%d, v%d' % (o + k, RE + 16 * part + 8 * m + 2 * k, RE + 16 * part + 8 * m + 2 * k + 1))
                hq.append(lambda o=o, part=part, m=m: e.I('buffer_store_dwordx4 %s, v%d, %s, s%d offen offset:%d sc1' %
                                                         (vr(o, 4), HS, srd(SWS), T0 if part else sHD, 512 * m), tag='hs'))
                if len(hq) <= cfg.hnow:
                    hq[-1]()

    hq = []
    p2 = second_pass()
    for k, (toks, work) in enumerate(segs):
        if k == 0:
            continue
        if k <= cfg.JL:
            bar(k, ['eg'] if work[:1] == 'P' else [])
        q = expand(toks, k)
        if work == 'sel':
            run(weave(q, sel + ([] if 'late' in cfg.prog else late)))
        elif work[:1] == 'g':
            hg = len(gate) // 2
            run(weave(q, gate if work == 'g' else gate[:hg] if work == 'g0' else gate[hg:]))
        elif work == 'late':
            run(weave(q, late))
        elif work[:1] == 'P':
            assert k <= cfg.JL or work != 'P0'
            part = p2 if work == 'P' else p2[:cfg.p2cut] if work == 'P0' else p2[cfg.p2cut:]
            run(part[:1] + (weave(q, part[1:]) if q else part[1:]))
        elif work == 'H':
            st(e, 'p2done')
            store_h(q)
        elif work == 'F':
            run(hq[cfg.hnow:])
            st(e, 'hst')
            run(q)
            e.wait(vm='hs')
            flag_store(e, 2, sHF)
            st(e, 'hflag')
        else:
            run(q)
    assert len(segs) > cfg.JL
    HV, PW = 6, 8
    rest = [i for i in range(8) if 'C%d' % i not in planned]
    run(c_loads(rest.pop(0)))
    e.I('s_mul_i32 s%d, s%d, %d\ns_mul_i32 s%d, s%d, %d\ns_add_u32 s%d, s%d, s%d\ns_add_u32 s%d, s%d, 0x%x' %
        (T0, sRT, 2 * HT_, T1, sW, HW_, T0, T0, T1, T0, T0, H_OFF))
    e.I('v_add_u32 v%d, s%d, v1\nv_add_u32 v%d, %d, v%d' % (HV, T0, HV + 1, HT_, HV))
    for u in range(4):
        e.I('s_xor_b32 s%d, s%d, %d\ns_lshl_b32 s%d, s%d, 12' % (93 + u, sROT, u, 93 + u, 93 + u))
    part_write_addr(e, PW, 12, 13, 16384, 4096, SPART)
    mk_srd(e, SOUT, P_OUT, 2048 * 2048)
    e.I('s_lshl_b32 s%d, s%d, 2\ns_add_u32 s%d, s%d, s%d\ns_mul_i32 s%d, s%d, %d\ns_add_u32 s%d, s%d, 0x%x' %
        (T0, sRT, T0, T0, sW, T0, T0, 8 * FS, T0, T0, HF_OFF))
    e.I('v_mul_u32_u24 v12, %d, v0\nv_mov_b32 v5, v2' % FS)

    def h_reg(k):
        return 16 + 4 * (k % 12)

    def h_load(k):
        n2, t4 = k >> 2, k & 3
        e.I('buffer_load_dwordx4 %s, v%d, %s, s%d offen offset:%d sc1' % (vr(h_reg(k), 4), HV + (t4 >> 1), srd(SWS), 93 + (n2 >> 1),
                                                                            2048 * (n2 & 1) + 1024 * (t4 & 1)), tag=('h', k))

    def c_finish():
        for i in range(8):
            c_read(i)
        e.wait(vm='wd')
        cnt_add(e, FLA, ONE, C_DONEA)
        st(e, 'cgot')

    while rest and rest[0] < cfg.hlook:
        run(c_loads(rest.pop(0)))
    if cfg.hlook > 8:
        c_finish()
    poll(e, 'L_pollH', 13, 12, T0, '0xff',
         lambda: ([run(c_loads(i)) for i in rest], c_finish() if cfg.hearly == 0 and cfg.hlook <= 8 else None))
    st(e, 'hrdy')
    XO, RA, GV, RF = 2, 3, 4, 14
    ROWS = (0, 4, 32, 36)
    XL, DL, GL, XD, PW1 = 128, 136, 138, 144, 10
    fin = items('s_lshl_b32 s%d, s%d, 3\ns_add_u32 s%d, s%d, s%d\ns_lshl_b32 s%d, s%d, 3' % (T0, sRT, T0, T0, sW, T0, T0))
    fin += items('v_lshrrev_b32 v12, 4, v0\nv_add_u32 v13, s%d, v12' % T0)
    fin += items('v_and_b32 v14, 15, v0\ns_lshl_b32 s%d, s%d, 7' % (T1, sCT))
    fin += items('v_lshl_add_u32 v1, v14, 3, s%d' % T1)
    fin += items('v_lshl_add_u32 v%d, v13, 10, v1' % XO)
    fin += items('v_lshlrev_b32 v%d, 2, v13\nv_add_u32 v%d, 0x%x, v%d' % (GV, GV, G_OFF, GV))
    fin += items('s_lshr_b32 s%d, s%d, 1\ns_lshl_b32 s%d, s%d, 2\ns_and_b32 s%d, s%d, 1\ns_lshl_b32 s%d, s%d, 11' % (T3, sW, T1, T3, T2, sW, T2, T2))
    fin += items('v_or_b32 v13, s%d, v12\nv_xor_b32 v13, v13, v14\nv_lshl_add_u32 v13, v13, 4, s%d\nv_lshl_add_u32 v13, v12, 8, v13' % (T1, T2))
    fin += items('s_lshl_b32 s%d, s%d, 14\ns_add_u32 s%d, s%d, %d\ns_mul_i32 s%d, s%d, %d' % (T1, T3, T1, T1, SPART, T2, T3, SLOT))
    fin += items('v_add_u32 v%d, s%d, v13\nv_add_u32 v%d, s%d, v13\nv_add_u32 v%d, %d, v%d' % (RA, T1, RF, T2, RF + 1, 2 * SLOT, RF))
    fin += items('s_lshl_b32 s%d, s%d, 7' % (T0, sDTX))
    for a in range(2):
        fin += items('v_xor_b32 v%d, s%d, v%d\nv_xor_b32 v%d, 0x80, v%d' % (PW + a, T0, PW + a, PW1 + a, PW + a))
    if cfg.posX < 0:
        run(fin)
    for k in range(cfg.NVA):
        if cfg.posX < 0 and k == -1 - cfg.posX:
            assert k >= cfg.hearly
            e.wait(lg='all')
            e.I('s_barrier')
        if k == cfg.hearly // 2 and k:
            c_read(6)
        if k == cfg.hearly and k:
            c_finish()
        h_load(k)
    e.wait(lg='all')
    if cfg.posX >= 0:
        run(fin)

    def fx_loads():
        e.I('global_load_dwordx2 %s, v1, s[%d:%d]' % (vr(DL, 2), P_DSK, P_DSK + 1), tag='fx')
        for n in range(4):
            e.I('s_mov_b32 s%d, %d' % (T2, 1024 * ROWS[n]))
            e.I('buffer_load_dwordx2 %s, v%d, %s, s%d offen' % (vr(XL + 2 * n, 2), XO, srd(SX), T2), tag='fx')

    def g_loads():
        for n in range(4):
            e.I('buffer_load_dword v%d, v%d, %s, 0 offen offset:%d sc1' % (GL + n, GV, srd(SWS), 4 * ROWS[n]), tag='fg')

    DU = 160
    xd = [lambda: e.wait(vm='fx')]
    xd += items('v_lshlrev_b32 v%d, 16, v%d\nv_and_b32 v%d, 0xffff0000, v%d\nv_lshlrev_b32 v%d, 16, v%d\nv_and_b32 v%d, 0xffff0000, v%d' %
                (DU, DL, DU + 1, DL, DU + 2, DL + 1, DU + 3, DL + 1))
    for n in range(4):
        for k in range(2):
            x = XL + 2 * n + k
            xd += items('v_lshlrev_b32 v12, 16, v%d\nv_and_b32 v13, 0xffff0000, v%d' % (x, x))
            xd += items('v_mul_f32 v12, v12, v%d\nv_mul_f32 v13, v13, v%d' % (DU + 2 * k, DU + 1 + 2 * k))
            xd += items('v_cvt_pk_bf16_f32 v13, v12, v13')
            xd += items('v_lshlrev_b32 v%d, 16, v13\nv_and_b32 v%d, 0xffff0000, v13' % (XD + 4 * n + 2 * k, XD + 4 * n + 2 * k + 1))
    xd += items('v_mov_b32 v12, %d\nv_mov_b32 v13, 1\nv_lshlrev_b32 v%d, 1, v%d' % (L_P2, XO, XO))

    def s2_step(k):
        n2, t4 = k >> 2, k & 3
        if k == 2 * cfg.posX:
            e.I('s_barrier')
        e.wait(vm=('h', k))
        for dq in range(4):
            mfma16(e, acc2(t4, dq), c_reg(n2 >> 1, n2 & 1, dq), h_reg(k), n2 == 0)
            if dq == (0 if cfg.NVA < 12 else 3) and k + cfg.NVA < 32:
                h_load(k + cfg.NVA)
        if k == 8:
            fx_loads()
        if k == max(8, 2 * cfg.posX):
            g_loads()
    steps = [lambda k=k: s2_step(k) for k in range(32)]
    if cfg.xdpos < 32:
        run(steps[:cfg.xdpos] + weave(steps[cfg.xdpos:], xd))
    else:
        run(steps + xd[-3:])
    st(e, 's2end')
    if cfg.posX == 16:
        e.I('s_barrier')
        g_loads()
    st(e, '_X')
    run(part_write(e, PW, 16384, 0, PW1) + part_write(e, PW, 16384, 1, PW1))
    cnt_add(e, 12, 13, 0)
    if cfg.xdpos >= 32:
        run(xd[:-1])
    OM = 164
    e.wait(vm='fg')
    for n in range(4):
        e.I('v_sub_f32 v%d, 1.0, v%d' % (OM + n, GL + n))
        e.I('v_cvt_pk_bf16_f32 v%d, v%d, v%d\nv_lshlrev_b32 v%d, 16, v%d' % (OM + n, OM + n, OM + n, OM + n, OM + n))
    for n in range(4):
        e.I('s_mov_b32 s%d, %d' % (T2 + n, 2048 * ROWS[n]))
    e.I('s_lshl_b32 s%d, s%d, 5\ns_add_u32 s%d, s%d, s%d\ns_lshl_b32 s%d, s%d, 8\ns_add_u32 s%d, s%d, s%d' %
        (T0, sCT, T0, T0, sRT, T1, sW, T0, T0, T1))
    e.I('s_cmp_eq_u32 s%d, 31\ns_cselect_b32 s%d, 0x%x, s%d' % (T0, T0, EPOCH_OFF, SWS + 2))
    flag_store(e, 5, T0)
    cnt_spin(e, 'L_spinM', 12, 16, 0)
    e.wait(lg='all')
    for n in range(4):
        for w in range(4):
            e.I('ds_read_b128 %s, v%d offset:%d' % (vr(64 + 16 * n + 4 * w, 4), RA, w * 4096 + (n & 1) * 1024 + (n >> 1) * 32768), tag=('r', n))
    BS = XD
    for n in range(4):
        e.wait(lg=('r', n))
        b = 64 + 16 * n
        for k in range(4):
            e.I('v_add_f32 v%d, v%d, v%d\nv_add_f32 v%d, v%d, v%d' % (b + k, b + k, b + 4 + k, b + 8 + k, b + 8 + k, b + 12 + k))
        for k in range(4):
            e.I('v_add_f32 v%d, v%d, v%d' % (b + k, b + k, b + 8 + k))
        for k in range(4):
            e.I('v_add_f32 v%d, v%d, v%d' % (b + k, b + k, XD + 4 * n + k))
        for k in range(4):
            e.I('v_mul_f32 v%d, v%d, v%d' % (BS + 4 * n + k, GL + n, b + k))
    st(e, 'pre')
    for half in range(2):
        e.I('s_barrier')
        st(e, 'Z' if half else '_Z0')
        for n in (2 * half, 2 * half + 1):
            for w in range(4):
                e.I('ds_read_b128 %s, v%d offset:%d' % (vr(64 + 16 * n + 4 * w, 4), RF + half, w * 6144 + (n & 1) * 1024), tag=('r', n))
        for n in (2 * half, 2 * half + 1):
            e.wait(lg=('r', n))
            b = 64 + 16 * n
            for k in (0, 2):
                e.I('v_pk_add_f32 %s, %s, %s' % (vr(b + k, 2), vr(b + k, 2), vr(b + 4 + k, 2)))
                e.I('v_pk_add_f32 %s, %s, %s' % (vr(b + 8 + k, 2), vr(b + 8 + k, 2), vr(b + 12 + k, 2)))
            for k in (0, 2):
                e.I('v_pk_add_f32 %s, %s, %s' % (vr(b + k, 2), vr(b + k, 2), vr(b + 8 + k, 2)))
            if cfg.mimic2:
                for rnd in range(2):
                    e.I('v_cvt_pk_bf16_f32 v%d, v%d, v%d\nv_cvt_pk_bf16_f32 v%d, v%d, v%d' % (b + 1, b, b + 1, b + 3, b + 2, b + 3))
                    for k in (0, 2):
                        e.I('v_lshlrev_b32 v%d, 16, v%d\nv_and_b32 v%d, 0xffff0000, v%d' % (b + k, b + k + 1, b + k + 1, b + k + 1))
                    if rnd == 0:
                        for k in range(4):
                            e.I('v_mul_f32 v%d, v%d, v%d' % (b + k, OM + n, b + k))
                for k in (0, 2):
                    e.I('v_pk_add_f32 %s, %s, %s' % (vr(b + k, 2), vr(b + k, 2), vr(BS + 4 * n + k, 2)))
            else:
                for k in range(4):
                    e.I('v_fma_f32 v%d, v%d, v%d, v%d' % (b + k, OM + n, b + k, BS + 4 * n + k))
            e.I('buffer_store_dwordx4 %s, v%d, %s, s%d offen %s' % (vr(b, 4), XO, srd(SOUT), T2 + n, cfg.outflags), tag='out')
    st(e, 'end')
    st.flush(e)


HEADER = open(os.path.join(os.path.dirname(os.path.abspath(__file__)), '..', 'cdna_kernels', BASE + '.s.ref')).read()


def generate(cfg):
    SLEEP[:] = cfg.sleep
    W_SLOT[0] = 0 if cfg.w0pos is None else 4
    S_SHIFT[0] = -1 if cfg.lag else 0 if cfg.w0pos is None else 1
    assert cfg.w0pos is None
    hdr = []
    for line in HEADER.split('\n'):
        if not line.startswith(';'):
            break
        if '@launch' in line:
            line = '; @launch grid=(256,1,1) block=(512,1,1) lds=%d' % LDS_BYTES
            if cfg.pre_kernel is not None:
                line = '; @launch kernel=%s grid=(256,1,1) block=(512,1,1) lds=%d' % (NAME, LDS_BYTES)
                if cfg.pre_kernel:
                    line = '; @launch kernel=warm_kernel grid=(256,1,1) block=(256,1,1) lds=0\n' + line
        hdr.append(line)
    stB = Stamps(cfg, [38, 6, 8, 14, 16, 18, 20, 22, 30, 32, 34, 4, 10, 12, 24, 26], 'B')
    stA = Stamps(cfg, [38, 10, 12, 22, 34, 24, 26, 6, 8, 18, 28, 14, 16, 30, 36, 4], 'A')
    e = Em()
    gen_entry(e, cfg, stB)
    stA.names = list(stB.names)
    eA = Em()
    eA.hist = list(e.hist)
    gen_B(e, cfg, stB)
    gen_A(eA, cfg, stA)
    txt = '\n'.join(hdr) + '\n'
    txt += '.amdgcn_target "amdgcn-amd-amdhsa--gfx950"\n.text\n.globl %s\n.p2align 8\n.type %s,@function\n%s:\n' % (NAME, NAME, NAME)
    txt += e.text() + '\n' + '\n'.join(e.cold) + '\n.p2align 6\nL_A:\n' + eA.text() + '\n    s_endpgm\n' + '\n'.join(eA.cold) + '\nL_end:\n    s_endpgm\n'
    if cfg.pre_kernel:
        w = Em()
        w.I('s_cmp_ge_u32 s2, 256\ns_cbranch_scc1 L_wend')
        if cfg.pre_kernel != 'empty':
            w.I('s_load_dwordx16 s[4:19], s[0:1], 0\ns_load_dwordx16 s[20:35], s[0:1], 64')
            w.I('s_lshl_b32 s3, s2, 8\nv_add_u32 v0, s3, v0\nv_lshlrev_b32 v1, 7, v0')
            w.wait_smem()
            base = 0
            for p, n in ((P_X, 2048 * 1024), (P_BRE, 524288), (P_BIM, 524288), (P_WG, 1409024), (P_WU, 1409024), (P_CRE, 524288), (P_CIM, 524288), (P_WD, 1409024)):
                mk_srd(w, 40, p, n)
                w.I('v_subrev_u32 v2, %d, v1\nv_cmp_gt_u32 vcc, %d, v2\ns_and_saveexec_b64 s[44:45], vcc\ns_cbranch_execz L_w%d' % (base, n, p))
                w.I('buffer_load_dword v3, v2, s[40:43], 0 offen')
                w.label('L_w%d' % p)
                w.I('s_mov_b64 exec, s[44:45]')
                base += n
            if cfg.pre_kernel == 'wait':
                w.I('s_waitcnt vmcnt(0)')
        txt += '.globl warm_kernel\n.p2align 8\n.type warm_kernel,@function\nwarm_kernel:\n' + w.text() + '\nL_wend:\n    s_endpgm\n'
    txt += '''.section .rodata,"a"
.p2align 6
.amdhsa_kernel %s
  .amdhsa_next_free_vgpr 256
  .amdhsa_next_free_sgpr 102
  .amdhsa_accum_offset 256
  .amdhsa_group_segment_fixed_size 0
  .amdhsa_kernarg_size 136
  .amdhsa_user_sgpr_count 2
  .amdhsa_user_sgpr_kernarg_segment_ptr 1
  .amdhsa_system_sgpr_workgroup_id_x 1
  .amdhsa_float_denorm_mode_32 3
.end_amdhsa_kernel
''' % NAME
    if cfg.pre_kernel:
        txt += '''.p2align 6
.amdhsa_kernel warm_kernel
  .amdhsa_next_free_vgpr 8
  .amdhsa_next_free_sgpr 48
  .amdhsa_accum_offset 8
  .amdhsa_group_segment_fixed_size 0
  .amdhsa_kernarg_size 136
  .amdhsa_user_sgpr_count 2
  .amdhsa_user_sgpr_kernarg_segment_ptr 1
  .amdhsa_system_sgpr_workgroup_id_x 1
.end_amdhsa_kernel
'''
    info = dict(A=eA.count, B=e.count, nopsA=eA.nops, nopsB=e.nops, stampsA=stA.names, stampsB=stB.names)
    return txt, info


def cfg_from(args):
    cfg = Cfg()
    for a in args:
        k, v = a.split('=')
        setattr(cfg, k, eval(v))
    return cfg


if __name__ == '__main__':
    out = sys.argv[1]
    cfg = cfg_from(sys.argv[2:])
    txt, info = generate(cfg)
    open(out, 'w').write(txt)
    print(info)
```

```python
import sys, os
sys.path.insert(0, os.path.dirname(os.path.abspath(__file__)))
from em import Em, weave

BASE = 'gated_mix__ssm_conv_s5__swiglu_ffn__prompt'
NAME = BASE + '_kernel'

ACT_OFF = 0
H_OFF = 0x600000
E_OFF = 0xB00000
G_OFF = 0xB20000
HF_OFF = 0xB24000
AF_OFF = 0xB30000
EPOCH_OFF = 0xB48000
STAMP_OFF = 0xB50000
WS_SIZE = 0xB80000
OOB = 0x2000000
FS = 32
PHI = 0x9E3779B8

SLOT = 24576
WIN = 49152
SCR = 147456
SPART = 98304
L_E, L_FL, L_EG = SCR, SCR + 4096, SCR + 8192
L_P2 = 3 * SLOT + 4096
LDS_BYTES = 163840

P_X, P_LRE, P_LIM, P_BRE, P_BIM, P_CRE, P_CIM, P_LDT = 4, 6, 8, 10, 12, 14, 16, 18
P_DSK, P_BX, P_WG, P_WU, P_WD, P_GW, P_OUT, P_DBG, P_WS = 20, 22, 24, 26, 28, 30, 32, 34, 36
SX, SWS = 40, 44
SBM, SW, SWD = 48, 52, 56
SC1, SC2, SOUT, SCODE = 48, 52, 56, 60
SWA = 60
sWAVE, sW, sRB, sCB, sK0, sRT, sCT, sNONCE, sSG0 = 64, 65, 66, 67, 68, 69, 70, 71, 72
T0, T1, T2, T3, T4, T5, T6 = 73, 74, 75, 76, 77, 78, 79
sNL2E = 80
sMA, sMB = 82, 84
sTBL = 86
sCNT = 97
sTS, sTW, sTD = 98, 99, 100
sMX, sMBm = 60, 61
sMW = 101
SPIN_MAX = 200000

SLEEP = [0, 0]
LOG2E = 0x3fb8aa3b
NLOG2E = 0xbfb8aa3b


class Cfg:
    mimic = False
    mimic2 = False
    stamps = False
    rot1 = (2, 0, 2, 1)
    rot2 = 7
    rotF = 0
    rotS = None
    map2 = 84
    prewarm = True
    NT = 2
    early = 200
    w0pos = None
    s1a = 2
    smallpos = 2
    tlb = False
    pre_kernel = None
    lag = 0
    lagr = 4
    JL = 7
    prog = 'W2,G0|;W3,C0|sel;W4|g0;E0,W5,D0,D1,D2,D3|g1;W6|P0;W7|P1;C1|H;C2|F'
    p2cut = 50
    cbuf = (4, 0, 1, 4, 0, 1, 4, 0)
    tplan = ()
    zfill = True
    prioB = 0
    LA = 4
    posX = 8
    pren = 4
    hpad = (0, 0)
    hlook = 9
    hearly = 0
    hnow = 4
    sleep = (1, 1)
    skip = ''
    flagpos = (0, 0, 3)
    alook = 18
    abet = 3
    posXB = -17
    fine = True
    prioF2 = 1
    NVA = 11
    NV0 = (12, 0)
    xdpos = 32
    NV = 12
    TL = 4
    pull0 = 2
    zg = ((0, 1), (2,), (3,))
    zlag = 3
    outflags = 'sc1'
    selA = None
    selB = None
    prioA = 0
    amp = None


def srd(r):
    return 's[%d:%d]' % (r, r + 3)


def vr(a, n):
    return 'v[%d:%d]' % (a, a + n - 1) if n > 1 else 'v%d' % a


def mk_srd(e, r, p, nbytes):
    e.I('s_mov_b32 s%d, s%d\ns_mov_b32 s%d, s%d\ns_mov_b32 s%d, 0x%x\ns_mov_b32 s%d, 0x20000' %
        (r, p, r + 1, p + 1, r + 2, nbytes, r + 3))


def mk_srd_sel(e, r, p1, p0, nbytes):
    e.I('s_cselect_b32 s%d, s%d, s%d\ns_cselect_b32 s%d, s%d, s%d\ns_mov_b32 s%d, 0x%x\ns_mov_b32 s%d, 0x20000' %
        (r, p1, p0, r + 1, p1 + 1, p0 + 1, r + 2, nbytes, r + 3))


def mfma(e, d, a, b, first):
    e.I('v_mfma_f32_32x32x16_bf16 %s, %s, %s, %s' % (vr(d, 16), vr(a, 4), vr(b, 4), '0' if first else vr(d, 16)))


def mfma16(e, d, a, b, first):
    e.I('v_mfma_f32_16x16x32_bf16 %s, %s, %s, %s' % (vr(d, 4), vr(a, 4), vr(b, 4), '0' if first else vr(d, 4)))


class Stamps:
    def __init__(self, cfg, regs, role):
        self.amp = cfg.amp if cfg.amp else None
        self.role = role
        self.sel = (cfg.selA if role == 'A' else cfg.selB)
        if self.sel is not None:
            self.sel = self.sel.split(',')
        self.ins = 's_memtime' if cfg.stamps == 'cyc' else 's_memrealtime'
        self.on = cfg.stamps or bool(self.amp)
        self.regs = regs
        self.names = []

    def __call__(self, e, name):
        if not self.on:
            return
        if self.sel is not None:
            if name != 'start' and name not in self.sel:
                return
        elif name.startswith('_'):
            return
        r = self.regs[len(self.names)]
        self.names.append(name)
        if self.amp and name not in ('start', 'end', self.amp[1], self.amp[2]):
            return
        e.I('%s s[%d:%d]' % (self.ins, r, r + 1))

    def flush(self, e):
        if not self.on:
            return
        e.wait_smem()
        if self.amp:
            if self.amp[0] == self.role:
                R = dict(zip(self.names, self.regs))
                e.I('s_sub_u32 s%d, s%d, s%d\ns_mul_i32 s%d, s%d, %d\ns_min_u32 s%d, s%d, 50000' %
                    (T0, R[self.amp[2]], R[self.amp[1]], T0, T0, self.amp[3], T0, T0))
                e.label('L_amp')
                e.I('s_memrealtime s[%d:%d]' % (T1, T1 + 1))
                e.wait_smem()
                e.I('s_sub_u32 s%d, s%d, s%d\ns_cmp_lt_u32 s%d, s%d\ns_cbranch_scc1 L_amp' % (T1, T1, R['end'], T1, T0))
            return
        e.I('s_lshl_b32 s%d, s2, 3\ns_add_u32 s%d, s%d, s%d\ns_lshl_b32 s%d, s%d, 6\ns_add_u32 s%d, s%d, 0x%x' %
            (T0, T0, T0, sWAVE, T0, T0, T0, T0, STAMP_OFF))
        e.I('s_mov_b64 exec, 1')
        for k in range(len(self.names)):
            e.I('v_mov_b32 v2, s%d' % self.regs[k])
            e.I('buffer_store_dword v2, off, %s, s%d offset:%d' % (srd(SWS), T0, 4 * k))


def run(items):
    for it in items:
        it()


def poll(e, label, vt, vaddr, soff, mask, between=None):
    def look(tag=None):
        e.I('s_mov_b64 exec, %s' % mask)
        e.I('buffer_load_dword v%d, v%d, %s, s%d offen sc1' % (vt, vaddr, srd(SWS), soff), tag=tag)
        e.I('s_mov_b64 exec, -1')

    def check():
        e.I('v_cmp_ne_u32 vcc, s%d, v%d' % (sNONCE, vt))
        e.I('s_and_b64 vcc, vcc, %s' % mask)
    spin(e, label, look, check, between)


def spin(e, label, look, check, between):
    look('look')
    if between:
        between()
    e.wait(vm='look')
    check()
    e.I('s_cbranch_scc1 %s' % label)
    e.label(label + '_out')
    with e.cold_block():
        e.label(label)
        e.I('s_mov_b32 s%d, 0' % sCNT)
        e.label(label + '_l')
        if SLEEP[0]:
            e.I('s_sleep %d' % SLEEP[0])
        look()
        e.I('s_add_u32 s%d, s%d, 1' % (sCNT, sCNT))
        e.I('s_cmp_gt_u32 s%d, %d' % (sCNT, SPIN_MAX))
        e.wait(vm='all')
        e.I('s_cbranch_scc1 %s_out' % label)
        check()
        e.I('s_cbranch_scc1 %s_l' % label)
        e.I('s_branch %s_out' % label)


def code_touch(e, tag):
    e.I('s_getpc_b64 s[%d:%d]' % (sMA, sMA + 1))
    e.label('L_pc' + tag)
    e.I('s_sub_u32 s%d, s%d, L_pc%s-%s\ns_subb_u32 s%d, s%d, 0' % (sMA, sMA, tag, NAME, sMA + 1, sMA + 1))
    e.I('s_and_b32 s%d, s2, 0xf8\ns_add_u32 s%d, s%d, s%d\ns_lshl_b32 s%d, s%d, 6' % (T0, T0, T0, sWAVE, T0, T0))
    e.I('s_load_dword s3, s[%d:%d], s%d' % (sMA, sMA + 1, T0))
    e.I('s_add_u32 s%d, s%d, 16384\ns_min_u32 s%d, s%d, L_end-%s' % (T0, T0, T0, T0, NAME))
    e.I('s_load_dword s3, s[%d:%d], s%d' % (sMA, sMA + 1, T0))


def rot2_calc(e, cfg, dst, b):
    e.I('s_mul_i32 s%d, s%d, %d' % (dst, sCT, b))
    for k in range(1 if cfg.map2 == 84 else 2):
        e.I('s_add_u32 s%d, s%d, s%d' % (dst, dst, sRT))
    e.I('s_and_b32 s%d, s%d, %d' % (dst, dst, cfg.rot2))


def step_start(e, cfg, cur, beg, end, shift):
    rot2_calc(e, cfg, cur, cfg.rotF)
    e.I('s_cmp_eq_u32 s%d, 3\ns_cselect_b32 s%d, 10, 11' % (sW, end))
    e.I('s_mul_i32 s%d, s%d, s%d\ns_lshr_b32 s%d, s%d, 3\ns_mul_i32 s%d, s%d, 11' % (cur, cur, end, cur, cur, beg, sW))
    e.I('s_add_u32 s%d, s%d, s%d\ns_add_u32 s%d, s%d, s%d' % (cur, cur, beg, end, end, beg))
    for r in (cur, beg, end):
        e.I('s_lshl_b32 s%d, s%d, %d' % (r, r, shift))


def step_next(e, cur, beg, end, inc, wrap=True, last=False):
    e.I('s_add_u32 s%d, s%d, %d' % (cur, cur, inc))
    if wrap:
        e.I('s_cmp_eq_u32 s%d, s%d\ns_cselect_b32 s%d, s%d, s%d' % (cur, end, cur, beg, cur))
    if last:
        e.I('s_cmp_eq_u32 s%d, 3\ns_cselect_b32 s%d, 0x%x, s%d' % (sW, cur, OOB, cur))


def wd_next(e, n, cur, beg, end):
    step_next(e, cur, beg, end, 16384, n % 2 == 0, n == 20)


def set_m0(e, base, off):
    if getattr(e, 'm0', None) != (base, off):
        e.I('s_add_u32 m0, s%d, %d' % (base, off))
        e.m0 = (base, off)


def wd_lane_offsets(e, WDV, t0, t1):
    txt = 'v_lshrrev_b32 v%d, 4, v0\nv_lshlrev_b32 v%d, 1, v%d\nv_and_b32 v%d, 7, v0\nv_xor_b32 v%d, v%d, v%d\nv_lshlrev_b32 v%d, 4, v%d\n' % (
        t0, t0, t0, t1, t0, t0, t1, t0, t0)
    txt += 'v_lshrrev_b32 v%d, 3, v0\nv_lshl_add_u32 v%d, v%d, 10, v%d\n' % (t1, t0, t1, t0)
    txt += 's_lshl_b32 s%d, s%d, 7\n' % (T0, sCT)
    txt += 'v_add_u32 v%d, s%d, v%d\nv_add_u32 v%d, 7168, v%d' % (WDV, T0, t0, WDV + 1, WDV)
    return txt


RING = [(5, n) for n in range(3)] + [(4, 2)] + [(2 + n // 3, n % 3) for n in range(6)] + [(4, n) for n in range(2)] \
    + [(n // 3, n % 3) for n in range(6)] + [(2, n) for n in range(3)] + [(3, 0)]
PREV = {18: 4, 19: 5, 20: 6, 21: 7}


class Touch:
    def __init__(self, e, cfg, role):
        self.e, self.role = e, role
        self.plan = [p for p in cfg.tplan if p[0] == role]
        it = []
        for par in range(2):
            for p in (P_CRE, P_CIM):
                it += [(p, 128 * k + 64 * par) for k in range(4)]
        for par in range(2):
            it += [(P_WD, 128 * k + 64 * par) for k in range(11)]
        self.items = it

    def setup(self):
        if not self.plan:
            return
        e = self.e
        used = {self.items[k][0] for p in self.plan for k in range(p[2], p[3])}
        e.I('s_lshl_b32 s%d, s2, 2\ns_add_u32 s%d, s%d, s%d' % (T0, T0, T0, sW))
        for p in sorted(used):
            e.I('s_mul_i32 s%d, s%d, %d' % (T1, T0, 1376 if p == P_WD else 512))
            e.I('s_add_u32 s%d, s%d, s%d\ns_addc_u32 s%d, s%d, 0' % (p, p, T1, p + 1, p + 1))

    def at(self, place):
        for p in self.plan:
            if p[1] == place:
                for k in range(p[2], p[3]):
                    self.e.I('s_load_dword s3, s[%d:%d], %d' % (self.items[k][0], self.items[k][0] + 1, self.items[k][1]))


def flag_store(e, vt, soff, imm=0):
    e.I('s_mov_b64 exec, 1')
    e.I('buffer_store_dword v%d, off, %s, s%d offset:%d sc1' % (vt, srd(SWS), soff, imm), tag='flag')
    e.I('s_mov_b64 exec, -1')


def frag_addr(e, dst, t0, t1):
    e.I('v_lshrrev_b32 v%d, 5, v0' % t0)
    e.I('v_bfe_u32 v%d, v0, 1, 3' % t1)
    e.I('v_xor_b32 v%d, v%d, v%d' % (t0, t0, t1))
    e.I('v_and_b32 v%d, 31, v0' % t1)
    e.I('v_lshlrev_b32 v%d, 7, v%d' % (t1, t1))
    e.I('v_lshl_add_u32 v%d, v%d, 4, v%d' % (dst, t0, t1))
    for s in range(1, 4):
        e.I('v_xor_b32 v%d, %d, v%d' % (dst + s, 32 * s, dst))


def frag16_addr(e, dst, t0, t1):
    e.I('v_lshrrev_b32 v%d, 4, v0' % t0)
    e.I('v_bfe_u32 v%d, v0, 1, 3' % t1)
    e.I('v_xor_b32 v%d, v%d, v%d' % (t0, t0, t1))
    e.I('v_and_b32 v%d, 15, v0' % t1)
    e.I('v_lshlrev_b32 v%d, 7, v%d' % (t1, t1))
    e.I('v_lshl_add_u32 v%d, v%d, 4, v%d' % (dst, t0, t1))
    e.I('v_xor_b32 v%d, 64, v%d' % (dst + 1, dst))


def w_tr_addr(e, d, t0, t1):
    e.I('v_lshrrev_b32 v%d, 4, v0' % t0)
    e.I('v_bfe_u32 v%d, v0, 2, 2' % t1)
    e.I('v_lshl_add_u32 v%d, v%d, 3, v%d' % (t0, t0, t1))
    e.I('v_mul_u32_u24 v%d, 192, v%d' % (t0, t0))
    e.I('v_bfe_u32 v%d, v0, 4, 1' % t1)
    e.I('v_lshl_add_u32 v%d, v%d, 5, v%d' % (t0, t1, t0))
    e.I('v_and_b32 v%d, 3, v0' % t1)
    e.I('v_lshl_add_u32 v%d, v%d, 3, v%d' % (d, t1, t0))
    e.I('v_xor_b32 v%d, 32, v%d' % (d + 1, d))
    e.I('v_add_u32 v%d, %d, v%d\nv_add_u32 v%d, %d, v%d' % (d + 2, WIN, d, d + 3, WIN, d + 1))


W_SLOT = [0, 1, 2, 3, 0, 1, 2, 3]
S_SHIFT = [0]


def s_slot(i):
    return (i + 4) % 6 if S_SHIFT[0] < 0 else (i + S_SHIFT[0]) % 4


def w_frag_read(e, dst, wa, j, s2, g, mat, fh, mm, tag):
    slot = W_SLOT[j]
    off = (slot & 1) * SLOT + mat * 12288 + (32 * s2 + 4 * mm) * 192 + g * 64
    e.I('ds_read_b64_tr_b16 %s, v%d offset:%d' % (vr(dst + 2 * mm, 2), wa + 2 * (slot >> 1) + fh, off), tag=tag)


def act_items(e, cfg, G, U, tmp, out):
    items = []
    add = lambda t: items.append(lambda t=t: e.I(t))
    for b in range(2):
        g, u, o = G + 8 * b, U + 8 * b, out + 4 * b
        if cfg.mimic:
            for src in (g, u):
                for p in range(4):
                    add('v_cvt_pk_bf16_f32 v%d, v%d, v%d' % (tmp + p, src + 2 * p, src + 2 * p + 1))
                for p in range(4):
                    add('v_lshlrev_b32 v%d, 16, v%d' % (src + 2 * p, tmp + p))
                    add('v_and_b32 v%d, 0xffff0000, v%d' % (src + 2 * p + 1, tmp + p))
        for p in range(4):
            add('v_pk_mul_f32 %s, %s, s[%d:%d]' % (vr(tmp + 2 * p, 2), vr(g + 2 * p, 2), sNL2E, sNL2E + 1))
        for p in range(8):
            add('v_exp_f32 v%d, v%d' % (tmp + p, tmp + p))
        for p in range(4):
            add('v_pk_add_f32 %s, %s, 1.0 op_sel_hi:[1,0]' % (vr(tmp + 2 * p, 2), vr(tmp + 2 * p, 2)))
        for p in range(8):
            add('v_rcp_f32 v%d, v%d' % (tmp + p, tmp + p))
        for p in range(4):
            add('v_pk_mul_f32 %s, %s, %s' % (vr(g + 2 * p, 2), vr(g + 2 * p, 2), vr(tmp + 2 * p, 2)))
        if cfg.mimic:
            for p in range(4):
                add('v_cvt_pk_bf16_f32 v%d, v%d, v%d' % (tmp + p, g + 2 * p, g + 2 * p + 1))
            for p in range(4):
                add('v_lshlrev_b32 v%d, 16, v%d' % (g + 2 * p, tmp + p))
                add('v_and_b32 v%d, 0xffff0000, v%d' % (g + 2 * p + 1, tmp + p))
        for p in range(4):
            add('v_pk_mul_f32 %s, %s, %s' % (vr(u + 2 * p, 2), vr(g + 2 * p, 2), vr(u + 2 * p, 2)))
        for p in range(4):
            add('v_cvt_pk_bf16_f32 v%d, v%d, v%d' % (o + p, u + 2 * p, u + 2 * p + 1))
    return items


def act_items_scalar(e, cfg, G, U, tmp, out):
    if cfg.mimic:
        return act_items(e, cfg, G, U, tmp, out)
    items = []
    add = lambda t: items.append(lambda t=t: e.I(t))
    for b in range(4):
        g, u, o = G + 4 * b, U + 4 * b, out + 2 * b
        for p in range(4):
            add('v_mul_f32 v%d, s%d, v%d' % (tmp + p, sNL2E, g + p))
        for p in range(4):
            add('v_exp_f32 v%d, v%d' % (tmp + p, tmp + p))
            add('v_mul_f32 v%d, v%d, v%d' % (u + p, g + p, u + p))
        for p in range(4):
            add('v_add_f32 v%d, 1.0, v%d' % (tmp + p, tmp + p))
        for p in range(4):
            add('v_rcp_f32 v%d, v%d' % (tmp + p, tmp + p))
        for p in range(4):
            add('v_mul_f32 v%d, v%d, v%d' % (u + p, tmp + p, u + p))
        for p in range(2):
            add('v_cvt_pk_bf16_f32 v%d, v%d, v%d' % (o + p, u + 2 * p, u + 2 * p + 1))
    return items


def light_scc(e):
    e.I('s_and_b32 s%d, s%d, 3\ns_cmp_eq_u32 s%d, 3\ns_cselect_b32 s%d, 14, s%d\ns_cmp_eq_u32 s%d, 14' % (T0, sCB, T0, T0, sCB, T0))


def w_lane_offsets(e, cfg, WV, t0, t1):
    if cfg.zfill:
        light_scc(e)
        e.I('s_cselect_b32 s%d, 8, 12' % sTW)
    e.I('s_and_b32 s%d, s%d, 1' % (T1, sW))
    e.I('s_mul_i32 s%d, s%d, %d\ns_lshl_b32 s%d, s%d, 6\ns_add_u32 s%d, s%d, s%d' % (T0, T1, 32 * 2752, T1, sSG0, T0, T0, T1))
    for q in range(3):
        e.I('v_add_u32 v%d, %d, v0\nv_mul_u32_u24 v%d, 171, v%d\nv_lshrrev_b32 v%d, 11, v%d' % (t1, 64 * q, t0, t1, t0, t0))
        if cfg.zfill:
            e.I('v_mul_u32_u24 v%d, 12, v%d\nv_sub_u32 v%d, v%d, v%d\nv_cmp_gt_u32 vcc, s%d, v%d' % (WV + q, t0, t1, t1, WV + q, sTW, t1))
        e.I('v_lshrrev_b32 v%d, 3, v%d\nv_lshlrev_b32 v%d, 1, v%d\nv_xor_b32 v%d, v0, v%d' % (t1, t0, t1, t1, t1, t1))
        e.I('v_mul_u32_u24 v%d, %d, v%d' % (t0, 2752 - 192, t0))
        e.I('v_lshl_add_u32 v%d, v%d, 4, v%d' % (t0, t1, t0))
        e.I('v_add_u32 v%d, s%d, v%d' % (WV + q, T0, t0))
        if cfg.zfill:
            e.I('v_mov_b32 v%d, 0x%x\nv_cndmask_b32 v%d, v%d, v%d, vcc' % (t0, OOB, WV + q, t0, WV + q))
    e.I('s_mul_i32 s%d, s%d, 6144' % (sMW, sW))


def dma_W(e, WV, SWR, j):
    slot = W_SLOT[j] * SLOT
    its = []
    for grp in range(2):
        for q in range(3):
            def f(grp=grp, q=q):
                set_m0(e, sMW, slot + grp * 3072)
                if q == 0 and grp == 0:
                    e.I('s_add_u32 s%d, s%d, %d\ns_and_b32 s%d, s%d, 7\ns_mul_i32 s%d, s%d, %d' %
                        (sTW, sK0, j, sTW, sTW, sTW, sTW, 64 * 2752))
                if q == 0 and grp == 1:
                    e.I('s_add_u32 s%d, s%d, %d' % (sTW, sTW, 16 * 2752))
                e.I('buffer_load_dwordx4 v%d, %s, s%d offen offset:%d lds' % (WV + q, srd(SWR), sTW, 1024 * q), tag=('st', 8 + j))
            its.append(f)
    return its


C_LAND, C_CONS, C_Q, C_DONEA = 0, 32, 64, 68


def cnt_add(e, va, vone, off):
    e.I('s_mov_b64 exec, 1')
    e.I('ds_add_u32 v%d, v%d offset:%d' % (va, vone, off), tag='sig')
    e.I('s_mov_b64 exec, -1')


def cnt_look(e, va, vt, off, tag):
    e.I('ds_read_b32 v%d, v%d offset:%d' % (vt, va, off), tag=tag)


def cnt_check(e, label, va, vt, off, tag):
    e.wait(lg=tag)
    e.I('v_cmp_ne_u32 vcc, 4, v%d' % vt)
    e.I('s_cbranch_vccnz %s' % label)
    e.label(label + '_out')
    with e.cold_block():
        e.label(label)
        e.I('s_mov_b32 s%d, 0' % sCNT)
        e.label(label + '_l')
        if SLEEP[1]:
            e.I('s_sleep %d' % SLEEP[1])
        cnt_look(e, va, vt, off, None)
        e.I('s_add_u32 s%d, s%d, 1' % (sCNT, sCNT))
        e.I('s_cmp_gt_u32 s%d, %d' % (sCNT, 20 * SPIN_MAX))
        e.wait(lg='all')
        e.I('s_cbranch_scc1 %s_out' % label)
        e.I('v_cmp_ne_u32 vcc, 4, v%d' % vt)
        e.I('s_cbranch_vccnz %s_l' % label)
        e.I('s_branch %s_out' % label)


def cnt_spin(e, label, va, vt, off):
    cnt_look(e, va, vt, off, 'look')
    cnt_check(e, label, va, vt, off, 'look')


def act_offsets(e, k, s_data, s_flag, valid_scc=False):
    e.I('s_lshl_b32 s%d, s%d, 2\ns_add_u32 s%d, s%d, s%d' % (T0, sRB, T0, T0, sW))
    e.I('s_mul_i32 s%d, s%d, 43\ns_add_u32 s%d, s%d, s%d\ns_add_u32 s%d, s%d, %d\ns_lshl_b32 s%d, s%d, 11' %
        (T1, T0, T1, T1, sSG0, T1, T1, k, s_data, T1))
    e.I('s_lshr_b32 s%d, s%d, 1\ns_mul_i32 s%d, s%d, 44\ns_add_u32 s%d, s%d, s%d\ns_add_u32 s%d, s%d, %d' %
        (T1, T0, T1, T1, T1, T1, sSG0, T1, T1, k))
    e.I('s_lshl_b32 s%d, s%d, 1\ns_and_b32 s%d, s%d, 1\ns_add_u32 s%d, s%d, s%d\ns_mul_i32 s%d, s%d, %d\ns_add_u32 s%d, s%d, 0x%x' %
        (T1, T1, T0, T0, T1, T1, T0, T1, T1, FS, s_flag, T1, AF_OFF))


def part_write_addr(e, dst, t0, t1, piece_stride, wave_stride, base):
    e.I('v_lshrrev_b32 v%d, 4, v0' % t0)
    e.I('v_and_b32 v%d, 7, v0' % t1)
    e.I('v_xor_b32 v%d, v%d, v%d' % (t0, t0, t1))
    e.I('v_lshlrev_b32 v%d, 4, v%d' % (dst, t0))
    e.I('v_bfe_u32 v%d, v0, 3, 1' % t0)
    e.I('v_and_b32 v%d, 3, v0' % t1)
    e.I('v_lshl_add_u32 v%d, v%d, 2, v%d' % (t0, t0, t1))
    e.I('v_lshl_add_u32 v%d, v%d, 8, v%d' % (dst, t0, dst))
    e.I('v_bfe_u32 v%d, v0, 2, 1' % t0)
    e.I('v_mul_u32_u24 v%d, %d, v%d' % (t0, piece_stride, t0))
    e.I('s_mul_i32 s%d, s%d, %d\ns_add_u32 s%d, s%d, %d' % (T0, sW, wave_stride, T0, T0, base))
    e.I('v_add3_u32 v%d, v%d, v%d, s%d' % (dst, dst, t0, T0))
    e.I('v_xor_b32 v%d, 64, v%d' % (dst + 1, dst))


def acc2(t4, dq):
    return 64 + 16 * t4 + 4 * dq


def part_write(e, addr, piece_stride, tt, addr1=None):
    its = []
    for a in range(2):
        for dq in range(4):
            ad_, off = (addr + (dq & 1), (dq >> 1) * 128) if addr1 is None or dq < 2 else (addr1 + (dq & 1), 0)
            its.append(lambda ad_=ad_, off=off, dq=dq, a=a:
                       e.I('ds_write_b128 v%d, %s offset:%d' % (ad_, vr(acc2(2 * tt + a, dq), 4), tt * 2 * piece_stride + a * 2048 + off), tag=('pw', tt)))
    return its


def gen_entry(e, cfg, st):
    e.I('s_cmp_ge_u32 s2, 256\ns_cbranch_scc1 L_end')
    e.I('s_load_dwordx16 s[4:19], s[0:1], 0\ns_load_dwordx16 s[20:35], s[0:1], 64\ns_load_dwordx2 s[36:37], s[0:1], 128')
    st(e, 'start')
    e.I('v_lshrrev_b32 v1, 6, v0\nv_and_b32 v0, 63, v0')
    e.I('v_readfirstlane_b32 s%d, v1' % sWAVE)
    e.I('s_and_b32 s%d, s2, 7\ns_lshr_b32 s%d, s2, 3' % (T0, T1))
    e.I('s_and_b32 s%d, s%d, 7\ns_lshr_b32 s%d, s%d, 3' % (T2, T1, T3, T1))
    e.I('s_and_b32 s%d, s%d, 1\ns_lshl_b32 s%d, s%d, 3\ns_add_u32 s%d, s%d, s%d' % (sRB, T0, sRB, sRB, sRB, sRB, T2))
    e.I('s_lshr_b32 s%d, s%d, 1' % (T4, T0))
    e.I('s_lshl_b32 s%d, s%d, 2\ns_add_u32 s%d, s%d, s%d' % (sCB, T4, sCB, sCB, T3))
    e.I('s_mul_i32 s%d, s%d, %d' % (sK0, T2, cfg.rot1[0]))
    for src, mul in zip((T3, T4, None), cfg.rot1[1:]):
        if mul:
            if src is None:
                e.I('s_and_b32 s%d, s%d, 1' % (T5, T0))
            e.I('s_mul_i32 s%d, s%d, %d\ns_add_u32 s%d, s%d, s%d' % (T5, T5 if src is None else src, mul, sK0, sK0, T5))
    e.I('s_and_b32 s%d, s%d, 7' % (sK0, sK0))
    e.I('s_mul_i32 s%d, s%d, 11\ns_mul_i32 s%d, s%d, 3\ns_add_u32 s%d, s%d, s%d' % (sSG0, T4, T5, T3, sSG0, sSG0, T5))
    e.I('s_cmp_eq_u32 s%d, 15\ns_subb_u32 s%d, s%d, 0' % (sCB, sSG0, sSG0))
    if cfg.map2 == 84:
        e.I('s_lshl_b32 s%d, s%d, 3\ns_add_u32 s%d, s%d, s%d' % (sRT, T4, sRT, sRT, T2))
        e.I('s_and_b32 s%d, s%d, 1\ns_lshl_b32 s%d, s%d, 2\ns_add_u32 s%d, s%d, s%d' % (sCT, T0, sCT, sCT, sCT, sCT, T3))
    else:
        e.I('s_lshl_b32 s%d, s%d, 2\ns_and_b32 s%d, s%d, 3\ns_add_u32 s%d, s%d, s%d\ns_lshr_b32 s%d, s%d, 2' %
            (sRT, T0, T5, T1, sRT, sRT, T5, sCT, T1))
    e.I('s_and_b32 s%d, s%d, 3' % (sW, sWAVE))
    e.I('s_cmp_lt_u32 s%d, 4\ns_cbranch_scc1 L_A' % sWAVE)


def gen_B(e, cfg, st):
    NPRE = cfg.prog.count('D')
    WA = 2
    EP = 42
    XV, BV, WV, XA = 32, 36, 38, 44
    e.I('v_lshrrev_b32 v8, 3, v0')
    e.I('v_and_b32 v9, 7, v0')
    e.I('v_lshrrev_b32 v10, 4, v0')
    e.I('v_xor_b32 v10, v9, v10\nv_lshlrev_b32 v10, 4, v10')
    e.I('v_lshrrev_b32 v11, 5, v0\nv_and_b32 v12, 3, v8\nv_lshl_add_u32 v11, v11, 4, v12')
    e.I('s_lshl_b32 s%d, s%d, 2\ns_add_u32 s%d, s%d, s%d\ns_lshl_b32 s%d, s%d, 15' % (T0, sRB, T0, T0, sW, T0, T0))
    e.I('v_lshl_add_u32 v11, v11, 10, s%d' % T0)
    e.I('v_add_u32 v%d, v11, v10' % XV)
    e.I('v_xor_b32 v13, 64, v%d' % XV)
    e.I('v_add_u32 v%d, 3072, v13\nv_add_u32 v%d, 6144, v%d\nv_add_u32 v%d, 9216, v13' % (XV + 1, XV + 2, XV, XV + 3))
    e.I('s_and_b32 s%d, s%d, 1' % (T1, sW))
    e.I('s_lshl_b32 s%d, s%d, 1\ns_add_u32 s%d, s%d, s%d\ns_lshl_b32 s%d, s%d, 14' % (T0, sCB, T0, T0, T1, T0, T0))
    e.I('v_lshrrev_b32 v11, 5, v0\nv_lshl_add_u32 v11, v11, 3, v12')
    e.I('v_lshl_add_u32 v11, v11, 10, s%d' % T0)
    e.I('v_add_u32 v%d, v11, v10' % BV)
    e.I('v_xor_b32 v13, 64, v%d\nv_add_u32 v%d, 3072, v13' % (BV, BV + 1))
    e.I('s_lshl_b32 s%d, s%d, 12' % (sMX, sW))
    e.I('s_lshl_b32 s%d, s%d, 11\ns_add_u32 s%d, s%d, 16384' % (sMBm, sW, sMBm, sMBm))
    e.I('s_lshl_b32 s%d, s%d, 7' % (T6, sK0))
    e.wait_smem()
    st(e, 'karg')
    mk_srd(e, SX, P_X, 2048 * 1024)
    e.I('s_cmp_ge_u32 s%d, 2' % sW)
    mk_srd_sel(e, SBM, P_BIM, P_BRE, 512 * 1024)

    def dma_S(i):
        slot = s_slot(i) * SLOT
        its = []
        for q in range(4):
            def f(q=q):
                if q == 0:
                    set_m0(e, sMX, slot)
                    e.I('s_add_u32 s%d, s%d, %d\ns_and_b32 s%d, s%d, 1023' % (sTS, T6, i * 128, sTS, sTS))
                e.I('buffer_load_dwordx4 v%d, %s, s%d offen offset:%d lds' % (XV + q, srd(SX), sTS, 1024 * q), tag=('st', i))
            its.append(f)
        for q in range(2):
            def f(q=q):
                if q == 0:
                    set_m0(e, sMBm, slot)
                e.I('buffer_load_dwordx4 v%d, %s, s%d offen offset:%d lds' % (BV + q, srd(SBM), sTS, 1024 * q), tag=('st', i))
            its.append(f)
        return its

    run(dma_S(0))
    st(e, 'dma0')
    s1 = dma_S(1)
    run(s1[:cfg.s1a])
    e.I('v_lshlrev_b32 v11, 2, v0\nv_add_u32 v11, %d, v11\nv_mov_b32 v12, 0' % L_FL)
    e.I('ds_write_b32 v11, v12', tag='init')
    if cfg.prewarm:
        code_touch(e, 'B')
    e.I('s_cmp_ge_u32 s%d, 2' % sW)
    mk_srd_sel(e, SW, P_WU, P_WG, 512 * 2752)
    mk_srd(e, SWS, P_WS, WS_SIZE)
    mk_srd(e, SWD, P_WD, 1376 * 1024)
    if cfg.tlb:
        for p in (P_WG, P_WU, P_WD, P_CRE, P_CIM, P_OUT):
            e.I('s_load_dword s3, s[%d:%d], 0' % (p, p + 1))
    w_lane_offsets(e, cfg, WV, 11, 12)
    frag16_addr(e, XA, 11, 12)
    for s in range(2):
        e.I('v_add_u32 v%d, s%d, v%d' % (XA + s, sMX, XA + s))
        e.I('v_add_u32 v%d, %d, v%d' % (XA + 2 + s, WIN, XA + s))
        if cfg.lag:
            e.I('v_add_u32 v%d, %d, v%d' % (XA + 4 + s, 2 * WIN, XA + s))
    w_tr_addr(e, WA, 11, 12)
    e.I('v_lshlrev_b32 v1, 4, v0')
    tch = Touch(e, cfg, 'B')
    tch.setup()
    tch.at(-1)

    sDC, sDB, sDE, sAC, sAB, sAE = 86, 87, 88, 89, 90, 91
    sD0, sF0, sD2, sF2 = T2, T3, T4, T5
    st(e, '_pro')
    sP0 = 92
    if isinstance(cfg.w0pos, tuple):
        tab = sum(p << (4 * r) for r, p in enumerate(cfg.w0pos))
        e.I('s_and_b32 s%d, s%d, 7\ns_lshl_b32 s%d, s%d, 2\ns_lshr_b32 s%d, 0x%x, s%d\ns_and_b32 s%d, s%d, 15' %
            (T0, sRB, T0, T0, sP0, tab, T0, sP0, sP0))

    def w0_hook(p):
        if cfg.w0pos == p:
            run(dma_W(e, WV, SW, 0))
        elif isinstance(cfg.w0pos, tuple) and p in cfg.w0pos:
            e.I('s_cmp_eq_u32 s%d, %d\ns_cbranch_scc1 L_w0_%d' % (sP0, p, p))
            e.label('L_w0_%d_out' % p)
            with e.cold_block():
                e.label('L_w0_%d' % p)
                run(dma_W(e, WV, SW, 0))
                e.I('s_branch L_w0_%d_out' % p)
            e.m0 = None
    run(s1[cfg.s1a:])
    st(e, '_dma1')
    w0_hook(1)
    e.wait(vm=('st', 0))
    st(e, '_sa0')
    e.I('s_barrier')
    st(e, 'b0')
    for i in range(8):
        if i == 1:
            e.I('s_mov_b32 s%d, 0x%x' % (T0, EPOCH_OFF))
            e.I('buffer_load_dword v%d, off, %s, s%d sc1' % (EP, srd(SWS), T0), tag='ep')
        if i < 6:
            run(dma_S(i + 2))
            w0_hook(i + 2)
        elif cfg.w0pos is None:
            run(dma_W(e, WV, SW, i - 6))
        elif i == 6 or 'W2' not in cfg.prog:
            run(dma_W(e, WV, SW, i - 5))
        for s in range(4):
            slot = s_slot(i)
            e.I('ds_read_b128 %s, v%d offset:%d' % (vr(128 + 4 * (4 * i + s), 4), XA + 2 * (slot >> 1) + (s >> 1), (slot & 1) * SLOT + (s & 1) * 2048), tag='x')
        if i == 4:
            e.wait(vm='ep')
            e.I('v_readfirstlane_b32 s%d, v%d' % (sNONCE, EP))
            e.I('s_add_u32 s%d, s%d, 0x%x\ns_or_b32 s%d, s%d, 1' % (sNONCE, sNONCE, PHI, sNONCE, sNONCE))
            e.I('s_mov_b32 s%d, 0x%x\ns_mov_b32 s%d, 0x%x' % (sNL2E, NLOG2E, sNL2E + 1, NLOG2E))
        if i == 2:
            step_start(e, cfg, sAC, sAB, sAE, 11)
        if i == 3:
            for k in range(3):
                e.I('s_lshl_b32 s%d, s%d, 4' % (sDC + k, sAC + k))
            for n in range(1, NPRE):
                wd_next(e, n, sDC, sDB, sDE)
        if i == 5:
            act_offsets(e, 0, sD0, sF0)
        if i == 6:
            e.I('s_add_u32 s%d, s%d, 4096\ns_add_u32 s%d, s%d, %d' % (sD2, sD0, sF2, sF0, 4 * FS))
            light_scc(e)
            e.I('s_cselect_b32 s%d, 0x%x, s%d\ns_cselect_b32 s%d, 0x%x, s%d' % (sD2, OOB, sD2, sF2, OOB, sF2))
            e.I('v_mov_b32 v7, %d\nv_mov_b32 v6, 1' % L_FL)
        if i < 7:
            e.wait(vm=('st', i + 1), lg='all')
            st(e, '_sa%d' % (i + 1))
            e.I('s_barrier')
            st(e, '_sd%d' % (i + 1))
            if i == 0:
                st(e, 'b1')
    NT = cfg.NT
    ops = []
    for j in range(8 - NT):
        for s in range(2):
            for g in range(3):
                for mf in range(4):
                    ops.append((j, s, g, mf))
    tail0 = len(ops)
    for g in range(3):
        for j in range(8 - NT, 8):
            for s in range(2):
                for mf in range(4):
                    ops.append((j, s, g, mf))
    NB, LA = 6, cfg.LA
    first = {j: min(q for q in range(len(ops)) if ops[q][0] == j) for j in range(8)}
    last = {j: max(q for q in range(len(ops)) if ops[q][0] == j) for j in range(8)}

    def rd(q, half):
        if q >= len(ops):
            return
        j, s, g, mf = ops[q]
        if q == first[j] and j <= cfg.JL and half == 0:
            e.wait(vm=('st', 8 + j), lg='x')
            st(e, '_a%d' % j)
            e.I('s_barrier')
            st(e, '_d%d' % j)
            if j in (0, 4, cfg.JL):
                st(e, 'b%d' % (8 + j))
            if j == 0 and cfg.prioB:
                e.I('s_setprio %d' % cfg.prioB)
        w_frag_read(e, 8 + 4 * (q % NB), WA, j, s, g, mf >> 1, mf & 1, half, ('wf', q))
        if q == last[7] and half == 1:
            cnt_add(e, 7, 6, C_CONS + 28)

    def mm(q, a):
        j, s, g, mf = ops[q]
        if a == 0 and q % 2 == 0:
            e.wait(lg=('wf', q + 1))
        mfma16(e, 32 + 32 * g + 16 * (mf >> 1) + 8 * a + 4 * (mf & 1), 8 + 4 * (q % NB), 128 + 16 * j + 8 * s + 4 * a, j == 0 and s == 0)
        rd(q + LA, a)

    def act_store(k):
        for m in range(2):
            e.I('buffer_store_dwordx4 %s, v1, %s, s%d offen offset:%d sc1' %
                (vr(136 + 8 * k + 4 * m, 4), srd(SWS), sD2 if k == 2 else sD0, 1024 * m + (2048 if k == 1 else 0)), tag=('as', k))

    def act_flag(k):
        e.wait(vm=('as', k))
        flag_store(e, EP, sF2 if k == 2 else sF0, 2 * FS if k == 1 else 0)

    for q in range(LA):
        rd(q, 0)
        rd(q, 1)
    per = 8 * NT
    for q in range(tail0 + per):
        mm(q, 0)
        mm(q, 1)
    flagged = 0
    if NT:
        for g in (1, 2):
            main = [lambda q=q, a=a: mm(q, a) for q in range(tail0 + g * per, tail0 + (g + 1) * per) for a in range(2)]
            fill = act_items_scalar(e, cfg, 32 * g, 32 * g + 16, 128, 136 + 8 * (g - 1)) + [lambda g=g: act_store(g - 1)]
            run(main[:3] + weave(main[3:], fill))
        st(e, 'f1end')
        run(act_items(e, cfg, 96, 112, 128, 152))
        act_store(2)
    else:
        st(e, 'f1end')
        for g in range(3):
            run(act_items(e, cfg, 32 + 32 * g, 48 + 32 * g, 128, 136 + 8 * g))
            act_store(g)
    if cfg.prioB:
        e.I('s_setprio 0')
    st(e, 'actst')
    DA, AV, PW, WDV, EP = 2, 14, 16, 18, 23
    e.I('v_mov_b32 v%d, s%d' % (EP, sNONCE))
    e.I(wd_lane_offsets(e, WDV, 20, 21))
    e.I('v_mov_b32 v22, %d' % L_FL)
    cnt_spin(e, 'L_spinB', 22, 24, C_CONS + 28)
    st(e, 'ldsfree')

    def dma_D(n):
        sl, pos = RING[n]
        if n in PREV:
            e.wait(lg=('wr', PREV[n]))
        set_m0(e, sMW, sl * SLOT + pos * 2048)
        if n:
            wd_next(e, n, sDC, sDB, sDE)
        for q in range(2):
            e.I('buffer_load_dwordx4 v%d, %s, s%d offen offset:%d lds' % (WDV + q, srd(SWD), sDC, 1024 * q), tag=('wd', n))

    def wd_reg(n2):
        return 128 + 16 * n2 if n2 < 5 else 32 + 16 * (n2 - 5) if n2 < 7 else 128 + 16 * (n2 - 7)

    def wd_read(n, dqs=range(4)):
        sl, pos = RING[n]
        e.wait(vm=('wd', n))
        for dq in dqs:
            e.I('ds_read_b64_tr_b16 %s, v%d offset:%d' % (vr(wd_reg(n >> 1) + 4 * dq + 2 * (n & 1), 2), DA + 4 * (sl >> 1) + dq,
                                                         (sl & 1) * SLOT + pos * 2048), tag=('wr', n))

    def setup2():
        e.I('v_lshrrev_b32 v20, 2, v0\nv_lshlrev_b32 v20, 7, v20\nv_bfe_u32 v21, v0, 3, 2\nv_lshl_add_u32 v20, v21, 5, v20')
        e.I('v_and_b32 v21, 3, v0\nv_lshl_add_u32 v20, v21, 3, v20\nv_add_u32 v%d, s%d, v20' % (DA, sMW))
        for dq in range(1, 4):
            e.I('v_xor_b32 v%d, %d, v%d' % (DA + dq, 32 * dq, DA))
        for k in (1, 2):
            for dq in range(4):
                e.I('v_add_u32 v%d, %d, v%d' % (DA + 4 * k + dq, k * WIN, DA + dq))
        e.I('s_mul_i32 s%d, s%d, %d' % (T0, sRT, 2 * 88064))
        e.I('v_add_u32 v%d, s%d, v1\nv_add_u32 v%d, 88064, v%d' % (AV, T0, AV + 1, AV))
        e.I('s_mul_i32 s%d, s%d, 44\ns_mul_i32 s%d, s%d, 11\ns_add_u32 s%d, s%d, s%d\ns_mul_i32 s%d, s%d, %d\ns_add_u32 s%d, s%d, 0x%x' %
            (T0, sRT, T1, sW, T0, T0, T1, T0, T0, 2 * FS, T0, T0, AF_OFF))
        e.I('v_mul_u32_u24 v20, %d, v0' % FS)
        e.I('s_mov_b32 s%d, 0x3fffff\ns_cmp_eq_u32 s%d, 3\ns_cselect_b32 s%d, 0xfffff, s%d\ns_mov_b32 s%d, 0' % (sMA, sW, sMA, sMA, sMA + 1))

    for n in range(NPRE, 11):
        for k in range(3):
            if cfg.flagpos[k] + NPRE == n:
                if k == 2:
                    setup2()
                act_flag(k)
                if k == 2:
                    st(e, 'flagged')
        if n < 10:
            dma_D(n)
    cnt_spin(e, 'L_spinB2', 22, 24, C_DONEA)
    pulled = [0]

    def d_step(n):
        dma_D(n)
        while pulled[0] < min(14, 3 * (n - 9), n - 3):
            wd_read(pulled[0])
            pulled[0] += 1
        if n == 14:
            e.wait(lg=('wr', 9))
            set_m0(e, sMW, L_P2)
            e.I('s_mov_b64 exec, 1')
            e.I('buffer_load_dword off, %s, s%d lds' % (srd(SWD), SWD + 2), tag='init')
            e.I('s_mov_b64 exec, -1')
        if n == -cfg.posXB:
            bar_X()

    def bar_X():
        assert pulled[0] >= 12
        e.wait(vm='init', lg=('wr', 11))
        st(e, '_aX')
        e.I('s_barrier')

    for n in range(10, cfg.alook):
        d_step(n)
    st(e, 'wdiss')
    nd = cfg.alook + cfg.abet
    poll(e, 'L_pollA', 21, 20, T0, 's[%d:%d]' % (sMA, sMA + 1), lambda: [d_step(n) for n in range(cfg.alook, nd)])
    st(e, 'actrdy')
    if cfg.prioF2:
        e.I('s_setprio %d' % cfg.prioF2)

    TL = cfg.TL
    sSV = 92
    NM = 11 - TL

    order = [(n2, t4) for n2 in range(NM) for t4 in range(4)] + [(n2, t4) for t4 in range(4) for n2 in range(NM, 11)]

    def a_reg(n2, t4):
        return 208 + 4 * (order.index((n2, t4)) % 12)

    pend = []
    rq = []

    def flush(n=99):
        for t in pend[:n]:
            e.I(t)
        del pend[:n]

    def a_load(n2, t4):
        if t4 == 0:
            flush()
        so = sAC if n2 < NM else sSV + n2 - NM
        e.I('buffer_load_dwordx4 %s, v%d, %s, s%d offen offset:%d sc1' % (vr(a_reg(n2, t4), 4), AV + (t4 >> 1), srd(SWS), so, 1024 * (t4 & 1)),
            tag=('a', n2, t4))
        if n2 < 10 and t4 == (3 if n2 < NM else 0):
            dst = sAC if n2 + 1 < NM else sSV + n2 + 1 - NM
            pend.append('s_add_u32 s%d, s%d, 2048' % (dst, so))
            pend.append('s_cmp_eq_u32 s%d, s%d\ns_cselect_b32 s%d, s%d, s%d' % (dst, sAE, dst, sAB, dst))
            if n2 == 9:
                pend.append('s_cmp_eq_u32 s%d, 3\ns_cselect_b32 s%d, 0x%x, s%d' % (sW, dst, OOB, dst))

    lq = []
    for k, t in enumerate(order):
        lq.append(('a', k))
        if k & 1 and nd < 22:
            lq.append(('d', nd))
            nd += 1
    dn = [cfg.alook + cfg.abet - 1]
    nis = [0]

    def issue(k, busy):
        while lq:
            t = lq[0]
            tag = ('a',) + order[k]
            nv = min(cfg.NV, cfg.NV0[0] + max(0, k - cfg.NV0[1]))
            if nis[0] > k and (len(e.vm) - 1 - e.vm.index(tag) >= nv - 1 if tag in e.vm else len(e.vm) >= nv):
                return
            if t[0] == 'a':
                if t[1] >= busy + 12:
                    return
                a_load(*order[t[1]])
                nis[0] = t[1] + 1
            else:
                d_step(t[1])
                dn[0] = t[1]
            lq.pop(0)

    wq = []
    zq = [list(g) for g in cfg.zg]
    since = [0]

    def w_pop():
        t = wq.pop(0)
        if t is not None:
            t4, i = t
            assert not rq
            hi = 32768 if t4 == 3 else 0
            set_m0(e, sMW, hi)
            e.I('ds_write_addtid_b32 v%d offset:%d' % (acc2(t4, 0) + i, t4 * SLOT - hi + 256 * i), tag=('pw', t4))
            if i == 15 and t4 == zq[0][-1]:
                since[0] = cfg.zlag + 1
        if since[0]:
            since[0] -= 1
            if since[0] == 0:
                z_bar()

    def z_bar():
        e.wait(lg=('pw', zq.pop(0)[-1]))
        e.I('s_barrier')

    def mm2(k):
        n2, t4 = order[k]
        if k == 0:
            issue(k, k)
        while rq and rq[0][0] >> 1 <= (order[k + 2][0] if k + 2 < 4 * NM + TL else 99):
            t = rq.pop(0)
            wd_read(t[0], [t[1]])
        e.wait(vm=('a', n2, t4), lg=('wr', 2 * n2 + 1))
        for dq in range(4):
            mfma16(e, acc2(t4, dq), a_reg(n2, t4), wd_reg(n2) + 4 * dq, n2 == 0)
            if dq == 0 and lq:
                issue(k + 1, k)
            elif pend and dq < 3:
                flush(1)
            elif rq and dq < 3:
                t = rq.pop(0)
                wd_read(t[0], [t[1]])
            elif wq:
                w_pop()
        if n2 == 10:
            if t4 == 0:
                wq.extend([None, None])
            wq.extend((t4, i) for i in range(16))

    for n2 in range(NM):
        st(e, '_n%d' % n2)
        while pulled[0] <= min(2 * n2 + 5, 13):
            assert dn[0] >= pulled[0]
            wd_read(pulled[0])
            pulled[0] += 1
        if n2 == cfg.posXB:
            bar_X()
        for t4 in range(4):
            mm2(4 * n2 + t4)
        if cfg.pull0 <= n2 < cfg.pull0 + 4:
            m2 = n2 - cfg.pull0 + 7
            assert dn[0] >= 2 * m2 + 1
            rq.extend((2 * m2 + hf, dq) for hf in range(2) for dq in range(4))
    assert cfg.pull0 + 4 <= NM
    for k in range(4 * NM, 44):
        mm2(k)
    if cfg.prioF2:
        e.I('s_setprio 0')
    st(e, 'f2end')
    while wq:
        w_pop()
    while zq:
        z_bar()
    st(e, 'end')
    st.flush(e)
    e.I('s_endpgm')


def gen_A(e, cfg, st):
    LR, LI, L16, L128, L256, L16S, KAP, WV = 48, 49, 50, 52, 54, 56, 58, 60
    PP = 32
    SIDX = 3
    RE, IM = 64, 80
    XA, BA = 192, 204
    CV, CA, CA4, WDV = 96, 100, 104, 108
    EV0, EV1, EOOB, ERD, ECNT, EEXP, ONE, FLA, XW, XR, P16 = range(110, 121)
    SEL = 216
    RING0 = 144
    sHD, sHF, sES, sEL, sROT, sDTX = 86, 87, 90, 91, 92, 80
    sDC, sDB, sDE = 93, 94, 95
    e.I('v_lshlrev_b32 v1, 4, v0')
    e.I('v_and_b32 v21, 0x13, v0\nv_bfe_u32 v22, v0, 2, 1\nv_lshl_add_u32 v21, v22, 3, v21\nv_bfe_u32 v22, v0, 3, 1\nv_lshl_add_u32 v21, v22, 2, v21')
    e.I('s_lshl_b32 s%d, s%d, 6' % (T0, sCB))
    e.I('v_lshl_add_u32 v21, v21, 1, s%d' % T0)
    e.I('s_lshl_b32 s%d, s%d, 2\ns_add_u32 s%d, s%d, s%d\ns_lshl_b32 s%d, s%d, 4\ns_add_u32 s%d, s%d, s%d' %
        (T3, sRB, T3, T3, sW, T3, T3, T3, T3, sCB))
    e.I('s_lshl_b32 s%d, s%d, 11' % (T2, T3))
    frag_addr(e, BA, 4, 5)
    e.wait_smem()
    st(e, '_karg')
    mk_srd(e, SX, P_X, 2048 * 1024)
    mk_srd(e, SWS, P_WS, WS_SIZE)
    e.I('s_mov_b32 s%d, 0x%x\ns_lshl_b32 s%d, s%d, 6' % (T4, EPOCH_OFF, T0, sCB))
    e.I('s_load_dword s3, s[%d:%d], s%d' % (P_WS, P_WS + 1, T4))
    for p in (P_LRE, P_LIM, P_LDT):
        e.I('s_load_dword s3, s[%d:%d], s%d' % (p, p + 1, T0))
    e.I('s_lshr_b32 s%d, s2, 3\ns_lshl_b32 s%d, s%d, 2\ns_add_u32 s%d, s%d, s%d\ns_and_b32 s%d, s%d, 15\ns_lshl_b32 s%d, s%d, 6' %
        (T0, T0, T0, T0, T0, sW, T0, T0, T0, T0))
    for p in (P_GW, P_DSK):
        e.I('s_load_dword s3, s[%d:%d], s%d' % (p, p + 1, T0))
    if cfg.prewarm:
        code_touch(e, 'A')

    def small0():
        e.I('buffer_load_dword v19, off, %s, s%d sc1' % (srd(SWS), T4), tag='ep')
        e.I('global_load_ushort v16, v21, s[%d:%d]' % (P_LRE, P_LRE + 1), tag='par')
        e.I('global_load_ushort v17, v21, s[%d:%d]' % (P_LIM, P_LIM + 1), tag='par')
        e.I('global_load_ushort v18, v21, s[%d:%d]' % (P_LDT, P_LDT + 1), tag='par')

    small1 = [lambda: e.I('global_load_dwordx4 v[44:47], v1, s[%d:%d]' % (P_GW, P_GW + 1), tag='g'),
              lambda: e.I('buffer_load_dwordx4 v[36:39], v1, %s, s%d offen' % (srd(SX), T2), tag='g'),
              lambda: e.I('buffer_load_dwordx4 v[40:43], v1, %s, s%d offen offset:1024' % (srd(SX), T2), tag='g')]
    e.I('s_lshl_b32 s%d, s%d, 3\ns_add_u32 s%d, s%d, 0x%x' % (T6, T3, T6, T6, G_OFF))

    e.I('s_lshl_b32 s%d, s%d, 12' % (T0, sW))
    for s in range(4):
        e.I('v_add_u32 v%d, s%d, v%d' % (XA + s, T0, BA + s))
        e.I('v_add_u32 v%d, %d, v%d' % (XA + 4 + s, WIN, XA + s))
        e.I('v_add_u32 v%d, %d, v%d' % (BA + 4 + s, WIN, BA + s))
        if cfg.lag:
            e.I('v_add_u32 v%d, %d, v%d\nv_add_u32 v%d, %d, v%d' % (XA + 8 + s, 2 * WIN, XA + s, BA + 8 + s, 2 * WIN, BA + s))
    w_lane_offsets(e, cfg, WV, 24, 25)
    e.I('v_lshrrev_b32 v24, 5, v0\ns_lshl_b32 s%d, s%d, 1' % (T0, sW))
    e.I('v_add_u32 v%d, s%d, v24' % (SIDX, T0))
    rot2_calc(e, cfg, sROT, 0)
    if cfg.rotS:
        e.I('s_and_b32 s%d, s%d, %d\ns_lshl_b32 s%d, s%d, %d\ns_xor_b32 s%d, s%d, s%d' % (T0, sCT, cfg.rotS[0], T0, T0, cfg.rotS[1], sROT, sROT, T0))
    e.I('s_and_b32 s%d, s%d, 1\ns_lshr_b32 s%d, s%d, 1' % (sDTX, sROT, sROT, sROT))
    e.I('s_bitcmp1_b32 s%d, 0' % sROT)
    mk_srd_sel(e, SC1, P_CIM, P_CRE, 512 * 1024)
    mk_srd_sel(e, SC2, P_CRE, P_CIM, 512 * 1024)
    mk_srd(e, SWD, P_WD, 1376 * 1024)
    step_start(e, cfg, sDC, sDB, sDE, 15)
    e.I('s_cmp_ge_u32 s%d, 2' % sW)
    mk_srd_sel(e, SWA, P_WU, P_WG, 512 * 2752)
    e.I('s_lshl_b32 s%d, s%d, 2\ns_add_u32 s%d, s%d, s%d' % (T0, sRB, T0, T0, sW))
    HW_ = 16384 + cfg.hpad[0]
    HT_ = 4 * HW_ + cfg.hpad[1]
    assert H_OFF + 64 * HT_ <= E_OFF
    e.I('s_mul_i32 s%d, s%d, %d\ns_lshr_b32 s%d, s%d, 1\ns_lshl_b32 s%d, s%d, 13\ns_add_u32 s%d, s%d, s%d' %
        (sHD, T0, HT_, T1, sCB, T1, T1, sHD, sHD, T1))
    e.I('s_lshr_b32 s%d, s%d, 2\ns_mul_i32 s%d, s%d, %d\ns_add_u32 s%d, s%d, s%d' % (T1, sCB, T1, T1, cfg.hpad[0], sHD, sHD, T1))
    e.I('s_and_b32 s%d, s%d, 1\ns_lshl_b32 s%d, s%d, 11\ns_add_u32 s%d, s%d, s%d\ns_add_u32 s%d, s%d, 0x%x' %
        (T1, sCB, T1, T1, sHD, sHD, T1, sHD, sHD, H_OFF))
    e.I('s_lshr_b32 s%d, s%d, 1\ns_lshl_b32 s%d, s%d, 4\ns_add_u32 s%d, s%d, s%d\ns_lshl_b32 s%d, s%d, 1' %
        (T1, T0, T1, T1, T1, T1, sCB, T1, T1))
    e.I('s_and_b32 s%d, s%d, 1\ns_add_u32 s%d, s%d, s%d\ns_mul_i32 s%d, s%d, %d\ns_add_u32 s%d, s%d, 0x%x' %
        (T0, T0, T1, T1, T0, T1, T1, FS, sHF, T1, HF_OFF))
    e.I('s_lshl_b32 s%d, s%d, 13\ns_add_u32 s%d, s%d, 0x%x' % (sEL, sCB, sEL, sEL, E_OFF))
    e.I('s_lshl_b32 s%d, s%d, 9\ns_add_u32 s%d, s%d, s%d\ns_cmp_eq_u32 s%d, 0\ns_cselect_b32 s%d, s%d, 0x%x' %
        (sES, sRB, sES, sES, sEL, sW, sES, sES, OOB))
    e.I('s_sub_u32 s%d, s%d, 1024' % (sEL, sEL))

    tch = Touch(e, cfg, 'A')
    tch.setup()
    tch.at(-1)

    e.I('s_lshl_b32 s%d, s%d, 9\ns_add_u32 s%d, s%d, %d' % (T0, sW, T0, T0, L_E))
    e.I('v_lshl_add_u32 v%d, v0, 3, s%d' % (XW, T0))
    e.I('v_and_b32 v6, 31, v0\nv_lshlrev_b32 v%d, 4, v6\nv_lshlrev_b32 v6, 3, v6\nv_add_u32 v%d, %d, v6' % (P16, XR, L_E))
    e.I('v_and_b32 v4, 3, v0\nv_bfe_u32 v5, v0, 3, 2\nv_lshl_add_u32 v4, v5, 2, v4')
    e.I('v_bfe_u32 v5, v0, 2, 1\nv_lshrrev_b32 v6, 5, v0\nv_xor_b32 v5, v5, v6\nv_lshl_add_u32 v4, v5, 4, v4')
    e.I('v_and_b32 v5, 1, v0\nv_lshlrev_b32 v5, 4, v5\nv_mov_b32 v6, 0x3f80\nv_lshlrev_b32 v5, v5, v6\nv_lshrrev_b32 v4, 1, v4')
    for n in range(8):
        e.I('v_cmp_eq_u32 vcc, %d, v4\nv_cndmask_b32 v%d, 0, v5, vcc' % (n, SEL + n))
    e.I('v_and_b32 v6, 7, v0\nv_lshrrev_b32 v7, 4, v0\nv_xor_b32 v6, v6, v7\nv_lshlrev_b32 v6, 4, v6')
    e.I('v_lshrrev_b32 v7, 3, v0\nv_lshl_add_u32 v6, v7, 10, v6')
    e.I('s_lshl_b32 s%d, s%d, 16\ns_lshl_b32 s%d, s%d, 8\ns_add_u32 s%d, s%d, s%d' % (T0, sCT, T1, sW, T0, T0, T1))
    e.I('v_add_u32 v%d, s%d, v6\nv_xor_b32 v7, 64, v%d' % (CV, T0, CV))
    e.I('v_add_u32 v%d, 7168, v7\nv_add_u32 v%d, 14336, v%d\nv_add_u32 v%d, 21504, v7' % (CV + 1, CV + 2, CV, CV + 3))
    frag16_addr(e, CA, 6, 7)
    for s in range(2):
        e.I('v_add_u32 v%d, s%d, v%d' % (CA + s, sMW, CA + s))
        e.I('v_add_u32 v%d, %d, v%d' % (CA4 + s, 4 * SLOT, CA + s))
    HS = CA + 2
    e.I('v_and_b32 v6, 15, v0\nv_lshlrev_b32 v6, 4, v6\nv_bfe_u32 v7, v0, 4, 1\nv_lshl_add_u32 v6, v7, 10, v6')
    e.I('v_lshrrev_b32 v7, 5, v0\nv_lshl_add_u32 v%d, v7, 8, v6' % HS)
    e.I('s_lshr_b32 s88, s%d, 1\ns_lshl_b32 s88, s88, 7\ns_lshl_b32 s89, s%d, 15\ns_add_u32 s88, s88, s89\ns_xor_b32 s89, s88, 128' % (sROT, sDTX))
    e.I(wd_lane_offsets(e, WDV, 6, 7))
    e.I('s_lshl_b32 s%d, s%d, 2\ns_sub_u32 s%d, s%d, s%d\ns_sub_u32 s%d, s%d, 1\ns_lshl_b32 s%d, s%d, 11' % (T0, sW, T0, sRB, T0, T0, T0, T5, sW))
    e.I('v_lshrrev_b32 v6, 5, v0\nv_sub_u32 v7, s%d, v6' % T0)
    e.I('v_cmp_le_i32 vcc, 0, v7\nv_cmp_le_i32 s[%d:%d], 2, v7' % (sMB, sMB + 1))
    e.I('v_lshl_add_u32 v7, v7, 9, v%d\nv_add_u32 v7, 1024, v7\nv_subrev_u32 v5, 2048, v7\nv_mov_b32 v%d, 0x%x' % (P16, EOOB, OOB))
    e.I('v_cndmask_b32 v%d, v%d, v7, vcc\nv_cndmask_b32 v%d, v%d, v5, s[%d:%d]' % (EV0, EOOB, EV1, EOOB, sMB, sMB + 1))
    e.I('v_lshl_add_u32 v7, v6, 12, v%d\nv_add_u32 v%d, %d, v7' % (P16, ERD, L_EG))
    e.I('v_lshlrev_b32 v6, 3, v6\nv_sub_u32 v%d, s%d, v6\nv_med3_i32 v%d, v%d, 0, 8' % (ECNT, sRB, EEXP, ECNT))
    e.I('v_mov_b32 v%d, 1\nv_mov_b32 v%d, %d' % (ONE, FLA, L_FL))

    pro = []
    add = lambda t: [pro.append(lambda x=x: e.I(x)) for x in t.split('\n')]

    def csq(d, a):
        add('v_mul_f32 v30, v%d, v%d\nv_mul_f32 v31, v%d, v%d\nv_fma_f32 v%d, -v%d, v%d, v30\nv_add_f32 v%d, v31, v31' %
            (a, a, a, a + 1, d, a + 1, a + 1, d + 1))

    def cmul(d, a, b):
        add('v_mul_f32 v30, v%d, v%d\nv_mul_f32 v31, v%d, v%d\nv_fma_f32 v30, -v%d, v%d, v30\nv_fma_f32 v%d, v%d, v%d, v31\nv_mov_b32 v%d, v30' %
            (a, b, a, b + 1, a + 1, b + 1, d + 1, a + 1, b, d))

    pro.append(lambda: e.wait(vm=['ep', 'par']))
    add('v_readfirstlane_b32 s%d, v19' % sNONCE)
    add('v_lshlrev_b32 v16, 16, v16\nv_lshlrev_b32 v17, 16, v17\nv_lshlrev_b32 v18, 16, v18')
    add('s_add_u32 s%d, s%d, 0x%x\ns_or_b32 s%d, s%d, 1' % (sNONCE, sNONCE, PHI, sNONCE, sNONCE))
    add('v_mul_f32 v18, 0x%x, v18\nv_exp_f32 v18, v18\nv_cvt_pk_bf16_f32 v18, v18, v18\nv_lshlrev_b32 v18, 16, v18' % LOG2E)
    add('v_mul_f32 v21, v18, v16\nv_mul_f32 v22, v18, v17')
    add('v_mul_f32 v21, 0x%x, v21\nv_exp_f32 v21, v21' % LOG2E)
    add('v_mul_f32 v22, 0.15915494, v22\nv_rndne_f32 v23, v22\nv_sub_f32 v22, v22, v23\nv_sin_f32 v23, v22\nv_cos_f32 v22, v22')
    add('v_mul_f32 v%d, v21, v23\nv_mul_f32 v%d, v21, v22' % (LI, LR))
    add('v_mul_f32 v21, v16, v16\nv_fmac_f32 v21, v17, v17\nv_rcp_f32 v21, v21\nv_add_f32 v22, -1.0, v%d\nv_add_f32 v21, v21, v21' % LR)
    add('v_mul_f32 v23, v22, v16\nv_fmac_f32 v23, v%d, v17\nv_mul_f32 v%d, v23, v21' % (LI, KAP))
    add('v_mul_f32 v23, v%d, v16\nv_fma_f32 v23, -v22, v17, v23\nv_mul_f32 v%d, v23, v21' % (LI, KAP + 1))
    csq(22, LR); csq(22, 22); csq(22, 22); csq(L16, 22)
    csq(22, L16); csq(24, 22); csq(L128, 24); csq(L256, L128); csq(L256, L256); csq(L256, L256)
    for bit, src, dst in ((1, L16, L16S), (2, 22, 22), (4, 24, 24)):
        add('v_and_b32 v26, %d, v%d\nv_cmp_ne_u32 vcc, 0, v26' % (bit, SIDX))
        add('v_cndmask_b32 v%d, 1.0, v%d, vcc\nv_cndmask_b32 v%d, 0, v%d, vcc' % (dst, src, dst + 1, src + 1))
    cmul(L16S, L16S, 22); cmul(L16S, L16S, 24)
    add('v_mul_lo_u32 v%d, v%d, s%d\nv_mov_b32 v2, s%d' % (EEXP, EEXP, sNONCE, sNONCE))

    par, pro = pro, []
    pro.append(lambda: e.wait(vm='g'))
    for k in range(4):
        add('v_lshlrev_b32 v24, 16, v%d\nv_and_b32 v25, 0xffff0000, v%d' % (44 + k, 44 + k))
        for row in range(2):
            x = 36 + 4 * row + k
            add('v_lshlrev_b32 v26, 16, v%d\nv_and_b32 v27, 0xffff0000, v%d' % (x, x))
            add('v_mul_f32 v26, v26, v24\nv_mul_f32 v27, v27, v25\nv_cvt_pk_bf16_f32 v26, v26, v27')
            add('v_lshlrev_b32 v27, 16, v26\nv_and_b32 v26, 0xffff0000, v26')
            if k == 0:
                add('v_add_f32 v%d, v26, v27' % (28 + row))
            else:
                add('v_add_f32 v26, v26, v27\nv_add_f32 v%d, v%d, v26' % (28 + row, 28 + row))
    for mod in ('row_shr:1 row_mask:0xf', 'row_shr:2 row_mask:0xf', 'row_shr:4 row_mask:0xf', 'row_shr:8 row_mask:0xf',
                'row_bcast:15 row_mask:0xa', 'row_bcast:31 row_mask:0xc'):
        for row in range(2):
            add('v_add_f32_dpp v%d, v%d, v%d %s bank_mask:0xf' % (28 + row, 28 + row, 28 + row, mod))
    add('v_cvt_pk_bf16_f32 v26, v28, v29\nv_lshlrev_b32 v28, 16, v26\nv_and_b32 v29, 0xffff0000, v26')
    add('v_mul_f32 v28, 0x%x, v28\nv_mul_f32 v29, 0x%x, v29\nv_exp_f32 v28, v28\nv_exp_f32 v29, v29' % (NLOG2E, NLOG2E))
    add('v_add_f32 v28, 1.0, v28\nv_add_f32 v29, 1.0, v29\nv_rcp_f32 v28, v28\nv_rcp_f32 v29, v29')
    add('v_cvt_pk_bf16_f32 v26, v28, v29\nv_lshlrev_b32 v28, 16, v26\nv_and_b32 v29, 0xffff0000, v26')
    gate, pro = pro, par

    def g_store():
        e.I('s_mov_b32 exec_lo, 0\ns_mov_b32 exec_hi, 0x80000000')
        e.I('buffer_store_dwordx2 v[28:29], off, %s, s%d sc1' % (srd(SWS), T6), tag='gs')
        e.I('s_mov_b64 exec, -1')

    nbar = [0]

    def s_bar(i):
        assert nbar[0] == i
        nbar[0] += 1
        e.I('s_barrier')
        if i in (0, 7):
            st(e, 'b%d' % i)

    def s_read(n):
        i, s = n >> 2, n & 3
        slot = s_slot(i)
        if s == 0 and not cfg.lag:
            s_bar(i)
        assert nbar[0] > i
        off = (slot & 1) * SLOT
        b = RING0 + 12 * (n & 3)
        e.I('ds_read_b128 %s, v%d offset:%d' % (vr(b + 8, 4), XA + 4 * (slot >> 1) + s, off), tag=('s', n, 0))
        for part in range(2):
            e.I('ds_read_b128 %s, v%d offset:%d' % (vr(b + 4 * part, 4), BA + 4 * (slot >> 1) + s,
                                                    off + 16384 + part * 4096), tag=('s', n, part))

    def s_mm(n, part):
        e.wait(lg=('s', n, part))
        b = RING0 + 12 * (n & 3)
        mfma(e, RE + 16 * part, b + 8, b + 4 * part, n == 0)

    D = 2
    seq = []
    for n in range(32):
        seq.append(lambda n=n: (s_mm(n, 0), s_read(n + D) if n + D < 32 else None))
        seq.append(lambda n=n: s_mm(n, 1))
    st(e, '_pro')
    if cfg.lag:
        L = cfg.lag
        npar = len(pro) // max(L - 1, 1) + 1
        for i in range(L):
            s_bar(i)
            tch.at(10 + i)
            if i == 0:
                small0()
            if i >= 1:
                run(pro[(i - 1) * npar:i * npar])
        s_bar(L)
        for n in range(D):
            s_read(n)
        r2 = 2 * cfg.lagr
        for k, it in enumerate(seq):
            it()
            i = L + (k + 1) // r2
            if (k + 1) % r2 == 0 and i <= 7:
                assert (k + 1) // 2 >= 4 * (i - 3)
                s_bar(i)
    else:
        for n in range(D):
            s_read(n)
        p0 = 2 * cfg.smallpos
        run(seq[:p0])
        small0()
        run(seq[p0:p0 + 10])
        run(weave(seq[p0 + 10:56], pro) + seq[56:])
    assert nbar[0] == 8
    st(e, 's1end')
    if cfg.prioA:
        e.I('s_setprio %d' % cfg.prioA)

    def items(txt):
        return [lambda t=t: e.I(t) for t in txt.split('\n')]

    def cfma(d, l, a, c):
        return items('v_fma_f32 v%d, v%d, v%d, v%d\nv_fma_f32 v%d, v%d, v%d, v%d\nv_fma_f32 v%d, -v%d, v%d, v%d\nv_fmac_f32 v%d, v%d, v%d' %
                     (d, l, a, c, d + 1, l, a + 1, c + 1, d, l + 1, a + 1, d, d + 1, l + 1, a))

    prev = (RE, IM)
    for r in range(1, 16):
        cur = (20 + 2 * (r & 1), 21 + 2 * (r & 1))
        e.I('v_fma_f32 v%d, v%d, v%d, v%d' % (cur[0], LR, prev[0], RE + r))
        e.I('v_fma_f32 v%d, v%d, v%d, v%d' % (cur[1], LR, prev[1], IM + r))
        e.I('v_fma_f32 v%d, -v%d, v%d, v%d' % (cur[0], LI, prev[1], cur[0]))
        e.I('v_fmac_f32 v%d, v%d, v%d' % (cur[1], LI, prev[0]))
        prev = cur
    e.I('ds_write_b64 v%d, %s' % (XW, vr(prev[0], 2)), tag='ex')
    e.wait(lg='all')

    def c_reg(u, s2, dq):
        return 128 + 32 * u + 16 * s2 + 4 * dq

    CBUF = cfg.cbuf
    CPREV = {i: max(k for k in range(i) if CBUF[k] == CBUF[i]) for i in range(8) if CBUF[i] in CBUF[:i]}
    cdone = set()
    hdone = []

    def c_read(i):
        if i in cdone:
            return
        cdone.add(i)
        assert i < 4 or hdone
        e.wait(vm=('c', i))
        for s in range(4):
            a_, off = (CA4 + (s >> 1), 0) if CBUF[i] == 4 else (CA + (s >> 1), CBUF[i] * SLOT)
            e.I('ds_read_b128 %s, v%d offset:%d' % (vr(c_reg(i >> 1, s >> 1, 2 * (i & 1) + (s & 1)), 4), a_, off + (s & 1) * 2048), tag=('cr', i))

    def c_loads(i):
        u, dt = i >> 1, i & 1
        its = []
        for q in range(4):
            def f(q=q):
                if q == 0:
                    if i in CPREV:
                        c_read(CPREV[i])
                        e.wait(lg=('cr', CPREV[i]))
                    elif CBUF[i] != 4 and 6 + CBUF[i] > cfg.JL:
                        cnt_spin(e, 'L_cb%d' % i, FLA, 37, C_CONS + 28)
                    e.I('s_xor_b32 s%d, s%d, %d' % (sTD, 88 + (u >> 1), dt * 32768))
                set_m0(e, sMW, CBUF[i] * SLOT)
                e.I('buffer_load_dwordx4 v%d, %s, s%d offen offset:%d lds' % (CV + q, srd(SC2 if u & 1 else SC1), sTD, 1024 * q), tag=('c', i))
                if q == 3 and i >= 2:
                    c_read(i - 2)
            its.append(f)
        return its

    def d_loads(n):
        sl, pos = RING[n]
        its = []
        for q in range(2):
            def f(q=q):
                set_m0(e, sMW, sl * SLOT + pos * 2048)
                if q == 0 and n:
                    wd_next(e, n, sDC, sDB, sDE)
                e.I('buffer_load_dwordx4 v%d, %s, s%d offen offset:%d lds' % (WDV + q, srd(SWD), sDC, 1024 * q), tag='wd')
            its.append(f)
        return its

    wl = {j: dma_W(e, WV, SWA, j) for j in range(2, 8)}
    planned = set()

    def e_loads():
        its = []
        for q in range(2):
            def f(q=q):
                set_m0(e, T5, L_EG)
                e.I('buffer_load_dwordx4 v%d, %s, s%d offen offset:%d sc1 lds' % (EV0 + q, srd(SWS), sEL, 1024 * q), tag='eg')
            its.append(f)
        return its

    def expand(toks, k):
        r = []
        for t in toks.split(','):
            if not t:
                continue
            n = int(t[1])
            planned.add(t)
            if t[0] == 'W':
                assert n < 4 or k >= n - 2 or (n == 4 and cfg.w0pos is not None)
                r += wl[n][:3] if t[2:] == 'a' else wl[n][3:] if t[2:] == 'b' else wl[n]
            elif t[0] == 'C':
                assert CBUF[n] == 4 or k >= min(6 + CBUF[n], cfg.JL)
                assert k >= 2 or cfg.w0pos is None
                r += c_loads(n)
            elif t[0] == 'D':
                r += d_loads(n)
            elif t[0] == 'G':
                r += small1
            elif t[0] == 'E':
                r += e_loads()
            elif t[0] == 'T':
                r.append(lambda n=n: tch.at(n))
        return r

    def bar(k, extra=()):
        kk = 7 if k == cfg.JL else k
        assert kk < 2 or 'W%d' % kk in planned or 'W%db' % kk in planned or (kk == 2 and cfg.w0pos is not None)
        e.wait(vm=[('st', 8 + kk)] + list(extra))
        st(e, '_a%d' % k)
        e.I('s_barrier')
        st(e, '_d%d' % k)

    sc = []
    for r in range(16):
        sc += items('v_mul_f32 v4, v%d, v%d\nv_mul_f32 v5, v%d, v%d\nv_fma_f32 v%d, v%d, v%d, -v4\nv_fma_f32 v%d, v%d, v%d, v5' %
                    (KAP + 1, IM + r, KAP + 1, RE + r, RE + r, KAP, RE + r, IM + r, KAP, IM + r))
    early = sc
    run(early[:cfg.early])
    late = early[cfg.early:]
    bar(0)
    work = []
    for s in range(8):
        e.I('ds_read_b64 %s, v%d offset:%d' % (vr(4 + 2 * s, 2), XR, 256 * s), tag=('e', s))
    pf = []
    for s in range(1, 8):
        pf.append(lambda s=s: e.wait(lg=('e', s)))
        pf += cfma(4 + 2 * s, L16, 2 + 2 * s, 4 + 2 * s)
    segs = [sg.split('|') for sg in cfg.prog.split(';')]
    q0 = expand(segs[0][0], 0)
    run(weave(q0[:cfg.pren], pf))
    e.I('v_mov_b32 v20, s%d\nv_mov_b32 v21, s%d' % (sNONCE, sNONCE))
    e.I('s_mov_b32 exec_hi, 0')
    e.I('buffer_store_dwordx4 v[18:21], v%d, %s, s%d offen sc1' % (P16, srd(SWS), sES), tag='es')
    e.I('s_mov_b32 exec_hi, -1')
    st(e, 'epub')
    run(q0[cfg.pren:])
    gate.append(g_store)
    sel = items('v_mov_b32 v%d, 0\nv_mov_b32 v%d, 0' % (PP, PP + 1))
    for s in range(1, 8):
        sel.append(lambda s=s: e.I('v_cmp_eq_u32 vcc, %d, v%d\nv_cndmask_b32 v%d, v%d, v%d, vcc\nv_cndmask_b32 v%d, v%d, v%d, vcc' %
                                   (s, SIDX, PP, PP, 2 + 2 * s, PP + 1, PP + 1, 3 + 2 * s)))
    EG = 224

    def e_check():
        e.I('v_add3_u32 v4, v%d, v%d, v%d\nv_add3_u32 v5, v%d, v%d, v%d' % tuple(EG + 4 * k + 2 for k in range(6)))
        e.I('v_add3_u32 v4, v4, v%d, v%d\nv_add_u32 v4, v4, v5' % (EG + 26, EG + 30))
        e.I('v_cmp_ne_u32 vcc, v4, v%d' % EEXP)

    def e_verify():
        e.wait(lg='eg')
        e_check()
        e.I('s_cbranch_vccnz L_pollE')
        e.label('L_pollE_out')
        st(e, 'egot')
        with e.cold_block():
            e.label('L_pollE')
            e.I('s_mov_b32 s%d, 0' % sCNT)
            e.label('L_pollE_l')
            for k in range(8):
                e.I('v_subrev_u32 v4, %d, v%d\nv_cmp_le_i32 vcc, 2, v4\nv_lshl_add_u32 v4, v4, 9, v%d\nv_cndmask_b32 v4, v%d, v4, vcc' % (k - 1, ECNT, P16, EOOB))
                e.I('buffer_load_dwordx4 %s, v4, %s, s%d offen sc1' % (vr(EG + 4 * k, 4), srd(SWS), sEL))
            e.I('s_add_u32 s%d, s%d, 1' % (sCNT, sCNT))
            e.I('s_cmp_gt_u32 s%d, %d' % (sCNT, SPIN_MAX))
            e.wait(vm='all')
            e.I('s_cbranch_scc1 L_pollE_out')
            e_check()
            e.I('s_cbranch_vccnz L_pollE_l')
            e.I('s_branch L_pollE_out')

    def second_pass():
        p2 = []
        p2.append(lambda: [e.I('ds_read_b128 %s, v%d offset:%d' % (vr(EG + 4 * k, 4), ERD, 512 * k), tag='eg') for k in range(8)])
        p2.append(e_verify)
        for k in range(6, -1, -1):
            p2 += cfma(EG + 4 * k, L128, EG + 4 * k + 4, EG + 4 * k)
        p2 += items('v_mov_b32 v4, v%d\nv_mov_b32 v5, v%d\nv_permlane32_swap_b32 v4, v%d\nv_permlane32_swap_b32 v5, v%d' % (EG, EG + 1, EG, EG + 1))
        p2 += cfma(4, L256, EG, 4)
        p2 += cfma(PP, L16S, 4, PP)
        p2 += items('v_mul_f32 v6, v%d, v%d\nv_mul_f32 v7, v%d, v%d' % (KAP, PP, KAP, PP + 1))
        p2 += items('v_fma_f32 v6, -v%d, v%d, v6\nv_fmac_f32 v7, v%d, v%d' % (KAP + 1, PP + 1, KAP + 1, PP))
        prev = (6, 7)
        for r in range(16):
            p2 += items('v_fmac_f32 v%d, v%d, v%d\nv_fmac_f32 v%d, v%d, v%d\nv_fma_f32 v%d, -v%d, v%d, v%d\nv_fmac_f32 v%d, v%d, v%d' %
                        (RE + r, LR, prev[0], IM + r, LR, prev[1], RE + r, LI, prev[1], RE + r, IM + r, LI, prev[0]))
            prev = (RE + r, IM + r)
        return p2

    def store_h(loads):
        for part in range(2):
            for k in range(8):
                sg_ = '-' if part else ''
                e.I('v_cvt_pk_bf16_f32 v%d, %sv%d, %sv%d' % (8 + 8 * part + k, sg_, RE + 16 * part + 2 * k, sg_, RE + 16 * part + 2 * k + 1))
            for m in range(2):
                mfma(e, RE + 16 * part, 8 + 8 * part + 4 * m, SEL + 4 * m, m == 0)
        hdone.append(1)
        run(loads)
        e.I('s_add_u32 s%d, s%d, 4096' % (T0, sHD))
        for part in range(2):
            for m in range(2):
                o = 8 + 8 * part + 4 * m
                for k in range(4):
                    e.I('v_cvt_pk_bf16_f32 v%d, v%d, v%d' % (o + k, RE + 16 * part + 8 * m + 2 * k, RE + 16 * part + 8 * m + 2 * k + 1))
                hq.append(lambda o=o, part=part, m=m: e.I('buffer_store_dwordx4 %s, v%d, %s, s%d offen offset:%d sc1' %
                                                         (vr(o, 4), HS, srd(SWS), T0 if part else sHD, 512 * m), tag='hs'))
                if len(hq) <= cfg.hnow:
                    hq[-1]()

    hq = []
    p2 = second_pass()
    for k, (toks, work) in enumerate(segs):
        if k == 0:
            continue
        if k <= cfg.JL:
            bar(k, ['eg'] if work[:1] == 'P' else [])
        q = expand(toks, k)
        if work == 'sel':
            run(weave(q, sel + ([] if 'late' in cfg.prog else late)))
        elif work[:1] == 'g':
            hg = len(gate) // 2
            run(weave(q, gate if work == 'g' else gate[:hg] if work == 'g0' else gate[hg:]))
        elif work == 'late':
            run(weave(q, late))
        elif work[:1] == 'P':
            assert k <= cfg.JL or work != 'P0'
            part = p2 if work == 'P' else p2[:cfg.p2cut] if work == 'P0' else p2[cfg.p2cut:]
            run(part[:1] + (weave(q, part[1:]) if q else part[1:]))
        elif work == 'H':
            st(e, 'p2done')
            store_h(q)
        elif work == 'F':
            run(hq[cfg.hnow:])
            st(e, 'hst')
            run(q)
            e.wait(vm='hs')
            flag_store(e, 2, sHF)
            st(e, 'hflag')
        else:
            run(q)
    assert len(segs) > cfg.JL
    HV, PW = 6, 8
    rest = [i for i in range(8) if 'C%d' % i not in planned]
    run(c_loads(rest.pop(0)))
    e.I('s_mul_i32 s%d, s%d, %d\ns_mul_i32 s%d, s%d, %d\ns_add_u32 s%d, s%d, s%d\ns_add_u32 s%d, s%d, 0x%x' %
        (T0, sRT, 2 * HT_, T1, sW, HW_, T0, T0, T1, T0, T0, H_OFF))
    e.I('v_add_u32 v%d, s%d, v1\nv_add_u32 v%d, %d, v%d' % (HV, T0, HV + 1, HT_, HV))
    for u in range(4):
        e.I('s_xor_b32 s%d, s%d, %d\ns_lshl_b32 s%d, s%d, 12' % (93 + u, sROT, u, 93 + u, 93 + u))
    part_write_addr(e, PW, 12, 13, 16384, 4096, SPART)
    mk_srd(e, SOUT, P_OUT, 2048 * 2048)
    e.I('s_lshl_b32 s%d, s%d, 2\ns_add_u32 s%d, s%d, s%d\ns_mul_i32 s%d, s%d, %d\ns_add_u32 s%d, s%d, 0x%x' %
        (T0, sRT, T0, T0, sW, T0, T0, 8 * FS, T0, T0, HF_OFF))
    e.I('v_mul_u32_u24 v12, %d, v0\nv_mov_b32 v5, v2' % FS)

    def h_reg(k):
        return 16 + 4 * (k % 12)

    def h_load(k):
        n2, t4 = k >> 2, k & 3
        e.I('buffer_load_dwordx4 %s, v%d, %s, s%d offen offset:%d sc1' % (vr(h_reg(k), 4), HV + (t4 >> 1), srd(SWS), 93 + (n2 >> 1),
                                                                            2048 * (n2 & 1) + 1024 * (t4 & 1)), tag=('h', k))

    def c_finish():
        for i in range(8):
            c_read(i)
        e.wait(vm='wd')
        cnt_add(e, FLA, ONE, C_DONEA)
        st(e, 'cgot')

    while rest and rest[0] < cfg.hlook:
        run(c_loads(rest.pop(0)))
    if cfg.hlook > 8:
        c_finish()
    poll(e, 'L_pollH', 13, 12, T0, '0xff',
         lambda: ([run(c_loads(i)) for i in rest], c_finish() if cfg.hearly == 0 and cfg.hlook <= 8 else None))
    st(e, 'hrdy')
    XO, RA, GV, RF = 2, 3, 4, 14
    ROWS = (0, 8, 32, 40)
    XL, DL, GL, XD, PW1 = 128, 136, 138, 144, 10
    fin = items('s_lshl_b32 s%d, s%d, 6\ns_add_u32 s%d, s%d, s%d' % (T0, sRT, T0, T0, sW))
    fin += items('v_lshrrev_b32 v12, 4, v0\nv_lshrrev_b32 v13, 2, v0\nv_and_b32 v13, 2, v13\nv_xor_b32 v12, v12, v13')
    fin += items('v_and_b32 v15, 1, v12\nv_lshl_add_u32 v13, v15, 4, s%d\nv_lshrrev_b32 v3, 1, v12\nv_lshl_add_u32 v13, v3, 2, v13' % T0)
    fin += items('v_and_b32 v14, 15, v0\ns_lshl_b32 s%d, s%d, 7' % (T1, sCT))
    fin += items('v_lshl_add_u32 v1, v14, 3, s%d' % T1)
    fin += items('v_lshl_add_u32 v%d, v13, 10, v1' % XO)
    fin += items('v_lshlrev_b32 v%d, 2, v13\nv_add_u32 v%d, 0x%x, v%d' % (GV, GV, G_OFF, GV))
    fin += items('s_lshl_b32 s%d, s%d, 8\ns_add_u32 s%d, s%d, %d' % (T2, sW, T1, T2, SPART))
    fin += items('v_lshl_add_u32 v3, v3, 10, s%d\nv_lshl_add_u32 v3, v15, 14, v3' % T1)
    fin += items('v_lshl_or_b32 v13, v15, 2, s%d\nv_xor_b32 v13, v13, v14\nv_lshl_add_u32 v%d, v13, 4, v3' % (sW, RA))
    fin += items('v_lshl_add_u32 v12, v12, 6, s%d\nv_lshrrev_b32 v13, 2, v14\nv_lshl_add_u32 v12, v13, 10, v12' % T2)
    fin += items('v_and_b32 v13, 3, v0\nv_lshl_add_u32 v%d, v13, 4, v12\nv_add_u32 v%d, %d, v%d' % (RF, RF + 1, 2 * SLOT, RF))
    fin += items('s_lshl_b32 s%d, s%d, 7' % (T0, sDTX))
    for a in range(2):
        fin += items('v_xor_b32 v%d, s%d, v%d\nv_xor_b32 v%d, 0x80, v%d' % (PW + a, T0, PW + a, PW1 + a, PW + a))
    if cfg.posX < 0:
        run(fin)
    for k in range(cfg.NVA):
        if cfg.posX < 0 and k == -1 - cfg.posX:
            assert k >= cfg.hearly
            e.wait(lg='all')
            e.I('s_barrier')
        if k == cfg.hearly // 2 and k:
            c_read(6)
        if k == cfg.hearly and k:
            c_finish()
        h_load(k)
    e.wait(lg='all')
    if cfg.posX >= 0:
        run(fin)

    def fx_loads():
        e.I('global_load_dwordx2 %s, v1, s[%d:%d]' % (vr(DL, 2), P_DSK, P_DSK + 1), tag='fx')
        for n in range(4):
            e.I('s_mov_b32 s%d, %d' % (T2, 1024 * ROWS[n]))
            e.I('buffer_load_dwordx2 %s, v%d, %s, s%d offen' % (vr(XL + 2 * n, 2), XO, srd(SX), T2), tag='fx')

    def g_loads():
        for n in range(4):
            e.I('buffer_load_dword v%d, v%d, %s, 0 offen offset:%d sc1' % (GL + n, GV, srd(SWS), 4 * ROWS[n]), tag='fg')

    DU = 160
    xd = [lambda: e.wait(vm='fx')]
    xd += items('v_lshlrev_b32 v%d, 16, v%d\nv_and_b32 v%d, 0xffff0000, v%d\nv_lshlrev_b32 v%d, 16, v%d\nv_and_b32 v%d, 0xffff0000, v%d' %
                (DU, DL, DU + 1, DL, DU + 2, DL + 1, DU + 3, DL + 1))
    for n in range(4):
        for k in range(2):
            x = XL + 2 * n + k
            xd += items('v_lshlrev_b32 v12, 16, v%d\nv_and_b32 v13, 0xffff0000, v%d' % (x, x))
            xd += items('v_mul_f32 v12, v12, v%d\nv_mul_f32 v13, v13, v%d' % (DU + 2 * k, DU + 1 + 2 * k))
            xd += items('v_cvt_pk_bf16_f32 v13, v12, v13')
            xd += items('v_lshlrev_b32 v%d, 16, v13\nv_and_b32 v%d, 0xffff0000, v13' % (XD + 4 * n + 2 * k, XD + 4 * n + 2 * k + 1))
    xd += items('v_mov_b32 v12, %d\nv_mov_b32 v13, 1\nv_lshlrev_b32 v%d, 1, v%d' % (L_P2, XO, XO))

    def s2_step(k):
        n2, t4 = k >> 2, k & 3
        if k == 2 * cfg.posX:
            e.I('s_barrier')
        e.wait(vm=('h', k))
        for dq in range(4):
            mfma16(e, acc2(t4, dq), c_reg(n2 >> 1, n2 & 1, dq), h_reg(k), n2 == 0)
            if dq == (0 if cfg.NVA < 12 else 3) and k + cfg.NVA < 32:
                h_load(k + cfg.NVA)
        if k == 8:
            fx_loads()
        if k == max(8, 2 * cfg.posX):
            g_loads()
    steps = [lambda k=k: s2_step(k) for k in range(32)]
    if cfg.xdpos < 32:
        run(steps[:cfg.xdpos] + weave(steps[cfg.xdpos:], xd))
    else:
        run(steps + xd[-3:])
    st(e, 's2end')
    if cfg.posX == 16:
        e.I('s_barrier')
        g_loads()
    st(e, '_X')
    run(part_write(e, PW, 16384, 0, PW1) + part_write(e, PW, 16384, 1, PW1))
    cnt_add(e, 12, 13, 0)
    if cfg.xdpos >= 32:
        run(xd[:-1])
    OM = 164
    e.wait(vm='fg')
    for n in range(4):
        e.I('v_sub_f32 v%d, 1.0, v%d' % (OM + n, GL + n))
        e.I('v_cvt_pk_bf16_f32 v%d, v%d, v%d\nv_lshlrev_b32 v%d, 16, v%d' % (OM + n, OM + n, OM + n, OM + n, OM + n))
    for n in range(4):
        e.I('s_mov_b32 s%d, %d' % (T2 + n, 2048 * ROWS[n]))
    e.I('s_lshl_b32 s%d, s%d, 5\ns_add_u32 s%d, s%d, s%d\ns_lshl_b32 s%d, s%d, 8\ns_add_u32 s%d, s%d, s%d' %
        (T0, sCT, T0, T0, sRT, T1, sW, T0, T0, T1))
    e.I('s_cmp_eq_u32 s%d, 31\ns_cselect_b32 s%d, 0x%x, s%d' % (T0, T0, EPOCH_OFF, SWS + 2))
    flag_store(e, 5, T0)
    cnt_spin(e, 'L_spinM', 12, 16, 0)
    e.wait(lg='all')
    for n in range(4):
        for w in range(4):
            e.I('ds_read_b128 %s, v%d offset:%d' % (vr(64 + 16 * n + 4 * w, 4), RA, w * 4096 + (n & 1) * 2048 + (n >> 1) * 32768), tag=('r', n))
    BS = XD
    for n in range(4):
        e.wait(lg=('r', n))
        b = 64 + 16 * n
        for k in range(4):
            e.I('v_add_f32 v%d, v%d, v%d\nv_add_f32 v%d, v%d, v%d' % (b + k, b + k, b + 4 + k, b + 8 + k, b + 8 + k, b + 12 + k))
        for k in range(4):
            e.I('v_add_f32 v%d, v%d, v%d' % (b + k, b + k, b + 8 + k))
        for k in range(4):
            e.I('v_add_f32 v%d, v%d, v%d' % (b + k, b + k, XD + 4 * n + k))
        for k in range(4):
            e.I('v_mul_f32 v%d, v%d, v%d' % (BS + 4 * n + k, GL + n, b + k))
    st(e, 'pre')
    for grp in cfg.zg:
        e.I('s_barrier')
        st(e, 'Z' if 3 in grp else '_Z%d' % grp[0])
        for n in grp:
            for w in range(4):
                e.I('ds_read_b128 %s, v%d offset:%d' % (vr(64 + 16 * n + 4 * w, 4), RF + (n >> 1), w * 6144 + (n & 1) * SLOT), tag=('r', n, w >> 1))
        for n in grp:
            b = 64 + 16 * n
            for o, p in ((0, 4), (8, 12), (0, 8)):
                e.wait(lg=('r', n, o >> 3))
                if 3 in grp:
                    for k in (0, 2):
                        e.I('v_pk_add_f32 %s, %s, %s' % (vr(b + o + k, 2), vr(b + o + k, 2), vr(b + p + k, 2)))
                else:
                    for k in range(4):
                        e.I('v_add_f32 v%d, v%d, v%d' % (b + o + k, b + o + k, b + p + k))
            if cfg.mimic2:
                for rnd in range(2):
                    e.I('v_cvt_pk_bf16_f32 v%d, v%d, v%d\nv_cvt_pk_bf16_f32 v%d, v%d, v%d' % (b + 1, b, b + 1, b + 3, b + 2, b + 3))
                    for k in (0, 2):
                        e.I('v_lshlrev_b32 v%d, 16, v%d\nv_and_b32 v%d, 0xffff0000, v%d' % (b + k, b + k + 1, b + k + 1, b + k + 1))
                    if rnd == 0:
                        for k in range(4):
                            e.I('v_mul_f32 v%d, v%d, v%d' % (b + k, OM + n, b + k))
                for k in (0, 2):
                    e.I('v_pk_add_f32 %s, %s, %s' % (vr(b + k, 2), vr(b + k, 2), vr(BS + 4 * n + k, 2)))
            else:
                for k in range(4):
                    e.I('v_fma_f32 v%d, v%d, v%d, v%d' % (b + k, OM + n, b + k, BS + 4 * n + k))
            e.I('buffer_store_dwordx4 %s, v%d, %s, s%d offen %s' % (vr(b, 4), XO, srd(SOUT), T2 + n, cfg.outflags if isinstance(cfg.outflags, str) else cfg.outflags[n]), tag='out')
    if st.on:
        e.wait(vm='all')
    st(e, 'end')
    st.flush(e)


HEADER = open(os.path.join(os.path.dirname(os.path.abspath(__file__)), '..', 'cdna_kernels', BASE + '.s.ref')).read()


def generate(cfg):
    SLEEP[:] = cfg.sleep
    W_SLOT[0] = 0 if cfg.w0pos is None else 4
    S_SHIFT[0] = -1 if cfg.lag else 0 if cfg.w0pos is None else 1
    assert cfg.w0pos is None
    hdr = []
    for line in HEADER.split('\n'):
        if not line.startswith(';'):
            break
        if '@launch' in line:
            line = '; @launch grid=(256,1,1) block=(512,1,1) lds=%d' % LDS_BYTES
            if cfg.pre_kernel is not None:
                line = '; @launch kernel=%s grid=(256,1,1) block=(512,1,1) lds=%d' % (NAME, LDS_BYTES)
                if cfg.pre_kernel:
                    line = '; @launch kernel=warm_kernel grid=(256,1,1) block=(256,1,1) lds=0\n' + line
        hdr.append(line)
    stB = Stamps(cfg, [38, 6, 8, 14, 16, 18, 20, 22, 30, 32, 34, 4, 10, 12, 24, 26], 'B')
    stA = Stamps(cfg, [38, 10, 12, 22, 34, 24, 26, 6, 8, 18, 28, 14, 16, 30, 36, 4], 'A')
    e = Em()
    gen_entry(e, cfg, stB)
    stA.names = list(stB.names)
    eA = Em()
    eA.hist = list(e.hist)
    gen_B(e, cfg, stB)
    gen_A(eA, cfg, stA)
    txt = '\n'.join(hdr) + '\n'
    txt += '.amdgcn_target "amdgcn-amd-amdhsa--gfx950"\n.text\n.globl %s\n.p2align 8\n.type %s,@function\n%s:\n' % (NAME, NAME, NAME)
    txt += e.text() + '\n' + '\n'.join(e.cold) + '\n.p2align 6\nL_A:\n' + eA.text() + '\n    s_endpgm\n' + '\n'.join(eA.cold) + '\nL_end:\n    s_endpgm\n'
    if cfg.pre_kernel:
        w = Em()
        w.I('s_cmp_ge_u32 s2, 256\ns_cbranch_scc1 L_wend')
        if cfg.pre_kernel != 'empty':
            w.I('s_load_dwordx16 s[4:19], s[0:1], 0\ns_load_dwordx16 s[20:35], s[0:1], 64')
            w.I('s_lshl_b32 s3, s2, 8\nv_add_u32 v0, s3, v0\nv_lshlrev_b32 v1, 7, v0')
            w.wait_smem()
            base = 0
            for p, n in ((P_X, 2048 * 1024), (P_BRE, 524288), (P_BIM, 524288), (P_WG, 1409024), (P_WU, 1409024), (P_CRE, 524288), (P_CIM, 524288), (P_WD, 1409024)):
                mk_srd(w, 40, p, n)
                w.I('v_subrev_u32 v2, %d, v1\nv_cmp_gt_u32 vcc, %d, v2\ns_and_saveexec_b64 s[44:45], vcc\ns_cbranch_execz L_w%d' % (base, n, p))
                w.I('buffer_load_dword v3, v2, s[40:43], 0 offen')
                w.label('L_w%d' % p)
                w.I('s_mov_b64 exec, s[44:45]')
                base += n
            if cfg.pre_kernel == 'wait':
                w.I('s_waitcnt vmcnt(0)')
        txt += '.globl warm_kernel\n.p2align 8\n.type warm_kernel,@function\nwarm_kernel:\n' + w.text() + '\nL_wend:\n    s_endpgm\n'
    txt += '''.section .rodata,"a"
.p2align 6
.amdhsa_kernel %s
  .amdhsa_next_free_vgpr 256
  .amdhsa_next_free_sgpr 102
  .amdhsa_accum_offset 256
  .amdhsa_group_segment_fixed_size 0
  .amdhsa_kernarg_size 136
  .amdhsa_user_sgpr_count 2
  .amdhsa_user_sgpr_kernarg_segment_ptr 1
  .amdhsa_system_sgpr_workgroup_id_x 1
  .amdhsa_float_denorm_mode_32 3
.end_amdhsa_kernel
''' % NAME
    if cfg.pre_kernel:
        txt += '''.p2align 6
.amdhsa_kernel warm_kernel
  .amdhsa_next_free_vgpr 8
  .amdhsa_next_free_sgpr 48
  .amdhsa_accum_offset 8
  .amdhsa_group_segment_fixed_size 0
  .amdhsa_kernarg_size 136
  .amdhsa_user_sgpr_count 2
  .amdhsa_user_sgpr_kernarg_segment_ptr 1
  .amdhsa_system_sgpr_workgroup_id_x 1
.end_amdhsa_kernel
'''
    info = dict(A=eA.count, B=e.count, nopsA=eA.nops, nopsB=e.nops, stampsA=stA.names, stampsB=stB.names)
    return txt, info


def cfg_from(args):
    cfg = Cfg()
    for a in args:
        k, v = a.split('=')
        setattr(cfg, k, eval(v))
    return cfg


if __name__ == '__main__':
    out = sys.argv[1]
    cfg = cfg_from(sys.argv[2:])
    txt, info = generate(cfg)
    open(out, 'w').write(txt)
    print(info)
```

```python
import sys, os
sys.path.insert(0, os.path.dirname(os.path.abspath(__file__)))
from em import Em, weave

BASE = 'gated_mix__ssm_conv_s5__swiglu_ffn__prompt'
NAME = BASE + '_kernel'

ACT_OFF = 0
H_OFF = 0x600000
E_OFF = 0xB00000
G_OFF = 0xB20000
HF_OFF = 0xB24000
AF_OFF = 0xB30000
EPOCH_OFF = 0xB48000
STAMP_OFF = 0xB50000
WS_SIZE = 0xB80000
OOB = 0x2000000
FS = 32
PHI = 0x9E3779B8

SLOT = 24576
WIN = 49152
SCR = 147456
SPART = 98304
L_E, L_FL, L_EG = SCR, SCR + 4096, SCR + 8192
L_P2 = 3 * SLOT + 4096
LDS_BYTES = 163840

P_X, P_LRE, P_LIM, P_BRE, P_BIM, P_CRE, P_CIM, P_LDT = 4, 6, 8, 10, 12, 14, 16, 18
P_DSK, P_BX, P_WG, P_WU, P_WD, P_GW, P_OUT, P_DBG, P_WS = 20, 22, 24, 26, 28, 30, 32, 34, 36
SX, SWS = 40, 44
SBM, SW, SWD = 48, 52, 56
SC1, SC2, SOUT, SCODE = 48, 52, 56, 60
SWA = 60
sWAVE, sW, sRB, sCB, sK0, sRT, sCT, sNONCE, sSG0 = 64, 65, 66, 67, 68, 69, 70, 71, 72
T0, T1, T2, T3, T4, T5, T6 = 73, 74, 75, 76, 77, 78, 79
sNL2E = 80
sMA, sMB = 82, 84
sTBL = 86
sCNT = 97
sTS, sTW, sTD = 98, 99, 100
sMX, sMBm = 60, 61
sMW = 101
SPIN_MAX = 200000

SLEEP = [0, 0]
LOG2E = 0x3fb8aa3b
NLOG2E = 0xbfb8aa3b


class Cfg:
    mimic = False
    mimic2 = False
    stamps = False
    rot1 = (2, 0, 2, 1)
    rot2 = 7
    rotF = 0
    rotS = None
    map2 = 84
    prewarm = True
    NT = 2
    early = 200
    w0pos = None
    s1a = 2
    smallpos = 2
    tlb = False
    pre_kernel = None
    lag = 0
    lagr = 4
    JL = 7
    prog = 'W2,G0|;W3,C0|sel;W4|g0;E0,W5,D0,D1,D2,D3|g1;W6|P0;W7|P1H;|;C1,C2,C3|F'
    p2cut = 80
    cbuf = (4, 0, 1, 4, 0, 1, 4, 0)
    tplan = ()
    zfill = True
    prioB = 0
    LA = 4
    posX = 8
    pren = 4
    asplit = True
    prioT = 1
    drain = ()
    hpad = (0, 0)
    hlook = 9
    hearly = 0
    hnow = 4
    sleep = (1, 1)
    skip = ''
    flagpos = (0, 0, 3)
    alook = 18
    abet = 3
    posXB = -17
    fine = True
    prioF2 = 1
    NVA = 11
    NV0 = (12, 0)
    xdpos = 32
    NV = 12
    TL = 4
    pull0 = 3
    zg = ((0, 1), (2, 3))
    zlag = 3
    outflags = 'sc1'
    selA = None
    selB = None
    prioA = 0
    amp = None


def srd(r):
    return 's[%d:%d]' % (r, r + 3)


def vr(a, n):
    return 'v[%d:%d]' % (a, a + n - 1) if n > 1 else 'v%d' % a


def mk_srd(e, r, p, nbytes):
    e.I('s_mov_b32 s%d, s%d\ns_mov_b32 s%d, s%d\ns_mov_b32 s%d, 0x%x\ns_mov_b32 s%d, 0x20000' %
        (r, p, r + 1, p + 1, r + 2, nbytes, r + 3))


def mk_srd_sel(e, r, p1, p0, nbytes):
    e.I('s_cselect_b32 s%d, s%d, s%d\ns_cselect_b32 s%d, s%d, s%d\ns_mov_b32 s%d, 0x%x\ns_mov_b32 s%d, 0x20000' %
        (r, p1, p0, r + 1, p1 + 1, p0 + 1, r + 2, nbytes, r + 3))


def mfma(e, d, a, b, first):
    e.I('v_mfma_f32_32x32x16_bf16 %s, %s, %s, %s' % (vr(d, 16), vr(a, 4), vr(b, 4), '0' if first else vr(d, 16)))


def mfma16(e, d, a, b, first):
    e.I('v_mfma_f32_16x16x32_bf16 %s, %s, %s, %s' % (vr(d, 4), vr(a, 4), vr(b, 4), '0' if first else vr(d, 4)))


class Stamps:
    def __init__(self, cfg, regs, role):
        self.amp = cfg.amp if cfg.amp else None
        self.role = role
        self.sel = (cfg.selA if role == 'A' else cfg.selB)
        if self.sel is not None:
            self.sel = self.sel.split(',')
        self.ins = 's_memtime' if cfg.stamps == 'cyc' else 's_memrealtime'
        self.on = cfg.stamps or bool(self.amp)
        self.regs = regs
        self.names = []

    def __call__(self, e, name):
        if not self.on:
            return
        if self.sel is not None:
            if name != 'start' and name not in self.sel:
                return
        elif name.startswith('_'):
            return
        r = self.regs[len(self.names)]
        self.names.append(name)
        if self.amp and name not in ('start', 'end', self.amp[1], self.amp[2]):
            return
        e.I('%s s[%d:%d]' % (self.ins, r, r + 1))

    def flush(self, e):
        if not self.on:
            return
        e.wait_smem()
        if self.amp:
            if self.amp[0] == self.role:
                R = dict(zip(self.names, self.regs))
                e.I('s_sub_u32 s%d, s%d, s%d\ns_mul_i32 s%d, s%d, %d\ns_min_u32 s%d, s%d, 50000' %
                    (T0, R[self.amp[2]], R[self.amp[1]], T0, T0, self.amp[3], T0, T0))
                e.label('L_amp')
                e.I('s_memrealtime s[%d:%d]' % (T1, T1 + 1))
                e.wait_smem()
                e.I('s_sub_u32 s%d, s%d, s%d\ns_cmp_lt_u32 s%d, s%d\ns_cbranch_scc1 L_amp' % (T1, T1, R['end'], T1, T0))
            return
        e.I('s_lshl_b32 s%d, s2, 3\ns_add_u32 s%d, s%d, s%d\ns_lshl_b32 s%d, s%d, 6\ns_add_u32 s%d, s%d, 0x%x' %
            (T0, T0, T0, sWAVE, T0, T0, T0, T0, STAMP_OFF))
        e.I('s_mov_b64 exec, 1')
        for k in range(len(self.names)):
            e.I('v_mov_b32 v2, s%d' % self.regs[k])
            e.I('buffer_store_dword v2, off, %s, s%d offset:%d' % (srd(SWS), T0, 4 * k))


def run(items):
    for it in items:
        it()


def poll(e, label, vt, vaddr, soff, mask, between=None):
    def look(tag=None):
        e.I('s_mov_b64 exec, %s' % mask)
        e.I('buffer_load_dword v%d, v%d, %s, s%d offen sc1' % (vt, vaddr, srd(SWS), soff), tag=tag)
        e.I('s_mov_b64 exec, -1')

    def check():
        e.I('v_cmp_ne_u32 vcc, s%d, v%d' % (sNONCE, vt))
        e.I('s_and_b64 vcc, vcc, %s' % mask)
    spin(e, label, look, check, between)


def spin(e, label, look, check, between):
    look('look')
    if between:
        between()
    e.wait(vm='look')
    check()
    e.I('s_cbranch_scc1 %s' % label)
    e.label(label + '_out')
    with e.cold_block():
        e.label(label)
        e.I('s_mov_b32 s%d, 0' % sCNT)
        e.label(label + '_l')
        if SLEEP[0]:
            e.I('s_sleep %d' % SLEEP[0])
        look()
        e.I('s_add_u32 s%d, s%d, 1' % (sCNT, sCNT))
        e.I('s_cmp_gt_u32 s%d, %d' % (sCNT, SPIN_MAX))
        e.wait(vm='all')
        e.I('s_cbranch_scc1 %s_out' % label)
        check()
        e.I('s_cbranch_scc1 %s_l' % label)
        e.I('s_branch %s_out' % label)


def code_touch(e, tag):
    e.I('s_getpc_b64 s[%d:%d]' % (sMA, sMA + 1))
    e.label('L_pc' + tag)
    e.I('s_sub_u32 s%d, s%d, L_pc%s-%s\ns_subb_u32 s%d, s%d, 0' % (sMA, sMA, tag, NAME, sMA + 1, sMA + 1))
    e.I('s_and_b32 s%d, s2, 0xf8\ns_add_u32 s%d, s%d, s%d\ns_lshl_b32 s%d, s%d, 6' % (T0, T0, T0, sWAVE, T0, T0))
    e.I('s_load_dword s3, s[%d:%d], s%d' % (sMA, sMA + 1, T0))
    e.I('s_add_u32 s%d, s%d, 16384\ns_min_u32 s%d, s%d, L_end-%s' % (T0, T0, T0, T0, NAME))
    e.I('s_load_dword s3, s[%d:%d], s%d' % (sMA, sMA + 1, T0))


def rot2_calc(e, cfg, dst, b):
    e.I('s_mul_i32 s%d, s%d, %d' % (dst, sCT, b))
    for k in range(1 if cfg.map2 == 84 else 2):
        e.I('s_add_u32 s%d, s%d, s%d' % (dst, dst, sRT))
    e.I('s_and_b32 s%d, s%d, %d' % (dst, dst, cfg.rot2))


def step_start(e, cfg, cur, beg, end, shift):
    rot2_calc(e, cfg, cur, cfg.rotF)
    e.I('s_cmp_eq_u32 s%d, 3\ns_cselect_b32 s%d, 10, 11' % (sW, end))
    e.I('s_mul_i32 s%d, s%d, s%d\ns_lshr_b32 s%d, s%d, 3\ns_mul_i32 s%d, s%d, 11' % (cur, cur, end, cur, cur, beg, sW))
    e.I('s_add_u32 s%d, s%d, s%d\ns_add_u32 s%d, s%d, s%d' % (cur, cur, beg, end, end, beg))
    for r in (cur, beg, end):
        e.I('s_lshl_b32 s%d, s%d, %d' % (r, r, shift))


def step_next(e, cur, beg, end, inc, wrap=True, last=False):
    e.I('s_add_u32 s%d, s%d, %d' % (cur, cur, inc))
    if wrap:
        e.I('s_cmp_eq_u32 s%d, s%d\ns_cselect_b32 s%d, s%d, s%d' % (cur, end, cur, beg, cur))
    if last:
        e.I('s_cmp_eq_u32 s%d, 3\ns_cselect_b32 s%d, 0x%x, s%d' % (sW, cur, OOB, cur))


def wd_next(e, n, cur, beg, end):
    step_next(e, cur, beg, end, 16384, n % 2 == 0, n == 20)


def set_m0(e, base, off):
    if getattr(e, 'm0', None) != (base, off):
        e.I('s_add_u32 m0, s%d, %d' % (base, off))
        e.m0 = (base, off)


def wd_lane_offsets(e, WDV, t0, t1):
    txt = 'v_lshrrev_b32 v%d, 4, v0\nv_lshlrev_b32 v%d, 1, v%d\nv_and_b32 v%d, 7, v0\nv_xor_b32 v%d, v%d, v%d\nv_lshlrev_b32 v%d, 4, v%d\n' % (
        t0, t0, t0, t1, t0, t0, t1, t0, t0)
    txt += 'v_lshrrev_b32 v%d, 3, v0\nv_lshl_add_u32 v%d, v%d, 10, v%d\n' % (t1, t0, t1, t0)
    txt += 's_lshl_b32 s%d, s%d, 7\n' % (T0, sCT)
    txt += 'v_add_u32 v%d, s%d, v%d\nv_add_u32 v%d, 7168, v%d' % (WDV, T0, t0, WDV + 1, WDV)
    return txt


RING = [(5, n) for n in range(3)] + [(4, 2)] + [(2 + n // 3, n % 3) for n in range(6)] + [(4, n) for n in range(2)] \
    + [(n // 3, n % 3) for n in range(6)] + [(2, n) for n in range(3)] + [(3, 0)]
PREV = {18: 4, 19: 5, 20: 6, 21: 7}


class Touch:
    def __init__(self, e, cfg, role):
        self.e, self.role = e, role
        self.plan = [p for p in cfg.tplan if p[0] == role]
        it = []
        for par in range(2):
            for p in (P_CRE, P_CIM):
                it += [(p, 128 * k + 64 * par) for k in range(4)]
        for par in range(2):
            it += [(P_WD, 128 * k + 64 * par) for k in range(11)]
        self.items = it

    def setup(self):
        if not self.plan:
            return
        e = self.e
        used = {self.items[k][0] for p in self.plan for k in range(p[2], p[3])}
        e.I('s_lshl_b32 s%d, s2, 2\ns_add_u32 s%d, s%d, s%d' % (T0, T0, T0, sW))
        for p in sorted(used):
            e.I('s_mul_i32 s%d, s%d, %d' % (T1, T0, 1376 if p == P_WD else 512))
            e.I('s_add_u32 s%d, s%d, s%d\ns_addc_u32 s%d, s%d, 0' % (p, p, T1, p + 1, p + 1))

    def at(self, place):
        for p in self.plan:
            if p[1] == place:
                for k in range(p[2], p[3]):
                    self.e.I('s_load_dword s3, s[%d:%d], %d' % (self.items[k][0], self.items[k][0] + 1, self.items[k][1]))


def flag_store(e, vt, soff, imm=0):
    e.I('s_mov_b64 exec, 1')
    e.I('buffer_store_dword v%d, off, %s, s%d offset:%d sc1' % (vt, srd(SWS), soff, imm), tag='flag')
    e.I('s_mov_b64 exec, -1')


def frag_addr(e, dst, t0, t1):
    e.I('v_lshrrev_b32 v%d, 5, v0' % t0)
    e.I('v_bfe_u32 v%d, v0, 1, 3' % t1)
    e.I('v_xor_b32 v%d, v%d, v%d' % (t0, t0, t1))
    e.I('v_and_b32 v%d, 31, v0' % t1)
    e.I('v_lshlrev_b32 v%d, 7, v%d' % (t1, t1))
    e.I('v_lshl_add_u32 v%d, v%d, 4, v%d' % (dst, t0, t1))
    for s in range(1, 4):
        e.I('v_xor_b32 v%d, %d, v%d' % (dst + s, 32 * s, dst))


def frag16_addr(e, dst, t0, t1):
    e.I('v_lshrrev_b32 v%d, 4, v0' % t0)
    e.I('v_bfe_u32 v%d, v0, 1, 3' % t1)
    e.I('v_xor_b32 v%d, v%d, v%d' % (t0, t0, t1))
    e.I('v_and_b32 v%d, 15, v0' % t1)
    e.I('v_lshlrev_b32 v%d, 7, v%d' % (t1, t1))
    e.I('v_lshl_add_u32 v%d, v%d, 4, v%d' % (dst, t0, t1))
    e.I('v_xor_b32 v%d, 64, v%d' % (dst + 1, dst))


def w_tr_addr(e, d, t0, t1):
    e.I('v_lshrrev_b32 v%d, 4, v0' % t0)
    e.I('v_bfe_u32 v%d, v0, 2, 2' % t1)
    e.I('v_lshl_add_u32 v%d, v%d, 3, v%d' % (t0, t0, t1))
    e.I('v_mul_u32_u24 v%d, 192, v%d' % (t0, t0))
    e.I('v_bfe_u32 v%d, v0, 4, 1' % t1)
    e.I('v_lshl_add_u32 v%d, v%d, 5, v%d' % (t0, t1, t0))
    e.I('v_and_b32 v%d, 3, v0' % t1)
    e.I('v_lshl_add_u32 v%d, v%d, 3, v%d' % (d, t1, t0))
    e.I('v_xor_b32 v%d, 32, v%d' % (d + 1, d))
    e.I('v_add_u32 v%d, %d, v%d\nv_add_u32 v%d, %d, v%d' % (d + 2, WIN, d, d + 3, WIN, d + 1))


W_SLOT = [0, 1, 2, 3, 0, 1, 2, 3]
S_SHIFT = [0]


def s_slot(i):
    return (i + 4) % 6 if S_SHIFT[0] < 0 else (i + S_SHIFT[0]) % 4


def w_frag_read(e, dst, wa, j, s2, g, mat, fh, mm, tag):
    slot = W_SLOT[j]
    off = (slot & 1) * SLOT + mat * 12288 + (32 * s2 + 4 * mm) * 192 + g * 64
    e.I('ds_read_b64_tr_b16 %s, v%d offset:%d' % (vr(dst + 2 * mm, 2), wa + 2 * (slot >> 1) + fh, off), tag=tag)


def act_items(e, cfg, G, U, tmp, out):
    items = []
    add = lambda t: items.append(lambda t=t: e.I(t))
    for b in range(2):
        g, u, o = G + 8 * b, U + 8 * b, out + 4 * b
        if cfg.mimic:
            for src in (g, u):
                for p in range(4):
                    add('v_cvt_pk_bf16_f32 v%d, v%d, v%d' % (tmp + p, src + 2 * p, src + 2 * p + 1))
                for p in range(4):
                    add('v_lshlrev_b32 v%d, 16, v%d' % (src + 2 * p, tmp + p))
                    add('v_and_b32 v%d, 0xffff0000, v%d' % (src + 2 * p + 1, tmp + p))
        for p in range(4):
            add('v_pk_mul_f32 %s, %s, s[%d:%d]' % (vr(tmp + 2 * p, 2), vr(g + 2 * p, 2), sNL2E, sNL2E + 1))
        for p in range(8):
            add('v_exp_f32 v%d, v%d' % (tmp + p, tmp + p))
        for p in range(4):
            add('v_pk_add_f32 %s, %s, 1.0 op_sel_hi:[1,0]' % (vr(tmp + 2 * p, 2), vr(tmp + 2 * p, 2)))
        for p in range(8):
            add('v_rcp_f32 v%d, v%d' % (tmp + p, tmp + p))
        for p in range(4):
            add('v_pk_mul_f32 %s, %s, %s' % (vr(g + 2 * p, 2), vr(g + 2 * p, 2), vr(tmp + 2 * p, 2)))
        if cfg.mimic:
            for p in range(4):
                add('v_cvt_pk_bf16_f32 v%d, v%d, v%d' % (tmp + p, g + 2 * p, g + 2 * p + 1))
            for p in range(4):
                add('v_lshlrev_b32 v%d, 16, v%d' % (g + 2 * p, tmp + p))
                add('v_and_b32 v%d, 0xffff0000, v%d' % (g + 2 * p + 1, tmp + p))
        for p in range(4):
            add('v_pk_mul_f32 %s, %s, %s' % (vr(u + 2 * p, 2), vr(g + 2 * p, 2), vr(u + 2 * p, 2)))
        for p in range(4):
            add('v_cvt_pk_bf16_f32 v%d, v%d, v%d' % (o + p, u + 2 * p, u + 2 * p + 1))
    return items


def act_items_scalar(e, cfg, G, U, tmp, out):
    if cfg.mimic:
        return act_items(e, cfg, G, U, tmp, out)
    items = []
    add = lambda t: items.append(lambda t=t: e.I(t))
    for b in range(4):
        g, u, o = G + 4 * b, U + 4 * b, out + 2 * b
        for p in range(4):
            add('v_mul_f32 v%d, s%d, v%d' % (tmp + p, sNL2E, g + p))
        for p in range(4):
            add('v_exp_f32 v%d, v%d' % (tmp + p, tmp + p))
            add('v_mul_f32 v%d, v%d, v%d' % (u + p, g + p, u + p))
        for p in range(4):
            add('v_add_f32 v%d, 1.0, v%d' % (tmp + p, tmp + p))
        for p in range(4):
            add('v_rcp_f32 v%d, v%d' % (tmp + p, tmp + p))
        for p in range(4):
            add('v_mul_f32 v%d, v%d, v%d' % (u + p, tmp + p, u + p))
        for p in range(2):
            add('v_cvt_pk_bf16_f32 v%d, v%d, v%d' % (o + p, u + 2 * p, u + 2 * p + 1))
    return items


def light_scc(e):
    e.I('s_and_b32 s%d, s%d, 3\ns_cmp_eq_u32 s%d, 3\ns_cselect_b32 s%d, 14, s%d\ns_cmp_eq_u32 s%d, 14' % (T0, sCB, T0, T0, sCB, T0))


def w_lane_offsets(e, cfg, WV, t0, t1):
    if cfg.zfill:
        light_scc(e)
        e.I('s_cselect_b32 s%d, 8, 12' % sTW)
    e.I('s_and_b32 s%d, s%d, 1' % (T1, sW))
    e.I('s_mul_i32 s%d, s%d, %d\ns_lshl_b32 s%d, s%d, 6\ns_add_u32 s%d, s%d, s%d' % (T0, T1, 32 * 2752, T1, sSG0, T0, T0, T1))
    for q in range(3):
        e.I('v_add_u32 v%d, %d, v0\nv_mul_u32_u24 v%d, 171, v%d\nv_lshrrev_b32 v%d, 11, v%d' % (t1, 64 * q, t0, t1, t0, t0))
        if cfg.zfill:
            e.I('v_mul_u32_u24 v%d, 12, v%d\nv_sub_u32 v%d, v%d, v%d\nv_cmp_gt_u32 vcc, s%d, v%d' % (WV + q, t0, t1, t1, WV + q, sTW, t1))
        e.I('v_lshrrev_b32 v%d, 3, v%d\nv_lshlrev_b32 v%d, 1, v%d\nv_xor_b32 v%d, v0, v%d' % (t1, t0, t1, t1, t1, t1))
        e.I('v_mul_u32_u24 v%d, %d, v%d' % (t0, 2752 - 192, t0))
        e.I('v_lshl_add_u32 v%d, v%d, 4, v%d' % (t0, t1, t0))
        e.I('v_add_u32 v%d, s%d, v%d' % (WV + q, T0, t0))
        if cfg.zfill:
            e.I('v_mov_b32 v%d, 0x%x\nv_cndmask_b32 v%d, v%d, v%d, vcc' % (t0, OOB, WV + q, t0, WV + q))
    e.I('s_mul_i32 s%d, s%d, 6144' % (sMW, sW))


def dma_W(e, WV, SWR, j):
    slot = W_SLOT[j] * SLOT
    its = []
    for grp in range(2):
        for q in range(3):
            def f(grp=grp, q=q):
                set_m0(e, sMW, slot + grp * 3072)
                if q == 0 and grp == 0:
                    e.I('s_add_u32 s%d, s%d, %d\ns_and_b32 s%d, s%d, 7\ns_mul_i32 s%d, s%d, %d' %
                        (sTW, sK0, j, sTW, sTW, sTW, sTW, 64 * 2752))
                if q == 0 and grp == 1:
                    e.I('s_add_u32 s%d, s%d, %d' % (sTW, sTW, 16 * 2752))
                e.I('buffer_load_dwordx4 v%d, %s, s%d offen offset:%d lds' % (WV + q, srd(SWR), sTW, 1024 * q), tag=('st', 8 + j))
            its.append(f)
    return its


C_LAND, C_CONS, C_Q, C_DONEA = 0, 32, 64, 68


def cnt_add(e, va, vone, off):
    e.I('s_mov_b64 exec, 1')
    e.I('ds_add_u32 v%d, v%d offset:%d' % (va, vone, off), tag='sig')
    e.I('s_mov_b64 exec, -1')


def cnt_look(e, va, vt, off, tag):
    e.I('ds_read_b32 v%d, v%d offset:%d' % (vt, va, off), tag=tag)


def cnt_check(e, label, va, vt, off, tag):
    e.wait(lg=tag)
    e.I('v_cmp_ne_u32 vcc, 4, v%d' % vt)
    e.I('s_cbranch_vccnz %s' % label)
    e.label(label + '_out')
    with e.cold_block():
        e.label(label)
        e.I('s_mov_b32 s%d, 0' % sCNT)
        e.label(label + '_l')
        if SLEEP[1]:
            e.I('s_sleep %d' % SLEEP[1])
        cnt_look(e, va, vt, off, None)
        e.I('s_add_u32 s%d, s%d, 1' % (sCNT, sCNT))
        e.I('s_cmp_gt_u32 s%d, %d' % (sCNT, 20 * SPIN_MAX))
        e.wait(lg='all')
        e.I('s_cbranch_scc1 %s_out' % label)
        e.I('v_cmp_ne_u32 vcc, 4, v%d' % vt)
        e.I('s_cbranch_vccnz %s_l' % label)
        e.I('s_branch %s_out' % label)


def cnt_spin(e, label, va, vt, off):
    cnt_look(e, va, vt, off, 'look')
    cnt_check(e, label, va, vt, off, 'look')


def act_offsets(e, k, s_data, s_flag, valid_scc=False):
    e.I('s_lshl_b32 s%d, s%d, 2\ns_add_u32 s%d, s%d, s%d' % (T0, sRB, T0, T0, sW))
    e.I('s_mul_i32 s%d, s%d, 43\ns_add_u32 s%d, s%d, s%d\ns_add_u32 s%d, s%d, %d\ns_lshl_b32 s%d, s%d, 11' %
        (T1, T0, T1, T1, sSG0, T1, T1, k, s_data, T1))
    e.I('s_lshr_b32 s%d, s%d, 1\ns_mul_i32 s%d, s%d, 44\ns_add_u32 s%d, s%d, s%d\ns_add_u32 s%d, s%d, %d' %
        (T1, T0, T1, T1, T1, T1, sSG0, T1, T1, k))
    e.I('s_lshl_b32 s%d, s%d, 1\ns_and_b32 s%d, s%d, 1\ns_add_u32 s%d, s%d, s%d\ns_mul_i32 s%d, s%d, %d\ns_add_u32 s%d, s%d, 0x%x' %
        (T1, T1, T0, T0, T1, T1, T0, T1, T1, FS, s_flag, T1, AF_OFF))


def part_write_addr(e, dst, t0, t1, piece_stride, wave_stride, base):
    e.I('v_lshrrev_b32 v%d, 4, v0' % t0)
    e.I('v_and_b32 v%d, 7, v0' % t1)
    e.I('v_xor_b32 v%d, v%d, v%d' % (t0, t0, t1))
    e.I('v_lshlrev_b32 v%d, 4, v%d' % (dst, t0))
    e.I('v_bfe_u32 v%d, v0, 3, 1' % t0)
    e.I('v_and_b32 v%d, 3, v0' % t1)
    e.I('v_lshl_add_u32 v%d, v%d, 2, v%d' % (t0, t0, t1))
    e.I('v_lshl_add_u32 v%d, v%d, 8, v%d' % (dst, t0, dst))
    e.I('v_bfe_u32 v%d, v0, 2, 1' % t0)
    e.I('v_mul_u32_u24 v%d, %d, v%d' % (t0, piece_stride, t0))
    e.I('s_mul_i32 s%d, s%d, %d\ns_add_u32 s%d, s%d, %d' % (T0, sW, wave_stride, T0, T0, base))
    e.I('v_add3_u32 v%d, v%d, v%d, s%d' % (dst, dst, t0, T0))
    e.I('v_xor_b32 v%d, 64, v%d' % (dst + 1, dst))


def acc2(t4, dq):
    return 64 + 16 * t4 + 4 * dq


def part_write(e, addr, piece_stride, tt, addr1=None):
    its = []
    for a in range(2):
        for dq in range(4):
            ad_, off = (addr + (dq & 1), (dq >> 1) * 128) if addr1 is None or dq < 2 else (addr1 + (dq & 1), 0)
            its.append(lambda ad_=ad_, off=off, dq=dq, a=a:
                       e.I('ds_write_b128 v%d, %s offset:%d' % (ad_, vr(acc2(2 * tt + a, dq), 4), tt * 2 * piece_stride + a * 2048 + off), tag=('pw', tt)))
    return its


def gen_entry(e, cfg, st):
    e.I('s_cmp_ge_u32 s2, 256\ns_cbranch_scc1 L_end')
    e.I('s_load_dwordx16 s[4:19], s[0:1], 0\ns_load_dwordx16 s[20:35], s[0:1], 64\ns_load_dwordx2 s[36:37], s[0:1], 128')
    st(e, 'start')
    e.I('v_lshrrev_b32 v1, 6, v0\nv_and_b32 v0, 63, v0')
    e.I('v_readfirstlane_b32 s%d, v1' % sWAVE)
    e.I('s_and_b32 s%d, s2, 7\ns_lshr_b32 s%d, s2, 3' % (T0, T1))
    e.I('s_and_b32 s%d, s%d, 7\ns_lshr_b32 s%d, s%d, 3' % (T2, T1, T3, T1))
    e.I('s_and_b32 s%d, s%d, 1\ns_lshl_b32 s%d, s%d, 3\ns_add_u32 s%d, s%d, s%d' % (sRB, T0, sRB, sRB, sRB, sRB, T2))
    e.I('s_lshr_b32 s%d, s%d, 1' % (T4, T0))
    e.I('s_lshl_b32 s%d, s%d, 2\ns_add_u32 s%d, s%d, s%d' % (sCB, T4, sCB, sCB, T3))
    e.I('s_mul_i32 s%d, s%d, %d' % (sK0, T2, cfg.rot1[0]))
    for src, mul in zip((T3, T4, None), cfg.rot1[1:]):
        if mul:
            if src is None:
                e.I('s_and_b32 s%d, s%d, 1' % (T5, T0))
            e.I('s_mul_i32 s%d, s%d, %d\ns_add_u32 s%d, s%d, s%d' % (T5, T5 if src is None else src, mul, sK0, sK0, T5))
    e.I('s_and_b32 s%d, s%d, 7' % (sK0, sK0))
    e.I('s_mul_i32 s%d, s%d, 11\ns_mul_i32 s%d, s%d, 3\ns_add_u32 s%d, s%d, s%d' % (sSG0, T4, T5, T3, sSG0, sSG0, T5))
    e.I('s_cmp_eq_u32 s%d, 15\ns_subb_u32 s%d, s%d, 0' % (sCB, sSG0, sSG0))
    if cfg.map2 == 84:
        e.I('s_lshl_b32 s%d, s%d, 3\ns_add_u32 s%d, s%d, s%d' % (sRT, T4, sRT, sRT, T2))
        e.I('s_and_b32 s%d, s%d, 1\ns_lshl_b32 s%d, s%d, 2\ns_add_u32 s%d, s%d, s%d' % (sCT, T0, sCT, sCT, sCT, sCT, T3))
    else:
        e.I('s_lshl_b32 s%d, s%d, 2\ns_and_b32 s%d, s%d, 3\ns_add_u32 s%d, s%d, s%d\ns_lshr_b32 s%d, s%d, 2' %
            (sRT, T0, T5, T1, sRT, sRT, T5, sCT, T1))
    e.I('s_and_b32 s%d, s%d, 3' % (sW, sWAVE))
    e.I('s_cmp_lt_u32 s%d, 4\ns_cbranch_scc1 L_A' % sWAVE)


def gen_B(e, cfg, st):
    NPRE = cfg.prog.count('D')
    WA = 2
    EP = 42
    XV, BV, WV, XA = 32, 36, 38, 44
    e.I('v_lshrrev_b32 v8, 3, v0')
    e.I('v_and_b32 v9, 7, v0')
    e.I('v_lshrrev_b32 v10, 4, v0')
    e.I('v_xor_b32 v10, v9, v10\nv_lshlrev_b32 v10, 4, v10')
    e.I('v_lshrrev_b32 v11, 5, v0\nv_and_b32 v12, 3, v8\nv_lshl_add_u32 v11, v11, 4, v12')
    e.I('s_lshl_b32 s%d, s%d, 2\ns_add_u32 s%d, s%d, s%d\ns_lshl_b32 s%d, s%d, 15' % (T0, sRB, T0, T0, sW, T0, T0))
    e.I('v_lshl_add_u32 v11, v11, 10, s%d' % T0)
    e.I('v_add_u32 v%d, v11, v10' % XV)
    e.I('v_xor_b32 v13, 64, v%d' % XV)
    e.I('v_add_u32 v%d, 3072, v13\nv_add_u32 v%d, 6144, v%d\nv_add_u32 v%d, 9216, v13' % (XV + 1, XV + 2, XV, XV + 3))
    e.I('s_and_b32 s%d, s%d, 1' % (T1, sW))
    e.I('s_lshl_b32 s%d, s%d, 1\ns_add_u32 s%d, s%d, s%d\ns_lshl_b32 s%d, s%d, 14' % (T0, sCB, T0, T0, T1, T0, T0))
    e.I('v_lshrrev_b32 v11, 5, v0\nv_lshl_add_u32 v11, v11, 3, v12')
    e.I('v_lshl_add_u32 v11, v11, 10, s%d' % T0)
    e.I('v_add_u32 v%d, v11, v10' % BV)
    e.I('v_xor_b32 v13, 64, v%d\nv_add_u32 v%d, 3072, v13' % (BV, BV + 1))
    e.I('s_lshl_b32 s%d, s%d, 12' % (sMX, sW))
    e.I('s_lshl_b32 s%d, s%d, 11\ns_add_u32 s%d, s%d, 16384' % (sMBm, sW, sMBm, sMBm))
    e.I('s_lshl_b32 s%d, s%d, 7' % (T6, sK0))
    e.wait_smem()
    st(e, 'karg')
    mk_srd(e, SX, P_X, 2048 * 1024)
    e.I('s_cmp_ge_u32 s%d, 2' % sW)
    mk_srd_sel(e, SBM, P_BIM, P_BRE, 512 * 1024)

    def dma_S(i):
        slot = s_slot(i) * SLOT
        its = []
        for q in range(4):
            def f(q=q):
                if q == 0:
                    set_m0(e, sMX, slot)
                    e.I('s_add_u32 s%d, s%d, %d\ns_and_b32 s%d, s%d, 1023' % (sTS, T6, i * 128, sTS, sTS))
                e.I('buffer_load_dwordx4 v%d, %s, s%d offen offset:%d lds' % (XV + q, srd(SX), sTS, 1024 * q), tag=('st', i))
            its.append(f)
        for q in range(2):
            def f(q=q):
                if q == 0:
                    set_m0(e, sMBm, slot)
                e.I('buffer_load_dwordx4 v%d, %s, s%d offen offset:%d lds' % (BV + q, srd(SBM), sTS, 1024 * q), tag=('st', i))
            its.append(f)
        return its

    run(dma_S(0))
    st(e, 'dma0')
    s1 = dma_S(1)
    run(s1[:cfg.s1a])
    e.I('v_lshlrev_b32 v11, 2, v0\nv_add_u32 v11, %d, v11\nv_mov_b32 v12, 0' % L_FL)
    e.I('ds_write_b32 v11, v12', tag='init')
    if cfg.prewarm:
        code_touch(e, 'B')
    e.I('s_cmp_ge_u32 s%d, 2' % sW)
    mk_srd_sel(e, SW, P_WU, P_WG, 512 * 2752)
    mk_srd(e, SWS, P_WS, WS_SIZE)
    mk_srd(e, SWD, P_WD, 1376 * 1024)
    if cfg.tlb:
        sP = sMB
        e.I('s_lshr_b32 s%d, s2, 3\ns_and_b32 s%d, s%d, 3\ns_lshl_b32 s%d, s%d, 2\ns_add_u32 s%d, s%d, s%d' % (T0, T0, T0, T0, T0, T0, T0, sW))
        e.I('s_min_u32 s%d, s%d, 5\ns_lshl_b32 s%d, s%d, 21\ns_mov_b64 s[%d:%d], s[%d:%d]' % (T1, T0, T1, T1, sP, sP + 1, P_WS, P_WS + 1))
        for k, (p, off) in enumerate(((P_WG, 0), (P_WU, 0), (P_WD, 0), (P_CRE, 0), (P_CIM, 0), (P_OUT, 0), (P_OUT, 1 << 21))):
            e.I('s_cmp_eq_u32 s%d, %d\ns_cselect_b64 s[%d:%d], s[%d:%d], s[%d:%d]\ns_cselect_b32 s%d, %d, s%d' %
                (T0, 6 + k, sP, sP + 1, p, p + 1, sP, sP + 1, T1, off, T1))
        e.I('s_load_dword s3, s[%d:%d], s%d' % (sP, sP + 1, T1))
    w_lane_offsets(e, cfg, WV, 11, 12)
    frag16_addr(e, XA, 11, 12)
    for s in range(2):
        e.I('v_add_u32 v%d, s%d, v%d' % (XA + s, sMX, XA + s))
        e.I('v_add_u32 v%d, %d, v%d' % (XA + 2 + s, WIN, XA + s))
        if cfg.lag:
            e.I('v_add_u32 v%d, %d, v%d' % (XA + 4 + s, 2 * WIN, XA + s))
    w_tr_addr(e, WA, 11, 12)
    e.I('v_lshlrev_b32 v1, 4, v0')
    tch = Touch(e, cfg, 'B')
    tch.setup()
    tch.at(-1)

    sDC, sDB, sDE, sAC, sAB, sAE = 86, 87, 88, 89, 90, 91
    sD0, sF0, sD2, sF2 = T2, T3, T4, T5
    st(e, '_pro')
    sP0 = 92
    if isinstance(cfg.w0pos, tuple):
        tab = sum(p << (4 * r) for r, p in enumerate(cfg.w0pos))
        e.I('s_and_b32 s%d, s%d, 7\ns_lshl_b32 s%d, s%d, 2\ns_lshr_b32 s%d, 0x%x, s%d\ns_and_b32 s%d, s%d, 15' %
            (T0, sRB, T0, T0, sP0, tab, T0, sP0, sP0))

    def w0_hook(p):
        if cfg.w0pos == p:
            run(dma_W(e, WV, SW, 0))
        elif isinstance(cfg.w0pos, tuple) and p in cfg.w0pos:
            e.I('s_cmp_eq_u32 s%d, %d\ns_cbranch_scc1 L_w0_%d' % (sP0, p, p))
            e.label('L_w0_%d_out' % p)
            with e.cold_block():
                e.label('L_w0_%d' % p)
                run(dma_W(e, WV, SW, 0))
                e.I('s_branch L_w0_%d_out' % p)
            e.m0 = None
    run(s1[cfg.s1a:])
    st(e, '_dma1')
    w0_hook(1)
    e.wait(vm=('st', 0))
    st(e, '_sa0')
    e.I('s_barrier')
    st(e, 'b0')
    for i in range(8):
        if i == 1:
            e.I('s_mov_b32 s%d, 0x%x' % (T0, EPOCH_OFF))
            e.I('buffer_load_dword v%d, off, %s, s%d sc1' % (EP, srd(SWS), T0), tag='ep')
        if i < 6:
            run(dma_S(i + 2))
            w0_hook(i + 2)
        elif cfg.w0pos is None:
            run(dma_W(e, WV, SW, i - 6))
        elif i == 6 or 'W2' not in cfg.prog:
            run(dma_W(e, WV, SW, i - 5))
        for s in range(4):
            slot = s_slot(i)
            e.I('ds_read_b128 %s, v%d offset:%d' % (vr(128 + 4 * (4 * i + s), 4), XA + 2 * (slot >> 1) + (s >> 1), (slot & 1) * SLOT + (s & 1) * 2048), tag='x')
        if i == 4:
            e.wait(vm='ep')
            e.I('v_readfirstlane_b32 s%d, v%d' % (sNONCE, EP))
            e.I('s_add_u32 s%d, s%d, 0x%x\ns_or_b32 s%d, s%d, 1' % (sNONCE, sNONCE, PHI, sNONCE, sNONCE))
            e.I('s_mov_b32 s%d, 0x%x\ns_mov_b32 s%d, 0x%x' % (sNL2E, NLOG2E, sNL2E + 1, NLOG2E))
        if i == 2:
            step_start(e, cfg, sAC, sAB, sAE, 11)
        if i == 3:
            for k in range(3):
                e.I('s_lshl_b32 s%d, s%d, 4' % (sDC + k, sAC + k))
            for n in range(1, NPRE):
                wd_next(e, n, sDC, sDB, sDE)
        if i == 5:
            act_offsets(e, 0, sD0, sF0)
        if i == 6:
            e.I('s_add_u32 s%d, s%d, 4096\ns_add_u32 s%d, s%d, %d' % (sD2, sD0, sF2, sF0, 4 * FS))
            light_scc(e)
            e.I('s_cselect_b32 s%d, 0x%x, s%d\ns_cselect_b32 s%d, 0x%x, s%d' % (sD2, OOB, sD2, sF2, OOB, sF2))
            e.I('v_mov_b32 v7, %d\nv_mov_b32 v6, 1' % L_FL)
        if i < 7:
            e.wait(vm=('st', i + 1), lg='all')
            st(e, '_sa%d' % (i + 1))
            e.I('s_barrier')
            st(e, '_sd%d' % (i + 1))
            if i == 0:
                st(e, 'b1')
    NT = cfg.NT
    ops = []
    for j in range(8 - NT):
        for s in range(2):
            for g in range(3):
                for mf in range(4):
                    ops.append((j, s, g, mf))
    tail0 = len(ops)
    for g in range(3):
        for j in range(8 - NT, 8):
            for s in range(2):
                for mf in range(4):
                    ops.append((j, s, g, mf))
    NB, LA = 6, cfg.LA
    first = {j: min(q for q in range(len(ops)) if ops[q][0] == j) for j in range(8)}
    last = {j: max(q for q in range(len(ops)) if ops[q][0] == j) for j in range(8)}

    def rd(q, half):
        if q >= len(ops):
            return
        j, s, g, mf = ops[q]
        if q == first[j] and j <= cfg.JL and half == 0:
            e.wait(vm=('st', 8 + j), lg='all' if j in cfg.drain else 'x')
            st(e, '_a%d' % j)
            e.I('s_barrier')
            st(e, '_d%d' % j)
            if j in (0, 4, cfg.JL):
                st(e, 'b%d' % (8 + j))
            if j == 0 and cfg.prioB:
                e.I('s_setprio %d' % cfg.prioB)
        w_frag_read(e, 8 + 4 * (q % NB), WA, j, s, g, mf >> 1, mf & 1, half, ('wf', q))
        if q == last[7] and half == 1:
            cnt_add(e, 7, 6, C_CONS + 28)

    def mm(q, a):
        j, s, g, mf = ops[q]
        if a == 0 and q % 2 == 0:
            e.wait(lg=('wf', q + 1))
        mfma16(e, 32 + 32 * g + 16 * (mf >> 1) + 8 * a + 4 * (mf & 1), 8 + 4 * (q % NB), 128 + 16 * j + 8 * s + 4 * a, j == 0 and s == 0)
        rd(q + LA, a)

    def act_store(k, ms=(0, 1)):
        for m in ms:
            e.I('buffer_store_dwordx4 %s, v1, %s, s%d offen offset:%d sc1' %
                (vr(136 + 8 * k + 4 * m, 4), srd(SWS), sD2 if k == 2 else sD0, 1024 * m + (2048 if k == 1 else 0)), tag=('as', k))

    def with_stores(its, k):
        if not cfg.asplit:
            return its + [lambda: act_store(k)]
        h = len(its) // 2
        return its[:h] + [lambda: act_store(k, (0,))] + its[h:] + [lambda: act_store(k, (1,))]

    def act_flag(k):
        e.wait(vm=('as', k))
        flag_store(e, EP, sF2 if k == 2 else sF0, 2 * FS if k == 1 else 0)

    for q in range(LA):
        rd(q, 0)
        rd(q, 1)
    per = 8 * NT
    for q in range(tail0 + per):
        mm(q, 0)
        mm(q, 1)
    if cfg.prioT:
        e.I('s_setprio %d' % cfg.prioT)
    if NT:
        for g in (1, 2):
            main = [lambda q=q, a=a: mm(q, a) for q in range(tail0 + g * per, tail0 + (g + 1) * per) for a in range(2)]
            fill = with_stores(act_items_scalar(e, cfg, 32 * g, 32 * g + 16, 128, 136 + 8 * (g - 1)), g - 1)
            run(main[:3] + weave(main[3:], fill))
        st(e, 'f1end')
        run(with_stores(act_items(e, cfg, 96, 112, 128, 152), 2))
    else:
        st(e, 'f1end')
        for g in range(3):
            run(with_stores(act_items(e, cfg, 32 + 32 * g, 48 + 32 * g, 128, 136 + 8 * g), g))
    if cfg.prioB or cfg.prioT:
        e.I('s_setprio 0')
    st(e, 'actst')
    DA, AV, PW, WDV, EP = 2, 14, 16, 18, 23
    e.I('v_mov_b32 v%d, s%d' % (EP, sNONCE))
    e.I(wd_lane_offsets(e, WDV, 20, 21))
    e.I('v_mov_b32 v22, %d' % L_FL)
    cnt_spin(e, 'L_spinB', 22, 24, C_CONS + 28)
    st(e, 'ldsfree')

    def dma_D(n):
        sl, pos = RING[n]
        if n in PREV:
            e.wait(lg=('wr', PREV[n]))
        set_m0(e, sMW, sl * SLOT + pos * 2048)
        if n:
            wd_next(e, n, sDC, sDB, sDE)
        for q in range(2):
            e.I('buffer_load_dwordx4 v%d, %s, s%d offen offset:%d lds' % (WDV + q, srd(SWD), sDC, 1024 * q), tag=('wd', n))

    def wd_reg(n2):
        return 128 + 16 * n2 if n2 < 5 else 32 + 16 * (n2 - 5) if n2 < 7 else 128 + 16 * (n2 - 7)

    def wd_read(n, dqs=range(4)):
        sl, pos = RING[n]
        e.wait(vm=('wd', n))
        for dq in dqs:
            e.I('ds_read_b64_tr_b16 %s, v%d offset:%d' % (vr(wd_reg(n >> 1) + 4 * dq + 2 * (n & 1), 2), DA + 4 * (sl >> 1) + dq,
                                                         (sl & 1) * SLOT + pos * 2048), tag=('wr', n))

    def setup2():
        e.I('v_lshrrev_b32 v20, 2, v0\nv_lshlrev_b32 v20, 7, v20\nv_bfe_u32 v21, v0, 3, 2\nv_lshl_add_u32 v20, v21, 5, v20')
        e.I('v_and_b32 v21, 3, v0\nv_lshl_add_u32 v20, v21, 3, v20\nv_add_u32 v%d, s%d, v20' % (DA, sMW))
        for dq in range(1, 4):
            e.I('v_xor_b32 v%d, %d, v%d' % (DA + dq, 32 * dq, DA))
        for k in (1, 2):
            for dq in range(4):
                e.I('v_add_u32 v%d, %d, v%d' % (DA + 4 * k + dq, k * WIN, DA + dq))
        e.I('s_mul_i32 s%d, s%d, %d' % (T0, sRT, 2 * 88064))
        e.I('v_add_u32 v%d, s%d, v1\nv_add_u32 v%d, 88064, v%d' % (AV, T0, AV + 1, AV))
        e.I('s_mul_i32 s%d, s%d, 44\ns_mul_i32 s%d, s%d, 11\ns_add_u32 s%d, s%d, s%d\ns_mul_i32 s%d, s%d, %d\ns_add_u32 s%d, s%d, 0x%x' %
            (T0, sRT, T1, sW, T0, T0, T1, T0, T0, 2 * FS, T0, T0, AF_OFF))
        e.I('v_mul_u32_u24 v20, %d, v0' % FS)
        e.I('s_mov_b32 s%d, 0x3fffff\ns_cmp_eq_u32 s%d, 3\ns_cselect_b32 s%d, 0xfffff, s%d\ns_mov_b32 s%d, 0' % (sMA, sW, sMA, sMA, sMA + 1))

    for n in range(NPRE, 11):
        for k in range(3):
            if cfg.flagpos[k] + NPRE == n:
                if k == 2:
                    setup2()
                act_flag(k)
                if k == 2:
                    st(e, 'flagged')
        if n < 10:
            dma_D(n)
    st(e, '_d9')
    cnt_spin(e, 'L_spinB2', 22, 24, C_DONEA)
    st(e, '_da')
    pulled = [0]

    def d_step(n):
        dma_D(n)
        while pulled[0] < min(14, 3 * (n - 9), n - 3):
            wd_read(pulled[0])
            pulled[0] += 1
        if n == 14:
            e.wait(lg=('wr', 9))
            set_m0(e, sMW, L_P2)
            e.I('s_mov_b64 exec, 1')
            e.I('buffer_load_dword off, %s, s%d lds' % (srd(SWD), SWD + 2), tag='init')
            e.I('s_mov_b64 exec, -1')
        if n == -cfg.posXB:
            bar_X()

    def bar_X():
        assert pulled[0] >= 12
        e.wait(vm='init', lg=('wr', 11))
        st(e, '_aX')
        e.I('s_barrier')

    for n in range(10, cfg.alook):
        d_step(n)
    st(e, 'wdiss')
    nd = cfg.alook + cfg.abet
    poll(e, 'L_pollA', 21, 20, T0, 's[%d:%d]' % (sMA, sMA + 1), lambda: [d_step(n) for n in range(cfg.alook, nd)])
    st(e, 'actrdy')
    if cfg.prioF2:
        e.I('s_setprio %d' % cfg.prioF2)

    TL = cfg.TL
    sSV = 92
    NM = 11 - TL

    order = [(n2, t4) for n2 in range(NM) for t4 in range(4)] + [(n2, t4) for t4 in range(4) for n2 in range(NM, 11)]

    def a_reg(n2, t4):
        return 208 + 4 * (order.index((n2, t4)) % 12)

    pend = []
    rq = []

    def flush(n=99):
        for t in pend[:n]:
            e.I(t)
        del pend[:n]

    def a_load(n2, t4):
        if t4 == 0:
            flush()
        so = sAC if n2 < NM else sSV + n2 - NM
        e.I('buffer_load_dwordx4 %s, v%d, %s, s%d offen offset:%d sc1' % (vr(a_reg(n2, t4), 4), AV + (t4 >> 1), srd(SWS), so, 1024 * (t4 & 1)),
            tag=('a', n2, t4))
        if n2 < 10 and t4 == (3 if n2 < NM else 0):
            dst = sAC if n2 + 1 < NM else sSV + n2 + 1 - NM
            pend.append('s_add_u32 s%d, s%d, 2048' % (dst, so))
            pend.append('s_cmp_eq_u32 s%d, s%d\ns_cselect_b32 s%d, s%d, s%d' % (dst, sAE, dst, sAB, dst))
            if n2 == 9:
                pend.append('s_cmp_eq_u32 s%d, 3\ns_cselect_b32 s%d, 0x%x, s%d' % (sW, dst, OOB, dst))

    lq = []
    for k, t in enumerate(order):
        lq.append(('a', k))
        if k & 1 and nd < 22:
            lq.append(('d', nd))
            nd += 1
    dn = [cfg.alook + cfg.abet - 1]
    nis = [0]

    def issue(k, busy):
        while lq:
            t = lq[0]
            tag = ('a',) + order[k]
            nv = min(cfg.NV, cfg.NV0[0] + max(0, k - cfg.NV0[1]))
            if nis[0] > k and (len(e.vm) - 1 - e.vm.index(tag) >= nv - 1 if tag in e.vm else len(e.vm) >= nv):
                return
            if t[0] == 'a':
                if t[1] >= busy + 12:
                    return
                a_load(*order[t[1]])
                nis[0] = t[1] + 1
            else:
                d_step(t[1])
                dn[0] = t[1]
            lq.pop(0)

    wq = []
    zq = [list(g) for g in cfg.zg]
    since = [0]

    def w_pop():
        t = wq.pop(0)
        if t is not None:
            t4, i = t
            assert not rq
            hi = 32768 if t4 == 3 else 0
            set_m0(e, sMW, hi)
            e.I('ds_write_addtid_b32 v%d offset:%d' % (acc2(t4, 0) + i, t4 * SLOT - hi + 256 * i), tag=('pw', t4))
            if i == 15 and t4 == zq[0][-1]:
                since[0] = cfg.zlag + 1
        if since[0]:
            since[0] -= 1
            if since[0] == 0:
                z_bar()

    def z_bar():
        e.wait(lg=('pw', zq.pop(0)[-1]))
        e.I('s_barrier')

    def mm2(k):
        n2, t4 = order[k]
        if k == 0:
            issue(k, k)
        while rq and rq[0][0] >> 1 <= (order[k + 2][0] if k + 2 < 4 * NM + TL else 99):
            t = rq.pop(0)
            wd_read(t[0], [t[1]])
        e.wait(vm=('a', n2, t4), lg=('wr', 2 * n2 + 1))
        for dq in range(4):
            mfma16(e, acc2(t4, dq), a_reg(n2, t4), wd_reg(n2) + 4 * dq, n2 == 0)
            if dq == 0 and lq:
                issue(k + 1, k)
            elif pend and dq < 3:
                flush(1)
            elif rq and dq < 3:
                t = rq.pop(0)
                wd_read(t[0], [t[1]])
            elif wq:
                w_pop()
        if n2 == 10:
            if t4 == 0:
                wq.extend([None, None])
            wq.extend((t4, i) for i in range(16))

    for n2 in range(NM):
        st(e, '_n%d' % n2)
        while pulled[0] <= min(2 * n2 + 5, 13):
            assert dn[0] >= pulled[0]
            wd_read(pulled[0])
            pulled[0] += 1
        if n2 == cfg.posXB:
            bar_X()
        for t4 in range(4):
            mm2(4 * n2 + t4)
        if cfg.pull0 <= n2 < cfg.pull0 + 4:
            m2 = n2 - cfg.pull0 + 7
            assert dn[0] >= 2 * m2 + 1
            rq.extend((2 * m2 + hf, dq) for hf in range(2) for dq in range(4))
    assert cfg.pull0 + 4 <= NM
    for k in range(4 * NM, 44):
        mm2(k)
    if cfg.prioF2:
        e.I('s_setprio 0')
    st(e, 'f2end')
    while wq:
        w_pop()
    while zq:
        z_bar()
    st(e, 'end')
    st.flush(e)
    e.I('s_endpgm')


def gen_A(e, cfg, st):
    LR, LI, L16, L128, L256, L16S, KAP, WV = 48, 49, 50, 52, 54, 56, 58, 60
    PP = 32
    SIDX = 3
    RE, IM = 64, 80
    XA, BA = 192, 204
    CV, CA, CA4, WDV = 96, 100, 104, 108
    EV0, EV1, EOOB, ERD, ECNT, EEXP, ONE, FLA, XW, XR, P16 = range(110, 121)
    SEL = 216
    RING0 = 144
    sHD, sHF, sES, sEL, sROT, sDTX = 86, 87, 90, 91, 92, 80
    sDC, sDB, sDE = 93, 94, 95
    e.I('v_lshlrev_b32 v1, 4, v0')
    e.I('v_and_b32 v21, 0x13, v0\nv_bfe_u32 v22, v0, 2, 1\nv_lshl_add_u32 v21, v22, 3, v21\nv_bfe_u32 v22, v0, 3, 1\nv_lshl_add_u32 v21, v22, 2, v21')
    e.I('s_lshl_b32 s%d, s%d, 6' % (T0, sCB))
    e.I('v_lshl_add_u32 v21, v21, 1, s%d' % T0)
    e.I('s_lshl_b32 s%d, s%d, 2\ns_add_u32 s%d, s%d, s%d\ns_lshl_b32 s%d, s%d, 4\ns_add_u32 s%d, s%d, s%d' %
        (T3, sRB, T3, T3, sW, T3, T3, T3, T3, sCB))
    e.I('s_lshl_b32 s%d, s%d, 11' % (T2, T3))
    frag_addr(e, BA, 4, 5)
    e.wait_smem()
    st(e, '_karg')
    mk_srd(e, SX, P_X, 2048 * 1024)
    mk_srd(e, SWS, P_WS, WS_SIZE)
    e.I('s_mov_b32 s%d, 0x%x\ns_lshl_b32 s%d, s%d, 6' % (T4, EPOCH_OFF, T0, sCB))
    e.I('s_load_dword s3, s[%d:%d], s%d' % (P_WS, P_WS + 1, T4))
    for p in (P_LRE, P_LIM, P_LDT):
        e.I('s_load_dword s3, s[%d:%d], s%d' % (p, p + 1, T0))
    e.I('s_lshr_b32 s%d, s2, 3\ns_lshl_b32 s%d, s%d, 2\ns_add_u32 s%d, s%d, s%d\ns_and_b32 s%d, s%d, 15\ns_lshl_b32 s%d, s%d, 6' %
        (T0, T0, T0, T0, T0, sW, T0, T0, T0, T0))
    for p in (P_GW, P_DSK):
        e.I('s_load_dword s3, s[%d:%d], s%d' % (p, p + 1, T0))
    if cfg.prewarm:
        code_touch(e, 'A')

    def small0():
        e.I('buffer_load_dword v19, off, %s, s%d sc1' % (srd(SWS), T4), tag='ep')
        e.I('global_load_ushort v16, v21, s[%d:%d]' % (P_LRE, P_LRE + 1), tag='par')
        e.I('global_load_ushort v17, v21, s[%d:%d]' % (P_LIM, P_LIM + 1), tag='par')
        e.I('global_load_ushort v18, v21, s[%d:%d]' % (P_LDT, P_LDT + 1), tag='par')

    small1 = [lambda: e.I('global_load_dwordx4 v[44:47], v1, s[%d:%d]' % (P_GW, P_GW + 1), tag='g'),
              lambda: e.I('buffer_load_dwordx4 v[36:39], v1, %s, s%d offen' % (srd(SX), T2), tag='g'),
              lambda: e.I('buffer_load_dwordx4 v[40:43], v1, %s, s%d offen offset:1024' % (srd(SX), T2), tag='g')]
    e.I('s_lshl_b32 s%d, s%d, 3\ns_add_u32 s%d, s%d, 0x%x' % (T6, T3, T6, T6, G_OFF))

    e.I('s_lshl_b32 s%d, s%d, 12' % (T0, sW))
    for s in range(4):
        e.I('v_add_u32 v%d, s%d, v%d' % (XA + s, T0, BA + s))
        e.I('v_add_u32 v%d, %d, v%d' % (XA + 4 + s, WIN, XA + s))
        e.I('v_add_u32 v%d, %d, v%d' % (BA + 4 + s, WIN, BA + s))
        if cfg.lag:
            e.I('v_add_u32 v%d, %d, v%d\nv_add_u32 v%d, %d, v%d' % (XA + 8 + s, 2 * WIN, XA + s, BA + 8 + s, 2 * WIN, BA + s))
    w_lane_offsets(e, cfg, WV, 24, 25)
    e.I('v_lshrrev_b32 v24, 5, v0\ns_lshl_b32 s%d, s%d, 1' % (T0, sW))
    e.I('v_add_u32 v%d, s%d, v24' % (SIDX, T0))
    rot2_calc(e, cfg, sROT, 0)
    if cfg.rotS:
        e.I('s_and_b32 s%d, s%d, %d\ns_lshl_b32 s%d, s%d, %d\ns_xor_b32 s%d, s%d, s%d' % (T0, sCT, cfg.rotS[0], T0, T0, cfg.rotS[1], sROT, sROT, T0))
    e.I('s_and_b32 s%d, s%d, 1\ns_lshr_b32 s%d, s%d, 1' % (sDTX, sROT, sROT, sROT))
    e.I('s_bitcmp1_b32 s%d, 0' % sROT)
    mk_srd_sel(e, SC1, P_CIM, P_CRE, 512 * 1024)
    mk_srd_sel(e, SC2, P_CRE, P_CIM, 512 * 1024)
    mk_srd(e, SWD, P_WD, 1376 * 1024)
    step_start(e, cfg, sDC, sDB, sDE, 15)
    e.I('s_cmp_ge_u32 s%d, 2' % sW)
    mk_srd_sel(e, SWA, P_WU, P_WG, 512 * 2752)
    e.I('s_lshl_b32 s%d, s%d, 2\ns_add_u32 s%d, s%d, s%d' % (T0, sRB, T0, T0, sW))
    HW_ = 16384 + cfg.hpad[0]
    HT_ = 4 * HW_ + cfg.hpad[1]
    assert H_OFF + 64 * HT_ <= E_OFF
    e.I('s_mul_i32 s%d, s%d, %d\ns_lshr_b32 s%d, s%d, 1\ns_lshl_b32 s%d, s%d, 13\ns_add_u32 s%d, s%d, s%d' %
        (sHD, T0, HT_, T1, sCB, T1, T1, sHD, sHD, T1))
    e.I('s_lshr_b32 s%d, s%d, 2\ns_mul_i32 s%d, s%d, %d\ns_add_u32 s%d, s%d, s%d' % (T1, sCB, T1, T1, cfg.hpad[0], sHD, sHD, T1))
    e.I('s_and_b32 s%d, s%d, 1\ns_lshl_b32 s%d, s%d, 11\ns_add_u32 s%d, s%d, s%d\ns_add_u32 s%d, s%d, 0x%x' %
        (T1, sCB, T1, T1, sHD, sHD, T1, sHD, sHD, H_OFF))
    e.I('s_lshr_b32 s%d, s%d, 1\ns_lshl_b32 s%d, s%d, 4\ns_add_u32 s%d, s%d, s%d\ns_lshl_b32 s%d, s%d, 1' %
        (T1, T0, T1, T1, T1, T1, sCB, T1, T1))
    e.I('s_and_b32 s%d, s%d, 1\ns_add_u32 s%d, s%d, s%d\ns_mul_i32 s%d, s%d, %d\ns_add_u32 s%d, s%d, 0x%x' %
        (T0, T0, T1, T1, T0, T1, T1, FS, sHF, T1, HF_OFF))
    e.I('s_lshl_b32 s%d, s%d, 13\ns_add_u32 s%d, s%d, 0x%x' % (sEL, sCB, sEL, sEL, E_OFF))
    e.I('s_lshl_b32 s%d, s%d, 9\ns_add_u32 s%d, s%d, s%d\ns_cmp_eq_u32 s%d, 0\ns_cselect_b32 s%d, s%d, 0x%x' %
        (sES, sRB, sES, sES, sEL, sW, sES, sES, OOB))
    e.I('s_sub_u32 s%d, s%d, 1024' % (sEL, sEL))

    tch = Touch(e, cfg, 'A')
    tch.setup()
    tch.at(-1)

    e.I('s_lshl_b32 s%d, s%d, 9\ns_add_u32 s%d, s%d, %d' % (T0, sW, T0, T0, L_E))
    e.I('v_lshl_add_u32 v%d, v0, 3, s%d' % (XW, T0))
    e.I('v_and_b32 v6, 31, v0\nv_lshlrev_b32 v%d, 4, v6\nv_lshlrev_b32 v6, 3, v6\nv_add_u32 v%d, %d, v6' % (P16, XR, L_E))
    e.I('v_and_b32 v4, 3, v0\nv_bfe_u32 v5, v0, 3, 2\nv_lshl_add_u32 v4, v5, 2, v4')
    e.I('v_bfe_u32 v5, v0, 2, 1\nv_lshrrev_b32 v6, 5, v0\nv_xor_b32 v5, v5, v6\nv_lshl_add_u32 v4, v5, 4, v4')
    e.I('v_and_b32 v5, 1, v0\nv_lshlrev_b32 v5, 4, v5\nv_mov_b32 v6, 0x3f80\nv_lshlrev_b32 v5, v5, v6\nv_lshrrev_b32 v4, 1, v4')
    for n in range(8):
        e.I('v_cmp_eq_u32 vcc, %d, v4\nv_cndmask_b32 v%d, 0, v5, vcc' % (n, SEL + n))
    e.I('v_and_b32 v6, 7, v0\nv_lshrrev_b32 v7, 4, v0\nv_xor_b32 v6, v6, v7\nv_lshlrev_b32 v6, 4, v6')
    e.I('v_lshrrev_b32 v7, 3, v0\nv_lshl_add_u32 v6, v7, 10, v6')
    e.I('s_lshl_b32 s%d, s%d, 16\ns_lshl_b32 s%d, s%d, 8\ns_add_u32 s%d, s%d, s%d' % (T0, sCT, T1, sW, T0, T0, T1))
    e.I('v_add_u32 v%d, s%d, v6\nv_xor_b32 v7, 64, v%d' % (CV, T0, CV))
    e.I('v_add_u32 v%d, 7168, v7\nv_add_u32 v%d, 14336, v%d\nv_add_u32 v%d, 21504, v7' % (CV + 1, CV + 2, CV, CV + 3))
    frag16_addr(e, CA, 6, 7)
    for s in range(2):
        e.I('v_add_u32 v%d, s%d, v%d' % (CA + s, sMW, CA + s))
        e.I('v_add_u32 v%d, %d, v%d' % (CA4 + s, 4 * SLOT, CA + s))
    HS = CA + 2
    e.I('v_and_b32 v6, 15, v0\nv_lshlrev_b32 v6, 4, v6\nv_bfe_u32 v7, v0, 4, 1\nv_lshl_add_u32 v6, v7, 10, v6')
    e.I('v_lshrrev_b32 v7, 5, v0\nv_lshl_add_u32 v%d, v7, 8, v6' % HS)
    e.I('s_lshr_b32 s88, s%d, 1\ns_lshl_b32 s88, s88, 7\ns_lshl_b32 s89, s%d, 15\ns_add_u32 s88, s88, s89\ns_xor_b32 s89, s88, 128' % (sROT, sDTX))
    e.I(wd_lane_offsets(e, WDV, 6, 7))
    e.I('s_lshl_b32 s%d, s%d, 2\ns_sub_u32 s%d, s%d, s%d\ns_sub_u32 s%d, s%d, 1\ns_lshl_b32 s%d, s%d, 11' % (T0, sW, T0, sRB, T0, T0, T0, T5, sW))
    e.I('v_lshrrev_b32 v6, 5, v0\nv_sub_u32 v7, s%d, v6' % T0)
    e.I('v_cmp_le_i32 vcc, 0, v7\nv_cmp_le_i32 s[%d:%d], 2, v7' % (sMB, sMB + 1))
    e.I('v_lshl_add_u32 v7, v7, 9, v%d\nv_add_u32 v7, 1024, v7\nv_subrev_u32 v5, 2048, v7\nv_mov_b32 v%d, 0x%x' % (P16, EOOB, OOB))
    e.I('v_cndmask_b32 v%d, v%d, v7, vcc\nv_cndmask_b32 v%d, v%d, v5, s[%d:%d]' % (EV0, EOOB, EV1, EOOB, sMB, sMB + 1))
    e.I('v_lshl_add_u32 v7, v6, 12, v%d\nv_add_u32 v%d, %d, v7' % (P16, ERD, L_EG))
    e.I('v_lshlrev_b32 v6, 3, v6\nv_sub_u32 v%d, s%d, v6\nv_med3_i32 v%d, v%d, 0, 8' % (ECNT, sRB, EEXP, ECNT))
    e.I('v_mov_b32 v%d, 1\nv_mov_b32 v%d, %d' % (ONE, FLA, L_FL))

    pro = []
    add = lambda t: [pro.append(lambda x=x: e.I(x)) for x in t.split('\n')]

    def csq(d, a):
        add('v_mul_f32 v30, v%d, v%d\nv_mul_f32 v31, v%d, v%d\nv_fma_f32 v%d, -v%d, v%d, v30\nv_add_f32 v%d, v31, v31' %
            (a, a, a, a + 1, d, a + 1, a + 1, d + 1))

    def cmul(d, a, b):
        add('v_mul_f32 v30, v%d, v%d\nv_mul_f32 v31, v%d, v%d\nv_fma_f32 v30, -v%d, v%d, v30\nv_fma_f32 v%d, v%d, v%d, v31\nv_mov_b32 v%d, v30' %
            (a, b, a, b + 1, a + 1, b + 1, d + 1, a + 1, b, d))

    pro.append(lambda: e.wait(vm=['ep', 'par']))
    add('v_readfirstlane_b32 s%d, v19' % sNONCE)
    add('v_lshlrev_b32 v16, 16, v16\nv_lshlrev_b32 v17, 16, v17\nv_lshlrev_b32 v18, 16, v18')
    add('s_add_u32 s%d, s%d, 0x%x\ns_or_b32 s%d, s%d, 1' % (sNONCE, sNONCE, PHI, sNONCE, sNONCE))
    add('v_mul_f32 v18, 0x%x, v18\nv_exp_f32 v18, v18\nv_cvt_pk_bf16_f32 v18, v18, v18\nv_lshlrev_b32 v18, 16, v18' % LOG2E)
    add('v_mul_f32 v21, v18, v16\nv_mul_f32 v22, v18, v17')
    add('v_mul_f32 v21, 0x%x, v21\nv_exp_f32 v21, v21' % LOG2E)
    add('v_mul_f32 v22, 0.15915494, v22\nv_rndne_f32 v23, v22\nv_sub_f32 v22, v22, v23\nv_sin_f32 v23, v22\nv_cos_f32 v22, v22')
    add('v_mul_f32 v%d, v21, v23\nv_mul_f32 v%d, v21, v22' % (LI, LR))
    add('v_mul_f32 v21, v16, v16\nv_fmac_f32 v21, v17, v17\nv_rcp_f32 v21, v21\nv_add_f32 v22, -1.0, v%d\nv_add_f32 v21, v21, v21' % LR)
    add('v_mul_f32 v23, v22, v16\nv_fmac_f32 v23, v%d, v17\nv_mul_f32 v%d, v23, v21' % (LI, KAP))
    add('v_mul_f32 v23, v%d, v16\nv_fma_f32 v23, -v22, v17, v23\nv_mul_f32 v%d, v23, v21' % (LI, KAP + 1))
    csq(22, LR); csq(22, 22); csq(22, 22); csq(L16, 22)
    csq(22, L16); csq(24, 22); csq(L128, 24); csq(L256, L128); csq(L256, L256); csq(L256, L256)
    for bit, src, dst in ((1, L16, L16S), (2, 22, 22), (4, 24, 24)):
        add('v_and_b32 v26, %d, v%d\nv_cmp_ne_u32 vcc, 0, v26' % (bit, SIDX))
        add('v_cndmask_b32 v%d, 1.0, v%d, vcc\nv_cndmask_b32 v%d, 0, v%d, vcc' % (dst, src, dst + 1, src + 1))
    cmul(L16S, L16S, 22); cmul(L16S, L16S, 24)
    add('v_mul_lo_u32 v%d, v%d, s%d\nv_mov_b32 v2, s%d' % (EEXP, EEXP, sNONCE, sNONCE))

    par, pro = pro, []
    pro.append(lambda: e.wait(vm='g'))
    for k in range(4):
        add('v_lshlrev_b32 v24, 16, v%d\nv_and_b32 v25, 0xffff0000, v%d' % (44 + k, 44 + k))
        for row in range(2):
            x = 36 + 4 * row + k
            add('v_lshlrev_b32 v26, 16, v%d\nv_and_b32 v27, 0xffff0000, v%d' % (x, x))
            add('v_mul_f32 v26, v26, v24\nv_mul_f32 v27, v27, v25\nv_cvt_pk_bf16_f32 v26, v26, v27')
            add('v_lshlrev_b32 v27, 16, v26\nv_and_b32 v26, 0xffff0000, v26')
            if k == 0:
                add('v_add_f32 v%d, v26, v27' % (28 + row))
            else:
                add('v_add_f32 v26, v26, v27\nv_add_f32 v%d, v%d, v26' % (28 + row, 28 + row))
    for mod in ('row_shr:1 row_mask:0xf', 'row_shr:2 row_mask:0xf', 'row_shr:4 row_mask:0xf', 'row_shr:8 row_mask:0xf',
                'row_bcast:15 row_mask:0xa', 'row_bcast:31 row_mask:0xc'):
        for row in range(2):
            add('v_add_f32_dpp v%d, v%d, v%d %s bank_mask:0xf' % (28 + row, 28 + row, 28 + row, mod))
    add('v_cvt_pk_bf16_f32 v26, v28, v29\nv_lshlrev_b32 v28, 16, v26\nv_and_b32 v29, 0xffff0000, v26')
    add('v_mul_f32 v28, 0x%x, v28\nv_mul_f32 v29, 0x%x, v29\nv_exp_f32 v28, v28\nv_exp_f32 v29, v29' % (NLOG2E, NLOG2E))
    add('v_add_f32 v28, 1.0, v28\nv_add_f32 v29, 1.0, v29\nv_rcp_f32 v28, v28\nv_rcp_f32 v29, v29')
    add('v_cvt_pk_bf16_f32 v26, v28, v29\nv_lshlrev_b32 v28, 16, v26\nv_and_b32 v29, 0xffff0000, v26')
    gate, pro = pro, par

    gdone = []

    def g_store():
        gdone.append(1)
        e.I('s_mov_b32 exec_lo, 0\ns_mov_b32 exec_hi, 0x80000000')
        e.I('buffer_store_dwordx2 v[28:29], off, %s, s%d sc1' % (srd(SWS), T6), tag='gs')
        e.I('s_mov_b64 exec, -1')

    nbar = [0]

    def s_bar(i):
        assert nbar[0] == i
        nbar[0] += 1
        e.I('s_barrier')
        if i in (0, 7):
            st(e, 'b%d' % i)

    def s_read(n):
        i, s = n >> 2, n & 3
        slot = s_slot(i)
        if s == 0 and not cfg.lag:
            s_bar(i)
        assert nbar[0] > i
        off = (slot & 1) * SLOT
        b = RING0 + 12 * (n & 3)
        e.I('ds_read_b128 %s, v%d offset:%d' % (vr(b + 8, 4), XA + 4 * (slot >> 1) + s, off), tag=('s', n, 0))
        for part in range(2):
            e.I('ds_read_b128 %s, v%d offset:%d' % (vr(b + 4 * part, 4), BA + 4 * (slot >> 1) + s,
                                                    off + 16384 + part * 4096), tag=('s', n, part))

    def s_mm(n, part):
        e.wait(lg=('s', n, part))
        b = RING0 + 12 * (n & 3)
        mfma(e, RE + 16 * part, b + 8, b + 4 * part, n == 0)

    D = 2
    seq = []
    for n in range(32):
        seq.append(lambda n=n: (s_mm(n, 0), s_read(n + D) if n + D < 32 else None))
        seq.append(lambda n=n: s_mm(n, 1))
    st(e, '_pro')
    if cfg.lag:
        L = cfg.lag
        npar = len(pro) // max(L - 1, 1) + 1
        for i in range(L):
            s_bar(i)
            tch.at(10 + i)
            if i == 0:
                small0()
            if i >= 1:
                run(pro[(i - 1) * npar:i * npar])
        s_bar(L)
        for n in range(D):
            s_read(n)
        r2 = 2 * cfg.lagr
        for k, it in enumerate(seq):
            it()
            i = L + (k + 1) // r2
            if (k + 1) % r2 == 0 and i <= 7:
                assert (k + 1) // 2 >= 4 * (i - 3)
                s_bar(i)
    else:
        for n in range(D):
            s_read(n)
        p0 = 2 * cfg.smallpos
        run(seq[:p0])
        small0()
        run(seq[p0:p0 + 10])
        run(weave(seq[p0 + 10:56], pro) + seq[56:])
    assert nbar[0] == 8
    st(e, 's1end')
    if cfg.prioA:
        e.I('s_setprio %d' % cfg.prioA)

    def items(txt):
        return [lambda t=t: e.I(t) for t in txt.split('\n')]

    def cfma(d, l, a, c):
        return items('v_fma_f32 v%d, v%d, v%d, v%d\nv_fma_f32 v%d, v%d, v%d, v%d\nv_fma_f32 v%d, -v%d, v%d, v%d\nv_fmac_f32 v%d, v%d, v%d' %
                     (d, l, a, c, d + 1, l, a + 1, c + 1, d, l + 1, a + 1, d, d + 1, l + 1, a))

    prev = (RE, IM)
    for r in range(1, 16):
        cur = (20 + 2 * (r & 1), 21 + 2 * (r & 1))
        e.I('v_fma_f32 v%d, v%d, v%d, v%d' % (cur[0], LR, prev[0], RE + r))
        e.I('v_fma_f32 v%d, v%d, v%d, v%d' % (cur[1], LR, prev[1], IM + r))
        e.I('v_fma_f32 v%d, -v%d, v%d, v%d' % (cur[0], LI, prev[1], cur[0]))
        e.I('v_fmac_f32 v%d, v%d, v%d' % (cur[1], LI, prev[0]))
        prev = cur
    e.I('ds_write_b64 v%d, %s' % (XW, vr(prev[0], 2)), tag='ex')
    e.wait(lg='all')

    def c_reg(u, s2, dq):
        return 128 + 32 * u + 16 * s2 + 4 * dq

    CBUF = cfg.cbuf
    CPREV = {i: max(k for k in range(i) if CBUF[k] == CBUF[i]) for i in range(8) if CBUF[i] in CBUF[:i]}
    cdone = set()
    hdone = []

    def c_read(i):
        if i in cdone:
            return
        cdone.add(i)
        assert i < 4 or hdone
        e.wait(vm=('c', i))
        for s in range(4):
            a_, off = (CA4 + (s >> 1), 0) if CBUF[i] == 4 else (CA + (s >> 1), CBUF[i] * SLOT)
            e.I('ds_read_b128 %s, v%d offset:%d' % (vr(c_reg(i >> 1, s >> 1, 2 * (i & 1) + (s & 1)), 4), a_, off + (s & 1) * 2048), tag=('cr', i))

    def c_loads(i):
        u, dt = i >> 1, i & 1
        its = []
        for q in range(4):
            def f(q=q):
                if q == 0:
                    if i in CPREV:
                        c_read(CPREV[i])
                        e.wait(lg=('cr', CPREV[i]))
                    elif CBUF[i] != 4 and (6 + CBUF[i] > cfg.JL or 4 + CBUF[i] >= 8 - cfg.NT):
                        assert kcur[0] >= cfg.JL
                        cnt_spin(e, 'L_cb%d' % i, FLA, 34, C_CONS + 28)
                    e.I('s_xor_b32 s%d, s%d, %d' % (sTD, 88 + (u >> 1), dt * 32768))
                set_m0(e, sMW, CBUF[i] * SLOT)
                e.I('buffer_load_dwordx4 v%d, %s, s%d offen offset:%d lds' % (CV + q, srd(SC2 if u & 1 else SC1), sTD, 1024 * q), tag=('c', i))
                if q == 3:
                    st(e, '_c%d' % i)
                if q == 3 and i >= 2:
                    c_read(i - 2)
            its.append(f)
        return its

    def d_loads(n):
        sl, pos = RING[n]
        its = []
        for q in range(2):
            def f(q=q):
                set_m0(e, sMW, sl * SLOT + pos * 2048)
                if q == 0 and n:
                    wd_next(e, n, sDC, sDB, sDE)
                e.I('buffer_load_dwordx4 v%d, %s, s%d offen offset:%d lds' % (WDV + q, srd(SWD), sDC, 1024 * q), tag='wd')
            its.append(f)
        return its

    wl = {j: dma_W(e, WV, SWA, j) for j in range(2, 8)}
    planned = set()

    def e_loads():
        its = []
        for q in range(2):
            def f(q=q):
                set_m0(e, T5, L_EG)
                e.I('buffer_load_dwordx4 v%d, %s, s%d offen offset:%d sc1 lds' % (EV0 + q, srd(SWS), sEL, 1024 * q), tag='eg')
            its.append(f)
        return its

    def expand(toks, k):
        r = []
        for t in toks.split(','):
            if not t:
                continue
            n = int(t[1])
            planned.add(t)
            if t[0] == 'W':
                assert n < 4 or k >= n - 2 or (k == n - 3 and k in cfg.drain)
                r += wl[n][:3] if t[2:] == 'a' else wl[n][3:] if t[2:] == 'b' else wl[n]
            elif t[0] == 'C':
                assert CBUF[n] == 4 or k >= min(6 + CBUF[n], cfg.JL)
                assert k >= 2 or cfg.w0pos is None
                r += c_loads(n)
            elif t[0] == 'D':
                r += d_loads(n)
            elif t[0] == 'S':
                r.append(lambda n=n: (hq[n](), hsent.add(n)))
            elif t[0] == 'G':
                r += small1
            elif t[0] == 'E':
                r += e_loads()
            elif t[0] == 'T':
                r.append(lambda n=n: tch.at(n))
        return r

    def bar(k, extra=()):
        kk = 7 if k == cfg.JL else k
        assert kk < 2 or 'W%d' % kk in planned or 'W%db' % kk in planned or (kk == 2 and cfg.w0pos is not None)
        e.wait(vm=[('st', 8 + kk)] + list(extra))
        st(e, '_a%d' % k)
        e.I('s_barrier')
        st(e, '_d%d' % k)

    sc = []
    for r in range(16):
        sc += items('v_mul_f32 v4, v%d, v%d\nv_mul_f32 v5, v%d, v%d\nv_fma_f32 v%d, v%d, v%d, -v4\nv_fma_f32 v%d, v%d, v%d, v5' %
                    (KAP + 1, IM + r, KAP + 1, RE + r, RE + r, KAP, RE + r, IM + r, KAP, IM + r))
    early = sc
    run(early[:cfg.early])
    late = early[cfg.early:]
    bar(0)
    work = []
    for s in range(8):
        e.I('ds_read_b64 %s, v%d offset:%d' % (vr(4 + 2 * s, 2), XR, 256 * s), tag=('e', s))
    pf = []
    for s in range(1, 8):
        pf.append(lambda s=s: e.wait(lg=('e', s)))
        pf += cfma(4 + 2 * s, L16, 2 + 2 * s, 4 + 2 * s)
    segs = [sg.split('|') for sg in cfg.prog.split(';')]
    q0 = expand(segs[0][0], 0)
    run(weave(q0[:cfg.pren], pf))
    e.I('v_mov_b32 v20, s%d\nv_mov_b32 v21, s%d' % (sNONCE, sNONCE))
    e.I('s_mov_b32 exec_hi, 0')
    e.I('buffer_store_dwordx4 v[18:21], v%d, %s, s%d offen sc1' % (P16, srd(SWS), sES), tag='es')
    e.I('s_mov_b32 exec_hi, -1')
    st(e, 'epub')
    run(q0[cfg.pren:])
    gate.append(g_store)
    sel = items('v_mov_b32 v%d, 0\nv_mov_b32 v%d, 0' % (PP, PP + 1))
    for s in range(1, 8):
        sel.append(lambda s=s: e.I('v_cmp_eq_u32 vcc, %d, v%d\nv_cndmask_b32 v%d, v%d, v%d, vcc\nv_cndmask_b32 v%d, v%d, v%d, vcc' %
                                   (s, SIDX, PP, PP, 2 + 2 * s, PP + 1, PP + 1, 3 + 2 * s)))
    EG = 224

    def e_check():
        e.I('v_add3_u32 v4, v%d, v%d, v%d\nv_add3_u32 v5, v%d, v%d, v%d' % tuple(EG + 4 * k + 2 for k in range(6)))
        e.I('v_add3_u32 v4, v4, v%d, v%d\nv_add_u32 v4, v4, v5' % (EG + 26, EG + 30))
        e.I('v_cmp_ne_u32 vcc, v4, v%d' % EEXP)

    def e_verify():
        e.wait(lg='eg')
        e_check()
        e.I('s_cbranch_vccnz L_pollE')
        e.label('L_pollE_out')
        st(e, 'egot')
        with e.cold_block():
            e.label('L_pollE')
            e.I('s_mov_b32 s%d, 0' % sCNT)
            e.label('L_pollE_l')
            for k in range(8):
                e.I('v_subrev_u32 v4, %d, v%d\nv_cmp_le_i32 vcc, 2, v4\nv_lshl_add_u32 v4, v4, 9, v%d\nv_cndmask_b32 v4, v%d, v4, vcc' % (k - 1, ECNT, P16, EOOB))
                e.I('buffer_load_dwordx4 %s, v4, %s, s%d offen sc1' % (vr(EG + 4 * k, 4), srd(SWS), sEL))
            e.I('s_add_u32 s%d, s%d, 1' % (sCNT, sCNT))
            e.I('s_cmp_gt_u32 s%d, %d' % (sCNT, SPIN_MAX))
            e.wait(vm='all')
            e.I('s_cbranch_scc1 L_pollE_out')
            e_check()
            e.I('s_cbranch_vccnz L_pollE_l')
            e.I('s_branch L_pollE_out')

    def second_pass():
        p2 = []
        p2.append(lambda: [e.I('ds_read_b128 %s, v%d offset:%d' % (vr(EG + 4 * k, 4), ERD, 512 * k), tag='eg') for k in range(8)])
        p2.append(e_verify)
        for k in range(6, -1, -1):
            p2 += cfma(EG + 4 * k, L128, EG + 4 * k + 4, EG + 4 * k)
        p2 += items('v_mov_b32 v4, v%d\nv_mov_b32 v5, v%d\nv_permlane32_swap_b32 v4, v%d\nv_permlane32_swap_b32 v5, v%d' % (EG, EG + 1, EG, EG + 1))
        p2 += cfma(4, L256, EG, 4)
        p2 += cfma(PP, L16S, 4, PP)
        p2 += items('v_mul_f32 v6, v%d, v%d\nv_mul_f32 v7, v%d, v%d' % (KAP, PP, KAP, PP + 1))
        p2 += items('v_fma_f32 v6, -v%d, v%d, v6\nv_fmac_f32 v7, v%d, v%d' % (KAP + 1, PP + 1, KAP + 1, PP))
        prev = (6, 7)
        for r in range(16):
            p2 += items('v_fmac_f32 v%d, v%d, v%d\nv_fmac_f32 v%d, v%d, v%d\nv_fma_f32 v%d, -v%d, v%d, v%d\nv_fmac_f32 v%d, v%d, v%d' %
                        (RE + r, LR, prev[0], IM + r, LR, prev[1], RE + r, LI, prev[1], RE + r, IM + r, LI, prev[0]))
            prev = (RE + r, IM + r)
        return p2

    def store_h(loads):
        for part in range(2):
            for k in range(8):
                sg_ = '-' if part else ''
                e.I('v_cvt_pk_bf16_f32 v%d, %sv%d, %sv%d' % (8 + 8 * part + k, sg_, RE + 16 * part + 2 * k, sg_, RE + 16 * part + 2 * k + 1))
            for m in range(2):
                mfma(e, RE + 16 * part, 8 + 8 * part + 4 * m, SEL + 4 * m, m == 0)
        hdone.append(1)
        run(loads)
        e.I('s_add_u32 s%d, s%d, 4096' % (T0, sHD))
        for part in range(2):
            for m in range(2):
                o = 8 + 8 * part + 4 * m
                for k in range(4):
                    e.I('v_cvt_pk_bf16_f32 v%d, v%d, v%d' % (o + k, RE + 16 * part + 8 * m + 2 * k, RE + 16 * part + 8 * m + 2 * k + 1))
                hq.append(lambda o=o, part=part, m=m: e.I('buffer_store_dwordx4 %s, v%d, %s, s%d offen offset:%d sc1' %
                                                         (vr(o, 4), HS, srd(SWS), T0 if part else sHD, 512 * m), tag='hs'))
                if len(hq) <= cfg.hnow:
                    hq[-1]()
                    hsent.add(len(hq) - 1)

    hq = []
    hsent = set()
    kcur = [0]
    p2 = second_pass()
    for k, (toks, work) in enumerate(segs):
        if k == 0:
            continue
        if k <= cfg.JL:
            bar(k, ['eg'] if work[:1] == 'P' else [])
        kcur[0] = k
        q = expand(toks, k)
        if work == 'sel':
            run(weave(q, sel + ([] if 'late' in cfg.prog else late)))
        elif work[:1] == 'g':
            hg = len(gate) // 2
            run(weave(q, gate if work == 'g' else gate[:hg] if work == 'g0' else gate[hg:]))
        elif work == 'late':
            run(weave(q, late))
        elif work[:1] == 'P':
            assert k <= cfg.JL or work != 'P0'
            part = p2 if work == 'P' else p2[:cfg.p2cut] if work == 'P0' else p2[cfg.p2cut:]
            run(part[:1] + (weave(q, part[1:]) if q else part[1:]))
            if work == 'P1H':
                st(e, 'p2done')
                store_h([])
        elif work[:1] == 'H':
            st(e, 'p2done')
            store_h(q)
            run(expand(work[2:], k))
        elif work == 'F':
            run(hq[n] for n in range(4) if n not in hsent)
            st(e, 'hst')
            run(q)
            assert gdone and len(hq) == 4
            e.wait(vm=['hs', 'gs'])
            flag_store(e, 2, sHF)
            st(e, 'hflag')
        else:
            run(q)
    assert len(segs) > cfg.JL
    HV, PW = 6, 8
    rest = [i for i in range(8) if 'C%d' % i not in planned]
    run(c_loads(rest.pop(0)))
    e.I('s_mul_i32 s%d, s%d, %d\ns_mul_i32 s%d, s%d, %d\ns_add_u32 s%d, s%d, s%d\ns_add_u32 s%d, s%d, 0x%x' %
        (T0, sRT, 2 * HT_, T1, sW, HW_, T0, T0, T1, T0, T0, H_OFF))
    e.I('v_add_u32 v%d, s%d, v1\nv_add_u32 v%d, %d, v%d' % (HV, T0, HV + 1, HT_, HV))
    for u in range(4):
        e.I('s_xor_b32 s%d, s%d, %d\ns_lshl_b32 s%d, s%d, 12' % (93 + u, sROT, u, 93 + u, 93 + u))
    part_write_addr(e, PW, 12, 13, 16384, 4096, SPART)
    mk_srd(e, SOUT, P_OUT, 2048 * 2048)
    e.I('s_lshl_b32 s%d, s%d, 2\ns_add_u32 s%d, s%d, s%d\ns_mul_i32 s%d, s%d, %d\ns_add_u32 s%d, s%d, 0x%x' %
        (T0, sRT, T0, T0, sW, T0, T0, 8 * FS, T0, T0, HF_OFF))
    e.I('v_mul_u32_u24 v12, %d, v0\nv_mov_b32 v5, v2' % FS)

    def h_reg(k):
        return 16 + 4 * (k % 12)

    def h_load(k):
        n2, t4 = k >> 2, k & 3
        e.I('buffer_load_dwordx4 %s, v%d, %s, s%d offen offset:%d sc1' % (vr(h_reg(k), 4), HV + (t4 >> 1), srd(SWS), 93 + (n2 >> 1),
                                                                            2048 * (n2 & 1) + 1024 * (t4 & 1)), tag=('h', k))

    def c_finish():
        for i in range(8):
            c_read(i)
        e.wait(vm='wd')
        cnt_add(e, FLA, ONE, C_DONEA)
        st(e, 'cgot')

    while rest and rest[0] < cfg.hlook:
        run(c_loads(rest.pop(0)))
    if cfg.hlook > 8:
        c_finish()
    poll(e, 'L_pollH', 13, 12, T0, '0xff',
         lambda: ([run(c_loads(i)) for i in rest], c_finish() if cfg.hearly == 0 and cfg.hlook <= 8 else None))
    st(e, 'hrdy')
    XO, RA, GV, RF = 2, 3, 4, 14
    ROWS = (0, 8, 32, 40)
    XL, DL, GL, XD, PW1 = 128, 136, 138, 144, 10
    fin = items('s_lshl_b32 s%d, s%d, 6\ns_add_u32 s%d, s%d, s%d' % (T0, sRT, T0, T0, sW))
    fin += items('v_lshrrev_b32 v12, 4, v0\nv_lshrrev_b32 v13, 2, v0\nv_and_b32 v13, 2, v13\nv_xor_b32 v12, v12, v13')
    fin += items('v_and_b32 v15, 1, v12\nv_lshl_add_u32 v13, v15, 4, s%d\nv_lshrrev_b32 v3, 1, v12\nv_lshl_add_u32 v13, v3, 2, v13' % T0)
    fin += items('v_and_b32 v14, 15, v0\ns_lshl_b32 s%d, s%d, 7' % (T1, sCT))
    fin += items('v_lshl_add_u32 v1, v14, 3, s%d' % T1)
    fin += items('v_lshl_add_u32 v%d, v13, 10, v1' % XO)
    fin += items('v_lshlrev_b32 v%d, 2, v13\nv_add_u32 v%d, 0x%x, v%d' % (GV, GV, G_OFF, GV))
    fin += items('s_lshl_b32 s%d, s%d, 8\ns_add_u32 s%d, s%d, %d' % (T2, sW, T1, T2, SPART))
    fin += items('v_lshl_add_u32 v3, v3, 10, s%d\nv_lshl_add_u32 v3, v15, 14, v3' % T1)
    fin += items('v_lshl_or_b32 v13, v15, 2, s%d\nv_xor_b32 v13, v13, v14\nv_lshl_add_u32 v%d, v13, 4, v3' % (sW, RA))
    fin += items('v_lshl_add_u32 v12, v12, 6, s%d\nv_lshrrev_b32 v13, 2, v14\nv_lshl_add_u32 v12, v13, 10, v12' % T2)
    fin += items('v_and_b32 v13, 3, v0\nv_lshl_add_u32 v%d, v13, 4, v12\nv_add_u32 v%d, %d, v%d' % (RF, RF + 1, 2 * SLOT, RF))
    fin += items('s_lshl_b32 s%d, s%d, 7' % (T0, sDTX))
    for a in range(2):
        fin += items('v_xor_b32 v%d, s%d, v%d\nv_xor_b32 v%d, 0x80, v%d' % (PW + a, T0, PW + a, PW1 + a, PW + a))
    if cfg.posX < 0:
        run(fin)
    for k in range(cfg.NVA):
        if cfg.posX < 0 and k == -1 - cfg.posX:
            assert k >= cfg.hearly
            e.wait(lg='all')
            e.I('s_barrier')
        if k == cfg.hearly // 2 and k:
            c_read(6)
        if k == cfg.hearly and k:
            c_finish()
        h_load(k)
    e.wait(lg='all')
    if cfg.posX >= 0:
        run(fin)

    def fx_loads():
        e.I('global_load_dwordx2 %s, v1, s[%d:%d]' % (vr(DL, 2), P_DSK, P_DSK + 1), tag='fx')
        for n in range(4):
            e.I('s_mov_b32 s%d, %d' % (T2, 1024 * ROWS[n]))
            e.I('buffer_load_dwordx2 %s, v%d, %s, s%d offen' % (vr(XL + 2 * n, 2), XO, srd(SX), T2), tag='fx')

    def g_loads():
        for n in range(4):
            e.I('buffer_load_dword v%d, v%d, %s, 0 offen offset:%d sc1' % (GL + n, GV, srd(SWS), 4 * ROWS[n]), tag='fg')

    DU = 160
    xd = [lambda: e.wait(vm='fx')]
    xd += items('v_lshlrev_b32 v%d, 16, v%d\nv_and_b32 v%d, 0xffff0000, v%d\nv_lshlrev_b32 v%d, 16, v%d\nv_and_b32 v%d, 0xffff0000, v%d' %
                (DU, DL, DU + 1, DL, DU + 2, DL + 1, DU + 3, DL + 1))
    for n in range(4):
        for k in range(2):
            x = XL + 2 * n + k
            xd += items('v_lshlrev_b32 v12, 16, v%d\nv_and_b32 v13, 0xffff0000, v%d' % (x, x))
            xd += items('v_mul_f32 v12, v12, v%d\nv_mul_f32 v13, v13, v%d' % (DU + 2 * k, DU + 1 + 2 * k))
            xd += items('v_cvt_pk_bf16_f32 v13, v12, v13')
            xd += items('v_lshlrev_b32 v%d, 16, v13\nv_and_b32 v%d, 0xffff0000, v13' % (XD + 4 * n + 2 * k, XD + 4 * n + 2 * k + 1))
    xd += items('v_mov_b32 v12, %d\nv_mov_b32 v13, 1\nv_lshlrev_b32 v%d, 1, v%d' % (L_P2, XO, XO))

    def s2_step(k):
        n2, t4 = k >> 2, k & 3
        if k == 2 * cfg.posX:
            e.I('s_barrier')
        e.wait(vm=('h', k))
        for dq in range(4):
            mfma16(e, acc2(t4, dq), c_reg(n2 >> 1, n2 & 1, dq), h_reg(k), n2 == 0)
            if dq == (0 if cfg.NVA < 12 else 3) and k + cfg.NVA < 32:
                h_load(k + cfg.NVA)
        if k == 8:
            fx_loads()
        if k == max(8, 2 * cfg.posX):
            g_loads()
    steps = [lambda k=k: s2_step(k) for k in range(32)]
    if cfg.xdpos < 32:
        run(steps[:cfg.xdpos] + weave(steps[cfg.xdpos:], xd))
    else:
        run(steps + xd[-3:])
    st(e, 's2end')
    if cfg.posX == 16:
        e.I('s_barrier')
        g_loads()
    st(e, '_X')
    run(part_write(e, PW, 16384, 0, PW1) + part_write(e, PW, 16384, 1, PW1))
    cnt_add(e, 12, 13, 0)
    if cfg.xdpos >= 32:
        run(xd[:-1])
    OM = 164
    e.wait(vm='fg')
    for n in range(4):
        e.I('v_sub_f32 v%d, 1.0, v%d' % (OM + n, GL + n))
        e.I('v_cvt_pk_bf16_f32 v%d, v%d, v%d\nv_lshlrev_b32 v%d, 16, v%d' % (OM + n, OM + n, OM + n, OM + n, OM + n))
    for n in range(4):
        e.I('s_mov_b32 s%d, %d' % (T2 + n, 2048 * ROWS[n]))
    e.I('s_lshl_b32 s%d, s%d, 5\ns_add_u32 s%d, s%d, s%d\ns_lshl_b32 s%d, s%d, 8\ns_add_u32 s%d, s%d, s%d' %
        (T0, sCT, T0, T0, sRT, T1, sW, T0, T0, T1))
    e.I('s_cmp_eq_u32 s%d, 31\ns_cselect_b32 s%d, 0x%x, s%d' % (T0, T0, EPOCH_OFF, SWS + 2))
    flag_store(e, 5, T0)
    cnt_spin(e, 'L_spinM', 12, 16, 0)
    e.wait(lg='all')
    for n in range(4):
        for w in range(4):
            e.I('ds_read_b128 %s, v%d offset:%d' % (vr(64 + 16 * n + 4 * w, 4), RA, w * 4096 + (n & 1) * 2048 + (n >> 1) * 32768), tag=('r', n))
    BS = XD
    for n in range(4):
        e.wait(lg=('r', n))
        b = 64 + 16 * n
        for k in range(4):
            e.I('v_add_f32 v%d, v%d, v%d\nv_add_f32 v%d, v%d, v%d' % (b + k, b + k, b + 4 + k, b + 8 + k, b + 8 + k, b + 12 + k))
        for k in range(4):
            e.I('v_add_f32 v%d, v%d, v%d' % (b + k, b + k, b + 8 + k))
        for k in range(4):
            e.I('v_add_f32 v%d, v%d, v%d' % (b + k, b + k, XD + 4 * n + k))
        for k in range(4):
            e.I('v_mul_f32 v%d, v%d, v%d' % (BS + 4 * n + k, GL + n, b + k))
    st(e, 'pre')
    for grp in cfg.zg:
        e.I('s_barrier')
        st(e, 'Z' if 3 in grp else '_Z%d' % grp[0])
        for n in grp:
            for w in range(4):
                e.I('ds_read_b128 %s, v%d offset:%d' % (vr(64 + 16 * n + 4 * w, 4), RF + (n >> 1), w * 6144 + (n & 1) * SLOT), tag=('r', n, w >> 1))
        for n in grp:
            b = 64 + 16 * n
            for o, p in ((0, 4), (8, 12), (0, 8)):
                e.wait(lg=('r', n, o >> 3))
                if 3 in grp:
                    for k in (0, 2):
                        e.I('v_pk_add_f32 %s, %s, %s' % (vr(b + o + k, 2), vr(b + o + k, 2), vr(b + p + k, 2)))
                else:
                    for k in range(4):
                        e.I('v_add_f32 v%d, v%d, v%d' % (b + o + k, b + o + k, b + p + k))
            if cfg.mimic2:
                for rnd in range(2):
                    e.I('v_cvt_pk_bf16_f32 v%d, v%d, v%d\nv_cvt_pk_bf16_f32 v%d, v%d, v%d' % (b + 1, b, b + 1, b + 3, b + 2, b + 3))
                    for k in (0, 2):
                        e.I('v_lshlrev_b32 v%d, 16, v%d\nv_and_b32 v%d, 0xffff0000, v%d' % (b + k, b + k + 1, b + k + 1, b + k + 1))
                    if rnd == 0:
                        for k in range(4):
                            e.I('v_mul_f32 v%d, v%d, v%d' % (b + k, OM + n, b + k))
                for k in (0, 2):
                    e.I('v_pk_add_f32 %s, %s, %s' % (vr(b + k, 2), vr(b + k, 2), vr(BS + 4 * n + k, 2)))
            else:
                for k in range(4):
                    e.I('v_fma_f32 v%d, v%d, v%d, v%d' % (b + k, OM + n, b + k, BS + 4 * n + k))
            e.I('buffer_store_dwordx4 %s, v%d, %s, s%d offen %s' % (vr(b, 4), XO, srd(SOUT), T2 + n, cfg.outflags if isinstance(cfg.outflags, str) else cfg.outflags[n]), tag='out')
    if st.on:
        e.wait(vm='all')
    st(e, 'end')
    st.flush(e)


HEADER = open(os.path.join(os.path.dirname(os.path.abspath(__file__)), '..', 'cdna_kernels', BASE + '.s.ref')).read()


def generate(cfg):
    SLEEP[:] = cfg.sleep
    W_SLOT[0] = 0 if cfg.w0pos is None else 4
    S_SHIFT[0] = -1 if cfg.lag else 0 if cfg.w0pos is None else 1
    assert cfg.w0pos is None
    hdr = []
    for line in HEADER.split('\n'):
        if not line.startswith(';'):
            break
        if '@launch' in line:
            line = '; @launch grid=(256,1,1) block=(512,1,1) lds=%d' % LDS_BYTES
            if cfg.pre_kernel is not None:
                line = '; @launch kernel=%s grid=(256,1,1) block=(512,1,1) lds=%d' % (NAME, LDS_BYTES)
                if cfg.pre_kernel:
                    line = '; @launch kernel=warm_kernel grid=(256,1,1) block=(256,1,1) lds=0\n' + line
        hdr.append(line)
    stB = Stamps(cfg, [38, 6, 8, 14, 16, 18, 20, 22, 30, 32, 34, 4, 10, 12, 24, 26], 'B')
    stA = Stamps(cfg, [38, 10, 12, 22, 34, 24, 26, 6, 8, 18, 28, 14, 16, 30, 36, 4], 'A')
    e = Em()
    gen_entry(e, cfg, stB)
    stA.names = list(stB.names)
    eA = Em()
    eA.hist = list(e.hist)
    gen_B(e, cfg, stB)
    gen_A(eA, cfg, stA)
    txt = '\n'.join(hdr) + '\n'
    txt += '.amdgcn_target "amdgcn-amd-amdhsa--gfx950"\n.text\n.globl %s\n.p2align 8\n.type %s,@function\n%s:\n' % (NAME, NAME, NAME)
    txt += e.text() + '\n' + '\n'.join(e.cold) + '\n.p2align 6\nL_A:\n' + eA.text() + '\n    s_endpgm\n' + '\n'.join(eA.cold) + '\nL_end:\n    s_endpgm\n'
    if cfg.pre_kernel:
        w = Em()
        w.I('s_cmp_ge_u32 s2, 256\ns_cbranch_scc1 L_wend')
        if cfg.pre_kernel != 'empty':
            w.I('s_load_dwordx16 s[4:19], s[0:1], 0\ns_load_dwordx16 s[20:35], s[0:1], 64')
            w.I('s_lshl_b32 s3, s2, 8\nv_add_u32 v0, s3, v0\nv_lshlrev_b32 v1, 7, v0')
            w.wait_smem()
            base = 0
            for p, n in ((P_X, 2048 * 1024), (P_BRE, 524288), (P_BIM, 524288), (P_WG, 1409024), (P_WU, 1409024), (P_CRE, 524288), (P_CIM, 524288), (P_WD, 1409024)):
                mk_srd(w, 40, p, n)
                w.I('v_subrev_u32 v2, %d, v1\nv_cmp_gt_u32 vcc, %d, v2\ns_and_saveexec_b64 s[44:45], vcc\ns_cbranch_execz L_w%d' % (base, n, p))
                w.I('buffer_load_dword v3, v2, s[40:43], 0 offen')
                w.label('L_w%d' % p)
                w.I('s_mov_b64 exec, s[44:45]')
                base += n
            if cfg.pre_kernel == 'wait':
                w.I('s_waitcnt vmcnt(0)')
        txt += '.globl warm_kernel\n.p2align 8\n.type warm_kernel,@function\nwarm_kernel:\n' + w.text() + '\nL_wend:\n    s_endpgm\n'
    txt += '''.section .rodata,"a"
.p2align 6
.amdhsa_kernel %s
  .amdhsa_next_free_vgpr 256
  .amdhsa_next_free_sgpr 102
  .amdhsa_accum_offset 256
  .amdhsa_group_segment_fixed_size 0
  .amdhsa_kernarg_size 136
  .amdhsa_user_sgpr_count 2
  .amdhsa_user_sgpr_kernarg_segment_ptr 1
  .amdhsa_system_sgpr_workgroup_id_x 1
  .amdhsa_float_denorm_mode_32 3
.end_amdhsa_kernel
''' % NAME
    if cfg.pre_kernel:
        txt += '''.p2align 6
.amdhsa_kernel warm_kernel
  .amdhsa_next_free_vgpr 8
  .amdhsa_next_free_sgpr 48
  .amdhsa_accum_offset 8
  .amdhsa_group_segment_fixed_size 0
  .amdhsa_kernarg_size 136
  .amdhsa_user_sgpr_count 2
  .amdhsa_user_sgpr_kernarg_segment_ptr 1
  .amdhsa_system_sgpr_workgroup_id_x 1
.end_amdhsa_kernel
'''
    info = dict(A=eA.count, B=e.count, nopsA=eA.nops, nopsB=e.nops, stampsA=stA.names, stampsB=stB.names)
    return txt, info


def cfg_from(args):
    cfg = Cfg()
    for a in args:
        k, v = a.split('=')
        setattr(cfg, k, eval(v))
    return cfg


if __name__ == '__main__':
    out = sys.argv[1]
    cfg = cfg_from(sys.argv[2:])
    txt, info = generate(cfg)
    open(out, 'w').write(txt)
    print(info)
```

```python
import sys, os
sys.path.insert(0, os.path.dirname(os.path.abspath(__file__)))
from em import Em, weave

BASE = 'gated_mix__ssm_conv_s5__swiglu_ffn__prompt'
NAME = BASE + '_kernel'

ACT_OFF = 0
H_OFF = 0x600000
E_OFF = 0xB00000
G_OFF = 0xB20000
HF_OFF = 0xB24000
AF_OFF = 0xB30000
EPOCH_OFF = 0xB48000
STAMP_OFF = 0xB50000
WS_SIZE = 0xB80000
OOB = 0x2000000
FS = 32
PHI = 0x9E3779B8

SLOT = 24576
WIN = 49152
SCR = 147456
SPART = 98304
L_E, L_FL, L_EG = SCR, SCR + 4096, SCR + 8192
L_P2 = 3 * SLOT + 4096
LDS_BYTES = 163840

P_X, P_LRE, P_LIM, P_BRE, P_BIM, P_CRE, P_CIM, P_LDT = 4, 6, 8, 10, 12, 14, 16, 18
P_DSK, P_BX, P_WG, P_WU, P_WD, P_GW, P_OUT, P_DBG, P_WS = 20, 22, 24, 26, 28, 30, 32, 34, 36
SX, SWS = 40, 44
SBM, SW, SWD = 48, 52, 56
SC1, SC2, SOUT, SCODE = 48, 52, 56, 60
SWA = 60
sWAVE, sW, sRB, sCB, sK0, sRT, sCT, sNONCE, sSG0 = 64, 65, 66, 67, 68, 69, 70, 71, 72
T0, T1, T2, T3, T4, T5, T6 = 73, 74, 75, 76, 77, 78, 79
sNL2E = 80
sMA, sMB = 82, 84
sTBL = 86
sCNT = 97
sTS, sTW, sTD = 98, 99, 100
sMX, sMBm = 60, 61
sMW = 101
SPIN_MAX = 200000

SLEEP = [0, 0]
FL = {}


def ntf(key, stage):
    return 'nt ' if stage < FL.get(key, 0) else ''


LOG2E = 0x3fb8aa3b
NLOG2E = 0xbfb8aa3b


class Cfg:
    mimic = False
    mimic2 = False
    stamps = False
    rot1 = (2, 0, 2, 1)
    rot2 = 7
    rotF = 0
    rotS = None
    map2 = 84
    prewarm = True
    NT = 2
    early = 200
    w0pos = None
    s1a = 2
    smallpos = 2
    tlb = False
    pre_kernel = None
    lag = 0
    lagr = 4
    JL = 7
    prog = 'W2,G0|;W3,C0|sel;W4|g0;E0,W5,D0,D1,D2,D3|g1;W6|P0;W7|P1H;|;C1,C2,C3|F'
    p2cut = 80
    cbuf = (4, 0, 1, 4, 0, 1, 4, 0)
    tplan = ()
    zfill = True
    prioB = 0
    LA = 4
    posX = 8
    pren = 4
    asplit = True
    prioT = 1
    drain = ()
    hpad = (0, 0)
    hlook = 9
    hearly = 0
    hnow = 4
    sleep = (1, 1)
    skip = ''
    flagpos = (0, 0, 3)
    alook = 18
    abet = 3
    posXB = -17
    fine = True
    snake = True
    nt = {}
    ksplit = True
    pksc = True
    jitter = 0
    prioF2 = 1
    NVA = 11
    NV0 = (12, 0)
    xdpos = 32
    NV = 12
    TL = 4
    pull0 = 3
    zg = ((0, 1), (2, 3))
    zlag = 3
    outflags = 'sc1'
    selA = None
    selB = None
    prioA = 0
    amp = None


def srd(r):
    return 's[%d:%d]' % (r, r + 3)


def vr(a, n):
    return 'v[%d:%d]' % (a, a + n - 1) if n > 1 else 'v%d' % a


def mk_srd(e, r, p, nbytes):
    e.I('s_mov_b32 s%d, s%d\ns_mov_b32 s%d, s%d\ns_mov_b32 s%d, 0x%x\ns_mov_b32 s%d, 0x20000' %
        (r, p, r + 1, p + 1, r + 2, nbytes, r + 3))


def mk_srd_sel(e, r, p1, p0, nbytes):
    e.I('s_cselect_b32 s%d, s%d, s%d\ns_cselect_b32 s%d, s%d, s%d\ns_mov_b32 s%d, 0x%x\ns_mov_b32 s%d, 0x20000' %
        (r, p1, p0, r + 1, p1 + 1, p0 + 1, r + 2, nbytes, r + 3))


def mfma(e, d, a, b, first):
    e.I('v_mfma_f32_32x32x16_bf16 %s, %s, %s, %s' % (vr(d, 16), vr(a, 4), vr(b, 4), '0' if first else vr(d, 16)))


def mfma16(e, d, a, b, first):
    e.I('v_mfma_f32_16x16x32_bf16 %s, %s, %s, %s' % (vr(d, 4), vr(a, 4), vr(b, 4), '0' if first else vr(d, 4)))


class Stamps:
    def __init__(self, cfg, regs, role):
        self.amp = cfg.amp if cfg.amp else None
        self.role = role
        self.sel = (cfg.selA if role == 'A' else cfg.selB)
        if self.sel is not None:
            self.sel = self.sel.split(',')
        self.ins = 's_memtime' if cfg.stamps == 'cyc' else 's_memrealtime'
        self.on = cfg.stamps or bool(self.amp)
        self.regs = regs
        self.names = []

    def __call__(self, e, name):
        if not self.on:
            return
        if self.sel is not None:
            if name != 'start' and name not in self.sel:
                return
        elif name.startswith('_'):
            return
        r = self.regs[len(self.names)]
        self.names.append(name)
        if self.amp and name not in ('start', 'end', self.amp[1], self.amp[2]):
            return
        e.I('%s s[%d:%d]' % (self.ins, r, r + 1))

    def flush(self, e):
        if not self.on:
            return
        e.wait_smem()
        if self.amp:
            if self.amp[0] == self.role:
                R = dict(zip(self.names, self.regs))
                e.I('s_sub_u32 s%d, s%d, s%d\ns_mul_i32 s%d, s%d, %d\ns_min_u32 s%d, s%d, 50000' %
                    (T0, R[self.amp[2]], R[self.amp[1]], T0, T0, self.amp[3], T0, T0))
                e.label('L_amp')
                e.I('s_memrealtime s[%d:%d]' % (T1, T1 + 1))
                e.wait_smem()
                e.I('s_sub_u32 s%d, s%d, s%d\ns_cmp_lt_u32 s%d, s%d\ns_cbranch_scc1 L_amp' % (T1, T1, R['end'], T1, T0))
            return
        e.I('s_lshl_b32 s%d, s2, 3\ns_add_u32 s%d, s%d, s%d\ns_lshl_b32 s%d, s%d, 6\ns_add_u32 s%d, s%d, 0x%x' %
            (T0, T0, T0, sWAVE, T0, T0, T0, T0, STAMP_OFF))
        e.I('s_mov_b64 exec, 1')
        for k in range(len(self.names)):
            e.I('v_mov_b32 v2, s%d' % self.regs[k])
            e.I('buffer_store_dword v2, off, %s, s%d offset:%d' % (srd(SWS), T0, 4 * k))


def jitter(e, cfg, key):
    if not cfg.jitter:
        return
    lab = 'L_jit%d' % key
    e.settle()
    e.I('s_lshl_b32 s%d, s2, 3\ns_add_u32 s%d, s%d, s%d' % (sCNT, sCNT, sCNT, sWAVE))
    e.I('s_mul_i32 s%d, s%d, 0x%x\ns_lshr_b32 s%d, s%d, 28' % (sCNT, sCNT, (0x9E3779B1 * (2 * key * cfg.jitter + 1)) & 0xffffffff, sCNT, sCNT))
    e.I('s_cmp_lt_u32 s%d, 12\ns_cbranch_scc1 %s_out' % (sCNT, lab))
    e.label(lab)
    e.I('s_sleep 40\ns_add_u32 s%d, s%d, 1\ns_cmp_lt_u32 s%d, 17\ns_cbranch_scc1 %s' % (sCNT, sCNT, sCNT, lab))
    e.label(lab + '_out')


def run(items):
    for it in items:
        it()


def poll(e, label, vt, vaddr, soff, mask, between=None):
    def look(tag=None):
        e.I('s_mov_b64 exec, %s' % mask)
        e.I('buffer_load_dword v%d, v%d, %s, s%d offen sc1' % (vt, vaddr, srd(SWS), soff), tag=tag)
        e.I('s_mov_b64 exec, -1')

    def check():
        e.I('v_cmp_ne_u32 vcc, s%d, v%d' % (sNONCE, vt))
        e.I('s_and_b64 vcc, vcc, %s' % mask)
    spin(e, label, look, check, between)


def spin(e, label, look, check, between):
    look('look')
    if between:
        between()
    e.wait(vm='look')
    check()
    e.I('s_cbranch_scc1 %s' % label)
    e.label(label + '_out')
    with e.cold_block():
        e.label(label)
        e.I('s_mov_b32 s%d, 0' % sCNT)
        e.label(label + '_l')
        if SLEEP[0]:
            e.I('s_sleep %d' % SLEEP[0])
        look()
        e.I('s_add_u32 s%d, s%d, 1' % (sCNT, sCNT))
        e.I('s_cmp_gt_u32 s%d, %d' % (sCNT, SPIN_MAX))
        e.wait(vm='all')
        e.I('s_cbranch_scc1 %s_out' % label)
        check()
        e.I('s_cbranch_scc1 %s_l' % label)
        e.I('s_branch %s_out' % label)


def code_touch(e, tag):
    e.I('s_getpc_b64 s[%d:%d]' % (sMA, sMA + 1))
    e.label('L_pc' + tag)
    e.I('s_sub_u32 s%d, s%d, L_pc%s-%s\ns_subb_u32 s%d, s%d, 0' % (sMA, sMA, tag, NAME, sMA + 1, sMA + 1))
    e.I('s_and_b32 s%d, s2, 0xf8\ns_add_u32 s%d, s%d, s%d\ns_lshl_b32 s%d, s%d, 6' % (T0, T0, T0, sWAVE, T0, T0))
    e.I('s_load_dword s3, s[%d:%d], s%d' % (sMA, sMA + 1, T0))
    e.I('s_add_u32 s%d, s%d, 16384\ns_min_u32 s%d, s%d, L_end-%s' % (T0, T0, T0, T0, NAME))
    e.I('s_load_dword s3, s[%d:%d], s%d' % (sMA, sMA + 1, T0))


def rot2_calc(e, cfg, dst, b):
    e.I('s_mul_i32 s%d, s%d, %d' % (dst, sCT, b))
    for k in range(1 if cfg.map2 == 84 else 2):
        e.I('s_add_u32 s%d, s%d, s%d' % (dst, dst, sRT))
    e.I('s_and_b32 s%d, s%d, %d' % (dst, dst, cfg.rot2))


def step_start(e, cfg, cur, beg, end, shift):
    rot2_calc(e, cfg, cur, cfg.rotF)
    e.I('s_cmp_eq_u32 s%d, 3\ns_cselect_b32 s%d, 10, 11' % (sW, end))
    e.I('s_mul_i32 s%d, s%d, s%d\ns_lshr_b32 s%d, s%d, 3\ns_mul_i32 s%d, s%d, 11' % (cur, cur, end, cur, cur, beg, sW))
    e.I('s_add_u32 s%d, s%d, s%d\ns_add_u32 s%d, s%d, s%d' % (cur, cur, beg, end, end, beg))
    for r in (cur, beg, end):
        e.I('s_lshl_b32 s%d, s%d, %d' % (r, r, shift))


def step_next(e, cur, beg, end, inc, wrap=True, last=False):
    e.I('s_add_u32 s%d, s%d, %d' % (cur, cur, inc))
    if wrap:
        e.I('s_cmp_eq_u32 s%d, s%d\ns_cselect_b32 s%d, s%d, s%d' % (cur, end, cur, beg, cur))
    if last:
        e.I('s_cmp_eq_u32 s%d, 3\ns_cselect_b32 s%d, 0x%x, s%d' % (sW, cur, OOB, cur))


def wd_next(e, n, cur, beg, end):
    step_next(e, cur, beg, end, 16384, n % 2 == 0, n == 20)


def set_m0(e, base, off):
    if getattr(e, 'm0', None) != (base, off):
        e.I('s_add_u32 m0, s%d, %d' % (base, off))
        e.m0 = (base, off)


def wd_lane_offsets(e, WDV, t0, t1):
    txt = 'v_lshrrev_b32 v%d, 4, v0\nv_lshlrev_b32 v%d, 1, v%d\nv_and_b32 v%d, 7, v0\nv_xor_b32 v%d, v%d, v%d\nv_lshlrev_b32 v%d, 4, v%d\n' % (
        t0, t0, t0, t1, t0, t0, t1, t0, t0)
    txt += 'v_lshrrev_b32 v%d, 3, v0\nv_lshl_add_u32 v%d, v%d, 10, v%d\n' % (t1, t0, t1, t0)
    txt += 's_lshl_b32 s%d, s%d, 7\n' % (T0, sCT)
    txt += 'v_add_u32 v%d, s%d, v%d\nv_add_u32 v%d, 7168, v%d' % (WDV, T0, t0, WDV + 1, WDV)
    return txt


RING = [(5, n) for n in range(3)] + [(4, 2)] + [(2 + n // 3, n % 3) for n in range(6)] + [(4, n) for n in range(2)] \
    + [(n // 3, n % 3) for n in range(6)] + [(2, n) for n in range(3)] + [(3, 0)]
PREV = {18: 4, 19: 5, 20: 6, 21: 7}


class Touch:
    def __init__(self, e, cfg, role):
        self.e, self.role = e, role
        self.plan = [p for p in cfg.tplan if p[0] == role]
        it = []
        for par in range(2):
            for p in (P_CRE, P_CIM):
                it += [(p, 128 * k + 64 * par) for k in range(4)]
        for par in range(2):
            it += [(P_WD, 128 * k + 64 * par) for k in range(11)]
        self.items = it

    def setup(self):
        if not self.plan:
            return
        e = self.e
        used = {self.items[k][0] for p in self.plan for k in range(p[2], p[3])}
        e.I('s_lshl_b32 s%d, s2, 2\ns_add_u32 s%d, s%d, s%d' % (T0, T0, T0, sW))
        for p in sorted(used):
            e.I('s_mul_i32 s%d, s%d, %d' % (T1, T0, 1376 if p == P_WD else 512))
            e.I('s_add_u32 s%d, s%d, s%d\ns_addc_u32 s%d, s%d, 0' % (p, p, T1, p + 1, p + 1))

    def at(self, place):
        for p in self.plan:
            if p[1] == place:
                for k in range(p[2], p[3]):
                    self.e.I('s_load_dword s3, s[%d:%d], %d' % (self.items[k][0], self.items[k][0] + 1, self.items[k][1]))


def flag_store(e, vt, soff, imm=0):
    e.I('s_mov_b64 exec, 1')
    e.I('buffer_store_dword v%d, off, %s, s%d offset:%d sc1' % (vt, srd(SWS), soff, imm), tag='flag')
    e.I('s_mov_b64 exec, -1')


def frag_addr(e, dst, t0, t1):
    e.I('v_lshrrev_b32 v%d, 5, v0' % t0)
    e.I('v_bfe_u32 v%d, v0, 1, 3' % t1)
    e.I('v_xor_b32 v%d, v%d, v%d' % (t0, t0, t1))
    e.I('v_and_b32 v%d, 31, v0' % t1)
    e.I('v_lshlrev_b32 v%d, 7, v%d' % (t1, t1))
    e.I('v_lshl_add_u32 v%d, v%d, 4, v%d' % (dst, t0, t1))
    for s in range(1, 4):
        e.I('v_xor_b32 v%d, %d, v%d' % (dst + s, 32 * s, dst))


def frag16_addr(e, dst, t0, t1):
    e.I('v_lshrrev_b32 v%d, 4, v0' % t0)
    e.I('v_bfe_u32 v%d, v0, 1, 3' % t1)
    e.I('v_xor_b32 v%d, v%d, v%d' % (t0, t0, t1))
    e.I('v_and_b32 v%d, 15, v0' % t1)
    e.I('v_lshlrev_b32 v%d, 7, v%d' % (t1, t1))
    e.I('v_lshl_add_u32 v%d, v%d, 4, v%d' % (dst, t0, t1))
    e.I('v_xor_b32 v%d, 64, v%d' % (dst + 1, dst))


def w_tr_addr(e, d, t0, t1):
    e.I('v_lshrrev_b32 v%d, 4, v0' % t0)
    e.I('v_bfe_u32 v%d, v0, 2, 2' % t1)
    e.I('v_lshl_add_u32 v%d, v%d, 3, v%d' % (t0, t0, t1))
    e.I('v_mul_u32_u24 v%d, 192, v%d' % (t0, t0))
    e.I('v_bfe_u32 v%d, v0, 4, 1' % t1)
    e.I('v_lshl_add_u32 v%d, v%d, 5, v%d' % (t0, t1, t0))
    e.I('v_and_b32 v%d, 3, v0' % t1)
    e.I('v_lshl_add_u32 v%d, v%d, 3, v%d' % (d, t1, t0))
    e.I('v_xor_b32 v%d, 32, v%d' % (d + 1, d))
    e.I('v_add_u32 v%d, %d, v%d\nv_add_u32 v%d, %d, v%d' % (d + 2, WIN, d, d + 3, WIN, d + 1))


W_SLOT = [0, 1, 2, 3, 0, 1, 2, 3]
S_SHIFT = [0]


def s_slot(i):
    return (i + 4) % 6 if S_SHIFT[0] < 0 else (i + S_SHIFT[0]) % 4


def w_frag_read(e, dst, wa, j, s2, g, mat, fh, mm, tag):
    slot = W_SLOT[j]
    off = (slot & 1) * SLOT + mat * 12288 + (32 * s2 + 4 * mm) * 192 + g * 64
    e.I('ds_read_b64_tr_b16 %s, v%d offset:%d' % (vr(dst + 2 * mm, 2), wa + 2 * (slot >> 1) + fh, off), tag=tag)


def act_items(e, cfg, G, U, tmp, out):
    items = []
    add = lambda t: items.append(lambda t=t: e.I(t))
    for b in range(2):
        g, u, o = G + 8 * b, U + 8 * b, out + 4 * b
        if cfg.mimic:
            for src in (g, u):
                for p in range(4):
                    add('v_cvt_pk_bf16_f32 v%d, v%d, v%d' % (tmp + p, src + 2 * p, src + 2 * p + 1))
                for p in range(4):
                    add('v_lshlrev_b32 v%d, 16, v%d' % (src + 2 * p, tmp + p))
                    add('v_and_b32 v%d, 0xffff0000, v%d' % (src + 2 * p + 1, tmp + p))
        for p in range(4):
            add('v_pk_mul_f32 %s, %s, s[%d:%d]' % (vr(tmp + 2 * p, 2), vr(g + 2 * p, 2), sNL2E, sNL2E + 1))
        for p in range(8):
            add('v_exp_f32 v%d, v%d' % (tmp + p, tmp + p))
        for p in range(4):
            add('v_pk_add_f32 %s, %s, 1.0 op_sel_hi:[1,0]' % (vr(tmp + 2 * p, 2), vr(tmp + 2 * p, 2)))
        for p in range(8):
            add('v_rcp_f32 v%d, v%d' % (tmp + p, tmp + p))
        for p in range(4):
            add('v_pk_mul_f32 %s, %s, %s' % (vr(g + 2 * p, 2), vr(g + 2 * p, 2), vr(tmp + 2 * p, 2)))
        if cfg.mimic:
            for p in range(4):
                add('v_cvt_pk_bf16_f32 v%d, v%d, v%d' % (tmp + p, g + 2 * p, g + 2 * p + 1))
            for p in range(4):
                add('v_lshlrev_b32 v%d, 16, v%d' % (g + 2 * p, tmp + p))
                add('v_and_b32 v%d, 0xffff0000, v%d' % (g + 2 * p + 1, tmp + p))
        for p in range(4):
            add('v_pk_mul_f32 %s, %s, %s' % (vr(u + 2 * p, 2), vr(g + 2 * p, 2), vr(u + 2 * p, 2)))
        for p in range(4):
            add('v_cvt_pk_bf16_f32 v%d, v%d, v%d' % (o + p, u + 2 * p, u + 2 * p + 1))
    return items


def act_items_scalar(e, cfg, G, U, tmp, out):
    if cfg.mimic:
        return act_items(e, cfg, G, U, tmp, out)
    items = []
    add = lambda t: items.append(lambda t=t: e.I(t))
    for b in range(4):
        g, u, o = G + 4 * b, U + 4 * b, out + 2 * b
        for p in range(4):
            add('v_mul_f32 v%d, s%d, v%d' % (tmp + p, sNL2E, g + p))
        for p in range(4):
            add('v_exp_f32 v%d, v%d' % (tmp + p, tmp + p))
            add('v_mul_f32 v%d, v%d, v%d' % (u + p, g + p, u + p))
        for p in range(4):
            add('v_add_f32 v%d, 1.0, v%d' % (tmp + p, tmp + p))
        for p in range(4):
            add('v_rcp_f32 v%d, v%d' % (tmp + p, tmp + p))
        for p in range(4):
            add('v_mul_f32 v%d, v%d, v%d' % (u + p, tmp + p, u + p))
        for p in range(2):
            add('v_cvt_pk_bf16_f32 v%d, v%d, v%d' % (o + p, u + 2 * p, u + 2 * p + 1))
    return items


def light_scc(e):
    e.I('s_and_b32 s%d, s%d, 3\ns_cmp_eq_u32 s%d, 3\ns_cselect_b32 s%d, 14, s%d\ns_cmp_eq_u32 s%d, 14' % (T0, sCB, T0, T0, sCB, T0))


def w_lane_offsets(e, cfg, WV, t0, t1):
    if cfg.zfill:
        light_scc(e)
        e.I('s_cselect_b32 s%d, 8, 12' % sTW)
    e.I('s_and_b32 s%d, s%d, 1' % (T1, sW))
    e.I('s_mul_i32 s%d, s%d, %d\ns_lshl_b32 s%d, s%d, 6\ns_add_u32 s%d, s%d, s%d' % (T0, T1, 32 * 2752, T1, sSG0, T0, T0, T1))
    for q in range(3):
        e.I('v_add_u32 v%d, %d, v0\nv_mul_u32_u24 v%d, 171, v%d\nv_lshrrev_b32 v%d, 11, v%d' % (t1, 64 * q, t0, t1, t0, t0))
        if cfg.zfill:
            e.I('v_mul_u32_u24 v%d, 12, v%d\nv_sub_u32 v%d, v%d, v%d\nv_cmp_gt_u32 vcc, s%d, v%d' % (WV + q, t0, t1, t1, WV + q, sTW, t1))
        e.I('v_lshrrev_b32 v%d, 3, v%d\nv_lshlrev_b32 v%d, 1, v%d\nv_xor_b32 v%d, v0, v%d' % (t1, t0, t1, t1, t1, t1))
        e.I('v_mul_u32_u24 v%d, %d, v%d' % (t0, 2752 - 192, t0))
        e.I('v_lshl_add_u32 v%d, v%d, 4, v%d' % (t0, t1, t0))
        e.I('v_add_u32 v%d, s%d, v%d' % (WV + q, T0, t0))
        if cfg.zfill:
            e.I('v_mov_b32 v%d, 0x%x\nv_cndmask_b32 v%d, v%d, v%d, vcc' % (t0, OOB, WV + q, t0, WV + q))
    e.I('s_mul_i32 s%d, s%d, 6144' % (sMW, sW))


def dma_W(e, WV, SWR, j):
    slot = W_SLOT[j] * SLOT
    its = []
    for grp in range(2):
        for q in range(3):
            def f(grp=grp, q=q):
                set_m0(e, sMW, slot + grp * 3072)
                if q == 0 and grp == 0:
                    e.I('s_add_u32 s%d, s%d, %d\ns_and_b32 s%d, s%d, 7\ns_mul_i32 s%d, s%d, %d' %
                        (sTW, sK0, j, sTW, sTW, sTW, sTW, 64 * 2752))
                if q == 0 and grp == 1:
                    e.I('s_add_u32 s%d, s%d, %d' % (sTW, sTW, 16 * 2752))
                e.I('buffer_load_dwordx4 v%d, %s, s%d offen offset:%d %slds' % ((WV + q, srd(SWR), sTW, 1024 * q) + (ntf('w', j),)), tag=('st', 8 + j))
            its.append(f)
    return its


C_LAND, C_CONS, C_Q, C_DONEA = 0, 32, 64, 68


def cnt_add(e, va, vone, off):
    e.I('s_mov_b64 exec, 1')
    e.I('ds_add_u32 v%d, v%d offset:%d' % (va, vone, off), tag='sig')
    e.I('s_mov_b64 exec, -1')


def cnt_look(e, va, vt, off, tag):
    e.I('ds_read_b32 v%d, v%d offset:%d' % (vt, va, off), tag=tag)


def cnt_check(e, label, va, vt, off, tag):
    e.wait(lg=tag)
    e.I('v_cmp_ne_u32 vcc, 4, v%d' % vt)
    e.I('s_cbranch_vccnz %s' % label)
    e.label(label + '_out')
    with e.cold_block():
        e.label(label)
        e.I('s_mov_b32 s%d, 0' % sCNT)
        e.label(label + '_l')
        if SLEEP[1]:
            e.I('s_sleep %d' % SLEEP[1])
        cnt_look(e, va, vt, off, None)
        e.I('s_add_u32 s%d, s%d, 1' % (sCNT, sCNT))
        e.I('s_cmp_gt_u32 s%d, %d' % (sCNT, 20 * SPIN_MAX))
        e.wait(lg='all')
        e.I('s_cbranch_scc1 %s_out' % label)
        e.I('v_cmp_ne_u32 vcc, 4, v%d' % vt)
        e.I('s_cbranch_vccnz %s_l' % label)
        e.I('s_branch %s_out' % label)


def cnt_spin(e, label, va, vt, off):
    cnt_look(e, va, vt, off, 'look')
    cnt_check(e, label, va, vt, off, 'look')


def act_offsets(e, k, s_data, s_flag, valid_scc=False):
    e.I('s_lshl_b32 s%d, s%d, 2\ns_add_u32 s%d, s%d, s%d' % (T0, sRB, T0, T0, sW))
    e.I('s_mul_i32 s%d, s%d, 43\ns_add_u32 s%d, s%d, s%d\ns_add_u32 s%d, s%d, %d\ns_lshl_b32 s%d, s%d, 11' %
        (T1, T0, T1, T1, sSG0, T1, T1, k, s_data, T1))
    e.I('s_lshr_b32 s%d, s%d, 1\ns_mul_i32 s%d, s%d, 44\ns_add_u32 s%d, s%d, s%d\ns_add_u32 s%d, s%d, %d' %
        (T1, T0, T1, T1, T1, T1, sSG0, T1, T1, k))
    e.I('s_lshl_b32 s%d, s%d, 1\ns_and_b32 s%d, s%d, 1\ns_add_u32 s%d, s%d, s%d\ns_mul_i32 s%d, s%d, %d\ns_add_u32 s%d, s%d, 0x%x' %
        (T1, T1, T0, T0, T1, T1, T0, T1, T1, FS, s_flag, T1, AF_OFF))


def part_write_addr(e, dst, t0, t1, piece_stride, wave_stride, base):
    e.I('v_lshrrev_b32 v%d, 4, v0' % t0)
    e.I('v_and_b32 v%d, 7, v0' % t1)
    e.I('v_xor_b32 v%d, v%d, v%d' % (t0, t0, t1))
    e.I('v_lshlrev_b32 v%d, 4, v%d' % (dst, t0))
    e.I('v_bfe_u32 v%d, v0, 3, 1' % t0)
    e.I('v_and_b32 v%d, 3, v0' % t1)
    e.I('v_lshl_add_u32 v%d, v%d, 2, v%d' % (t0, t0, t1))
    e.I('v_lshl_add_u32 v%d, v%d, 8, v%d' % (dst, t0, dst))
    e.I('v_bfe_u32 v%d, v0, 2, 1' % t0)
    e.I('v_mul_u32_u24 v%d, %d, v%d' % (t0, piece_stride, t0))
    e.I('s_mul_i32 s%d, s%d, %d\ns_add_u32 s%d, s%d, %d' % (T0, sW, wave_stride, T0, T0, base))
    e.I('v_add3_u32 v%d, v%d, v%d, s%d' % (dst, dst, t0, T0))
    e.I('v_xor_b32 v%d, 64, v%d' % (dst + 1, dst))


def acc2(t4, dq):
    return 64 + 16 * t4 + 4 * dq


def part_write(e, addr, piece_stride, tt, addr1=None):
    its = []
    for a in range(2):
        for dq in range(4):
            ad_, off = (addr + (dq & 1), (dq >> 1) * 128) if addr1 is None or dq < 2 else (addr1 + (dq & 1), 0)
            its.append(lambda ad_=ad_, off=off, dq=dq, a=a:
                       e.I('ds_write_b128 v%d, %s offset:%d' % (ad_, vr(acc2(2 * tt + a, dq), 4), tt * 2 * piece_stride + a * 2048 + off), tag=('pw', tt)))
    return its


KARG2 = 's_load_dwordx16 s[20:35], s[0:1], 64\ns_load_dwordx2 s[36:37], s[0:1], 128'


def gen_entry(e, cfg, st):
    e.I('s_load_dwordx16 s[4:19], s[0:1], 0')
    e.I('s_cmp_ge_u32 s2, 256\ns_cbranch_scc1 L_end')
    if not cfg.ksplit:
        e.I(KARG2)
    st(e, 'start')
    e.I('v_lshrrev_b32 v1, 6, v0\nv_and_b32 v0, 63, v0')
    e.I('v_readfirstlane_b32 s%d, v1' % sWAVE)
    e.I('s_and_b32 s%d, s2, 7\ns_lshr_b32 s%d, s2, 3' % (T0, T1))
    e.I('s_and_b32 s%d, s%d, 7\ns_lshr_b32 s%d, s%d, 3' % (T2, T1, T3, T1))
    e.I('s_and_b32 s%d, s%d, 1\ns_lshl_b32 s%d, s%d, 3\ns_add_u32 s%d, s%d, s%d' % (sRB, T0, sRB, sRB, sRB, sRB, T2))
    e.I('s_lshr_b32 s%d, s%d, 1' % (T4, T0))
    e.I('s_lshl_b32 s%d, s%d, 2\ns_add_u32 s%d, s%d, s%d' % (sCB, T4, sCB, sCB, T3))
    e.I('s_mul_i32 s%d, s%d, %d' % (sK0, T2, cfg.rot1[0]))
    for src, mul in zip((T3, T4, None), cfg.rot1[1:]):
        if mul:
            if src is None:
                e.I('s_and_b32 s%d, s%d, 1' % (T5, T0))
            e.I('s_mul_i32 s%d, s%d, %d\ns_add_u32 s%d, s%d, s%d' % (T5, T5 if src is None else src, mul, sK0, sK0, T5))
    e.I('s_and_b32 s%d, s%d, 7' % (sK0, sK0))
    e.I('s_mul_i32 s%d, s%d, 11\ns_mul_i32 s%d, s%d, 3\ns_add_u32 s%d, s%d, s%d' % (sSG0, T4, T5, T3, sSG0, sSG0, T5))
    e.I('s_cmp_eq_u32 s%d, 15\ns_subb_u32 s%d, s%d, 0' % (sCB, sSG0, sSG0))
    if cfg.map2 == 84:
        e.I('s_lshl_b32 s%d, s%d, 3\ns_add_u32 s%d, s%d, s%d' % (sRT, T4, sRT, sRT, T2))
        e.I('s_and_b32 s%d, s%d, 1\ns_lshl_b32 s%d, s%d, 2\ns_add_u32 s%d, s%d, s%d' % (sCT, T0, sCT, sCT, sCT, sCT, T3))
    else:
        e.I('s_lshl_b32 s%d, s%d, 2\ns_and_b32 s%d, s%d, 3\ns_add_u32 s%d, s%d, s%d\ns_lshr_b32 s%d, s%d, 2' %
            (sRT, T0, T5, T1, sRT, sRT, T5, sCT, T1))
    e.I('s_and_b32 s%d, s%d, 3' % (sW, sWAVE))
    e.I('s_cmp_lt_u32 s%d, 4\ns_cbranch_scc1 L_A' % sWAVE)


def gen_B(e, cfg, st):
    NPRE = cfg.prog.count('D')
    WA = 2
    EP = 42
    XV, BV, WV, XA = 32, 36, 38, 44
    e.I('v_lshrrev_b32 v8, 3, v0')
    e.I('v_and_b32 v9, 7, v0')
    e.I('v_lshrrev_b32 v10, 4, v0')
    e.I('v_xor_b32 v10, v9, v10\nv_lshlrev_b32 v10, 4, v10')
    e.I('v_lshrrev_b32 v11, 5, v0\nv_and_b32 v12, 3, v8\nv_lshl_add_u32 v11, v11, 4, v12')
    e.I('s_lshl_b32 s%d, s%d, 2\ns_add_u32 s%d, s%d, s%d\ns_lshl_b32 s%d, s%d, 15' % (T0, sRB, T0, T0, sW, T0, T0))
    e.I('v_lshl_add_u32 v11, v11, 10, s%d' % T0)
    e.I('v_add_u32 v%d, v11, v10' % XV)
    e.I('v_xor_b32 v13, 64, v%d' % XV)
    e.I('v_add_u32 v%d, 3072, v13\nv_add_u32 v%d, 6144, v%d\nv_add_u32 v%d, 9216, v13' % (XV + 1, XV + 2, XV, XV + 3))
    e.I('s_and_b32 s%d, s%d, 1' % (T1, sW))
    e.I('s_lshl_b32 s%d, s%d, 1\ns_add_u32 s%d, s%d, s%d\ns_lshl_b32 s%d, s%d, 14' % (T0, sCB, T0, T0, T1, T0, T0))
    e.I('v_lshrrev_b32 v11, 5, v0\nv_lshl_add_u32 v11, v11, 3, v12')
    e.I('v_lshl_add_u32 v11, v11, 10, s%d' % T0)
    e.I('v_add_u32 v%d, v11, v10' % BV)
    e.I('v_xor_b32 v13, 64, v%d\nv_add_u32 v%d, 3072, v13' % (BV, BV + 1))
    e.I('s_lshl_b32 s%d, s%d, 12' % (sMX, sW))
    e.I('s_lshl_b32 s%d, s%d, 11\ns_add_u32 s%d, s%d, 16384' % (sMBm, sW, sMBm, sMBm))
    e.I('s_lshl_b32 s%d, s%d, 7' % (T6, sK0))
    e.wait_smem()
    st(e, 'karg')
    jitter(e, cfg, 1)
    if cfg.ksplit:
        e.I(KARG2)
    mk_srd(e, SX, P_X, 2048 * 1024)
    e.I('s_cmp_ge_u32 s%d, 2' % sW)
    mk_srd_sel(e, SBM, P_BIM, P_BRE, 512 * 1024)

    def dma_S(i):
        slot = s_slot(i) * SLOT
        its = []
        for q in range(4):
            def f(q=q):
                if q == 0:
                    set_m0(e, sMX, slot)
                    e.I('s_add_u32 s%d, s%d, %d\ns_and_b32 s%d, s%d, 1023' % (sTS, T6, i * 128, sTS, sTS))
                e.I('buffer_load_dwordx4 v%d, %s, s%d offen offset:%d %slds' % ((XV + q, srd(SX), sTS, 1024 * q) + (ntf('x', i),)), tag=('st', i))
            its.append(f)
        for q in range(2):
            def f(q=q):
                if q == 0:
                    set_m0(e, sMBm, slot)
                e.I('buffer_load_dwordx4 v%d, %s, s%d offen offset:%d %slds' % ((BV + q, srd(SBM), sTS, 1024 * q) + (ntf('b', i),)), tag=('st', i))
            its.append(f)
        return its

    run(dma_S(0))
    st(e, 'dma0')
    s1 = dma_S(1)
    run(s1[:cfg.s1a])
    e.I('v_lshlrev_b32 v11, 2, v0\nv_add_u32 v11, %d, v11\nv_mov_b32 v12, 0' % L_FL)
    e.I('ds_write_b32 v11, v12', tag='init')
    if cfg.tlb:
        sP = sMB
        e.I('s_lshr_b32 s%d, s2, 3\ns_and_b32 s%d, s%d, 3\ns_lshl_b32 s%d, s%d, 2\ns_add_u32 s%d, s%d, s%d' % (T0, T0, T0, T0, T0, T0, T0, sW))
        e.I('s_min_u32 s%d, s%d, 5\ns_lshl_b32 s%d, s%d, 21\ns_mov_b64 s[%d:%d], s[%d:%d]' % (T1, T0, T1, T1, sP, sP + 1, P_WS, P_WS + 1))
        for k, (p, off) in enumerate(((P_WG, 0), (P_WU, 0), (P_WD, 0), (P_CRE, 0), (P_CIM, 0), (P_OUT, 0), (P_OUT, 1 << 21))):
            e.I('s_cmp_eq_u32 s%d, %d\ns_cselect_b64 s[%d:%d], s[%d:%d], s[%d:%d]\ns_cselect_b32 s%d, %d, s%d' %
                (T0, 6 + k, sP, sP + 1, p, p + 1, sP, sP + 1, T1, off, T1))
        e.I('s_load_dword s3, s[%d:%d], s%d' % (sP, sP + 1, T1))
    w_lane_offsets(e, cfg, WV, 11, 12)
    frag16_addr(e, XA, 11, 12)
    for s in range(2):
        e.I('v_add_u32 v%d, s%d, v%d' % (XA + s, sMX, XA + s))
        e.I('v_add_u32 v%d, %d, v%d' % (XA + 2 + s, WIN, XA + s))
        if cfg.lag:
            e.I('v_add_u32 v%d, %d, v%d' % (XA + 4 + s, 2 * WIN, XA + s))
    w_tr_addr(e, WA, 11, 12)
    e.I('v_lshlrev_b32 v1, 4, v0')
    e.wait_smem()
    if cfg.prewarm:
        code_touch(e, 'B')
    e.I('s_cmp_ge_u32 s%d, 2' % sW)
    mk_srd_sel(e, SW, P_WU, P_WG, 512 * 2752)
    mk_srd(e, SWS, P_WS, WS_SIZE)
    mk_srd(e, SWD, P_WD, 1376 * 1024)
    tch = Touch(e, cfg, 'B')
    tch.setup()
    tch.at(-1)

    sDC, sDB, sDE, sAC, sAB, sAE = 86, 87, 88, 89, 90, 91
    sD0, sF0, sD2, sF2 = T2, T3, T4, T5
    st(e, '_pro')
    sP0 = 92
    if isinstance(cfg.w0pos, tuple):
        tab = sum(p << (4 * r) for r, p in enumerate(cfg.w0pos))
        e.I('s_and_b32 s%d, s%d, 7\ns_lshl_b32 s%d, s%d, 2\ns_lshr_b32 s%d, 0x%x, s%d\ns_and_b32 s%d, s%d, 15' %
            (T0, sRB, T0, T0, sP0, tab, T0, sP0, sP0))

    def w0_hook(p):
        if cfg.w0pos == p:
            run(dma_W(e, WV, SW, 0))
        elif isinstance(cfg.w0pos, tuple) and p in cfg.w0pos:
            e.I('s_cmp_eq_u32 s%d, %d\ns_cbranch_scc1 L_w0_%d' % (sP0, p, p))
            e.label('L_w0_%d_out' % p)
            with e.cold_block():
                e.label('L_w0_%d' % p)
                run(dma_W(e, WV, SW, 0))
                e.I('s_branch L_w0_%d_out' % p)
            e.m0 = None
    run(s1[cfg.s1a:])
    st(e, '_dma1')
    w0_hook(1)
    e.wait(vm=('st', 0))
    st(e, '_sa0')
    e.I('s_barrier')
    st(e, 'b0')
    for i in range(8):
        if i == 1:
            e.I('s_mov_b32 s%d, 0x%x' % (T0, EPOCH_OFF))
            e.I('buffer_load_dword v%d, off, %s, s%d sc1' % (EP, srd(SWS), T0), tag='ep')
        if i < 6:
            run(dma_S(i + 2))
            w0_hook(i + 2)
        elif cfg.w0pos is None:
            run(dma_W(e, WV, SW, i - 6))
        elif i == 6 or 'W2' not in cfg.prog:
            run(dma_W(e, WV, SW, i - 5))
        for s in range(4):
            slot = s_slot(i)
            e.I('ds_read_b128 %s, v%d offset:%d' % (vr(128 + 4 * (4 * i + s), 4), XA + 2 * (slot >> 1) + (s >> 1), (slot & 1) * SLOT + (s & 1) * 2048), tag='x')
        if i == 4:
            e.wait(vm='ep')
            e.I('v_readfirstlane_b32 s%d, v%d' % (sNONCE, EP))
            e.I('s_add_u32 s%d, s%d, 0x%x\ns_or_b32 s%d, s%d, 1' % (sNONCE, sNONCE, PHI, sNONCE, sNONCE))
            e.I('s_mov_b32 s%d, 0x%x\ns_mov_b32 s%d, 0x%x' % (sNL2E, NLOG2E, sNL2E + 1, NLOG2E))
        if i == 2:
            step_start(e, cfg, sAC, sAB, sAE, 11)
        if i == 3:
            for k in range(3):
                e.I('s_lshl_b32 s%d, s%d, 4' % (sDC + k, sAC + k))
            for n in range(1, NPRE):
                wd_next(e, n, sDC, sDB, sDE)
        if i == 5:
            act_offsets(e, 0, sD0, sF0)
        if i == 6:
            e.I('s_add_u32 s%d, s%d, 4096\ns_add_u32 s%d, s%d, %d' % (sD2, sD0, sF2, sF0, 4 * FS))
            light_scc(e)
            e.I('s_cselect_b32 s%d, 0x%x, s%d\ns_cselect_b32 s%d, 0x%x, s%d' % (sD2, OOB, sD2, sF2, OOB, sF2))
            e.I('v_mov_b32 v7, %d\nv_mov_b32 v6, 1' % L_FL)
        if i < 7:
            e.wait(vm=('st', i + 1), lg='all')
            st(e, '_sa%d' % (i + 1))
            e.I('s_barrier')
            st(e, '_sd%d' % (i + 1))
            if i == 0:
                st(e, 'b1')
    NT = cfg.NT
    ops = []
    for j in range(8 - NT):
        for s in range(2):
            for g in range(3):
                for mf in range(4):
                    ops.append((j, s, g, mf))
    tail0 = len(ops)
    for g in range(3):
        for j in range(8 - NT, 8):
            for s in range(2):
                for mf in range(4):
                    ops.append((j, s, g, mf))
    NB, LA = 6, cfg.LA
    first = {j: min(q for q in range(len(ops)) if ops[q][0] == j) for j in range(8)}
    last = {j: max(q for q in range(len(ops)) if ops[q][0] == j) for j in range(8)}

    def rd(q, half):
        if q >= len(ops):
            return
        j, s, g, mf = ops[q]
        if q == first[j] and j <= cfg.JL and half == 0:
            e.wait(vm=('st', 8 + j), lg='all' if j in cfg.drain else 'x')
            st(e, '_a%d' % j)
            e.I('s_barrier')
            st(e, '_d%d' % j)
            if j in (0, 4, cfg.JL):
                st(e, 'b%d' % (8 + j))
            if j == 0 and cfg.prioB:
                e.I('s_setprio %d' % cfg.prioB)
        w_frag_read(e, 8 + 4 * (q % NB), WA, j, s, g, mf >> 1, mf & 1, half, ('wf', q))
        if q == last[7] and half == 1:
            cnt_add(e, 7, 6, C_CONS + 28)

    def mm(q, a):
        j, s, g, mf = ops[q]
        if a == 0 and q % 2 == 0:
            e.wait(lg=('wf', q + 1))
        t = a ^ (q & 1) if cfg.snake else a
        mfma16(e, 32 + 32 * g + 16 * (mf >> 1) + 8 * t + 4 * (mf & 1), 8 + 4 * (q % NB), 128 + 16 * j + 8 * s + 4 * t, j == 0 and s == 0)
        rd(q + LA, a)

    def act_store(k, ms=(0, 1)):
        for m in ms:
            e.I('buffer_store_dwordx4 %s, v1, %s, s%d offen offset:%d sc1' %
                (vr(136 + 8 * k + 4 * m, 4), srd(SWS), sD2 if k == 2 else sD0, 1024 * m + (2048 if k == 1 else 0)), tag=('as', k))

    def with_stores(its, k):
        if not cfg.asplit:
            return its + [lambda: act_store(k)]
        h = len(its) // 2
        return its[:h] + [lambda: act_store(k, (0,))] + its[h:] + [lambda: act_store(k, (1,))]

    def act_flag(k):
        e.wait(vm=('as', k))
        flag_store(e, EP, sF2 if k == 2 else sF0, 2 * FS if k == 1 else 0)

    for q in range(LA):
        rd(q, 0)
        rd(q, 1)
    per = 8 * NT
    for q in range(tail0 + per):
        mm(q, 0)
        mm(q, 1)
    if cfg.prioT:
        e.I('s_setprio %d' % cfg.prioT)
    if NT:
        for g in (1, 2):
            main = [lambda q=q, a=a: mm(q, a) for q in range(tail0 + g * per, tail0 + (g + 1) * per) for a in range(2)]
            fill = with_stores(act_items_scalar(e, cfg, 32 * g, 32 * g + 16, 128, 136 + 8 * (g - 1)), g - 1)
            run(main[:3] + weave(main[3:], fill))
        st(e, 'f1end')
        run(with_stores(act_items(e, cfg, 96, 112, 128, 152), 2))
    else:
        st(e, 'f1end')
        for g in range(3):
            run(with_stores(act_items(e, cfg, 32 + 32 * g, 48 + 32 * g, 128, 136 + 8 * g), g))
    if cfg.prioB or cfg.prioT:
        e.I('s_setprio 0')
    st(e, 'actst')
    jitter(e, cfg, 2)
    DA, AV, PW, WDV, EP = 2, 14, 16, 18, 23
    e.I('v_mov_b32 v%d, s%d' % (EP, sNONCE))
    e.I(wd_lane_offsets(e, WDV, 20, 21))
    e.I('v_mov_b32 v22, %d' % L_FL)
    cnt_spin(e, 'L_spinB', 22, 24, C_CONS + 28)
    st(e, 'ldsfree')

    def dma_D(n):
        sl, pos = RING[n]
        if n in PREV:
            e.wait(lg=('wr', PREV[n]))
        set_m0(e, sMW, sl * SLOT + pos * 2048)
        if n:
            wd_next(e, n, sDC, sDB, sDE)
        for q in range(2):
            e.I('buffer_load_dwordx4 v%d, %s, s%d offen offset:%d %slds' % ((WDV + q, srd(SWD), sDC, 1024 * q) + (ntf('d', n),)), tag=('wd', n))

    def wd_reg(n2):
        return 128 + 16 * n2 if n2 < 5 else 32 + 16 * (n2 - 5) if n2 < 7 else 128 + 16 * (n2 - 7)

    def wd_read(n, dqs=range(4)):
        sl, pos = RING[n]
        e.wait(vm=('wd', n))
        for dq in dqs:
            e.I('ds_read_b64_tr_b16 %s, v%d offset:%d' % (vr(wd_reg(n >> 1) + 4 * dq + 2 * (n & 1), 2), DA + 4 * (sl >> 1) + dq,
                                                         (sl & 1) * SLOT + pos * 2048), tag=('wr', n))

    def setup2():
        e.I('v_lshrrev_b32 v20, 2, v0\nv_lshlrev_b32 v20, 7, v20\nv_bfe_u32 v21, v0, 3, 2\nv_lshl_add_u32 v20, v21, 5, v20')
        e.I('v_and_b32 v21, 3, v0\nv_lshl_add_u32 v20, v21, 3, v20\nv_add_u32 v%d, s%d, v20' % (DA, sMW))
        for dq in range(1, 4):
            e.I('v_xor_b32 v%d, %d, v%d' % (DA + dq, 32 * dq, DA))
        for k in (1, 2):
            for dq in range(4):
                e.I('v_add_u32 v%d, %d, v%d' % (DA + 4 * k + dq, k * WIN, DA + dq))
        e.I('s_mul_i32 s%d, s%d, %d' % (T0, sRT, 2 * 88064))
        e.I('v_add_u32 v%d, s%d, v1\nv_add_u32 v%d, 88064, v%d' % (AV, T0, AV + 1, AV))
        e.I('s_mul_i32 s%d, s%d, 44\ns_mul_i32 s%d, s%d, 11\ns_add_u32 s%d, s%d, s%d\ns_mul_i32 s%d, s%d, %d\ns_add_u32 s%d, s%d, 0x%x' %
            (T0, sRT, T1, sW, T0, T0, T1, T0, T0, 2 * FS, T0, T0, AF_OFF))
        e.I('v_mul_u32_u24 v20, %d, v0' % FS)
        e.I('s_mov_b32 s%d, 0x3fffff\ns_cmp_eq_u32 s%d, 3\ns_cselect_b32 s%d, 0xfffff, s%d\ns_mov_b32 s%d, 0' % (sMA, sW, sMA, sMA, sMA + 1))

    for n in range(NPRE, 11):
        for k in range(3):
            if cfg.flagpos[k] + NPRE == n:
                if k == 2:
                    setup2()
                act_flag(k)
                if k == 2:
                    st(e, 'flagged')
        if n < 10:
            dma_D(n)
    st(e, '_d9')
    cnt_spin(e, 'L_spinB2', 22, 24, C_DONEA)
    st(e, '_da')
    jitter(e, cfg, 3)
    pulled = [0]

    def d_step(n):
        dma_D(n)
        while pulled[0] < min(14, 3 * (n - 9), n - 3):
            wd_read(pulled[0])
            pulled[0] += 1
        if n == 14:
            e.wait(lg=('wr', 9))
            set_m0(e, sMW, L_P2)
            e.I('s_mov_b64 exec, 1')
            e.I('buffer_load_dword off, %s, s%d lds' % (srd(SWD), SWD + 2), tag='init')
            e.I('s_mov_b64 exec, -1')
        if n == -cfg.posXB:
            bar_X()

    def bar_X():
        assert pulled[0] >= 12
        e.wait(vm='init', lg=('wr', 11))
        st(e, '_aX')
        e.I('s_barrier')

    for n in range(10, cfg.alook):
        d_step(n)
    st(e, 'wdiss')
    nd = cfg.alook + cfg.abet
    poll(e, 'L_pollA', 21, 20, T0, 's[%d:%d]' % (sMA, sMA + 1), lambda: [d_step(n) for n in range(cfg.alook, nd)])
    st(e, 'actrdy')
    jitter(e, cfg, 4)
    if cfg.prioF2:
        e.I('s_setprio %d' % cfg.prioF2)

    TL = cfg.TL
    sSV = 92
    NM = 11 - TL

    order = [(n2, t4) for n2 in range(NM) for t4 in range(4)] + [(n2, t4) for t4 in range(4) for n2 in range(NM, 11)]

    def a_reg(n2, t4):
        return 208 + 4 * (order.index((n2, t4)) % 12)

    pend = []
    rq = []

    def flush(n=99):
        for t in pend[:n]:
            e.I(t)
        del pend[:n]

    def a_load(n2, t4):
        if t4 == 0:
            flush()
        so = sAC if n2 < NM else sSV + n2 - NM
        e.I('buffer_load_dwordx4 %s, v%d, %s, s%d offen offset:%d sc1' % (vr(a_reg(n2, t4), 4), AV + (t4 >> 1), srd(SWS), so, 1024 * (t4 & 1)),
            tag=('a', n2, t4))
        if n2 < 10 and t4 == (3 if n2 < NM else 0):
            dst = sAC if n2 + 1 < NM else sSV + n2 + 1 - NM
            pend.append('s_add_u32 s%d, s%d, 2048' % (dst, so))
            pend.append('s_cmp_eq_u32 s%d, s%d\ns_cselect_b32 s%d, s%d, s%d' % (dst, sAE, dst, sAB, dst))
            if n2 == 9:
                pend.append('s_cmp_eq_u32 s%d, 3\ns_cselect_b32 s%d, 0x%x, s%d' % (sW, dst, OOB, dst))

    lq = []
    for k, t in enumerate(order):
        lq.append(('a', k))
        if k & 1 and nd < 22:
            lq.append(('d', nd))
            nd += 1
    dn = [cfg.alook + cfg.abet - 1]
    nis = [0]

    def issue(k, busy):
        while lq:
            t = lq[0]
            tag = ('a',) + order[k]
            nv = min(cfg.NV, cfg.NV0[0] + max(0, k - cfg.NV0[1]))
            if nis[0] > k and (len(e.vm) - 1 - e.vm.index(tag) >= nv - 1 if tag in e.vm else len(e.vm) >= nv):
                return
            if t[0] == 'a':
                if t[1] >= busy + 12:
                    return
                a_load(*order[t[1]])
                nis[0] = t[1] + 1
            else:
                d_step(t[1])
                dn[0] = t[1]
            lq.pop(0)

    wq = []
    zq = [list(g) for g in cfg.zg]
    since = [0]

    def w_pop():
        t = wq.pop(0)
        if t is not None:
            t4, i = t
            assert not rq
            hi = 32768 if t4 == 3 else 0
            set_m0(e, sMW, hi)
            e.I('ds_write_addtid_b32 v%d offset:%d' % (acc2(t4, 0) + i, t4 * SLOT - hi + 256 * i), tag=('pw', t4))
            if i == 15 and t4 == zq[0][-1]:
                since[0] = cfg.zlag + 1
        if since[0]:
            since[0] -= 1
            if since[0] == 0:
                z_bar()

    def z_bar():
        e.wait(lg=('pw', zq.pop(0)[-1]))
        e.I('s_barrier')

    def mm2(k):
        n2, t4 = order[k]
        if k == 0:
            issue(k, k)
        while rq and rq[0][0] >> 1 <= (order[k + 2][0] if k + 2 < 4 * NM + TL else 99):
            t = rq.pop(0)
            wd_read(t[0], [t[1]])
        e.wait(vm=('a', n2, t4), lg=('wr', 2 * n2 + 1))
        for dq in range(4):
            d = 3 - dq if cfg.snake and n2 < NM and t4 & 1 else dq
            mfma16(e, acc2(t4, d), a_reg(n2, t4), wd_reg(n2) + 4 * d, n2 == 0)
            if dq == 0 and lq:
                issue(k + 1, k)
            elif pend and dq < 3:
                flush(1)
            elif rq and dq < 3:
                t = rq.pop(0)
                wd_read(t[0], [t[1]])
            elif wq:
                w_pop()
        if n2 == 10:
            if t4 == 0:
                wq.extend([None, None])
            wq.extend((t4, i) for i in range(16))

    for n2 in range(NM):
        st(e, '_n%d' % n2)
        while pulled[0] <= min(2 * n2 + 5, 13):
            assert dn[0] >= pulled[0]
            wd_read(pulled[0])
            pulled[0] += 1
        if n2 == cfg.posXB:
            bar_X()
        for t4 in range(4):
            mm2(4 * n2 + t4)
        if cfg.pull0 <= n2 < cfg.pull0 + 4:
            m2 = n2 - cfg.pull0 + 7
            assert dn[0] >= 2 * m2 + 1
            rq.extend((2 * m2 + hf, dq) for hf in range(2) for dq in range(4))
    assert cfg.pull0 + 4 <= NM
    for k in range(4 * NM, 44):
        mm2(k)
    if cfg.prioF2:
        e.I('s_setprio 0')
    st(e, 'f2end')
    jitter(e, cfg, 5)
    while wq:
        w_pop()
    while zq:
        z_bar()
    st(e, 'end')
    st.flush(e)
    e.I('s_endpgm')


def gen_A(e, cfg, st):
    LR, LI, L16, L128, L256, L16S, KAP, WV = 48, 49, 50, 52, 54, 56, 58, 60
    PP = 32
    SIDX = 3
    RE, IM = 64, 80
    XA, BA = 192, 204
    CV, CA, CA4, WDV = 96, 100, 104, 108
    EV0, EV1, EOOB, ERD, ECNT, EEXP, ONE, FLA, XW, XR, P16 = range(110, 121)
    SEL = 216
    RING0 = 144
    sHD, sHF, sES, sEL, sROT, sDTX = 86, 87, 90, 91, 92, 80
    sDC, sDB, sDE = 93, 94, 95
    if cfg.ksplit:
        e.I(KARG2)
    e.I('v_lshlrev_b32 v1, 4, v0')
    e.I('v_and_b32 v21, 0x13, v0\nv_bfe_u32 v22, v0, 2, 1\nv_lshl_add_u32 v21, v22, 3, v21\nv_bfe_u32 v22, v0, 3, 1\nv_lshl_add_u32 v21, v22, 2, v21')
    e.I('s_lshl_b32 s%d, s%d, 6' % (T0, sCB))
    e.I('v_lshl_add_u32 v21, v21, 1, s%d' % T0)
    e.I('s_lshl_b32 s%d, s%d, 2\ns_add_u32 s%d, s%d, s%d\ns_lshl_b32 s%d, s%d, 4\ns_add_u32 s%d, s%d, s%d' %
        (T3, sRB, T3, T3, sW, T3, T3, T3, T3, sCB))
    e.I('s_lshl_b32 s%d, s%d, 11' % (T2, T3))
    frag_addr(e, BA, 4, 5)
    e.wait_smem()
    st(e, '_karg')
    mk_srd(e, SX, P_X, 2048 * 1024)
    mk_srd(e, SWS, P_WS, WS_SIZE)
    e.I('s_mov_b32 s%d, 0x%x\ns_lshl_b32 s%d, s%d, 6' % (T4, EPOCH_OFF, T0, sCB))
    e.I('s_load_dword s3, s[%d:%d], s%d' % (P_WS, P_WS + 1, T4))
    for p in (P_LRE, P_LIM, P_LDT):
        e.I('s_load_dword s3, s[%d:%d], s%d' % (p, p + 1, T0))
    e.I('s_lshr_b32 s%d, s2, 3\ns_lshl_b32 s%d, s%d, 2\ns_add_u32 s%d, s%d, s%d\ns_and_b32 s%d, s%d, 15\ns_lshl_b32 s%d, s%d, 6' %
        (T0, T0, T0, T0, T0, sW, T0, T0, T0, T0))
    for p in (P_GW, P_DSK):
        e.I('s_load_dword s3, s[%d:%d], s%d' % (p, p + 1, T0))
    if cfg.prewarm:
        code_touch(e, 'A')

    def small0():
        e.I('buffer_load_dword v19, off, %s, s%d sc1' % (srd(SWS), T4), tag='ep')
        e.I('global_load_ushort v16, v21, s[%d:%d]' % (P_LRE, P_LRE + 1), tag='par')
        e.I('global_load_ushort v17, v21, s[%d:%d]' % (P_LIM, P_LIM + 1), tag='par')
        e.I('global_load_ushort v18, v21, s[%d:%d]' % (P_LDT, P_LDT + 1), tag='par')

    small1 = [lambda: e.I('global_load_dwordx4 v[44:47], v1, s[%d:%d]' % (P_GW, P_GW + 1), tag='g'),
              lambda: e.I('buffer_load_dwordx4 v[36:39], v1, %s, s%d offen' % (srd(SX), T2), tag='g'),
              lambda: e.I('buffer_load_dwordx4 v[40:43], v1, %s, s%d offen offset:1024' % (srd(SX), T2), tag='g')]
    e.I('s_lshl_b32 s%d, s%d, 3\ns_add_u32 s%d, s%d, 0x%x' % (T6, T3, T6, T6, G_OFF))

    e.I('s_lshl_b32 s%d, s%d, 12' % (T0, sW))
    for s in range(4):
        e.I('v_add_u32 v%d, s%d, v%d' % (XA + s, T0, BA + s))
        e.I('v_add_u32 v%d, %d, v%d' % (XA + 4 + s, WIN, XA + s))
        e.I('v_add_u32 v%d, %d, v%d' % (BA + 4 + s, WIN, BA + s))
        if cfg.lag:
            e.I('v_add_u32 v%d, %d, v%d\nv_add_u32 v%d, %d, v%d' % (XA + 8 + s, 2 * WIN, XA + s, BA + 8 + s, 2 * WIN, BA + s))
    w_lane_offsets(e, cfg, WV, 24, 25)
    e.I('v_lshrrev_b32 v24, 5, v0\ns_lshl_b32 s%d, s%d, 1' % (T0, sW))
    e.I('v_add_u32 v%d, s%d, v24' % (SIDX, T0))
    rot2_calc(e, cfg, sROT, 0)
    if cfg.rotS:
        e.I('s_and_b32 s%d, s%d, %d\ns_lshl_b32 s%d, s%d, %d\ns_xor_b32 s%d, s%d, s%d' % (T0, sCT, cfg.rotS[0], T0, T0, cfg.rotS[1], sROT, sROT, T0))
    e.I('s_and_b32 s%d, s%d, 1\ns_lshr_b32 s%d, s%d, 1' % (sDTX, sROT, sROT, sROT))
    e.I('s_bitcmp1_b32 s%d, 0' % sROT)
    mk_srd_sel(e, SC1, P_CIM, P_CRE, 512 * 1024)
    mk_srd_sel(e, SC2, P_CRE, P_CIM, 512 * 1024)
    mk_srd(e, SWD, P_WD, 1376 * 1024)
    step_start(e, cfg, sDC, sDB, sDE, 15)
    e.I('s_cmp_ge_u32 s%d, 2' % sW)
    mk_srd_sel(e, SWA, P_WU, P_WG, 512 * 2752)
    e.I('s_lshl_b32 s%d, s%d, 2\ns_add_u32 s%d, s%d, s%d' % (T0, sRB, T0, T0, sW))
    HW_ = 16384 + cfg.hpad[0]
    HT_ = 4 * HW_ + cfg.hpad[1]
    assert H_OFF + 64 * HT_ <= E_OFF
    e.I('s_mul_i32 s%d, s%d, %d\ns_lshr_b32 s%d, s%d, 1\ns_lshl_b32 s%d, s%d, 13\ns_add_u32 s%d, s%d, s%d' %
        (sHD, T0, HT_, T1, sCB, T1, T1, sHD, sHD, T1))
    e.I('s_lshr_b32 s%d, s%d, 2\ns_mul_i32 s%d, s%d, %d\ns_add_u32 s%d, s%d, s%d' % (T1, sCB, T1, T1, cfg.hpad[0], sHD, sHD, T1))
    e.I('s_and_b32 s%d, s%d, 1\ns_lshl_b32 s%d, s%d, 11\ns_add_u32 s%d, s%d, s%d\ns_add_u32 s%d, s%d, 0x%x' %
        (T1, sCB, T1, T1, sHD, sHD, T1, sHD, sHD, H_OFF))
    e.I('s_lshr_b32 s%d, s%d, 1\ns_lshl_b32 s%d, s%d, 4\ns_add_u32 s%d, s%d, s%d\ns_lshl_b32 s%d, s%d, 1' %
        (T1, T0, T1, T1, T1, T1, sCB, T1, T1))
    e.I('s_and_b32 s%d, s%d, 1\ns_add_u32 s%d, s%d, s%d\ns_mul_i32 s%d, s%d, %d\ns_add_u32 s%d, s%d, 0x%x' %
        (T0, T0, T1, T1, T0, T1, T1, FS, sHF, T1, HF_OFF))
    e.I('s_lshl_b32 s%d, s%d, 13\ns_add_u32 s%d, s%d, 0x%x' % (sEL, sCB, sEL, sEL, E_OFF))
    e.I('s_lshl_b32 s%d, s%d, 9\ns_add_u32 s%d, s%d, s%d\ns_cmp_eq_u32 s%d, 0\ns_cselect_b32 s%d, s%d, 0x%x' %
        (sES, sRB, sES, sES, sEL, sW, sES, sES, OOB))
    e.I('s_sub_u32 s%d, s%d, 1024' % (sEL, sEL))

    tch = Touch(e, cfg, 'A')
    tch.setup()
    tch.at(-1)

    e.I('s_lshl_b32 s%d, s%d, 9\ns_add_u32 s%d, s%d, %d' % (T0, sW, T0, T0, L_E))
    e.I('v_lshl_add_u32 v%d, v0, 3, s%d' % (XW, T0))
    e.I('v_and_b32 v6, 31, v0\nv_lshlrev_b32 v%d, 4, v6\nv_lshlrev_b32 v6, 3, v6\nv_add_u32 v%d, %d, v6' % (P16, XR, L_E))
    e.I('v_and_b32 v4, 3, v0\nv_bfe_u32 v5, v0, 3, 2\nv_lshl_add_u32 v4, v5, 2, v4')
    e.I('v_bfe_u32 v5, v0, 2, 1\nv_lshrrev_b32 v6, 5, v0\nv_xor_b32 v5, v5, v6\nv_lshl_add_u32 v4, v5, 4, v4')
    e.I('v_and_b32 v5, 1, v0\nv_lshlrev_b32 v5, 4, v5\nv_mov_b32 v6, 0x3f80\nv_lshlrev_b32 v5, v5, v6\nv_lshrrev_b32 v4, 1, v4')
    for n in range(8):
        e.I('v_cmp_eq_u32 vcc, %d, v4\nv_cndmask_b32 v%d, 0, v5, vcc' % (n, SEL + n))
    e.I('v_and_b32 v6, 7, v0\nv_lshrrev_b32 v7, 4, v0\nv_xor_b32 v6, v6, v7\nv_lshlrev_b32 v6, 4, v6')
    e.I('v_lshrrev_b32 v7, 3, v0\nv_lshl_add_u32 v6, v7, 10, v6')
    e.I('s_lshl_b32 s%d, s%d, 16\ns_lshl_b32 s%d, s%d, 8\ns_add_u32 s%d, s%d, s%d' % (T0, sCT, T1, sW, T0, T0, T1))
    e.I('v_add_u32 v%d, s%d, v6\nv_xor_b32 v7, 64, v%d' % (CV, T0, CV))
    e.I('v_add_u32 v%d, 7168, v7\nv_add_u32 v%d, 14336, v%d\nv_add_u32 v%d, 21504, v7' % (CV + 1, CV + 2, CV, CV + 3))
    frag16_addr(e, CA, 6, 7)
    for s in range(2):
        e.I('v_add_u32 v%d, s%d, v%d' % (CA + s, sMW, CA + s))
        e.I('v_add_u32 v%d, %d, v%d' % (CA4 + s, 4 * SLOT, CA + s))
    HS = CA + 2
    e.I('v_and_b32 v6, 15, v0\nv_lshlrev_b32 v6, 4, v6\nv_bfe_u32 v7, v0, 4, 1\nv_lshl_add_u32 v6, v7, 10, v6')
    e.I('v_lshrrev_b32 v7, 5, v0\nv_lshl_add_u32 v%d, v7, 8, v6' % HS)
    e.I('s_lshr_b32 s88, s%d, 1\ns_lshl_b32 s88, s88, 7\ns_lshl_b32 s89, s%d, 15\ns_add_u32 s88, s88, s89\ns_xor_b32 s89, s88, 128' % (sROT, sDTX))
    e.I(wd_lane_offsets(e, WDV, 6, 7))
    e.I('s_lshl_b32 s%d, s%d, 2\ns_sub_u32 s%d, s%d, s%d\ns_sub_u32 s%d, s%d, 1\ns_lshl_b32 s%d, s%d, 11' % (T0, sW, T0, sRB, T0, T0, T0, T5, sW))
    e.I('v_lshrrev_b32 v6, 5, v0\nv_sub_u32 v7, s%d, v6' % T0)
    e.I('v_cmp_le_i32 vcc, 0, v7\nv_cmp_le_i32 s[%d:%d], 2, v7' % (sMB, sMB + 1))
    e.I('v_lshl_add_u32 v7, v7, 9, v%d\nv_add_u32 v7, 1024, v7\nv_subrev_u32 v5, 2048, v7\nv_mov_b32 v%d, 0x%x' % (P16, EOOB, OOB))
    e.I('v_cndmask_b32 v%d, v%d, v7, vcc\nv_cndmask_b32 v%d, v%d, v5, s[%d:%d]' % (EV0, EOOB, EV1, EOOB, sMB, sMB + 1))
    e.I('v_lshl_add_u32 v7, v6, 12, v%d\nv_add_u32 v%d, %d, v7' % (P16, ERD, L_EG))
    e.I('v_lshlrev_b32 v6, 3, v6\nv_sub_u32 v%d, s%d, v6\nv_med3_i32 v%d, v%d, 0, 8' % (ECNT, sRB, EEXP, ECNT))
    e.I('v_mov_b32 v%d, 1\nv_mov_b32 v%d, %d' % (ONE, FLA, L_FL))

    pro = []
    add = lambda t: [pro.append(lambda x=x: e.I(x)) for x in t.split('\n')]

    def csq(d, a):
        add('v_mul_f32 v30, v%d, v%d\nv_mul_f32 v31, v%d, v%d\nv_fma_f32 v%d, -v%d, v%d, v30\nv_add_f32 v%d, v31, v31' %
            (a, a, a, a + 1, d, a + 1, a + 1, d + 1))

    def cmul(d, a, b):
        add('v_mul_f32 v30, v%d, v%d\nv_mul_f32 v31, v%d, v%d\nv_fma_f32 v30, -v%d, v%d, v30\nv_fma_f32 v%d, v%d, v%d, v31\nv_mov_b32 v%d, v30' %
            (a, b, a, b + 1, a + 1, b + 1, d + 1, a + 1, b, d))

    pro.append(lambda: e.wait(vm=['ep', 'par']))
    add('v_readfirstlane_b32 s%d, v19' % sNONCE)
    add('v_lshlrev_b32 v16, 16, v16\nv_lshlrev_b32 v17, 16, v17\nv_lshlrev_b32 v18, 16, v18')
    add('s_add_u32 s%d, s%d, 0x%x\ns_or_b32 s%d, s%d, 1' % (sNONCE, sNONCE, PHI, sNONCE, sNONCE))
    add('v_mul_f32 v18, 0x%x, v18\nv_exp_f32 v18, v18\nv_cvt_pk_bf16_f32 v18, v18, v18\nv_lshlrev_b32 v18, 16, v18' % LOG2E)
    add('v_mul_f32 v21, v18, v16\nv_mul_f32 v22, v18, v17')
    add('v_mul_f32 v21, 0x%x, v21\nv_exp_f32 v21, v21' % LOG2E)
    add('v_mul_f32 v22, 0.15915494, v22\nv_rndne_f32 v23, v22\nv_sub_f32 v22, v22, v23\nv_sin_f32 v23, v22\nv_cos_f32 v22, v22')
    add('v_mul_f32 v%d, v21, v23\nv_mul_f32 v%d, v21, v22' % (LI, LR))
    add('v_mul_f32 v21, v16, v16\nv_fmac_f32 v21, v17, v17\nv_rcp_f32 v21, v21\nv_add_f32 v22, -1.0, v%d\nv_add_f32 v21, v21, v21' % LR)
    add('v_mul_f32 v23, v22, v16\nv_fmac_f32 v23, v%d, v17\nv_mul_f32 v%d, v23, v21' % (LI, KAP))
    add('v_mul_f32 v23, v%d, v16\nv_fma_f32 v23, -v22, v17, v23\nv_mul_f32 v%d, v23, v21' % (LI, KAP + 1))
    csq(22, LR); csq(22, 22); csq(22, 22); csq(L16, 22)
    csq(22, L16); csq(24, 22); csq(L128, 24); csq(L256, L128); csq(L256, L256); csq(L256, L256)
    for bit, src, dst in ((1, L16, L16S), (2, 22, 22), (4, 24, 24)):
        add('v_and_b32 v26, %d, v%d\nv_cmp_ne_u32 vcc, 0, v26' % (bit, SIDX))
        add('v_cndmask_b32 v%d, 1.0, v%d, vcc\nv_cndmask_b32 v%d, 0, v%d, vcc' % (dst, src, dst + 1, src + 1))
    cmul(L16S, L16S, 22); cmul(L16S, L16S, 24)
    add('v_mul_lo_u32 v%d, v%d, s%d\nv_mov_b32 v2, s%d' % (EEXP, EEXP, sNONCE, sNONCE))

    par, pro = pro, []
    pro.append(lambda: e.wait(vm='g'))
    for k in range(4):
        add('v_lshlrev_b32 v24, 16, v%d\nv_and_b32 v25, 0xffff0000, v%d' % (44 + k, 44 + k))
        for row in range(2):
            x = 36 + 4 * row + k
            add('v_lshlrev_b32 v26, 16, v%d\nv_and_b32 v27, 0xffff0000, v%d' % (x, x))
            add('v_mul_f32 v26, v26, v24\nv_mul_f32 v27, v27, v25\nv_cvt_pk_bf16_f32 v26, v26, v27')
            add('v_lshlrev_b32 v27, 16, v26\nv_and_b32 v26, 0xffff0000, v26')
            if k == 0:
                add('v_add_f32 v%d, v26, v27' % (28 + row))
            else:
                add('v_add_f32 v26, v26, v27\nv_add_f32 v%d, v%d, v26' % (28 + row, 28 + row))
    for mod in ('row_shr:1 row_mask:0xf', 'row_shr:2 row_mask:0xf', 'row_shr:4 row_mask:0xf', 'row_shr:8 row_mask:0xf',
                'row_bcast:15 row_mask:0xa', 'row_bcast:31 row_mask:0xc'):
        for row in range(2):
            add('v_add_f32_dpp v%d, v%d, v%d %s bank_mask:0xf' % (28 + row, 28 + row, 28 + row, mod))
    add('v_cvt_pk_bf16_f32 v26, v28, v29\nv_lshlrev_b32 v28, 16, v26\nv_and_b32 v29, 0xffff0000, v26')
    add('v_mul_f32 v28, 0x%x, v28\nv_mul_f32 v29, 0x%x, v29\nv_exp_f32 v28, v28\nv_exp_f32 v29, v29' % (NLOG2E, NLOG2E))
    add('v_add_f32 v28, 1.0, v28\nv_add_f32 v29, 1.0, v29\nv_rcp_f32 v28, v28\nv_rcp_f32 v29, v29')
    add('v_cvt_pk_bf16_f32 v26, v28, v29\nv_lshlrev_b32 v28, 16, v26\nv_and_b32 v29, 0xffff0000, v26')
    gate, pro = pro, par

    gdone = []

    def g_store():
        gdone.append(1)
        e.I('s_mov_b32 exec_lo, 0\ns_mov_b32 exec_hi, 0x80000000')
        e.I('buffer_store_dwordx2 v[28:29], off, %s, s%d sc1' % (srd(SWS), T6), tag='gs')
        e.I('s_mov_b64 exec, -1')

    nbar = [0]

    def s_bar(i):
        assert nbar[0] == i
        nbar[0] += 1
        e.I('s_barrier')
        if i in (0, 7):
            st(e, 'b%d' % i)

    def s_read(n):
        i, s = n >> 2, n & 3
        slot = s_slot(i)
        if s == 0 and not cfg.lag:
            s_bar(i)
        assert nbar[0] > i
        off = (slot & 1) * SLOT
        b = RING0 + 12 * (n & 3)
        e.I('ds_read_b128 %s, v%d offset:%d' % (vr(b + 8, 4), XA + 4 * (slot >> 1) + s, off), tag=('s', n, 0))
        for part in range(2):
            e.I('ds_read_b128 %s, v%d offset:%d' % (vr(b + 4 * part, 4), BA + 4 * (slot >> 1) + s,
                                                    off + 16384 + part * 4096), tag=('s', n, part))

    def s_mm(n, part):
        e.wait(lg=('s', n, part))
        b = RING0 + 12 * (n & 3)
        mfma(e, RE + 16 * part, b + 8, b + 4 * part, n == 0)

    D = 2
    seq = []
    for n in range(32):
        seq.append(lambda n=n: (s_mm(n, 0), s_read(n + D) if n + D < 32 else None))
        seq.append(lambda n=n: s_mm(n, 1))
    st(e, '_pro')
    if cfg.lag:
        L = cfg.lag
        npar = len(pro) // max(L - 1, 1) + 1
        for i in range(L):
            s_bar(i)
            tch.at(10 + i)
            if i == 0:
                small0()
            if i >= 1:
                run(pro[(i - 1) * npar:i * npar])
        s_bar(L)
        for n in range(D):
            s_read(n)
        r2 = 2 * cfg.lagr
        for k, it in enumerate(seq):
            it()
            i = L + (k + 1) // r2
            if (k + 1) % r2 == 0 and i <= 7:
                assert (k + 1) // 2 >= 4 * (i - 3)
                s_bar(i)
    else:
        for n in range(D):
            s_read(n)
        p0 = 2 * cfg.smallpos
        run(seq[:p0])
        small0()
        run(seq[p0:p0 + 10])
        run(weave(seq[p0 + 10:56], pro) + seq[56:])
    assert nbar[0] == 8
    st(e, 's1end')
    jitter(e, cfg, 6)
    if cfg.prioA:
        e.I('s_setprio %d' % cfg.prioA)

    def items(txt):
        return [lambda t=t: e.I(t) for t in txt.split('\n')]

    def cfma(d, l, a, c):
        return items('v_fma_f32 v%d, v%d, v%d, v%d\nv_fma_f32 v%d, v%d, v%d, v%d\nv_fma_f32 v%d, -v%d, v%d, v%d\nv_fmac_f32 v%d, v%d, v%d' %
                     (d, l, a, c, d + 1, l, a + 1, c + 1, d, l + 1, a + 1, d, d + 1, l + 1, a))

    prev = (RE, IM)
    for r in range(1, 16):
        cur = (20 + 2 * (r & 1), 21 + 2 * (r & 1))
        e.I('v_fma_f32 v%d, v%d, v%d, v%d' % (cur[0], LR, prev[0], RE + r))
        e.I('v_fma_f32 v%d, v%d, v%d, v%d' % (cur[1], LR, prev[1], IM + r))
        e.I('v_fma_f32 v%d, -v%d, v%d, v%d' % (cur[0], LI, prev[1], cur[0]))
        e.I('v_fmac_f32 v%d, v%d, v%d' % (cur[1], LI, prev[0]))
        prev = cur
    e.I('ds_write_b64 v%d, %s' % (XW, vr(prev[0], 2)), tag='ex')

    def c_reg(u, s2, dq):
        return 128 + 32 * u + 16 * s2 + 4 * dq

    CBUF = cfg.cbuf
    CPREV = {i: max(k for k in range(i) if CBUF[k] == CBUF[i]) for i in range(8) if CBUF[i] in CBUF[:i]}
    cdone = set()
    hdone = []

    def c_read(i):
        if i in cdone:
            return
        cdone.add(i)
        assert i < 4 or hdone
        e.wait(vm=('c', i))
        for s in range(4):
            a_, off = (CA4 + (s >> 1), 0) if CBUF[i] == 4 else (CA + (s >> 1), CBUF[i] * SLOT)
            e.I('ds_read_b128 %s, v%d offset:%d' % (vr(c_reg(i >> 1, s >> 1, 2 * (i & 1) + (s & 1)), 4), a_, off + (s & 1) * 2048), tag=('cr', i))

    def c_loads(i):
        u, dt = i >> 1, i & 1
        its = []
        for q in range(4):
            def f(q=q):
                if q == 0:
                    if i in CPREV:
                        c_read(CPREV[i])
                        e.wait(lg=('cr', CPREV[i]))
                    elif CBUF[i] != 4 and (6 + CBUF[i] > cfg.JL or 4 + CBUF[i] >= 8 - cfg.NT):
                        assert kcur[0] >= cfg.JL
                        cnt_spin(e, 'L_cb%d' % i, FLA, 34, C_CONS + 28)
                    e.I('s_xor_b32 s%d, s%d, %d' % (sTD, 88 + (u >> 1), dt * 32768))
                set_m0(e, sMW, CBUF[i] * SLOT)
                e.I('buffer_load_dwordx4 v%d, %s, s%d offen offset:%d %slds' % ((CV + q, srd(SC2 if u & 1 else SC1), sTD, 1024 * q) + (ntf('c', i),)), tag=('c', i))
                if q == 3:
                    st(e, '_c%d' % i)
                if q == 3 and i >= 2:
                    c_read(i - 2)
            its.append(f)
        return its

    def d_loads(n):
        sl, pos = RING[n]
        its = []
        for q in range(2):
            def f(q=q):
                set_m0(e, sMW, sl * SLOT + pos * 2048)
                if q == 0 and n:
                    wd_next(e, n, sDC, sDB, sDE)
                e.I('buffer_load_dwordx4 v%d, %s, s%d offen offset:%d %slds' % ((WDV + q, srd(SWD), sDC, 1024 * q) + (ntf('d', n),)), tag='wd')
            its.append(f)
        return its

    wl = {j: dma_W(e, WV, SWA, j) for j in range(2, 8)}
    planned = set()

    def e_loads():
        its = []
        for q in range(2):
            def f(q=q):
                set_m0(e, T5, L_EG)
                e.I('buffer_load_dwordx4 v%d, %s, s%d offen offset:%d sc1 lds' % (EV0 + q, srd(SWS), sEL, 1024 * q), tag='eg')
            its.append(f)
        return its

    def expand(toks, k):
        r = []
        for t in toks.split(','):
            if not t:
                continue
            n = int(t[1])
            planned.add(t)
            if t[0] == 'W':
                assert n < 4 or k >= n - 2 or (k == n - 3 and k in cfg.drain)
                r += wl[n][:3] if t[2:] == 'a' else wl[n][3:] if t[2:] == 'b' else wl[n]
            elif t[0] == 'C':
                assert CBUF[n] == 4 or k >= min(6 + CBUF[n], cfg.JL)
                assert k >= 2 or cfg.w0pos is None
                r += c_loads(n)
            elif t[0] == 'D':
                r += d_loads(n)
            elif t[0] == 'S':
                r.append(lambda n=n: (hq[n](), hsent.add(n)))
            elif t[0] == 'G':
                r += small1
            elif t[0] == 'E':
                r += e_loads()
            elif t[0] == 'T':
                r.append(lambda n=n: tch.at(n))
        return r

    def bar(k, extra=()):
        kk = 7 if k == cfg.JL else k
        assert kk < 2 or 'W%d' % kk in planned or 'W%db' % kk in planned or (kk == 2 and cfg.w0pos is not None)
        e.wait(vm=[('st', 8 + kk)] + list(extra))
        st(e, '_a%d' % k)
        e.I('s_barrier')
        st(e, '_d%d' % k)

    sc = []
    for r in range(16):
        sc += items('v_mul_f32 v4, v%d, v%d\nv_mul_f32 v5, v%d, v%d\nv_fma_f32 v%d, v%d, v%d, -v4\nv_fma_f32 v%d, v%d, v%d, v5' %
                    (KAP + 1, IM + r, KAP + 1, RE + r, RE + r, KAP, RE + r, IM + r, KAP, IM + r))
    if cfg.pksc:
        kp = vr(KAP, 2)
        for r in range(0, 16, 4):
            for o in (0, 2):
                e.I('v_pk_mul_f32 %s, %s, %s op_sel:[1,0] op_sel_hi:[1,1]' % (vr(4 + 2 * o, 2), kp, vr(IM + r + o, 2)))
                e.I('v_pk_mul_f32 %s, %s, %s op_sel:[1,0] op_sel_hi:[1,1]' % (vr(6 + 2 * o, 2), kp, vr(RE + r + o, 2)))
            for o in (0, 2):
                e.I('v_pk_fma_f32 %s, %s, %s, %s op_sel_hi:[0,1,1] neg_lo:[0,0,1] neg_hi:[0,0,1]' % (vr(RE + r + o, 2), kp, vr(RE + r + o, 2), vr(4 + 2 * o, 2)))
                e.I('v_pk_fma_f32 %s, %s, %s, %s op_sel_hi:[0,1,1]' % (vr(IM + r + o, 2), kp, vr(IM + r + o, 2), vr(6 + 2 * o, 2)))
        late = []
    else:
        run(sc[:cfg.early])
        late = sc[cfg.early:]
    e.wait(lg='all')
    bar(0)
    work = []
    for s in range(8):
        e.I('ds_read_b64 %s, v%d offset:%d' % (vr(4 + 2 * s, 2), XR, 256 * s), tag=('e', s))
    pf = []
    for s in range(1, 8):
        pf.append(lambda s=s: e.wait(lg=('e', s)))
        pf += cfma(4 + 2 * s, L16, 2 + 2 * s, 4 + 2 * s)
    segs = [sg.split('|') for sg in cfg.prog.split(';')]
    q0 = expand(segs[0][0], 0)
    run(weave(q0[:cfg.pren], pf))
    e.I('v_mov_b32 v20, s%d\nv_mov_b32 v21, s%d' % (sNONCE, sNONCE))
    e.I('s_mov_b32 exec_hi, 0')
    e.I('buffer_store_dwordx4 v[18:21], v%d, %s, s%d offen sc1' % (P16, srd(SWS), sES), tag='es')
    e.I('s_mov_b32 exec_hi, -1')
    st(e, 'epub')
    jitter(e, cfg, 7)
    run(q0[cfg.pren:])
    gate.append(g_store)
    sel = items('v_mov_b32 v%d, 0\nv_mov_b32 v%d, 0' % (PP, PP + 1))
    for s in range(1, 8):
        sel.append(lambda s=s: e.I('v_cmp_eq_u32 vcc, %d, v%d\nv_cndmask_b32 v%d, v%d, v%d, vcc\nv_cndmask_b32 v%d, v%d, v%d, vcc' %
                                   (s, SIDX, PP, PP, 2 + 2 * s, PP + 1, PP + 1, 3 + 2 * s)))
    EG = 224

    def e_check():
        e.I('v_add3_u32 v4, v%d, v%d, v%d\nv_add3_u32 v5, v%d, v%d, v%d' % tuple(EG + 4 * k + 2 for k in range(6)))
        e.I('v_add3_u32 v4, v4, v%d, v%d\nv_add_u32 v4, v4, v5' % (EG + 26, EG + 30))
        e.I('v_cmp_ne_u32 vcc, v4, v%d' % EEXP)

    def e_verify():
        e.wait(lg='eg')
        e_check()
        e.I('s_cbranch_vccnz L_pollE')
        e.label('L_pollE_out')
        st(e, 'egot')
        with e.cold_block():
            e.label('L_pollE')
            e.I('s_mov_b32 s%d, 0' % sCNT)
            e.label('L_pollE_l')
            for k in range(8):
                e.I('v_subrev_u32 v4, %d, v%d\nv_cmp_le_i32 vcc, 2, v4\nv_lshl_add_u32 v4, v4, 9, v%d\nv_cndmask_b32 v4, v%d, v4, vcc' % (k - 1, ECNT, P16, EOOB))
                e.I('buffer_load_dwordx4 %s, v4, %s, s%d offen sc1' % (vr(EG + 4 * k, 4), srd(SWS), sEL))
            e.I('s_add_u32 s%d, s%d, 1' % (sCNT, sCNT))
            e.I('s_cmp_gt_u32 s%d, %d' % (sCNT, SPIN_MAX))
            e.wait(vm='all')
            e.I('s_cbranch_scc1 L_pollE_out')
            e_check()
            e.I('s_cbranch_vccnz L_pollE_l')
            e.I('s_branch L_pollE_out')

    def second_pass():
        p2 = []
        p2.append(lambda: [e.I('ds_read_b128 %s, v%d offset:%d' % (vr(EG + 4 * k, 4), ERD, 512 * k), tag='eg') for k in range(8)])
        p2.append(e_verify)
        for k in range(6, -1, -1):
            p2 += cfma(EG + 4 * k, L128, EG + 4 * k + 4, EG + 4 * k)
        p2 += items('v_mov_b32 v4, v%d\nv_mov_b32 v5, v%d\nv_permlane32_swap_b32 v4, v%d\nv_permlane32_swap_b32 v5, v%d' % (EG, EG + 1, EG, EG + 1))
        p2 += cfma(4, L256, EG, 4)
        p2 += cfma(PP, L16S, 4, PP)
        p2 += items('v_mul_f32 v6, v%d, v%d\nv_mul_f32 v7, v%d, v%d' % (KAP, PP, KAP, PP + 1))
        p2 += items('v_fma_f32 v6, -v%d, v%d, v6\nv_fmac_f32 v7, v%d, v%d' % (KAP + 1, PP + 1, KAP + 1, PP))
        prev = (6, 7)
        for r in range(16):
            p2 += items('v_fmac_f32 v%d, v%d, v%d\nv_fmac_f32 v%d, v%d, v%d\nv_fma_f32 v%d, -v%d, v%d, v%d\nv_fmac_f32 v%d, v%d, v%d' %
                        (RE + r, LR, prev[0], IM + r, LR, prev[1], RE + r, LI, prev[1], RE + r, IM + r, LI, prev[0]))
            prev = (RE + r, IM + r)
        return p2

    def store_h(loads):
        for part in range(2):
            for k in range(8):
                sg_ = '-' if part else ''
                e.I('v_cvt_pk_bf16_f32 v%d, %sv%d, %sv%d' % (8 + 8 * part + k, sg_, RE + 16 * part + 2 * k, sg_, RE + 16 * part + 2 * k + 1))
            for m in range(2):
                mfma(e, RE + 16 * part, 8 + 8 * part + 4 * m, SEL + 4 * m, m == 0)
        hdone.append(1)
        run(loads)
        e.I('s_add_u32 s%d, s%d, 4096' % (T0, sHD))
        for part in range(2):
            for m in range(2):
                o = 8 + 8 * part + 4 * m
                for k in range(4):
                    e.I('v_cvt_pk_bf16_f32 v%d, v%d, v%d' % (o + k, RE + 16 * part + 8 * m + 2 * k, RE + 16 * part + 8 * m + 2 * k + 1))
                hq.append(lambda o=o, part=part, m=m: e.I('buffer_store_dwordx4 %s, v%d, %s, s%d offen offset:%d sc1' %
                                                         (vr(o, 4), HS, srd(SWS), T0 if part else sHD, 512 * m), tag='hs'))
                if len(hq) <= cfg.hnow:
                    hq[-1]()
                    hsent.add(len(hq) - 1)

    hq = []
    hsent = set()
    kcur = [0]
    p2 = second_pass()
    for k, (toks, work) in enumerate(segs):
        if k == 0:
            continue
        if k <= cfg.JL:
            bar(k, ['eg'] if work[:1] == 'P' else [])
        kcur[0] = k
        q = expand(toks, k)
        if work == 'sel':
            run(weave(q, sel + ([] if 'late' in cfg.prog else late)))
        elif work[:1] == 'g':
            hg = len(gate) // 2
            run(weave(q, gate if work == 'g' else gate[:hg] if work == 'g0' else gate[hg:]))
        elif work == 'late':
            run(weave(q, late))
        elif work[:1] == 'P':
            assert k <= cfg.JL or work != 'P0'
            part = p2 if work == 'P' else p2[:cfg.p2cut] if work == 'P0' else p2[cfg.p2cut:]
            run(part[:1] + (weave(q, part[1:]) if q else part[1:]))
            if work == 'P1H':
                st(e, 'p2done')
                store_h([])
        elif work[:1] == 'H':
            st(e, 'p2done')
            store_h(q)
            run(expand(work[2:], k))
        elif work == 'F':
            run(hq[n] for n in range(4) if n not in hsent)
            st(e, 'hst')
            jitter(e, cfg, 8)
            run(q)
            assert gdone and len(hq) == 4
            e.wait(vm=['hs', 'gs'])
            flag_store(e, 2, sHF)
            st(e, 'hflag')
            jitter(e, cfg, 9)
        else:
            run(q)
    assert len(segs) > cfg.JL
    HV, PW = 6, 8
    rest = [i for i in range(8) if 'C%d' % i not in planned]
    run(c_loads(rest.pop(0)))
    e.I('s_mul_i32 s%d, s%d, %d\ns_mul_i32 s%d, s%d, %d\ns_add_u32 s%d, s%d, s%d\ns_add_u32 s%d, s%d, 0x%x' %
        (T0, sRT, 2 * HT_, T1, sW, HW_, T0, T0, T1, T0, T0, H_OFF))
    e.I('v_add_u32 v%d, s%d, v1\nv_add_u32 v%d, %d, v%d' % (HV, T0, HV + 1, HT_, HV))
    for u in range(4):
        e.I('s_xor_b32 s%d, s%d, %d\ns_lshl_b32 s%d, s%d, 12' % (93 + u, sROT, u, 93 + u, 93 + u))
    part_write_addr(e, PW, 12, 13, 16384, 4096, SPART)
    mk_srd(e, SOUT, P_OUT, 2048 * 2048)
    e.I('s_lshl_b32 s%d, s%d, 2\ns_add_u32 s%d, s%d, s%d\ns_mul_i32 s%d, s%d, %d\ns_add_u32 s%d, s%d, 0x%x' %
        (T0, sRT, T0, T0, sW, T0, T0, 8 * FS, T0, T0, HF_OFF))
    e.I('v_mul_u32_u24 v12, %d, v0\nv_mov_b32 v5, v2' % FS)

    def h_reg(k):
        return 16 + 4 * (k % 12)

    def h_load(k):
        n2, t4 = k >> 2, k & 3
        e.I('buffer_load_dwordx4 %s, v%d, %s, s%d offen offset:%d sc1' % (vr(h_reg(k), 4), HV + (t4 >> 1), srd(SWS), 93 + (n2 >> 1),
                                                                            2048 * (n2 & 1) + 1024 * (t4 & 1)), tag=('h', k))

    def c_finish():
        for i in range(8):
            c_read(i)
        e.wait(vm='wd')
        cnt_add(e, FLA, ONE, C_DONEA)
        st(e, 'cgot')

    while rest and rest[0] < cfg.hlook:
        run(c_loads(rest.pop(0)))
    if cfg.hlook > 8:
        c_finish()
    poll(e, 'L_pollH', 13, 12, T0, '0xff',
         lambda: ([run(c_loads(i)) for i in rest], c_finish() if cfg.hearly == 0 and cfg.hlook <= 8 else None))
    st(e, 'hrdy')
    jitter(e, cfg, 10)
    XO, RA, GV, RF = 2, 3, 4, 14
    ROWS = (0, 8, 32, 40)
    XL, DL, GL, XD, PW1 = 128, 136, 138, 144, 10
    fin = items('s_lshl_b32 s%d, s%d, 6\ns_add_u32 s%d, s%d, s%d' % (T0, sRT, T0, T0, sW))
    fin += items('v_lshrrev_b32 v12, 4, v0\nv_lshrrev_b32 v13, 2, v0\nv_and_b32 v13, 2, v13\nv_xor_b32 v12, v12, v13')
    fin += items('v_and_b32 v15, 1, v12\nv_lshl_add_u32 v13, v15, 4, s%d\nv_lshrrev_b32 v3, 1, v12\nv_lshl_add_u32 v13, v3, 2, v13' % T0)
    fin += items('v_and_b32 v14, 15, v0\ns_lshl_b32 s%d, s%d, 7' % (T1, sCT))
    fin += items('v_lshl_add_u32 v1, v14, 3, s%d' % T1)
    fin += items('v_lshl_add_u32 v%d, v13, 10, v1' % XO)
    fin += items('v_lshlrev_b32 v%d, 2, v13\nv_add_u32 v%d, 0x%x, v%d' % (GV, GV, G_OFF, GV))
    fin += items('s_lshl_b32 s%d, s%d, 8\ns_add_u32 s%d, s%d, %d' % (T2, sW, T1, T2, SPART))
    fin += items('v_lshl_add_u32 v3, v3, 10, s%d\nv_lshl_add_u32 v3, v15, 14, v3' % T1)
    fin += items('v_lshl_or_b32 v13, v15, 2, s%d\nv_xor_b32 v13, v13, v14\nv_lshl_add_u32 v%d, v13, 4, v3' % (sW, RA))
    fin += items('v_lshl_add_u32 v12, v12, 6, s%d\nv_lshrrev_b32 v13, 2, v14\nv_lshl_add_u32 v12, v13, 10, v12' % T2)
    fin += items('v_and_b32 v13, 3, v0\nv_lshl_add_u32 v%d, v13, 4, v12\nv_add_u32 v%d, %d, v%d' % (RF, RF + 1, 2 * SLOT, RF))
    fin += items('s_lshl_b32 s%d, s%d, 7' % (T0, sDTX))
    for a in range(2):
        fin += items('v_xor_b32 v%d, s%d, v%d\nv_xor_b32 v%d, 0x80, v%d' % (PW + a, T0, PW + a, PW1 + a, PW + a))
    if cfg.posX < 0:
        run(fin)
    for k in range(cfg.NVA):
        if cfg.posX < 0 and k == -1 - cfg.posX:
            assert k >= cfg.hearly
            e.wait(lg='all')
            e.I('s_barrier')
        if k == cfg.hearly // 2 and k:
            c_read(6)
        if k == cfg.hearly and k:
            c_finish()
        h_load(k)
    e.wait(lg='all')
    if cfg.posX >= 0:
        run(fin)

    def fx_loads():
        e.I('global_load_dwordx2 %s, v1, s[%d:%d]' % (vr(DL, 2), P_DSK, P_DSK + 1), tag='fx')
        for n in range(4):
            e.I('s_mov_b32 s%d, %d' % (T2, 1024 * ROWS[n]))
            e.I('buffer_load_dwordx2 %s, v%d, %s, s%d offen' % (vr(XL + 2 * n, 2), XO, srd(SX), T2), tag='fx')

    def g_loads():
        for n in range(4):
            e.I('buffer_load_dword v%d, v%d, %s, 0 offen offset:%d sc1' % (GL + n, GV, srd(SWS), 4 * ROWS[n]), tag='fg')

    DU = 160
    xd = [lambda: e.wait(vm='fx')]
    xd += items('v_lshlrev_b32 v%d, 16, v%d\nv_and_b32 v%d, 0xffff0000, v%d\nv_lshlrev_b32 v%d, 16, v%d\nv_and_b32 v%d, 0xffff0000, v%d' %
                (DU, DL, DU + 1, DL, DU + 2, DL + 1, DU + 3, DL + 1))
    for n in range(4):
        for k in range(2):
            x = XL + 2 * n + k
            xd += items('v_lshlrev_b32 v12, 16, v%d\nv_and_b32 v13, 0xffff0000, v%d' % (x, x))
            xd += items('v_mul_f32 v12, v12, v%d\nv_mul_f32 v13, v13, v%d' % (DU + 2 * k, DU + 1 + 2 * k))
            xd += items('v_cvt_pk_bf16_f32 v13, v12, v13')
            xd += items('v_lshlrev_b32 v%d, 16, v13\nv_and_b32 v%d, 0xffff0000, v13' % (XD + 4 * n + 2 * k, XD + 4 * n + 2 * k + 1))
    xd += items('v_mov_b32 v12, %d\nv_mov_b32 v13, 1\nv_lshlrev_b32 v%d, 1, v%d' % (L_P2, XO, XO))

    def s2_step(k):
        n2, t4 = k >> 2, k & 3
        if k == 2 * cfg.posX:
            e.I('s_barrier')
        e.wait(vm=('h', k))
        for dq in range(4):
            d = 3 - dq if cfg.snake and t4 & 1 else dq
            mfma16(e, acc2(t4, d), c_reg(n2 >> 1, n2 & 1, d), h_reg(k), n2 == 0)
            if dq == (0 if cfg.NVA < 12 else 3) and k + cfg.NVA < 32:
                h_load(k + cfg.NVA)
        if k == 8:
            fx_loads()
        if k == max(8, 2 * cfg.posX):
            g_loads()
    steps = [lambda k=k: s2_step(k) for k in range(32)]
    if cfg.xdpos < 32:
        run(steps[:cfg.xdpos] + weave(steps[cfg.xdpos:], xd))
    else:
        run(steps + xd[-3:])
    st(e, 's2end')
    jitter(e, cfg, 11)
    if cfg.posX == 16:
        e.I('s_barrier')
        g_loads()
    st(e, '_X')
    run(part_write(e, PW, 16384, 0, PW1) + part_write(e, PW, 16384, 1, PW1))
    cnt_add(e, 12, 13, 0)
    if cfg.xdpos >= 32:
        run(xd[:-1])
    OM = 164
    e.wait(vm='fg')
    for n in range(4):
        e.I('v_sub_f32 v%d, 1.0, v%d' % (OM + n, GL + n))
        e.I('v_cvt_pk_bf16_f32 v%d, v%d, v%d\nv_lshlrev_b32 v%d, 16, v%d' % (OM + n, OM + n, OM + n, OM + n, OM + n))
    for n in range(4):
        e.I('s_mov_b32 s%d, %d' % (T2 + n, 2048 * ROWS[n]))
    e.I('s_lshl_b32 s%d, s%d, 5\ns_add_u32 s%d, s%d, s%d\ns_lshl_b32 s%d, s%d, 8\ns_add_u32 s%d, s%d, s%d' %
        (T0, sCT, T0, T0, sRT, T1, sW, T0, T0, T1))
    e.I('s_cmp_eq_u32 s%d, 31\ns_cselect_b32 s%d, 0x%x, s%d' % (T0, T0, EPOCH_OFF, SWS + 2))
    flag_store(e, 5, T0)
    cnt_spin(e, 'L_spinM', 12, 16, 0)
    e.wait(lg='all')
    for n in range(4):
        for w in range(4):
            e.I('ds_read_b128 %s, v%d offset:%d' % (vr(64 + 16 * n + 4 * w, 4), RA, w * 4096 + (n & 1) * 2048 + (n >> 1) * 32768), tag=('r', n))
    BS = XD
    for n in range(4):
        e.wait(lg=('r', n))
        b = 64 + 16 * n
        for k in range(4):
            e.I('v_add_f32 v%d, v%d, v%d\nv_add_f32 v%d, v%d, v%d' % (b + k, b + k, b + 4 + k, b + 8 + k, b + 8 + k, b + 12 + k))
        for k in range(4):
            e.I('v_add_f32 v%d, v%d, v%d' % (b + k, b + k, b + 8 + k))
        for k in range(4):
            e.I('v_add_f32 v%d, v%d, v%d' % (b + k, b + k, XD + 4 * n + k))
        for k in range(4):
            e.I('v_mul_f32 v%d, v%d, v%d' % (BS + 4 * n + k, GL + n, b + k))
    st(e, 'pre')
    jitter(e, cfg, 12)
    for grp in cfg.zg:
        e.I('s_barrier')
        st(e, 'Z' if 3 in grp else '_Z%d' % grp[0])
        for n in grp:
            for w in range(4):
                e.I('ds_read_b128 %s, v%d offset:%d' % (vr(64 + 16 * n + 4 * w, 4), RF + (n >> 1), w * 6144 + (n & 1) * SLOT), tag=('r', n, w >> 1))
        for n in grp:
            b = 64 + 16 * n
            for o, p in ((0, 4), (8, 12), (0, 8)):
                e.wait(lg=('r', n, o >> 3))
                if 3 in grp:
                    for k in (0, 2):
                        e.I('v_pk_add_f32 %s, %s, %s' % (vr(b + o + k, 2), vr(b + o + k, 2), vr(b + p + k, 2)))
                else:
                    for k in range(4):
                        e.I('v_add_f32 v%d, v%d, v%d' % (b + o + k, b + o + k, b + p + k))
            if cfg.mimic2:
                for rnd in range(2):
                    e.I('v_cvt_pk_bf16_f32 v%d, v%d, v%d\nv_cvt_pk_bf16_f32 v%d, v%d, v%d' % (b + 1, b, b + 1, b + 3, b + 2, b + 3))
                    for k in (0, 2):
                        e.I('v_lshlrev_b32 v%d, 16, v%d\nv_and_b32 v%d, 0xffff0000, v%d' % (b + k, b + k + 1, b + k + 1, b + k + 1))
                    if rnd == 0:
                        for k in range(4):
                            e.I('v_mul_f32 v%d, v%d, v%d' % (b + k, OM + n, b + k))
                for k in (0, 2):
                    e.I('v_pk_add_f32 %s, %s, %s' % (vr(b + k, 2), vr(b + k, 2), vr(BS + 4 * n + k, 2)))
            else:
                for k in range(4):
                    e.I('v_fma_f32 v%d, v%d, v%d, v%d' % (b + k, OM + n, b + k, BS + 4 * n + k))
            e.I('buffer_store_dwordx4 %s, v%d, %s, s%d offen %s' % (vr(b, 4), XO, srd(SOUT), T2 + n, cfg.outflags if isinstance(cfg.outflags, str) else cfg.outflags[n]), tag='out')
    if st.on:
        e.wait(vm='all')
    st(e, 'end')
    st.flush(e)


HEADER = open(os.path.join(os.path.dirname(os.path.abspath(__file__)), '..', 'cdna_kernels', BASE + '.s.ref')).read()


def generate(cfg):
    SLEEP[:] = cfg.sleep
    FL.clear()
    FL.update(cfg.nt)
    W_SLOT[0] = 0 if cfg.w0pos is None else 4
    S_SHIFT[0] = -1 if cfg.lag else 0 if cfg.w0pos is None else 1
    assert cfg.w0pos is None
    hdr = []
    for line in HEADER.split('\n'):
        if not line.startswith(';'):
            break
        if '@launch' in line:
            line = '; @launch grid=(256,1,1) block=(512,1,1) lds=%d' % LDS_BYTES
            if cfg.pre_kernel is not None:
                line = '; @launch kernel=%s grid=(256,1,1) block=(512,1,1) lds=%d' % (NAME, LDS_BYTES)
                if cfg.pre_kernel:
                    line = '; @launch kernel=warm_kernel grid=(256,1,1) block=(256,1,1) lds=0\n' + line
        hdr.append(line)
    stB = Stamps(cfg, [38, 6, 8, 14, 16, 18, 20, 22, 30, 32, 34, 4, 10, 12, 24, 26], 'B')
    stA = Stamps(cfg, [38, 10, 12, 22, 34, 24, 26, 6, 8, 18, 28, 14, 16, 30, 36, 4], 'A')
    e = Em()
    gen_entry(e, cfg, stB)
    stA.names = list(stB.names)
    eA = Em()
    eA.hist = list(e.hist)
    gen_B(e, cfg, stB)
    gen_A(eA, cfg, stA)
    txt = '\n'.join(hdr) + '\n'
    txt += '.amdgcn_target "amdgcn-amd-amdhsa--gfx950"\n.text\n.globl %s\n.p2align 8\n.type %s,@function\n%s:\n' % (NAME, NAME, NAME)
    txt += e.text() + '\n' + '\n'.join(e.cold) + '\n.p2align 6\nL_A:\n' + eA.text() + '\n    s_endpgm\n' + '\n'.join(eA.cold) + '\nL_end:\n    s_endpgm\n'
    if cfg.pre_kernel:
        w = Em()
        w.I('s_cmp_ge_u32 s2, 256\ns_cbranch_scc1 L_wend')
        if cfg.pre_kernel != 'empty':
            w.I('s_load_dwordx16 s[4:19], s[0:1], 0\ns_load_dwordx16 s[20:35], s[0:1], 64')
            w.I('s_lshl_b32 s3, s2, 8\nv_add_u32 v0, s3, v0\nv_lshlrev_b32 v1, 7, v0')
            w.wait_smem()
            base = 0
            for p, n in ((P_X, 2048 * 1024), (P_BRE, 524288), (P_BIM, 524288), (P_WG, 1409024), (P_WU, 1409024), (P_CRE, 524288), (P_CIM, 524288), (P_WD, 1409024)):
                mk_srd(w, 40, p, n)
                w.I('v_subrev_u32 v2, %d, v1\nv_cmp_gt_u32 vcc, %d, v2\ns_and_saveexec_b64 s[44:45], vcc\ns_cbranch_execz L_w%d' % (base, n, p))
                w.I('buffer_load_dword v3, v2, s[40:43], 0 offen')
                w.label('L_w%d' % p)
                w.I('s_mov_b64 exec, s[44:45]')
                base += n
            if cfg.pre_kernel == 'wait':
                w.I('s_waitcnt vmcnt(0)')
        txt += '.globl warm_kernel\n.p2align 8\n.type warm_kernel,@function\nwarm_kernel:\n' + w.text() + '\nL_wend:\n    s_endpgm\n'
    txt += '''.section .rodata,"a"
.p2align 6
.amdhsa_kernel %s
  .amdhsa_next_free_vgpr 256
  .amdhsa_next_free_sgpr 102
  .amdhsa_accum_offset 256
  .amdhsa_group_segment_fixed_size 0
  .amdhsa_kernarg_size 136
  .amdhsa_user_sgpr_count 2
  .amdhsa_user_sgpr_kernarg_segment_ptr 1
  .amdhsa_system_sgpr_workgroup_id_x 1
  .amdhsa_float_denorm_mode_32 3
.end_amdhsa_kernel
''' % NAME
    if cfg.pre_kernel:
        txt += '''.p2align 6
.amdhsa_kernel warm_kernel
  .amdhsa_next_free_vgpr 8
  .amdhsa_next_free_sgpr 48
  .amdhsa_accum_offset 8
  .amdhsa_group_segment_fixed_size 0
  .amdhsa_kernarg_size 136
  .amdhsa_user_sgpr_count 2
  .amdhsa_user_sgpr_kernarg_segment_ptr 1
  .amdhsa_system_sgpr_workgroup_id_x 1
.end_amdhsa_kernel
'''
    info = dict(A=eA.count, B=e.count, nopsA=eA.nops, nopsB=e.nops, stampsA=stA.names, stampsB=stB.names)
    return txt, info


def cfg_from(args):
    cfg = Cfg()
    for a in args:
        k, v = a.split('=')
        setattr(cfg, k, eval(v))
    return cfg


if __name__ == '__main__':
    out = sys.argv[1]
    cfg = cfg_from(sys.argv[2:])
    txt, info = generate(cfg)
    open(out, 'w').write(txt)
    print(info)
```

```python
import sys, os
sys.path.insert(0, os.path.dirname(os.path.abspath(__file__)))
from em import Em, weave

BASE = 'gated_mix__ssm_conv_s5__swiglu_ffn__prompt'
NAME = BASE + '_kernel'

ACT_OFF = 0
H_OFF = 0x600000
E_OFF = 0xB00000
G_OFF = 0xB20000
HF_OFF = 0xB24000
AF_OFF = 0xB30000
EPOCH_OFF = 0xB48000
STAMP_OFF = 0xB50000
WS_SIZE = 0xB80000
OOB = 0x2000000
FS = 32
PHI = 0x9E3779B8

SLOT = 24576
WIN = 49152
SCR = 147456
SPART = 98304
L_E, L_FL, L_EG = SCR, SCR + 4096, SCR + 8192
L_P2 = 3 * SLOT + 4096
LDS_BYTES = 163840

P_X, P_LRE, P_LIM, P_BRE, P_BIM, P_CRE, P_CIM, P_LDT = 4, 6, 8, 10, 12, 14, 16, 18
P_DSK, P_BX, P_WG, P_WU, P_WD, P_GW, P_OUT, P_DBG, P_WS = 20, 22, 24, 26, 28, 30, 32, 34, 36
SX, SWS = 40, 44
SBM, SW, SWD = 48, 52, 56
SC1, SC2, SOUT, SCODE = 48, 52, 56, 60
SWA = 60
sWAVE, sW, sRB, sCB, sK0, sRT, sCT, sNONCE, sSG0 = 64, 65, 66, 67, 68, 69, 70, 71, 72
T0, T1, T2, T3, T4, T5, T6 = 73, 74, 75, 76, 77, 78, 79
sNL2E = 80
sMA, sMB = 82, 84
sTBL = 86
sCNT = 97
sTS, sTW, sTD = 98, 99, 100
sMX, sMBm = 60, 61
sMW = 101
SPIN_MAX = 200000

SLEEP = [0, 0]
LOG2E = 0x3fb8aa3b
NLOG2E = 0xbfb8aa3b


class Cfg:
    mimic = False
    mimic2 = False
    stamps = False
    rot1 = (2, 0, 2, 1)
    rot2 = 7
    rotF = 0
    rotS = None
    map2 = 84
    prewarm = True
    NT = 2
    early = 200
    w0pos = None
    s1a = 2
    smallpos = 2
    tlb = False
    pre_kernel = None
    lag = 0
    lagr = 4
    JL = 7
    prog = 'W2,G0|;W3,C0|sel;W4|g0;E0,W5,D0,D1,D2,D3|g1;W6|P0;W7|P1H;|;C1,C2,C3|F'
    p2cut = 80
    cbuf = (4, 0, 1, 4, 0, 1, 4, 0)
    tplan = ()
    zfill = True
    prioB = 0
    LA = 4
    posX = 8
    pren = 4
    asplit = True
    prioT = 1
    drain = ()
    hpad = (0, 0)
    hlook = 9
    hearly = 0
    hnow = 4
    sleep = (1, 1)
    skip = ''
    flagpos = (0, 0, 3)
    alook = 18
    abet = 3
    posXB = -17
    fine = True
    snake = True
    jitter = 0
    prioF2 = 1
    NVA = 11
    NV0 = (12, 0)
    xdpos = 32
    NV = 12
    TL = 4
    pull0 = 3
    zg = ((0, 1), (2, 3))
    zlag = 3
    outflags = 'sc1'
    selA = None
    selB = None
    prioA = 0
    amp = None


def srd(r):
    return 's[%d:%d]' % (r, r + 3)


def vr(a, n):
    return 'v[%d:%d]' % (a, a + n - 1) if n > 1 else 'v%d' % a


def mk_srd(e, r, p, nbytes):
    e.I('s_mov_b32 s%d, s%d\ns_mov_b32 s%d, s%d\ns_mov_b32 s%d, 0x%x\ns_mov_b32 s%d, 0x20000' %
        (r, p, r + 1, p + 1, r + 2, nbytes, r + 3))


def mk_srd_sel(e, r, p1, p0, nbytes):
    e.I('s_cselect_b32 s%d, s%d, s%d\ns_cselect_b32 s%d, s%d, s%d\ns_mov_b32 s%d, 0x%x\ns_mov_b32 s%d, 0x20000' %
        (r, p1, p0, r + 1, p1 + 1, p0 + 1, r + 2, nbytes, r + 3))


def mfma(e, d, a, b, first):
    e.I('v_mfma_f32_32x32x16_bf16 %s, %s, %s, %s' % (vr(d, 16), vr(a, 4), vr(b, 4), '0' if first else vr(d, 16)))


def mfma16(e, d, a, b, first):
    e.I('v_mfma_f32_16x16x32_bf16 %s, %s, %s, %s' % (vr(d, 4), vr(a, 4), vr(b, 4), '0' if first else vr(d, 4)))


class Stamps:
    def __init__(self, cfg, regs, role):
        self.amp = cfg.amp if cfg.amp else None
        self.role = role
        self.sel = (cfg.selA if role == 'A' else cfg.selB)
        if self.sel is not None:
            self.sel = self.sel.split(',')
        self.ins = 's_memtime' if cfg.stamps == 'cyc' else 's_memrealtime'
        self.on = cfg.stamps or bool(self.amp)
        self.regs = regs
        self.names = []

    def __call__(self, e, name):
        if not self.on:
            return
        if self.sel is not None:
            if name != 'start' and name not in self.sel:
                return
        elif name.startswith('_'):
            return
        r = self.regs[len(self.names)]
        self.names.append(name)
        if self.amp and name not in ('start', 'end', self.amp[1], self.amp[2]):
            return
        e.I('%s s[%d:%d]' % (self.ins, r, r + 1))

    def flush(self, e):
        if not self.on:
            return
        e.wait_smem()
        if self.amp:
            if self.amp[0] == self.role:
                R = dict(zip(self.names, self.regs))
                e.I('s_sub_u32 s%d, s%d, s%d\ns_mul_i32 s%d, s%d, %d\ns_min_u32 s%d, s%d, 50000' %
                    (T0, R[self.amp[2]], R[self.amp[1]], T0, T0, self.amp[3], T0, T0))
                e.label('L_amp')
                e.I('s_memrealtime s[%d:%d]' % (T1, T1 + 1))
                e.wait_smem()
                e.I('s_sub_u32 s%d, s%d, s%d\ns_cmp_lt_u32 s%d, s%d\ns_cbranch_scc1 L_amp' % (T1, T1, R['end'], T1, T0))
            return
        e.I('s_lshl_b32 s%d, s2, 3\ns_add_u32 s%d, s%d, s%d\ns_lshl_b32 s%d, s%d, 6\ns_add_u32 s%d, s%d, 0x%x' %
            (T0, T0, T0, sWAVE, T0, T0, T0, T0, STAMP_OFF))
        e.I('s_mov_b64 exec, 1')
        for k in range(len(self.names)):
            e.I('v_mov_b32 v2, s%d' % self.regs[k])
            e.I('buffer_store_dword v2, off, %s, s%d offset:%d' % (srd(SWS), T0, 4 * k))


def jitter(e, cfg, key):
    if not cfg.jitter:
        return
    lab = 'L_jit%d' % key
    e.settle()
    e.I('s_lshl_b32 s%d, s2, 3\ns_add_u32 s%d, s%d, s%d' % (sCNT, sCNT, sCNT, sWAVE))
    e.I('s_mul_i32 s%d, s%d, 0x%x\ns_lshr_b32 s%d, s%d, 28' % (sCNT, sCNT, (0x9E3779B1 * (2 * key * cfg.jitter + 1)) & 0xffffffff, sCNT, sCNT))
    e.I('s_cmp_lt_u32 s%d, 12\ns_cbranch_scc1 %s_out' % (sCNT, lab))
    e.label(lab)
    e.I('s_sleep 40\ns_add_u32 s%d, s%d, 1\ns_cmp_lt_u32 s%d, 17\ns_cbranch_scc1 %s' % (sCNT, sCNT, sCNT, lab))
    e.label(lab + '_out')


def run(items):
    for it in items:
        it()


def poll(e, label, vt, vaddr, soff, mask, between=None):
    def look(tag=None):
        e.I('s_mov_b64 exec, %s' % mask)
        e.I('buffer_load_dword v%d, v%d, %s, s%d offen sc1' % (vt, vaddr, srd(SWS), soff), tag=tag)
        e.I('s_mov_b64 exec, -1')

    def check():
        e.I('v_cmp_ne_u32 vcc, s%d, v%d' % (sNONCE, vt))
        e.I('s_and_b64 vcc, vcc, %s' % mask)
    spin(e, label, look, check, between)


def spin(e, label, look, check, between):
    look('look')
    if between:
        between()
    e.wait(vm='look')
    check()
    e.I('s_cbranch_scc1 %s' % label)
    e.label(label + '_out')
    with e.cold_block():
        e.label(label)
        e.I('s_mov_b32 s%d, 0' % sCNT)
        e.label(label + '_l')
        if SLEEP[0]:
            e.I('s_sleep %d' % SLEEP[0])
        look()
        e.I('s_add_u32 s%d, s%d, 1' % (sCNT, sCNT))
        e.I('s_cmp_gt_u32 s%d, %d' % (sCNT, SPIN_MAX))
        e.wait(vm='all')
        e.I('s_cbranch_scc1 %s_out' % label)
        check()
        e.I('s_cbranch_scc1 %s_l' % label)
        e.I('s_branch %s_out' % label)


def code_touch(e, tag):
    e.I('s_getpc_b64 s[%d:%d]' % (sMA, sMA + 1))
    e.label('L_pc' + tag)
    e.I('s_sub_u32 s%d, s%d, L_pc%s-%s\ns_subb_u32 s%d, s%d, 0' % (sMA, sMA, tag, NAME, sMA + 1, sMA + 1))
    e.I('s_and_b32 s%d, s2, 0xf8\ns_add_u32 s%d, s%d, s%d\ns_lshl_b32 s%d, s%d, 6' % (T0, T0, T0, sWAVE, T0, T0))
    e.I('s_load_dword s3, s[%d:%d], s%d' % (sMA, sMA + 1, T0))
    e.I('s_add_u32 s%d, s%d, 16384\ns_min_u32 s%d, s%d, L_end-%s' % (T0, T0, T0, T0, NAME))
    e.I('s_load_dword s3, s[%d:%d], s%d' % (sMA, sMA + 1, T0))


def rot2_calc(e, cfg, dst, b):
    e.I('s_mul_i32 s%d, s%d, %d' % (dst, sCT, b))
    for k in range(1 if cfg.map2 == 84 else 2):
        e.I('s_add_u32 s%d, s%d, s%d' % (dst, dst, sRT))
    e.I('s_and_b32 s%d, s%d, %d' % (dst, dst, cfg.rot2))


def step_start(e, cfg, cur, beg, end, shift):
    rot2_calc(e, cfg, cur, cfg.rotF)
    e.I('s_cmp_eq_u32 s%d, 3\ns_cselect_b32 s%d, 10, 11' % (sW, end))
    e.I('s_mul_i32 s%d, s%d, s%d\ns_lshr_b32 s%d, s%d, 3\ns_mul_i32 s%d, s%d, 11' % (cur, cur, end, cur, cur, beg, sW))
    e.I('s_add_u32 s%d, s%d, s%d\ns_add_u32 s%d, s%d, s%d' % (cur, cur, beg, end, end, beg))
    for r in (cur, beg, end):
        e.I('s_lshl_b32 s%d, s%d, %d' % (r, r, shift))


def step_next(e, cur, beg, end, inc, wrap=True, last=False):
    e.I('s_add_u32 s%d, s%d, %d' % (cur, cur, inc))
    if wrap:
        e.I('s_cmp_eq_u32 s%d, s%d\ns_cselect_b32 s%d, s%d, s%d' % (cur, end, cur, beg, cur))
    if last:
        e.I('s_cmp_eq_u32 s%d, 3\ns_cselect_b32 s%d, 0x%x, s%d' % (sW, cur, OOB, cur))


def wd_next(e, n, cur, beg, end):
    step_next(e, cur, beg, end, 16384, n % 2 == 0, n == 20)


def set_m0(e, base, off):
    if getattr(e, 'm0', None) != (base, off):
        e.I('s_add_u32 m0, s%d, %d' % (base, off))
        e.m0 = (base, off)


def wd_lane_offsets(e, WDV, t0, t1):
    txt = 'v_lshrrev_b32 v%d, 4, v0\nv_lshlrev_b32 v%d, 1, v%d\nv_and_b32 v%d, 7, v0\nv_xor_b32 v%d, v%d, v%d\nv_lshlrev_b32 v%d, 4, v%d\n' % (
        t0, t0, t0, t1, t0, t0, t1, t0, t0)
    txt += 'v_lshrrev_b32 v%d, 3, v0\nv_lshl_add_u32 v%d, v%d, 10, v%d\n' % (t1, t0, t1, t0)
    txt += 's_lshl_b32 s%d, s%d, 7\n' % (T0, sCT)
    txt += 'v_add_u32 v%d, s%d, v%d\nv_add_u32 v%d, 7168, v%d' % (WDV, T0, t0, WDV + 1, WDV)
    return txt


RING = [(5, n) for n in range(3)] + [(4, 2)] + [(2 + n // 3, n % 3) for n in range(6)] + [(4, n) for n in range(2)] \
    + [(n // 3, n % 3) for n in range(6)] + [(2, n) for n in range(3)] + [(3, 0)]
PREV = {18: 4, 19: 5, 20: 6, 21: 7}


class Touch:
    def __init__(self, e, cfg, role):
        self.e, self.role = e, role
        self.plan = [p for p in cfg.tplan if p[0] == role]
        it = []
        for par in range(2):
            for p in (P_CRE, P_CIM):
                it += [(p, 128 * k + 64 * par) for k in range(4)]
        for par in range(2):
            it += [(P_WD, 128 * k + 64 * par) for k in range(11)]
        self.items = it

    def setup(self):
        if not self.plan:
            return
        e = self.e
        used = {self.items[k][0] for p in self.plan for k in range(p[2], p[3])}
        e.I('s_lshl_b32 s%d, s2, 2\ns_add_u32 s%d, s%d, s%d' % (T0, T0, T0, sW))
        for p in sorted(used):
            e.I('s_mul_i32 s%d, s%d, %d' % (T1, T0, 1376 if p == P_WD else 512))
            e.I('s_add_u32 s%d, s%d, s%d\ns_addc_u32 s%d, s%d, 0' % (p, p, T1, p + 1, p + 1))

    def at(self, place):
        for p in self.plan:
            if p[1] == place:
                for k in range(p[2], p[3]):
                    self.e.I('s_load_dword s3, s[%d:%d], %d' % (self.items[k][0], self.items[k][0] + 1, self.items[k][1]))


def flag_store(e, vt, soff, imm=0):
    e.I('s_mov_b64 exec, 1')
    e.I('buffer_store_dword v%d, off, %s, s%d offset:%d sc1' % (vt, srd(SWS), soff, imm), tag='flag')
    e.I('s_mov_b64 exec, -1')


def frag_addr(e, dst, t0, t1):
    e.I('v_lshrrev_b32 v%d, 5, v0' % t0)
    e.I('v_bfe_u32 v%d, v0, 1, 3' % t1)
    e.I('v_xor_b32 v%d, v%d, v%d' % (t0, t0, t1))
    e.I('v_and_b32 v%d, 31, v0' % t1)
    e.I('v_lshlrev_b32 v%d, 7, v%d' % (t1, t1))
    e.I('v_lshl_add_u32 v%d, v%d, 4, v%d' % (dst, t0, t1))
    for s in range(1, 4):
        e.I('v_xor_b32 v%d, %d, v%d' % (dst + s, 32 * s, dst))


def frag16_addr(e, dst, t0, t1):
    e.I('v_lshrrev_b32 v%d, 4, v0' % t0)
    e.I('v_bfe_u32 v%d, v0, 1, 3' % t1)
    e.I('v_xor_b32 v%d, v%d, v%d' % (t0, t0, t1))
    e.I('v_and_b32 v%d, 15, v0' % t1)
    e.I('v_lshlrev_b32 v%d, 7, v%d' % (t1, t1))
    e.I('v_lshl_add_u32 v%d, v%d, 4, v%d' % (dst, t0, t1))
    e.I('v_xor_b32 v%d, 64, v%d' % (dst + 1, dst))


def w_tr_addr(e, d, t0, t1):
    e.I('v_lshrrev_b32 v%d, 4, v0' % t0)
    e.I('v_bfe_u32 v%d, v0, 2, 2' % t1)
    e.I('v_lshl_add_u32 v%d, v%d, 3, v%d' % (t0, t0, t1))
    e.I('v_mul_u32_u24 v%d, 192, v%d' % (t0, t0))
    e.I('v_bfe_u32 v%d, v0, 4, 1' % t1)
    e.I('v_lshl_add_u32 v%d, v%d, 5, v%d' % (t0, t1, t0))
    e.I('v_and_b32 v%d, 3, v0' % t1)
    e.I('v_lshl_add_u32 v%d, v%d, 3, v%d' % (d, t1, t0))
    e.I('v_xor_b32 v%d, 32, v%d' % (d + 1, d))
    e.I('v_add_u32 v%d, %d, v%d\nv_add_u32 v%d, %d, v%d' % (d + 2, WIN, d, d + 3, WIN, d + 1))


W_SLOT = [0, 1, 2, 3, 0, 1, 2, 3]
S_SHIFT = [0]


def s_slot(i):
    return (i + 4) % 6 if S_SHIFT[0] < 0 else (i + S_SHIFT[0]) % 4


def w_frag_read(e, dst, wa, j, s2, g, mat, fh, mm, tag):
    slot = W_SLOT[j]
    off = (slot & 1) * SLOT + mat * 12288 + (32 * s2 + 4 * mm) * 192 + g * 64
    e.I('ds_read_b64_tr_b16 %s, v%d offset:%d' % (vr(dst + 2 * mm, 2), wa + 2 * (slot >> 1) + fh, off), tag=tag)


def act_items(e, cfg, G, U, tmp, out):
    items = []
    add = lambda t: items.append(lambda t=t: e.I(t))
    for b in range(2):
        g, u, o = G + 8 * b, U + 8 * b, out + 4 * b
        if cfg.mimic:
            for src in (g, u):
                for p in range(4):
                    add('v_cvt_pk_bf16_f32 v%d, v%d, v%d' % (tmp + p, src + 2 * p, src + 2 * p + 1))
                for p in range(4):
                    add('v_lshlrev_b32 v%d, 16, v%d' % (src + 2 * p, tmp + p))
                    add('v_and_b32 v%d, 0xffff0000, v%d' % (src + 2 * p + 1, tmp + p))
        for p in range(4):
            add('v_pk_mul_f32 %s, %s, s[%d:%d]' % (vr(tmp + 2 * p, 2), vr(g + 2 * p, 2), sNL2E, sNL2E + 1))
        for p in range(8):
            add('v_exp_f32 v%d, v%d' % (tmp + p, tmp + p))
        for p in range(4):
            add('v_pk_add_f32 %s, %s, 1.0 op_sel_hi:[1,0]' % (vr(tmp + 2 * p, 2), vr(tmp + 2 * p, 2)))
        for p in range(8):
            add('v_rcp_f32 v%d, v%d' % (tmp + p, tmp + p))
        for p in range(4):
            add('v_pk_mul_f32 %s, %s, %s' % (vr(g + 2 * p, 2), vr(g + 2 * p, 2), vr(tmp + 2 * p, 2)))
        if cfg.mimic:
            for p in range(4):
                add('v_cvt_pk_bf16_f32 v%d, v%d, v%d' % (tmp + p, g + 2 * p, g + 2 * p + 1))
            for p in range(4):
                add('v_lshlrev_b32 v%d, 16, v%d' % (g + 2 * p, tmp + p))
                add('v_and_b32 v%d, 0xffff0000, v%d' % (g + 2 * p + 1, tmp + p))
        for p in range(4):
            add('v_pk_mul_f32 %s, %s, %s' % (vr(u + 2 * p, 2), vr(g + 2 * p, 2), vr(u + 2 * p, 2)))
        for p in range(4):
            add('v_cvt_pk_bf16_f32 v%d, v%d, v%d' % (o + p, u + 2 * p, u + 2 * p + 1))
    return items


def act_items_scalar(e, cfg, G, U, tmp, out):
    if cfg.mimic:
        return act_items(e, cfg, G, U, tmp, out)
    items = []
    add = lambda t: items.append(lambda t=t: e.I(t))
    for b in range(4):
        g, u, o = G + 4 * b, U + 4 * b, out + 2 * b
        for p in range(4):
            add('v_mul_f32 v%d, s%d, v%d' % (tmp + p, sNL2E, g + p))
        for p in range(4):
            add('v_exp_f32 v%d, v%d' % (tmp + p, tmp + p))
            add('v_mul_f32 v%d, v%d, v%d' % (u + p, g + p, u + p))
        for p in range(4):
            add('v_add_f32 v%d, 1.0, v%d' % (tmp + p, tmp + p))
        for p in range(4):
            add('v_rcp_f32 v%d, v%d' % (tmp + p, tmp + p))
        for p in range(4):
            add('v_mul_f32 v%d, v%d, v%d' % (u + p, tmp + p, u + p))
        for p in range(2):
            add('v_cvt_pk_bf16_f32 v%d, v%d, v%d' % (o + p, u + 2 * p, u + 2 * p + 1))
    return items


def light_scc(e):
    e.I('s_and_b32 s%d, s%d, 3\ns_cmp_eq_u32 s%d, 3\ns_cselect_b32 s%d, 14, s%d\ns_cmp_eq_u32 s%d, 14' % (T0, sCB, T0, T0, sCB, T0))


def w_lane_offsets(e, cfg, WV, t0, t1):
    if cfg.zfill:
        light_scc(e)
        e.I('s_cselect_b32 s%d, 8, 12' % sTW)
    e.I('s_and_b32 s%d, s%d, 1' % (T1, sW))
    e.I('s_mul_i32 s%d, s%d, %d\ns_lshl_b32 s%d, s%d, 6\ns_add_u32 s%d, s%d, s%d' % (T0, T1, 32 * 2752, T1, sSG0, T0, T0, T1))
    for q in range(3):
        e.I('v_add_u32 v%d, %d, v0\nv_mul_u32_u24 v%d, 171, v%d\nv_lshrrev_b32 v%d, 11, v%d' % (t1, 64 * q, t0, t1, t0, t0))
        if cfg.zfill:
            e.I('v_mul_u32_u24 v%d, 12, v%d\nv_sub_u32 v%d, v%d, v%d\nv_cmp_gt_u32 vcc, s%d, v%d' % (WV + q, t0, t1, t1, WV + q, sTW, t1))
        e.I('v_lshrrev_b32 v%d, 3, v%d\nv_lshlrev_b32 v%d, 1, v%d\nv_xor_b32 v%d, v0, v%d' % (t1, t0, t1, t1, t1, t1))
        e.I('v_mul_u32_u24 v%d, %d, v%d' % (t0, 2752 - 192, t0))
        e.I('v_lshl_add_u32 v%d, v%d, 4, v%d' % (t0, t1, t0))
        e.I('v_add_u32 v%d, s%d, v%d' % (WV + q, T0, t0))
        if cfg.zfill:
            e.I('v_mov_b32 v%d, 0x%x\nv_cndmask_b32 v%d, v%d, v%d, vcc' % (t0, OOB, WV + q, t0, WV + q))
    e.I('s_mul_i32 s%d, s%d, 6144' % (sMW, sW))


def dma_W(e, WV, SWR, j):
    slot = W_SLOT[j] * SLOT
    its = []
    for grp in range(2):
        for q in range(3):
            def f(grp=grp, q=q):
                set_m0(e, sMW, slot + grp * 3072)
                if q == 0 and grp == 0:
                    e.I('s_add_u32 s%d, s%d, %d\ns_and_b32 s%d, s%d, 7\ns_mul_i32 s%d, s%d, %d' %
                        (sTW, sK0, j, sTW, sTW, sTW, sTW, 64 * 2752))
                if q == 0 and grp == 1:
                    e.I('s_add_u32 s%d, s%d, %d' % (sTW, sTW, 16 * 2752))
                e.I('buffer_load_dwordx4 v%d, %s, s%d offen offset:%d lds' % (WV + q, srd(SWR), sTW, 1024 * q), tag=('st', 8 + j))
            its.append(f)
    return its


C_LAND, C_CONS, C_Q, C_DONEA = 0, 32, 64, 68


def cnt_add(e, va, vone, off):
    e.I('s_mov_b64 exec, 1')
    e.I('ds_add_u32 v%d, v%d offset:%d' % (va, vone, off), tag='sig')
    e.I('s_mov_b64 exec, -1')


def cnt_look(e, va, vt, off, tag):
    e.I('ds_read_b32 v%d, v%d offset:%d' % (vt, va, off), tag=tag)


def cnt_check(e, label, va, vt, off, tag):
    e.wait(lg=tag)
    e.I('v_cmp_ne_u32 vcc, 4, v%d' % vt)
    e.I('s_cbranch_vccnz %s' % label)
    e.label(label + '_out')
    with e.cold_block():
        e.label(label)
        e.I('s_mov_b32 s%d, 0' % sCNT)
        e.label(label + '_l')
        if SLEEP[1]:
            e.I('s_sleep %d' % SLEEP[1])
        cnt_look(e, va, vt, off, None)
        e.I('s_add_u32 s%d, s%d, 1' % (sCNT, sCNT))
        e.I('s_cmp_gt_u32 s%d, %d' % (sCNT, 20 * SPIN_MAX))
        e.wait(lg='all')
        e.I('s_cbranch_scc1 %s_out' % label)
        e.I('v_cmp_ne_u32 vcc, 4, v%d' % vt)
        e.I('s_cbranch_vccnz %s_l' % label)
        e.I('s_branch %s_out' % label)


def cnt_spin(e, label, va, vt, off):
    cnt_look(e, va, vt, off, 'look')
    cnt_check(e, label, va, vt, off, 'look')


def act_offsets(e, k, s_data, s_flag, valid_scc=False):
    e.I('s_lshl_b32 s%d, s%d, 2\ns_add_u32 s%d, s%d, s%d' % (T0, sRB, T0, T0, sW))
    e.I('s_mul_i32 s%d, s%d, 43\ns_add_u32 s%d, s%d, s%d\ns_add_u32 s%d, s%d, %d\ns_lshl_b32 s%d, s%d, 11' %
        (T1, T0, T1, T1, sSG0, T1, T1, k, s_data, T1))
    e.I('s_lshr_b32 s%d, s%d, 1\ns_mul_i32 s%d, s%d, 44\ns_add_u32 s%d, s%d, s%d\ns_add_u32 s%d, s%d, %d' %
        (T1, T0, T1, T1, T1, T1, sSG0, T1, T1, k))
    e.I('s_lshl_b32 s%d, s%d, 1\ns_and_b32 s%d, s%d, 1\ns_add_u32 s%d, s%d, s%d\ns_mul_i32 s%d, s%d, %d\ns_add_u32 s%d, s%d, 0x%x' %
        (T1, T1, T0, T0, T1, T1, T0, T1, T1, FS, s_flag, T1, AF_OFF))


def part_write_addr(e, dst, t0, t1, piece_stride, wave_stride, base):
    e.I('v_lshrrev_b32 v%d, 4, v0' % t0)
    e.I('v_and_b32 v%d, 7, v0' % t1)
    e.I('v_xor_b32 v%d, v%d, v%d' % (t0, t0, t1))
    e.I('v_lshlrev_b32 v%d, 4, v%d' % (dst, t0))
    e.I('v_bfe_u32 v%d, v0, 3, 1' % t0)
    e.I('v_and_b32 v%d, 3, v0' % t1)
    e.I('v_lshl_add_u32 v%d, v%d, 2, v%d' % (t0, t0, t1))
    e.I('v_lshl_add_u32 v%d, v%d, 8, v%d' % (dst, t0, dst))
    e.I('v_bfe_u32 v%d, v0, 2, 1' % t0)
    e.I('v_mul_u32_u24 v%d, %d, v%d' % (t0, piece_stride, t0))
    e.I('s_mul_i32 s%d, s%d, %d\ns_add_u32 s%d, s%d, %d' % (T0, sW, wave_stride, T0, T0, base))
    e.I('v_add3_u32 v%d, v%d, v%d, s%d' % (dst, dst, t0, T0))
    e.I('v_xor_b32 v%d, 64, v%d' % (dst + 1, dst))


def acc2(t4, dq):
    return 64 + 16 * t4 + 4 * dq


def part_write(e, addr, piece_stride, tt, addr1=None):
    its = []
    for a in range(2):
        for dq in range(4):
            ad_, off = (addr + (dq & 1), (dq >> 1) * 128) if addr1 is None or dq < 2 else (addr1 + (dq & 1), 0)
            its.append(lambda ad_=ad_, off=off, dq=dq, a=a:
                       e.I('ds_write_b128 v%d, %s offset:%d' % (ad_, vr(acc2(2 * tt + a, dq), 4), tt * 2 * piece_stride + a * 2048 + off), tag=('pw', tt)))
    return its


def gen_entry(e, cfg, st):
    e.I('s_cmp_ge_u32 s2, 256\ns_cbranch_scc1 L_end')
    e.I('s_load_dwordx16 s[4:19], s[0:1], 0\ns_load_dwordx16 s[20:35], s[0:1], 64\ns_load_dwordx2 s[36:37], s[0:1], 128')
    st(e, 'start')
    e.I('v_lshrrev_b32 v1, 6, v0\nv_and_b32 v0, 63, v0')
    e.I('v_readfirstlane_b32 s%d, v1' % sWAVE)
    e.I('s_and_b32 s%d, s2, 7\ns_lshr_b32 s%d, s2, 3' % (T0, T1))
    e.I('s_and_b32 s%d, s%d, 7\ns_lshr_b32 s%d, s%d, 3' % (T2, T1, T3, T1))
    e.I('s_and_b32 s%d, s%d, 1\ns_lshl_b32 s%d, s%d, 3\ns_add_u32 s%d, s%d, s%d' % (sRB, T0, sRB, sRB, sRB, sRB, T2))
    e.I('s_lshr_b32 s%d, s%d, 1' % (T4, T0))
    e.I('s_lshl_b32 s%d, s%d, 2\ns_add_u32 s%d, s%d, s%d' % (sCB, T4, sCB, sCB, T3))
    e.I('s_mul_i32 s%d, s%d, %d' % (sK0, T2, cfg.rot1[0]))
    for src, mul in zip((T3, T4, None), cfg.rot1[1:]):
        if mul:
            if src is None:
                e.I('s_and_b32 s%d, s%d, 1' % (T5, T0))
            e.I('s_mul_i32 s%d, s%d, %d\ns_add_u32 s%d, s%d, s%d' % (T5, T5 if src is None else src, mul, sK0, sK0, T5))
    e.I('s_and_b32 s%d, s%d, 7' % (sK0, sK0))
    e.I('s_mul_i32 s%d, s%d, 11\ns_mul_i32 s%d, s%d, 3\ns_add_u32 s%d, s%d, s%d' % (sSG0, T4, T5, T3, sSG0, sSG0, T5))
    e.I('s_cmp_eq_u32 s%d, 15\ns_subb_u32 s%d, s%d, 0' % (sCB, sSG0, sSG0))
    if cfg.map2 == 84:
        e.I('s_lshl_b32 s%d, s%d, 3\ns_add_u32 s%d, s%d, s%d' % (sRT, T4, sRT, sRT, T2))
        e.I('s_and_b32 s%d, s%d, 1\ns_lshl_b32 s%d, s%d, 2\ns_add_u32 s%d, s%d, s%d' % (sCT, T0, sCT, sCT, sCT, sCT, T3))
    else:
        e.I('s_lshl_b32 s%d, s%d, 2\ns_and_b32 s%d, s%d, 3\ns_add_u32 s%d, s%d, s%d\ns_lshr_b32 s%d, s%d, 2' %
            (sRT, T0, T5, T1, sRT, sRT, T5, sCT, T1))
    e.I('s_and_b32 s%d, s%d, 3' % (sW, sWAVE))
    e.I('s_cmp_lt_u32 s%d, 4\ns_cbranch_scc1 L_A' % sWAVE)


def gen_B(e, cfg, st):
    NPRE = cfg.prog.count('D')
    WA = 2
    EP = 42
    XV, BV, WV, XA = 32, 36, 38, 44
    e.I('v_lshrrev_b32 v8, 3, v0')
    e.I('v_and_b32 v9, 7, v0')
    e.I('v_lshrrev_b32 v10, 4, v0')
    e.I('v_xor_b32 v10, v9, v10\nv_lshlrev_b32 v10, 4, v10')
    e.I('v_lshrrev_b32 v11, 5, v0\nv_and_b32 v12, 3, v8\nv_lshl_add_u32 v11, v11, 4, v12')
    e.I('s_lshl_b32 s%d, s%d, 2\ns_add_u32 s%d, s%d, s%d\ns_lshl_b32 s%d, s%d, 15' % (T0, sRB, T0, T0, sW, T0, T0))
    e.I('v_lshl_add_u32 v11, v11, 10, s%d' % T0)
    e.I('v_add_u32 v%d, v11, v10' % XV)
    e.I('v_xor_b32 v13, 64, v%d' % XV)
    e.I('v_add_u32 v%d, 3072, v13\nv_add_u32 v%d, 6144, v%d\nv_add_u32 v%d, 9216, v13' % (XV + 1, XV + 2, XV, XV + 3))
    e.I('s_and_b32 s%d, s%d, 1' % (T1, sW))
    e.I('s_lshl_b32 s%d, s%d, 1\ns_add_u32 s%d, s%d, s%d\ns_lshl_b32 s%d, s%d, 14' % (T0, sCB, T0, T0, T1, T0, T0))
    e.I('v_lshrrev_b32 v11, 5, v0\nv_lshl_add_u32 v11, v11, 3, v12')
    e.I('v_lshl_add_u32 v11, v11, 10, s%d' % T0)
    e.I('v_add_u32 v%d, v11, v10' % BV)
    e.I('v_xor_b32 v13, 64, v%d\nv_add_u32 v%d, 3072, v13' % (BV, BV + 1))
    e.I('s_lshl_b32 s%d, s%d, 12' % (sMX, sW))
    e.I('s_lshl_b32 s%d, s%d, 11\ns_add_u32 s%d, s%d, 16384' % (sMBm, sW, sMBm, sMBm))
    e.I('s_lshl_b32 s%d, s%d, 7' % (T6, sK0))
    e.wait_smem()
    st(e, 'karg')
    jitter(e, cfg, 1)
    mk_srd(e, SX, P_X, 2048 * 1024)
    e.I('s_cmp_ge_u32 s%d, 2' % sW)
    mk_srd_sel(e, SBM, P_BIM, P_BRE, 512 * 1024)

    def dma_S(i):
        slot = s_slot(i) * SLOT
        its = []
        for q in range(4):
            def f(q=q):
                if q == 0:
                    set_m0(e, sMX, slot)
                    e.I('s_add_u32 s%d, s%d, %d\ns_and_b32 s%d, s%d, 1023' % (sTS, T6, i * 128, sTS, sTS))
                e.I('buffer_load_dwordx4 v%d, %s, s%d offen offset:%d lds' % (XV + q, srd(SX), sTS, 1024 * q), tag=('st', i))
            its.append(f)
        for q in range(2):
            def f(q=q):
                if q == 0:
                    set_m0(e, sMBm, slot)
                e.I('buffer_load_dwordx4 v%d, %s, s%d offen offset:%d lds' % (BV + q, srd(SBM), sTS, 1024 * q), tag=('st', i))
            its.append(f)
        return its

    run(dma_S(0))
    st(e, 'dma0')
    s1 = dma_S(1)
    run(s1[:cfg.s1a])
    e.I('v_lshlrev_b32 v11, 2, v0\nv_add_u32 v11, %d, v11\nv_mov_b32 v12, 0' % L_FL)
    e.I('ds_write_b32 v11, v12', tag='init')
    if cfg.prewarm:
        code_touch(e, 'B')
    e.I('s_cmp_ge_u32 s%d, 2' % sW)
    mk_srd_sel(e, SW, P_WU, P_WG, 512 * 2752)
    mk_srd(e, SWS, P_WS, WS_SIZE)
    mk_srd(e, SWD, P_WD, 1376 * 1024)
    if cfg.tlb:
        sP = sMB
        e.I('s_lshr_b32 s%d, s2, 3\ns_and_b32 s%d, s%d, 3\ns_lshl_b32 s%d, s%d, 2\ns_add_u32 s%d, s%d, s%d' % (T0, T0, T0, T0, T0, T0, T0, sW))
        e.I('s_min_u32 s%d, s%d, 5\ns_lshl_b32 s%d, s%d, 21\ns_mov_b64 s[%d:%d], s[%d:%d]' % (T1, T0, T1, T1, sP, sP + 1, P_WS, P_WS + 1))
        for k, (p, off) in enumerate(((P_WG, 0), (P_WU, 0), (P_WD, 0), (P_CRE, 0), (P_CIM, 0), (P_OUT, 0), (P_OUT, 1 << 21))):
            e.I('s_cmp_eq_u32 s%d, %d\ns_cselect_b64 s[%d:%d], s[%d:%d], s[%d:%d]\ns_cselect_b32 s%d, %d, s%d' %
                (T0, 6 + k, sP, sP + 1, p, p + 1, sP, sP + 1, T1, off, T1))
        e.I('s_load_dword s3, s[%d:%d], s%d' % (sP, sP + 1, T1))
    w_lane_offsets(e, cfg, WV, 11, 12)
    frag16_addr(e, XA, 11, 12)
    for s in range(2):
        e.I('v_add_u32 v%d, s%d, v%d' % (XA + s, sMX, XA + s))
        e.I('v_add_u32 v%d, %d, v%d' % (XA + 2 + s, WIN, XA + s))
        if cfg.lag:
            e.I('v_add_u32 v%d, %d, v%d' % (XA + 4 + s, 2 * WIN, XA + s))
    w_tr_addr(e, WA, 11, 12)
    e.I('v_lshlrev_b32 v1, 4, v0')
    tch = Touch(e, cfg, 'B')
    tch.setup()
    tch.at(-1)

    sDC, sDB, sDE, sAC, sAB, sAE = 86, 87, 88, 89, 90, 91
    sD0, sF0, sD2, sF2 = T2, T3, T4, T5
    st(e, '_pro')
    sP0 = 92
    if isinstance(cfg.w0pos, tuple):
        tab = sum(p << (4 * r) for r, p in enumerate(cfg.w0pos))
        e.I('s_and_b32 s%d, s%d, 7\ns_lshl_b32 s%d, s%d, 2\ns_lshr_b32 s%d, 0x%x, s%d\ns_and_b32 s%d, s%d, 15' %
            (T0, sRB, T0, T0, sP0, tab, T0, sP0, sP0))

    def w0_hook(p):
        if cfg.w0pos == p:
            run(dma_W(e, WV, SW, 0))
        elif isinstance(cfg.w0pos, tuple) and p in cfg.w0pos:
            e.I('s_cmp_eq_u32 s%d, %d\ns_cbranch_scc1 L_w0_%d' % (sP0, p, p))
            e.label('L_w0_%d_out' % p)
            with e.cold_block():
                e.label('L_w0_%d' % p)
                run(dma_W(e, WV, SW, 0))
                e.I('s_branch L_w0_%d_out' % p)
            e.m0 = None
    run(s1[cfg.s1a:])
    st(e, '_dma1')
    w0_hook(1)
    e.wait(vm=('st', 0))
    st(e, '_sa0')
    e.I('s_barrier')
    st(e, 'b0')
    for i in range(8):
        if i == 1:
            e.I('s_mov_b32 s%d, 0x%x' % (T0, EPOCH_OFF))
            e.I('buffer_load_dword v%d, off, %s, s%d sc1' % (EP, srd(SWS), T0), tag='ep')
        if i < 6:
            run(dma_S(i + 2))
            w0_hook(i + 2)
        elif cfg.w0pos is None:
            run(dma_W(e, WV, SW, i - 6))
        elif i == 6 or 'W2' not in cfg.prog:
            run(dma_W(e, WV, SW, i - 5))
        for s in range(4):
            slot = s_slot(i)
            e.I('ds_read_b128 %s, v%d offset:%d' % (vr(128 + 4 * (4 * i + s), 4), XA + 2 * (slot >> 1) + (s >> 1), (slot & 1) * SLOT + (s & 1) * 2048), tag='x')
        if i == 4:
            e.wait(vm='ep')
            e.I('v_readfirstlane_b32 s%d, v%d' % (sNONCE, EP))
            e.I('s_add_u32 s%d, s%d, 0x%x\ns_or_b32 s%d, s%d, 1' % (sNONCE, sNONCE, PHI, sNONCE, sNONCE))
            e.I('s_mov_b32 s%d, 0x%x\ns_mov_b32 s%d, 0x%x' % (sNL2E, NLOG2E, sNL2E + 1, NLOG2E))
        if i == 2:
            step_start(e, cfg, sAC, sAB, sAE, 11)
        if i == 3:
            for k in range(3):
                e.I('s_lshl_b32 s%d, s%d, 4' % (sDC + k, sAC + k))
            for n in range(1, NPRE):
                wd_next(e, n, sDC, sDB, sDE)
        if i == 5:
            act_offsets(e, 0, sD0, sF0)
        if i == 6:
            e.I('s_add_u32 s%d, s%d, 4096\ns_add_u32 s%d, s%d, %d' % (sD2, sD0, sF2, sF0, 4 * FS))
            light_scc(e)
            e.I('s_cselect_b32 s%d, 0x%x, s%d\ns_cselect_b32 s%d, 0x%x, s%d' % (sD2, OOB, sD2, sF2, OOB, sF2))
            e.I('v_mov_b32 v7, %d\nv_mov_b32 v6, 1' % L_FL)
        if i < 7:
            e.wait(vm=('st', i + 1), lg='all')
            st(e, '_sa%d' % (i + 1))
            e.I('s_barrier')
            st(e, '_sd%d' % (i + 1))
            if i == 0:
                st(e, 'b1')
    NT = cfg.NT
    ops = []
    for j in range(8 - NT):
        for s in range(2):
            for g in range(3):
                for mf in range(4):
                    ops.append((j, s, g, mf))
    tail0 = len(ops)
    for g in range(3):
        for j in range(8 - NT, 8):
            for s in range(2):
                for mf in range(4):
                    ops.append((j, s, g, mf))
    NB, LA = 6, cfg.LA
    first = {j: min(q for q in range(len(ops)) if ops[q][0] == j) for j in range(8)}
    last = {j: max(q for q in range(len(ops)) if ops[q][0] == j) for j in range(8)}

    def rd(q, half):
        if q >= len(ops):
            return
        j, s, g, mf = ops[q]
        if q == first[j] and j <= cfg.JL and half == 0:
            e.wait(vm=('st', 8 + j), lg='all' if j in cfg.drain else 'x')
            st(e, '_a%d' % j)
            e.I('s_barrier')
            st(e, '_d%d' % j)
            if j in (0, 4, cfg.JL):
                st(e, 'b%d' % (8 + j))
            if j == 0 and cfg.prioB:
                e.I('s_setprio %d' % cfg.prioB)
        w_frag_read(e, 8 + 4 * (q % NB), WA, j, s, g, mf >> 1, mf & 1, half, ('wf', q))
        if q == last[7] and half == 1:
            cnt_add(e, 7, 6, C_CONS + 28)

    def mm(q, a):
        j, s, g, mf = ops[q]
        if a == 0 and q % 2 == 0:
            e.wait(lg=('wf', q + 1))
        t = a ^ (q & 1) if cfg.snake else a
        mfma16(e, 32 + 32 * g + 16 * (mf >> 1) + 8 * t + 4 * (mf & 1), 8 + 4 * (q % NB), 128 + 16 * j + 8 * s + 4 * t, j == 0 and s == 0)
        rd(q + LA, a)

    def act_store(k, ms=(0, 1)):
        for m in ms:
            e.I('buffer_store_dwordx4 %s, v1, %s, s%d offen offset:%d sc1' %
                (vr(136 + 8 * k + 4 * m, 4), srd(SWS), sD2 if k == 2 else sD0, 1024 * m + (2048 if k == 1 else 0)), tag=('as', k))

    def with_stores(its, k):
        if not cfg.asplit:
            return its + [lambda: act_store(k)]
        h = len(its) // 2
        return its[:h] + [lambda: act_store(k, (0,))] + its[h:] + [lambda: act_store(k, (1,))]

    def act_flag(k):
        e.wait(vm=('as', k))
        flag_store(e, EP, sF2 if k == 2 else sF0, 2 * FS if k == 1 else 0)

    for q in range(LA):
        rd(q, 0)
        rd(q, 1)
    per = 8 * NT
    for q in range(tail0 + per):
        mm(q, 0)
        mm(q, 1)
    if cfg.prioT:
        e.I('s_setprio %d' % cfg.prioT)
    if NT:
        for g in (1, 2):
            main = [lambda q=q, a=a: mm(q, a) for q in range(tail0 + g * per, tail0 + (g + 1) * per) for a in range(2)]
            fill = with_stores(act_items_scalar(e, cfg, 32 * g, 32 * g + 16, 128, 136 + 8 * (g - 1)), g - 1)
            run(main[:3] + weave(main[3:], fill))
        st(e, 'f1end')
        run(with_stores(act_items(e, cfg, 96, 112, 128, 152), 2))
    else:
        st(e, 'f1end')
        for g in range(3):
            run(with_stores(act_items(e, cfg, 32 + 32 * g, 48 + 32 * g, 128, 136 + 8 * g), g))
    if cfg.prioB or cfg.prioT:
        e.I('s_setprio 0')
    st(e, 'actst')
    jitter(e, cfg, 2)
    DA, AV, PW, WDV, EP = 2, 14, 16, 18, 23
    e.I('v_mov_b32 v%d, s%d' % (EP, sNONCE))
    e.I(wd_lane_offsets(e, WDV, 20, 21))
    e.I('v_mov_b32 v22, %d' % L_FL)
    cnt_spin(e, 'L_spinB', 22, 24, C_CONS + 28)
    st(e, 'ldsfree')

    def dma_D(n):
        sl, pos = RING[n]
        if n in PREV:
            e.wait(lg=('wr', PREV[n]))
        set_m0(e, sMW, sl * SLOT + pos * 2048)
        if n:
            wd_next(e, n, sDC, sDB, sDE)
        for q in range(2):
            e.I('buffer_load_dwordx4 v%d, %s, s%d offen offset:%d lds' % (WDV + q, srd(SWD), sDC, 1024 * q), tag=('wd', n))

    def wd_reg(n2):
        return 128 + 16 * n2 if n2 < 5 else 32 + 16 * (n2 - 5) if n2 < 7 else 128 + 16 * (n2 - 7)

    def wd_read(n, dqs=range(4)):
        sl, pos = RING[n]
        e.wait(vm=('wd', n))
        for dq in dqs:
            e.I('ds_read_b64_tr_b16 %s, v%d offset:%d' % (vr(wd_reg(n >> 1) + 4 * dq + 2 * (n & 1), 2), DA + 4 * (sl >> 1) + dq,
                                                         (sl & 1) * SLOT + pos * 2048), tag=('wr', n))

    def setup2():
        e.I('v_lshrrev_b32 v20, 2, v0\nv_lshlrev_b32 v20, 7, v20\nv_bfe_u32 v21, v0, 3, 2\nv_lshl_add_u32 v20, v21, 5, v20')
        e.I('v_and_b32 v21, 3, v0\nv_lshl_add_u32 v20, v21, 3, v20\nv_add_u32 v%d, s%d, v20' % (DA, sMW))
        for dq in range(1, 4):
            e.I('v_xor_b32 v%d, %d, v%d' % (DA + dq, 32 * dq, DA))
        for k in (1, 2):
            for dq in range(4):
                e.I('v_add_u32 v%d, %d, v%d' % (DA + 4 * k + dq, k * WIN, DA + dq))
        e.I('s_mul_i32 s%d, s%d, %d' % (T0, sRT, 2 * 88064))
        e.I('v_add_u32 v%d, s%d, v1\nv_add_u32 v%d, 88064, v%d' % (AV, T0, AV + 1, AV))
        e.I('s_mul_i32 s%d, s%d, 44\ns_mul_i32 s%d, s%d, 11\ns_add_u32 s%d, s%d, s%d\ns_mul_i32 s%d, s%d, %d\ns_add_u32 s%d, s%d, 0x%x' %
            (T0, sRT, T1, sW, T0, T0, T1, T0, T0, 2 * FS, T0, T0, AF_OFF))
        e.I('v_mul_u32_u24 v20, %d, v0' % FS)
        e.I('s_mov_b32 s%d, 0x3fffff\ns_cmp_eq_u32 s%d, 3\ns_cselect_b32 s%d, 0xfffff, s%d\ns_mov_b32 s%d, 0' % (sMA, sW, sMA, sMA, sMA + 1))

    for n in range(NPRE, 11):
        for k in range(3):
            if cfg.flagpos[k] + NPRE == n:
                if k == 2:
                    setup2()
                act_flag(k)
                if k == 2:
                    st(e, 'flagged')
        if n < 10:
            dma_D(n)
    st(e, '_d9')
    cnt_spin(e, 'L_spinB2', 22, 24, C_DONEA)
    st(e, '_da')
    jitter(e, cfg, 3)
    pulled = [0]

    def d_step(n):
        dma_D(n)
        while pulled[0] < min(14, 3 * (n - 9), n - 3):
            wd_read(pulled[0])
            pulled[0] += 1
        if n == 14:
            e.wait(lg=('wr', 9))
            set_m0(e, sMW, L_P2)
            e.I('s_mov_b64 exec, 1')
            e.I('buffer_load_dword off, %s, s%d lds' % (srd(SWD), SWD + 2), tag='init')
            e.I('s_mov_b64 exec, -1')
        if n == -cfg.posXB:
            bar_X()

    def bar_X():
        assert pulled[0] >= 12
        e.wait(vm='init', lg=('wr', 11))
        st(e, '_aX')
        e.I('s_barrier')

    for n in range(10, cfg.alook):
        d_step(n)
    st(e, 'wdiss')
    nd = cfg.alook + cfg.abet
    poll(e, 'L_pollA', 21, 20, T0, 's[%d:%d]' % (sMA, sMA + 1), lambda: [d_step(n) for n in range(cfg.alook, nd)])
    st(e, 'actrdy')
    jitter(e, cfg, 4)
    if cfg.prioF2:
        e.I('s_setprio %d' % cfg.prioF2)

    TL = cfg.TL
    sSV = 92
    NM = 11 - TL

    order = [(n2, t4) for n2 in range(NM) for t4 in range(4)] + [(n2, t4) for t4 in range(4) for n2 in range(NM, 11)]

    def a_reg(n2, t4):
        return 208 + 4 * (order.index((n2, t4)) % 12)

    pend = []
    rq = []

    def flush(n=99):
        for t in pend[:n]:
            e.I(t)
        del pend[:n]

    def a_load(n2, t4):
        if t4 == 0:
            flush()
        so = sAC if n2 < NM else sSV + n2 - NM
        e.I('buffer_load_dwordx4 %s, v%d, %s, s%d offen offset:%d sc1' % (vr(a_reg(n2, t4), 4), AV + (t4 >> 1), srd(SWS), so, 1024 * (t4 & 1)),
            tag=('a', n2, t4))
        if n2 < 10 and t4 == (3 if n2 < NM else 0):
            dst = sAC if n2 + 1 < NM else sSV + n2 + 1 - NM
            pend.append('s_add_u32 s%d, s%d, 2048' % (dst, so))
            pend.append('s_cmp_eq_u32 s%d, s%d\ns_cselect_b32 s%d, s%d, s%d' % (dst, sAE, dst, sAB, dst))
            if n2 == 9:
                pend.append('s_cmp_eq_u32 s%d, 3\ns_cselect_b32 s%d, 0x%x, s%d' % (sW, dst, OOB, dst))

    lq = []
    for k, t in enumerate(order):
        lq.append(('a', k))
        if k & 1 and nd < 22:
            lq.append(('d', nd))
            nd += 1
    dn = [cfg.alook + cfg.abet - 1]
    nis = [0]

    def issue(k, busy):
        while lq:
            t = lq[0]
            tag = ('a',) + order[k]
            nv = min(cfg.NV, cfg.NV0[0] + max(0, k - cfg.NV0[1]))
            if nis[0] > k and (len(e.vm) - 1 - e.vm.index(tag) >= nv - 1 if tag in e.vm else len(e.vm) >= nv):
                return
            if t[0] == 'a':
                if t[1] >= busy + 12:
                    return
                a_load(*order[t[1]])
                nis[0] = t[1] + 1
            else:
                d_step(t[1])
                dn[0] = t[1]
            lq.pop(0)

    wq = []
    zq = [list(g) for g in cfg.zg]
    since = [0]

    def w_pop():
        t = wq.pop(0)
        if t is not None:
            t4, i = t
            assert not rq
            hi = 32768 if t4 == 3 else 0
            set_m0(e, sMW, hi)
            e.I('ds_write_addtid_b32 v%d offset:%d' % (acc2(t4, 0) + i, t4 * SLOT - hi + 256 * i), tag=('pw', t4))
            if i == 15 and t4 == zq[0][-1]:
                since[0] = cfg.zlag + 1
        if since[0]:
            since[0] -= 1
            if since[0] == 0:
                z_bar()

    def z_bar():
        e.wait(lg=('pw', zq.pop(0)[-1]))
        e.I('s_barrier')

    def mm2(k):
        n2, t4 = order[k]
        if k == 0:
            issue(k, k)
        while rq and rq[0][0] >> 1 <= (order[k + 2][0] if k + 2 < 4 * NM + TL else 99):
            t = rq.pop(0)
            wd_read(t[0], [t[1]])
        e.wait(vm=('a', n2, t4), lg=('wr', 2 * n2 + 1))
        for dq in range(4):
            d = 3 - dq if cfg.snake and n2 < NM and t4 & 1 else dq
            mfma16(e, acc2(t4, d), a_reg(n2, t4), wd_reg(n2) + 4 * d, n2 == 0)
            if dq == 0 and lq:
                issue(k + 1, k)
            elif pend and dq < 3:
                flush(1)
            elif rq and dq < 3:
                t = rq.pop(0)
                wd_read(t[0], [t[1]])
            elif wq:
                w_pop()
        if n2 == 10:
            if t4 == 0:
                wq.extend([None, None])
            wq.extend((t4, i) for i in range(16))

    for n2 in range(NM):
        st(e, '_n%d' % n2)
        while pulled[0] <= min(2 * n2 + 5, 13):
            assert dn[0] >= pulled[0]
            wd_read(pulled[0])
            pulled[0] += 1
        if n2 == cfg.posXB:
            bar_X()
        for t4 in range(4):
            mm2(4 * n2 + t4)
        if cfg.pull0 <= n2 < cfg.pull0 + 4:
            m2 = n2 - cfg.pull0 + 7
            assert dn[0] >= 2 * m2 + 1
            rq.extend((2 * m2 + hf, dq) for hf in range(2) for dq in range(4))
    assert cfg.pull0 + 4 <= NM
    for k in range(4 * NM, 44):
        mm2(k)
    if cfg.prioF2:
        e.I('s_setprio 0')
    st(e, 'f2end')
    jitter(e, cfg, 5)
    while wq:
        w_pop()
    while zq:
        z_bar()
    st(e, 'end')
    st.flush(e)
    e.I('s_endpgm')


def gen_A(e, cfg, st):
    LR, LI, L16, L128, L256, L16S, KAP, WV = 48, 49, 50, 52, 54, 56, 58, 60
    PP = 32
    SIDX = 3
    RE, IM = 64, 80
    XA, BA = 192, 204
    CV, CA, CA4, WDV = 96, 100, 104, 108
    EV0, EV1, EOOB, ERD, ECNT, EEXP, ONE, FLA, XW, XR, P16 = range(110, 121)
    SEL = 216
    RING0 = 144
    sHD, sHF, sES, sEL, sROT, sDTX = 86, 87, 90, 91, 92, 80
    sDC, sDB, sDE = 93, 94, 95
    e.I('v_lshlrev_b32 v1, 4, v0')
    e.I('v_and_b32 v21, 0x13, v0\nv_bfe_u32 v22, v0, 2, 1\nv_lshl_add_u32 v21, v22, 3, v21\nv_bfe_u32 v22, v0, 3, 1\nv_lshl_add_u32 v21, v22, 2, v21')
    e.I('s_lshl_b32 s%d, s%d, 6' % (T0, sCB))
    e.I('v_lshl_add_u32 v21, v21, 1, s%d' % T0)
    e.I('s_lshl_b32 s%d, s%d, 2\ns_add_u32 s%d, s%d, s%d\ns_lshl_b32 s%d, s%d, 4\ns_add_u32 s%d, s%d, s%d' %
        (T3, sRB, T3, T3, sW, T3, T3, T3, T3, sCB))
    e.I('s_lshl_b32 s%d, s%d, 11' % (T2, T3))
    frag_addr(e, BA, 4, 5)
    e.wait_smem()
    st(e, '_karg')
    mk_srd(e, SX, P_X, 2048 * 1024)
    mk_srd(e, SWS, P_WS, WS_SIZE)
    e.I('s_mov_b32 s%d, 0x%x\ns_lshl_b32 s%d, s%d, 6' % (T4, EPOCH_OFF, T0, sCB))
    e.I('s_load_dword s3, s[%d:%d], s%d' % (P_WS, P_WS + 1, T4))
    for p in (P_LRE, P_LIM, P_LDT):
        e.I('s_load_dword s3, s[%d:%d], s%d' % (p, p + 1, T0))
    e.I('s_lshr_b32 s%d, s2, 3\ns_lshl_b32 s%d, s%d, 2\ns_add_u32 s%d, s%d, s%d\ns_and_b32 s%d, s%d, 15\ns_lshl_b32 s%d, s%d, 6' %
        (T0, T0, T0, T0, T0, sW, T0, T0, T0, T0))
    for p in (P_GW, P_DSK):
        e.I('s_load_dword s3, s[%d:%d], s%d' % (p, p + 1, T0))
    if cfg.prewarm:
        code_touch(e, 'A')

    def small0():
        e.I('buffer_load_dword v19, off, %s, s%d sc1' % (srd(SWS), T4), tag='ep')
        e.I('global_load_ushort v16, v21, s[%d:%d]' % (P_LRE, P_LRE + 1), tag='par')
        e.I('global_load_ushort v17, v21, s[%d:%d]' % (P_LIM, P_LIM + 1), tag='par')
        e.I('global_load_ushort v18, v21, s[%d:%d]' % (P_LDT, P_LDT + 1), tag='par')

    small1 = [lambda: e.I('global_load_dwordx4 v[44:47], v1, s[%d:%d]' % (P_GW, P_GW + 1), tag='g'),
              lambda: e.I('buffer_load_dwordx4 v[36:39], v1, %s, s%d offen' % (srd(SX), T2), tag='g'),
              lambda: e.I('buffer_load_dwordx4 v[40:43], v1, %s, s%d offen offset:1024' % (srd(SX), T2), tag='g')]
    e.I('s_lshl_b32 s%d, s%d, 3\ns_add_u32 s%d, s%d, 0x%x' % (T6, T3, T6, T6, G_OFF))

    e.I('s_lshl_b32 s%d, s%d, 12' % (T0, sW))
    for s in range(4):
        e.I('v_add_u32 v%d, s%d, v%d' % (XA + s, T0, BA + s))
        e.I('v_add_u32 v%d, %d, v%d' % (XA + 4 + s, WIN, XA + s))
        e.I('v_add_u32 v%d, %d, v%d' % (BA + 4 + s, WIN, BA + s))
        if cfg.lag:
            e.I('v_add_u32 v%d, %d, v%d\nv_add_u32 v%d, %d, v%d' % (XA + 8 + s, 2 * WIN, XA + s, BA + 8 + s, 2 * WIN, BA + s))
    w_lane_offsets(e, cfg, WV, 24, 25)
    e.I('v_lshrrev_b32 v24, 5, v0\ns_lshl_b32 s%d, s%d, 1' % (T0, sW))
    e.I('v_add_u32 v%d, s%d, v24' % (SIDX, T0))
    rot2_calc(e, cfg, sROT, 0)
    if cfg.rotS:
        e.I('s_and_b32 s%d, s%d, %d\ns_lshl_b32 s%d, s%d, %d\ns_xor_b32 s%d, s%d, s%d' % (T0, sCT, cfg.rotS[0], T0, T0, cfg.rotS[1], sROT, sROT, T0))
    e.I('s_and_b32 s%d, s%d, 1\ns_lshr_b32 s%d, s%d, 1' % (sDTX, sROT, sROT, sROT))
    e.I('s_bitcmp1_b32 s%d, 0' % sROT)
    mk_srd_sel(e, SC1, P_CIM, P_CRE, 512 * 1024)
    mk_srd_sel(e, SC2, P_CRE, P_CIM, 512 * 1024)
    mk_srd(e, SWD, P_WD, 1376 * 1024)
    step_start(e, cfg, sDC, sDB, sDE, 15)
    e.I('s_cmp_ge_u32 s%d, 2' % sW)
    mk_srd_sel(e, SWA, P_WU, P_WG, 512 * 2752)
    e.I('s_lshl_b32 s%d, s%d, 2\ns_add_u32 s%d, s%d, s%d' % (T0, sRB, T0, T0, sW))
    HW_ = 16384 + cfg.hpad[0]
    HT_ = 4 * HW_ + cfg.hpad[1]
    assert H_OFF + 64 * HT_ <= E_OFF
    e.I('s_mul_i32 s%d, s%d, %d\ns_lshr_b32 s%d, s%d, 1\ns_lshl_b32 s%d, s%d, 13\ns_add_u32 s%d, s%d, s%d' %
        (sHD, T0, HT_, T1, sCB, T1, T1, sHD, sHD, T1))
    e.I('s_lshr_b32 s%d, s%d, 2\ns_mul_i32 s%d, s%d, %d\ns_add_u32 s%d, s%d, s%d' % (T1, sCB, T1, T1, cfg.hpad[0], sHD, sHD, T1))
    e.I('s_and_b32 s%d, s%d, 1\ns_lshl_b32 s%d, s%d, 11\ns_add_u32 s%d, s%d, s%d\ns_add_u32 s%d, s%d, 0x%x' %
        (T1, sCB, T1, T1, sHD, sHD, T1, sHD, sHD, H_OFF))
    e.I('s_lshr_b32 s%d, s%d, 1\ns_lshl_b32 s%d, s%d, 4\ns_add_u32 s%d, s%d, s%d\ns_lshl_b32 s%d, s%d, 1' %
        (T1, T0, T1, T1, T1, T1, sCB, T1, T1))
    e.I('s_and_b32 s%d, s%d, 1\ns_add_u32 s%d, s%d, s%d\ns_mul_i32 s%d, s%d, %d\ns_add_u32 s%d, s%d, 0x%x' %
        (T0, T0, T1, T1, T0, T1, T1, FS, sHF, T1, HF_OFF))
    e.I('s_lshl_b32 s%d, s%d, 13\ns_add_u32 s%d, s%d, 0x%x' % (sEL, sCB, sEL, sEL, E_OFF))
    e.I('s_lshl_b32 s%d, s%d, 9\ns_add_u32 s%d, s%d, s%d\ns_cmp_eq_u32 s%d, 0\ns_cselect_b32 s%d, s%d, 0x%x' %
        (sES, sRB, sES, sES, sEL, sW, sES, sES, OOB))
    e.I('s_sub_u32 s%d, s%d, 1024' % (sEL, sEL))

    tch = Touch(e, cfg, 'A')
    tch.setup()
    tch.at(-1)

    e.I('s_lshl_b32 s%d, s%d, 9\ns_add_u32 s%d, s%d, %d' % (T0, sW, T0, T0, L_E))
    e.I('v_lshl_add_u32 v%d, v0, 3, s%d' % (XW, T0))
    e.I('v_and_b32 v6, 31, v0\nv_lshlrev_b32 v%d, 4, v6\nv_lshlrev_b32 v6, 3, v6\nv_add_u32 v%d, %d, v6' % (P16, XR, L_E))
    e.I('v_and_b32 v4, 3, v0\nv_bfe_u32 v5, v0, 3, 2\nv_lshl_add_u32 v4, v5, 2, v4')
    e.I('v_bfe_u32 v5, v0, 2, 1\nv_lshrrev_b32 v6, 5, v0\nv_xor_b32 v5, v5, v6\nv_lshl_add_u32 v4, v5, 4, v4')
    e.I('v_and_b32 v5, 1, v0\nv_lshlrev_b32 v5, 4, v5\nv_mov_b32 v6, 0x3f80\nv_lshlrev_b32 v5, v5, v6\nv_lshrrev_b32 v4, 1, v4')
    for n in range(8):
        e.I('v_cmp_eq_u32 vcc, %d, v4\nv_cndmask_b32 v%d, 0, v5, vcc' % (n, SEL + n))
    e.I('v_and_b32 v6, 7, v0\nv_lshrrev_b32 v7, 4, v0\nv_xor_b32 v6, v6, v7\nv_lshlrev_b32 v6, 4, v6')
    e.I('v_lshrrev_b32 v7, 3, v0\nv_lshl_add_u32 v6, v7, 10, v6')
    e.I('s_lshl_b32 s%d, s%d, 16\ns_lshl_b32 s%d, s%d, 8\ns_add_u32 s%d, s%d, s%d' % (T0, sCT, T1, sW, T0, T0, T1))
    e.I('v_add_u32 v%d, s%d, v6\nv_xor_b32 v7, 64, v%d' % (CV, T0, CV))
    e.I('v_add_u32 v%d, 7168, v7\nv_add_u32 v%d, 14336, v%d\nv_add_u32 v%d, 21504, v7' % (CV + 1, CV + 2, CV, CV + 3))
    frag16_addr(e, CA, 6, 7)
    for s in range(2):
        e.I('v_add_u32 v%d, s%d, v%d' % (CA + s, sMW, CA + s))
        e.I('v_add_u32 v%d, %d, v%d' % (CA4 + s, 4 * SLOT, CA + s))
    HS = CA + 2
    e.I('v_and_b32 v6, 15, v0\nv_lshlrev_b32 v6, 4, v6\nv_bfe_u32 v7, v0, 4, 1\nv_lshl_add_u32 v6, v7, 10, v6')
    e.I('v_lshrrev_b32 v7, 5, v0\nv_lshl_add_u32 v%d, v7, 8, v6' % HS)
    e.I('s_lshr_b32 s88, s%d, 1\ns_lshl_b32 s88, s88, 7\ns_lshl_b32 s89, s%d, 15\ns_add_u32 s88, s88, s89\ns_xor_b32 s89, s88, 128' % (sROT, sDTX))
    e.I(wd_lane_offsets(e, WDV, 6, 7))
    e.I('s_lshl_b32 s%d, s%d, 2\ns_sub_u32 s%d, s%d, s%d\ns_sub_u32 s%d, s%d, 1\ns_lshl_b32 s%d, s%d, 11' % (T0, sW, T0, sRB, T0, T0, T0, T5, sW))
    e.I('v_lshrrev_b32 v6, 5, v0\nv_sub_u32 v7, s%d, v6' % T0)
    e.I('v_cmp_le_i32 vcc, 0, v7\nv_cmp_le_i32 s[%d:%d], 2, v7' % (sMB, sMB + 1))
    e.I('v_lshl_add_u32 v7, v7, 9, v%d\nv_add_u32 v7, 1024, v7\nv_subrev_u32 v5, 2048, v7\nv_mov_b32 v%d, 0x%x' % (P16, EOOB, OOB))
    e.I('v_cndmask_b32 v%d, v%d, v7, vcc\nv_cndmask_b32 v%d, v%d, v5, s[%d:%d]' % (EV0, EOOB, EV1, EOOB, sMB, sMB + 1))
    e.I('v_lshl_add_u32 v7, v6, 12, v%d\nv_add_u32 v%d, %d, v7' % (P16, ERD, L_EG))
    e.I('v_lshlrev_b32 v6, 3, v6\nv_sub_u32 v%d, s%d, v6\nv_med3_i32 v%d, v%d, 0, 8' % (ECNT, sRB, EEXP, ECNT))
    e.I('v_mov_b32 v%d, 1\nv_mov_b32 v%d, %d' % (ONE, FLA, L_FL))

    pro = []
    add = lambda t: [pro.append(lambda x=x: e.I(x)) for x in t.split('\n')]

    def csq(d, a):
        add('v_mul_f32 v30, v%d, v%d\nv_mul_f32 v31, v%d, v%d\nv_fma_f32 v%d, -v%d, v%d, v30\nv_add_f32 v%d, v31, v31' %
            (a, a, a, a + 1, d, a + 1, a + 1, d + 1))

    def cmul(d, a, b):
        add('v_mul_f32 v30, v%d, v%d\nv_mul_f32 v31, v%d, v%d\nv_fma_f32 v30, -v%d, v%d, v30\nv_fma_f32 v%d, v%d, v%d, v31\nv_mov_b32 v%d, v30' %
            (a, b, a, b + 1, a + 1, b + 1, d + 1, a + 1, b, d))

    pro.append(lambda: e.wait(vm=['ep', 'par']))
    add('v_readfirstlane_b32 s%d, v19' % sNONCE)
    add('v_lshlrev_b32 v16, 16, v16\nv_lshlrev_b32 v17, 16, v17\nv_lshlrev_b32 v18, 16, v18')
    add('s_add_u32 s%d, s%d, 0x%x\ns_or_b32 s%d, s%d, 1' % (sNONCE, sNONCE, PHI, sNONCE, sNONCE))
    add('v_mul_f32 v18, 0x%x, v18\nv_exp_f32 v18, v18\nv_cvt_pk_bf16_f32 v18, v18, v18\nv_lshlrev_b32 v18, 16, v18' % LOG2E)
    add('v_mul_f32 v21, v18, v16\nv_mul_f32 v22, v18, v17')
    add('v_mul_f32 v21, 0x%x, v21\nv_exp_f32 v21, v21' % LOG2E)
    add('v_mul_f32 v22, 0.15915494, v22\nv_rndne_f32 v23, v22\nv_sub_f32 v22, v22, v23\nv_sin_f32 v23, v22\nv_cos_f32 v22, v22')
    add('v_mul_f32 v%d, v21, v23\nv_mul_f32 v%d, v21, v22' % (LI, LR))
    add('v_mul_f32 v21, v16, v16\nv_fmac_f32 v21, v17, v17\nv_rcp_f32 v21, v21\nv_add_f32 v22, -1.0, v%d\nv_add_f32 v21, v21, v21' % LR)
    add('v_mul_f32 v23, v22, v16\nv_fmac_f32 v23, v%d, v17\nv_mul_f32 v%d, v23, v21' % (LI, KAP))
    add('v_mul_f32 v23, v%d, v16\nv_fma_f32 v23, -v22, v17, v23\nv_mul_f32 v%d, v23, v21' % (LI, KAP + 1))
    csq(22, LR); csq(22, 22); csq(22, 22); csq(L16, 22)
    csq(22, L16); csq(24, 22); csq(L128, 24); csq(L256, L128); csq(L256, L256); csq(L256, L256)
    for bit, src, dst in ((1, L16, L16S), (2, 22, 22), (4, 24, 24)):
        add('v_and_b32 v26, %d, v%d\nv_cmp_ne_u32 vcc, 0, v26' % (bit, SIDX))
        add('v_cndmask_b32 v%d, 1.0, v%d, vcc\nv_cndmask_b32 v%d, 0, v%d, vcc' % (dst, src, dst + 1, src + 1))
    cmul(L16S, L16S, 22); cmul(L16S, L16S, 24)
    add('v_mul_lo_u32 v%d, v%d, s%d\nv_mov_b32 v2, s%d' % (EEXP, EEXP, sNONCE, sNONCE))

    par, pro = pro, []
    pro.append(lambda: e.wait(vm='g'))
    for k in range(4):
        add('v_lshlrev_b32 v24, 16, v%d\nv_and_b32 v25, 0xffff0000, v%d' % (44 + k, 44 + k))
        for row in range(2):
            x = 36 + 4 * row + k
            add('v_lshlrev_b32 v26, 16, v%d\nv_and_b32 v27, 0xffff0000, v%d' % (x, x))
            add('v_mul_f32 v26, v26, v24\nv_mul_f32 v27, v27, v25\nv_cvt_pk_bf16_f32 v26, v26, v27')
            add('v_lshlrev_b32 v27, 16, v26\nv_and_b32 v26, 0xffff0000, v26')
            if k == 0:
                add('v_add_f32 v%d, v26, v27' % (28 + row))
            else:
                add('v_add_f32 v26, v26, v27\nv_add_f32 v%d, v%d, v26' % (28 + row, 28 + row))
    for mod in ('row_shr:1 row_mask:0xf', 'row_shr:2 row_mask:0xf', 'row_shr:4 row_mask:0xf', 'row_shr:8 row_mask:0xf',
                'row_bcast:15 row_mask:0xa', 'row_bcast:31 row_mask:0xc'):
        for row in range(2):
            add('v_add_f32_dpp v%d, v%d, v%d %s bank_mask:0xf' % (28 + row, 28 + row, 28 + row, mod))
    add('v_cvt_pk_bf16_f32 v26, v28, v29\nv_lshlrev_b32 v28, 16, v26\nv_and_b32 v29, 0xffff0000, v26')
    add('v_mul_f32 v28, 0x%x, v28\nv_mul_f32 v29, 0x%x, v29\nv_exp_f32 v28, v28\nv_exp_f32 v29, v29' % (NLOG2E, NLOG2E))
    add('v_add_f32 v28, 1.0, v28\nv_add_f32 v29, 1.0, v29\nv_rcp_f32 v28, v28\nv_rcp_f32 v29, v29')
    add('v_cvt_pk_bf16_f32 v26, v28, v29\nv_lshlrev_b32 v28, 16, v26\nv_and_b32 v29, 0xffff0000, v26')
    gate, pro = pro, par

    gdone = []

    def g_store():
        gdone.append(1)
        e.I('s_mov_b32 exec_lo, 0\ns_mov_b32 exec_hi, 0x80000000')
        e.I('buffer_store_dwordx2 v[28:29], off, %s, s%d sc1' % (srd(SWS), T6), tag='gs')
        e.I('s_mov_b64 exec, -1')

    nbar = [0]

    def s_bar(i):
        assert nbar[0] == i
        nbar[0] += 1
        e.I('s_barrier')
        if i in (0, 7):
            st(e, 'b%d' % i)

    def s_read(n):
        i, s = n >> 2, n & 3
        slot = s_slot(i)
        if s == 0 and not cfg.lag:
            s_bar(i)
        assert nbar[0] > i
        off = (slot & 1) * SLOT
        b = RING0 + 12 * (n & 3)
        e.I('ds_read_b128 %s, v%d offset:%d' % (vr(b + 8, 4), XA + 4 * (slot >> 1) + s, off), tag=('s', n, 0))
        for part in range(2):
            e.I('ds_read_b128 %s, v%d offset:%d' % (vr(b + 4 * part, 4), BA + 4 * (slot >> 1) + s,
                                                    off + 16384 + part * 4096), tag=('s', n, part))

    def s_mm(n, part):
        e.wait(lg=('s', n, part))
        b = RING0 + 12 * (n & 3)
        mfma(e, RE + 16 * part, b + 8, b + 4 * part, n == 0)

    D = 2
    seq = []
    for n in range(32):
        seq.append(lambda n=n: (s_mm(n, 0), s_read(n + D) if n + D < 32 else None))
        seq.append(lambda n=n: s_mm(n, 1))
    st(e, '_pro')
    if cfg.lag:
        L = cfg.lag
        npar = len(pro) // max(L - 1, 1) + 1
        for i in range(L):
            s_bar(i)
            tch.at(10 + i)
            if i == 0:
                small0()
            if i >= 1:
                run(pro[(i - 1) * npar:i * npar])
        s_bar(L)
        for n in range(D):
            s_read(n)
        r2 = 2 * cfg.lagr
        for k, it in enumerate(seq):
            it()
            i = L + (k + 1) // r2
            if (k + 1) % r2 == 0 and i <= 7:
                assert (k + 1) // 2 >= 4 * (i - 3)
                s_bar(i)
    else:
        for n in range(D):
            s_read(n)
        p0 = 2 * cfg.smallpos
        run(seq[:p0])
        small0()
        run(seq[p0:p0 + 10])
        run(weave(seq[p0 + 10:56], pro) + seq[56:])
    assert nbar[0] == 8
    st(e, 's1end')
    jitter(e, cfg, 6)
    if cfg.prioA:
        e.I('s_setprio %d' % cfg.prioA)

    def items(txt):
        return [lambda t=t: e.I(t) for t in txt.split('\n')]

    def cfma(d, l, a, c):
        return items('v_fma_f32 v%d, v%d, v%d, v%d\nv_fma_f32 v%d, v%d, v%d, v%d\nv_fma_f32 v%d, -v%d, v%d, v%d\nv_fmac_f32 v%d, v%d, v%d' %
                     (d, l, a, c, d + 1, l, a + 1, c + 1, d, l + 1, a + 1, d, d + 1, l + 1, a))

    prev = (RE, IM)
    for r in range(1, 16):
        cur = (20 + 2 * (r & 1), 21 + 2 * (r & 1))
        e.I('v_fma_f32 v%d, v%d, v%d, v%d' % (cur[0], LR, prev[0], RE + r))
        e.I('v_fma_f32 v%d, v%d, v%d, v%d' % (cur[1], LR, prev[1], IM + r))
        e.I('v_fma_f32 v%d, -v%d, v%d, v%d' % (cur[0], LI, prev[1], cur[0]))
        e.I('v_fmac_f32 v%d, v%d, v%d' % (cur[1], LI, prev[0]))
        prev = cur
    e.I('ds_write_b64 v%d, %s' % (XW, vr(prev[0], 2)), tag='ex')
    e.wait(lg='all')

    def c_reg(u, s2, dq):
        return 128 + 32 * u + 16 * s2 + 4 * dq

    CBUF = cfg.cbuf
    CPREV = {i: max(k for k in range(i) if CBUF[k] == CBUF[i]) for i in range(8) if CBUF[i] in CBUF[:i]}
    cdone = set()
    hdone = []

    def c_read(i):
        if i in cdone:
            return
        cdone.add(i)
        assert i < 4 or hdone
        e.wait(vm=('c', i))
        for s in range(4):
            a_, off = (CA4 + (s >> 1), 0) if CBUF[i] == 4 else (CA + (s >> 1), CBUF[i] * SLOT)
            e.I('ds_read_b128 %s, v%d offset:%d' % (vr(c_reg(i >> 1, s >> 1, 2 * (i & 1) + (s & 1)), 4), a_, off + (s & 1) * 2048), tag=('cr', i))

    def c_loads(i):
        u, dt = i >> 1, i & 1
        its = []
        for q in range(4):
            def f(q=q):
                if q == 0:
                    if i in CPREV:
                        c_read(CPREV[i])
                        e.wait(lg=('cr', CPREV[i]))
                    elif CBUF[i] != 4 and (6 + CBUF[i] > cfg.JL or 4 + CBUF[i] >= 8 - cfg.NT):
                        assert kcur[0] >= cfg.JL
                        cnt_spin(e, 'L_cb%d' % i, FLA, 34, C_CONS + 28)
                    e.I('s_xor_b32 s%d, s%d, %d' % (sTD, 88 + (u >> 1), dt * 32768))
                set_m0(e, sMW, CBUF[i] * SLOT)
                e.I('buffer_load_dwordx4 v%d, %s, s%d offen offset:%d lds' % (CV + q, srd(SC2 if u & 1 else SC1), sTD, 1024 * q), tag=('c', i))
                if q == 3:
                    st(e, '_c%d' % i)
                if q == 3 and i >= 2:
                    c_read(i - 2)
            its.append(f)
        return its

    def d_loads(n):
        sl, pos = RING[n]
        its = []
        for q in range(2):
            def f(q=q):
                set_m0(e, sMW, sl * SLOT + pos * 2048)
                if q == 0 and n:
                    wd_next(e, n, sDC, sDB, sDE)
                e.I('buffer_load_dwordx4 v%d, %s, s%d offen offset:%d lds' % (WDV + q, srd(SWD), sDC, 1024 * q), tag='wd')
            its.append(f)
        return its

    wl = {j: dma_W(e, WV, SWA, j) for j in range(2, 8)}
    planned = set()

    def e_loads():
        its = []
        for q in range(2):
            def f(q=q):
                set_m0(e, T5, L_EG)
                e.I('buffer_load_dwordx4 v%d, %s, s%d offen offset:%d sc1 lds' % (EV0 + q, srd(SWS), sEL, 1024 * q), tag='eg')
            its.append(f)
        return its

    def expand(toks, k):
        r = []
        for t in toks.split(','):
            if not t:
                continue
            n = int(t[1])
            planned.add(t)
            if t[0] == 'W':
                assert n < 4 or k >= n - 2 or (k == n - 3 and k in cfg.drain)
                r += wl[n][:3] if t[2:] == 'a' else wl[n][3:] if t[2:] == 'b' else wl[n]
            elif t[0] == 'C':
                assert CBUF[n] == 4 or k >= min(6 + CBUF[n], cfg.JL)
                assert k >= 2 or cfg.w0pos is None
                r += c_loads(n)
            elif t[0] == 'D':
                r += d_loads(n)
            elif t[0] == 'S':
                r.append(lambda n=n: (hq[n](), hsent.add(n)))
            elif t[0] == 'G':
                r += small1
            elif t[0] == 'E':
                r += e_loads()
            elif t[0] == 'T':
                r.append(lambda n=n: tch.at(n))
        return r

    def bar(k, extra=()):
        kk = 7 if k == cfg.JL else k
        assert kk < 2 or 'W%d' % kk in planned or 'W%db' % kk in planned or (kk == 2 and cfg.w0pos is not None)
        e.wait(vm=[('st', 8 + kk)] + list(extra))
        st(e, '_a%d' % k)
        e.I('s_barrier')
        st(e, '_d%d' % k)

    sc = []
    for r in range(16):
        sc += items('v_mul_f32 v4, v%d, v%d\nv_mul_f32 v5, v%d, v%d\nv_fma_f32 v%d, v%d, v%d, -v4\nv_fma_f32 v%d, v%d, v%d, v5' %
                    (KAP + 1, IM + r, KAP + 1, RE + r, RE + r, KAP, RE + r, IM + r, KAP, IM + r))
    early = sc
    run(early[:cfg.early])
    late = early[cfg.early:]
    bar(0)
    work = []
    for s in range(8):
        e.I('ds_read_b64 %s, v%d offset:%d' % (vr(4 + 2 * s, 2), XR, 256 * s), tag=('e', s))
    pf = []
    for s in range(1, 8):
        pf.append(lambda s=s: e.wait(lg=('e', s)))
        pf += cfma(4 + 2 * s, L16, 2 + 2 * s, 4 + 2 * s)
    segs = [sg.split('|') for sg in cfg.prog.split(';')]
    q0 = expand(segs[0][0], 0)
    run(weave(q0[:cfg.pren], pf))
    e.I('v_mov_b32 v20, s%d\nv_mov_b32 v21, s%d' % (sNONCE, sNONCE))
    e.I('s_mov_b32 exec_hi, 0')
    e.I('buffer_store_dwordx4 v[18:21], v%d, %s, s%d offen sc1' % (P16, srd(SWS), sES), tag='es')
    e.I('s_mov_b32 exec_hi, -1')
    st(e, 'epub')
    jitter(e, cfg, 7)
    run(q0[cfg.pren:])
    gate.append(g_store)
    sel = items('v_mov_b32 v%d, 0\nv_mov_b32 v%d, 0' % (PP, PP + 1))
    for s in range(1, 8):
        sel.append(lambda s=s: e.I('v_cmp_eq_u32 vcc, %d, v%d\nv_cndmask_b32 v%d, v%d, v%d, vcc\nv_cndmask_b32 v%d, v%d, v%d, vcc' %
                                   (s, SIDX, PP, PP, 2 + 2 * s, PP + 1, PP + 1, 3 + 2 * s)))
    EG = 224

    def e_check():
        e.I('v_add3_u32 v4, v%d, v%d, v%d\nv_add3_u32 v5, v%d, v%d, v%d' % tuple(EG + 4 * k + 2 for k in range(6)))
        e.I('v_add3_u32 v4, v4, v%d, v%d\nv_add_u32 v4, v4, v5' % (EG + 26, EG + 30))
        e.I('v_cmp_ne_u32 vcc, v4, v%d' % EEXP)

    def e_verify():
        e.wait(lg='eg')
        e_check()
        e.I('s_cbranch_vccnz L_pollE')
        e.label('L_pollE_out')
        st(e, 'egot')
        with e.cold_block():
            e.label('L_pollE')
            e.I('s_mov_b32 s%d, 0' % sCNT)
            e.label('L_pollE_l')
            for k in range(8):
                e.I('v_subrev_u32 v4, %d, v%d\nv_cmp_le_i32 vcc, 2, v4\nv_lshl_add_u32 v4, v4, 9, v%d\nv_cndmask_b32 v4, v%d, v4, vcc' % (k - 1, ECNT, P16, EOOB))
                e.I('buffer_load_dwordx4 %s, v4, %s, s%d offen sc1' % (vr(EG + 4 * k, 4), srd(SWS), sEL))
            e.I('s_add_u32 s%d, s%d, 1' % (sCNT, sCNT))
            e.I('s_cmp_gt_u32 s%d, %d' % (sCNT, SPIN_MAX))
            e.wait(vm='all')
            e.I('s_cbranch_scc1 L_pollE_out')
            e_check()
            e.I('s_cbranch_vccnz L_pollE_l')
            e.I('s_branch L_pollE_out')

    def second_pass():
        p2 = []
        p2.append(lambda: [e.I('ds_read_b128 %s, v%d offset:%d' % (vr(EG + 4 * k, 4), ERD, 512 * k), tag='eg') for k in range(8)])
        p2.append(e_verify)
        for k in range(6, -1, -1):
            p2 += cfma(EG + 4 * k, L128, EG + 4 * k + 4, EG + 4 * k)
        p2 += items('v_mov_b32 v4, v%d\nv_mov_b32 v5, v%d\nv_permlane32_swap_b32 v4, v%d\nv_permlane32_swap_b32 v5, v%d' % (EG, EG + 1, EG, EG + 1))
        p2 += cfma(4, L256, EG, 4)
        p2 += cfma(PP, L16S, 4, PP)
        p2 += items('v_mul_f32 v6, v%d, v%d\nv_mul_f32 v7, v%d, v%d' % (KAP, PP, KAP, PP + 1))
        p2 += items('v_fma_f32 v6, -v%d, v%d, v6\nv_fmac_f32 v7, v%d, v%d' % (KAP + 1, PP + 1, KAP + 1, PP))
        prev = (6, 7)
        for r in range(16):
            p2 += items('v_fmac_f32 v%d, v%d, v%d\nv_fmac_f32 v%d, v%d, v%d\nv_fma_f32 v%d, -v%d, v%d, v%d\nv_fmac_f32 v%d, v%d, v%d' %
                        (RE + r, LR, prev[0], IM + r, LR, prev[1], RE + r, LI, prev[1], RE + r, IM + r, LI, prev[0]))
            prev = (RE + r, IM + r)
        return p2

    def store_h(loads):
        for part in range(2):
            for k in range(8):
                sg_ = '-' if part else ''
                e.I('v_cvt_pk_bf16_f32 v%d, %sv%d, %sv%d' % (8 + 8 * part + k, sg_, RE + 16 * part + 2 * k, sg_, RE + 16 * part + 2 * k + 1))
            for m in range(2):
                mfma(e, RE + 16 * part, 8 + 8 * part + 4 * m, SEL + 4 * m, m == 0)
        hdone.append(1)
        run(loads)
        e.I('s_add_u32 s%d, s%d, 4096' % (T0, sHD))
        for part in range(2):
            for m in range(2):
                o = 8 + 8 * part + 4 * m
                for k in range(4):
                    e.I('v_cvt_pk_bf16_f32 v%d, v%d, v%d' % (o + k, RE + 16 * part + 8 * m + 2 * k, RE + 16 * part + 8 * m + 2 * k + 1))
                hq.append(lambda o=o, part=part, m=m: e.I('buffer_store_dwordx4 %s, v%d, %s, s%d offen offset:%d sc1' %
                                                         (vr(o, 4), HS, srd(SWS), T0 if part else sHD, 512 * m), tag='hs'))
                if len(hq) <= cfg.hnow:
                    hq[-1]()
                    hsent.add(len(hq) - 1)

    hq = []
    hsent = set()
    kcur = [0]
    p2 = second_pass()
    for k, (toks, work) in enumerate(segs):
        if k == 0:
            continue
        if k <= cfg.JL:
            bar(k, ['eg'] if work[:1] == 'P' else [])
        kcur[0] = k
        q = expand(toks, k)
        if work == 'sel':
            run(weave(q, sel + ([] if 'late' in cfg.prog else late)))
        elif work[:1] == 'g':
            hg = len(gate) // 2
            run(weave(q, gate if work == 'g' else gate[:hg] if work == 'g0' else gate[hg:]))
        elif work == 'late':
            run(weave(q, late))
        elif work[:1] == 'P':
            assert k <= cfg.JL or work != 'P0'
            part = p2 if work == 'P' else p2[:cfg.p2cut] if work == 'P0' else p2[cfg.p2cut:]
            run(part[:1] + (weave(q, part[1:]) if q else part[1:]))
            if work == 'P1H':
                st(e, 'p2done')
                store_h([])
        elif work[:1] == 'H':
            st(e, 'p2done')
            store_h(q)
            run(expand(work[2:], k))
        elif work == 'F':
            run(hq[n] for n in range(4) if n not in hsent)
            st(e, 'hst')
            jitter(e, cfg, 8)
            run(q)
            assert gdone and len(hq) == 4
            e.wait(vm=['hs', 'gs'])
            flag_store(e, 2, sHF)
            st(e, 'hflag')
            jitter(e, cfg, 9)
        else:
            run(q)
    assert len(segs) > cfg.JL
    HV, PW = 6, 8
    rest = [i for i in range(8) if 'C%d' % i not in planned]
    run(c_loads(rest.pop(0)))
    e.I('s_mul_i32 s%d, s%d, %d\ns_mul_i32 s%d, s%d, %d\ns_add_u32 s%d, s%d, s%d\ns_add_u32 s%d, s%d, 0x%x' %
        (T0, sRT, 2 * HT_, T1, sW, HW_, T0, T0, T1, T0, T0, H_OFF))
    e.I('v_add_u32 v%d, s%d, v1\nv_add_u32 v%d, %d, v%d' % (HV, T0, HV + 1, HT_, HV))
    for u in range(4):
        e.I('s_xor_b32 s%d, s%d, %d\ns_lshl_b32 s%d, s%d, 12' % (93 + u, sROT, u, 93 + u, 93 + u))
    part_write_addr(e, PW, 12, 13, 16384, 4096, SPART)
    mk_srd(e, SOUT, P_OUT, 2048 * 2048)
    e.I('s_lshl_b32 s%d, s%d, 2\ns_add_u32 s%d, s%d, s%d\ns_mul_i32 s%d, s%d, %d\ns_add_u32 s%d, s%d, 0x%x' %
        (T0, sRT, T0, T0, sW, T0, T0, 8 * FS, T0, T0, HF_OFF))
    e.I('v_mul_u32_u24 v12, %d, v0\nv_mov_b32 v5, v2' % FS)

    def h_reg(k):
        return 16 + 4 * (k % 12)

    def h_load(k):
        n2, t4 = k >> 2, k & 3
        e.I('buffer_load_dwordx4 %s, v%d, %s, s%d offen offset:%d sc1' % (vr(h_reg(k), 4), HV + (t4 >> 1), srd(SWS), 93 + (n2 >> 1),
                                                                            2048 * (n2 & 1) + 1024 * (t4 & 1)), tag=('h', k))

    def c_finish():
        for i in range(8):
            c_read(i)
        e.wait(vm='wd')
        cnt_add(e, FLA, ONE, C_DONEA)
        st(e, 'cgot')

    while rest and rest[0] < cfg.hlook:
        run(c_loads(rest.pop(0)))
    if cfg.hlook > 8:
        c_finish()
    poll(e, 'L_pollH', 13, 12, T0, '0xff',
         lambda: ([run(c_loads(i)) for i in rest], c_finish() if cfg.hearly == 0 and cfg.hlook <= 8 else None))
    st(e, 'hrdy')
    jitter(e, cfg, 10)
    XO, RA, GV, RF = 2, 3, 4, 14
    ROWS = (0, 8, 32, 40)
    XL, DL, GL, XD, PW1 = 128, 136, 138, 144, 10
    fin = items('s_lshl_b32 s%d, s%d, 6\ns_add_u32 s%d, s%d, s%d' % (T0, sRT, T0, T0, sW))
    fin += items('v_lshrrev_b32 v12, 4, v0\nv_lshrrev_b32 v13, 2, v0\nv_and_b32 v13, 2, v13\nv_xor_b32 v12, v12, v13')
    fin += items('v_and_b32 v15, 1, v12\nv_lshl_add_u32 v13, v15, 4, s%d\nv_lshrrev_b32 v3, 1, v12\nv_lshl_add_u32 v13, v3, 2, v13' % T0)
    fin += items('v_and_b32 v14, 15, v0\ns_lshl_b32 s%d, s%d, 7' % (T1, sCT))
    fin += items('v_lshl_add_u32 v1, v14, 3, s%d' % T1)
    fin += items('v_lshl_add_u32 v%d, v13, 10, v1' % XO)
    fin += items('v_lshlrev_b32 v%d, 2, v13\nv_add_u32 v%d, 0x%x, v%d' % (GV, GV, G_OFF, GV))
    fin += items('s_lshl_b32 s%d, s%d, 8\ns_add_u32 s%d, s%d, %d' % (T2, sW, T1, T2, SPART))
    fin += items('v_lshl_add_u32 v3, v3, 10, s%d\nv_lshl_add_u32 v3, v15, 14, v3' % T1)
    fin += items('v_lshl_or_b32 v13, v15, 2, s%d\nv_xor_b32 v13, v13, v14\nv_lshl_add_u32 v%d, v13, 4, v3' % (sW, RA))
    fin += items('v_lshl_add_u32 v12, v12, 6, s%d\nv_lshrrev_b32 v13, 2, v14\nv_lshl_add_u32 v12, v13, 10, v12' % T2)
    fin += items('v_and_b32 v13, 3, v0\nv_lshl_add_u32 v%d, v13, 4, v12\nv_add_u32 v%d, %d, v%d' % (RF, RF + 1, 2 * SLOT, RF))
    fin += items('s_lshl_b32 s%d, s%d, 7' % (T0, sDTX))
    for a in range(2):
        fin += items('v_xor_b32 v%d, s%d, v%d\nv_xor_b32 v%d, 0x80, v%d' % (PW + a, T0, PW + a, PW1 + a, PW + a))
    if cfg.posX < 0:
        run(fin)
    for k in range(cfg.NVA):
        if cfg.posX < 0 and k == -1 - cfg.posX:
            assert k >= cfg.hearly
            e.wait(lg='all')
            e.I('s_barrier')
        if k == cfg.hearly // 2 and k:
            c_read(6)
        if k == cfg.hearly and k:
            c_finish()
        h_load(k)
    e.wait(lg='all')
    if cfg.posX >= 0:
        run(fin)

    def fx_loads():
        e.I('global_load_dwordx2 %s, v1, s[%d:%d]' % (vr(DL, 2), P_DSK, P_DSK + 1), tag='fx')
        for n in range(4):
            e.I('s_mov_b32 s%d, %d' % (T2, 1024 * ROWS[n]))
            e.I('buffer_load_dwordx2 %s, v%d, %s, s%d offen' % (vr(XL + 2 * n, 2), XO, srd(SX), T2), tag='fx')

    def g_loads():
        for n in range(4):
            e.I('buffer_load_dword v%d, v%d, %s, 0 offen offset:%d sc1' % (GL + n, GV, srd(SWS), 4 * ROWS[n]), tag='fg')

    DU = 160
    xd = [lambda: e.wait(vm='fx')]
    xd += items('v_lshlrev_b32 v%d, 16, v%d\nv_and_b32 v%d, 0xffff0000, v%d\nv_lshlrev_b32 v%d, 16, v%d\nv_and_b32 v%d, 0xffff0000, v%d' %
                (DU, DL, DU + 1, DL, DU + 2, DL + 1, DU + 3, DL + 1))
    for n in range(4):
        for k in range(2):
            x = XL + 2 * n + k
            xd += items('v_lshlrev_b32 v12, 16, v%d\nv_and_b32 v13, 0xffff0000, v%d' % (x, x))
            xd += items('v_mul_f32 v12, v12, v%d\nv_mul_f32 v13, v13, v%d' % (DU + 2 * k, DU + 1 + 2 * k))
            xd += items('v_cvt_pk_bf16_f32 v13, v12, v13')
            xd += items('v_lshlrev_b32 v%d, 16, v13\nv_and_b32 v%d, 0xffff0000, v13' % (XD + 4 * n + 2 * k, XD + 4 * n + 2 * k + 1))
    xd += items('v_mov_b32 v12, %d\nv_mov_b32 v13, 1\nv_lshlrev_b32 v%d, 1, v%d' % (L_P2, XO, XO))

    def s2_step(k):
        n2, t4 = k >> 2, k & 3
        if k == 2 * cfg.posX:
            e.I('s_barrier')
        e.wait(vm=('h', k))
        for dq in range(4):
            d = 3 - dq if cfg.snake and t4 & 1 else dq
            mfma16(e, acc2(t4, d), c_reg(n2 >> 1, n2 & 1, d), h_reg(k), n2 == 0)
            if dq == (0 if cfg.NVA < 12 else 3) and k + cfg.NVA < 32:
                h_load(k + cfg.NVA)
        if k == 8:
            fx_loads()
        if k == max(8, 2 * cfg.posX):
            g_loads()
    steps = [lambda k=k: s2_step(k) for k in range(32)]
    if cfg.xdpos < 32:
        run(steps[:cfg.xdpos] + weave(steps[cfg.xdpos:], xd))
    else:
        run(steps + xd[-3:])
    st(e, 's2end')
    jitter(e, cfg, 11)
    if cfg.posX == 16:
        e.I('s_barrier')
        g_loads()
    st(e, '_X')
    run(part_write(e, PW, 16384, 0, PW1) + part_write(e, PW, 16384, 1, PW1))
    cnt_add(e, 12, 13, 0)
    if cfg.xdpos >= 32:
        run(xd[:-1])
    OM = 164
    e.wait(vm='fg')
    for n in range(4):
        e.I('v_sub_f32 v%d, 1.0, v%d' % (OM + n, GL + n))
        e.I('v_cvt_pk_bf16_f32 v%d, v%d, v%d\nv_lshlrev_b32 v%d, 16, v%d' % (OM + n, OM + n, OM + n, OM + n, OM + n))
    for n in range(4):
        e.I('s_mov_b32 s%d, %d' % (T2 + n, 2048 * ROWS[n]))
    e.I('s_lshl_b32 s%d, s%d, 5\ns_add_u32 s%d, s%d, s%d\ns_lshl_b32 s%d, s%d, 8\ns_add_u32 s%d, s%d, s%d' %
        (T0, sCT, T0, T0, sRT, T1, sW, T0, T0, T1))
    e.I('s_cmp_eq_u32 s%d, 31\ns_cselect_b32 s%d, 0x%x, s%d' % (T0, T0, EPOCH_OFF, SWS + 2))
    flag_store(e, 5, T0)
    cnt_spin(e, 'L_spinM', 12, 16, 0)
    e.wait(lg='all')
    for n in range(4):
        for w in range(4):
            e.I('ds_read_b128 %s, v%d offset:%d' % (vr(64 + 16 * n + 4 * w, 4), RA, w * 4096 + (n & 1) * 2048 + (n >> 1) * 32768), tag=('r', n))
    BS = XD
    for n in range(4):
        e.wait(lg=('r', n))
        b = 64 + 16 * n
        for k in range(4):
            e.I('v_add_f32 v%d, v%d, v%d\nv_add_f32 v%d, v%d, v%d' % (b + k, b + k, b + 4 + k, b + 8 + k, b + 8 + k, b + 12 + k))
        for k in range(4):
            e.I('v_add_f32 v%d, v%d, v%d' % (b + k, b + k, b + 8 + k))
        for k in range(4):
            e.I('v_add_f32 v%d, v%d, v%d' % (b + k, b + k, XD + 4 * n + k))
        for k in range(4):
            e.I('v_mul_f32 v%d, v%d, v%d' % (BS + 4 * n + k, GL + n, b + k))
    st(e, 'pre')
    jitter(e, cfg, 12)
    for grp in cfg.zg:
        e.I('s_barrier')
        st(e, 'Z' if 3 in grp else '_Z%d' % grp[0])
        for n in grp:
            for w in range(4):
                e.I('ds_read_b128 %s, v%d offset:%d' % (vr(64 + 16 * n + 4 * w, 4), RF + (n >> 1), w * 6144 + (n & 1) * SLOT), tag=('r', n, w >> 1))
        for n in grp:
            b = 64 + 16 * n
            for o, p in ((0, 4), (8, 12), (0, 8)):
                e.wait(lg=('r', n, o >> 3))
                if 3 in grp:
                    for k in (0, 2):
                        e.I('v_pk_add_f32 %s, %s, %s' % (vr(b + o + k, 2), vr(b + o + k, 2), vr(b + p + k, 2)))
                else:
                    for k in range(4):
                        e.I('v_add_f32 v%d, v%d, v%d' % (b + o + k, b + o + k, b + p + k))
            if cfg.mimic2:
                for rnd in range(2):
                    e.I('v_cvt_pk_bf16_f32 v%d, v%d, v%d\nv_cvt_pk_bf16_f32 v%d, v%d, v%d' % (b + 1, b, b + 1, b + 3, b + 2, b + 3))
                    for k in (0, 2):
                        e.I('v_lshlrev_b32 v%d, 16, v%d\nv_and_b32 v%d, 0xffff0000, v%d' % (b + k, b + k + 1, b + k + 1, b + k + 1))
                    if rnd == 0:
                        for k in range(4):
                            e.I('v_mul_f32 v%d, v%d, v%d' % (b + k, OM + n, b + k))
                for k in (0, 2):
                    e.I('v_pk_add_f32 %s, %s, %s' % (vr(b + k, 2), vr(b + k, 2), vr(BS + 4 * n + k, 2)))
            else:
                for k in range(4):
                    e.I('v_fma_f32 v%d, v%d, v%d, v%d' % (b + k, OM + n, b + k, BS + 4 * n + k))
            e.I('buffer_store_dwordx4 %s, v%d, %s, s%d offen %s' % (vr(b, 4), XO, srd(SOUT), T2 + n, cfg.outflags if isinstance(cfg.outflags, str) else cfg.outflags[n]), tag='out')
    if st.on:
        e.wait(vm='all')
    st(e, 'end')
    st.flush(e)


HEADER = open(os.path.join(os.path.dirname(os.path.abspath(__file__)), '..', 'cdna_kernels', BASE + '.s.ref')).read()


def generate(cfg):
    SLEEP[:] = cfg.sleep
    W_SLOT[0] = 0 if cfg.w0pos is None else 4
    S_SHIFT[0] = -1 if cfg.lag else 0 if cfg.w0pos is None else 1
    assert cfg.w0pos is None
    hdr = []
    for line in HEADER.split('\n'):
        if not line.startswith(';'):
            break
        if '@launch' in line:
            line = '; @launch grid=(256,1,1) block=(512,1,1) lds=%d' % LDS_BYTES
            if cfg.pre_kernel is not None:
                line = '; @launch kernel=%s grid=(256,1,1) block=(512,1,1) lds=%d' % (NAME, LDS_BYTES)
                if cfg.pre_kernel:
                    line = '; @launch kernel=warm_kernel grid=(256,1,1) block=(256,1,1) lds=0\n' + line
        hdr.append(line)
    stB = Stamps(cfg, [38, 6, 8, 14, 16, 18, 20, 22, 30, 32, 34, 4, 10, 12, 24, 26], 'B')
    stA = Stamps(cfg, [38, 10, 12, 22, 34, 24, 26, 6, 8, 18, 28, 14, 16, 30, 36, 4], 'A')
    e = Em()
    gen_entry(e, cfg, stB)
    stA.names = list(stB.names)
    eA = Em()
    eA.hist = list(e.hist)
    gen_B(e, cfg, stB)
    gen_A(eA, cfg, stA)
    txt = '\n'.join(hdr) + '\n'
    txt += '.amdgcn_target "amdgcn-amd-amdhsa--gfx950"\n.text\n.globl %s\n.p2align 8\n.type %s,@function\n%s:\n' % (NAME, NAME, NAME)
    txt += e.text() + '\n' + '\n'.join(e.cold) + '\n.p2align 6\nL_A:\n' + eA.text() + '\n    s_endpgm\n' + '\n'.join(eA.cold) + '\nL_end:\n    s_endpgm\n'
    if cfg.pre_kernel:
        w = Em()
        w.I('s_cmp_ge_u32 s2, 256\ns_cbranch_scc1 L_wend')
        if cfg.pre_kernel != 'empty':
            w.I('s_load_dwordx16 s[4:19], s[0:1], 0\ns_load_dwordx16 s[20:35], s[0:1], 64')
            w.I('s_lshl_b32 s3, s2, 8\nv_add_u32 v0, s3, v0\nv_lshlrev_b32 v1, 7, v0')
            w.wait_smem()
            base = 0
            for p, n in ((P_X, 2048 * 1024), (P_BRE, 524288), (P_BIM, 524288), (P_WG, 1409024), (P_WU, 1409024), (P_CRE, 524288), (P_CIM, 524288), (P_WD, 1409024)):
                mk_srd(w, 40, p, n)
                w.I('v_subrev_u32 v2, %d, v1\nv_cmp_gt_u32 vcc, %d, v2\ns_and_saveexec_b64 s[44:45], vcc\ns_cbranch_execz L_w%d' % (base, n, p))
                w.I('buffer_load_dword v3, v2, s[40:43], 0 offen')
                w.label('L_w%d' % p)
                w.I('s_mov_b64 exec, s[44:45]')
                base += n
            if cfg.pre_kernel == 'wait':
                w.I('s_waitcnt vmcnt(0)')
        txt += '.globl warm_kernel\n.p2align 8\n.type warm_kernel,@function\nwarm_kernel:\n' + w.text() + '\nL_wend:\n    s_endpgm\n'
    txt += '''.section .rodata,"a"
.p2align 6
.amdhsa_kernel %s
  .amdhsa_next_free_vgpr 256
  .amdhsa_next_free_sgpr 102
  .amdhsa_accum_offset 256
  .amdhsa_group_segment_fixed_size 0
  .amdhsa_kernarg_size 136
  .amdhsa_user_sgpr_count 2
  .amdhsa_user_sgpr_kernarg_segment_ptr 1
  .amdhsa_system_sgpr_workgroup_id_x 1
  .amdhsa_float_denorm_mode_32 3
.end_amdhsa_kernel
''' % NAME
    if cfg.pre_kernel:
        txt += '''.p2align 6
.amdhsa_kernel warm_kernel
  .amdhsa_next_free_vgpr 8
  .amdhsa_next_free_sgpr 48
  .amdhsa_accum_offset 8
  .amdhsa_group_segment_fixed_size 0
  .amdhsa_kernarg_size 136
  .amdhsa_user_sgpr_count 2
  .amdhsa_user_sgpr_kernarg_segment_ptr 1
  .amdhsa_system_sgpr_workgroup_id_x 1
.end_amdhsa_kernel
'''
    info = dict(A=eA.count, B=e.count, nopsA=eA.nops, nopsB=e.nops, stampsA=stA.names, stampsB=stB.names)
    return txt, info


def cfg_from(args):
    cfg = Cfg()
    for a in args:
        k, v = a.split('=')
        setattr(cfg, k, eval(v))
    return cfg


if __name__ == '__main__':
    out = sys.argv[1]
    cfg = cfg_from(sys.argv[2:])
    txt, info = generate(cfg)
    open(out, 'w').write(txt)
    print(info)
```

```python
import sys, os
sys.path.insert(0, os.path.dirname(os.path.abspath(__file__)))
from em import Em, weave

BASE = 'gated_mix__ssm_conv_s5__swiglu_ffn__prompt'
NAME = BASE + '_kernel'

ACT_OFF = 0
H_OFF = 0x600000
E_OFF = 0xB00000
G_OFF = 0xB20000
HF_OFF = 0xB24000
AF_OFF = 0xB30000
EPOCH_OFF = 0xB48000
STAMP_OFF = 0xB50000
WS_SIZE = 0xB80000
OOB = 0x2000000
FS = 32
PHI = 0x9E3779B8

SLOT = 24576
WIN = 49152
SCR = 147456
SPART = 98304
L_E, L_FL, L_EG = SCR, SCR + 4096, SCR + 8192
L_P2 = 3 * SLOT + 4096
LDS_BYTES = 163840

P_X, P_LRE, P_LIM, P_BRE, P_BIM, P_CRE, P_CIM, P_LDT = 4, 6, 8, 10, 12, 14, 16, 18
P_DSK, P_BX, P_WG, P_WU, P_WD, P_GW, P_OUT, P_DBG, P_WS = 20, 22, 24, 26, 28, 30, 32, 34, 36
SX, SWS = 40, 44
SBM, SW, SWD = 48, 52, 56
SC1, SC2, SOUT, SCODE = 48, 52, 56, 60
SWA = 60
sWAVE, sW, sRB, sCB, sK0, sRT, sCT, sNONCE, sSG0 = 64, 65, 66, 67, 68, 69, 70, 71, 72
T0, T1, T2, T3, T4, T5, T6 = 73, 74, 75, 76, 77, 78, 79
sNL2E = 80
sMA, sMB = 82, 84
sTBL = 86
sCNT = 97
sTS, sTW, sTD = 98, 99, 100
sMX, sMBm = 60, 61
sMW = 101
SPIN_MAX = 200000

SLEEP = [0, 0]
FL = {}


def ntf(key, stage):
    return 'nt ' if stage < FL.get(key, 0) else ''


LOG2E = 0x3fb8aa3b
NLOG2E = 0xbfb8aa3b


class Cfg:
    mimic = False
    mimic2 = False
    stamps = False
    rot1 = (2, 0, 2, 1)
    rot2 = 7
    rotF = 0
    rotS = None
    map2 = 84
    prewarm = 'v'
    pwn = 4
    NT = 2
    early = 200
    w0pos = None
    s1a = 2
    smallpos = 2
    tlb = False
    pre_kernel = None
    lag = 0
    lagr = 4
    JL = 7
    prog = 'W2,G0|;W3,C0|sel;W4|g0;E0,W5,D0,D1,D2,D3|g1;W6|P0;W7|P1H;|;C1,C2,C3|F'
    p2cut = 80
    cbuf = (4, 0, 1, 4, 0, 1, 4, 0)
    tplan = ()
    zfill = True
    prioB = 0
    LA = 4
    posX = 8
    pren = 4
    asplit = True
    prioT = 1
    drain = ()
    hpad = (0, 0)
    hlook = 9
    hearly = 0
    hnow = 4
    sleep = (1, 1)
    skip = ''
    flagpos = (0, 0, 3)
    alook = 18
    abet = 3
    posXB = -17
    fine = True
    snake = True
    nt = {}
    ksplit = False
    pksc = True
    jitter = 0
    prioF2 = 1
    NVA = 11
    NV0 = (12, 0)
    xdpos = 32
    NV = 12
    TL = 4
    pull0 = 3
    zg = ((0, 1), (2, 3))
    zlag = 3
    outflags = 'sc1'
    selA = None
    selB = None
    prioA = 0
    amp = None


def srd(r):
    return 's[%d:%d]' % (r, r + 3)


def vr(a, n):
    return 'v[%d:%d]' % (a, a + n - 1) if n > 1 else 'v%d' % a


def mk_srd(e, r, p, nbytes):
    e.I('s_mov_b32 s%d, s%d\ns_mov_b32 s%d, s%d\ns_mov_b32 s%d, 0x%x\ns_mov_b32 s%d, 0x20000' %
        (r, p, r + 1, p + 1, r + 2, nbytes, r + 3))


def mk_srd_sel(e, r, p1, p0, nbytes):
    e.I('s_cselect_b32 s%d, s%d, s%d\ns_cselect_b32 s%d, s%d, s%d\ns_mov_b32 s%d, 0x%x\ns_mov_b32 s%d, 0x20000' %
        (r, p1, p0, r + 1, p1 + 1, p0 + 1, r + 2, nbytes, r + 3))


def mfma(e, d, a, b, first):
    e.I('v_mfma_f32_32x32x16_bf16 %s, %s, %s, %s' % (vr(d, 16), vr(a, 4), vr(b, 4), '0' if first else vr(d, 16)))


def mfma16(e, d, a, b, first):
    e.I('v_mfma_f32_16x16x32_bf16 %s, %s, %s, %s' % (vr(d, 4), vr(a, 4), vr(b, 4), '0' if first else vr(d, 4)))


class Stamps:
    def __init__(self, cfg, regs, role):
        self.amp = cfg.amp if cfg.amp else None
        self.role = role
        self.sel = (cfg.selA if role == 'A' else cfg.selB)
        if self.sel is not None:
            self.sel = self.sel.split(',')
        self.ins = 's_memtime' if cfg.stamps == 'cyc' else 's_memrealtime'
        self.on = cfg.stamps or bool(self.amp)
        self.regs = regs
        self.names = []

    def __call__(self, e, name):
        if not self.on:
            return
        if self.sel is not None:
            if name != 'start' and name not in self.sel:
                return
        elif name.startswith('_'):
            return
        r = self.regs[len(self.names)]
        self.names.append(name)
        if self.amp and name not in ('start', 'end', self.amp[1], self.amp[2]):
            return
        e.I('%s s[%d:%d]' % (self.ins, r, r + 1))

    def flush(self, e):
        if not self.on:
            return
        e.wait_smem()
        if self.amp:
            if self.amp[0] == self.role:
                R = dict(zip(self.names, self.regs))
                e.I('s_sub_u32 s%d, s%d, s%d\ns_mul_i32 s%d, s%d, %d\ns_min_u32 s%d, s%d, 50000' %
                    (T0, R[self.amp[2]], R[self.amp[1]], T0, T0, self.amp[3], T0, T0))
                e.label('L_amp')
                e.I('s_memrealtime s[%d:%d]' % (T1, T1 + 1))
                e.wait_smem()
                e.I('s_sub_u32 s%d, s%d, s%d\ns_cmp_lt_u32 s%d, s%d\ns_cbranch_scc1 L_amp' % (T1, T1, R['end'], T1, T0))
            return
        e.I('s_lshl_b32 s%d, s2, 3\ns_add_u32 s%d, s%d, s%d\ns_lshl_b32 s%d, s%d, 6\ns_add_u32 s%d, s%d, 0x%x' %
            (T0, T0, T0, sWAVE, T0, T0, T0, T0, STAMP_OFF))
        e.I('s_mov_b64 exec, 1')
        for k in range(len(self.names)):
            e.I('v_mov_b32 v2, s%d' % self.regs[k])
            e.I('buffer_store_dword v2, off, %s, s%d offset:%d' % (srd(SWS), T0, 4 * k))


def jitter(e, cfg, key):
    if not cfg.jitter:
        return
    lab = 'L_jit%d' % key
    e.settle()
    e.I('s_lshl_b32 s%d, s2, 3\ns_add_u32 s%d, s%d, s%d' % (sCNT, sCNT, sCNT, sWAVE))
    e.I('s_mul_i32 s%d, s%d, 0x%x\ns_lshr_b32 s%d, s%d, 28' % (sCNT, sCNT, (0x9E3779B1 * (2 * key * cfg.jitter + 1)) & 0xffffffff, sCNT, sCNT))
    e.I('s_cmp_lt_u32 s%d, 12\ns_cbranch_scc1 %s_out' % (sCNT, lab))
    e.label(lab)
    e.I('s_sleep 40\ns_add_u32 s%d, s%d, 1\ns_cmp_lt_u32 s%d, 17\ns_cbranch_scc1 %s' % (sCNT, sCNT, sCNT, lab))
    e.label(lab + '_out')


def run(items):
    for it in items:
        it()


def poll(e, label, vt, vaddr, soff, mask, between=None):
    def look(tag=None):
        e.I('s_mov_b64 exec, %s' % mask)
        e.I('buffer_load_dword v%d, v%d, %s, s%d offen sc1' % (vt, vaddr, srd(SWS), soff), tag=tag)
        e.I('s_mov_b64 exec, -1')

    def check():
        e.I('v_cmp_ne_u32 vcc, s%d, v%d' % (sNONCE, vt))
        e.I('s_and_b64 vcc, vcc, %s' % mask)
    spin(e, label, look, check, between)


def spin(e, label, look, check, between):
    look('look')
    if between:
        between()
    e.wait(vm='look')
    check()
    e.I('s_cbranch_scc1 %s' % label)
    e.label(label + '_out')
    with e.cold_block():
        e.label(label)
        e.I('s_mov_b32 s%d, 0' % sCNT)
        e.label(label + '_l')
        if SLEEP[0]:
            e.I('s_sleep %d' % SLEEP[0])
        look()
        e.I('s_add_u32 s%d, s%d, 1' % (sCNT, sCNT))
        e.I('s_cmp_gt_u32 s%d, %d' % (sCNT, SPIN_MAX))
        e.wait(vm='all')
        e.I('s_cbranch_scc1 %s_out' % label)
        check()
        e.I('s_cbranch_scc1 %s_l' % label)
        e.I('s_branch %s_out' % label)


def code_touch(e, tag):
    e.I('s_getpc_b64 s[%d:%d]' % (sMA, sMA + 1))
    e.label('L_pc' + tag)
    e.I('s_sub_u32 s%d, s%d, L_pc%s-%s\ns_subb_u32 s%d, s%d, 0' % (sMA, sMA, tag, NAME, sMA + 1, sMA + 1))
    e.I('s_and_b32 s%d, s2, 0xf8\ns_add_u32 s%d, s%d, s%d\ns_lshl_b32 s%d, s%d, 6' % (T0, T0, T0, sWAVE, T0, T0))
    e.I('s_load_dword s3, s[%d:%d], s%d' % (sMA, sMA + 1, T0))
    e.I('s_add_u32 s%d, s%d, 16384\ns_min_u32 s%d, s%d, L_end-%s' % (T0, T0, T0, T0, NAME))
    e.I('s_load_dword s3, s[%d:%d], s%d' % (sMA, sMA + 1, T0))


def rot2_calc(e, cfg, dst, b):
    e.I('s_mul_i32 s%d, s%d, %d' % (dst, sCT, b))
    for k in range(1 if cfg.map2 == 84 else 2):
        e.I('s_add_u32 s%d, s%d, s%d' % (dst, dst, sRT))
    e.I('s_and_b32 s%d, s%d, %d' % (dst, dst, cfg.rot2))


def step_start(e, cfg, cur, beg, end, shift):
    rot2_calc(e, cfg, cur, cfg.rotF)
    e.I('s_cmp_eq_u32 s%d, 3\ns_cselect_b32 s%d, 10, 11' % (sW, end))
    e.I('s_mul_i32 s%d, s%d, s%d\ns_lshr_b32 s%d, s%d, 3\ns_mul_i32 s%d, s%d, 11' % (cur, cur, end, cur, cur, beg, sW))
    e.I('s_add_u32 s%d, s%d, s%d\ns_add_u32 s%d, s%d, s%d' % (cur, cur, beg, end, end, beg))
    for r in (cur, beg, end):
        e.I('s_lshl_b32 s%d, s%d, %d' % (r, r, shift))


def step_next(e, cur, beg, end, inc, wrap=True, last=False):
    e.I('s_add_u32 s%d, s%d, %d' % (cur, cur, inc))
    if wrap:
        e.I('s_cmp_eq_u32 s%d, s%d\ns_cselect_b32 s%d, s%d, s%d' % (cur, end, cur, beg, cur))
    if last:
        e.I('s_cmp_eq_u32 s%d, 3\ns_cselect_b32 s%d, 0x%x, s%d' % (sW, cur, OOB, cur))


def wd_next(e, n, cur, beg, end):
    step_next(e, cur, beg, end, 16384, n % 2 == 0, n == 20)


def set_m0(e, base, off):
    if getattr(e, 'm0', None) != (base, off):
        e.I('s_add_u32 m0, s%d, %d' % (base, off))
        e.m0 = (base, off)


def wd_lane_offsets(e, WDV, t0, t1):
    txt = 'v_lshrrev_b32 v%d, 4, v0\nv_lshlrev_b32 v%d, 1, v%d\nv_and_b32 v%d, 7, v0\nv_xor_b32 v%d, v%d, v%d\nv_lshlrev_b32 v%d, 4, v%d\n' % (
        t0, t0, t0, t1, t0, t0, t1, t0, t0)
    txt += 'v_lshrrev_b32 v%d, 3, v0\nv_lshl_add_u32 v%d, v%d, 10, v%d\n' % (t1, t0, t1, t0)
    txt += 's_lshl_b32 s%d, s%d, 7\n' % (T0, sCT)
    txt += 'v_add_u32 v%d, s%d, v%d\nv_add_u32 v%d, 7168, v%d' % (WDV, T0, t0, WDV + 1, WDV)
    return txt


RING = [(5, n) for n in range(3)] + [(4, 2)] + [(2 + n // 3, n % 3) for n in range(6)] + [(4, n) for n in range(2)] \
    + [(n // 3, n % 3) for n in range(6)] + [(2, n) for n in range(3)] + [(3, 0)]
PREV = {18: 4, 19: 5, 20: 6, 21: 7}


class Touch:
    def __init__(self, e, cfg, role):
        self.e, self.role = e, role
        self.plan = [p for p in cfg.tplan if p[0] == role]
        it = []
        for par in range(2):
            for p in (P_CRE, P_CIM):
                it += [(p, 128 * k + 64 * par) for k in range(4)]
        for par in range(2):
            it += [(P_WD, 128 * k + 64 * par) for k in range(11)]
        self.items = it

    def setup(self):
        if not self.plan:
            return
        e = self.e
        used = {self.items[k][0] for p in self.plan for k in range(p[2], p[3])}
        e.I('s_lshl_b32 s%d, s2, 2\ns_add_u32 s%d, s%d, s%d' % (T0, T0, T0, sW))
        for p in sorted(used):
            e.I('s_mul_i32 s%d, s%d, %d' % (T1, T0, 1376 if p == P_WD else 512))
            e.I('s_add_u32 s%d, s%d, s%d\ns_addc_u32 s%d, s%d, 0' % (p, p, T1, p + 1, p + 1))

    def at(self, place):
        for p in self.plan:
            if p[1] == place:
                for k in range(p[2], p[3]):
                    self.e.I('s_load_dword s3, s[%d:%d], %d' % (self.items[k][0], self.items[k][0] + 1, self.items[k][1]))


def flag_store(e, vt, soff, imm=0):
    e.I('s_mov_b64 exec, 1')
    e.I('buffer_store_dword v%d, off, %s, s%d offset:%d sc1' % (vt, srd(SWS), soff, imm), tag='flag')
    e.I('s_mov_b64 exec, -1')


def frag_addr(e, dst, t0, t1):
    e.I('v_lshrrev_b32 v%d, 5, v0' % t0)
    e.I('v_bfe_u32 v%d, v0, 1, 3' % t1)
    e.I('v_xor_b32 v%d, v%d, v%d' % (t0, t0, t1))
    e.I('v_and_b32 v%d, 31, v0' % t1)
    e.I('v_lshlrev_b32 v%d, 7, v%d' % (t1, t1))
    e.I('v_lshl_add_u32 v%d, v%d, 4, v%d' % (dst, t0, t1))
    for s in range(1, 4):
        e.I('v_xor_b32 v%d, %d, v%d' % (dst + s, 32 * s, dst))


def frag16_addr(e, dst, t0, t1):
    e.I('v_lshrrev_b32 v%d, 4, v0' % t0)
    e.I('v_bfe_u32 v%d, v0, 1, 3' % t1)
    e.I('v_xor_b32 v%d, v%d, v%d' % (t0, t0, t1))
    e.I('v_and_b32 v%d, 15, v0' % t1)
    e.I('v_lshlrev_b32 v%d, 7, v%d' % (t1, t1))
    e.I('v_lshl_add_u32 v%d, v%d, 4, v%d' % (dst, t0, t1))
    e.I('v_xor_b32 v%d, 64, v%d' % (dst + 1, dst))


def w_tr_addr(e, d, t0, t1):
    e.I('v_lshrrev_b32 v%d, 4, v0' % t0)
    e.I('v_bfe_u32 v%d, v0, 2, 2' % t1)
    e.I('v_lshl_add_u32 v%d, v%d, 3, v%d' % (t0, t0, t1))
    e.I('v_mul_u32_u24 v%d, 192, v%d' % (t0, t0))
    e.I('v_bfe_u32 v%d, v0, 4, 1' % t1)
    e.I('v_lshl_add_u32 v%d, v%d, 5, v%d' % (t0, t1, t0))
    e.I('v_and_b32 v%d, 3, v0' % t1)
    e.I('v_lshl_add_u32 v%d, v%d, 3, v%d' % (d, t1, t0))
    e.I('v_xor_b32 v%d, 32, v%d' % (d + 1, d))
    e.I('v_add_u32 v%d, %d, v%d\nv_add_u32 v%d, %d, v%d' % (d + 2, WIN, d, d + 3, WIN, d + 1))


W_SLOT = [0, 1, 2, 3, 0, 1, 2, 3]
S_SHIFT = [0]


def s_slot(i):
    return (i + 4) % 6 if S_SHIFT[0] < 0 else (i + S_SHIFT[0]) % 4


def w_frag_read(e, dst, wa, j, s2, g, mat, fh, mm, tag):
    slot = W_SLOT[j]
    off = (slot & 1) * SLOT + mat * 12288 + (32 * s2 + 4 * mm) * 192 + g * 64
    e.I('ds_read_b64_tr_b16 %s, v%d offset:%d' % (vr(dst + 2 * mm, 2), wa + 2 * (slot >> 1) + fh, off), tag=tag)


def act_items(e, cfg, G, U, tmp, out):
    items = []
    add = lambda t: items.append(lambda t=t: e.I(t))
    for b in range(2):
        g, u, o = G + 8 * b, U + 8 * b, out + 4 * b
        if cfg.mimic:
            for src in (g, u):
                for p in range(4):
                    add('v_cvt_pk_bf16_f32 v%d, v%d, v%d' % (tmp + p, src + 2 * p, src + 2 * p + 1))
                for p in range(4):
                    add('v_lshlrev_b32 v%d, 16, v%d' % (src + 2 * p, tmp + p))
                    add('v_and_b32 v%d, 0xffff0000, v%d' % (src + 2 * p + 1, tmp + p))
        for p in range(4):
            add('v_pk_mul_f32 %s, %s, s[%d:%d]' % (vr(tmp + 2 * p, 2), vr(g + 2 * p, 2), sNL2E, sNL2E + 1))
        for p in range(8):
            add('v_exp_f32 v%d, v%d' % (tmp + p, tmp + p))
        for p in range(4):
            add('v_pk_add_f32 %s, %s, 1.0 op_sel_hi:[1,0]' % (vr(tmp + 2 * p, 2), vr(tmp + 2 * p, 2)))
        for p in range(8):
            add('v_rcp_f32 v%d, v%d' % (tmp + p, tmp + p))
        for p in range(4):
            add('v_pk_mul_f32 %s, %s, %s' % (vr(g + 2 * p, 2), vr(g + 2 * p, 2), vr(tmp + 2 * p, 2)))
        if cfg.mimic:
            for p in range(4):
                add('v_cvt_pk_bf16_f32 v%d, v%d, v%d' % (tmp + p, g + 2 * p, g + 2 * p + 1))
            for p in range(4):
                add('v_lshlrev_b32 v%d, 16, v%d' % (g + 2 * p, tmp + p))
                add('v_and_b32 v%d, 0xffff0000, v%d' % (g + 2 * p + 1, tmp + p))
        for p in range(4):
            add('v_pk_mul_f32 %s, %s, %s' % (vr(u + 2 * p, 2), vr(g + 2 * p, 2), vr(u + 2 * p, 2)))
        for p in range(4):
            add('v_cvt_pk_bf16_f32 v%d, v%d, v%d' % (o + p, u + 2 * p, u + 2 * p + 1))
    return items


def act_items_scalar(e, cfg, G, U, tmp, out):
    if cfg.mimic:
        return act_items(e, cfg, G, U, tmp, out)
    items = []
    add = lambda t: items.append(lambda t=t: e.I(t))
    for b in range(4):
        g, u, o = G + 4 * b, U + 4 * b, out + 2 * b
        for p in range(4):
            add('v_mul_f32 v%d, s%d, v%d' % (tmp + p, sNL2E, g + p))
        for p in range(4):
            add('v_exp_f32 v%d, v%d' % (tmp + p, tmp + p))
            add('v_mul_f32 v%d, v%d, v%d' % (u + p, g + p, u + p))
        for p in range(4):
            add('v_add_f32 v%d, 1.0, v%d' % (tmp + p, tmp + p))
        for p in range(4):
            add('v_rcp_f32 v%d, v%d' % (tmp + p, tmp + p))
        for p in range(4):
            add('v_mul_f32 v%d, v%d, v%d' % (u + p, tmp + p, u + p))
        for p in range(2):
            add('v_cvt_pk_bf16_f32 v%d, v%d, v%d' % (o + p, u + 2 * p, u + 2 * p + 1))
    return items


def light_scc(e):
    e.I('s_and_b32 s%d, s%d, 3\ns_cmp_eq_u32 s%d, 3\ns_cselect_b32 s%d, 14, s%d\ns_cmp_eq_u32 s%d, 14' % (T0, sCB, T0, T0, sCB, T0))


def w_lane_offsets(e, cfg, WV, t0, t1):
    if cfg.zfill:
        light_scc(e)
        e.I('s_cselect_b32 s%d, 8, 12' % sTW)
    e.I('s_and_b32 s%d, s%d, 1' % (T1, sW))
    e.I('s_mul_i32 s%d, s%d, %d\ns_lshl_b32 s%d, s%d, 6\ns_add_u32 s%d, s%d, s%d' % (T0, T1, 32 * 2752, T1, sSG0, T0, T0, T1))
    for q in range(3):
        e.I('v_add_u32 v%d, %d, v0\nv_mul_u32_u24 v%d, 171, v%d\nv_lshrrev_b32 v%d, 11, v%d' % (t1, 64 * q, t0, t1, t0, t0))
        if cfg.zfill:
            e.I('v_mul_u32_u24 v%d, 12, v%d\nv_sub_u32 v%d, v%d, v%d\nv_cmp_gt_u32 vcc, s%d, v%d' % (WV + q, t0, t1, t1, WV + q, sTW, t1))
        e.I('v_lshrrev_b32 v%d, 3, v%d\nv_lshlrev_b32 v%d, 1, v%d\nv_xor_b32 v%d, v0, v%d' % (t1, t0, t1, t1, t1, t1))
        e.I('v_mul_u32_u24 v%d, %d, v%d' % (t0, 2752 - 192, t0))
        e.I('v_lshl_add_u32 v%d, v%d, 4, v%d' % (t0, t1, t0))
        e.I('v_add_u32 v%d, s%d, v%d' % (WV + q, T0, t0))
        if cfg.zfill:
            e.I('v_mov_b32 v%d, 0x%x\nv_cndmask_b32 v%d, v%d, v%d, vcc' % (t0, OOB, WV + q, t0, WV + q))
    e.I('s_mul_i32 s%d, s%d, 6144' % (sMW, sW))


def dma_W(e, WV, SWR, j):
    slot = W_SLOT[j] * SLOT
    its = []
    for grp in range(2):
        for q in range(3):
            def f(grp=grp, q=q):
                set_m0(e, sMW, slot + grp * 3072)
                if q == 0 and grp == 0:
                    e.I('s_add_u32 s%d, s%d, %d\ns_and_b32 s%d, s%d, 7\ns_mul_i32 s%d, s%d, %d' %
                        (sTW, sK0, j, sTW, sTW, sTW, sTW, 64 * 2752))
                if q == 0 and grp == 1:
                    e.I('s_add_u32 s%d, s%d, %d' % (sTW, sTW, 16 * 2752))
                e.I('buffer_load_dwordx4 v%d, %s, s%d offen offset:%d %slds' % ((WV + q, srd(SWR), sTW, 1024 * q) + (ntf('w', j),)), tag=('st', 8 + j))
            its.append(f)
    return its


C_LAND, C_CONS, C_Q, C_DONEA = 0, 32, 64, 68


def cnt_add(e, va, vone, off):
    e.I('s_mov_b64 exec, 1')
    e.I('ds_add_u32 v%d, v%d offset:%d' % (va, vone, off), tag='sig')
    e.I('s_mov_b64 exec, -1')


def cnt_look(e, va, vt, off, tag):
    e.I('ds_read_b32 v%d, v%d offset:%d' % (vt, va, off), tag=tag)


def cnt_check(e, label, va, vt, off, tag):
    e.wait(lg=tag)
    e.I('v_cmp_ne_u32 vcc, 4, v%d' % vt)
    e.I('s_cbranch_vccnz %s' % label)
    e.label(label + '_out')
    with e.cold_block():
        e.label(label)
        e.I('s_mov_b32 s%d, 0' % sCNT)
        e.label(label + '_l')
        if SLEEP[1]:
            e.I('s_sleep %d' % SLEEP[1])
        cnt_look(e, va, vt, off, None)
        e.I('s_add_u32 s%d, s%d, 1' % (sCNT, sCNT))
        e.I('s_cmp_gt_u32 s%d, %d' % (sCNT, 20 * SPIN_MAX))
        e.wait(lg='all')
        e.I('s_cbranch_scc1 %s_out' % label)
        e.I('v_cmp_ne_u32 vcc, 4, v%d' % vt)
        e.I('s_cbranch_vccnz %s_l' % label)
        e.I('s_branch %s_out' % label)


def cnt_spin(e, label, va, vt, off):
    cnt_look(e, va, vt, off, 'look')
    cnt_check(e, label, va, vt, off, 'look')


def act_offsets(e, k, s_data, s_flag, valid_scc=False):
    e.I('s_lshl_b32 s%d, s%d, 2\ns_add_u32 s%d, s%d, s%d' % (T0, sRB, T0, T0, sW))
    e.I('s_mul_i32 s%d, s%d, 43\ns_add_u32 s%d, s%d, s%d\ns_add_u32 s%d, s%d, %d\ns_lshl_b32 s%d, s%d, 11' %
        (T1, T0, T1, T1, sSG0, T1, T1, k, s_data, T1))
    e.I('s_lshr_b32 s%d, s%d, 1\ns_mul_i32 s%d, s%d, 44\ns_add_u32 s%d, s%d, s%d\ns_add_u32 s%d, s%d, %d' %
        (T1, T0, T1, T1, T1, T1, sSG0, T1, T1, k))
    e.I('s_lshl_b32 s%d, s%d, 1\ns_and_b32 s%d, s%d, 1\ns_add_u32 s%d, s%d, s%d\ns_mul_i32 s%d, s%d, %d\ns_add_u32 s%d, s%d, 0x%x' %
        (T1, T1, T0, T0, T1, T1, T0, T1, T1, FS, s_flag, T1, AF_OFF))


def part_write_addr(e, dst, t0, t1, piece_stride, wave_stride, base):
    e.I('v_lshrrev_b32 v%d, 4, v0' % t0)
    e.I('v_and_b32 v%d, 7, v0' % t1)
    e.I('v_xor_b32 v%d, v%d, v%d' % (t0, t0, t1))
    e.I('v_lshlrev_b32 v%d, 4, v%d' % (dst, t0))
    e.I('v_bfe_u32 v%d, v0, 3, 1' % t0)
    e.I('v_and_b32 v%d, 3, v0' % t1)
    e.I('v_lshl_add_u32 v%d, v%d, 2, v%d' % (t0, t0, t1))
    e.I('v_lshl_add_u32 v%d, v%d, 8, v%d' % (dst, t0, dst))
    e.I('v_bfe_u32 v%d, v0, 2, 1' % t0)
    e.I('v_mul_u32_u24 v%d, %d, v%d' % (t0, piece_stride, t0))
    e.I('s_mul_i32 s%d, s%d, %d\ns_add_u32 s%d, s%d, %d' % (T0, sW, wave_stride, T0, T0, base))
    e.I('v_add3_u32 v%d, v%d, v%d, s%d' % (dst, dst, t0, T0))
    e.I('v_xor_b32 v%d, 64, v%d' % (dst + 1, dst))


def acc2(t4, dq):
    return 64 + 16 * t4 + 4 * dq


def part_write(e, addr, piece_stride, tt, addr1=None):
    its = []
    for a in range(2):
        for dq in range(4):
            ad_, off = (addr + (dq & 1), (dq >> 1) * 128) if addr1 is None or dq < 2 else (addr1 + (dq & 1), 0)
            its.append(lambda ad_=ad_, off=off, dq=dq, a=a:
                       e.I('ds_write_b128 v%d, %s offset:%d' % (ad_, vr(acc2(2 * tt + a, dq), 4), tt * 2 * piece_stride + a * 2048 + off), tag=('pw', tt)))
    return its


KARG2 = 's_load_dwordx16 s[20:35], s[0:1], 64\ns_load_dwordx2 s[36:37], s[0:1], 128'


def gen_entry(e, cfg, st):
    e.I('s_load_dwordx16 s[4:19], s[0:1], 0')
    e.I('s_cmp_ge_u32 s2, 256\ns_cbranch_scc1 L_end')
    if not cfg.ksplit:
        e.I(KARG2)
    st(e, 'start')
    if 'v' in cfg.prewarm:
        n = cfg.pwn
        e.I('s_getpc_b64 s[%d:%d]' % (SCODE, SCODE + 1))
        e.label('L_pc')
        e.I('s_mov_b32 s%d, L_end-L_pc\ns_mov_b32 s%d, 0x20000' % (SCODE + 2, SCODE + 3))
        e.I('s_lshl_b32 s%d, s2, %d\ns_and_b32 s%d, s%d, 0x%x' % (T0, 7 + n.bit_length() - 1, T0, T0, 0x7fff & ~(1024 * n - 1)))
        e.I('v_lshlrev_b32 v1, %d, v0' % (1 + n.bit_length() - 1))
        m = sum(1 << (k * 64 // n) for k in range(n))
        e.I('s_mov_b32 exec_lo, 0x%x\ns_mov_b32 exec_hi, 0x%x' % (m & 0xffffffff, m >> 32))
        e.I('buffer_load_dword v63, v1, %s, s%d offen' % (srd(SCODE), T0), tag='pw')
        e.I('s_mov_b64 exec, -1')
    e.I('v_lshrrev_b32 v1, 6, v0\nv_and_b32 v0, 63, v0')
    e.I('v_readfirstlane_b32 s%d, v1' % sWAVE)
    e.I('s_and_b32 s%d, s2, 7\ns_lshr_b32 s%d, s2, 3' % (T0, T1))
    e.I('s_and_b32 s%d, s%d, 7\ns_lshr_b32 s%d, s%d, 3' % (T2, T1, T3, T1))
    e.I('s_and_b32 s%d, s%d, 1\ns_lshl_b32 s%d, s%d, 3\ns_add_u32 s%d, s%d, s%d' % (sRB, T0, sRB, sRB, sRB, sRB, T2))
    e.I('s_lshr_b32 s%d, s%d, 1' % (T4, T0))
    e.I('s_lshl_b32 s%d, s%d, 2\ns_add_u32 s%d, s%d, s%d' % (sCB, T4, sCB, sCB, T3))
    e.I('s_mul_i32 s%d, s%d, %d' % (sK0, T2, cfg.rot1[0]))
    for src, mul in zip((T3, T4, None), cfg.rot1[1:]):
        if mul:
            if src is None:
                e.I('s_and_b32 s%d, s%d, 1' % (T5, T0))
            e.I('s_mul_i32 s%d, s%d, %d\ns_add_u32 s%d, s%d, s%d' % (T5, T5 if src is None else src, mul, sK0, sK0, T5))
    e.I('s_and_b32 s%d, s%d, 7' % (sK0, sK0))
    e.I('s_mul_i32 s%d, s%d, 11\ns_mul_i32 s%d, s%d, 3\ns_add_u32 s%d, s%d, s%d' % (sSG0, T4, T5, T3, sSG0, sSG0, T5))
    e.I('s_cmp_eq_u32 s%d, 15\ns_subb_u32 s%d, s%d, 0' % (sCB, sSG0, sSG0))
    if cfg.map2 == 84:
        e.I('s_lshl_b32 s%d, s%d, 3\ns_add_u32 s%d, s%d, s%d' % (sRT, T4, sRT, sRT, T2))
        e.I('s_and_b32 s%d, s%d, 1\ns_lshl_b32 s%d, s%d, 2\ns_add_u32 s%d, s%d, s%d' % (sCT, T0, sCT, sCT, sCT, sCT, T3))
    else:
        e.I('s_lshl_b32 s%d, s%d, 2\ns_and_b32 s%d, s%d, 3\ns_add_u32 s%d, s%d, s%d\ns_lshr_b32 s%d, s%d, 2' %
            (sRT, T0, T5, T1, sRT, sRT, T5, sCT, T1))
    e.I('s_and_b32 s%d, s%d, 3' % (sW, sWAVE))
    e.I('s_cmp_lt_u32 s%d, 4\ns_cbranch_scc1 L_A' % sWAVE)


def gen_B(e, cfg, st):
    NPRE = cfg.prog.count('D')
    WA = 2
    EP = 42
    XV, BV, WV, XA = 32, 36, 38, 44
    e.I('v_lshrrev_b32 v8, 3, v0')
    e.I('v_and_b32 v9, 7, v0')
    e.I('v_lshrrev_b32 v10, 4, v0')
    e.I('v_xor_b32 v10, v9, v10\nv_lshlrev_b32 v10, 4, v10')
    e.I('v_lshrrev_b32 v11, 5, v0\nv_and_b32 v12, 3, v8\nv_lshl_add_u32 v11, v11, 4, v12')
    e.I('s_lshl_b32 s%d, s%d, 2\ns_add_u32 s%d, s%d, s%d\ns_lshl_b32 s%d, s%d, 15' % (T0, sRB, T0, T0, sW, T0, T0))
    e.I('v_lshl_add_u32 v11, v11, 10, s%d' % T0)
    e.I('v_add_u32 v%d, v11, v10' % XV)
    e.I('v_xor_b32 v13, 64, v%d' % XV)
    e.I('v_add_u32 v%d, 3072, v13\nv_add_u32 v%d, 6144, v%d\nv_add_u32 v%d, 9216, v13' % (XV + 1, XV + 2, XV, XV + 3))
    e.I('s_and_b32 s%d, s%d, 1' % (T1, sW))
    e.I('s_lshl_b32 s%d, s%d, 1\ns_add_u32 s%d, s%d, s%d\ns_lshl_b32 s%d, s%d, 14' % (T0, sCB, T0, T0, T1, T0, T0))
    e.I('v_lshrrev_b32 v11, 5, v0\nv_lshl_add_u32 v11, v11, 3, v12')
    e.I('v_lshl_add_u32 v11, v11, 10, s%d' % T0)
    e.I('v_add_u32 v%d, v11, v10' % BV)
    e.I('v_xor_b32 v13, 64, v%d\nv_add_u32 v%d, 3072, v13' % (BV, BV + 1))
    e.I('s_lshl_b32 s%d, s%d, 12' % (sMX, sW))
    e.I('s_lshl_b32 s%d, s%d, 11\ns_add_u32 s%d, s%d, 16384' % (sMBm, sW, sMBm, sMBm))
    e.I('s_lshl_b32 s%d, s%d, 7' % (T6, sK0))
    e.wait_smem()
    st(e, 'karg')
    jitter(e, cfg, 1)
    if cfg.ksplit:
        e.I(KARG2)
    mk_srd(e, SX, P_X, 2048 * 1024)
    e.I('s_cmp_ge_u32 s%d, 2' % sW)
    mk_srd_sel(e, SBM, P_BIM, P_BRE, 512 * 1024)

    def dma_S(i):
        slot = s_slot(i) * SLOT
        its = []
        for q in range(4):
            def f(q=q):
                if q == 0:
                    set_m0(e, sMX, slot)
                    e.I('s_add_u32 s%d, s%d, %d\ns_and_b32 s%d, s%d, 1023' % (sTS, T6, i * 128, sTS, sTS))
                e.I('buffer_load_dwordx4 v%d, %s, s%d offen offset:%d %slds' % ((XV + q, srd(SX), sTS, 1024 * q) + (ntf('x', i),)), tag=('st', i))
            its.append(f)
        for q in range(2):
            def f(q=q):
                if q == 0:
                    set_m0(e, sMBm, slot)
                e.I('buffer_load_dwordx4 v%d, %s, s%d offen offset:%d %slds' % ((BV + q, srd(SBM), sTS, 1024 * q) + (ntf('b', i),)), tag=('st', i))
            its.append(f)
        return its

    run(dma_S(0))
    st(e, 'dma0')
    s1 = dma_S(1)
    run(s1[:cfg.s1a])
    e.I('v_lshlrev_b32 v11, 2, v0\nv_add_u32 v11, %d, v11\nv_mov_b32 v12, 0' % L_FL)
    e.I('ds_write_b32 v11, v12', tag='init')
    if 's' in cfg.prewarm:
        code_touch(e, 'B')
    if cfg.tlb:
        sP = sMB
        e.I('s_lshr_b32 s%d, s2, 3\ns_and_b32 s%d, s%d, 3\ns_lshl_b32 s%d, s%d, 2\ns_add_u32 s%d, s%d, s%d' % (T0, T0, T0, T0, T0, T0, T0, sW))
        e.I('s_min_u32 s%d, s%d, 5\ns_lshl_b32 s%d, s%d, 21\ns_mov_b64 s[%d:%d], s[%d:%d]' % (T1, T0, T1, T1, sP, sP + 1, P_WS, P_WS + 1))
        for k, (p, off) in enumerate(((P_WG, 0), (P_WU, 0), (P_WD, 0), (P_CRE, 0), (P_CIM, 0), (P_OUT, 0), (P_OUT, 1 << 21))):
            e.I('s_cmp_eq_u32 s%d, %d\ns_cselect_b64 s[%d:%d], s[%d:%d], s[%d:%d]\ns_cselect_b32 s%d, %d, s%d' %
                (T0, 6 + k, sP, sP + 1, p, p + 1, sP, sP + 1, T1, off, T1))
        e.I('s_load_dword s3, s[%d:%d], s%d' % (sP, sP + 1, T1))
    w_lane_offsets(e, cfg, WV, 11, 12)
    frag16_addr(e, XA, 11, 12)
    for s in range(2):
        e.I('v_add_u32 v%d, s%d, v%d' % (XA + s, sMX, XA + s))
        e.I('v_add_u32 v%d, %d, v%d' % (XA + 2 + s, WIN, XA + s))
        if cfg.lag:
            e.I('v_add_u32 v%d, %d, v%d' % (XA + 4 + s, 2 * WIN, XA + s))
    w_tr_addr(e, WA, 11, 12)
    e.I('v_lshlrev_b32 v1, 4, v0')
    if cfg.ksplit:
        e.wait_smem()
    e.I('s_cmp_ge_u32 s%d, 2' % sW)
    mk_srd_sel(e, SW, P_WU, P_WG, 512 * 2752)
    mk_srd(e, SWS, P_WS, WS_SIZE)
    mk_srd(e, SWD, P_WD, 1376 * 1024)
    tch = Touch(e, cfg, 'B')
    tch.setup()
    tch.at(-1)

    sDC, sDB, sDE, sAC, sAB, sAE = 86, 87, 88, 89, 90, 91
    sD0, sF0, sD2, sF2 = T2, T3, T4, T5
    st(e, '_pro')
    sP0 = 92
    if isinstance(cfg.w0pos, tuple):
        tab = sum(p << (4 * r) for r, p in enumerate(cfg.w0pos))
        e.I('s_and_b32 s%d, s%d, 7\ns_lshl_b32 s%d, s%d, 2\ns_lshr_b32 s%d, 0x%x, s%d\ns_and_b32 s%d, s%d, 15' %
            (T0, sRB, T0, T0, sP0, tab, T0, sP0, sP0))

    def w0_hook(p):
        if cfg.w0pos == p:
            run(dma_W(e, WV, SW, 0))
        elif isinstance(cfg.w0pos, tuple) and p in cfg.w0pos:
            e.I('s_cmp_eq_u32 s%d, %d\ns_cbranch_scc1 L_w0_%d' % (sP0, p, p))
            e.label('L_w0_%d_out' % p)
            with e.cold_block():
                e.label('L_w0_%d' % p)
                run(dma_W(e, WV, SW, 0))
                e.I('s_branch L_w0_%d_out' % p)
            e.m0 = None
    run(s1[cfg.s1a:])
    st(e, '_dma1')
    w0_hook(1)
    e.wait(vm=('st', 0))
    st(e, '_sa0')
    e.I('s_barrier')
    st(e, 'b0')
    for i in range(8):
        if i == 1:
            e.I('s_mov_b32 s%d, 0x%x' % (T0, EPOCH_OFF))
            e.I('buffer_load_dword v%d, off, %s, s%d sc1' % (EP, srd(SWS), T0), tag='ep')
        if i < 6:
            run(dma_S(i + 2))
            w0_hook(i + 2)
        elif cfg.w0pos is None:
            run(dma_W(e, WV, SW, i - 6))
        elif i == 6 or 'W2' not in cfg.prog:
            run(dma_W(e, WV, SW, i - 5))
        for s in range(4):
            slot = s_slot(i)
            e.I('ds_read_b128 %s, v%d offset:%d' % (vr(128 + 4 * (4 * i + s), 4), XA + 2 * (slot >> 1) + (s >> 1), (slot & 1) * SLOT + (s & 1) * 2048), tag='x')
        if i == 4:
            e.wait(vm='ep')
            e.I('v_readfirstlane_b32 s%d, v%d' % (sNONCE, EP))
            e.I('s_add_u32 s%d, s%d, 0x%x\ns_or_b32 s%d, s%d, 1' % (sNONCE, sNONCE, PHI, sNONCE, sNONCE))
            e.I('s_mov_b32 s%d, 0x%x\ns_mov_b32 s%d, 0x%x' % (sNL2E, NLOG2E, sNL2E + 1, NLOG2E))
        if i == 2:
            step_start(e, cfg, sAC, sAB, sAE, 11)
        if i == 3:
            for k in range(3):
                e.I('s_lshl_b32 s%d, s%d, 4' % (sDC + k, sAC + k))
            for n in range(1, NPRE):
                wd_next(e, n, sDC, sDB, sDE)
        if i == 5:
            act_offsets(e, 0, sD0, sF0)
        if i == 6:
            e.I('s_add_u32 s%d, s%d, 4096\ns_add_u32 s%d, s%d, %d' % (sD2, sD0, sF2, sF0, 4 * FS))
            light_scc(e)
            e.I('s_cselect_b32 s%d, 0x%x, s%d\ns_cselect_b32 s%d, 0x%x, s%d' % (sD2, OOB, sD2, sF2, OOB, sF2))
            e.I('v_mov_b32 v7, %d\nv_mov_b32 v6, 1' % L_FL)
        if i < 7:
            e.wait(vm=('st', i + 1), lg='all')
            st(e, '_sa%d' % (i + 1))
            e.I('s_barrier')
            st(e, '_sd%d' % (i + 1))
            if i == 0:
                st(e, 'b1')
    NT = cfg.NT
    ops = []
    for j in range(8 - NT):
        for s in range(2):
            for g in range(3):
                for mf in range(4):
                    ops.append((j, s, g, mf))
    tail0 = len(ops)
    for g in range(3):
        for j in range(8 - NT, 8):
            for s in range(2):
                for mf in range(4):
                    ops.append((j, s, g, mf))
    NB, LA = 6, cfg.LA
    first = {j: min(q for q in range(len(ops)) if ops[q][0] == j) for j in range(8)}
    last = {j: max(q for q in range(len(ops)) if ops[q][0] == j) for j in range(8)}

    def rd(q, half):
        if q >= len(ops):
            return
        j, s, g, mf = ops[q]
        if q == first[j] and j <= cfg.JL and half == 0:
            e.wait(vm=('st', 8 + j), lg='all' if j in cfg.drain else 'x')
            st(e, '_a%d' % j)
            e.I('s_barrier')
            st(e, '_d%d' % j)
            if j in (0, 4, cfg.JL):
                st(e, 'b%d' % (8 + j))
            if j == 0 and cfg.prioB:
                e.I('s_setprio %d' % cfg.prioB)
        w_frag_read(e, 8 + 4 * (q % NB), WA, j, s, g, mf >> 1, mf & 1, half, ('wf', q))
        if q == last[7] and half == 1:
            cnt_add(e, 7, 6, C_CONS + 28)

    def mm(q, a):
        j, s, g, mf = ops[q]
        if a == 0 and q % 2 == 0:
            e.wait(lg=('wf', q + 1))
        t = a ^ (q & 1) if cfg.snake else a
        mfma16(e, 32 + 32 * g + 16 * (mf >> 1) + 8 * t + 4 * (mf & 1), 8 + 4 * (q % NB), 128 + 16 * j + 8 * s + 4 * t, j == 0 and s == 0)
        rd(q + LA, a)

    def act_store(k, ms=(0, 1)):
        for m in ms:
            e.I('buffer_store_dwordx4 %s, v1, %s, s%d offen offset:%d sc1' %
                (vr(136 + 8 * k + 4 * m, 4), srd(SWS), sD2 if k == 2 else sD0, 1024 * m + (2048 if k == 1 else 0)), tag=('as', k))

    def with_stores(its, k):
        if not cfg.asplit:
            return its + [lambda: act_store(k)]
        h = len(its) // 2
        return its[:h] + [lambda: act_store(k, (0,))] + its[h:] + [lambda: act_store(k, (1,))]

    def act_flag(k):
        e.wait(vm=('as', k))
        flag_store(e, EP, sF2 if k == 2 else sF0, 2 * FS if k == 1 else 0)

    for q in range(LA):
        rd(q, 0)
        rd(q, 1)
    per = 8 * NT
    for q in range(tail0 + per):
        mm(q, 0)
        mm(q, 1)
    if cfg.prioT:
        e.I('s_setprio %d' % cfg.prioT)
    if NT:
        for g in (1, 2):
            main = [lambda q=q, a=a: mm(q, a) for q in range(tail0 + g * per, tail0 + (g + 1) * per) for a in range(2)]
            fill = with_stores(act_items_scalar(e, cfg, 32 * g, 32 * g + 16, 128, 136 + 8 * (g - 1)), g - 1)
            run(main[:3] + weave(main[3:], fill))
        st(e, 'f1end')
        run(with_stores(act_items(e, cfg, 96, 112, 128, 152), 2))
    else:
        st(e, 'f1end')
        for g in range(3):
            run(with_stores(act_items(e, cfg, 32 + 32 * g, 48 + 32 * g, 128, 136 + 8 * g), g))
    if cfg.prioB or cfg.prioT:
        e.I('s_setprio 0')
    st(e, 'actst')
    jitter(e, cfg, 2)
    DA, AV, PW, WDV, EP = 2, 14, 16, 18, 23
    e.I('v_mov_b32 v%d, s%d' % (EP, sNONCE))
    e.I(wd_lane_offsets(e, WDV, 20, 21))
    e.I('v_mov_b32 v22, %d' % L_FL)
    cnt_spin(e, 'L_spinB', 22, 24, C_CONS + 28)
    st(e, 'ldsfree')

    def dma_D(n):
        sl, pos = RING[n]
        if n in PREV:
            e.wait(lg=('wr', PREV[n]))
        set_m0(e, sMW, sl * SLOT + pos * 2048)
        if n:
            wd_next(e, n, sDC, sDB, sDE)
        for q in range(2):
            e.I('buffer_load_dwordx4 v%d, %s, s%d offen offset:%d %slds' % ((WDV + q, srd(SWD), sDC, 1024 * q) + (ntf('d', n),)), tag=('wd', n))

    def wd_reg(n2):
        return 128 + 16 * n2 if n2 < 5 else 32 + 16 * (n2 - 5) if n2 < 7 else 128 + 16 * (n2 - 7)

    def wd_read(n, dqs=range(4)):
        sl, pos = RING[n]
        e.wait(vm=('wd', n))
        for dq in dqs:
            e.I('ds_read_b64_tr_b16 %s, v%d offset:%d' % (vr(wd_reg(n >> 1) + 4 * dq + 2 * (n & 1), 2), DA + 4 * (sl >> 1) + dq,
                                                         (sl & 1) * SLOT + pos * 2048), tag=('wr', n))

    def setup2():
        e.I('v_lshrrev_b32 v20, 2, v0\nv_lshlrev_b32 v20, 7, v20\nv_bfe_u32 v21, v0, 3, 2\nv_lshl_add_u32 v20, v21, 5, v20')
        e.I('v_and_b32 v21, 3, v0\nv_lshl_add_u32 v20, v21, 3, v20\nv_add_u32 v%d, s%d, v20' % (DA, sMW))
        for dq in range(1, 4):
            e.I('v_xor_b32 v%d, %d, v%d' % (DA + dq, 32 * dq, DA))
        for k in (1, 2):
            for dq in range(4):
                e.I('v_add_u32 v%d, %d, v%d' % (DA + 4 * k + dq, k * WIN, DA + dq))
        e.I('s_mul_i32 s%d, s%d, %d' % (T0, sRT, 2 * 88064))
        e.I('v_add_u32 v%d, s%d, v1\nv_add_u32 v%d, 88064, v%d' % (AV, T0, AV + 1, AV))
        e.I('s_mul_i32 s%d, s%d, 44\ns_mul_i32 s%d, s%d, 11\ns_add_u32 s%d, s%d, s%d\ns_mul_i32 s%d, s%d, %d\ns_add_u32 s%d, s%d, 0x%x' %
            (T0, sRT, T1, sW, T0, T0, T1, T0, T0, 2 * FS, T0, T0, AF_OFF))
        e.I('v_mul_u32_u24 v20, %d, v0' % FS)
        e.I('s_mov_b32 s%d, 0x3fffff\ns_cmp_eq_u32 s%d, 3\ns_cselect_b32 s%d, 0xfffff, s%d\ns_mov_b32 s%d, 0' % (sMA, sW, sMA, sMA, sMA + 1))

    for n in range(NPRE, 11):
        for k in range(3):
            if cfg.flagpos[k] + NPRE == n:
                if k == 2:
                    setup2()
                act_flag(k)
                if k == 2:
                    st(e, 'flagged')
        if n < 10:
            dma_D(n)
    st(e, '_d9')
    cnt_spin(e, 'L_spinB2', 22, 24, C_DONEA)
    st(e, '_da')
    jitter(e, cfg, 3)
    pulled = [0]

    def d_step(n):
        dma_D(n)
        while pulled[0] < min(14, 3 * (n - 9), n - 3):
            wd_read(pulled[0])
            pulled[0] += 1
        if n == 14:
            e.wait(lg=('wr', 9))
            set_m0(e, sMW, L_P2)
            e.I('s_mov_b64 exec, 1')
            e.I('buffer_load_dword off, %s, s%d lds' % (srd(SWD), SWD + 2), tag='init')
            e.I('s_mov_b64 exec, -1')
        if n == -cfg.posXB:
            bar_X()

    def bar_X():
        assert pulled[0] >= 12
        e.wait(vm='init', lg=('wr', 11))
        st(e, '_aX')
        e.I('s_barrier')

    for n in range(10, cfg.alook):
        d_step(n)
    st(e, 'wdiss')
    nd = cfg.alook + cfg.abet
    poll(e, 'L_pollA', 21, 20, T0, 's[%d:%d]' % (sMA, sMA + 1), lambda: [d_step(n) for n in range(cfg.alook, nd)])
    st(e, 'actrdy')
    jitter(e, cfg, 4)
    if cfg.prioF2:
        e.I('s_setprio %d' % cfg.prioF2)

    TL = cfg.TL
    sSV = 92
    NM = 11 - TL

    order = [(n2, t4) for n2 in range(NM) for t4 in range(4)] + [(n2, t4) for t4 in range(4) for n2 in range(NM, 11)]

    def a_reg(n2, t4):
        return 208 + 4 * (order.index((n2, t4)) % 12)

    pend = []
    rq = []

    def flush(n=99):
        for t in pend[:n]:
            e.I(t)
        del pend[:n]

    def a_load(n2, t4):
        if t4 == 0:
            flush()
        so = sAC if n2 < NM else sSV + n2 - NM
        e.I('buffer_load_dwordx4 %s, v%d, %s, s%d offen offset:%d sc1' % (vr(a_reg(n2, t4), 4), AV + (t4 >> 1), srd(SWS), so, 1024 * (t4 & 1)),
            tag=('a', n2, t4))
        if n2 < 10 and t4 == (3 if n2 < NM else 0):
            dst = sAC if n2 + 1 < NM else sSV + n2 + 1 - NM
            pend.append('s_add_u32 s%d, s%d, 2048' % (dst, so))
            pend.append('s_cmp_eq_u32 s%d, s%d\ns_cselect_b32 s%d, s%d, s%d' % (dst, sAE, dst, sAB, dst))
            if n2 == 9:
                pend.append('s_cmp_eq_u32 s%d, 3\ns_cselect_b32 s%d, 0x%x, s%d' % (sW, dst, OOB, dst))

    lq = []
    for k, t in enumerate(order):
        lq.append(('a', k))
        if k & 1 and nd < 22:
            lq.append(('d', nd))
            nd += 1
    dn = [cfg.alook + cfg.abet - 1]
    nis = [0]

    def issue(k, busy):
        while lq:
            t = lq[0]
            tag = ('a',) + order[k]
            nv = min(cfg.NV, cfg.NV0[0] + max(0, k - cfg.NV0[1]))
            if nis[0] > k and (len(e.vm) - 1 - e.vm.index(tag) >= nv - 1 if tag in e.vm else len(e.vm) >= nv):
                return
            if t[0] == 'a':
                if t[1] >= busy + 12:
                    return
                a_load(*order[t[1]])
                nis[0] = t[1] + 1
            else:
                d_step(t[1])
                dn[0] = t[1]
            lq.pop(0)

    wq = []
    zq = [list(g) for g in cfg.zg]
    since = [0]

    def w_pop():
        t = wq.pop(0)
        if t is not None:
            t4, i = t
            assert not rq
            hi = 32768 if t4 == 3 else 0
            set_m0(e, sMW, hi)
            e.I('ds_write_addtid_b32 v%d offset:%d' % (acc2(t4, 0) + i, t4 * SLOT - hi + 256 * i), tag=('pw', t4))
            if i == 15 and t4 == zq[0][-1]:
                since[0] = cfg.zlag + 1
        if since[0]:
            since[0] -= 1
            if since[0] == 0:
                z_bar()

    def z_bar():
        e.wait(lg=('pw', zq.pop(0)[-1]))
        e.I('s_barrier')

    def mm2(k):
        n2, t4 = order[k]
        if k == 0:
            issue(k, k)
        while rq and rq[0][0] >> 1 <= (order[k + 2][0] if k + 2 < 4 * NM + TL else 99):
            t = rq.pop(0)
            wd_read(t[0], [t[1]])
        e.wait(vm=('a', n2, t4), lg=('wr', 2 * n2 + 1))
        for dq in range(4):
            d = 3 - dq if cfg.snake and n2 < NM and t4 & 1 else dq
            mfma16(e, acc2(t4, d), a_reg(n2, t4), wd_reg(n2) + 4 * d, n2 == 0)
            if dq == 0 and lq:
                issue(k + 1, k)
            elif pend and dq < 3:
                flush(1)
            elif rq and dq < 3:
                t = rq.pop(0)
                wd_read(t[0], [t[1]])
            elif wq:
                w_pop()
        if n2 == 10:
            if t4 == 0:
                wq.extend([None, None])
            wq.extend((t4, i) for i in range(16))

    for n2 in range(NM):
        st(e, '_n%d' % n2)
        while pulled[0] <= min(2 * n2 + 5, 13):
            assert dn[0] >= pulled[0]
            wd_read(pulled[0])
            pulled[0] += 1
        if n2 == cfg.posXB:
            bar_X()
        for t4 in range(4):
            mm2(4 * n2 + t4)
        if cfg.pull0 <= n2 < cfg.pull0 + 4:
            m2 = n2 - cfg.pull0 + 7
            assert dn[0] >= 2 * m2 + 1
            rq.extend((2 * m2 + hf, dq) for hf in range(2) for dq in range(4))
    assert cfg.pull0 + 4 <= NM
    for k in range(4 * NM, 44):
        mm2(k)
    if cfg.prioF2:
        e.I('s_setprio 0')
    st(e, 'f2end')
    jitter(e, cfg, 5)
    while wq:
        w_pop()
    while zq:
        z_bar()
    st(e, 'end')
    st.flush(e)
    e.I('s_endpgm')


def gen_A(e, cfg, st):
    LR, LI, L16, L128, L256, L16S, KAP, WV = 48, 49, 50, 52, 54, 56, 58, 60
    PP = 32
    SIDX = 3
    RE, IM = 64, 80
    XA, BA = 192, 204
    CV, CA, CA4, WDV = 96, 100, 104, 108
    EV0, EV1, EOOB, ERD, ECNT, EEXP, ONE, FLA, XW, XR, P16 = range(110, 121)
    SEL = 216
    RING0 = 144
    sHD, sHF, sES, sEL, sROT, sDTX = 86, 87, 90, 91, 92, 80
    sDC, sDB, sDE = 93, 94, 95
    if cfg.ksplit:
        e.I(KARG2)
    e.I('v_lshlrev_b32 v1, 4, v0')
    e.I('v_and_b32 v21, 0x13, v0\nv_bfe_u32 v22, v0, 2, 1\nv_lshl_add_u32 v21, v22, 3, v21\nv_bfe_u32 v22, v0, 3, 1\nv_lshl_add_u32 v21, v22, 2, v21')
    e.I('s_lshl_b32 s%d, s%d, 6' % (T0, sCB))
    e.I('v_lshl_add_u32 v21, v21, 1, s%d' % T0)
    e.I('s_lshl_b32 s%d, s%d, 2\ns_add_u32 s%d, s%d, s%d\ns_lshl_b32 s%d, s%d, 4\ns_add_u32 s%d, s%d, s%d' %
        (T3, sRB, T3, T3, sW, T3, T3, T3, T3, sCB))
    e.I('s_lshl_b32 s%d, s%d, 11' % (T2, T3))
    frag_addr(e, BA, 4, 5)
    e.wait_smem()
    st(e, '_karg')
    mk_srd(e, SX, P_X, 2048 * 1024)
    mk_srd(e, SWS, P_WS, WS_SIZE)
    e.I('s_mov_b32 s%d, 0x%x\ns_lshl_b32 s%d, s%d, 6' % (T4, EPOCH_OFF, T0, sCB))
    e.I('s_load_dword s3, s[%d:%d], s%d' % (P_WS, P_WS + 1, T4))
    for p in (P_LRE, P_LIM, P_LDT):
        e.I('s_load_dword s3, s[%d:%d], s%d' % (p, p + 1, T0))
    e.I('s_lshr_b32 s%d, s2, 3\ns_lshl_b32 s%d, s%d, 2\ns_add_u32 s%d, s%d, s%d\ns_and_b32 s%d, s%d, 15\ns_lshl_b32 s%d, s%d, 6' %
        (T0, T0, T0, T0, T0, sW, T0, T0, T0, T0))
    for p in (P_GW, P_DSK):
        e.I('s_load_dword s3, s[%d:%d], s%d' % (p, p + 1, T0))
    if 's' in cfg.prewarm:
        code_touch(e, 'A')

    def small0():
        e.I('buffer_load_dword v19, off, %s, s%d sc1' % (srd(SWS), T4), tag='ep')
        e.I('global_load_ushort v16, v21, s[%d:%d]' % (P_LRE, P_LRE + 1), tag='par')
        e.I('global_load_ushort v17, v21, s[%d:%d]' % (P_LIM, P_LIM + 1), tag='par')
        e.I('global_load_ushort v18, v21, s[%d:%d]' % (P_LDT, P_LDT + 1), tag='par')

    small1 = [lambda: e.I('global_load_dwordx4 v[44:47], v1, s[%d:%d]' % (P_GW, P_GW + 1), tag='g'),
              lambda: e.I('buffer_load_dwordx4 v[36:39], v1, %s, s%d offen' % (srd(SX), T2), tag='g'),
              lambda: e.I('buffer_load_dwordx4 v[40:43], v1, %s, s%d offen offset:1024' % (srd(SX), T2), tag='g')]
    e.I('s_lshl_b32 s%d, s%d, 3\ns_add_u32 s%d, s%d, 0x%x' % (T6, T3, T6, T6, G_OFF))

    e.I('s_lshl_b32 s%d, s%d, 12' % (T0, sW))
    for s in range(4):
        e.I('v_add_u32 v%d, s%d, v%d' % (XA + s, T0, BA + s))
        e.I('v_add_u32 v%d, %d, v%d' % (XA + 4 + s, WIN, XA + s))
        e.I('v_add_u32 v%d, %d, v%d' % (BA + 4 + s, WIN, BA + s))
        if cfg.lag:
            e.I('v_add_u32 v%d, %d, v%d\nv_add_u32 v%d, %d, v%d' % (XA + 8 + s, 2 * WIN, XA + s, BA + 8 + s, 2 * WIN, BA + s))
    w_lane_offsets(e, cfg, WV, 24, 25)
    e.I('v_lshrrev_b32 v24, 5, v0\ns_lshl_b32 s%d, s%d, 1' % (T0, sW))
    e.I('v_add_u32 v%d, s%d, v24' % (SIDX, T0))
    rot2_calc(e, cfg, sROT, 0)
    if cfg.rotS:
        e.I('s_and_b32 s%d, s%d, %d\ns_lshl_b32 s%d, s%d, %d\ns_xor_b32 s%d, s%d, s%d' % (T0, sCT, cfg.rotS[0], T0, T0, cfg.rotS[1], sROT, sROT, T0))
    e.I('s_and_b32 s%d, s%d, 1\ns_lshr_b32 s%d, s%d, 1' % (sDTX, sROT, sROT, sROT))
    e.I('s_bitcmp1_b32 s%d, 0' % sROT)
    mk_srd_sel(e, SC1, P_CIM, P_CRE, 512 * 1024)
    mk_srd_sel(e, SC2, P_CRE, P_CIM, 512 * 1024)
    mk_srd(e, SWD, P_WD, 1376 * 1024)
    step_start(e, cfg, sDC, sDB, sDE, 15)
    e.I('s_cmp_ge_u32 s%d, 2' % sW)
    mk_srd_sel(e, SWA, P_WU, P_WG, 512 * 2752)
    e.I('s_lshl_b32 s%d, s%d, 2\ns_add_u32 s%d, s%d, s%d' % (T0, sRB, T0, T0, sW))
    HW_ = 16384 + cfg.hpad[0]
    HT_ = 4 * HW_ + cfg.hpad[1]
    assert H_OFF + 64 * HT_ <= E_OFF
    e.I('s_mul_i32 s%d, s%d, %d\ns_lshr_b32 s%d, s%d, 1\ns_lshl_b32 s%d, s%d, 13\ns_add_u32 s%d, s%d, s%d' %
        (sHD, T0, HT_, T1, sCB, T1, T1, sHD, sHD, T1))
    e.I('s_lshr_b32 s%d, s%d, 2\ns_mul_i32 s%d, s%d, %d\ns_add_u32 s%d, s%d, s%d' % (T1, sCB, T1, T1, cfg.hpad[0], sHD, sHD, T1))
    e.I('s_and_b32 s%d, s%d, 1\ns_lshl_b32 s%d, s%d, 11\ns_add_u32 s%d, s%d, s%d\ns_add_u32 s%d, s%d, 0x%x' %
        (T1, sCB, T1, T1, sHD, sHD, T1, sHD, sHD, H_OFF))
    e.I('s_lshr_b32 s%d, s%d, 1\ns_lshl_b32 s%d, s%d, 4\ns_add_u32 s%d, s%d, s%d\ns_lshl_b32 s%d, s%d, 1' %
        (T1, T0, T1, T1, T1, T1, sCB, T1, T1))
    e.I('s_and_b32 s%d, s%d, 1\ns_add_u32 s%d, s%d, s%d\ns_mul_i32 s%d, s%d, %d\ns_add_u32 s%d, s%d, 0x%x' %
        (T0, T0, T1, T1, T0, T1, T1, FS, sHF, T1, HF_OFF))
    e.I('s_lshl_b32 s%d, s%d, 13\ns_add_u32 s%d, s%d, 0x%x' % (sEL, sCB, sEL, sEL, E_OFF))
    e.I('s_lshl_b32 s%d, s%d, 9\ns_add_u32 s%d, s%d, s%d\ns_cmp_eq_u32 s%d, 0\ns_cselect_b32 s%d, s%d, 0x%x' %
        (sES, sRB, sES, sES, sEL, sW, sES, sES, OOB))
    e.I('s_sub_u32 s%d, s%d, 1024' % (sEL, sEL))

    tch = Touch(e, cfg, 'A')
    tch.setup()
    tch.at(-1)

    e.I('s_lshl_b32 s%d, s%d, 9\ns_add_u32 s%d, s%d, %d' % (T0, sW, T0, T0, L_E))
    e.I('v_lshl_add_u32 v%d, v0, 3, s%d' % (XW, T0))
    e.I('v_and_b32 v6, 31, v0\nv_lshlrev_b32 v%d, 4, v6\nv_lshlrev_b32 v6, 3, v6\nv_add_u32 v%d, %d, v6' % (P16, XR, L_E))
    e.I('v_and_b32 v4, 3, v0\nv_bfe_u32 v5, v0, 3, 2\nv_lshl_add_u32 v4, v5, 2, v4')
    e.I('v_bfe_u32 v5, v0, 2, 1\nv_lshrrev_b32 v6, 5, v0\nv_xor_b32 v5, v5, v6\nv_lshl_add_u32 v4, v5, 4, v4')
    e.I('v_and_b32 v5, 1, v0\nv_lshlrev_b32 v5, 4, v5\nv_mov_b32 v6, 0x3f80\nv_lshlrev_b32 v5, v5, v6\nv_lshrrev_b32 v4, 1, v4')
    for n in range(8):
        e.I('v_cmp_eq_u32 vcc, %d, v4\nv_cndmask_b32 v%d, 0, v5, vcc' % (n, SEL + n))
    e.I('v_and_b32 v6, 7, v0\nv_lshrrev_b32 v7, 4, v0\nv_xor_b32 v6, v6, v7\nv_lshlrev_b32 v6, 4, v6')
    e.I('v_lshrrev_b32 v7, 3, v0\nv_lshl_add_u32 v6, v7, 10, v6')
    e.I('s_lshl_b32 s%d, s%d, 16\ns_lshl_b32 s%d, s%d, 8\ns_add_u32 s%d, s%d, s%d' % (T0, sCT, T1, sW, T0, T0, T1))
    e.I('v_add_u32 v%d, s%d, v6\nv_xor_b32 v7, 64, v%d' % (CV, T0, CV))
    e.I('v_add_u32 v%d, 7168, v7\nv_add_u32 v%d, 14336, v%d\nv_add_u32 v%d, 21504, v7' % (CV + 1, CV + 2, CV, CV + 3))
    frag16_addr(e, CA, 6, 7)
    for s in range(2):
        e.I('v_add_u32 v%d, s%d, v%d' % (CA + s, sMW, CA + s))
        e.I('v_add_u32 v%d, %d, v%d' % (CA4 + s, 4 * SLOT, CA + s))
    HS = CA + 2
    e.I('v_and_b32 v6, 15, v0\nv_lshlrev_b32 v6, 4, v6\nv_bfe_u32 v7, v0, 4, 1\nv_lshl_add_u32 v6, v7, 10, v6')
    e.I('v_lshrrev_b32 v7, 5, v0\nv_lshl_add_u32 v%d, v7, 8, v6' % HS)
    e.I('s_lshr_b32 s88, s%d, 1\ns_lshl_b32 s88, s88, 7\ns_lshl_b32 s89, s%d, 15\ns_add_u32 s88, s88, s89\ns_xor_b32 s89, s88, 128' % (sROT, sDTX))
    e.I(wd_lane_offsets(e, WDV, 6, 7))
    e.I('s_lshl_b32 s%d, s%d, 2\ns_sub_u32 s%d, s%d, s%d\ns_sub_u32 s%d, s%d, 1\ns_lshl_b32 s%d, s%d, 11' % (T0, sW, T0, sRB, T0, T0, T0, T5, sW))
    e.I('v_lshrrev_b32 v6, 5, v0\nv_sub_u32 v7, s%d, v6' % T0)
    e.I('v_cmp_le_i32 vcc, 0, v7\nv_cmp_le_i32 s[%d:%d], 2, v7' % (sMB, sMB + 1))
    e.I('v_lshl_add_u32 v7, v7, 9, v%d\nv_add_u32 v7, 1024, v7\nv_subrev_u32 v5, 2048, v7\nv_mov_b32 v%d, 0x%x' % (P16, EOOB, OOB))
    e.I('v_cndmask_b32 v%d, v%d, v7, vcc\nv_cndmask_b32 v%d, v%d, v5, s[%d:%d]' % (EV0, EOOB, EV1, EOOB, sMB, sMB + 1))
    e.I('v_lshl_add_u32 v7, v6, 12, v%d\nv_add_u32 v%d, %d, v7' % (P16, ERD, L_EG))
    e.I('v_lshlrev_b32 v6, 3, v6\nv_sub_u32 v%d, s%d, v6\nv_med3_i32 v%d, v%d, 0, 8' % (ECNT, sRB, EEXP, ECNT))
    e.I('v_mov_b32 v%d, 1\nv_mov_b32 v%d, %d' % (ONE, FLA, L_FL))

    pro = []
    add = lambda t: [pro.append(lambda x=x: e.I(x)) for x in t.split('\n')]

    def csq(d, a):
        add('v_mul_f32 v30, v%d, v%d\nv_mul_f32 v31, v%d, v%d\nv_fma_f32 v%d, -v%d, v%d, v30\nv_add_f32 v%d, v31, v31' %
            (a, a, a, a + 1, d, a + 1, a + 1, d + 1))

    def cmul(d, a, b):
        add('v_mul_f32 v30, v%d, v%d\nv_mul_f32 v31, v%d, v%d\nv_fma_f32 v30, -v%d, v%d, v30\nv_fma_f32 v%d, v%d, v%d, v31\nv_mov_b32 v%d, v30' %
            (a, b, a, b + 1, a + 1, b + 1, d + 1, a + 1, b, d))

    pro.append(lambda: e.wait(vm=['ep', 'par']))
    add('v_readfirstlane_b32 s%d, v19' % sNONCE)
    add('v_lshlrev_b32 v16, 16, v16\nv_lshlrev_b32 v17, 16, v17\nv_lshlrev_b32 v18, 16, v18')
    add('s_add_u32 s%d, s%d, 0x%x\ns_or_b32 s%d, s%d, 1' % (sNONCE, sNONCE, PHI, sNONCE, sNONCE))
    add('v_mul_f32 v18, 0x%x, v18\nv_exp_f32 v18, v18\nv_cvt_pk_bf16_f32 v18, v18, v18\nv_lshlrev_b32 v18, 16, v18' % LOG2E)
    add('v_mul_f32 v21, v18, v16\nv_mul_f32 v22, v18, v17')
    add('v_mul_f32 v21, 0x%x, v21\nv_exp_f32 v21, v21' % LOG2E)
    add('v_mul_f32 v22, 0.15915494, v22\nv_rndne_f32 v23, v22\nv_sub_f32 v22, v22, v23\nv_sin_f32 v23, v22\nv_cos_f32 v22, v22')
    add('v_mul_f32 v%d, v21, v23\nv_mul_f32 v%d, v21, v22' % (LI, LR))
    add('v_mul_f32 v21, v16, v16\nv_fmac_f32 v21, v17, v17\nv_rcp_f32 v21, v21\nv_add_f32 v22, -1.0, v%d\nv_add_f32 v21, v21, v21' % LR)
    add('v_mul_f32 v23, v22, v16\nv_fmac_f32 v23, v%d, v17\nv_mul_f32 v%d, v23, v21' % (LI, KAP))
    add('v_mul_f32 v23, v%d, v16\nv_fma_f32 v23, -v22, v17, v23\nv_mul_f32 v%d, v23, v21' % (LI, KAP + 1))
    csq(22, LR); csq(22, 22); csq(22, 22); csq(L16, 22)
    csq(22, L16); csq(24, 22); csq(L128, 24); csq(L256, L128); csq(L256, L256); csq(L256, L256)
    for bit, src, dst in ((1, L16, L16S), (2, 22, 22), (4, 24, 24)):
        add('v_and_b32 v26, %d, v%d\nv_cmp_ne_u32 vcc, 0, v26' % (bit, SIDX))
        add('v_cndmask_b32 v%d, 1.0, v%d, vcc\nv_cndmask_b32 v%d, 0, v%d, vcc' % (dst, src, dst + 1, src + 1))
    cmul(L16S, L16S, 22); cmul(L16S, L16S, 24)
    add('v_mul_lo_u32 v%d, v%d, s%d\nv_mov_b32 v2, s%d' % (EEXP, EEXP, sNONCE, sNONCE))

    par, pro = pro, []
    pro.append(lambda: e.wait(vm='g'))
    for k in range(4):
        add('v_lshlrev_b32 v24, 16, v%d\nv_and_b32 v25, 0xffff0000, v%d' % (44 + k, 44 + k))
        for row in range(2):
            x = 36 + 4 * row + k
            add('v_lshlrev_b32 v26, 16, v%d\nv_and_b32 v27, 0xffff0000, v%d' % (x, x))
            add('v_mul_f32 v26, v26, v24\nv_mul_f32 v27, v27, v25\nv_cvt_pk_bf16_f32 v26, v26, v27')
            add('v_lshlrev_b32 v27, 16, v26\nv_and_b32 v26, 0xffff0000, v26')
            if k == 0:
                add('v_add_f32 v%d, v26, v27' % (28 + row))
            else:
                add('v_add_f32 v26, v26, v27\nv_add_f32 v%d, v%d, v26' % (28 + row, 28 + row))
    for mod in ('row_shr:1 row_mask:0xf', 'row_shr:2 row_mask:0xf', 'row_shr:4 row_mask:0xf', 'row_shr:8 row_mask:0xf',
                'row_bcast:15 row_mask:0xa', 'row_bcast:31 row_mask:0xc'):
        for row in range(2):
            add('v_add_f32_dpp v%d, v%d, v%d %s bank_mask:0xf' % (28 + row, 28 + row, 28 + row, mod))
    add('v_cvt_pk_bf16_f32 v26, v28, v29\nv_lshlrev_b32 v28, 16, v26\nv_and_b32 v29, 0xffff0000, v26')
    add('v_mul_f32 v28, 0x%x, v28\nv_mul_f32 v29, 0x%x, v29\nv_exp_f32 v28, v28\nv_exp_f32 v29, v29' % (NLOG2E, NLOG2E))
    add('v_add_f32 v28, 1.0, v28\nv_add_f32 v29, 1.0, v29\nv_rcp_f32 v28, v28\nv_rcp_f32 v29, v29')
    add('v_cvt_pk_bf16_f32 v26, v28, v29\nv_lshlrev_b32 v28, 16, v26\nv_and_b32 v29, 0xffff0000, v26')
    gate, pro = pro, par

    gdone = []

    def g_store():
        gdone.append(1)
        e.I('s_mov_b32 exec_lo, 0\ns_mov_b32 exec_hi, 0x80000000')
        e.I('buffer_store_dwordx2 v[28:29], off, %s, s%d sc1' % (srd(SWS), T6), tag='gs')
        e.I('s_mov_b64 exec, -1')

    nbar = [0]

    def s_bar(i):
        assert nbar[0] == i
        nbar[0] += 1
        e.I('s_barrier')
        if i in (0, 7):
            st(e, 'b%d' % i)

    def s_read(n):
        i, s = n >> 2, n & 3
        slot = s_slot(i)
        if s == 0 and not cfg.lag:
            s_bar(i)
        assert nbar[0] > i
        off = (slot & 1) * SLOT
        b = RING0 + 12 * (n & 3)
        e.I('ds_read_b128 %s, v%d offset:%d' % (vr(b + 8, 4), XA + 4 * (slot >> 1) + s, off), tag=('s', n, 0))
        for part in range(2):
            e.I('ds_read_b128 %s, v%d offset:%d' % (vr(b + 4 * part, 4), BA + 4 * (slot >> 1) + s,
                                                    off + 16384 + part * 4096), tag=('s', n, part))

    def s_mm(n, part):
        e.wait(lg=('s', n, part))
        b = RING0 + 12 * (n & 3)
        mfma(e, RE + 16 * part, b + 8, b + 4 * part, n == 0)

    D = 2
    seq = []
    for n in range(32):
        seq.append(lambda n=n: (s_mm(n, 0), s_read(n + D) if n + D < 32 else None))
        seq.append(lambda n=n: s_mm(n, 1))
    st(e, '_pro')
    if cfg.lag:
        L = cfg.lag
        npar = len(pro) // max(L - 1, 1) + 1
        for i in range(L):
            s_bar(i)
            tch.at(10 + i)
            if i == 0:
                small0()
            if i >= 1:
                run(pro[(i - 1) * npar:i * npar])
        s_bar(L)
        for n in range(D):
            s_read(n)
        r2 = 2 * cfg.lagr
        for k, it in enumerate(seq):
            it()
            i = L + (k + 1) // r2
            if (k + 1) % r2 == 0 and i <= 7:
                assert (k + 1) // 2 >= 4 * (i - 3)
                s_bar(i)
    else:
        for n in range(D):
            s_read(n)
        p0 = 2 * cfg.smallpos
        run(seq[:p0])
        small0()
        run(seq[p0:p0 + 10])
        run(weave(seq[p0 + 10:56], pro) + seq[56:])
    assert nbar[0] == 8
    st(e, 's1end')
    jitter(e, cfg, 6)
    if cfg.prioA:
        e.I('s_setprio %d' % cfg.prioA)

    def items(txt):
        return [lambda t=t: e.I(t) for t in txt.split('\n')]

    def cfma(d, l, a, c):
        return items('v_fma_f32 v%d, v%d, v%d, v%d\nv_fma_f32 v%d, v%d, v%d, v%d\nv_fma_f32 v%d, -v%d, v%d, v%d\nv_fmac_f32 v%d, v%d, v%d' %
                     (d, l, a, c, d + 1, l, a + 1, c + 1, d, l + 1, a + 1, d, d + 1, l + 1, a))

    prev = (RE, IM)
    for r in range(1, 16):
        cur = (20 + 2 * (r & 1), 21 + 2 * (r & 1))
        e.I('v_fma_f32 v%d, v%d, v%d, v%d' % (cur[0], LR, prev[0], RE + r))
        e.I('v_fma_f32 v%d, v%d, v%d, v%d' % (cur[1], LR, prev[1], IM + r))
        e.I('v_fma_f32 v%d, -v%d, v%d, v%d' % (cur[0], LI, prev[1], cur[0]))
        e.I('v_fmac_f32 v%d, v%d, v%d' % (cur[1], LI, prev[0]))
        prev = cur
    e.I('ds_write_b64 v%d, %s' % (XW, vr(prev[0], 2)), tag='ex')

    def c_reg(u, s2, dq):
        return 128 + 32 * u + 16 * s2 + 4 * dq

    CBUF = cfg.cbuf
    CPREV = {i: max(k for k in range(i) if CBUF[k] == CBUF[i]) for i in range(8) if CBUF[i] in CBUF[:i]}
    cdone = set()
    hdone = []

    def c_read(i):
        if i in cdone:
            return
        cdone.add(i)
        assert i < 4 or hdone
        e.wait(vm=('c', i))
        for s in range(4):
            a_, off = (CA4 + (s >> 1), 0) if CBUF[i] == 4 else (CA + (s >> 1), CBUF[i] * SLOT)
            e.I('ds_read_b128 %s, v%d offset:%d' % (vr(c_reg(i >> 1, s >> 1, 2 * (i & 1) + (s & 1)), 4), a_, off + (s & 1) * 2048), tag=('cr', i))

    def c_loads(i):
        u, dt = i >> 1, i & 1
        its = []
        for q in range(4):
            def f(q=q):
                if q == 0:
                    if i in CPREV:
                        c_read(CPREV[i])
                        e.wait(lg=('cr', CPREV[i]))
                    elif CBUF[i] != 4 and (6 + CBUF[i] > cfg.JL or 4 + CBUF[i] >= 8 - cfg.NT):
                        assert kcur[0] >= cfg.JL
                        cnt_spin(e, 'L_cb%d' % i, FLA, 34, C_CONS + 28)
                    e.I('s_xor_b32 s%d, s%d, %d' % (sTD, 88 + (u >> 1), dt * 32768))
                set_m0(e, sMW, CBUF[i] * SLOT)
                e.I('buffer_load_dwordx4 v%d, %s, s%d offen offset:%d %slds' % ((CV + q, srd(SC2 if u & 1 else SC1), sTD, 1024 * q) + (ntf('c', i),)), tag=('c', i))
                if q == 3:
                    st(e, '_c%d' % i)
                if q == 3 and i >= 2:
                    c_read(i - 2)
            its.append(f)
        return its

    def d_loads(n):
        sl, pos = RING[n]
        its = []
        for q in range(2):
            def f(q=q):
                set_m0(e, sMW, sl * SLOT + pos * 2048)
                if q == 0 and n:
                    wd_next(e, n, sDC, sDB, sDE)
                e.I('buffer_load_dwordx4 v%d, %s, s%d offen offset:%d %slds' % ((WDV + q, srd(SWD), sDC, 1024 * q) + (ntf('d', n),)), tag='wd')
            its.append(f)
        return its

    wl = {j: dma_W(e, WV, SWA, j) for j in range(2, 8)}
    planned = set()

    def e_loads():
        its = []
        for q in range(2):
            def f(q=q):
                set_m0(e, T5, L_EG)
                e.I('buffer_load_dwordx4 v%d, %s, s%d offen offset:%d sc1 lds' % (EV0 + q, srd(SWS), sEL, 1024 * q), tag='eg')
            its.append(f)
        return its

    def expand(toks, k):
        r = []
        for t in toks.split(','):
            if not t:
                continue
            n = int(t[1])
            planned.add(t)
            if t[0] == 'W':
                assert n < 4 or k >= n - 2 or (k == n - 3 and k in cfg.drain)
                r += wl[n][:3] if t[2:] == 'a' else wl[n][3:] if t[2:] == 'b' else wl[n]
            elif t[0] == 'C':
                assert CBUF[n] == 4 or k >= min(6 + CBUF[n], cfg.JL)
                assert k >= 2 or cfg.w0pos is None
                r += c_loads(n)
            elif t[0] == 'D':
                r += d_loads(n)
            elif t[0] == 'S':
                r.append(lambda n=n: (hq[n](), hsent.add(n)))
            elif t[0] == 'G':
                r += small1
            elif t[0] == 'E':
                r += e_loads()
            elif t[0] == 'T':
                r.append(lambda n=n: tch.at(n))
        return r

    def bar(k, extra=()):
        kk = 7 if k == cfg.JL else k
        assert kk < 2 or 'W%d' % kk in planned or 'W%db' % kk in planned or (kk == 2 and cfg.w0pos is not None)
        e.wait(vm=[('st', 8 + kk)] + list(extra))
        st(e, '_a%d' % k)
        e.I('s_barrier')
        st(e, '_d%d' % k)

    sc = []
    for r in range(16):
        sc += items('v_mul_f32 v4, v%d, v%d\nv_mul_f32 v5, v%d, v%d\nv_fma_f32 v%d, v%d, v%d, -v4\nv_fma_f32 v%d, v%d, v%d, v5' %
                    (KAP + 1, IM + r, KAP + 1, RE + r, RE + r, KAP, RE + r, IM + r, KAP, IM + r))
    if cfg.pksc:
        kp = vr(KAP, 2)
        for r in range(0, 16, 4):
            for o in (0, 2):
                e.I('v_pk_mul_f32 %s, %s, %s op_sel:[1,0] op_sel_hi:[1,1]' % (vr(4 + 2 * o, 2), kp, vr(IM + r + o, 2)))
                e.I('v_pk_mul_f32 %s, %s, %s op_sel:[1,0] op_sel_hi:[1,1]' % (vr(6 + 2 * o, 2), kp, vr(RE + r + o, 2)))
            for o in (0, 2):
                e.I('v_pk_fma_f32 %s, %s, %s, %s op_sel_hi:[0,1,1] neg_lo:[0,0,1] neg_hi:[0,0,1]' % (vr(RE + r + o, 2), kp, vr(RE + r + o, 2), vr(4 + 2 * o, 2)))
                e.I('v_pk_fma_f32 %s, %s, %s, %s op_sel_hi:[0,1,1]' % (vr(IM + r + o, 2), kp, vr(IM + r + o, 2), vr(6 + 2 * o, 2)))
        late = []
    else:
        run(sc[:cfg.early])
        late = sc[cfg.early:]
    e.wait(lg='all')
    bar(0)
    work = []
    for s in range(8):
        e.I('ds_read_b64 %s, v%d offset:%d' % (vr(4 + 2 * s, 2), XR, 256 * s), tag=('e', s))
    pf = []
    for s in range(1, 8):
        pf.append(lambda s=s: e.wait(lg=('e', s)))
        pf += cfma(4 + 2 * s, L16, 2 + 2 * s, 4 + 2 * s)
    segs = [sg.split('|') for sg in cfg.prog.split(';')]
    q0 = expand(segs[0][0], 0)
    run(weave(q0[:cfg.pren], pf))
    e.I('v_mov_b32 v20, s%d\nv_mov_b32 v21, s%d' % (sNONCE, sNONCE))
    e.I('s_mov_b32 exec_hi, 0')
    e.I('buffer_store_dwordx4 v[18:21], v%d, %s, s%d offen sc1' % (P16, srd(SWS), sES), tag='es')
    e.I('s_mov_b32 exec_hi, -1')
    st(e, 'epub')
    jitter(e, cfg, 7)
    run(q0[cfg.pren:])
    gate.append(g_store)
    sel = items('v_mov_b32 v%d, 0\nv_mov_b32 v%d, 0' % (PP, PP + 1))
    for s in range(1, 8):
        sel.append(lambda s=s: e.I('v_cmp_eq_u32 vcc, %d, v%d\nv_cndmask_b32 v%d, v%d, v%d, vcc\nv_cndmask_b32 v%d, v%d, v%d, vcc' %
                                   (s, SIDX, PP, PP, 2 + 2 * s, PP + 1, PP + 1, 3 + 2 * s)))
    EG = 224

    def e_check():
        e.I('v_add3_u32 v4, v%d, v%d, v%d\nv_add3_u32 v5, v%d, v%d, v%d' % tuple(EG + 4 * k + 2 for k in range(6)))
        e.I('v_add3_u32 v4, v4, v%d, v%d\nv_add_u32 v4, v4, v5' % (EG + 26, EG + 30))
        e.I('v_cmp_ne_u32 vcc, v4, v%d' % EEXP)

    def e_verify():
        e.wait(lg='eg')
        e_check()
        e.I('s_cbranch_vccnz L_pollE')
        e.label('L_pollE_out')
        st(e, 'egot')
        with e.cold_block():
            e.label('L_pollE')
            e.I('s_mov_b32 s%d, 0' % sCNT)
            e.label('L_pollE_l')
            for k in range(8):
                e.I('v_subrev_u32 v4, %d, v%d\nv_cmp_le_i32 vcc, 2, v4\nv_lshl_add_u32 v4, v4, 9, v%d\nv_cndmask_b32 v4, v%d, v4, vcc' % (k - 1, ECNT, P16, EOOB))
                e.I('buffer_load_dwordx4 %s, v4, %s, s%d offen sc1' % (vr(EG + 4 * k, 4), srd(SWS), sEL))
            e.I('s_add_u32 s%d, s%d, 1' % (sCNT, sCNT))
            e.I('s_cmp_gt_u32 s%d, %d' % (sCNT, SPIN_MAX))
            e.wait(vm='all')
            e.I('s_cbranch_scc1 L_pollE_out')
            e_check()
            e.I('s_cbranch_vccnz L_pollE_l')
            e.I('s_branch L_pollE_out')

    def second_pass():
        p2 = []
        p2.append(lambda: [e.I('ds_read_b128 %s, v%d offset:%d' % (vr(EG + 4 * k, 4), ERD, 512 * k), tag='eg') for k in range(8)])
        p2.append(e_verify)
        for k in range(6, -1, -1):
            p2 += cfma(EG + 4 * k, L128, EG + 4 * k + 4, EG + 4 * k)
        p2 += items('v_mov_b32 v4, v%d\nv_mov_b32 v5, v%d\nv_permlane32_swap_b32 v4, v%d\nv_permlane32_swap_b32 v5, v%d' % (EG, EG + 1, EG, EG + 1))
        p2 += cfma(4, L256, EG, 4)
        p2 += cfma(PP, L16S, 4, PP)
        p2 += items('v_mul_f32 v6, v%d, v%d\nv_mul_f32 v7, v%d, v%d' % (KAP, PP, KAP, PP + 1))
        p2 += items('v_fma_f32 v6, -v%d, v%d, v6\nv_fmac_f32 v7, v%d, v%d' % (KAP + 1, PP + 1, KAP + 1, PP))
        prev = (6, 7)
        for r in range(16):
            p2 += items('v_fmac_f32 v%d, v%d, v%d\nv_fmac_f32 v%d, v%d, v%d\nv_fma_f32 v%d, -v%d, v%d, v%d\nv_fmac_f32 v%d, v%d, v%d' %
                        (RE + r, LR, prev[0], IM + r, LR, prev[1], RE + r, LI, prev[1], RE + r, IM + r, LI, prev[0]))
            prev = (RE + r, IM + r)
        return p2

    def store_h(loads):
        for part in range(2):
            for k in range(8):
                sg_ = '-' if part else ''
                e.I('v_cvt_pk_bf16_f32 v%d, %sv%d, %sv%d' % (8 + 8 * part + k, sg_, RE + 16 * part + 2 * k, sg_, RE + 16 * part + 2 * k + 1))
            for m in range(2):
                mfma(e, RE + 16 * part, 8 + 8 * part + 4 * m, SEL + 4 * m, m == 0)
        hdone.append(1)
        run(loads)
        e.I('s_add_u32 s%d, s%d, 4096' % (T0, sHD))
        for part in range(2):
            for m in range(2):
                o = 8 + 8 * part + 4 * m
                for k in range(4):
                    e.I('v_cvt_pk_bf16_f32 v%d, v%d, v%d' % (o + k, RE + 16 * part + 8 * m + 2 * k, RE + 16 * part + 8 * m + 2 * k + 1))
                hq.append(lambda o=o, part=part, m=m: e.I('buffer_store_dwordx4 %s, v%d, %s, s%d offen offset:%d sc1' %
                                                         (vr(o, 4), HS, srd(SWS), T0 if part else sHD, 512 * m), tag='hs'))
                if len(hq) <= cfg.hnow:
                    hq[-1]()
                    hsent.add(len(hq) - 1)

    hq = []
    hsent = set()
    kcur = [0]
    p2 = second_pass()
    for k, (toks, work) in enumerate(segs):
        if k == 0:
            continue
        if k <= cfg.JL:
            bar(k, ['eg'] if work[:1] == 'P' else [])
        kcur[0] = k
        q = expand(toks, k)
        if work == 'sel':
            run(weave(q, sel + ([] if 'late' in cfg.prog else late)))
        elif work[:1] == 'g':
            hg = len(gate) // 2
            run(weave(q, gate if work == 'g' else gate[:hg] if work == 'g0' else gate[hg:]))
        elif work == 'late':
            run(weave(q, late))
        elif work[:1] == 'P':
            assert k <= cfg.JL or work != 'P0'
            part = p2 if work == 'P' else p2[:cfg.p2cut] if work == 'P0' else p2[cfg.p2cut:]
            run(part[:1] + (weave(q, part[1:]) if q else part[1:]))
            if work == 'P1H':
                st(e, 'p2done')
                store_h([])
        elif work[:1] == 'H':
            st(e, 'p2done')
            store_h(q)
            run(expand(work[2:], k))
        elif work == 'F':
            run(hq[n] for n in range(4) if n not in hsent)
            st(e, 'hst')
            jitter(e, cfg, 8)
            run(q)
            assert gdone and len(hq) == 4
            e.wait(vm=['hs', 'gs'])
            flag_store(e, 2, sHF)
            st(e, 'hflag')
            jitter(e, cfg, 9)
        else:
            run(q)
    assert len(segs) > cfg.JL
    HV, PW = 6, 8
    rest = [i for i in range(8) if 'C%d' % i not in planned]
    run(c_loads(rest.pop(0)))
    e.I('s_mul_i32 s%d, s%d, %d\ns_mul_i32 s%d, s%d, %d\ns_add_u32 s%d, s%d, s%d\ns_add_u32 s%d, s%d, 0x%x' %
        (T0, sRT, 2 * HT_, T1, sW, HW_, T0, T0, T1, T0, T0, H_OFF))
    e.I('v_add_u32 v%d, s%d, v1\nv_add_u32 v%d, %d, v%d' % (HV, T0, HV + 1, HT_, HV))
    for u in range(4):
        e.I('s_xor_b32 s%d, s%d, %d\ns_lshl_b32 s%d, s%d, 12' % (93 + u, sROT, u, 93 + u, 93 + u))
    part_write_addr(e, PW, 12, 13, 16384, 4096, SPART)
    mk_srd(e, SOUT, P_OUT, 2048 * 2048)
    e.I('s_lshl_b32 s%d, s%d, 2\ns_add_u32 s%d, s%d, s%d\ns_mul_i32 s%d, s%d, %d\ns_add_u32 s%d, s%d, 0x%x' %
        (T0, sRT, T0, T0, sW, T0, T0, 8 * FS, T0, T0, HF_OFF))
    e.I('v_mul_u32_u24 v12, %d, v0\nv_mov_b32 v5, v2' % FS)

    def h_reg(k):
        return 16 + 4 * (k % 12)

    def h_load(k):
        n2, t4 = k >> 2, k & 3
        e.I('buffer_load_dwordx4 %s, v%d, %s, s%d offen offset:%d sc1' % (vr(h_reg(k), 4), HV + (t4 >> 1), srd(SWS), 93 + (n2 >> 1),
                                                                            2048 * (n2 & 1) + 1024 * (t4 & 1)), tag=('h', k))

    def c_finish():
        for i in range(8):
            c_read(i)
        e.wait(vm='wd')
        cnt_add(e, FLA, ONE, C_DONEA)
        st(e, 'cgot')

    while rest and rest[0] < cfg.hlook:
        run(c_loads(rest.pop(0)))
    if cfg.hlook > 8:
        c_finish()
    poll(e, 'L_pollH', 13, 12, T0, '0xff',
         lambda: ([run(c_loads(i)) for i in rest], c_finish() if cfg.hearly == 0 and cfg.hlook <= 8 else None))
    st(e, 'hrdy')
    jitter(e, cfg, 10)
    XO, RA, GV, RF = 2, 3, 4, 14
    ROWS = (0, 8, 32, 40)
    XL, DL, GL, XD, PW1 = 128, 136, 138, 144, 10
    fin = items('s_lshl_b32 s%d, s%d, 6\ns_add_u32 s%d, s%d, s%d' % (T0, sRT, T0, T0, sW))
    fin += items('v_lshrrev_b32 v12, 4, v0\nv_lshrrev_b32 v13, 2, v0\nv_and_b32 v13, 2, v13\nv_xor_b32 v12, v12, v13')
    fin += items('v_and_b32 v15, 1, v12\nv_lshl_add_u32 v13, v15, 4, s%d\nv_lshrrev_b32 v3, 1, v12\nv_lshl_add_u32 v13, v3, 2, v13' % T0)
    fin += items('v_and_b32 v14, 15, v0\ns_lshl_b32 s%d, s%d, 7' % (T1, sCT))
    fin += items('v_lshl_add_u32 v1, v14, 3, s%d' % T1)
    fin += items('v_lshl_add_u32 v%d, v13, 10, v1' % XO)
    fin += items('v_lshlrev_b32 v%d, 2, v13\nv_add_u32 v%d, 0x%x, v%d' % (GV, GV, G_OFF, GV))
    fin += items('s_lshl_b32 s%d, s%d, 8\ns_add_u32 s%d, s%d, %d' % (T2, sW, T1, T2, SPART))
    fin += items('v_lshl_add_u32 v3, v3, 10, s%d\nv_lshl_add_u32 v3, v15, 14, v3' % T1)
    fin += items('v_lshl_or_b32 v13, v15, 2, s%d\nv_xor_b32 v13, v13, v14\nv_lshl_add_u32 v%d, v13, 4, v3' % (sW, RA))
    fin += items('v_lshl_add_u32 v12, v12, 6, s%d\nv_lshrrev_b32 v13, 2, v14\nv_lshl_add_u32 v12, v13, 10, v12' % T2)
    fin += items('v_and_b32 v13, 3, v0\nv_lshl_add_u32 v%d, v13, 4, v12\nv_add_u32 v%d, %d, v%d' % (RF, RF + 1, 2 * SLOT, RF))
    fin += items('s_lshl_b32 s%d, s%d, 7' % (T0, sDTX))
    for a in range(2):
        fin += items('v_xor_b32 v%d, s%d, v%d\nv_xor_b32 v%d, 0x80, v%d' % (PW + a, T0, PW + a, PW1 + a, PW + a))
    if cfg.posX < 0:
        run(fin)
    for k in range(cfg.NVA):
        if cfg.posX < 0 and k == -1 - cfg.posX:
            assert k >= cfg.hearly
            e.wait(lg='all')
            e.I('s_barrier')
        if k == cfg.hearly // 2 and k:
            c_read(6)
        if k == cfg.hearly and k:
            c_finish()
        h_load(k)
    e.wait(lg='all')
    if cfg.posX >= 0:
        run(fin)

    def fx_loads():
        e.I('global_load_dwordx2 %s, v1, s[%d:%d]' % (vr(DL, 2), P_DSK, P_DSK + 1), tag='fx')
        for n in range(4):
            e.I('s_mov_b32 s%d, %d' % (T2, 1024 * ROWS[n]))
            e.I('buffer_load_dwordx2 %s, v%d, %s, s%d offen' % (vr(XL + 2 * n, 2), XO, srd(SX), T2), tag='fx')

    def g_loads():
        for n in range(4):
            e.I('buffer_load_dword v%d, v%d, %s, 0 offen offset:%d sc1' % (GL + n, GV, srd(SWS), 4 * ROWS[n]), tag='fg')

    DU = 160
    xd = [lambda: e.wait(vm='fx')]
    xd += items('v_lshlrev_b32 v%d, 16, v%d\nv_and_b32 v%d, 0xffff0000, v%d\nv_lshlrev_b32 v%d, 16, v%d\nv_and_b32 v%d, 0xffff0000, v%d' %
                (DU, DL, DU + 1, DL, DU + 2, DL + 1, DU + 3, DL + 1))
    for n in range(4):
        for k in range(2):
            x = XL + 2 * n + k
            xd += items('v_lshlrev_b32 v12, 16, v%d\nv_and_b32 v13, 0xffff0000, v%d' % (x, x))
            xd += items('v_mul_f32 v12, v12, v%d\nv_mul_f32 v13, v13, v%d' % (DU + 2 * k, DU + 1 + 2 * k))
            xd += items('v_cvt_pk_bf16_f32 v13, v12, v13')
            xd += items('v_lshlrev_b32 v%d, 16, v13\nv_and_b32 v%d, 0xffff0000, v13' % (XD + 4 * n + 2 * k, XD + 4 * n + 2 * k + 1))
    xd += items('v_mov_b32 v12, %d\nv_mov_b32 v13, 1\nv_lshlrev_b32 v%d, 1, v%d' % (L_P2, XO, XO))

    def s2_step(k):
        n2, t4 = k >> 2, k & 3
        if k == 2 * cfg.posX:
            e.I('s_barrier')
        e.wait(vm=('h', k))
        for dq in range(4):
            d = 3 - dq if cfg.snake and t4 & 1 else dq
            mfma16(e, acc2(t4, d), c_reg(n2 >> 1, n2 & 1, d), h_reg(k), n2 == 0)
            if dq == (0 if cfg.NVA < 12 else 3) and k + cfg.NVA < 32:
                h_load(k + cfg.NVA)
        if k == 8:
            fx_loads()
        if k == max(8, 2 * cfg.posX):
            g_loads()
    steps = [lambda k=k: s2_step(k) for k in range(32)]
    if cfg.xdpos < 32:
        run(steps[:cfg.xdpos] + weave(steps[cfg.xdpos:], xd))
    else:
        run(steps + xd[-3:])
    st(e, 's2end')
    jitter(e, cfg, 11)
    if cfg.posX == 16:
        e.I('s_barrier')
        g_loads()
    st(e, '_X')
    run(part_write(e, PW, 16384, 0, PW1) + part_write(e, PW, 16384, 1, PW1))
    cnt_add(e, 12, 13, 0)
    if cfg.xdpos >= 32:
        run(xd[:-1])
    OM = 164
    e.wait(vm='fg')
    for n in range(4):
        e.I('v_sub_f32 v%d, 1.0, v%d' % (OM + n, GL + n))
        e.I('v_cvt_pk_bf16_f32 v%d, v%d, v%d\nv_lshlrev_b32 v%d, 16, v%d' % (OM + n, OM + n, OM + n, OM + n, OM + n))
    for n in range(4):
        e.I('s_mov_b32 s%d, %d' % (T2 + n, 2048 * ROWS[n]))
    e.I('s_lshl_b32 s%d, s%d, 5\ns_add_u32 s%d, s%d, s%d\ns_lshl_b32 s%d, s%d, 8\ns_add_u32 s%d, s%d, s%d' %
        (T0, sCT, T0, T0, sRT, T1, sW, T0, T0, T1))
    e.I('s_cmp_eq_u32 s%d, 31\ns_cselect_b32 s%d, 0x%x, s%d' % (T0, T0, EPOCH_OFF, SWS + 2))
    flag_store(e, 5, T0)
    cnt_spin(e, 'L_spinM', 12, 16, 0)
    e.wait(lg='all')
    for n in range(4):
        for w in range(4):
            e.I('ds_read_b128 %s, v%d offset:%d' % (vr(64 + 16 * n + 4 * w, 4), RA, w * 4096 + (n & 1) * 2048 + (n >> 1) * 32768), tag=('r', n))
    BS = XD
    for n in range(4):
        e.wait(lg=('r', n))
        b = 64 + 16 * n
        for k in range(4):
            e.I('v_add_f32 v%d, v%d, v%d\nv_add_f32 v%d, v%d, v%d' % (b + k, b + k, b + 4 + k, b + 8 + k, b + 8 + k, b + 12 + k))
        for k in range(4):
            e.I('v_add_f32 v%d, v%d, v%d' % (b + k, b + k, b + 8 + k))
        for k in range(4):
            e.I('v_add_f32 v%d, v%d, v%d' % (b + k, b + k, XD + 4 * n + k))
        for k in range(4):
            e.I('v_mul_f32 v%d, v%d, v%d' % (BS + 4 * n + k, GL + n, b + k))
    st(e, 'pre')
    jitter(e, cfg, 12)
    for grp in cfg.zg:
        e.I('s_barrier')
        st(e, 'Z' if 3 in grp else '_Z%d' % grp[0])
        for n in grp:
            for w in range(4):
                e.I('ds_read_b128 %s, v%d offset:%d' % (vr(64 + 16 * n + 4 * w, 4), RF + (n >> 1), w * 6144 + (n & 1) * SLOT), tag=('r', n, w >> 1))
        for n in grp:
            b = 64 + 16 * n
            for o, p in ((0, 4), (8, 12), (0, 8)):
                e.wait(lg=('r', n, o >> 3))
                if 3 in grp:
                    for k in (0, 2):
                        e.I('v_pk_add_f32 %s, %s, %s' % (vr(b + o + k, 2), vr(b + o + k, 2), vr(b + p + k, 2)))
                else:
                    for k in range(4):
                        e.I('v_add_f32 v%d, v%d, v%d' % (b + o + k, b + o + k, b + p + k))
            if cfg.mimic2:
                for rnd in range(2):
                    e.I('v_cvt_pk_bf16_f32 v%d, v%d, v%d\nv_cvt_pk_bf16_f32 v%d, v%d, v%d' % (b + 1, b, b + 1, b + 3, b + 2, b + 3))
                    for k in (0, 2):
                        e.I('v_lshlrev_b32 v%d, 16, v%d\nv_and_b32 v%d, 0xffff0000, v%d' % (b + k, b + k + 1, b + k + 1, b + k + 1))
                    if rnd == 0:
                        for k in range(4):
                            e.I('v_mul_f32 v%d, v%d, v%d' % (b + k, OM + n, b + k))
                for k in (0, 2):
                    e.I('v_pk_add_f32 %s, %s, %s' % (vr(b + k, 2), vr(b + k, 2), vr(BS + 4 * n + k, 2)))
            else:
                for k in range(4):
                    e.I('v_fma_f32 v%d, v%d, v%d, v%d' % (b + k, OM + n, b + k, BS + 4 * n + k))
            e.I('buffer_store_dwordx4 %s, v%d, %s, s%d offen %s' % (vr(b, 4), XO, srd(SOUT), T2 + n, cfg.outflags if isinstance(cfg.outflags, str) else cfg.outflags[n]), tag='out')
    if st.on:
        e.wait(vm='all')
    st(e, 'end')
    st.flush(e)


HEADER = open(os.path.join(os.path.dirname(os.path.abspath(__file__)), '..', 'cdna_kernels', BASE + '.s.ref')).read()


def generate(cfg):
    SLEEP[:] = cfg.sleep
    FL.clear()
    FL.update(cfg.nt)
    W_SLOT[0] = 0 if cfg.w0pos is None else 4
    S_SHIFT[0] = -1 if cfg.lag else 0 if cfg.w0pos is None else 1
    assert cfg.w0pos is None
    hdr = []
    for line in HEADER.split('\n'):
        if not line.startswith(';'):
            break
        if '@launch' in line:
            line = '; @launch grid=(256,1,1) block=(512,1,1) lds=%d' % LDS_BYTES
            if cfg.pre_kernel is not None:
                line = '; @launch kernel=%s grid=(256,1,1) block=(512,1,1) lds=%d' % (NAME, LDS_BYTES)
                if cfg.pre_kernel:
                    line = '; @launch kernel=warm_kernel grid=(256,1,1) block=(256,1,1) lds=0\n' + line
        hdr.append(line)
    stB = Stamps(cfg, [38, 6, 8, 14, 16, 18, 20, 22, 30, 32, 34, 4, 10, 12, 24, 26], 'B')
    stA = Stamps(cfg, [38, 10, 12, 22, 34, 24, 26, 6, 8, 18, 28, 14, 16, 30, 36, 4], 'A')
    e = Em()
    gen_entry(e, cfg, stB)
    stA.names = list(stB.names)
    eA = Em()
    eA.hist = list(e.hist)
    eA.vm = list(e.vm)
    gen_B(e, cfg, stB)
    gen_A(eA, cfg, stA)
    txt = '\n'.join(hdr) + '\n'
    txt += '.amdgcn_target "amdgcn-amd-amdhsa--gfx950"\n.text\n.globl %s\n.p2align 8\n.type %s,@function\n%s:\n' % (NAME, NAME, NAME)
    txt += e.text() + '\n' + '\n'.join(e.cold) + '\n.p2align 6\nL_A:\n' + eA.text() + '\n    s_endpgm\n' + '\n'.join(eA.cold) + '\nL_end:\n    s_endpgm\n'
    if cfg.pre_kernel:
        w = Em()
        w.I('s_cmp_ge_u32 s2, 256\ns_cbranch_scc1 L_wend')
        if cfg.pre_kernel != 'empty':
            w.I('s_load_dwordx16 s[4:19], s[0:1], 0\ns_load_dwordx16 s[20:35], s[0:1], 64')
            w.I('s_lshl_b32 s3, s2, 8\nv_add_u32 v0, s3, v0\nv_lshlrev_b32 v1, 7, v0')
            w.wait_smem()
            base = 0
            for p, n in ((P_X, 2048 * 1024), (P_BRE, 524288), (P_BIM, 524288), (P_WG, 1409024), (P_WU, 1409024), (P_CRE, 524288), (P_CIM, 524288), (P_WD, 1409024)):
                mk_srd(w, 40, p, n)
                w.I('v_subrev_u32 v2, %d, v1\nv_cmp_gt_u32 vcc, %d, v2\ns_and_saveexec_b64 s[44:45], vcc\ns_cbranch_execz L_w%d' % (base, n, p))
                w.I('buffer_load_dword v3, v2, s[40:43], 0 offen')
                w.label('L_w%d' % p)
                w.I('s_mov_b64 exec, s[44:45]')
                base += n
            if cfg.pre_kernel == 'wait':
                w.I('s_waitcnt vmcnt(0)')
        txt += '.globl warm_kernel\n.p2align 8\n.type warm_kernel,@function\nwarm_kernel:\n' + w.text() + '\nL_wend:\n    s_endpgm\n'
    txt += '''.section .rodata,"a"
.p2align 6
.amdhsa_kernel %s
  .amdhsa_next_free_vgpr 256
  .amdhsa_next_free_sgpr 102
  .amdhsa_accum_offset 256
  .amdhsa_group_segment_fixed_size 0
  .amdhsa_kernarg_size 136
  .amdhsa_user_sgpr_count 2
  .amdhsa_user_sgpr_kernarg_segment_ptr 1
  .amdhsa_system_sgpr_workgroup_id_x 1
  .amdhsa_float_denorm_mode_32 3
.end_amdhsa_kernel
''' % NAME
    if cfg.pre_kernel:
        txt += '''.p2align 6
.amdhsa_kernel warm_kernel
  .amdhsa_next_free_vgpr 8
  .amdhsa_next_free_sgpr 48
  .amdhsa_accum_offset 8
  .amdhsa_group_segment_fixed_size 0
  .amdhsa_kernarg_size 136
  .amdhsa_user_sgpr_count 2
  .amdhsa_user_sgpr_kernarg_segment_ptr 1
  .amdhsa_system_sgpr_workgroup_id_x 1
.end_amdhsa_kernel
'''
    info = dict(A=eA.count, B=e.count, nopsA=eA.nops, nopsB=e.nops, stampsA=stA.names, stampsB=stB.names)
    return txt, info


def cfg_from(args):
    cfg = Cfg()
    for a in args:
        k, v = a.split('=')
        setattr(cfg, k, eval(v))
    return cfg


if __name__ == '__main__':
    out = sys.argv[1]
    cfg = cfg_from(sys.argv[2:])
    txt, info = generate(cfg)
    open(out, 'w').write(txt)
    print(info)
```

```python
import sys, os
sys.path.insert(0, os.path.dirname(os.path.abspath(__file__)))
from em import Em, weave

BASE = 'gated_mix__ssm_conv_s5__swiglu_ffn__prompt'
NAME = BASE + '_kernel'

ACT_OFF = 0
H_OFF = 0x600000
E_OFF = 0xB00000
G_OFF = 0xB20000
HF_OFF = 0xB24000
AF_OFF = 0xB30000
EPOCH_OFF = 0xB48000
STAMP_OFF = 0xB50000
WS_SIZE = 0xB80000
OOB = 0x2000000
FS = 32
PHI = 0x9E3779B8

SLOT = 24576
WIN = 49152
SCR = 147456
SPART = 98304
L_E, L_FL, L_EG = SCR, SCR + 4096, SCR + 8192
L_P2 = 3 * SLOT + 4096
LDS_BYTES = 163840

P_X, P_LRE, P_LIM, P_BRE, P_BIM, P_CRE, P_CIM, P_LDT = 4, 6, 8, 10, 12, 14, 16, 18
P_DSK, P_BX, P_WG, P_WU, P_WD, P_GW, P_OUT, P_DBG, P_WS = 20, 22, 24, 26, 28, 30, 32, 34, 36
SX, SWS = 40, 44
SBM, SW, SWD = 48, 52, 56
SC1, SC2, SOUT, SCODE = 48, 52, 56, 60
SWA = 60
sWAVE, sW, sRB, sCB, sK0, sRT, sCT, sNONCE, sSG0 = 64, 65, 66, 67, 68, 69, 70, 71, 72
T0, T1, T2, T3, T4, T5, T6 = 73, 74, 75, 76, 77, 78, 79
sNL2E = 80
sMA, sMB = 82, 84
sTBL = 86
sCNT = 97
sTS, sTW, sTD = 98, 99, 100
sMX, sMBm = 60, 61
sMW = 101
SPIN_MAX = 200000

SLEEP = [0, 0]
FL = {}


def ntf(key, stage):
    return 'nt ' if stage < FL.get(key, 0) else ''


LOG2E = 0x3fb8aa3b
NLOG2E = 0xbfb8aa3b


class Cfg:
    mimic = False
    mimic2 = False
    stamps = False
    rot1 = (2, 0, 2, 1)
    rot2 = 7
    rotF = 0
    rotS = None
    map2 = 84
    prewarm = 'v'
    pwn = 4
    defer = True
    apre = True
    NT = 2
    early = 200
    w0pos = None
    s1a = 2
    smallpos = 2
    pre_kernel = None
    lag = 0
    lagr = 4
    JL = 7
    prog = 'W2,G0|;W3,C0|sel;W4|g0;E0,W5,D0,D1,D2,D3|g1;W6|P0;W7|P1H;|;C1,C2,C3|F'
    p2cut = 80
    cbuf = (4, 0, 1, 4, 0, 1, 4, 0)
    tplan = ()
    zfill = True
    prioB = 0
    LA = 4
    posX = 8
    pren = 4
    asplit = True
    prioT = 1
    drain = ()
    hpad = (0, 0)
    hlook = 9
    hearly = 0
    hnow = 4
    sleep = (1, 1)
    skip = ''
    flagpos = (0, 0, 3)
    alook = 18
    abet = 3
    posXB = -17
    fine = True
    snake = True
    nt = {}
    pksc = True
    jitter = 0
    prioF2 = 1
    NVA = 11
    NV0 = (12, 0)
    xdpos = 32
    NV = 12
    TL = 4
    pull0 = 3
    zg = ((0, 1), (2, 3))
    zlag = 3
    outflags = 'sc1'
    selA = None
    selB = None
    prioA = 0
    amp = None


def srd(r):
    return 's[%d:%d]' % (r, r + 3)


def vr(a, n):
    return 'v[%d:%d]' % (a, a + n - 1) if n > 1 else 'v%d' % a


def mk_srd(e, r, p, nbytes):
    e.I('s_mov_b32 s%d, s%d\ns_mov_b32 s%d, s%d\ns_mov_b32 s%d, 0x%x\ns_mov_b32 s%d, 0x20000' %
        (r, p, r + 1, p + 1, r + 2, nbytes, r + 3))


def mk_srd_sel(e, r, p1, p0, nbytes):
    e.I('s_cselect_b32 s%d, s%d, s%d\ns_cselect_b32 s%d, s%d, s%d\ns_mov_b32 s%d, 0x%x\ns_mov_b32 s%d, 0x20000' %
        (r, p1, p0, r + 1, p1 + 1, p0 + 1, r + 2, nbytes, r + 3))


def mfma(e, d, a, b, first):
    e.I('v_mfma_f32_32x32x16_bf16 %s, %s, %s, %s' % (vr(d, 16), vr(a, 4), vr(b, 4), '0' if first else vr(d, 16)))


def mfma16(e, d, a, b, first):
    e.I('v_mfma_f32_16x16x32_bf16 %s, %s, %s, %s' % (vr(d, 4), vr(a, 4), vr(b, 4), '0' if first else vr(d, 4)))


class Stamps:
    def __init__(self, cfg, regs, role):
        self.amp = cfg.amp if cfg.amp else None
        self.role = role
        self.sel = (cfg.selA if role == 'A' else cfg.selB)
        if self.sel is not None:
            self.sel = self.sel.split(',')
        self.ins = 's_memtime' if cfg.stamps == 'cyc' else 's_memrealtime'
        self.on = cfg.stamps or bool(self.amp)
        self.regs = regs
        self.names = []

    def __call__(self, e, name):
        if not self.on:
            return
        if self.sel is not None:
            if name != 'start' and name not in self.sel:
                return
        elif name.startswith('_'):
            return
        r = self.regs[len(self.names)]
        self.names.append(name)
        if self.amp and name not in ('start', 'end', self.amp[1], self.amp[2]):
            return
        e.I('%s s[%d:%d]' % (self.ins, r, r + 1))

    def flush(self, e):
        if not self.on:
            return
        e.wait_smem()
        if self.amp:
            if self.amp[0] == self.role:
                R = dict(zip(self.names, self.regs))
                e.I('s_sub_u32 s%d, s%d, s%d\ns_mul_i32 s%d, s%d, %d\ns_min_u32 s%d, s%d, 50000' %
                    (T0, R[self.amp[2]], R[self.amp[1]], T0, T0, self.amp[3], T0, T0))
                e.label('L_amp')
                e.I('s_memrealtime s[%d:%d]' % (T1, T1 + 1))
                e.wait_smem()
                e.I('s_sub_u32 s%d, s%d, s%d\ns_cmp_lt_u32 s%d, s%d\ns_cbranch_scc1 L_amp' % (T1, T1, R['end'], T1, T0))
            return
        e.I('s_lshl_b32 s%d, s2, 3\ns_add_u32 s%d, s%d, s%d\ns_lshl_b32 s%d, s%d, 6\ns_add_u32 s%d, s%d, 0x%x' %
            (T0, T0, T0, sWAVE, T0, T0, T0, T0, STAMP_OFF))
        e.I('s_mov_b64 exec, 1')
        for k in range(len(self.names)):
            e.I('v_mov_b32 v2, s%d' % self.regs[k])
            e.I('buffer_store_dword v2, off, %s, s%d offset:%d' % (srd(SWS), T0, 4 * k))


def jitter(e, cfg, key):
    if not cfg.jitter:
        return
    lab = 'L_jit%d' % key
    e.settle()
    e.I('s_lshl_b32 s%d, s2, 3\ns_add_u32 s%d, s%d, s%d' % (sCNT, sCNT, sCNT, sWAVE))
    e.I('s_mul_i32 s%d, s%d, 0x%x\ns_lshr_b32 s%d, s%d, 28' % (sCNT, sCNT, (0x9E3779B1 * (2 * key * cfg.jitter + 1)) & 0xffffffff, sCNT, sCNT))
    e.I('s_cmp_lt_u32 s%d, 12\ns_cbranch_scc1 %s_out' % (sCNT, lab))
    e.label(lab)
    e.I('s_sleep 40\ns_add_u32 s%d, s%d, 1\ns_cmp_lt_u32 s%d, 17\ns_cbranch_scc1 %s' % (sCNT, sCNT, sCNT, lab))
    e.label(lab + '_out')


def run(items):
    for it in items:
        it()


def poll(e, label, vt, vaddr, soff, mask, between=None):
    def look(tag=None):
        e.I('s_mov_b64 exec, %s' % mask)
        e.I('buffer_load_dword v%d, v%d, %s, s%d offen sc1' % (vt, vaddr, srd(SWS), soff), tag=tag)
        e.I('s_mov_b64 exec, -1')

    def check():
        e.I('v_cmp_ne_u32 vcc, s%d, v%d' % (sNONCE, vt))
        e.I('s_and_b64 vcc, vcc, %s' % mask)
    spin(e, label, look, check, between)


def spin(e, label, look, check, between):
    look('look')
    if between:
        between()
    e.wait(vm='look')
    check()
    e.I('s_cbranch_scc1 %s' % label)
    e.label(label + '_out')
    with e.cold_block():
        e.label(label)
        e.I('s_mov_b32 s%d, 0' % sCNT)
        e.label(label + '_l')
        if SLEEP[0]:
            e.I('s_sleep %d' % SLEEP[0])
        look()
        e.I('s_add_u32 s%d, s%d, 1' % (sCNT, sCNT))
        e.I('s_cmp_gt_u32 s%d, %d' % (sCNT, SPIN_MAX))
        e.wait(vm='all')
        e.I('s_cbranch_scc1 %s_out' % label)
        check()
        e.I('s_cbranch_scc1 %s_l' % label)
        e.I('s_branch %s_out' % label)


def code_touch(e, tag):
    e.I('s_getpc_b64 s[%d:%d]' % (sMA, sMA + 1))
    e.label('L_pc' + tag)
    e.I('s_sub_u32 s%d, s%d, L_pc%s-%s\ns_subb_u32 s%d, s%d, 0' % (sMA, sMA, tag, NAME, sMA + 1, sMA + 1))
    e.I('s_and_b32 s%d, s2, 0xf8\ns_add_u32 s%d, s%d, s%d\ns_lshl_b32 s%d, s%d, 6' % (T0, T0, T0, sWAVE, T0, T0))
    e.I('s_load_dword s3, s[%d:%d], s%d' % (sMA, sMA + 1, T0))
    e.I('s_add_u32 s%d, s%d, 16384\ns_min_u32 s%d, s%d, L_end-%s' % (T0, T0, T0, T0, NAME))
    e.I('s_load_dword s3, s[%d:%d], s%d' % (sMA, sMA + 1, T0))


def rot2_calc(e, cfg, dst, b):
    e.I('s_mul_i32 s%d, s%d, %d' % (dst, sCT, b))
    for k in range(1 if cfg.map2 == 84 else 2):
        e.I('s_add_u32 s%d, s%d, s%d' % (dst, dst, sRT))
    e.I('s_and_b32 s%d, s%d, %d' % (dst, dst, cfg.rot2))


def step_start(e, cfg, cur, beg, end, shift):
    rot2_calc(e, cfg, cur, cfg.rotF)
    e.I('s_cmp_eq_u32 s%d, 3\ns_cselect_b32 s%d, 10, 11' % (sW, end))
    e.I('s_mul_i32 s%d, s%d, s%d\ns_lshr_b32 s%d, s%d, 3\ns_mul_i32 s%d, s%d, 11' % (cur, cur, end, cur, cur, beg, sW))
    e.I('s_add_u32 s%d, s%d, s%d\ns_add_u32 s%d, s%d, s%d' % (cur, cur, beg, end, end, beg))
    for r in (cur, beg, end):
        e.I('s_lshl_b32 s%d, s%d, %d' % (r, r, shift))


def step_next(e, cur, beg, end, inc, wrap=True, last=False):
    e.I('s_add_u32 s%d, s%d, %d' % (cur, cur, inc))
    if wrap:
        e.I('s_cmp_eq_u32 s%d, s%d\ns_cselect_b32 s%d, s%d, s%d' % (cur, end, cur, beg, cur))
    if last:
        e.I('s_cmp_eq_u32 s%d, 3\ns_cselect_b32 s%d, 0x%x, s%d' % (sW, cur, OOB, cur))


def wd_next(e, n, cur, beg, end):
    step_next(e, cur, beg, end, 16384, n % 2 == 0, n == 20)


def set_m0(e, base, off):
    if getattr(e, 'm0', None) != (base, off):
        e.I('s_add_u32 m0, s%d, %d' % (base, off))
        e.m0 = (base, off)


def wd_lane_offsets(e, WDV, t0, t1):
    txt = 'v_lshrrev_b32 v%d, 4, v0\nv_lshlrev_b32 v%d, 1, v%d\nv_and_b32 v%d, 7, v0\nv_xor_b32 v%d, v%d, v%d\nv_lshlrev_b32 v%d, 4, v%d\n' % (
        t0, t0, t0, t1, t0, t0, t1, t0, t0)
    txt += 'v_lshrrev_b32 v%d, 3, v0\nv_lshl_add_u32 v%d, v%d, 10, v%d\n' % (t1, t0, t1, t0)
    txt += 's_lshl_b32 s%d, s%d, 7\n' % (T0, sCT)
    txt += 'v_add_u32 v%d, s%d, v%d\nv_add_u32 v%d, 7168, v%d' % (WDV, T0, t0, WDV + 1, WDV)
    return txt


RING = [(5, n) for n in range(3)] + [(4, 2)] + [(2 + n // 3, n % 3) for n in range(6)] + [(4, n) for n in range(2)] \
    + [(n // 3, n % 3) for n in range(6)] + [(2, n) for n in range(3)] + [(3, 0)]
PREV = {18: 4, 19: 5, 20: 6, 21: 7}


class Touch:
    def __init__(self, e, cfg, role):
        self.e, self.role = e, role
        self.plan = [p for p in cfg.tplan if p[0] == role]
        it = []
        for par in range(2):
            for p in (P_CRE, P_CIM):
                it += [(p, 128 * k + 64 * par) for k in range(4)]
        for par in range(2):
            it += [(P_WD, 128 * k + 64 * par) for k in range(11)]
        self.items = it

    def setup(self):
        if not self.plan:
            return
        e = self.e
        used = {self.items[k][0] for p in self.plan for k in range(p[2], p[3])}
        e.I('s_lshl_b32 s%d, s2, 2\ns_add_u32 s%d, s%d, s%d' % (T0, T0, T0, sW))
        for p in sorted(used):
            e.I('s_mul_i32 s%d, s%d, %d' % (T1, T0, 1376 if p == P_WD else 512))
            e.I('s_add_u32 s%d, s%d, s%d\ns_addc_u32 s%d, s%d, 0' % (p, p, T1, p + 1, p + 1))

    def at(self, place):
        for p in self.plan:
            if p[1] == place:
                for k in range(p[2], p[3]):
                    self.e.I('s_load_dword s3, s[%d:%d], %d' % (self.items[k][0], self.items[k][0] + 1, self.items[k][1]))


def flag_store(e, vt, soff, imm=0):
    e.I('s_mov_b64 exec, 1')
    e.I('buffer_store_dword v%d, off, %s, s%d offset:%d sc1' % (vt, srd(SWS), soff, imm), tag='flag')
    e.I('s_mov_b64 exec, -1')


def frag_addr(e, dst, t0, t1):
    e.I('v_lshrrev_b32 v%d, 5, v0' % t0)
    e.I('v_bfe_u32 v%d, v0, 1, 3' % t1)
    e.I('v_xor_b32 v%d, v%d, v%d' % (t0, t0, t1))
    e.I('v_and_b32 v%d, 31, v0' % t1)
    e.I('v_lshlrev_b32 v%d, 7, v%d' % (t1, t1))
    e.I('v_lshl_add_u32 v%d, v%d, 4, v%d' % (dst, t0, t1))
    for s in range(1, 4):
        e.I('v_xor_b32 v%d, %d, v%d' % (dst + s, 32 * s, dst))


def frag16_addr(e, dst, t0, t1):
    e.I('v_lshrrev_b32 v%d, 4, v0' % t0)
    e.I('v_bfe_u32 v%d, v0, 1, 3' % t1)
    e.I('v_xor_b32 v%d, v%d, v%d' % (t0, t0, t1))
    e.I('v_and_b32 v%d, 15, v0' % t1)
    e.I('v_lshlrev_b32 v%d, 7, v%d' % (t1, t1))
    e.I('v_lshl_add_u32 v%d, v%d, 4, v%d' % (dst, t0, t1))
    e.I('v_xor_b32 v%d, 64, v%d' % (dst + 1, dst))


def w_tr_addr(e, d, t0, t1):
    e.I('v_lshrrev_b32 v%d, 4, v0' % t0)
    e.I('v_bfe_u32 v%d, v0, 2, 2' % t1)
    e.I('v_lshl_add_u32 v%d, v%d, 3, v%d' % (t0, t0, t1))
    e.I('v_mul_u32_u24 v%d, 192, v%d' % (t0, t0))
    e.I('v_bfe_u32 v%d, v0, 4, 1' % t1)
    e.I('v_lshl_add_u32 v%d, v%d, 5, v%d' % (t0, t1, t0))
    e.I('v_and_b32 v%d, 3, v0' % t1)
    e.I('v_lshl_add_u32 v%d, v%d, 3, v%d' % (d, t1, t0))
    e.I('v_xor_b32 v%d, 32, v%d' % (d + 1, d))
    e.I('v_add_u32 v%d, %d, v%d\nv_add_u32 v%d, %d, v%d' % (d + 2, WIN, d, d + 3, WIN, d + 1))


W_SLOT = [0, 1, 2, 3, 0, 1, 2, 3]
S_SHIFT = [0]


def s_slot(i):
    return (i + 4) % 6 if S_SHIFT[0] < 0 else (i + S_SHIFT[0]) % 4


def w_frag_read(e, dst, wa, j, s2, g, mat, fh, mm, tag):
    slot = W_SLOT[j]
    off = (slot & 1) * SLOT + mat * 12288 + (32 * s2 + 4 * mm) * 192 + g * 64
    e.I('ds_read_b64_tr_b16 %s, v%d offset:%d' % (vr(dst + 2 * mm, 2), wa + 2 * (slot >> 1) + fh, off), tag=tag)


def act_items(e, cfg, G, U, tmp, out):
    items = []
    add = lambda t: items.append(lambda t=t: e.I(t))
    for b in range(2):
        g, u, o = G + 8 * b, U + 8 * b, out + 4 * b
        if cfg.mimic:
            for src in (g, u):
                for p in range(4):
                    add('v_cvt_pk_bf16_f32 v%d, v%d, v%d' % (tmp + p, src + 2 * p, src + 2 * p + 1))
                for p in range(4):
                    add('v_lshlrev_b32 v%d, 16, v%d' % (src + 2 * p, tmp + p))
                    add('v_and_b32 v%d, 0xffff0000, v%d' % (src + 2 * p + 1, tmp + p))
        for p in range(4):
            add('v_pk_mul_f32 %s, %s, s[%d:%d]' % (vr(tmp + 2 * p, 2), vr(g + 2 * p, 2), sNL2E, sNL2E + 1))
        for p in range(8):
            add('v_exp_f32 v%d, v%d' % (tmp + p, tmp + p))
        for p in range(4):
            add('v_pk_add_f32 %s, %s, 1.0 op_sel_hi:[1,0]' % (vr(tmp + 2 * p, 2), vr(tmp + 2 * p, 2)))
        for p in range(8):
            add('v_rcp_f32 v%d, v%d' % (tmp + p, tmp + p))
        for p in range(4):
            add('v_pk_mul_f32 %s, %s, %s' % (vr(g + 2 * p, 2), vr(g + 2 * p, 2), vr(tmp + 2 * p, 2)))
        if cfg.mimic:
            for p in range(4):
                add('v_cvt_pk_bf16_f32 v%d, v%d, v%d' % (tmp + p, g + 2 * p, g + 2 * p + 1))
            for p in range(4):
                add('v_lshlrev_b32 v%d, 16, v%d' % (g + 2 * p, tmp + p))
                add('v_and_b32 v%d, 0xffff0000, v%d' % (g + 2 * p + 1, tmp + p))
        for p in range(4):
            add('v_pk_mul_f32 %s, %s, %s' % (vr(u + 2 * p, 2), vr(g + 2 * p, 2), vr(u + 2 * p, 2)))
        for p in range(4):
            add('v_cvt_pk_bf16_f32 v%d, v%d, v%d' % (o + p, u + 2 * p, u + 2 * p + 1))
    return items


def act_items_scalar(e, cfg, G, U, tmp, out):
    if cfg.mimic:
        return act_items(e, cfg, G, U, tmp, out)
    items = []
    add = lambda t: items.append(lambda t=t: e.I(t))
    for b in range(4):
        g, u, o = G + 4 * b, U + 4 * b, out + 2 * b
        for p in range(4):
            add('v_mul_f32 v%d, s%d, v%d' % (tmp + p, sNL2E, g + p))
        for p in range(4):
            add('v_exp_f32 v%d, v%d' % (tmp + p, tmp + p))
            add('v_mul_f32 v%d, v%d, v%d' % (u + p, g + p, u + p))
        for p in range(4):
            add('v_add_f32 v%d, 1.0, v%d' % (tmp + p, tmp + p))
        for p in range(4):
            add('v_rcp_f32 v%d, v%d' % (tmp + p, tmp + p))
        for p in range(4):
            add('v_mul_f32 v%d, v%d, v%d' % (u + p, tmp + p, u + p))
        for p in range(2):
            add('v_cvt_pk_bf16_f32 v%d, v%d, v%d' % (o + p, u + 2 * p, u + 2 * p + 1))
    return items


def light_scc(e):
    e.I('s_and_b32 s%d, s%d, 3\ns_cmp_eq_u32 s%d, 3\ns_cselect_b32 s%d, 14, s%d\ns_cmp_eq_u32 s%d, 14' % (T0, sCB, T0, T0, sCB, T0))


def w_lane_offsets(e, cfg, WV, t0, t1):
    if cfg.zfill:
        light_scc(e)
        e.I('s_cselect_b32 s%d, 8, 12' % sTW)
    e.I('s_and_b32 s%d, s%d, 1' % (T1, sW))
    e.I('s_mul_i32 s%d, s%d, %d\ns_lshl_b32 s%d, s%d, 6\ns_add_u32 s%d, s%d, s%d' % (T0, T1, 32 * 2752, T1, sSG0, T0, T0, T1))
    for q in range(3):
        e.I('v_add_u32 v%d, %d, v0\nv_mul_u32_u24 v%d, 171, v%d\nv_lshrrev_b32 v%d, 11, v%d' % (t1, 64 * q, t0, t1, t0, t0))
        if cfg.zfill:
            e.I('v_mul_u32_u24 v%d, 12, v%d\nv_sub_u32 v%d, v%d, v%d\nv_cmp_gt_u32 vcc, s%d, v%d' % (WV + q, t0, t1, t1, WV + q, sTW, t1))
        e.I('v_lshrrev_b32 v%d, 3, v%d\nv_lshlrev_b32 v%d, 1, v%d\nv_xor_b32 v%d, v0, v%d' % (t1, t0, t1, t1, t1, t1))
        e.I('v_mul_u32_u24 v%d, %d, v%d' % (t0, 2752 - 192, t0))
        e.I('v_lshl_add_u32 v%d, v%d, 4, v%d' % (t0, t1, t0))
        e.I('v_add_u32 v%d, s%d, v%d' % (WV + q, T0, t0))
        if cfg.zfill:
            e.I('v_mov_b32 v%d, 0x%x\nv_cndmask_b32 v%d, v%d, v%d, vcc' % (t0, OOB, WV + q, t0, WV + q))
    e.I('s_mul_i32 s%d, s%d, 6144' % (sMW, sW))


def dma_W(e, WV, SWR, j):
    slot = W_SLOT[j] * SLOT
    its = []
    for grp in range(2):
        for q in range(3):
            def f(grp=grp, q=q):
                set_m0(e, sMW, slot + grp * 3072)
                if q == 0 and grp == 0:
                    e.I('s_add_u32 s%d, s%d, %d\ns_and_b32 s%d, s%d, 7\ns_mul_i32 s%d, s%d, %d' %
                        (sTW, sK0, j, sTW, sTW, sTW, sTW, 64 * 2752))
                if q == 0 and grp == 1:
                    e.I('s_add_u32 s%d, s%d, %d' % (sTW, sTW, 16 * 2752))
                e.I('buffer_load_dwordx4 v%d, %s, s%d offen offset:%d %slds' % ((WV + q, srd(SWR), sTW, 1024 * q) + (ntf('w', j),)), tag=('st', 8 + j))
            its.append(f)
    return its


C_LAND, C_CONS, C_Q, C_DONEA = 0, 32, 64, 68


def cnt_add(e, va, vone, off):
    e.I('s_mov_b64 exec, 1')
    e.I('ds_add_u32 v%d, v%d offset:%d' % (va, vone, off), tag='sig')
    e.I('s_mov_b64 exec, -1')


def cnt_look(e, va, vt, off, tag):
    e.I('ds_read_b32 v%d, v%d offset:%d' % (vt, va, off), tag=tag)


def cnt_check(e, label, va, vt, off, tag):
    e.wait(lg=tag)
    e.I('v_cmp_ne_u32 vcc, 4, v%d' % vt)
    e.I('s_cbranch_vccnz %s' % label)
    e.label(label + '_out')
    with e.cold_block():
        e.label(label)
        e.I('s_mov_b32 s%d, 0' % sCNT)
        e.label(label + '_l')
        if SLEEP[1]:
            e.I('s_sleep %d' % SLEEP[1])
        cnt_look(e, va, vt, off, None)
        e.I('s_add_u32 s%d, s%d, 1' % (sCNT, sCNT))
        e.I('s_cmp_gt_u32 s%d, %d' % (sCNT, 20 * SPIN_MAX))
        e.wait(lg='all')
        e.I('s_cbranch_scc1 %s_out' % label)
        e.I('v_cmp_ne_u32 vcc, 4, v%d' % vt)
        e.I('s_cbranch_vccnz %s_l' % label)
        e.I('s_branch %s_out' % label)


def cnt_spin(e, label, va, vt, off):
    cnt_look(e, va, vt, off, 'look')
    cnt_check(e, label, va, vt, off, 'look')


def act_offsets(e, k, s_data, s_flag, valid_scc=False):
    e.I('s_lshl_b32 s%d, s%d, 2\ns_add_u32 s%d, s%d, s%d' % (T0, sRB, T0, T0, sW))
    e.I('s_mul_i32 s%d, s%d, 43\ns_add_u32 s%d, s%d, s%d\ns_add_u32 s%d, s%d, %d\ns_lshl_b32 s%d, s%d, 11' %
        (T1, T0, T1, T1, sSG0, T1, T1, k, s_data, T1))
    e.I('s_lshr_b32 s%d, s%d, 1\ns_mul_i32 s%d, s%d, 44\ns_add_u32 s%d, s%d, s%d\ns_add_u32 s%d, s%d, %d' %
        (T1, T0, T1, T1, T1, T1, sSG0, T1, T1, k))
    e.I('s_lshl_b32 s%d, s%d, 1\ns_and_b32 s%d, s%d, 1\ns_add_u32 s%d, s%d, s%d\ns_mul_i32 s%d, s%d, %d\ns_add_u32 s%d, s%d, 0x%x' %
        (T1, T1, T0, T0, T1, T1, T0, T1, T1, FS, s_flag, T1, AF_OFF))


def part_write_addr(e, dst, t0, t1, piece_stride, wave_stride, base):
    e.I('v_lshrrev_b32 v%d, 4, v0' % t0)
    e.I('v_and_b32 v%d, 7, v0' % t1)
    e.I('v_xor_b32 v%d, v%d, v%d' % (t0, t0, t1))
    e.I('v_lshlrev_b32 v%d, 4, v%d' % (dst, t0))
    e.I('v_bfe_u32 v%d, v0, 3, 1' % t0)
    e.I('v_and_b32 v%d, 3, v0' % t1)
    e.I('v_lshl_add_u32 v%d, v%d, 2, v%d' % (t0, t0, t1))
    e.I('v_lshl_add_u32 v%d, v%d, 8, v%d' % (dst, t0, dst))
    e.I('v_bfe_u32 v%d, v0, 2, 1' % t0)
    e.I('v_mul_u32_u24 v%d, %d, v%d' % (t0, piece_stride, t0))
    e.I('s_mul_i32 s%d, s%d, %d\ns_add_u32 s%d, s%d, %d' % (T0, sW, wave_stride, T0, T0, base))
    e.I('v_add3_u32 v%d, v%d, v%d, s%d' % (dst, dst, t0, T0))
    e.I('v_xor_b32 v%d, 64, v%d' % (dst + 1, dst))


def acc2(t4, dq):
    return 64 + 16 * t4 + 4 * dq


def part_write(e, addr, piece_stride, tt, addr1=None):
    its = []
    for a in range(2):
        for dq in range(4):
            ad_, off = (addr + (dq & 1), (dq >> 1) * 128) if addr1 is None or dq < 2 else (addr1 + (dq & 1), 0)
            its.append(lambda ad_=ad_, off=off, dq=dq, a=a:
                       e.I('ds_write_b128 v%d, %s offset:%d' % (ad_, vr(acc2(2 * tt + a, dq), 4), tt * 2 * piece_stride + a * 2048 + off), tag=('pw', tt)))
    return its


KARG2 = 's_load_dwordx16 s[20:35], s[0:1], 64\ns_load_dwordx2 s[36:37], s[0:1], 128'


def gen_entry(e, cfg, st):
    e.I('s_load_dwordx16 s[4:19], s[0:1], 0')
    e.I('s_cmp_ge_u32 s2, 256\ns_cbranch_scc1 L_end')
    e.I(KARG2)
    st(e, 'start')
    if 'v' in cfg.prewarm:
        n = cfg.pwn
        e.I('s_getpc_b64 s[%d:%d]' % (SCODE, SCODE + 1))
        e.label('L_pc')
        e.I('s_mov_b32 s%d, L_end-L_pc\ns_mov_b32 s%d, 0x20000' % (SCODE + 2, SCODE + 3))
        e.I('s_lshl_b32 s%d, s2, %d\ns_and_b32 s%d, s%d, 0x%x' % (T0, 7 + n.bit_length() - 1, T0, T0, 0x7fff & ~(1024 * n - 1)))
        e.I('v_lshlrev_b32 v1, %d, v0' % (1 + n.bit_length() - 1))
        m = sum(1 << (k * 64 // n) for k in range(n))
        e.I('s_mov_b32 exec_lo, 0x%x\ns_mov_b32 exec_hi, 0x%x' % (m & 0xffffffff, m >> 32))
        e.I('buffer_load_dword v63, v1, %s, s%d offen' % (srd(SCODE), T0), tag='pw')
        e.I('s_mov_b64 exec, -1')
    e.I('v_lshrrev_b32 v1, 6, v0\nv_and_b32 v0, 63, v0')
    e.I('v_readfirstlane_b32 s%d, v1' % sWAVE)
    e.I('s_and_b32 s%d, s2, 7\ns_lshr_b32 s%d, s2, 3' % (T0, T1))
    e.I('s_and_b32 s%d, s%d, 7\ns_lshr_b32 s%d, s%d, 3' % (T2, T1, T3, T1))
    e.I('s_and_b32 s%d, s%d, 1\ns_lshl_b32 s%d, s%d, 3\ns_add_u32 s%d, s%d, s%d' % (sRB, T0, sRB, sRB, sRB, sRB, T2))
    e.I('s_lshr_b32 s%d, s%d, 1' % (T4, T0))
    e.I('s_lshl_b32 s%d, s%d, 2\ns_add_u32 s%d, s%d, s%d' % (sCB, T4, sCB, sCB, T3))
    e.I('s_mul_i32 s%d, s%d, %d' % (sK0, T2, cfg.rot1[0]))
    for src, mul in zip((T3, T4, None), cfg.rot1[1:]):
        if mul:
            if src is None:
                e.I('s_and_b32 s%d, s%d, 1' % (T5, T0))
            e.I('s_mul_i32 s%d, s%d, %d\ns_add_u32 s%d, s%d, s%d' % (T5, T5 if src is None else src, mul, sK0, sK0, T5))
    e.I('s_and_b32 s%d, s%d, 7' % (sK0, sK0))
    e.I('s_mul_i32 s%d, s%d, 11\ns_mul_i32 s%d, s%d, 3\ns_add_u32 s%d, s%d, s%d' % (sSG0, T4, T5, T3, sSG0, sSG0, T5))
    e.I('s_cmp_eq_u32 s%d, 15\ns_subb_u32 s%d, s%d, 0' % (sCB, sSG0, sSG0))
    if cfg.map2 == 84:
        e.I('s_lshl_b32 s%d, s%d, 3\ns_add_u32 s%d, s%d, s%d' % (sRT, T4, sRT, sRT, T2))
        e.I('s_and_b32 s%d, s%d, 1\ns_lshl_b32 s%d, s%d, 2\ns_add_u32 s%d, s%d, s%d' % (sCT, T0, sCT, sCT, sCT, sCT, T3))
    else:
        e.I('s_lshl_b32 s%d, s%d, 2\ns_and_b32 s%d, s%d, 3\ns_add_u32 s%d, s%d, s%d\ns_lshr_b32 s%d, s%d, 2' %
            (sRT, T0, T5, T1, sRT, sRT, T5, sCT, T1))
    e.I('s_and_b32 s%d, s%d, 3' % (sW, sWAVE))
    e.I('s_cmp_lt_u32 s%d, 4\ns_cbranch_scc1 L_A' % sWAVE)


def gen_B(e, cfg, st):
    NPRE = cfg.prog.count('D')
    WA = 2
    EP = 42
    XV, BV, WV, XA = 32, 36, 38, 44
    e.I('v_lshrrev_b32 v8, 3, v0')
    e.I('v_and_b32 v9, 7, v0')
    e.I('v_lshrrev_b32 v10, 4, v0')
    e.I('v_xor_b32 v10, v9, v10\nv_lshlrev_b32 v10, 4, v10')
    e.I('v_lshrrev_b32 v11, 5, v0\nv_and_b32 v12, 3, v8\nv_lshl_add_u32 v11, v11, 4, v12')
    e.I('s_lshl_b32 s%d, s%d, 2\ns_add_u32 s%d, s%d, s%d\ns_lshl_b32 s%d, s%d, 15' % (T0, sRB, T0, T0, sW, T0, T0))
    e.I('v_lshl_add_u32 v11, v11, 10, s%d' % T0)
    e.I('v_add_u32 v%d, v11, v10' % XV)
    e.I('v_xor_b32 v13, 64, v%d' % XV)
    e.I('v_add_u32 v%d, 3072, v13\nv_add_u32 v%d, 6144, v%d\nv_add_u32 v%d, 9216, v13' % (XV + 1, XV + 2, XV, XV + 3))
    e.I('s_and_b32 s%d, s%d, 1' % (T1, sW))
    e.I('s_lshl_b32 s%d, s%d, 1\ns_add_u32 s%d, s%d, s%d\ns_lshl_b32 s%d, s%d, 14' % (T0, sCB, T0, T0, T1, T0, T0))
    e.I('v_lshrrev_b32 v11, 5, v0\nv_lshl_add_u32 v11, v11, 3, v12')
    e.I('v_lshl_add_u32 v11, v11, 10, s%d' % T0)
    e.I('v_add_u32 v%d, v11, v10' % BV)
    e.I('v_xor_b32 v13, 64, v%d\nv_add_u32 v%d, 3072, v13' % (BV, BV + 1))
    e.I('s_lshl_b32 s%d, s%d, 12' % (sMX, sW))
    e.I('s_lshl_b32 s%d, s%d, 11\ns_add_u32 s%d, s%d, 16384' % (sMBm, sW, sMBm, sMBm))
    e.I('s_lshl_b32 s%d, s%d, 7' % (T6, sK0))
    e.I('s_mov_b32 s%d, 0x%x\ns_mov_b32 s%d, 0x20000\ns_mov_b32 s%d, 0x%x\ns_mov_b32 s%d, 0x20000' %
        (SX + 2, 2048 * 1024, SX + 3, SBM + 2, 512 * 1024, SBM + 3))
    set_m0(e, sMX, s_slot(0) * SLOT)
    e.I('s_mov_b32 s%d, s%d' % (sTS, T6))
    e.wait_smem()
    st(e, 'karg')
    jitter(e, cfg, 1)
    e.I('s_mov_b64 s[%d:%d], s[%d:%d]' % (SX, SX + 1, P_X, P_X + 1))

    def dma_S(i):
        slot = s_slot(i) * SLOT
        its = []
        for q in range(4):
            def f(q=q):
                if q == 0 and i:
                    set_m0(e, sMX, slot)
                    e.I('s_add_u32 s%d, s%d, %d\ns_and_b32 s%d, s%d, 1023' % (sTS, T6, i * 128, sTS, sTS))
                e.I('buffer_load_dwordx4 v%d, %s, s%d offen offset:%d %slds' % ((XV + q, srd(SX), sTS, 1024 * q) + (ntf('x', i),)), tag=('st', i))
            its.append(f)
        for q in range(2):
            def f(q=q):
                if q == 0:
                    set_m0(e, sMBm, slot)
                if q == 0 and i == 0:
                    e.I('s_cmp_ge_u32 s%d, 2\ns_cselect_b64 s[%d:%d], s[%d:%d], s[%d:%d]' % (sW, SBM, SBM + 1, P_BIM, P_BIM + 1, P_BRE, P_BRE + 1))
                e.I('buffer_load_dwordx4 v%d, %s, s%d offen offset:%d %slds' % ((BV + q, srd(SBM), sTS, 1024 * q) + (ntf('b', i),)), tag=('st', i))
            its.append(f)
        return its

    run(dma_S(0))
    st(e, 'dma0')
    s1 = dma_S(1)
    run(s1[:cfg.s1a])
    if 's' in cfg.prewarm:
        code_touch(e, 'B')
    frag16_addr(e, XA, 11, 12)
    for s in range(2):
        e.I('v_add_u32 v%d, s%d, v%d' % (XA + s, sMX, XA + s))
        e.I('v_add_u32 v%d, %d, v%d' % (XA + 2 + s, WIN, XA + s))
        if cfg.lag:
            e.I('v_add_u32 v%d, %d, v%d' % (XA + 4 + s, 2 * WIN, XA + s))
    e.I('v_lshlrev_b32 v11, 2, v0\nv_add_u32 v11, %d, v11\nv_mov_b32 v12, 0' % L_FL)
    e.I('ds_write_b32 v11, v12', tag='init')

    def setup_a():
        mk_srd(e, SWS, P_WS, WS_SIZE)
        mk_srd(e, SWD, P_WD, 1376 * 1024)
        e.I('s_cmp_ge_u32 s%d, 2' % sW)
        mk_srd_sel(e, SW, P_WU, P_WG, 512 * 2752)
        w_tr_addr(e, WA, 13, 14)
        e.I('v_lshlrev_b32 v1, 4, v0')

    def setup_b():
        w_lane_offsets(e, cfg, WV, 13, 14)
    if not cfg.defer:
        setup_a()
        setup_b()

    sDC, sDB, sDE, sAC, sAB, sAE = 86, 87, 88, 89, 90, 91
    sD0, sF0, sD2, sF2 = T2, T3, T4, T5
    st(e, '_pro')
    sP0 = 92
    if isinstance(cfg.w0pos, tuple):
        tab = sum(p << (4 * r) for r, p in enumerate(cfg.w0pos))
        e.I('s_and_b32 s%d, s%d, 7\ns_lshl_b32 s%d, s%d, 2\ns_lshr_b32 s%d, 0x%x, s%d\ns_and_b32 s%d, s%d, 15' %
            (T0, sRB, T0, T0, sP0, tab, T0, sP0, sP0))

    def w0_hook(p):
        if cfg.w0pos == p:
            run(dma_W(e, WV, SW, 0))
        elif isinstance(cfg.w0pos, tuple) and p in cfg.w0pos:
            e.I('s_cmp_eq_u32 s%d, %d\ns_cbranch_scc1 L_w0_%d' % (sP0, p, p))
            e.label('L_w0_%d_out' % p)
            with e.cold_block():
                e.label('L_w0_%d' % p)
                run(dma_W(e, WV, SW, 0))
                e.I('s_branch L_w0_%d_out' % p)
            e.m0 = None
    run(s1[cfg.s1a:])
    st(e, '_dma1')
    w0_hook(1)
    e.wait(vm=('st', 0))
    st(e, '_sa0')
    e.I('s_barrier')
    st(e, 'b0')
    for i in range(8):
        if i == 1:
            e.I('s_mov_b32 s%d, 0x%x' % (T0, EPOCH_OFF))
            e.I('buffer_load_dword v%d, off, %s, s%d sc1' % (EP, srd(SWS), T0), tag='ep')
        if i < 6:
            run(dma_S(i + 2))
            w0_hook(i + 2)
        elif cfg.w0pos is None:
            run(dma_W(e, WV, SW, i - 6))
        elif i == 6 or 'W2' not in cfg.prog:
            run(dma_W(e, WV, SW, i - 5))
        for s in range(4):
            slot = s_slot(i)
            e.I('ds_read_b128 %s, v%d offset:%d' % (vr(128 + 4 * (4 * i + s), 4), XA + 2 * (slot >> 1) + (s >> 1), (slot & 1) * SLOT + (s & 1) * 2048), tag='x')
        if cfg.defer and i == 0:
            setup_a()
        if cfg.defer and i == 1:
            setup_b()
        if i == 4:
            e.wait(vm='ep')
            e.I('v_readfirstlane_b32 s%d, v%d' % (sNONCE, EP))
            e.I('s_add_u32 s%d, s%d, 0x%x\ns_or_b32 s%d, s%d, 1' % (sNONCE, sNONCE, PHI, sNONCE, sNONCE))
            e.I('s_mov_b32 s%d, 0x%x\ns_mov_b32 s%d, 0x%x' % (sNL2E, NLOG2E, sNL2E + 1, NLOG2E))
        if i == 2:
            step_start(e, cfg, sAC, sAB, sAE, 11)
        if i == 3:
            for k in range(3):
                e.I('s_lshl_b32 s%d, s%d, 4' % (sDC + k, sAC + k))
            for n in range(1, NPRE):
                wd_next(e, n, sDC, sDB, sDE)
        if i == 5:
            act_offsets(e, 0, sD0, sF0)
        if i == 6:
            e.I('s_add_u32 s%d, s%d, 4096\ns_add_u32 s%d, s%d, %d' % (sD2, sD0, sF2, sF0, 4 * FS))
            light_scc(e)
            e.I('s_cselect_b32 s%d, 0x%x, s%d\ns_cselect_b32 s%d, 0x%x, s%d' % (sD2, OOB, sD2, sF2, OOB, sF2))
            e.I('v_mov_b32 v7, %d\nv_mov_b32 v6, 1' % L_FL)
        if i < 7:
            e.wait(vm=('st', i + 1), lg='all')
            st(e, '_sa%d' % (i + 1))
            e.I('s_barrier')
            st(e, '_sd%d' % (i + 1))
            if i == 0:
                st(e, 'b1')
    NT = cfg.NT
    ops = []
    for j in range(8 - NT):
        for s in range(2):
            for g in range(3):
                for mf in range(4):
                    ops.append((j, s, g, mf))
    tail0 = len(ops)
    for g in range(3):
        for j in range(8 - NT, 8):
            for s in range(2):
                for mf in range(4):
                    ops.append((j, s, g, mf))
    NB, LA = 6, cfg.LA
    first = {j: min(q for q in range(len(ops)) if ops[q][0] == j) for j in range(8)}
    last = {j: max(q for q in range(len(ops)) if ops[q][0] == j) for j in range(8)}

    def rd(q, half):
        if q >= len(ops):
            return
        j, s, g, mf = ops[q]
        if q == first[j] and j <= cfg.JL and half == 0:
            e.wait(vm=('st', 8 + j), lg='all' if j in cfg.drain else 'x')
            st(e, '_a%d' % j)
            e.I('s_barrier')
            st(e, '_d%d' % j)
            if j in (0, 4, cfg.JL):
                st(e, 'b%d' % (8 + j))
            if j == 0 and cfg.prioB:
                e.I('s_setprio %d' % cfg.prioB)
        w_frag_read(e, 8 + 4 * (q % NB), WA, j, s, g, mf >> 1, mf & 1, half, ('wf', q))
        if q == last[7] and half == 1:
            cnt_add(e, 7, 6, C_CONS + 28)

    def mm(q, a):
        j, s, g, mf = ops[q]
        if a == 0 and q % 2 == 0:
            e.wait(lg=('wf', q + 1))
        t = a ^ (q & 1) if cfg.snake else a
        mfma16(e, 32 + 32 * g + 16 * (mf >> 1) + 8 * t + 4 * (mf & 1), 8 + 4 * (q % NB), 128 + 16 * j + 8 * s + 4 * t, j == 0 and s == 0)
        rd(q + LA, a)

    def act_store(k, ms=(0, 1)):
        for m in ms:
            e.I('buffer_store_dwordx4 %s, v1, %s, s%d offen offset:%d sc1' %
                (vr(136 + 8 * k + 4 * m, 4), srd(SWS), sD2 if k == 2 else sD0, 1024 * m + (2048 if k == 1 else 0)), tag=('as', k))

    def with_stores(its, k):
        if not cfg.asplit:
            return its + [lambda: act_store(k)]
        h = len(its) // 2
        return its[:h] + [lambda: act_store(k, (0,))] + its[h:] + [lambda: act_store(k, (1,))]

    def act_flag(k):
        e.wait(vm=('as', k))
        flag_store(e, EP, sF2 if k == 2 else sF0, 2 * FS if k == 1 else 0)

    for q in range(LA):
        rd(q, 0)
        rd(q, 1)
    per = 8 * NT
    for q in range(tail0 + per):
        mm(q, 0)
        mm(q, 1)
    if cfg.prioT:
        e.I('s_setprio %d' % cfg.prioT)
    if NT:
        for g in (1, 2):
            main = [lambda q=q, a=a: mm(q, a) for q in range(tail0 + g * per, tail0 + (g + 1) * per) for a in range(2)]
            fill = with_stores(act_items_scalar(e, cfg, 32 * g, 32 * g + 16, 128, 136 + 8 * (g - 1)), g - 1)
            run(main[:3] + weave(main[3:], fill))
        st(e, 'f1end')
        run(with_stores(act_items(e, cfg, 96, 112, 128, 152), 2))
    else:
        st(e, 'f1end')
        for g in range(3):
            run(with_stores(act_items(e, cfg, 32 + 32 * g, 48 + 32 * g, 128, 136 + 8 * g), g))
    if cfg.prioB or cfg.prioT:
        e.I('s_setprio 0')
    st(e, 'actst')
    jitter(e, cfg, 2)
    DA, AV, PW, WDV, EP = 2, 14, 16, 18, 23
    e.I('v_mov_b32 v%d, s%d' % (EP, sNONCE))
    e.I(wd_lane_offsets(e, WDV, 20, 21))
    e.I('v_mov_b32 v22, %d' % L_FL)
    cnt_spin(e, 'L_spinB', 22, 24, C_CONS + 28)
    st(e, 'ldsfree')

    def dma_D(n):
        sl, pos = RING[n]
        if n in PREV:
            e.wait(lg=('wr', PREV[n]))
        set_m0(e, sMW, sl * SLOT + pos * 2048)
        if n:
            wd_next(e, n, sDC, sDB, sDE)
        for q in range(2):
            e.I('buffer_load_dwordx4 v%d, %s, s%d offen offset:%d %slds' % ((WDV + q, srd(SWD), sDC, 1024 * q) + (ntf('d', n),)), tag=('wd', n))

    def wd_reg(n2):
        return 128 + 16 * n2 if n2 < 5 else 32 + 16 * (n2 - 5) if n2 < 7 else 128 + 16 * (n2 - 7)

    def wd_read(n, dqs=range(4)):
        sl, pos = RING[n]
        e.wait(vm=('wd', n))
        for dq in dqs:
            e.I('ds_read_b64_tr_b16 %s, v%d offset:%d' % (vr(wd_reg(n >> 1) + 4 * dq + 2 * (n & 1), 2), DA + 4 * (sl >> 1) + dq,
                                                         (sl & 1) * SLOT + pos * 2048), tag=('wr', n))

    def setup2():
        e.I('v_lshrrev_b32 v20, 2, v0\nv_lshlrev_b32 v20, 7, v20\nv_bfe_u32 v21, v0, 3, 2\nv_lshl_add_u32 v20, v21, 5, v20')
        e.I('v_and_b32 v21, 3, v0\nv_lshl_add_u32 v20, v21, 3, v20\nv_add_u32 v%d, s%d, v20' % (DA, sMW))
        for dq in range(1, 4):
            e.I('v_xor_b32 v%d, %d, v%d' % (DA + dq, 32 * dq, DA))
        for k in (1, 2):
            for dq in range(4):
                e.I('v_add_u32 v%d, %d, v%d' % (DA + 4 * k + dq, k * WIN, DA + dq))
        e.I('s_mul_i32 s%d, s%d, %d' % (T0, sRT, 2 * 88064))
        e.I('v_add_u32 v%d, s%d, v1\nv_add_u32 v%d, 88064, v%d' % (AV, T0, AV + 1, AV))
        e.I('s_mul_i32 s%d, s%d, 44\ns_mul_i32 s%d, s%d, 11\ns_add_u32 s%d, s%d, s%d\ns_mul_i32 s%d, s%d, %d\ns_add_u32 s%d, s%d, 0x%x' %
            (T0, sRT, T1, sW, T0, T0, T1, T0, T0, 2 * FS, T0, T0, AF_OFF))
        e.I('v_mul_u32_u24 v20, %d, v0' % FS)
        e.I('s_mov_b32 s%d, 0x3fffff\ns_cmp_eq_u32 s%d, 3\ns_cselect_b32 s%d, 0xfffff, s%d\ns_mov_b32 s%d, 0' % (sMA, sW, sMA, sMA, sMA + 1))

    for n in range(NPRE, 11):
        for k in range(3):
            if cfg.flagpos[k] + NPRE == n:
                if k == 2:
                    setup2()
                act_flag(k)
                if k == 2:
                    st(e, 'flagged')
        if n < 10:
            dma_D(n)
    st(e, '_d9')
    cnt_spin(e, 'L_spinB2', 22, 24, C_DONEA)
    st(e, '_da')
    jitter(e, cfg, 3)
    pulled = [0]

    def d_step(n):
        dma_D(n)
        while pulled[0] < min(14, 3 * (n - 9), n - 3):
            wd_read(pulled[0])
            pulled[0] += 1
        if n == 14:
            e.wait(lg=('wr', 9))
            set_m0(e, sMW, L_P2)
            e.I('s_mov_b64 exec, 1')
            e.I('buffer_load_dword off, %s, s%d lds' % (srd(SWD), SWD + 2), tag='init')
            e.I('s_mov_b64 exec, -1')
        if n == -cfg.posXB:
            bar_X()

    def bar_X():
        assert pulled[0] >= 12
        e.wait(vm='init', lg=('wr', 11))
        st(e, '_aX')
        e.I('s_barrier')

    for n in range(10, cfg.alook):
        d_step(n)
    st(e, 'wdiss')
    nd = cfg.alook + cfg.abet
    poll(e, 'L_pollA', 21, 20, T0, 's[%d:%d]' % (sMA, sMA + 1), lambda: [d_step(n) for n in range(cfg.alook, nd)])
    st(e, 'actrdy')
    jitter(e, cfg, 4)
    if cfg.prioF2:
        e.I('s_setprio %d' % cfg.prioF2)

    TL = cfg.TL
    sSV = 92
    NM = 11 - TL

    order = [(n2, t4) for n2 in range(NM) for t4 in range(4)] + [(n2, t4) for t4 in range(4) for n2 in range(NM, 11)]

    def a_reg(n2, t4):
        return 208 + 4 * (order.index((n2, t4)) % 12)

    pend = []
    rq = []

    def flush(n=99):
        for t in pend[:n]:
            e.I(t)
        del pend[:n]

    def a_load(n2, t4):
        if t4 == 0:
            flush()
        so = sAC if n2 < NM else sSV + n2 - NM
        e.I('buffer_load_dwordx4 %s, v%d, %s, s%d offen offset:%d sc1' % (vr(a_reg(n2, t4), 4), AV + (t4 >> 1), srd(SWS), so, 1024 * (t4 & 1)),
            tag=('a', n2, t4))
        if n2 < 10 and t4 == (3 if n2 < NM else 0):
            dst = sAC if n2 + 1 < NM else sSV + n2 + 1 - NM
            pend.append('s_add_u32 s%d, s%d, 2048' % (dst, so))
            pend.append('s_cmp_eq_u32 s%d, s%d\ns_cselect_b32 s%d, s%d, s%d' % (dst, sAE, dst, sAB, dst))
            if n2 == 9:
                pend.append('s_cmp_eq_u32 s%d, 3\ns_cselect_b32 s%d, 0x%x, s%d' % (sW, dst, OOB, dst))

    lq = []
    for k, t in enumerate(order):
        lq.append(('a', k))
        if k & 1 and nd < 22:
            lq.append(('d', nd))
            nd += 1
    dn = [cfg.alook + cfg.abet - 1]
    nis = [0]

    def issue(k, busy):
        while lq:
            t = lq[0]
            tag = ('a',) + order[k]
            nv = min(cfg.NV, cfg.NV0[0] + max(0, k - cfg.NV0[1]))
            if nis[0] > k and (len(e.vm) - 1 - e.vm.index(tag) >= nv - 1 if tag in e.vm else len(e.vm) >= nv):
                return
            if t[0] == 'a':
                if t[1] >= busy + 12:
                    return
                a_load(*order[t[1]])
                nis[0] = t[1] + 1
            else:
                d_step(t[1])
                dn[0] = t[1]
            lq.pop(0)

    wq = []
    zq = [list(g) for g in cfg.zg]
    since = [0]

    def w_pop():
        t = wq.pop(0)
        if t is not None:
            t4, i = t
            assert not rq
            hi = 32768 if t4 == 3 else 0
            set_m0(e, sMW, hi)
            e.I('ds_write_addtid_b32 v%d offset:%d' % (acc2(t4, 0) + i, t4 * SLOT - hi + 256 * i), tag=('pw', t4))
            if i == 15 and t4 == zq[0][-1]:
                since[0] = cfg.zlag + 1
        if since[0]:
            since[0] -= 1
            if since[0] == 0:
                z_bar()

    def z_bar():
        e.wait(lg=('pw', zq.pop(0)[-1]))
        e.I('s_barrier')

    def mm2(k):
        n2, t4 = order[k]
        if k == 0:
            issue(k, k)
        while rq and rq[0][0] >> 1 <= (order[k + 2][0] if k + 2 < 4 * NM + TL else 99):
            t = rq.pop(0)
            wd_read(t[0], [t[1]])
        e.wait(vm=('a', n2, t4), lg=('wr', 2 * n2 + 1))
        for dq in range(4):
            d = 3 - dq if cfg.snake and n2 < NM and t4 & 1 else dq
            mfma16(e, acc2(t4, d), a_reg(n2, t4), wd_reg(n2) + 4 * d, n2 == 0)
            if dq == 0 and lq:
                issue(k + 1, k)
            elif pend and dq < 3:
                flush(1)
            elif rq and dq < 3:
                t = rq.pop(0)
                wd_read(t[0], [t[1]])
            elif wq:
                w_pop()
        if n2 == 10:
            if t4 == 0:
                wq.extend([None, None])
            wq.extend((t4, i) for i in range(16))

    for n2 in range(NM):
        st(e, '_n%d' % n2)
        while pulled[0] <= min(2 * n2 + 5, 13):
            assert dn[0] >= pulled[0]
            wd_read(pulled[0])
            pulled[0] += 1
        if n2 == cfg.posXB:
            bar_X()
        for t4 in range(4):
            mm2(4 * n2 + t4)
        if cfg.pull0 <= n2 < cfg.pull0 + 4:
            m2 = n2 - cfg.pull0 + 7
            assert dn[0] >= 2 * m2 + 1
            rq.extend((2 * m2 + hf, dq) for hf in range(2) for dq in range(4))
    assert cfg.pull0 + 4 <= NM
    for k in range(4 * NM, 44):
        mm2(k)
    if cfg.prioF2:
        e.I('s_setprio 0')
    st(e, 'f2end')
    jitter(e, cfg, 5)
    while wq:
        w_pop()
    while zq:
        z_bar()
    st(e, 'end')
    st.flush(e)
    e.I('s_endpgm')


def gen_A(e, cfg, st):
    LR, LI, L16, L128, L256, L16S, KAP, WV = 48, 49, 50, 52, 54, 56, 58, 60
    PP = 32
    SIDX = 3
    RE, IM = 64, 80
    XA, BA = 192, 204
    CV, CA, CA4, WDV = 96, 100, 104, 108
    EV0, EV1, EOOB, ERD, ECNT, EEXP, ONE, FLA, XW, XR, P16 = range(110, 121)
    SEL = 216
    RING0 = 144
    sHD, sHF, sES, sEL, sROT, sDTX = 86, 87, 90, 91, 92, 80
    sDC, sDB, sDE = 93, 94, 95
    e.I('v_lshlrev_b32 v1, 4, v0')
    e.I('v_and_b32 v21, 0x13, v0\nv_bfe_u32 v22, v0, 2, 1\nv_lshl_add_u32 v21, v22, 3, v21\nv_bfe_u32 v22, v0, 3, 1\nv_lshl_add_u32 v21, v22, 2, v21')
    e.I('s_lshl_b32 s%d, s%d, 6' % (T0, sCB))
    e.I('v_lshl_add_u32 v21, v21, 1, s%d' % T0)
    e.I('s_lshl_b32 s%d, s%d, 2\ns_add_u32 s%d, s%d, s%d\ns_lshl_b32 s%d, s%d, 4\ns_add_u32 s%d, s%d, s%d' %
        (T3, sRB, T3, T3, sW, T3, T3, T3, T3, sCB))
    e.I('s_lshl_b32 s%d, s%d, 11' % (T2, T3))
    frag_addr(e, BA, 4, 5)
    def karg_block():
        e.wait_smem()
        st(e, '_karg')
        mk_srd(e, SX, P_X, 2048 * 1024)
        mk_srd(e, SWS, P_WS, WS_SIZE)
        e.I('s_mov_b32 s%d, 0x%x\ns_lshl_b32 s%d, s%d, 6' % (T4, EPOCH_OFF, T0, sCB))
        e.I('s_load_dword s3, s[%d:%d], s%d' % (P_WS, P_WS + 1, T4))
        for p in (P_LRE, P_LIM, P_LDT):
            e.I('s_load_dword s3, s[%d:%d], s%d' % (p, p + 1, T0))
        e.I('s_lshr_b32 s%d, s2, 3\ns_lshl_b32 s%d, s%d, 2\ns_add_u32 s%d, s%d, s%d\ns_and_b32 s%d, s%d, 15\ns_lshl_b32 s%d, s%d, 6' %
            (T0, T0, T0, T0, T0, sW, T0, T0, T0, T0))
        for p in (P_GW, P_DSK):
            e.I('s_load_dword s3, s[%d:%d], s%d' % (p, p + 1, T0))
        if 's' in cfg.prewarm:
            code_touch(e, 'A')

    if not cfg.apre:
        karg_block()

    def small0():
        e.I('buffer_load_dword v19, off, %s, s%d sc1' % (srd(SWS), T4), tag='ep')
        e.I('global_load_ushort v16, v21, s[%d:%d]' % (P_LRE, P_LRE + 1), tag='par')
        e.I('global_load_ushort v17, v21, s[%d:%d]' % (P_LIM, P_LIM + 1), tag='par')
        e.I('global_load_ushort v18, v21, s[%d:%d]' % (P_LDT, P_LDT + 1), tag='par')

    small1 = [lambda: e.I('global_load_dwordx4 v[44:47], v1, s[%d:%d]' % (P_GW, P_GW + 1), tag='g'),
              lambda: e.I('buffer_load_dwordx4 v[36:39], v1, %s, s%d offen' % (srd(SX), T2), tag='g'),
              lambda: e.I('buffer_load_dwordx4 v[40:43], v1, %s, s%d offen offset:1024' % (srd(SX), T2), tag='g')]
    e.I('s_lshl_b32 s%d, s%d, 3\ns_add_u32 s%d, s%d, 0x%x' % (T6, T3, T6, T6, G_OFF))

    e.I('s_lshl_b32 s%d, s%d, 12' % (T0, sW))
    for s in range(4):
        e.I('v_add_u32 v%d, s%d, v%d' % (XA + s, T0, BA + s))
        e.I('v_add_u32 v%d, %d, v%d' % (XA + 4 + s, WIN, XA + s))
        e.I('v_add_u32 v%d, %d, v%d' % (BA + 4 + s, WIN, BA + s))
        if cfg.lag:
            e.I('v_add_u32 v%d, %d, v%d\nv_add_u32 v%d, %d, v%d' % (XA + 8 + s, 2 * WIN, XA + s, BA + 8 + s, 2 * WIN, BA + s))
    w_lane_offsets(e, cfg, WV, 24, 25)
    e.I('v_lshrrev_b32 v24, 5, v0\ns_lshl_b32 s%d, s%d, 1' % (T0, sW))
    e.I('v_add_u32 v%d, s%d, v24' % (SIDX, T0))
    if cfg.apre:
        karg_block()
    rot2_calc(e, cfg, sROT, 0)
    if cfg.rotS:
        e.I('s_and_b32 s%d, s%d, %d\ns_lshl_b32 s%d, s%d, %d\ns_xor_b32 s%d, s%d, s%d' % (T0, sCT, cfg.rotS[0], T0, T0, cfg.rotS[1], sROT, sROT, T0))
    e.I('s_and_b32 s%d, s%d, 1\ns_lshr_b32 s%d, s%d, 1' % (sDTX, sROT, sROT, sROT))
    e.I('s_bitcmp1_b32 s%d, 0' % sROT)
    mk_srd_sel(e, SC1, P_CIM, P_CRE, 512 * 1024)
    mk_srd_sel(e, SC2, P_CRE, P_CIM, 512 * 1024)
    mk_srd(e, SWD, P_WD, 1376 * 1024)
    step_start(e, cfg, sDC, sDB, sDE, 15)
    e.I('s_cmp_ge_u32 s%d, 2' % sW)
    mk_srd_sel(e, SWA, P_WU, P_WG, 512 * 2752)
    e.I('s_lshl_b32 s%d, s%d, 2\ns_add_u32 s%d, s%d, s%d' % (T0, sRB, T0, T0, sW))
    HW_ = 16384 + cfg.hpad[0]
    HT_ = 4 * HW_ + cfg.hpad[1]
    assert H_OFF + 64 * HT_ <= E_OFF
    e.I('s_mul_i32 s%d, s%d, %d\ns_lshr_b32 s%d, s%d, 1\ns_lshl_b32 s%d, s%d, 13\ns_add_u32 s%d, s%d, s%d' %
        (sHD, T0, HT_, T1, sCB, T1, T1, sHD, sHD, T1))
    e.I('s_lshr_b32 s%d, s%d, 2\ns_mul_i32 s%d, s%d, %d\ns_add_u32 s%d, s%d, s%d' % (T1, sCB, T1, T1, cfg.hpad[0], sHD, sHD, T1))
    e.I('s_and_b32 s%d, s%d, 1\ns_lshl_b32 s%d, s%d, 11\ns_add_u32 s%d, s%d, s%d\ns_add_u32 s%d, s%d, 0x%x' %
        (T1, sCB, T1, T1, sHD, sHD, T1, sHD, sHD, H_OFF))
    e.I('s_lshr_b32 s%d, s%d, 1\ns_lshl_b32 s%d, s%d, 4\ns_add_u32 s%d, s%d, s%d\ns_lshl_b32 s%d, s%d, 1' %
        (T1, T0, T1, T1, T1, T1, sCB, T1, T1))
    e.I('s_and_b32 s%d, s%d, 1\ns_add_u32 s%d, s%d, s%d\ns_mul_i32 s%d, s%d, %d\ns_add_u32 s%d, s%d, 0x%x' %
        (T0, T0, T1, T1, T0, T1, T1, FS, sHF, T1, HF_OFF))
    e.I('s_lshl_b32 s%d, s%d, 13\ns_add_u32 s%d, s%d, 0x%x' % (sEL, sCB, sEL, sEL, E_OFF))
    e.I('s_lshl_b32 s%d, s%d, 9\ns_add_u32 s%d, s%d, s%d\ns_cmp_eq_u32 s%d, 0\ns_cselect_b32 s%d, s%d, 0x%x' %
        (sES, sRB, sES, sES, sEL, sW, sES, sES, OOB))
    e.I('s_sub_u32 s%d, s%d, 1024' % (sEL, sEL))

    tch = Touch(e, cfg, 'A')
    tch.setup()
    tch.at(-1)

    e.I('s_lshl_b32 s%d, s%d, 9\ns_add_u32 s%d, s%d, %d' % (T0, sW, T0, T0, L_E))
    e.I('v_lshl_add_u32 v%d, v0, 3, s%d' % (XW, T0))
    e.I('v_and_b32 v6, 31, v0\nv_lshlrev_b32 v%d, 4, v6\nv_lshlrev_b32 v6, 3, v6\nv_add_u32 v%d, %d, v6' % (P16, XR, L_E))
    e.I('v_and_b32 v4, 3, v0\nv_bfe_u32 v5, v0, 3, 2\nv_lshl_add_u32 v4, v5, 2, v4')
    e.I('v_bfe_u32 v5, v0, 2, 1\nv_lshrrev_b32 v6, 5, v0\nv_xor_b32 v5, v5, v6\nv_lshl_add_u32 v4, v5, 4, v4')
    e.I('v_and_b32 v5, 1, v0\nv_lshlrev_b32 v5, 4, v5\nv_mov_b32 v6, 0x3f80\nv_lshlrev_b32 v5, v5, v6\nv_lshrrev_b32 v4, 1, v4')
    for n in range(8):
        e.I('v_cmp_eq_u32 vcc, %d, v4\nv_cndmask_b32 v%d, 0, v5, vcc' % (n, SEL + n))
    e.I('v_and_b32 v6, 7, v0\nv_lshrrev_b32 v7, 4, v0\nv_xor_b32 v6, v6, v7\nv_lshlrev_b32 v6, 4, v6')
    e.I('v_lshrrev_b32 v7, 3, v0\nv_lshl_add_u32 v6, v7, 10, v6')
    e.I('s_lshl_b32 s%d, s%d, 16\ns_lshl_b32 s%d, s%d, 8\ns_add_u32 s%d, s%d, s%d' % (T0, sCT, T1, sW, T0, T0, T1))
    e.I('v_add_u32 v%d, s%d, v6\nv_xor_b32 v7, 64, v%d' % (CV, T0, CV))
    e.I('v_add_u32 v%d, 7168, v7\nv_add_u32 v%d, 14336, v%d\nv_add_u32 v%d, 21504, v7' % (CV + 1, CV + 2, CV, CV + 3))
    frag16_addr(e, CA, 6, 7)
    for s in range(2):
        e.I('v_add_u32 v%d, s%d, v%d' % (CA + s, sMW, CA + s))
        e.I('v_add_u32 v%d, %d, v%d' % (CA4 + s, 4 * SLOT, CA + s))
    HS = CA + 2
    e.I('v_and_b32 v6, 15, v0\nv_lshlrev_b32 v6, 4, v6\nv_bfe_u32 v7, v0, 4, 1\nv_lshl_add_u32 v6, v7, 10, v6')
    e.I('v_lshrrev_b32 v7, 5, v0\nv_lshl_add_u32 v%d, v7, 8, v6' % HS)
    e.I('s_lshr_b32 s88, s%d, 1\ns_lshl_b32 s88, s88, 7\ns_lshl_b32 s89, s%d, 15\ns_add_u32 s88, s88, s89\ns_xor_b32 s89, s88, 128' % (sROT, sDTX))
    e.I(wd_lane_offsets(e, WDV, 6, 7))
    e.I('s_lshl_b32 s%d, s%d, 2\ns_sub_u32 s%d, s%d, s%d\ns_sub_u32 s%d, s%d, 1\ns_lshl_b32 s%d, s%d, 11' % (T0, sW, T0, sRB, T0, T0, T0, T5, sW))
    e.I('v_lshrrev_b32 v6, 5, v0\nv_sub_u32 v7, s%d, v6' % T0)
    e.I('v_cmp_le_i32 vcc, 0, v7\nv_cmp_le_i32 s[%d:%d], 2, v7' % (sMB, sMB + 1))
    e.I('v_lshl_add_u32 v7, v7, 9, v%d\nv_add_u32 v7, 1024, v7\nv_subrev_u32 v5, 2048, v7\nv_mov_b32 v%d, 0x%x' % (P16, EOOB, OOB))
    e.I('v_cndmask_b32 v%d, v%d, v7, vcc\nv_cndmask_b32 v%d, v%d, v5, s[%d:%d]' % (EV0, EOOB, EV1, EOOB, sMB, sMB + 1))
    e.I('v_lshl_add_u32 v7, v6, 12, v%d\nv_add_u32 v%d, %d, v7' % (P16, ERD, L_EG))
    e.I('v_lshlrev_b32 v6, 3, v6\nv_sub_u32 v%d, s%d, v6\nv_med3_i32 v%d, v%d, 0, 8' % (ECNT, sRB, EEXP, ECNT))
    e.I('v_mov_b32 v%d, 1\nv_mov_b32 v%d, %d' % (ONE, FLA, L_FL))

    pro = []
    add = lambda t: [pro.append(lambda x=x: e.I(x)) for x in t.split('\n')]

    def csq(d, a):
        add('v_mul_f32 v30, v%d, v%d\nv_mul_f32 v31, v%d, v%d\nv_fma_f32 v%d, -v%d, v%d, v30\nv_add_f32 v%d, v31, v31' %
            (a, a, a, a + 1, d, a + 1, a + 1, d + 1))

    def cmul(d, a, b):
        add('v_mul_f32 v30, v%d, v%d\nv_mul_f32 v31, v%d, v%d\nv_fma_f32 v30, -v%d, v%d, v30\nv_fma_f32 v%d, v%d, v%d, v31\nv_mov_b32 v%d, v30' %
            (a, b, a, b + 1, a + 1, b + 1, d + 1, a + 1, b, d))

    pro.append(lambda: e.wait(vm=['ep', 'par']))
    add('v_readfirstlane_b32 s%d, v19' % sNONCE)
    add('v_lshlrev_b32 v16, 16, v16\nv_lshlrev_b32 v17, 16, v17\nv_lshlrev_b32 v18, 16, v18')
    add('s_add_u32 s%d, s%d, 0x%x\ns_or_b32 s%d, s%d, 1' % (sNONCE, sNONCE, PHI, sNONCE, sNONCE))
    add('v_mul_f32 v18, 0x%x, v18\nv_exp_f32 v18, v18\nv_cvt_pk_bf16_f32 v18, v18, v18\nv_lshlrev_b32 v18, 16, v18' % LOG2E)
    add('v_mul_f32 v21, v18, v16\nv_mul_f32 v22, v18, v17')
    add('v_mul_f32 v21, 0x%x, v21\nv_exp_f32 v21, v21' % LOG2E)
    add('v_mul_f32 v22, 0.15915494, v22\nv_rndne_f32 v23, v22\nv_sub_f32 v22, v22, v23\nv_sin_f32 v23, v22\nv_cos_f32 v22, v22')
    add('v_mul_f32 v%d, v21, v23\nv_mul_f32 v%d, v21, v22' % (LI, LR))
    add('v_mul_f32 v21, v16, v16\nv_fmac_f32 v21, v17, v17\nv_rcp_f32 v21, v21\nv_add_f32 v22, -1.0, v%d\nv_add_f32 v21, v21, v21' % LR)
    add('v_mul_f32 v23, v22, v16\nv_fmac_f32 v23, v%d, v17\nv_mul_f32 v%d, v23, v21' % (LI, KAP))
    add('v_mul_f32 v23, v%d, v16\nv_fma_f32 v23, -v22, v17, v23\nv_mul_f32 v%d, v23, v21' % (LI, KAP + 1))
    csq(22, LR); csq(22, 22); csq(22, 22); csq(L16, 22)
    csq(22, L16); csq(24, 22); csq(L128, 24); csq(L256, L128); csq(L256, L256); csq(L256, L256)
    for bit, src, dst in ((1, L16, L16S), (2, 22, 22), (4, 24, 24)):
        add('v_and_b32 v26, %d, v%d\nv_cmp_ne_u32 vcc, 0, v26' % (bit, SIDX))
        add('v_cndmask_b32 v%d, 1.0, v%d, vcc\nv_cndmask_b32 v%d, 0, v%d, vcc' % (dst, src, dst + 1, src + 1))
    cmul(L16S, L16S, 22); cmul(L16S, L16S, 24)
    add('v_mul_lo_u32 v%d, v%d, s%d\nv_mov_b32 v2, s%d' % (EEXP, EEXP, sNONCE, sNONCE))

    par, pro = pro, []
    pro.append(lambda: e.wait(vm='g'))
    for k in range(4):
        add('v_lshlrev_b32 v24, 16, v%d\nv_and_b32 v25, 0xffff0000, v%d' % (44 + k, 44 + k))
        for row in range(2):
            x = 36 + 4 * row + k
            add('v_lshlrev_b32 v26, 16, v%d\nv_and_b32 v27, 0xffff0000, v%d' % (x, x))
            add('v_mul_f32 v26, v26, v24\nv_mul_f32 v27, v27, v25\nv_cvt_pk_bf16_f32 v26, v26, v27')
            add('v_lshlrev_b32 v27, 16, v26\nv_and_b32 v26, 0xffff0000, v26')
            if k == 0:
                add('v_add_f32 v%d, v26, v27' % (28 + row))
            else:
                add('v_add_f32 v26, v26, v27\nv_add_f32 v%d, v%d, v26' % (28 + row, 28 + row))
    for mod in ('row_shr:1 row_mask:0xf', 'row_shr:2 row_mask:0xf', 'row_shr:4 row_mask:0xf', 'row_shr:8 row_mask:0xf',
                'row_bcast:15 row_mask:0xa', 'row_bcast:31 row_mask:0xc'):
        for row in range(2):
            add('v_add_f32_dpp v%d, v%d, v%d %s bank_mask:0xf' % (28 + row, 28 + row, 28 + row, mod))
    add('v_cvt_pk_bf16_f32 v26, v28, v29\nv_lshlrev_b32 v28, 16, v26\nv_and_b32 v29, 0xffff0000, v26')
    add('v_mul_f32 v28, 0x%x, v28\nv_mul_f32 v29, 0x%x, v29\nv_exp_f32 v28, v28\nv_exp_f32 v29, v29' % (NLOG2E, NLOG2E))
    add('v_add_f32 v28, 1.0, v28\nv_add_f32 v29, 1.0, v29\nv_rcp_f32 v28, v28\nv_rcp_f32 v29, v29')
    add('v_cvt_pk_bf16_f32 v26, v28, v29\nv_lshlrev_b32 v28, 16, v26\nv_and_b32 v29, 0xffff0000, v26')
    gate, pro = pro, par

    gdone = []

    def g_store():
        gdone.append(1)
        e.I('s_mov_b32 exec_lo, 0\ns_mov_b32 exec_hi, 0x80000000')
        e.I('buffer_store_dwordx2 v[28:29], off, %s, s%d sc1' % (srd(SWS), T6), tag='gs')
        e.I('s_mov_b64 exec, -1')

    nbar = [0]

    def s_bar(i):
        assert nbar[0] == i
        nbar[0] += 1
        e.I('s_barrier')
        if i in (0, 7):
            st(e, 'b%d' % i)

    def s_read(n):
        i, s = n >> 2, n & 3
        slot = s_slot(i)
        if s == 0 and not cfg.lag:
            s_bar(i)
        assert nbar[0] > i
        off = (slot & 1) * SLOT
        b = RING0 + 12 * (n & 3)
        e.I('ds_read_b128 %s, v%d offset:%d' % (vr(b + 8, 4), XA + 4 * (slot >> 1) + s, off), tag=('s', n, 0))
        for part in range(2):
            e.I('ds_read_b128 %s, v%d offset:%d' % (vr(b + 4 * part, 4), BA + 4 * (slot >> 1) + s,
                                                    off + 16384 + part * 4096), tag=('s', n, part))

    def s_mm(n, part):
        e.wait(lg=('s', n, part))
        b = RING0 + 12 * (n & 3)
        mfma(e, RE + 16 * part, b + 8, b + 4 * part, n == 0)

    D = 2
    seq = []
    for n in range(32):
        seq.append(lambda n=n: (s_mm(n, 0), s_read(n + D) if n + D < 32 else None))
        seq.append(lambda n=n: s_mm(n, 1))
    st(e, '_pro')
    if cfg.lag:
        L = cfg.lag
        npar = len(pro) // max(L - 1, 1) + 1
        for i in range(L):
            s_bar(i)
            tch.at(10 + i)
            if i == 0:
                small0()
            if i >= 1:
                run(pro[(i - 1) * npar:i * npar])
        s_bar(L)
        for n in range(D):
            s_read(n)
        r2 = 2 * cfg.lagr
        for k, it in enumerate(seq):
            it()
            i = L + (k + 1) // r2
            if (k + 1) % r2 == 0 and i <= 7:
                assert (k + 1) // 2 >= 4 * (i - 3)
                s_bar(i)
    else:
        for n in range(D):
            s_read(n)
        p0 = 2 * cfg.smallpos
        run(seq[:p0])
        small0()
        run(seq[p0:p0 + 10])
        run(weave(seq[p0 + 10:56], pro) + seq[56:])
    assert nbar[0] == 8
    st(e, 's1end')
    jitter(e, cfg, 6)
    if cfg.prioA:
        e.I('s_setprio %d' % cfg.prioA)

    def items(txt):
        return [lambda t=t: e.I(t) for t in txt.split('\n')]

    def cfma(d, l, a, c):
        return items('v_fma_f32 v%d, v%d, v%d, v%d\nv_fma_f32 v%d, v%d, v%d, v%d\nv_fma_f32 v%d, -v%d, v%d, v%d\nv_fmac_f32 v%d, v%d, v%d' %
                     (d, l, a, c, d + 1, l, a + 1, c + 1, d, l + 1, a + 1, d, d + 1, l + 1, a))

    prev = (RE, IM)
    for r in range(1, 16):
        cur = (20 + 2 * (r & 1), 21 + 2 * (r & 1))
        e.I('v_fma_f32 v%d, v%d, v%d, v%d' % (cur[0], LR, prev[0], RE + r))
        e.I('v_fma_f32 v%d, v%d, v%d, v%d' % (cur[1], LR, prev[1], IM + r))
        e.I('v_fma_f32 v%d, -v%d, v%d, v%d' % (cur[0], LI, prev[1], cur[0]))
        e.I('v_fmac_f32 v%d, v%d, v%d' % (cur[1], LI, prev[0]))
        prev = cur
    e.I('ds_write_b64 v%d, %s' % (XW, vr(prev[0], 2)), tag='ex')

    def c_reg(u, s2, dq):
        return 128 + 32 * u + 16 * s2 + 4 * dq

    CBUF = cfg.cbuf
    CPREV = {i: max(k for k in range(i) if CBUF[k] == CBUF[i]) for i in range(8) if CBUF[i] in CBUF[:i]}
    cdone = set()
    hdone = []

    def c_read(i):
        if i in cdone:
            return
        cdone.add(i)
        assert i < 4 or hdone
        e.wait(vm=('c', i))
        for s in range(4):
            a_, off = (CA4 + (s >> 1), 0) if CBUF[i] == 4 else (CA + (s >> 1), CBUF[i] * SLOT)
            e.I('ds_read_b128 %s, v%d offset:%d' % (vr(c_reg(i >> 1, s >> 1, 2 * (i & 1) + (s & 1)), 4), a_, off + (s & 1) * 2048), tag=('cr', i))

    def c_loads(i):
        u, dt = i >> 1, i & 1
        its = []
        for q in range(4):
            def f(q=q):
                if q == 0:
                    if i in CPREV:
                        c_read(CPREV[i])
                        e.wait(lg=('cr', CPREV[i]))
                    elif CBUF[i] != 4 and (6 + CBUF[i] > cfg.JL or 4 + CBUF[i] >= 8 - cfg.NT):
                        assert kcur[0] >= cfg.JL
                        cnt_spin(e, 'L_cb%d' % i, FLA, 34, C_CONS + 28)
                    e.I('s_xor_b32 s%d, s%d, %d' % (sTD, 88 + (u >> 1), dt * 32768))
                set_m0(e, sMW, CBUF[i] * SLOT)
                e.I('buffer_load_dwordx4 v%d, %s, s%d offen offset:%d %slds' % ((CV + q, srd(SC2 if u & 1 else SC1), sTD, 1024 * q) + (ntf('c', i),)), tag=('c', i))
                if q == 3:
                    st(e, '_c%d' % i)
                if q == 3 and i >= 2:
                    c_read(i - 2)
            its.append(f)
        return its

    def d_loads(n):
        sl, pos = RING[n]
        its = []
        for q in range(2):
            def f(q=q):
                set_m0(e, sMW, sl * SLOT + pos * 2048)
                if q == 0 and n:
                    wd_next(e, n, sDC, sDB, sDE)
                e.I('buffer_load_dwordx4 v%d, %s, s%d offen offset:%d %slds' % ((WDV + q, srd(SWD), sDC, 1024 * q) + (ntf('d', n),)), tag='wd')
            its.append(f)
        return its

    wl = {j: dma_W(e, WV, SWA, j) for j in range(2, 8)}
    planned = set()

    def e_loads():
        its = []
        for q in range(2):
            def f(q=q):
                set_m0(e, T5, L_EG)
                e.I('buffer_load_dwordx4 v%d, %s, s%d offen offset:%d sc1 lds' % (EV0 + q, srd(SWS), sEL, 1024 * q), tag='eg')
            its.append(f)
        return its

    def expand(toks, k):
        r = []
        for t in toks.split(','):
            if not t:
                continue
            n = int(t[1])
            planned.add(t)
            if t[0] == 'W':
                assert n < 4 or k >= n - 2 or (k == n - 3 and k in cfg.drain)
                r += wl[n][:3] if t[2:] == 'a' else wl[n][3:] if t[2:] == 'b' else wl[n]
            elif t[0] == 'C':
                assert CBUF[n] == 4 or k >= min(6 + CBUF[n], cfg.JL)
                assert k >= 2 or cfg.w0pos is None
                r += c_loads(n)
            elif t[0] == 'D':
                r += d_loads(n)
            elif t[0] == 'S':
                r.append(lambda n=n: (hq[n](), hsent.add(n)))
            elif t[0] == 'G':
                r += small1
            elif t[0] == 'E':
                r += e_loads()
            elif t[0] == 'T':
                r.append(lambda n=n: tch.at(n))
        return r

    def bar(k, extra=()):
        kk = 7 if k == cfg.JL else k
        assert kk < 2 or 'W%d' % kk in planned or 'W%db' % kk in planned or (kk == 2 and cfg.w0pos is not None)
        e.wait(vm=[('st', 8 + kk)] + list(extra))
        st(e, '_a%d' % k)
        e.I('s_barrier')
        st(e, '_d%d' % k)

    sc = []
    for r in range(16):
        sc += items('v_mul_f32 v4, v%d, v%d\nv_mul_f32 v5, v%d, v%d\nv_fma_f32 v%d, v%d, v%d, -v4\nv_fma_f32 v%d, v%d, v%d, v5' %
                    (KAP + 1, IM + r, KAP + 1, RE + r, RE + r, KAP, RE + r, IM + r, KAP, IM + r))
    if cfg.pksc:
        kp = vr(KAP, 2)
        for r in range(0, 16, 4):
            for o in (0, 2):
                e.I('v_pk_mul_f32 %s, %s, %s op_sel:[1,0] op_sel_hi:[1,1]' % (vr(4 + 2 * o, 2), kp, vr(IM + r + o, 2)))
                e.I('v_pk_mul_f32 %s, %s, %s op_sel:[1,0] op_sel_hi:[1,1]' % (vr(6 + 2 * o, 2), kp, vr(RE + r + o, 2)))
            for o in (0, 2):
                e.I('v_pk_fma_f32 %s, %s, %s, %s op_sel_hi:[0,1,1] neg_lo:[0,0,1] neg_hi:[0,0,1]' % (vr(RE + r + o, 2), kp, vr(RE + r + o, 2), vr(4 + 2 * o, 2)))
                e.I('v_pk_fma_f32 %s, %s, %s, %s op_sel_hi:[0,1,1]' % (vr(IM + r + o, 2), kp, vr(IM + r + o, 2), vr(6 + 2 * o, 2)))
        late = []
    else:
        run(sc[:cfg.early])
        late = sc[cfg.early:]
    e.wait(lg='all')
    bar(0)
    work = []
    for s in range(8):
        e.I('ds_read_b64 %s, v%d offset:%d' % (vr(4 + 2 * s, 2), XR, 256 * s), tag=('e', s))
    pf = []
    for s in range(1, 8):
        pf.append(lambda s=s: e.wait(lg=('e', s)))
        pf += cfma(4 + 2 * s, L16, 2 + 2 * s, 4 + 2 * s)
    segs = [sg.split('|') for sg in cfg.prog.split(';')]
    q0 = expand(segs[0][0], 0)
    run(weave(q0[:cfg.pren], pf))
    e.I('v_mov_b32 v20, s%d\nv_mov_b32 v21, s%d' % (sNONCE, sNONCE))
    e.I('s_mov_b32 exec_hi, 0')
    e.I('buffer_store_dwordx4 v[18:21], v%d, %s, s%d offen sc1' % (P16, srd(SWS), sES), tag='es')
    e.I('s_mov_b32 exec_hi, -1')
    st(e, 'epub')
    jitter(e, cfg, 7)
    run(q0[cfg.pren:])
    gate.append(g_store)
    sel = items('v_mov_b32 v%d, 0\nv_mov_b32 v%d, 0' % (PP, PP + 1))
    for s in range(1, 8):
        sel.append(lambda s=s: e.I('v_cmp_eq_u32 vcc, %d, v%d\nv_cndmask_b32 v%d, v%d, v%d, vcc\nv_cndmask_b32 v%d, v%d, v%d, vcc' %
                                   (s, SIDX, PP, PP, 2 + 2 * s, PP + 1, PP + 1, 3 + 2 * s)))
    EG = 224

    def e_check():
        e.I('v_add3_u32 v4, v%d, v%d, v%d\nv_add3_u32 v5, v%d, v%d, v%d' % tuple(EG + 4 * k + 2 for k in range(6)))
        e.I('v_add3_u32 v4, v4, v%d, v%d\nv_add_u32 v4, v4, v5' % (EG + 26, EG + 30))
        e.I('v_cmp_ne_u32 vcc, v4, v%d' % EEXP)

    def e_verify():
        e.wait(lg='eg')
        e_check()
        e.I('s_cbranch_vccnz L_pollE')
        e.label('L_pollE_out')
        st(e, 'egot')
        with e.cold_block():
            e.label('L_pollE')
            e.I('s_mov_b32 s%d, 0' % sCNT)
            e.label('L_pollE_l')
            for k in range(8):
                e.I('v_subrev_u32 v4, %d, v%d\nv_cmp_le_i32 vcc, 2, v4\nv_lshl_add_u32 v4, v4, 9, v%d\nv_cndmask_b32 v4, v%d, v4, vcc' % (k - 1, ECNT, P16, EOOB))
                e.I('buffer_load_dwordx4 %s, v4, %s, s%d offen sc1' % (vr(EG + 4 * k, 4), srd(SWS), sEL))
            e.I('s_add_u32 s%d, s%d, 1' % (sCNT, sCNT))
            e.I('s_cmp_gt_u32 s%d, %d' % (sCNT, SPIN_MAX))
            e.wait(vm='all')
            e.I('s_cbranch_scc1 L_pollE_out')
            e_check()
            e.I('s_cbranch_vccnz L_pollE_l')
            e.I('s_branch L_pollE_out')

    def second_pass():
        p2 = []
        p2.append(lambda: [e.I('ds_read_b128 %s, v%d offset:%d' % (vr(EG + 4 * k, 4), ERD, 512 * k), tag='eg') for k in range(8)])
        p2.append(e_verify)
        for k in range(6, -1, -1):
            p2 += cfma(EG + 4 * k, L128, EG + 4 * k + 4, EG + 4 * k)
        p2 += items('v_mov_b32 v4, v%d\nv_mov_b32 v5, v%d\nv_permlane32_swap_b32 v4, v%d\nv_permlane32_swap_b32 v5, v%d' % (EG, EG + 1, EG, EG + 1))
        p2 += cfma(4, L256, EG, 4)
        p2 += cfma(PP, L16S, 4, PP)
        p2 += items('v_mul_f32 v6, v%d, v%d\nv_mul_f32 v7, v%d, v%d' % (KAP, PP, KAP, PP + 1))
        p2 += items('v_fma_f32 v6, -v%d, v%d, v6\nv_fmac_f32 v7, v%d, v%d' % (KAP + 1, PP + 1, KAP + 1, PP))
        prev = (6, 7)
        for r in range(16):
            p2 += items('v_fmac_f32 v%d, v%d, v%d\nv_fmac_f32 v%d, v%d, v%d\nv_fma_f32 v%d, -v%d, v%d, v%d\nv_fmac_f32 v%d, v%d, v%d' %
                        (RE + r, LR, prev[0], IM + r, LR, prev[1], RE + r, LI, prev[1], RE + r, IM + r, LI, prev[0]))
            prev = (RE + r, IM + r)
        return p2

    def store_h(loads):
        for part in range(2):
            for k in range(8):
                sg_ = '-' if part else ''
                e.I('v_cvt_pk_bf16_f32 v%d, %sv%d, %sv%d' % (8 + 8 * part + k, sg_, RE + 16 * part + 2 * k, sg_, RE + 16 * part + 2 * k + 1))
            for m in range(2):
                mfma(e, RE + 16 * part, 8 + 8 * part + 4 * m, SEL + 4 * m, m == 0)
        hdone.append(1)
        run(loads)
        e.I('s_add_u32 s%d, s%d, 4096' % (T0, sHD))
        for part in range(2):
            for m in range(2):
                o = 8 + 8 * part + 4 * m
                for k in range(4):
                    e.I('v_cvt_pk_bf16_f32 v%d, v%d, v%d' % (o + k, RE + 16 * part + 8 * m + 2 * k, RE + 16 * part + 8 * m + 2 * k + 1))
                hq.append(lambda o=o, part=part, m=m: e.I('buffer_store_dwordx4 %s, v%d, %s, s%d offen offset:%d sc1' %
                                                         (vr(o, 4), HS, srd(SWS), T0 if part else sHD, 512 * m), tag='hs'))
                if len(hq) <= cfg.hnow:
                    hq[-1]()
                    hsent.add(len(hq) - 1)

    hq = []
    hsent = set()
    kcur = [0]
    p2 = second_pass()
    for k, (toks, work) in enumerate(segs):
        if k == 0:
            continue
        if k <= cfg.JL:
            bar(k, ['eg'] if work[:1] == 'P' else [])
        kcur[0] = k
        q = expand(toks, k)
        if work == 'sel':
            run(weave(q, sel + ([] if 'late' in cfg.prog else late)))
        elif work[:1] == 'g':
            hg = len(gate) // 2
            run(weave(q, gate if work == 'g' else gate[:hg] if work == 'g0' else gate[hg:]))
        elif work == 'late':
            run(weave(q, late))
        elif work[:1] == 'P':
            assert k <= cfg.JL or work != 'P0'
            part = p2 if work == 'P' else p2[:cfg.p2cut] if work == 'P0' else p2[cfg.p2cut:]
            run(part[:1] + (weave(q, part[1:]) if q else part[1:]))
            if work == 'P1H':
                st(e, 'p2done')
                store_h([])
        elif work[:1] == 'H':
            st(e, 'p2done')
            store_h(q)
            run(expand(work[2:], k))
        elif work == 'F':
            run(hq[n] for n in range(4) if n not in hsent)
            st(e, 'hst')
            jitter(e, cfg, 8)
            run(q)
            assert gdone and len(hq) == 4
            e.wait(vm=['hs', 'gs'])
            flag_store(e, 2, sHF)
            st(e, 'hflag')
            jitter(e, cfg, 9)
        else:
            run(q)
    assert len(segs) > cfg.JL
    HV, PW = 6, 8
    rest = [i for i in range(8) if 'C%d' % i not in planned]
    run(c_loads(rest.pop(0)))
    e.I('s_mul_i32 s%d, s%d, %d\ns_mul_i32 s%d, s%d, %d\ns_add_u32 s%d, s%d, s%d\ns_add_u32 s%d, s%d, 0x%x' %
        (T0, sRT, 2 * HT_, T1, sW, HW_, T0, T0, T1, T0, T0, H_OFF))
    e.I('v_add_u32 v%d, s%d, v1\nv_add_u32 v%d, %d, v%d' % (HV, T0, HV + 1, HT_, HV))
    for u in range(4):
        e.I('s_xor_b32 s%d, s%d, %d\ns_lshl_b32 s%d, s%d, 12' % (93 + u, sROT, u, 93 + u, 93 + u))
    part_write_addr(e, PW, 12, 13, 16384, 4096, SPART)
    mk_srd(e, SOUT, P_OUT, 2048 * 2048)
    e.I('s_lshl_b32 s%d, s%d, 2\ns_add_u32 s%d, s%d, s%d\ns_mul_i32 s%d, s%d, %d\ns_add_u32 s%d, s%d, 0x%x' %
        (T0, sRT, T0, T0, sW, T0, T0, 8 * FS, T0, T0, HF_OFF))
    e.I('v_mul_u32_u24 v12, %d, v0\nv_mov_b32 v5, v2' % FS)

    def h_reg(k):
        return 16 + 4 * (k % 12)

    def h_load(k):
        n2, t4 = k >> 2, k & 3
        e.I('buffer_load_dwordx4 %s, v%d, %s, s%d offen offset:%d sc1' % (vr(h_reg(k), 4), HV + (t4 >> 1), srd(SWS), 93 + (n2 >> 1),
                                                                            2048 * (n2 & 1) + 1024 * (t4 & 1)), tag=('h', k))

    def c_finish():
        for i in range(8):
            c_read(i)
        e.wait(vm='wd')
        cnt_add(e, FLA, ONE, C_DONEA)
        st(e, 'cgot')

    while rest and rest[0] < cfg.hlook:
        run(c_loads(rest.pop(0)))
    if cfg.hlook > 8:
        c_finish()
    poll(e, 'L_pollH', 13, 12, T0, '0xff',
         lambda: ([run(c_loads(i)) for i in rest], c_finish() if cfg.hearly == 0 and cfg.hlook <= 8 else None))
    st(e, 'hrdy')
    jitter(e, cfg, 10)
    XO, RA, GV, RF = 2, 3, 4, 14
    ROWS = (0, 8, 32, 40)
    XL, DL, GL, XD, PW1 = 128, 136, 138, 144, 10
    fin = items('s_lshl_b32 s%d, s%d, 6\ns_add_u32 s%d, s%d, s%d' % (T0, sRT, T0, T0, sW))
    fin += items('v_lshrrev_b32 v12, 4, v0\nv_lshrrev_b32 v13, 2, v0\nv_and_b32 v13, 2, v13\nv_xor_b32 v12, v12, v13')
    fin += items('v_and_b32 v15, 1, v12\nv_lshl_add_u32 v13, v15, 4, s%d\nv_lshrrev_b32 v3, 1, v12\nv_lshl_add_u32 v13, v3, 2, v13' % T0)
    fin += items('v_and_b32 v14, 15, v0\ns_lshl_b32 s%d, s%d, 7' % (T1, sCT))
    fin += items('v_lshl_add_u32 v1, v14, 3, s%d' % T1)
    fin += items('v_lshl_add_u32 v%d, v13, 10, v1' % XO)
    fin += items('v_lshlrev_b32 v%d, 2, v13\nv_add_u32 v%d, 0x%x, v%d' % (GV, GV, G_OFF, GV))
    fin += items('s_lshl_b32 s%d, s%d, 8\ns_add_u32 s%d, s%d, %d' % (T2, sW, T1, T2, SPART))
    fin += items('v_lshl_add_u32 v3, v3, 10, s%d\nv_lshl_add_u32 v3, v15, 14, v3' % T1)
    fin += items('v_lshl_or_b32 v13, v15, 2, s%d\nv_xor_b32 v13, v13, v14\nv_lshl_add_u32 v%d, v13, 4, v3' % (sW, RA))
    fin += items('v_lshl_add_u32 v12, v12, 6, s%d\nv_lshrrev_b32 v13, 2, v14\nv_lshl_add_u32 v12, v13, 10, v12' % T2)
    fin += items('v_and_b32 v13, 3, v0\nv_lshl_add_u32 v%d, v13, 4, v12\nv_add_u32 v%d, %d, v%d' % (RF, RF + 1, 2 * SLOT, RF))
    fin += items('s_lshl_b32 s%d, s%d, 7' % (T0, sDTX))
    for a in range(2):
        fin += items('v_xor_b32 v%d, s%d, v%d\nv_xor_b32 v%d, 0x80, v%d' % (PW + a, T0, PW + a, PW1 + a, PW + a))
    if cfg.posX < 0:
        run(fin)
    for k in range(cfg.NVA):
        if cfg.posX < 0 and k == -1 - cfg.posX:
            assert k >= cfg.hearly
            e.wait(lg='all')
            e.I('s_barrier')
        if k == cfg.hearly // 2 and k:
            c_read(6)
        if k == cfg.hearly and k:
            c_finish()
        h_load(k)
    e.wait(lg='all')
    if cfg.posX >= 0:
        run(fin)

    def fx_loads():
        e.I('global_load_dwordx2 %s, v1, s[%d:%d]' % (vr(DL, 2), P_DSK, P_DSK + 1), tag='fx')
        for n in range(4):
            e.I('s_mov_b32 s%d, %d' % (T2, 1024 * ROWS[n]))
            e.I('buffer_load_dwordx2 %s, v%d, %s, s%d offen' % (vr(XL + 2 * n, 2), XO, srd(SX), T2), tag='fx')

    def g_loads():
        for n in range(4):
            e.I('buffer_load_dword v%d, v%d, %s, 0 offen offset:%d sc1' % (GL + n, GV, srd(SWS), 4 * ROWS[n]), tag='fg')

    DU = 160
    xd = [lambda: e.wait(vm='fx')]
    xd += items('v_lshlrev_b32 v%d, 16, v%d\nv_and_b32 v%d, 0xffff0000, v%d\nv_lshlrev_b32 v%d, 16, v%d\nv_and_b32 v%d, 0xffff0000, v%d' %
                (DU, DL, DU + 1, DL, DU + 2, DL + 1, DU + 3, DL + 1))
    for n in range(4):
        for k in range(2):
            x = XL + 2 * n + k
            xd += items('v_lshlrev_b32 v12, 16, v%d\nv_and_b32 v13, 0xffff0000, v%d' % (x, x))
            xd += items('v_mul_f32 v12, v12, v%d\nv_mul_f32 v13, v13, v%d' % (DU + 2 * k, DU + 1 + 2 * k))
            xd += items('v_cvt_pk_bf16_f32 v13, v12, v13')
            xd += items('v_lshlrev_b32 v%d, 16, v13\nv_and_b32 v%d, 0xffff0000, v13' % (XD + 4 * n + 2 * k, XD + 4 * n + 2 * k + 1))
    xd += items('v_mov_b32 v12, %d\nv_mov_b32 v13, 1\nv_lshlrev_b32 v%d, 1, v%d' % (L_P2, XO, XO))

    def s2_step(k):
        n2, t4 = k >> 2, k & 3
        if k == 2 * cfg.posX:
            e.I('s_barrier')
        e.wait(vm=('h', k))
        for dq in range(4):
            d = 3 - dq if cfg.snake and t4 & 1 else dq
            mfma16(e, acc2(t4, d), c_reg(n2 >> 1, n2 & 1, d), h_reg(k), n2 == 0)
            if dq == (0 if cfg.NVA < 12 else 3) and k + cfg.NVA < 32:
                h_load(k + cfg.NVA)
        if k == 8:
            fx_loads()
        if k == max(8, 2 * cfg.posX):
            g_loads()
    steps = [lambda k=k: s2_step(k) for k in range(32)]
    if cfg.xdpos < 32:
        run(steps[:cfg.xdpos] + weave(steps[cfg.xdpos:], xd))
    else:
        run(steps + xd[-3:])
    st(e, 's2end')
    jitter(e, cfg, 11)
    if cfg.posX == 16:
        e.I('s_barrier')
        g_loads()
    st(e, '_X')
    run(part_write(e, PW, 16384, 0, PW1) + part_write(e, PW, 16384, 1, PW1))
    cnt_add(e, 12, 13, 0)
    if cfg.xdpos >= 32:
        run(xd[:-1])
    OM = 164
    e.wait(vm='fg')
    for n in range(4):
        e.I('v_sub_f32 v%d, 1.0, v%d' % (OM + n, GL + n))
        e.I('v_cvt_pk_bf16_f32 v%d, v%d, v%d\nv_lshlrev_b32 v%d, 16, v%d' % (OM + n, OM + n, OM + n, OM + n, OM + n))
    for n in range(4):
        e.I('s_mov_b32 s%d, %d' % (T2 + n, 2048 * ROWS[n]))
    e.I('s_lshl_b32 s%d, s%d, 5\ns_add_u32 s%d, s%d, s%d\ns_lshl_b32 s%d, s%d, 8\ns_add_u32 s%d, s%d, s%d' %
        (T0, sCT, T0, T0, sRT, T1, sW, T0, T0, T1))
    e.I('s_cmp_eq_u32 s%d, 31\ns_cselect_b32 s%d, 0x%x, s%d' % (T0, T0, EPOCH_OFF, SWS + 2))
    flag_store(e, 5, T0)
    cnt_spin(e, 'L_spinM', 12, 16, 0)
    e.wait(lg='all')
    for n in range(4):
        for w in range(4):
            e.I('ds_read_b128 %s, v%d offset:%d' % (vr(64 + 16 * n + 4 * w, 4), RA, w * 4096 + (n & 1) * 2048 + (n >> 1) * 32768), tag=('r', n))
    BS = XD
    for n in range(4):
        e.wait(lg=('r', n))
        b = 64 + 16 * n
        for k in range(4):
            e.I('v_add_f32 v%d, v%d, v%d\nv_add_f32 v%d, v%d, v%d' % (b + k, b + k, b + 4 + k, b + 8 + k, b + 8 + k, b + 12 + k))
        for k in range(4):
            e.I('v_add_f32 v%d, v%d, v%d' % (b + k, b + k, b + 8 + k))
        for k in range(4):
            e.I('v_add_f32 v%d, v%d, v%d' % (b + k, b + k, XD + 4 * n + k))
        for k in range(4):
            e.I('v_mul_f32 v%d, v%d, v%d' % (BS + 4 * n + k, GL + n, b + k))
    st(e, 'pre')
    jitter(e, cfg, 12)
    for grp in cfg.zg:
        e.I('s_barrier')
        st(e, 'Z' if 3 in grp else '_Z%d' % grp[0])
        for n in grp:
            for w in range(4):
                e.I('ds_read_b128 %s, v%d offset:%d' % (vr(64 + 16 * n + 4 * w, 4), RF + (n >> 1), w * 6144 + (n & 1) * SLOT), tag=('r', n, w >> 1))
        for n in grp:
            b = 64 + 16 * n
            for o, p in ((0, 4), (8, 12), (0, 8)):
                e.wait(lg=('r', n, o >> 3))
                if 3 in grp:
                    for k in (0, 2):
                        e.I('v_pk_add_f32 %s, %s, %s' % (vr(b + o + k, 2), vr(b + o + k, 2), vr(b + p + k, 2)))
                else:
                    for k in range(4):
                        e.I('v_add_f32 v%d, v%d, v%d' % (b + o + k, b + o + k, b + p + k))
            if cfg.mimic2:
                for rnd in range(2):
                    e.I('v_cvt_pk_bf16_f32 v%d, v%d, v%d\nv_cvt_pk_bf16_f32 v%d, v%d, v%d' % (b + 1, b, b + 1, b + 3, b + 2, b + 3))
                    for k in (0, 2):
                        e.I('v_lshlrev_b32 v%d, 16, v%d\nv_and_b32 v%d, 0xffff0000, v%d' % (b + k, b + k + 1, b + k + 1, b + k + 1))
                    if rnd == 0:
                        for k in range(4):
                            e.I('v_mul_f32 v%d, v%d, v%d' % (b + k, OM + n, b + k))
                for k in (0, 2):
                    e.I('v_pk_add_f32 %s, %s, %s' % (vr(b + k, 2), vr(b + k, 2), vr(BS + 4 * n + k, 2)))
            else:
                for k in range(4):
                    e.I('v_fma_f32 v%d, v%d, v%d, v%d' % (b + k, OM + n, b + k, BS + 4 * n + k))
            e.I('buffer_store_dwordx4 %s, v%d, %s, s%d offen %s' % (vr(b, 4), XO, srd(SOUT), T2 + n, cfg.outflags if isinstance(cfg.outflags, str) else cfg.outflags[n]), tag='out')
    if st.on:
        e.wait(vm='all')
    st(e, 'end')
    st.flush(e)


HEADER = open(os.path.join(os.path.dirname(os.path.abspath(__file__)), '..', 'cdna_kernels', BASE + '.s.ref')).read()


def generate(cfg):
    SLEEP[:] = cfg.sleep
    FL.clear()
    FL.update(cfg.nt)
    W_SLOT[0] = 0 if cfg.w0pos is None else 4
    S_SHIFT[0] = -1 if cfg.lag else 0 if cfg.w0pos is None else 1
    assert cfg.w0pos is None
    hdr = []
    for line in HEADER.split('\n'):
        if not line.startswith(';'):
            break
        if '@launch' in line:
            line = '; @launch grid=(256,1,1) block=(512,1,1) lds=%d' % LDS_BYTES
            if cfg.pre_kernel is not None:
                line = '; @launch kernel=%s grid=(256,1,1) block=(512,1,1) lds=%d' % (NAME, LDS_BYTES)
                if cfg.pre_kernel:
                    line = '; @launch kernel=warm_kernel grid=(256,1,1) block=(256,1,1) lds=0\n' + line
        hdr.append(line)
    stB = Stamps(cfg, [38, 6, 8, 14, 16, 18, 20, 22, 30, 32, 34, 4, 10, 12, 24, 26], 'B')
    stA = Stamps(cfg, [38, 10, 12, 22, 34, 24, 26, 6, 8, 18, 28, 14, 16, 30, 36, 4], 'A')
    e = Em()
    gen_entry(e, cfg, stB)
    stA.names = list(stB.names)
    eA = Em()
    eA.hist = list(e.hist)
    eA.vm = list(e.vm)
    gen_B(e, cfg, stB)
    gen_A(eA, cfg, stA)
    txt = '\n'.join(hdr) + '\n'
    txt += '.amdgcn_target "amdgcn-amd-amdhsa--gfx950"\n.text\n.globl %s\n.p2align 8\n.type %s,@function\n%s:\n' % (NAME, NAME, NAME)
    txt += e.text() + '\n' + '\n'.join(e.cold) + '\n.p2align 6\nL_A:\n' + eA.text() + '\n    s_endpgm\n' + '\n'.join(eA.cold) + '\nL_end:\n    s_endpgm\n'
    if cfg.pre_kernel:
        w = Em()
        w.I('s_cmp_ge_u32 s2, 256\ns_cbranch_scc1 L_wend')
        if cfg.pre_kernel != 'empty':
            w.I('s_load_dwordx16 s[4:19], s[0:1], 0\ns_load_dwordx16 s[20:35], s[0:1], 64')
            w.I('s_lshl_b32 s3, s2, 8\nv_add_u32 v0, s3, v0\nv_lshlrev_b32 v1, 7, v0')
            w.wait_smem()
            base = 0
            for p, n in ((P_X, 2048 * 1024), (P_BRE, 524288), (P_BIM, 524288), (P_WG, 1409024), (P_WU, 1409024), (P_CRE, 524288), (P_CIM, 524288), (P_WD, 1409024)):
                mk_srd(w, 40, p, n)
                w.I('v_subrev_u32 v2, %d, v1\nv_cmp_gt_u32 vcc, %d, v2\ns_and_saveexec_b64 s[44:45], vcc\ns_cbranch_execz L_w%d' % (base, n, p))
                w.I('buffer_load_dword v3, v2, s[40:43], 0 offen')
                w.label('L_w%d' % p)
                w.I('s_mov_b64 exec, s[44:45]')
                base += n
            if cfg.pre_kernel == 'wait':
                w.I('s_waitcnt vmcnt(0)')
        txt += '.globl warm_kernel\n.p2align 8\n.type warm_kernel,@function\nwarm_kernel:\n' + w.text() + '\nL_wend:\n    s_endpgm\n'
    txt += '''.section .rodata,"a"
.p2align 6
.amdhsa_kernel %s
  .amdhsa_next_free_vgpr 256
  .amdhsa_next_free_sgpr 102
  .amdhsa_accum_offset 256
  .amdhsa_group_segment_fixed_size 0
  .amdhsa_kernarg_size 136
  .amdhsa_user_sgpr_count 2
  .amdhsa_user_sgpr_kernarg_segment_ptr 1
  .amdhsa_system_sgpr_workgroup_id_x 1
  .amdhsa_float_denorm_mode_32 3
.end_amdhsa_kernel
''' % NAME
    if cfg.pre_kernel:
        txt += '''.p2align 6
.amdhsa_kernel warm_kernel
  .amdhsa_next_free_vgpr 8
  .amdhsa_next_free_sgpr 48
  .amdhsa_accum_offset 8
  .amdhsa_group_segment_fixed_size 0
  .amdhsa_kernarg_size 136
  .amdhsa_user_sgpr_count 2
  .amdhsa_user_sgpr_kernarg_segment_ptr 1
  .amdhsa_system_sgpr_workgroup_id_x 1
.end_amdhsa_kernel
'''
    info = dict(A=eA.count, B=e.count, nopsA=eA.nops, nopsB=e.nops, stampsA=stA.names, stampsB=stB.names)
    return txt, info


def cfg_from(args):
    cfg = Cfg()
    for a in args:
        k, v = a.split('=')
        setattr(cfg, k, eval(v))
    return cfg


if __name__ == '__main__':
    out = sys.argv[1]
    cfg = cfg_from(sys.argv[2:])
    txt, info = generate(cfg)
    open(out, 'w').write(txt)
    print(info)
```

```python
import sys, os
sys.path.insert(0, os.path.dirname(os.path.abspath(__file__)))
from em import Em, weave

BASE = 'gated_mix__ssm_conv_s5__swiglu_ffn__prompt'
NAME = BASE + '_kernel'

ACT_OFF = 0
H_OFF = 0x600000
E_OFF = 0xB00000
G_OFF = 0xB20000
HF_OFF = 0xB24000
AF_OFF = 0xB30000
EPOCH_OFF = 0xB48000
STAMP_OFF = 0xB50000
WS_SIZE = 0xB80000
OOB = 0x2000000
FS = 32
PHI = 0x9E3779B8

SLOT = 24576
WIN = 49152
SCR = 147456
SPART = 98304
L_E, L_FL, L_EG = SCR, SCR + 4096, SCR + 8192
L_P2 = 3 * SLOT + 4096
LDS_BYTES = 163840

P_X, P_LRE, P_LIM, P_BRE, P_BIM, P_CRE, P_CIM, P_LDT = 4, 6, 8, 10, 12, 14, 16, 18
P_DSK, P_BX, P_WG, P_WU, P_WD, P_GW, P_OUT, P_DBG, P_WS = 20, 22, 24, 26, 28, 30, 32, 34, 36
SX, SWS = 40, 44
SBM, SW, SWD = 48, 52, 56
SC1, SC2, SOUT, SCODE = 48, 52, 56, 60
SWA = 60
sWAVE, sW, sRB, sCB, sK0, sRT, sCT, sNONCE, sSG0 = 64, 65, 66, 67, 68, 69, 70, 71, 72
T0, T1, T2, T3, T4, T5, T6 = 73, 74, 75, 76, 77, 78, 79
sNL2E = 80
sMA, sMB = 82, 84
sTBL = 86
sCNT = 97
sTS, sTW, sTD = 98, 99, 100
sMX, sMBm = 60, 61
sMW = 101
SPIN_MAX = 200000

SLEEP = [0, 0]
FL = {}


def ntf(key, stage):
    return 'nt ' if stage < FL.get(key, 0) else ''


LOG2E = 0x3fb8aa3b
NLOG2E = 0xbfb8aa3b


class Cfg:
    mimic = False
    mimic2 = False
    stamps = False
    rot1 = (2, 4, 2, 1)
    rot2 = 7
    rotF = 0
    rotS = None
    map2 = 84
    prewarm = 'v'
    pwn = 4
    slim = True
    blate = True
    lfirst = 0
    glds = True
    xloc = True
    defer = True
    apre = True
    NT = 2
    early = 200
    w0pos = None
    s1a = 2
    smallpos = 2
    pre_kernel = None
    lag = 0
    lagr = 4
    JL = 7
    prog = 'W2,G0|;W3,C0|sel;W4|g53;E0,W5,D0,D1,D2,D3|g;W6|P0;W7|P1H;|;C1,C2,C3|F'
    p2cut = 72
    cbuf = (4, 0, 1, 4, 0, 1, 4, 0)
    tplan = ()
    zfill = True
    prioB = 0
    LA = 4
    posX = 10
    pren = 4
    asplit = True
    prioT = 1
    drain = ()
    hpad = (0, 0)
    hlook = 9
    hearly = 0
    hnow = 4
    sleep = (1, 1)
    skip = ''
    flagpos = (0, 0, 5)
    alook = 18
    abet = 3
    posXB = -17
    fine = True
    snake = True
    nt = {}
    pksc = True
    jitter = 0
    prioF2 = 1
    NVA = 11
    NV0 = (12, 0)
    xdpos = 32
    NV = 12
    TL = 4
    pull0 = 3
    zg = ((0, 1), (2, 3))
    zlag = 3
    outflags = 'sc1'
    selA = None
    selB = None
    prioA = 0
    amp = None


def srd(r):
    return 's[%d:%d]' % (r, r + 3)


def vr(a, n):
    return 'v[%d:%d]' % (a, a + n - 1) if n > 1 else 'v%d' % a


def mk_srd(e, r, p, nbytes):
    e.I('s_mov_b32 s%d, s%d\ns_mov_b32 s%d, s%d\ns_mov_b32 s%d, 0x%x\ns_mov_b32 s%d, 0x20000' %
        (r, p, r + 1, p + 1, r + 2, nbytes, r + 3))


def mk_srd_sel(e, r, p1, p0, nbytes):
    e.I('s_cselect_b32 s%d, s%d, s%d\ns_cselect_b32 s%d, s%d, s%d\ns_mov_b32 s%d, 0x%x\ns_mov_b32 s%d, 0x20000' %
        (r, p1, p0, r + 1, p1 + 1, p0 + 1, r + 2, nbytes, r + 3))


def mfma(e, d, a, b, first):
    e.I('v_mfma_f32_32x32x16_bf16 %s, %s, %s, %s' % (vr(d, 16), vr(a, 4), vr(b, 4), '0' if first else vr(d, 16)))


def mfma16(e, d, a, b, first):
    e.I('v_mfma_f32_16x16x32_bf16 %s, %s, %s, %s' % (vr(d, 4), vr(a, 4), vr(b, 4), '0' if first else vr(d, 4)))


class Stamps:
    def __init__(self, cfg, regs, role):
        self.amp = cfg.amp if cfg.amp else None
        self.role = role
        self.sel = (cfg.selA if role == 'A' else cfg.selB)
        if self.sel is not None:
            self.sel = self.sel.split(',')
        self.ins = 's_memtime' if cfg.stamps == 'cyc' else 's_memrealtime'
        self.on = cfg.stamps or bool(self.amp)
        self.regs = regs
        self.names = []

    def __call__(self, e, name):
        if not self.on:
            return
        if self.sel is not None:
            if name != 'start' and name not in self.sel:
                return
        elif name.startswith('_'):
            return
        r = self.regs[len(self.names)]
        self.names.append(name)
        if self.amp and name not in ('start', 'end', self.amp[1], self.amp[2]):
            return
        e.I('%s s[%d:%d]' % (self.ins, r, r + 1))

    def flush(self, e):
        if not self.on:
            return
        e.wait_smem()
        if self.amp:
            if self.amp[0] == self.role:
                R = dict(zip(self.names, self.regs))
                e.I('s_sub_u32 s%d, s%d, s%d\ns_mul_i32 s%d, s%d, %d\ns_min_u32 s%d, s%d, 50000' %
                    (T0, R[self.amp[2]], R[self.amp[1]], T0, T0, self.amp[3], T0, T0))
                e.label('L_amp')
                e.I('s_memrealtime s[%d:%d]' % (T1, T1 + 1))
                e.wait_smem()
                e.I('s_sub_u32 s%d, s%d, s%d\ns_cmp_lt_u32 s%d, s%d\ns_cbranch_scc1 L_amp' % (T1, T1, R['end'], T1, T0))
            return
        e.I('s_lshl_b32 s%d, s2, 3\ns_add_u32 s%d, s%d, s%d\ns_lshl_b32 s%d, s%d, 6\ns_add_u32 s%d, s%d, 0x%x' %
            (T0, T0, T0, sWAVE, T0, T0, T0, T0, STAMP_OFF))
        e.I('s_mov_b64 exec, 1')
        for k in range(len(self.names)):
            e.I('v_mov_b32 v2, s%d' % self.regs[k])
            e.I('buffer_store_dword v2, off, %s, s%d offset:%d' % (srd(SWS), T0, 4 * k))


def jitter(e, cfg, key):
    if not cfg.jitter:
        return
    lab = 'L_jit%d' % key
    e.settle()
    e.I('s_lshl_b32 s%d, s2, 3\ns_add_u32 s%d, s%d, s%d' % (sCNT, sCNT, sCNT, sWAVE))
    e.I('s_mul_i32 s%d, s%d, 0x%x\ns_lshr_b32 s%d, s%d, 28' % (sCNT, sCNT, (0x9E3779B1 * (2 * key * cfg.jitter + 1)) & 0xffffffff, sCNT, sCNT))
    e.I('s_cmp_lt_u32 s%d, 12\ns_cbranch_scc1 %s_out' % (sCNT, lab))
    e.label(lab)
    e.I('s_sleep 40\ns_add_u32 s%d, s%d, 1\ns_cmp_lt_u32 s%d, 17\ns_cbranch_scc1 %s' % (sCNT, sCNT, sCNT, lab))
    e.label(lab + '_out')


def run(items):
    for it in items:
        it()


def poll(e, label, vt, vaddr, soff, mask, between=None):
    def look(tag=None):
        e.I('s_mov_b64 exec, %s' % mask)
        e.I('buffer_load_dword v%d, v%d, %s, s%d offen sc1' % (vt, vaddr, srd(SWS), soff), tag=tag)
        e.I('s_mov_b64 exec, -1')

    def check():
        e.I('v_cmp_ne_u32 vcc, s%d, v%d' % (sNONCE, vt))
        e.I('s_and_b64 vcc, vcc, %s' % mask)
    spin(e, label, look, check, between)


def spin(e, label, look, check, between):
    look('look')
    if between:
        between()
    e.wait(vm='look')
    check()
    e.I('s_cbranch_scc1 %s' % label)
    e.label(label + '_out')
    with e.cold_block():
        e.label(label)
        e.I('s_mov_b32 s%d, 0' % sCNT)
        e.label(label + '_l')
        if SLEEP[0]:
            e.I('s_sleep %d' % SLEEP[0])
        look()
        e.I('s_add_u32 s%d, s%d, 1' % (sCNT, sCNT))
        e.I('s_cmp_gt_u32 s%d, %d' % (sCNT, SPIN_MAX))
        e.wait(vm='all')
        e.I('s_cbranch_scc1 %s_out' % label)
        check()
        e.I('s_cbranch_scc1 %s_l' % label)
        e.I('s_branch %s_out' % label)


def code_touch(e, tag):
    e.I('s_getpc_b64 s[%d:%d]' % (sMA, sMA + 1))
    e.label('L_pc' + tag)
    e.I('s_sub_u32 s%d, s%d, L_pc%s-%s\ns_subb_u32 s%d, s%d, 0' % (sMA, sMA, tag, NAME, sMA + 1, sMA + 1))
    e.I('s_and_b32 s%d, s2, 0xf8\ns_add_u32 s%d, s%d, s%d\ns_lshl_b32 s%d, s%d, 6' % (T0, T0, T0, sWAVE, T0, T0))
    e.I('s_load_dword s3, s[%d:%d], s%d' % (sMA, sMA + 1, T0))
    e.I('s_add_u32 s%d, s%d, 16384\ns_min_u32 s%d, s%d, L_end-%s' % (T0, T0, T0, T0, NAME))
    e.I('s_load_dword s3, s[%d:%d], s%d' % (sMA, sMA + 1, T0))


def rot2_calc(e, cfg, dst, b):
    e.I('s_mul_i32 s%d, s%d, %d' % (dst, sCT, b))
    for k in range(1 if cfg.map2 == 84 else 2):
        e.I('s_add_u32 s%d, s%d, s%d' % (dst, dst, sRT))
    e.I('s_and_b32 s%d, s%d, %d' % (dst, dst, cfg.rot2))


def step_start(e, cfg, cur, beg, end, shift):
    rot2_calc(e, cfg, cur, cfg.rotF)
    e.I('s_cmp_eq_u32 s%d, 3\ns_cselect_b32 s%d, 10, 11' % (sW, end))
    e.I('s_mul_i32 s%d, s%d, s%d\ns_lshr_b32 s%d, s%d, 3\ns_mul_i32 s%d, s%d, 11' % (cur, cur, end, cur, cur, beg, sW))
    e.I('s_add_u32 s%d, s%d, s%d\ns_add_u32 s%d, s%d, s%d' % (cur, cur, beg, end, end, beg))
    for r in (cur, beg, end):
        e.I('s_lshl_b32 s%d, s%d, %d' % (r, r, shift))


def step_next(e, cur, beg, end, inc, wrap=True, last=False):
    e.I('s_add_u32 s%d, s%d, %d' % (cur, cur, inc))
    if wrap:
        e.I('s_cmp_eq_u32 s%d, s%d\ns_cselect_b32 s%d, s%d, s%d' % (cur, end, cur, beg, cur))
    if last:
        e.I('s_cmp_eq_u32 s%d, 3\ns_cselect_b32 s%d, 0x%x, s%d' % (sW, cur, OOB, cur))


def wd_next(e, n, cur, beg, end):
    step_next(e, cur, beg, end, 16384, n % 2 == 0, n == 20)


def set_m0(e, base, off):
    if getattr(e, 'm0', None) != (base, off):
        e.I('s_add_u32 m0, s%d, %d' % (base, off))
        e.m0 = (base, off)


def wd_lane_offsets(e, WDV, t0, t1):
    txt = 'v_lshrrev_b32 v%d, 4, v0\nv_lshlrev_b32 v%d, 1, v%d\nv_and_b32 v%d, 7, v0\nv_xor_b32 v%d, v%d, v%d\nv_lshlrev_b32 v%d, 4, v%d\n' % (
        t0, t0, t0, t1, t0, t0, t1, t0, t0)
    txt += 'v_lshrrev_b32 v%d, 3, v0\nv_lshl_add_u32 v%d, v%d, 10, v%d\n' % (t1, t0, t1, t0)
    txt += 's_lshl_b32 s%d, s%d, 7\n' % (T0, sCT)
    txt += 'v_add_u32 v%d, s%d, v%d\nv_add_u32 v%d, 7168, v%d' % (WDV, T0, t0, WDV + 1, WDV)
    return txt


RING = [(5, n) for n in range(3)] + [(4, 2)] + [(2 + n // 3, n % 3) for n in range(6)] + [(4, n) for n in range(2)] \
    + [(n // 3, n % 3) for n in range(6)] + [(2, n) for n in range(3)] + [(3, 0)]
PREV = {18: 4, 19: 5, 20: 6, 21: 7}


class Touch:
    def __init__(self, e, cfg, role):
        self.e, self.role = e, role
        self.plan = [p for p in cfg.tplan if p[0] == role]
        it = []
        for par in range(2):
            for p in (P_CRE, P_CIM):
                it += [(p, 128 * k + 64 * par) for k in range(4)]
        for par in range(2):
            it += [(P_WD, 128 * k + 64 * par) for k in range(11)]
        self.items = it

    def setup(self):
        if not self.plan:
            return
        e = self.e
        used = {self.items[k][0] for p in self.plan for k in range(p[2], p[3])}
        e.I('s_lshl_b32 s%d, s2, 2\ns_add_u32 s%d, s%d, s%d' % (T0, T0, T0, sW))
        for p in sorted(used):
            e.I('s_mul_i32 s%d, s%d, %d' % (T1, T0, 1376 if p == P_WD else 512))
            e.I('s_add_u32 s%d, s%d, s%d\ns_addc_u32 s%d, s%d, 0' % (p, p, T1, p + 1, p + 1))

    def at(self, place):
        for p in self.plan:
            if p[1] == place:
                for k in range(p[2], p[3]):
                    self.e.I('s_load_dword s3, s[%d:%d], %d' % (self.items[k][0], self.items[k][0] + 1, self.items[k][1]))


def flag_store(e, vt, soff, imm=0):
    e.I('s_mov_b64 exec, 1')
    e.I('buffer_store_dword v%d, off, %s, s%d offset:%d sc1' % (vt, srd(SWS), soff, imm), tag='flag')
    e.I('s_mov_b64 exec, -1')


def frag_addr(e, dst, t0, t1):
    e.I('v_lshrrev_b32 v%d, 5, v0' % t0)
    e.I('v_bfe_u32 v%d, v0, 1, 3' % t1)
    e.I('v_xor_b32 v%d, v%d, v%d' % (t0, t0, t1))
    e.I('v_and_b32 v%d, 31, v0' % t1)
    e.I('v_lshlrev_b32 v%d, 7, v%d' % (t1, t1))
    e.I('v_lshl_add_u32 v%d, v%d, 4, v%d' % (dst, t0, t1))
    for s in range(1, 4):
        e.I('v_xor_b32 v%d, %d, v%d' % (dst + s, 32 * s, dst))


def frag16_addr(e, dst, t0, t1):
    e.I('v_lshrrev_b32 v%d, 4, v0' % t0)
    e.I('v_bfe_u32 v%d, v0, 1, 3' % t1)
    e.I('v_xor_b32 v%d, v%d, v%d' % (t0, t0, t1))
    e.I('v_and_b32 v%d, 15, v0' % t1)
    e.I('v_lshlrev_b32 v%d, 7, v%d' % (t1, t1))
    e.I('v_lshl_add_u32 v%d, v%d, 4, v%d' % (dst, t0, t1))
    e.I('v_xor_b32 v%d, 64, v%d' % (dst + 1, dst))


def w_tr_addr(e, d, t0, t1):
    e.I('v_lshrrev_b32 v%d, 4, v0' % t0)
    e.I('v_bfe_u32 v%d, v0, 2, 2' % t1)
    e.I('v_lshl_add_u32 v%d, v%d, 3, v%d' % (t0, t0, t1))
    e.I('v_mul_u32_u24 v%d, 192, v%d' % (t0, t0))
    e.I('v_bfe_u32 v%d, v0, 4, 1' % t1)
    e.I('v_lshl_add_u32 v%d, v%d, 5, v%d' % (t0, t1, t0))
    e.I('v_and_b32 v%d, 3, v0' % t1)
    e.I('v_lshl_add_u32 v%d, v%d, 3, v%d' % (d, t1, t0))
    e.I('v_xor_b32 v%d, 32, v%d' % (d + 1, d))
    e.I('v_add_u32 v%d, %d, v%d\nv_add_u32 v%d, %d, v%d' % (d + 2, WIN, d, d + 3, WIN, d + 1))


W_SLOT = [0, 1, 2, 3, 0, 1, 2, 3]
S_SHIFT = [0]


def s_slot(i):
    return (i + 4) % 6 if S_SHIFT[0] < 0 else (i + S_SHIFT[0]) % 4


def w_frag_read(e, dst, wa, j, s2, g, mat, fh, mm, tag):
    slot = W_SLOT[j]
    off = (slot & 1) * SLOT + mat * 12288 + (32 * s2 + 4 * mm) * 192 + g * 64
    e.I('ds_read_b64_tr_b16 %s, v%d offset:%d' % (vr(dst + 2 * mm, 2), wa + 2 * (slot >> 1) + fh, off), tag=tag)


def act_items(e, cfg, G, U, tmp, out):
    items = []
    add = lambda t: items.append(lambda t=t: e.I(t))
    for b in range(2):
        g, u, o = G + 8 * b, U + 8 * b, out + 4 * b
        if cfg.mimic:
            for src in (g, u):
                for p in range(4):
                    add('v_cvt_pk_bf16_f32 v%d, v%d, v%d' % (tmp + p, src + 2 * p, src + 2 * p + 1))
                for p in range(4):
                    add('v_lshlrev_b32 v%d, 16, v%d' % (src + 2 * p, tmp + p))
                    add('v_and_b32 v%d, 0xffff0000, v%d' % (src + 2 * p + 1, tmp + p))
        for p in range(4):
            add('v_pk_mul_f32 %s, %s, s[%d:%d]' % (vr(tmp + 2 * p, 2), vr(g + 2 * p, 2), sNL2E, sNL2E + 1))
        for p in range(8):
            add('v_exp_f32 v%d, v%d' % (tmp + p, tmp + p))
        for p in range(4):
            add('v_pk_add_f32 %s, %s, 1.0 op_sel_hi:[1,0]' % (vr(tmp + 2 * p, 2), vr(tmp + 2 * p, 2)))
        for p in range(8):
            add('v_rcp_f32 v%d, v%d' % (tmp + p, tmp + p))
        for p in range(4):
            add('v_pk_mul_f32 %s, %s, %s' % (vr(g + 2 * p, 2), vr(g + 2 * p, 2), vr(tmp + 2 * p, 2)))
        if cfg.mimic:
            for p in range(4):
                add('v_cvt_pk_bf16_f32 v%d, v%d, v%d' % (tmp + p, g + 2 * p, g + 2 * p + 1))
            for p in range(4):
                add('v_lshlrev_b32 v%d, 16, v%d' % (g + 2 * p, tmp + p))
                add('v_and_b32 v%d, 0xffff0000, v%d' % (g + 2 * p + 1, tmp + p))
        for p in range(4):
            add('v_pk_mul_f32 %s, %s, %s' % (vr(u + 2 * p, 2), vr(g + 2 * p, 2), vr(u + 2 * p, 2)))
        for p in range(4):
            add('v_cvt_pk_bf16_f32 v%d, v%d, v%d' % (o + p, u + 2 * p, u + 2 * p + 1))
    return items


def act_items_scalar(e, cfg, G, U, tmp, out):
    if cfg.mimic:
        return act_items(e, cfg, G, U, tmp, out)
    items = []
    add = lambda t: items.append(lambda t=t: e.I(t))
    for b in range(4):
        g, u, o = G + 4 * b, U + 4 * b, out + 2 * b
        for p in range(4):
            add('v_mul_f32 v%d, s%d, v%d' % (tmp + p, sNL2E, g + p))
        for p in range(4):
            add('v_exp_f32 v%d, v%d' % (tmp + p, tmp + p))
            add('v_mul_f32 v%d, v%d, v%d' % (u + p, g + p, u + p))
        for p in range(4):
            add('v_add_f32 v%d, 1.0, v%d' % (tmp + p, tmp + p))
        for p in range(4):
            add('v_rcp_f32 v%d, v%d' % (tmp + p, tmp + p))
        for p in range(4):
            add('v_mul_f32 v%d, v%d, v%d' % (u + p, tmp + p, u + p))
        for p in range(2):
            add('v_cvt_pk_bf16_f32 v%d, v%d, v%d' % (o + p, u + 2 * p, u + 2 * p + 1))
    return items


def light_scc(e):
    e.I('s_and_b32 s%d, s%d, 3\ns_cmp_eq_u32 s%d, 3\ns_cselect_b32 s%d, 14, s%d\ns_cmp_eq_u32 s%d, 14' % (T0, sCB, T0, T0, sCB, T0))


def w_lane_offsets(e, cfg, WV, t0, t1):
    if cfg.zfill:
        light_scc(e)
        e.I('s_cselect_b32 s%d, 8, 12' % sTW)
    e.I('s_and_b32 s%d, s%d, 1' % (T1, sW))
    e.I('s_mul_i32 s%d, s%d, %d\ns_lshl_b32 s%d, s%d, 6\ns_add_u32 s%d, s%d, s%d' % (T0, T1, 32 * 2752, T1, sSG0, T0, T0, T1))
    for q in range(3):
        e.I('v_add_u32 v%d, %d, v0\nv_mul_u32_u24 v%d, 171, v%d\nv_lshrrev_b32 v%d, 11, v%d' % (t1, 64 * q, t0, t1, t0, t0))
        if cfg.zfill:
            e.I('v_mul_u32_u24 v%d, 12, v%d\nv_sub_u32 v%d, v%d, v%d\nv_cmp_gt_u32 vcc, s%d, v%d' % (WV + q, t0, t1, t1, WV + q, sTW, t1))
        e.I('v_lshrrev_b32 v%d, 3, v%d\nv_lshlrev_b32 v%d, 1, v%d\nv_xor_b32 v%d, v0, v%d' % (t1, t0, t1, t1, t1, t1))
        e.I('v_mul_u32_u24 v%d, %d, v%d' % (t0, 2752 - 192, t0))
        e.I('v_lshl_add_u32 v%d, v%d, 4, v%d' % (t0, t1, t0))
        e.I('v_add_u32 v%d, s%d, v%d' % (WV + q, T0, t0))
        if cfg.zfill:
            e.I('v_mov_b32 v%d, 0x%x\nv_cndmask_b32 v%d, v%d, v%d, vcc' % (t0, OOB, WV + q, t0, WV + q))
    e.I('s_mul_i32 s%d, s%d, 6144' % (sMW, sW))


def dma_W(e, WV, SWR, j):
    slot = W_SLOT[j] * SLOT
    its = []
    for grp in range(2):
        for q in range(3):
            def f(grp=grp, q=q):
                set_m0(e, sMW, slot + grp * 3072)
                if q == 0 and grp == 0:
                    e.I('s_add_u32 s%d, s%d, %d\ns_and_b32 s%d, s%d, 7\ns_mul_i32 s%d, s%d, %d' %
                        (sTW, sK0, j, sTW, sTW, sTW, sTW, 64 * 2752))
                if q == 0 and grp == 1:
                    e.I('s_add_u32 s%d, s%d, %d' % (sTW, sTW, 16 * 2752))
                e.I('buffer_load_dwordx4 v%d, %s, s%d offen offset:%d %slds' % ((WV + q, srd(SWR), sTW, 1024 * q) + (ntf('w', j),)), tag=('st', 8 + j))
            its.append(f)
    return its


C_LAND, C_CONS, C_Q, C_DONEA = 0, 32, 64, 68


def cnt_add(e, va, vone, off):
    e.I('s_mov_b64 exec, 1')
    e.I('ds_add_u32 v%d, v%d offset:%d' % (va, vone, off), tag='sig')
    e.I('s_mov_b64 exec, -1')


def cnt_look(e, va, vt, off, tag):
    e.I('ds_read_b32 v%d, v%d offset:%d' % (vt, va, off), tag=tag)


def cnt_check(e, label, va, vt, off, tag):
    e.wait(lg=tag)
    e.I('v_cmp_ne_u32 vcc, 4, v%d' % vt)
    e.I('s_cbranch_vccnz %s' % label)
    e.label(label + '_out')
    with e.cold_block():
        e.label(label)
        e.I('s_mov_b32 s%d, 0' % sCNT)
        e.label(label + '_l')
        if SLEEP[1]:
            e.I('s_sleep %d' % SLEEP[1])
        cnt_look(e, va, vt, off, None)
        e.I('s_add_u32 s%d, s%d, 1' % (sCNT, sCNT))
        e.I('s_cmp_gt_u32 s%d, %d' % (sCNT, 20 * SPIN_MAX))
        e.wait(lg='all')
        e.I('s_cbranch_scc1 %s_out' % label)
        e.I('v_cmp_ne_u32 vcc, 4, v%d' % vt)
        e.I('s_cbranch_vccnz %s_l' % label)
        e.I('s_branch %s_out' % label)


def cnt_spin(e, label, va, vt, off):
    cnt_look(e, va, vt, off, 'look')
    cnt_check(e, label, va, vt, off, 'look')


def act_offsets(e, k, s_data, s_flag, valid_scc=False):
    e.I('s_lshl_b32 s%d, s%d, 2\ns_add_u32 s%d, s%d, s%d' % (T0, sRB, T0, T0, sW))
    e.I('s_mul_i32 s%d, s%d, 43\ns_add_u32 s%d, s%d, s%d\ns_add_u32 s%d, s%d, %d\ns_lshl_b32 s%d, s%d, 11' %
        (T1, T0, T1, T1, sSG0, T1, T1, k, s_data, T1))
    e.I('s_lshr_b32 s%d, s%d, 1\ns_mul_i32 s%d, s%d, 44\ns_add_u32 s%d, s%d, s%d\ns_add_u32 s%d, s%d, %d' %
        (T1, T0, T1, T1, T1, T1, sSG0, T1, T1, k))
    e.I('s_lshl_b32 s%d, s%d, 1\ns_and_b32 s%d, s%d, 1\ns_add_u32 s%d, s%d, s%d\ns_mul_i32 s%d, s%d, %d\ns_add_u32 s%d, s%d, 0x%x' %
        (T1, T1, T0, T0, T1, T1, T0, T1, T1, FS, s_flag, T1, AF_OFF))


def part_write_addr(e, dst, t0, t1, piece_stride, wave_stride, base):
    e.I('v_lshrrev_b32 v%d, 4, v0' % t0)
    e.I('v_and_b32 v%d, 7, v0' % t1)
    e.I('v_xor_b32 v%d, v%d, v%d' % (t0, t0, t1))
    e.I('v_lshlrev_b32 v%d, 4, v%d' % (dst, t0))
    e.I('v_bfe_u32 v%d, v0, 3, 1' % t0)
    e.I('v_and_b32 v%d, 3, v0' % t1)
    e.I('v_lshl_add_u32 v%d, v%d, 2, v%d' % (t0, t0, t1))
    e.I('v_lshl_add_u32 v%d, v%d, 8, v%d' % (dst, t0, dst))
    e.I('v_bfe_u32 v%d, v0, 2, 1' % t0)
    e.I('v_mul_u32_u24 v%d, %d, v%d' % (t0, piece_stride, t0))
    e.I('s_mul_i32 s%d, s%d, %d\ns_add_u32 s%d, s%d, %d' % (T0, sW, wave_stride, T0, T0, base))
    e.I('v_add3_u32 v%d, v%d, v%d, s%d' % (dst, dst, t0, T0))
    e.I('v_xor_b32 v%d, 64, v%d' % (dst + 1, dst))


def acc2(t4, dq):
    return 64 + 16 * t4 + 4 * dq


def part_write(e, addr, piece_stride, tt, addr1=None):
    its = []
    for a in range(2):
        for dq in range(4):
            ad_, off = (addr + (dq & 1), (dq >> 1) * 128) if addr1 is None or dq < 2 else (addr1 + (dq & 1), 0)
            its.append(lambda ad_=ad_, off=off, dq=dq, a=a:
                       e.I('ds_write_b128 v%d, %s offset:%d' % (ad_, vr(acc2(2 * tt + a, dq), 4), tt * 2 * piece_stride + a * 2048 + off), tag=('pw', tt)))
    return its


def tile_ids(e, cfg, redo):
    if redo:
        e.I('s_and_b32 s%d, s2, 7\ns_lshr_b32 s%d, s2, 3' % (T0, T1))
        e.I('s_and_b32 s%d, s%d, 7\ns_lshr_b32 s%d, s%d, 3\ns_lshr_b32 s%d, s%d, 1' % (T2, T1, T3, T1, T4, T0))
    e.I('s_mul_i32 s%d, s%d, 11\ns_mul_i32 s%d, s%d, 3\ns_add_u32 s%d, s%d, s%d' % (sSG0, T4, T5, T3, sSG0, sSG0, T5))
    e.I('s_cmp_eq_u32 s%d, 15\ns_subb_u32 s%d, s%d, 0' % (sCB, sSG0, sSG0))
    if cfg.map2 == 84:
        if cfg.xloc:
            e.I('s_and_b32 s%d, s%d, 8\ns_add_u32 s%d, s%d, s%d\ns_and_b32 s%d, s%d, 2\ns_lshl_b32 s%d, s%d, 2\ns_add_u32 s%d, s%d, s%d' %
                (sRT, sRB, sRT, sRT, sRB, T5, T0, T5, T5, sRT, sRT, T5))
            e.I('s_and_b32 s%d, s%d, 4\ns_add_u32 s%d, s%d, s%d' % (sCT, T0, sCT, sCT, T3))
        else:
            e.I('s_lshl_b32 s%d, s%d, 3\ns_add_u32 s%d, s%d, s%d' % (sRT, T4, sRT, sRT, T2))
            e.I('s_and_b32 s%d, s%d, 1\ns_lshl_b32 s%d, s%d, 2\ns_add_u32 s%d, s%d, s%d' % (sCT, T0, sCT, sCT, sCT, sCT, T3))
    else:
        e.I('s_lshl_b32 s%d, s%d, 2\ns_and_b32 s%d, s%d, 3\ns_add_u32 s%d, s%d, s%d\ns_lshr_b32 s%d, s%d, 2' %
            (sRT, T0, T5, T1, sRT, sRT, T5, sCT, T1))


KARG2 = 's_load_dwordx16 s[20:35], s[0:1], 64\ns_load_dwordx2 s[36:37], s[0:1], 128'


def gen_entry(e, cfg, st):
    e.I('s_load_dwordx16 s[4:19], s[0:1], 0')
    e.I('s_cmp_ge_u32 s2, 256\ns_cbranch_scc1 L_end')
    e.I(KARG2)
    st(e, 'start')
    if 'v' in cfg.prewarm:
        n = cfg.pwn
        e.I('s_getpc_b64 s[%d:%d]' % (SCODE, SCODE + 1))
        e.label('L_pc')
        e.I('s_mov_b32 s%d, L_end-L_pc\ns_mov_b32 s%d, 0x20000' % (SCODE + 2, SCODE + 3))
        e.I('s_lshl_b32 s%d, s2, %d\ns_and_b32 s%d, s%d, 0x%x' % (T0, 7 + n.bit_length() - 1, T0, T0, 0x7fff & ~(1024 * n - 1)))
        e.I('v_lshlrev_b32 v1, %d, v0' % (1 + n.bit_length() - 1))
        m = sum(1 << (k * 64 // n) for k in range(n))
        e.I('s_mov_b32 exec_lo, 0x%x\ns_mov_b32 exec_hi, 0x%x' % (m & 0xffffffff, m >> 32))
        e.I('buffer_load_dword v63, v1, %s, s%d offen' % (srd(SCODE), T0), tag='pw')
        e.I('s_mov_b64 exec, -1')
    e.I('v_lshrrev_b32 v1, 6, v0\nv_and_b32 v0, 63, v0')
    e.I('v_readfirstlane_b32 s%d, v1' % sWAVE)
    if cfg.slim and cfg.rot1 == (2, 4, 2, 1):
        e.I('s_and_b32 s%d, s2, 7\ns_bfe_u32 s%d, s2, 0x30003\ns_lshr_b32 s%d, s2, 6' % (T0, T2, T3))
        e.I('s_lshl1_add_u32 s%d, s%d, s%d\ns_lshl2_add_u32 s%d, s%d, s%d\ns_and_b32 s%d, s%d, 7' % (sK0, T2, T0, sK0, T3, sK0, sK0, sK0))
        e.I('s_and_b32 s%d, s2, 1\ns_lshl3_add_u32 s%d, s%d, s%d' % (sRB, sRB, sRB, T2))
        e.I('s_lshr_b32 s%d, s%d, 1\ns_lshl2_add_u32 s%d, s%d, s%d' % (T4, T0, sCB, T4, T3))
        assert cfg.map2 == 84
    else:
        e.I('s_and_b32 s%d, s2, 7\ns_lshr_b32 s%d, s2, 3' % (T0, T1))
        e.I('s_and_b32 s%d, s%d, 7\ns_lshr_b32 s%d, s%d, 3' % (T2, T1, T3, T1))
        e.I('s_and_b32 s%d, s%d, 1\ns_lshl_b32 s%d, s%d, 3\ns_add_u32 s%d, s%d, s%d' % (sRB, T0, sRB, sRB, sRB, sRB, T2))
        e.I('s_lshr_b32 s%d, s%d, 1' % (T4, T0))
        e.I('s_lshl_b32 s%d, s%d, 2\ns_add_u32 s%d, s%d, s%d' % (sCB, T4, sCB, sCB, T3))
        e.I('s_mul_i32 s%d, s%d, %d' % (sK0, T2, cfg.rot1[0]))
        for src, mul in zip((T3, T4, None), cfg.rot1[1:]):
            if mul:
                if src is None:
                    e.I('s_and_b32 s%d, s%d, 1' % (T5, T0))
                e.I('s_mul_i32 s%d, s%d, %d\ns_add_u32 s%d, s%d, s%d' % (T5, T5 if src is None else src, mul, sK0, sK0, T5))
        e.I('s_and_b32 s%d, s%d, 7' % (sK0, sK0))
    if not cfg.slim:
        tile_ids(e, cfg, False)
    e.I('s_and_b32 s%d, s%d, 3' % (sW, sWAVE))
    e.I('s_cmp_lt_u32 s%d, 4\ns_cbranch_scc1 L_A' % sWAVE)


def gen_B(e, cfg, st):
    NPRE = cfg.prog.count('D')
    WA = 2
    EP = 42
    XV, BV, WV, XA = 32, 36, 38, 44
    e.I('v_lshrrev_b32 v8, 3, v0')
    e.I('v_and_b32 v9, 7, v0')
    e.I('v_lshrrev_b32 v10, 4, v0')
    e.I('v_xor_b32 v10, v9, v10\nv_lshlrev_b32 v10, 4, v10')
    e.I('v_lshrrev_b32 v11, 5, v0\nv_and_b32 v12, 3, v8\nv_lshl_add_u32 v11, v11, 4, v12')
    e.I('s_lshl2_add_u32 s%d, s%d, s%d\ns_lshl_b32 s%d, s%d, 15' % (T0, sRB, sW, T0, T0))
    e.I('v_lshl_add_u32 v11, v11, 10, s%d' % T0)
    e.I('v_add_u32 v%d, v11, v10' % XV)
    e.I('v_xor_b32 v13, 64, v%d' % XV)
    e.I('v_add_u32 v%d, 3072, v13\nv_add_u32 v%d, 6144, v%d\nv_add_u32 v%d, 9216, v13' % (XV + 1, XV + 2, XV, XV + 3))
    def b_setup():
        e.I('s_and_b32 s%d, s%d, 1\ns_lshl1_add_u32 s%d, s%d, s%d\ns_lshl_b32 s%d, s%d, 14' % (T1, sW, T0, sCB, T1, T0, T0))
        e.I('v_lshrrev_b32 v11, 5, v0\nv_lshl_add_u32 v11, v11, 3, v12')
        e.I('v_lshl_add_u32 v11, v11, 10, s%d' % T0)
        e.I('v_add_u32 v%d, v11, v10' % BV)
        e.I('v_xor_b32 v13, 64, v%d\nv_add_u32 v%d, 3072, v13' % (BV, BV + 1))
        e.I('s_lshl_b32 s%d, s%d, 11\ns_add_u32 s%d, s%d, 16384' % (sMBm, sW, sMBm, sMBm))
        e.I('s_mov_b32 s%d, 0x%x\ns_mov_b32 s%d, 0x20000' % (SBM + 2, 512 * 1024, SBM + 3))
    if not cfg.blate:
        b_setup()
    e.I('s_lshl_b32 s%d, s%d, 12' % (sMX, sW))
    e.I('s_lshl_b32 s%d, s%d, 7' % (T6, sK0))
    e.I('s_mov_b32 s%d, 0x%x\ns_mov_b32 s%d, 0x20000' % (SX + 2, 2048 * 1024, SX + 3))
    set_m0(e, sMX, s_slot(0) * SLOT)
    e.I('s_mov_b32 s%d, s%d' % (sTS, T6))
    e.wait_smem()
    st(e, 'karg')
    jitter(e, cfg, 1)
    e.I('s_mov_b64 s[%d:%d], s[%d:%d]' % (SX, SX + 1, P_X, P_X + 1))

    def dma_S(i):
        slot = s_slot(i) * SLOT
        its = []
        for q in range(4):
            def f(q=q):
                if q == 0 and i:
                    set_m0(e, sMX, slot)
                    e.I('s_add_u32 s%d, s%d, %d\ns_and_b32 s%d, s%d, 1023' % (sTS, T6, i * 128, sTS, sTS))
                e.I('buffer_load_dwordx4 v%d, %s, s%d offen offset:%d %slds' % ((XV + q, srd(SX), sTS, 1024 * q) + (ntf('x', i),)), tag=('st', i))
            its.append(f)
        for q in range(2):
            def f(q=q):
                if q == 0 and i == 0 and cfg.blate:
                    b_setup()
                if q == 0:
                    set_m0(e, sMBm, slot)
                if q == 0 and i == 0:
                    e.I('s_cmp_ge_u32 s%d, 2\ns_cselect_b64 s[%d:%d], s[%d:%d], s[%d:%d]' % (sW, SBM, SBM + 1, P_BIM, P_BIM + 1, P_BRE, P_BRE + 1))
                e.I('buffer_load_dwordx4 v%d, %s, s%d offen offset:%d %slds' % ((BV + q, srd(SBM), sTS, 1024 * q) + (ntf('b', i),)), tag=('st', i))
            its.append(f)
        return its

    run(dma_S(0))
    st(e, 'dma0')
    s1 = dma_S(1)
    run(s1[:cfg.s1a])
    if 's' in cfg.prewarm:
        code_touch(e, 'B')
    frag16_addr(e, XA, 11, 12)
    for s in range(2):
        e.I('v_add_u32 v%d, s%d, v%d' % (XA + s, sMX, XA + s))
        e.I('v_add_u32 v%d, %d, v%d' % (XA + 2 + s, WIN, XA + s))
        if cfg.lag:
            e.I('v_add_u32 v%d, %d, v%d' % (XA + 4 + s, 2 * WIN, XA + s))
    e.I('v_lshlrev_b32 v11, 2, v0\nv_add_u32 v11, %d, v11\nv_mov_b32 v12, 0' % L_FL)
    e.I('ds_write_b32 v11, v12', tag='init')

    def setup_a():
        if cfg.slim:
            tile_ids(e, cfg, True)
        mk_srd(e, SWS, P_WS, WS_SIZE)
        mk_srd(e, SWD, P_WD, 1376 * 1024)
        e.I('s_cmp_ge_u32 s%d, 2' % sW)
        mk_srd_sel(e, SW, P_WU, P_WG, 512 * 2752)
        w_tr_addr(e, WA, 13, 14)
        e.I('v_lshlrev_b32 v1, 4, v0')

    def setup_b():
        w_lane_offsets(e, cfg, WV, 13, 14)
    if not cfg.defer:
        setup_a()
        setup_b()

    sDC, sDB, sDE, sAC, sAB, sAE = 86, 87, 88, 89, 90, 91
    sD0, sF0, sD2, sF2 = T2, T3, T4, T5
    st(e, '_pro')
    sP0 = 92
    if isinstance(cfg.w0pos, tuple):
        tab = sum(p << (4 * r) for r, p in enumerate(cfg.w0pos))
        e.I('s_and_b32 s%d, s%d, 7\ns_lshl_b32 s%d, s%d, 2\ns_lshr_b32 s%d, 0x%x, s%d\ns_and_b32 s%d, s%d, 15' %
            (T0, sRB, T0, T0, sP0, tab, T0, sP0, sP0))

    def w0_hook(p):
        if cfg.w0pos == p:
            run(dma_W(e, WV, SW, 0))
        elif isinstance(cfg.w0pos, tuple) and p in cfg.w0pos:
            e.I('s_cmp_eq_u32 s%d, %d\ns_cbranch_scc1 L_w0_%d' % (sP0, p, p))
            e.label('L_w0_%d_out' % p)
            with e.cold_block():
                e.label('L_w0_%d' % p)
                run(dma_W(e, WV, SW, 0))
                e.I('s_branch L_w0_%d_out' % p)
            e.m0 = None
    run(s1[cfg.s1a:])
    st(e, '_dma1')
    w0_hook(1)
    e.wait(vm=('st', 0))
    st(e, '_sa0')
    e.I('s_barrier')
    st(e, 'b0')
    for i in range(8):
        if i == 1:
            e.I('s_mov_b32 s%d, 0x%x' % (T0, EPOCH_OFF))
            e.I('buffer_load_dword v%d, off, %s, s%d sc1' % (EP, srd(SWS), T0), tag='ep')
        if i < 6:
            run(dma_S(i + 2))
            w0_hook(i + 2)
        elif cfg.w0pos is None:
            run(dma_W(e, WV, SW, i - 6))
        elif i == 6 or 'W2' not in cfg.prog:
            run(dma_W(e, WV, SW, i - 5))
        for s in range(4):
            slot = s_slot(i)
            e.I('ds_read_b128 %s, v%d offset:%d' % (vr(128 + 4 * (4 * i + s), 4), XA + 2 * (slot >> 1) + (s >> 1), (slot & 1) * SLOT + (s & 1) * 2048), tag='x')
        if cfg.defer and i == 0:
            setup_a()
        if cfg.defer and i == 1:
            setup_b()
        if i == 4:
            e.wait(vm='ep')
            e.I('v_readfirstlane_b32 s%d, v%d' % (sNONCE, EP))
            e.I('s_add_u32 s%d, s%d, 0x%x\ns_or_b32 s%d, s%d, 1' % (sNONCE, sNONCE, PHI, sNONCE, sNONCE))
            e.I('s_mov_b32 s%d, 0x%x\ns_mov_b32 s%d, 0x%x' % (sNL2E, NLOG2E, sNL2E + 1, NLOG2E))
        if i == 2:
            step_start(e, cfg, sAC, sAB, sAE, 11)
        if i == 3:
            for k in range(3):
                e.I('s_lshl_b32 s%d, s%d, 4' % (sDC + k, sAC + k))
            for n in range(1, NPRE):
                wd_next(e, n, sDC, sDB, sDE)
        if i == 5:
            act_offsets(e, 0, sD0, sF0)
        if i == 6:
            e.I('s_add_u32 s%d, s%d, 4096\ns_add_u32 s%d, s%d, %d' % (sD2, sD0, sF2, sF0, 4 * FS))
            light_scc(e)
            e.I('s_cselect_b32 s%d, 0x%x, s%d\ns_cselect_b32 s%d, 0x%x, s%d' % (sD2, OOB, sD2, sF2, OOB, sF2))
            e.I('v_mov_b32 v7, %d\nv_mov_b32 v6, 1' % L_FL)
        if i < 7:
            e.wait(vm=('st', i + 1), lg='all')
            st(e, '_sa%d' % (i + 1))
            e.I('s_barrier')
            st(e, '_sd%d' % (i + 1))
            if i == 0:
                st(e, 'b1')
    NT = cfg.NT
    ops = []
    for j in range(8 - NT):
        for s in range(2):
            for g in range(3):
                for mf in range(4):
                    ops.append((j, s, g, mf))
    tail0 = len(ops)
    for g in range(3):
        for j in range(8 - NT, 8):
            for s in range(2):
                for mf in range(4):
                    ops.append((j, s, g, mf))
    NB, LA = 6, cfg.LA
    first = {j: min(q for q in range(len(ops)) if ops[q][0] == j) for j in range(8)}
    last = {j: max(q for q in range(len(ops)) if ops[q][0] == j) for j in range(8)}

    def rd(q, half):
        if q >= len(ops):
            return
        j, s, g, mf = ops[q]
        if q == first[j] and j <= cfg.JL and half == 0:
            e.wait(vm=('st', 8 + j), lg='all' if j in cfg.drain else 'x')
            st(e, '_a%d' % j)
            e.I('s_barrier')
            st(e, '_d%d' % j)
            if j in (0, 4, cfg.JL):
                st(e, 'b%d' % (8 + j))
            if j == 0 and cfg.prioB:
                e.I('s_setprio %d' % cfg.prioB)
        w_frag_read(e, 8 + 4 * (q % NB), WA, j, s, g, mf >> 1, mf & 1, half, ('wf', q))
        if q == last[7] and half == 1:
            cnt_add(e, 7, 6, C_CONS + 28)

    def mm(q, a):
        j, s, g, mf = ops[q]
        if a == 0 and q % 2 == 0:
            e.wait(lg=('wf', q + 1))
        t = a ^ (q & 1) if cfg.snake else a
        mfma16(e, 32 + 32 * g + 16 * (mf >> 1) + 8 * t + 4 * (mf & 1), 8 + 4 * (q % NB), 128 + 16 * j + 8 * s + 4 * t, j == 0 and s == 0)
        rd(q + LA, a)

    def act_store(k, ms=(0, 1)):
        for m in ms:
            e.I('buffer_store_dwordx4 %s, v1, %s, s%d offen offset:%d sc1' %
                (vr(136 + 8 * k + 4 * m, 4), srd(SWS), sD2 if k == 2 else sD0, 1024 * m + (2048 if k == 1 else 0)), tag=('as', k))

    def with_stores(its, k):
        if not cfg.asplit:
            return its + [lambda: act_store(k)]
        h = len(its) // 2
        return its[:h] + [lambda: act_store(k, (0,))] + its[h:] + [lambda: act_store(k, (1,))]

    def act_flag(k):
        e.wait(vm=('as', k))
        flag_store(e, EP, sF2 if k == 2 else sF0, 2 * FS if k == 1 else 0)

    for q in range(LA):
        rd(q, 0)
        rd(q, 1)
    per = 8 * NT
    for q in range(tail0 + per):
        mm(q, 0)
        mm(q, 1)
    if cfg.prioT:
        e.I('s_setprio %d' % cfg.prioT)
    if NT:
        for g in (1, 2):
            main = [lambda q=q, a=a: mm(q, a) for q in range(tail0 + g * per, tail0 + (g + 1) * per) for a in range(2)]
            fill = with_stores(act_items_scalar(e, cfg, 32 * g, 32 * g + 16, 128, 136 + 8 * (g - 1)), g - 1)
            run(main[:3] + weave(main[3:], fill))
        st(e, 'f1end')
        run(with_stores(act_items(e, cfg, 96, 112, 128, 152), 2))
    else:
        st(e, 'f1end')
        for g in range(3):
            run(with_stores(act_items(e, cfg, 32 + 32 * g, 48 + 32 * g, 128, 136 + 8 * g), g))
    if cfg.prioB or cfg.prioT:
        e.I('s_setprio 0')
    st(e, 'actst')
    jitter(e, cfg, 2)
    DA, AV, PW, WDV, EP = 2, 14, 16, 18, 23
    e.I('v_mov_b32 v%d, s%d' % (EP, sNONCE))
    e.I(wd_lane_offsets(e, WDV, 20, 21))
    e.I('v_mov_b32 v22, %d' % L_FL)
    cnt_spin(e, 'L_spinB', 22, 24, C_CONS + 28)
    st(e, 'ldsfree')

    def dma_D(n):
        sl, pos = RING[n]
        if n in PREV:
            e.wait(lg=('wr', PREV[n]))
        set_m0(e, sMW, sl * SLOT + pos * 2048)
        if n:
            wd_next(e, n, sDC, sDB, sDE)
        for q in range(2):
            e.I('buffer_load_dwordx4 v%d, %s, s%d offen offset:%d %slds' % ((WDV + q, srd(SWD), sDC, 1024 * q) + (ntf('d', n),)), tag=('wd', n))

    def wd_reg(n2):
        return 128 + 16 * n2 if n2 < 5 else 32 + 16 * (n2 - 5) if n2 < 7 else 128 + 16 * (n2 - 7)

    def wd_read(n, dqs=range(4)):
        sl, pos = RING[n]
        e.wait(vm=('wd', n))
        for dq in dqs:
            e.I('ds_read_b64_tr_b16 %s, v%d offset:%d' % (vr(wd_reg(n >> 1) + 4 * dq + 2 * (n & 1), 2), DA + 4 * (sl >> 1) + dq,
                                                         (sl & 1) * SLOT + pos * 2048), tag=('wr', n))

    def setup2():
        e.I('v_lshrrev_b32 v20, 2, v0\nv_lshlrev_b32 v20, 7, v20\nv_bfe_u32 v21, v0, 3, 2\nv_lshl_add_u32 v20, v21, 5, v20')
        e.I('v_and_b32 v21, 3, v0\nv_lshl_add_u32 v20, v21, 3, v20\nv_add_u32 v%d, s%d, v20' % (DA, sMW))
        for dq in range(1, 4):
            e.I('v_xor_b32 v%d, %d, v%d' % (DA + dq, 32 * dq, DA))
        for k in (1, 2):
            for dq in range(4):
                e.I('v_add_u32 v%d, %d, v%d' % (DA + 4 * k + dq, k * WIN, DA + dq))
        e.I('s_mul_i32 s%d, s%d, %d' % (T0, sRT, 2 * 88064))
        e.I('v_add_u32 v%d, s%d, v1\nv_add_u32 v%d, 88064, v%d' % (AV, T0, AV + 1, AV))
        e.I('s_mul_i32 s%d, s%d, 44\ns_mul_i32 s%d, s%d, 11\ns_add_u32 s%d, s%d, s%d\ns_mul_i32 s%d, s%d, %d\ns_add_u32 s%d, s%d, 0x%x' %
            (T0, sRT, T1, sW, T0, T0, T1, T0, T0, 2 * FS, T0, T0, AF_OFF))
        e.I('v_mul_u32_u24 v20, %d, v0' % FS)
        e.I('s_mov_b32 s%d, 0x3fffff\ns_cmp_eq_u32 s%d, 3\ns_cselect_b32 s%d, 0xfffff, s%d\ns_mov_b32 s%d, 0' % (sMA, sW, sMA, sMA, sMA + 1))

    for n in range(NPRE, 11):
        for k in range(3):
            if cfg.flagpos[k] + NPRE == n:
                if k == 2:
                    setup2()
                act_flag(k)
                if k == 2:
                    st(e, 'flagged')
        if n < 10:
            dma_D(n)
    st(e, '_d9')
    cnt_spin(e, 'L_spinB2', 22, 24, C_DONEA)
    st(e, '_da')
    jitter(e, cfg, 3)
    pulled = [0]

    def d_step(n):
        dma_D(n)
        while pulled[0] < min(14, 3 * (n - 9), n - 3):
            wd_read(pulled[0])
            pulled[0] += 1
        if n == 14:
            e.wait(lg=('wr', 9))
            set_m0(e, sMW, L_P2)
            e.I('s_mov_b64 exec, 1')
            e.I('buffer_load_dword off, %s, s%d lds' % (srd(SWD), SWD + 2), tag='init')
            e.I('s_mov_b64 exec, -1')
        if n == -cfg.posXB:
            bar_X()

    def bar_X():
        assert pulled[0] >= 12
        e.wait(vm='init', lg=('wr', 11))
        st(e, '_aX')
        e.I('s_barrier')

    for n in range(10, cfg.alook):
        d_step(n)
    st(e, 'wdiss')
    nd = cfg.alook + cfg.abet
    poll(e, 'L_pollA', 21, 20, T0, 's[%d:%d]' % (sMA, sMA + 1), lambda: [d_step(n) for n in range(cfg.alook, nd)])
    st(e, 'actrdy')
    jitter(e, cfg, 4)
    if cfg.prioF2:
        e.I('s_setprio %d' % cfg.prioF2)

    TL = cfg.TL
    sSV = 92
    NM = 11 - TL

    order = [(n2, t4) for n2 in range(NM) for t4 in range(4)] + [(n2, t4) for t4 in range(4) for n2 in range(NM, 11)]

    def a_reg(n2, t4):
        return 208 + 4 * (order.index((n2, t4)) % 12)

    pend = []
    rq = []

    def flush(n=99):
        for t in pend[:n]:
            e.I(t)
        del pend[:n]

    def a_load(n2, t4):
        if t4 == 0:
            flush()
        so = sAC if n2 < NM else sSV + n2 - NM
        e.I('buffer_load_dwordx4 %s, v%d, %s, s%d offen offset:%d sc1' % (vr(a_reg(n2, t4), 4), AV + (t4 >> 1), srd(SWS), so, 1024 * (t4 & 1)),
            tag=('a', n2, t4))
        if n2 < 10 and t4 == (3 if n2 < NM else 0):
            dst = sAC if n2 + 1 < NM else sSV + n2 + 1 - NM
            pend.append('s_add_u32 s%d, s%d, 2048' % (dst, so))
            pend.append('s_cmp_eq_u32 s%d, s%d\ns_cselect_b32 s%d, s%d, s%d' % (dst, sAE, dst, sAB, dst))
            if n2 == 9:
                pend.append('s_cmp_eq_u32 s%d, 3\ns_cselect_b32 s%d, 0x%x, s%d' % (sW, dst, OOB, dst))

    lq = []
    for k, t in enumerate(order):
        lq.append(('a', k))
        if k & 1 and nd < 22:
            lq.append(('d', nd))
            nd += 1
    dn = [cfg.alook + cfg.abet - 1]
    nis = [0]

    def issue(k, busy):
        while lq:
            t = lq[0]
            tag = ('a',) + order[k]
            nv = min(cfg.NV, cfg.NV0[0] + max(0, k - cfg.NV0[1]))
            if nis[0] > k and (len(e.vm) - 1 - e.vm.index(tag) >= nv - 1 if tag in e.vm else len(e.vm) >= nv):
                return
            if t[0] == 'a':
                if t[1] >= busy + 12:
                    return
                a_load(*order[t[1]])
                nis[0] = t[1] + 1
            else:
                d_step(t[1])
                dn[0] = t[1]
            lq.pop(0)

    wq = []
    zq = [list(g) for g in cfg.zg]
    since = [0]

    def w_pop():
        t = wq.pop(0)
        if t is not None:
            t4, i = t
            assert not rq
            hi = 32768 if t4 == 3 else 0
            set_m0(e, sMW, hi)
            e.I('ds_write_addtid_b32 v%d offset:%d' % (acc2(t4, 0) + i, t4 * SLOT - hi + 256 * i), tag=('pw', t4))
            if i == 15 and t4 == zq[0][-1]:
                since[0] = cfg.zlag + 1
        if since[0]:
            since[0] -= 1
            if since[0] == 0:
                z_bar()

    def z_bar():
        e.wait(lg=('pw', zq.pop(0)[-1]))
        e.I('s_barrier')

    def mm2(k):
        n2, t4 = order[k]
        if k == 0:
            issue(k, k)
        while rq and rq[0][0] >> 1 <= (order[k + 2][0] if k + 2 < 4 * NM + TL else 99):
            t = rq.pop(0)
            wd_read(t[0], [t[1]])
        e.wait(vm=('a', n2, t4), lg=('wr', 2 * n2 + 1))
        for dq in range(4):
            d = 3 - dq if cfg.snake and n2 < NM and t4 & 1 else dq
            mfma16(e, acc2(t4, d), a_reg(n2, t4), wd_reg(n2) + 4 * d, n2 == 0)
            if dq == 0 and lq:
                issue(k + 1, k)
            elif pend and dq < 3:
                flush(1)
            elif rq and dq < 3:
                t = rq.pop(0)
                wd_read(t[0], [t[1]])
            elif wq:
                w_pop()
        if n2 == 10:
            if t4 == 0:
                wq.extend([None, None])
            wq.extend((t4, i) for i in range(16))

    for n2 in range(NM):
        st(e, '_n%d' % n2)
        while pulled[0] <= min(2 * n2 + 5, 13):
            assert dn[0] >= pulled[0]
            wd_read(pulled[0])
            pulled[0] += 1
        if n2 == cfg.posXB:
            bar_X()
        for t4 in range(4):
            mm2(4 * n2 + t4)
        if cfg.pull0 <= n2 < cfg.pull0 + 4:
            m2 = n2 - cfg.pull0 + 7
            assert dn[0] >= 2 * m2 + 1
            rq.extend((2 * m2 + hf, dq) for hf in range(2) for dq in range(4))
    assert cfg.pull0 + 4 <= NM
    for k in range(4 * NM, 44):
        mm2(k)
    if cfg.prioF2:
        e.I('s_setprio 0')
    st(e, 'f2end')
    jitter(e, cfg, 5)
    while wq:
        w_pop()
    while zq:
        z_bar()
    st(e, 'end')
    st.flush(e)
    e.I('s_endpgm')


def gen_A(e, cfg, st):
    LR, LI, L16, L128, L256, L16S, KAP, WV = 48, 49, 50, 52, 54, 56, 58, 60
    PP = 32
    SIDX = 3
    RE, IM = 64, 80
    XA, BA = 192, 204
    CV, CA, CA4, WDV = 96, 100, 104, 108
    EV0, EV1, EOOB, ERD, ECNT, EEXP, ONE, FLA, XW, XR, P16 = range(110, 121)
    SEL = 216
    RING0 = 144
    sHD, sHF, sES, sEL, sROT, sDTX = 86, 87, 90, 91, 92, 80
    sDC, sDB, sDE = 93, 94, 95
    if cfg.slim:
        tile_ids(e, cfg, False)
    e.I('v_lshlrev_b32 v1, 4, v0')
    e.I('v_and_b32 v21, 0x13, v0\nv_bfe_u32 v22, v0, 2, 1\nv_lshl_add_u32 v21, v22, 3, v21\nv_bfe_u32 v22, v0, 3, 1\nv_lshl_add_u32 v21, v22, 2, v21')
    e.I('s_lshl_b32 s%d, s%d, 6' % (T0, sCB))
    e.I('v_lshl_add_u32 v21, v21, 1, s%d' % T0)
    e.I('s_lshl_b32 s%d, s%d, 2\ns_add_u32 s%d, s%d, s%d\ns_lshl_b32 s%d, s%d, 4\ns_add_u32 s%d, s%d, s%d' %
        (T3, sRB, T3, T3, sW, T3, T3, T3, T3, sCB))
    e.I('s_lshl_b32 s%d, s%d, 11' % (T2, T3))
    frag_addr(e, BA, 4, 5)
    def karg_block():
        e.wait_smem()
        st(e, '_karg')
        mk_srd(e, SX, P_X, 2048 * 1024)
        mk_srd(e, SWS, P_WS, WS_SIZE)
        e.I('s_mov_b32 s%d, 0x%x\ns_lshl_b32 s%d, s%d, 6' % (T4, EPOCH_OFF, T0, sCB))
        e.I('s_load_dword s3, s[%d:%d], s%d' % (P_WS, P_WS + 1, T4))
        for p in (P_LRE, P_LIM, P_LDT):
            e.I('s_load_dword s3, s[%d:%d], s%d' % (p, p + 1, T0))
        e.I('s_lshr_b32 s%d, s2, 3\ns_lshl_b32 s%d, s%d, 2\ns_add_u32 s%d, s%d, s%d\ns_and_b32 s%d, s%d, 15\ns_lshl_b32 s%d, s%d, 6' %
            (T0, T0, T0, T0, T0, sW, T0, T0, T0, T0))
        for p in (P_GW, P_DSK):
            e.I('s_load_dword s3, s[%d:%d], s%d' % (p, p + 1, T0))
        if 's' in cfg.prewarm:
            code_touch(e, 'A')

    if not cfg.apre:
        karg_block()

    def small0():
        e.I('buffer_load_dword v19, off, %s, s%d sc1' % (srd(SWS), T4), tag='ep')
        e.I('global_load_ushort v16, v21, s[%d:%d]' % (P_LRE, P_LRE + 1), tag='par')
        e.I('global_load_ushort v17, v21, s[%d:%d]' % (P_LIM, P_LIM + 1), tag='par')
        e.I('global_load_ushort v18, v21, s[%d:%d]' % (P_LDT, P_LDT + 1), tag='par')

    small1 = [lambda: e.I('global_load_dwordx4 v[44:47], v1, s[%d:%d]' % (P_GW, P_GW + 1), tag='g'),
              lambda: e.I('buffer_load_dwordx4 v[36:39], v1, %s, s%d offen' % (srd(SX), T2), tag='g'),
              lambda: e.I('buffer_load_dwordx4 v[40:43], v1, %s, s%d offen offset:1024' % (srd(SX), T2), tag='g')]
    e.I('s_lshl_b32 s%d, s%d, 3\ns_add_u32 s%d, s%d, 0x%x' % (T6, T3, T6, T6, G_OFF))
    GA, GW0, GO = 121, 124, 126
    if cfg.glds:
        small1 = [lambda: e.I('global_load_dwordx4 v[44:47], v%d, s[%d:%d]' % (GW0, P_GW, P_GW + 1), tag='g'),
                  lambda: e.I('global_load_dwordx4 v[128:131], v%d, s[%d:%d]' % (GW0 + 1, P_GW, P_GW + 1), tag='g')]
        e.I('s_bfe_u32 s%d, s%d, 0x20001\ns_lshl_b32 s%d, s%d, 2\ns_lshr_b32 s%d, s%d, 3\ns_lshl_b32 s%d, s%d, 1\ns_add_u32 s%d, s%d, s%d' %
            (T0, sCB, T0, T0, T1, sCB, T1, T1, T0, T0, T1))
        e.I('s_and_b32 s%d, s%d, 1\ns_add_u32 s%d, s%d, s%d' % (T1, sCB, T0, T0, T1))
        e.I('s_and_b32 s%d, s%d, 7\ns_lshl_b32 s%d, s%d, 8\ns_lshl_b32 s%d, s%d, 12\ns_add_u32 s%d, s%d, s%d' % (T1, T0, T0, T0, T2, sW, T0, T0, T2))
        e.I('v_and_b32 v4, 15, v0\nv_xor_b32 v4, s%d, v4\nv_lshl_add_u32 v%d, v4, 4, s%d' % (T1, GA, T0))
        e.I('v_add_u32 v%d, %d, v%d\nv_add_u32 v%d, %d, v%d' % (GA + 1, WIN, GA, GA + 2, 2 * WIN, GA))
        e.I('v_lshrrev_b32 v4, 4, v0\nv_add_u32 v4, s%d, v4\nv_and_b32 v4, 7, v4\nv_and_b32 v5, 7, v0\nv_lshlrev_b32 v5, 4, v5' % sK0)
        e.I('v_lshl_add_u32 v%d, v4, 7, v5\nv_xor_b32 v%d, 0x200, v%d' % (GW0, GW0 + 1, GW0))
        e.I('v_bfe_u32 v4, v0, 3, 1\nv_lshlrev_b32 v%d, 2, v4' % GO)

    e.I('s_lshl_b32 s%d, s%d, 12' % (T0, sW))
    for s in range(4):
        e.I('v_add_u32 v%d, s%d, v%d' % (XA + s, T0, BA + s))
        e.I('v_add_u32 v%d, %d, v%d' % (XA + 4 + s, WIN, XA + s))
        e.I('v_add_u32 v%d, %d, v%d' % (BA + 4 + s, WIN, BA + s))
        if cfg.lag:
            e.I('v_add_u32 v%d, %d, v%d\nv_add_u32 v%d, %d, v%d' % (XA + 8 + s, 2 * WIN, XA + s, BA + 8 + s, 2 * WIN, BA + s))
    w_lane_offsets(e, cfg, WV, 24, 25)
    e.I('v_lshrrev_b32 v24, 5, v0\ns_lshl_b32 s%d, s%d, 1' % (T0, sW))
    e.I('v_add_u32 v%d, s%d, v24' % (SIDX, T0))
    if cfg.apre:
        karg_block()
    rot2_calc(e, cfg, sROT, 0)
    if cfg.rotS:
        e.I('s_and_b32 s%d, s%d, %d\ns_lshl_b32 s%d, s%d, %d\ns_xor_b32 s%d, s%d, s%d' % (T0, sCT, cfg.rotS[0], T0, T0, cfg.rotS[1], sROT, sROT, T0))
    e.I('s_and_b32 s%d, s%d, 1\ns_lshr_b32 s%d, s%d, 1' % (sDTX, sROT, sROT, sROT))
    e.I('s_bitcmp1_b32 s%d, 0' % sROT)
    mk_srd_sel(e, SC1, P_CIM, P_CRE, 512 * 1024)
    mk_srd_sel(e, SC2, P_CRE, P_CIM, 512 * 1024)
    mk_srd(e, SWD, P_WD, 1376 * 1024)
    step_start(e, cfg, sDC, sDB, sDE, 15)
    e.I('s_cmp_ge_u32 s%d, 2' % sW)
    mk_srd_sel(e, SWA, P_WU, P_WG, 512 * 2752)
    e.I('s_lshl_b32 s%d, s%d, 2\ns_add_u32 s%d, s%d, s%d' % (T0, sRB, T0, T0, sW))
    HW_ = 16384 + cfg.hpad[0]
    HT_ = 4 * HW_ + cfg.hpad[1]
    assert H_OFF + 64 * HT_ <= E_OFF
    e.I('s_mul_i32 s%d, s%d, %d\ns_lshr_b32 s%d, s%d, 1\ns_lshl_b32 s%d, s%d, 13\ns_add_u32 s%d, s%d, s%d' %
        (sHD, T0, HT_, T1, sCB, T1, T1, sHD, sHD, T1))
    e.I('s_lshr_b32 s%d, s%d, 2\ns_mul_i32 s%d, s%d, %d\ns_add_u32 s%d, s%d, s%d' % (T1, sCB, T1, T1, cfg.hpad[0], sHD, sHD, T1))
    e.I('s_and_b32 s%d, s%d, 1\ns_lshl_b32 s%d, s%d, 11\ns_add_u32 s%d, s%d, s%d\ns_add_u32 s%d, s%d, 0x%x' %
        (T1, sCB, T1, T1, sHD, sHD, T1, sHD, sHD, H_OFF))
    e.I('s_lshr_b32 s%d, s%d, 1\ns_lshl_b32 s%d, s%d, 4\ns_add_u32 s%d, s%d, s%d\ns_lshl_b32 s%d, s%d, 1' %
        (T1, T0, T1, T1, T1, T1, sCB, T1, T1))
    e.I('s_and_b32 s%d, s%d, 1\ns_add_u32 s%d, s%d, s%d\ns_mul_i32 s%d, s%d, %d\ns_add_u32 s%d, s%d, 0x%x' %
        (T0, T0, T1, T1, T0, T1, T1, FS, sHF, T1, HF_OFF))
    e.I('s_lshl_b32 s%d, s%d, 13\ns_add_u32 s%d, s%d, 0x%x' % (sEL, sCB, sEL, sEL, E_OFF))
    e.I('s_lshl_b32 s%d, s%d, 9\ns_add_u32 s%d, s%d, s%d\ns_cmp_eq_u32 s%d, 0\ns_cselect_b32 s%d, s%d, 0x%x' %
        (sES, sRB, sES, sES, sEL, sW, sES, sES, OOB))
    e.I('s_sub_u32 s%d, s%d, 1024' % (sEL, sEL))

    tch = Touch(e, cfg, 'A')
    tch.setup()
    tch.at(-1)

    e.I('s_lshl_b32 s%d, s%d, 9\ns_add_u32 s%d, s%d, %d' % (T0, sW, T0, T0, L_E))
    e.I('v_lshl_add_u32 v%d, v0, 3, s%d' % (XW, T0))
    e.I('v_and_b32 v6, 31, v0\nv_lshlrev_b32 v%d, 4, v6\nv_lshlrev_b32 v6, 3, v6\nv_add_u32 v%d, %d, v6' % (P16, XR, L_E))
    e.I('v_and_b32 v4, 3, v0\nv_bfe_u32 v5, v0, 3, 2\nv_lshl_add_u32 v4, v5, 2, v4')
    e.I('v_bfe_u32 v5, v0, 2, 1\nv_lshrrev_b32 v6, 5, v0\nv_xor_b32 v5, v5, v6\nv_lshl_add_u32 v4, v5, 4, v4')
    e.I('v_and_b32 v5, 1, v0\nv_lshlrev_b32 v5, 4, v5\nv_mov_b32 v6, 0x3f80\nv_lshlrev_b32 v5, v5, v6\nv_lshrrev_b32 v4, 1, v4')
    for n in range(8):
        e.I('v_cmp_eq_u32 vcc, %d, v4\nv_cndmask_b32 v%d, 0, v5, vcc' % (n, SEL + n))
    e.I('v_and_b32 v6, 7, v0\nv_lshrrev_b32 v7, 4, v0\nv_xor_b32 v6, v6, v7\nv_lshlrev_b32 v6, 4, v6')
    e.I('v_lshrrev_b32 v7, 3, v0\nv_lshl_add_u32 v6, v7, 10, v6')
    e.I('s_lshl_b32 s%d, s%d, 16\ns_lshl_b32 s%d, s%d, 8\ns_add_u32 s%d, s%d, s%d' % (T0, sCT, T1, sW, T0, T0, T1))
    e.I('v_add_u32 v%d, s%d, v6\nv_xor_b32 v7, 64, v%d' % (CV, T0, CV))
    e.I('v_add_u32 v%d, 7168, v7\nv_add_u32 v%d, 14336, v%d\nv_add_u32 v%d, 21504, v7' % (CV + 1, CV + 2, CV, CV + 3))
    frag16_addr(e, CA, 6, 7)
    for s in range(2):
        e.I('v_add_u32 v%d, s%d, v%d' % (CA + s, sMW, CA + s))
        e.I('v_add_u32 v%d, %d, v%d' % (CA4 + s, 4 * SLOT, CA + s))
    HS = CA + 2
    e.I('v_and_b32 v6, 15, v0\nv_lshlrev_b32 v6, 4, v6\nv_bfe_u32 v7, v0, 4, 1\nv_lshl_add_u32 v6, v7, 10, v6')
    e.I('v_lshrrev_b32 v7, 5, v0\nv_lshl_add_u32 v%d, v7, 8, v6' % HS)
    e.I('s_lshr_b32 s88, s%d, 1\ns_lshl_b32 s88, s88, 7\ns_lshl_b32 s89, s%d, 15\ns_add_u32 s88, s88, s89\ns_xor_b32 s89, s88, 128' % (sROT, sDTX))
    e.I(wd_lane_offsets(e, WDV, 6, 7))
    e.I('s_lshl_b32 s%d, s%d, 2\ns_sub_u32 s%d, s%d, s%d\ns_sub_u32 s%d, s%d, 1\ns_lshl_b32 s%d, s%d, 11' % (T0, sW, T0, sRB, T0, T0, T0, T5, sW))
    e.I('v_lshrrev_b32 v6, 5, v0\nv_sub_u32 v7, s%d, v6' % T0)
    e.I('v_cmp_le_i32 vcc, 0, v7\nv_cmp_le_i32 s[%d:%d], 2, v7' % (sMB, sMB + 1))
    e.I('v_lshl_add_u32 v7, v7, 9, v%d\nv_add_u32 v7, 1024, v7\nv_subrev_u32 v5, 2048, v7\nv_mov_b32 v%d, 0x%x' % (P16, EOOB, OOB))
    e.I('v_cndmask_b32 v%d, v%d, v7, vcc\nv_cndmask_b32 v%d, v%d, v5, s[%d:%d]' % (EV0, EOOB, EV1, EOOB, sMB, sMB + 1))
    e.I('v_lshl_add_u32 v7, v6, 12, v%d\nv_add_u32 v%d, %d, v7' % (P16, ERD, L_EG))
    e.I('v_lshlrev_b32 v6, 3, v6\nv_sub_u32 v%d, s%d, v6\nv_med3_i32 v%d, v%d, 0, 8' % (ECNT, sRB, EEXP, ECNT))
    e.I('v_mov_b32 v%d, 1\nv_mov_b32 v%d, %d' % (ONE, FLA, L_FL))

    pro = []
    add = lambda t: [pro.append(lambda x=x: e.I(x)) for x in t.split('\n')]

    def csq(d, a):
        add('v_mul_f32 v30, v%d, v%d\nv_mul_f32 v31, v%d, v%d\nv_fma_f32 v%d, -v%d, v%d, v30\nv_add_f32 v%d, v31, v31' %
            (a, a, a, a + 1, d, a + 1, a + 1, d + 1))

    def cmul(d, a, b):
        add('v_mul_f32 v30, v%d, v%d\nv_mul_f32 v31, v%d, v%d\nv_fma_f32 v30, -v%d, v%d, v30\nv_fma_f32 v%d, v%d, v%d, v31\nv_mov_b32 v%d, v30' %
            (a, b, a, b + 1, a + 1, b + 1, d + 1, a + 1, b, d))

    pro.append(lambda: e.wait(vm=['ep', 'par']))
    add('v_readfirstlane_b32 s%d, v19' % sNONCE)
    add('v_lshlrev_b32 v16, 16, v16\nv_lshlrev_b32 v17, 16, v17\nv_lshlrev_b32 v18, 16, v18')
    add('s_add_u32 s%d, s%d, 0x%x\ns_or_b32 s%d, s%d, 1' % (sNONCE, sNONCE, PHI, sNONCE, sNONCE))
    add('v_mul_f32 v18, 0x%x, v18\nv_exp_f32 v18, v18\nv_cvt_pk_bf16_f32 v18, v18, v18\nv_lshlrev_b32 v18, 16, v18' % LOG2E)
    add('v_mul_f32 v21, v18, v16\nv_mul_f32 v22, v18, v17')
    add('v_mul_f32 v21, 0x%x, v21\nv_exp_f32 v21, v21' % LOG2E)
    add('v_mul_f32 v22, 0.15915494, v22\nv_rndne_f32 v23, v22\nv_sub_f32 v22, v22, v23\nv_sin_f32 v23, v22\nv_cos_f32 v22, v22')
    add('v_mul_f32 v%d, v21, v23\nv_mul_f32 v%d, v21, v22' % (LI, LR))
    add('v_mul_f32 v21, v16, v16\nv_fmac_f32 v21, v17, v17\nv_rcp_f32 v21, v21\nv_add_f32 v22, -1.0, v%d\nv_add_f32 v21, v21, v21' % LR)
    add('v_mul_f32 v23, v22, v16\nv_fmac_f32 v23, v%d, v17\nv_mul_f32 v%d, v23, v21' % (LI, KAP))
    add('v_mul_f32 v23, v%d, v16\nv_fma_f32 v23, -v22, v17, v23\nv_mul_f32 v%d, v23, v21' % (LI, KAP + 1))
    csq(22, LR); csq(22, 22); csq(22, 22); csq(L16, 22)
    csq(22, L16); csq(24, 22); csq(L128, 24); csq(L256, L128); csq(L256, L256); csq(L256, L256)
    for bit, src, dst in ((1, L16, L16S), (2, 22, 22), (4, 24, 24)):
        add('v_and_b32 v26, %d, v%d\nv_cmp_ne_u32 vcc, 0, v26' % (bit, SIDX))
        add('v_cndmask_b32 v%d, 1.0, v%d, vcc\nv_cndmask_b32 v%d, 0, v%d, vcc' % (dst, src, dst + 1, src + 1))
    cmul(L16S, L16S, 22); cmul(L16S, L16S, 24)
    add('v_mul_lo_u32 v%d, v%d, s%d\nv_mov_b32 v2, s%d' % (EEXP, EEXP, sNONCE, sNONCE))

    par, pro = pro, []
    pro.append(lambda: e.wait(vm='g'))
    if cfg.glds:
        for k in range(8):
            gw, x = (44 + k if k < 4 else 124 + k), 36 + k
            add('v_lshlrev_b32 v24, 16, v%d\nv_and_b32 v25, 0xffff0000, v%d' % (gw, gw))
            add('v_lshlrev_b32 v26, 16, v%d\nv_and_b32 v27, 0xffff0000, v%d' % (x, x))
            add('v_mul_f32 v26, v26, v24\nv_mul_f32 v27, v27, v25\nv_cvt_pk_bf16_f32 v26, v26, v27')
            if k == 0:
                add('v_lshlrev_b32 v28, 16, v26\nv_and_b32 v29, 0xffff0000, v26')
            else:
                add('v_lshlrev_b32 v27, 16, v26\nv_and_b32 v26, 0xffff0000, v26\nv_add_f32 v28, v28, v27\nv_add_f32 v29, v29, v26')
        add('v_add_f32 v28, v28, v29')
        for sh in (1, 2, 4):
            add('v_add_f32_dpp v28, v28, v28 row_shr:%d row_mask:0xf bank_mask:0xf' % sh)
        for wd in (32, 16):
            add('v_mov_b32 v29, v28\nv_permlane%d_swap_b32 v28, v29\nv_add_f32 v28, v28, v29' % wd)
        add('v_cvt_pk_bf16_f32 v28, v28, v28\nv_lshlrev_b32 v28, 16, v28\nv_mul_f32 v28, 0x%x, v28\nv_exp_f32 v28, v28' % NLOG2E)
        add('v_add_f32 v28, 1.0, v28\nv_rcp_f32 v28, v28\nv_cvt_pk_bf16_f32 v28, v28, v28\nv_lshlrev_b32 v28, 16, v28')
    else:
        for k in range(4):
            add('v_lshlrev_b32 v24, 16, v%d\nv_and_b32 v25, 0xffff0000, v%d' % (44 + k, 44 + k))
            for row in range(2):
                x = 36 + 4 * row + k
                add('v_lshlrev_b32 v26, 16, v%d\nv_and_b32 v27, 0xffff0000, v%d' % (x, x))
                add('v_mul_f32 v26, v26, v24\nv_mul_f32 v27, v27, v25\nv_cvt_pk_bf16_f32 v26, v26, v27')
                add('v_lshlrev_b32 v27, 16, v26\nv_and_b32 v26, 0xffff0000, v26')
                if k == 0:
                    add('v_add_f32 v%d, v26, v27' % (28 + row))
                else:
                    add('v_add_f32 v26, v26, v27\nv_add_f32 v%d, v%d, v26' % (28 + row, 28 + row))
        for mod in ('row_shr:1 row_mask:0xf', 'row_shr:2 row_mask:0xf', 'row_shr:4 row_mask:0xf', 'row_shr:8 row_mask:0xf',
                    'row_bcast:15 row_mask:0xa', 'row_bcast:31 row_mask:0xc'):
            for row in range(2):
                add('v_add_f32_dpp v%d, v%d, v%d %s bank_mask:0xf' % (28 + row, 28 + row, 28 + row, mod))
        add('v_cvt_pk_bf16_f32 v26, v28, v29\nv_lshlrev_b32 v28, 16, v26\nv_and_b32 v29, 0xffff0000, v26')
        add('v_mul_f32 v28, 0x%x, v28\nv_mul_f32 v29, 0x%x, v29\nv_exp_f32 v28, v28\nv_exp_f32 v29, v29' % (NLOG2E, NLOG2E))
        add('v_add_f32 v28, 1.0, v28\nv_add_f32 v29, 1.0, v29\nv_rcp_f32 v28, v28\nv_rcp_f32 v29, v29')
        add('v_cvt_pk_bf16_f32 v26, v28, v29\nv_lshlrev_b32 v28, 16, v26\nv_and_b32 v29, 0xffff0000, v26')
    gate, pro = pro, par

    gdone = []

    def g_store():
        gdone.append(1)
        if cfg.glds:
            e.I('s_mov_b64 exec, 0x8080')
            e.I('buffer_store_dword v28, v%d, %s, s%d offen sc1' % (GO, srd(SWS), T6), tag='gs')
            e.I('s_mov_b64 exec, -1')
            return
        e.I('s_mov_b32 exec_lo, 0\ns_mov_b32 exec_hi, 0x80000000')
        e.I('buffer_store_dwordx2 v[28:29], off, %s, s%d sc1' % (srd(SWS), T6), tag='gs')
        e.I('s_mov_b64 exec, -1')

    nbar = [0]

    def s_bar(i):
        assert nbar[0] == i
        nbar[0] += 1
        e.I('s_barrier')
        if i in (0, 7):
            st(e, 'b%d' % i)

    def s_read(n):
        i, s = n >> 2, n & 3
        slot = s_slot(i)
        if s == 0 and not cfg.lag:
            s_bar(i)
        assert nbar[0] > i
        off = (slot & 1) * SLOT
        if cfg.glds and s == 2:
            m = 0xffff << (16 * (i & 3))
            e.I('s_mov_b32 exec_lo, 0x%x\ns_mov_b32 exec_hi, 0x%x' % (m & 0xffffffff, m >> 32))
            e.I('ds_read_b128 %s, v%d offset:%d' % (vr(36 + 4 * (i >> 2), 4), GA + (slot >> 1), off), tag='gx')
            e.I('s_mov_b64 exec, -1')
        b = RING0 + 12 * (n & 3)
        e.I('ds_read_b128 %s, v%d offset:%d' % (vr(b + 8, 4), XA + 4 * (slot >> 1) + s, off), tag=('s', n, 0))
        for part in range(2):
            e.I('ds_read_b128 %s, v%d offset:%d' % (vr(b + 4 * part, 4), BA + 4 * (slot >> 1) + s,
                                                    off + 16384 + part * 4096), tag=('s', n, part))

    def s_mm(n, part):
        e.wait(lg=('s', n, part))
        b = RING0 + 12 * (n & 3)
        mfma(e, RE + 16 * part, b + 8, b + 4 * part, n == 0)

    D = 2
    seq = []
    for n in range(32):
        seq.append(lambda n=n: (s_mm(n, 0), s_read(n + D) if n + D < 32 else None))
        seq.append(lambda n=n: s_mm(n, 1))
    st(e, '_pro')
    if cfg.lag:
        L = cfg.lag
        npar = len(pro) // max(L - 1, 1) + 1
        for i in range(L):
            s_bar(i)
            tch.at(10 + i)
            if i == 0:
                small0()
            if i >= 1:
                run(pro[(i - 1) * npar:i * npar])
        s_bar(L)
        for n in range(D):
            s_read(n)
        r2 = 2 * cfg.lagr
        for k, it in enumerate(seq):
            it()
            i = L + (k + 1) // r2
            if (k + 1) % r2 == 0 and i <= 7:
                assert (k + 1) // 2 >= 4 * (i - 3)
                s_bar(i)
    else:
        for n in range(D):
            s_read(n)
        p0 = 2 * cfg.smallpos
        run(seq[:p0])
        small0()
        run(seq[p0:p0 + 10])
        run(weave(seq[p0 + 10:56], pro) + seq[56:])
    assert nbar[0] == 8
    st(e, 's1end')
    jitter(e, cfg, 6)
    if cfg.prioA:
        e.I('s_setprio %d' % cfg.prioA)

    def items(txt):
        return [lambda t=t: e.I(t) for t in txt.split('\n')]

    def cfma(d, l, a, c):
        return items('v_fma_f32 v%d, v%d, v%d, v%d\nv_fma_f32 v%d, v%d, v%d, v%d\nv_fma_f32 v%d, -v%d, v%d, v%d\nv_fmac_f32 v%d, v%d, v%d' %
                     (d, l, a, c, d + 1, l, a + 1, c + 1, d, l + 1, a + 1, d, d + 1, l + 1, a))

    e.raw('; ---- role A: local scan end states')
    prev = (RE, IM)
    for r in range(1, 16):
        cur = (20 + 2 * (r & 1), 21 + 2 * (r & 1))
        e.I('v_fma_f32 v%d, v%d, v%d, v%d' % (cur[0], LR, prev[0], RE + r))
        e.I('v_fma_f32 v%d, v%d, v%d, v%d' % (cur[1], LR, prev[1], IM + r))
        e.I('v_fma_f32 v%d, -v%d, v%d, v%d' % (cur[0], LI, prev[1], cur[0]))
        e.I('v_fmac_f32 v%d, v%d, v%d' % (cur[1], LI, prev[0]))
        prev = cur
    e.I('ds_write_b64 v%d, %s' % (XW, vr(prev[0], 2)), tag='ex')

    def c_reg(u, s2, dq):
        return 128 + 32 * u + 16 * s2 + 4 * dq

    CBUF = cfg.cbuf
    CPREV = {i: max(k for k in range(i) if CBUF[k] == CBUF[i]) for i in range(8) if CBUF[i] in CBUF[:i]}
    cdone = set()
    hdone = []

    def c_read(i):
        if i in cdone:
            return
        cdone.add(i)
        assert gdone or not cfg.glds
        assert i < 4 or hdone
        e.wait(vm=('c', i))
        for s in range(4):
            a_, off = (CA4 + (s >> 1), 0) if CBUF[i] == 4 else (CA + (s >> 1), CBUF[i] * SLOT)
            e.I('ds_read_b128 %s, v%d offset:%d' % (vr(c_reg(i >> 1, s >> 1, 2 * (i & 1) + (s & 1)), 4), a_, off + (s & 1) * 2048), tag=('cr', i))

    def c_loads(i):
        u, dt = i >> 1, i & 1
        its = []
        for q in range(4):
            def f(q=q):
                if q == 0:
                    if i in CPREV:
                        c_read(CPREV[i])
                        e.wait(lg=('cr', CPREV[i]))
                    elif CBUF[i] != 4 and (6 + CBUF[i] > cfg.JL or 4 + CBUF[i] >= 8 - cfg.NT):
                        assert kcur[0] >= cfg.JL
                        cnt_spin(e, 'L_cb%d' % i, FLA, 34, C_CONS + 28)
                    e.I('s_xor_b32 s%d, s%d, %d' % (sTD, 88 + (u >> 1), dt * 32768))
                set_m0(e, sMW, CBUF[i] * SLOT)
                e.I('buffer_load_dwordx4 v%d, %s, s%d offen offset:%d %slds' % ((CV + q, srd(SC2 if u & 1 else SC1), sTD, 1024 * q) + (ntf('c', i),)), tag=('c', i))
                if q == 3:
                    st(e, '_c%d' % i)
                if q == 3 and i >= 2:
                    c_read(i - 2)
            its.append(f)
        return its

    def d_loads(n):
        sl, pos = RING[n]
        its = []
        for q in range(2):
            def f(q=q):
                set_m0(e, sMW, sl * SLOT + pos * 2048)
                if q == 0 and n:
                    wd_next(e, n, sDC, sDB, sDE)
                e.I('buffer_load_dwordx4 v%d, %s, s%d offen offset:%d %slds' % ((WDV + q, srd(SWD), sDC, 1024 * q) + (ntf('d', n),)), tag='wd')
            its.append(f)
        return its

    wl = {j: dma_W(e, WV, SWA, j) for j in range(2, 8)}
    planned = set()

    def e_loads():
        its = []
        for q in range(2):
            def f(q=q):
                set_m0(e, T5, L_EG)
                e.I('buffer_load_dwordx4 v%d, %s, s%d offen offset:%d sc1 lds' % (EV0 + q, srd(SWS), sEL, 1024 * q), tag='eg')
            its.append(f)
        return its

    def expand(toks, k):
        r = []
        for t in toks.split(','):
            if not t:
                continue
            n = int(t[1])
            planned.add(t)
            if t[0] == 'W':
                assert n < 4 or k >= n - 2 or (k == n - 3 and k in cfg.drain)
                r += wl[n][:3] if t[2:] == 'a' else wl[n][3:] if t[2:] == 'b' else wl[n]
            elif t[0] == 'C':
                assert CBUF[n] == 4 or k >= min(6 + CBUF[n], cfg.JL)
                assert k >= 2 or cfg.w0pos is None
                r += c_loads(n)
            elif t[0] == 'D':
                r += d_loads(n)
            elif t[0] == 'S':
                r.append(lambda n=n: (hq[n](), hsent.add(n)))
            elif t[0] == 'G':
                r += small1
            elif t[0] == 'E':
                r += e_loads()
            elif t[0] == 'T':
                r.append(lambda n=n: tch.at(n))
        return r

    def bar(k, extra=()):
        kk = 7 if k == cfg.JL else k
        assert kk < 2 or 'W%d' % kk in planned or 'W%db' % kk in planned or (kk == 2 and cfg.w0pos is not None)
        e.wait(vm=[('st', 8 + kk)] + list(extra))
        st(e, '_a%d' % k)
        e.I('s_barrier')
        st(e, '_d%d' % k)

    sc = []
    for r in range(16):
        sc += items('v_mul_f32 v4, v%d, v%d\nv_mul_f32 v5, v%d, v%d\nv_fma_f32 v%d, v%d, v%d, -v4\nv_fma_f32 v%d, v%d, v%d, v5' %
                    (KAP + 1, IM + r, KAP + 1, RE + r, RE + r, KAP, RE + r, IM + r, KAP, IM + r))
    if cfg.pksc:
        kp = vr(KAP, 2)
        for r in range(0, 16, 4):
            for o in (0, 2):
                e.I('v_pk_mul_f32 %s, %s, %s op_sel:[1,0] op_sel_hi:[1,1]' % (vr(4 + 2 * o, 2), kp, vr(IM + r + o, 2)))
                e.I('v_pk_mul_f32 %s, %s, %s op_sel:[1,0] op_sel_hi:[1,1]' % (vr(6 + 2 * o, 2), kp, vr(RE + r + o, 2)))
            for o in (0, 2):
                e.I('v_pk_fma_f32 %s, %s, %s, %s op_sel_hi:[0,1,1] neg_lo:[0,0,1] neg_hi:[0,0,1]' % (vr(RE + r + o, 2), kp, vr(RE + r + o, 2), vr(4 + 2 * o, 2)))
                e.I('v_pk_fma_f32 %s, %s, %s, %s op_sel_hi:[0,1,1]' % (vr(IM + r + o, 2), kp, vr(IM + r + o, 2), vr(6 + 2 * o, 2)))
        late = []
    else:
        run(sc[:cfg.early])
        late = sc[cfg.early:]
    e.wait(lg='all')
    bar(0)
    work = []
    for s in range(8):
        e.I('ds_read_b64 %s, v%d offset:%d' % (vr(4 + 2 * s, 2), XR, 256 * s), tag=('e', s))
    pf = []
    for s in range(1, 8):
        pf.append(lambda s=s: e.wait(lg=('e', s)))
        pf += cfma(4 + 2 * s, L16, 2 + 2 * s, 4 + 2 * s)
    segs = [sg.split('|') for sg in cfg.prog.split(';')]
    q0 = expand(segs[0][0], 0)
    run(weave(q0[:cfg.pren], pf))
    e.I('v_mov_b32 v20, s%d\nv_mov_b32 v21, s%d' % (sNONCE, sNONCE))
    e.I('s_mov_b32 exec_hi, 0')
    e.I('buffer_store_dwordx4 v[18:21], v%d, %s, s%d offen sc1' % (P16, srd(SWS), sES), tag='es')
    e.I('s_mov_b32 exec_hi, -1')
    st(e, 'epub')
    jitter(e, cfg, 7)
    run(q0[cfg.pren:])
    gate.append(g_store)
    sel = items('v_mov_b32 v%d, 0\nv_mov_b32 v%d, 0' % (PP, PP + 1))
    for s in range(1, 8):
        sel.append(lambda s=s: e.I('v_cmp_eq_u32 vcc, %d, v%d\nv_cndmask_b32 v%d, v%d, v%d, vcc\nv_cndmask_b32 v%d, v%d, v%d, vcc' %
                                   (s, SIDX, PP, PP, 2 + 2 * s, PP + 1, PP + 1, 3 + 2 * s)))
    EG = 224

    def e_check():
        e.I('v_add3_u32 v4, v%d, v%d, v%d\nv_add3_u32 v5, v%d, v%d, v%d' % tuple(EG + 4 * k + 2 for k in range(6)))
        e.I('v_add3_u32 v4, v4, v%d, v%d\nv_add_u32 v4, v4, v5' % (EG + 26, EG + 30))
        e.I('v_cmp_ne_u32 vcc, v4, v%d' % EEXP)

    def e_verify():
        e.wait(lg='eg')
        e_check()
        e.I('s_cbranch_vccnz L_pollE')
        e.label('L_pollE_out')
        st(e, 'egot')
        with e.cold_block():
            e.label('L_pollE')
            e.I('s_mov_b32 s%d, 0' % sCNT)
            e.label('L_pollE_l')
            for k in range(8):
                e.I('v_subrev_u32 v4, %d, v%d\nv_cmp_le_i32 vcc, 2, v4\nv_lshl_add_u32 v4, v4, 9, v%d\nv_cndmask_b32 v4, v%d, v4, vcc' % (k - 1, ECNT, P16, EOOB))
                e.I('buffer_load_dwordx4 %s, v4, %s, s%d offen sc1' % (vr(EG + 4 * k, 4), srd(SWS), sEL))
            e.I('s_add_u32 s%d, s%d, 1' % (sCNT, sCNT))
            e.I('s_cmp_gt_u32 s%d, %d' % (sCNT, SPIN_MAX))
            e.wait(vm='all')
            e.I('s_cbranch_scc1 L_pollE_out')
            e_check()
            e.I('s_cbranch_vccnz L_pollE_l')
            e.I('s_branch L_pollE_out')

    def second_pass():
        p2 = []
        p2.append(lambda: [e.I('ds_read_b128 %s, v%d offset:%d' % (vr(EG + 4 * k, 4), ERD, 512 * k), tag='eg') for k in range(8)])
        p2.append(e_verify)
        for k in range(6, -1, -1):
            p2 += cfma(EG + 4 * k, L128, EG + 4 * k + 4, EG + 4 * k)
        p2 += items('v_mov_b32 v4, v%d\nv_mov_b32 v5, v%d\nv_permlane32_swap_b32 v4, v%d\nv_permlane32_swap_b32 v5, v%d' % (EG, EG + 1, EG, EG + 1))
        p2 += cfma(4, L256, EG, 4)
        p2 += cfma(PP, L16S, 4, PP)
        p2 += items('v_mul_f32 v6, v%d, v%d\nv_mul_f32 v7, v%d, v%d' % (KAP, PP, KAP, PP + 1))
        p2 += items('v_fma_f32 v6, -v%d, v%d, v6\nv_fmac_f32 v7, v%d, v%d' % (KAP + 1, PP + 1, KAP + 1, PP))
        prev = (6, 7)
        for r in range(16):
            p2 += items('v_fmac_f32 v%d, v%d, v%d\nv_fmac_f32 v%d, v%d, v%d\nv_fma_f32 v%d, -v%d, v%d, v%d\nv_fmac_f32 v%d, v%d, v%d' %
                        (RE + r, LR, prev[0], IM + r, LR, prev[1], RE + r, LI, prev[1], RE + r, IM + r, LI, prev[0]))
            prev = (RE + r, IM + r)
        return p2

    def store_h(loads):
        for part in range(2):
            for k in range(8):
                sg_ = '-' if part else ''
                e.I('v_cvt_pk_bf16_f32 v%d, %sv%d, %sv%d' % (8 + 8 * part + k, sg_, RE + 16 * part + 2 * k, sg_, RE + 16 * part + 2 * k + 1))
            for m in range(2):
                mfma(e, RE + 16 * part, 8 + 8 * part + 4 * m, SEL + 4 * m, m == 0)
        hdone.append(1)
        run(loads)
        e.I('s_add_u32 s%d, s%d, 4096' % (T0, sHD))
        for part in range(2):
            for m in range(2):
                o = 8 + 8 * part + 4 * m
                for k in range(4):
                    e.I('v_cvt_pk_bf16_f32 v%d, v%d, v%d' % (o + k, RE + 16 * part + 8 * m + 2 * k, RE + 16 * part + 8 * m + 2 * k + 1))
                hq.append(lambda o=o, part=part, m=m: e.I('buffer_store_dwordx4 %s, v%d, %s, s%d offen offset:%d sc1' %
                                                         (vr(o, 4), HS, srd(SWS), T0 if part else sHD, 512 * m), tag='hs'))
                if len(hq) <= cfg.hnow:
                    hq[-1]()
                    hsent.add(len(hq) - 1)

    hq = []
    hsent = set()
    kcur = [0]
    p2 = second_pass()
    for k, (toks, work) in enumerate(segs):
        if k == 0:
            continue
        if k <= cfg.JL:
            bar(k, ['eg'] if work[:1] == 'P' else [])
        kcur[0] = k
        q = expand(toks, k)
        if work[:3] == 'sel' or work[:1] == 'g':
            fill = []
            for wk in work.split('+'):
                if wk == 'sel':
                    fill += sel + ([] if 'late' in cfg.prog else late)
                else:
                    n = len(gate) if wk == 'g' else int(wk[1:])
                    fill += gate[:n]
                    del gate[:n]
            run(weave(q, fill) if not cfg.lfirst else q[:cfg.lfirst] + weave(q[cfg.lfirst:] or [lambda: None], fill))
        elif work == 'late':
            run(weave(q, late))
        elif work[:1] == 'P':
            assert k <= cfg.JL or work != 'P0'
            part = p2 if work == 'P' else p2[:cfg.p2cut] if work == 'P0' else p2[cfg.p2cut:]
            run(part[:1] + (weave(q, part[1:]) if q else part[1:]))
            if work == 'P1H':
                st(e, 'p2done')
                store_h([])
        elif work[:1] == 'H':
            st(e, 'p2done')
            store_h(q)
            run(expand(work[2:], k))
        elif work == 'F':
            run(hq[n] for n in range(4) if n not in hsent)
            st(e, 'hst')
            jitter(e, cfg, 8)
            run(q)
            assert gdone and len(hq) == 4
            e.wait(vm=['hs', 'gs'])
            flag_store(e, 2, sHF)
            st(e, 'hflag')
            jitter(e, cfg, 9)
        else:
            run(q)
    assert len(segs) > cfg.JL
    HV, PW = 6, 8
    rest = [i for i in range(8) if 'C%d' % i not in planned]
    run(c_loads(rest.pop(0)))
    e.I('s_mul_i32 s%d, s%d, %d\ns_mul_i32 s%d, s%d, %d\ns_add_u32 s%d, s%d, s%d\ns_add_u32 s%d, s%d, 0x%x' %
        (T0, sRT, 2 * HT_, T1, sW, HW_, T0, T0, T1, T0, T0, H_OFF))
    e.I('v_add_u32 v%d, s%d, v1\nv_add_u32 v%d, %d, v%d' % (HV, T0, HV + 1, HT_, HV))
    for u in range(4):
        e.I('s_xor_b32 s%d, s%d, %d\ns_lshl_b32 s%d, s%d, 12' % (93 + u, sROT, u, 93 + u, 93 + u))
    part_write_addr(e, PW, 12, 13, 16384, 4096, SPART)
    mk_srd(e, SOUT, P_OUT, 2048 * 2048)
    e.I('s_lshl_b32 s%d, s%d, 2\ns_add_u32 s%d, s%d, s%d\ns_mul_i32 s%d, s%d, %d\ns_add_u32 s%d, s%d, 0x%x' %
        (T0, sRT, T0, T0, sW, T0, T0, 8 * FS, T0, T0, HF_OFF))
    e.I('v_mul_u32_u24 v12, %d, v0\nv_mov_b32 v5, v2' % FS)

    def h_reg(k):
        return 16 + 4 * (k % 12)

    def h_load(k):
        n2, t4 = k >> 2, k & 3
        e.I('buffer_load_dwordx4 %s, v%d, %s, s%d offen offset:%d sc1' % (vr(h_reg(k), 4), HV + (t4 >> 1), srd(SWS), 93 + (n2 >> 1),
                                                                            2048 * (n2 & 1) + 1024 * (t4 & 1)), tag=('h', k))

    def c_finish():
        for i in range(8):
            c_read(i)
        e.wait(vm='wd')
        cnt_add(e, FLA, ONE, C_DONEA)
        st(e, 'cgot')

    while rest and rest[0] < cfg.hlook:
        run(c_loads(rest.pop(0)))
    if cfg.hlook > 8:
        c_finish()
    poll(e, 'L_pollH', 13, 12, T0, '0xff',
         lambda: ([run(c_loads(i)) for i in rest], c_finish() if cfg.hearly == 0 and cfg.hlook <= 8 else None))
    st(e, 'hrdy')
    jitter(e, cfg, 10)
    XO, RA, GV, RF = 2, 3, 4, 14
    ROWS = (0, 8, 32, 40)
    XL, DL, GL, XD, PW1 = 128, 136, 138, 144, 10
    fin = items('s_lshl_b32 s%d, s%d, 6\ns_add_u32 s%d, s%d, s%d' % (T0, sRT, T0, T0, sW))
    fin += items('v_lshrrev_b32 v12, 4, v0\nv_lshrrev_b32 v13, 2, v0\nv_and_b32 v13, 2, v13\nv_xor_b32 v12, v12, v13')
    fin += items('v_and_b32 v15, 1, v12\nv_lshl_add_u32 v13, v15, 4, s%d\nv_lshrrev_b32 v3, 1, v12\nv_lshl_add_u32 v13, v3, 2, v13' % T0)
    fin += items('v_and_b32 v14, 15, v0\ns_lshl_b32 s%d, s%d, 7' % (T1, sCT))
    fin += items('v_lshl_add_u32 v1, v14, 3, s%d' % T1)
    fin += items('v_lshl_add_u32 v%d, v13, 10, v1' % XO)
    fin += items('v_lshlrev_b32 v%d, 2, v13\nv_add_u32 v%d, 0x%x, v%d' % (GV, GV, G_OFF, GV))
    fin += items('s_lshl_b32 s%d, s%d, 8\ns_add_u32 s%d, s%d, %d' % (T2, sW, T1, T2, SPART))
    fin += items('v_lshl_add_u32 v3, v3, 10, s%d\nv_lshl_add_u32 v3, v15, 14, v3' % T1)
    fin += items('v_lshl_or_b32 v13, v15, 2, s%d\nv_xor_b32 v13, v13, v14\nv_lshl_add_u32 v%d, v13, 4, v3' % (sW, RA))
    fin += items('v_lshl_add_u32 v12, v12, 6, s%d\nv_lshrrev_b32 v13, 2, v14\nv_lshl_add_u32 v12, v13, 10, v12' % T2)
    fin += items('v_and_b32 v13, 3, v0\nv_lshl_add_u32 v%d, v13, 4, v12\nv_add_u32 v%d, %d, v%d' % (RF, RF + 1, 2 * SLOT, RF))
    fin += items('s_lshl_b32 s%d, s%d, 7' % (T0, sDTX))
    for a in range(2):
        fin += items('v_xor_b32 v%d, s%d, v%d\nv_xor_b32 v%d, 0x80, v%d' % (PW + a, T0, PW + a, PW1 + a, PW + a))
    if cfg.posX < 0:
        run(fin)
    for k in range(cfg.NVA):
        if cfg.posX < 0 and k == -1 - cfg.posX:
            assert k >= cfg.hearly
            e.wait(lg='all')
            e.I('s_barrier')
        if k == cfg.hearly // 2 and k:
            c_read(6)
        if k == cfg.hearly and k:
            c_finish()
        h_load(k)
    e.wait(lg='all')
    if cfg.posX >= 0:
        run(fin)

    def fx_loads():
        e.I('global_load_dwordx2 %s, v1, s[%d:%d]' % (vr(DL, 2), P_DSK, P_DSK + 1), tag='fx')
        for n in range(4):
            e.I('s_mov_b32 s%d, %d' % (T2, 1024 * ROWS[n]))
            e.I('buffer_load_dwordx2 %s, v%d, %s, s%d offen' % (vr(XL + 2 * n, 2), XO, srd(SX), T2), tag='fx')

    def g_loads():
        for n in range(4):
            e.I('buffer_load_dword v%d, v%d, %s, 0 offen offset:%d sc1' % (GL + n, GV, srd(SWS), 4 * ROWS[n]), tag='fg')

    DU = 160
    xd = [lambda: e.wait(vm='fx')]
    xd += items('v_lshlrev_b32 v%d, 16, v%d\nv_and_b32 v%d, 0xffff0000, v%d\nv_lshlrev_b32 v%d, 16, v%d\nv_and_b32 v%d, 0xffff0000, v%d' %
                (DU, DL, DU + 1, DL, DU + 2, DL + 1, DU + 3, DL + 1))
    for n in range(4):
        for k in range(2):
            x = XL + 2 * n + k
            xd += items('v_lshlrev_b32 v12, 16, v%d\nv_and_b32 v13, 0xffff0000, v%d' % (x, x))
            xd += items('v_mul_f32 v12, v12, v%d\nv_mul_f32 v13, v13, v%d' % (DU + 2 * k, DU + 1 + 2 * k))
            xd += items('v_cvt_pk_bf16_f32 v13, v12, v13')
            xd += items('v_lshlrev_b32 v%d, 16, v13\nv_and_b32 v%d, 0xffff0000, v13' % (XD + 4 * n + 2 * k, XD + 4 * n + 2 * k + 1))
    xd += items('v_mov_b32 v12, %d\nv_mov_b32 v13, 1\nv_lshlrev_b32 v%d, 1, v%d' % (L_P2, XO, XO))

    def s2_step(k):
        n2, t4 = k >> 2, k & 3
        if k == 2 * cfg.posX:
            e.I('s_barrier')
        e.wait(vm=('h', k))
        for dq in range(4):
            d = 3 - dq if cfg.snake and t4 & 1 else dq
            mfma16(e, acc2(t4, d), c_reg(n2 >> 1, n2 & 1, d), h_reg(k), n2 == 0)
            if dq == (0 if cfg.NVA < 12 else 3) and k + cfg.NVA < 32:
                h_load(k + cfg.NVA)
        if k == 8:
            fx_loads()
        if k == max(8, 2 * cfg.posX):
            g_loads()
    steps = [lambda k=k: s2_step(k) for k in range(32)]
    if cfg.xdpos < 32:
        run(steps[:cfg.xdpos] + weave(steps[cfg.xdpos:], xd))
    else:
        run(steps + xd[-3:])
    st(e, 's2end')
    jitter(e, cfg, 11)
    if cfg.posX == 16:
        e.I('s_barrier')
        g_loads()
    st(e, '_X')
    run(part_write(e, PW, 16384, 0, PW1) + part_write(e, PW, 16384, 1, PW1))
    cnt_add(e, 12, 13, 0)
    if cfg.xdpos >= 32:
        run(xd[:-1])
    OM = 164
    e.wait(vm='fg')
    for n in range(4):
        e.I('v_sub_f32 v%d, 1.0, v%d' % (OM + n, GL + n))
        e.I('v_cvt_pk_bf16_f32 v%d, v%d, v%d\nv_lshlrev_b32 v%d, 16, v%d' % (OM + n, OM + n, OM + n, OM + n, OM + n))
    for n in range(4):
        e.I('s_mov_b32 s%d, %d' % (T2 + n, 2048 * ROWS[n]))
    e.I('s_lshl_b32 s%d, s%d, 5\ns_add_u32 s%d, s%d, s%d\ns_lshl_b32 s%d, s%d, 8\ns_add_u32 s%d, s%d, s%d' %
        (T0, sCT, T0, T0, sRT, T1, sW, T0, T0, T1))
    e.I('s_cmp_eq_u32 s%d, 31\ns_cselect_b32 s%d, 0x%x, s%d' % (T0, T0, EPOCH_OFF, SWS + 2))
    flag_store(e, 5, T0)
    cnt_spin(e, 'L_spinM', 12, 16, 0)
    e.wait(lg='all')
    for n in range(4):
        for w in range(4):
            e.I('ds_read_b128 %s, v%d offset:%d' % (vr(64 + 16 * n + 4 * w, 4), RA, w * 4096 + (n & 1) * 2048 + (n >> 1) * 32768), tag=('r', n))
    BS = XD
    for n in range(4):
        e.wait(lg=('r', n))
        b = 64 + 16 * n
        for k in range(4):
            e.I('v_add_f32 v%d, v%d, v%d\nv_add_f32 v%d, v%d, v%d' % (b + k, b + k, b + 4 + k, b + 8 + k, b + 8 + k, b + 12 + k))
        for k in range(4):
            e.I('v_add_f32 v%d, v%d, v%d' % (b + k, b + k, b + 8 + k))
        for k in range(4):
            e.I('v_add_f32 v%d, v%d, v%d' % (b + k, b + k, XD + 4 * n + k))
        for k in range(4):
            e.I('v_mul_f32 v%d, v%d, v%d' % (BS + 4 * n + k, GL + n, b + k))
    st(e, 'pre')
    jitter(e, cfg, 12)
    for grp in cfg.zg:
        e.I('s_barrier')
        st(e, 'Z' if 3 in grp else '_Z%d' % grp[0])
        for n in grp:
            for w in range(4):
                e.I('ds_read_b128 %s, v%d offset:%d' % (vr(64 + 16 * n + 4 * w, 4), RF + (n >> 1), w * 6144 + (n & 1) * SLOT), tag=('r', n, w >> 1))
        for n in grp:
            b = 64 + 16 * n
            for o, p in ((0, 4), (8, 12), (0, 8)):
                e.wait(lg=('r', n, o >> 3))
                if 3 in grp:
                    for k in (0, 2):
                        e.I('v_pk_add_f32 %s, %s, %s' % (vr(b + o + k, 2), vr(b + o + k, 2), vr(b + p + k, 2)))
                else:
                    for k in range(4):
                        e.I('v_add_f32 v%d, v%d, v%d' % (b + o + k, b + o + k, b + p + k))
            if cfg.mimic2:
                for rnd in range(2):
                    e.I('v_cvt_pk_bf16_f32 v%d, v%d, v%d\nv_cvt_pk_bf16_f32 v%d, v%d, v%d' % (b + 1, b, b + 1, b + 3, b + 2, b + 3))
                    for k in (0, 2):
                        e.I('v_lshlrev_b32 v%d, 16, v%d\nv_and_b32 v%d, 0xffff0000, v%d' % (b + k, b + k + 1, b + k + 1, b + k + 1))
                    if rnd == 0:
                        for k in range(4):
                            e.I('v_mul_f32 v%d, v%d, v%d' % (b + k, OM + n, b + k))
                for k in (0, 2):
                    e.I('v_pk_add_f32 %s, %s, %s' % (vr(b + k, 2), vr(b + k, 2), vr(BS + 4 * n + k, 2)))
            else:
                for k in range(4):
                    e.I('v_fma_f32 v%d, v%d, v%d, v%d' % (b + k, OM + n, b + k, BS + 4 * n + k))
            e.I('buffer_store_dwordx4 %s, v%d, %s, s%d offen %s' % (vr(b, 4), XO, srd(SOUT), T2 + n, cfg.outflags if isinstance(cfg.outflags, str) else cfg.outflags[n]), tag='out')
    if st.on:
        e.wait(vm='all')
    st(e, 'end')
    st.flush(e)


HEADER = open(os.path.join(os.path.dirname(os.path.abspath(__file__)), '..', 'cdna_kernels', BASE + '.s.ref')).read()


DOC = """;
;      local end states -> workgroup end state published in d_ws -> carry-in from ALL earlier row blocks ->
;      second pass; h is transposed with two selection MFMAs.  h, act (bf16, fragment order) and the gate go to d_ws.
; Hand-offs: write-through stores, counter wait, then a flag word; readers poll with L1-bypassing loads.
"""


def generate(cfg):
    SLEEP[:] = cfg.sleep
    FL.clear()
    FL.update(cfg.nt)
    W_SLOT[0] = 0 if cfg.w0pos is None else 4
    S_SHIFT[0] = -1 if cfg.lag else 0 if cfg.w0pos is None else 1
    assert cfg.w0pos is None
    hdr = []
    for line in HEADER.split('\n'):
        if not line.startswith(';'):
            break
        if '@launch' in line:
            line = '; @launch grid=(256,1,1) block=(512,1,1) lds=%d' % LDS_BYTES
            if cfg.pre_kernel is not None:
                line = '; @launch kernel=%s grid=(256,1,1) block=(512,1,1) lds=%d' % (NAME, LDS_BYTES)
                if cfg.pre_kernel:
                    line = '; @launch kernel=warm_kernel grid=(256,1,1) block=(256,1,1) lds=0\n' + line
        hdr.append(line)
    stB = Stamps(cfg, [38, 6, 8, 14, 16, 18, 20, 22, 30, 32, 34, 4, 10, 12, 24, 26], 'B')
    stA = Stamps(cfg, [38, 10, 12, 22, 34, 24, 26, 6, 8, 18, 28, 14, 16, 30, 36, 4], 'A')
    e = Em()
    gen_entry(e, cfg, stB)
    stA.names = list(stB.names)
    eA = Em()
    eA.hist = list(e.hist)
    eA.vm = list(e.vm)
    gen_B(e, cfg, stB)
    gen_A(eA, cfg, stA)
    txt = '\n'.join(hdr) + '\n' + DOC
    txt += '.amdgcn_target "amdgcn-amd-amdhsa--gfx950"\n.text\n.globl %s\n.p2align 8\n.type %s,@function\n%s:\n' % (NAME, NAME, NAME)
    txt += e.text() + '\n' + '\n'.join(e.cold) + '\n.p2align 6\nL_A:\n' + eA.text() + '\n    s_endpgm\n' + '\n'.join(eA.cold) + '\nL_end:\n    s_endpgm\n'
    if cfg.pre_kernel:
        w = Em()
        w.I('s_cmp_ge_u32 s2, 256\ns_cbranch_scc1 L_wend')
        if cfg.pre_kernel != 'empty':
            w.I('s_load_dwordx16 s[4:19], s[0:1], 0\ns_load_dwordx16 s[20:35], s[0:1], 64')
            w.I('s_lshl_b32 s3, s2, 8\nv_add_u32 v0, s3, v0\nv_lshlrev_b32 v1, 7, v0')
            w.wait_smem()
            base = 0
            for p, n in ((P_X, 2048 * 1024), (P_BRE, 524288), (P_BIM, 524288), (P_WG, 1409024), (P_WU, 1409024), (P_CRE, 524288), (P_CIM, 524288), (P_WD, 1409024)):
                mk_srd(w, 40, p, n)
                w.I('v_subrev_u32 v2, %d, v1\nv_cmp_gt_u32 vcc, %d, v2\ns_and_saveexec_b64 s[44:45], vcc\ns_cbranch_execz L_w%d' % (base, n, p))
                w.I('buffer_load_dword v3, v2, s[40:43], 0 offen')
                w.label('L_w%d' % p)
                w.I('s_mov_b64 exec, s[44:45]')
                base += n
            if cfg.pre_kernel == 'wait':
                w.I('s_waitcnt vmcnt(0)')
        txt += '.globl warm_kernel\n.p2align 8\n.type warm_kernel,@function\nwarm_kernel:\n' + w.text() + '\nL_wend:\n    s_endpgm\n'
    txt += '''.section .rodata,"a"
.p2align 6
.amdhsa_kernel %s
  .amdhsa_next_free_vgpr 256
  .amdhsa_next_free_sgpr 102
  .amdhsa_accum_offset 256
  .amdhsa_group_segment_fixed_size 0
  .amdhsa_kernarg_size 136
  .amdhsa_user_sgpr_count 2
  .amdhsa_user_sgpr_kernarg_segment_ptr 1
  .amdhsa_system_sgpr_workgroup_id_x 1
  .amdhsa_float_denorm_mode_32 3
.end_amdhsa_kernel
''' % NAME
    if cfg.pre_kernel:
        txt += '''.p2align 6
.amdhsa_kernel warm_kernel
  .amdhsa_next_free_vgpr 8
  .amdhsa_next_free_sgpr 48
  .amdhsa_accum_offset 8
  .amdhsa_group_segment_fixed_size 0
  .amdhsa_kernarg_size 136
  .amdhsa_user_sgpr_count 2
  .amdhsa_user_sgpr_kernarg_segment_ptr 1
  .amdhsa_system_sgpr_workgroup_id_x 1
.end_amdhsa_kernel
'''
    info = dict(A=eA.count, B=e.count, nopsA=eA.nops, nopsB=e.nops, stampsA=stA.names, stampsB=stB.names)
    return txt, info


def cfg_from(args):
    cfg = Cfg()
    for a in args:
        k, v = a.split('=')
        setattr(cfg, k, eval(v))
    return cfg


if __name__ == '__main__':
    out = sys.argv[1]
    cfg = cfg_from(sys.argv[2:])
    txt, info = generate(cfg)
    open(out, 'w').write(txt)
    print(info)
```

```python
import sys, os
sys.path.insert(0, os.path.dirname(os.path.abspath(__file__)))
from em import Em, weave

BASE = 'gated_mix__ssm_conv_s5__swiglu_ffn__prompt'
NAME = BASE + '_kernel'

ACT_OFF = 0
H_OFF = 0x600000
E_OFF = 0xB00000
G_OFF = 0xB20000
HF_OFF = 0xB24000
AF_OFF = 0xB30000
EPOCH_OFF = 0xB48000
STAMP_OFF = 0xB50000
WS_SIZE = 0xB80000
OOB = 0x2000000
FS = 32
PHI = 0x9E3779B8

SLOT = 24576
WIN = 49152
SCR = 147456
SPART = 98304
L_E, L_FL, L_EG = SCR, SCR + 4096, SCR + 8192
L_P2 = 3 * SLOT + 4096
LDS_BYTES = 163840

P_X, P_LRE, P_LIM, P_BRE, P_BIM, P_CRE, P_CIM, P_LDT = 4, 6, 8, 10, 12, 14, 16, 18
P_DSK, P_BX, P_WG, P_WU, P_WD, P_GW, P_OUT, P_DBG, P_WS = 20, 22, 24, 26, 28, 30, 32, 34, 36
SX, SWS = 40, 44
SBM, SW, SWD = 48, 52, 56
SC1, SC2, SOUT, SCODE = 48, 52, 56, 60
SWA = 60
sWAVE, sW, sRB, sCB, sK0, sRT, sCT, sNONCE, sSG0 = 64, 65, 66, 67, 68, 69, 70, 71, 72
T0, T1, T2, T3, T4, T5, T6 = 73, 74, 75, 76, 77, 78, 79
sNL2E = 80
sMA, sMB = 82, 84
sTBL = 86
sCNT = 97
sTS, sTW, sTD = 98, 99, 100
sMX, sMBm = 60, 61
sMW = 101
SPIN_MAX = 200000

SLEEP = [0, 0]
FL = {}


def ntf(key, stage):
    return 'nt ' if stage < FL.get(key, 0) else ''


LOG2E = 0x3fb8aa3b
NLOG2E = 0xbfb8aa3b


class Cfg:
    mimic = False
    mimic2 = False
    stamps = False
    rot1 = (2, 4, 2, 1)
    rot2 = 7
    rotF = 0
    rotS = None
    map2 = 84
    prewarm = 'v'
    pwn = 4
    slim = True
    blate = True
    lfirst = 0
    glds = True
    xloc = True
    defer = True
    apre = True
    NT = 2
    early = 200
    w0pos = None
    s1a = 2
    smallpos = 2
    pre_kernel = None
    lag = 0
    lagr = 4
    JL = 7
    prog = 'W2,G0|;W3,C0|sel;W4|g53;E0,W5,D0,D1,D2,D3|g;W6|P0;W7|P1H;|;C1,C2,C3|F'
    p2cut = 72
    cbuf = (4, 0, 1, 4, 0, 1, 4, 0)
    tplan = ()
    zfill = True
    prioB = 0
    LA = 4
    posX = 10
    pren = 4
    asplit = True
    prioT = 1
    prioS = 0
    prioD = (1, 0)
    prioF2n = -1
    drain = ()
    hpad = (0, 0)
    hlook = 9
    hearly = 0
    hnow = 4
    sleep = (1, 1)
    skip = ''
    flagpos = (0, 0, 5)
    alook = 18
    abet = 3
    posXB = -17
    fine = True
    snake = True
    nt = {}
    pksc = True
    jitter = 0
    prioF2 = 1
    NVA = 11
    NV0 = (12, 0)
    xdpos = 32
    NV = 12
    TL = 4
    pull0 = 3
    zg = ((0, 1), (2, 3))
    zlag = 3
    outflags = 'sc1'
    selA = None
    selB = None
    prioA = 0
    amp = None


def srd(r):
    return 's[%d:%d]' % (r, r + 3)


def vr(a, n):
    return 'v[%d:%d]' % (a, a + n - 1) if n > 1 else 'v%d' % a


def mk_srd(e, r, p, nbytes):
    e.I('s_mov_b32 s%d, s%d\ns_mov_b32 s%d, s%d\ns_mov_b32 s%d, 0x%x\ns_mov_b32 s%d, 0x20000' %
        (r, p, r + 1, p + 1, r + 2, nbytes, r + 3))


def mk_srd_sel(e, r, p1, p0, nbytes):
    e.I('s_cselect_b32 s%d, s%d, s%d\ns_cselect_b32 s%d, s%d, s%d\ns_mov_b32 s%d, 0x%x\ns_mov_b32 s%d, 0x20000' %
        (r, p1, p0, r + 1, p1 + 1, p0 + 1, r + 2, nbytes, r + 3))


def mfma(e, d, a, b, first):
    e.I('v_mfma_f32_32x32x16_bf16 %s, %s, %s, %s' % (vr(d, 16), vr(a, 4), vr(b, 4), '0' if first else vr(d, 16)))


def mfma16(e, d, a, b, first):
    e.I('v_mfma_f32_16x16x32_bf16 %s, %s, %s, %s' % (vr(d, 4), vr(a, 4), vr(b, 4), '0' if first else vr(d, 4)))


class Stamps:
    def __init__(self, cfg, regs, role):
        self.amp = cfg.amp if cfg.amp else None
        self.role = role
        self.sel = (cfg.selA if role == 'A' else cfg.selB)
        if self.sel is not None:
            self.sel = self.sel.split(',')
        self.ins = 's_memtime' if cfg.stamps == 'cyc' else 's_memrealtime'
        self.on = cfg.stamps or bool(self.amp)
        self.regs = regs
        self.names = []

    def __call__(self, e, name):
        if not self.on:
            return
        if self.sel is not None:
            if name != 'start' and name not in self.sel:
                return
        elif name.startswith('_'):
            return
        r = self.regs[len(self.names)]
        self.names.append(name)
        if self.amp and name not in ('start', 'end', self.amp[1], self.amp[2]):
            return
        e.I('%s s[%d:%d]' % (self.ins, r, r + 1))

    def flush(self, e):
        if not self.on:
            return
        e.wait_smem()
        if self.amp:
            if self.amp[0] == self.role:
                R = dict(zip(self.names, self.regs))
                e.I('s_sub_u32 s%d, s%d, s%d\ns_mul_i32 s%d, s%d, %d\ns_min_u32 s%d, s%d, 50000' %
                    (T0, R[self.amp[2]], R[self.amp[1]], T0, T0, self.amp[3], T0, T0))
                e.label('L_amp')
                e.I('s_memrealtime s[%d:%d]' % (T1, T1 + 1))
                e.wait_smem()
                e.I('s_sub_u32 s%d, s%d, s%d\ns_cmp_lt_u32 s%d, s%d\ns_cbranch_scc1 L_amp' % (T1, T1, R['end'], T1, T0))
            return
        e.I('s_lshl_b32 s%d, s2, 3\ns_add_u32 s%d, s%d, s%d\ns_lshl_b32 s%d, s%d, 6\ns_add_u32 s%d, s%d, 0x%x' %
            (T0, T0, T0, sWAVE, T0, T0, T0, T0, STAMP_OFF))
        e.I('s_mov_b64 exec, 1')
        for k in range(len(self.names)):
            e.I('v_mov_b32 v2, s%d' % self.regs[k])
            e.I('buffer_store_dword v2, off, %s, s%d offset:%d' % (srd(SWS), T0, 4 * k))


def jitter(e, cfg, key):
    if not cfg.jitter:
        return
    lab = 'L_jit%d' % key
    e.settle()
    e.I('s_lshl_b32 s%d, s2, 3\ns_add_u32 s%d, s%d, s%d' % (sCNT, sCNT, sCNT, sWAVE))
    e.I('s_mul_i32 s%d, s%d, 0x%x\ns_lshr_b32 s%d, s%d, 28' % (sCNT, sCNT, (0x9E3779B1 * (2 * key * cfg.jitter + 1)) & 0xffffffff, sCNT, sCNT))
    e.I('s_cmp_lt_u32 s%d, 12\ns_cbranch_scc1 %s_out' % (sCNT, lab))
    e.label(lab)
    e.I('s_sleep 40\ns_add_u32 s%d, s%d, 1\ns_cmp_lt_u32 s%d, 17\ns_cbranch_scc1 %s' % (sCNT, sCNT, sCNT, lab))
    e.label(lab + '_out')


def run(items):
    for it in items:
        it()


def poll(e, label, vt, vaddr, soff, mask, between=None):
    def look(tag=None):
        e.I('s_mov_b64 exec, %s' % mask)
        e.I('buffer_load_dword v%d, v%d, %s, s%d offen sc1' % (vt, vaddr, srd(SWS), soff), tag=tag)
        e.I('s_mov_b64 exec, -1')

    def check():
        e.I('v_cmp_ne_u32 vcc, s%d, v%d' % (sNONCE, vt))
        e.I('s_and_b64 vcc, vcc, %s' % mask)
    spin(e, label, look, check, between)


def spin(e, label, look, check, between):
    look('look')
    if between:
        between()
    e.wait(vm='look')
    check()
    e.I('s_cbranch_scc1 %s' % label)
    e.label(label + '_out')
    with e.cold_block():
        e.label(label)
        e.I('s_mov_b32 s%d, 0' % sCNT)
        e.label(label + '_l')
        if SLEEP[0]:
            e.I('s_sleep %d' % SLEEP[0])
        look()
        e.I('s_add_u32 s%d, s%d, 1' % (sCNT, sCNT))
        e.I('s_cmp_gt_u32 s%d, %d' % (sCNT, SPIN_MAX))
        e.wait(vm='all')
        e.I('s_cbranch_scc1 %s_out' % label)
        check()
        e.I('s_cbranch_scc1 %s_l' % label)
        e.I('s_branch %s_out' % label)


def code_touch(e, tag):
    e.I('s_getpc_b64 s[%d:%d]' % (sMA, sMA + 1))
    e.label('L_pc' + tag)
    e.I('s_sub_u32 s%d, s%d, L_pc%s-%s\ns_subb_u32 s%d, s%d, 0' % (sMA, sMA, tag, NAME, sMA + 1, sMA + 1))
    e.I('s_and_b32 s%d, s2, 0xf8\ns_add_u32 s%d, s%d, s%d\ns_lshl_b32 s%d, s%d, 6' % (T0, T0, T0, sWAVE, T0, T0))
    e.I('s_load_dword s3, s[%d:%d], s%d' % (sMA, sMA + 1, T0))
    e.I('s_add_u32 s%d, s%d, 16384\ns_min_u32 s%d, s%d, L_end-%s' % (T0, T0, T0, T0, NAME))
    e.I('s_load_dword s3, s[%d:%d], s%d' % (sMA, sMA + 1, T0))


def rot2_calc(e, cfg, dst, b):
    e.I('s_mul_i32 s%d, s%d, %d' % (dst, sCT, b))
    for k in range(1 if cfg.map2 == 84 else 2):
        e.I('s_add_u32 s%d, s%d, s%d' % (dst, dst, sRT))
    e.I('s_and_b32 s%d, s%d, %d' % (dst, dst, cfg.rot2))


def step_start(e, cfg, cur, beg, end, shift):
    rot2_calc(e, cfg, cur, cfg.rotF)
    e.I('s_cmp_eq_u32 s%d, 3\ns_cselect_b32 s%d, 10, 11' % (sW, end))
    e.I('s_mul_i32 s%d, s%d, s%d\ns_lshr_b32 s%d, s%d, 3\ns_mul_i32 s%d, s%d, 11' % (cur, cur, end, cur, cur, beg, sW))
    e.I('s_add_u32 s%d, s%d, s%d\ns_add_u32 s%d, s%d, s%d' % (cur, cur, beg, end, end, beg))
    for r in (cur, beg, end):
        e.I('s_lshl_b32 s%d, s%d, %d' % (r, r, shift))


def step_next(e, cur, beg, end, inc, wrap=True, last=False):
    e.I('s_add_u32 s%d, s%d, %d' % (cur, cur, inc))
    if wrap:
        e.I('s_cmp_eq_u32 s%d, s%d\ns_cselect_b32 s%d, s%d, s%d' % (cur, end, cur, beg, cur))
    if last:
        e.I('s_cmp_eq_u32 s%d, 3\ns_cselect_b32 s%d, 0x%x, s%d' % (sW, cur, OOB, cur))


def wd_next(e, n, cur, beg, end):
    step_next(e, cur, beg, end, 16384, n % 2 == 0, n == 20)


def set_m0(e, base, off):
    if getattr(e, 'm0', None) != (base, off):
        e.I('s_add_u32 m0, s%d, %d' % (base, off))
        e.m0 = (base, off)


def wd_lane_offsets(e, WDV, t0, t1):
    txt = 'v_lshrrev_b32 v%d, 4, v0\nv_lshlrev_b32 v%d, 1, v%d\nv_and_b32 v%d, 7, v0\nv_xor_b32 v%d, v%d, v%d\nv_lshlrev_b32 v%d, 4, v%d\n' % (
        t0, t0, t0, t1, t0, t0, t1, t0, t0)
    txt += 'v_lshrrev_b32 v%d, 3, v0\nv_lshl_add_u32 v%d, v%d, 10, v%d\n' % (t1, t0, t1, t0)
    txt += 's_lshl_b32 s%d, s%d, 7\n' % (T0, sCT)
    txt += 'v_add_u32 v%d, s%d, v%d\nv_add_u32 v%d, 7168, v%d' % (WDV, T0, t0, WDV + 1, WDV)
    return txt


RING = [(5, n) for n in range(3)] + [(4, 2)] + [(2 + n // 3, n % 3) for n in range(6)] + [(4, n) for n in range(2)] \
    + [(n // 3, n % 3) for n in range(6)] + [(2, n) for n in range(3)] + [(3, 0)]
PREV = {18: 4, 19: 5, 20: 6, 21: 7}


class Touch:
    def __init__(self, e, cfg, role):
        self.e, self.role = e, role
        self.plan = [p for p in cfg.tplan if p[0] == role]
        it = []
        for par in range(2):
            for p in (P_CRE, P_CIM):
                it += [(p, 128 * k + 64 * par) for k in range(4)]
        for par in range(2):
            it += [(P_WD, 128 * k + 64 * par) for k in range(11)]
        self.items = it

    def setup(self):
        if not self.plan:
            return
        e = self.e
        used = {self.items[k][0] for p in self.plan for k in range(p[2], p[3])}
        e.I('s_lshl_b32 s%d, s2, 2\ns_add_u32 s%d, s%d, s%d' % (T0, T0, T0, sW))
        for p in sorted(used):
            e.I('s_mul_i32 s%d, s%d, %d' % (T1, T0, 1376 if p == P_WD else 512))
            e.I('s_add_u32 s%d, s%d, s%d\ns_addc_u32 s%d, s%d, 0' % (p, p, T1, p + 1, p + 1))

    def at(self, place):
        for p in self.plan:
            if p[1] == place:
                for k in range(p[2], p[3]):
                    self.e.I('s_load_dword s3, s[%d:%d], %d' % (self.items[k][0], self.items[k][0] + 1, self.items[k][1]))


def flag_store(e, vt, soff, imm=0):
    e.I('s_mov_b64 exec, 1')
    e.I('buffer_store_dword v%d, off, %s, s%d offset:%d sc1' % (vt, srd(SWS), soff, imm), tag='flag')
    e.I('s_mov_b64 exec, -1')


def frag_addr(e, dst, t0, t1):
    e.I('v_lshrrev_b32 v%d, 5, v0' % t0)
    e.I('v_bfe_u32 v%d, v0, 1, 3' % t1)
    e.I('v_xor_b32 v%d, v%d, v%d' % (t0, t0, t1))
    e.I('v_and_b32 v%d, 31, v0' % t1)
    e.I('v_lshlrev_b32 v%d, 7, v%d' % (t1, t1))
    e.I('v_lshl_add_u32 v%d, v%d, 4, v%d' % (dst, t0, t1))
    for s in range(1, 4):
        e.I('v_xor_b32 v%d, %d, v%d' % (dst + s, 32 * s, dst))


def frag16_addr(e, dst, t0, t1):
    e.I('v_lshrrev_b32 v%d, 4, v0' % t0)
    e.I('v_bfe_u32 v%d, v0, 1, 3' % t1)
    e.I('v_xor_b32 v%d, v%d, v%d' % (t0, t0, t1))
    e.I('v_and_b32 v%d, 15, v0' % t1)
    e.I('v_lshlrev_b32 v%d, 7, v%d' % (t1, t1))
    e.I('v_lshl_add_u32 v%d, v%d, 4, v%d' % (dst, t0, t1))
    e.I('v_xor_b32 v%d, 64, v%d' % (dst + 1, dst))


def w_tr_addr(e, d, t0, t1):
    e.I('v_lshrrev_b32 v%d, 4, v0' % t0)
    e.I('v_bfe_u32 v%d, v0, 2, 2' % t1)
    e.I('v_lshl_add_u32 v%d, v%d, 3, v%d' % (t0, t0, t1))
    e.I('v_mul_u32_u24 v%d, 192, v%d' % (t0, t0))
    e.I('v_bfe_u32 v%d, v0, 4, 1' % t1)
    e.I('v_lshl_add_u32 v%d, v%d, 5, v%d' % (t0, t1, t0))
    e.I('v_and_b32 v%d, 3, v0' % t1)
    e.I('v_lshl_add_u32 v%d, v%d, 3, v%d' % (d, t1, t0))
    e.I('v_xor_b32 v%d, 32, v%d' % (d + 1, d))
    e.I('v_add_u32 v%d, %d, v%d\nv_add_u32 v%d, %d, v%d' % (d + 2, WIN, d, d + 3, WIN, d + 1))


W_SLOT = [0, 1, 2, 3, 0, 1, 2, 3]
S_SHIFT = [0]


def s_slot(i):
    return (i + 4) % 6 if S_SHIFT[0] < 0 else (i + S_SHIFT[0]) % 4


def w_frag_read(e, dst, wa, j, s2, g, mat, fh, mm, tag):
    slot = W_SLOT[j]
    off = (slot & 1) * SLOT + mat * 12288 + (32 * s2 + 4 * mm) * 192 + g * 64
    e.I('ds_read_b64_tr_b16 %s, v%d offset:%d' % (vr(dst + 2 * mm, 2), wa + 2 * (slot >> 1) + fh, off), tag=tag)


def act_items(e, cfg, G, U, tmp, out):
    items = []
    add = lambda t: items.append(lambda t=t: e.I(t))
    for b in range(2):
        g, u, o = G + 8 * b, U + 8 * b, out + 4 * b
        if cfg.mimic:
            for src in (g, u):
                for p in range(4):
                    add('v_cvt_pk_bf16_f32 v%d, v%d, v%d' % (tmp + p, src + 2 * p, src + 2 * p + 1))
                for p in range(4):
                    add('v_lshlrev_b32 v%d, 16, v%d' % (src + 2 * p, tmp + p))
                    add('v_and_b32 v%d, 0xffff0000, v%d' % (src + 2 * p + 1, tmp + p))
        for p in range(4):
            add('v_pk_mul_f32 %s, %s, s[%d:%d]' % (vr(tmp + 2 * p, 2), vr(g + 2 * p, 2), sNL2E, sNL2E + 1))
        for p in range(8):
            add('v_exp_f32 v%d, v%d' % (tmp + p, tmp + p))
        for p in range(4):
            add('v_pk_add_f32 %s, %s, 1.0 op_sel_hi:[1,0]' % (vr(tmp + 2 * p, 2), vr(tmp + 2 * p, 2)))
        for p in range(8):
            add('v_rcp_f32 v%d, v%d' % (tmp + p, tmp + p))
        for p in range(4):
            add('v_pk_mul_f32 %s, %s, %s' % (vr(g + 2 * p, 2), vr(g + 2 * p, 2), vr(tmp + 2 * p, 2)))
        if cfg.mimic:
            for p in range(4):
                add('v_cvt_pk_bf16_f32 v%d, v%d, v%d' % (tmp + p, g + 2 * p, g + 2 * p + 1))
            for p in range(4):
                add('v_lshlrev_b32 v%d, 16, v%d' % (g + 2 * p, tmp + p))
                add('v_and_b32 v%d, 0xffff0000, v%d' % (g + 2 * p + 1, tmp + p))
        for p in range(4):
            add('v_pk_mul_f32 %s, %s, %s' % (vr(u + 2 * p, 2), vr(g + 2 * p, 2), vr(u + 2 * p, 2)))
        for p in range(4):
            add('v_cvt_pk_bf16_f32 v%d, v%d, v%d' % (o + p, u + 2 * p, u + 2 * p + 1))
    return items


def act_items_scalar(e, cfg, G, U, tmp, out):
    if cfg.mimic:
        return act_items(e, cfg, G, U, tmp, out)
    items = []
    add = lambda t: items.append(lambda t=t: e.I(t))
    for b in range(4):
        g, u, o = G + 4 * b, U + 4 * b, out + 2 * b
        for p in range(4):
            add('v_mul_f32 v%d, s%d, v%d' % (tmp + p, sNL2E, g + p))
        for p in range(4):
            add('v_exp_f32 v%d, v%d' % (tmp + p, tmp + p))
            add('v_mul_f32 v%d, v%d, v%d' % (u + p, g + p, u + p))
        for p in range(4):
            add('v_add_f32 v%d, 1.0, v%d' % (tmp + p, tmp + p))
        for p in range(4):
            add('v_rcp_f32 v%d, v%d' % (tmp + p, tmp + p))
        for p in range(4):
            add('v_mul_f32 v%d, v%d, v%d' % (u + p, tmp + p, u + p))
        for p in range(2):
            add('v_cvt_pk_bf16_f32 v%d, v%d, v%d' % (o + p, u + 2 * p, u + 2 * p + 1))
    return items


def light_scc(e):
    e.I('s_and_b32 s%d, s%d, 3\ns_cmp_eq_u32 s%d, 3\ns_cselect_b32 s%d, 14, s%d\ns_cmp_eq_u32 s%d, 14' % (T0, sCB, T0, T0, sCB, T0))


def w_lane_offsets(e, cfg, WV, t0, t1):
    if cfg.zfill:
        light_scc(e)
        e.I('s_cselect_b32 s%d, 8, 12' % sTW)
    e.I('s_and_b32 s%d, s%d, 1' % (T1, sW))
    e.I('s_mul_i32 s%d, s%d, %d\ns_lshl_b32 s%d, s%d, 6\ns_add_u32 s%d, s%d, s%d' % (T0, T1, 32 * 2752, T1, sSG0, T0, T0, T1))
    for q in range(3):
        e.I('v_add_u32 v%d, %d, v0\nv_mul_u32_u24 v%d, 171, v%d\nv_lshrrev_b32 v%d, 11, v%d' % (t1, 64 * q, t0, t1, t0, t0))
        if cfg.zfill:
            e.I('v_mul_u32_u24 v%d, 12, v%d\nv_sub_u32 v%d, v%d, v%d\nv_cmp_gt_u32 vcc, s%d, v%d' % (WV + q, t0, t1, t1, WV + q, sTW, t1))
        e.I('v_lshrrev_b32 v%d, 3, v%d\nv_lshlrev_b32 v%d, 1, v%d\nv_xor_b32 v%d, v0, v%d' % (t1, t0, t1, t1, t1, t1))
        e.I('v_mul_u32_u24 v%d, %d, v%d' % (t0, 2752 - 192, t0))
        e.I('v_lshl_add_u32 v%d, v%d, 4, v%d' % (t0, t1, t0))
        e.I('v_add_u32 v%d, s%d, v%d' % (WV + q, T0, t0))
        if cfg.zfill:
            e.I('v_mov_b32 v%d, 0x%x\nv_cndmask_b32 v%d, v%d, v%d, vcc' % (t0, OOB, WV + q, t0, WV + q))
    e.I('s_mul_i32 s%d, s%d, 6144' % (sMW, sW))


def dma_W(e, WV, SWR, j):
    slot = W_SLOT[j] * SLOT
    its = []
    for grp in range(2):
        for q in range(3):
            def f(grp=grp, q=q):
                set_m0(e, sMW, slot + grp * 3072)
                if q == 0 and grp == 0:
                    e.I('s_add_u32 s%d, s%d, %d\ns_and_b32 s%d, s%d, 7\ns_mul_i32 s%d, s%d, %d' %
                        (sTW, sK0, j, sTW, sTW, sTW, sTW, 64 * 2752))
                if q == 0 and grp == 1:
                    e.I('s_add_u32 s%d, s%d, %d' % (sTW, sTW, 16 * 2752))
                e.I('buffer_load_dwordx4 v%d, %s, s%d offen offset:%d %slds' % ((WV + q, srd(SWR), sTW, 1024 * q) + (ntf('w', j),)), tag=('st', 8 + j))
            its.append(f)
    return its


C_LAND, C_CONS, C_Q, C_DONEA = 0, 32, 64, 68


def cnt_add(e, va, vone, off):
    e.I('s_mov_b64 exec, 1')
    e.I('ds_add_u32 v%d, v%d offset:%d' % (va, vone, off), tag='sig')
    e.I('s_mov_b64 exec, -1')


def cnt_look(e, va, vt, off, tag):
    e.I('ds_read_b32 v%d, v%d offset:%d' % (vt, va, off), tag=tag)


def cnt_check(e, label, va, vt, off, tag):
    e.wait(lg=tag)
    e.I('v_cmp_ne_u32 vcc, 4, v%d' % vt)
    e.I('s_cbranch_vccnz %s' % label)
    e.label(label + '_out')
    with e.cold_block():
        e.label(label)
        e.I('s_mov_b32 s%d, 0' % sCNT)
        e.label(label + '_l')
        if SLEEP[1]:
            e.I('s_sleep %d' % SLEEP[1])
        cnt_look(e, va, vt, off, None)
        e.I('s_add_u32 s%d, s%d, 1' % (sCNT, sCNT))
        e.I('s_cmp_gt_u32 s%d, %d' % (sCNT, 20 * SPIN_MAX))
        e.wait(lg='all')
        e.I('s_cbranch_scc1 %s_out' % label)
        e.I('v_cmp_ne_u32 vcc, 4, v%d' % vt)
        e.I('s_cbranch_vccnz %s_l' % label)
        e.I('s_branch %s_out' % label)


def cnt_spin(e, label, va, vt, off):
    cnt_look(e, va, vt, off, 'look')
    cnt_check(e, label, va, vt, off, 'look')


def act_offsets(e, k, s_data, s_flag, valid_scc=False):
    e.I('s_lshl_b32 s%d, s%d, 2\ns_add_u32 s%d, s%d, s%d' % (T0, sRB, T0, T0, sW))
    e.I('s_mul_i32 s%d, s%d, 43\ns_add_u32 s%d, s%d, s%d\ns_add_u32 s%d, s%d, %d\ns_lshl_b32 s%d, s%d, 11' %
        (T1, T0, T1, T1, sSG0, T1, T1, k, s_data, T1))
    e.I('s_lshr_b32 s%d, s%d, 1\ns_mul_i32 s%d, s%d, 44\ns_add_u32 s%d, s%d, s%d\ns_add_u32 s%d, s%d, %d' %
        (T1, T0, T1, T1, T1, T1, sSG0, T1, T1, k))
    e.I('s_lshl_b32 s%d, s%d, 1\ns_and_b32 s%d, s%d, 1\ns_add_u32 s%d, s%d, s%d\ns_mul_i32 s%d, s%d, %d\ns_add_u32 s%d, s%d, 0x%x' %
        (T1, T1, T0, T0, T1, T1, T0, T1, T1, FS, s_flag, T1, AF_OFF))


def part_write_addr(e, dst, t0, t1, piece_stride, wave_stride, base):
    e.I('v_lshrrev_b32 v%d, 4, v0' % t0)
    e.I('v_and_b32 v%d, 7, v0' % t1)
    e.I('v_xor_b32 v%d, v%d, v%d' % (t0, t0, t1))
    e.I('v_lshlrev_b32 v%d, 4, v%d' % (dst, t0))
    e.I('v_bfe_u32 v%d, v0, 3, 1' % t0)
    e.I('v_and_b32 v%d, 3, v0' % t1)
    e.I('v_lshl_add_u32 v%d, v%d, 2, v%d' % (t0, t0, t1))
    e.I('v_lshl_add_u32 v%d, v%d, 8, v%d' % (dst, t0, dst))
    e.I('v_bfe_u32 v%d, v0, 2, 1' % t0)
    e.I('v_mul_u32_u24 v%d, %d, v%d' % (t0, piece_stride, t0))
    e.I('s_mul_i32 s%d, s%d, %d\ns_add_u32 s%d, s%d, %d' % (T0, sW, wave_stride, T0, T0, base))
    e.I('v_add3_u32 v%d, v%d, v%d, s%d' % (dst, dst, t0, T0))
    e.I('v_xor_b32 v%d, 64, v%d' % (dst + 1, dst))


def acc2(t4, dq):
    return 64 + 16 * t4 + 4 * dq


def part_write(e, addr, piece_stride, tt, addr1=None):
    its = []
    for a in range(2):
        for dq in range(4):
            ad_, off = (addr + (dq & 1), (dq >> 1) * 128) if addr1 is None or dq < 2 else (addr1 + (dq & 1), 0)
            its.append(lambda ad_=ad_, off=off, dq=dq, a=a:
                       e.I('ds_write_b128 v%d, %s offset:%d' % (ad_, vr(acc2(2 * tt + a, dq), 4), tt * 2 * piece_stride + a * 2048 + off), tag=('pw', tt)))
    return its


def tile_ids(e, cfg, redo):
    if redo:
        e.I('s_and_b32 s%d, s2, 7\ns_lshr_b32 s%d, s2, 3' % (T0, T1))
        e.I('s_and_b32 s%d, s%d, 7\ns_lshr_b32 s%d, s%d, 3\ns_lshr_b32 s%d, s%d, 1' % (T2, T1, T3, T1, T4, T0))
    e.I('s_mul_i32 s%d, s%d, 11\ns_mul_i32 s%d, s%d, 3\ns_add_u32 s%d, s%d, s%d' % (sSG0, T4, T5, T3, sSG0, sSG0, T5))
    e.I('s_cmp_eq_u32 s%d, 15\ns_subb_u32 s%d, s%d, 0' % (sCB, sSG0, sSG0))
    if cfg.map2 == 84:
        if cfg.xloc:
            e.I('s_and_b32 s%d, s%d, 8\ns_add_u32 s%d, s%d, s%d\ns_and_b32 s%d, s%d, 2\ns_lshl_b32 s%d, s%d, 2\ns_add_u32 s%d, s%d, s%d' %
                (sRT, sRB, sRT, sRT, sRB, T5, T0, T5, T5, sRT, sRT, T5))
            e.I('s_and_b32 s%d, s%d, 4\ns_add_u32 s%d, s%d, s%d' % (sCT, T0, sCT, sCT, T3))
        else:
            e.I('s_lshl_b32 s%d, s%d, 3\ns_add_u32 s%d, s%d, s%d' % (sRT, T4, sRT, sRT, T2))
            e.I('s_and_b32 s%d, s%d, 1\ns_lshl_b32 s%d, s%d, 2\ns_add_u32 s%d, s%d, s%d' % (sCT, T0, sCT, sCT, sCT, sCT, T3))
    else:
        e.I('s_lshl_b32 s%d, s%d, 2\ns_and_b32 s%d, s%d, 3\ns_add_u32 s%d, s%d, s%d\ns_lshr_b32 s%d, s%d, 2' %
            (sRT, T0, T5, T1, sRT, sRT, T5, sCT, T1))


KARG2 = 's_load_dwordx16 s[20:35], s[0:1], 64\ns_load_dwordx2 s[36:37], s[0:1], 128'


def gen_entry(e, cfg, st):
    e.I('s_load_dwordx16 s[4:19], s[0:1], 0')
    e.I('s_cmp_ge_u32 s2, 256\ns_cbranch_scc1 L_end')
    e.I(KARG2)
    st(e, 'start')
    if 'v' in cfg.prewarm:
        n = cfg.pwn
        e.I('s_getpc_b64 s[%d:%d]' % (SCODE, SCODE + 1))
        e.label('L_pc')
        e.I('s_mov_b32 s%d, L_end-L_pc\ns_mov_b32 s%d, 0x20000' % (SCODE + 2, SCODE + 3))
        e.I('s_lshl_b32 s%d, s2, %d\ns_and_b32 s%d, s%d, 0x%x' % (T0, 7 + n.bit_length() - 1, T0, T0, 0x7fff & ~(1024 * n - 1)))
        e.I('v_lshlrev_b32 v1, %d, v0' % (1 + n.bit_length() - 1))
        m = sum(1 << (k * 64 // n) for k in range(n))
        e.I('s_mov_b32 exec_lo, 0x%x\ns_mov_b32 exec_hi, 0x%x' % (m & 0xffffffff, m >> 32))
        e.I('buffer_load_dword v63, v1, %s, s%d offen' % (srd(SCODE), T0), tag='pw')
        e.I('s_mov_b64 exec, -1')
    e.I('v_lshrrev_b32 v1, 6, v0\nv_and_b32 v0, 63, v0')
    e.I('v_readfirstlane_b32 s%d, v1' % sWAVE)
    if cfg.slim and cfg.rot1 == (2, 4, 2, 1):
        e.I('s_and_b32 s%d, s2, 7\ns_bfe_u32 s%d, s2, 0x30003\ns_lshr_b32 s%d, s2, 6' % (T0, T2, T3))
        e.I('s_lshl1_add_u32 s%d, s%d, s%d\ns_lshl2_add_u32 s%d, s%d, s%d\ns_and_b32 s%d, s%d, 7' % (sK0, T2, T0, sK0, T3, sK0, sK0, sK0))
        e.I('s_and_b32 s%d, s2, 1\ns_lshl3_add_u32 s%d, s%d, s%d' % (sRB, sRB, sRB, T2))
        e.I('s_lshr_b32 s%d, s%d, 1\ns_lshl2_add_u32 s%d, s%d, s%d' % (T4, T0, sCB, T4, T3))
        assert cfg.map2 == 84
    else:
        e.I('s_and_b32 s%d, s2, 7\ns_lshr_b32 s%d, s2, 3' % (T0, T1))
        e.I('s_and_b32 s%d, s%d, 7\ns_lshr_b32 s%d, s%d, 3' % (T2, T1, T3, T1))
        e.I('s_and_b32 s%d, s%d, 1\ns_lshl_b32 s%d, s%d, 3\ns_add_u32 s%d, s%d, s%d' % (sRB, T0, sRB, sRB, sRB, sRB, T2))
        e.I('s_lshr_b32 s%d, s%d, 1' % (T4, T0))
        e.I('s_lshl_b32 s%d, s%d, 2\ns_add_u32 s%d, s%d, s%d' % (sCB, T4, sCB, sCB, T3))
        e.I('s_mul_i32 s%d, s%d, %d' % (sK0, T2, cfg.rot1[0]))
        for src, mul in zip((T3, T4, None), cfg.rot1[1:]):
            if mul:
                if src is None:
                    e.I('s_and_b32 s%d, s%d, 1' % (T5, T0))
                e.I('s_mul_i32 s%d, s%d, %d\ns_add_u32 s%d, s%d, s%d' % (T5, T5 if src is None else src, mul, sK0, sK0, T5))
        e.I('s_and_b32 s%d, s%d, 7' % (sK0, sK0))
    if not cfg.slim:
        tile_ids(e, cfg, False)
    e.I('s_and_b32 s%d, s%d, 3' % (sW, sWAVE))
    e.I('s_cmp_lt_u32 s%d, 4\ns_cbranch_scc1 L_A' % sWAVE)


def gen_B(e, cfg, st):
    NPRE = cfg.prog.count('D')
    WA = 2
    EP = 42
    XV, BV, WV, XA = 32, 36, 38, 44
    if cfg.prioS:
        e.I('s_setprio %d' % cfg.prioS)
    e.I('v_lshrrev_b32 v8, 3, v0')
    e.I('v_and_b32 v9, 7, v0')
    e.I('v_lshrrev_b32 v10, 4, v0')
    e.I('v_xor_b32 v10, v9, v10\nv_lshlrev_b32 v10, 4, v10')
    e.I('v_lshrrev_b32 v11, 5, v0\nv_and_b32 v12, 3, v8\nv_lshl_add_u32 v11, v11, 4, v12')
    e.I('s_lshl2_add_u32 s%d, s%d, s%d\ns_lshl_b32 s%d, s%d, 15' % (T0, sRB, sW, T0, T0))
    e.I('v_lshl_add_u32 v11, v11, 10, s%d' % T0)
    e.I('v_add_u32 v%d, v11, v10' % XV)
    e.I('v_xor_b32 v13, 64, v%d' % XV)
    e.I('v_add_u32 v%d, 3072, v13\nv_add_u32 v%d, 6144, v%d\nv_add_u32 v%d, 9216, v13' % (XV + 1, XV + 2, XV, XV + 3))
    def b_setup():
        e.I('s_and_b32 s%d, s%d, 1\ns_lshl1_add_u32 s%d, s%d, s%d\ns_lshl_b32 s%d, s%d, 14' % (T1, sW, T0, sCB, T1, T0, T0))
        e.I('v_lshrrev_b32 v11, 5, v0\nv_lshl_add_u32 v11, v11, 3, v12')
        e.I('v_lshl_add_u32 v11, v11, 10, s%d' % T0)
        e.I('v_add_u32 v%d, v11, v10' % BV)
        e.I('v_xor_b32 v13, 64, v%d\nv_add_u32 v%d, 3072, v13' % (BV, BV + 1))
        e.I('s_lshl_b32 s%d, s%d, 11\ns_add_u32 s%d, s%d, 16384' % (sMBm, sW, sMBm, sMBm))
        e.I('s_mov_b32 s%d, 0x%x\ns_mov_b32 s%d, 0x20000' % (SBM + 2, 512 * 1024, SBM + 3))
    if not cfg.blate:
        b_setup()
    e.I('s_lshl_b32 s%d, s%d, 12' % (sMX, sW))
    e.I('s_lshl_b32 s%d, s%d, 7' % (T6, sK0))
    e.I('s_mov_b32 s%d, 0x%x\ns_mov_b32 s%d, 0x20000' % (SX + 2, 2048 * 1024, SX + 3))
    set_m0(e, sMX, s_slot(0) * SLOT)
    e.I('s_mov_b32 s%d, s%d' % (sTS, T6))
    e.wait_smem()
    st(e, 'karg')
    jitter(e, cfg, 1)
    e.I('s_mov_b64 s[%d:%d], s[%d:%d]' % (SX, SX + 1, P_X, P_X + 1))

    def dma_S(i):
        slot = s_slot(i) * SLOT
        its = []
        for q in range(4):
            def f(q=q):
                if q == 0 and i:
                    set_m0(e, sMX, slot)
                    e.I('s_add_u32 s%d, s%d, %d\ns_and_b32 s%d, s%d, 1023' % (sTS, T6, i * 128, sTS, sTS))
                e.I('buffer_load_dwordx4 v%d, %s, s%d offen offset:%d %slds' % ((XV + q, srd(SX), sTS, 1024 * q) + (ntf('x', i),)), tag=('st', i))
            its.append(f)
        for q in range(2):
            def f(q=q):
                if q == 0 and i == 0 and cfg.blate:
                    b_setup()
                if q == 0:
                    set_m0(e, sMBm, slot)
                if q == 0 and i == 0:
                    e.I('s_cmp_ge_u32 s%d, 2\ns_cselect_b64 s[%d:%d], s[%d:%d], s[%d:%d]' % (sW, SBM, SBM + 1, P_BIM, P_BIM + 1, P_BRE, P_BRE + 1))
                e.I('buffer_load_dwordx4 v%d, %s, s%d offen offset:%d %slds' % ((BV + q, srd(SBM), sTS, 1024 * q) + (ntf('b', i),)), tag=('st', i))
            its.append(f)
        return its

    run(dma_S(0))
    st(e, 'dma0')
    s1 = dma_S(1)
    run(s1[:cfg.s1a])
    if 's' in cfg.prewarm:
        code_touch(e, 'B')
    frag16_addr(e, XA, 11, 12)
    for s in range(2):
        e.I('v_add_u32 v%d, s%d, v%d' % (XA + s, sMX, XA + s))
        e.I('v_add_u32 v%d, %d, v%d' % (XA + 2 + s, WIN, XA + s))
        if cfg.lag:
            e.I('v_add_u32 v%d, %d, v%d' % (XA + 4 + s, 2 * WIN, XA + s))
    e.I('v_lshlrev_b32 v11, 2, v0\nv_add_u32 v11, %d, v11\nv_mov_b32 v12, 0' % L_FL)
    e.I('ds_write_b32 v11, v12', tag='init')

    def setup_a():
        if cfg.slim:
            tile_ids(e, cfg, True)
        mk_srd(e, SWS, P_WS, WS_SIZE)
        mk_srd(e, SWD, P_WD, 1376 * 1024)
        e.I('s_cmp_ge_u32 s%d, 2' % sW)
        mk_srd_sel(e, SW, P_WU, P_WG, 512 * 2752)
        w_tr_addr(e, WA, 13, 14)
        e.I('v_lshlrev_b32 v1, 4, v0')

    def setup_b():
        w_lane_offsets(e, cfg, WV, 13, 14)
    if not cfg.defer:
        setup_a()
        setup_b()

    sDC, sDB, sDE, sAC, sAB, sAE = 86, 87, 88, 89, 90, 91
    sD0, sF0, sD2, sF2 = T2, T3, T4, T5
    st(e, '_pro')
    sP0 = 92
    if isinstance(cfg.w0pos, tuple):
        tab = sum(p << (4 * r) for r, p in enumerate(cfg.w0pos))
        e.I('s_and_b32 s%d, s%d, 7\ns_lshl_b32 s%d, s%d, 2\ns_lshr_b32 s%d, 0x%x, s%d\ns_and_b32 s%d, s%d, 15' %
            (T0, sRB, T0, T0, sP0, tab, T0, sP0, sP0))

    def w0_hook(p):
        if cfg.w0pos == p:
            run(dma_W(e, WV, SW, 0))
        elif isinstance(cfg.w0pos, tuple) and p in cfg.w0pos:
            e.I('s_cmp_eq_u32 s%d, %d\ns_cbranch_scc1 L_w0_%d' % (sP0, p, p))
            e.label('L_w0_%d_out' % p)
            with e.cold_block():
                e.label('L_w0_%d' % p)
                run(dma_W(e, WV, SW, 0))
                e.I('s_branch L_w0_%d_out' % p)
            e.m0 = None
    run(s1[cfg.s1a:])
    st(e, '_dma1')
    w0_hook(1)
    e.wait(vm=('st', 0))
    st(e, '_sa0')
    e.I('s_barrier')
    st(e, 'b0')
    for i in range(8):
        if i == 1:
            e.I('s_mov_b32 s%d, 0x%x' % (T0, EPOCH_OFF))
            e.I('buffer_load_dword v%d, off, %s, s%d sc1' % (EP, srd(SWS), T0), tag='ep')
        if i < 6:
            run(dma_S(i + 2))
            w0_hook(i + 2)
        elif cfg.w0pos is None:
            run(dma_W(e, WV, SW, i - 6))
        elif i == 6 or 'W2' not in cfg.prog:
            run(dma_W(e, WV, SW, i - 5))
        for s in range(4):
            slot = s_slot(i)
            e.I('ds_read_b128 %s, v%d offset:%d' % (vr(128 + 4 * (4 * i + s), 4), XA + 2 * (slot >> 1) + (s >> 1), (slot & 1) * SLOT + (s & 1) * 2048), tag='x')
        if cfg.defer and i == 0:
            setup_a()
        if cfg.defer and i == 1:
            setup_b()
        if i == 4:
            e.wait(vm='ep')
            e.I('v_readfirstlane_b32 s%d, v%d' % (sNONCE, EP))
            e.I('s_add_u32 s%d, s%d, 0x%x\ns_or_b32 s%d, s%d, 1' % (sNONCE, sNONCE, PHI, sNONCE, sNONCE))
            e.I('s_mov_b32 s%d, 0x%x\ns_mov_b32 s%d, 0x%x' % (sNL2E, NLOG2E, sNL2E + 1, NLOG2E))
        if i == 2:
            step_start(e, cfg, sAC, sAB, sAE, 11)
        if i == 3:
            for k in range(3):
                e.I('s_lshl_b32 s%d, s%d, 4' % (sDC + k, sAC + k))
            for n in range(1, NPRE):
                wd_next(e, n, sDC, sDB, sDE)
        if i == 5:
            act_offsets(e, 0, sD0, sF0)
        if i == 6:
            e.I('s_add_u32 s%d, s%d, 4096\ns_add_u32 s%d, s%d, %d' % (sD2, sD0, sF2, sF0, 4 * FS))
            light_scc(e)
            e.I('s_cselect_b32 s%d, 0x%x, s%d\ns_cselect_b32 s%d, 0x%x, s%d' % (sD2, OOB, sD2, sF2, OOB, sF2))
            e.I('v_mov_b32 v7, %d\nv_mov_b32 v6, 1' % L_FL)
        if i < 7:
            e.wait(vm=('st', i + 1), lg='all')
            st(e, '_sa%d' % (i + 1))
            e.I('s_barrier')
            st(e, '_sd%d' % (i + 1))
            if i == 0:
                st(e, 'b1')
    NT = cfg.NT
    ops = []
    for j in range(8 - NT):
        for s in range(2):
            for g in range(3):
                for mf in range(4):
                    ops.append((j, s, g, mf))
    tail0 = len(ops)
    for g in range(3):
        for j in range(8 - NT, 8):
            for s in range(2):
                for mf in range(4):
                    ops.append((j, s, g, mf))
    NB, LA = 6, cfg.LA
    first = {j: min(q for q in range(len(ops)) if ops[q][0] == j) for j in range(8)}
    last = {j: max(q for q in range(len(ops)) if ops[q][0] == j) for j in range(8)}

    def rd(q, half):
        if q >= len(ops):
            return
        j, s, g, mf = ops[q]
        if q == first[j] and j <= cfg.JL and half == 0:
            e.wait(vm=('st', 8 + j), lg='all' if j in cfg.drain else 'x')
            st(e, '_a%d' % j)
            e.I('s_barrier')
            st(e, '_d%d' % j)
            if j in (0, 4, cfg.JL):
                st(e, 'b%d' % (8 + j))
            if j == 0 and cfg.prioB != cfg.prioS:
                e.I('s_setprio %d' % cfg.prioB)
        w_frag_read(e, 8 + 4 * (q % NB), WA, j, s, g, mf >> 1, mf & 1, half, ('wf', q))
        if q == last[7] and half == 1:
            cnt_add(e, 7, 6, C_CONS + 28)

    def mm(q, a):
        j, s, g, mf = ops[q]
        if a == 0 and q % 2 == 0:
            e.wait(lg=('wf', q + 1))
        t = a ^ (q & 1) if cfg.snake else a
        mfma16(e, 32 + 32 * g + 16 * (mf >> 1) + 8 * t + 4 * (mf & 1), 8 + 4 * (q % NB), 128 + 16 * j + 8 * s + 4 * t, j == 0 and s == 0)
        rd(q + LA, a)

    def act_store(k, ms=(0, 1)):
        for m in ms:
            e.I('buffer_store_dwordx4 %s, v1, %s, s%d offen offset:%d sc1' %
                (vr(136 + 8 * k + 4 * m, 4), srd(SWS), sD2 if k == 2 else sD0, 1024 * m + (2048 if k == 1 else 0)), tag=('as', k))

    def with_stores(its, k):
        if not cfg.asplit:
            return its + [lambda: act_store(k)]
        h = len(its) // 2
        return its[:h] + [lambda: act_store(k, (0,))] + its[h:] + [lambda: act_store(k, (1,))]

    def act_flag(k):
        e.wait(vm=('as', k))
        flag_store(e, EP, sF2 if k == 2 else sF0, 2 * FS if k == 1 else 0)

    for q in range(LA):
        rd(q, 0)
        rd(q, 1)
    per = 8 * NT
    for q in range(tail0 + per):
        mm(q, 0)
        mm(q, 1)
    if cfg.prioT:
        e.I('s_setprio %d' % cfg.prioT)
    if NT:
        for g in (1, 2):
            main = [lambda q=q, a=a: mm(q, a) for q in range(tail0 + g * per, tail0 + (g + 1) * per) for a in range(2)]
            fill = with_stores(act_items_scalar(e, cfg, 32 * g, 32 * g + 16, 128, 136 + 8 * (g - 1)), g - 1)
            run(main[:3] + weave(main[3:], fill))
        st(e, 'f1end')
        run(with_stores(act_items(e, cfg, 96, 112, 128, 152), 2))
    else:
        st(e, 'f1end')
        for g in range(3):
            run(with_stores(act_items(e, cfg, 32 + 32 * g, 48 + 32 * g, 128, 136 + 8 * g), g))
    if cfg.prioD[0] != (cfg.prioT or cfg.prioB):
        e.I('s_setprio %d' % cfg.prioD[0])
    st(e, 'actst')
    jitter(e, cfg, 2)
    DA, AV, PW, WDV, EP = 2, 14, 16, 18, 23
    e.I('v_mov_b32 v%d, s%d' % (EP, sNONCE))
    e.I(wd_lane_offsets(e, WDV, 20, 21))
    e.I('v_mov_b32 v22, %d' % L_FL)
    cnt_spin(e, 'L_spinB', 22, 24, C_CONS + 28)
    st(e, 'ldsfree')

    def dma_D(n):
        sl, pos = RING[n]
        if n in PREV:
            e.wait(lg=('wr', PREV[n]))
        set_m0(e, sMW, sl * SLOT + pos * 2048)
        if n:
            wd_next(e, n, sDC, sDB, sDE)
        for q in range(2):
            e.I('buffer_load_dwordx4 v%d, %s, s%d offen offset:%d %slds' % ((WDV + q, srd(SWD), sDC, 1024 * q) + (ntf('d', n),)), tag=('wd', n))

    def wd_reg(n2):
        return 128 + 16 * n2 if n2 < 5 else 32 + 16 * (n2 - 5) if n2 < 7 else 128 + 16 * (n2 - 7)

    def wd_read(n, dqs=range(4)):
        sl, pos = RING[n]
        e.wait(vm=('wd', n))
        for dq in dqs:
            e.I('ds_read_b64_tr_b16 %s, v%d offset:%d' % (vr(wd_reg(n >> 1) + 4 * dq + 2 * (n & 1), 2), DA + 4 * (sl >> 1) + dq,
                                                         (sl & 1) * SLOT + pos * 2048), tag=('wr', n))

    def setup2():
        e.I('v_lshrrev_b32 v20, 2, v0\nv_lshlrev_b32 v20, 7, v20\nv_bfe_u32 v21, v0, 3, 2\nv_lshl_add_u32 v20, v21, 5, v20')
        e.I('v_and_b32 v21, 3, v0\nv_lshl_add_u32 v20, v21, 3, v20\nv_add_u32 v%d, s%d, v20' % (DA, sMW))
        for dq in range(1, 4):
            e.I('v_xor_b32 v%d, %d, v%d' % (DA + dq, 32 * dq, DA))
        for k in (1, 2):
            for dq in range(4):
                e.I('v_add_u32 v%d, %d, v%d' % (DA + 4 * k + dq, k * WIN, DA + dq))
        e.I('s_mul_i32 s%d, s%d, %d' % (T0, sRT, 2 * 88064))
        e.I('v_add_u32 v%d, s%d, v1\nv_add_u32 v%d, 88064, v%d' % (AV, T0, AV + 1, AV))
        e.I('s_mul_i32 s%d, s%d, 44\ns_mul_i32 s%d, s%d, 11\ns_add_u32 s%d, s%d, s%d\ns_mul_i32 s%d, s%d, %d\ns_add_u32 s%d, s%d, 0x%x' %
            (T0, sRT, T1, sW, T0, T0, T1, T0, T0, 2 * FS, T0, T0, AF_OFF))
        e.I('v_mul_u32_u24 v20, %d, v0' % FS)
        e.I('s_mov_b32 s%d, 0x3fffff\ns_cmp_eq_u32 s%d, 3\ns_cselect_b32 s%d, 0xfffff, s%d\ns_mov_b32 s%d, 0' % (sMA, sW, sMA, sMA, sMA + 1))

    for n in range(NPRE, 11):
        for k in range(3):
            if cfg.flagpos[k] + NPRE == n:
                if k == 2:
                    setup2()
                act_flag(k)
                if k == 2:
                    st(e, 'flagged')
        if n < 10:
            dma_D(n)
    st(e, '_d9')
    cnt_spin(e, 'L_spinB2', 22, 24, C_DONEA)
    if cfg.prioD[1] != cfg.prioD[0]:
        e.I('s_setprio %d' % cfg.prioD[1])
    st(e, '_da')
    jitter(e, cfg, 3)
    pulled = [0]

    def d_step(n):
        dma_D(n)
        while pulled[0] < min(14, 3 * (n - 9), n - 3):
            wd_read(pulled[0])
            pulled[0] += 1
        if n == 14:
            e.wait(lg=('wr', 9))
            set_m0(e, sMW, L_P2)
            e.I('s_mov_b64 exec, 1')
            e.I('buffer_load_dword off, %s, s%d lds' % (srd(SWD), SWD + 2), tag='init')
            e.I('s_mov_b64 exec, -1')
        if n == -cfg.posXB:
            bar_X()

    def bar_X():
        assert pulled[0] >= 12
        e.wait(vm='init', lg=('wr', 11))
        st(e, '_aX')
        e.I('s_barrier')

    for n in range(10, cfg.alook):
        d_step(n)
    st(e, 'wdiss')
    nd = cfg.alook + cfg.abet
    poll(e, 'L_pollA', 21, 20, T0, 's[%d:%d]' % (sMA, sMA + 1), lambda: [d_step(n) for n in range(cfg.alook, nd)])
    st(e, 'actrdy')
    jitter(e, cfg, 4)
    if cfg.prioF2n < 0:
        e.I('s_setprio %d' % cfg.prioF2)
    elif cfg.prioD[1]:
        e.I('s_setprio 0')

    TL = cfg.TL
    sSV = 92
    NM = 11 - TL

    order = [(n2, t4) for n2 in range(NM) for t4 in range(4)] + [(n2, t4) for t4 in range(4) for n2 in range(NM, 11)]

    def a_reg(n2, t4):
        return 208 + 4 * (order.index((n2, t4)) % 12)

    pend = []
    rq = []

    def flush(n=99):
        for t in pend[:n]:
            e.I(t)
        del pend[:n]

    def a_load(n2, t4):
        if t4 == 0:
            flush()
        so = sAC if n2 < NM else sSV + n2 - NM
        e.I('buffer_load_dwordx4 %s, v%d, %s, s%d offen offset:%d sc1' % (vr(a_reg(n2, t4), 4), AV + (t4 >> 1), srd(SWS), so, 1024 * (t4 & 1)),
            tag=('a', n2, t4))
        if n2 < 10 and t4 == (3 if n2 < NM else 0):
            dst = sAC if n2 + 1 < NM else sSV + n2 + 1 - NM
            pend.append('s_add_u32 s%d, s%d, 2048' % (dst, so))
            pend.append('s_cmp_eq_u32 s%d, s%d\ns_cselect_b32 s%d, s%d, s%d' % (dst, sAE, dst, sAB, dst))
            if n2 == 9:
                pend.append('s_cmp_eq_u32 s%d, 3\ns_cselect_b32 s%d, 0x%x, s%d' % (sW, dst, OOB, dst))

    lq = []
    for k, t in enumerate(order):
        lq.append(('a', k))
        if k & 1 and nd < 22:
            lq.append(('d', nd))
            nd += 1
    dn = [cfg.alook + cfg.abet - 1]
    nis = [0]

    def issue(k, busy):
        while lq:
            t = lq[0]
            tag = ('a',) + order[k]
            nv = min(cfg.NV, cfg.NV0[0] + max(0, k - cfg.NV0[1]))
            if nis[0] > k and (len(e.vm) - 1 - e.vm.index(tag) >= nv - 1 if tag in e.vm else len(e.vm) >= nv):
                return
            if t[0] == 'a':
                if t[1] >= busy + 12:
                    return
                a_load(*order[t[1]])
                nis[0] = t[1] + 1
            else:
                d_step(t[1])
                dn[0] = t[1]
            lq.pop(0)

    wq = []
    zq = [list(g) for g in cfg.zg]
    since = [0]

    def w_pop():
        t = wq.pop(0)
        if t is not None:
            t4, i = t
            assert not rq
            hi = 32768 if t4 == 3 else 0
            set_m0(e, sMW, hi)
            e.I('ds_write_addtid_b32 v%d offset:%d' % (acc2(t4, 0) + i, t4 * SLOT - hi + 256 * i), tag=('pw', t4))
            if i == 15 and t4 == zq[0][-1]:
                since[0] = cfg.zlag + 1
        if since[0]:
            since[0] -= 1
            if since[0] == 0:
                z_bar()

    def z_bar():
        e.wait(lg=('pw', zq.pop(0)[-1]))
        e.I('s_barrier')

    def mm2(k):
        n2, t4 = order[k]
        if k == 0:
            issue(k, k)
        while rq and rq[0][0] >> 1 <= (order[k + 2][0] if k + 2 < 4 * NM + TL else 99):
            t = rq.pop(0)
            wd_read(t[0], [t[1]])
        e.wait(vm=('a', n2, t4), lg=('wr', 2 * n2 + 1))
        for dq in range(4):
            d = 3 - dq if cfg.snake and n2 < NM and t4 & 1 else dq
            mfma16(e, acc2(t4, d), a_reg(n2, t4), wd_reg(n2) + 4 * d, n2 == 0)
            if dq == 0 and lq:
                issue(k + 1, k)
            elif pend and dq < 3:
                flush(1)
            elif rq and dq < 3:
                t = rq.pop(0)
                wd_read(t[0], [t[1]])
            elif wq:
                w_pop()
        if n2 == 10:
            if t4 == 0:
                wq.extend([None, None])
            wq.extend((t4, i) for i in range(16))

    for n2 in range(NM):
        st(e, '_n%d' % n2)
        if n2 == cfg.prioF2n:
            e.I('s_setprio %d' % cfg.prioF2)
        while pulled[0] <= min(2 * n2 + 5, 13):
            assert dn[0] >= pulled[0]
            wd_read(pulled[0])
            pulled[0] += 1
        if n2 == cfg.posXB:
            bar_X()
        for t4 in range(4):
            mm2(4 * n2 + t4)
        if cfg.pull0 <= n2 < cfg.pull0 + 4:
            m2 = n2 - cfg.pull0 + 7
            assert dn[0] >= 2 * m2 + 1
            rq.extend((2 * m2 + hf, dq) for hf in range(2) for dq in range(4))
    assert cfg.pull0 + 4 <= NM
    for k in range(4 * NM, 44):
        mm2(k)
    if cfg.prioF2:
        e.I('s_setprio 0')
    st(e, 'f2end')
    jitter(e, cfg, 5)
    while wq:
        w_pop()
    while zq:
        z_bar()
    st(e, 'end')
    st.flush(e)
    e.I('s_endpgm')


def gen_A(e, cfg, st):
    LR, LI, L16, L128, L256, L16S, KAP, WV = 48, 49, 50, 52, 54, 56, 58, 60
    PP = 32
    SIDX = 3
    RE, IM = 64, 80
    XA, BA = 192, 204
    CV, CA, CA4, WDV = 96, 100, 104, 108
    EV0, EV1, EOOB, ERD, ECNT, EEXP, ONE, FLA, XW, XR, P16 = range(110, 121)
    SEL = 216
    RING0 = 144
    sHD, sHF, sES, sEL, sROT, sDTX = 86, 87, 90, 91, 92, 80
    sDC, sDB, sDE = 93, 94, 95
    if cfg.slim:
        tile_ids(e, cfg, False)
    e.I('v_lshlrev_b32 v1, 4, v0')
    e.I('v_and_b32 v21, 0x13, v0\nv_bfe_u32 v22, v0, 2, 1\nv_lshl_add_u32 v21, v22, 3, v21\nv_bfe_u32 v22, v0, 3, 1\nv_lshl_add_u32 v21, v22, 2, v21')
    e.I('s_lshl_b32 s%d, s%d, 6' % (T0, sCB))
    e.I('v_lshl_add_u32 v21, v21, 1, s%d' % T0)
    e.I('s_lshl_b32 s%d, s%d, 2\ns_add_u32 s%d, s%d, s%d\ns_lshl_b32 s%d, s%d, 4\ns_add_u32 s%d, s%d, s%d' %
        (T3, sRB, T3, T3, sW, T3, T3, T3, T3, sCB))
    e.I('s_lshl_b32 s%d, s%d, 11' % (T2, T3))
    frag_addr(e, BA, 4, 5)
    def karg_block():
        e.wait_smem()
        st(e, '_karg')
        mk_srd(e, SX, P_X, 2048 * 1024)
        mk_srd(e, SWS, P_WS, WS_SIZE)
        e.I('s_mov_b32 s%d, 0x%x\ns_lshl_b32 s%d, s%d, 6' % (T4, EPOCH_OFF, T0, sCB))
        e.I('s_load_dword s3, s[%d:%d], s%d' % (P_WS, P_WS + 1, T4))
        for p in (P_LRE, P_LIM, P_LDT):
            e.I('s_load_dword s3, s[%d:%d], s%d' % (p, p + 1, T0))
        e.I('s_lshr_b32 s%d, s2, 3\ns_lshl_b32 s%d, s%d, 2\ns_add_u32 s%d, s%d, s%d\ns_and_b32 s%d, s%d, 15\ns_lshl_b32 s%d, s%d, 6' %
            (T0, T0, T0, T0, T0, sW, T0, T0, T0, T0))
        for p in (P_GW, P_DSK):
            e.I('s_load_dword s3, s[%d:%d], s%d' % (p, p + 1, T0))
        if 's' in cfg.prewarm:
            code_touch(e, 'A')

    if not cfg.apre:
        karg_block()

    def small0():
        e.I('buffer_load_dword v19, off, %s, s%d sc1' % (srd(SWS), T4), tag='ep')
        e.I('global_load_ushort v16, v21, s[%d:%d]' % (P_LRE, P_LRE + 1), tag='par')
        e.I('global_load_ushort v17, v21, s[%d:%d]' % (P_LIM, P_LIM + 1), tag='par')
        e.I('global_load_ushort v18, v21, s[%d:%d]' % (P_LDT, P_LDT + 1), tag='par')

    small1 = [lambda: e.I('global_load_dwordx4 v[44:47], v1, s[%d:%d]' % (P_GW, P_GW + 1), tag='g'),
              lambda: e.I('buffer_load_dwordx4 v[36:39], v1, %s, s%d offen' % (srd(SX), T2), tag='g'),
              lambda: e.I('buffer_load_dwordx4 v[40:43], v1, %s, s%d offen offset:1024' % (srd(SX), T2), tag='g')]
    e.I('s_lshl_b32 s%d, s%d, 3\ns_add_u32 s%d, s%d, 0x%x' % (T6, T3, T6, T6, G_OFF))
    GA, GW0, GO = 121, 124, 126
    if cfg.glds:
        small1 = [lambda: e.I('global_load_dwordx4 v[44:47], v%d, s[%d:%d]' % (GW0, P_GW, P_GW + 1), tag='g'),
                  lambda: e.I('global_load_dwordx4 v[192:195], v%d, s[%d:%d]' % (GW0 + 1, P_GW, P_GW + 1), tag='g')]
        e.I('s_bfe_u32 s%d, s%d, 0x20001\ns_lshl_b32 s%d, s%d, 2\ns_lshr_b32 s%d, s%d, 3\ns_lshl_b32 s%d, s%d, 1\ns_add_u32 s%d, s%d, s%d' %
            (T0, sCB, T0, T0, T1, sCB, T1, T1, T0, T0, T1))
        e.I('s_and_b32 s%d, s%d, 1\ns_add_u32 s%d, s%d, s%d' % (T1, sCB, T0, T0, T1))
        e.I('s_and_b32 s%d, s%d, 7\ns_lshl_b32 s%d, s%d, 8\ns_lshl_b32 s%d, s%d, 12\ns_add_u32 s%d, s%d, s%d' % (T1, T0, T0, T0, T2, sW, T0, T0, T2))
        e.I('v_and_b32 v4, 15, v0\nv_xor_b32 v4, s%d, v4\nv_lshl_add_u32 v%d, v4, 4, s%d' % (T1, GA, T0))
        e.I('v_add_u32 v%d, %d, v%d\nv_add_u32 v%d, %d, v%d' % (GA + 1, WIN, GA, GA + 2, 2 * WIN, GA))
        e.I('v_lshrrev_b32 v4, 4, v0\nv_add_u32 v4, s%d, v4\nv_and_b32 v4, 7, v4\nv_and_b32 v5, 7, v0\nv_lshlrev_b32 v5, 4, v5' % sK0)
        e.I('v_lshl_add_u32 v%d, v4, 7, v5\nv_xor_b32 v%d, 0x200, v%d' % (GW0, GW0 + 1, GW0))
        e.I('v_bfe_u32 v4, v0, 3, 1\nv_lshlrev_b32 v%d, 2, v4' % GO)

    e.I('s_lshl_b32 s%d, s%d, 12' % (T0, sW))
    for s in range(4):
        e.I('v_add_u32 v%d, s%d, v%d' % (XA + s, T0, BA + s))
        e.I('v_add_u32 v%d, %d, v%d' % (XA + 4 + s, WIN, XA + s))
        e.I('v_add_u32 v%d, %d, v%d' % (BA + 4 + s, WIN, BA + s))
        if cfg.lag:
            e.I('v_add_u32 v%d, %d, v%d\nv_add_u32 v%d, %d, v%d' % (XA + 8 + s, 2 * WIN, XA + s, BA + 8 + s, 2 * WIN, BA + s))
    w_lane_offsets(e, cfg, WV, 24, 25)
    e.I('v_lshrrev_b32 v24, 5, v0\ns_lshl_b32 s%d, s%d, 1' % (T0, sW))
    e.I('v_add_u32 v%d, s%d, v24' % (SIDX, T0))
    if cfg.apre:
        karg_block()
    rot2_calc(e, cfg, sROT, 0)
    if cfg.rotS:
        e.I('s_and_b32 s%d, s%d, %d\ns_lshl_b32 s%d, s%d, %d\ns_xor_b32 s%d, s%d, s%d' % (T0, sCT, cfg.rotS[0], T0, T0, cfg.rotS[1], sROT, sROT, T0))
    e.I('s_and_b32 s%d, s%d, 1\ns_lshr_b32 s%d, s%d, 1' % (sDTX, sROT, sROT, sROT))
    e.I('s_bitcmp1_b32 s%d, 0' % sROT)
    mk_srd_sel(e, SC1, P_CIM, P_CRE, 512 * 1024)
    mk_srd_sel(e, SC2, P_CRE, P_CIM, 512 * 1024)
    mk_srd(e, SWD, P_WD, 1376 * 1024)
    step_start(e, cfg, sDC, sDB, sDE, 15)
    e.I('s_cmp_ge_u32 s%d, 2' % sW)
    mk_srd_sel(e, SWA, P_WU, P_WG, 512 * 2752)
    e.I('s_lshl_b32 s%d, s%d, 2\ns_add_u32 s%d, s%d, s%d' % (T0, sRB, T0, T0, sW))
    HW_ = 16384 + cfg.hpad[0]
    HT_ = 4 * HW_ + cfg.hpad[1]
    assert H_OFF + 64 * HT_ <= E_OFF
    e.I('s_mul_i32 s%d, s%d, %d\ns_lshr_b32 s%d, s%d, 1\ns_lshl_b32 s%d, s%d, 13\ns_add_u32 s%d, s%d, s%d' %
        (sHD, T0, HT_, T1, sCB, T1, T1, sHD, sHD, T1))
    e.I('s_lshr_b32 s%d, s%d, 2\ns_mul_i32 s%d, s%d, %d\ns_add_u32 s%d, s%d, s%d' % (T1, sCB, T1, T1, cfg.hpad[0], sHD, sHD, T1))
    e.I('s_and_b32 s%d, s%d, 1\ns_lshl_b32 s%d, s%d, 11\ns_add_u32 s%d, s%d, s%d\ns_add_u32 s%d, s%d, 0x%x' %
        (T1, sCB, T1, T1, sHD, sHD, T1, sHD, sHD, H_OFF))
    e.I('s_lshr_b32 s%d, s%d, 1\ns_lshl_b32 s%d, s%d, 4\ns_add_u32 s%d, s%d, s%d\ns_lshl_b32 s%d, s%d, 1' %
        (T1, T0, T1, T1, T1, T1, sCB, T1, T1))
    e.I('s_and_b32 s%d, s%d, 1\ns_add_u32 s%d, s%d, s%d\ns_mul_i32 s%d, s%d, %d\ns_add_u32 s%d, s%d, 0x%x' %
        (T0, T0, T1, T1, T0, T1, T1, FS, sHF, T1, HF_OFF))
    e.I('s_lshl_b32 s%d, s%d, 13\ns_add_u32 s%d, s%d, 0x%x' % (sEL, sCB, sEL, sEL, E_OFF))
    e.I('s_lshl_b32 s%d, s%d, 9\ns_add_u32 s%d, s%d, s%d\ns_cmp_eq_u32 s%d, 0\ns_cselect_b32 s%d, s%d, 0x%x' %
        (sES, sRB, sES, sES, sEL, sW, sES, sES, OOB))
    e.I('s_sub_u32 s%d, s%d, 1024' % (sEL, sEL))

    tch = Touch(e, cfg, 'A')
    tch.setup()
    tch.at(-1)

    e.I('s_lshl_b32 s%d, s%d, 9\ns_add_u32 s%d, s%d, %d' % (T0, sW, T0, T0, L_E))
    e.I('v_lshl_add_u32 v%d, v0, 3, s%d' % (XW, T0))
    e.I('v_and_b32 v6, 31, v0\nv_lshlrev_b32 v%d, 4, v6\nv_lshlrev_b32 v6, 3, v6\nv_add_u32 v%d, %d, v6' % (P16, XR, L_E))
    e.I('v_and_b32 v4, 3, v0\nv_bfe_u32 v5, v0, 3, 2\nv_lshl_add_u32 v4, v5, 2, v4')
    e.I('v_bfe_u32 v5, v0, 2, 1\nv_lshrrev_b32 v6, 5, v0\nv_xor_b32 v5, v5, v6\nv_lshl_add_u32 v4, v5, 4, v4')
    e.I('v_and_b32 v5, 1, v0\nv_lshlrev_b32 v5, 4, v5\nv_mov_b32 v6, 0x3f80\nv_lshlrev_b32 v5, v5, v6\nv_lshrrev_b32 v4, 1, v4')
    for n in range(8):
        e.I('v_cmp_eq_u32 vcc, %d, v4\nv_cndmask_b32 v%d, 0, v5, vcc' % (n, SEL + n))
    e.I('v_and_b32 v6, 7, v0\nv_lshrrev_b32 v7, 4, v0\nv_xor_b32 v6, v6, v7\nv_lshlrev_b32 v6, 4, v6')
    e.I('v_lshrrev_b32 v7, 3, v0\nv_lshl_add_u32 v6, v7, 10, v6')
    e.I('s_lshl_b32 s%d, s%d, 16\ns_lshl_b32 s%d, s%d, 8\ns_add_u32 s%d, s%d, s%d' % (T0, sCT, T1, sW, T0, T0, T1))
    e.I('v_add_u32 v%d, s%d, v6\nv_xor_b32 v7, 64, v%d' % (CV, T0, CV))
    e.I('v_add_u32 v%d, 7168, v7\nv_add_u32 v%d, 14336, v%d\nv_add_u32 v%d, 21504, v7' % (CV + 1, CV + 2, CV, CV + 3))
    frag16_addr(e, CA, 6, 7)
    for s in range(2):
        e.I('v_add_u32 v%d, s%d, v%d' % (CA + s, sMW, CA + s))
        e.I('v_add_u32 v%d, %d, v%d' % (CA4 + s, 4 * SLOT, CA + s))
    HS = CA + 2
    e.I('v_and_b32 v6, 15, v0\nv_lshlrev_b32 v6, 4, v6\nv_bfe_u32 v7, v0, 4, 1\nv_lshl_add_u32 v6, v7, 10, v6')
    e.I('v_lshrrev_b32 v7, 5, v0\nv_lshl_add_u32 v%d, v7, 8, v6' % HS)
    e.I('s_lshr_b32 s88, s%d, 1\ns_lshl_b32 s88, s88, 7\ns_lshl_b32 s89, s%d, 15\ns_add_u32 s88, s88, s89\ns_xor_b32 s89, s88, 128' % (sROT, sDTX))
    e.I(wd_lane_offsets(e, WDV, 6, 7))
    e.I('s_lshl_b32 s%d, s%d, 2\ns_sub_u32 s%d, s%d, s%d\ns_sub_u32 s%d, s%d, 1\ns_lshl_b32 s%d, s%d, 11' % (T0, sW, T0, sRB, T0, T0, T0, T5, sW))
    e.I('v_lshrrev_b32 v6, 5, v0\nv_sub_u32 v7, s%d, v6' % T0)
    e.I('v_cmp_le_i32 vcc, 0, v7\nv_cmp_le_i32 s[%d:%d], 2, v7' % (sMB, sMB + 1))
    e.I('v_lshl_add_u32 v7, v7, 9, v%d\nv_add_u32 v7, 1024, v7\nv_subrev_u32 v5, 2048, v7\nv_mov_b32 v%d, 0x%x' % (P16, EOOB, OOB))
    e.I('v_cndmask_b32 v%d, v%d, v7, vcc\nv_cndmask_b32 v%d, v%d, v5, s[%d:%d]' % (EV0, EOOB, EV1, EOOB, sMB, sMB + 1))
    e.I('v_lshl_add_u32 v7, v6, 12, v%d\nv_add_u32 v%d, %d, v7' % (P16, ERD, L_EG))
    e.I('v_lshlrev_b32 v6, 3, v6\nv_sub_u32 v%d, s%d, v6\nv_med3_i32 v%d, v%d, 0, 8' % (ECNT, sRB, EEXP, ECNT))
    e.I('v_mov_b32 v%d, 1\nv_mov_b32 v%d, %d' % (ONE, FLA, L_FL))

    pro = []
    add = lambda t: [pro.append(lambda x=x: e.I(x)) for x in t.split('\n')]

    def csq(d, a):
        add('v_mul_f32 v30, v%d, v%d\nv_mul_f32 v31, v%d, v%d\nv_fma_f32 v%d, -v%d, v%d, v30\nv_add_f32 v%d, v31, v31' %
            (a, a, a, a + 1, d, a + 1, a + 1, d + 1))

    def cmul(d, a, b):
        add('v_mul_f32 v30, v%d, v%d\nv_mul_f32 v31, v%d, v%d\nv_fma_f32 v30, -v%d, v%d, v30\nv_fma_f32 v%d, v%d, v%d, v31\nv_mov_b32 v%d, v30' %
            (a, b, a, b + 1, a + 1, b + 1, d + 1, a + 1, b, d))

    pro.append(lambda: e.wait(vm=['ep', 'par']))
    add('v_readfirstlane_b32 s%d, v19' % sNONCE)
    add('v_lshlrev_b32 v16, 16, v16\nv_lshlrev_b32 v17, 16, v17\nv_lshlrev_b32 v18, 16, v18')
    add('s_add_u32 s%d, s%d, 0x%x\ns_or_b32 s%d, s%d, 1' % (sNONCE, sNONCE, PHI, sNONCE, sNONCE))
    add('v_mul_f32 v18, 0x%x, v18\nv_exp_f32 v18, v18\nv_cvt_pk_bf16_f32 v18, v18, v18\nv_lshlrev_b32 v18, 16, v18' % LOG2E)
    add('v_mul_f32 v21, v18, v16\nv_mul_f32 v22, v18, v17')
    add('v_mul_f32 v21, 0x%x, v21\nv_exp_f32 v21, v21' % LOG2E)
    add('v_mul_f32 v22, 0.15915494, v22\nv_rndne_f32 v23, v22\nv_sub_f32 v22, v22, v23\nv_sin_f32 v23, v22\nv_cos_f32 v22, v22')
    add('v_mul_f32 v%d, v21, v23\nv_mul_f32 v%d, v21, v22' % (LI, LR))
    add('v_mul_f32 v21, v16, v16\nv_fmac_f32 v21, v17, v17\nv_rcp_f32 v21, v21\nv_add_f32 v22, -1.0, v%d\nv_add_f32 v21, v21, v21' % LR)
    add('v_mul_f32 v23, v22, v16\nv_fmac_f32 v23, v%d, v17\nv_mul_f32 v%d, v23, v21' % (LI, KAP))
    add('v_mul_f32 v23, v%d, v16\nv_fma_f32 v23, -v22, v17, v23\nv_mul_f32 v%d, v23, v21' % (LI, KAP + 1))
    csq(22, LR); csq(22, 22); csq(22, 22); csq(L16, 22)
    csq(22, L16); csq(24, 22); csq(L128, 24); csq(L256, L128); csq(L256, L256); csq(L256, L256)
    for bit, src, dst in ((1, L16, L16S), (2, 22, 22), (4, 24, 24)):
        add('v_and_b32 v26, %d, v%d\nv_cmp_ne_u32 vcc, 0, v26' % (bit, SIDX))
        add('v_cndmask_b32 v%d, 1.0, v%d, vcc\nv_cndmask_b32 v%d, 0, v%d, vcc' % (dst, src, dst + 1, src + 1))
    cmul(L16S, L16S, 22); cmul(L16S, L16S, 24)
    add('v_mul_lo_u32 v%d, v%d, s%d\nv_mov_b32 v2, s%d' % (EEXP, EEXP, sNONCE, sNONCE))
    EDIR = 'e0' in cfg.prog
    EVK = 132
    if EDIR:
        for k in range(8):
            add('v_subrev_u32 v%d, %d, v%d\nv_cmp_le_i32 vcc, 2, v%d\nv_lshl_add_u32 v%d, v%d, 9, v%d\nv_cndmask_b32 v%d, v%d, v%d, vcc' %
                (EVK + k, k - 1, ECNT, EVK + k, EVK + k, EVK + k, P16, EVK + k, EOOB, EVK + k))

    par, pro = pro, []
    pro.append(lambda: e.wait(vm='g'))
    if cfg.glds:
        for k in range(8):
            gw, x = (44 + k if k < 4 else 188 + k), 36 + k
            add('v_lshlrev_b32 v24, 16, v%d\nv_and_b32 v25, 0xffff0000, v%d' % (gw, gw))
            add('v_lshlrev_b32 v26, 16, v%d\nv_and_b32 v27, 0xffff0000, v%d' % (x, x))
            add('v_mul_f32 v26, v26, v24\nv_mul_f32 v27, v27, v25\nv_cvt_pk_bf16_f32 v26, v26, v27')
            if k == 0:
                add('v_lshlrev_b32 v28, 16, v26\nv_and_b32 v29, 0xffff0000, v26')
            else:
                add('v_lshlrev_b32 v27, 16, v26\nv_and_b32 v26, 0xffff0000, v26\nv_add_f32 v28, v28, v27\nv_add_f32 v29, v29, v26')
        add('v_add_f32 v28, v28, v29')
        for sh in (1, 2, 4):
            add('v_add_f32_dpp v28, v28, v28 row_shr:%d row_mask:0xf bank_mask:0xf' % sh)
        for wd in (32, 16):
            add('v_mov_b32 v29, v28\nv_permlane%d_swap_b32 v28, v29\nv_add_f32 v28, v28, v29' % wd)
        add('v_cvt_pk_bf16_f32 v28, v28, v28\nv_lshlrev_b32 v28, 16, v28\nv_mul_f32 v28, 0x%x, v28\nv_exp_f32 v28, v28' % NLOG2E)
        add('v_add_f32 v28, 1.0, v28\nv_rcp_f32 v28, v28\nv_cvt_pk_bf16_f32 v28, v28, v28\nv_lshlrev_b32 v28, 16, v28')
    else:
        for k in range(4):
            add('v_lshlrev_b32 v24, 16, v%d\nv_and_b32 v25, 0xffff0000, v%d' % (44 + k, 44 + k))
            for row in range(2):
                x = 36 + 4 * row + k
                add('v_lshlrev_b32 v26, 16, v%d\nv_and_b32 v27, 0xffff0000, v%d' % (x, x))
                add('v_mul_f32 v26, v26, v24\nv_mul_f32 v27, v27, v25\nv_cvt_pk_bf16_f32 v26, v26, v27')
                add('v_lshlrev_b32 v27, 16, v26\nv_and_b32 v26, 0xffff0000, v26')
                if k == 0:
                    add('v_add_f32 v%d, v26, v27' % (28 + row))
                else:
                    add('v_add_f32 v26, v26, v27\nv_add_f32 v%d, v%d, v26' % (28 + row, 28 + row))
        for mod in ('row_shr:1 row_mask:0xf', 'row_shr:2 row_mask:0xf', 'row_shr:4 row_mask:0xf', 'row_shr:8 row_mask:0xf',
                    'row_bcast:15 row_mask:0xa', 'row_bcast:31 row_mask:0xc'):
            for row in range(2):
                add('v_add_f32_dpp v%d, v%d, v%d %s bank_mask:0xf' % (28 + row, 28 + row, 28 + row, mod))
        add('v_cvt_pk_bf16_f32 v26, v28, v29\nv_lshlrev_b32 v28, 16, v26\nv_and_b32 v29, 0xffff0000, v26')
        add('v_mul_f32 v28, 0x%x, v28\nv_mul_f32 v29, 0x%x, v29\nv_exp_f32 v28, v28\nv_exp_f32 v29, v29' % (NLOG2E, NLOG2E))
        add('v_add_f32 v28, 1.0, v28\nv_add_f32 v29, 1.0, v29\nv_rcp_f32 v28, v28\nv_rcp_f32 v29, v29')
        add('v_cvt_pk_bf16_f32 v26, v28, v29\nv_lshlrev_b32 v28, 16, v26\nv_and_b32 v29, 0xffff0000, v26')
    gate, pro = pro, par

    gdone = []

    def g_store():
        gdone.append(1)
        if cfg.glds:
            e.I('s_mov_b64 exec, 0x8080')
            e.I('buffer_store_dword v28, v%d, %s, s%d offen sc1' % (GO, srd(SWS), T6), tag='gs')
            e.I('s_mov_b64 exec, -1')
            return
        e.I('s_mov_b32 exec_lo, 0\ns_mov_b32 exec_hi, 0x80000000')
        e.I('buffer_store_dwordx2 v[28:29], off, %s, s%d sc1' % (srd(SWS), T6), tag='gs')
        e.I('s_mov_b64 exec, -1')

    nbar = [0]

    def s_bar(i):
        assert nbar[0] == i
        nbar[0] += 1
        e.I('s_barrier')
        if i in (0, 7):
            st(e, 'b%d' % i)

    def s_read(n):
        i, s = n >> 2, n & 3
        slot = s_slot(i)
        if s == 0 and not cfg.lag:
            s_bar(i)
        assert nbar[0] > i
        off = (slot & 1) * SLOT
        if cfg.glds and s == 2:
            m = 0xffff << (16 * (i & 3))
            e.I('s_mov_b32 exec_lo, 0x%x\ns_mov_b32 exec_hi, 0x%x' % (m & 0xffffffff, m >> 32))
            e.I('ds_read_b128 %s, v%d offset:%d' % (vr(36 + 4 * (i >> 2), 4), GA + (slot >> 1), off), tag='gx')
            e.I('s_mov_b64 exec, -1')
        b = RING0 + 12 * (n & 3)
        e.I('ds_read_b128 %s, v%d offset:%d' % (vr(b + 8, 4), XA + 4 * (slot >> 1) + s, off), tag=('s', n, 0))
        for part in range(2):
            e.I('ds_read_b128 %s, v%d offset:%d' % (vr(b + 4 * part, 4), BA + 4 * (slot >> 1) + s,
                                                    off + 16384 + part * 4096), tag=('s', n, part))

    def s_mm(n, part):
        e.wait(lg=('s', n, part))
        b = RING0 + 12 * (n & 3)
        mfma(e, RE + 16 * part, b + 8, b + 4 * part, n == 0)

    D = 2
    seq = []
    for n in range(32):
        seq.append(lambda n=n: (s_mm(n, 0), s_read(n + D) if n + D < 32 else None))
        seq.append(lambda n=n: s_mm(n, 1))
    st(e, '_pro')
    if cfg.lag:
        L = cfg.lag
        npar = len(pro) // max(L - 1, 1) + 1
        for i in range(L):
            s_bar(i)
            tch.at(10 + i)
            if i == 0:
                small0()
            if i >= 1:
                run(pro[(i - 1) * npar:i * npar])
        s_bar(L)
        for n in range(D):
            s_read(n)
        r2 = 2 * cfg.lagr
        for k, it in enumerate(seq):
            it()
            i = L + (k + 1) // r2
            if (k + 1) % r2 == 0 and i <= 7:
                assert (k + 1) // 2 >= 4 * (i - 3)
                s_bar(i)
    else:
        for n in range(D):
            s_read(n)
        p0 = 2 * cfg.smallpos
        run(seq[:p0])
        small0()
        run(seq[p0:p0 + 10])
        run(weave(seq[p0 + 10:56], pro) + seq[56:])
    assert nbar[0] == 8
    st(e, 's1end')
    jitter(e, cfg, 6)
    if cfg.prioA:
        e.I('s_setprio %d' % cfg.prioA)

    def items(txt):
        return [lambda t=t: e.I(t) for t in txt.split('\n')]

    def cfma(d, l, a, c):
        return items('v_fma_f32 v%d, v%d, v%d, v%d\nv_fma_f32 v%d, v%d, v%d, v%d\nv_fma_f32 v%d, -v%d, v%d, v%d\nv_fmac_f32 v%d, v%d, v%d' %
                     (d, l, a, c, d + 1, l, a + 1, c + 1, d, l + 1, a + 1, d, d + 1, l + 1, a))

    e.raw('; ---- role A: local scan end states')
    prev = (RE, IM)
    for r in range(1, 16):
        cur = (20 + 2 * (r & 1), 21 + 2 * (r & 1))
        e.I('v_fma_f32 v%d, v%d, v%d, v%d' % (cur[0], LR, prev[0], RE + r))
        e.I('v_fma_f32 v%d, v%d, v%d, v%d' % (cur[1], LR, prev[1], IM + r))
        e.I('v_fma_f32 v%d, -v%d, v%d, v%d' % (cur[0], LI, prev[1], cur[0]))
        e.I('v_fmac_f32 v%d, v%d, v%d' % (cur[1], LI, prev[0]))
        prev = cur
    e.I('ds_write_b64 v%d, %s' % (XW, vr(prev[0], 2)), tag='ex')

    def c_reg(u, s2, dq):
        return 128 + 32 * u + 16 * s2 + 4 * dq

    CBUF = cfg.cbuf
    CPREV = {i: max(k for k in range(i) if CBUF[k] == CBUF[i]) for i in range(8) if CBUF[i] in CBUF[:i]}
    cdone = set()
    hdone = []

    def c_read(i):
        if i in cdone:
            return
        cdone.add(i)
        assert gdone or not cfg.glds or i < 4
        assert hdone or not EDIR
        assert i < 4 or hdone
        e.wait(vm=('c', i))
        for s in range(4):
            a_, off = (CA4 + (s >> 1), 0) if CBUF[i] == 4 else (CA + (s >> 1), CBUF[i] * SLOT)
            e.I('ds_read_b128 %s, v%d offset:%d' % (vr(c_reg(i >> 1, s >> 1, 2 * (i & 1) + (s & 1)), 4), a_, off + (s & 1) * 2048), tag=('cr', i))

    def c_loads(i):
        u, dt = i >> 1, i & 1
        its = []
        for q in range(4):
            def f(q=q):
                if q == 0:
                    if i in CPREV:
                        c_read(CPREV[i])
                        e.wait(lg=('cr', CPREV[i]))
                    elif CBUF[i] != 4 and (6 + CBUF[i] > cfg.JL or 4 + CBUF[i] >= 8 - cfg.NT):
                        assert kcur[0] >= cfg.JL
                        cnt_spin(e, 'L_cb%d' % i, FLA, 34, C_CONS + 28)
                    e.I('s_xor_b32 s%d, s%d, %d' % (sTD, 88 + (u >> 1), dt * 32768))
                set_m0(e, sMW, CBUF[i] * SLOT)
                e.I('buffer_load_dwordx4 v%d, %s, s%d offen offset:%d %slds' % ((CV + q, srd(SC2 if u & 1 else SC1), sTD, 1024 * q) + (ntf('c', i),)), tag=('c', i))
                if q == 3:
                    st(e, '_c%d' % i)
                if q == 3 and i >= 2:
                    c_read(i - 2)
            its.append(f)
        return its

    def d_loads(n):
        sl, pos = RING[n]
        its = []
        for q in range(2):
            def f(q=q):
                set_m0(e, sMW, sl * SLOT + pos * 2048)
                if q == 0 and n:
                    wd_next(e, n, sDC, sDB, sDE)
                e.I('buffer_load_dwordx4 v%d, %s, s%d offen offset:%d %slds' % ((WDV + q, srd(SWD), sDC, 1024 * q) + (ntf('d', n),)), tag='wd')
            its.append(f)
        return its

    wl = {j: dma_W(e, WV, SWA, j) for j in range(2, 8)}
    planned = set()

    def e_loads():
        its = []
        for q in range(2):
            def f(q=q):
                set_m0(e, T5, L_EG)
                e.I('buffer_load_dwordx4 v%d, %s, s%d offen offset:%d sc1 lds' % (EV0 + q, srd(SWS), sEL, 1024 * q), tag='eg')
            its.append(f)
        return its

    def expand(toks, k):
        r = []
        for t in toks.split(','):
            if not t:
                continue
            n = int(t[1])
            planned.add(t)
            if t[0] == 'W':
                assert n < 4 or k >= n - 2 or (k == n - 3 and k in cfg.drain)
                r += wl[n][:3] if t[2:] == 'a' else wl[n][3:] if t[2:] == 'b' else wl[n]
            elif t[0] == 'C':
                assert CBUF[n] == 4 or k >= min(6 + CBUF[n], cfg.JL)
                assert k >= 2 or cfg.w0pos is None
                r += c_loads(n)
            elif t[0] == 'D':
                r += d_loads(n)
            elif t[0] == 'R':
                r.append(lambda n=n: c_read(n))
            elif t[0] == 'S':
                r.append(lambda n=n: (hq[n](), hsent.add(n)))
            elif t[0] == 'G':
                r += small1
            elif t[0] == 'e':
                r += [lambda k=k: e.I('buffer_load_dwordx4 %s, v%d, %s, s%d offen sc1' % (vr(224 + 4 * k, 4), EVK + k, srd(SWS), sEL), tag='egv')
                      for k in range(8)]
            elif t[0] == 'E':
                r += e_loads()
            elif t[0] == 'T':
                r.append(lambda n=n: tch.at(n))
        return r

    def bar(k, extra=()):
        kk = 7 if k == cfg.JL else k
        assert kk < 2 or 'W%d' % kk in planned or 'W%db' % kk in planned or (kk == 2 and cfg.w0pos is not None)
        e.wait(vm=[('st', 8 + kk)] + list(extra))
        st(e, '_a%d' % k)
        e.I('s_barrier')
        st(e, '_d%d' % k)

    sc = []
    for r in range(16):
        sc += items('v_mul_f32 v4, v%d, v%d\nv_mul_f32 v5, v%d, v%d\nv_fma_f32 v%d, v%d, v%d, -v4\nv_fma_f32 v%d, v%d, v%d, v5' %
                    (KAP + 1, IM + r, KAP + 1, RE + r, RE + r, KAP, RE + r, IM + r, KAP, IM + r))
    if cfg.pksc:
        kp = vr(KAP, 2)
        for r in range(0, 16, 4):
            for o in (0, 2):
                e.I('v_pk_mul_f32 %s, %s, %s op_sel:[1,0] op_sel_hi:[1,1]' % (vr(4 + 2 * o, 2), kp, vr(IM + r + o, 2)))
                e.I('v_pk_mul_f32 %s, %s, %s op_sel:[1,0] op_sel_hi:[1,1]' % (vr(6 + 2 * o, 2), kp, vr(RE + r + o, 2)))
            for o in (0, 2):
                e.I('v_pk_fma_f32 %s, %s, %s, %s op_sel_hi:[0,1,1] neg_lo:[0,0,1] neg_hi:[0,0,1]' % (vr(RE + r + o, 2), kp, vr(RE + r + o, 2), vr(4 + 2 * o, 2)))
                e.I('v_pk_fma_f32 %s, %s, %s, %s op_sel_hi:[0,1,1]' % (vr(IM + r + o, 2), kp, vr(IM + r + o, 2), vr(6 + 2 * o, 2)))
        late = []
    else:
        run(sc[:cfg.early])
        late = sc[cfg.early:]
    e.wait(lg='all')
    bar(0)
    work = []
    for s in range(8):
        e.I('ds_read_b64 %s, v%d offset:%d' % (vr(4 + 2 * s, 2), XR, 256 * s), tag=('e', s))
    pf = []
    for s in range(1, 8):
        pf.append(lambda s=s: e.wait(lg=('e', s)))
        pf += cfma(4 + 2 * s, L16, 2 + 2 * s, 4 + 2 * s)
    segs = [[sub.split('|') for sub in sg.split('&')] for sg in cfg.prog.split(';')]
    issued_tok = set()
    q0 = expand(segs[0][0][0], 0)
    run(weave(q0[:cfg.pren], pf))
    e.I('v_mov_b32 v20, s%d\nv_mov_b32 v21, s%d' % (sNONCE, sNONCE))
    e.I('s_mov_b32 exec_hi, 0')
    e.I('buffer_store_dwordx4 v[18:21], v%d, %s, s%d offen sc1' % (P16, srd(SWS), sES), tag='es')
    e.I('s_mov_b32 exec_hi, -1')
    st(e, 'epub')
    jitter(e, cfg, 7)
    run(q0[cfg.pren:])
    gate.append(g_store)
    sel = items('v_mov_b32 v%d, 0\nv_mov_b32 v%d, 0' % (PP, PP + 1))
    for s in range(1, 8):
        sel.append(lambda s=s: e.I('v_cmp_eq_u32 vcc, %d, v%d\nv_cndmask_b32 v%d, v%d, v%d, vcc\nv_cndmask_b32 v%d, v%d, v%d, vcc' %
                                   (s, SIDX, PP, PP, 2 + 2 * s, PP + 1, PP + 1, 3 + 2 * s)))
    EG = 224

    def e_check():
        e.I('v_add3_u32 v4, v%d, v%d, v%d\nv_add3_u32 v5, v%d, v%d, v%d' % tuple(EG + 4 * k + 2 for k in range(6)))
        e.I('v_add3_u32 v4, v4, v%d, v%d\nv_add_u32 v4, v4, v5' % (EG + 26, EG + 30))
        e.I('v_cmp_ne_u32 vcc, v4, v%d' % EEXP)

    def e_verify():
        assert 'e0' in issued_tok or not EDIR
        e.wait(vm='egv', lg='eg')
        e_check()
        e.I('s_cbranch_vccnz L_pollE')
        e.label('L_pollE_out')
        st(e, 'egot')
        with e.cold_block():
            e.label('L_pollE')
            e.I('s_mov_b32 s%d, 0' % sCNT)
            e.label('L_pollE_l')
            for k in range(8):
                e.I('v_subrev_u32 v4, %d, v%d\nv_cmp_le_i32 vcc, 2, v4\nv_lshl_add_u32 v4, v4, 9, v%d\nv_cndmask_b32 v4, v%d, v4, vcc' % (k - 1, ECNT, P16, EOOB))
                e.I('buffer_load_dwordx4 %s, v4, %s, s%d offen sc1' % (vr(EG + 4 * k, 4), srd(SWS), sEL))
            e.I('s_add_u32 s%d, s%d, 1' % (sCNT, sCNT))
            e.I('s_cmp_gt_u32 s%d, %d' % (sCNT, SPIN_MAX))
            e.wait(vm='all')
            e.I('s_cbranch_scc1 L_pollE_out')
            e_check()
            e.I('s_cbranch_vccnz L_pollE_l')
            e.I('s_branch L_pollE_out')

    def second_pass():
        p2 = []
        if not EDIR:
            p2.append(lambda: [e.I('ds_read_b128 %s, v%d offset:%d' % (vr(EG + 4 * k, 4), ERD, 512 * k), tag='eg') for k in range(8)])
        p2.append(e_verify)
        for k in range(6, -1, -1):
            p2 += cfma(EG + 4 * k, L128, EG + 4 * k + 4, EG + 4 * k)
        p2 += items('v_mov_b32 v4, v%d\nv_mov_b32 v5, v%d\nv_permlane32_swap_b32 v4, v%d\nv_permlane32_swap_b32 v5, v%d' % (EG, EG + 1, EG, EG + 1))
        p2 += cfma(4, L256, EG, 4)
        p2 += cfma(PP, L16S, 4, PP)
        p2 += items('v_mul_f32 v6, v%d, v%d\nv_mul_f32 v7, v%d, v%d' % (KAP, PP, KAP, PP + 1))
        p2 += items('v_fma_f32 v6, -v%d, v%d, v6\nv_fmac_f32 v7, v%d, v%d' % (KAP + 1, PP + 1, KAP + 1, PP))
        prev = (6, 7)
        for r in range(16):
            p2 += items('v_fmac_f32 v%d, v%d, v%d\nv_fmac_f32 v%d, v%d, v%d\nv_fma_f32 v%d, -v%d, v%d, v%d\nv_fmac_f32 v%d, v%d, v%d' %
                        (RE + r, LR, prev[0], IM + r, LR, prev[1], RE + r, LI, prev[1], RE + r, IM + r, LI, prev[0]))
            prev = (RE + r, IM + r)
        return p2

    def store_h(loads):
        assert not p2
        for part in range(2):
            for k in range(8):
                sg_ = '-' if part else ''
                e.I('v_cvt_pk_bf16_f32 v%d, %sv%d, %sv%d' % (8 + 8 * part + k, sg_, RE + 16 * part + 2 * k, sg_, RE + 16 * part + 2 * k + 1))
            for m in range(2):
                mfma(e, RE + 16 * part, 8 + 8 * part + 4 * m, SEL + 4 * m, m == 0)
        hdone.append(1)
        run(loads)
        e.I('s_add_u32 s%d, s%d, 4096' % (T0, sHD))
        for part in range(2):
            for m in range(2):
                o = 8 + 8 * part + 4 * m
                for k in range(4):
                    e.I('v_cvt_pk_bf16_f32 v%d, v%d, v%d' % (o + k, RE + 16 * part + 8 * m + 2 * k, RE + 16 * part + 8 * m + 2 * k + 1))
                hq.append(lambda o=o, part=part, m=m: e.I('buffer_store_dwordx4 %s, v%d, %s, s%d offen offset:%d sc1' %
                                                         (vr(o, 4), HS, srd(SWS), T0 if part else sHD, 512 * m), tag='hs'))
                if len(hq) <= cfg.hnow:
                    hq[-1]()
                    hsent.add(len(hq) - 1)

    hq = []
    hsent = set()
    kcur = [0]
    p2 = second_pass()
    for k, sub, toks, work in [(k, i, t, w) for k, sg in enumerate(segs) for i, (t, w) in enumerate(sg)]:
        if k == 0:
            continue
        if k <= cfg.JL and sub == 0:
            bar(k, ['eg'] if work[:1] == 'P' else [])
        kcur[0] = k
        q = expand(toks, k)
        if work[:3] == 'sel' or work[:1] == 'g':
            fill = []
            for wk in work.split('+'):
                if wk == 'sel':
                    fill += sel + ([] if 'late' in cfg.prog else late)
                else:
                    n = len(gate) if wk == 'g' else int(wk[1:])
                    fill += gate[:n]
                    del gate[:n]
            run(weave(q, fill) if not cfg.lfirst else q[:cfg.lfirst] + weave(q[cfg.lfirst:] or [lambda: None], fill))
        elif work == 'late':
            run(weave(q, late))
        elif work[:1] == 'P':
            assert EDIR or 'eg' not in e.vm
            wk = work.rstrip('H')
            n = cfg.p2cut if wk == 'P0' else len(p2) if wk in ('P', 'P1') else int(wk[1:])
            part = p2[:n]
            del p2[:n]
            run(part[:1] + (weave(q, part[1:]) if q else part[1:]))
            if work[-1] == 'H':
                st(e, 'p2done')
                store_h([])
        elif work[:1] == 'H':
            st(e, 'p2done')
            store_h(q)
            run(expand(work[2:], k))
        elif work == 'F':
            run(hq[n] for n in range(4) if n not in hsent)
            st(e, 'hst')
            jitter(e, cfg, 8)
            run(q)
            assert gdone and len(hq) == 4
            e.wait(vm=['hs', 'gs'])
            flag_store(e, 2, sHF)
            st(e, 'hflag')
            jitter(e, cfg, 9)
        else:
            run(q)
        issued_tok.update(toks.split(','))
    assert len(segs) > cfg.JL
    HV, PW = 6, 8
    rest = [i for i in range(8) if 'C%d' % i not in planned]
    run(c_loads(rest.pop(0)))
    e.I('s_mul_i32 s%d, s%d, %d\ns_mul_i32 s%d, s%d, %d\ns_add_u32 s%d, s%d, s%d\ns_add_u32 s%d, s%d, 0x%x' %
        (T0, sRT, 2 * HT_, T1, sW, HW_, T0, T0, T1, T0, T0, H_OFF))
    e.I('v_add_u32 v%d, s%d, v1\nv_add_u32 v%d, %d, v%d' % (HV, T0, HV + 1, HT_, HV))
    for u in range(4):
        e.I('s_xor_b32 s%d, s%d, %d\ns_lshl_b32 s%d, s%d, 12' % (93 + u, sROT, u, 93 + u, 93 + u))
    part_write_addr(e, PW, 12, 13, 16384, 4096, SPART)
    mk_srd(e, SOUT, P_OUT, 2048 * 2048)
    e.I('s_lshl_b32 s%d, s%d, 2\ns_add_u32 s%d, s%d, s%d\ns_mul_i32 s%d, s%d, %d\ns_add_u32 s%d, s%d, 0x%x' %
        (T0, sRT, T0, T0, sW, T0, T0, 8 * FS, T0, T0, HF_OFF))
    e.I('v_mul_u32_u24 v12, %d, v0\nv_mov_b32 v5, v2' % FS)

    def h_reg(k):
        return 16 + 4 * (k % 12)

    def h_load(k):
        n2, t4 = k >> 2, k & 3
        e.I('buffer_load_dwordx4 %s, v%d, %s, s%d offen offset:%d sc1' % (vr(h_reg(k), 4), HV + (t4 >> 1), srd(SWS), 93 + (n2 >> 1),
                                                                            2048 * (n2 & 1) + 1024 * (t4 & 1)), tag=('h', k))

    def c_finish():
        for i in range(8):
            c_read(i)
        e.wait(vm='wd')
        cnt_add(e, FLA, ONE, C_DONEA)
        st(e, 'cgot')

    while rest and rest[0] < cfg.hlook:
        run(c_loads(rest.pop(0)))
    if cfg.hlook > 8:
        c_finish()
    poll(e, 'L_pollH', 13, 12, T0, '0xff',
         lambda: ([run(c_loads(i)) for i in rest], c_finish() if cfg.hearly == 0 and cfg.hlook <= 8 else None))
    st(e, 'hrdy')
    jitter(e, cfg, 10)
    XO, RA, GV, RF = 2, 3, 4, 14
    ROWS = (0, 8, 32, 40)
    XL, DL, GL, XD, PW1 = 128, 136, 138, 144, 10
    fin = items('s_lshl_b32 s%d, s%d, 6\ns_add_u32 s%d, s%d, s%d' % (T0, sRT, T0, T0, sW))
    fin += items('v_lshrrev_b32 v12, 4, v0\nv_lshrrev_b32 v13, 2, v0\nv_and_b32 v13, 2, v13\nv_xor_b32 v12, v12, v13')
    fin += items('v_and_b32 v15, 1, v12\nv_lshl_add_u32 v13, v15, 4, s%d\nv_lshrrev_b32 v3, 1, v12\nv_lshl_add_u32 v13, v3, 2, v13' % T0)
    fin += items('v_and_b32 v14, 15, v0\ns_lshl_b32 s%d, s%d, 7' % (T1, sCT))
    fin += items('v_lshl_add_u32 v1, v14, 3, s%d' % T1)
    fin += items('v_lshl_add_u32 v%d, v13, 10, v1' % XO)
    fin += items('v_lshlrev_b32 v%d, 2, v13\nv_add_u32 v%d, 0x%x, v%d' % (GV, GV, G_OFF, GV))
    fin += items('s_lshl_b32 s%d, s%d, 8\ns_add_u32 s%d, s%d, %d' % (T2, sW, T1, T2, SPART))
    fin += items('v_lshl_add_u32 v3, v3, 10, s%d\nv_lshl_add_u32 v3, v15, 14, v3' % T1)
    fin += items('v_lshl_or_b32 v13, v15, 2, s%d\nv_xor_b32 v13, v13, v14\nv_lshl_add_u32 v%d, v13, 4, v3' % (sW, RA))
    fin += items('v_lshl_add_u32 v12, v12, 6, s%d\nv_lshrrev_b32 v13, 2, v14\nv_lshl_add_u32 v12, v13, 10, v12' % T2)
    fin += items('v_and_b32 v13, 3, v0\nv_lshl_add_u32 v%d, v13, 4, v12\nv_add_u32 v%d, %d, v%d' % (RF, RF + 1, 2 * SLOT, RF))
    fin += items('s_lshl_b32 s%d, s%d, 7' % (T0, sDTX))
    for a in range(2):
        fin += items('v_xor_b32 v%d, s%d, v%d\nv_xor_b32 v%d, 0x80, v%d' % (PW + a, T0, PW + a, PW1 + a, PW + a))
    if cfg.posX < 0:
        run(fin)
    for k in range(cfg.NVA):
        if cfg.posX < 0 and k == -1 - cfg.posX:
            assert k >= cfg.hearly
            e.wait(lg='all')
            e.I('s_barrier')
        if k == cfg.hearly // 2 and k:
            c_read(6)
        if k == cfg.hearly and k:
            c_finish()
        h_load(k)
    e.wait(lg='all')
    if cfg.posX >= 0:
        run(fin)

    def fx_loads():
        e.I('global_load_dwordx2 %s, v1, s[%d:%d]' % (vr(DL, 2), P_DSK, P_DSK + 1), tag='fx')
        for n in range(4):
            e.I('s_mov_b32 s%d, %d' % (T2, 1024 * ROWS[n]))
            e.I('buffer_load_dwordx2 %s, v%d, %s, s%d offen' % (vr(XL + 2 * n, 2), XO, srd(SX), T2), tag='fx')

    def g_loads():
        for n in range(4):
            e.I('buffer_load_dword v%d, v%d, %s, 0 offen offset:%d sc1' % (GL + n, GV, srd(SWS), 4 * ROWS[n]), tag='fg')

    DU = 160
    xd = [lambda: e.wait(vm='fx')]
    xd += items('v_lshlrev_b32 v%d, 16, v%d\nv_and_b32 v%d, 0xffff0000, v%d\nv_lshlrev_b32 v%d, 16, v%d\nv_and_b32 v%d, 0xffff0000, v%d' %
                (DU, DL, DU + 1, DL, DU + 2, DL + 1, DU + 3, DL + 1))
    for n in range(4):
        for k in range(2):
            x = XL + 2 * n + k
            xd += items('v_lshlrev_b32 v12, 16, v%d\nv_and_b32 v13, 0xffff0000, v%d' % (x, x))
            xd += items('v_mul_f32 v12, v12, v%d\nv_mul_f32 v13, v13, v%d' % (DU + 2 * k, DU + 1 + 2 * k))
            xd += items('v_cvt_pk_bf16_f32 v13, v12, v13')
            xd += items('v_lshlrev_b32 v%d, 16, v13\nv_and_b32 v%d, 0xffff0000, v13' % (XD + 4 * n + 2 * k, XD + 4 * n + 2 * k + 1))
    xd += items('v_mov_b32 v12, %d\nv_mov_b32 v13, 1\nv_lshlrev_b32 v%d, 1, v%d' % (L_P2, XO, XO))

    def s2_step(k):
        n2, t4 = k >> 2, k & 3
        if k == 2 * cfg.posX:
            e.I('s_barrier')
        e.wait(vm=('h', k))
        for dq in range(4):
            d = 3 - dq if cfg.snake and t4 & 1 else dq
            mfma16(e, acc2(t4, d), c_reg(n2 >> 1, n2 & 1, d), h_reg(k), n2 == 0)
            if dq == (0 if cfg.NVA < 12 else 3) and k + cfg.NVA < 32:
                h_load(k + cfg.NVA)
        if k == 8:
            fx_loads()
        if k == max(8, 2 * cfg.posX):
            g_loads()
    steps = [lambda k=k: s2_step(k) for k in range(32)]
    if cfg.xdpos < 32:
        run(steps[:cfg.xdpos] + weave(steps[cfg.xdpos:], xd))
    else:
        run(steps + xd[-3:])
    st(e, 's2end')
    jitter(e, cfg, 11)
    if cfg.posX == 16:
        e.I('s_barrier')
        g_loads()
    st(e, '_X')
    run(part_write(e, PW, 16384, 0, PW1) + part_write(e, PW, 16384, 1, PW1))
    cnt_add(e, 12, 13, 0)
    if cfg.xdpos >= 32:
        run(xd[:-1])
    OM = 164
    e.wait(vm='fg')
    for n in range(4):
        e.I('v_sub_f32 v%d, 1.0, v%d' % (OM + n, GL + n))
        e.I('v_cvt_pk_bf16_f32 v%d, v%d, v%d\nv_lshlrev_b32 v%d, 16, v%d' % (OM + n, OM + n, OM + n, OM + n, OM + n))
    for n in range(4):
        e.I('s_mov_b32 s%d, %d' % (T2 + n, 2048 * ROWS[n]))
    e.I('s_lshl_b32 s%d, s%d, 5\ns_add_u32 s%d, s%d, s%d\ns_lshl_b32 s%d, s%d, 8\ns_add_u32 s%d, s%d, s%d' %
        (T0, sCT, T0, T0, sRT, T1, sW, T0, T0, T1))
    e.I('s_cmp_eq_u32 s%d, 31\ns_cselect_b32 s%d, 0x%x, s%d' % (T0, T0, EPOCH_OFF, SWS + 2))
    flag_store(e, 5, T0)
    cnt_spin(e, 'L_spinM', 12, 16, 0)
    e.wait(lg='all')
    for n in range(4):
        for w in range(4):
            e.I('ds_read_b128 %s, v%d offset:%d' % (vr(64 + 16 * n + 4 * w, 4), RA, w * 4096 + (n & 1) * 2048 + (n >> 1) * 32768), tag=('r', n))
    BS = XD
    for n in range(4):
        e.wait(lg=('r', n))
        b = 64 + 16 * n
        for k in range(4):
            e.I('v_add_f32 v%d, v%d, v%d\nv_add_f32 v%d, v%d, v%d' % (b + k, b + k, b + 4 + k, b + 8 + k, b + 8 + k, b + 12 + k))
        for k in range(4):
            e.I('v_add_f32 v%d, v%d, v%d' % (b + k, b + k, b + 8 + k))
        for k in range(4):
            e.I('v_add_f32 v%d, v%d, v%d' % (b + k, b + k, XD + 4 * n + k))
        for k in range(4):
            e.I('v_mul_f32 v%d, v%d, v%d' % (BS + 4 * n + k, GL + n, b + k))
    st(e, 'pre')
    jitter(e, cfg, 12)
    for grp in cfg.zg:
        e.I('s_barrier')
        st(e, 'Z' if 3 in grp else '_Z%d' % grp[0])
        for n in grp:
            for w in range(4):
                e.I('ds_read_b128 %s, v%d offset:%d' % (vr(64 + 16 * n + 4 * w, 4), RF + (n >> 1), w * 6144 + (n & 1) * SLOT), tag=('r', n, w >> 1))
        for n in grp:
            b = 64 + 16 * n
            for o, p in ((0, 4), (8, 12), (0, 8)):
                e.wait(lg=('r', n, o >> 3))
                if 3 in grp:
                    for k in (0, 2):
                        e.I('v_pk_add_f32 %s, %s, %s' % (vr(b + o + k, 2), vr(b + o + k, 2), vr(b + p + k, 2)))
                else:
                    for k in range(4):
                        e.I('v_add_f32 v%d, v%d, v%d' % (b + o + k, b + o + k, b + p + k))
            if cfg.mimic2:
                for rnd in range(2):
                    e.I('v_cvt_pk_bf16_f32 v%d, v%d, v%d\nv_cvt_pk_bf16_f32 v%d, v%d, v%d' % (b + 1, b, b + 1, b + 3, b + 2, b + 3))
                    for k in (0, 2):
                        e.I('v_lshlrev_b32 v%d, 16, v%d\nv_and_b32 v%d, 0xffff0000, v%d' % (b + k, b + k + 1, b + k + 1, b + k + 1))
                    if rnd == 0:
                        for k in range(4):
                            e.I('v_mul_f32 v%d, v%d, v%d' % (b + k, OM + n, b + k))
                for k in (0, 2):
                    e.I('v_pk_add_f32 %s, %s, %s' % (vr(b + k, 2), vr(b + k, 2), vr(BS + 4 * n + k, 2)))
            else:
                for k in range(4):
                    e.I('v_fma_f32 v%d, v%d, v%d, v%d' % (b + k, OM + n, b + k, BS + 4 * n + k))
            e.I('buffer_store_dwordx4 %s, v%d, %s, s%d offen %s' % (vr(b, 4), XO, srd(SOUT), T2 + n, cfg.outflags if isinstance(cfg.outflags, str) else cfg.outflags[n]), tag='out')
    if st.on:
        e.wait(vm='all')
    st(e, 'end')
    st.flush(e)


HEADER = open(os.path.join(os.path.dirname(os.path.abspath(__file__)), '..', 'cdna_kernels', BASE + '.s.ref')).read()


DOC = """;
;   S: B stages x and B_re/B_im through LDS (LDS-DMA) and keeps its x fragments in registers; A computes B.x.
;      local end states -> workgroup end state published in d_ws -> carry-in from ALL earlier row blocks ->
;      second pass; h is transposed with two selection MFMAs.  h, act (bf16, fragment order) and the gate go to d_ws.
; Hand-offs: write-through stores, counter wait, then a flag word; readers poll with L1-bypassing loads.
"""


def generate(cfg):
    SLEEP[:] = cfg.sleep
    FL.clear()
    FL.update(cfg.nt)
    W_SLOT[0] = 0 if cfg.w0pos is None else 4
    S_SHIFT[0] = -1 if cfg.lag else 0 if cfg.w0pos is None else 1
    assert cfg.w0pos is None
    hdr = []
    for line in HEADER.split('\n'):
        if not line.startswith(';'):
            break
        if '@launch' in line:
            line = '; @launch grid=(256,1,1) block=(512,1,1) lds=%d' % LDS_BYTES
            if cfg.pre_kernel is not None:
                line = '; @launch kernel=%s grid=(256,1,1) block=(512,1,1) lds=%d' % (NAME, LDS_BYTES)
                if cfg.pre_kernel:
                    line = '; @launch kernel=warm_kernel grid=(256,1,1) block=(256,1,1) lds=0\n' + line
        hdr.append(line)
    stB = Stamps(cfg, [38, 6, 8, 14, 16, 18, 20, 22, 30, 32, 34, 4, 10, 12, 24, 26], 'B')
    stA = Stamps(cfg, [38, 10, 12, 22, 34, 24, 26, 6, 8, 18, 28, 14, 16, 30, 36, 4], 'A')
    e = Em()
    gen_entry(e, cfg, stB)
    stA.names = list(stB.names)
    eA = Em()
    eA.hist = list(e.hist)
    eA.vm = list(e.vm)
    gen_B(e, cfg, stB)
    gen_A(eA, cfg, stA)
    txt = '\n'.join(hdr) + '\n' + DOC
    txt += '.amdgcn_target "amdgcn-amd-amdhsa--gfx950"\n.text\n.globl %s\n.p2align 8\n.type %s,@function\n%s:\n' % (NAME, NAME, NAME)
    txt += e.text() + '\n' + '\n'.join(e.cold) + '\n.p2align 6\nL_A:\n' + eA.text() + '\n    s_endpgm\n' + '\n'.join(eA.cold) + '\nL_end:\n    s_endpgm\n'
    if cfg.pre_kernel:
        w = Em()
        w.I('s_cmp_ge_u32 s2, 256\ns_cbranch_scc1 L_wend')
        if cfg.pre_kernel != 'empty':
            w.I('s_load_dwordx16 s[4:19], s[0:1], 0\ns_load_dwordx16 s[20:35], s[0:1], 64')
            w.I('s_lshl_b32 s3, s2, 8\nv_add_u32 v0, s3, v0\nv_lshlrev_b32 v1, 7, v0')
            w.wait_smem()
            base = 0
            for p, n in ((P_X, 2048 * 1024), (P_BRE, 524288), (P_BIM, 524288), (P_WG, 1409024), (P_WU, 1409024), (P_CRE, 524288), (P_CIM, 524288), (P_WD, 1409024)):
                mk_srd(w, 40, p, n)
                w.I('v_subrev_u32 v2, %d, v1\nv_cmp_gt_u32 vcc, %d, v2\ns_and_saveexec_b64 s[44:45], vcc\ns_cbranch_execz L_w%d' % (base, n, p))
                w.I('buffer_load_dword v3, v2, s[40:43], 0 offen')
                w.label('L_w%d' % p)
                w.I('s_mov_b64 exec, s[44:45]')
                base += n
            if cfg.pre_kernel == 'wait':
                w.I('s_waitcnt vmcnt(0)')
        txt += '.globl warm_kernel\n.p2align 8\n.type warm_kernel,@function\nwarm_kernel:\n' + w.text() + '\nL_wend:\n    s_endpgm\n'
    txt += '''.section .rodata,"a"
.p2align 6
.amdhsa_kernel %s
  .amdhsa_next_free_vgpr 256
  .amdhsa_next_free_sgpr 102
  .amdhsa_accum_offset 256
  .amdhsa_group_segment_fixed_size 0
  .amdhsa_kernarg_size 136
  .amdhsa_user_sgpr_count 2
  .amdhsa_user_sgpr_kernarg_segment_ptr 1
  .amdhsa_system_sgpr_workgroup_id_x 1
  .amdhsa_float_denorm_mode_32 3
.end_amdhsa_kernel
''' % NAME
    if cfg.pre_kernel:
        txt += '''.p2align 6
.amdhsa_kernel warm_kernel
  .amdhsa_next_free_vgpr 8
  .amdhsa_next_free_sgpr 48
  .amdhsa_accum_offset 8
  .amdhsa_group_segment_fixed_size 0
  .amdhsa_kernarg_size 136
  .amdhsa_user_sgpr_count 2
  .amdhsa_user_sgpr_kernarg_segment_ptr 1
  .amdhsa_system_sgpr_workgroup_id_x 1
.end_amdhsa_kernel
'''
    info = dict(A=eA.count, B=e.count, nopsA=eA.nops, nopsB=e.nops, stampsA=stA.names, stampsB=stB.names)
    return txt, info


def cfg_from(args):
    cfg = Cfg()
    for a in args:
        k, v = a.split('=')
        setattr(cfg, k, eval(v))
    return cfg


if __name__ == '__main__':
    out = sys.argv[1]
    cfg = cfg_from(sys.argv[2:])
    txt, info = generate(cfg)
    open(out, 'w').write(txt)
    print(info)
```

```python
import sys, os
sys.path.insert(0, os.path.dirname(os.path.abspath(__file__)))
from em import Em, weave

BASE = 'gated_mix__ssm_conv_s5__swiglu_ffn__prompt'
NAME = BASE + '_kernel'

ACT_OFF = 0
H_OFF = 0x600000
E_OFF = 0xB00000
G_OFF = 0xB20000
HF_OFF = 0xB24000
AF_OFF = 0xB30000
EPOCH_OFF = 0xB48000
STAMP_OFF = 0xB50000
WS_SIZE = 0xB80000
OOB = 0x2000000
FS = 32
PHI = 0x9E3779B8

SLOT = 24576
WIN = 49152
SCR = 147456
SPART = 98304
L_E, L_FL, L_EG = SCR, SCR + 4096, SCR + 8192
L_P2 = 3 * SLOT + 4096
LDS_BYTES = 163840

P_X, P_LRE, P_LIM, P_BRE, P_BIM, P_CRE, P_CIM, P_LDT = 4, 6, 8, 10, 12, 14, 16, 18
P_DSK, P_BX, P_WG, P_WU, P_WD, P_GW, P_OUT, P_DBG, P_WS = 20, 22, 24, 26, 28, 30, 32, 34, 36
SX, SWS = 40, 44
SBM, SW, SWD = 48, 52, 56
SC1, SC2, SOUT, SCODE = 48, 52, 56, 60
SWA = 60
sWAVE, sW, sRB, sCB, sK0, sRT, sCT, sNONCE, sSG0 = 64, 65, 66, 67, 68, 69, 70, 71, 72
T0, T1, T2, T3, T4, T5, T6 = 73, 74, 75, 76, 77, 78, 79
sNL2E = 80
sMA, sMB = 82, 84
sTBL = 86
sCNT = 97
sTS, sTW, sTD = 98, 99, 100
sMX, sMBm = 60, 61
sMW = 101
SPIN_MAX = 200000

SLEEP = [0, 0]
FL = {}


def ntf(key, stage):
    return 'nt ' if stage < FL.get(key, 0) else ''


LOG2E = 0x3fb8aa3b
NLOG2E = 0xbfb8aa3b


class Cfg:
    mimic = False
    mimic2 = False
    stamps = False
    rot1 = (2, 4, 2, 1)
    rot2 = 7
    rotF = 0
    rotS = None
    map2 = 84
    prewarm = 'v'
    pwn = 4
    slim = True
    blate = True
    lfirst = 0
    glds = True
    xloc = True
    defer = True
    apre = True
    NT = 2
    early = 200
    w0pos = None
    s1a = 2
    smallpos = 2
    pre_kernel = None
    lag = 0
    lagr = 4
    JL = 7
    prog = 'W2,G0|;W3,C0|sel;W4|g53;E0,W5,D0,D1,D2,D3|g;W6|P0;W7|P1H;|;C1,C2,C3|F'
    p2cut = 72
    cbuf = (4, 0, 1, 4, 0, 1, 4, 0)
    tplan = ()
    zfill = True
    prioB = 0
    LA = 4
    posX = 10
    pren = 4
    asplit = True
    prioT = 1
    prioS = 0
    prioD = (1, 0)
    prioF2n = -1
    drain = ()
    hpad = (0, 0)
    hlook = 9
    hearly = 0
    hnow = 4
    sleep = (1, 1)
    skip = ''
    flagpos = (0, 0, 5)
    alook = 18
    abet = 3
    posXB = -17
    fine = True
    snake = True
    nt = {}
    pksc = True
    jitter = 0
    prioF2 = 1
    NVA = 11
    NV0 = (12, 0)
    xdpos = 32
    NV = 12
    TL = 4
    pull0 = 3
    zg = ((0, 1), (2, 3))
    zlag = 3
    outflags = 'sc1'
    selA = None
    selB = None
    prioA = 0
    amp = None


def srd(r):
    return 's[%d:%d]' % (r, r + 3)


def vr(a, n):
    return 'v[%d:%d]' % (a, a + n - 1) if n > 1 else 'v%d' % a


def mk_srd(e, r, p, nbytes):
    e.I('s_mov_b32 s%d, s%d\ns_mov_b32 s%d, s%d\ns_mov_b32 s%d, 0x%x\ns_mov_b32 s%d, 0x20000' %
        (r, p, r + 1, p + 1, r + 2, nbytes, r + 3))


def mk_srd_sel(e, r, p1, p0, nbytes):
    e.I('s_cselect_b32 s%d, s%d, s%d\ns_cselect_b32 s%d, s%d, s%d\ns_mov_b32 s%d, 0x%x\ns_mov_b32 s%d, 0x20000' %
        (r, p1, p0, r + 1, p1 + 1, p0 + 1, r + 2, nbytes, r + 3))


def mfma(e, d, a, b, first):
    e.I('v_mfma_f32_32x32x16_bf16 %s, %s, %s, %s' % (vr(d, 16), vr(a, 4), vr(b, 4), '0' if first else vr(d, 16)))


def mfma16(e, d, a, b, first):
    e.I('v_mfma_f32_16x16x32_bf16 %s, %s, %s, %s' % (vr(d, 4), vr(a, 4), vr(b, 4), '0' if first else vr(d, 4)))


class Stamps:
    def __init__(self, cfg, regs, role):
        self.amp = cfg.amp if cfg.amp else None
        self.role = role
        self.sel = (cfg.selA if role == 'A' else cfg.selB)
        if self.sel is not None:
            self.sel = self.sel.split(',')
        self.ins = 's_memtime' if cfg.stamps == 'cyc' else 's_memrealtime'
        self.on = cfg.stamps or bool(self.amp)
        self.regs = regs
        self.names = []

    def __call__(self, e, name):
        if not self.on:
            return
        if self.sel is not None:
            if name != 'start' and name not in self.sel:
                return
        elif name.startswith('_'):
            return
        r = self.regs[len(self.names)]
        self.names.append(name)
        if self.amp and name not in ('start', 'end', self.amp[1], self.amp[2]):
            return
        e.I('%s s[%d:%d]' % (self.ins, r, r + 1))

    def flush(self, e):
        if not self.on:
            return
        e.wait_smem()
        if self.amp:
            if self.amp[0] == self.role:
                R = dict(zip(self.names, self.regs))
                e.I('s_sub_u32 s%d, s%d, s%d' % (T0, R[self.amp[2]], R[self.amp[1]]))
                if self.amp[3] < 0:
                    e.I('s_min_u32 s%d, s%d, %d\ns_sub_u32 s%d, %d, s%d' % (T0, T0, self.amp[4], T0, self.amp[4], T0))
                e.I('s_mul_i32 s%d, s%d, %d\ns_min_u32 s%d, s%d, 50000' % (T0, T0, abs(self.amp[3]), T0, T0))
                if len(self.amp) > 5:
                    e.I('s_and_b32 s%d, s2, %d\ns_cmp_eq_u32 s%d, %d\ns_cselect_b32 s%d, s%d, 0' % (T1, self.amp[5], T1, self.amp[6], T0, T0))
                e.label('L_amp')
                e.I('s_memrealtime s[%d:%d]' % (T1, T1 + 1))
                e.wait_smem()
                e.I('s_sub_u32 s%d, s%d, s%d\ns_cmp_lt_u32 s%d, s%d\ns_cbranch_scc1 L_amp' % (T1, T1, R['end'], T1, T0))
            return
        e.I('s_lshl_b32 s%d, s2, 3\ns_add_u32 s%d, s%d, s%d\ns_lshl_b32 s%d, s%d, 6\ns_add_u32 s%d, s%d, 0x%x' %
            (T0, T0, T0, sWAVE, T0, T0, T0, T0, STAMP_OFF))
        e.I('s_mov_b64 exec, 1')
        for k in range(len(self.names)):
            e.I('v_mov_b32 v2, s%d' % self.regs[k])
            e.I('buffer_store_dword v2, off, %s, s%d offset:%d' % (srd(SWS), T0, 4 * k))


def jitter(e, cfg, key):
    if not cfg.jitter:
        return
    lab = 'L_jit%d' % key
    e.settle()
    e.I('s_lshl_b32 s%d, s2, 3\ns_add_u32 s%d, s%d, s%d' % (sCNT, sCNT, sCNT, sWAVE))
    e.I('s_mul_i32 s%d, s%d, 0x%x\ns_lshr_b32 s%d, s%d, 28' % (sCNT, sCNT, (0x9E3779B1 * (2 * key * cfg.jitter + 1)) & 0xffffffff, sCNT, sCNT))
    e.I('s_cmp_lt_u32 s%d, 12\ns_cbranch_scc1 %s_out' % (sCNT, lab))
    e.label(lab)
    e.I('s_sleep 40\ns_add_u32 s%d, s%d, 1\ns_cmp_lt_u32 s%d, 17\ns_cbranch_scc1 %s' % (sCNT, sCNT, sCNT, lab))
    e.label(lab + '_out')


def run(items):
    for it in items:
        it()


def poll(e, label, vt, vaddr, soff, mask, between=None):
    def look(tag=None):
        e.I('s_mov_b64 exec, %s' % mask)
        e.I('buffer_load_dword v%d, v%d, %s, s%d offen sc1' % (vt, vaddr, srd(SWS), soff), tag=tag)
        e.I('s_mov_b64 exec, -1')

    def check():
        e.I('v_cmp_ne_u32 vcc, s%d, v%d' % (sNONCE, vt))
        e.I('s_and_b64 vcc, vcc, %s' % mask)
    spin(e, label, look, check, between)


def spin(e, label, look, check, between):
    look('look')
    if between:
        between()
    e.wait(vm='look')
    check()
    e.I('s_cbranch_scc1 %s' % label)
    e.label(label + '_out')
    with e.cold_block():
        e.label(label)
        e.I('s_mov_b32 s%d, 0' % sCNT)
        e.label(label + '_l')
        if SLEEP[0]:
            e.I('s_sleep %d' % SLEEP[0])
        look()
        e.I('s_add_u32 s%d, s%d, 1' % (sCNT, sCNT))
        e.I('s_cmp_gt_u32 s%d, %d' % (sCNT, SPIN_MAX))
        e.wait(vm='all')
        e.I('s_cbranch_scc1 %s_out' % label)
        check()
        e.I('s_cbranch_scc1 %s_l' % label)
        e.I('s_branch %s_out' % label)


def code_touch(e, tag):
    e.I('s_getpc_b64 s[%d:%d]' % (sMA, sMA + 1))
    e.label('L_pc' + tag)
    e.I('s_sub_u32 s%d, s%d, L_pc%s-%s\ns_subb_u32 s%d, s%d, 0' % (sMA, sMA, tag, NAME, sMA + 1, sMA + 1))
    e.I('s_and_b32 s%d, s2, 0xf8\ns_add_u32 s%d, s%d, s%d\ns_lshl_b32 s%d, s%d, 6' % (T0, T0, T0, sWAVE, T0, T0))
    e.I('s_load_dword s3, s[%d:%d], s%d' % (sMA, sMA + 1, T0))
    e.I('s_add_u32 s%d, s%d, 16384\ns_min_u32 s%d, s%d, L_end-%s' % (T0, T0, T0, T0, NAME))
    e.I('s_load_dword s3, s[%d:%d], s%d' % (sMA, sMA + 1, T0))


def rot2_calc(e, cfg, dst, b):
    e.I('s_mul_i32 s%d, s%d, %d' % (dst, sCT, b))
    for k in range(1 if cfg.map2 == 84 else 2):
        e.I('s_add_u32 s%d, s%d, s%d' % (dst, dst, sRT))
    e.I('s_and_b32 s%d, s%d, %d' % (dst, dst, cfg.rot2))


def step_start(e, cfg, cur, beg, end, shift):
    rot2_calc(e, cfg, cur, cfg.rotF)
    e.I('s_cmp_eq_u32 s%d, 3\ns_cselect_b32 s%d, 10, 11' % (sW, end))
    e.I('s_mul_i32 s%d, s%d, s%d\ns_lshr_b32 s%d, s%d, 3\ns_mul_i32 s%d, s%d, 11' % (cur, cur, end, cur, cur, beg, sW))
    e.I('s_add_u32 s%d, s%d, s%d\ns_add_u32 s%d, s%d, s%d' % (cur, cur, beg, end, end, beg))
    for r in (cur, beg, end):
        e.I('s_lshl_b32 s%d, s%d, %d' % (r, r, shift))


def step_next(e, cur, beg, end, inc, wrap=True, last=False):
    e.I('s_add_u32 s%d, s%d, %d' % (cur, cur, inc))
    if wrap:
        e.I('s_cmp_eq_u32 s%d, s%d\ns_cselect_b32 s%d, s%d, s%d' % (cur, end, cur, beg, cur))
    if last:
        e.I('s_cmp_eq_u32 s%d, 3\ns_cselect_b32 s%d, 0x%x, s%d' % (sW, cur, OOB, cur))


def wd_next(e, n, cur, beg, end):
    step_next(e, cur, beg, end, 16384, n % 2 == 0, n == 20)


def set_m0(e, base, off):
    if getattr(e, 'm0', None) != (base, off):
        e.I('s_add_u32 m0, s%d, %d' % (base, off))
        e.m0 = (base, off)


def wd_lane_offsets(e, WDV, t0, t1):
    txt = 'v_lshrrev_b32 v%d, 4, v0\nv_lshlrev_b32 v%d, 1, v%d\nv_and_b32 v%d, 7, v0\nv_xor_b32 v%d, v%d, v%d\nv_lshlrev_b32 v%d, 4, v%d\n' % (
        t0, t0, t0, t1, t0, t0, t1, t0, t0)
    txt += 'v_lshrrev_b32 v%d, 3, v0\nv_lshl_add_u32 v%d, v%d, 10, v%d\n' % (t1, t0, t1, t0)
    txt += 's_lshl_b32 s%d, s%d, 7\n' % (T0, sCT)
    txt += 'v_add_u32 v%d, s%d, v%d\nv_add_u32 v%d, 7168, v%d' % (WDV, T0, t0, WDV + 1, WDV)
    return txt


RING = [(5, n) for n in range(3)] + [(4, 2)] + [(2 + n // 3, n % 3) for n in range(6)] + [(4, n) for n in range(2)] \
    + [(n // 3, n % 3) for n in range(6)] + [(2, n) for n in range(3)] + [(3, 0)]
PREV = {18: 4, 19: 5, 20: 6, 21: 7}


class Touch:
    def __init__(self, e, cfg, role):
        self.e, self.role = e, role
        self.plan = [p for p in cfg.tplan if p[0] == role]
        it = []
        for par in range(2):
            for p in (P_CRE, P_CIM):
                it += [(p, 128 * k + 64 * par) for k in range(4)]
        for par in range(2):
            it += [(P_WD, 128 * k + 64 * par) for k in range(11)]
        self.items = it

    def setup(self):
        if not self.plan:
            return
        e = self.e
        used = {self.items[k][0] for p in self.plan for k in range(p[2], p[3])}
        e.I('s_lshl_b32 s%d, s2, 2\ns_add_u32 s%d, s%d, s%d' % (T0, T0, T0, sW))
        for p in sorted(used):
            e.I('s_mul_i32 s%d, s%d, %d' % (T1, T0, 1376 if p == P_WD else 512))
            e.I('s_add_u32 s%d, s%d, s%d\ns_addc_u32 s%d, s%d, 0' % (p, p, T1, p + 1, p + 1))

    def at(self, place):
        for p in self.plan:
            if p[1] == place:
                for k in range(p[2], p[3]):
                    self.e.I('s_load_dword s3, s[%d:%d], %d' % (self.items[k][0], self.items[k][0] + 1, self.items[k][1]))


def flag_store(e, vt, soff, imm=0):
    e.I('s_mov_b64 exec, 1')
    e.I('buffer_store_dword v%d, off, %s, s%d offset:%d sc1' % (vt, srd(SWS), soff, imm), tag='flag')
    e.I('s_mov_b64 exec, -1')


def frag_addr(e, dst, t0, t1):
    e.I('v_lshrrev_b32 v%d, 5, v0' % t0)
    e.I('v_bfe_u32 v%d, v0, 1, 3' % t1)
    e.I('v_xor_b32 v%d, v%d, v%d' % (t0, t0, t1))
    e.I('v_and_b32 v%d, 31, v0' % t1)
    e.I('v_lshlrev_b32 v%d, 7, v%d' % (t1, t1))
    e.I('v_lshl_add_u32 v%d, v%d, 4, v%d' % (dst, t0, t1))
    for s in range(1, 4):
        e.I('v_xor_b32 v%d, %d, v%d' % (dst + s, 32 * s, dst))


def frag16_addr(e, dst, t0, t1):
    e.I('v_lshrrev_b32 v%d, 4, v0' % t0)
    e.I('v_bfe_u32 v%d, v0, 1, 3' % t1)
    e.I('v_xor_b32 v%d, v%d, v%d' % (t0, t0, t1))
    e.I('v_and_b32 v%d, 15, v0' % t1)
    e.I('v_lshlrev_b32 v%d, 7, v%d' % (t1, t1))
    e.I('v_lshl_add_u32 v%d, v%d, 4, v%d' % (dst, t0, t1))
    e.I('v_xor_b32 v%d, 64, v%d' % (dst + 1, dst))


def w_tr_addr(e, d, t0, t1):
    e.I('v_lshrrev_b32 v%d, 4, v0' % t0)
    e.I('v_bfe_u32 v%d, v0, 2, 2' % t1)
    e.I('v_lshl_add_u32 v%d, v%d, 3, v%d' % (t0, t0, t1))
    e.I('v_mul_u32_u24 v%d, 192, v%d' % (t0, t0))
    e.I('v_bfe_u32 v%d, v0, 4, 1' % t1)
    e.I('v_lshl_add_u32 v%d, v%d, 5, v%d' % (t0, t1, t0))
    e.I('v_and_b32 v%d, 3, v0' % t1)
    e.I('v_lshl_add_u32 v%d, v%d, 3, v%d' % (d, t1, t0))
    e.I('v_xor_b32 v%d, 32, v%d' % (d + 1, d))
    e.I('v_add_u32 v%d, %d, v%d\nv_add_u32 v%d, %d, v%d' % (d + 2, WIN, d, d + 3, WIN, d + 1))


W_SLOT = [0, 1, 2, 3, 0, 1, 2, 3]
S_SHIFT = [0]


def s_slot(i):
    return (i + 4) % 6 if S_SHIFT[0] < 0 else (i + S_SHIFT[0]) % 4


def w_frag_read(e, dst, wa, j, s2, g, mat, fh, mm, tag):
    slot = W_SLOT[j]
    off = (slot & 1) * SLOT + mat * 12288 + (32 * s2 + 4 * mm) * 192 + g * 64
    e.I('ds_read_b64_tr_b16 %s, v%d offset:%d' % (vr(dst + 2 * mm, 2), wa + 2 * (slot >> 1) + fh, off), tag=tag)


def act_items(e, cfg, G, U, tmp, out):
    items = []
    add = lambda t: items.append(lambda t=t: e.I(t))
    for b in range(2):
        g, u, o = G + 8 * b, U + 8 * b, out + 4 * b
        if cfg.mimic:
            for src in (g, u):
                for p in range(4):
                    add('v_cvt_pk_bf16_f32 v%d, v%d, v%d' % (tmp + p, src + 2 * p, src + 2 * p + 1))
                for p in range(4):
                    add('v_lshlrev_b32 v%d, 16, v%d' % (src + 2 * p, tmp + p))
                    add('v_and_b32 v%d, 0xffff0000, v%d' % (src + 2 * p + 1, tmp + p))
        for p in range(4):
            add('v_pk_mul_f32 %s, %s, s[%d:%d]' % (vr(tmp + 2 * p, 2), vr(g + 2 * p, 2), sNL2E, sNL2E + 1))
        for p in range(8):
            add('v_exp_f32 v%d, v%d' % (tmp + p, tmp + p))
        for p in range(4):
            add('v_pk_add_f32 %s, %s, 1.0 op_sel_hi:[1,0]' % (vr(tmp + 2 * p, 2), vr(tmp + 2 * p, 2)))
        for p in range(8):
            add('v_rcp_f32 v%d, v%d' % (tmp + p, tmp + p))
        for p in range(4):
            add('v_pk_mul_f32 %s, %s, %s' % (vr(g + 2 * p, 2), vr(g + 2 * p, 2), vr(tmp + 2 * p, 2)))
        if cfg.mimic:
            for p in range(4):
                add('v_cvt_pk_bf16_f32 v%d, v%d, v%d' % (tmp + p, g + 2 * p, g + 2 * p + 1))
            for p in range(4):
                add('v_lshlrev_b32 v%d, 16, v%d' % (g + 2 * p, tmp + p))
                add('v_and_b32 v%d, 0xffff0000, v%d' % (g + 2 * p + 1, tmp + p))
        for p in range(4):
            add('v_pk_mul_f32 %s, %s, %s' % (vr(u + 2 * p, 2), vr(g + 2 * p, 2), vr(u + 2 * p, 2)))
        for p in range(4):
            add('v_cvt_pk_bf16_f32 v%d, v%d, v%d' % (o + p, u + 2 * p, u + 2 * p + 1))
    return items


def act_items_scalar(e, cfg, G, U, tmp, out):
    if cfg.mimic:
        return act_items(e, cfg, G, U, tmp, out)
    items = []
    add = lambda t: items.append(lambda t=t: e.I(t))
    for b in range(4):
        g, u, o = G + 4 * b, U + 4 * b, out + 2 * b
        for p in range(4):
            add('v_mul_f32 v%d, s%d, v%d' % (tmp + p, sNL2E, g + p))
        for p in range(4):
            add('v_exp_f32 v%d, v%d' % (tmp + p, tmp + p))
            add('v_mul_f32 v%d, v%d, v%d' % (u + p, g + p, u + p))
        for p in range(4):
            add('v_add_f32 v%d, 1.0, v%d' % (tmp + p, tmp + p))
        for p in range(4):
            add('v_rcp_f32 v%d, v%d' % (tmp + p, tmp + p))
        for p in range(4):
            add('v_mul_f32 v%d, v%d, v%d' % (u + p, tmp + p, u + p))
        for p in range(2):
            add('v_cvt_pk_bf16_f32 v%d, v%d, v%d' % (o + p, u + 2 * p, u + 2 * p + 1))
    return items


def light_scc(e):
    e.I('s_and_b32 s%d, s%d, 3\ns_cmp_eq_u32 s%d, 3\ns_cselect_b32 s%d, 14, s%d\ns_cmp_eq_u32 s%d, 14' % (T0, sCB, T0, T0, sCB, T0))


def w_lane_offsets(e, cfg, WV, t0, t1):
    if cfg.zfill:
        light_scc(e)
        e.I('s_cselect_b32 s%d, 8, 12' % sTW)
    e.I('s_and_b32 s%d, s%d, 1' % (T1, sW))
    e.I('s_mul_i32 s%d, s%d, %d\ns_lshl_b32 s%d, s%d, 6\ns_add_u32 s%d, s%d, s%d' % (T0, T1, 32 * 2752, T1, sSG0, T0, T0, T1))
    for q in range(3):
        e.I('v_add_u32 v%d, %d, v0\nv_mul_u32_u24 v%d, 171, v%d\nv_lshrrev_b32 v%d, 11, v%d' % (t1, 64 * q, t0, t1, t0, t0))
        if cfg.zfill:
            e.I('v_mul_u32_u24 v%d, 12, v%d\nv_sub_u32 v%d, v%d, v%d\nv_cmp_gt_u32 vcc, s%d, v%d' % (WV + q, t0, t1, t1, WV + q, sTW, t1))
        e.I('v_lshrrev_b32 v%d, 3, v%d\nv_lshlrev_b32 v%d, 1, v%d\nv_xor_b32 v%d, v0, v%d' % (t1, t0, t1, t1, t1, t1))
        e.I('v_mul_u32_u24 v%d, %d, v%d' % (t0, 2752 - 192, t0))
        e.I('v_lshl_add_u32 v%d, v%d, 4, v%d' % (t0, t1, t0))
        e.I('v_add_u32 v%d, s%d, v%d' % (WV + q, T0, t0))
        if cfg.zfill:
            e.I('v_mov_b32 v%d, 0x%x\nv_cndmask_b32 v%d, v%d, v%d, vcc' % (t0, OOB, WV + q, t0, WV + q))
    e.I('s_mul_i32 s%d, s%d, 6144' % (sMW, sW))


def dma_W(e, WV, SWR, j):
    slot = W_SLOT[j] * SLOT
    its = []
    for grp in range(2):
        for q in range(3):
            def f(grp=grp, q=q):
                set_m0(e, sMW, slot + grp * 3072)
                if q == 0 and grp == 0:
                    e.I('s_add_u32 s%d, s%d, %d\ns_and_b32 s%d, s%d, 7\ns_mul_i32 s%d, s%d, %d' %
                        (sTW, sK0, j, sTW, sTW, sTW, sTW, 64 * 2752))
                if q == 0 and grp == 1:
                    e.I('s_add_u32 s%d, s%d, %d' % (sTW, sTW, 16 * 2752))
                e.I('buffer_load_dwordx4 v%d, %s, s%d offen offset:%d %slds' % ((WV + q, srd(SWR), sTW, 1024 * q) + (ntf('w', j),)), tag=('st', 8 + j))
            its.append(f)
    return its


C_LAND, C_CONS, C_Q, C_DONEA = 0, 32, 64, 68


def cnt_add(e, va, vone, off):
    e.I('s_mov_b64 exec, 1')
    e.I('ds_add_u32 v%d, v%d offset:%d' % (va, vone, off), tag='sig')
    e.I('s_mov_b64 exec, -1')


def cnt_look(e, va, vt, off, tag):
    e.I('ds_read_b32 v%d, v%d offset:%d' % (vt, va, off), tag=tag)


def cnt_check(e, label, va, vt, off, tag):
    e.wait(lg=tag)
    e.I('v_cmp_ne_u32 vcc, 4, v%d' % vt)
    e.I('s_cbranch_vccnz %s' % label)
    e.label(label + '_out')
    with e.cold_block():
        e.label(label)
        e.I('s_mov_b32 s%d, 0' % sCNT)
        e.label(label + '_l')
        if SLEEP[1]:
            e.I('s_sleep %d' % SLEEP[1])
        cnt_look(e, va, vt, off, None)
        e.I('s_add_u32 s%d, s%d, 1' % (sCNT, sCNT))
        e.I('s_cmp_gt_u32 s%d, %d' % (sCNT, 20 * SPIN_MAX))
        e.wait(lg='all')
        e.I('s_cbranch_scc1 %s_out' % label)
        e.I('v_cmp_ne_u32 vcc, 4, v%d' % vt)
        e.I('s_cbranch_vccnz %s_l' % label)
        e.I('s_branch %s_out' % label)


def cnt_spin(e, label, va, vt, off):
    cnt_look(e, va, vt, off, 'look')
    cnt_check(e, label, va, vt, off, 'look')


def act_offsets(e, k, s_data, s_flag, valid_scc=False):
    e.I('s_lshl_b32 s%d, s%d, 2\ns_add_u32 s%d, s%d, s%d' % (T0, sRB, T0, T0, sW))
    e.I('s_mul_i32 s%d, s%d, 43\ns_add_u32 s%d, s%d, s%d\ns_add_u32 s%d, s%d, %d\ns_lshl_b32 s%d, s%d, 11' %
        (T1, T0, T1, T1, sSG0, T1, T1, k, s_data, T1))
    e.I('s_lshr_b32 s%d, s%d, 1\ns_mul_i32 s%d, s%d, 44\ns_add_u32 s%d, s%d, s%d\ns_add_u32 s%d, s%d, %d' %
        (T1, T0, T1, T1, T1, T1, sSG0, T1, T1, k))
    e.I('s_lshl_b32 s%d, s%d, 1\ns_and_b32 s%d, s%d, 1\ns_add_u32 s%d, s%d, s%d\ns_mul_i32 s%d, s%d, %d\ns_add_u32 s%d, s%d, 0x%x' %
        (T1, T1, T0, T0, T1, T1, T0, T1, T1, FS, s_flag, T1, AF_OFF))


def part_write_addr(e, dst, t0, t1, piece_stride, wave_stride, base):
    e.I('v_lshrrev_b32 v%d, 4, v0' % t0)
    e.I('v_and_b32 v%d, 7, v0' % t1)
    e.I('v_xor_b32 v%d, v%d, v%d' % (t0, t0, t1))
    e.I('v_lshlrev_b32 v%d, 4, v%d' % (dst, t0))
    e.I('v_bfe_u32 v%d, v0, 3, 1' % t0)
    e.I('v_and_b32 v%d, 3, v0' % t1)
    e.I('v_lshl_add_u32 v%d, v%d, 2, v%d' % (t0, t0, t1))
    e.I('v_lshl_add_u32 v%d, v%d, 8, v%d' % (dst, t0, dst))
    e.I('v_bfe_u32 v%d, v0, 2, 1' % t0)
    e.I('v_mul_u32_u24 v%d, %d, v%d' % (t0, piece_stride, t0))
    e.I('s_mul_i32 s%d, s%d, %d\ns_add_u32 s%d, s%d, %d' % (T0, sW, wave_stride, T0, T0, base))
    e.I('v_add3_u32 v%d, v%d, v%d, s%d' % (dst, dst, t0, T0))
    e.I('v_xor_b32 v%d, 64, v%d' % (dst + 1, dst))


def acc2(t4, dq):
    return 64 + 16 * t4 + 4 * dq


def part_write(e, addr, piece_stride, tt, addr1=None):
    its = []
    for a in range(2):
        for dq in range(4):
            ad_, off = (addr + (dq & 1), (dq >> 1) * 128) if addr1 is None or dq < 2 else (addr1 + (dq & 1), 0)
            its.append(lambda ad_=ad_, off=off, dq=dq, a=a:
                       e.I('ds_write_b128 v%d, %s offset:%d' % (ad_, vr(acc2(2 * tt + a, dq), 4), tt * 2 * piece_stride + a * 2048 + off), tag=('pw', tt)))
    return its


def tile_ids(e, cfg, redo):
    if redo:
        e.I('s_and_b32 s%d, s2, 7\ns_lshr_b32 s%d, s2, 3' % (T0, T1))
        e.I('s_and_b32 s%d, s%d, 7\ns_lshr_b32 s%d, s%d, 3\ns_lshr_b32 s%d, s%d, 1' % (T2, T1, T3, T1, T4, T0))
    e.I('s_mul_i32 s%d, s%d, 11\ns_mul_i32 s%d, s%d, 3\ns_add_u32 s%d, s%d, s%d' % (sSG0, T4, T5, T3, sSG0, sSG0, T5))
    e.I('s_cmp_eq_u32 s%d, 15\ns_subb_u32 s%d, s%d, 0' % (sCB, sSG0, sSG0))
    if cfg.map2 == 84:
        if cfg.xloc:
            e.I('s_and_b32 s%d, s%d, 8\ns_add_u32 s%d, s%d, s%d\ns_and_b32 s%d, s%d, 2\ns_lshl_b32 s%d, s%d, 2\ns_add_u32 s%d, s%d, s%d' %
                (sRT, sRB, sRT, sRT, sRB, T5, T0, T5, T5, sRT, sRT, T5))
            e.I('s_and_b32 s%d, s%d, 4\ns_add_u32 s%d, s%d, s%d' % (sCT, T0, sCT, sCT, T3))
        else:
            e.I('s_lshl_b32 s%d, s%d, 3\ns_add_u32 s%d, s%d, s%d' % (sRT, T4, sRT, sRT, T2))
            e.I('s_and_b32 s%d, s%d, 1\ns_lshl_b32 s%d, s%d, 2\ns_add_u32 s%d, s%d, s%d' % (sCT, T0, sCT, sCT, sCT, sCT, T3))
    else:
        e.I('s_lshl_b32 s%d, s%d, 2\ns_and_b32 s%d, s%d, 3\ns_add_u32 s%d, s%d, s%d\ns_lshr_b32 s%d, s%d, 2' %
            (sRT, T0, T5, T1, sRT, sRT, T5, sCT, T1))


KARG2 = 's_load_dwordx16 s[20:35], s[0:1], 64\ns_load_dwordx2 s[36:37], s[0:1], 128'


def gen_entry(e, cfg, st):
    e.I('s_load_dwordx16 s[4:19], s[0:1], 0')
    e.I('s_cmp_ge_u32 s2, 256\ns_cbranch_scc1 L_end')
    e.I(KARG2)
    st(e, 'start')
    if 'v' in cfg.prewarm:
        n = cfg.pwn
        e.I('s_getpc_b64 s[%d:%d]' % (SCODE, SCODE + 1))
        e.label('L_pc')
        e.I('s_mov_b32 s%d, L_end-L_pc\ns_mov_b32 s%d, 0x20000' % (SCODE + 2, SCODE + 3))
        e.I('s_lshl_b32 s%d, s2, %d\ns_and_b32 s%d, s%d, 0x%x' % (T0, 7 + n.bit_length() - 1, T0, T0, 0x7fff & ~(1024 * n - 1)))
        e.I('v_lshlrev_b32 v1, %d, v0' % (1 + n.bit_length() - 1))
        m = sum(1 << (k * 64 // n) for k in range(n))
        e.I('s_mov_b32 exec_lo, 0x%x\ns_mov_b32 exec_hi, 0x%x' % (m & 0xffffffff, m >> 32))
        e.I('buffer_load_dword v63, v1, %s, s%d offen' % (srd(SCODE), T0), tag='pw')
        e.I('s_mov_b64 exec, -1')
    e.I('v_lshrrev_b32 v1, 6, v0\nv_and_b32 v0, 63, v0')
    e.I('v_readfirstlane_b32 s%d, v1' % sWAVE)
    if cfg.slim and cfg.rot1 == (2, 4, 2, 1):
        e.I('s_and_b32 s%d, s2, 7\ns_bfe_u32 s%d, s2, 0x30003\ns_lshr_b32 s%d, s2, 6' % (T0, T2, T3))
        e.I('s_lshl1_add_u32 s%d, s%d, s%d\ns_lshl2_add_u32 s%d, s%d, s%d\ns_and_b32 s%d, s%d, 7' % (sK0, T2, T0, sK0, T3, sK0, sK0, sK0))
        e.I('s_and_b32 s%d, s2, 1\ns_lshl3_add_u32 s%d, s%d, s%d' % (sRB, sRB, sRB, T2))
        e.I('s_lshr_b32 s%d, s%d, 1\ns_lshl2_add_u32 s%d, s%d, s%d' % (T4, T0, sCB, T4, T3))
        assert cfg.map2 == 84
    else:
        e.I('s_and_b32 s%d, s2, 7\ns_lshr_b32 s%d, s2, 3' % (T0, T1))
        e.I('s_and_b32 s%d, s%d, 7\ns_lshr_b32 s%d, s%d, 3' % (T2, T1, T3, T1))
        e.I('s_and_b32 s%d, s%d, 1\ns_lshl_b32 s%d, s%d, 3\ns_add_u32 s%d, s%d, s%d' % (sRB, T0, sRB, sRB, sRB, sRB, T2))
        e.I('s_lshr_b32 s%d, s%d, 1' % (T4, T0))
        e.I('s_lshl_b32 s%d, s%d, 2\ns_add_u32 s%d, s%d, s%d' % (sCB, T4, sCB, sCB, T3))
        e.I('s_mul_i32 s%d, s%d, %d' % (sK0, T2, cfg.rot1[0]))
        for src, mul in zip((T3, T4, None), cfg.rot1[1:]):
            if mul:
                if src is None:
                    e.I('s_and_b32 s%d, s%d, 1' % (T5, T0))
                e.I('s_mul_i32 s%d, s%d, %d\ns_add_u32 s%d, s%d, s%d' % (T5, T5 if src is None else src, mul, sK0, sK0, T5))
        e.I('s_and_b32 s%d, s%d, 7' % (sK0, sK0))
    if not cfg.slim:
        tile_ids(e, cfg, False)
    e.I('s_and_b32 s%d, s%d, 3' % (sW, sWAVE))
    e.I('s_cmp_lt_u32 s%d, 4\ns_cbranch_scc1 L_A' % sWAVE)


def gen_B(e, cfg, st):
    NPRE = cfg.prog.count('D')
    WA = 2
    EP = 42
    XV, BV, WV, XA = 32, 36, 38, 44
    if cfg.prioS:
        e.I('s_setprio %d' % cfg.prioS)
    e.I('v_lshrrev_b32 v8, 3, v0')
    e.I('v_and_b32 v9, 7, v0')
    e.I('v_lshrrev_b32 v10, 4, v0')
    e.I('v_xor_b32 v10, v9, v10\nv_lshlrev_b32 v10, 4, v10')
    e.I('v_lshrrev_b32 v11, 5, v0\nv_and_b32 v12, 3, v8\nv_lshl_add_u32 v11, v11, 4, v12')
    e.I('s_lshl2_add_u32 s%d, s%d, s%d\ns_lshl_b32 s%d, s%d, 15' % (T0, sRB, sW, T0, T0))
    e.I('v_lshl_add_u32 v11, v11, 10, s%d' % T0)
    e.I('v_add_u32 v%d, v11, v10' % XV)
    e.I('v_xor_b32 v13, 64, v%d' % XV)
    e.I('v_add_u32 v%d, 3072, v13\nv_add_u32 v%d, 6144, v%d\nv_add_u32 v%d, 9216, v13' % (XV + 1, XV + 2, XV, XV + 3))
    def b_setup():
        e.I('s_and_b32 s%d, s%d, 1\ns_lshl1_add_u32 s%d, s%d, s%d\ns_lshl_b32 s%d, s%d, 14' % (T1, sW, T0, sCB, T1, T0, T0))
        e.I('v_lshrrev_b32 v11, 5, v0\nv_lshl_add_u32 v11, v11, 3, v12')
        e.I('v_lshl_add_u32 v11, v11, 10, s%d' % T0)
        e.I('v_add_u32 v%d, v11, v10' % BV)
        e.I('v_xor_b32 v13, 64, v%d\nv_add_u32 v%d, 3072, v13' % (BV, BV + 1))
        e.I('s_lshl_b32 s%d, s%d, 11\ns_add_u32 s%d, s%d, 16384' % (sMBm, sW, sMBm, sMBm))
        e.I('s_mov_b32 s%d, 0x%x\ns_mov_b32 s%d, 0x20000' % (SBM + 2, 512 * 1024, SBM + 3))
    if not cfg.blate:
        b_setup()
    e.I('s_lshl_b32 s%d, s%d, 12' % (sMX, sW))
    e.I('s_lshl_b32 s%d, s%d, 7' % (T6, sK0))
    e.I('s_mov_b32 s%d, 0x%x\ns_mov_b32 s%d, 0x20000' % (SX + 2, 2048 * 1024, SX + 3))
    set_m0(e, sMX, s_slot(0) * SLOT)
    e.I('s_mov_b32 s%d, s%d' % (sTS, T6))
    e.wait_smem()
    st(e, 'karg')
    jitter(e, cfg, 1)
    e.I('s_mov_b64 s[%d:%d], s[%d:%d]' % (SX, SX + 1, P_X, P_X + 1))

    def dma_S(i):
        slot = s_slot(i) * SLOT
        its = []
        for q in range(4):
            def f(q=q):
                if q == 0 and i:
                    set_m0(e, sMX, slot)
                    e.I('s_add_u32 s%d, s%d, %d\ns_and_b32 s%d, s%d, 1023' % (sTS, T6, i * 128, sTS, sTS))
                e.I('buffer_load_dwordx4 v%d, %s, s%d offen offset:%d %slds' % ((XV + q, srd(SX), sTS, 1024 * q) + (ntf('x', i),)), tag=('st', i))
            its.append(f)
        for q in range(2):
            def f(q=q):
                if q == 0 and i == 0 and cfg.blate:
                    b_setup()
                if q == 0:
                    set_m0(e, sMBm, slot)
                if q == 0 and i == 0:
                    e.I('s_cmp_ge_u32 s%d, 2\ns_cselect_b64 s[%d:%d], s[%d:%d], s[%d:%d]' % (sW, SBM, SBM + 1, P_BIM, P_BIM + 1, P_BRE, P_BRE + 1))
                e.I('buffer_load_dwordx4 v%d, %s, s%d offen offset:%d %slds' % ((BV + q, srd(SBM), sTS, 1024 * q) + (ntf('b', i),)), tag=('st', i))
            its.append(f)
        return its

    run(dma_S(0))
    st(e, 'dma0')
    s1 = dma_S(1)
    run(s1[:cfg.s1a])
    if 's' in cfg.prewarm:
        code_touch(e, 'B')
    frag16_addr(e, XA, 11, 12)
    for s in range(2):
        e.I('v_add_u32 v%d, s%d, v%d' % (XA + s, sMX, XA + s))
        e.I('v_add_u32 v%d, %d, v%d' % (XA + 2 + s, WIN, XA + s))
        if cfg.lag:
            e.I('v_add_u32 v%d, %d, v%d' % (XA + 4 + s, 2 * WIN, XA + s))
    e.I('v_lshlrev_b32 v11, 2, v0\nv_add_u32 v11, %d, v11\nv_mov_b32 v12, 0' % L_FL)
    e.I('ds_write_b32 v11, v12', tag='init')

    def setup_a():
        if cfg.slim:
            tile_ids(e, cfg, True)
        mk_srd(e, SWS, P_WS, WS_SIZE)
        mk_srd(e, SWD, P_WD, 1376 * 1024)
        e.I('s_cmp_ge_u32 s%d, 2' % sW)
        mk_srd_sel(e, SW, P_WU, P_WG, 512 * 2752)
        w_tr_addr(e, WA, 13, 14)
        e.I('v_lshlrev_b32 v1, 4, v0')

    def setup_b():
        w_lane_offsets(e, cfg, WV, 13, 14)
    if not cfg.defer:
        setup_a()
        setup_b()

    sDC, sDB, sDE, sAC, sAB, sAE = 86, 87, 88, 89, 90, 91
    sD0, sF0, sD2, sF2 = T2, T3, T4, T5
    st(e, '_pro')
    sP0 = 92
    if isinstance(cfg.w0pos, tuple):
        tab = sum(p << (4 * r) for r, p in enumerate(cfg.w0pos))
        e.I('s_and_b32 s%d, s%d, 7\ns_lshl_b32 s%d, s%d, 2\ns_lshr_b32 s%d, 0x%x, s%d\ns_and_b32 s%d, s%d, 15' %
            (T0, sRB, T0, T0, sP0, tab, T0, sP0, sP0))

    def w0_hook(p):
        if cfg.w0pos == p:
            run(dma_W(e, WV, SW, 0))
        elif isinstance(cfg.w0pos, tuple) and p in cfg.w0pos:
            e.I('s_cmp_eq_u32 s%d, %d\ns_cbranch_scc1 L_w0_%d' % (sP0, p, p))
            e.label('L_w0_%d_out' % p)
            with e.cold_block():
                e.label('L_w0_%d' % p)
                run(dma_W(e, WV, SW, 0))
                e.I('s_branch L_w0_%d_out' % p)
            e.m0 = None
    run(s1[cfg.s1a:])
    st(e, '_dma1')
    w0_hook(1)
    e.wait(vm=('st', 0))
    st(e, '_sa0')
    e.I('s_barrier')
    st(e, 'b0')
    for i in range(8):
        if i == 1:
            e.I('s_mov_b32 s%d, 0x%x' % (T0, EPOCH_OFF))
            e.I('buffer_load_dword v%d, off, %s, s%d sc1' % (EP, srd(SWS), T0), tag='ep')
        if i < 6:
            run(dma_S(i + 2))
            w0_hook(i + 2)
        elif cfg.w0pos is None:
            run(dma_W(e, WV, SW, i - 6))
        elif i == 6 or 'W2' not in cfg.prog:
            run(dma_W(e, WV, SW, i - 5))
        for s in range(4):
            slot = s_slot(i)
            e.I('ds_read_b128 %s, v%d offset:%d' % (vr(128 + 4 * (4 * i + s), 4), XA + 2 * (slot >> 1) + (s >> 1), (slot & 1) * SLOT + (s & 1) * 2048), tag='x')
        if cfg.defer and i == 0:
            setup_a()
        if cfg.defer and i == 1:
            setup_b()
        if i == 4:
            e.wait(vm='ep')
            e.I('v_readfirstlane_b32 s%d, v%d' % (sNONCE, EP))
            e.I('s_add_u32 s%d, s%d, 0x%x\ns_or_b32 s%d, s%d, 1' % (sNONCE, sNONCE, PHI, sNONCE, sNONCE))
            e.I('s_mov_b32 s%d, 0x%x\ns_mov_b32 s%d, 0x%x' % (sNL2E, NLOG2E, sNL2E + 1, NLOG2E))
        if i == 2:
            step_start(e, cfg, sAC, sAB, sAE, 11)
        if i == 3:
            for k in range(3):
                e.I('s_lshl_b32 s%d, s%d, 4' % (sDC + k, sAC + k))
            for n in range(1, NPRE):
                wd_next(e, n, sDC, sDB, sDE)
        if i == 5:
            act_offsets(e, 0, sD0, sF0)
        if i == 6:
            e.I('s_add_u32 s%d, s%d, 4096\ns_add_u32 s%d, s%d, %d' % (sD2, sD0, sF2, sF0, 4 * FS))
            light_scc(e)
            e.I('s_cselect_b32 s%d, 0x%x, s%d\ns_cselect_b32 s%d, 0x%x, s%d' % (sD2, OOB, sD2, sF2, OOB, sF2))
            e.I('v_mov_b32 v7, %d\nv_mov_b32 v6, 1' % L_FL)
        if i < 7:
            e.wait(vm=('st', i + 1), lg='all')
            st(e, '_sa%d' % (i + 1))
            e.I('s_barrier')
            st(e, '_sd%d' % (i + 1))
            if i == 0:
                st(e, 'b1')
    NT = cfg.NT
    ops = []
    for j in range(8 - NT):
        for s in range(2):
            for g in range(3):
                for mf in range(4):
                    ops.append((j, s, g, mf))
    tail0 = len(ops)
    for g in range(3):
        for j in range(8 - NT, 8):
            for s in range(2):
                for mf in range(4):
                    ops.append((j, s, g, mf))
    NB, LA = 6, cfg.LA
    first = {j: min(q for q in range(len(ops)) if ops[q][0] == j) for j in range(8)}
    last = {j: max(q for q in range(len(ops)) if ops[q][0] == j) for j in range(8)}

    def rd(q, half):
        if q >= len(ops):
            return
        j, s, g, mf = ops[q]
        if q == first[j] and j <= cfg.JL and half == 0:
            e.wait(vm=('st', 8 + j), lg='all' if j in cfg.drain else 'x')
            st(e, '_a%d' % j)
            e.I('s_barrier')
            st(e, '_d%d' % j)
            if j in (0, 4, cfg.JL):
                st(e, 'b%d' % (8 + j))
            if j == 0 and cfg.prioB != cfg.prioS:
                e.I('s_setprio %d' % cfg.prioB)
        w_frag_read(e, 8 + 4 * (q % NB), WA, j, s, g, mf >> 1, mf & 1, half, ('wf', q))
        if q == last[7] and half == 1:
            cnt_add(e, 7, 6, C_CONS + 28)

    def mm(q, a):
        j, s, g, mf = ops[q]
        if a == 0 and q % 2 == 0:
            e.wait(lg=('wf', q + 1))
        t = a ^ (q & 1) if cfg.snake else a
        mfma16(e, 32 + 32 * g + 16 * (mf >> 1) + 8 * t + 4 * (mf & 1), 8 + 4 * (q % NB), 128 + 16 * j + 8 * s + 4 * t, j == 0 and s == 0)
        rd(q + LA, a)

    def act_store(k, ms=(0, 1)):
        for m in ms:
            e.I('buffer_store_dwordx4 %s, v1, %s, s%d offen offset:%d sc1' %
                (vr(136 + 8 * k + 4 * m, 4), srd(SWS), sD2 if k == 2 else sD0, 1024 * m + (2048 if k == 1 else 0)), tag=('as', k))

    def with_stores(its, k):
        if not cfg.asplit:
            return its + [lambda: act_store(k)]
        h = len(its) // 2
        return its[:h] + [lambda: act_store(k, (0,))] + its[h:] + [lambda: act_store(k, (1,))]

    def act_flag(k):
        e.wait(vm=('as', k))
        flag_store(e, EP, sF2 if k == 2 else sF0, 2 * FS if k == 1 else 0)

    for q in range(LA):
        rd(q, 0)
        rd(q, 1)
    per = 8 * NT
    for q in range(tail0 + per):
        mm(q, 0)
        mm(q, 1)
    if cfg.prioT:
        e.I('s_setprio %d' % cfg.prioT)
    if NT:
        for g in (1, 2):
            main = [lambda q=q, a=a: mm(q, a) for q in range(tail0 + g * per, tail0 + (g + 1) * per) for a in range(2)]
            fill = with_stores(act_items_scalar(e, cfg, 32 * g, 32 * g + 16, 128, 136 + 8 * (g - 1)), g - 1)
            run(main[:3] + weave(main[3:], fill))
        st(e, 'f1end')
        run(with_stores(act_items(e, cfg, 96, 112, 128, 152), 2))
    else:
        st(e, 'f1end')
        for g in range(3):
            run(with_stores(act_items(e, cfg, 32 + 32 * g, 48 + 32 * g, 128, 136 + 8 * g), g))
    if cfg.prioD[0] != (cfg.prioT or cfg.prioB):
        e.I('s_setprio %d' % cfg.prioD[0])
    st(e, 'actst')
    jitter(e, cfg, 2)
    DA, AV, PW, WDV, EP = 2, 14, 16, 18, 23
    e.I('v_mov_b32 v%d, s%d' % (EP, sNONCE))
    e.I(wd_lane_offsets(e, WDV, 20, 21))
    e.I('v_mov_b32 v22, %d' % L_FL)
    cnt_spin(e, 'L_spinB', 22, 24, C_CONS + 28)
    st(e, 'ldsfree')

    def dma_D(n):
        sl, pos = RING[n]
        if n in PREV:
            e.wait(lg=('wr', PREV[n]))
        set_m0(e, sMW, sl * SLOT + pos * 2048)
        if n:
            wd_next(e, n, sDC, sDB, sDE)
        for q in range(2):
            e.I('buffer_load_dwordx4 v%d, %s, s%d offen offset:%d %slds' % ((WDV + q, srd(SWD), sDC, 1024 * q) + (ntf('d', n),)), tag=('wd', n))

    def wd_reg(n2):
        return 128 + 16 * n2 if n2 < 5 else 32 + 16 * (n2 - 5) if n2 < 7 else 128 + 16 * (n2 - 7)

    def wd_read(n, dqs=range(4)):
        sl, pos = RING[n]
        e.wait(vm=('wd', n))
        for dq in dqs:
            e.I('ds_read_b64_tr_b16 %s, v%d offset:%d' % (vr(wd_reg(n >> 1) + 4 * dq + 2 * (n & 1), 2), DA + 4 * (sl >> 1) + dq,
                                                         (sl & 1) * SLOT + pos * 2048), tag=('wr', n))

    def setup2():
        e.I('v_lshrrev_b32 v20, 2, v0\nv_lshlrev_b32 v20, 7, v20\nv_bfe_u32 v21, v0, 3, 2\nv_lshl_add_u32 v20, v21, 5, v20')
        e.I('v_and_b32 v21, 3, v0\nv_lshl_add_u32 v20, v21, 3, v20\nv_add_u32 v%d, s%d, v20' % (DA, sMW))
        for dq in range(1, 4):
            e.I('v_xor_b32 v%d, %d, v%d' % (DA + dq, 32 * dq, DA))
        for k in (1, 2):
            for dq in range(4):
                e.I('v_add_u32 v%d, %d, v%d' % (DA + 4 * k + dq, k * WIN, DA + dq))
        e.I('s_mul_i32 s%d, s%d, %d' % (T0, sRT, 2 * 88064))
        e.I('v_add_u32 v%d, s%d, v1\nv_add_u32 v%d, 88064, v%d' % (AV, T0, AV + 1, AV))
        e.I('s_mul_i32 s%d, s%d, 44\ns_mul_i32 s%d, s%d, 11\ns_add_u32 s%d, s%d, s%d\ns_mul_i32 s%d, s%d, %d\ns_add_u32 s%d, s%d, 0x%x' %
            (T0, sRT, T1, sW, T0, T0, T1, T0, T0, 2 * FS, T0, T0, AF_OFF))
        e.I('v_mul_u32_u24 v20, %d, v0' % FS)
        e.I('s_mov_b32 s%d, 0x3fffff\ns_cmp_eq_u32 s%d, 3\ns_cselect_b32 s%d, 0xfffff, s%d\ns_mov_b32 s%d, 0' % (sMA, sW, sMA, sMA, sMA + 1))

    for n in range(NPRE, 11):
        for k in range(3):
            if cfg.flagpos[k] + NPRE == n:
                if k == 2:
                    setup2()
                act_flag(k)
                if k == 2:
                    st(e, 'flagged')
        if n < 10:
            dma_D(n)
    st(e, '_d9')
    cnt_spin(e, 'L_spinB2', 22, 24, C_DONEA)
    if cfg.prioD[1] != cfg.prioD[0]:
        e.I('s_setprio %d' % cfg.prioD[1])
    st(e, '_da')
    jitter(e, cfg, 3)
    pulled = [0]

    def d_step(n):
        dma_D(n)
        while pulled[0] < min(14, 3 * (n - 9), n - 3):
            wd_read(pulled[0])
            pulled[0] += 1
        if n == 14:
            e.wait(lg=('wr', 9))
            set_m0(e, sMW, L_P2)
            e.I('s_mov_b64 exec, 1')
            e.I('buffer_load_dword off, %s, s%d lds' % (srd(SWD), SWD + 2), tag='init')
            e.I('s_mov_b64 exec, -1')
        if n == -cfg.posXB:
            bar_X()

    def bar_X():
        assert pulled[0] >= 12
        e.wait(vm='init', lg=('wr', 11))
        st(e, '_aX')
        e.I('s_barrier')

    for n in range(10, cfg.alook):
        d_step(n)
    st(e, 'wdiss')
    nd = cfg.alook + cfg.abet
    poll(e, 'L_pollA', 21, 20, T0, 's[%d:%d]' % (sMA, sMA + 1), lambda: [d_step(n) for n in range(cfg.alook, nd)])
    st(e, 'actrdy')
    jitter(e, cfg, 4)
    if cfg.prioF2n < 0:
        e.I('s_setprio %d' % cfg.prioF2)
    elif cfg.prioD[1]:
        e.I('s_setprio 0')

    TL = cfg.TL
    sSV = 92
    NM = 11 - TL

    order = [(n2, t4) for n2 in range(NM) for t4 in range(4)] + [(n2, t4) for t4 in range(4) for n2 in range(NM, 11)]

    def a_reg(n2, t4):
        return 208 + 4 * (order.index((n2, t4)) % 12)

    pend = []
    rq = []

    def flush(n=99):
        for t in pend[:n]:
            e.I(t)
        del pend[:n]

    def a_load(n2, t4):
        if t4 == 0:
            flush()
        so = sAC if n2 < NM else sSV + n2 - NM
        e.I('buffer_load_dwordx4 %s, v%d, %s, s%d offen offset:%d sc1' % (vr(a_reg(n2, t4), 4), AV + (t4 >> 1), srd(SWS), so, 1024 * (t4 & 1)),
            tag=('a', n2, t4))
        if n2 < 10 and t4 == (3 if n2 < NM else 0):
            dst = sAC if n2 + 1 < NM else sSV + n2 + 1 - NM
            pend.append('s_add_u32 s%d, s%d, 2048' % (dst, so))
            pend.append('s_cmp_eq_u32 s%d, s%d\ns_cselect_b32 s%d, s%d, s%d' % (dst, sAE, dst, sAB, dst))
            if n2 == 9:
                pend.append('s_cmp_eq_u32 s%d, 3\ns_cselect_b32 s%d, 0x%x, s%d' % (sW, dst, OOB, dst))

    lq = []
    for k, t in enumerate(order):
        lq.append(('a', k))
        if k & 1 and nd < 22:
            lq.append(('d', nd))
            nd += 1
    dn = [cfg.alook + cfg.abet - 1]
    nis = [0]

    def issue(k, busy):
        while lq:
            t = lq[0]
            tag = ('a',) + order[k]
            nv = min(cfg.NV, cfg.NV0[0] + max(0, k - cfg.NV0[1]))
            if nis[0] > k and (len(e.vm) - 1 - e.vm.index(tag) >= nv - 1 if tag in e.vm else len(e.vm) >= nv):
                return
            if t[0] == 'a':
                if t[1] >= busy + 12:
                    return
                a_load(*order[t[1]])
                nis[0] = t[1] + 1
            else:
                d_step(t[1])
                dn[0] = t[1]
            lq.pop(0)

    wq = []
    zq = [list(g) for g in cfg.zg]
    since = [0]

    def w_pop():
        t = wq.pop(0)
        if t is not None:
            t4, i = t
            assert not rq
            hi = 32768 if t4 == 3 else 0
            set_m0(e, sMW, hi)
            e.I('ds_write_addtid_b32 v%d offset:%d' % (acc2(t4, 0) + i, t4 * SLOT - hi + 256 * i), tag=('pw', t4))
            if i == 15 and t4 == zq[0][-1]:
                since[0] = cfg.zlag + 1
        if since[0]:
            since[0] -= 1
            if since[0] == 0:
                z_bar()

    def z_bar():
        e.wait(lg=('pw', zq.pop(0)[-1]))
        e.I('s_barrier')

    def mm2(k):
        n2, t4 = order[k]
        if k == 0:
            issue(k, k)
        while rq and rq[0][0] >> 1 <= (order[k + 2][0] if k + 2 < 4 * NM + TL else 99):
            t = rq.pop(0)
            wd_read(t[0], [t[1]])
        e.wait(vm=('a', n2, t4), lg=('wr', 2 * n2 + 1))
        for dq in range(4):
            d = 3 - dq if cfg.snake and n2 < NM and t4 & 1 else dq
            mfma16(e, acc2(t4, d), a_reg(n2, t4), wd_reg(n2) + 4 * d, n2 == 0)
            if dq == 0 and lq:
                issue(k + 1, k)
            elif pend and dq < 3:
                flush(1)
            elif rq and dq < 3:
                t = rq.pop(0)
                wd_read(t[0], [t[1]])
            elif wq:
                w_pop()
        if n2 == 10:
            if t4 == 0:
                wq.extend([None, None])
            wq.extend((t4, i) for i in range(16))

    for n2 in range(NM):
        st(e, '_n%d' % n2)
        if n2 == cfg.prioF2n:
            e.I('s_setprio %d' % cfg.prioF2)
        while pulled[0] <= min(2 * n2 + 5, 13):
            assert dn[0] >= pulled[0]
            wd_read(pulled[0])
            pulled[0] += 1
        if n2 == cfg.posXB:
            bar_X()
        for t4 in range(4):
            mm2(4 * n2 + t4)
        if cfg.pull0 <= n2 < cfg.pull0 + 4:
            m2 = n2 - cfg.pull0 + 7
            assert dn[0] >= 2 * m2 + 1
            rq.extend((2 * m2 + hf, dq) for hf in range(2) for dq in range(4))
    assert cfg.pull0 + 4 <= NM
    for k in range(4 * NM, 44):
        mm2(k)
    if cfg.prioF2:
        e.I('s_setprio 0')
    st(e, 'f2end')
    jitter(e, cfg, 5)
    while wq:
        w_pop()
    while zq:
        z_bar()
    st(e, 'end')
    st.flush(e)
    e.I('s_endpgm')


def gen_A(e, cfg, st):
    LR, LI, L16, L128, L256, L16S, KAP, WV = 48, 49, 50, 52, 54, 56, 58, 60
    PP = 32
    SIDX = 3
    RE, IM = 64, 80
    XA, BA = 192, 204
    CV, CA, CA4, WDV = 96, 100, 104, 108
    EV0, EV1, EOOB, ERD, ECNT, EEXP, ONE, FLA, XW, XR, P16 = range(110, 121)
    SEL = 216
    RING0 = 144
    sHD, sHF, sES, sEL, sROT, sDTX = 86, 87, 90, 91, 92, 80
    sDC, sDB, sDE = 93, 94, 95
    if cfg.slim:
        tile_ids(e, cfg, False)
    e.I('v_lshlrev_b32 v1, 4, v0')
    e.I('v_and_b32 v21, 0x13, v0\nv_bfe_u32 v22, v0, 2, 1\nv_lshl_add_u32 v21, v22, 3, v21\nv_bfe_u32 v22, v0, 3, 1\nv_lshl_add_u32 v21, v22, 2, v21')
    e.I('s_lshl_b32 s%d, s%d, 6' % (T0, sCB))
    e.I('v_lshl_add_u32 v21, v21, 1, s%d' % T0)
    e.I('s_lshl_b32 s%d, s%d, 2\ns_add_u32 s%d, s%d, s%d\ns_lshl_b32 s%d, s%d, 4\ns_add_u32 s%d, s%d, s%d' %
        (T3, sRB, T3, T3, sW, T3, T3, T3, T3, sCB))
    e.I('s_lshl_b32 s%d, s%d, 11' % (T2, T3))
    frag_addr(e, BA, 4, 5)
    def karg_block():
        e.wait_smem()
        st(e, '_karg')
        mk_srd(e, SX, P_X, 2048 * 1024)
        mk_srd(e, SWS, P_WS, WS_SIZE)
        e.I('s_mov_b32 s%d, 0x%x\ns_lshl_b32 s%d, s%d, 6' % (T4, EPOCH_OFF, T0, sCB))
        e.I('s_load_dword s3, s[%d:%d], s%d' % (P_WS, P_WS + 1, T4))
        for p in (P_LRE, P_LIM, P_LDT):
            e.I('s_load_dword s3, s[%d:%d], s%d' % (p, p + 1, T0))
        e.I('s_lshr_b32 s%d, s2, 3\ns_lshl_b32 s%d, s%d, 2\ns_add_u32 s%d, s%d, s%d\ns_and_b32 s%d, s%d, 15\ns_lshl_b32 s%d, s%d, 6' %
            (T0, T0, T0, T0, T0, sW, T0, T0, T0, T0))
        for p in (P_GW, P_DSK):
            e.I('s_load_dword s3, s[%d:%d], s%d' % (p, p + 1, T0))
        if 's' in cfg.prewarm:
            code_touch(e, 'A')

    if not cfg.apre:
        karg_block()

    def small0():
        e.I('buffer_load_dword v19, off, %s, s%d sc1' % (srd(SWS), T4), tag='ep')
        e.I('global_load_ushort v16, v21, s[%d:%d]' % (P_LRE, P_LRE + 1), tag='par')
        e.I('global_load_ushort v17, v21, s[%d:%d]' % (P_LIM, P_LIM + 1), tag='par')
        e.I('global_load_ushort v18, v21, s[%d:%d]' % (P_LDT, P_LDT + 1), tag='par')

    small1 = [lambda: e.I('global_load_dwordx4 v[44:47], v1, s[%d:%d]' % (P_GW, P_GW + 1), tag='g'),
              lambda: e.I('buffer_load_dwordx4 v[36:39], v1, %s, s%d offen' % (srd(SX), T2), tag='g'),
              lambda: e.I('buffer_load_dwordx4 v[40:43], v1, %s, s%d offen offset:1024' % (srd(SX), T2), tag='g')]
    e.I('s_lshl_b32 s%d, s%d, 3\ns_add_u32 s%d, s%d, 0x%x' % (T6, T3, T6, T6, G_OFF))
    GA, GW0, GO = 121, 124, 126
    if cfg.glds:
        small1 = [lambda: e.I('global_load_dwordx4 v[44:47], v%d, s[%d:%d]' % (GW0, P_GW, P_GW + 1), tag='g'),
                  lambda: e.I('global_load_dwordx4 v[192:195], v%d, s[%d:%d]' % (GW0 + 1, P_GW, P_GW + 1), tag='g')]
        e.I('s_bfe_u32 s%d, s%d, 0x20001\ns_lshl_b32 s%d, s%d, 2\ns_lshr_b32 s%d, s%d, 3\ns_lshl_b32 s%d, s%d, 1\ns_add_u32 s%d, s%d, s%d' %
            (T0, sCB, T0, T0, T1, sCB, T1, T1, T0, T0, T1))
        e.I('s_and_b32 s%d, s%d, 1\ns_add_u32 s%d, s%d, s%d' % (T1, sCB, T0, T0, T1))
        e.I('s_and_b32 s%d, s%d, 7\ns_lshl_b32 s%d, s%d, 8\ns_lshl_b32 s%d, s%d, 12\ns_add_u32 s%d, s%d, s%d' % (T1, T0, T0, T0, T2, sW, T0, T0, T2))
        e.I('v_and_b32 v4, 15, v0\nv_xor_b32 v4, s%d, v4\nv_lshl_add_u32 v%d, v4, 4, s%d' % (T1, GA, T0))
        e.I('v_add_u32 v%d, %d, v%d\nv_add_u32 v%d, %d, v%d' % (GA + 1, WIN, GA, GA + 2, 2 * WIN, GA))
        e.I('v_lshrrev_b32 v4, 4, v0\nv_add_u32 v4, s%d, v4\nv_and_b32 v4, 7, v4\nv_and_b32 v5, 7, v0\nv_lshlrev_b32 v5, 4, v5' % sK0)
        e.I('v_lshl_add_u32 v%d, v4, 7, v5\nv_xor_b32 v%d, 0x200, v%d' % (GW0, GW0 + 1, GW0))
        e.I('v_bfe_u32 v4, v0, 3, 1\nv_lshlrev_b32 v%d, 2, v4' % GO)

    e.I('s_lshl_b32 s%d, s%d, 12' % (T0, sW))
    for s in range(4):
        e.I('v_add_u32 v%d, s%d, v%d' % (XA + s, T0, BA + s))
        e.I('v_add_u32 v%d, %d, v%d' % (XA + 4 + s, WIN, XA + s))
        e.I('v_add_u32 v%d, %d, v%d' % (BA + 4 + s, WIN, BA + s))
        if cfg.lag:
            e.I('v_add_u32 v%d, %d, v%d\nv_add_u32 v%d, %d, v%d' % (XA + 8 + s, 2 * WIN, XA + s, BA + 8 + s, 2 * WIN, BA + s))
    w_lane_offsets(e, cfg, WV, 24, 25)
    e.I('v_lshrrev_b32 v24, 5, v0\ns_lshl_b32 s%d, s%d, 1' % (T0, sW))
    e.I('v_add_u32 v%d, s%d, v24' % (SIDX, T0))
    if cfg.apre:
        karg_block()
    rot2_calc(e, cfg, sROT, 0)
    if cfg.rotS:
        e.I('s_and_b32 s%d, s%d, %d\ns_lshl_b32 s%d, s%d, %d\ns_xor_b32 s%d, s%d, s%d' % (T0, sCT, cfg.rotS[0], T0, T0, cfg.rotS[1], sROT, sROT, T0))
    e.I('s_and_b32 s%d, s%d, 1\ns_lshr_b32 s%d, s%d, 1' % (sDTX, sROT, sROT, sROT))
    e.I('s_bitcmp1_b32 s%d, 0' % sROT)
    mk_srd_sel(e, SC1, P_CIM, P_CRE, 512 * 1024)
    mk_srd_sel(e, SC2, P_CRE, P_CIM, 512 * 1024)
    mk_srd(e, SWD, P_WD, 1376 * 1024)
    step_start(e, cfg, sDC, sDB, sDE, 15)
    e.I('s_cmp_ge_u32 s%d, 2' % sW)
    mk_srd_sel(e, SWA, P_WU, P_WG, 512 * 2752)
    e.I('s_lshl_b32 s%d, s%d, 2\ns_add_u32 s%d, s%d, s%d' % (T0, sRB, T0, T0, sW))
    HW_ = 16384 + cfg.hpad[0]
    HT_ = 4 * HW_ + cfg.hpad[1]
    assert H_OFF + 64 * HT_ <= E_OFF
    e.I('s_mul_i32 s%d, s%d, %d\ns_lshr_b32 s%d, s%d, 1\ns_lshl_b32 s%d, s%d, 13\ns_add_u32 s%d, s%d, s%d' %
        (sHD, T0, HT_, T1, sCB, T1, T1, sHD, sHD, T1))
    e.I('s_lshr_b32 s%d, s%d, 2\ns_mul_i32 s%d, s%d, %d\ns_add_u32 s%d, s%d, s%d' % (T1, sCB, T1, T1, cfg.hpad[0], sHD, sHD, T1))
    e.I('s_and_b32 s%d, s%d, 1\ns_lshl_b32 s%d, s%d, 11\ns_add_u32 s%d, s%d, s%d\ns_add_u32 s%d, s%d, 0x%x' %
        (T1, sCB, T1, T1, sHD, sHD, T1, sHD, sHD, H_OFF))
    e.I('s_lshr_b32 s%d, s%d, 1\ns_lshl_b32 s%d, s%d, 4\ns_add_u32 s%d, s%d, s%d\ns_lshl_b32 s%d, s%d, 1' %
        (T1, T0, T1, T1, T1, T1, sCB, T1, T1))
    e.I('s_and_b32 s%d, s%d, 1\ns_add_u32 s%d, s%d, s%d\ns_mul_i32 s%d, s%d, %d\ns_add_u32 s%d, s%d, 0x%x' %
        (T0, T0, T1, T1, T0, T1, T1, FS, sHF, T1, HF_OFF))
    e.I('s_lshl_b32 s%d, s%d, 13\ns_add_u32 s%d, s%d, 0x%x' % (sEL, sCB, sEL, sEL, E_OFF))
    e.I('s_lshl_b32 s%d, s%d, 9\ns_add_u32 s%d, s%d, s%d\ns_cmp_eq_u32 s%d, 0\ns_cselect_b32 s%d, s%d, 0x%x' %
        (sES, sRB, sES, sES, sEL, sW, sES, sES, OOB))
    e.I('s_sub_u32 s%d, s%d, 1024' % (sEL, sEL))

    tch = Touch(e, cfg, 'A')
    tch.setup()
    tch.at(-1)

    e.I('s_lshl_b32 s%d, s%d, 9\ns_add_u32 s%d, s%d, %d' % (T0, sW, T0, T0, L_E))
    e.I('v_lshl_add_u32 v%d, v0, 3, s%d' % (XW, T0))
    e.I('v_and_b32 v6, 31, v0\nv_lshlrev_b32 v%d, 4, v6\nv_lshlrev_b32 v6, 3, v6\nv_add_u32 v%d, %d, v6' % (P16, XR, L_E))
    e.I('v_and_b32 v4, 3, v0\nv_bfe_u32 v5, v0, 3, 2\nv_lshl_add_u32 v4, v5, 2, v4')
    e.I('v_bfe_u32 v5, v0, 2, 1\nv_lshrrev_b32 v6, 5, v0\nv_xor_b32 v5, v5, v6\nv_lshl_add_u32 v4, v5, 4, v4')
    e.I('v_and_b32 v5, 1, v0\nv_lshlrev_b32 v5, 4, v5\nv_mov_b32 v6, 0x3f80\nv_lshlrev_b32 v5, v5, v6\nv_lshrrev_b32 v4, 1, v4')
    for n in range(8):
        e.I('v_cmp_eq_u32 vcc, %d, v4\nv_cndmask_b32 v%d, 0, v5, vcc' % (n, SEL + n))
    e.I('v_and_b32 v6, 7, v0\nv_lshrrev_b32 v7, 4, v0\nv_xor_b32 v6, v6, v7\nv_lshlrev_b32 v6, 4, v6')
    e.I('v_lshrrev_b32 v7, 3, v0\nv_lshl_add_u32 v6, v7, 10, v6')
    e.I('s_lshl_b32 s%d, s%d, 16\ns_lshl_b32 s%d, s%d, 8\ns_add_u32 s%d, s%d, s%d' % (T0, sCT, T1, sW, T0, T0, T1))
    e.I('v_add_u32 v%d, s%d, v6\nv_xor_b32 v7, 64, v%d' % (CV, T0, CV))
    e.I('v_add_u32 v%d, 7168, v7\nv_add_u32 v%d, 14336, v%d\nv_add_u32 v%d, 21504, v7' % (CV + 1, CV + 2, CV, CV + 3))
    frag16_addr(e, CA, 6, 7)
    for s in range(2):
        e.I('v_add_u32 v%d, s%d, v%d' % (CA + s, sMW, CA + s))
        e.I('v_add_u32 v%d, %d, v%d' % (CA4 + s, 4 * SLOT, CA + s))
    HS = CA + 2
    e.I('v_and_b32 v6, 15, v0\nv_lshlrev_b32 v6, 4, v6\nv_bfe_u32 v7, v0, 4, 1\nv_lshl_add_u32 v6, v7, 10, v6')
    e.I('v_lshrrev_b32 v7, 5, v0\nv_lshl_add_u32 v%d, v7, 8, v6' % HS)
    e.I('s_lshr_b32 s88, s%d, 1\ns_lshl_b32 s88, s88, 7\ns_lshl_b32 s89, s%d, 15\ns_add_u32 s88, s88, s89\ns_xor_b32 s89, s88, 128' % (sROT, sDTX))
    e.I(wd_lane_offsets(e, WDV, 6, 7))
    e.I('s_lshl_b32 s%d, s%d, 2\ns_sub_u32 s%d, s%d, s%d\ns_sub_u32 s%d, s%d, 1\ns_lshl_b32 s%d, s%d, 11' % (T0, sW, T0, sRB, T0, T0, T0, T5, sW))
    e.I('v_lshrrev_b32 v6, 5, v0\nv_sub_u32 v7, s%d, v6' % T0)
    e.I('v_cmp_le_i32 vcc, 0, v7\nv_cmp_le_i32 s[%d:%d], 2, v7' % (sMB, sMB + 1))
    e.I('v_lshl_add_u32 v7, v7, 9, v%d\nv_add_u32 v7, 1024, v7\nv_subrev_u32 v5, 2048, v7\nv_mov_b32 v%d, 0x%x' % (P16, EOOB, OOB))
    e.I('v_cndmask_b32 v%d, v%d, v7, vcc\nv_cndmask_b32 v%d, v%d, v5, s[%d:%d]' % (EV0, EOOB, EV1, EOOB, sMB, sMB + 1))
    e.I('v_lshl_add_u32 v7, v6, 12, v%d\nv_add_u32 v%d, %d, v7' % (P16, ERD, L_EG))
    e.I('v_lshlrev_b32 v6, 3, v6\nv_sub_u32 v%d, s%d, v6\nv_med3_i32 v%d, v%d, 0, 8' % (ECNT, sRB, EEXP, ECNT))
    e.I('v_mov_b32 v%d, 1\nv_mov_b32 v%d, %d' % (ONE, FLA, L_FL))

    pro = []
    add = lambda t: [pro.append(lambda x=x: e.I(x)) for x in t.split('\n')]

    def csq(d, a):
        add('v_mul_f32 v30, v%d, v%d\nv_mul_f32 v31, v%d, v%d\nv_fma_f32 v%d, -v%d, v%d, v30\nv_add_f32 v%d, v31, v31' %
            (a, a, a, a + 1, d, a + 1, a + 1, d + 1))

    def cmul(d, a, b):
        add('v_mul_f32 v30, v%d, v%d\nv_mul_f32 v31, v%d, v%d\nv_fma_f32 v30, -v%d, v%d, v30\nv_fma_f32 v%d, v%d, v%d, v31\nv_mov_b32 v%d, v30' %
            (a, b, a, b + 1, a + 1, b + 1, d + 1, a + 1, b, d))

    pro.append(lambda: e.wait(vm=['ep', 'par']))
    add('v_readfirstlane_b32 s%d, v19' % sNONCE)
    add('v_lshlrev_b32 v16, 16, v16\nv_lshlrev_b32 v17, 16, v17\nv_lshlrev_b32 v18, 16, v18')
    add('s_add_u32 s%d, s%d, 0x%x\ns_or_b32 s%d, s%d, 1' % (sNONCE, sNONCE, PHI, sNONCE, sNONCE))
    add('v_mul_f32 v18, 0x%x, v18\nv_exp_f32 v18, v18\nv_cvt_pk_bf16_f32 v18, v18, v18\nv_lshlrev_b32 v18, 16, v18' % LOG2E)
    add('v_mul_f32 v21, v18, v16\nv_mul_f32 v22, v18, v17')
    add('v_mul_f32 v21, 0x%x, v21\nv_exp_f32 v21, v21' % LOG2E)
    add('v_mul_f32 v22, 0.15915494, v22\nv_rndne_f32 v23, v22\nv_sub_f32 v22, v22, v23\nv_sin_f32 v23, v22\nv_cos_f32 v22, v22')
    add('v_mul_f32 v%d, v21, v23\nv_mul_f32 v%d, v21, v22' % (LI, LR))
    add('v_mul_f32 v21, v16, v16\nv_fmac_f32 v21, v17, v17\nv_rcp_f32 v21, v21\nv_add_f32 v22, -1.0, v%d\nv_add_f32 v21, v21, v21' % LR)
    add('v_mul_f32 v23, v22, v16\nv_fmac_f32 v23, v%d, v17\nv_mul_f32 v%d, v23, v21' % (LI, KAP))
    add('v_mul_f32 v23, v%d, v16\nv_fma_f32 v23, -v22, v17, v23\nv_mul_f32 v%d, v23, v21' % (LI, KAP + 1))
    csq(22, LR); csq(22, 22); csq(22, 22); csq(L16, 22)
    csq(22, L16); csq(24, 22); csq(L128, 24); csq(L256, L128); csq(L256, L256); csq(L256, L256)
    for bit, src, dst in ((1, L16, L16S), (2, 22, 22), (4, 24, 24)):
        add('v_and_b32 v26, %d, v%d\nv_cmp_ne_u32 vcc, 0, v26' % (bit, SIDX))
        add('v_cndmask_b32 v%d, 1.0, v%d, vcc\nv_cndmask_b32 v%d, 0, v%d, vcc' % (dst, src, dst + 1, src + 1))
    cmul(L16S, L16S, 22); cmul(L16S, L16S, 24)
    add('v_mul_lo_u32 v%d, v%d, s%d\nv_mov_b32 v2, s%d' % (EEXP, EEXP, sNONCE, sNONCE))
    EDIR = 'e0' in cfg.prog
    EVK = 132
    if EDIR:
        for k in range(8):
            add('v_subrev_u32 v%d, %d, v%d\nv_cmp_le_i32 vcc, 2, v%d\nv_lshl_add_u32 v%d, v%d, 9, v%d\nv_cndmask_b32 v%d, v%d, v%d, vcc' %
                (EVK + k, k - 1, ECNT, EVK + k, EVK + k, EVK + k, P16, EVK + k, EOOB, EVK + k))

    par, pro = pro, []
    pro.append(lambda: e.wait(vm='g'))
    if cfg.glds:
        for k in range(8):
            gw, x = (44 + k if k < 4 else 188 + k), 36 + k
            add('v_lshlrev_b32 v24, 16, v%d\nv_and_b32 v25, 0xffff0000, v%d' % (gw, gw))
            add('v_lshlrev_b32 v26, 16, v%d\nv_and_b32 v27, 0xffff0000, v%d' % (x, x))
            add('v_mul_f32 v26, v26, v24\nv_mul_f32 v27, v27, v25\nv_cvt_pk_bf16_f32 v26, v26, v27')
            if k == 0:
                add('v_lshlrev_b32 v28, 16, v26\nv_and_b32 v29, 0xffff0000, v26')
            else:
                add('v_lshlrev_b32 v27, 16, v26\nv_and_b32 v26, 0xffff0000, v26\nv_add_f32 v28, v28, v27\nv_add_f32 v29, v29, v26')
        add('v_add_f32 v28, v28, v29')
        for sh in (1, 2, 4):
            add('v_add_f32_dpp v28, v28, v28 row_shr:%d row_mask:0xf bank_mask:0xf' % sh)
        for wd in (32, 16):
            add('v_mov_b32 v29, v28\nv_permlane%d_swap_b32 v28, v29\nv_add_f32 v28, v28, v29' % wd)
        add('v_cvt_pk_bf16_f32 v28, v28, v28\nv_lshlrev_b32 v28, 16, v28\nv_mul_f32 v28, 0x%x, v28\nv_exp_f32 v28, v28' % NLOG2E)
        add('v_add_f32 v28, 1.0, v28\nv_rcp_f32 v28, v28\nv_cvt_pk_bf16_f32 v28, v28, v28\nv_lshlrev_b32 v28, 16, v28')
    else:
        for k in range(4):
            add('v_lshlrev_b32 v24, 16, v%d\nv_and_b32 v25, 0xffff0000, v%d' % (44 + k, 44 + k))
            for row in range(2):
                x = 36 + 4 * row + k
                add('v_lshlrev_b32 v26, 16, v%d\nv_and_b32 v27, 0xffff0000, v%d' % (x, x))
                add('v_mul_f32 v26, v26, v24\nv_mul_f32 v27, v27, v25\nv_cvt_pk_bf16_f32 v26, v26, v27')
                add('v_lshlrev_b32 v27, 16, v26\nv_and_b32 v26, 0xffff0000, v26')
                if k == 0:
                    add('v_add_f32 v%d, v26, v27' % (28 + row))
                else:
                    add('v_add_f32 v26, v26, v27\nv_add_f32 v%d, v%d, v26' % (28 + row, 28 + row))
        for mod in ('row_shr:1 row_mask:0xf', 'row_shr:2 row_mask:0xf', 'row_shr:4 row_mask:0xf', 'row_shr:8 row_mask:0xf',
                    'row_bcast:15 row_mask:0xa', 'row_bcast:31 row_mask:0xc'):
            for row in range(2):
                add('v_add_f32_dpp v%d, v%d, v%d %s bank_mask:0xf' % (28 + row, 28 + row, 28 + row, mod))
        add('v_cvt_pk_bf16_f32 v26, v28, v29\nv_lshlrev_b32 v28, 16, v26\nv_and_b32 v29, 0xffff0000, v26')
        add('v_mul_f32 v28, 0x%x, v28\nv_mul_f32 v29, 0x%x, v29\nv_exp_f32 v28, v28\nv_exp_f32 v29, v29' % (NLOG2E, NLOG2E))
        add('v_add_f32 v28, 1.0, v28\nv_add_f32 v29, 1.0, v29\nv_rcp_f32 v28, v28\nv_rcp_f32 v29, v29')
        add('v_cvt_pk_bf16_f32 v26, v28, v29\nv_lshlrev_b32 v28, 16, v26\nv_and_b32 v29, 0xffff0000, v26')
    gate, pro = pro, par

    gdone = []

    def g_store():
        gdone.append(1)
        if cfg.glds:
            e.I('s_mov_b64 exec, 0x8080')
            e.I('buffer_store_dword v28, v%d, %s, s%d offen sc1' % (GO, srd(SWS), T6), tag='gs')
            e.I('s_mov_b64 exec, -1')
            return
        e.I('s_mov_b32 exec_lo, 0\ns_mov_b32 exec_hi, 0x80000000')
        e.I('buffer_store_dwordx2 v[28:29], off, %s, s%d sc1' % (srd(SWS), T6), tag='gs')
        e.I('s_mov_b64 exec, -1')

    nbar = [0]

    def s_bar(i):
        assert nbar[0] == i
        nbar[0] += 1
        e.I('s_barrier')
        if i in (0, 7):
            st(e, 'b%d' % i)

    def s_read(n):
        i, s = n >> 2, n & 3
        slot = s_slot(i)
        if s == 0 and not cfg.lag:
            s_bar(i)
        assert nbar[0] > i
        off = (slot & 1) * SLOT
        if cfg.glds and s == 2:
            m = 0xffff << (16 * (i & 3))
            e.I('s_mov_b32 exec_lo, 0x%x\ns_mov_b32 exec_hi, 0x%x' % (m & 0xffffffff, m >> 32))
            e.I('ds_read_b128 %s, v%d offset:%d' % (vr(36 + 4 * (i >> 2), 4), GA + (slot >> 1), off), tag='gx')
            e.I('s_mov_b64 exec, -1')
        b = RING0 + 12 * (n & 3)
        e.I('ds_read_b128 %s, v%d offset:%d' % (vr(b + 8, 4), XA + 4 * (slot >> 1) + s, off), tag=('s', n, 0))
        for part in range(2):
            e.I('ds_read_b128 %s, v%d offset:%d' % (vr(b + 4 * part, 4), BA + 4 * (slot >> 1) + s,
                                                    off + 16384 + part * 4096), tag=('s', n, part))

    def s_mm(n, part):
        e.wait(lg=('s', n, part))
        b = RING0 + 12 * (n & 3)
        mfma(e, RE + 16 * part, b + 8, b + 4 * part, n == 0)

    D = 2
    seq = []
    for n in range(32):
        seq.append(lambda n=n: (s_mm(n, 0), s_read(n + D) if n + D < 32 else None))
        seq.append(lambda n=n: s_mm(n, 1))
    st(e, '_pro')
    if cfg.lag:
        L = cfg.lag
        npar = len(pro) // max(L - 1, 1) + 1
        for i in range(L):
            s_bar(i)
            tch.at(10 + i)
            if i == 0:
                small0()
            if i >= 1:
                run(pro[(i - 1) * npar:i * npar])
        s_bar(L)
        for n in range(D):
            s_read(n)
        r2 = 2 * cfg.lagr
        for k, it in enumerate(seq):
            it()
            i = L + (k + 1) // r2
            if (k + 1) % r2 == 0 and i <= 7:
                assert (k + 1) // 2 >= 4 * (i - 3)
                s_bar(i)
    else:
        for n in range(D):
            s_read(n)
        p0 = 2 * cfg.smallpos
        run(seq[:p0])
        small0()
        run(seq[p0:p0 + 10])
        run(weave(seq[p0 + 10:56], pro) + seq[56:])
    assert nbar[0] == 8
    st(e, 's1end')
    jitter(e, cfg, 6)
    if cfg.prioA:
        e.I('s_setprio %d' % cfg.prioA)

    def items(txt):
        return [lambda t=t: e.I(t) for t in txt.split('\n')]

    def cfma(d, l, a, c):
        return items('v_fma_f32 v%d, v%d, v%d, v%d\nv_fma_f32 v%d, v%d, v%d, v%d\nv_fma_f32 v%d, -v%d, v%d, v%d\nv_fmac_f32 v%d, v%d, v%d' %
                     (d, l, a, c, d + 1, l, a + 1, c + 1, d, l + 1, a + 1, d, d + 1, l + 1, a))

    e.raw('; ---- role A: local scan end states')
    prev = (RE, IM)
    for r in range(1, 16):
        cur = (20 + 2 * (r & 1), 21 + 2 * (r & 1))
        e.I('v_fma_f32 v%d, v%d, v%d, v%d' % (cur[0], LR, prev[0], RE + r))
        e.I('v_fma_f32 v%d, v%d, v%d, v%d' % (cur[1], LR, prev[1], IM + r))
        e.I('v_fma_f32 v%d, -v%d, v%d, v%d' % (cur[0], LI, prev[1], cur[0]))
        e.I('v_fmac_f32 v%d, v%d, v%d' % (cur[1], LI, prev[0]))
        prev = cur
    e.I('ds_write_b64 v%d, %s' % (XW, vr(prev[0], 2)), tag='ex')

    def c_reg(u, s2, dq):
        return 128 + 32 * u + 16 * s2 + 4 * dq

    CBUF = cfg.cbuf
    CPREV = {i: max(k for k in range(i) if CBUF[k] == CBUF[i]) for i in range(8) if CBUF[i] in CBUF[:i]}
    cdone = set()
    hdone = []

    def c_read(i):
        if i in cdone:
            return
        cdone.add(i)
        assert gdone or not cfg.glds or i < 4
        assert hdone or not EDIR
        assert i < 4 or hdone
        e.wait(vm=('c', i))
        for s in range(4):
            a_, off = (CA4 + (s >> 1), 0) if CBUF[i] == 4 else (CA + (s >> 1), CBUF[i] * SLOT)
            e.I('ds_read_b128 %s, v%d offset:%d' % (vr(c_reg(i >> 1, s >> 1, 2 * (i & 1) + (s & 1)), 4), a_, off + (s & 1) * 2048), tag=('cr', i))

    def c_loads(i):
        u, dt = i >> 1, i & 1
        its = []
        for q in range(4):
            def f(q=q):
                if q == 0:
                    if i in CPREV:
                        c_read(CPREV[i])
                        e.wait(lg=('cr', CPREV[i]))
                    elif CBUF[i] != 4 and (6 + CBUF[i] > cfg.JL or 4 + CBUF[i] >= 8 - cfg.NT):
                        assert kcur[0] >= cfg.JL
                        cnt_spin(e, 'L_cb%d' % i, FLA, 34, C_CONS + 28)
                    e.I('s_xor_b32 s%d, s%d, %d' % (sTD, 88 + (u >> 1), dt * 32768))
                set_m0(e, sMW, CBUF[i] * SLOT)
                e.I('buffer_load_dwordx4 v%d, %s, s%d offen offset:%d %slds' % ((CV + q, srd(SC2 if u & 1 else SC1), sTD, 1024 * q) + (ntf('c', i),)), tag=('c', i))
                if q == 3:
                    st(e, '_c%d' % i)
                if q == 3 and i >= 2:
                    c_read(i - 2)
            its.append(f)
        return its

    def d_loads(n):
        sl, pos = RING[n]
        its = []
        for q in range(2):
            def f(q=q):
                set_m0(e, sMW, sl * SLOT + pos * 2048)
                if q == 0 and n:
                    wd_next(e, n, sDC, sDB, sDE)
                e.I('buffer_load_dwordx4 v%d, %s, s%d offen offset:%d %slds' % ((WDV + q, srd(SWD), sDC, 1024 * q) + (ntf('d', n),)), tag='wd')
            its.append(f)
        return its

    wl = {j: dma_W(e, WV, SWA, j) for j in range(2, 8)}
    planned = set()

    def e_loads():
        its = []
        for q in range(2):
            def f(q=q):
                set_m0(e, T5, L_EG)
                e.I('buffer_load_dwordx4 v%d, %s, s%d offen offset:%d sc1 lds' % (EV0 + q, srd(SWS), sEL, 1024 * q), tag='eg')
            its.append(f)
        return its

    def expand(toks, k):
        r = []
        for t in toks.split(','):
            if not t:
                continue
            n = int(t[1])
            planned.add(t)
            if t[0] == 'W':
                assert n < 4 or k >= n - 2 or (k == n - 3 and k in cfg.drain)
                r += wl[n][:3] if t[2:] == 'a' else wl[n][3:] if t[2:] == 'b' else wl[n]
            elif t[0] == 'C':
                assert CBUF[n] == 4 or k >= min(6 + CBUF[n], cfg.JL)
                assert k >= 2 or cfg.w0pos is None
                r += c_loads(n)
            elif t[0] == 'D':
                r += d_loads(n)
            elif t[0] == 'R':
                r.append(lambda n=n: c_read(n))
            elif t[0] == 'S':
                r.append(lambda n=n: (hq[n](), hsent.add(n)))
            elif t[0] == 'G':
                r += small1
            elif t[0] == 'e':
                r += [lambda k=k: e.I('buffer_load_dwordx4 %s, v%d, %s, s%d offen sc1' % (vr(224 + 4 * k, 4), EVK + k, srd(SWS), sEL), tag='egv')
                      for k in range(8)]
            elif t[0] == 'E':
                r += e_loads()
            elif t[0] == 'T':
                r.append(lambda n=n: tch.at(n))
        return r

    def bar(k, extra=()):
        kk = 7 if k == cfg.JL else k
        assert kk < 2 or 'W%d' % kk in planned or 'W%db' % kk in planned or (kk == 2 and cfg.w0pos is not None)
        e.wait(vm=[('st', 8 + kk)] + list(extra))
        st(e, '_a%d' % k)
        e.I('s_barrier')
        st(e, '_d%d' % k)

    sc = []
    for r in range(16):
        sc += items('v_mul_f32 v4, v%d, v%d\nv_mul_f32 v5, v%d, v%d\nv_fma_f32 v%d, v%d, v%d, -v4\nv_fma_f32 v%d, v%d, v%d, v5' %
                    (KAP + 1, IM + r, KAP + 1, RE + r, RE + r, KAP, RE + r, IM + r, KAP, IM + r))
    if cfg.pksc:
        kp = vr(KAP, 2)
        for r in range(0, 16, 4):
            for o in (0, 2):
                e.I('v_pk_mul_f32 %s, %s, %s op_sel:[1,0] op_sel_hi:[1,1]' % (vr(4 + 2 * o, 2), kp, vr(IM + r + o, 2)))
                e.I('v_pk_mul_f32 %s, %s, %s op_sel:[1,0] op_sel_hi:[1,1]' % (vr(6 + 2 * o, 2), kp, vr(RE + r + o, 2)))
            for o in (0, 2):
                e.I('v_pk_fma_f32 %s, %s, %s, %s op_sel_hi:[0,1,1] neg_lo:[0,0,1] neg_hi:[0,0,1]' % (vr(RE + r + o, 2), kp, vr(RE + r + o, 2), vr(4 + 2 * o, 2)))
                e.I('v_pk_fma_f32 %s, %s, %s, %s op_sel_hi:[0,1,1]' % (vr(IM + r + o, 2), kp, vr(IM + r + o, 2), vr(6 + 2 * o, 2)))
        late = []
    else:
        run(sc[:cfg.early])
        late = sc[cfg.early:]
    e.wait(lg='all')
    bar(0)
    work = []
    for s in range(8):
        e.I('ds_read_b64 %s, v%d offset:%d' % (vr(4 + 2 * s, 2), XR, 256 * s), tag=('e', s))
    pf = []
    for s in range(1, 8):
        pf.append(lambda s=s: e.wait(lg=('e', s)))
        pf += cfma(4 + 2 * s, L16, 2 + 2 * s, 4 + 2 * s)
    segs = [[sub.split('|') for sub in sg.split('&')] for sg in cfg.prog.split(';')]
    issued_tok = set()
    q0 = expand(segs[0][0][0], 0)
    run(weave(q0[:cfg.pren], pf))
    e.I('v_mov_b32 v20, s%d\nv_mov_b32 v21, s%d' % (sNONCE, sNONCE))
    e.I('s_mov_b32 exec_hi, 0')
    e.I('buffer_store_dwordx4 v[18:21], v%d, %s, s%d offen sc1' % (P16, srd(SWS), sES), tag='es')
    e.I('s_mov_b32 exec_hi, -1')
    st(e, 'epub')
    jitter(e, cfg, 7)
    run(q0[cfg.pren:])
    gate.append(g_store)
    sel = items('v_mov_b32 v%d, 0\nv_mov_b32 v%d, 0' % (PP, PP + 1))
    for s in range(1, 8):
        sel.append(lambda s=s: e.I('v_cmp_eq_u32 vcc, %d, v%d\nv_cndmask_b32 v%d, v%d, v%d, vcc\nv_cndmask_b32 v%d, v%d, v%d, vcc' %
                                   (s, SIDX, PP, PP, 2 + 2 * s, PP + 1, PP + 1, 3 + 2 * s)))
    EG = 224

    def e_check():
        e.I('v_add3_u32 v4, v%d, v%d, v%d\nv_add3_u32 v5, v%d, v%d, v%d' % tuple(EG + 4 * k + 2 for k in range(6)))
        e.I('v_add3_u32 v4, v4, v%d, v%d\nv_add_u32 v4, v4, v5' % (EG + 26, EG + 30))
        e.I('v_cmp_ne_u32 vcc, v4, v%d' % EEXP)

    def e_verify():
        assert 'e0' in issued_tok or not EDIR
        e.wait(vm='egv', lg='eg')
        e_check()
        e.I('s_cbranch_vccnz L_pollE')
        e.label('L_pollE_out')
        st(e, 'egot')
        with e.cold_block():
            e.label('L_pollE')
            e.I('s_mov_b32 s%d, 0' % sCNT)
            e.label('L_pollE_l')
            for k in range(8):
                e.I('v_subrev_u32 v4, %d, v%d\nv_cmp_le_i32 vcc, 2, v4\nv_lshl_add_u32 v4, v4, 9, v%d\nv_cndmask_b32 v4, v%d, v4, vcc' % (k - 1, ECNT, P16, EOOB))
                e.I('buffer_load_dwordx4 %s, v4, %s, s%d offen sc1' % (vr(EG + 4 * k, 4), srd(SWS), sEL))
            e.I('s_add_u32 s%d, s%d, 1' % (sCNT, sCNT))
            e.I('s_cmp_gt_u32 s%d, %d' % (sCNT, SPIN_MAX))
            e.wait(vm='all')
            e.I('s_cbranch_scc1 L_pollE_out')
            e_check()
            e.I('s_cbranch_vccnz L_pollE_l')
            e.I('s_branch L_pollE_out')

    def second_pass():
        p2 = []
        if not EDIR:
            p2.append(lambda: [e.I('ds_read_b128 %s, v%d offset:%d' % (vr(EG + 4 * k, 4), ERD, 512 * k), tag='eg') for k in range(8)])
        p2.append(e_verify)
        for k in range(6, -1, -1):
            p2 += cfma(EG + 4 * k, L128, EG + 4 * k + 4, EG + 4 * k)
        p2 += items('v_mov_b32 v4, v%d\nv_mov_b32 v5, v%d\nv_permlane32_swap_b32 v4, v%d\nv_permlane32_swap_b32 v5, v%d' % (EG, EG + 1, EG, EG + 1))
        p2 += cfma(4, L256, EG, 4)
        p2 += cfma(PP, L16S, 4, PP)
        p2 += items('v_mul_f32 v6, v%d, v%d\nv_mul_f32 v7, v%d, v%d' % (KAP, PP, KAP, PP + 1))
        p2 += items('v_fma_f32 v6, -v%d, v%d, v6\nv_fmac_f32 v7, v%d, v%d' % (KAP + 1, PP + 1, KAP + 1, PP))
        prev = (6, 7)
        for r in range(16):
            p2 += items('v_fmac_f32 v%d, v%d, v%d\nv_fmac_f32 v%d, v%d, v%d\nv_fma_f32 v%d, -v%d, v%d, v%d\nv_fmac_f32 v%d, v%d, v%d' %
                        (RE + r, LR, prev[0], IM + r, LR, prev[1], RE + r, LI, prev[1], RE + r, IM + r, LI, prev[0]))
            prev = (RE + r, IM + r)
        return p2

    def store_h(loads):
        assert not p2
        for part in range(2):
            for k in range(8):
                sg_ = '-' if part else ''
                e.I('v_cvt_pk_bf16_f32 v%d, %sv%d, %sv%d' % (8 + 8 * part + k, sg_, RE + 16 * part + 2 * k, sg_, RE + 16 * part + 2 * k + 1))
            for m in range(2):
                mfma(e, RE + 16 * part, 8 + 8 * part + 4 * m, SEL + 4 * m, m == 0)
        hdone.append(1)
        run(loads)
        e.I('s_add_u32 s%d, s%d, 4096' % (T0, sHD))
        for part in range(2):
            for m in range(2):
                o = 8 + 8 * part + 4 * m
                for k in range(4):
                    e.I('v_cvt_pk_bf16_f32 v%d, v%d, v%d' % (o + k, RE + 16 * part + 8 * m + 2 * k, RE + 16 * part + 8 * m + 2 * k + 1))
                hq.append(lambda o=o, part=part, m=m: e.I('buffer_store_dwordx4 %s, v%d, %s, s%d offen offset:%d sc1' %
                                                         (vr(o, 4), HS, srd(SWS), T0 if part else sHD, 512 * m), tag='hs'))
                if len(hq) <= cfg.hnow:
                    hq[-1]()
                    hsent.add(len(hq) - 1)

    hq = []
    hsent = set()
    kcur = [0]
    p2 = second_pass()
    for k, sub, toks, work in [(k, i, t, w) for k, sg in enumerate(segs) for i, (t, w) in enumerate(sg)]:
        if k == 0:
            continue
        if k <= cfg.JL and sub == 0:
            bar(k, ['eg'] if work[:1] == 'P' else [])
        kcur[0] = k
        q = expand(toks, k)
        if work[:3] == 'sel' or work[:1] == 'g':
            fill = []
            for wk in work.split('+'):
                if wk == 'sel':
                    fill += sel + ([] if 'late' in cfg.prog else late)
                else:
                    n = len(gate) if wk == 'g' else int(wk[1:])
                    fill += gate[:n]
                    del gate[:n]
            run(weave(q, fill) if not cfg.lfirst else q[:cfg.lfirst] + weave(q[cfg.lfirst:] or [lambda: None], fill))
        elif work == 'late':
            run(weave(q, late))
        elif work[:1] == 'P':
            assert EDIR or 'eg' not in e.vm
            wk = work.rstrip('H')
            n = cfg.p2cut if wk == 'P0' else len(p2) if wk in ('P', 'P1') else int(wk[1:])
            part = p2[:n]
            del p2[:n]
            run(part[:1] + (weave(q, part[1:]) if q else part[1:]))
            if work[-1] == 'H':
                st(e, 'p2done')
                store_h([])
        elif work[:1] == 'H':
            st(e, 'p2done')
            store_h(q)
            run(expand(work[2:], k))
        elif work == 'F':
            run(hq[n] for n in range(4) if n not in hsent)
            st(e, 'hst')
            jitter(e, cfg, 8)
            run(q)
            assert gdone and len(hq) == 4
            e.wait(vm=['hs', 'gs'])
            flag_store(e, 2, sHF)
            st(e, 'hflag')
            jitter(e, cfg, 9)
        else:
            run(q)
        issued_tok.update(toks.split(','))
    assert len(segs) > cfg.JL
    HV, PW = 6, 8
    rest = [i for i in range(8) if 'C%d' % i not in planned]
    run(c_loads(rest.pop(0)))
    e.I('s_mul_i32 s%d, s%d, %d\ns_mul_i32 s%d, s%d, %d\ns_add_u32 s%d, s%d, s%d\ns_add_u32 s%d, s%d, 0x%x' %
        (T0, sRT, 2 * HT_, T1, sW, HW_, T0, T0, T1, T0, T0, H_OFF))
    e.I('v_add_u32 v%d, s%d, v1\nv_add_u32 v%d, %d, v%d' % (HV, T0, HV + 1, HT_, HV))
    for u in range(4):
        e.I('s_xor_b32 s%d, s%d, %d\ns_lshl_b32 s%d, s%d, 12' % (93 + u, sROT, u, 93 + u, 93 + u))
    part_write_addr(e, PW, 12, 13, 16384, 4096, SPART)
    mk_srd(e, SOUT, P_OUT, 2048 * 2048)
    e.I('s_lshl_b32 s%d, s%d, 2\ns_add_u32 s%d, s%d, s%d\ns_mul_i32 s%d, s%d, %d\ns_add_u32 s%d, s%d, 0x%x' %
        (T0, sRT, T0, T0, sW, T0, T0, 8 * FS, T0, T0, HF_OFF))
    e.I('v_mul_u32_u24 v12, %d, v0\nv_mov_b32 v5, v2' % FS)

    def h_reg(k):
        return 16 + 4 * (k % 12)

    def h_load(k):
        n2, t4 = k >> 2, k & 3
        e.I('buffer_load_dwordx4 %s, v%d, %s, s%d offen offset:%d sc1' % (vr(h_reg(k), 4), HV + (t4 >> 1), srd(SWS), 93 + (n2 >> 1),
                                                                            2048 * (n2 & 1) + 1024 * (t4 & 1)), tag=('h', k))

    def c_finish():
        for i in range(8):
            c_read(i)
        e.wait(vm='wd')
        cnt_add(e, FLA, ONE, C_DONEA)
        st(e, 'cgot')

    while rest and rest[0] < cfg.hlook:
        run(c_loads(rest.pop(0)))
    if cfg.hlook > 8:
        c_finish()
    poll(e, 'L_pollH', 13, 12, T0, '0xff',
         lambda: ([run(c_loads(i)) for i in rest], c_finish() if cfg.hearly == 0 and cfg.hlook <= 8 else None))
    st(e, 'hrdy')
    jitter(e, cfg, 10)
    XO, RA, GV, RF = 2, 3, 4, 14
    ROWS = (0, 8, 32, 40)
    XL, DL, GL, XD, PW1 = 128, 136, 138, 144, 10
    fin = items('s_lshl_b32 s%d, s%d, 6\ns_add_u32 s%d, s%d, s%d' % (T0, sRT, T0, T0, sW))
    fin += items('v_lshrrev_b32 v12, 4, v0\nv_lshrrev_b32 v13, 2, v0\nv_and_b32 v13, 2, v13\nv_xor_b32 v12, v12, v13')
    fin += items('v_and_b32 v15, 1, v12\nv_lshl_add_u32 v13, v15, 4, s%d\nv_lshrrev_b32 v3, 1, v12\nv_lshl_add_u32 v13, v3, 2, v13' % T0)
    fin += items('v_and_b32 v14, 15, v0\ns_lshl_b32 s%d, s%d, 7' % (T1, sCT))
    fin += items('v_lshl_add_u32 v1, v14, 3, s%d' % T1)
    fin += items('v_lshl_add_u32 v%d, v13, 10, v1' % XO)
    fin += items('v_lshlrev_b32 v%d, 2, v13\nv_add_u32 v%d, 0x%x, v%d' % (GV, GV, G_OFF, GV))
    fin += items('s_lshl_b32 s%d, s%d, 8\ns_add_u32 s%d, s%d, %d' % (T2, sW, T1, T2, SPART))
    fin += items('v_lshl_add_u32 v3, v3, 10, s%d\nv_lshl_add_u32 v3, v15, 14, v3' % T1)
    fin += items('v_lshl_or_b32 v13, v15, 2, s%d\nv_xor_b32 v13, v13, v14\nv_lshl_add_u32 v%d, v13, 4, v3' % (sW, RA))
    fin += items('v_lshl_add_u32 v12, v12, 6, s%d\nv_lshrrev_b32 v13, 2, v14\nv_lshl_add_u32 v12, v13, 10, v12' % T2)
    fin += items('v_and_b32 v13, 3, v0\nv_lshl_add_u32 v%d, v13, 4, v12\nv_add_u32 v%d, %d, v%d' % (RF, RF + 1, 2 * SLOT, RF))
    fin += items('s_lshl_b32 s%d, s%d, 7' % (T0, sDTX))
    for a in range(2):
        fin += items('v_xor_b32 v%d, s%d, v%d\nv_xor_b32 v%d, 0x80, v%d' % (PW + a, T0, PW + a, PW1 + a, PW + a))
    if cfg.posX < 0:
        run(fin)
    for k in range(cfg.NVA):
        if cfg.posX < 0 and k == -1 - cfg.posX:
            assert k >= cfg.hearly
            e.wait(lg='all')
            e.I('s_barrier')
        if k == cfg.hearly // 2 and k:
            c_read(6)
        if k == cfg.hearly and k:
            c_finish()
        h_load(k)
    e.wait(lg='all')
    if cfg.posX >= 0:
        run(fin)

    def fx_loads():
        e.I('global_load_dwordx2 %s, v1, s[%d:%d]' % (vr(DL, 2), P_DSK, P_DSK + 1), tag='fx')
        for n in range(4):
            e.I('s_mov_b32 s%d, %d' % (T2, 1024 * ROWS[n]))
            e.I('buffer_load_dwordx2 %s, v%d, %s, s%d offen' % (vr(XL + 2 * n, 2), XO, srd(SX), T2), tag='fx')

    def g_loads():
        for n in range(4):
            e.I('buffer_load_dword v%d, v%d, %s, 0 offen offset:%d sc1' % (GL + n, GV, srd(SWS), 4 * ROWS[n]), tag='fg')

    DU = 160
    xd = [lambda: e.wait(vm='fx')]
    xd += items('v_lshlrev_b32 v%d, 16, v%d\nv_and_b32 v%d, 0xffff0000, v%d\nv_lshlrev_b32 v%d, 16, v%d\nv_and_b32 v%d, 0xffff0000, v%d' %
                (DU, DL, DU + 1, DL, DU + 2, DL + 1, DU + 3, DL + 1))
    for n in range(4):
        for k in range(2):
            x = XL + 2 * n + k
            xd += items('v_lshlrev_b32 v12, 16, v%d\nv_and_b32 v13, 0xffff0000, v%d' % (x, x))
            xd += items('v_mul_f32 v12, v12, v%d\nv_mul_f32 v13, v13, v%d' % (DU + 2 * k, DU + 1 + 2 * k))
            xd += items('v_cvt_pk_bf16_f32 v13, v12, v13')
            xd += items('v_lshlrev_b32 v%d, 16, v13\nv_and_b32 v%d, 0xffff0000, v13' % (XD + 4 * n + 2 * k, XD + 4 * n + 2 * k + 1))
    xd += items('v_mov_b32 v12, %d\nv_mov_b32 v13, 1\nv_lshlrev_b32 v%d, 1, v%d' % (L_P2, XO, XO))

    def s2_step(k):
        n2, t4 = k >> 2, k & 3
        if k == 2 * cfg.posX:
            e.I('s_barrier')
        e.wait(vm=('h', k))
        for dq in range(4):
            d = 3 - dq if cfg.snake and t4 & 1 else dq
            mfma16(e, acc2(t4, d), c_reg(n2 >> 1, n2 & 1, d), h_reg(k), n2 == 0)
            if dq == (0 if cfg.NVA < 12 else 3) and k + cfg.NVA < 32:
                h_load(k + cfg.NVA)
        if k == 8:
            fx_loads()
        if k == max(8, 2 * cfg.posX):
            g_loads()
    steps = [lambda k=k: s2_step(k) for k in range(32)]
    if cfg.xdpos < 32:
        run(steps[:cfg.xdpos] + weave(steps[cfg.xdpos:], xd))
    else:
        run(steps + xd[-3:])
    st(e, 's2end')
    jitter(e, cfg, 11)
    if cfg.posX == 16:
        e.I('s_barrier')
        g_loads()
    st(e, '_X')
    run(part_write(e, PW, 16384, 0, PW1) + part_write(e, PW, 16384, 1, PW1))
    cnt_add(e, 12, 13, 0)
    if cfg.xdpos >= 32:
        run(xd[:-1])
    OM = 164
    e.wait(vm='fg')
    for n in range(4):
        e.I('v_sub_f32 v%d, 1.0, v%d' % (OM + n, GL + n))
        e.I('v_cvt_pk_bf16_f32 v%d, v%d, v%d\nv_lshlrev_b32 v%d, 16, v%d' % (OM + n, OM + n, OM + n, OM + n, OM + n))
    for n in range(4):
        e.I('s_mov_b32 s%d, %d' % (T2 + n, 2048 * ROWS[n]))
    e.I('s_lshl_b32 s%d, s%d, 5\ns_add_u32 s%d, s%d, s%d\ns_lshl_b32 s%d, s%d, 8\ns_add_u32 s%d, s%d, s%d' %
        (T0, sCT, T0, T0, sRT, T1, sW, T0, T0, T1))
    e.I('s_cmp_eq_u32 s%d, 31\ns_cselect_b32 s%d, 0x%x, s%d' % (T0, T0, EPOCH_OFF, SWS + 2))
    flag_store(e, 5, T0)
    cnt_spin(e, 'L_spinM', 12, 16, 0)
    e.wait(lg='all')
    for n in range(4):
        for w in range(4):
            e.I('ds_read_b128 %s, v%d offset:%d' % (vr(64 + 16 * n + 4 * w, 4), RA, w * 4096 + (n & 1) * 2048 + (n >> 1) * 32768), tag=('r', n))
    BS = XD
    for n in range(4):
        e.wait(lg=('r', n))
        b = 64 + 16 * n
        for k in range(4):
            e.I('v_add_f32 v%d, v%d, v%d\nv_add_f32 v%d, v%d, v%d' % (b + k, b + k, b + 4 + k, b + 8 + k, b + 8 + k, b + 12 + k))
        for k in range(4):
            e.I('v_add_f32 v%d, v%d, v%d' % (b + k, b + k, b + 8 + k))
        for k in range(4):
            e.I('v_add_f32 v%d, v%d, v%d' % (b + k, b + k, XD + 4 * n + k))
        for k in range(4):
            e.I('v_mul_f32 v%d, v%d, v%d' % (BS + 4 * n + k, GL + n, b + k))
    st(e, 'pre')
    jitter(e, cfg, 12)
    for grp in cfg.zg:
        e.I('s_barrier')
        st(e, 'Z' if 3 in grp else '_Z%d' % grp[0])
        for n in grp:
            for w in range(4):
                e.I('ds_read_b128 %s, v%d offset:%d' % (vr(64 + 16 * n + 4 * w, 4), RF + (n >> 1), w * 6144 + (n & 1) * SLOT), tag=('r', n, w >> 1))
        for n in grp:
            b = 64 + 16 * n
            for o, p in ((0, 4), (8, 12), (0, 8)):
                e.wait(lg=('r', n, o >> 3))
                if 3 in grp:
                    for k in (0, 2):
                        e.I('v_pk_add_f32 %s, %s, %s' % (vr(b + o + k, 2), vr(b + o + k, 2), vr(b + p + k, 2)))
                else:
                    for k in range(4):
                        e.I('v_add_f32 v%d, v%d, v%d' % (b + o + k, b + o + k, b + p + k))
            if cfg.mimic2:
                for rnd in range(2):
                    e.I('v_cvt_pk_bf16_f32 v%d, v%d, v%d\nv_cvt_pk_bf16_f32 v%d, v%d, v%d' % (b + 1, b, b + 1, b + 3, b + 2, b + 3))
                    for k in (0, 2):
                        e.I('v_lshlrev_b32 v%d, 16, v%d\nv_and_b32 v%d, 0xffff0000, v%d' % (b + k, b + k + 1, b + k + 1, b + k + 1))
                    if rnd == 0:
                        for k in range(4):
                            e.I('v_mul_f32 v%d, v%d, v%d' % (b + k, OM + n, b + k))
                for k in (0, 2):
                    e.I('v_pk_add_f32 %s, %s, %s' % (vr(b + k, 2), vr(b + k, 2), vr(BS + 4 * n + k, 2)))
            else:
                for k in range(4):
                    e.I('v_fma_f32 v%d, v%d, v%d, v%d' % (b + k, OM + n, b + k, BS + 4 * n + k))
            e.I('buffer_store_dwordx4 %s, v%d, %s, s%d offen %s' % (vr(b, 4), XO, srd(SOUT), T2 + n, cfg.outflags if isinstance(cfg.outflags, str) else cfg.outflags[n]), tag='out')
    if st.on:
        e.wait(vm='all')
    st(e, 'end')
    st.flush(e)


HEADER = open(os.path.join(os.path.dirname(os.path.abspath(__file__)), '..', 'cdna_kernels', BASE + '.s.ref')).read()


DOC = """;
;   S: B stages x and B_re/B_im through LDS (LDS-DMA) and keeps its x fragments in registers; A computes B.x.
;      local end states -> workgroup end state published in d_ws -> carry-in from ALL earlier row blocks ->
;      second pass; h is transposed with two selection MFMAs.  h, act (bf16, fragment order) and the gate go to d_ws.
; Hand-offs: write-through stores, counter wait, then a flag word; readers poll with L1-bypassing loads.
"""


def generate(cfg):
    SLEEP[:] = cfg.sleep
    FL.clear()
    FL.update(cfg.nt)
    W_SLOT[0] = 0 if cfg.w0pos is None else 4
    S_SHIFT[0] = -1 if cfg.lag else 0 if cfg.w0pos is None else 1
    assert cfg.w0pos is None
    hdr = []
    for line in HEADER.split('\n'):
        if not line.startswith(';'):
            break
        if '@launch' in line:
            line = '; @launch grid=(256,1,1) block=(512,1,1) lds=%d' % LDS_BYTES
            if cfg.pre_kernel is not None:
                line = '; @launch kernel=%s grid=(256,1,1) block=(512,1,1) lds=%d' % (NAME, LDS_BYTES)
                if cfg.pre_kernel:
                    line = '; @launch kernel=warm_kernel grid=(256,1,1) block=(256,1,1) lds=0\n' + line
        hdr.append(line)
    stB = Stamps(cfg, [38, 6, 8, 14, 16, 18, 20, 22, 30, 32, 34, 4, 10, 12, 24, 26], 'B')
    stA = Stamps(cfg, [38, 10, 12, 22, 34, 24, 26, 6, 8, 18, 28, 14, 16, 30, 36, 4], 'A')
    e = Em()
    gen_entry(e, cfg, stB)
    stA.names = list(stB.names)
    eA = Em()
    eA.hist = list(e.hist)
    eA.vm = list(e.vm)
    gen_B(e, cfg, stB)
    gen_A(eA, cfg, stA)
    txt = '\n'.join(hdr) + '\n' + DOC
    txt += '.amdgcn_target "amdgcn-amd-amdhsa--gfx950"\n.text\n.globl %s\n.p2align 8\n.type %s,@function\n%s:\n' % (NAME, NAME, NAME)
    txt += e.text() + '\n' + '\n'.join(e.cold) + '\n.p2align 6\nL_A:\n' + eA.text() + '\n    s_endpgm\n' + '\n'.join(eA.cold) + '\nL_end:\n    s_endpgm\n'
    if cfg.pre_kernel:
        w = Em()
        w.I('s_cmp_ge_u32 s2, 256\ns_cbranch_scc1 L_wend')
        if cfg.pre_kernel != 'empty':
            w.I('s_load_dwordx16 s[4:19], s[0:1], 0\ns_load_dwordx16 s[20:35], s[0:1], 64')
            w.I('s_lshl_b32 s3, s2, 8\nv_add_u32 v0, s3, v0\nv_lshlrev_b32 v1, 7, v0')
            w.wait_smem()
            base = 0
            for p, n in ((P_X, 2048 * 1024), (P_BRE, 524288), (P_BIM, 524288), (P_WG, 1409024), (P_WU, 1409024), (P_CRE, 524288), (P_CIM, 524288), (P_WD, 1409024)):
                mk_srd(w, 40, p, n)
                w.I('v_subrev_u32 v2, %d, v1\nv_cmp_gt_u32 vcc, %d, v2\ns_and_saveexec_b64 s[44:45], vcc\ns_cbranch_execz L_w%d' % (base, n, p))
                w.I('buffer_load_dword v3, v2, s[40:43], 0 offen')
                w.label('L_w%d' % p)
                w.I('s_mov_b64 exec, s[44:45]')
                base += n
            if cfg.pre_kernel == 'wait':
                w.I('s_waitcnt vmcnt(0)')
        txt += '.globl warm_kernel\n.p2align 8\n.type warm_kernel,@function\nwarm_kernel:\n' + w.text() + '\nL_wend:\n    s_endpgm\n'
    txt += '''.section .rodata,"a"
.p2align 6
.amdhsa_kernel %s
  .amdhsa_next_free_vgpr 256
  .amdhsa_next_free_sgpr 102
  .amdhsa_accum_offset 256
  .amdhsa_group_segment_fixed_size 0
  .amdhsa_kernarg_size 136
  .amdhsa_user_sgpr_count 2
  .amdhsa_user_sgpr_kernarg_segment_ptr 1
  .amdhsa_system_sgpr_workgroup_id_x 1
  .amdhsa_float_denorm_mode_32 3
.end_amdhsa_kernel
''' % NAME
    if cfg.pre_kernel:
        txt += '''.p2align 6
.amdhsa_kernel warm_kernel
  .amdhsa_next_free_vgpr 8
  .amdhsa_next_free_sgpr 48
  .amdhsa_accum_offset 8
  .amdhsa_group_segment_fixed_size 0
  .amdhsa_kernarg_size 136
  .amdhsa_user_sgpr_count 2
  .amdhsa_user_sgpr_kernarg_segment_ptr 1
  .amdhsa_system_sgpr_workgroup_id_x 1
.end_amdhsa_kernel
'''
    info = dict(A=eA.count, B=e.count, nopsA=eA.nops, nopsB=e.nops, stampsA=stA.names, stampsB=stB.names)
    return txt, info


def cfg_from(args):
    cfg = Cfg()
    for a in args:
        k, v = a.split('=')
        setattr(cfg, k, eval(v))
    return cfg


if __name__ == '__main__':
    out = sys.argv[1]
    cfg = cfg_from(sys.argv[2:])
    txt, info = generate(cfg)
    open(out, 'w').write(txt)
    print(info)
```

```python
import sys, os
sys.path.insert(0, os.path.dirname(os.path.abspath(__file__)))
from em import Em, weave

BASE = 'gated_mix__ssm_conv_s5__swiglu_ffn__prompt'
NAME = BASE + '_kernel'

ACT_OFF = 0
H_OFF = 0x600000
E_OFF = 0xB00000
G_OFF = 0xB20000
HF_OFF = 0xB24000
AF_OFF = 0xB30000
EPOCH_OFF = 0xB48000
STAMP_OFF = 0xB50000
WS_SIZE = 0xB80000
OOB = 0x2000000
FS = 32
PHI = 0x9E3779B8

SLOT = 24576
WIN = 49152
SCR = 147456
SPART = 98304
L_E, L_FL, L_EG = SCR, SCR + 4096, SCR + 8192
L_P2 = 3 * SLOT + 4096
LDS_BYTES = 163840

P_X, P_LRE, P_LIM, P_BRE, P_BIM, P_CRE, P_CIM, P_LDT = 4, 6, 8, 10, 12, 14, 16, 18
P_DSK, P_BX, P_WG, P_WU, P_WD, P_GW, P_OUT, P_DBG, P_WS = 20, 22, 24, 26, 28, 30, 32, 34, 36
SX, SWS = 40, 44
SBM, SW, SWD = 48, 52, 56
SC1, SC2, SOUT, SCODE = 48, 52, 56, 60
SWA = 60
sWAVE, sW, sRB, sCB, sK0, sRT, sCT, sNONCE, sSG0 = 64, 65, 66, 67, 68, 69, 70, 71, 72
T0, T1, T2, T3, T4, T5, T6 = 73, 74, 75, 76, 77, 78, 79
sNL2E = 80
sMA, sMB = 82, 84
sTBL = 86
sCNT = 97
sTS, sTW, sTD = 98, 99, 100
sMX, sMBm = 60, 61
sMW = 101
SPIN_MAX = 200000

SLEEP = [0, 0]
FL = {}


def ntf(key, stage):
    return 'nt ' if stage < FL.get(key, 0) else ''


LOG2E = 0x3fb8aa3b
NLOG2E = 0xbfb8aa3b


class Cfg:
    mimic = False
    mimic2 = False
    stamps = False
    rot1 = (2, 4, 2, 1)
    rot2 = 7
    rotF = 0
    rotS = None
    map2 = 84
    prewarm = 'v'
    pwn = 4
    slim = True
    blate = True
    lfirst = 0
    glds = True
    xloc = True
    defer = True
    apre = True
    NT = 2
    early = 200
    w0pos = None
    s1a = 2
    smallpos = 2
    pre_kernel = None
    lag = 0
    lagr = 4
    JL = 7
    prog = 'W2,G0|;W3,C0|sel;W4|g53;E0,W5,D0,D1,D2,D3|g;W6|P0;W7|P1H;|;C1,C2,C3|F'
    p2cut = 72
    cbuf = (4, 0, 1, 4, 0, 1, 4, 0)
    tplan = ()
    zfill = True
    prioB = 0
    LA = 4
    posX = 10
    pren = 4
    asplit = True
    prioT = 1
    prioS = 0
    prioD = (1, 0)
    prioF2n = -1
    drain = ()
    hpad = (0, 0)
    hlook = 9
    hearly = 0
    hnow = 4
    sleep = (1, 1)
    skew = None
    skip = ''
    flagpos = (0, 0, 5)
    alook = 18
    abet = 3
    posXB = -17
    fine = True
    snake = True
    nt = {}
    pksc = True
    jitter = 0
    prioF2 = 1
    NVA = 11
    NV0 = (12, 0)
    xdpos = 32
    NV = 12
    TL = 4
    pull0 = 3
    zg = ((0, 1), (2, 3))
    zlag = 3
    outflags = 'sc1'
    selA = None
    selB = None
    prioA = 0
    amp = None


def srd(r):
    return 's[%d:%d]' % (r, r + 3)


def vr(a, n):
    return 'v[%d:%d]' % (a, a + n - 1) if n > 1 else 'v%d' % a


def mk_srd(e, r, p, nbytes):
    e.I('s_mov_b32 s%d, s%d\ns_mov_b32 s%d, s%d\ns_mov_b32 s%d, 0x%x\ns_mov_b32 s%d, 0x20000' %
        (r, p, r + 1, p + 1, r + 2, nbytes, r + 3))


def mk_srd_sel(e, r, p1, p0, nbytes):
    e.I('s_cselect_b32 s%d, s%d, s%d\ns_cselect_b32 s%d, s%d, s%d\ns_mov_b32 s%d, 0x%x\ns_mov_b32 s%d, 0x20000' %
        (r, p1, p0, r + 1, p1 + 1, p0 + 1, r + 2, nbytes, r + 3))


def mfma(e, d, a, b, first):
    e.I('v_mfma_f32_32x32x16_bf16 %s, %s, %s, %s' % (vr(d, 16), vr(a, 4), vr(b, 4), '0' if first else vr(d, 16)))


def mfma16(e, d, a, b, first):
    e.I('v_mfma_f32_16x16x32_bf16 %s, %s, %s, %s' % (vr(d, 4), vr(a, 4), vr(b, 4), '0' if first else vr(d, 4)))


class Stamps:
    def __init__(self, cfg, regs, role):
        self.amp = cfg.amp if cfg.amp else None
        self.role = role
        self.sel = (cfg.selA if role == 'A' else cfg.selB)
        if self.sel is not None:
            self.sel = self.sel.split(',')
        self.ins = 's_memtime' if cfg.stamps == 'cyc' else 's_memrealtime'
        self.on = cfg.stamps or bool(self.amp)
        self.regs = regs
        self.names = []

    def __call__(self, e, name):
        if not self.on:
            return
        if self.sel is not None:
            if name != 'start' and name not in self.sel:
                return
        elif name.startswith('_'):
            return
        r = self.regs[len(self.names)]
        self.names.append(name)
        if self.amp and name not in ('start', 'end', self.amp[1], self.amp[2]):
            return
        e.I('%s s[%d:%d]' % (self.ins, r, r + 1))

    def flush(self, e):
        if not self.on:
            return
        e.wait_smem()
        if self.amp:
            if self.amp[0] == self.role:
                R = dict(zip(self.names, self.regs))
                e.I('s_sub_u32 s%d, s%d, s%d' % (T0, R[self.amp[2]], R[self.amp[1]]))
                if self.amp[3] < 0:
                    e.I('s_min_u32 s%d, s%d, %d\ns_sub_u32 s%d, %d, s%d' % (T0, T0, self.amp[4], T0, self.amp[4], T0))
                e.I('s_mul_i32 s%d, s%d, %d\ns_min_u32 s%d, s%d, 50000' % (T0, T0, abs(self.amp[3]), T0, T0))
                if len(self.amp) > 5:
                    e.I('s_and_b32 s%d, s2, %d\ns_cmp_eq_u32 s%d, %d\ns_cselect_b32 s%d, s%d, 0' % (T1, self.amp[5], T1, self.amp[6], T0, T0))
                e.label('L_amp')
                e.I('s_memrealtime s[%d:%d]' % (T1, T1 + 1))
                e.wait_smem()
                e.I('s_sub_u32 s%d, s%d, s%d\ns_cmp_lt_u32 s%d, s%d\ns_cbranch_scc1 L_amp' % (T1, T1, R['end'], T1, T0))
            return
        e.I('s_lshl_b32 s%d, s2, 3\ns_add_u32 s%d, s%d, s%d\ns_lshl_b32 s%d, s%d, 6\ns_add_u32 s%d, s%d, 0x%x' %
            (T0, T0, T0, sWAVE, T0, T0, T0, T0, STAMP_OFF))
        e.I('s_mov_b64 exec, 1')
        for k in range(len(self.names)):
            e.I('v_mov_b32 v2, s%d' % self.regs[k])
            e.I('buffer_store_dword v2, off, %s, s%d offset:%d' % (srd(SWS), T0, 4 * k))


def jitter(e, cfg, key):
    if not cfg.jitter:
        return
    lab = 'L_jit%d' % key
    e.settle()
    e.I('s_lshl_b32 s%d, s2, 3\ns_add_u32 s%d, s%d, s%d' % (sCNT, sCNT, sCNT, sWAVE))
    e.I('s_mul_i32 s%d, s%d, 0x%x\ns_lshr_b32 s%d, s%d, 28' % (sCNT, sCNT, (0x9E3779B1 * (2 * key * cfg.jitter + 1)) & 0xffffffff, sCNT, sCNT))
    e.I('s_cmp_lt_u32 s%d, 12\ns_cbranch_scc1 %s_out' % (sCNT, lab))
    e.label(lab)
    e.I('s_sleep 40\ns_add_u32 s%d, s%d, 1\ns_cmp_lt_u32 s%d, 17\ns_cbranch_scc1 %s' % (sCNT, sCNT, sCNT, lab))
    e.label(lab + '_out')


def run(items):
    for it in items:
        it()


def poll(e, label, vt, vaddr, soff, mask, between=None):
    def look(tag=None):
        e.I('s_mov_b64 exec, %s' % mask)
        e.I('buffer_load_dword v%d, v%d, %s, s%d offen sc1' % (vt, vaddr, srd(SWS), soff), tag=tag)
        e.I('s_mov_b64 exec, -1')

    def check():
        e.I('v_cmp_ne_u32 vcc, s%d, v%d' % (sNONCE, vt))
        e.I('s_and_b64 vcc, vcc, %s' % mask)
    spin(e, label, look, check, between)


def spin(e, label, look, check, between):
    look('look')
    if between:
        between()
    e.wait(vm='look')
    check()
    e.I('s_cbranch_scc1 %s' % label)
    e.label(label + '_out')
    with e.cold_block():
        e.label(label)
        e.I('s_mov_b32 s%d, 0' % sCNT)
        e.label(label + '_l')
        if SLEEP[0]:
            e.I('s_sleep %d' % SLEEP[0])
        look()
        e.I('s_add_u32 s%d, s%d, 1' % (sCNT, sCNT))
        e.I('s_cmp_gt_u32 s%d, %d' % (sCNT, SPIN_MAX))
        e.wait(vm='all')
        e.I('s_cbranch_scc1 %s_out' % label)
        check()
        e.I('s_cbranch_scc1 %s_l' % label)
        e.I('s_branch %s_out' % label)


def code_touch(e, tag):
    e.I('s_getpc_b64 s[%d:%d]' % (sMA, sMA + 1))
    e.label('L_pc' + tag)
    e.I('s_sub_u32 s%d, s%d, L_pc%s-%s\ns_subb_u32 s%d, s%d, 0' % (sMA, sMA, tag, NAME, sMA + 1, sMA + 1))
    e.I('s_and_b32 s%d, s2, 0xf8\ns_add_u32 s%d, s%d, s%d\ns_lshl_b32 s%d, s%d, 6' % (T0, T0, T0, sWAVE, T0, T0))
    e.I('s_load_dword s3, s[%d:%d], s%d' % (sMA, sMA + 1, T0))
    e.I('s_add_u32 s%d, s%d, 16384\ns_min_u32 s%d, s%d, L_end-%s' % (T0, T0, T0, T0, NAME))
    e.I('s_load_dword s3, s[%d:%d], s%d' % (sMA, sMA + 1, T0))


def rot2_calc(e, cfg, dst, b):
    e.I('s_mul_i32 s%d, s%d, %d' % (dst, sCT, b))
    for k in range(1 if cfg.map2 == 84 else 2):
        e.I('s_add_u32 s%d, s%d, s%d' % (dst, dst, sRT))
    e.I('s_and_b32 s%d, s%d, %d' % (dst, dst, cfg.rot2))


def step_start(e, cfg, cur, beg, end, shift):
    rot2_calc(e, cfg, cur, cfg.rotF)
    e.I('s_cmp_eq_u32 s%d, 3\ns_cselect_b32 s%d, 10, 11' % (sW, end))
    e.I('s_mul_i32 s%d, s%d, s%d\ns_lshr_b32 s%d, s%d, 3\ns_mul_i32 s%d, s%d, 11' % (cur, cur, end, cur, cur, beg, sW))
    e.I('s_add_u32 s%d, s%d, s%d\ns_add_u32 s%d, s%d, s%d' % (cur, cur, beg, end, end, beg))
    for r in (cur, beg, end):
        e.I('s_lshl_b32 s%d, s%d, %d' % (r, r, shift))


def step_next(e, cur, beg, end, inc, wrap=True, last=False):
    e.I('s_add_u32 s%d, s%d, %d' % (cur, cur, inc))
    if wrap:
        e.I('s_cmp_eq_u32 s%d, s%d\ns_cselect_b32 s%d, s%d, s%d' % (cur, end, cur, beg, cur))
    if last:
        e.I('s_cmp_eq_u32 s%d, 3\ns_cselect_b32 s%d, 0x%x, s%d' % (sW, cur, OOB, cur))


def wd_next(e, n, cur, beg, end):
    step_next(e, cur, beg, end, 16384, n % 2 == 0, n == 20)


def set_m0(e, base, off):
    if getattr(e, 'm0', None) != (base, off):
        e.I('s_add_u32 m0, s%d, %d' % (base, off))
        e.m0 = (base, off)


def wd_lane_offsets(e, WDV, t0, t1):
    txt = 'v_lshrrev_b32 v%d, 4, v0\nv_lshlrev_b32 v%d, 1, v%d\nv_and_b32 v%d, 7, v0\nv_xor_b32 v%d, v%d, v%d\nv_lshlrev_b32 v%d, 4, v%d\n' % (
        t0, t0, t0, t1, t0, t0, t1, t0, t0)
    txt += 'v_lshrrev_b32 v%d, 3, v0\nv_lshl_add_u32 v%d, v%d, 10, v%d\n' % (t1, t0, t1, t0)
    txt += 's_lshl_b32 s%d, s%d, 7\n' % (T0, sCT)
    txt += 'v_add_u32 v%d, s%d, v%d\nv_add_u32 v%d, 7168, v%d' % (WDV, T0, t0, WDV + 1, WDV)
    return txt


RING = [(5, n) for n in range(3)] + [(4, 2)] + [(2 + n // 3, n % 3) for n in range(6)] + [(4, n) for n in range(2)] \
    + [(n // 3, n % 3) for n in range(6)] + [(2, n) for n in range(3)] + [(3, 0)]
PREV = {18: 4, 19: 5, 20: 6, 21: 7}


class Touch:
    def __init__(self, e, cfg, role):
        self.e, self.role = e, role
        self.plan = [p for p in cfg.tplan if p[0] == role]
        it = []
        for par in range(2):
            for p in (P_CRE, P_CIM):
                it += [(p, 128 * k + 64 * par) for k in range(4)]
        for par in range(2):
            it += [(P_WD, 128 * k + 64 * par) for k in range(11)]
        self.items = it

    def setup(self):
        if not self.plan:
            return
        e = self.e
        used = {self.items[k][0] for p in self.plan for k in range(p[2], p[3])}
        e.I('s_lshl_b32 s%d, s2, 2\ns_add_u32 s%d, s%d, s%d' % (T0, T0, T0, sW))
        for p in sorted(used):
            e.I('s_mul_i32 s%d, s%d, %d' % (T1, T0, 1376 if p == P_WD else 512))
            e.I('s_add_u32 s%d, s%d, s%d\ns_addc_u32 s%d, s%d, 0' % (p, p, T1, p + 1, p + 1))

    def at(self, place):
        for p in self.plan:
            if p[1] == place:
                for k in range(p[2], p[3]):
                    self.e.I('s_load_dword s3, s[%d:%d], %d' % (self.items[k][0], self.items[k][0] + 1, self.items[k][1]))


def flag_store(e, vt, soff, imm=0):
    e.I('s_mov_b64 exec, 1')
    e.I('buffer_store_dword v%d, off, %s, s%d offset:%d sc1' % (vt, srd(SWS), soff, imm), tag='flag')
    e.I('s_mov_b64 exec, -1')


def frag_addr(e, dst, t0, t1):
    e.I('v_lshrrev_b32 v%d, 5, v0' % t0)
    e.I('v_bfe_u32 v%d, v0, 1, 3' % t1)
    e.I('v_xor_b32 v%d, v%d, v%d' % (t0, t0, t1))
    e.I('v_and_b32 v%d, 31, v0' % t1)
    e.I('v_lshlrev_b32 v%d, 7, v%d' % (t1, t1))
    e.I('v_lshl_add_u32 v%d, v%d, 4, v%d' % (dst, t0, t1))
    for s in range(1, 4):
        e.I('v_xor_b32 v%d, %d, v%d' % (dst + s, 32 * s, dst))


def frag16_addr(e, dst, t0, t1):
    e.I('v_lshrrev_b32 v%d, 4, v0' % t0)
    e.I('v_bfe_u32 v%d, v0, 1, 3' % t1)
    e.I('v_xor_b32 v%d, v%d, v%d' % (t0, t0, t1))
    e.I('v_and_b32 v%d, 15, v0' % t1)
    e.I('v_lshlrev_b32 v%d, 7, v%d' % (t1, t1))
    e.I('v_lshl_add_u32 v%d, v%d, 4, v%d' % (dst, t0, t1))
    e.I('v_xor_b32 v%d, 64, v%d' % (dst + 1, dst))


def w_tr_addr(e, d, t0, t1):
    e.I('v_lshrrev_b32 v%d, 4, v0' % t0)
    e.I('v_bfe_u32 v%d, v0, 2, 2' % t1)
    e.I('v_lshl_add_u32 v%d, v%d, 3, v%d' % (t0, t0, t1))
    e.I('v_mul_u32_u24 v%d, 192, v%d' % (t0, t0))
    e.I('v_bfe_u32 v%d, v0, 4, 1' % t1)
    e.I('v_lshl_add_u32 v%d, v%d, 5, v%d' % (t0, t1, t0))
    e.I('v_and_b32 v%d, 3, v0' % t1)
    e.I('v_lshl_add_u32 v%d, v%d, 3, v%d' % (d, t1, t0))
    e.I('v_xor_b32 v%d, 32, v%d' % (d + 1, d))
    e.I('v_add_u32 v%d, %d, v%d\nv_add_u32 v%d, %d, v%d' % (d + 2, WIN, d, d + 3, WIN, d + 1))


W_SLOT = [0, 1, 2, 3, 0, 1, 2, 3]
S_SHIFT = [0]


def s_slot(i):
    return (i + 4) % 6 if S_SHIFT[0] < 0 else (i + S_SHIFT[0]) % 4


def w_frag_read(e, dst, wa, j, s2, g, mat, fh, mm, tag):
    slot = W_SLOT[j]
    off = (slot & 1) * SLOT + mat * 12288 + (32 * s2 + 4 * mm) * 192 + g * 64
    e.I('ds_read_b64_tr_b16 %s, v%d offset:%d' % (vr(dst + 2 * mm, 2), wa + 2 * (slot >> 1) + fh, off), tag=tag)


def act_items(e, cfg, G, U, tmp, out):
    items = []
    add = lambda t: items.append(lambda t=t: e.I(t))
    for b in range(2):
        g, u, o = G + 8 * b, U + 8 * b, out + 4 * b
        if cfg.mimic:
            for src in (g, u):
                for p in range(4):
                    add('v_cvt_pk_bf16_f32 v%d, v%d, v%d' % (tmp + p, src + 2 * p, src + 2 * p + 1))
                for p in range(4):
                    add('v_lshlrev_b32 v%d, 16, v%d' % (src + 2 * p, tmp + p))
                    add('v_and_b32 v%d, 0xffff0000, v%d' % (src + 2 * p + 1, tmp + p))
        for p in range(4):
            add('v_pk_mul_f32 %s, %s, s[%d:%d]' % (vr(tmp + 2 * p, 2), vr(g + 2 * p, 2), sNL2E, sNL2E + 1))
        for p in range(8):
            add('v_exp_f32 v%d, v%d' % (tmp + p, tmp + p))
        for p in range(4):
            add('v_pk_add_f32 %s, %s, 1.0 op_sel_hi:[1,0]' % (vr(tmp + 2 * p, 2), vr(tmp + 2 * p, 2)))
        for p in range(8):
            add('v_rcp_f32 v%d, v%d' % (tmp + p, tmp + p))
        for p in range(4):
            add('v_pk_mul_f32 %s, %s, %s' % (vr(g + 2 * p, 2), vr(g + 2 * p, 2), vr(tmp + 2 * p, 2)))
        if cfg.mimic:
            for p in range(4):
                add('v_cvt_pk_bf16_f32 v%d, v%d, v%d' % (tmp + p, g + 2 * p, g + 2 * p + 1))
            for p in range(4):
                add('v_lshlrev_b32 v%d, 16, v%d' % (g + 2 * p, tmp + p))
                add('v_and_b32 v%d, 0xffff0000, v%d' % (g + 2 * p + 1, tmp + p))
        for p in range(4):
            add('v_pk_mul_f32 %s, %s, %s' % (vr(u + 2 * p, 2), vr(g + 2 * p, 2), vr(u + 2 * p, 2)))
        for p in range(4):
            add('v_cvt_pk_bf16_f32 v%d, v%d, v%d' % (o + p, u + 2 * p, u + 2 * p + 1))
    return items


def act_items_scalar(e, cfg, G, U, tmp, out):
    if cfg.mimic:
        return act_items(e, cfg, G, U, tmp, out)
    items = []
    add = lambda t: items.append(lambda t=t: e.I(t))
    for b in range(4):
        g, u, o = G + 4 * b, U + 4 * b, out + 2 * b
        for p in range(4):
            add('v_mul_f32 v%d, s%d, v%d' % (tmp + p, sNL2E, g + p))
        for p in range(4):
            add('v_exp_f32 v%d, v%d' % (tmp + p, tmp + p))
            add('v_mul_f32 v%d, v%d, v%d' % (u + p, g + p, u + p))
        for p in range(4):
            add('v_add_f32 v%d, 1.0, v%d' % (tmp + p, tmp + p))
        for p in range(4):
            add('v_rcp_f32 v%d, v%d' % (tmp + p, tmp + p))
        for p in range(4):
            add('v_mul_f32 v%d, v%d, v%d' % (u + p, tmp + p, u + p))
        for p in range(2):
            add('v_cvt_pk_bf16_f32 v%d, v%d, v%d' % (o + p, u + 2 * p, u + 2 * p + 1))
    return items


def light_scc(e):
    e.I('s_and_b32 s%d, s%d, 3\ns_cmp_eq_u32 s%d, 3\ns_cselect_b32 s%d, 14, s%d\ns_cmp_eq_u32 s%d, 14' % (T0, sCB, T0, T0, sCB, T0))


def w_lane_offsets(e, cfg, WV, t0, t1):
    if cfg.zfill:
        light_scc(e)
        e.I('s_cselect_b32 s%d, 8, 12' % sTW)
    e.I('s_and_b32 s%d, s%d, 1' % (T1, sW))
    e.I('s_mul_i32 s%d, s%d, %d\ns_lshl_b32 s%d, s%d, 6\ns_add_u32 s%d, s%d, s%d' % (T0, T1, 32 * 2752, T1, sSG0, T0, T0, T1))
    for q in range(3):
        e.I('v_add_u32 v%d, %d, v0\nv_mul_u32_u24 v%d, 171, v%d\nv_lshrrev_b32 v%d, 11, v%d' % (t1, 64 * q, t0, t1, t0, t0))
        if cfg.zfill:
            e.I('v_mul_u32_u24 v%d, 12, v%d\nv_sub_u32 v%d, v%d, v%d\nv_cmp_gt_u32 vcc, s%d, v%d' % (WV + q, t0, t1, t1, WV + q, sTW, t1))
        e.I('v_lshrrev_b32 v%d, 3, v%d\nv_lshlrev_b32 v%d, 1, v%d\nv_xor_b32 v%d, v0, v%d' % (t1, t0, t1, t1, t1, t1))
        e.I('v_mul_u32_u24 v%d, %d, v%d' % (t0, 2752 - 192, t0))
        e.I('v_lshl_add_u32 v%d, v%d, 4, v%d' % (t0, t1, t0))
        e.I('v_add_u32 v%d, s%d, v%d' % (WV + q, T0, t0))
        if cfg.zfill:
            e.I('v_mov_b32 v%d, 0x%x\nv_cndmask_b32 v%d, v%d, v%d, vcc' % (t0, OOB, WV + q, t0, WV + q))
    e.I('s_mul_i32 s%d, s%d, 6144' % (sMW, sW))


def dma_W(e, WV, SWR, j):
    slot = W_SLOT[j] * SLOT
    its = []
    for grp in range(2):
        for q in range(3):
            def f(grp=grp, q=q):
                set_m0(e, sMW, slot + grp * 3072)
                if q == 0 and grp == 0:
                    e.I('s_add_u32 s%d, s%d, %d\ns_and_b32 s%d, s%d, 7\ns_mul_i32 s%d, s%d, %d' %
                        (sTW, sK0, j, sTW, sTW, sTW, sTW, 64 * 2752))
                if q == 0 and grp == 1:
                    e.I('s_add_u32 s%d, s%d, %d' % (sTW, sTW, 16 * 2752))
                e.I('buffer_load_dwordx4 v%d, %s, s%d offen offset:%d %slds' % ((WV + q, srd(SWR), sTW, 1024 * q) + (ntf('w', j),)), tag=('st', 8 + j))
            its.append(f)
    return its


C_LAND, C_CONS, C_Q, C_DONEA = 0, 32, 64, 68


def cnt_add(e, va, vone, off):
    e.I('s_mov_b64 exec, 1')
    e.I('ds_add_u32 v%d, v%d offset:%d' % (va, vone, off), tag='sig')
    e.I('s_mov_b64 exec, -1')


def cnt_look(e, va, vt, off, tag):
    e.I('ds_read_b32 v%d, v%d offset:%d' % (vt, va, off), tag=tag)


def cnt_check(e, label, va, vt, off, tag):
    e.wait(lg=tag)
    e.I('v_cmp_ne_u32 vcc, 4, v%d' % vt)
    e.I('s_cbranch_vccnz %s' % label)
    e.label(label + '_out')
    with e.cold_block():
        e.label(label)
        e.I('s_mov_b32 s%d, 0' % sCNT)
        e.label(label + '_l')
        if SLEEP[1]:
            e.I('s_sleep %d' % SLEEP[1])
        cnt_look(e, va, vt, off, None)
        e.I('s_add_u32 s%d, s%d, 1' % (sCNT, sCNT))
        e.I('s_cmp_gt_u32 s%d, %d' % (sCNT, 20 * SPIN_MAX))
        e.wait(lg='all')
        e.I('s_cbranch_scc1 %s_out' % label)
        e.I('v_cmp_ne_u32 vcc, 4, v%d' % vt)
        e.I('s_cbranch_vccnz %s_l' % label)
        e.I('s_branch %s_out' % label)


def cnt_spin(e, label, va, vt, off):
    cnt_look(e, va, vt, off, 'look')
    cnt_check(e, label, va, vt, off, 'look')


def act_offsets(e, k, s_data, s_flag, valid_scc=False):
    e.I('s_lshl_b32 s%d, s%d, 2\ns_add_u32 s%d, s%d, s%d' % (T0, sRB, T0, T0, sW))
    e.I('s_mul_i32 s%d, s%d, 43\ns_add_u32 s%d, s%d, s%d\ns_add_u32 s%d, s%d, %d\ns_lshl_b32 s%d, s%d, 11' %
        (T1, T0, T1, T1, sSG0, T1, T1, k, s_data, T1))
    e.I('s_lshr_b32 s%d, s%d, 1\ns_mul_i32 s%d, s%d, 44\ns_add_u32 s%d, s%d, s%d\ns_add_u32 s%d, s%d, %d' %
        (T1, T0, T1, T1, T1, T1, sSG0, T1, T1, k))
    e.I('s_lshl_b32 s%d, s%d, 1\ns_and_b32 s%d, s%d, 1\ns_add_u32 s%d, s%d, s%d\ns_mul_i32 s%d, s%d, %d\ns_add_u32 s%d, s%d, 0x%x' %
        (T1, T1, T0, T0, T1, T1, T0, T1, T1, FS, s_flag, T1, AF_OFF))


def part_write_addr(e, dst, t0, t1, piece_stride, wave_stride, base):
    e.I('v_lshrrev_b32 v%d, 4, v0' % t0)
    e.I('v_and_b32 v%d, 7, v0' % t1)
    e.I('v_xor_b32 v%d, v%d, v%d' % (t0, t0, t1))
    e.I('v_lshlrev_b32 v%d, 4, v%d' % (dst, t0))
    e.I('v_bfe_u32 v%d, v0, 3, 1' % t0)
    e.I('v_and_b32 v%d, 3, v0' % t1)
    e.I('v_lshl_add_u32 v%d, v%d, 2, v%d' % (t0, t0, t1))
    e.I('v_lshl_add_u32 v%d, v%d, 8, v%d' % (dst, t0, dst))
    e.I('v_bfe_u32 v%d, v0, 2, 1' % t0)
    e.I('v_mul_u32_u24 v%d, %d, v%d' % (t0, piece_stride, t0))
    e.I('s_mul_i32 s%d, s%d, %d\ns_add_u32 s%d, s%d, %d' % (T0, sW, wave_stride, T0, T0, base))
    e.I('v_add3_u32 v%d, v%d, v%d, s%d' % (dst, dst, t0, T0))
    e.I('v_xor_b32 v%d, 64, v%d' % (dst + 1, dst))


def acc2(t4, dq):
    return 64 + 16 * t4 + 4 * dq


def part_write(e, addr, piece_stride, tt, addr1=None):
    its = []
    for a in range(2):
        for dq in range(4):
            ad_, off = (addr + (dq & 1), (dq >> 1) * 128) if addr1 is None or dq < 2 else (addr1 + (dq & 1), 0)
            its.append(lambda ad_=ad_, off=off, dq=dq, a=a:
                       e.I('ds_write_b128 v%d, %s offset:%d' % (ad_, vr(acc2(2 * tt + a, dq), 4), tt * 2 * piece_stride + a * 2048 + off), tag=('pw', tt)))
    return its


def tile_ids(e, cfg, redo):
    if redo:
        e.I('s_and_b32 s%d, s2, 7\ns_lshr_b32 s%d, s2, 3' % (T0, T1))
        e.I('s_and_b32 s%d, s%d, 7\ns_lshr_b32 s%d, s%d, 3\ns_lshr_b32 s%d, s%d, 1' % (T2, T1, T3, T1, T4, T0))
    e.I('s_mul_i32 s%d, s%d, 11\ns_mul_i32 s%d, s%d, 3\ns_add_u32 s%d, s%d, s%d' % (sSG0, T4, T5, T3, sSG0, sSG0, T5))
    e.I('s_cmp_eq_u32 s%d, 15\ns_subb_u32 s%d, s%d, 0' % (sCB, sSG0, sSG0))
    if cfg.map2 == 84:
        if cfg.xloc:
            e.I('s_and_b32 s%d, s%d, 8\ns_add_u32 s%d, s%d, s%d\ns_and_b32 s%d, s%d, 2\ns_lshl_b32 s%d, s%d, 2\ns_add_u32 s%d, s%d, s%d' %
                (sRT, sRB, sRT, sRT, sRB, T5, T0, T5, T5, sRT, sRT, T5))
            e.I('s_and_b32 s%d, s%d, 4\ns_add_u32 s%d, s%d, s%d' % (sCT, T0, sCT, sCT, T3))
        else:
            e.I('s_lshl_b32 s%d, s%d, 3\ns_add_u32 s%d, s%d, s%d' % (sRT, T4, sRT, sRT, T2))
            e.I('s_and_b32 s%d, s%d, 1\ns_lshl_b32 s%d, s%d, 2\ns_add_u32 s%d, s%d, s%d' % (sCT, T0, sCT, sCT, sCT, sCT, T3))
    else:
        e.I('s_lshl_b32 s%d, s%d, 2\ns_and_b32 s%d, s%d, 3\ns_add_u32 s%d, s%d, s%d\ns_lshr_b32 s%d, s%d, 2' %
            (sRT, T0, T5, T1, sRT, sRT, T5, sCT, T1))


KARG2 = 's_load_dwordx16 s[20:35], s[0:1], 64\ns_load_dwordx2 s[36:37], s[0:1], 128'


def gen_entry(e, cfg, st):
    e.I('s_load_dwordx16 s[4:19], s[0:1], 0')
    e.I('s_cmp_ge_u32 s2, 256\ns_cbranch_scc1 L_end')
    e.I(KARG2)
    st(e, 'start')
    if 'v' in cfg.prewarm:
        n = cfg.pwn
        e.I('s_getpc_b64 s[%d:%d]' % (SCODE, SCODE + 1))
        e.label('L_pc')
        e.I('s_mov_b32 s%d, L_end-L_pc\ns_mov_b32 s%d, 0x20000' % (SCODE + 2, SCODE + 3))
        e.I('s_lshl_b32 s%d, s2, %d\ns_and_b32 s%d, s%d, 0x%x' % (T0, 7 + n.bit_length() - 1, T0, T0, 0x7fff & ~(1024 * n - 1)))
        e.I('v_lshlrev_b32 v1, %d, v0' % (1 + n.bit_length() - 1))
        m = sum(1 << (k * 64 // n) for k in range(n))
        e.I('s_mov_b32 exec_lo, 0x%x\ns_mov_b32 exec_hi, 0x%x' % (m & 0xffffffff, m >> 32))
        e.I('buffer_load_dword v63, v1, %s, s%d offen' % (srd(SCODE), T0), tag='pw')
        e.I('s_mov_b64 exec, -1')
    e.I('v_lshrrev_b32 v1, 6, v0\nv_and_b32 v0, 63, v0')
    e.I('v_readfirstlane_b32 s%d, v1' % sWAVE)
    if cfg.slim and cfg.rot1 == (2, 4, 2, 1):
        e.I('s_and_b32 s%d, s2, 7\ns_bfe_u32 s%d, s2, 0x30003\ns_lshr_b32 s%d, s2, 6' % (T0, T2, T3))
        e.I('s_lshl1_add_u32 s%d, s%d, s%d\ns_lshl2_add_u32 s%d, s%d, s%d\ns_and_b32 s%d, s%d, 7' % (sK0, T2, T0, sK0, T3, sK0, sK0, sK0))
        e.I('s_and_b32 s%d, s2, 1\ns_lshl3_add_u32 s%d, s%d, s%d' % (sRB, sRB, sRB, T2))
        e.I('s_lshr_b32 s%d, s%d, 1\ns_lshl2_add_u32 s%d, s%d, s%d' % (T4, T0, sCB, T4, T3))
        assert cfg.map2 == 84
    else:
        e.I('s_and_b32 s%d, s2, 7\ns_lshr_b32 s%d, s2, 3' % (T0, T1))
        e.I('s_and_b32 s%d, s%d, 7\ns_lshr_b32 s%d, s%d, 3' % (T2, T1, T3, T1))
        e.I('s_and_b32 s%d, s%d, 1\ns_lshl_b32 s%d, s%d, 3\ns_add_u32 s%d, s%d, s%d' % (sRB, T0, sRB, sRB, sRB, sRB, T2))
        e.I('s_lshr_b32 s%d, s%d, 1' % (T4, T0))
        e.I('s_lshl_b32 s%d, s%d, 2\ns_add_u32 s%d, s%d, s%d' % (sCB, T4, sCB, sCB, T3))
        e.I('s_mul_i32 s%d, s%d, %d' % (sK0, T2, cfg.rot1[0]))
        for src, mul in zip((T3, T4, None), cfg.rot1[1:]):
            if mul:
                if src is None:
                    e.I('s_and_b32 s%d, s%d, 1' % (T5, T0))
                e.I('s_mul_i32 s%d, s%d, %d\ns_add_u32 s%d, s%d, s%d' % (T5, T5 if src is None else src, mul, sK0, sK0, T5))
        e.I('s_and_b32 s%d, s%d, 7' % (sK0, sK0))
    if not cfg.slim:
        tile_ids(e, cfg, False)
    e.I('s_and_b32 s%d, s%d, 3' % (sW, sWAVE))
    e.I('s_cmp_lt_u32 s%d, 4\ns_cbranch_scc1 L_A' % sWAVE)


def gen_B(e, cfg, st):
    NPRE = cfg.prog.count('D')
    WA = 2
    EP = 42
    XV, BV, WV, XA = 32, 36, 38, 44
    if cfg.prioS:
        e.I('s_setprio %d' % cfg.prioS)
    e.I('v_lshrrev_b32 v8, 3, v0')
    e.I('v_and_b32 v9, 7, v0')
    e.I('v_lshrrev_b32 v10, 4, v0')
    e.I('v_xor_b32 v10, v9, v10\nv_lshlrev_b32 v10, 4, v10')
    e.I('v_lshrrev_b32 v11, 5, v0\nv_and_b32 v12, 3, v8\nv_lshl_add_u32 v11, v11, 4, v12')
    e.I('s_lshl2_add_u32 s%d, s%d, s%d\ns_lshl_b32 s%d, s%d, 15' % (T0, sRB, sW, T0, T0))
    e.I('v_lshl_add_u32 v11, v11, 10, s%d' % T0)
    e.I('v_add_u32 v%d, v11, v10' % XV)
    e.I('v_xor_b32 v13, 64, v%d' % XV)
    e.I('v_add_u32 v%d, 3072, v13\nv_add_u32 v%d, 6144, v%d\nv_add_u32 v%d, 9216, v13' % (XV + 1, XV + 2, XV, XV + 3))
    def b_setup():
        e.I('s_and_b32 s%d, s%d, 1\ns_lshl1_add_u32 s%d, s%d, s%d\ns_lshl_b32 s%d, s%d, 14' % (T1, sW, T0, sCB, T1, T0, T0))
        e.I('v_lshrrev_b32 v11, 5, v0\nv_lshl_add_u32 v11, v11, 3, v12')
        e.I('v_lshl_add_u32 v11, v11, 10, s%d' % T0)
        e.I('v_add_u32 v%d, v11, v10' % BV)
        e.I('v_xor_b32 v13, 64, v%d\nv_add_u32 v%d, 3072, v13' % (BV, BV + 1))
        e.I('s_lshl_b32 s%d, s%d, 11\ns_add_u32 s%d, s%d, 16384' % (sMBm, sW, sMBm, sMBm))
        e.I('s_mov_b32 s%d, 0x%x\ns_mov_b32 s%d, 0x20000' % (SBM + 2, 512 * 1024, SBM + 3))
    if not cfg.blate:
        b_setup()
    e.I('s_lshl_b32 s%d, s%d, 12' % (sMX, sW))
    e.I('s_lshl_b32 s%d, s%d, 7' % (T6, sK0))
    e.I('s_mov_b32 s%d, 0x%x\ns_mov_b32 s%d, 0x20000' % (SX + 2, 2048 * 1024, SX + 3))
    set_m0(e, sMX, s_slot(0) * SLOT)
    e.I('s_mov_b32 s%d, s%d' % (sTS, T6))
    e.wait_smem()
    st(e, 'karg')
    jitter(e, cfg, 1)
    e.I('s_mov_b64 s[%d:%d], s[%d:%d]' % (SX, SX + 1, P_X, P_X + 1))

    def dma_S(i):
        slot = s_slot(i) * SLOT
        its = []
        for q in range(4):
            def f(q=q):
                if q == 0 and i:
                    set_m0(e, sMX, slot)
                    e.I('s_add_u32 s%d, s%d, %d\ns_and_b32 s%d, s%d, 1023' % (sTS, T6, i * 128, sTS, sTS))
                e.I('buffer_load_dwordx4 v%d, %s, s%d offen offset:%d %slds' % ((XV + q, srd(SX), sTS, 1024 * q) + (ntf('x', i),)), tag=('st', i))
            its.append(f)
        for q in range(2):
            def f(q=q):
                if q == 0 and i == 0 and cfg.blate:
                    b_setup()
                if q == 0:
                    set_m0(e, sMBm, slot)
                if q == 0 and i == 0:
                    e.I('s_cmp_ge_u32 s%d, 2\ns_cselect_b64 s[%d:%d], s[%d:%d], s[%d:%d]' % (sW, SBM, SBM + 1, P_BIM, P_BIM + 1, P_BRE, P_BRE + 1))
                e.I('buffer_load_dwordx4 v%d, %s, s%d offen offset:%d %slds' % ((BV + q, srd(SBM), sTS, 1024 * q) + (ntf('b', i),)), tag=('st', i))
            its.append(f)
        return its

    run(dma_S(0))
    st(e, 'dma0')
    s1 = dma_S(1)
    run(s1[:cfg.s1a])
    if 's' in cfg.prewarm:
        code_touch(e, 'B')
    frag16_addr(e, XA, 11, 12)
    for s in range(2):
        e.I('v_add_u32 v%d, s%d, v%d' % (XA + s, sMX, XA + s))
        e.I('v_add_u32 v%d, %d, v%d' % (XA + 2 + s, WIN, XA + s))
        if cfg.lag:
            e.I('v_add_u32 v%d, %d, v%d' % (XA + 4 + s, 2 * WIN, XA + s))
    e.I('v_lshlrev_b32 v11, 2, v0\nv_add_u32 v11, %d, v11\nv_mov_b32 v12, 0' % L_FL)
    e.I('ds_write_b32 v11, v12', tag='init')

    def setup_a():
        if cfg.slim:
            tile_ids(e, cfg, True)
        mk_srd(e, SWS, P_WS, WS_SIZE)
        mk_srd(e, SWD, P_WD, 1376 * 1024)
        e.I('s_cmp_ge_u32 s%d, 2' % sW)
        mk_srd_sel(e, SW, P_WU, P_WG, 512 * 2752)
        w_tr_addr(e, WA, 13, 14)
        e.I('v_lshlrev_b32 v1, 4, v0')

    def setup_b():
        w_lane_offsets(e, cfg, WV, 13, 14)
    if not cfg.defer:
        setup_a()
        setup_b()

    sDC, sDB, sDE, sAC, sAB, sAE = 86, 87, 88, 89, 90, 91
    sD0, sF0, sD2, sF2 = T2, T3, T4, T5
    st(e, '_pro')
    sP0 = 92
    if isinstance(cfg.w0pos, tuple):
        tab = sum(p << (4 * r) for r, p in enumerate(cfg.w0pos))
        e.I('s_and_b32 s%d, s%d, 7\ns_lshl_b32 s%d, s%d, 2\ns_lshr_b32 s%d, 0x%x, s%d\ns_and_b32 s%d, s%d, 15' %
            (T0, sRB, T0, T0, sP0, tab, T0, sP0, sP0))

    def w0_hook(p):
        if cfg.w0pos == p:
            run(dma_W(e, WV, SW, 0))
        elif isinstance(cfg.w0pos, tuple) and p in cfg.w0pos:
            e.I('s_cmp_eq_u32 s%d, %d\ns_cbranch_scc1 L_w0_%d' % (sP0, p, p))
            e.label('L_w0_%d_out' % p)
            with e.cold_block():
                e.label('L_w0_%d' % p)
                run(dma_W(e, WV, SW, 0))
                e.I('s_branch L_w0_%d_out' % p)
            e.m0 = None
    run(s1[cfg.s1a:])
    st(e, '_dma1')
    w0_hook(1)
    e.wait(vm=('st', 0))
    st(e, '_sa0')
    e.I('s_barrier')
    st(e, 'b0')
    for i in range(8):
        if i == 1:
            e.I('s_mov_b32 s%d, 0x%x' % (T0, EPOCH_OFF))
            e.I('buffer_load_dword v%d, off, %s, s%d sc1' % (EP, srd(SWS), T0), tag='ep')
        if i < 6:
            run(dma_S(i + 2))
            w0_hook(i + 2)
        elif cfg.w0pos is None:
            run(dma_W(e, WV, SW, i - 6))
        elif i == 6 or 'W2' not in cfg.prog:
            run(dma_W(e, WV, SW, i - 5))
        for s in range(4):
            slot = s_slot(i)
            e.I('ds_read_b128 %s, v%d offset:%d' % (vr(128 + 4 * (4 * i + s), 4), XA + 2 * (slot >> 1) + (s >> 1), (slot & 1) * SLOT + (s & 1) * 2048), tag='x')
        if cfg.defer and i == 0:
            setup_a()
        if cfg.defer and i == 1:
            setup_b()
        if i == 4:
            e.wait(vm='ep')
            e.I('v_readfirstlane_b32 s%d, v%d' % (sNONCE, EP))
            e.I('s_add_u32 s%d, s%d, 0x%x\ns_or_b32 s%d, s%d, 1' % (sNONCE, sNONCE, PHI, sNONCE, sNONCE))
            e.I('s_mov_b32 s%d, 0x%x\ns_mov_b32 s%d, 0x%x' % (sNL2E, NLOG2E, sNL2E + 1, NLOG2E))
        if i == 2:
            step_start(e, cfg, sAC, sAB, sAE, 11)
        if i == 3:
            for k in range(3):
                e.I('s_lshl_b32 s%d, s%d, 4' % (sDC + k, sAC + k))
            for n in range(1, NPRE):
                wd_next(e, n, sDC, sDB, sDE)
        if i == 5:
            act_offsets(e, 0, sD0, sF0)
        if i == 6:
            e.I('s_add_u32 s%d, s%d, 4096\ns_add_u32 s%d, s%d, %d' % (sD2, sD0, sF2, sF0, 4 * FS))
            light_scc(e)
            e.I('s_cselect_b32 s%d, 0x%x, s%d\ns_cselect_b32 s%d, 0x%x, s%d' % (sD2, OOB, sD2, sF2, OOB, sF2))
            e.I('v_mov_b32 v7, %d\nv_mov_b32 v6, 1' % L_FL)
        if i < 7:
            e.wait(vm=('st', i + 1), lg='all')
            st(e, '_sa%d' % (i + 1))
            e.I('s_barrier')
            st(e, '_sd%d' % (i + 1))
            if i == 0:
                st(e, 'b1')
    NT = cfg.NT
    ops = []
    for j in range(8 - NT):
        for s in range(2):
            for g in range(3):
                for mf in range(4):
                    ops.append((j, s, g, mf))
    tail0 = len(ops)
    for g in range(3):
        for j in range(8 - NT, 8):
            for s in range(2):
                for mf in range(4):
                    ops.append((j, s, g, mf))
    NB, LA = 6, cfg.LA
    first = {j: min(q for q in range(len(ops)) if ops[q][0] == j) for j in range(8)}
    last = {j: max(q for q in range(len(ops)) if ops[q][0] == j) for j in range(8)}

    def rd(q, half):
        if q >= len(ops):
            return
        j, s, g, mf = ops[q]
        if q == first[j] and j <= cfg.JL and half == 0:
            e.wait(vm=('st', 8 + j), lg='all' if j in cfg.drain else 'x')
            st(e, '_a%d' % j)
            e.I('s_barrier')
            st(e, '_d%d' % j)
            if j in (0, 4, cfg.JL):
                st(e, 'b%d' % (8 + j))
            if j == 0 and cfg.prioB != cfg.prioS:
                e.I('s_setprio %d' % cfg.prioB)
        w_frag_read(e, 8 + 4 * (q % NB), WA, j, s, g, mf >> 1, mf & 1, half, ('wf', q))
        if q == last[7] and half == 1:
            cnt_add(e, 7, 6, C_CONS + 28)

    def mm(q, a):
        j, s, g, mf = ops[q]
        if a == 0 and q % 2 == 0:
            e.wait(lg=('wf', q + 1))
        t = a ^ (q & 1) if cfg.snake else a
        mfma16(e, 32 + 32 * g + 16 * (mf >> 1) + 8 * t + 4 * (mf & 1), 8 + 4 * (q % NB), 128 + 16 * j + 8 * s + 4 * t, j == 0 and s == 0)
        rd(q + LA, a)

    def act_store(k, ms=(0, 1)):
        for m in ms:
            e.I('buffer_store_dwordx4 %s, v1, %s, s%d offen offset:%d sc1' %
                (vr(136 + 8 * k + 4 * m, 4), srd(SWS), sD2 if k == 2 else sD0, 1024 * m + (2048 if k == 1 else 0)), tag=('as', k))

    def with_stores(its, k):
        if not cfg.asplit:
            return its + [lambda: act_store(k)]
        h = len(its) // 2
        return its[:h] + [lambda: act_store(k, (0,))] + its[h:] + [lambda: act_store(k, (1,))]

    def act_flag(k):
        e.wait(vm=('as', k))
        flag_store(e, EP, sF2 if k == 2 else sF0, 2 * FS if k == 1 else 0)

    for q in range(LA):
        rd(q, 0)
        rd(q, 1)
    per = 8 * NT
    for q in range(tail0 + per):
        mm(q, 0)
        mm(q, 1)
    if cfg.prioT:
        e.I('s_setprio %d' % cfg.prioT)
    if NT:
        for g in (1, 2):
            main = [lambda q=q, a=a: mm(q, a) for q in range(tail0 + g * per, tail0 + (g + 1) * per) for a in range(2)]
            fill = with_stores(act_items_scalar(e, cfg, 32 * g, 32 * g + 16, 128, 136 + 8 * (g - 1)), g - 1)
            run(main[:3] + weave(main[3:], fill))
        st(e, 'f1end')
        run(with_stores(act_items(e, cfg, 96, 112, 128, 152), 2))
    else:
        st(e, 'f1end')
        for g in range(3):
            run(with_stores(act_items(e, cfg, 32 + 32 * g, 48 + 32 * g, 128, 136 + 8 * g), g))
    if cfg.prioD[0] != (cfg.prioT or cfg.prioB):
        e.I('s_setprio %d' % cfg.prioD[0])
    st(e, 'actst')
    jitter(e, cfg, 2)
    DA, AV, PW, WDV, EP = 2, 14, 16, 18, 23
    e.I('v_mov_b32 v%d, s%d' % (EP, sNONCE))
    e.I(wd_lane_offsets(e, WDV, 20, 21))
    e.I('v_mov_b32 v22, %d' % L_FL)
    cnt_spin(e, 'L_spinB', 22, 24, C_CONS + 28)
    st(e, 'ldsfree')

    def dma_D(n):
        sl, pos = RING[n]
        if n in PREV:
            e.wait(lg=('wr', PREV[n]))
        set_m0(e, sMW, sl * SLOT + pos * 2048)
        if n:
            wd_next(e, n, sDC, sDB, sDE)
        for q in range(2):
            e.I('buffer_load_dwordx4 v%d, %s, s%d offen offset:%d %slds' % ((WDV + q, srd(SWD), sDC, 1024 * q) + (ntf('d', n),)), tag=('wd', n))

    def wd_reg(n2):
        return 128 + 16 * n2 if n2 < 5 else 32 + 16 * (n2 - 5) if n2 < 7 else 128 + 16 * (n2 - 7)

    def wd_read(n, dqs=range(4)):
        sl, pos = RING[n]
        e.wait(vm=('wd', n))
        for dq in dqs:
            e.I('ds_read_b64_tr_b16 %s, v%d offset:%d' % (vr(wd_reg(n >> 1) + 4 * dq + 2 * (n & 1), 2), DA + 4 * (sl >> 1) + dq,
                                                         (sl & 1) * SLOT + pos * 2048), tag=('wr', n))

    def setup2():
        e.I('v_lshrrev_b32 v20, 2, v0\nv_lshlrev_b32 v20, 7, v20\nv_bfe_u32 v21, v0, 3, 2\nv_lshl_add_u32 v20, v21, 5, v20')
        e.I('v_and_b32 v21, 3, v0\nv_lshl_add_u32 v20, v21, 3, v20\nv_add_u32 v%d, s%d, v20' % (DA, sMW))
        for dq in range(1, 4):
            e.I('v_xor_b32 v%d, %d, v%d' % (DA + dq, 32 * dq, DA))
        for k in (1, 2):
            for dq in range(4):
                e.I('v_add_u32 v%d, %d, v%d' % (DA + 4 * k + dq, k * WIN, DA + dq))
        e.I('s_mul_i32 s%d, s%d, %d' % (T0, sRT, 2 * 88064))
        e.I('v_add_u32 v%d, s%d, v1\nv_add_u32 v%d, 88064, v%d' % (AV, T0, AV + 1, AV))
        e.I('s_mul_i32 s%d, s%d, 44\ns_mul_i32 s%d, s%d, 11\ns_add_u32 s%d, s%d, s%d\ns_mul_i32 s%d, s%d, %d\ns_add_u32 s%d, s%d, 0x%x' %
            (T0, sRT, T1, sW, T0, T0, T1, T0, T0, 2 * FS, T0, T0, AF_OFF))
        e.I('v_mul_u32_u24 v20, %d, v0' % FS)
        e.I('s_mov_b32 s%d, 0x3fffff\ns_cmp_eq_u32 s%d, 3\ns_cselect_b32 s%d, 0xfffff, s%d\ns_mov_b32 s%d, 0' % (sMA, sW, sMA, sMA, sMA + 1))

    for n in range(NPRE, 11):
        for k in range(3):
            if cfg.flagpos[k] + NPRE == n:
                if k == 2:
                    setup2()
                act_flag(k)
                if k == 2:
                    st(e, 'flagged')
        if n < 10:
            dma_D(n)
    st(e, '_d9')
    cnt_spin(e, 'L_spinB2', 22, 24, C_DONEA)
    if cfg.prioD[1] != cfg.prioD[0]:
        e.I('s_setprio %d' % cfg.prioD[1])
    st(e, '_da')
    jitter(e, cfg, 3)
    pulled = [0]

    def d_step(n):
        dma_D(n)
        while pulled[0] < min(14, 3 * (n - 9), n - 3):
            wd_read(pulled[0])
            pulled[0] += 1
        if n == 14:
            e.wait(lg=('wr', 9))
            set_m0(e, sMW, L_P2)
            e.I('s_mov_b64 exec, 1')
            e.I('buffer_load_dword off, %s, s%d lds' % (srd(SWD), SWD + 2), tag='init')
            e.I('s_mov_b64 exec, -1')
        if n == -cfg.posXB:
            bar_X()

    def bar_X():
        assert pulled[0] >= 12
        e.wait(vm='init', lg=('wr', 11))
        st(e, '_aX')
        e.I('s_barrier')

    for n in range(10, cfg.alook):
        d_step(n)
    st(e, 'wdiss')
    nd = cfg.alook + cfg.abet
    poll(e, 'L_pollA', 21, 20, T0, 's[%d:%d]' % (sMA, sMA + 1), lambda: [d_step(n) for n in range(cfg.alook, nd)])
    st(e, 'actrdy')
    jitter(e, cfg, 4)
    if cfg.prioF2n < 0:
        e.I('s_setprio %d' % cfg.prioF2)
    elif cfg.prioD[1]:
        e.I('s_setprio 0')

    TL = cfg.TL
    sSV = 92
    NM = 11 - TL

    order = [(n2, t4) for n2 in range(NM) for t4 in range(4)] + [(n2, t4) for t4 in range(4) for n2 in range(NM, 11)]

    def a_reg(n2, t4):
        return 208 + 4 * (order.index((n2, t4)) % 12)

    pend = []
    rq = []

    def flush(n=99):
        for t in pend[:n]:
            e.I(t)
        del pend[:n]

    def a_load(n2, t4):
        if t4 == 0:
            flush()
        so = sAC if n2 < NM else sSV + n2 - NM
        e.I('buffer_load_dwordx4 %s, v%d, %s, s%d offen offset:%d sc1' % (vr(a_reg(n2, t4), 4), AV + (t4 >> 1), srd(SWS), so, 1024 * (t4 & 1)),
            tag=('a', n2, t4))
        if n2 < 10 and t4 == (3 if n2 < NM else 0):
            dst = sAC if n2 + 1 < NM else sSV + n2 + 1 - NM
            pend.append('s_add_u32 s%d, s%d, 2048' % (dst, so))
            pend.append('s_cmp_eq_u32 s%d, s%d\ns_cselect_b32 s%d, s%d, s%d' % (dst, sAE, dst, sAB, dst))
            if n2 == 9:
                pend.append('s_cmp_eq_u32 s%d, 3\ns_cselect_b32 s%d, 0x%x, s%d' % (sW, dst, OOB, dst))

    lq = []
    for k, t in enumerate(order):
        lq.append(('a', k))
        if k & 1 and nd < 22:
            lq.append(('d', nd))
            nd += 1
    dn = [cfg.alook + cfg.abet - 1]
    nis = [0]

    def issue(k, busy):
        while lq:
            t = lq[0]
            tag = ('a',) + order[k]
            nv = min(cfg.NV, cfg.NV0[0] + max(0, k - cfg.NV0[1]))
            if nis[0] > k and (len(e.vm) - 1 - e.vm.index(tag) >= nv - 1 if tag in e.vm else len(e.vm) >= nv):
                return
            if t[0] == 'a':
                if t[1] >= busy + 12:
                    return
                a_load(*order[t[1]])
                nis[0] = t[1] + 1
            else:
                d_step(t[1])
                dn[0] = t[1]
            lq.pop(0)

    wq = []
    zq = [list(g) for g in cfg.zg]
    since = [0]

    def w_pop():
        t = wq.pop(0)
        if t is not None:
            t4, i = t
            assert not rq
            hi = 32768 if t4 == 3 else 0
            set_m0(e, sMW, hi)
            e.I('ds_write_addtid_b32 v%d offset:%d' % (acc2(t4, 0) + i, t4 * SLOT - hi + 256 * i), tag=('pw', t4))
            if i == 15 and t4 == zq[0][-1]:
                since[0] = cfg.zlag + 1
        if since[0]:
            since[0] -= 1
            if since[0] == 0:
                z_bar()

    def z_bar():
        e.wait(lg=('pw', zq.pop(0)[-1]))
        e.I('s_barrier')

    def mm2(k):
        n2, t4 = order[k]
        if k == 0:
            issue(k, k)
        while rq and rq[0][0] >> 1 <= (order[k + 2][0] if k + 2 < 4 * NM + TL else 99):
            t = rq.pop(0)
            wd_read(t[0], [t[1]])
        e.wait(vm=('a', n2, t4), lg=('wr', 2 * n2 + 1))
        for dq in range(4):
            d = 3 - dq if cfg.snake and n2 < NM and t4 & 1 else dq
            mfma16(e, acc2(t4, d), a_reg(n2, t4), wd_reg(n2) + 4 * d, n2 == 0)
            if dq == 0 and lq:
                issue(k + 1, k)
            elif pend and dq < 3:
                flush(1)
            elif rq and dq < 3:
                t = rq.pop(0)
                wd_read(t[0], [t[1]])
            elif wq:
                w_pop()
        if n2 == 10:
            if t4 == 0:
                wq.extend([None, None])
            wq.extend((t4, i) for i in range(16))

    for n2 in range(NM):
        st(e, '_n%d' % n2)
        if n2 == cfg.prioF2n:
            e.I('s_setprio %d' % cfg.prioF2)
        while pulled[0] <= min(2 * n2 + 5, 13):
            assert dn[0] >= pulled[0]
            wd_read(pulled[0])
            pulled[0] += 1
        if n2 == cfg.posXB:
            bar_X()
        for t4 in range(4):
            mm2(4 * n2 + t4)
        if cfg.pull0 <= n2 < cfg.pull0 + 4:
            m2 = n2 - cfg.pull0 + 7
            assert dn[0] >= 2 * m2 + 1
            rq.extend((2 * m2 + hf, dq) for hf in range(2) for dq in range(4))
    assert cfg.pull0 + 4 <= NM
    for k in range(4 * NM, 44):
        mm2(k)
    if cfg.prioF2:
        e.I('s_setprio 0')
    st(e, 'f2end')
    jitter(e, cfg, 5)
    while wq:
        w_pop()
    while zq:
        z_bar()
    st(e, 'end')
    st.flush(e)
    e.I('s_endpgm')


def gen_A(e, cfg, st):
    LR, LI, L16, L128, L256, L16S, KAP, WV = 48, 49, 50, 52, 54, 56, 58, 60
    PP = 32
    SIDX = 3
    RE, IM = 64, 80
    XA, BA = 192, 204
    CV, CA, CA4, WDV = 96, 100, 104, 108
    EV0, EV1, EOOB, ERD, ECNT, EEXP, ONE, FLA, XW, XR, P16 = range(110, 121)
    SEL = 216
    RING0 = 144
    sHD, sHF, sES, sEL, sROT, sDTX = 86, 87, 90, 91, 92, 80
    sDC, sDB, sDE = 93, 94, 95
    if cfg.slim:
        tile_ids(e, cfg, False)
    e.I('v_lshlrev_b32 v1, 4, v0')
    e.I('v_and_b32 v21, 0x13, v0\nv_bfe_u32 v22, v0, 2, 1\nv_lshl_add_u32 v21, v22, 3, v21\nv_bfe_u32 v22, v0, 3, 1\nv_lshl_add_u32 v21, v22, 2, v21')
    e.I('s_lshl_b32 s%d, s%d, 6' % (T0, sCB))
    e.I('v_lshl_add_u32 v21, v21, 1, s%d' % T0)
    e.I('s_lshl_b32 s%d, s%d, 2\ns_add_u32 s%d, s%d, s%d\ns_lshl_b32 s%d, s%d, 4\ns_add_u32 s%d, s%d, s%d' %
        (T3, sRB, T3, T3, sW, T3, T3, T3, T3, sCB))
    e.I('s_lshl_b32 s%d, s%d, 11' % (T2, T3))
    frag_addr(e, BA, 4, 5)
    def karg_block():
        e.wait_smem()
        st(e, '_karg')
        mk_srd(e, SX, P_X, 2048 * 1024)
        mk_srd(e, SWS, P_WS, WS_SIZE)
        if cfg.skew:
            e.I('s_lshl_b32 s%d, s2, 7\ns_add_u32 s%d, s%d, 0x%x\nv_mov_b32 v20, s38' % (T4, T4, T4, STAMP_OFF))
            flag_store(e, 20, T4)
        e.I('s_mov_b32 s%d, 0x%x\ns_lshl_b32 s%d, s%d, 6' % (T4, EPOCH_OFF, T0, sCB))
        e.I('s_load_dword s3, s[%d:%d], s%d' % (P_WS, P_WS + 1, T4))
        for p in (P_LRE, P_LIM, P_LDT):
            e.I('s_load_dword s3, s[%d:%d], s%d' % (p, p + 1, T0))
        e.I('s_lshr_b32 s%d, s2, 3\ns_lshl_b32 s%d, s%d, 2\ns_add_u32 s%d, s%d, s%d\ns_and_b32 s%d, s%d, 15\ns_lshl_b32 s%d, s%d, 6' %
            (T0, T0, T0, T0, T0, sW, T0, T0, T0, T0))
        for p in (P_GW, P_DSK):
            e.I('s_load_dword s3, s[%d:%d], s%d' % (p, p + 1, T0))
        if 's' in cfg.prewarm:
            code_touch(e, 'A')

    if not cfg.apre:
        karg_block()

    def small0():
        e.I('buffer_load_dword v19, off, %s, s%d sc1' % (srd(SWS), T4), tag='ep')
        e.I('global_load_ushort v16, v21, s[%d:%d]' % (P_LRE, P_LRE + 1), tag='par')
        e.I('global_load_ushort v17, v21, s[%d:%d]' % (P_LIM, P_LIM + 1), tag='par')
        e.I('global_load_ushort v18, v21, s[%d:%d]' % (P_LDT, P_LDT + 1), tag='par')

    small1 = [lambda: e.I('global_load_dwordx4 v[44:47], v1, s[%d:%d]' % (P_GW, P_GW + 1), tag='g'),
              lambda: e.I('buffer_load_dwordx4 v[36:39], v1, %s, s%d offen' % (srd(SX), T2), tag='g'),
              lambda: e.I('buffer_load_dwordx4 v[40:43], v1, %s, s%d offen offset:1024' % (srd(SX), T2), tag='g')]
    e.I('s_lshl_b32 s%d, s%d, 3\ns_add_u32 s%d, s%d, 0x%x' % (T6, T3, T6, T6, G_OFF))
    GA, GW0, GO = 121, 124, 126
    if cfg.glds:
        small1 = [lambda: e.I('global_load_dwordx4 v[44:47], v%d, s[%d:%d]' % (GW0, P_GW, P_GW + 1), tag='g'),
                  lambda: e.I('global_load_dwordx4 v[192:195], v%d, s[%d:%d]' % (GW0 + 1, P_GW, P_GW + 1), tag='g')]
        e.I('s_bfe_u32 s%d, s%d, 0x20001\ns_lshl_b32 s%d, s%d, 2\ns_lshr_b32 s%d, s%d, 3\ns_lshl_b32 s%d, s%d, 1\ns_add_u32 s%d, s%d, s%d' %
            (T0, sCB, T0, T0, T1, sCB, T1, T1, T0, T0, T1))
        e.I('s_and_b32 s%d, s%d, 1\ns_add_u32 s%d, s%d, s%d' % (T1, sCB, T0, T0, T1))
        e.I('s_and_b32 s%d, s%d, 7\ns_lshl_b32 s%d, s%d, 8\ns_lshl_b32 s%d, s%d, 12\ns_add_u32 s%d, s%d, s%d' % (T1, T0, T0, T0, T2, sW, T0, T0, T2))
        e.I('v_and_b32 v4, 15, v0\nv_xor_b32 v4, s%d, v4\nv_lshl_add_u32 v%d, v4, 4, s%d' % (T1, GA, T0))
        e.I('v_add_u32 v%d, %d, v%d\nv_add_u32 v%d, %d, v%d' % (GA + 1, WIN, GA, GA + 2, 2 * WIN, GA))
        e.I('v_lshrrev_b32 v4, 4, v0\nv_add_u32 v4, s%d, v4\nv_and_b32 v4, 7, v4\nv_and_b32 v5, 7, v0\nv_lshlrev_b32 v5, 4, v5' % sK0)
        e.I('v_lshl_add_u32 v%d, v4, 7, v5\nv_xor_b32 v%d, 0x200, v%d' % (GW0, GW0 + 1, GW0))
        e.I('v_bfe_u32 v4, v0, 3, 1\nv_lshlrev_b32 v%d, 2, v4' % GO)

    e.I('s_lshl_b32 s%d, s%d, 12' % (T0, sW))
    for s in range(4):
        e.I('v_add_u32 v%d, s%d, v%d' % (XA + s, T0, BA + s))
        e.I('v_add_u32 v%d, %d, v%d' % (XA + 4 + s, WIN, XA + s))
        e.I('v_add_u32 v%d, %d, v%d' % (BA + 4 + s, WIN, BA + s))
        if cfg.lag:
            e.I('v_add_u32 v%d, %d, v%d\nv_add_u32 v%d, %d, v%d' % (XA + 8 + s, 2 * WIN, XA + s, BA + 8 + s, 2 * WIN, BA + s))
    w_lane_offsets(e, cfg, WV, 24, 25)
    e.I('v_lshrrev_b32 v24, 5, v0\ns_lshl_b32 s%d, s%d, 1' % (T0, sW))
    e.I('v_add_u32 v%d, s%d, v24' % (SIDX, T0))
    if cfg.apre:
        karg_block()
    rot2_calc(e, cfg, sROT, 0)
    if cfg.rotS:
        e.I('s_and_b32 s%d, s%d, %d\ns_lshl_b32 s%d, s%d, %d\ns_xor_b32 s%d, s%d, s%d' % (T0, sCT, cfg.rotS[0], T0, T0, cfg.rotS[1], sROT, sROT, T0))
    e.I('s_and_b32 s%d, s%d, 1\ns_lshr_b32 s%d, s%d, 1' % (sDTX, sROT, sROT, sROT))
    e.I('s_bitcmp1_b32 s%d, 0' % sROT)
    mk_srd_sel(e, SC1, P_CIM, P_CRE, 512 * 1024)
    mk_srd_sel(e, SC2, P_CRE, P_CIM, 512 * 1024)
    mk_srd(e, SWD, P_WD, 1376 * 1024)
    step_start(e, cfg, sDC, sDB, sDE, 15)
    e.I('s_cmp_ge_u32 s%d, 2' % sW)
    mk_srd_sel(e, SWA, P_WU, P_WG, 512 * 2752)
    e.I('s_lshl_b32 s%d, s%d, 2\ns_add_u32 s%d, s%d, s%d' % (T0, sRB, T0, T0, sW))
    HW_ = 16384 + cfg.hpad[0]
    HT_ = 4 * HW_ + cfg.hpad[1]
    assert H_OFF + 64 * HT_ <= E_OFF
    e.I('s_mul_i32 s%d, s%d, %d\ns_lshr_b32 s%d, s%d, 1\ns_lshl_b32 s%d, s%d, 13\ns_add_u32 s%d, s%d, s%d' %
        (sHD, T0, HT_, T1, sCB, T1, T1, sHD, sHD, T1))
    e.I('s_lshr_b32 s%d, s%d, 2\ns_mul_i32 s%d, s%d, %d\ns_add_u32 s%d, s%d, s%d' % (T1, sCB, T1, T1, cfg.hpad[0], sHD, sHD, T1))
    e.I('s_and_b32 s%d, s%d, 1\ns_lshl_b32 s%d, s%d, 11\ns_add_u32 s%d, s%d, s%d\ns_add_u32 s%d, s%d, 0x%x' %
        (T1, sCB, T1, T1, sHD, sHD, T1, sHD, sHD, H_OFF))
    e.I('s_lshr_b32 s%d, s%d, 1\ns_lshl_b32 s%d, s%d, 4\ns_add_u32 s%d, s%d, s%d\ns_lshl_b32 s%d, s%d, 1' %
        (T1, T0, T1, T1, T1, T1, sCB, T1, T1))
    e.I('s_and_b32 s%d, s%d, 1\ns_add_u32 s%d, s%d, s%d\ns_mul_i32 s%d, s%d, %d\ns_add_u32 s%d, s%d, 0x%x' %
        (T0, T0, T1, T1, T0, T1, T1, FS, sHF, T1, HF_OFF))
    e.I('s_lshl_b32 s%d, s%d, 13\ns_add_u32 s%d, s%d, 0x%x' % (sEL, sCB, sEL, sEL, E_OFF))
    e.I('s_lshl_b32 s%d, s%d, 9\ns_add_u32 s%d, s%d, s%d\ns_cmp_eq_u32 s%d, 0\ns_cselect_b32 s%d, s%d, 0x%x' %
        (sES, sRB, sES, sES, sEL, sW, sES, sES, OOB))
    e.I('s_sub_u32 s%d, s%d, 1024' % (sEL, sEL))

    tch = Touch(e, cfg, 'A')
    tch.setup()
    tch.at(-1)

    e.I('s_lshl_b32 s%d, s%d, 9\ns_add_u32 s%d, s%d, %d' % (T0, sW, T0, T0, L_E))
    e.I('v_lshl_add_u32 v%d, v0, 3, s%d' % (XW, T0))
    e.I('v_and_b32 v6, 31, v0\nv_lshlrev_b32 v%d, 4, v6\nv_lshlrev_b32 v6, 3, v6\nv_add_u32 v%d, %d, v6' % (P16, XR, L_E))
    e.I('v_and_b32 v4, 3, v0\nv_bfe_u32 v5, v0, 3, 2\nv_lshl_add_u32 v4, v5, 2, v4')
    e.I('v_bfe_u32 v5, v0, 2, 1\nv_lshrrev_b32 v6, 5, v0\nv_xor_b32 v5, v5, v6\nv_lshl_add_u32 v4, v5, 4, v4')
    e.I('v_and_b32 v5, 1, v0\nv_lshlrev_b32 v5, 4, v5\nv_mov_b32 v6, 0x3f80\nv_lshlrev_b32 v5, v5, v6\nv_lshrrev_b32 v4, 1, v4')
    for n in range(8):
        e.I('v_cmp_eq_u32 vcc, %d, v4\nv_cndmask_b32 v%d, 0, v5, vcc' % (n, SEL + n))
    e.I('v_and_b32 v6, 7, v0\nv_lshrrev_b32 v7, 4, v0\nv_xor_b32 v6, v6, v7\nv_lshlrev_b32 v6, 4, v6')
    e.I('v_lshrrev_b32 v7, 3, v0\nv_lshl_add_u32 v6, v7, 10, v6')
    e.I('s_lshl_b32 s%d, s%d, 16\ns_lshl_b32 s%d, s%d, 8\ns_add_u32 s%d, s%d, s%d' % (T0, sCT, T1, sW, T0, T0, T1))
    e.I('v_add_u32 v%d, s%d, v6\nv_xor_b32 v7, 64, v%d' % (CV, T0, CV))
    e.I('v_add_u32 v%d, 7168, v7\nv_add_u32 v%d, 14336, v%d\nv_add_u32 v%d, 21504, v7' % (CV + 1, CV + 2, CV, CV + 3))
    frag16_addr(e, CA, 6, 7)
    for s in range(2):
        e.I('v_add_u32 v%d, s%d, v%d' % (CA + s, sMW, CA + s))
        e.I('v_add_u32 v%d, %d, v%d' % (CA4 + s, 4 * SLOT, CA + s))
    HS = CA + 2
    e.I('v_and_b32 v6, 15, v0\nv_lshlrev_b32 v6, 4, v6\nv_bfe_u32 v7, v0, 4, 1\nv_lshl_add_u32 v6, v7, 10, v6')
    e.I('v_lshrrev_b32 v7, 5, v0\nv_lshl_add_u32 v%d, v7, 8, v6' % HS)
    e.I('s_lshr_b32 s88, s%d, 1\ns_lshl_b32 s88, s88, 7\ns_lshl_b32 s89, s%d, 15\ns_add_u32 s88, s88, s89\ns_xor_b32 s89, s88, 128' % (sROT, sDTX))
    e.I(wd_lane_offsets(e, WDV, 6, 7))
    e.I('s_lshl_b32 s%d, s%d, 2\ns_sub_u32 s%d, s%d, s%d\ns_sub_u32 s%d, s%d, 1\ns_lshl_b32 s%d, s%d, 11' % (T0, sW, T0, sRB, T0, T0, T0, T5, sW))
    e.I('v_lshrrev_b32 v6, 5, v0\nv_sub_u32 v7, s%d, v6' % T0)
    e.I('v_cmp_le_i32 vcc, 0, v7\nv_cmp_le_i32 s[%d:%d], 2, v7' % (sMB, sMB + 1))
    e.I('v_lshl_add_u32 v7, v7, 9, v%d\nv_add_u32 v7, 1024, v7\nv_subrev_u32 v5, 2048, v7\nv_mov_b32 v%d, 0x%x' % (P16, EOOB, OOB))
    e.I('v_cndmask_b32 v%d, v%d, v7, vcc\nv_cndmask_b32 v%d, v%d, v5, s[%d:%d]' % (EV0, EOOB, EV1, EOOB, sMB, sMB + 1))
    e.I('v_lshl_add_u32 v7, v6, 12, v%d\nv_add_u32 v%d, %d, v7' % (P16, ERD, L_EG))
    e.I('v_lshlrev_b32 v6, 3, v6\nv_sub_u32 v%d, s%d, v6\nv_med3_i32 v%d, v%d, 0, 8' % (ECNT, sRB, EEXP, ECNT))
    e.I('v_mov_b32 v%d, 1\nv_mov_b32 v%d, %d' % (ONE, FLA, L_FL))

    pro = []
    add = lambda t: [pro.append(lambda x=x: e.I(x)) for x in t.split('\n')]

    def csq(d, a):
        add('v_mul_f32 v30, v%d, v%d\nv_mul_f32 v31, v%d, v%d\nv_fma_f32 v%d, -v%d, v%d, v30\nv_add_f32 v%d, v31, v31' %
            (a, a, a, a + 1, d, a + 1, a + 1, d + 1))

    def cmul(d, a, b):
        add('v_mul_f32 v30, v%d, v%d\nv_mul_f32 v31, v%d, v%d\nv_fma_f32 v30, -v%d, v%d, v30\nv_fma_f32 v%d, v%d, v%d, v31\nv_mov_b32 v%d, v30' %
            (a, b, a, b + 1, a + 1, b + 1, d + 1, a + 1, b, d))

    pro.append(lambda: e.wait(vm=['ep', 'par']))
    add('v_readfirstlane_b32 s%d, v19' % sNONCE)
    add('v_lshlrev_b32 v16, 16, v16\nv_lshlrev_b32 v17, 16, v17\nv_lshlrev_b32 v18, 16, v18')
    add('s_add_u32 s%d, s%d, 0x%x\ns_or_b32 s%d, s%d, 1' % (sNONCE, sNONCE, PHI, sNONCE, sNONCE))
    add('v_mul_f32 v18, 0x%x, v18\nv_exp_f32 v18, v18\nv_cvt_pk_bf16_f32 v18, v18, v18\nv_lshlrev_b32 v18, 16, v18' % LOG2E)
    add('v_mul_f32 v21, v18, v16\nv_mul_f32 v22, v18, v17')
    add('v_mul_f32 v21, 0x%x, v21\nv_exp_f32 v21, v21' % LOG2E)
    add('v_mul_f32 v22, 0.15915494, v22\nv_rndne_f32 v23, v22\nv_sub_f32 v22, v22, v23\nv_sin_f32 v23, v22\nv_cos_f32 v22, v22')
    add('v_mul_f32 v%d, v21, v23\nv_mul_f32 v%d, v21, v22' % (LI, LR))
    add('v_mul_f32 v21, v16, v16\nv_fmac_f32 v21, v17, v17\nv_rcp_f32 v21, v21\nv_add_f32 v22, -1.0, v%d\nv_add_f32 v21, v21, v21' % LR)
    add('v_mul_f32 v23, v22, v16\nv_fmac_f32 v23, v%d, v17\nv_mul_f32 v%d, v23, v21' % (LI, KAP))
    add('v_mul_f32 v23, v%d, v16\nv_fma_f32 v23, -v22, v17, v23\nv_mul_f32 v%d, v23, v21' % (LI, KAP + 1))
    csq(22, LR); csq(22, 22); csq(22, 22); csq(L16, 22)
    csq(22, L16); csq(24, 22); csq(L128, 24); csq(L256, L128); csq(L256, L256); csq(L256, L256)
    for bit, src, dst in ((1, L16, L16S), (2, 22, 22), (4, 24, 24)):
        add('v_and_b32 v26, %d, v%d\nv_cmp_ne_u32 vcc, 0, v26' % (bit, SIDX))
        add('v_cndmask_b32 v%d, 1.0, v%d, vcc\nv_cndmask_b32 v%d, 0, v%d, vcc' % (dst, src, dst + 1, src + 1))
    cmul(L16S, L16S, 22); cmul(L16S, L16S, 24)
    add('v_mul_lo_u32 v%d, v%d, s%d\nv_mov_b32 v2, s%d' % (EEXP, EEXP, sNONCE, sNONCE))
    EDIR = 'e0' in cfg.prog
    EVK = 132
    if EDIR:
        for k in range(8):
            add('v_subrev_u32 v%d, %d, v%d\nv_cmp_le_i32 vcc, 2, v%d\nv_lshl_add_u32 v%d, v%d, 9, v%d\nv_cndmask_b32 v%d, v%d, v%d, vcc' %
                (EVK + k, k - 1, ECNT, EVK + k, EVK + k, EVK + k, P16, EVK + k, EOOB, EVK + k))

    par, pro = pro, []
    pro.append(lambda: e.wait(vm='g'))
    if cfg.glds:
        for k in range(8):
            gw, x = (44 + k if k < 4 else 188 + k), 36 + k
            add('v_lshlrev_b32 v24, 16, v%d\nv_and_b32 v25, 0xffff0000, v%d' % (gw, gw))
            add('v_lshlrev_b32 v26, 16, v%d\nv_and_b32 v27, 0xffff0000, v%d' % (x, x))
            add('v_mul_f32 v26, v26, v24\nv_mul_f32 v27, v27, v25\nv_cvt_pk_bf16_f32 v26, v26, v27')
            if k == 0:
                add('v_lshlrev_b32 v28, 16, v26\nv_and_b32 v29, 0xffff0000, v26')
            else:
                add('v_lshlrev_b32 v27, 16, v26\nv_and_b32 v26, 0xffff0000, v26\nv_add_f32 v28, v28, v27\nv_add_f32 v29, v29, v26')
        add('v_add_f32 v28, v28, v29')
        for sh in (1, 2, 4):
            add('v_add_f32_dpp v28, v28, v28 row_shr:%d row_mask:0xf bank_mask:0xf' % sh)
        for wd in (32, 16):
            add('v_mov_b32 v29, v28\nv_permlane%d_swap_b32 v28, v29\nv_add_f32 v28, v28, v29' % wd)
        add('v_cvt_pk_bf16_f32 v28, v28, v28\nv_lshlrev_b32 v28, 16, v28\nv_mul_f32 v28, 0x%x, v28\nv_exp_f32 v28, v28' % NLOG2E)
        add('v_add_f32 v28, 1.0, v28\nv_rcp_f32 v28, v28\nv_cvt_pk_bf16_f32 v28, v28, v28\nv_lshlrev_b32 v28, 16, v28')
    else:
        for k in range(4):
            add('v_lshlrev_b32 v24, 16, v%d\nv_and_b32 v25, 0xffff0000, v%d' % (44 + k, 44 + k))
            for row in range(2):
                x = 36 + 4 * row + k
                add('v_lshlrev_b32 v26, 16, v%d\nv_and_b32 v27, 0xffff0000, v%d' % (x, x))
                add('v_mul_f32 v26, v26, v24\nv_mul_f32 v27, v27, v25\nv_cvt_pk_bf16_f32 v26, v26, v27')
                add('v_lshlrev_b32 v27, 16, v26\nv_and_b32 v26, 0xffff0000, v26')
                if k == 0:
                    add('v_add_f32 v%d, v26, v27' % (28 + row))
                else:
                    add('v_add_f32 v26, v26, v27\nv_add_f32 v%d, v%d, v26' % (28 + row, 28 + row))
        for mod in ('row_shr:1 row_mask:0xf', 'row_shr:2 row_mask:0xf', 'row_shr:4 row_mask:0xf', 'row_shr:8 row_mask:0xf',
                    'row_bcast:15 row_mask:0xa', 'row_bcast:31 row_mask:0xc'):
            for row in range(2):
                add('v_add_f32_dpp v%d, v%d, v%d %s bank_mask:0xf' % (28 + row, 28 + row, 28 + row, mod))
        add('v_cvt_pk_bf16_f32 v26, v28, v29\nv_lshlrev_b32 v28, 16, v26\nv_and_b32 v29, 0xffff0000, v26')
        add('v_mul_f32 v28, 0x%x, v28\nv_mul_f32 v29, 0x%x, v29\nv_exp_f32 v28, v28\nv_exp_f32 v29, v29' % (NLOG2E, NLOG2E))
        add('v_add_f32 v28, 1.0, v28\nv_add_f32 v29, 1.0, v29\nv_rcp_f32 v28, v28\nv_rcp_f32 v29, v29')
        add('v_cvt_pk_bf16_f32 v26, v28, v29\nv_lshlrev_b32 v28, 16, v26\nv_and_b32 v29, 0xffff0000, v26')
    gate, pro = pro, par

    gdone = []

    def g_store():
        gdone.append(1)
        if cfg.glds:
            e.I('s_mov_b64 exec, 0x8080')
            e.I('buffer_store_dword v28, v%d, %s, s%d offen sc1' % (GO, srd(SWS), T6), tag='gs')
            e.I('s_mov_b64 exec, -1')
            return
        e.I('s_mov_b32 exec_lo, 0\ns_mov_b32 exec_hi, 0x80000000')
        e.I('buffer_store_dwordx2 v[28:29], off, %s, s%d sc1' % (srd(SWS), T6), tag='gs')
        e.I('s_mov_b64 exec, -1')

    nbar = [0]

    def s_bar(i):
        assert nbar[0] == i
        nbar[0] += 1
        e.I('s_barrier')
        if i in (0, 7):
            st(e, 'b%d' % i)

    def s_read(n):
        i, s = n >> 2, n & 3
        slot = s_slot(i)
        if s == 0 and not cfg.lag:
            s_bar(i)
        assert nbar[0] > i
        off = (slot & 1) * SLOT
        if cfg.glds and s == 2:
            m = 0xffff << (16 * (i & 3))
            e.I('s_mov_b32 exec_lo, 0x%x\ns_mov_b32 exec_hi, 0x%x' % (m & 0xffffffff, m >> 32))
            e.I('ds_read_b128 %s, v%d offset:%d' % (vr(36 + 4 * (i >> 2), 4), GA + (slot >> 1), off), tag='gx')
            e.I('s_mov_b64 exec, -1')
        b = RING0 + 12 * (n & 3)
        e.I('ds_read_b128 %s, v%d offset:%d' % (vr(b + 8, 4), XA + 4 * (slot >> 1) + s, off), tag=('s', n, 0))
        for part in range(2):
            e.I('ds_read_b128 %s, v%d offset:%d' % (vr(b + 4 * part, 4), BA + 4 * (slot >> 1) + s,
                                                    off + 16384 + part * 4096), tag=('s', n, part))

    def s_mm(n, part):
        e.wait(lg=('s', n, part))
        b = RING0 + 12 * (n & 3)
        mfma(e, RE + 16 * part, b + 8, b + 4 * part, n == 0)

    D = 2
    seq = []
    for n in range(32):
        seq.append(lambda n=n: (s_mm(n, 0), s_read(n + D) if n + D < 32 else None))
        seq.append(lambda n=n: s_mm(n, 1))
    st(e, '_pro')
    if cfg.lag:
        L = cfg.lag
        npar = len(pro) // max(L - 1, 1) + 1
        for i in range(L):
            s_bar(i)
            tch.at(10 + i)
            if i == 0:
                small0()
            if i >= 1:
                run(pro[(i - 1) * npar:i * npar])
        s_bar(L)
        for n in range(D):
            s_read(n)
        r2 = 2 * cfg.lagr
        for k, it in enumerate(seq):
            it()
            i = L + (k + 1) // r2
            if (k + 1) % r2 == 0 and i <= 7:
                assert (k + 1) // 2 >= 4 * (i - 3)
                s_bar(i)
    else:
        for n in range(D):
            s_read(n)
        p0 = 2 * cfg.smallpos
        run(seq[:p0])
        small0()
        run(seq[p0:p0 + 10])
        run(weave(seq[p0 + 10:56], pro) + seq[56:])
    assert nbar[0] == 8
    st(e, 's1end')
    jitter(e, cfg, 6)
    if cfg.prioA:
        e.I('s_setprio %d' % cfg.prioA)

    def items(txt):
        return [lambda t=t: e.I(t) for t in txt.split('\n')]

    def cfma(d, l, a, c):
        return items('v_fma_f32 v%d, v%d, v%d, v%d\nv_fma_f32 v%d, v%d, v%d, v%d\nv_fma_f32 v%d, -v%d, v%d, v%d\nv_fmac_f32 v%d, v%d, v%d' %
                     (d, l, a, c, d + 1, l, a + 1, c + 1, d, l + 1, a + 1, d, d + 1, l + 1, a))

    e.raw('; ---- role A: local scan end states')
    prev = (RE, IM)
    for r in range(1, 16):
        cur = (20 + 2 * (r & 1), 21 + 2 * (r & 1))
        e.I('v_fma_f32 v%d, v%d, v%d, v%d' % (cur[0], LR, prev[0], RE + r))
        e.I('v_fma_f32 v%d, v%d, v%d, v%d' % (cur[1], LR, prev[1], IM + r))
        e.I('v_fma_f32 v%d, -v%d, v%d, v%d' % (cur[0], LI, prev[1], cur[0]))
        e.I('v_fmac_f32 v%d, v%d, v%d' % (cur[1], LI, prev[0]))
        prev = cur
    e.I('ds_write_b64 v%d, %s' % (XW, vr(prev[0], 2)), tag='ex')

    def c_reg(u, s2, dq):
        return 128 + 32 * u + 16 * s2 + 4 * dq

    CBUF = cfg.cbuf
    CPREV = {i: max(k for k in range(i) if CBUF[k] == CBUF[i]) for i in range(8) if CBUF[i] in CBUF[:i]}
    cdone = set()
    hdone = []

    def c_read(i):
        if i in cdone:
            return
        cdone.add(i)
        assert gdone or not cfg.glds or i < 4
        assert hdone or not EDIR
        assert i < 4 or hdone
        e.wait(vm=('c', i))
        for s in range(4):
            a_, off = (CA4 + (s >> 1), 0) if CBUF[i] == 4 else (CA + (s >> 1), CBUF[i] * SLOT)
            e.I('ds_read_b128 %s, v%d offset:%d' % (vr(c_reg(i >> 1, s >> 1, 2 * (i & 1) + (s & 1)), 4), a_, off + (s & 1) * 2048), tag=('cr', i))

    def c_loads(i):
        u, dt = i >> 1, i & 1
        its = []
        for q in range(4):
            def f(q=q):
                if q == 0:
                    if i in CPREV:
                        c_read(CPREV[i])
                        e.wait(lg=('cr', CPREV[i]))
                    elif CBUF[i] != 4 and (6 + CBUF[i] > cfg.JL or 4 + CBUF[i] >= 8 - cfg.NT):
                        assert kcur[0] >= cfg.JL
                        cnt_spin(e, 'L_cb%d' % i, FLA, 34, C_CONS + 28)
                    e.I('s_xor_b32 s%d, s%d, %d' % (sTD, 88 + (u >> 1), dt * 32768))
                set_m0(e, sMW, CBUF[i] * SLOT)
                e.I('buffer_load_dwordx4 v%d, %s, s%d offen offset:%d %slds' % ((CV + q, srd(SC2 if u & 1 else SC1), sTD, 1024 * q) + (ntf('c', i),)), tag=('c', i))
                if q == 3:
                    st(e, '_c%d' % i)
                if q == 3 and i >= 2:
                    c_read(i - 2)
            its.append(f)
        return its

    def d_loads(n):
        sl, pos = RING[n]
        its = []
        for q in range(2):
            def f(q=q):
                set_m0(e, sMW, sl * SLOT + pos * 2048)
                if q == 0 and n:
                    wd_next(e, n, sDC, sDB, sDE)
                e.I('buffer_load_dwordx4 v%d, %s, s%d offen offset:%d %slds' % ((WDV + q, srd(SWD), sDC, 1024 * q) + (ntf('d', n),)), tag='wd')
            its.append(f)
        return its

    wl = {j: dma_W(e, WV, SWA, j) for j in range(2, 8)}
    planned = set()

    def e_loads():
        its = []
        for q in range(2):
            def f(q=q):
                set_m0(e, T5, L_EG)
                e.I('buffer_load_dwordx4 v%d, %s, s%d offen offset:%d sc1 lds' % (EV0 + q, srd(SWS), sEL, 1024 * q), tag='eg')
            its.append(f)
        return its

    def expand(toks, k):
        r = []
        for t in toks.split(','):
            if not t:
                continue
            n = int(t[1])
            planned.add(t)
            if t[0] == 'W':
                assert n < 4 or k >= n - 2 or (k == n - 3 and k in cfg.drain)
                r += wl[n][:3] if t[2:] == 'a' else wl[n][3:] if t[2:] == 'b' else wl[n]
            elif t[0] == 'C':
                assert CBUF[n] == 4 or k >= min(6 + CBUF[n], cfg.JL)
                assert k >= 2 or cfg.w0pos is None
                r += c_loads(n)
            elif t[0] == 'D':
                r += d_loads(n)
            elif t[0] == 'R':
                r.append(lambda n=n: c_read(n))
            elif t[0] == 'S':
                r.append(lambda n=n: (hq[n](), hsent.add(n)))
            elif t[0] == 'G':
                r += small1
            elif t[0] == 'e':
                r += [lambda k=k: e.I('buffer_load_dwordx4 %s, v%d, %s, s%d offen sc1' % (vr(224 + 4 * k, 4), EVK + k, srd(SWS), sEL), tag='egv')
                      for k in range(8)]
            elif t[0] == 'E':
                r += e_loads()
            elif t[0] == 'T':
                r.append(lambda n=n: tch.at(n))
        return r

    def bar(k, extra=()):
        kk = 7 if k == cfg.JL else k
        assert kk < 2 or 'W%d' % kk in planned or 'W%db' % kk in planned or (kk == 2 and cfg.w0pos is not None)
        e.wait(vm=[('st', 8 + kk)] + list(extra))
        st(e, '_a%d' % k)
        e.I('s_barrier')
        st(e, '_d%d' % k)

    sc = []
    for r in range(16):
        sc += items('v_mul_f32 v4, v%d, v%d\nv_mul_f32 v5, v%d, v%d\nv_fma_f32 v%d, v%d, v%d, -v4\nv_fma_f32 v%d, v%d, v%d, v5' %
                    (KAP + 1, IM + r, KAP + 1, RE + r, RE + r, KAP, RE + r, IM + r, KAP, IM + r))
    if cfg.pksc:
        kp = vr(KAP, 2)
        for r in range(0, 16, 4):
            for o in (0, 2):
                e.I('v_pk_mul_f32 %s, %s, %s op_sel:[1,0] op_sel_hi:[1,1]' % (vr(4 + 2 * o, 2), kp, vr(IM + r + o, 2)))
                e.I('v_pk_mul_f32 %s, %s, %s op_sel:[1,0] op_sel_hi:[1,1]' % (vr(6 + 2 * o, 2), kp, vr(RE + r + o, 2)))
            for o in (0, 2):
                e.I('v_pk_fma_f32 %s, %s, %s, %s op_sel_hi:[0,1,1] neg_lo:[0,0,1] neg_hi:[0,0,1]' % (vr(RE + r + o, 2), kp, vr(RE + r + o, 2), vr(4 + 2 * o, 2)))
                e.I('v_pk_fma_f32 %s, %s, %s, %s op_sel_hi:[0,1,1]' % (vr(IM + r + o, 2), kp, vr(IM + r + o, 2), vr(6 + 2 * o, 2)))
        late = []
    else:
        run(sc[:cfg.early])
        late = sc[cfg.early:]
    e.wait(lg='all')
    bar(0)
    work = []
    for s in range(8):
        e.I('ds_read_b64 %s, v%d offset:%d' % (vr(4 + 2 * s, 2), XR, 256 * s), tag=('e', s))
    pf = []
    for s in range(1, 8):
        pf.append(lambda s=s: e.wait(lg=('e', s)))
        pf += cfma(4 + 2 * s, L16, 2 + 2 * s, 4 + 2 * s)
    segs = [[sub.split('|') for sub in sg.split('&')] for sg in cfg.prog.split(';')]
    issued_tok = set()
    q0 = expand(segs[0][0][0], 0)
    run(weave(q0[:cfg.pren], pf))
    e.I('v_mov_b32 v20, s%d\nv_mov_b32 v21, s%d' % (sNONCE, sNONCE))
    e.I('s_mov_b32 exec_hi, 0')
    e.I('buffer_store_dwordx4 v[18:21], v%d, %s, s%d offen sc1' % (P16, srd(SWS), sES), tag='es')
    e.I('s_mov_b32 exec_hi, -1')
    st(e, 'epub')
    jitter(e, cfg, 7)
    run(q0[cfg.pren:])
    gate.append(g_store)
    sel = items('v_mov_b32 v%d, 0\nv_mov_b32 v%d, 0' % (PP, PP + 1))
    for s in range(1, 8):
        sel.append(lambda s=s: e.I('v_cmp_eq_u32 vcc, %d, v%d\nv_cndmask_b32 v%d, v%d, v%d, vcc\nv_cndmask_b32 v%d, v%d, v%d, vcc' %
                                   (s, SIDX, PP, PP, 2 + 2 * s, PP + 1, PP + 1, 3 + 2 * s)))
    EG = 224

    def e_check():
        e.I('v_add3_u32 v4, v%d, v%d, v%d\nv_add3_u32 v5, v%d, v%d, v%d' % tuple(EG + 4 * k + 2 for k in range(6)))
        e.I('v_add3_u32 v4, v4, v%d, v%d\nv_add_u32 v4, v4, v5' % (EG + 26, EG + 30))
        e.I('v_cmp_ne_u32 vcc, v4, v%d' % EEXP)

    def e_verify():
        assert 'e0' in issued_tok or not EDIR
        e.wait(vm='egv', lg='eg')
        e_check()
        e.I('s_cbranch_vccnz L_pollE')
        e.label('L_pollE_out')
        st(e, 'egot')
        with e.cold_block():
            e.label('L_pollE')
            e.I('s_mov_b32 s%d, 0' % sCNT)
            e.label('L_pollE_l')
            for k in range(8):
                e.I('v_subrev_u32 v4, %d, v%d\nv_cmp_le_i32 vcc, 2, v4\nv_lshl_add_u32 v4, v4, 9, v%d\nv_cndmask_b32 v4, v%d, v4, vcc' % (k - 1, ECNT, P16, EOOB))
                e.I('buffer_load_dwordx4 %s, v4, %s, s%d offen sc1' % (vr(EG + 4 * k, 4), srd(SWS), sEL))
            e.I('s_add_u32 s%d, s%d, 1' % (sCNT, sCNT))
            e.I('s_cmp_gt_u32 s%d, %d' % (sCNT, SPIN_MAX))
            e.wait(vm='all')
            e.I('s_cbranch_scc1 L_pollE_out')
            e_check()
            e.I('s_cbranch_vccnz L_pollE_l')
            e.I('s_branch L_pollE_out')

    def second_pass():
        p2 = []
        if not EDIR:
            p2.append(lambda: [e.I('ds_read_b128 %s, v%d offset:%d' % (vr(EG + 4 * k, 4), ERD, 512 * k), tag='eg') for k in range(8)])
        p2.append(e_verify)
        for k in range(6, -1, -1):
            p2 += cfma(EG + 4 * k, L128, EG + 4 * k + 4, EG + 4 * k)
        p2 += items('v_mov_b32 v4, v%d\nv_mov_b32 v5, v%d\nv_permlane32_swap_b32 v4, v%d\nv_permlane32_swap_b32 v5, v%d' % (EG, EG + 1, EG, EG + 1))
        p2 += cfma(4, L256, EG, 4)
        p2 += cfma(PP, L16S, 4, PP)
        p2 += items('v_mul_f32 v6, v%d, v%d\nv_mul_f32 v7, v%d, v%d' % (KAP, PP, KAP, PP + 1))
        p2 += items('v_fma_f32 v6, -v%d, v%d, v6\nv_fmac_f32 v7, v%d, v%d' % (KAP + 1, PP + 1, KAP + 1, PP))
        prev = (6, 7)
        for r in range(16):
            p2 += items('v_fmac_f32 v%d, v%d, v%d\nv_fmac_f32 v%d, v%d, v%d\nv_fma_f32 v%d, -v%d, v%d, v%d\nv_fmac_f32 v%d, v%d, v%d' %
                        (RE + r, LR, prev[0], IM + r, LR, prev[1], RE + r, LI, prev[1], RE + r, IM + r, LI, prev[0]))
            prev = (RE + r, IM + r)
        return p2

    def store_h(loads):
        assert not p2
        for part in range(2):
            for k in range(8):
                sg_ = '-' if part else ''
                e.I('v_cvt_pk_bf16_f32 v%d, %sv%d, %sv%d' % (8 + 8 * part + k, sg_, RE + 16 * part + 2 * k, sg_, RE + 16 * part + 2 * k + 1))
            for m in range(2):
                mfma(e, RE + 16 * part, 8 + 8 * part + 4 * m, SEL + 4 * m, m == 0)
        hdone.append(1)
        run(loads)
        e.I('s_add_u32 s%d, s%d, 4096' % (T0, sHD))
        for part in range(2):
            for m in range(2):
                o = 8 + 8 * part + 4 * m
                for k in range(4):
                    e.I('v_cvt_pk_bf16_f32 v%d, v%d, v%d' % (o + k, RE + 16 * part + 8 * m + 2 * k, RE + 16 * part + 8 * m + 2 * k + 1))
                hq.append(lambda o=o, part=part, m=m: e.I('buffer_store_dwordx4 %s, v%d, %s, s%d offen offset:%d sc1' %
                                                         (vr(o, 4), HS, srd(SWS), T0 if part else sHD, 512 * m), tag='hs'))
                if len(hq) <= cfg.hnow:
                    hq[-1]()
                    hsent.add(len(hq) - 1)

    hq = []
    hsent = set()
    kcur = [0]
    p2 = second_pass()
    for k, sub, toks, work in [(k, i, t, w) for k, sg in enumerate(segs) for i, (t, w) in enumerate(sg)]:
        if k == 0:
            continue
        if k <= cfg.JL and sub == 0:
            bar(k, ['eg'] if work[:1] == 'P' else [])
        kcur[0] = k
        q = expand(toks, k)
        if work[:3] == 'sel' or work[:1] == 'g':
            fill = []
            for wk in work.split('+'):
                if wk == 'sel':
                    fill += sel + ([] if 'late' in cfg.prog else late)
                else:
                    n = len(gate) if wk == 'g' else int(wk[1:])
                    fill += gate[:n]
                    del gate[:n]
            run(weave(q, fill) if not cfg.lfirst else q[:cfg.lfirst] + weave(q[cfg.lfirst:] or [lambda: None], fill))
        elif work == 'late':
            run(weave(q, late))
        elif work[:1] == 'P':
            assert EDIR or 'eg' not in e.vm
            wk = work.rstrip('H')
            n = cfg.p2cut if wk == 'P0' else len(p2) if wk in ('P', 'P1') else int(wk[1:])
            part = p2[:n]
            del p2[:n]
            run(part[:1] + (weave(q, part[1:]) if q else part[1:]))
            if work[-1] == 'H':
                st(e, 'p2done')
                store_h([])
        elif work[:1] == 'H':
            st(e, 'p2done')
            store_h(q)
            run(expand(work[2:], k))
        elif work == 'F':
            run(hq[n] for n in range(4) if n not in hsent)
            st(e, 'hst')
            jitter(e, cfg, 8)
            run(q)
            assert gdone and len(hq) == 4
            e.wait(vm=['hs', 'gs'])
            flag_store(e, 2, sHF)
            st(e, 'hflag')
            jitter(e, cfg, 9)
        else:
            run(q)
        issued_tok.update(toks.split(','))
    assert len(segs) > cfg.JL
    HV, PW = 6, 8
    rest = [i for i in range(8) if 'C%d' % i not in planned]
    run(c_loads(rest.pop(0)))
    e.I('s_mul_i32 s%d, s%d, %d\ns_mul_i32 s%d, s%d, %d\ns_add_u32 s%d, s%d, s%d\ns_add_u32 s%d, s%d, 0x%x' %
        (T0, sRT, 2 * HT_, T1, sW, HW_, T0, T0, T1, T0, T0, H_OFF))
    e.I('v_add_u32 v%d, s%d, v1\nv_add_u32 v%d, %d, v%d' % (HV, T0, HV + 1, HT_, HV))
    for u in range(4):
        e.I('s_xor_b32 s%d, s%d, %d\ns_lshl_b32 s%d, s%d, 12' % (93 + u, sROT, u, 93 + u, 93 + u))
    part_write_addr(e, PW, 12, 13, 16384, 4096, SPART)
    mk_srd(e, SOUT, P_OUT, 2048 * 2048)
    e.I('s_lshl_b32 s%d, s%d, 2\ns_add_u32 s%d, s%d, s%d\ns_mul_i32 s%d, s%d, %d\ns_add_u32 s%d, s%d, 0x%x' %
        (T0, sRT, T0, T0, sW, T0, T0, 8 * FS, T0, T0, HF_OFF))
    e.I('v_mul_u32_u24 v12, %d, v0\nv_mov_b32 v5, v2' % FS)

    def h_reg(k):
        return 16 + 4 * (k % 12)

    def h_load(k):
        n2, t4 = k >> 2, k & 3
        e.I('buffer_load_dwordx4 %s, v%d, %s, s%d offen offset:%d sc1' % (vr(h_reg(k), 4), HV + (t4 >> 1), srd(SWS), 93 + (n2 >> 1),
                                                                            2048 * (n2 & 1) + 1024 * (t4 & 1)), tag=('h', k))

    def c_finish():
        for i in range(8):
            c_read(i)
        e.wait(vm='wd')
        cnt_add(e, FLA, ONE, C_DONEA)
        st(e, 'cgot')

    while rest and rest[0] < cfg.hlook:
        run(c_loads(rest.pop(0)))
    if cfg.hlook > 8:
        c_finish()
    poll(e, 'L_pollH', 13, 12, T0, '0xff',
         lambda: ([run(c_loads(i)) for i in rest], c_finish() if cfg.hearly == 0 and cfg.hlook <= 8 else None))
    st(e, 'hrdy')
    jitter(e, cfg, 10)
    XO, RA, GV, RF = 2, 3, 4, 14
    ROWS = (0, 8, 32, 40)
    XL, DL, GL, XD, PW1 = 128, 136, 138, 144, 10
    fin = items('s_lshl_b32 s%d, s%d, 6\ns_add_u32 s%d, s%d, s%d' % (T0, sRT, T0, T0, sW))
    fin += items('v_lshrrev_b32 v12, 4, v0\nv_lshrrev_b32 v13, 2, v0\nv_and_b32 v13, 2, v13\nv_xor_b32 v12, v12, v13')
    fin += items('v_and_b32 v15, 1, v12\nv_lshl_add_u32 v13, v15, 4, s%d\nv_lshrrev_b32 v3, 1, v12\nv_lshl_add_u32 v13, v3, 2, v13' % T0)
    fin += items('v_and_b32 v14, 15, v0\ns_lshl_b32 s%d, s%d, 7' % (T1, sCT))
    fin += items('v_lshl_add_u32 v1, v14, 3, s%d' % T1)
    fin += items('v_lshl_add_u32 v%d, v13, 10, v1' % XO)
    fin += items('v_lshlrev_b32 v%d, 2, v13\nv_add_u32 v%d, 0x%x, v%d' % (GV, GV, G_OFF, GV))
    fin += items('s_lshl_b32 s%d, s%d, 8\ns_add_u32 s%d, s%d, %d' % (T2, sW, T1, T2, SPART))
    fin += items('v_lshl_add_u32 v3, v3, 10, s%d\nv_lshl_add_u32 v3, v15, 14, v3' % T1)
    fin += items('v_lshl_or_b32 v13, v15, 2, s%d\nv_xor_b32 v13, v13, v14\nv_lshl_add_u32 v%d, v13, 4, v3' % (sW, RA))
    fin += items('v_lshl_add_u32 v12, v12, 6, s%d\nv_lshrrev_b32 v13, 2, v14\nv_lshl_add_u32 v12, v13, 10, v12' % T2)
    fin += items('v_and_b32 v13, 3, v0\nv_lshl_add_u32 v%d, v13, 4, v12\nv_add_u32 v%d, %d, v%d' % (RF, RF + 1, 2 * SLOT, RF))
    fin += items('s_lshl_b32 s%d, s%d, 7' % (T0, sDTX))
    for a in range(2):
        fin += items('v_xor_b32 v%d, s%d, v%d\nv_xor_b32 v%d, 0x80, v%d' % (PW + a, T0, PW + a, PW1 + a, PW + a))
    if cfg.posX < 0:
        run(fin)
    for k in range(cfg.NVA):
        if cfg.posX < 0 and k == -1 - cfg.posX:
            assert k >= cfg.hearly
            e.wait(lg='all')
            e.I('s_barrier')
        if k == cfg.hearly // 2 and k:
            c_read(6)
        if k == cfg.hearly and k:
            c_finish()
        h_load(k)
    e.wait(lg='all')
    if cfg.posX >= 0:
        run(fin)

    def fx_loads():
        e.I('global_load_dwordx2 %s, v1, s[%d:%d]' % (vr(DL, 2), P_DSK, P_DSK + 1), tag='fx')
        for n in range(4):
            e.I('s_mov_b32 s%d, %d' % (T2, 1024 * ROWS[n]))
            e.I('buffer_load_dwordx2 %s, v%d, %s, s%d offen' % (vr(XL + 2 * n, 2), XO, srd(SX), T2), tag='fx')

    def g_loads():
        for n in range(4):
            e.I('buffer_load_dword v%d, v%d, %s, 0 offen offset:%d sc1' % (GL + n, GV, srd(SWS), 4 * ROWS[n]), tag='fg')

    DU = 160
    xd = [lambda: e.wait(vm='fx')]
    xd += items('v_lshlrev_b32 v%d, 16, v%d\nv_and_b32 v%d, 0xffff0000, v%d\nv_lshlrev_b32 v%d, 16, v%d\nv_and_b32 v%d, 0xffff0000, v%d' %
                (DU, DL, DU + 1, DL, DU + 2, DL + 1, DU + 3, DL + 1))
    for n in range(4):
        for k in range(2):
            x = XL + 2 * n + k
            xd += items('v_lshlrev_b32 v12, 16, v%d\nv_and_b32 v13, 0xffff0000, v%d' % (x, x))
            xd += items('v_mul_f32 v12, v12, v%d\nv_mul_f32 v13, v13, v%d' % (DU + 2 * k, DU + 1 + 2 * k))
            xd += items('v_cvt_pk_bf16_f32 v13, v12, v13')
            xd += items('v_lshlrev_b32 v%d, 16, v13\nv_and_b32 v%d, 0xffff0000, v13' % (XD + 4 * n + 2 * k, XD + 4 * n + 2 * k + 1))
    xd += items('v_mov_b32 v12, %d\nv_mov_b32 v13, 1\nv_lshlrev_b32 v%d, 1, v%d' % (L_P2, XO, XO))

    def s2_step(k):
        n2, t4 = k >> 2, k & 3
        if k == 2 * cfg.posX:
            e.I('s_barrier')
        e.wait(vm=('h', k))
        for dq in range(4):
            d = 3 - dq if cfg.snake and t4 & 1 else dq
            mfma16(e, acc2(t4, d), c_reg(n2 >> 1, n2 & 1, d), h_reg(k), n2 == 0)
            if dq == (0 if cfg.NVA < 12 else 3) and k + cfg.NVA < 32:
                h_load(k + cfg.NVA)
        if k == 8:
            fx_loads()
        if k == max(8, 2 * cfg.posX):
            g_loads()
    steps = [lambda k=k: s2_step(k) for k in range(32)]
    if cfg.xdpos < 32:
        run(steps[:cfg.xdpos] + weave(steps[cfg.xdpos:], xd))
    else:
        run(steps + xd[-3:])
    st(e, 's2end')
    jitter(e, cfg, 11)
    if cfg.posX == 16:
        e.I('s_barrier')
        g_loads()
    st(e, '_X')
    run(part_write(e, PW, 16384, 0, PW1) + part_write(e, PW, 16384, 1, PW1))
    cnt_add(e, 12, 13, 0)
    if cfg.xdpos >= 32:
        run(xd[:-1])
    OM = 164
    e.wait(vm='fg')
    for n in range(4):
        e.I('v_sub_f32 v%d, 1.0, v%d' % (OM + n, GL + n))
        e.I('v_cvt_pk_bf16_f32 v%d, v%d, v%d\nv_lshlrev_b32 v%d, 16, v%d' % (OM + n, OM + n, OM + n, OM + n, OM + n))
    for n in range(4):
        e.I('s_mov_b32 s%d, %d' % (T2 + n, 2048 * ROWS[n]))
    e.I('s_lshl_b32 s%d, s%d, 5\ns_add_u32 s%d, s%d, s%d\ns_lshl_b32 s%d, s%d, 8\ns_add_u32 s%d, s%d, s%d' %
        (T0, sCT, T0, T0, sRT, T1, sW, T0, T0, T1))
    e.I('s_cmp_eq_u32 s%d, 31\ns_cselect_b32 s%d, 0x%x, s%d' % (T0, T0, EPOCH_OFF, SWS + 2))
    flag_store(e, 5, T0)
    cnt_spin(e, 'L_spinM', 12, 16, 0)
    e.wait(lg='all')
    for n in range(4):
        for w in range(4):
            e.I('ds_read_b128 %s, v%d offset:%d' % (vr(64 + 16 * n + 4 * w, 4), RA, w * 4096 + (n & 1) * 2048 + (n >> 1) * 32768), tag=('r', n))
    BS = XD
    for n in range(4):
        e.wait(lg=('r', n))
        b = 64 + 16 * n
        for k in range(4):
            e.I('v_add_f32 v%d, v%d, v%d\nv_add_f32 v%d, v%d, v%d' % (b + k, b + k, b + 4 + k, b + 8 + k, b + 8 + k, b + 12 + k))
        for k in range(4):
            e.I('v_add_f32 v%d, v%d, v%d' % (b + k, b + k, b + 8 + k))
        for k in range(4):
            e.I('v_add_f32 v%d, v%d, v%d' % (b + k, b + k, XD + 4 * n + k))
        for k in range(4):
            e.I('v_mul_f32 v%d, v%d, v%d' % (BS + 4 * n + k, GL + n, b + k))
    st(e, 'pre')
    jitter(e, cfg, 12)
    for grp in cfg.zg:
        e.I('s_barrier')
        st(e, 'Z' if 3 in grp else '_Z%d' % grp[0])
        for n in grp:
            for w in range(4):
                e.I('ds_read_b128 %s, v%d offset:%d' % (vr(64 + 16 * n + 4 * w, 4), RF + (n >> 1), w * 6144 + (n & 1) * SLOT), tag=('r', n, w >> 1))
        for n in grp:
            b = 64 + 16 * n
            for o, p in ((0, 4), (8, 12), (0, 8)):
                e.wait(lg=('r', n, o >> 3))
                if 3 in grp:
                    for k in (0, 2):
                        e.I('v_pk_add_f32 %s, %s, %s' % (vr(b + o + k, 2), vr(b + o + k, 2), vr(b + p + k, 2)))
                else:
                    for k in range(4):
                        e.I('v_add_f32 v%d, v%d, v%d' % (b + o + k, b + o + k, b + p + k))
            if cfg.mimic2:
                for rnd in range(2):
                    e.I('v_cvt_pk_bf16_f32 v%d, v%d, v%d\nv_cvt_pk_bf16_f32 v%d, v%d, v%d' % (b + 1, b, b + 1, b + 3, b + 2, b + 3))
                    for k in (0, 2):
                        e.I('v_lshlrev_b32 v%d, 16, v%d\nv_and_b32 v%d, 0xffff0000, v%d' % (b + k, b + k + 1, b + k + 1, b + k + 1))
                    if rnd == 0:
                        for k in range(4):
                            e.I('v_mul_f32 v%d, v%d, v%d' % (b + k, OM + n, b + k))
                for k in (0, 2):
                    e.I('v_pk_add_f32 %s, %s, %s' % (vr(b + k, 2), vr(b + k, 2), vr(BS + 4 * n + k, 2)))
            else:
                for k in range(4):
                    e.I('v_fma_f32 v%d, v%d, v%d, v%d' % (b + k, OM + n, b + k, BS + 4 * n + k))
            e.I('buffer_store_dwordx4 %s, v%d, %s, s%d offen %s' % (vr(b, 4), XO, srd(SOUT), T2 + n, cfg.outflags if isinstance(cfg.outflags, str) else cfg.outflags[n]), tag='out')
    if st.on:
        e.wait(vm='all')
    if cfg.skew:
        e.I('s_and_b32 s%d, s2, %d\ns_lshl_b32 s%d, s%d, 7\ns_add_u32 s%d, s%d, 0x%x' % (T4, cfg.skew[0], T4, T4, T4, T4, STAMP_OFF))
        e.I('buffer_load_dword v62, off, %s, s%d sc1' % (srd(SWS), T4))
        e.wait(vm='all')
        e.I('v_readfirstlane_b32 s12, v62')
        if cfg.skew[1] > 0:
            e.I('s_sub_u32 s12, s38, s12')
        else:
            e.I('s_sub_u32 s12, s12, s38')
        e.I('s_add_u32 s12, s12, 300\ns_add_u32 s10, s38, s12')
        st.names.append('skew')
    st(e, 'end')
    st.flush(e)


HEADER = open(os.path.join(os.path.dirname(os.path.abspath(__file__)), '..', 'cdna_kernels', BASE + '.s.ref')).read()


DOC = """;
;   S: B stages x and B_re/B_im through LDS (LDS-DMA) and keeps its x fragments in registers; A computes B.x.
;      local end states -> workgroup end state published in d_ws -> carry-in from ALL earlier row blocks ->
;      second pass; h is transposed with two selection MFMAs.  h, act (bf16, fragment order) and the gate go to d_ws.
; Hand-offs: write-through stores, counter wait, then a flag word; readers poll with L1-bypassing loads.
"""


def generate(cfg):
    SLEEP[:] = cfg.sleep
    FL.clear()
    FL.update(cfg.nt)
    W_SLOT[0] = 0 if cfg.w0pos is None else 4
    S_SHIFT[0] = -1 if cfg.lag else 0 if cfg.w0pos is None else 1
    assert cfg.w0pos is None
    hdr = []
    for line in HEADER.split('\n'):
        if not line.startswith(';'):
            break
        if '@launch' in line:
            line = '; @launch grid=(256,1,1) block=(512,1,1) lds=%d' % LDS_BYTES
            if cfg.pre_kernel is not None:
                line = '; @launch kernel=%s grid=(256,1,1) block=(512,1,1) lds=%d' % (NAME, LDS_BYTES)
                if cfg.pre_kernel:
                    line = '; @launch kernel=warm_kernel grid=(256,1,1) block=(256,1,1) lds=0\n' + line
        hdr.append(line)
    stB = Stamps(cfg, [38, 6, 8, 14, 16, 18, 20, 22, 30, 32, 34, 4, 10, 12, 24, 26], 'B')
    stA = Stamps(cfg, [38, 10, 12, 22, 34, 24, 26, 6, 8, 18, 28, 14, 16, 30, 36, 4], 'A')
    e = Em()
    gen_entry(e, cfg, stB)
    stA.names = list(stB.names)
    eA = Em()
    eA.hist = list(e.hist)
    eA.vm = list(e.vm)
    gen_B(e, cfg, stB)
    gen_A(eA, cfg, stA)
    txt = '\n'.join(hdr) + '\n' + DOC
    txt += '.amdgcn_target "amdgcn-amd-amdhsa--gfx950"\n.text\n.globl %s\n.p2align 8\n.type %s,@function\n%s:\n' % (NAME, NAME, NAME)
    txt += e.text() + '\n' + '\n'.join(e.cold) + '\n.p2align 6\nL_A:\n' + eA.text() + '\n    s_endpgm\n' + '\n'.join(eA.cold) + '\nL_end:\n    s_endpgm\n'
    if cfg.pre_kernel:
        w = Em()
        w.I('s_cmp_ge_u32 s2, 256\ns_cbranch_scc1 L_wend')
        if cfg.pre_kernel != 'empty':
            w.I('s_load_dwordx16 s[4:19], s[0:1], 0\ns_load_dwordx16 s[20:35], s[0:1], 64')
            w.I('s_lshl_b32 s3, s2, 8\nv_add_u32 v0, s3, v0\nv_lshlrev_b32 v1, 7, v0')
            w.wait_smem()
            base = 0
            for p, n in ((P_X, 2048 * 1024), (P_BRE, 524288), (P_BIM, 524288), (P_WG, 1409024), (P_WU, 1409024), (P_CRE, 524288), (P_CIM, 524288), (P_WD, 1409024)):
                mk_srd(w, 40, p, n)
                w.I('v_subrev_u32 v2, %d, v1\nv_cmp_gt_u32 vcc, %d, v2\ns_and_saveexec_b64 s[44:45], vcc\ns_cbranch_execz L_w%d' % (base, n, p))
                w.I('buffer_load_dword v3, v2, s[40:43], 0 offen')
                w.label('L_w%d' % p)
                w.I('s_mov_b64 exec, s[44:45]')
                base += n
            if cfg.pre_kernel == 'wait':
                w.I('s_waitcnt vmcnt(0)')
        txt += '.globl warm_kernel\n.p2align 8\n.type warm_kernel,@function\nwarm_kernel:\n' + w.text() + '\nL_wend:\n    s_endpgm\n'
    txt += '''.section .rodata,"a"
.p2align 6
.amdhsa_kernel %s
  .amdhsa_next_free_vgpr 256
  .amdhsa_next_free_sgpr 102
  .amdhsa_accum_offset 256
  .amdhsa_group_segment_fixed_size 0
  .amdhsa_kernarg_size 136
  .amdhsa_user_sgpr_count 2
  .amdhsa_user_sgpr_kernarg_segment_ptr 1
  .amdhsa_system_sgpr_workgroup_id_x 1
  .amdhsa_float_denorm_mode_32 3
.end_amdhsa_kernel
''' % NAME
    if cfg.pre_kernel:
        txt += '''.p2align 6
.amdhsa_kernel warm_kernel
  .amdhsa_next_free_vgpr 8
  .amdhsa_next_free_sgpr 48
  .amdhsa_accum_offset 8
  .amdhsa_group_segment_fixed_size 0
  .amdhsa_kernarg_size 136
  .amdhsa_user_sgpr_count 2
  .amdhsa_user_sgpr_kernarg_segment_ptr 1
  .amdhsa_system_sgpr_workgroup_id_x 1
.end_amdhsa_kernel
'''
    info = dict(A=eA.count, B=e.count, nopsA=eA.nops, nopsB=e.nops, stampsA=stA.names, stampsB=stB.names)
    return txt, info


def cfg_from(args):
    cfg = Cfg()
    for a in args:
        k, v = a.split('=')
        setattr(cfg, k, eval(v))
    return cfg


if __name__ == '__main__':
    out = sys.argv[1]
    cfg = cfg_from(sys.argv[2:])
    txt, info = generate(cfg)
    open(out, 'w').write(txt)
    print(info)
```

```python
import sys, os
sys.path.insert(0, os.path.dirname(os.path.abspath(__file__)))
from em import Em, weave

BASE = 'gated_mix__ssm_conv_s5__swiglu_ffn__prompt'
NAME = BASE + '_kernel'

ACT_OFF = 0
H_OFF = 0x600000
E_OFF = 0xB00000
G_OFF = 0xB20000
HF_OFF = 0xB24000
AF_OFF = 0xB30000
EPOCH_OFF = 0xB48000
STAMP_OFF = 0xB50000
WS_SIZE = 0xB80000
OOB = 0x2000000
FS = 32
PHI = 0x9E3779B8

SLOT = 24576
WIN = 49152
SCR = 147456
SPART = 98304
L_E, L_FL, L_EG = SCR, SCR + 4096, SCR + 8192
L_P2 = 3 * SLOT + 4096
LDS_BYTES = 163840

P_X, P_LRE, P_LIM, P_BRE, P_BIM, P_CRE, P_CIM, P_LDT = 4, 6, 8, 10, 12, 14, 16, 18
P_DSK, P_BX, P_WG, P_WU, P_WD, P_GW, P_OUT, P_DBG, P_WS = 20, 22, 24, 26, 28, 30, 32, 34, 36
SX, SWS = 40, 44
SBM, SW, SWD = 48, 52, 56
SC1, SC2, SOUT, SCODE = 48, 52, 56, 60
SWA = 60
sWAVE, sW, sRB, sCB, sK0, sRT, sCT, sNONCE, sSG0 = 64, 65, 66, 67, 68, 69, 70, 71, 72
T0, T1, T2, T3, T4, T5, T6 = 73, 74, 75, 76, 77, 78, 79
sNL2E = 80
sMA, sMB = 82, 84
sTBL = 86
sCNT = 97
sTS, sTW, sTD = 98, 99, 100
sMX, sMBm = 60, 61
sMW = 101
SPIN_MAX = 200000

SLEEP = [0, 0]
FL = {}


def ntf(key, stage):
    return 'nt ' if stage < FL.get(key, 0) else ''


LOG2E = 0x3fb8aa3b
NLOG2E = 0xbfb8aa3b


class Cfg:
    mimic = False
    mimic2 = False
    stamps = False
    rot1 = (2, 4, 2, 1)
    rot2 = 7
    rotF = 0
    rotS = None
    map2 = 84
    prewarm = 'v'
    pwn = 4
    esleep = 4
    slim = True
    blate = True
    lfirst = 0
    glds = True
    xloc = False
    defer = True
    apre = True
    NT = 2
    early = 200
    w0pos = None
    s1a = 2
    smallpos = 2
    pre_kernel = None
    lag = 0
    lagr = 4
    JL = 7
    prog = 'W2,G0|;W3,C0|sel;W4|g53;E0,W5,D0,D1,D2,D3|g;W6|P0;W7|P1H;|;C1,C2|F'
    p2cut = 72
    cbuf = (4, 0, 1, 4, 0, 1, 4, 0)
    tplan = ()
    zfill = True
    prioB = 0
    LA = 4
    posX = 9
    pren = 4
    asplit = True
    prioT = 1
    prioS = 0
    prioD = (0, 0)
    prioF2n = -1
    drain = ()
    hpad = (1280, 768)
    hlook = 9
    hearly = 0
    hnow = 4
    sleep = (1, 1)
    skew = None
    skip = ''
    flagpos = (0, 0, 3)
    alook = 18
    abet = 3
    posXB = -17
    fine = True
    snake = True
    nt = {}
    pksc = True
    jitter = 0
    prioF2 = 1
    NVA = 11
    NV0 = (12, 0)
    xdpos = 32
    NV = 12
    TL = 4
    pull0 = 3
    zg = ((0, 1), (2, 3))
    zlag = 3
    outflags = 'sc1_nt'
    selA = None
    selB = None
    prioA = 0
    amp = None


def srd(r):
    return 's[%d:%d]' % (r, r + 3)


def vr(a, n):
    return 'v[%d:%d]' % (a, a + n - 1) if n > 1 else 'v%d' % a


def mk_srd(e, r, p, nbytes):
    e.I('s_mov_b32 s%d, s%d\ns_mov_b32 s%d, s%d\ns_mov_b32 s%d, 0x%x\ns_mov_b32 s%d, 0x20000' %
        (r, p, r + 1, p + 1, r + 2, nbytes, r + 3))


def mk_srd_sel(e, r, p1, p0, nbytes):
    e.I('s_cselect_b32 s%d, s%d, s%d\ns_cselect_b32 s%d, s%d, s%d\ns_mov_b32 s%d, 0x%x\ns_mov_b32 s%d, 0x20000' %
        (r, p1, p0, r + 1, p1 + 1, p0 + 1, r + 2, nbytes, r + 3))


def mfma(e, d, a, b, first):
    e.I('v_mfma_f32_32x32x16_bf16 %s, %s, %s, %s' % (vr(d, 16), vr(a, 4), vr(b, 4), '0' if first else vr(d, 16)))


def mfma16(e, d, a, b, first):
    e.I('v_mfma_f32_16x16x32_bf16 %s, %s, %s, %s' % (vr(d, 4), vr(a, 4), vr(b, 4), '0' if first else vr(d, 4)))


class Stamps:
    def __init__(self, cfg, regs, role):
        self.amp = cfg.amp if cfg.amp else None
        self.role = role
        self.sel = (cfg.selA if role == 'A' else cfg.selB)
        if self.sel is not None:
            self.sel = self.sel.split(',')
        self.ins = 's_memtime' if cfg.stamps == 'cyc' else 's_memrealtime'
        self.on = cfg.stamps or bool(self.amp)
        self.regs = regs
        self.names = []

    def __call__(self, e, name):
        if not self.on:
            return
        if self.sel is not None:
            if name != 'start' and name not in self.sel:
                return
        elif name.startswith('_'):
            return
        r = self.regs[len(self.names)]
        self.names.append(name)
        if self.amp and name not in ('start', 'end', self.amp[1], self.amp[2]):
            return
        e.I('%s s[%d:%d]' % (self.ins, r, r + 1))

    def flush(self, e):
        if not self.on:
            return
        e.wait_smem()
        if self.amp:
            if self.amp[0] == self.role:
                R = dict(zip(self.names, self.regs))
                e.I('s_sub_u32 s%d, s%d, s%d' % (T0, R[self.amp[2]], R[self.amp[1]]))
                if self.amp[3] < 0:
                    e.I('s_min_u32 s%d, s%d, %d\ns_sub_u32 s%d, %d, s%d' % (T0, T0, self.amp[4], T0, self.amp[4], T0))
                e.I('s_mul_i32 s%d, s%d, %d\ns_min_u32 s%d, s%d, 50000' % (T0, T0, abs(self.amp[3]), T0, T0))
                if len(self.amp) > 5:
                    e.I('s_and_b32 s%d, s2, %d\ns_cmp_eq_u32 s%d, %d\ns_cselect_b32 s%d, s%d, 0' % (T1, self.amp[5], T1, self.amp[6], T0, T0))
                e.label('L_amp')
                e.I('s_memrealtime s[%d:%d]' % (T1, T1 + 1))
                e.wait_smem()
                e.I('s_sub_u32 s%d, s%d, s%d\ns_cmp_lt_u32 s%d, s%d\ns_cbranch_scc1 L_amp' % (T1, T1, R['end'], T1, T0))
            return
        e.I('s_lshl_b32 s%d, s2, 3\ns_add_u32 s%d, s%d, s%d\ns_lshl_b32 s%d, s%d, 6\ns_add_u32 s%d, s%d, 0x%x' %
            (T0, T0, T0, sWAVE, T0, T0, T0, T0, STAMP_OFF))
        e.I('s_mov_b64 exec, 1')
        for k in range(len(self.names)):
            e.I('v_mov_b32 v2, s%d' % self.regs[k])
            e.I('buffer_store_dword v2, off, %s, s%d offset:%d' % (srd(SWS), T0, 4 * k))


def jitter(e, cfg, key):
    if not cfg.jitter:
        return
    lab = 'L_jit%d' % key
    e.settle()
    e.I('s_lshl_b32 s%d, s2, 3\ns_add_u32 s%d, s%d, s%d' % (sCNT, sCNT, sCNT, sWAVE))
    e.I('s_mul_i32 s%d, s%d, 0x%x\ns_lshr_b32 s%d, s%d, 28' % (sCNT, sCNT, (0x9E3779B1 * (2 * key * cfg.jitter + 1)) & 0xffffffff, sCNT, sCNT))
    e.I('s_cmp_lt_u32 s%d, 12\ns_cbranch_scc1 %s_out' % (sCNT, lab))
    e.label(lab)
    e.I('s_sleep 40\ns_add_u32 s%d, s%d, 1\ns_cmp_lt_u32 s%d, 17\ns_cbranch_scc1 %s' % (sCNT, sCNT, sCNT, lab))
    e.label(lab + '_out')


def run(items):
    for it in items:
        it()


def poll(e, label, vt, vaddr, soff, mask, between=None):
    def look(tag=None):
        e.I('s_mov_b64 exec, %s' % mask)
        e.I('buffer_load_dword v%d, v%d, %s, s%d offen sc1' % (vt, vaddr, srd(SWS), soff), tag=tag)
        e.I('s_mov_b64 exec, -1')

    def check():
        e.I('v_cmp_ne_u32 vcc, s%d, v%d' % (sNONCE, vt))
        e.I('s_and_b64 vcc, vcc, %s' % mask)
    spin(e, label, look, check, between)


def spin(e, label, look, check, between):
    look('look')
    if between:
        between()
    e.wait(vm='look')
    check()
    e.I('s_cbranch_scc1 %s' % label)
    e.label(label + '_out')
    with e.cold_block():
        e.label(label)
        e.I('s_mov_b32 s%d, 0' % sCNT)
        e.label(label + '_l')
        if SLEEP[0]:
            e.I('s_sleep %d' % SLEEP[0])
        look()
        e.I('s_add_u32 s%d, s%d, 1' % (sCNT, sCNT))
        e.I('s_cmp_gt_u32 s%d, %d' % (sCNT, SPIN_MAX))
        e.wait(vm='all')
        e.I('s_cbranch_scc1 %s_out' % label)
        check()
        e.I('s_cbranch_scc1 %s_l' % label)
        e.I('s_branch %s_out' % label)


def code_touch(e, tag):
    e.I('s_getpc_b64 s[%d:%d]' % (sMA, sMA + 1))
    e.label('L_pc' + tag)
    e.I('s_sub_u32 s%d, s%d, L_pc%s-%s\ns_subb_u32 s%d, s%d, 0' % (sMA, sMA, tag, NAME, sMA + 1, sMA + 1))
    e.I('s_and_b32 s%d, s2, 0xf8\ns_add_u32 s%d, s%d, s%d\ns_lshl_b32 s%d, s%d, 6' % (T0, T0, T0, sWAVE, T0, T0))
    e.I('s_load_dword s3, s[%d:%d], s%d' % (sMA, sMA + 1, T0))
    e.I('s_add_u32 s%d, s%d, 16384\ns_min_u32 s%d, s%d, L_end-%s' % (T0, T0, T0, T0, NAME))
    e.I('s_load_dword s3, s[%d:%d], s%d' % (sMA, sMA + 1, T0))


def rot2_calc(e, cfg, dst, b):
    e.I('s_mul_i32 s%d, s%d, %d' % (dst, sCT, b))
    for k in range(1 if cfg.map2 == 84 else 2):
        e.I('s_add_u32 s%d, s%d, s%d' % (dst, dst, sRT))
    e.I('s_and_b32 s%d, s%d, %d' % (dst, dst, cfg.rot2))


def step_start(e, cfg, cur, beg, end, shift):
    rot2_calc(e, cfg, cur, cfg.rotF)
    e.I('s_cmp_eq_u32 s%d, 3\ns_cselect_b32 s%d, 10, 11' % (sW, end))
    e.I('s_mul_i32 s%d, s%d, s%d\ns_lshr_b32 s%d, s%d, 3\ns_mul_i32 s%d, s%d, 11' % (cur, cur, end, cur, cur, beg, sW))
    e.I('s_add_u32 s%d, s%d, s%d\ns_add_u32 s%d, s%d, s%d' % (cur, cur, beg, end, end, beg))
    for r in (cur, beg, end):
        e.I('s_lshl_b32 s%d, s%d, %d' % (r, r, shift))


def step_next(e, cur, beg, end, inc, wrap=True, last=False):
    e.I('s_add_u32 s%d, s%d, %d' % (cur, cur, inc))
    if wrap:
        e.I('s_cmp_eq_u32 s%d, s%d\ns_cselect_b32 s%d, s%d, s%d' % (cur, end, cur, beg, cur))
    if last:
        e.I('s_cmp_eq_u32 s%d, 3\ns_cselect_b32 s%d, 0x%x, s%d' % (sW, cur, OOB, cur))


def wd_next(e, n, cur, beg, end):
    step_next(e, cur, beg, end, 16384, n % 2 == 0, n == 20)


def set_m0(e, base, off):
    if getattr(e, 'm0', None) != (base, off):
        e.I('s_add_u32 m0, s%d, %d' % (base, off))
        e.m0 = (base, off)


def wd_lane_offsets(e, WDV, t0, t1):
    txt = 'v_lshrrev_b32 v%d, 4, v0\nv_lshlrev_b32 v%d, 1, v%d\nv_and_b32 v%d, 7, v0\nv_xor_b32 v%d, v%d, v%d\nv_lshlrev_b32 v%d, 4, v%d\n' % (
        t0, t0, t0, t1, t0, t0, t1, t0, t0)
    txt += 'v_lshrrev_b32 v%d, 3, v0\nv_lshl_add_u32 v%d, v%d, 10, v%d\n' % (t1, t0, t1, t0)
    txt += 's_lshl_b32 s%d, s%d, 7\n' % (T0, sCT)
    txt += 'v_add_u32 v%d, s%d, v%d\nv_add_u32 v%d, 7168, v%d' % (WDV, T0, t0, WDV + 1, WDV)
    return txt


RING = [(5, n) for n in range(3)] + [(4, 2)] + [(2 + n // 3, n % 3) for n in range(6)] + [(4, n) for n in range(2)] \
    + [(n // 3, n % 3) for n in range(6)] + [(2, n) for n in range(3)] + [(3, 0)]
PREV = {18: 4, 19: 5, 20: 6, 21: 7}


class Touch:
    def __init__(self, e, cfg, role):
        self.e, self.role = e, role
        self.plan = [p for p in cfg.tplan if p[0] == role]
        it = []
        for par in range(2):
            for p in (P_CRE, P_CIM):
                it += [(p, 128 * k + 64 * par) for k in range(4)]
        for par in range(2):
            it += [(P_WD, 128 * k + 64 * par) for k in range(11)]
        self.items = it

    def setup(self):
        if not self.plan:
            return
        e = self.e
        used = {self.items[k][0] for p in self.plan for k in range(p[2], p[3])}
        e.I('s_lshl_b32 s%d, s2, 2\ns_add_u32 s%d, s%d, s%d' % (T0, T0, T0, sW))
        for p in sorted(used):
            e.I('s_mul_i32 s%d, s%d, %d' % (T1, T0, 1376 if p == P_WD else 512))
            e.I('s_add_u32 s%d, s%d, s%d\ns_addc_u32 s%d, s%d, 0' % (p, p, T1, p + 1, p + 1))

    def at(self, place):
        for p in self.plan:
            if p[1] == place:
                for k in range(p[2], p[3]):
                    self.e.I('s_load_dword s3, s[%d:%d], %d' % (self.items[k][0], self.items[k][0] + 1, self.items[k][1]))


def flag_store(e, vt, soff, imm=0):
    e.I('s_mov_b64 exec, 1')
    e.I('buffer_store_dword v%d, off, %s, s%d offset:%d sc1' % (vt, srd(SWS), soff, imm), tag='flag')
    e.I('s_mov_b64 exec, -1')


def frag_addr(e, dst, t0, t1):
    e.I('v_lshrrev_b32 v%d, 5, v0' % t0)
    e.I('v_bfe_u32 v%d, v0, 1, 3' % t1)
    e.I('v_xor_b32 v%d, v%d, v%d' % (t0, t0, t1))
    e.I('v_and_b32 v%d, 31, v0' % t1)
    e.I('v_lshlrev_b32 v%d, 7, v%d' % (t1, t1))
    e.I('v_lshl_add_u32 v%d, v%d, 4, v%d' % (dst, t0, t1))
    for s in range(1, 4):
        e.I('v_xor_b32 v%d, %d, v%d' % (dst + s, 32 * s, dst))


def frag16_addr(e, dst, t0, t1):
    e.I('v_lshrrev_b32 v%d, 4, v0' % t0)
    e.I('v_bfe_u32 v%d, v0, 1, 3' % t1)
    e.I('v_xor_b32 v%d, v%d, v%d' % (t0, t0, t1))
    e.I('v_and_b32 v%d, 15, v0' % t1)
    e.I('v_lshlrev_b32 v%d, 7, v%d' % (t1, t1))
    e.I('v_lshl_add_u32 v%d, v%d, 4, v%d' % (dst, t0, t1))
    e.I('v_xor_b32 v%d, 64, v%d' % (dst + 1, dst))


def w_tr_addr(e, d, t0, t1):
    e.I('v_lshrrev_b32 v%d, 4, v0' % t0)
    e.I('v_bfe_u32 v%d, v0, 2, 2' % t1)
    e.I('v_lshl_add_u32 v%d, v%d, 3, v%d' % (t0, t0, t1))
    e.I('v_mul_u32_u24 v%d, 192, v%d' % (t0, t0))
    e.I('v_bfe_u32 v%d, v0, 4, 1' % t1)
    e.I('v_lshl_add_u32 v%d, v%d, 5, v%d' % (t0, t1, t0))
    e.I('v_and_b32 v%d, 3, v0' % t1)
    e.I('v_lshl_add_u32 v%d, v%d, 3, v%d' % (d, t1, t0))
    e.I('v_xor_b32 v%d, 32, v%d' % (d + 1, d))
    e.I('v_add_u32 v%d, %d, v%d\nv_add_u32 v%d, %d, v%d' % (d + 2, WIN, d, d + 3, WIN, d + 1))


W_SLOT = [0, 1, 2, 3, 0, 1, 2, 3]
S_SHIFT = [0]


def s_slot(i):
    return (i + 4) % 6 if S_SHIFT[0] < 0 else (i + S_SHIFT[0]) % 4


def w_frag_read(e, dst, wa, j, s2, g, mat, fh, mm, tag):
    slot = W_SLOT[j]
    off = (slot & 1) * SLOT + mat * 12288 + (32 * s2 + 4 * mm) * 192 + g * 64
    e.I('ds_read_b64_tr_b16 %s, v%d offset:%d' % (vr(dst + 2 * mm, 2), wa + 2 * (slot >> 1) + fh, off), tag=tag)


def act_items(e, cfg, G, U, tmp, out):
    items = []
    add = lambda t: items.append(lambda t=t: e.I(t))
    for b in range(2):
        g, u, o = G + 8 * b, U + 8 * b, out + 4 * b
        if cfg.mimic:
            for src in (g, u):
                for p in range(4):
                    add('v_cvt_pk_bf16_f32 v%d, v%d, v%d' % (tmp + p, src + 2 * p, src + 2 * p + 1))
                for p in range(4):
                    add('v_lshlrev_b32 v%d, 16, v%d' % (src + 2 * p, tmp + p))
                    add('v_and_b32 v%d, 0xffff0000, v%d' % (src + 2 * p + 1, tmp + p))
        for p in range(4):
            add('v_pk_mul_f32 %s, %s, s[%d:%d]' % (vr(tmp + 2 * p, 2), vr(g + 2 * p, 2), sNL2E, sNL2E + 1))
        for p in range(8):
            add('v_exp_f32 v%d, v%d' % (tmp + p, tmp + p))
        for p in range(4):
            add('v_pk_add_f32 %s, %s, 1.0 op_sel_hi:[1,0]' % (vr(tmp + 2 * p, 2), vr(tmp + 2 * p, 2)))
        for p in range(8):
            add('v_rcp_f32 v%d, v%d' % (tmp + p, tmp + p))
        for p in range(4):
            add('v_pk_mul_f32 %s, %s, %s' % (vr(g + 2 * p, 2), vr(g + 2 * p, 2), vr(tmp + 2 * p, 2)))
        if cfg.mimic:
            for p in range(4):
                add('v_cvt_pk_bf16_f32 v%d, v%d, v%d' % (tmp + p, g + 2 * p, g + 2 * p + 1))
            for p in range(4):
                add('v_lshlrev_b32 v%d, 16, v%d' % (g + 2 * p, tmp + p))
                add('v_and_b32 v%d, 0xffff0000, v%d' % (g + 2 * p + 1, tmp + p))
        for p in range(4):
            add('v_pk_mul_f32 %s, %s, %s' % (vr(u + 2 * p, 2), vr(g + 2 * p, 2), vr(u + 2 * p, 2)))
        for p in range(4):
            add('v_cvt_pk_bf16_f32 v%d, v%d, v%d' % (o + p, u + 2 * p, u + 2 * p + 1))
    return items


def act_items_scalar(e, cfg, G, U, tmp, out):
    if cfg.mimic:
        return act_items(e, cfg, G, U, tmp, out)
    items = []
    add = lambda t: items.append(lambda t=t: e.I(t))
    for b in range(4):
        g, u, o = G + 4 * b, U + 4 * b, out + 2 * b
        for p in range(4):
            add('v_mul_f32 v%d, s%d, v%d' % (tmp + p, sNL2E, g + p))
        for p in range(4):
            add('v_exp_f32 v%d, v%d' % (tmp + p, tmp + p))
            add('v_mul_f32 v%d, v%d, v%d' % (u + p, g + p, u + p))
        for p in range(4):
            add('v_add_f32 v%d, 1.0, v%d' % (tmp + p, tmp + p))
        for p in range(4):
            add('v_rcp_f32 v%d, v%d' % (tmp + p, tmp + p))
        for p in range(4):
            add('v_mul_f32 v%d, v%d, v%d' % (u + p, tmp + p, u + p))
        for p in range(2):
            add('v_cvt_pk_bf16_f32 v%d, v%d, v%d' % (o + p, u + 2 * p, u + 2 * p + 1))
    return items


def light_scc(e):
    e.I('s_and_b32 s%d, s%d, 3\ns_cmp_eq_u32 s%d, 3\ns_cselect_b32 s%d, 14, s%d\ns_cmp_eq_u32 s%d, 14' % (T0, sCB, T0, T0, sCB, T0))


def w_lane_offsets(e, cfg, WV, t0, t1):
    if cfg.zfill:
        light_scc(e)
        e.I('s_cselect_b32 s%d, 8, 12' % sTW)
    e.I('s_and_b32 s%d, s%d, 1' % (T1, sW))
    e.I('s_mul_i32 s%d, s%d, %d\ns_lshl_b32 s%d, s%d, 6\ns_add_u32 s%d, s%d, s%d' % (T0, T1, 32 * 2752, T1, sSG0, T0, T0, T1))
    for q in range(3):
        e.I('v_add_u32 v%d, %d, v0\nv_mul_u32_u24 v%d, 171, v%d\nv_lshrrev_b32 v%d, 11, v%d' % (t1, 64 * q, t0, t1, t0, t0))
        if cfg.zfill:
            e.I('v_mul_u32_u24 v%d, 12, v%d\nv_sub_u32 v%d, v%d, v%d\nv_cmp_gt_u32 vcc, s%d, v%d' % (WV + q, t0, t1, t1, WV + q, sTW, t1))
        e.I('v_lshrrev_b32 v%d, 3, v%d\nv_lshlrev_b32 v%d, 1, v%d\nv_xor_b32 v%d, v0, v%d' % (t1, t0, t1, t1, t1, t1))
        e.I('v_mul_u32_u24 v%d, %d, v%d' % (t0, 2752 - 192, t0))
        e.I('v_lshl_add_u32 v%d, v%d, 4, v%d' % (t0, t1, t0))
        e.I('v_add_u32 v%d, s%d, v%d' % (WV + q, T0, t0))
        if cfg.zfill:
            e.I('v_mov_b32 v%d, 0x%x\nv_cndmask_b32 v%d, v%d, v%d, vcc' % (t0, OOB, WV + q, t0, WV + q))
    e.I('s_mul_i32 s%d, s%d, 6144' % (sMW, sW))


def dma_W(e, WV, SWR, j):
    slot = W_SLOT[j] * SLOT
    its = []
    for grp in range(2):
        for q in range(3):
            def f(grp=grp, q=q):
                set_m0(e, sMW, slot + grp * 3072)
                if q == 0 and grp == 0:
                    e.I('s_add_u32 s%d, s%d, %d\ns_and_b32 s%d, s%d, 7\ns_mul_i32 s%d, s%d, %d' %
                        (sTW, sK0, j, sTW, sTW, sTW, sTW, 64 * 2752))
                if q == 0 and grp == 1:
                    e.I('s_add_u32 s%d, s%d, %d' % (sTW, sTW, 16 * 2752))
                e.I('buffer_load_dwordx4 v%d, %s, s%d offen offset:%d %slds' % ((WV + q, srd(SWR), sTW, 1024 * q) + (ntf('w', j),)), tag=('st', 8 + j))
            its.append(f)
    return its


C_LAND, C_CONS, C_Q, C_DONEA = 0, 32, 64, 68


def cnt_add(e, va, vone, off):
    e.I('s_mov_b64 exec, 1')
    e.I('ds_add_u32 v%d, v%d offset:%d' % (va, vone, off), tag='sig')
    e.I('s_mov_b64 exec, -1')


def cnt_look(e, va, vt, off, tag):
    e.I('ds_read_b32 v%d, v%d offset:%d' % (vt, va, off), tag=tag)


def cnt_check(e, label, va, vt, off, tag):
    e.wait(lg=tag)
    e.I('v_cmp_ne_u32 vcc, 4, v%d' % vt)
    e.I('s_cbranch_vccnz %s' % label)
    e.label(label + '_out')
    with e.cold_block():
        e.label(label)
        e.I('s_mov_b32 s%d, 0' % sCNT)
        e.label(label + '_l')
        if SLEEP[1]:
            e.I('s_sleep %d' % SLEEP[1])
        cnt_look(e, va, vt, off, None)
        e.I('s_add_u32 s%d, s%d, 1' % (sCNT, sCNT))
        e.I('s_cmp_gt_u32 s%d, %d' % (sCNT, 20 * SPIN_MAX))
        e.wait(lg='all')
        e.I('s_cbranch_scc1 %s_out' % label)
        e.I('v_cmp_ne_u32 vcc, 4, v%d' % vt)
        e.I('s_cbranch_vccnz %s_l' % label)
        e.I('s_branch %s_out' % label)


def cnt_spin(e, label, va, vt, off):
    cnt_look(e, va, vt, off, 'look')
    cnt_check(e, label, va, vt, off, 'look')


def act_offsets(e, k, s_data, s_flag, valid_scc=False):
    e.I('s_lshl_b32 s%d, s%d, 2\ns_add_u32 s%d, s%d, s%d' % (T0, sRB, T0, T0, sW))
    e.I('s_mul_i32 s%d, s%d, 43\ns_add_u32 s%d, s%d, s%d\ns_add_u32 s%d, s%d, %d\ns_lshl_b32 s%d, s%d, 11' %
        (T1, T0, T1, T1, sSG0, T1, T1, k, s_data, T1))
    e.I('s_lshr_b32 s%d, s%d, 1\ns_mul_i32 s%d, s%d, 44\ns_add_u32 s%d, s%d, s%d\ns_add_u32 s%d, s%d, %d' %
        (T1, T0, T1, T1, T1, T1, sSG0, T1, T1, k))
    e.I('s_lshl_b32 s%d, s%d, 1\ns_and_b32 s%d, s%d, 1\ns_add_u32 s%d, s%d, s%d\ns_mul_i32 s%d, s%d, %d\ns_add_u32 s%d, s%d, 0x%x' %
        (T1, T1, T0, T0, T1, T1, T0, T1, T1, FS, s_flag, T1, AF_OFF))


def part_write_addr(e, dst, t0, t1, piece_stride, wave_stride, base):
    e.I('v_lshrrev_b32 v%d, 4, v0' % t0)
    e.I('v_and_b32 v%d, 7, v0' % t1)
    e.I('v_xor_b32 v%d, v%d, v%d' % (t0, t0, t1))
    e.I('v_lshlrev_b32 v%d, 4, v%d' % (dst, t0))
    e.I('v_bfe_u32 v%d, v0, 3, 1' % t0)
    e.I('v_and_b32 v%d, 3, v0' % t1)
    e.I('v_lshl_add_u32 v%d, v%d, 2, v%d' % (t0, t0, t1))
    e.I('v_lshl_add_u32 v%d, v%d, 8, v%d' % (dst, t0, dst))
    e.I('v_bfe_u32 v%d, v0, 2, 1' % t0)
    e.I('v_mul_u32_u24 v%d, %d, v%d' % (t0, piece_stride, t0))
    e.I('s_mul_i32 s%d, s%d, %d\ns_add_u32 s%d, s%d, %d' % (T0, sW, wave_stride, T0, T0, base))
    e.I('v_add3_u32 v%d, v%d, v%d, s%d' % (dst, dst, t0, T0))
    e.I('v_xor_b32 v%d, 64, v%d' % (dst + 1, dst))


def acc2(t4, dq):
    return 64 + 16 * t4 + 4 * dq


def part_write(e, addr, piece_stride, tt, addr1=None):
    its = []
    for a in range(2):
        for dq in range(4):
            ad_, off = (addr + (dq & 1), (dq >> 1) * 128) if addr1 is None or dq < 2 else (addr1 + (dq & 1), 0)
            its.append(lambda ad_=ad_, off=off, dq=dq, a=a:
                       e.I('ds_write_b128 v%d, %s offset:%d' % (ad_, vr(acc2(2 * tt + a, dq), 4), tt * 2 * piece_stride + a * 2048 + off), tag=('pw', tt)))
    return its


def tile_ids(e, cfg, redo):
    if redo:
        e.I('s_and_b32 s%d, s2, 7\ns_lshr_b32 s%d, s2, 3' % (T0, T1))
        e.I('s_and_b32 s%d, s%d, 7\ns_lshr_b32 s%d, s%d, 3\ns_lshr_b32 s%d, s%d, 1' % (T2, T1, T3, T1, T4, T0))
    e.I('s_mul_i32 s%d, s%d, 11\ns_mul_i32 s%d, s%d, 3\ns_add_u32 s%d, s%d, s%d' % (sSG0, T4, T5, T3, sSG0, sSG0, T5))
    e.I('s_cmp_eq_u32 s%d, 15\ns_subb_u32 s%d, s%d, 0' % (sCB, sSG0, sSG0))
    if cfg.map2 == 84:
        if cfg.xloc:
            e.I('s_and_b32 s%d, s%d, 8\ns_add_u32 s%d, s%d, s%d\ns_and_b32 s%d, s%d, 2\ns_lshl_b32 s%d, s%d, 2\ns_add_u32 s%d, s%d, s%d' %
                (sRT, sRB, sRT, sRT, sRB, T5, T0, T5, T5, sRT, sRT, T5))
            e.I('s_and_b32 s%d, s%d, 4\ns_add_u32 s%d, s%d, s%d' % (sCT, T0, sCT, sCT, T3))
        else:
            e.I('s_lshl_b32 s%d, s%d, 3\ns_add_u32 s%d, s%d, s%d' % (sRT, T4, sRT, sRT, T2))
            e.I('s_and_b32 s%d, s%d, 1\ns_lshl_b32 s%d, s%d, 2\ns_add_u32 s%d, s%d, s%d' % (sCT, T0, sCT, sCT, sCT, sCT, T3))
    else:
        e.I('s_lshl_b32 s%d, s%d, 2\ns_and_b32 s%d, s%d, 3\ns_add_u32 s%d, s%d, s%d\ns_lshr_b32 s%d, s%d, 2' %
            (sRT, T0, T5, T1, sRT, sRT, T5, sCT, T1))


KARG2 = 's_load_dwordx16 s[20:35], s[0:1], 64\ns_load_dwordx2 s[36:37], s[0:1], 128'


def gen_entry(e, cfg, st):
    e.I('s_load_dwordx16 s[4:19], s[0:1], 0')
    e.I('s_cmp_ge_u32 s2, 256\ns_cbranch_scc1 L_end')
    e.I(KARG2)
    st(e, 'start')
    if 'v' in cfg.prewarm:
        n = cfg.pwn
        e.I('s_getpc_b64 s[%d:%d]' % (SCODE, SCODE + 1))
        e.label('L_pc')
        e.I('s_mov_b32 s%d, L_end-L_pc\ns_mov_b32 s%d, 0x20000' % (SCODE + 2, SCODE + 3))
        e.I('s_lshl_b32 s%d, s2, %d\ns_and_b32 s%d, s%d, 0x%x' % (T0, 7 + n.bit_length() - 1, T0, T0, 0x7fff & ~(1024 * n - 1)))
        e.I('v_lshlrev_b32 v1, %d, v0' % (1 + n.bit_length() - 1))
        m = sum(1 << (k * 64 // n) for k in range(n))
        e.I('s_mov_b32 exec_lo, 0x%x\ns_mov_b32 exec_hi, 0x%x' % (m & 0xffffffff, m >> 32))
        e.I('buffer_load_dword v63, v1, %s, s%d offen' % (srd(SCODE), T0), tag='pw')
        e.I('s_mov_b64 exec, -1')
    e.I('v_lshrrev_b32 v1, 6, v0\nv_and_b32 v0, 63, v0')
    e.I('v_readfirstlane_b32 s%d, v1' % sWAVE)
    if cfg.slim and cfg.rot1 == (2, 4, 2, 1):
        e.I('s_and_b32 s%d, s2, 7\ns_bfe_u32 s%d, s2, 0x30003\ns_lshr_b32 s%d, s2, 6' % (T0, T2, T3))
        e.I('s_lshl1_add_u32 s%d, s%d, s%d\ns_lshl2_add_u32 s%d, s%d, s%d\ns_and_b32 s%d, s%d, 7' % (sK0, T2, T0, sK0, T3, sK0, sK0, sK0))
        e.I('s_and_b32 s%d, s2, 1\ns_lshl3_add_u32 s%d, s%d, s%d' % (sRB, sRB, sRB, T2))
        e.I('s_lshr_b32 s%d, s%d, 1\ns_lshl2_add_u32 s%d, s%d, s%d' % (T4, T0, sCB, T4, T3))
        assert cfg.map2 == 84
    else:
        e.I('s_and_b32 s%d, s2, 7\ns_lshr_b32 s%d, s2, 3' % (T0, T1))
        e.I('s_and_b32 s%d, s%d, 7\ns_lshr_b32 s%d, s%d, 3' % (T2, T1, T3, T1))
        e.I('s_and_b32 s%d, s%d, 1\ns_lshl_b32 s%d, s%d, 3\ns_add_u32 s%d, s%d, s%d' % (sRB, T0, sRB, sRB, sRB, sRB, T2))
        e.I('s_lshr_b32 s%d, s%d, 1' % (T4, T0))
        e.I('s_lshl_b32 s%d, s%d, 2\ns_add_u32 s%d, s%d, s%d' % (sCB, T4, sCB, sCB, T3))
        e.I('s_mul_i32 s%d, s%d, %d' % (sK0, T2, cfg.rot1[0]))
        for src, mul in zip((T3, T4, None), cfg.rot1[1:]):
            if mul:
                if src is None:
                    e.I('s_and_b32 s%d, s%d, 1' % (T5, T0))
                e.I('s_mul_i32 s%d, s%d, %d\ns_add_u32 s%d, s%d, s%d' % (T5, T5 if src is None else src, mul, sK0, sK0, T5))
        e.I('s_and_b32 s%d, s%d, 7' % (sK0, sK0))
    if not cfg.slim:
        tile_ids(e, cfg, False)
    e.I('s_and_b32 s%d, s%d, 3' % (sW, sWAVE))
    e.I('s_cmp_lt_u32 s%d, 4\ns_cbranch_scc1 L_A' % sWAVE)


def gen_B(e, cfg, st):
    NPRE = cfg.prog.count('D')
    WA = 2
    EP = 42
    XV, BV, WV, XA = 32, 36, 38, 44
    if cfg.prioS:
        e.I('s_setprio %d' % cfg.prioS)
    e.I('v_lshrrev_b32 v8, 3, v0')
    e.I('v_and_b32 v9, 7, v0')
    e.I('v_lshrrev_b32 v10, 4, v0')
    e.I('v_xor_b32 v10, v9, v10\nv_lshlrev_b32 v10, 4, v10')
    e.I('v_lshrrev_b32 v11, 5, v0\nv_and_b32 v12, 3, v8\nv_lshl_add_u32 v11, v11, 4, v12')
    e.I('s_lshl2_add_u32 s%d, s%d, s%d\ns_lshl_b32 s%d, s%d, 15' % (T0, sRB, sW, T0, T0))
    e.I('v_lshl_add_u32 v11, v11, 10, s%d' % T0)
    e.I('v_add_u32 v%d, v11, v10' % XV)
    e.I('v_xor_b32 v13, 64, v%d' % XV)
    e.I('v_add_u32 v%d, 3072, v13\nv_add_u32 v%d, 6144, v%d\nv_add_u32 v%d, 9216, v13' % (XV + 1, XV + 2, XV, XV + 3))
    def b_setup():
        e.I('s_and_b32 s%d, s%d, 1\ns_lshl1_add_u32 s%d, s%d, s%d\ns_lshl_b32 s%d, s%d, 14' % (T1, sW, T0, sCB, T1, T0, T0))
        e.I('v_lshrrev_b32 v11, 5, v0\nv_lshl_add_u32 v11, v11, 3, v12')
        e.I('v_lshl_add_u32 v11, v11, 10, s%d' % T0)
        e.I('v_add_u32 v%d, v11, v10' % BV)
        e.I('v_xor_b32 v13, 64, v%d\nv_add_u32 v%d, 3072, v13' % (BV, BV + 1))
        e.I('s_lshl_b32 s%d, s%d, 11\ns_add_u32 s%d, s%d, 16384' % (sMBm, sW, sMBm, sMBm))
        e.I('s_mov_b32 s%d, 0x%x\ns_mov_b32 s%d, 0x20000' % (SBM + 2, 512 * 1024, SBM + 3))
    if not cfg.blate:
        b_setup()
    e.I('s_lshl_b32 s%d, s%d, 12' % (sMX, sW))
    e.I('s_lshl_b32 s%d, s%d, 7' % (T6, sK0))
    e.I('s_mov_b32 s%d, 0x%x\ns_mov_b32 s%d, 0x20000' % (SX + 2, 2048 * 1024, SX + 3))
    set_m0(e, sMX, s_slot(0) * SLOT)
    e.I('s_mov_b32 s%d, s%d' % (sTS, T6))
    st(e, '_prek')
    e.wait_smem()
    st(e, 'karg')
    jitter(e, cfg, 1)
    e.I('s_mov_b64 s[%d:%d], s[%d:%d]' % (SX, SX + 1, P_X, P_X + 1))

    def dma_S(i):
        slot = s_slot(i) * SLOT
        its = []
        for q in range(4):
            def f(q=q):
                if q == 0 and i:
                    set_m0(e, sMX, slot)
                    e.I('s_add_u32 s%d, s%d, %d\ns_and_b32 s%d, s%d, 1023' % (sTS, T6, i * 128, sTS, sTS))
                e.I('buffer_load_dwordx4 v%d, %s, s%d offen offset:%d %slds' % ((XV + q, srd(SX), sTS, 1024 * q) + (ntf('x', i),)), tag=('st', i))
            its.append(f)
        for q in range(2):
            def f(q=q):
                if q == 0 and i == 0 and cfg.blate:
                    b_setup()
                if q == 0:
                    set_m0(e, sMBm, slot)
                if q == 0 and i == 0:
                    e.I('s_cmp_ge_u32 s%d, 2\ns_cselect_b64 s[%d:%d], s[%d:%d], s[%d:%d]' % (sW, SBM, SBM + 1, P_BIM, P_BIM + 1, P_BRE, P_BRE + 1))
                e.I('buffer_load_dwordx4 v%d, %s, s%d offen offset:%d %slds' % ((BV + q, srd(SBM), sTS, 1024 * q) + (ntf('b', i),)), tag=('st', i))
            its.append(f)
        return its

    run(dma_S(0))
    st(e, 'dma0')
    s1 = dma_S(1)
    run(s1[:cfg.s1a])
    if 's' in cfg.prewarm:
        code_touch(e, 'B')
    frag16_addr(e, XA, 11, 12)
    for s in range(2):
        e.I('v_add_u32 v%d, s%d, v%d' % (XA + s, sMX, XA + s))
        e.I('v_add_u32 v%d, %d, v%d' % (XA + 2 + s, WIN, XA + s))
        if cfg.lag:
            e.I('v_add_u32 v%d, %d, v%d' % (XA + 4 + s, 2 * WIN, XA + s))
    e.I('v_lshlrev_b32 v11, 2, v0\nv_add_u32 v11, %d, v11\nv_mov_b32 v12, 0' % L_FL)
    e.I('ds_write_b32 v11, v12', tag='init')

    def setup_a():
        if cfg.slim:
            tile_ids(e, cfg, True)
        mk_srd(e, SWS, P_WS, WS_SIZE)
        mk_srd(e, SWD, P_WD, 1376 * 1024)
        e.I('s_cmp_ge_u32 s%d, 2' % sW)
        mk_srd_sel(e, SW, P_WU, P_WG, 512 * 2752)
        w_tr_addr(e, WA, 13, 14)
        e.I('v_lshlrev_b32 v1, 4, v0')

    def setup_b():
        w_lane_offsets(e, cfg, WV, 13, 14)
    if not cfg.defer:
        setup_a()
        setup_b()

    sDC, sDB, sDE, sAC, sAB, sAE = 86, 87, 88, 89, 90, 91
    sD0, sF0, sD2, sF2 = T2, T3, T4, T5
    st(e, '_pro')
    sP0 = 92
    if isinstance(cfg.w0pos, tuple):
        tab = sum(p << (4 * r) for r, p in enumerate(cfg.w0pos))
        e.I('s_and_b32 s%d, s%d, 7\ns_lshl_b32 s%d, s%d, 2\ns_lshr_b32 s%d, 0x%x, s%d\ns_and_b32 s%d, s%d, 15' %
            (T0, sRB, T0, T0, sP0, tab, T0, sP0, sP0))

    def w0_hook(p):
        if cfg.w0pos == p:
            run(dma_W(e, WV, SW, 0))
        elif isinstance(cfg.w0pos, tuple) and p in cfg.w0pos:
            e.I('s_cmp_eq_u32 s%d, %d\ns_cbranch_scc1 L_w0_%d' % (sP0, p, p))
            e.label('L_w0_%d_out' % p)
            with e.cold_block():
                e.label('L_w0_%d' % p)
                run(dma_W(e, WV, SW, 0))
                e.I('s_branch L_w0_%d_out' % p)
            e.m0 = None
    run(s1[cfg.s1a:])
    st(e, '_dma1')
    w0_hook(1)
    e.wait(vm=('st', 0))
    st(e, '_sa0')
    e.I('s_barrier')
    st(e, 'b0')
    for i in range(8):
        if i == 1:
            e.I('s_mov_b32 s%d, 0x%x' % (T0, EPOCH_OFF))
            e.I('buffer_load_dword v%d, off, %s, s%d sc1' % (EP, srd(SWS), T0), tag='ep')
        if i < 6:
            run(dma_S(i + 2))
            w0_hook(i + 2)
        elif cfg.w0pos is None:
            run(dma_W(e, WV, SW, i - 6))
        elif i == 6 or 'W2' not in cfg.prog:
            run(dma_W(e, WV, SW, i - 5))
        for s in range(4):
            slot = s_slot(i)
            e.I('ds_read_b128 %s, v%d offset:%d' % (vr(128 + 4 * (4 * i + s), 4), XA + 2 * (slot >> 1) + (s >> 1), (slot & 1) * SLOT + (s & 1) * 2048), tag='x')
        if cfg.defer and i == 0:
            setup_a()
        if cfg.defer and i == 1:
            setup_b()
        if i == 4:
            e.wait(vm='ep')
            e.I('v_readfirstlane_b32 s%d, v%d' % (sNONCE, EP))
            e.I('s_add_u32 s%d, s%d, 0x%x\ns_or_b32 s%d, s%d, 1' % (sNONCE, sNONCE, PHI, sNONCE, sNONCE))
            e.I('s_mov_b32 s%d, 0x%x\ns_mov_b32 s%d, 0x%x' % (sNL2E, NLOG2E, sNL2E + 1, NLOG2E))
        if i == 2:
            step_start(e, cfg, sAC, sAB, sAE, 11)
        if i == 3:
            for k in range(3):
                e.I('s_lshl_b32 s%d, s%d, 4' % (sDC + k, sAC + k))
            for n in range(1, NPRE):
                wd_next(e, n, sDC, sDB, sDE)
        if i == 5:
            act_offsets(e, 0, sD0, sF0)
        if i == 6:
            e.I('s_add_u32 s%d, s%d, 4096\ns_add_u32 s%d, s%d, %d' % (sD2, sD0, sF2, sF0, 4 * FS))
            light_scc(e)
            e.I('s_cselect_b32 s%d, 0x%x, s%d\ns_cselect_b32 s%d, 0x%x, s%d' % (sD2, OOB, sD2, sF2, OOB, sF2))
            e.I('v_mov_b32 v7, %d\nv_mov_b32 v6, 1' % L_FL)
        if i < 7:
            e.wait(vm=('st', i + 1), lg='all')
            st(e, '_sa%d' % (i + 1))
            e.I('s_barrier')
            st(e, '_sd%d' % (i + 1))
            if i == 0:
                st(e, 'b1')
    NT = cfg.NT
    ops = []
    for j in range(8 - NT):
        for s in range(2):
            for g in range(3):
                for mf in range(4):
                    ops.append((j, s, g, mf))
    tail0 = len(ops)
    for g in range(3):
        for j in range(8 - NT, 8):
            for s in range(2):
                for mf in range(4):
                    ops.append((j, s, g, mf))
    NB, LA = 6, cfg.LA
    first = {j: min(q for q in range(len(ops)) if ops[q][0] == j) for j in range(8)}
    last = {j: max(q for q in range(len(ops)) if ops[q][0] == j) for j in range(8)}

    def rd(q, half):
        if q >= len(ops):
            return
        j, s, g, mf = ops[q]
        if q == first[j] and j <= cfg.JL and half == 0:
            e.wait(vm=('st', 8 + j), lg='all' if j in cfg.drain else 'x')
            st(e, '_a%d' % j)
            e.I('s_barrier')
            st(e, '_d%d' % j)
            if j in (0, 4, cfg.JL):
                st(e, 'b%d' % (8 + j))
            if j == 0 and cfg.prioB != cfg.prioS:
                e.I('s_setprio %d' % cfg.prioB)
        w_frag_read(e, 8 + 4 * (q % NB), WA, j, s, g, mf >> 1, mf & 1, half, ('wf', q))
        if q == last[7] and half == 1:
            cnt_add(e, 7, 6, C_CONS + 28)

    def mm(q, a):
        j, s, g, mf = ops[q]
        if a == 0 and q % 2 == 0:
            e.wait(lg=('wf', q + 1))
        t = a ^ (q & 1) if cfg.snake else a
        mfma16(e, 32 + 32 * g + 16 * (mf >> 1) + 8 * t + 4 * (mf & 1), 8 + 4 * (q % NB), 128 + 16 * j + 8 * s + 4 * t, j == 0 and s == 0)
        rd(q + LA, a)

    def act_store(k, ms=(0, 1)):
        for m in ms:
            e.I('buffer_store_dwordx4 %s, v1, %s, s%d offen offset:%d sc1' %
                (vr(136 + 8 * k + 4 * m, 4), srd(SWS), sD2 if k == 2 else sD0, 1024 * m + (2048 if k == 1 else 0)), tag=('as', k))

    def with_stores(its, k):
        if not cfg.asplit:
            return its + [lambda: act_store(k)]
        h = len(its) // 2
        return its[:h] + [lambda: act_store(k, (0,))] + its[h:] + [lambda: act_store(k, (1,))]

    def act_flag(k):
        e.wait(vm=('as', k))
        flag_store(e, EP, sF2 if k == 2 else sF0, 2 * FS if k == 1 else 0)

    for q in range(LA):
        rd(q, 0)
        rd(q, 1)
    per = 8 * NT
    for q in range(tail0 + per):
        mm(q, 0)
        mm(q, 1)
    if cfg.prioT:
        e.I('s_setprio %d' % cfg.prioT)
    if NT:
        for g in (1, 2):
            main = [lambda q=q, a=a: mm(q, a) for q in range(tail0 + g * per, tail0 + (g + 1) * per) for a in range(2)]
            fill = with_stores(act_items_scalar(e, cfg, 32 * g, 32 * g + 16, 128, 136 + 8 * (g - 1)), g - 1)
            run(main[:3] + weave(main[3:], fill))
        st(e, 'f1end')
        run(with_stores(act_items(e, cfg, 96, 112, 128, 152), 2))
    else:
        st(e, 'f1end')
        for g in range(3):
            run(with_stores(act_items(e, cfg, 32 + 32 * g, 48 + 32 * g, 128, 136 + 8 * g), g))
    if cfg.prioD[0] != (cfg.prioT or cfg.prioB):
        e.I('s_setprio %d' % cfg.prioD[0])
    st(e, 'actst')
    jitter(e, cfg, 2)
    DA, AV, PW, WDV, EP = 2, 14, 16, 18, 23
    e.I('v_mov_b32 v%d, s%d' % (EP, sNONCE))
    e.I(wd_lane_offsets(e, WDV, 20, 21))
    e.I('v_mov_b32 v22, %d' % L_FL)
    cnt_spin(e, 'L_spinB', 22, 24, C_CONS + 28)
    st(e, 'ldsfree')

    def dma_D(n):
        sl, pos = RING[n]
        if n in PREV:
            e.wait(lg=('wr', PREV[n]))
        set_m0(e, sMW, sl * SLOT + pos * 2048)
        if n:
            wd_next(e, n, sDC, sDB, sDE)
        for q in range(2):
            e.I('buffer_load_dwordx4 v%d, %s, s%d offen offset:%d %slds' % ((WDV + q, srd(SWD), sDC, 1024 * q) + (ntf('d', n),)), tag=('wd', n))

    def wd_reg(n2):
        return 128 + 16 * n2 if n2 < 5 else 32 + 16 * (n2 - 5) if n2 < 7 else 128 + 16 * (n2 - 7)

    def wd_read(n, dqs=range(4)):
        sl, pos = RING[n]
        e.wait(vm=('wd', n))
        for dq in dqs:
            e.I('ds_read_b64_tr_b16 %s, v%d offset:%d' % (vr(wd_reg(n >> 1) + 4 * dq + 2 * (n & 1), 2), DA + 4 * (sl >> 1) + dq,
                                                         (sl & 1) * SLOT + pos * 2048), tag=('wr', n))

    def setup2():
        e.I('v_lshrrev_b32 v20, 2, v0\nv_lshlrev_b32 v20, 7, v20\nv_bfe_u32 v21, v0, 3, 2\nv_lshl_add_u32 v20, v21, 5, v20')
        e.I('v_and_b32 v21, 3, v0\nv_lshl_add_u32 v20, v21, 3, v20\nv_add_u32 v%d, s%d, v20' % (DA, sMW))
        for dq in range(1, 4):
            e.I('v_xor_b32 v%d, %d, v%d' % (DA + dq, 32 * dq, DA))
        for k in (1, 2):
            for dq in range(4):
                e.I('v_add_u32 v%d, %d, v%d' % (DA + 4 * k + dq, k * WIN, DA + dq))
        e.I('s_mul_i32 s%d, s%d, %d' % (T0, sRT, 2 * 88064))
        e.I('v_add_u32 v%d, s%d, v1\nv_add_u32 v%d, 88064, v%d' % (AV, T0, AV + 1, AV))
        e.I('s_mul_i32 s%d, s%d, 44\ns_mul_i32 s%d, s%d, 11\ns_add_u32 s%d, s%d, s%d\ns_mul_i32 s%d, s%d, %d\ns_add_u32 s%d, s%d, 0x%x' %
            (T0, sRT, T1, sW, T0, T0, T1, T0, T0, 2 * FS, T0, T0, AF_OFF))
        e.I('v_mul_u32_u24 v20, %d, v0' % FS)
        e.I('s_mov_b32 s%d, 0x3fffff\ns_cmp_eq_u32 s%d, 3\ns_cselect_b32 s%d, 0xfffff, s%d\ns_mov_b32 s%d, 0' % (sMA, sW, sMA, sMA, sMA + 1))

    for n in range(NPRE, 11):
        for k in range(3):
            if cfg.flagpos[k] + NPRE == n:
                if k == 2:
                    setup2()
                act_flag(k)
                if k == 2:
                    st(e, 'flagged')
        if n < 10:
            dma_D(n)
    st(e, '_d9')
    cnt_spin(e, 'L_spinB2', 22, 24, C_DONEA)
    if cfg.prioD[1] != cfg.prioD[0]:
        e.I('s_setprio %d' % cfg.prioD[1])
    st(e, '_da')
    jitter(e, cfg, 3)
    pulled = [0]

    def d_step(n):
        dma_D(n)
        while pulled[0] < min(14, 3 * (n - 9), n - 3):
            wd_read(pulled[0])
            pulled[0] += 1
        if n == 14:
            e.wait(lg=('wr', 9))
            set_m0(e, sMW, L_P2)
            e.I('s_mov_b64 exec, 1')
            e.I('buffer_load_dword off, %s, s%d lds' % (srd(SWD), SWD + 2), tag='init')
            e.I('s_mov_b64 exec, -1')
        if n == -cfg.posXB:
            bar_X()

    def bar_X():
        assert pulled[0] >= 12
        e.wait(vm='init', lg=('wr', 11))
        st(e, '_aX')
        e.I('s_barrier')

    for n in range(10, cfg.alook):
        d_step(n)
    st(e, 'wdiss')
    nd = cfg.alook + cfg.abet
    poll(e, 'L_pollA', 21, 20, T0, 's[%d:%d]' % (sMA, sMA + 1), lambda: [d_step(n) for n in range(cfg.alook, nd)])
    st(e, 'actrdy')
    jitter(e, cfg, 4)
    if cfg.prioF2n < 0:
        e.I('s_setprio %d' % cfg.prioF2)
    elif cfg.prioD[1]:
        e.I('s_setprio 0')

    TL = cfg.TL
    sSV = 92
    NM = 11 - TL

    order = [(n2, t4) for n2 in range(NM) for t4 in range(4)] + [(n2, t4) for t4 in range(4) for n2 in range(NM, 11)]

    def a_reg(n2, t4):
        return 208 + 4 * (order.index((n2, t4)) % 12)

    pend = []
    rq = []

    def flush(n=99):
        for t in pend[:n]:
            e.I(t)
        del pend[:n]

    def a_load(n2, t4):
        if t4 == 0:
            flush()
        so = sAC if n2 < NM else sSV + n2 - NM
        e.I('buffer_load_dwordx4 %s, v%d, %s, s%d offen offset:%d sc1' % (vr(a_reg(n2, t4), 4), AV + (t4 >> 1), srd(SWS), so, 1024 * (t4 & 1)),
            tag=('a', n2, t4))
        if n2 < 10 and t4 == (3 if n2 < NM else 0):
            dst = sAC if n2 + 1 < NM else sSV + n2 + 1 - NM
            pend.append('s_add_u32 s%d, s%d, 2048' % (dst, so))
            pend.append('s_cmp_eq_u32 s%d, s%d\ns_cselect_b32 s%d, s%d, s%d' % (dst, sAE, dst, sAB, dst))
            if n2 == 9:
                pend.append('s_cmp_eq_u32 s%d, 3\ns_cselect_b32 s%d, 0x%x, s%d' % (sW, dst, OOB, dst))

    lq = []
    for k, t in enumerate(order):
        lq.append(('a', k))
        if k & 1 and nd < 22:
            lq.append(('d', nd))
            nd += 1
    dn = [cfg.alook + cfg.abet - 1]
    nis = [0]

    def issue(k, busy):
        while lq:
            t = lq[0]
            tag = ('a',) + order[k]
            nv = min(cfg.NV, cfg.NV0[0] + max(0, k - cfg.NV0[1]))
            if nis[0] > k and (len(e.vm) - 1 - e.vm.index(tag) >= nv - 1 if tag in e.vm else len(e.vm) >= nv):
                return
            if t[0] == 'a':
                if t[1] >= busy + 12:
                    return
                a_load(*order[t[1]])
                nis[0] = t[1] + 1
            else:
                d_step(t[1])
                dn[0] = t[1]
            lq.pop(0)

    wq = []
    zq = [list(g) for g in cfg.zg]
    since = [0]

    def w_pop():
        t = wq.pop(0)
        if t is not None:
            t4, i = t
            assert not rq
            hi = 32768 if t4 == 3 else 0
            set_m0(e, sMW, hi)
            e.I('ds_write_addtid_b32 v%d offset:%d' % (acc2(t4, 0) + i, t4 * SLOT - hi + 256 * i), tag=('pw', t4))
            if i == 15 and t4 == zq[0][-1]:
                since[0] = cfg.zlag + 1
        if since[0]:
            since[0] -= 1
            if since[0] == 0:
                z_bar()

    def z_bar():
        e.wait(lg=('pw', zq.pop(0)[-1]))
        e.I('s_barrier')

    def mm2(k):
        n2, t4 = order[k]
        if k == 0:
            issue(k, k)
        while rq and rq[0][0] >> 1 <= (order[k + 2][0] if k + 2 < 4 * NM + TL else 99):
            t = rq.pop(0)
            wd_read(t[0], [t[1]])
        e.wait(vm=('a', n2, t4), lg=('wr', 2 * n2 + 1))
        for dq in range(4):
            d = 3 - dq if cfg.snake and n2 < NM and t4 & 1 else dq
            mfma16(e, acc2(t4, d), a_reg(n2, t4), wd_reg(n2) + 4 * d, n2 == 0)
            if dq == 0 and lq:
                issue(k + 1, k)
            elif pend and dq < 3:
                flush(1)
            elif rq and dq < 3:
                t = rq.pop(0)
                wd_read(t[0], [t[1]])
            elif wq:
                w_pop()
        if n2 == 10:
            if t4 == 0:
                wq.extend([None, None])
            wq.extend((t4, i) for i in range(16))

    for n2 in range(NM):
        st(e, '_n%d' % n2)
        if n2 == cfg.prioF2n:
            e.I('s_setprio %d' % cfg.prioF2)
        while pulled[0] <= min(2 * n2 + 5, 13):
            assert dn[0] >= pulled[0]
            wd_read(pulled[0])
            pulled[0] += 1
        if n2 == cfg.posXB:
            bar_X()
        for t4 in range(4):
            mm2(4 * n2 + t4)
        if cfg.pull0 <= n2 < cfg.pull0 + 4:
            m2 = n2 - cfg.pull0 + 7
            assert dn[0] >= 2 * m2 + 1
            rq.extend((2 * m2 + hf, dq) for hf in range(2) for dq in range(4))
    assert cfg.pull0 + 4 <= NM
    for k in range(4 * NM, 44):
        mm2(k)
    if cfg.prioF2:
        e.I('s_setprio 0')
    st(e, 'f2end')
    jitter(e, cfg, 5)
    while wq:
        w_pop()
    while zq:
        z_bar()
    st(e, 'end')
    st.flush(e)
    e.I('s_endpgm')


def gen_A(e, cfg, st):
    LR, LI, L16, L128, L256, L16S, KAP, WV = 48, 49, 50, 52, 54, 56, 58, 60
    PP = 32
    SIDX = 3
    RE, IM = 64, 80
    XA, BA = 192, 204
    CV, CA, CA4, WDV = 96, 100, 104, 108
    EV0, EV1, EOOB, ERD, ECNT, EEXP, ONE, FLA, XW, XR, P16 = range(110, 121)
    SEL = 216
    RING0 = 144
    sHD, sHF, sES, sEL, sROT, sDTX = 86, 87, 90, 91, 92, 80
    sDC, sDB, sDE = 93, 94, 95
    if cfg.slim:
        tile_ids(e, cfg, False)
    e.I('v_lshlrev_b32 v1, 4, v0')
    e.I('v_and_b32 v21, 0x13, v0\nv_bfe_u32 v22, v0, 2, 1\nv_lshl_add_u32 v21, v22, 3, v21\nv_bfe_u32 v22, v0, 3, 1\nv_lshl_add_u32 v21, v22, 2, v21')
    e.I('s_lshl_b32 s%d, s%d, 6' % (T0, sCB))
    e.I('v_lshl_add_u32 v21, v21, 1, s%d' % T0)
    e.I('s_lshl_b32 s%d, s%d, 2\ns_add_u32 s%d, s%d, s%d\ns_lshl_b32 s%d, s%d, 4\ns_add_u32 s%d, s%d, s%d' %
        (T3, sRB, T3, T3, sW, T3, T3, T3, T3, sCB))
    e.I('s_lshl_b32 s%d, s%d, 11' % (T2, T3))
    frag_addr(e, BA, 4, 5)
    def karg_block():
        e.wait_smem()
        st(e, '_karg')
        mk_srd(e, SX, P_X, 2048 * 1024)
        mk_srd(e, SWS, P_WS, WS_SIZE)
        if cfg.skew:
            e.I('s_lshl_b32 s%d, s2, 7\ns_add_u32 s%d, s%d, 0x%x\nv_mov_b32 v20, s38' % (T4, T4, T4, STAMP_OFF))
            flag_store(e, 20, T4)
        e.I('s_mov_b32 s%d, 0x%x\ns_lshl_b32 s%d, s%d, 6' % (T4, EPOCH_OFF, T0, sCB))
        e.I('s_load_dword s3, s[%d:%d], s%d' % (P_WS, P_WS + 1, T4))
        for p in (P_LRE, P_LIM, P_LDT):
            e.I('s_load_dword s3, s[%d:%d], s%d' % (p, p + 1, T0))
        e.I('s_lshr_b32 s%d, s2, 3\ns_lshl_b32 s%d, s%d, 2\ns_add_u32 s%d, s%d, s%d\ns_and_b32 s%d, s%d, 15\ns_lshl_b32 s%d, s%d, 6' %
            (T0, T0, T0, T0, T0, sW, T0, T0, T0, T0))
        for p in (P_GW, P_DSK):
            e.I('s_load_dword s3, s[%d:%d], s%d' % (p, p + 1, T0))
        if 's' in cfg.prewarm:
            code_touch(e, 'A')

    if not cfg.apre:
        karg_block()

    def small0():
        e.I('buffer_load_dword v19, off, %s, s%d sc1' % (srd(SWS), T4), tag='ep')
        e.I('global_load_ushort v16, v21, s[%d:%d]' % (P_LRE, P_LRE + 1), tag='par')
        e.I('global_load_ushort v17, v21, s[%d:%d]' % (P_LIM, P_LIM + 1), tag='par')
        e.I('global_load_ushort v18, v21, s[%d:%d]' % (P_LDT, P_LDT + 1), tag='par')

    small1 = [lambda: e.I('global_load_dwordx4 v[44:47], v1, s[%d:%d]' % (P_GW, P_GW + 1), tag='g'),
              lambda: e.I('buffer_load_dwordx4 v[36:39], v1, %s, s%d offen' % (srd(SX), T2), tag='g'),
              lambda: e.I('buffer_load_dwordx4 v[40:43], v1, %s, s%d offen offset:1024' % (srd(SX), T2), tag='g')]
    e.I('s_lshl_b32 s%d, s%d, 3\ns_add_u32 s%d, s%d, 0x%x' % (T6, T3, T6, T6, G_OFF))
    GA, GW0, GO = 121, 124, 126
    if cfg.glds:
        small1 = [lambda: e.I('global_load_dwordx4 v[44:47], v%d, s[%d:%d]' % (GW0, P_GW, P_GW + 1), tag='g'),
                  lambda: e.I('global_load_dwordx4 v[192:195], v%d, s[%d:%d]' % (GW0 + 1, P_GW, P_GW + 1), tag='g')]
        e.I('s_bfe_u32 s%d, s%d, 0x20001\ns_lshl_b32 s%d, s%d, 2\ns_lshr_b32 s%d, s%d, 3\ns_lshl_b32 s%d, s%d, 1\ns_add_u32 s%d, s%d, s%d' %
            (T0, sCB, T0, T0, T1, sCB, T1, T1, T0, T0, T1))
        e.I('s_and_b32 s%d, s%d, 1\ns_add_u32 s%d, s%d, s%d' % (T1, sCB, T0, T0, T1))
        e.I('s_and_b32 s%d, s%d, 7\ns_lshl_b32 s%d, s%d, 8\ns_lshl_b32 s%d, s%d, 12\ns_add_u32 s%d, s%d, s%d' % (T1, T0, T0, T0, T2, sW, T0, T0, T2))
        e.I('v_and_b32 v4, 15, v0\nv_xor_b32 v4, s%d, v4\nv_lshl_add_u32 v%d, v4, 4, s%d' % (T1, GA, T0))
        e.I('v_add_u32 v%d, %d, v%d\nv_add_u32 v%d, %d, v%d' % (GA + 1, WIN, GA, GA + 2, 2 * WIN, GA))
        e.I('v_lshrrev_b32 v4, 4, v0\nv_add_u32 v4, s%d, v4\nv_and_b32 v4, 7, v4\nv_and_b32 v5, 7, v0\nv_lshlrev_b32 v5, 4, v5' % sK0)
        e.I('v_lshl_add_u32 v%d, v4, 7, v5\nv_xor_b32 v%d, 0x200, v%d' % (GW0, GW0 + 1, GW0))
        e.I('v_bfe_u32 v4, v0, 3, 1\nv_lshlrev_b32 v%d, 2, v4' % GO)

    e.I('s_lshl_b32 s%d, s%d, 12' % (T0, sW))
    for s in range(4):
        e.I('v_add_u32 v%d, s%d, v%d' % (XA + s, T0, BA + s))
        e.I('v_add_u32 v%d, %d, v%d' % (XA + 4 + s, WIN, XA + s))
        e.I('v_add_u32 v%d, %d, v%d' % (BA + 4 + s, WIN, BA + s))
        if cfg.lag:
            e.I('v_add_u32 v%d, %d, v%d\nv_add_u32 v%d, %d, v%d' % (XA + 8 + s, 2 * WIN, XA + s, BA + 8 + s, 2 * WIN, BA + s))
    w_lane_offsets(e, cfg, WV, 24, 25)
    e.I('v_lshrrev_b32 v24, 5, v0\ns_lshl_b32 s%d, s%d, 1' % (T0, sW))
    e.I('v_add_u32 v%d, s%d, v24' % (SIDX, T0))
    if cfg.apre:
        karg_block()
    rot2_calc(e, cfg, sROT, 0)
    if cfg.rotS:
        e.I('s_and_b32 s%d, s%d, %d\ns_lshl_b32 s%d, s%d, %d\ns_xor_b32 s%d, s%d, s%d' % (T0, sCT, cfg.rotS[0], T0, T0, cfg.rotS[1], sROT, sROT, T0))
    e.I('s_and_b32 s%d, s%d, 1\ns_lshr_b32 s%d, s%d, 1' % (sDTX, sROT, sROT, sROT))
    e.I('s_bitcmp1_b32 s%d, 0' % sROT)
    mk_srd_sel(e, SC1, P_CIM, P_CRE, 512 * 1024)
    mk_srd_sel(e, SC2, P_CRE, P_CIM, 512 * 1024)
    mk_srd(e, SWD, P_WD, 1376 * 1024)
    step_start(e, cfg, sDC, sDB, sDE, 15)
    e.I('s_cmp_ge_u32 s%d, 2' % sW)
    mk_srd_sel(e, SWA, P_WU, P_WG, 512 * 2752)
    e.I('s_lshl_b32 s%d, s%d, 2\ns_add_u32 s%d, s%d, s%d' % (T0, sRB, T0, T0, sW))
    HW_ = 16384 + cfg.hpad[0]
    HT_ = 4 * HW_ + cfg.hpad[1]
    assert H_OFF + 64 * HT_ <= E_OFF
    e.I('s_mul_i32 s%d, s%d, %d\ns_lshr_b32 s%d, s%d, 1\ns_lshl_b32 s%d, s%d, 13\ns_add_u32 s%d, s%d, s%d' %
        (sHD, T0, HT_, T1, sCB, T1, T1, sHD, sHD, T1))
    e.I('s_lshr_b32 s%d, s%d, 2\ns_mul_i32 s%d, s%d, %d\ns_add_u32 s%d, s%d, s%d' % (T1, sCB, T1, T1, cfg.hpad[0], sHD, sHD, T1))
    e.I('s_and_b32 s%d, s%d, 1\ns_lshl_b32 s%d, s%d, 11\ns_add_u32 s%d, s%d, s%d\ns_add_u32 s%d, s%d, 0x%x' %
        (T1, sCB, T1, T1, sHD, sHD, T1, sHD, sHD, H_OFF))
    e.I('s_lshr_b32 s%d, s%d, 1\ns_lshl_b32 s%d, s%d, 4\ns_add_u32 s%d, s%d, s%d\ns_lshl_b32 s%d, s%d, 1' %
        (T1, T0, T1, T1, T1, T1, sCB, T1, T1))
    e.I('s_and_b32 s%d, s%d, 1\ns_add_u32 s%d, s%d, s%d\ns_mul_i32 s%d, s%d, %d\ns_add_u32 s%d, s%d, 0x%x' %
        (T0, T0, T1, T1, T0, T1, T1, FS, sHF, T1, HF_OFF))
    e.I('s_lshl_b32 s%d, s%d, 13\ns_add_u32 s%d, s%d, 0x%x' % (sEL, sCB, sEL, sEL, E_OFF))
    e.I('s_lshl_b32 s%d, s%d, 9\ns_add_u32 s%d, s%d, s%d\ns_cmp_eq_u32 s%d, 0\ns_cselect_b32 s%d, s%d, 0x%x' %
        (sES, sRB, sES, sES, sEL, sW, sES, sES, OOB))
    e.I('s_sub_u32 s%d, s%d, 1024' % (sEL, sEL))

    tch = Touch(e, cfg, 'A')
    tch.setup()
    tch.at(-1)

    e.I('s_lshl_b32 s%d, s%d, 9\ns_add_u32 s%d, s%d, %d' % (T0, sW, T0, T0, L_E))
    e.I('v_lshl_add_u32 v%d, v0, 3, s%d' % (XW, T0))
    e.I('v_and_b32 v6, 31, v0\nv_lshlrev_b32 v%d, 4, v6\nv_lshlrev_b32 v6, 3, v6\nv_add_u32 v%d, %d, v6' % (P16, XR, L_E))
    e.I('v_and_b32 v4, 3, v0\nv_bfe_u32 v5, v0, 3, 2\nv_lshl_add_u32 v4, v5, 2, v4')
    e.I('v_bfe_u32 v5, v0, 2, 1\nv_lshrrev_b32 v6, 5, v0\nv_xor_b32 v5, v5, v6\nv_lshl_add_u32 v4, v5, 4, v4')
    e.I('v_and_b32 v5, 1, v0\nv_lshlrev_b32 v5, 4, v5\nv_mov_b32 v6, 0x3f80\nv_lshlrev_b32 v5, v5, v6\nv_lshrrev_b32 v4, 1, v4')
    for n in range(8):
        e.I('v_cmp_eq_u32 vcc, %d, v4\nv_cndmask_b32 v%d, 0, v5, vcc' % (n, SEL + n))
    e.I('v_and_b32 v6, 7, v0\nv_lshrrev_b32 v7, 4, v0\nv_xor_b32 v6, v6, v7\nv_lshlrev_b32 v6, 4, v6')
    e.I('v_lshrrev_b32 v7, 3, v0\nv_lshl_add_u32 v6, v7, 10, v6')
    e.I('s_lshl_b32 s%d, s%d, 16\ns_lshl_b32 s%d, s%d, 8\ns_add_u32 s%d, s%d, s%d' % (T0, sCT, T1, sW, T0, T0, T1))
    e.I('v_add_u32 v%d, s%d, v6\nv_xor_b32 v7, 64, v%d' % (CV, T0, CV))
    e.I('v_add_u32 v%d, 7168, v7\nv_add_u32 v%d, 14336, v%d\nv_add_u32 v%d, 21504, v7' % (CV + 1, CV + 2, CV, CV + 3))
    frag16_addr(e, CA, 6, 7)
    for s in range(2):
        e.I('v_add_u32 v%d, s%d, v%d' % (CA + s, sMW, CA + s))
        e.I('v_add_u32 v%d, %d, v%d' % (CA4 + s, 4 * SLOT, CA + s))
    HS = CA + 2
    e.I('v_and_b32 v6, 15, v0\nv_lshlrev_b32 v6, 4, v6\nv_bfe_u32 v7, v0, 4, 1\nv_lshl_add_u32 v6, v7, 10, v6')
    e.I('v_lshrrev_b32 v7, 5, v0\nv_lshl_add_u32 v%d, v7, 8, v6' % HS)
    e.I('s_lshr_b32 s88, s%d, 1\ns_lshl_b32 s88, s88, 7\ns_lshl_b32 s89, s%d, 15\ns_add_u32 s88, s88, s89\ns_xor_b32 s89, s88, 128' % (sROT, sDTX))
    e.I(wd_lane_offsets(e, WDV, 6, 7))
    e.I('s_lshl_b32 s%d, s%d, 2\ns_sub_u32 s%d, s%d, s%d\ns_sub_u32 s%d, s%d, 1\ns_lshl_b32 s%d, s%d, 11' % (T0, sW, T0, sRB, T0, T0, T0, T5, sW))
    e.I('v_lshrrev_b32 v6, 5, v0\nv_sub_u32 v7, s%d, v6' % T0)
    e.I('v_cmp_le_i32 vcc, 0, v7\nv_cmp_le_i32 s[%d:%d], 2, v7' % (sMB, sMB + 1))
    e.I('v_lshl_add_u32 v7, v7, 9, v%d\nv_add_u32 v7, 1024, v7\nv_subrev_u32 v5, 2048, v7\nv_mov_b32 v%d, 0x%x' % (P16, EOOB, OOB))
    e.I('v_cndmask_b32 v%d, v%d, v7, vcc\nv_cndmask_b32 v%d, v%d, v5, s[%d:%d]' % (EV0, EOOB, EV1, EOOB, sMB, sMB + 1))
    e.I('v_lshl_add_u32 v7, v6, 12, v%d\nv_add_u32 v%d, %d, v7' % (P16, ERD, L_EG))
    e.I('v_lshlrev_b32 v6, 3, v6\nv_sub_u32 v%d, s%d, v6\nv_med3_i32 v%d, v%d, 0, 8' % (ECNT, sRB, EEXP, ECNT))
    e.I('v_mov_b32 v%d, 1\nv_mov_b32 v%d, %d' % (ONE, FLA, L_FL))

    pro = []
    add = lambda t: [pro.append(lambda x=x: e.I(x)) for x in t.split('\n')]

    def csq(d, a):
        add('v_mul_f32 v30, v%d, v%d\nv_mul_f32 v31, v%d, v%d\nv_fma_f32 v%d, -v%d, v%d, v30\nv_add_f32 v%d, v31, v31' %
            (a, a, a, a + 1, d, a + 1, a + 1, d + 1))

    def cmul(d, a, b):
        add('v_mul_f32 v30, v%d, v%d\nv_mul_f32 v31, v%d, v%d\nv_fma_f32 v30, -v%d, v%d, v30\nv_fma_f32 v%d, v%d, v%d, v31\nv_mov_b32 v%d, v30' %
            (a, b, a, b + 1, a + 1, b + 1, d + 1, a + 1, b, d))

    pro.append(lambda: e.wait(vm=['ep', 'par']))
    add('v_readfirstlane_b32 s%d, v19' % sNONCE)
    add('v_lshlrev_b32 v16, 16, v16\nv_lshlrev_b32 v17, 16, v17\nv_lshlrev_b32 v18, 16, v18')
    add('s_add_u32 s%d, s%d, 0x%x\ns_or_b32 s%d, s%d, 1' % (sNONCE, sNONCE, PHI, sNONCE, sNONCE))
    add('v_mul_f32 v18, 0x%x, v18\nv_exp_f32 v18, v18\nv_cvt_pk_bf16_f32 v18, v18, v18\nv_lshlrev_b32 v18, 16, v18' % LOG2E)
    add('v_mul_f32 v21, v18, v16\nv_mul_f32 v22, v18, v17')
    add('v_mul_f32 v21, 0x%x, v21\nv_exp_f32 v21, v21' % LOG2E)
    add('v_mul_f32 v22, 0.15915494, v22\nv_rndne_f32 v23, v22\nv_sub_f32 v22, v22, v23\nv_sin_f32 v23, v22\nv_cos_f32 v22, v22')
    add('v_mul_f32 v%d, v21, v23\nv_mul_f32 v%d, v21, v22' % (LI, LR))
    add('v_mul_f32 v21, v16, v16\nv_fmac_f32 v21, v17, v17\nv_rcp_f32 v21, v21\nv_add_f32 v22, -1.0, v%d\nv_add_f32 v21, v21, v21' % LR)
    add('v_mul_f32 v23, v22, v16\nv_fmac_f32 v23, v%d, v17\nv_mul_f32 v%d, v23, v21' % (LI, KAP))
    add('v_mul_f32 v23, v%d, v16\nv_fma_f32 v23, -v22, v17, v23\nv_mul_f32 v%d, v23, v21' % (LI, KAP + 1))
    csq(22, LR); csq(22, 22); csq(22, 22); csq(L16, 22)
    csq(22, L16); csq(24, 22); csq(L128, 24); csq(L256, L128); csq(L256, L256); csq(L256, L256)
    for bit, src, dst in ((1, L16, L16S), (2, 22, 22), (4, 24, 24)):
        add('v_and_b32 v26, %d, v%d\nv_cmp_ne_u32 vcc, 0, v26' % (bit, SIDX))
        add('v_cndmask_b32 v%d, 1.0, v%d, vcc\nv_cndmask_b32 v%d, 0, v%d, vcc' % (dst, src, dst + 1, src + 1))
    cmul(L16S, L16S, 22); cmul(L16S, L16S, 24)
    add('v_mul_lo_u32 v%d, v%d, s%d\nv_mov_b32 v2, s%d' % (EEXP, EEXP, sNONCE, sNONCE))
    EDIR = 'e0' in cfg.prog
    EVK = 132
    if EDIR:
        for k in range(8):
            add('v_subrev_u32 v%d, %d, v%d\nv_cmp_le_i32 vcc, 2, v%d\nv_lshl_add_u32 v%d, v%d, 9, v%d\nv_cndmask_b32 v%d, v%d, v%d, vcc' %
                (EVK + k, k - 1, ECNT, EVK + k, EVK + k, EVK + k, P16, EVK + k, EOOB, EVK + k))

    par, pro = pro, []
    pro.append(lambda: e.wait(vm='g'))
    if cfg.glds:
        for k in range(8):
            gw, x = (44 + k if k < 4 else 188 + k), 36 + k
            add('v_lshlrev_b32 v24, 16, v%d\nv_and_b32 v25, 0xffff0000, v%d' % (gw, gw))
            add('v_lshlrev_b32 v26, 16, v%d\nv_and_b32 v27, 0xffff0000, v%d' % (x, x))
            add('v_mul_f32 v26, v26, v24\nv_mul_f32 v27, v27, v25\nv_cvt_pk_bf16_f32 v26, v26, v27')
            if k == 0:
                add('v_lshlrev_b32 v28, 16, v26\nv_and_b32 v29, 0xffff0000, v26')
            else:
                add('v_lshlrev_b32 v27, 16, v26\nv_and_b32 v26, 0xffff0000, v26\nv_add_f32 v28, v28, v27\nv_add_f32 v29, v29, v26')
        add('v_add_f32 v28, v28, v29')
        for sh in (1, 2, 4):
            add('v_add_f32_dpp v28, v28, v28 row_shr:%d row_mask:0xf bank_mask:0xf' % sh)
        for wd in (32, 16):
            add('v_mov_b32 v29, v28\nv_permlane%d_swap_b32 v28, v29\nv_add_f32 v28, v28, v29' % wd)
        add('v_cvt_pk_bf16_f32 v28, v28, v28\nv_lshlrev_b32 v28, 16, v28\nv_mul_f32 v28, 0x%x, v28\nv_exp_f32 v28, v28' % NLOG2E)
        add('v_add_f32 v28, 1.0, v28\nv_rcp_f32 v28, v28\nv_cvt_pk_bf16_f32 v28, v28, v28\nv_lshlrev_b32 v28, 16, v28')
    else:
        for k in range(4):
            add('v_lshlrev_b32 v24, 16, v%d\nv_and_b32 v25, 0xffff0000, v%d' % (44 + k, 44 + k))
            for row in range(2):
                x = 36 + 4 * row + k
                add('v_lshlrev_b32 v26, 16, v%d\nv_and_b32 v27, 0xffff0000, v%d' % (x, x))
                add('v_mul_f32 v26, v26, v24\nv_mul_f32 v27, v27, v25\nv_cvt_pk_bf16_f32 v26, v26, v27')
                add('v_lshlrev_b32 v27, 16, v26\nv_and_b32 v26, 0xffff0000, v26')
                if k == 0:
                    add('v_add_f32 v%d, v26, v27' % (28 + row))
                else:
                    add('v_add_f32 v26, v26, v27\nv_add_f32 v%d, v%d, v26' % (28 + row, 28 + row))
        for mod in ('row_shr:1 row_mask:0xf', 'row_shr:2 row_mask:0xf', 'row_shr:4 row_mask:0xf', 'row_shr:8 row_mask:0xf',
                    'row_bcast:15 row_mask:0xa', 'row_bcast:31 row_mask:0xc'):
            for row in range(2):
                add('v_add_f32_dpp v%d, v%d, v%d %s bank_mask:0xf' % (28 + row, 28 + row, 28 + row, mod))
        add('v_cvt_pk_bf16_f32 v26, v28, v29\nv_lshlrev_b32 v28, 16, v26\nv_and_b32 v29, 0xffff0000, v26')
        add('v_mul_f32 v28, 0x%x, v28\nv_mul_f32 v29, 0x%x, v29\nv_exp_f32 v28, v28\nv_exp_f32 v29, v29' % (NLOG2E, NLOG2E))
        add('v_add_f32 v28, 1.0, v28\nv_add_f32 v29, 1.0, v29\nv_rcp_f32 v28, v28\nv_rcp_f32 v29, v29')
        add('v_cvt_pk_bf16_f32 v26, v28, v29\nv_lshlrev_b32 v28, 16, v26\nv_and_b32 v29, 0xffff0000, v26')
    gate, pro = pro, par

    gdone = []

    def g_store():
        gdone.append(1)
        if cfg.glds:
            e.I('s_mov_b64 exec, 0x8080')
            e.I('buffer_store_dword v28, v%d, %s, s%d offen sc1' % (GO, srd(SWS), T6), tag='gs')
            e.I('s_mov_b64 exec, -1')
            return
        e.I('s_mov_b32 exec_lo, 0\ns_mov_b32 exec_hi, 0x80000000')
        e.I('buffer_store_dwordx2 v[28:29], off, %s, s%d sc1' % (srd(SWS), T6), tag='gs')
        e.I('s_mov_b64 exec, -1')

    nbar = [0]

    def s_bar(i):
        assert nbar[0] == i
        nbar[0] += 1
        e.I('s_barrier')
        if i in (0, 7):
            st(e, 'b%d' % i)

    def s_read(n):
        i, s = n >> 2, n & 3
        slot = s_slot(i)
        if s == 0 and not cfg.lag:
            s_bar(i)
        assert nbar[0] > i
        off = (slot & 1) * SLOT
        if cfg.glds and s == 2:
            m = 0xffff << (16 * (i & 3))
            e.I('s_mov_b32 exec_lo, 0x%x\ns_mov_b32 exec_hi, 0x%x' % (m & 0xffffffff, m >> 32))
            e.I('ds_read_b128 %s, v%d offset:%d' % (vr(36 + 4 * (i >> 2), 4), GA + (slot >> 1), off), tag='gx')
            e.I('s_mov_b64 exec, -1')
        b = RING0 + 12 * (n & 3)
        e.I('ds_read_b128 %s, v%d offset:%d' % (vr(b + 8, 4), XA + 4 * (slot >> 1) + s, off), tag=('s', n, 0))
        for part in range(2):
            e.I('ds_read_b128 %s, v%d offset:%d' % (vr(b + 4 * part, 4), BA + 4 * (slot >> 1) + s,
                                                    off + 16384 + part * 4096), tag=('s', n, part))

    def s_mm(n, part):
        e.wait(lg=('s', n, part))
        b = RING0 + 12 * (n & 3)
        mfma(e, RE + 16 * part, b + 8, b + 4 * part, n == 0)

    D = 2
    seq = []
    for n in range(32):
        seq.append(lambda n=n: (s_mm(n, 0), s_read(n + D) if n + D < 32 else None))
        seq.append(lambda n=n: s_mm(n, 1))
    st(e, '_pro')
    if cfg.lag:
        L = cfg.lag
        npar = len(pro) // max(L - 1, 1) + 1
        for i in range(L):
            s_bar(i)
            tch.at(10 + i)
            if i == 0:
                small0()
            if i >= 1:
                run(pro[(i - 1) * npar:i * npar])
        s_bar(L)
        for n in range(D):
            s_read(n)
        r2 = 2 * cfg.lagr
        for k, it in enumerate(seq):
            it()
            i = L + (k + 1) // r2
            if (k + 1) % r2 == 0 and i <= 7:
                assert (k + 1) // 2 >= 4 * (i - 3)
                s_bar(i)
    else:
        for n in range(D):
            s_read(n)
        p0 = 2 * cfg.smallpos
        run(seq[:p0])
        small0()
        run(seq[p0:p0 + 10])
        run(weave(seq[p0 + 10:56], pro) + seq[56:])
    assert nbar[0] == 8
    st(e, 's1end')
    jitter(e, cfg, 6)
    if cfg.prioA:
        e.I('s_setprio %d' % cfg.prioA)

    def items(txt):
        return [lambda t=t: e.I(t) for t in txt.split('\n')]

    def cfma(d, l, a, c):
        return items('v_fma_f32 v%d, v%d, v%d, v%d\nv_fma_f32 v%d, v%d, v%d, v%d\nv_fma_f32 v%d, -v%d, v%d, v%d\nv_fmac_f32 v%d, v%d, v%d' %
                     (d, l, a, c, d + 1, l, a + 1, c + 1, d, l + 1, a + 1, d, d + 1, l + 1, a))

    e.raw('; ---- role A: local scan end states')
    prev = (RE, IM)
    for r in range(1, 16):
        cur = (20 + 2 * (r & 1), 21 + 2 * (r & 1))
        e.I('v_fma_f32 v%d, v%d, v%d, v%d' % (cur[0], LR, prev[0], RE + r))
        e.I('v_fma_f32 v%d, v%d, v%d, v%d' % (cur[1], LR, prev[1], IM + r))
        e.I('v_fma_f32 v%d, -v%d, v%d, v%d' % (cur[0], LI, prev[1], cur[0]))
        e.I('v_fmac_f32 v%d, v%d, v%d' % (cur[1], LI, prev[0]))
        prev = cur
    e.I('ds_write_b64 v%d, %s' % (XW, vr(prev[0], 2)), tag='ex')

    def c_reg(u, s2, dq):
        return 128 + 32 * u + 16 * s2 + 4 * dq

    CBUF = cfg.cbuf
    CPREV = {i: max(k for k in range(i) if CBUF[k] == CBUF[i]) for i in range(8) if CBUF[i] in CBUF[:i]}
    cdone = set()
    hdone = []

    def c_read(i):
        if i in cdone:
            return
        cdone.add(i)
        assert gdone or not cfg.glds or i < 4
        assert hdone or not EDIR
        assert i < 4 or hdone
        e.wait(vm=('c', i))
        for s in range(4):
            a_, off = (CA4 + (s >> 1), 0) if CBUF[i] == 4 else (CA + (s >> 1), CBUF[i] * SLOT)
            e.I('ds_read_b128 %s, v%d offset:%d' % (vr(c_reg(i >> 1, s >> 1, 2 * (i & 1) + (s & 1)), 4), a_, off + (s & 1) * 2048), tag=('cr', i))

    def c_loads(i):
        u, dt = i >> 1, i & 1
        its = []
        for q in range(4):
            def f(q=q):
                if q == 0:
                    if i in CPREV:
                        c_read(CPREV[i])
                        e.wait(lg=('cr', CPREV[i]))
                    elif CBUF[i] != 4 and (6 + CBUF[i] > cfg.JL or 4 + CBUF[i] >= 8 - cfg.NT):
                        assert kcur[0] >= cfg.JL
                        cnt_spin(e, 'L_cb%d' % i, FLA, 34, C_CONS + 28)
                    e.I('s_xor_b32 s%d, s%d, %d' % (sTD, 88 + (u >> 1), dt * 32768))
                set_m0(e, sMW, CBUF[i] * SLOT)
                e.I('buffer_load_dwordx4 v%d, %s, s%d offen offset:%d %slds' % ((CV + q, srd(SC2 if u & 1 else SC1), sTD, 1024 * q) + (ntf('c', i),)), tag=('c', i))
                if q == 3:
                    st(e, '_c%d' % i)
                if q == 3 and i >= 2:
                    c_read(i - 2)
            its.append(f)
        return its

    def d_loads(n):
        sl, pos = RING[n]
        its = []
        for q in range(2):
            def f(q=q):
                set_m0(e, sMW, sl * SLOT + pos * 2048)
                if q == 0 and n:
                    wd_next(e, n, sDC, sDB, sDE)
                e.I('buffer_load_dwordx4 v%d, %s, s%d offen offset:%d %slds' % ((WDV + q, srd(SWD), sDC, 1024 * q) + (ntf('d', n),)), tag='wd')
            its.append(f)
        return its

    wl = {j: dma_W(e, WV, SWA, j) for j in range(2, 8)}
    planned = set()

    def e_loads():
        its = []
        for q in range(2):
            def f(q=q):
                set_m0(e, T5, L_EG)
                e.I('buffer_load_dwordx4 v%d, %s, s%d offen offset:%d sc1 lds' % (EV0 + q, srd(SWS), sEL, 1024 * q), tag='eg')
            its.append(f)
        return its

    def expand(toks, k):
        r = []
        for t in toks.split(','):
            if not t:
                continue
            n = int(t[1])
            planned.add(t)
            if t[0] == 'W':
                assert n < 4 or k >= n - 2 or (k == n - 3 and k in cfg.drain)
                r += wl[n][:3] if t[2:] == 'a' else wl[n][3:] if t[2:] == 'b' else wl[n]
            elif t[0] == 'C':
                assert CBUF[n] == 4 or k >= min(6 + CBUF[n], cfg.JL)
                assert k >= 2 or cfg.w0pos is None
                r += c_loads(n)
            elif t[0] == 'D':
                r += d_loads(n)
            elif t[0] == 'R':
                r.append(lambda n=n: c_read(n))
            elif t[0] == 'S':
                r.append(lambda n=n: (hq[n](), hsent.add(n)))
            elif t[0] == 'G':
                r += small1
            elif t[0] == 'e':
                r += [lambda k=k: e.I('buffer_load_dwordx4 %s, v%d, %s, s%d offen sc1' % (vr(224 + 4 * k, 4), EVK + k, srd(SWS), sEL), tag='egv')
                      for k in range(8)]
            elif t[0] == 'E':
                r += e_loads()
            elif t[0] == 'T':
                r.append(lambda n=n: tch.at(n))
        return r

    def bar(k, extra=()):
        kk = 7 if k == cfg.JL else k
        assert kk < 2 or 'W%d' % kk in planned or 'W%db' % kk in planned or (kk == 2 and cfg.w0pos is not None)
        e.wait(vm=[('st', 8 + kk)] + list(extra))
        st(e, '_a%d' % k)
        e.I('s_barrier')
        st(e, '_d%d' % k)

    sc = []
    for r in range(16):
        sc += items('v_mul_f32 v4, v%d, v%d\nv_mul_f32 v5, v%d, v%d\nv_fma_f32 v%d, v%d, v%d, -v4\nv_fma_f32 v%d, v%d, v%d, v5' %
                    (KAP + 1, IM + r, KAP + 1, RE + r, RE + r, KAP, RE + r, IM + r, KAP, IM + r))
    if cfg.pksc:
        kp = vr(KAP, 2)
        for r in range(0, 16, 4):
            for o in (0, 2):
                e.I('v_pk_mul_f32 %s, %s, %s op_sel:[1,0] op_sel_hi:[1,1]' % (vr(4 + 2 * o, 2), kp, vr(IM + r + o, 2)))
                e.I('v_pk_mul_f32 %s, %s, %s op_sel:[1,0] op_sel_hi:[1,1]' % (vr(6 + 2 * o, 2), kp, vr(RE + r + o, 2)))
            for o in (0, 2):
                e.I('v_pk_fma_f32 %s, %s, %s, %s op_sel_hi:[0,1,1] neg_lo:[0,0,1] neg_hi:[0,0,1]' % (vr(RE + r + o, 2), kp, vr(RE + r + o, 2), vr(4 + 2 * o, 2)))
                e.I('v_pk_fma_f32 %s, %s, %s, %s op_sel_hi:[0,1,1]' % (vr(IM + r + o, 2), kp, vr(IM + r + o, 2), vr(6 + 2 * o, 2)))
        late = []
    else:
        run(sc[:cfg.early])
        late = sc[cfg.early:]
    e.wait(lg='all')
    bar(0)
    work = []
    for s in range(8):
        e.I('ds_read_b64 %s, v%d offset:%d' % (vr(4 + 2 * s, 2), XR, 256 * s), tag=('e', s))
    pf = []
    for s in range(1, 8):
        pf.append(lambda s=s: e.wait(lg=('e', s)))
        pf += cfma(4 + 2 * s, L16, 2 + 2 * s, 4 + 2 * s)
    segs = [[sub.split('|') for sub in sg.split('&')] for sg in cfg.prog.split(';')]
    issued_tok = set()
    q0 = expand(segs[0][0][0], 0)
    run(weave(q0[:cfg.pren], pf))
    e.I('v_mov_b32 v20, s%d\nv_mov_b32 v21, s%d' % (sNONCE, sNONCE))
    e.I('s_mov_b32 exec_hi, 0')
    e.I('buffer_store_dwordx4 v[18:21], v%d, %s, s%d offen sc1' % (P16, srd(SWS), sES), tag='es')
    e.I('s_mov_b32 exec_hi, -1')
    st(e, 'epub')
    jitter(e, cfg, 7)
    run(q0[cfg.pren:])
    gate.append(g_store)
    sel = items('v_mov_b32 v%d, 0\nv_mov_b32 v%d, 0' % (PP, PP + 1))
    for s in range(1, 8):
        sel.append(lambda s=s: e.I('v_cmp_eq_u32 vcc, %d, v%d\nv_cndmask_b32 v%d, v%d, v%d, vcc\nv_cndmask_b32 v%d, v%d, v%d, vcc' %
                                   (s, SIDX, PP, PP, 2 + 2 * s, PP + 1, PP + 1, 3 + 2 * s)))
    EG = 224

    def e_check():
        e.I('v_add3_u32 v4, v%d, v%d, v%d\nv_add3_u32 v5, v%d, v%d, v%d' % tuple(EG + 4 * k + 2 for k in range(6)))
        e.I('v_add3_u32 v4, v4, v%d, v%d\nv_add_u32 v4, v4, v5' % (EG + 26, EG + 30))
        e.I('v_cmp_ne_u32 vcc, v4, v%d' % EEXP)

    def e_verify():
        assert 'e0' in issued_tok or not EDIR
        e.wait(vm='egv', lg='eg')
        e_check()
        e.I('s_cbranch_vccnz L_pollE')
        e.label('L_pollE_out')
        st(e, 'egot')
        with e.cold_block():
            e.label('L_pollE')
            e.I('s_mov_b32 s%d, 0' % sCNT)
            e.label('L_pollE_l')
            if cfg.esleep:
                e.I('s_sleep %d' % cfg.esleep)
            for k in range(8):
                e.I('v_subrev_u32 v4, %d, v%d\nv_cmp_le_i32 vcc, 2, v4\nv_lshl_add_u32 v4, v4, 9, v%d\nv_cndmask_b32 v4, v%d, v4, vcc' % (k - 1, ECNT, P16, EOOB))
                e.I('buffer_load_dwordx4 %s, v4, %s, s%d offen sc1' % (vr(EG + 4 * k, 4), srd(SWS), sEL))
            e.I('s_add_u32 s%d, s%d, 1' % (sCNT, sCNT))
            e.I('s_cmp_gt_u32 s%d, %d' % (sCNT, SPIN_MAX))
            e.wait(vm='all')
            e.I('s_cbranch_scc1 L_pollE_out')
            e_check()
            e.I('s_cbranch_vccnz L_pollE_l')
            e.I('s_branch L_pollE_out')

    def second_pass():
        p2 = []
        if not EDIR:
            p2.append(lambda: [e.I('ds_read_b128 %s, v%d offset:%d' % (vr(EG + 4 * k, 4), ERD, 512 * k), tag='eg') for k in range(8)])
        p2.append(e_verify)
        for k in range(6, -1, -1):
            p2 += cfma(EG + 4 * k, L128, EG + 4 * k + 4, EG + 4 * k)
        p2 += items('v_mov_b32 v4, v%d\nv_mov_b32 v5, v%d\nv_permlane32_swap_b32 v4, v%d\nv_permlane32_swap_b32 v5, v%d' % (EG, EG + 1, EG, EG + 1))
        p2 += cfma(4, L256, EG, 4)
        p2 += cfma(PP, L16S, 4, PP)
        p2 += items('v_mul_f32 v6, v%d, v%d\nv_mul_f32 v7, v%d, v%d' % (KAP, PP, KAP, PP + 1))
        p2 += items('v_fma_f32 v6, -v%d, v%d, v6\nv_fmac_f32 v7, v%d, v%d' % (KAP + 1, PP + 1, KAP + 1, PP))
        prev = (6, 7)
        for r in range(16):
            p2 += items('v_fmac_f32 v%d, v%d, v%d\nv_fmac_f32 v%d, v%d, v%d\nv_fma_f32 v%d, -v%d, v%d, v%d\nv_fmac_f32 v%d, v%d, v%d' %
                        (RE + r, LR, prev[0], IM + r, LR, prev[1], RE + r, LI, prev[1], RE + r, IM + r, LI, prev[0]))
            prev = (RE + r, IM + r)
        return p2

    def store_h(loads):
        assert not p2
        for part in range(2):
            for k in range(8):
                sg_ = '-' if part else ''
                e.I('v_cvt_pk_bf16_f32 v%d, %sv%d, %sv%d' % (8 + 8 * part + k, sg_, RE + 16 * part + 2 * k, sg_, RE + 16 * part + 2 * k + 1))
            for m in range(2):
                mfma(e, RE + 16 * part, 8 + 8 * part + 4 * m, SEL + 4 * m, m == 0)
        hdone.append(1)
        run(loads)
        e.I('s_add_u32 s%d, s%d, 4096' % (T0, sHD))
        for part in range(2):
            for m in range(2):
                o = 8 + 8 * part + 4 * m
                for k in range(4):
                    e.I('v_cvt_pk_bf16_f32 v%d, v%d, v%d' % (o + k, RE + 16 * part + 8 * m + 2 * k, RE + 16 * part + 8 * m + 2 * k + 1))
                hq.append(lambda o=o, part=part, m=m: e.I('buffer_store_dwordx4 %s, v%d, %s, s%d offen offset:%d sc1' %
                                                         (vr(o, 4), HS, srd(SWS), T0 if part else sHD, 512 * m), tag='hs'))
                if len(hq) <= cfg.hnow:
                    hq[-1]()
                    hsent.add(len(hq) - 1)

    hq = []
    hsent = set()
    kcur = [0]
    p2 = second_pass()
    for k, sub, toks, work in [(k, i, t, w) for k, sg in enumerate(segs) for i, (t, w) in enumerate(sg)]:
        if k == 0:
            continue
        if k <= cfg.JL and sub == 0:
            bar(k, ['eg'] if work[:1] == 'P' else [])
        kcur[0] = k
        q = expand(toks, k)
        if work[:3] == 'sel' or work[:1] == 'g':
            fill = []
            for wk in work.split('+'):
                if wk == 'sel':
                    fill += sel + ([] if 'late' in cfg.prog else late)
                else:
                    n = len(gate) if wk == 'g' else int(wk[1:])
                    fill += gate[:n]
                    del gate[:n]
            run(weave(q, fill) if not cfg.lfirst else q[:cfg.lfirst] + weave(q[cfg.lfirst:] or [lambda: None], fill))
        elif work == 'late':
            run(weave(q, late))
        elif work[:1] == 'P':
            assert EDIR or 'eg' not in e.vm
            wk = work.rstrip('H')
            n = cfg.p2cut if wk == 'P0' else len(p2) if wk in ('P', 'P1') else int(wk[1:])
            part = p2[:n]
            del p2[:n]
            run(part[:1] + (weave(q, part[1:]) if q else part[1:]))
            if work[-1] == 'H':
                st(e, 'p2done')
                store_h([])
        elif work[:1] == 'H':
            st(e, 'p2done')
            store_h(q)
            run(expand(work[2:], k))
        elif work == 'F':
            run(hq[n] for n in range(4) if n not in hsent)
            st(e, 'hst')
            jitter(e, cfg, 8)
            run(q)
            assert gdone and len(hq) == 4
            e.wait(vm=['hs', 'gs'])
            flag_store(e, 2, sHF)
            st(e, 'hflag')
            jitter(e, cfg, 9)
        else:
            run(q)
        issued_tok.update(toks.split(','))
    assert len(segs) > cfg.JL
    HV, PW = 6, 8
    rest = [i for i in range(8) if 'C%d' % i not in planned]
    run(c_loads(rest.pop(0)))
    e.I('s_mul_i32 s%d, s%d, %d\ns_mul_i32 s%d, s%d, %d\ns_add_u32 s%d, s%d, s%d\ns_add_u32 s%d, s%d, 0x%x' %
        (T0, sRT, 2 * HT_, T1, sW, HW_, T0, T0, T1, T0, T0, H_OFF))
    e.I('v_add_u32 v%d, s%d, v1\nv_add_u32 v%d, %d, v%d' % (HV, T0, HV + 1, HT_, HV))
    for u in range(4):
        e.I('s_xor_b32 s%d, s%d, %d\ns_lshl_b32 s%d, s%d, 12' % (93 + u, sROT, u, 93 + u, 93 + u))
    part_write_addr(e, PW, 12, 13, 16384, 4096, SPART)
    mk_srd(e, SOUT, P_OUT, 2048 * 2048)
    e.I('s_lshl_b32 s%d, s%d, 2\ns_add_u32 s%d, s%d, s%d\ns_mul_i32 s%d, s%d, %d\ns_add_u32 s%d, s%d, 0x%x' %
        (T0, sRT, T0, T0, sW, T0, T0, 8 * FS, T0, T0, HF_OFF))
    e.I('v_mul_u32_u24 v12, %d, v0\nv_mov_b32 v5, v2' % FS)

    def h_reg(k):
        return 16 + 4 * (k % 12)

    def h_load(k):
        n2, t4 = k >> 2, k & 3
        e.I('buffer_load_dwordx4 %s, v%d, %s, s%d offen offset:%d sc1' % (vr(h_reg(k), 4), HV + (t4 >> 1), srd(SWS), 93 + (n2 >> 1),
                                                                            2048 * (n2 & 1) + 1024 * (t4 & 1)), tag=('h', k))

    def c_finish():
        for i in range(8):
            c_read(i)
        e.wait(vm='wd')
        cnt_add(e, FLA, ONE, C_DONEA)
        st(e, 'cgot')

    while rest and rest[0] < cfg.hlook:
        run(c_loads(rest.pop(0)))
    if cfg.hlook > 8:
        c_finish()
    poll(e, 'L_pollH', 13, 12, T0, '0xff',
         lambda: ([run(c_loads(i)) for i in rest], c_finish() if cfg.hearly == 0 and cfg.hlook <= 8 else None))
    st(e, 'hrdy')
    jitter(e, cfg, 10)
    XO, RA, GV, RF = 2, 3, 4, 14
    ROWS = (0, 8, 32, 40)
    XL, DL, GL, XD, PW1 = 128, 136, 138, 144, 10
    fin = items('s_lshl_b32 s%d, s%d, 6\ns_add_u32 s%d, s%d, s%d' % (T0, sRT, T0, T0, sW))
    fin += items('v_lshrrev_b32 v12, 4, v0\nv_lshrrev_b32 v13, 2, v0\nv_and_b32 v13, 2, v13\nv_xor_b32 v12, v12, v13')
    fin += items('v_and_b32 v15, 1, v12\nv_lshl_add_u32 v13, v15, 4, s%d\nv_lshrrev_b32 v3, 1, v12\nv_lshl_add_u32 v13, v3, 2, v13' % T0)
    fin += items('v_and_b32 v14, 15, v0\ns_lshl_b32 s%d, s%d, 7' % (T1, sCT))
    fin += items('v_lshl_add_u32 v1, v14, 3, s%d' % T1)
    fin += items('v_lshl_add_u32 v%d, v13, 10, v1' % XO)
    fin += items('v_lshlrev_b32 v%d, 2, v13\nv_add_u32 v%d, 0x%x, v%d' % (GV, GV, G_OFF, GV))
    fin += items('s_lshl_b32 s%d, s%d, 8\ns_add_u32 s%d, s%d, %d' % (T2, sW, T1, T2, SPART))
    fin += items('v_lshl_add_u32 v3, v3, 10, s%d\nv_lshl_add_u32 v3, v15, 14, v3' % T1)
    fin += items('v_lshl_or_b32 v13, v15, 2, s%d\nv_xor_b32 v13, v13, v14\nv_lshl_add_u32 v%d, v13, 4, v3' % (sW, RA))
    fin += items('v_lshl_add_u32 v12, v12, 6, s%d\nv_lshrrev_b32 v13, 2, v14\nv_lshl_add_u32 v12, v13, 10, v12' % T2)
    fin += items('v_and_b32 v13, 3, v0\nv_lshl_add_u32 v%d, v13, 4, v12\nv_add_u32 v%d, %d, v%d' % (RF, RF + 1, 2 * SLOT, RF))
    fin += items('s_lshl_b32 s%d, s%d, 7' % (T0, sDTX))
    for a in range(2):
        fin += items('v_xor_b32 v%d, s%d, v%d\nv_xor_b32 v%d, 0x80, v%d' % (PW + a, T0, PW + a, PW1 + a, PW + a))
    if cfg.posX < 0:
        run(fin)
    for k in range(cfg.NVA):
        if cfg.posX < 0 and k == -1 - cfg.posX:
            assert k >= cfg.hearly
            e.wait(lg='all')
            e.I('s_barrier')
        if k == cfg.hearly // 2 and k:
            c_read(6)
        if k == cfg.hearly and k:
            c_finish()
        h_load(k)
    e.wait(lg='all')
    if cfg.posX >= 0:
        run(fin)

    def fx_loads():
        e.I('global_load_dwordx2 %s, v1, s[%d:%d]' % (vr(DL, 2), P_DSK, P_DSK + 1), tag='fx')
        for n in range(4):
            e.I('s_mov_b32 s%d, %d' % (T2, 1024 * ROWS[n]))
            e.I('buffer_load_dwordx2 %s, v%d, %s, s%d offen' % (vr(XL + 2 * n, 2), XO, srd(SX), T2), tag='fx')

    def g_loads():
        for n in range(4):
            e.I('buffer_load_dword v%d, v%d, %s, 0 offen offset:%d sc1' % (GL + n, GV, srd(SWS), 4 * ROWS[n]), tag='fg')

    DU = 160
    xd = [lambda: e.wait(vm='fx')]
    xd += items('v_lshlrev_b32 v%d, 16, v%d\nv_and_b32 v%d, 0xffff0000, v%d\nv_lshlrev_b32 v%d, 16, v%d\nv_and_b32 v%d, 0xffff0000, v%d' %
                (DU, DL, DU + 1, DL, DU + 2, DL + 1, DU + 3, DL + 1))
    for n in range(4):
        for k in range(2):
            x = XL + 2 * n + k
            xd += items('v_lshlrev_b32 v12, 16, v%d\nv_and_b32 v13, 0xffff0000, v%d' % (x, x))
            xd += items('v_mul_f32 v12, v12, v%d\nv_mul_f32 v13, v13, v%d' % (DU + 2 * k, DU + 1 + 2 * k))
            xd += items('v_cvt_pk_bf16_f32 v13, v12, v13')
            xd += items('v_lshlrev_b32 v%d, 16, v13\nv_and_b32 v%d, 0xffff0000, v13' % (XD + 4 * n + 2 * k, XD + 4 * n + 2 * k + 1))
    xd += items('v_mov_b32 v12, %d\nv_mov_b32 v13, 1\nv_lshlrev_b32 v%d, 1, v%d' % (L_P2, XO, XO))

    def s2_step(k):
        n2, t4 = k >> 2, k & 3
        if k == 2 * cfg.posX:
            e.I('s_barrier')
        e.wait(vm=('h', k))
        for dq in range(4):
            d = 3 - dq if cfg.snake and t4 & 1 else dq
            mfma16(e, acc2(t4, d), c_reg(n2 >> 1, n2 & 1, d), h_reg(k), n2 == 0)
            if dq == (0 if cfg.NVA < 12 else 3) and k + cfg.NVA < 32:
                h_load(k + cfg.NVA)
        if k == 8:
            fx_loads()
        if k == max(8, 2 * cfg.posX):
            g_loads()
    steps = [lambda k=k: s2_step(k) for k in range(32)]
    if cfg.xdpos < 32:
        run(steps[:cfg.xdpos] + weave(steps[cfg.xdpos:], xd))
    else:
        run(steps + xd[-3:])
    st(e, 's2end')
    jitter(e, cfg, 11)
    if cfg.posX == 16:
        e.I('s_barrier')
        g_loads()
    st(e, '_X')
    run(part_write(e, PW, 16384, 0, PW1) + part_write(e, PW, 16384, 1, PW1))
    cnt_add(e, 12, 13, 0)
    if cfg.xdpos >= 32:
        run(xd[:-1])
    OM = 164
    e.wait(vm='fg')
    for n in range(4):
        e.I('v_sub_f32 v%d, 1.0, v%d' % (OM + n, GL + n))
        e.I('v_cvt_pk_bf16_f32 v%d, v%d, v%d\nv_lshlrev_b32 v%d, 16, v%d' % (OM + n, OM + n, OM + n, OM + n, OM + n))
    for n in range(4):
        e.I('s_mov_b32 s%d, %d' % (T2 + n, 2048 * ROWS[n]))
    e.I('s_lshl_b32 s%d, s%d, 5\ns_add_u32 s%d, s%d, s%d\ns_lshl_b32 s%d, s%d, 8\ns_add_u32 s%d, s%d, s%d' %
        (T0, sCT, T0, T0, sRT, T1, sW, T0, T0, T1))
    e.I('s_cmp_eq_u32 s%d, 31\ns_cselect_b32 s%d, 0x%x, s%d' % (T0, T0, EPOCH_OFF, SWS + 2))
    flag_store(e, 5, T0)
    cnt_spin(e, 'L_spinM', 12, 16, 0)
    e.wait(lg='all')
    for n in range(4):
        for w in range(4):
            e.I('ds_read_b128 %s, v%d offset:%d' % (vr(64 + 16 * n + 4 * w, 4), RA, w * 4096 + (n & 1) * 2048 + (n >> 1) * 32768), tag=('r', n))
    BS = XD
    for n in range(4):
        e.wait(lg=('r', n))
        b = 64 + 16 * n
        for k in range(4):
            e.I('v_add_f32 v%d, v%d, v%d\nv_add_f32 v%d, v%d, v%d' % (b + k, b + k, b + 4 + k, b + 8 + k, b + 8 + k, b + 12 + k))
        for k in range(4):
            e.I('v_add_f32 v%d, v%d, v%d' % (b + k, b + k, b + 8 + k))
        for k in range(4):
            e.I('v_add_f32 v%d, v%d, v%d' % (b + k, b + k, XD + 4 * n + k))
        for k in range(4):
            e.I('v_mul_f32 v%d, v%d, v%d' % (BS + 4 * n + k, GL + n, b + k))
    st(e, 'pre')
    jitter(e, cfg, 12)
    for grp in cfg.zg:
        e.I('s_barrier')
        st(e, 'Z' if 3 in grp else '_Z%d' % grp[0])
        for n in grp:
            for w in range(4):
                e.I('ds_read_b128 %s, v%d offset:%d' % (vr(64 + 16 * n + 4 * w, 4), RF + (n >> 1), w * 6144 + (n & 1) * SLOT), tag=('r', n, w >> 1))
        for n in grp:
            b = 64 + 16 * n
            for o, p in ((0, 4), (8, 12), (0, 8)):
                e.wait(lg=('r', n, o >> 3))
                if 3 in grp:
                    for k in (0, 2):
                        e.I('v_pk_add_f32 %s, %s, %s' % (vr(b + o + k, 2), vr(b + o + k, 2), vr(b + p + k, 2)))
                else:
                    for k in range(4):
                        e.I('v_add_f32 v%d, v%d, v%d' % (b + o + k, b + o + k, b + p + k))
            if cfg.mimic2:
                for rnd in range(2):
                    e.I('v_cvt_pk_bf16_f32 v%d, v%d, v%d\nv_cvt_pk_bf16_f32 v%d, v%d, v%d' % (b + 1, b, b + 1, b + 3, b + 2, b + 3))
                    for k in (0, 2):
                        e.I('v_lshlrev_b32 v%d, 16, v%d\nv_and_b32 v%d, 0xffff0000, v%d' % (b + k, b + k + 1, b + k + 1, b + k + 1))
                    if rnd == 0:
                        for k in range(4):
                            e.I('v_mul_f32 v%d, v%d, v%d' % (b + k, OM + n, b + k))
                for k in (0, 2):
                    e.I('v_pk_add_f32 %s, %s, %s' % (vr(b + k, 2), vr(b + k, 2), vr(BS + 4 * n + k, 2)))
            else:
                for k in range(4):
                    e.I('v_fma_f32 v%d, v%d, v%d, v%d' % (b + k, OM + n, b + k, BS + 4 * n + k))
            e.I('buffer_store_dwordx4 %s, v%d, %s, s%d offen %s' % (vr(b, 4), XO, srd(SOUT), T2 + n, cfg.outflags.replace('_', ' ') if isinstance(cfg.outflags, str) else cfg.outflags[n]), tag='out')
    if st.on:
        e.wait(vm='all')
    if cfg.skew:
        e.I('s_and_b32 s%d, s2, %d\ns_lshl_b32 s%d, s%d, 7\ns_add_u32 s%d, s%d, 0x%x' % (T4, cfg.skew[0], T4, T4, T4, T4, STAMP_OFF))
        e.I('buffer_load_dword v62, off, %s, s%d sc1' % (srd(SWS), T4))
        e.wait(vm='all')
        e.I('v_readfirstlane_b32 s12, v62')
        if cfg.skew[1] > 0:
            e.I('s_sub_u32 s12, s38, s12')
        else:
            e.I('s_sub_u32 s12, s12, s38')
        e.I('s_add_u32 s12, s12, 300\ns_add_u32 s10, s38, s12')
        st.names.append('skew')
    st(e, 'end')
    st.flush(e)


HEADER = open(os.path.join(os.path.dirname(os.path.abspath(__file__)), '..', 'cdna_kernels', BASE + '.s.ref')).read()


DOC = """;
;   S: B stages x and B_re/B_im through LDS (LDS-DMA) and keeps its x fragments in registers; A computes B.x.
;      local end states -> workgroup end state published in d_ws -> carry-in from ALL earlier row blocks ->
;      second pass; h is transposed with two selection MFMAs.  h, act (bf16, fragment order) and the gate go to d_ws.
; Hand-offs: write-through stores, counter wait, then a flag word; readers poll with L1-bypassing loads.
"""


def generate(cfg):
    SLEEP[:] = cfg.sleep
    FL.clear()
    FL.update(cfg.nt)
    W_SLOT[0] = 0 if cfg.w0pos is None else 4
    S_SHIFT[0] = -1 if cfg.lag else 0 if cfg.w0pos is None else 1
    assert cfg.w0pos is None
    hdr = []
    for line in HEADER.split('\n'):
        if not line.startswith(';'):
            break
        if '@launch' in line:
            line = '; @launch grid=(256,1,1) block=(512,1,1) lds=%d' % LDS_BYTES
            if cfg.pre_kernel is not None:
                line = '; @launch kernel=%s grid=(256,1,1) block=(512,1,1) lds=%d' % (NAME, LDS_BYTES)
                if cfg.pre_kernel:
                    line = '; @launch kernel=warm_kernel grid=(256,1,1) block=(256,1,1) lds=0\n' + line
        hdr.append(line)
    stB = Stamps(cfg, ([38, 84] if cfg.selB and '_prek' in cfg.selB else [38]) + [6, 8, 14, 16, 18, 20, 22, 30, 32, 34, 4, 10, 12, 24, 26], 'B')
    stA = Stamps(cfg, [38, 10, 12, 22, 34, 24, 26, 6, 8, 18, 28, 14, 16, 30, 36, 4], 'A')
    e = Em()
    gen_entry(e, cfg, stB)
    stA.names = list(stB.names)
    eA = Em()
    eA.hist = list(e.hist)
    eA.vm = list(e.vm)
    gen_B(e, cfg, stB)
    gen_A(eA, cfg, stA)
    txt = '\n'.join(hdr) + '\n' + DOC
    txt += '.amdgcn_target "amdgcn-amd-amdhsa--gfx950"\n.text\n.globl %s\n.p2align 8\n.type %s,@function\n%s:\n' % (NAME, NAME, NAME)
    txt += e.text() + '\n' + '\n'.join(e.cold) + '\n.p2align 6\nL_A:\n' + eA.text() + '\n    s_endpgm\n' + '\n'.join(eA.cold) + '\nL_end:\n    s_endpgm\n'
    if cfg.pre_kernel:
        w = Em()
        w.I('s_cmp_ge_u32 s2, 256\ns_cbranch_scc1 L_wend')
        if cfg.pre_kernel != 'empty':
            w.I('s_load_dwordx16 s[4:19], s[0:1], 0\ns_load_dwordx16 s[20:35], s[0:1], 64')
            w.I('s_lshl_b32 s3, s2, 8\nv_add_u32 v0, s3, v0\nv_lshlrev_b32 v1, 7, v0')
            w.wait_smem()
            base = 0
            for p, n in ((P_X, 2048 * 1024), (P_BRE, 524288), (P_BIM, 524288), (P_WG, 1409024), (P_WU, 1409024), (P_CRE, 524288), (P_CIM, 524288), (P_WD, 1409024)):
                mk_srd(w, 40, p, n)
                w.I('v_subrev_u32 v2, %d, v1\nv_cmp_gt_u32 vcc, %d, v2\ns_and_saveexec_b64 s[44:45], vcc\ns_cbranch_execz L_w%d' % (base, n, p))
                w.I('buffer_load_dword v3, v2, s[40:43], 0 offen')
                w.label('L_w%d' % p)
                w.I('s_mov_b64 exec, s[44:45]')
                base += n
            if cfg.pre_kernel == 'wait':
                w.I('s_waitcnt vmcnt(0)')
        txt += '.globl warm_kernel\n.p2align 8\n.type warm_kernel,@function\nwarm_kernel:\n' + w.text() + '\nL_wend:\n    s_endpgm\n'
    txt += '''.section .rodata,"a"
.p2align 6
.amdhsa_kernel %s
  .amdhsa_next_free_vgpr 256
  .amdhsa_next_free_sgpr 102
  .amdhsa_accum_offset 256
  .amdhsa_group_segment_fixed_size 0
  .amdhsa_kernarg_size 136
  .amdhsa_user_sgpr_count 2
  .amdhsa_user_sgpr_kernarg_segment_ptr 1
  .amdhsa_system_sgpr_workgroup_id_x 1
  .amdhsa_float_denorm_mode_32 3
.end_amdhsa_kernel
''' % NAME
    if cfg.pre_kernel:
        txt += '''.p2align 6
.amdhsa_kernel warm_kernel
  .amdhsa_next_free_vgpr 8
  .amdhsa_next_free_sgpr 48
  .amdhsa_accum_offset 8
  .amdhsa_group_segment_fixed_size 0
  .amdhsa_kernarg_size 136
  .amdhsa_user_sgpr_count 2
  .amdhsa_user_sgpr_kernarg_segment_ptr 1
  .amdhsa_system_sgpr_workgroup_id_x 1
.end_amdhsa_kernel
'''
    info = dict(A=eA.count, B=e.count, nopsA=eA.nops, nopsB=e.nops, stampsA=stA.names, stampsB=stB.names)
    return txt, info


def cfg_from(args):
    cfg = Cfg()
    for a in args:
        k, v = a.split('=')
        setattr(cfg, k, eval(v))
    return cfg


if __name__ == '__main__':
    out = sys.argv[1]
    cfg = cfg_from(sys.argv[2:])
    txt, info = generate(cfg)
    open(out, 'w').write(txt)
    print(info)
```

```python
import sys, os
sys.path.insert(0, os.path.dirname(os.path.abspath(__file__)))
from em import Em, weave

BASE = 'gated_mix__ssm_conv_s5__swiglu_ffn__prompt'
NAME = BASE + '_kernel'

ACT_OFF = 0
H_OFF = 0x600000
E_OFF = 0xB00000
G_OFF = 0xB20000
HF_OFF = 0xB24000
AF_OFF = 0xB30000
EPOCH_OFF = 0xB48000
STAMP_OFF = 0xB50000
WS_SIZE = 0xB80000
OOB = 0x2000000
FS = 32
PHI = 0x9E3779B8

SLOT = 24576
WIN = 49152
SCR = 147456
SPART = 98304
L_E, L_FL, L_EG = SCR, SCR + 4096, SCR + 8192
L_P2 = 3 * SLOT + 4096
LDS_BYTES = 163840

P_X, P_LRE, P_LIM, P_BRE, P_BIM, P_CRE, P_CIM, P_LDT = 4, 6, 8, 10, 12, 14, 16, 18
P_DSK, P_BX, P_WG, P_WU, P_WD, P_GW, P_OUT, P_DBG, P_WS = 20, 22, 24, 26, 28, 30, 32, 34, 36
SX, SWS = 40, 44
SBM, SW, SWD = 48, 52, 56
SC1, SC2, SOUT, SCODE = 48, 52, 56, 60
SWA = 60
sWAVE, sW, sRB, sCB, sK0, sRT, sCT, sNONCE, sSG0 = 64, 65, 66, 67, 68, 69, 70, 71, 72
T0, T1, T2, T3, T4, T5, T6 = 73, 74, 75, 76, 77, 78, 79
sNL2E = 80
sMA, sMB = 82, 84
sTBL = 86
sCNT = 97
sTS, sTW, sTD = 98, 99, 100
sMX, sMBm = 60, 61
sMW = 101
SPIN_MAX = 200000

SLEEP = [0, 0]
FL = {}


def ntf(key, stage):
    return 'nt ' if stage < FL.get(key, 0) else ''


LOG2E = 0x3fb8aa3b
NLOG2E = 0xbfb8aa3b


class Cfg:
    mimic = False
    mimic2 = False
    stamps = False
    rot1 = (2, 4, 2, 1)
    rot2 = 7
    rotF = 0
    rotS = None
    map2 = 84
    prewarm = 'v'
    pwn = 4
    esleep = 4
    slim = True
    blate = True
    lfirst = 0
    glds = True
    xloc = False
    defer = True
    apre = True
    NT = 2
    early = 200
    w0pos = None
    s1a = 2
    smallpos = 2
    pre_kernel = None
    lag = 0
    lagr = 4
    JL = 7
    prog = 'W2,G0|;W3,C0|sel;W4|g53;E0,W5,D0,D1,D2,D3|g;W6|P0;W7|P1H;|;C1,C2|F'
    p2cut = 72
    cbuf = (4, 0, 1, 4, 0, 1, 4, 0)
    tplan = ()
    zfill = True
    prioB = 0
    LA = 4
    posX = 10
    pren = 4
    asplit = True
    prioT = 1
    prioS = 0
    prioD = (0, 0)
    prioF2n = -1
    drain = ()
    hpad = (1280, 768)
    hlook = 9
    hearly = 0
    hnow = 4
    sleep = (1, 1)
    skew = None
    skip = ''
    flagpos = (0, 0, 3)
    alook = 18
    abet = 3
    posXB = -17
    fine = True
    snake = True
    chain = 'FSD'
    nt = {}
    pksc = True
    jitter = 0
    prioF2 = 1
    NVA = 10
    RB = 12
    NV0 = (12, 0)
    xdpos = 32
    NV = 12
    TL = 4
    pull0 = 3
    zg = ((0, 1), (2, 3))
    zlag = 3
    outflags = 'sc1_nt'
    selA = None
    selB = None
    prioA = 0
    amp = None


def srd(r):
    return 's[%d:%d]' % (r, r + 3)


def vr(a, n):
    return 'v[%d:%d]' % (a, a + n - 1) if n > 1 else 'v%d' % a


def mk_srd(e, r, p, nbytes):
    e.I('s_mov_b32 s%d, s%d\ns_mov_b32 s%d, s%d\ns_mov_b32 s%d, 0x%x\ns_mov_b32 s%d, 0x20000' %
        (r, p, r + 1, p + 1, r + 2, nbytes, r + 3))


def mk_srd_sel(e, r, p1, p0, nbytes):
    e.I('s_cselect_b32 s%d, s%d, s%d\ns_cselect_b32 s%d, s%d, s%d\ns_mov_b32 s%d, 0x%x\ns_mov_b32 s%d, 0x20000' %
        (r, p1, p0, r + 1, p1 + 1, p0 + 1, r + 2, nbytes, r + 3))


def mfma(e, d, a, b, first):
    e.I('v_mfma_f32_32x32x16_bf16 %s, %s, %s, %s' % (vr(d, 16), vr(a, 4), vr(b, 4), '0' if first else vr(d, 16)))


def mfma16(e, d, a, b, first):
    e.I('v_mfma_f32_16x16x32_bf16 %s, %s, %s, %s' % (vr(d, 4), vr(a, 4), vr(b, 4), '0' if first else vr(d, 4)))


class Stamps:
    def __init__(self, cfg, regs, role):
        self.amp = cfg.amp if cfg.amp else None
        self.role = role
        self.sel = (cfg.selA if role == 'A' else cfg.selB)
        if self.sel is not None:
            self.sel = self.sel.split(',')
        self.ins = 's_memtime' if cfg.stamps == 'cyc' else 's_memrealtime'
        self.on = cfg.stamps or bool(self.amp)
        self.regs = regs
        self.names = []

    def __call__(self, e, name):
        if not self.on:
            return
        if self.sel is not None:
            if name != 'start' and name not in self.sel:
                return
        elif name.startswith('_'):
            return
        r = self.regs[len(self.names)]
        self.names.append(name)
        if self.amp and name not in ('start', 'end', self.amp[1], self.amp[2]):
            return
        e.I('%s s[%d:%d]' % (self.ins, r, r + 1))

    def flush(self, e):
        if not self.on:
            return
        e.wait_smem()
        if self.amp:
            if self.amp[0] == self.role:
                R = dict(zip(self.names, self.regs))
                e.I('s_sub_u32 s%d, s%d, s%d' % (T0, R[self.amp[2]], R[self.amp[1]]))
                if self.amp[3] < 0:
                    e.I('s_min_u32 s%d, s%d, %d\ns_sub_u32 s%d, %d, s%d' % (T0, T0, self.amp[4], T0, self.amp[4], T0))
                e.I('s_mul_i32 s%d, s%d, %d\ns_min_u32 s%d, s%d, 50000' % (T0, T0, abs(self.amp[3]), T0, T0))
                if len(self.amp) > 5:
                    e.I('s_and_b32 s%d, s2, %d\ns_cmp_eq_u32 s%d, %d\ns_cselect_b32 s%d, s%d, 0' % (T1, self.amp[5], T1, self.amp[6], T0, T0))
                e.label('L_amp')
                e.I('s_memrealtime s[%d:%d]' % (T1, T1 + 1))
                e.wait_smem()
                e.I('s_sub_u32 s%d, s%d, s%d\ns_cmp_lt_u32 s%d, s%d\ns_cbranch_scc1 L_amp' % (T1, T1, R['end'], T1, T0))
            return
        e.I('s_lshl_b32 s%d, s2, 3\ns_add_u32 s%d, s%d, s%d\ns_lshl_b32 s%d, s%d, 6\ns_add_u32 s%d, s%d, 0x%x' %
            (T0, T0, T0, sWAVE, T0, T0, T0, T0, STAMP_OFF))
        e.I('s_mov_b64 exec, 1')
        for k in range(len(self.names)):
            e.I('v_mov_b32 v2, s%d' % self.regs[k])
            e.I('buffer_store_dword v2, off, %s, s%d offset:%d' % (srd(SWS), T0, 4 * k))


def jitter(e, cfg, key):
    if not cfg.jitter:
        return
    lab = 'L_jit%d' % key
    e.settle()
    e.I('s_lshl_b32 s%d, s2, 3\ns_add_u32 s%d, s%d, s%d' % (sCNT, sCNT, sCNT, sWAVE))
    e.I('s_mul_i32 s%d, s%d, 0x%x\ns_lshr_b32 s%d, s%d, 28' % (sCNT, sCNT, (0x9E3779B1 * (2 * key * cfg.jitter + 1)) & 0xffffffff, sCNT, sCNT))
    e.I('s_cmp_lt_u32 s%d, 12\ns_cbranch_scc1 %s_out' % (sCNT, lab))
    e.label(lab)
    e.I('s_sleep 40\ns_add_u32 s%d, s%d, 1\ns_cmp_lt_u32 s%d, 17\ns_cbranch_scc1 %s' % (sCNT, sCNT, sCNT, lab))
    e.label(lab + '_out')


def run(items):
    for it in items:
        it()


def poll(e, label, vt, vaddr, soff, mask, between=None):
    def look(tag=None):
        e.I('s_mov_b64 exec, %s' % mask)
        e.I('buffer_load_dword v%d, v%d, %s, s%d offen sc1' % (vt, vaddr, srd(SWS), soff), tag=tag)
        e.I('s_mov_b64 exec, -1')

    def check():
        e.I('v_cmp_ne_u32 vcc, s%d, v%d' % (sNONCE, vt))
        e.I('s_and_b64 vcc, vcc, %s' % mask)
    spin(e, label, look, check, between)


def spin(e, label, look, check, between):
    look('look')
    if between:
        between()
    e.wait(vm='look')
    check()
    e.I('s_cbranch_scc1 %s' % label)
    e.label(label + '_out')
    with e.cold_block():
        e.label(label)
        e.I('s_mov_b32 s%d, 0' % sCNT)
        e.label(label + '_l')
        if SLEEP[0]:
            e.I('s_sleep %d' % SLEEP[0])
        look()
        e.I('s_add_u32 s%d, s%d, 1' % (sCNT, sCNT))
        e.I('s_cmp_gt_u32 s%d, %d' % (sCNT, SPIN_MAX))
        e.wait(vm='all')
        e.I('s_cbranch_scc1 %s_out' % label)
        check()
        e.I('s_cbranch_scc1 %s_l' % label)
        e.I('s_branch %s_out' % label)


def code_touch(e, tag):
    e.I('s_getpc_b64 s[%d:%d]' % (sMA, sMA + 1))
    e.label('L_pc' + tag)
    e.I('s_sub_u32 s%d, s%d, L_pc%s-%s\ns_subb_u32 s%d, s%d, 0' % (sMA, sMA, tag, NAME, sMA + 1, sMA + 1))
    e.I('s_and_b32 s%d, s2, 0xf8\ns_add_u32 s%d, s%d, s%d\ns_lshl_b32 s%d, s%d, 6' % (T0, T0, T0, sWAVE, T0, T0))
    e.I('s_load_dword s3, s[%d:%d], s%d' % (sMA, sMA + 1, T0))
    e.I('s_add_u32 s%d, s%d, 16384\ns_min_u32 s%d, s%d, L_end-%s' % (T0, T0, T0, T0, NAME))
    e.I('s_load_dword s3, s[%d:%d], s%d' % (sMA, sMA + 1, T0))


def rot2_calc(e, cfg, dst, b):
    e.I('s_mul_i32 s%d, s%d, %d' % (dst, sCT, b))
    for k in range(1 if cfg.map2 == 84 else 2):
        e.I('s_add_u32 s%d, s%d, s%d' % (dst, dst, sRT))
    e.I('s_and_b32 s%d, s%d, %d' % (dst, dst, cfg.rot2))


def step_start(e, cfg, cur, beg, end, shift):
    rot2_calc(e, cfg, cur, cfg.rotF)
    e.I('s_cmp_eq_u32 s%d, 3\ns_cselect_b32 s%d, 10, 11' % (sW, end))
    e.I('s_mul_i32 s%d, s%d, s%d\ns_lshr_b32 s%d, s%d, 3\ns_mul_i32 s%d, s%d, 11' % (cur, cur, end, cur, cur, beg, sW))
    e.I('s_add_u32 s%d, s%d, s%d\ns_add_u32 s%d, s%d, s%d' % (cur, cur, beg, end, end, beg))
    for r in (cur, beg, end):
        e.I('s_lshl_b32 s%d, s%d, %d' % (r, r, shift))


def step_next(e, cur, beg, end, inc, wrap=True, last=False):
    e.I('s_add_u32 s%d, s%d, %d' % (cur, cur, inc))
    if wrap:
        e.I('s_cmp_eq_u32 s%d, s%d\ns_cselect_b32 s%d, s%d, s%d' % (cur, end, cur, beg, cur))
    if last:
        e.I('s_cmp_eq_u32 s%d, 3\ns_cselect_b32 s%d, 0x%x, s%d' % (sW, cur, OOB, cur))


def wd_next(e, n, cur, beg, end):
    step_next(e, cur, beg, end, 16384, n % 2 == 0, n == 20)


def set_m0(e, base, off):
    if getattr(e, 'm0', None) != (base, off):
        e.I('s_add_u32 m0, s%d, %d' % (base, off))
        e.m0 = (base, off)


def wd_lane_offsets(e, WDV, t0, t1):
    txt = 'v_lshrrev_b32 v%d, 4, v0\nv_lshlrev_b32 v%d, 1, v%d\nv_and_b32 v%d, 7, v0\nv_xor_b32 v%d, v%d, v%d\nv_lshlrev_b32 v%d, 4, v%d\n' % (
        t0, t0, t0, t1, t0, t0, t1, t0, t0)
    txt += 'v_lshrrev_b32 v%d, 3, v0\nv_lshl_add_u32 v%d, v%d, 10, v%d\n' % (t1, t0, t1, t0)
    txt += 's_lshl_b32 s%d, s%d, 7\n' % (T0, sCT)
    txt += 'v_add_u32 v%d, s%d, v%d\nv_add_u32 v%d, 7168, v%d' % (WDV, T0, t0, WDV + 1, WDV)
    return txt


RING = [(5, n) for n in range(3)] + [(4, 2)] + [(2 + n // 3, n % 3) for n in range(6)] + [(4, n) for n in range(2)] \
    + [(n // 3, n % 3) for n in range(6)] + [(2, n) for n in range(3)] + [(3, 0)]
PREV = {18: 4, 19: 5, 20: 6, 21: 7}


class Touch:
    def __init__(self, e, cfg, role):
        self.e, self.role = e, role
        self.plan = [p for p in cfg.tplan if p[0] == role]
        it = []
        for par in range(2):
            for p in (P_CRE, P_CIM):
                it += [(p, 128 * k + 64 * par) for k in range(4)]
        for par in range(2):
            it += [(P_WD, 128 * k + 64 * par) for k in range(11)]
        self.items = it

    def setup(self):
        if not self.plan:
            return
        e = self.e
        used = {self.items[k][0] for p in self.plan for k in range(p[2], p[3])}
        e.I('s_lshl_b32 s%d, s2, 2\ns_add_u32 s%d, s%d, s%d' % (T0, T0, T0, sW))
        for p in sorted(used):
            e.I('s_mul_i32 s%d, s%d, %d' % (T1, T0, 1376 if p == P_WD else 512))
            e.I('s_add_u32 s%d, s%d, s%d\ns_addc_u32 s%d, s%d, 0' % (p, p, T1, p + 1, p + 1))

    def at(self, place):
        for p in self.plan:
            if p[1] == place:
                for k in range(p[2], p[3]):
                    self.e.I('s_load_dword s3, s[%d:%d], %d' % (self.items[k][0], self.items[k][0] + 1, self.items[k][1]))


def flag_store(e, vt, soff, imm=0):
    e.I('s_mov_b64 exec, 1')
    e.I('buffer_store_dword v%d, off, %s, s%d offset:%d sc1' % (vt, srd(SWS), soff, imm), tag='flag')
    e.I('s_mov_b64 exec, -1')


def frag_addr(e, dst, t0, t1):
    e.I('v_lshrrev_b32 v%d, 5, v0' % t0)
    e.I('v_bfe_u32 v%d, v0, 1, 3' % t1)
    e.I('v_xor_b32 v%d, v%d, v%d' % (t0, t0, t1))
    e.I('v_and_b32 v%d, 31, v0' % t1)
    e.I('v_lshlrev_b32 v%d, 7, v%d' % (t1, t1))
    e.I('v_lshl_add_u32 v%d, v%d, 4, v%d' % (dst, t0, t1))
    for s in range(1, 4):
        e.I('v_xor_b32 v%d, %d, v%d' % (dst + s, 32 * s, dst))


def frag16_addr(e, dst, t0, t1):
    e.I('v_lshrrev_b32 v%d, 4, v0' % t0)
    e.I('v_bfe_u32 v%d, v0, 1, 3' % t1)
    e.I('v_xor_b32 v%d, v%d, v%d' % (t0, t0, t1))
    e.I('v_and_b32 v%d, 15, v0' % t1)
    e.I('v_lshlrev_b32 v%d, 7, v%d' % (t1, t1))
    e.I('v_lshl_add_u32 v%d, v%d, 4, v%d' % (dst, t0, t1))
    e.I('v_xor_b32 v%d, 64, v%d' % (dst + 1, dst))


def w_tr_addr(e, d, t0, t1):
    e.I('v_lshrrev_b32 v%d, 4, v0' % t0)
    e.I('v_bfe_u32 v%d, v0, 2, 2' % t1)
    e.I('v_lshl_add_u32 v%d, v%d, 3, v%d' % (t0, t0, t1))
    e.I('v_mul_u32_u24 v%d, 192, v%d' % (t0, t0))
    e.I('v_bfe_u32 v%d, v0, 4, 1' % t1)
    e.I('v_lshl_add_u32 v%d, v%d, 5, v%d' % (t0, t1, t0))
    e.I('v_and_b32 v%d, 3, v0' % t1)
    e.I('v_lshl_add_u32 v%d, v%d, 3, v%d' % (d, t1, t0))
    e.I('v_xor_b32 v%d, 32, v%d' % (d + 1, d))
    e.I('v_add_u32 v%d, %d, v%d\nv_add_u32 v%d, %d, v%d' % (d + 2, WIN, d, d + 3, WIN, d + 1))


W_SLOT = [0, 1, 2, 3, 0, 1, 2, 3]
S_SHIFT = [0]


def s_slot(i):
    return (i + 4) % 6 if S_SHIFT[0] < 0 else (i + S_SHIFT[0]) % 4


def w_frag_read(e, dst, wa, j, s2, g, mat, fh, mm, tag):
    slot = W_SLOT[j]
    off = (slot & 1) * SLOT + mat * 12288 + (32 * s2 + 4 * mm) * 192 + g * 64
    e.I('ds_read_b64_tr_b16 %s, v%d offset:%d' % (vr(dst + 2 * mm, 2), wa + 2 * (slot >> 1) + fh, off), tag=tag)


def act_items(e, cfg, G, U, tmp, out):
    items = []
    add = lambda t: items.append(lambda t=t: e.I(t))
    for b in range(2):
        g, u, o = G + 8 * b, U + 8 * b, out + 4 * b
        if cfg.mimic:
            for src in (g, u):
                for p in range(4):
                    add('v_cvt_pk_bf16_f32 v%d, v%d, v%d' % (tmp + p, src + 2 * p, src + 2 * p + 1))
                for p in range(4):
                    add('v_lshlrev_b32 v%d, 16, v%d' % (src + 2 * p, tmp + p))
                    add('v_and_b32 v%d, 0xffff0000, v%d' % (src + 2 * p + 1, tmp + p))
        for p in range(4):
            add('v_pk_mul_f32 %s, %s, s[%d:%d]' % (vr(tmp + 2 * p, 2), vr(g + 2 * p, 2), sNL2E, sNL2E + 1))
        for p in range(8):
            add('v_exp_f32 v%d, v%d' % (tmp + p, tmp + p))
        for p in range(4):
            add('v_pk_add_f32 %s, %s, 1.0 op_sel_hi:[1,0]' % (vr(tmp + 2 * p, 2), vr(tmp + 2 * p, 2)))
        for p in range(8):
            add('v_rcp_f32 v%d, v%d' % (tmp + p, tmp + p))
        for p in range(4):
            add('v_pk_mul_f32 %s, %s, %s' % (vr(g + 2 * p, 2), vr(g + 2 * p, 2), vr(tmp + 2 * p, 2)))
        if cfg.mimic:
            for p in range(4):
                add('v_cvt_pk_bf16_f32 v%d, v%d, v%d' % (tmp + p, g + 2 * p, g + 2 * p + 1))
            for p in range(4):
                add('v_lshlrev_b32 v%d, 16, v%d' % (g + 2 * p, tmp + p))
                add('v_and_b32 v%d, 0xffff0000, v%d' % (g + 2 * p + 1, tmp + p))
        for p in range(4):
            add('v_pk_mul_f32 %s, %s, %s' % (vr(u + 2 * p, 2), vr(g + 2 * p, 2), vr(u + 2 * p, 2)))
        for p in range(4):
            add('v_cvt_pk_bf16_f32 v%d, v%d, v%d' % (o + p, u + 2 * p, u + 2 * p + 1))
    return items


def act_items_scalar(e, cfg, G, U, tmp, out):
    if cfg.mimic:
        return act_items(e, cfg, G, U, tmp, out)
    items = []
    add = lambda t: items.append(lambda t=t: e.I(t))
    for b in range(4):
        g, u, o = G + 4 * b, U + 4 * b, out + 2 * b
        for p in range(4):
            add('v_mul_f32 v%d, s%d, v%d' % (tmp + p, sNL2E, g + p))
        for p in range(4):
            add('v_exp_f32 v%d, v%d' % (tmp + p, tmp + p))
            add('v_mul_f32 v%d, v%d, v%d' % (u + p, g + p, u + p))
        for p in range(4):
            add('v_add_f32 v%d, 1.0, v%d' % (tmp + p, tmp + p))
        for p in range(4):
            add('v_rcp_f32 v%d, v%d' % (tmp + p, tmp + p))
        for p in range(4):
            add('v_mul_f32 v%d, v%d, v%d' % (u + p, tmp + p, u + p))
        for p in range(2):
            add('v_cvt_pk_bf16_f32 v%d, v%d, v%d' % (o + p, u + 2 * p, u + 2 * p + 1))
    return items


def light_scc(e):
    e.I('s_and_b32 s%d, s%d, 3\ns_cmp_eq_u32 s%d, 3\ns_cselect_b32 s%d, 14, s%d\ns_cmp_eq_u32 s%d, 14' % (T0, sCB, T0, T0, sCB, T0))


def w_lane_offsets(e, cfg, WV, t0, t1):
    if cfg.zfill:
        light_scc(e)
        e.I('s_cselect_b32 s%d, 8, 12' % sTW)
    e.I('s_and_b32 s%d, s%d, 1' % (T1, sW))
    e.I('s_mul_i32 s%d, s%d, %d\ns_lshl_b32 s%d, s%d, 6\ns_add_u32 s%d, s%d, s%d' % (T0, T1, 32 * 2752, T1, sSG0, T0, T0, T1))
    for q in range(3):
        e.I('v_add_u32 v%d, %d, v0\nv_mul_u32_u24 v%d, 171, v%d\nv_lshrrev_b32 v%d, 11, v%d' % (t1, 64 * q, t0, t1, t0, t0))
        if cfg.zfill:
            e.I('v_mul_u32_u24 v%d, 12, v%d\nv_sub_u32 v%d, v%d, v%d\nv_cmp_gt_u32 vcc, s%d, v%d' % (WV + q, t0, t1, t1, WV + q, sTW, t1))
        e.I('v_lshrrev_b32 v%d, 3, v%d\nv_lshlrev_b32 v%d, 1, v%d\nv_xor_b32 v%d, v0, v%d' % (t1, t0, t1, t1, t1, t1))
        e.I('v_mul_u32_u24 v%d, %d, v%d' % (t0, 2752 - 192, t0))
        e.I('v_lshl_add_u32 v%d, v%d, 4, v%d' % (t0, t1, t0))
        e.I('v_add_u32 v%d, s%d, v%d' % (WV + q, T0, t0))
        if cfg.zfill:
            e.I('v_mov_b32 v%d, 0x%x\nv_cndmask_b32 v%d, v%d, v%d, vcc' % (t0, OOB, WV + q, t0, WV + q))
    e.I('s_mul_i32 s%d, s%d, 6144' % (sMW, sW))


def dma_W(e, WV, SWR, j):
    slot = W_SLOT[j] * SLOT
    its = []
    for grp in range(2):
        for q in range(3):
            def f(grp=grp, q=q):
                set_m0(e, sMW, slot + grp * 3072)
                if q == 0 and grp == 0:
                    e.I('s_add_u32 s%d, s%d, %d\ns_and_b32 s%d, s%d, 7\ns_mul_i32 s%d, s%d, %d' %
                        (sTW, sK0, j, sTW, sTW, sTW, sTW, 64 * 2752))
                if q == 0 and grp == 1:
                    e.I('s_add_u32 s%d, s%d, %d' % (sTW, sTW, 16 * 2752))
                e.I('buffer_load_dwordx4 v%d, %s, s%d offen offset:%d %slds' % ((WV + q, srd(SWR), sTW, 1024 * q) + (ntf('w', j),)), tag=('st', 8 + j))
            its.append(f)
    return its


C_LAND, C_CONS, C_Q, C_DONEA = 0, 32, 64, 68


def cnt_add(e, va, vone, off):
    e.I('s_mov_b64 exec, 1')
    e.I('ds_add_u32 v%d, v%d offset:%d' % (va, vone, off), tag='sig')
    e.I('s_mov_b64 exec, -1')


def cnt_look(e, va, vt, off, tag):
    e.I('ds_read_b32 v%d, v%d offset:%d' % (vt, va, off), tag=tag)


def cnt_check(e, label, va, vt, off, tag):
    e.wait(lg=tag)
    e.I('v_cmp_ne_u32 vcc, 4, v%d' % vt)
    e.I('s_cbranch_vccnz %s' % label)
    e.label(label + '_out')
    with e.cold_block():
        e.label(label)
        e.I('s_mov_b32 s%d, 0' % sCNT)
        e.label(label + '_l')
        if SLEEP[1]:
            e.I('s_sleep %d' % SLEEP[1])
        cnt_look(e, va, vt, off, None)
        e.I('s_add_u32 s%d, s%d, 1' % (sCNT, sCNT))
        e.I('s_cmp_gt_u32 s%d, %d' % (sCNT, 20 * SPIN_MAX))
        e.wait(lg='all')
        e.I('s_cbranch_scc1 %s_out' % label)
        e.I('v_cmp_ne_u32 vcc, 4, v%d' % vt)
        e.I('s_cbranch_vccnz %s_l' % label)
        e.I('s_branch %s_out' % label)


def cnt_spin(e, label, va, vt, off):
    cnt_look(e, va, vt, off, 'look')
    cnt_check(e, label, va, vt, off, 'look')


def act_offsets(e, k, s_data, s_flag, valid_scc=False):
    e.I('s_lshl_b32 s%d, s%d, 2\ns_add_u32 s%d, s%d, s%d' % (T0, sRB, T0, T0, sW))
    e.I('s_mul_i32 s%d, s%d, 43\ns_add_u32 s%d, s%d, s%d\ns_add_u32 s%d, s%d, %d\ns_lshl_b32 s%d, s%d, 11' %
        (T1, T0, T1, T1, sSG0, T1, T1, k, s_data, T1))
    e.I('s_lshr_b32 s%d, s%d, 1\ns_mul_i32 s%d, s%d, 44\ns_add_u32 s%d, s%d, s%d\ns_add_u32 s%d, s%d, %d' %
        (T1, T0, T1, T1, T1, T1, sSG0, T1, T1, k))
    e.I('s_lshl_b32 s%d, s%d, 1\ns_and_b32 s%d, s%d, 1\ns_add_u32 s%d, s%d, s%d\ns_mul_i32 s%d, s%d, %d\ns_add_u32 s%d, s%d, 0x%x' %
        (T1, T1, T0, T0, T1, T1, T0, T1, T1, FS, s_flag, T1, AF_OFF))


def part_write_addr(e, dst, t0, t1, piece_stride, wave_stride, base):
    e.I('v_lshrrev_b32 v%d, 4, v0' % t0)
    e.I('v_and_b32 v%d, 7, v0' % t1)
    e.I('v_xor_b32 v%d, v%d, v%d' % (t0, t0, t1))
    e.I('v_lshlrev_b32 v%d, 4, v%d' % (dst, t0))
    e.I('v_bfe_u32 v%d, v0, 3, 1' % t0)
    e.I('v_and_b32 v%d, 3, v0' % t1)
    e.I('v_lshl_add_u32 v%d, v%d, 2, v%d' % (t0, t0, t1))
    e.I('v_lshl_add_u32 v%d, v%d, 8, v%d' % (dst, t0, dst))
    e.I('v_bfe_u32 v%d, v0, 2, 1' % t0)
    e.I('v_mul_u32_u24 v%d, %d, v%d' % (t0, piece_stride, t0))
    e.I('s_mul_i32 s%d, s%d, %d\ns_add_u32 s%d, s%d, %d' % (T0, sW, wave_stride, T0, T0, base))
    e.I('v_add3_u32 v%d, v%d, v%d, s%d' % (dst, dst, t0, T0))
    e.I('v_xor_b32 v%d, 64, v%d' % (dst + 1, dst))


def acc2(t4, dq):
    return 64 + 16 * t4 + 4 * dq


def part_write(e, addr, piece_stride, tt, addr1=None):
    its = []
    for a in range(2):
        for dq in range(4):
            ad_, off = (addr + (dq & 1), (dq >> 1) * 128) if addr1 is None or dq < 2 else (addr1 + (dq & 1), 0)
            its.append(lambda ad_=ad_, off=off, dq=dq, a=a:
                       e.I('ds_write_b128 v%d, %s offset:%d' % (ad_, vr(acc2(2 * tt + a, dq), 4), tt * 2 * piece_stride + a * 2048 + off), tag=('pw', tt)))
    return its


def tile_ids(e, cfg, redo):
    if redo:
        e.I('s_and_b32 s%d, s2, 7\ns_lshr_b32 s%d, s2, 3' % (T0, T1))
        e.I('s_and_b32 s%d, s%d, 7\ns_lshr_b32 s%d, s%d, 3\ns_lshr_b32 s%d, s%d, 1' % (T2, T1, T3, T1, T4, T0))
    e.I('s_mul_i32 s%d, s%d, 11\ns_mul_i32 s%d, s%d, 3\ns_add_u32 s%d, s%d, s%d' % (sSG0, T4, T5, T3, sSG0, sSG0, T5))
    e.I('s_cmp_eq_u32 s%d, 15\ns_subb_u32 s%d, s%d, 0' % (sCB, sSG0, sSG0))
    if cfg.map2 == 84:
        if cfg.xloc:
            e.I('s_and_b32 s%d, s%d, 8\ns_add_u32 s%d, s%d, s%d\ns_and_b32 s%d, s%d, 2\ns_lshl_b32 s%d, s%d, 2\ns_add_u32 s%d, s%d, s%d' %
                (sRT, sRB, sRT, sRT, sRB, T5, T0, T5, T5, sRT, sRT, T5))
            e.I('s_and_b32 s%d, s%d, 4\ns_add_u32 s%d, s%d, s%d' % (sCT, T0, sCT, sCT, T3))
        else:
            e.I('s_lshl_b32 s%d, s%d, 3\ns_add_u32 s%d, s%d, s%d' % (sRT, T4, sRT, sRT, T2))
            e.I('s_and_b32 s%d, s%d, 1\ns_lshl_b32 s%d, s%d, 2\ns_add_u32 s%d, s%d, s%d' % (sCT, T0, sCT, sCT, sCT, sCT, T3))
    else:
        e.I('s_lshl_b32 s%d, s%d, 2\ns_and_b32 s%d, s%d, 3\ns_add_u32 s%d, s%d, s%d\ns_lshr_b32 s%d, s%d, 2' %
            (sRT, T0, T5, T1, sRT, sRT, T5, sCT, T1))


KARG2 = 's_load_dwordx16 s[20:35], s[0:1], 64\ns_load_dwordx2 s[36:37], s[0:1], 128'


def gen_entry(e, cfg, st):
    e.I('s_load_dwordx16 s[4:19], s[0:1], 0')
    e.I('s_cmp_ge_u32 s2, 256\ns_cbranch_scc1 L_end')
    e.I(KARG2)
    st(e, 'start')
    if 'v' in cfg.prewarm:
        n = cfg.pwn
        e.I('s_getpc_b64 s[%d:%d]' % (SCODE, SCODE + 1))
        e.label('L_pc')
        e.I('s_mov_b32 s%d, L_end-L_pc\ns_mov_b32 s%d, 0x20000' % (SCODE + 2, SCODE + 3))
        e.I('s_lshl_b32 s%d, s2, %d\ns_and_b32 s%d, s%d, 0x%x' % (T0, 7 + n.bit_length() - 1, T0, T0, 0x7fff & ~(1024 * n - 1)))
        e.I('v_lshlrev_b32 v1, %d, v0' % (1 + n.bit_length() - 1))
        m = sum(1 << (k * 64 // n) for k in range(n))
        e.I('s_mov_b32 exec_lo, 0x%x\ns_mov_b32 exec_hi, 0x%x' % (m & 0xffffffff, m >> 32))
        e.I('buffer_load_dword v63, v1, %s, s%d offen' % (srd(SCODE), T0), tag='pw')
        e.I('s_mov_b64 exec, -1')
    e.I('v_lshrrev_b32 v1, 6, v0\nv_and_b32 v0, 63, v0')
    e.I('v_readfirstlane_b32 s%d, v1' % sWAVE)
    if cfg.slim and cfg.rot1 == (2, 4, 2, 1):
        e.I('s_and_b32 s%d, s2, 7\ns_bfe_u32 s%d, s2, 0x30003\ns_lshr_b32 s%d, s2, 6' % (T0, T2, T3))
        e.I('s_lshl1_add_u32 s%d, s%d, s%d\ns_lshl2_add_u32 s%d, s%d, s%d\ns_and_b32 s%d, s%d, 7' % (sK0, T2, T0, sK0, T3, sK0, sK0, sK0))
        e.I('s_and_b32 s%d, s2, 1\ns_lshl3_add_u32 s%d, s%d, s%d' % (sRB, sRB, sRB, T2))
        e.I('s_lshr_b32 s%d, s%d, 1\ns_lshl2_add_u32 s%d, s%d, s%d' % (T4, T0, sCB, T4, T3))
        assert cfg.map2 == 84
    else:
        e.I('s_and_b32 s%d, s2, 7\ns_lshr_b32 s%d, s2, 3' % (T0, T1))
        e.I('s_and_b32 s%d, s%d, 7\ns_lshr_b32 s%d, s%d, 3' % (T2, T1, T3, T1))
        e.I('s_and_b32 s%d, s%d, 1\ns_lshl_b32 s%d, s%d, 3\ns_add_u32 s%d, s%d, s%d' % (sRB, T0, sRB, sRB, sRB, sRB, T2))
        e.I('s_lshr_b32 s%d, s%d, 1' % (T4, T0))
        e.I('s_lshl_b32 s%d, s%d, 2\ns_add_u32 s%d, s%d, s%d' % (sCB, T4, sCB, sCB, T3))
        e.I('s_mul_i32 s%d, s%d, %d' % (sK0, T2, cfg.rot1[0]))
        for src, mul in zip((T3, T4, None), cfg.rot1[1:]):
            if mul:
                if src is None:
                    e.I('s_and_b32 s%d, s%d, 1' % (T5, T0))
                e.I('s_mul_i32 s%d, s%d, %d\ns_add_u32 s%d, s%d, s%d' % (T5, T5 if src is None else src, mul, sK0, sK0, T5))
        e.I('s_and_b32 s%d, s%d, 7' % (sK0, sK0))
    if not cfg.slim:
        tile_ids(e, cfg, False)
    e.I('s_and_b32 s%d, s%d, 3' % (sW, sWAVE))
    e.I('s_cmp_lt_u32 s%d, 4\ns_cbranch_scc1 L_A' % sWAVE)


def gen_B(e, cfg, st):
    NPRE = cfg.prog.count('D')
    WA = 2
    EP = 42
    XV, BV, WV, XA = 32, 36, 38, 44
    if cfg.prioS:
        e.I('s_setprio %d' % cfg.prioS)
    e.I('v_lshrrev_b32 v8, 3, v0')
    e.I('v_and_b32 v9, 7, v0')
    e.I('v_lshrrev_b32 v10, 4, v0')
    e.I('v_xor_b32 v10, v9, v10\nv_lshlrev_b32 v10, 4, v10')
    e.I('v_lshrrev_b32 v11, 5, v0\nv_and_b32 v12, 3, v8\nv_lshl_add_u32 v11, v11, 4, v12')
    e.I('s_lshl2_add_u32 s%d, s%d, s%d\ns_lshl_b32 s%d, s%d, 15' % (T0, sRB, sW, T0, T0))
    e.I('v_lshl_add_u32 v11, v11, 10, s%d' % T0)
    e.I('v_add_u32 v%d, v11, v10' % XV)
    e.I('v_xor_b32 v13, 64, v%d' % XV)
    e.I('v_add_u32 v%d, 3072, v13\nv_add_u32 v%d, 6144, v%d\nv_add_u32 v%d, 9216, v13' % (XV + 1, XV + 2, XV, XV + 3))
    def b_setup():
        e.I('s_and_b32 s%d, s%d, 1\ns_lshl1_add_u32 s%d, s%d, s%d\ns_lshl_b32 s%d, s%d, 14' % (T1, sW, T0, sCB, T1, T0, T0))
        e.I('v_lshrrev_b32 v11, 5, v0\nv_lshl_add_u32 v11, v11, 3, v12')
        e.I('v_lshl_add_u32 v11, v11, 10, s%d' % T0)
        e.I('v_add_u32 v%d, v11, v10' % BV)
        e.I('v_xor_b32 v13, 64, v%d\nv_add_u32 v%d, 3072, v13' % (BV, BV + 1))
        e.I('s_lshl_b32 s%d, s%d, 11\ns_add_u32 s%d, s%d, 16384' % (sMBm, sW, sMBm, sMBm))
        e.I('s_mov_b32 s%d, 0x%x\ns_mov_b32 s%d, 0x20000' % (SBM + 2, 512 * 1024, SBM + 3))
    if not cfg.blate:
        b_setup()
    e.I('s_lshl_b32 s%d, s%d, 12' % (sMX, sW))
    e.I('s_lshl_b32 s%d, s%d, 7' % (T6, sK0))
    e.I('s_mov_b32 s%d, 0x%x\ns_mov_b32 s%d, 0x20000' % (SX + 2, 2048 * 1024, SX + 3))
    set_m0(e, sMX, s_slot(0) * SLOT)
    e.I('s_mov_b32 s%d, s%d' % (sTS, T6))
    st(e, '_prek')
    e.wait_smem()
    st(e, 'karg')
    jitter(e, cfg, 1)
    e.I('s_mov_b64 s[%d:%d], s[%d:%d]' % (SX, SX + 1, P_X, P_X + 1))

    def dma_S(i):
        slot = s_slot(i) * SLOT
        its = []
        for q in range(4):
            def f(q=q):
                if q == 0 and i:
                    set_m0(e, sMX, slot)
                    e.I('s_add_u32 s%d, s%d, %d\ns_and_b32 s%d, s%d, 1023' % (sTS, T6, i * 128, sTS, sTS))
                e.I('buffer_load_dwordx4 v%d, %s, s%d offen offset:%d %slds' % ((XV + q, srd(SX), sTS, 1024 * q) + (ntf('x', i),)), tag=('st', i))
            its.append(f)
        for q in range(2):
            def f(q=q):
                if q == 0 and i == 0 and cfg.blate:
                    b_setup()
                if q == 0:
                    set_m0(e, sMBm, slot)
                if q == 0 and i == 0:
                    e.I('s_cmp_ge_u32 s%d, 2\ns_cselect_b64 s[%d:%d], s[%d:%d], s[%d:%d]' % (sW, SBM, SBM + 1, P_BIM, P_BIM + 1, P_BRE, P_BRE + 1))
                e.I('buffer_load_dwordx4 v%d, %s, s%d offen offset:%d %slds' % ((BV + q, srd(SBM), sTS, 1024 * q) + (ntf('b', i),)), tag=('st', i))
            its.append(f)
        return its

    run(dma_S(0))
    st(e, 'dma0')
    s1 = dma_S(1)
    run(s1[:cfg.s1a])
    if 's' in cfg.prewarm:
        code_touch(e, 'B')
    frag16_addr(e, XA, 11, 12)
    for s in range(2):
        e.I('v_add_u32 v%d, s%d, v%d' % (XA + s, sMX, XA + s))
        e.I('v_add_u32 v%d, %d, v%d' % (XA + 2 + s, WIN, XA + s))
        if cfg.lag:
            e.I('v_add_u32 v%d, %d, v%d' % (XA + 4 + s, 2 * WIN, XA + s))
    e.I('v_lshlrev_b32 v11, 2, v0\nv_add_u32 v11, %d, v11\nv_mov_b32 v12, 0' % L_FL)
    e.I('ds_write_b32 v11, v12', tag='init')

    def setup_a():
        if cfg.slim:
            tile_ids(e, cfg, True)
        mk_srd(e, SWS, P_WS, WS_SIZE)
        mk_srd(e, SWD, P_WD, 1376 * 1024)
        e.I('s_cmp_ge_u32 s%d, 2' % sW)
        mk_srd_sel(e, SW, P_WU, P_WG, 512 * 2752)
        w_tr_addr(e, WA, 13, 14)
        e.I('v_lshlrev_b32 v1, 4, v0')

    def setup_b():
        w_lane_offsets(e, cfg, WV, 13, 14)
    if not cfg.defer:
        setup_a()
        setup_b()

    sDC, sDB, sDE, sAC, sAB, sAE = 86, 87, 88, 89, 90, 91
    sD0, sF0, sD2, sF2 = T2, T3, T4, T5
    st(e, '_pro')
    sP0 = 92
    if isinstance(cfg.w0pos, tuple):
        tab = sum(p << (4 * r) for r, p in enumerate(cfg.w0pos))
        e.I('s_and_b32 s%d, s%d, 7\ns_lshl_b32 s%d, s%d, 2\ns_lshr_b32 s%d, 0x%x, s%d\ns_and_b32 s%d, s%d, 15' %
            (T0, sRB, T0, T0, sP0, tab, T0, sP0, sP0))

    def w0_hook(p):
        if cfg.w0pos == p:
            run(dma_W(e, WV, SW, 0))
        elif isinstance(cfg.w0pos, tuple) and p in cfg.w0pos:
            e.I('s_cmp_eq_u32 s%d, %d\ns_cbranch_scc1 L_w0_%d' % (sP0, p, p))
            e.label('L_w0_%d_out' % p)
            with e.cold_block():
                e.label('L_w0_%d' % p)
                run(dma_W(e, WV, SW, 0))
                e.I('s_branch L_w0_%d_out' % p)
            e.m0 = None
    run(s1[cfg.s1a:])
    st(e, '_dma1')
    w0_hook(1)
    e.wait(vm=('st', 0))
    st(e, '_sa0')
    e.I('s_barrier')
    st(e, 'b0')
    for i in range(8):
        if i == 1:
            e.I('s_mov_b32 s%d, 0x%x' % (T0, EPOCH_OFF))
            e.I('buffer_load_dword v%d, off, %s, s%d sc1' % (EP, srd(SWS), T0), tag='ep')
        if i < 6:
            run(dma_S(i + 2))
            w0_hook(i + 2)
        elif cfg.w0pos is None:
            run(dma_W(e, WV, SW, i - 6))
        elif i == 6 or 'W2' not in cfg.prog:
            run(dma_W(e, WV, SW, i - 5))
        for s in range(4):
            slot = s_slot(i)
            e.I('ds_read_b128 %s, v%d offset:%d' % (vr(128 + 4 * (4 * i + s), 4), XA + 2 * (slot >> 1) + (s >> 1), (slot & 1) * SLOT + (s & 1) * 2048), tag='x')
        if cfg.defer and i == 0:
            setup_a()
        if cfg.defer and i == 1:
            setup_b()
        if i == 4:
            e.wait(vm='ep')
            e.I('v_readfirstlane_b32 s%d, v%d' % (sNONCE, EP))
            e.I('s_add_u32 s%d, s%d, 0x%x\ns_or_b32 s%d, s%d, 1' % (sNONCE, sNONCE, PHI, sNONCE, sNONCE))
            e.I('s_mov_b32 s%d, 0x%x\ns_mov_b32 s%d, 0x%x' % (sNL2E, NLOG2E, sNL2E + 1, NLOG2E))
        if i == 2:
            step_start(e, cfg, sAC, sAB, sAE, 11)
        if i == 3:
            for k in range(3):
                e.I('s_lshl_b32 s%d, s%d, 4' % (sDC + k, sAC + k))
            for n in range(1, NPRE):
                wd_next(e, n, sDC, sDB, sDE)
        if i == 5:
            act_offsets(e, 0, sD0, sF0)
        if i == 6:
            e.I('s_add_u32 s%d, s%d, 4096\ns_add_u32 s%d, s%d, %d' % (sD2, sD0, sF2, sF0, 4 * FS))
            light_scc(e)
            e.I('s_cselect_b32 s%d, 0x%x, s%d\ns_cselect_b32 s%d, 0x%x, s%d' % (sD2, OOB, sD2, sF2, OOB, sF2))
            e.I('v_mov_b32 v7, %d\nv_mov_b32 v6, 1' % L_FL)
        if i < 7:
            e.wait(vm=('st', i + 1), lg='all')
            st(e, '_sa%d' % (i + 1))
            e.I('s_barrier')
            st(e, '_sd%d' % (i + 1))
            if i == 0:
                st(e, 'b1')
    NT = cfg.NT
    ops = []
    CH = 'F' in cfg.chain
    sm = [(s, mf) for mf in range(4) for s in range(2)] if CH else [(s, mf) for s in range(2) for mf in range(4)]
    for j in range(8 - NT):
        if CH:
            ops += [(j, s, g, mf) for g in range(3) for s, mf in sm]
        else:
            ops += [(j, s, g, mf) for s in range(2) for g in range(3) for mf in range(4)]
    tail0 = len(ops)
    for g in range(3):
        for j in range(8 - NT, 8):
            ops += [(j, s, g, mf) for s, mf in sm]
    NB, LA = 6, cfg.LA
    first = {j: min(q for q in range(len(ops)) if ops[q][0] == j) for j in range(8)}
    last = {j: max(q for q in range(len(ops)) if ops[q][0] == j) for j in range(8)}

    def rd(q, half):
        if q >= len(ops):
            return
        j, s, g, mf = ops[q]
        if q == first[j] and j <= cfg.JL and half == 0:
            e.wait(vm=('st', 8 + j), lg='all' if j in cfg.drain else 'x')
            st(e, '_a%d' % j)
            e.I('s_barrier')
            st(e, '_d%d' % j)
            if j in (0, 4, cfg.JL):
                st(e, 'b%d' % (8 + j))
            if j == 0 and cfg.prioB != cfg.prioS:
                e.I('s_setprio %d' % cfg.prioB)
        w_frag_read(e, 8 + 4 * (q % NB), WA, j, s, g, mf >> 1, mf & 1, half, ('wf', q))
        if q == last[7] and half == 1:
            cnt_add(e, 7, 6, C_CONS + 28)

    started = set()

    def mm(q, a):
        j, s, g, mf = ops[q]
        if a == 0 and q % 2 == 0:
            e.wait(lg=('wf', q + 1))
        t = a ^ (q & 1) if cfg.snake else a
        qq = q
        if CH:
            assert LA == 4
            i = 2 * (q & 1) + a
            qq = (q & ~1) + (1 if i in (1, 2) else 0)
            t = (i >> 1) ^ ((q >> 1) & 1)
            s = ops[qq][1]
        acc = 32 + 32 * g + 16 * (mf >> 1) + 8 * t + 4 * (mf & 1)
        mfma16(e, acc, 8 + 4 * (qq % NB), 128 + 16 * j + 8 * s + 4 * t, acc not in started)
        started.add(acc)
        rd(q + LA, a)

    def act_store(k, ms=(0, 1)):
        for m in ms:
            e.I('buffer_store_dwordx4 %s, v1, %s, s%d offen offset:%d sc1' %
                (vr(136 + 8 * k + 4 * m, 4), srd(SWS), sD2 if k == 2 else sD0, 1024 * m + (2048 if k == 1 else 0)), tag=('as', k))

    def with_stores(its, k):
        if not cfg.asplit:
            return its + [lambda: act_store(k)]
        h = len(its) // 2
        return its[:h] + [lambda: act_store(k, (0,))] + its[h:] + [lambda: act_store(k, (1,))]

    def act_flag(k):
        e.wait(vm=('as', k))
        flag_store(e, EP, sF2 if k == 2 else sF0, 2 * FS if k == 1 else 0)

    for q in range(LA):
        rd(q, 0)
        rd(q, 1)
    per = 8 * NT
    for q in range(tail0 + per):
        mm(q, 0)
        mm(q, 1)
    if cfg.prioT:
        e.I('s_setprio %d' % cfg.prioT)
    if NT:
        for g in (1, 2):
            main = [lambda q=q, a=a: mm(q, a) for q in range(tail0 + g * per, tail0 + (g + 1) * per) for a in range(2)]
            fill = with_stores(act_items_scalar(e, cfg, 32 * g, 32 * g + 16, 128, 136 + 8 * (g - 1)), g - 1)
            run(main[:3] + weave(main[3:], fill))
        st(e, 'f1end')
        run(with_stores(act_items(e, cfg, 96, 112, 128, 152), 2))
    else:
        st(e, 'f1end')
        for g in range(3):
            run(with_stores(act_items(e, cfg, 32 + 32 * g, 48 + 32 * g, 128, 136 + 8 * g), g))
    if cfg.prioD[0] != (cfg.prioT or cfg.prioB):
        e.I('s_setprio %d' % cfg.prioD[0])
    st(e, 'actst')
    jitter(e, cfg, 2)
    DA, AV, PW, WDV, EP = 2, 14, 16, 18, 23
    e.I('v_mov_b32 v%d, s%d' % (EP, sNONCE))
    e.I(wd_lane_offsets(e, WDV, 20, 21))
    e.I('v_mov_b32 v22, %d' % L_FL)
    cnt_spin(e, 'L_spinB', 22, 24, C_CONS + 28)
    st(e, 'ldsfree')

    def dma_D(n):
        sl, pos = RING[n]
        if n in PREV:
            e.wait(lg=('wr', PREV[n]))
        set_m0(e, sMW, sl * SLOT + pos * 2048)
        if n:
            wd_next(e, n, sDC, sDB, sDE)
        for q in range(2):
            e.I('buffer_load_dwordx4 v%d, %s, s%d offen offset:%d %slds' % ((WDV + q, srd(SWD), sDC, 1024 * q) + (ntf('d', n),)), tag=('wd', n))

    def wd_reg(n2):
        return 128 + 16 * n2 if n2 < 5 else 32 + 16 * (n2 - 5) if n2 < 7 else 128 + 16 * (n2 - 7)

    def wd_read(n, dqs=range(4)):
        sl, pos = RING[n]
        e.wait(vm=('wd', n))
        for dq in dqs:
            e.I('ds_read_b64_tr_b16 %s, v%d offset:%d' % (vr(wd_reg(n >> 1) + 4 * dq + 2 * (n & 1), 2), DA + 4 * (sl >> 1) + dq,
                                                         (sl & 1) * SLOT + pos * 2048), tag=('wr', n))

    def setup2():
        e.I('v_lshrrev_b32 v20, 2, v0\nv_lshlrev_b32 v20, 7, v20\nv_bfe_u32 v21, v0, 3, 2\nv_lshl_add_u32 v20, v21, 5, v20')
        e.I('v_and_b32 v21, 3, v0\nv_lshl_add_u32 v20, v21, 3, v20\nv_add_u32 v%d, s%d, v20' % (DA, sMW))
        for dq in range(1, 4):
            e.I('v_xor_b32 v%d, %d, v%d' % (DA + dq, 32 * dq, DA))
        for k in (1, 2):
            for dq in range(4):
                e.I('v_add_u32 v%d, %d, v%d' % (DA + 4 * k + dq, k * WIN, DA + dq))
        e.I('s_mul_i32 s%d, s%d, %d' % (T0, sRT, 2 * 88064))
        e.I('v_add_u32 v%d, s%d, v1\nv_add_u32 v%d, 88064, v%d' % (AV, T0, AV + 1, AV))
        e.I('s_mul_i32 s%d, s%d, 44\ns_mul_i32 s%d, s%d, 11\ns_add_u32 s%d, s%d, s%d\ns_mul_i32 s%d, s%d, %d\ns_add_u32 s%d, s%d, 0x%x' %
            (T0, sRT, T1, sW, T0, T0, T1, T0, T0, 2 * FS, T0, T0, AF_OFF))
        e.I('v_mul_u32_u24 v20, %d, v0' % FS)
        e.I('s_mov_b32 s%d, 0x3fffff\ns_cmp_eq_u32 s%d, 3\ns_cselect_b32 s%d, 0xfffff, s%d\ns_mov_b32 s%d, 0' % (sMA, sW, sMA, sMA, sMA + 1))

    for n in range(NPRE, 11):
        for k in range(3):
            if cfg.flagpos[k] + NPRE == n:
                if k == 2:
                    setup2()
                act_flag(k)
                if k == 2:
                    st(e, 'flagged')
        if n < 10:
            dma_D(n)
    st(e, '_d9')
    cnt_spin(e, 'L_spinB2', 22, 24, C_DONEA)
    if cfg.prioD[1] != cfg.prioD[0]:
        e.I('s_setprio %d' % cfg.prioD[1])
    st(e, '_da')
    jitter(e, cfg, 3)
    pulled = [0]

    def d_step(n):
        dma_D(n)
        while pulled[0] < min(14, 3 * (n - 9), n - 3):
            wd_read(pulled[0])
            pulled[0] += 1
        if n == 14:
            e.wait(lg=('wr', 9))
            set_m0(e, sMW, L_P2)
            e.I('s_mov_b64 exec, 1')
            e.I('buffer_load_dword off, %s, s%d lds' % (srd(SWD), SWD + 2), tag='init')
            e.I('s_mov_b64 exec, -1')
        if n == -cfg.posXB:
            bar_X()

    def bar_X():
        assert pulled[0] >= 12
        e.wait(vm='init', lg=('wr', 11))
        st(e, '_aX')
        e.I('s_barrier')

    for n in range(10, cfg.alook):
        d_step(n)
    st(e, 'wdiss')
    nd = cfg.alook + cfg.abet
    poll(e, 'L_pollA', 21, 20, T0, 's[%d:%d]' % (sMA, sMA + 1), lambda: [d_step(n) for n in range(cfg.alook, nd)])
    st(e, 'actrdy')
    jitter(e, cfg, 4)
    if cfg.prioF2n < 0:
        e.I('s_setprio %d' % cfg.prioF2)
    elif cfg.prioD[1]:
        e.I('s_setprio 0')

    TL = cfg.TL
    sSV = 92
    NM = 11 - TL

    def sets(lo, hi):
        st_ = 2 if 'D' in cfg.chain else 1
        return [tuple(range(n, min(n + st_, hi))) for n in range(lo, hi, st_)]
    groups = [[(n2, t4) for n2 in ss] for ss in sets(0, NM) for t4 in range(4)] + [[(n2, t4) for n2 in ss] for t4 in range(4) for ss in sets(NM, 11)]
    order = [f for g in groups for f in g]

    def a_reg(n2, t4):
        i = order.index((n2, t4)) % cfg.RB
        return 208 + 4 * i if i < 12 else 24 + 4 * (i - 12)

    pend = []
    rq = []

    def flush(n=99):
        for t in pend[:n]:
            e.I(t)
        del pend[:n]

    def a_load(n2, t4):
        if t4 == 0:
            flush()
        so = sAC if n2 == 0 else sSV + n2 % 5
        e.I('buffer_load_dwordx4 %s, v%d, %s, s%d offen offset:%d sc1' % (vr(a_reg(n2, t4), 4), AV + (t4 >> 1), srd(SWS), so, 1024 * (t4 & 1)),
            tag=('a', n2, t4))
        if n2 < 10 and t4 == 0:
            dst = sSV + (n2 + 1) % 5
            pend.append('s_add_u32 s%d, s%d, 2048' % (dst, so))
            pend.append('s_cmp_eq_u32 s%d, s%d\ns_cselect_b32 s%d, s%d, s%d' % (dst, sAE, dst, sAB, dst))
            if n2 == 9:
                pend.append('s_cmp_eq_u32 s%d, 3\ns_cselect_b32 s%d, 0x%x, s%d' % (sW, dst, OOB, dst))

    lq = []
    for k, t in enumerate(order):
        lq.append(('a', k))
        if k & 1 and nd < 22:
            lq.append(('d', nd))
            nd += 1
    dn = [cfg.alook + cfg.abet - 1]
    nis = [0]

    def issue(k, busy, most=99):
        while lq:
            t = lq[0]
            tag = ('a',) + order[k]
            nv = min(cfg.NV, cfg.NV0[0] + max(0, k - cfg.NV0[1]))
            if nis[0] > k and (len(e.vm) - 1 - e.vm.index(tag) >= nv - 1 if tag in e.vm else len(e.vm) >= nv):
                return
            if t[0] == 'a':
                if t[1] >= busy + cfg.RB:
                    return
                if most == 0:
                    return
                most -= 1
                a_load(*order[t[1]])
                nis[0] = t[1] + 1
            else:
                d_step(t[1])
                dn[0] = t[1]
            lq.pop(0)

    wq = []
    zq = [list(g) for g in cfg.zg]
    since = [0]

    def w_pop():
        t = wq.pop(0)
        if t is not None:
            t4, i = t
            assert not rq
            hi = 32768 if t4 == 3 else 0
            set_m0(e, sMW, hi)
            e.I('ds_write_addtid_b32 v%d offset:%d' % (acc2(t4, 0) + i, t4 * SLOT - hi + 256 * i), tag=('pw', t4))
            if i == 15 and t4 == zq[0][-1]:
                since[0] = cfg.zlag + 1
        if since[0]:
            since[0] -= 1
            if since[0] == 0:
                z_bar()

    def z_bar():
        e.wait(lg=('pw', zq.pop(0)[-1]))
        e.I('s_barrier')

    begun = set()

    def mm2(grp):
        k = order.index(grp[0])
        kn = k + len(grp)
        t4 = grp[0][1]
        if k == 0:
            issue(kn - 1, k)
        while rq and rq[0][0] >> 1 <= (max(f[0] for f in order[kn:kn + 2]) if kn + 1 < 4 * NM + TL else 99):
            t = rq.pop(0)
            wd_read(t[0], [t[1]])
        e.wait(vm=[('a',) + f for f in grp], lg=[('wr', 2 * f[0] + 1) for f in grp])
        slots = [(f, dq) for dq in range(4) for f in (grp if dq % 2 == 0 else grp[::-1])]
        for i, ((n2, _), dq) in enumerate(slots):
            d = 3 - dq if cfg.snake and n2 < NM and t4 & 1 else dq
            mfma16(e, acc2(t4, d), a_reg(n2, t4), wd_reg(n2) + 4 * d, acc2(t4, d) not in begun)
            begun.add(acc2(t4, d))
            if i % 4 == 0 and lq:
                issue(min(kn + i // 4, 43), k, 1 if k else 99)
            elif pend and i < len(slots) - 1:
                flush(1)
            elif rq and i < len(slots) - 1:
                t = rq.pop(0)
                wd_read(t[0], [t[1]])
            elif wq:
                w_pop()
        if grp[-1][0] == 10:
            if t4 == 0:
                wq.extend([None, None])
            wq.extend((t4, i) for i in range(16))

    assert cfg.pull0 + 4 <= NM and TL <= 4
    nxt = 7
    for grp in groups:
        n2, t4 = grp[-1]
        if t4 == 0 and n2 < NM:
            st(e, '_n%d' % grp[0][0])
            if grp[0][0] == cfg.prioF2n:
                e.I('s_setprio %d' % cfg.prioF2)
            while pulled[0] <= min(2 * n2 + 5, 13):
                assert dn[0] >= pulled[0]
                wd_read(pulled[0])
                pulled[0] += 1
            if grp[0][0] == cfg.posXB:
                bar_X()
        mm2(grp)
        if t4 == 3 and n2 < NM:
            while nxt <= 10 and nxt - 7 + cfg.pull0 <= n2:
                assert dn[0] >= 2 * nxt + 1
                rq.extend((2 * nxt + hf, dq) for hf in range(2) for dq in range(4))
                nxt += 1
    assert nxt == 11 and not lq
    if cfg.prioF2:
        e.I('s_setprio 0')
    st(e, 'f2end')
    jitter(e, cfg, 5)
    while wq:
        w_pop()
    while zq:
        z_bar()
    st(e, 'end')
    st.flush(e)
    e.I('s_endpgm')


def gen_A(e, cfg, st):
    LR, LI, L16, L128, L256, L16S, KAP, WV = 48, 49, 50, 52, 54, 56, 58, 60
    PP = 32
    SIDX = 3
    RE, IM = 64, 80
    XA, BA = 192, 204
    CV, CA, CA4, WDV = 96, 100, 104, 108
    EV0, EV1, EOOB, ERD, ECNT, EEXP, ONE, FLA, XW, XR, P16 = range(110, 121)
    SEL = 216
    RING0 = 144
    sHD, sHF, sES, sEL, sROT, sDTX = 86, 87, 90, 91, 92, 80
    sDC, sDB, sDE = 93, 94, 95
    if cfg.slim:
        tile_ids(e, cfg, False)
    e.I('v_lshlrev_b32 v1, 4, v0')
    e.I('v_and_b32 v21, 0x13, v0\nv_bfe_u32 v22, v0, 2, 1\nv_lshl_add_u32 v21, v22, 3, v21\nv_bfe_u32 v22, v0, 3, 1\nv_lshl_add_u32 v21, v22, 2, v21')
    e.I('s_lshl_b32 s%d, s%d, 6' % (T0, sCB))
    e.I('v_lshl_add_u32 v21, v21, 1, s%d' % T0)
    e.I('s_lshl_b32 s%d, s%d, 2\ns_add_u32 s%d, s%d, s%d\ns_lshl_b32 s%d, s%d, 4\ns_add_u32 s%d, s%d, s%d' %
        (T3, sRB, T3, T3, sW, T3, T3, T3, T3, sCB))
    e.I('s_lshl_b32 s%d, s%d, 11' % (T2, T3))
    frag_addr(e, BA, 4, 5)
    def karg_block():
        e.wait_smem()
        st(e, '_karg')
        mk_srd(e, SX, P_X, 2048 * 1024)
        mk_srd(e, SWS, P_WS, WS_SIZE)
        if cfg.skew:
            e.I('s_lshl_b32 s%d, s2, 7\ns_add_u32 s%d, s%d, 0x%x\nv_mov_b32 v20, s38' % (T4, T4, T4, STAMP_OFF))
            flag_store(e, 20, T4)
        e.I('s_mov_b32 s%d, 0x%x\ns_lshl_b32 s%d, s%d, 6' % (T4, EPOCH_OFF, T0, sCB))
        e.I('s_load_dword s3, s[%d:%d], s%d' % (P_WS, P_WS + 1, T4))
        for p in (P_LRE, P_LIM, P_LDT):
            e.I('s_load_dword s3, s[%d:%d], s%d' % (p, p + 1, T0))
        e.I('s_lshr_b32 s%d, s2, 3\ns_lshl_b32 s%d, s%d, 2\ns_add_u32 s%d, s%d, s%d\ns_and_b32 s%d, s%d, 15\ns_lshl_b32 s%d, s%d, 6' %
            (T0, T0, T0, T0, T0, sW, T0, T0, T0, T0))
        for p in (P_GW, P_DSK):
            e.I('s_load_dword s3, s[%d:%d], s%d' % (p, p + 1, T0))
        if 's' in cfg.prewarm:
            code_touch(e, 'A')

    if not cfg.apre:
        karg_block()

    def small0():
        e.I('buffer_load_dword v19, off, %s, s%d sc1' % (srd(SWS), T4), tag='ep')
        e.I('global_load_ushort v16, v21, s[%d:%d]' % (P_LRE, P_LRE + 1), tag='par')
        e.I('global_load_ushort v17, v21, s[%d:%d]' % (P_LIM, P_LIM + 1), tag='par')
        e.I('global_load_ushort v18, v21, s[%d:%d]' % (P_LDT, P_LDT + 1), tag='par')

    small1 = [lambda: e.I('global_load_dwordx4 v[44:47], v1, s[%d:%d]' % (P_GW, P_GW + 1), tag='g'),
              lambda: e.I('buffer_load_dwordx4 v[36:39], v1, %s, s%d offen' % (srd(SX), T2), tag='g'),
              lambda: e.I('buffer_load_dwordx4 v[40:43], v1, %s, s%d offen offset:1024' % (srd(SX), T2), tag='g')]
    e.I('s_lshl_b32 s%d, s%d, 3\ns_add_u32 s%d, s%d, 0x%x' % (T6, T3, T6, T6, G_OFF))
    GA, GW0, GO = 121, 124, 126
    if cfg.glds:
        small1 = [lambda: e.I('global_load_dwordx4 v[44:47], v%d, s[%d:%d]' % (GW0, P_GW, P_GW + 1), tag='g'),
                  lambda: e.I('global_load_dwordx4 v[192:195], v%d, s[%d:%d]' % (GW0 + 1, P_GW, P_GW + 1), tag='g')]
        e.I('s_bfe_u32 s%d, s%d, 0x20001\ns_lshl_b32 s%d, s%d, 2\ns_lshr_b32 s%d, s%d, 3\ns_lshl_b32 s%d, s%d, 1\ns_add_u32 s%d, s%d, s%d' %
            (T0, sCB, T0, T0, T1, sCB, T1, T1, T0, T0, T1))
        e.I('s_and_b32 s%d, s%d, 1\ns_add_u32 s%d, s%d, s%d' % (T1, sCB, T0, T0, T1))
        e.I('s_and_b32 s%d, s%d, 7\ns_lshl_b32 s%d, s%d, 8\ns_lshl_b32 s%d, s%d, 12\ns_add_u32 s%d, s%d, s%d' % (T1, T0, T0, T0, T2, sW, T0, T0, T2))
        e.I('v_and_b32 v4, 15, v0\nv_xor_b32 v4, s%d, v4\nv_lshl_add_u32 v%d, v4, 4, s%d' % (T1, GA, T0))
        e.I('v_add_u32 v%d, %d, v%d\nv_add_u32 v%d, %d, v%d' % (GA + 1, WIN, GA, GA + 2, 2 * WIN, GA))
        e.I('v_lshrrev_b32 v4, 4, v0\nv_add_u32 v4, s%d, v4\nv_and_b32 v4, 7, v4\nv_and_b32 v5, 7, v0\nv_lshlrev_b32 v5, 4, v5' % sK0)
        e.I('v_lshl_add_u32 v%d, v4, 7, v5\nv_xor_b32 v%d, 0x200, v%d' % (GW0, GW0 + 1, GW0))
        e.I('v_bfe_u32 v4, v0, 3, 1\nv_lshlrev_b32 v%d, 2, v4' % GO)

    e.I('s_lshl_b32 s%d, s%d, 12' % (T0, sW))
    for s in range(4):
        e.I('v_add_u32 v%d, s%d, v%d' % (XA + s, T0, BA + s))
        e.I('v_add_u32 v%d, %d, v%d' % (XA + 4 + s, WIN, XA + s))
        e.I('v_add_u32 v%d, %d, v%d' % (BA + 4 + s, WIN, BA + s))
        if cfg.lag:
            e.I('v_add_u32 v%d, %d, v%d\nv_add_u32 v%d, %d, v%d' % (XA + 8 + s, 2 * WIN, XA + s, BA + 8 + s, 2 * WIN, BA + s))
    w_lane_offsets(e, cfg, WV, 24, 25)
    e.I('v_lshrrev_b32 v24, 5, v0\ns_lshl_b32 s%d, s%d, 1' % (T0, sW))
    e.I('v_add_u32 v%d, s%d, v24' % (SIDX, T0))
    if cfg.apre:
        karg_block()
    rot2_calc(e, cfg, sROT, 0)
    if cfg.rotS:
        e.I('s_and_b32 s%d, s%d, %d\ns_lshl_b32 s%d, s%d, %d\ns_xor_b32 s%d, s%d, s%d' % (T0, sCT, cfg.rotS[0], T0, T0, cfg.rotS[1], sROT, sROT, T0))
    e.I('s_and_b32 s%d, s%d, 1\ns_lshr_b32 s%d, s%d, 1' % (sDTX, sROT, sROT, sROT))
    e.I('s_bitcmp1_b32 s%d, 0' % sROT)
    mk_srd_sel(e, SC1, P_CIM, P_CRE, 512 * 1024)
    mk_srd_sel(e, SC2, P_CRE, P_CIM, 512 * 1024)
    mk_srd(e, SWD, P_WD, 1376 * 1024)
    step_start(e, cfg, sDC, sDB, sDE, 15)
    e.I('s_cmp_ge_u32 s%d, 2' % sW)
    mk_srd_sel(e, SWA, P_WU, P_WG, 512 * 2752)
    e.I('s_lshl_b32 s%d, s%d, 2\ns_add_u32 s%d, s%d, s%d' % (T0, sRB, T0, T0, sW))
    HW_ = 16384 + cfg.hpad[0]
    HT_ = 4 * HW_ + cfg.hpad[1]
    assert H_OFF + 64 * HT_ <= E_OFF
    e.I('s_mul_i32 s%d, s%d, %d\ns_lshr_b32 s%d, s%d, 1\ns_lshl_b32 s%d, s%d, 13\ns_add_u32 s%d, s%d, s%d' %
        (sHD, T0, HT_, T1, sCB, T1, T1, sHD, sHD, T1))
    e.I('s_lshr_b32 s%d, s%d, 2\ns_mul_i32 s%d, s%d, %d\ns_add_u32 s%d, s%d, s%d' % (T1, sCB, T1, T1, cfg.hpad[0], sHD, sHD, T1))
    e.I('s_and_b32 s%d, s%d, 1\ns_lshl_b32 s%d, s%d, 11\ns_add_u32 s%d, s%d, s%d\ns_add_u32 s%d, s%d, 0x%x' %
        (T1, sCB, T1, T1, sHD, sHD, T1, sHD, sHD, H_OFF))
    e.I('s_lshr_b32 s%d, s%d, 1\ns_lshl_b32 s%d, s%d, 4\ns_add_u32 s%d, s%d, s%d\ns_lshl_b32 s%d, s%d, 1' %
        (T1, T0, T1, T1, T1, T1, sCB, T1, T1))
    e.I('s_and_b32 s%d, s%d, 1\ns_add_u32 s%d, s%d, s%d\ns_mul_i32 s%d, s%d, %d\ns_add_u32 s%d, s%d, 0x%x' %
        (T0, T0, T1, T1, T0, T1, T1, FS, sHF, T1, HF_OFF))
    e.I('s_lshl_b32 s%d, s%d, 13\ns_add_u32 s%d, s%d, 0x%x' % (sEL, sCB, sEL, sEL, E_OFF))
    e.I('s_lshl_b32 s%d, s%d, 9\ns_add_u32 s%d, s%d, s%d\ns_cmp_eq_u32 s%d, 0\ns_cselect_b32 s%d, s%d, 0x%x' %
        (sES, sRB, sES, sES, sEL, sW, sES, sES, OOB))
    e.I('s_sub_u32 s%d, s%d, 1024' % (sEL, sEL))

    tch = Touch(e, cfg, 'A')
    tch.setup()
    tch.at(-1)

    e.I('s_lshl_b32 s%d, s%d, 9\ns_add_u32 s%d, s%d, %d' % (T0, sW, T0, T0, L_E))
    e.I('v_lshl_add_u32 v%d, v0, 3, s%d' % (XW, T0))
    e.I('v_and_b32 v6, 31, v0\nv_lshlrev_b32 v%d, 4, v6\nv_lshlrev_b32 v6, 3, v6\nv_add_u32 v%d, %d, v6' % (P16, XR, L_E))
    e.I('v_and_b32 v4, 3, v0\nv_bfe_u32 v5, v0, 3, 2\nv_lshl_add_u32 v4, v5, 2, v4')
    e.I('v_bfe_u32 v5, v0, 2, 1\nv_lshrrev_b32 v6, 5, v0\nv_xor_b32 v5, v5, v6\nv_lshl_add_u32 v4, v5, 4, v4')
    e.I('v_and_b32 v5, 1, v0\nv_lshlrev_b32 v5, 4, v5\nv_mov_b32 v6, 0x3f80\nv_lshlrev_b32 v5, v5, v6\nv_lshrrev_b32 v4, 1, v4')
    for n in range(8):
        e.I('v_cmp_eq_u32 vcc, %d, v4\nv_cndmask_b32 v%d, 0, v5, vcc' % (n, SEL + n))
    e.I('v_and_b32 v6, 7, v0\nv_lshrrev_b32 v7, 4, v0\nv_xor_b32 v6, v6, v7\nv_lshlrev_b32 v6, 4, v6')
    e.I('v_lshrrev_b32 v7, 3, v0\nv_lshl_add_u32 v6, v7, 10, v6')
    e.I('s_lshl_b32 s%d, s%d, 16\ns_lshl_b32 s%d, s%d, 8\ns_add_u32 s%d, s%d, s%d' % (T0, sCT, T1, sW, T0, T0, T1))
    e.I('v_add_u32 v%d, s%d, v6\nv_xor_b32 v7, 64, v%d' % (CV, T0, CV))
    e.I('v_add_u32 v%d, 7168, v7\nv_add_u32 v%d, 14336, v%d\nv_add_u32 v%d, 21504, v7' % (CV + 1, CV + 2, CV, CV + 3))
    frag16_addr(e, CA, 6, 7)
    for s in range(2):
        e.I('v_add_u32 v%d, s%d, v%d' % (CA + s, sMW, CA + s))
        e.I('v_add_u32 v%d, %d, v%d' % (CA4 + s, 4 * SLOT, CA + s))
    HS = CA + 2
    e.I('v_and_b32 v6, 15, v0\nv_lshlrev_b32 v6, 4, v6\nv_bfe_u32 v7, v0, 4, 1\nv_lshl_add_u32 v6, v7, 10, v6')
    e.I('v_lshrrev_b32 v7, 5, v0\nv_lshl_add_u32 v%d, v7, 8, v6' % HS)
    e.I('s_lshr_b32 s88, s%d, 1\ns_lshl_b32 s88, s88, 7\ns_lshl_b32 s89, s%d, 15\ns_add_u32 s88, s88, s89\ns_xor_b32 s89, s88, 128' % (sROT, sDTX))
    e.I(wd_lane_offsets(e, WDV, 6, 7))
    e.I('s_lshl_b32 s%d, s%d, 2\ns_sub_u32 s%d, s%d, s%d\ns_sub_u32 s%d, s%d, 1\ns_lshl_b32 s%d, s%d, 11' % (T0, sW, T0, sRB, T0, T0, T0, T5, sW))
    e.I('v_lshrrev_b32 v6, 5, v0\nv_sub_u32 v7, s%d, v6' % T0)
    e.I('v_cmp_le_i32 vcc, 0, v7\nv_cmp_le_i32 s[%d:%d], 2, v7' % (sMB, sMB + 1))
    e.I('v_lshl_add_u32 v7, v7, 9, v%d\nv_add_u32 v7, 1024, v7\nv_subrev_u32 v5, 2048, v7\nv_mov_b32 v%d, 0x%x' % (P16, EOOB, OOB))
    e.I('v_cndmask_b32 v%d, v%d, v7, vcc\nv_cndmask_b32 v%d, v%d, v5, s[%d:%d]' % (EV0, EOOB, EV1, EOOB, sMB, sMB + 1))
    e.I('v_lshl_add_u32 v7, v6, 12, v%d\nv_add_u32 v%d, %d, v7' % (P16, ERD, L_EG))
    e.I('v_lshlrev_b32 v6, 3, v6\nv_sub_u32 v%d, s%d, v6\nv_med3_i32 v%d, v%d, 0, 8' % (ECNT, sRB, EEXP, ECNT))
    e.I('v_mov_b32 v%d, 1\nv_mov_b32 v%d, %d' % (ONE, FLA, L_FL))

    pro = []
    add = lambda t: [pro.append(lambda x=x: e.I(x)) for x in t.split('\n')]

    def csq(d, a):
        add('v_mul_f32 v30, v%d, v%d\nv_mul_f32 v31, v%d, v%d\nv_fma_f32 v%d, -v%d, v%d, v30\nv_add_f32 v%d, v31, v31' %
            (a, a, a, a + 1, d, a + 1, a + 1, d + 1))

    def cmul(d, a, b):
        add('v_mul_f32 v30, v%d, v%d\nv_mul_f32 v31, v%d, v%d\nv_fma_f32 v30, -v%d, v%d, v30\nv_fma_f32 v%d, v%d, v%d, v31\nv_mov_b32 v%d, v30' %
            (a, b, a, b + 1, a + 1, b + 1, d + 1, a + 1, b, d))

    pro.append(lambda: e.wait(vm=['ep', 'par']))
    add('v_readfirstlane_b32 s%d, v19' % sNONCE)
    add('v_lshlrev_b32 v16, 16, v16\nv_lshlrev_b32 v17, 16, v17\nv_lshlrev_b32 v18, 16, v18')
    add('s_add_u32 s%d, s%d, 0x%x\ns_or_b32 s%d, s%d, 1' % (sNONCE, sNONCE, PHI, sNONCE, sNONCE))
    add('v_mul_f32 v18, 0x%x, v18\nv_exp_f32 v18, v18\nv_cvt_pk_bf16_f32 v18, v18, v18\nv_lshlrev_b32 v18, 16, v18' % LOG2E)
    add('v_mul_f32 v21, v18, v16\nv_mul_f32 v22, v18, v17')
    add('v_mul_f32 v21, 0x%x, v21\nv_exp_f32 v21, v21' % LOG2E)
    add('v_mul_f32 v22, 0.15915494, v22\nv_rndne_f32 v23, v22\nv_sub_f32 v22, v22, v23\nv_sin_f32 v23, v22\nv_cos_f32 v22, v22')
    add('v_mul_f32 v%d, v21, v23\nv_mul_f32 v%d, v21, v22' % (LI, LR))
    add('v_mul_f32 v21, v16, v16\nv_fmac_f32 v21, v17, v17\nv_rcp_f32 v21, v21\nv_add_f32 v22, -1.0, v%d\nv_add_f32 v21, v21, v21' % LR)
    add('v_mul_f32 v23, v22, v16\nv_fmac_f32 v23, v%d, v17\nv_mul_f32 v%d, v23, v21' % (LI, KAP))
    add('v_mul_f32 v23, v%d, v16\nv_fma_f32 v23, -v22, v17, v23\nv_mul_f32 v%d, v23, v21' % (LI, KAP + 1))
    csq(22, LR); csq(22, 22); csq(22, 22); csq(L16, 22)
    csq(22, L16); csq(24, 22); csq(L128, 24); csq(L256, L128); csq(L256, L256); csq(L256, L256)
    for bit, src, dst in ((1, L16, L16S), (2, 22, 22), (4, 24, 24)):
        add('v_and_b32 v26, %d, v%d\nv_cmp_ne_u32 vcc, 0, v26' % (bit, SIDX))
        add('v_cndmask_b32 v%d, 1.0, v%d, vcc\nv_cndmask_b32 v%d, 0, v%d, vcc' % (dst, src, dst + 1, src + 1))
    cmul(L16S, L16S, 22); cmul(L16S, L16S, 24)
    add('v_mul_lo_u32 v%d, v%d, s%d\nv_mov_b32 v2, s%d' % (EEXP, EEXP, sNONCE, sNONCE))
    EDIR = 'e0' in cfg.prog
    EVK = 132
    if EDIR:
        for k in range(8):
            add('v_subrev_u32 v%d, %d, v%d\nv_cmp_le_i32 vcc, 2, v%d\nv_lshl_add_u32 v%d, v%d, 9, v%d\nv_cndmask_b32 v%d, v%d, v%d, vcc' %
                (EVK + k, k - 1, ECNT, EVK + k, EVK + k, EVK + k, P16, EVK + k, EOOB, EVK + k))

    par, pro = pro, []
    pro.append(lambda: e.wait(vm='g'))
    if cfg.glds:
        for k in range(8):
            gw, x = (44 + k if k < 4 else 188 + k), 36 + k
            add('v_lshlrev_b32 v24, 16, v%d\nv_and_b32 v25, 0xffff0000, v%d' % (gw, gw))
            add('v_lshlrev_b32 v26, 16, v%d\nv_and_b32 v27, 0xffff0000, v%d' % (x, x))
            add('v_mul_f32 v26, v26, v24\nv_mul_f32 v27, v27, v25\nv_cvt_pk_bf16_f32 v26, v26, v27')
            if k == 0:
                add('v_lshlrev_b32 v28, 16, v26\nv_and_b32 v29, 0xffff0000, v26')
            else:
                add('v_lshlrev_b32 v27, 16, v26\nv_and_b32 v26, 0xffff0000, v26\nv_add_f32 v28, v28, v27\nv_add_f32 v29, v29, v26')
        add('v_add_f32 v28, v28, v29')
        for sh in (1, 2, 4):
            add('v_add_f32_dpp v28, v28, v28 row_shr:%d row_mask:0xf bank_mask:0xf' % sh)
        for wd in (32, 16):
            add('v_mov_b32 v29, v28\nv_permlane%d_swap_b32 v28, v29\nv_add_f32 v28, v28, v29' % wd)
        add('v_cvt_pk_bf16_f32 v28, v28, v28\nv_lshlrev_b32 v28, 16, v28\nv_mul_f32 v28, 0x%x, v28\nv_exp_f32 v28, v28' % NLOG2E)
        add('v_add_f32 v28, 1.0, v28\nv_rcp_f32 v28, v28\nv_cvt_pk_bf16_f32 v28, v28, v28\nv_lshlrev_b32 v28, 16, v28')
    else:
        for k in range(4):
            add('v_lshlrev_b32 v24, 16, v%d\nv_and_b32 v25, 0xffff0000, v%d' % (44 + k, 44 + k))
            for row in range(2):
                x = 36 + 4 * row + k
                add('v_lshlrev_b32 v26, 16, v%d\nv_and_b32 v27, 0xffff0000, v%d' % (x, x))
                add('v_mul_f32 v26, v26, v24\nv_mul_f32 v27, v27, v25\nv_cvt_pk_bf16_f32 v26, v26, v27')
                add('v_lshlrev_b32 v27, 16, v26\nv_and_b32 v26, 0xffff0000, v26')
                if k == 0:
                    add('v_add_f32 v%d, v26, v27' % (28 + row))
                else:
                    add('v_add_f32 v26, v26, v27\nv_add_f32 v%d, v%d, v26' % (28 + row, 28 + row))
        for mod in ('row_shr:1 row_mask:0xf', 'row_shr:2 row_mask:0xf', 'row_shr:4 row_mask:0xf', 'row_shr:8 row_mask:0xf',
                    'row_bcast:15 row_mask:0xa', 'row_bcast:31 row_mask:0xc'):
            for row in range(2):
                add('v_add_f32_dpp v%d, v%d, v%d %s bank_mask:0xf' % (28 + row, 28 + row, 28 + row, mod))
        add('v_cvt_pk_bf16_f32 v26, v28, v29\nv_lshlrev_b32 v28, 16, v26\nv_and_b32 v29, 0xffff0000, v26')
        add('v_mul_f32 v28, 0x%x, v28\nv_mul_f32 v29, 0x%x, v29\nv_exp_f32 v28, v28\nv_exp_f32 v29, v29' % (NLOG2E, NLOG2E))
        add('v_add_f32 v28, 1.0, v28\nv_add_f32 v29, 1.0, v29\nv_rcp_f32 v28, v28\nv_rcp_f32 v29, v29')
        add('v_cvt_pk_bf16_f32 v26, v28, v29\nv_lshlrev_b32 v28, 16, v26\nv_and_b32 v29, 0xffff0000, v26')
    gate, pro = pro, par

    gdone = []

    def g_store():
        gdone.append(1)
        if cfg.glds:
            e.I('s_mov_b64 exec, 0x8080')
            e.I('buffer_store_dword v28, v%d, %s, s%d offen sc1' % (GO, srd(SWS), T6), tag='gs')
            e.I('s_mov_b64 exec, -1')
            return
        e.I('s_mov_b32 exec_lo, 0\ns_mov_b32 exec_hi, 0x80000000')
        e.I('buffer_store_dwordx2 v[28:29], off, %s, s%d sc1' % (srd(SWS), T6), tag='gs')
        e.I('s_mov_b64 exec, -1')

    nbar = [0]

    def s_bar(i):
        assert nbar[0] == i
        nbar[0] += 1
        e.I('s_barrier')
        if i in (0, 7):
            st(e, 'b%d' % i)

    def s_read(n):
        i, s = n >> 2, n & 3
        slot = s_slot(i)
        if s == 0 and not cfg.lag:
            s_bar(i)
        assert nbar[0] > i
        off = (slot & 1) * SLOT
        if cfg.glds and s == 2:
            m = 0xffff << (16 * (i & 3))
            e.I('s_mov_b32 exec_lo, 0x%x\ns_mov_b32 exec_hi, 0x%x' % (m & 0xffffffff, m >> 32))
            e.I('ds_read_b128 %s, v%d offset:%d' % (vr(36 + 4 * (i >> 2), 4), GA + (slot >> 1), off), tag='gx')
            e.I('s_mov_b64 exec, -1')
        b = RING0 + 12 * (n & 3)
        e.I('ds_read_b128 %s, v%d offset:%d' % (vr(b + 8, 4), XA + 4 * (slot >> 1) + s, off), tag=('s', n, 0))
        for part in range(2):
            e.I('ds_read_b128 %s, v%d offset:%d' % (vr(b + 4 * part, 4), BA + 4 * (slot >> 1) + s,
                                                    off + 16384 + part * 4096), tag=('s', n, part))

    def s_mm(n, part):
        e.wait(lg=('s', n, part))
        b = RING0 + 12 * (n & 3)
        mfma(e, RE + 16 * part, b + 8, b + 4 * part, n == 0)

    D = 2
    seq = []
    for n in range(32):
        seq.append(lambda n=n: (s_mm(n, 0), s_read(n + D) if n + D < 32 else None))
        seq.append(lambda n=n: s_mm(n, 1))
    st(e, '_pro')
    if cfg.lag:
        L = cfg.lag
        npar = len(pro) // max(L - 1, 1) + 1
        for i in range(L):
            s_bar(i)
            tch.at(10 + i)
            if i == 0:
                small0()
            if i >= 1:
                run(pro[(i - 1) * npar:i * npar])
        s_bar(L)
        for n in range(D):
            s_read(n)
        r2 = 2 * cfg.lagr
        for k, it in enumerate(seq):
            it()
            i = L + (k + 1) // r2
            if (k + 1) % r2 == 0 and i <= 7:
                assert (k + 1) // 2 >= 4 * (i - 3)
                s_bar(i)
    else:
        for n in range(D):
            s_read(n)
        p0 = 2 * cfg.smallpos
        run(seq[:p0])
        small0()
        run(seq[p0:p0 + 10])
        run(weave(seq[p0 + 10:56], pro) + seq[56:])
    assert nbar[0] == 8
    st(e, 's1end')
    jitter(e, cfg, 6)
    if cfg.prioA:
        e.I('s_setprio %d' % cfg.prioA)

    def items(txt):
        return [lambda t=t: e.I(t) for t in txt.split('\n')]

    def cfma(d, l, a, c):
        return items('v_fma_f32 v%d, v%d, v%d, v%d\nv_fma_f32 v%d, v%d, v%d, v%d\nv_fma_f32 v%d, -v%d, v%d, v%d\nv_fmac_f32 v%d, v%d, v%d' %
                     (d, l, a, c, d + 1, l, a + 1, c + 1, d, l + 1, a + 1, d, d + 1, l + 1, a))

    e.raw('; ---- role A: local scan end states')
    prev = (RE, IM)
    for r in range(1, 16):
        cur = (20 + 2 * (r & 1), 21 + 2 * (r & 1))
        e.I('v_fma_f32 v%d, v%d, v%d, v%d' % (cur[0], LR, prev[0], RE + r))
        e.I('v_fma_f32 v%d, v%d, v%d, v%d' % (cur[1], LR, prev[1], IM + r))
        e.I('v_fma_f32 v%d, -v%d, v%d, v%d' % (cur[0], LI, prev[1], cur[0]))
        e.I('v_fmac_f32 v%d, v%d, v%d' % (cur[1], LI, prev[0]))
        prev = cur
    e.I('ds_write_b64 v%d, %s' % (XW, vr(prev[0], 2)), tag='ex')

    def c_reg(u, s2, dq):
        return 128 + 32 * u + 16 * s2 + 4 * dq

    CBUF = cfg.cbuf
    CPREV = {i: max(k for k in range(i) if CBUF[k] == CBUF[i]) for i in range(8) if CBUF[i] in CBUF[:i]}
    cdone = set()
    hdone = []

    def c_read(i):
        if i in cdone:
            return
        cdone.add(i)
        assert gdone or not cfg.glds or i < 4
        assert hdone or not EDIR
        assert i < 4 or hdone
        e.wait(vm=('c', i))
        for s in range(4):
            a_, off = (CA4 + (s >> 1), 0) if CBUF[i] == 4 else (CA + (s >> 1), CBUF[i] * SLOT)
            e.I('ds_read_b128 %s, v%d offset:%d' % (vr(c_reg(i >> 1, s >> 1, 2 * (i & 1) + (s & 1)), 4), a_, off + (s & 1) * 2048), tag=('cr', i))

    def c_loads(i):
        u, dt = i >> 1, i & 1
        its = []
        for q in range(4):
            def f(q=q):
                if q == 0:
                    if i in CPREV:
                        c_read(CPREV[i])
                        e.wait(lg=('cr', CPREV[i]))
                    elif CBUF[i] != 4 and (6 + CBUF[i] > cfg.JL or 4 + CBUF[i] >= 8 - cfg.NT):
                        assert kcur[0] >= cfg.JL
                        cnt_spin(e, 'L_cb%d' % i, FLA, 34, C_CONS + 28)
                    e.I('s_xor_b32 s%d, s%d, %d' % (sTD, 88 + (u >> 1), dt * 32768))
                set_m0(e, sMW, CBUF[i] * SLOT)
                e.I('buffer_load_dwordx4 v%d, %s, s%d offen offset:%d %slds' % ((CV + q, srd(SC2 if u & 1 else SC1), sTD, 1024 * q) + (ntf('c', i),)), tag=('c', i))
                if q == 3:
                    st(e, '_c%d' % i)
                if q == 3 and i >= 2:
                    c_read(i - 2)
            its.append(f)
        return its

    def d_loads(n):
        sl, pos = RING[n]
        its = []
        for q in range(2):
            def f(q=q):
                set_m0(e, sMW, sl * SLOT + pos * 2048)
                if q == 0 and n:
                    wd_next(e, n, sDC, sDB, sDE)
                e.I('buffer_load_dwordx4 v%d, %s, s%d offen offset:%d %slds' % ((WDV + q, srd(SWD), sDC, 1024 * q) + (ntf('d', n),)), tag='wd')
            its.append(f)
        return its

    wl = {j: dma_W(e, WV, SWA, j) for j in range(2, 8)}
    planned = set()

    def e_loads():
        its = []
        for q in range(2):
            def f(q=q):
                set_m0(e, T5, L_EG)
                e.I('buffer_load_dwordx4 v%d, %s, s%d offen offset:%d sc1 lds' % (EV0 + q, srd(SWS), sEL, 1024 * q), tag='eg')
            its.append(f)
        return its

    def expand(toks, k):
        r = []
        for t in toks.split(','):
            if not t:
                continue
            n = int(t[1])
            planned.add(t)
            if t[0] == 'W':
                assert n < 4 or k >= n - 2 or (k == n - 3 and k in cfg.drain)
                r += wl[n][:3] if t[2:] == 'a' else wl[n][3:] if t[2:] == 'b' else wl[n]
            elif t[0] == 'C':
                assert CBUF[n] == 4 or k >= min(6 + CBUF[n], cfg.JL)
                assert k >= 2 or cfg.w0pos is None
                r += c_loads(n)
            elif t[0] == 'D':
                r += d_loads(n)
            elif t[0] == 'R':
                r.append(lambda n=n: c_read(n))
            elif t[0] == 'S':
                r.append(lambda n=n: (hq[n](), hsent.add(n)))
            elif t[0] == 'G':
                r += small1
            elif t[0] == 'e':
                r += [lambda k=k: e.I('buffer_load_dwordx4 %s, v%d, %s, s%d offen sc1' % (vr(224 + 4 * k, 4), EVK + k, srd(SWS), sEL), tag='egv')
                      for k in range(8)]
            elif t[0] == 'E':
                r += e_loads()
            elif t[0] == 'T':
                r.append(lambda n=n: tch.at(n))
        return r

    def bar(k, extra=()):
        kk = 7 if k == cfg.JL else k
        assert kk < 2 or 'W%d' % kk in planned or 'W%db' % kk in planned or (kk == 2 and cfg.w0pos is not None)
        e.wait(vm=[('st', 8 + kk)] + list(extra))
        st(e, '_a%d' % k)
        e.I('s_barrier')
        st(e, '_d%d' % k)

    sc = []
    for r in range(16):
        sc += items('v_mul_f32 v4, v%d, v%d\nv_mul_f32 v5, v%d, v%d\nv_fma_f32 v%d, v%d, v%d, -v4\nv_fma_f32 v%d, v%d, v%d, v5' %
                    (KAP + 1, IM + r, KAP + 1, RE + r, RE + r, KAP, RE + r, IM + r, KAP, IM + r))
    if cfg.pksc:
        kp = vr(KAP, 2)
        for r in range(0, 16, 4):
            for o in (0, 2):
                e.I('v_pk_mul_f32 %s, %s, %s op_sel:[1,0] op_sel_hi:[1,1]' % (vr(4 + 2 * o, 2), kp, vr(IM + r + o, 2)))
                e.I('v_pk_mul_f32 %s, %s, %s op_sel:[1,0] op_sel_hi:[1,1]' % (vr(6 + 2 * o, 2), kp, vr(RE + r + o, 2)))
            for o in (0, 2):
                e.I('v_pk_fma_f32 %s, %s, %s, %s op_sel_hi:[0,1,1] neg_lo:[0,0,1] neg_hi:[0,0,1]' % (vr(RE + r + o, 2), kp, vr(RE + r + o, 2), vr(4 + 2 * o, 2)))
                e.I('v_pk_fma_f32 %s, %s, %s, %s op_sel_hi:[0,1,1]' % (vr(IM + r + o, 2), kp, vr(IM + r + o, 2), vr(6 + 2 * o, 2)))
        late = []
    else:
        run(sc[:cfg.early])
        late = sc[cfg.early:]
    e.wait(lg='all')
    bar(0)
    work = []
    for s in range(8):
        e.I('ds_read_b64 %s, v%d offset:%d' % (vr(4 + 2 * s, 2), XR, 256 * s), tag=('e', s))
    pf = []
    for s in range(1, 8):
        pf.append(lambda s=s: e.wait(lg=('e', s)))
        pf += cfma(4 + 2 * s, L16, 2 + 2 * s, 4 + 2 * s)
    segs = [[sub.split('|') for sub in sg.split('&')] for sg in cfg.prog.split(';')]
    issued_tok = set()
    q0 = expand(segs[0][0][0], 0)
    run(weave(q0[:cfg.pren], pf))
    e.I('v_mov_b32 v20, s%d\nv_mov_b32 v21, s%d' % (sNONCE, sNONCE))
    e.I('s_mov_b32 exec_hi, 0')
    e.I('buffer_store_dwordx4 v[18:21], v%d, %s, s%d offen sc1' % (P16, srd(SWS), sES), tag='es')
    e.I('s_mov_b32 exec_hi, -1')
    st(e, 'epub')
    jitter(e, cfg, 7)
    run(q0[cfg.pren:])
    gate.append(g_store)
    sel = items('v_mov_b32 v%d, 0\nv_mov_b32 v%d, 0' % (PP, PP + 1))
    for s in range(1, 8):
        sel.append(lambda s=s: e.I('v_cmp_eq_u32 vcc, %d, v%d\nv_cndmask_b32 v%d, v%d, v%d, vcc\nv_cndmask_b32 v%d, v%d, v%d, vcc' %
                                   (s, SIDX, PP, PP, 2 + 2 * s, PP + 1, PP + 1, 3 + 2 * s)))
    EG = 224

    def e_check():
        e.I('v_add3_u32 v4, v%d, v%d, v%d\nv_add3_u32 v5, v%d, v%d, v%d' % tuple(EG + 4 * k + 2 for k in range(6)))
        e.I('v_add3_u32 v4, v4, v%d, v%d\nv_add_u32 v4, v4, v5' % (EG + 26, EG + 30))
        e.I('v_cmp_ne_u32 vcc, v4, v%d' % EEXP)

    def e_verify():
        assert 'e0' in issued_tok or not EDIR
        e.wait(vm='egv', lg='eg')
        e_check()
        e.I('s_cbranch_vccnz L_pollE')
        e.label('L_pollE_out')
        st(e, 'egot')
        with e.cold_block():
            e.label('L_pollE')
            e.I('s_mov_b32 s%d, 0' % sCNT)
            e.label('L_pollE_l')
            if cfg.esleep:
                e.I('s_sleep %d' % cfg.esleep)
            for k in range(8):
                e.I('v_subrev_u32 v4, %d, v%d\nv_cmp_le_i32 vcc, 2, v4\nv_lshl_add_u32 v4, v4, 9, v%d\nv_cndmask_b32 v4, v%d, v4, vcc' % (k - 1, ECNT, P16, EOOB))
                e.I('buffer_load_dwordx4 %s, v4, %s, s%d offen sc1' % (vr(EG + 4 * k, 4), srd(SWS), sEL))
            e.I('s_add_u32 s%d, s%d, 1' % (sCNT, sCNT))
            e.I('s_cmp_gt_u32 s%d, %d' % (sCNT, SPIN_MAX))
            e.wait(vm='all')
            e.I('s_cbranch_scc1 L_pollE_out')
            e_check()
            e.I('s_cbranch_vccnz L_pollE_l')
            e.I('s_branch L_pollE_out')

    def second_pass():
        p2 = []
        if not EDIR:
            p2.append(lambda: [e.I('ds_read_b128 %s, v%d offset:%d' % (vr(EG + 4 * k, 4), ERD, 512 * k), tag='eg') for k in range(8)])
        p2.append(e_verify)
        for k in range(6, -1, -1):
            p2 += cfma(EG + 4 * k, L128, EG + 4 * k + 4, EG + 4 * k)
        p2 += items('v_mov_b32 v4, v%d\nv_mov_b32 v5, v%d\nv_permlane32_swap_b32 v4, v%d\nv_permlane32_swap_b32 v5, v%d' % (EG, EG + 1, EG, EG + 1))
        p2 += cfma(4, L256, EG, 4)
        p2 += cfma(PP, L16S, 4, PP)
        p2 += items('v_mul_f32 v6, v%d, v%d\nv_mul_f32 v7, v%d, v%d' % (KAP, PP, KAP, PP + 1))
        p2 += items('v_fma_f32 v6, -v%d, v%d, v6\nv_fmac_f32 v7, v%d, v%d' % (KAP + 1, PP + 1, KAP + 1, PP))
        prev = (6, 7)
        for r in range(16):
            p2 += items('v_fmac_f32 v%d, v%d, v%d\nv_fmac_f32 v%d, v%d, v%d\nv_fma_f32 v%d, -v%d, v%d, v%d\nv_fmac_f32 v%d, v%d, v%d' %
                        (RE + r, LR, prev[0], IM + r, LR, prev[1], RE + r, LI, prev[1], RE + r, IM + r, LI, prev[0]))
            prev = (RE + r, IM + r)
        return p2

    def store_h(loads):
        assert not p2
        for part in range(2):
            for k in range(8):
                sg_ = '-' if part else ''
                e.I('v_cvt_pk_bf16_f32 v%d, %sv%d, %sv%d' % (8 + 8 * part + k, sg_, RE + 16 * part + 2 * k, sg_, RE + 16 * part + 2 * k + 1))
            for m in range(2):
                mfma(e, RE + 16 * part, 8 + 8 * part + 4 * m, SEL + 4 * m, m == 0)
        hdone.append(1)
        run(loads)
        e.I('s_add_u32 s%d, s%d, 4096' % (T0, sHD))
        for part in range(2):
            for m in range(2):
                o = 8 + 8 * part + 4 * m
                for k in range(4):
                    e.I('v_cvt_pk_bf16_f32 v%d, v%d, v%d' % (o + k, RE + 16 * part + 8 * m + 2 * k, RE + 16 * part + 8 * m + 2 * k + 1))
                hq.append(lambda o=o, part=part, m=m: e.I('buffer_store_dwordx4 %s, v%d, %s, s%d offen offset:%d sc1' %
                                                         (vr(o, 4), HS, srd(SWS), T0 if part else sHD, 512 * m), tag='hs'))
                if len(hq) <= cfg.hnow:
                    hq[-1]()
                    hsent.add(len(hq) - 1)

    hq = []
    hsent = set()
    kcur = [0]
    p2 = second_pass()
    for k, sub, toks, work in [(k, i, t, w) for k, sg in enumerate(segs) for i, (t, w) in enumerate(sg)]:
        if k == 0:
            continue
        if k <= cfg.JL and sub == 0:
            bar(k, ['eg'] if work[:1] == 'P' else [])
        kcur[0] = k
        q = expand(toks, k)
        if work[:3] == 'sel' or work[:1] == 'g':
            fill = []
            for wk in work.split('+'):
                if wk == 'sel':
                    fill += sel + ([] if 'late' in cfg.prog else late)
                else:
                    n = len(gate) if wk == 'g' else int(wk[1:])
                    fill += gate[:n]
                    del gate[:n]
            run(weave(q, fill) if not cfg.lfirst else q[:cfg.lfirst] + weave(q[cfg.lfirst:] or [lambda: None], fill))
        elif work == 'late':
            run(weave(q, late))
        elif work[:1] == 'P':
            assert EDIR or 'eg' not in e.vm
            wk = work.rstrip('H')
            n = cfg.p2cut if wk == 'P0' else len(p2) if wk in ('P', 'P1') else int(wk[1:])
            part = p2[:n]
            del p2[:n]
            run(part[:1] + (weave(q, part[1:]) if q else part[1:]))
            if work[-1] == 'H':
                st(e, 'p2done')
                store_h([])
        elif work[:1] == 'H':
            st(e, 'p2done')
            store_h(q)
            run(expand(work[2:], k))
        elif work == 'F':
            run(hq[n] for n in range(4) if n not in hsent)
            st(e, 'hst')
            jitter(e, cfg, 8)
            run(q)
            assert gdone and len(hq) == 4
            e.wait(vm=['hs', 'gs'])
            flag_store(e, 2, sHF)
            st(e, 'hflag')
            jitter(e, cfg, 9)
        else:
            run(q)
        issued_tok.update(toks.split(','))
    assert len(segs) > cfg.JL
    HV, PW = 6, 8
    rest = [i for i in range(8) if 'C%d' % i not in planned]
    run(c_loads(rest.pop(0)))
    e.I('s_mul_i32 s%d, s%d, %d\ns_mul_i32 s%d, s%d, %d\ns_add_u32 s%d, s%d, s%d\ns_add_u32 s%d, s%d, 0x%x' %
        (T0, sRT, 2 * HT_, T1, sW, HW_, T0, T0, T1, T0, T0, H_OFF))
    e.I('v_add_u32 v%d, s%d, v1\nv_add_u32 v%d, %d, v%d' % (HV, T0, HV + 1, HT_, HV))
    for u in range(4):
        e.I('s_xor_b32 s%d, s%d, %d\ns_lshl_b32 s%d, s%d, 12' % (93 + u, sROT, u, 93 + u, 93 + u))
    part_write_addr(e, PW, 12, 13, 16384, 4096, SPART)
    mk_srd(e, SOUT, P_OUT, 2048 * 2048)
    e.I('s_lshl_b32 s%d, s%d, 2\ns_add_u32 s%d, s%d, s%d\ns_mul_i32 s%d, s%d, %d\ns_add_u32 s%d, s%d, 0x%x' %
        (T0, sRT, T0, T0, sW, T0, T0, 8 * FS, T0, T0, HF_OFF))
    e.I('v_mul_u32_u24 v12, %d, v0\nv_mov_b32 v5, v2' % FS)

    def h_reg(k):
        return 16 + 4 * (k % 12)

    SC = 'S' in cfg.chain

    def h_idx(k):
        return (2 * (k >> 3) + (k & 1), (k >> 1) & 3) if SC else (k >> 2, k & 3)

    def h_load(k):
        n2, t4 = h_idx(k)
        e.I('buffer_load_dwordx4 %s, v%d, %s, s%d offen offset:%d sc1' % (vr(h_reg(k), 4), HV + (t4 >> 1), srd(SWS), 93 + (n2 >> 1),
                                                                            2048 * (n2 & 1) + 1024 * (t4 & 1)), tag=('h', k))

    def c_finish():
        for i in range(8):
            c_read(i)
        e.wait(vm='wd')
        cnt_add(e, FLA, ONE, C_DONEA)
        st(e, 'cgot')

    while rest and rest[0] < cfg.hlook:
        run(c_loads(rest.pop(0)))
    if cfg.hlook > 8:
        c_finish()
    poll(e, 'L_pollH', 13, 12, T0, '0xff',
         lambda: ([run(c_loads(i)) for i in rest], c_finish() if cfg.hearly == 0 and cfg.hlook <= 8 else None))
    st(e, 'hrdy')
    jitter(e, cfg, 10)
    XO, RA, GV, RF = 2, 3, 4, 14
    ROWS = (0, 8, 32, 40)
    XL, DL, GL, XD, PW1 = 128, 136, 138, 144, 10
    fin = items('s_lshl_b32 s%d, s%d, 6\ns_add_u32 s%d, s%d, s%d' % (T0, sRT, T0, T0, sW))
    fin += items('v_lshrrev_b32 v12, 4, v0\nv_lshrrev_b32 v13, 2, v0\nv_and_b32 v13, 2, v13\nv_xor_b32 v12, v12, v13')
    fin += items('v_and_b32 v15, 1, v12\nv_lshl_add_u32 v13, v15, 4, s%d\nv_lshrrev_b32 v3, 1, v12\nv_lshl_add_u32 v13, v3, 2, v13' % T0)
    fin += items('v_and_b32 v14, 15, v0\ns_lshl_b32 s%d, s%d, 7' % (T1, sCT))
    fin += items('v_lshl_add_u32 v1, v14, 3, s%d' % T1)
    fin += items('v_lshl_add_u32 v%d, v13, 10, v1' % XO)
    fin += items('v_lshlrev_b32 v%d, 2, v13\nv_add_u32 v%d, 0x%x, v%d' % (GV, GV, G_OFF, GV))
    fin += items('s_lshl_b32 s%d, s%d, 8\ns_add_u32 s%d, s%d, %d' % (T2, sW, T1, T2, SPART))
    fin += items('v_lshl_add_u32 v3, v3, 10, s%d\nv_lshl_add_u32 v3, v15, 14, v3' % T1)
    fin += items('v_lshl_or_b32 v13, v15, 2, s%d\nv_xor_b32 v13, v13, v14\nv_lshl_add_u32 v%d, v13, 4, v3' % (sW, RA))
    fin += items('v_lshl_add_u32 v12, v12, 6, s%d\nv_lshrrev_b32 v13, 2, v14\nv_lshl_add_u32 v12, v13, 10, v12' % T2)
    fin += items('v_and_b32 v13, 3, v0\nv_lshl_add_u32 v%d, v13, 4, v12\nv_add_u32 v%d, %d, v%d' % (RF, RF + 1, 2 * SLOT, RF))
    fin += items('s_lshl_b32 s%d, s%d, 7' % (T0, sDTX))
    for a in range(2):
        fin += items('v_xor_b32 v%d, s%d, v%d\nv_xor_b32 v%d, 0x80, v%d' % (PW + a, T0, PW + a, PW1 + a, PW + a))
    if cfg.posX < 0:
        run(fin)
    for k in range(cfg.NVA):
        if cfg.posX < 0 and k == -1 - cfg.posX:
            assert k >= cfg.hearly
            e.wait(lg='all')
            e.I('s_barrier')
        if k == cfg.hearly // 2 and k:
            c_read(6)
        if k == cfg.hearly and k:
            c_finish()
        h_load(k)
    e.wait(lg='all')
    if cfg.posX >= 0:
        run(fin)

    def fx_loads():
        e.I('global_load_dwordx2 %s, v1, s[%d:%d]' % (vr(DL, 2), P_DSK, P_DSK + 1), tag='fx')
        for n in range(4):
            e.I('s_mov_b32 s%d, %d' % (T2, 1024 * ROWS[n]))
            e.I('buffer_load_dwordx2 %s, v%d, %s, s%d offen' % (vr(XL + 2 * n, 2), XO, srd(SX), T2), tag='fx')

    def g_loads():
        for n in range(4):
            e.I('buffer_load_dword v%d, v%d, %s, 0 offen offset:%d sc1' % (GL + n, GV, srd(SWS), 4 * ROWS[n]), tag='fg')

    DU = 160
    xd = [lambda: e.wait(vm='fx')]
    xd += items('v_lshlrev_b32 v%d, 16, v%d\nv_and_b32 v%d, 0xffff0000, v%d\nv_lshlrev_b32 v%d, 16, v%d\nv_and_b32 v%d, 0xffff0000, v%d' %
                (DU, DL, DU + 1, DL, DU + 2, DL + 1, DU + 3, DL + 1))
    for n in range(4):
        for k in range(2):
            x = XL + 2 * n + k
            xd += items('v_lshlrev_b32 v12, 16, v%d\nv_and_b32 v13, 0xffff0000, v%d' % (x, x))
            xd += items('v_mul_f32 v12, v12, v%d\nv_mul_f32 v13, v13, v%d' % (DU + 2 * k, DU + 1 + 2 * k))
            xd += items('v_cvt_pk_bf16_f32 v13, v12, v13')
            xd += items('v_lshlrev_b32 v%d, 16, v13\nv_and_b32 v%d, 0xffff0000, v13' % (XD + 4 * n + 2 * k, XD + 4 * n + 2 * k + 1))
    xd += items('v_mov_b32 v12, %d\nv_mov_b32 v13, 1\nv_lshlrev_b32 v%d, 1, v%d' % (L_P2, XO, XO))

    sbegun = set()

    def s2_step(k):
        n2, t4 = h_idx(k)
        if k == 2 * cfg.posX:
            e.I('s_barrier')
        e.wait(vm=('h', k | 1 if SC else k))
        for dq in range(4):
            kk = k
            if SC:
                assert cfg.NVA <= 10
                i = 4 * (k & 1) + dq
                kk = (k & ~1) + ((i & 1) ^ ((i >> 1) & 1))
                d = i >> 1
                n2 = h_idx(kk)[0]
            else:
                d = dq
            if cfg.snake and t4 & 1:
                d = 3 - d
            mfma16(e, acc2(t4, d), c_reg(n2 >> 1, n2 & 1, d), h_reg(kk), acc2(t4, d) not in sbegun)
            sbegun.add(acc2(t4, d))
            if dq == (0 if cfg.NVA < 12 else 3) and k + cfg.NVA < 32:
                h_load(k + cfg.NVA)
        if k == 8:
            fx_loads()
        if k == max(8, 2 * cfg.posX):
            g_loads()
    steps = [lambda k=k: s2_step(k) for k in range(32)]
    if cfg.xdpos < 32:
        run(steps[:cfg.xdpos] + weave(steps[cfg.xdpos:], xd))
    else:
        run(steps + xd[-3:])
    st(e, 's2end')
    jitter(e, cfg, 11)
    if cfg.posX == 16:
        e.I('s_barrier')
        g_loads()
    st(e, '_X')
    run(part_write(e, PW, 16384, 0, PW1) + part_write(e, PW, 16384, 1, PW1))
    cnt_add(e, 12, 13, 0)
    if cfg.xdpos >= 32:
        run(xd[:-1])
    OM = 164
    e.wait(vm='fg')
    for n in range(4):
        e.I('v_sub_f32 v%d, 1.0, v%d' % (OM + n, GL + n))
        e.I('v_cvt_pk_bf16_f32 v%d, v%d, v%d\nv_lshlrev_b32 v%d, 16, v%d' % (OM + n, OM + n, OM + n, OM + n, OM + n))
    for n in range(4):
        e.I('s_mov_b32 s%d, %d' % (T2 + n, 2048 * ROWS[n]))
    e.I('s_lshl_b32 s%d, s%d, 5\ns_add_u32 s%d, s%d, s%d\ns_lshl_b32 s%d, s%d, 8\ns_add_u32 s%d, s%d, s%d' %
        (T0, sCT, T0, T0, sRT, T1, sW, T0, T0, T1))
    e.I('s_cmp_eq_u32 s%d, 31\ns_cselect_b32 s%d, 0x%x, s%d' % (T0, T0, EPOCH_OFF, SWS + 2))
    flag_store(e, 5, T0)
    cnt_spin(e, 'L_spinM', 12, 16, 0)
    e.wait(lg='all')
    for n in range(4):
        for w in range(4):
            e.I('ds_read_b128 %s, v%d offset:%d' % (vr(64 + 16 * n + 4 * w, 4), RA, w * 4096 + (n & 1) * 2048 + (n >> 1) * 32768), tag=('r', n))
    BS = XD
    for n in range(4):
        e.wait(lg=('r', n))
        b = 64 + 16 * n
        for k in range(4):
            e.I('v_add_f32 v%d, v%d, v%d\nv_add_f32 v%d, v%d, v%d' % (b + k, b + k, b + 4 + k, b + 8 + k, b + 8 + k, b + 12 + k))
        for k in range(4):
            e.I('v_add_f32 v%d, v%d, v%d' % (b + k, b + k, b + 8 + k))
        for k in range(4):
            e.I('v_add_f32 v%d, v%d, v%d' % (b + k, b + k, XD + 4 * n + k))
        for k in range(4):
            e.I('v_mul_f32 v%d, v%d, v%d' % (BS + 4 * n + k, GL + n, b + k))
    st(e, 'pre')
    jitter(e, cfg, 12)
    for grp in cfg.zg:
        e.I('s_barrier')
        st(e, 'Z' if 3 in grp else '_Z%d' % grp[0])
        for n in grp:
            for w in range(4):
                e.I('ds_read_b128 %s, v%d offset:%d' % (vr(64 + 16 * n + 4 * w, 4), RF + (n >> 1), w * 6144 + (n & 1) * SLOT), tag=('r', n, w >> 1))
        for n in grp:
            b = 64 + 16 * n
            for o, p in ((0, 4), (8, 12), (0, 8)):
                e.wait(lg=('r', n, o >> 3))
                if 3 in grp:
                    for k in (0, 2):
                        e.I('v_pk_add_f32 %s, %s, %s' % (vr(b + o + k, 2), vr(b + o + k, 2), vr(b + p + k, 2)))
                else:
                    for k in range(4):
                        e.I('v_add_f32 v%d, v%d, v%d' % (b + o + k, b + o + k, b + p + k))
            if cfg.mimic2:
                for rnd in range(2):
                    e.I('v_cvt_pk_bf16_f32 v%d, v%d, v%d\nv_cvt_pk_bf16_f32 v%d, v%d, v%d' % (b + 1, b, b + 1, b + 3, b + 2, b + 3))
                    for k in (0, 2):
                        e.I('v_lshlrev_b32 v%d, 16, v%d\nv_and_b32 v%d, 0xffff0000, v%d' % (b + k, b + k + 1, b + k + 1, b + k + 1))
                    if rnd == 0:
                        for k in range(4):
                            e.I('v_mul_f32 v%d, v%d, v%d' % (b + k, OM + n, b + k))
                for k in (0, 2):
                    e.I('v_pk_add_f32 %s, %s, %s' % (vr(b + k, 2), vr(b + k, 2), vr(BS + 4 * n + k, 2)))
            else:
                for k in range(4):
                    e.I('v_fma_f32 v%d, v%d, v%d, v%d' % (b + k, OM + n, b + k, BS + 4 * n + k))
            e.I('buffer_store_dwordx4 %s, v%d, %s, s%d offen %s' % (vr(b, 4), XO, srd(SOUT), T2 + n, cfg.outflags.replace('_', ' ') if isinstance(cfg.outflags, str) else cfg.outflags[n]), tag='out')
    if st.on:
        e.wait(vm='all')
    if cfg.skew:
        e.I('s_and_b32 s%d, s2, %d\ns_lshl_b32 s%d, s%d, 7\ns_add_u32 s%d, s%d, 0x%x' % (T4, cfg.skew[0], T4, T4, T4, T4, STAMP_OFF))
        e.I('buffer_load_dword v62, off, %s, s%d sc1' % (srd(SWS), T4))
        e.wait(vm='all')
        e.I('v_readfirstlane_b32 s12, v62')
        if cfg.skew[1] > 0:
            e.I('s_sub_u32 s12, s38, s12')
        else:
            e.I('s_sub_u32 s12, s12, s38')
        e.I('s_add_u32 s12, s12, 300\ns_add_u32 s10, s38, s12')
        st.names.append('skew')
    st(e, 'end')
    st.flush(e)


HEADER = open(os.path.join(os.path.dirname(os.path.abspath(__file__)), '..', 'cdna_kernels', BASE + '.s.ref')).read()


DOC = """;
;   S: B stages x and B_re/B_im through LDS (LDS-DMA) and keeps its x fragments in registers; A computes B.x.
;      local end states -> workgroup end state published in d_ws -> carry-in from ALL earlier row blocks ->
;      second pass; h is transposed with two selection MFMAs.  h, act (bf16, fragment order) and the gate go to d_ws.
; Hand-offs: write-through stores, counter wait, then a flag word; readers poll with L1-bypassing loads.
"""


def generate(cfg):
    SLEEP[:] = cfg.sleep
    FL.clear()
    FL.update(cfg.nt)
    W_SLOT[0] = 0 if cfg.w0pos is None else 4
    S_SHIFT[0] = -1 if cfg.lag else 0 if cfg.w0pos is None else 1
    assert cfg.w0pos is None
    hdr = []
    for line in HEADER.split('\n'):
        if not line.startswith(';'):
            break
        if '@launch' in line:
            line = '; @launch grid=(256,1,1) block=(512,1,1) lds=%d' % LDS_BYTES
            if cfg.pre_kernel is not None:
                line = '; @launch kernel=%s grid=(256,1,1) block=(512,1,1) lds=%d' % (NAME, LDS_BYTES)
                if cfg.pre_kernel:
                    line = '; @launch kernel=warm_kernel grid=(256,1,1) block=(256,1,1) lds=0\n' + line
        hdr.append(line)
    stB = Stamps(cfg, ([38, 84] if cfg.selB and '_prek' in cfg.selB else [38]) + [6, 8, 14, 16, 18, 20, 22, 30, 32, 34, 4, 10, 12, 24, 26], 'B')
    stA = Stamps(cfg, [38, 10, 12, 22, 34, 24, 26, 6, 8, 18, 28, 14, 16, 30, 36, 4], 'A')
    e = Em()
    gen_entry(e, cfg, stB)
    stA.names = list(stB.names)
    eA = Em()
    eA.hist = list(e.hist)
    eA.vm = list(e.vm)
    gen_B(e, cfg, stB)
    gen_A(eA, cfg, stA)
    txt = '\n'.join(hdr) + '\n' + DOC
    txt += '.amdgcn_target "amdgcn-amd-amdhsa--gfx950"\n.text\n.globl %s\n.p2align 8\n.type %s,@function\n%s:\n' % (NAME, NAME, NAME)
    txt += e.text() + '\n' + '\n'.join(e.cold) + '\n.p2align 6\nL_A:\n' + eA.text() + '\n    s_endpgm\n' + '\n'.join(eA.cold) + '\nL_end:\n    s_endpgm\n'
    if cfg.pre_kernel:
        w = Em()
        w.I('s_cmp_ge_u32 s2, 256\ns_cbranch_scc1 L_wend')
        if cfg.pre_kernel != 'empty':
            w.I('s_load_dwordx16 s[4:19], s[0:1], 0\ns_load_dwordx16 s[20:35], s[0:1], 64')
            w.I('s_lshl_b32 s3, s2, 8\nv_add_u32 v0, s3, v0\nv_lshlrev_b32 v1, 7, v0')
            w.wait_smem()
            base = 0
            for p, n in ((P_X, 2048 * 1024), (P_BRE, 524288), (P_BIM, 524288), (P_WG, 1409024), (P_WU, 1409024), (P_CRE, 524288), (P_CIM, 524288), (P_WD, 1409024)):
                mk_srd(w, 40, p, n)
                w.I('v_subrev_u32 v2, %d, v1\nv_cmp_gt_u32 vcc, %d, v2\ns_and_saveexec_b64 s[44:45], vcc\ns_cbranch_execz L_w%d' % (base, n, p))
                w.I('buffer_load_dword v3, v2, s[40:43], 0 offen')
                w.label('L_w%d' % p)
                w.I('s_mov_b64 exec, s[44:45]')
                base += n
            if cfg.pre_kernel == 'wait':
                w.I('s_waitcnt vmcnt(0)')
        txt += '.globl warm_kernel\n.p2align 8\n.type warm_kernel,@function\nwarm_kernel:\n' + w.text() + '\nL_wend:\n    s_endpgm\n'
    txt += '''.section .rodata,"a"
.p2align 6
.amdhsa_kernel %s
  .amdhsa_next_free_vgpr 256
  .amdhsa_next_free_sgpr 102
  .amdhsa_accum_offset 256
  .amdhsa_group_segment_fixed_size 0
  .amdhsa_kernarg_size 136
  .amdhsa_user_sgpr_count 2
  .amdhsa_user_sgpr_kernarg_segment_ptr 1
  .amdhsa_system_sgpr_workgroup_id_x 1
  .amdhsa_float_denorm_mode_32 3
.end_amdhsa_kernel
''' % NAME
    if cfg.pre_kernel:
        txt += '''.p2align 6
.amdhsa_kernel warm_kernel
  .amdhsa_next_free_vgpr 8
  .amdhsa_next_free_sgpr 48
  .amdhsa_accum_offset 8
  .amdhsa_group_segment_fixed_size 0
  .amdhsa_kernarg_size 136
  .amdhsa_user_sgpr_count 2
  .amdhsa_user_sgpr_kernarg_segment_ptr 1
  .amdhsa_system_sgpr_workgroup_id_x 1
.end_amdhsa_kernel
'''
    info = dict(A=eA.count, B=e.count, nopsA=eA.nops, nopsB=e.nops, stampsA=stA.names, stampsB=stB.names)
    return txt, info


def cfg_from(args):
    cfg = Cfg()
    for a in args:
        k, v = a.split('=')
        setattr(cfg, k, eval(v))
    return cfg


if __name__ == '__main__':
    out = sys.argv[1]
    cfg = cfg_from(sys.argv[2:])
    txt, info = generate(cfg)
    open(out, 'w').write(txt)
    print(info)
```

```python
import sys, os
sys.path.insert(0, os.path.dirname(os.path.abspath(__file__)))
from em import Em, weave

BASE = 'gated_mix__ssm_conv_s5__swiglu_ffn__prompt'
NAME = BASE + '_kernel'

ACT_OFF = 0
H_OFF = 0x600000
E_OFF = 0xB00000
G_OFF = 0xB20000
HF_OFF = 0xB24000
AF_OFF = 0xB30000
EPOCH_OFF = 0xB48000
STAMP_OFF = 0xB50000
WS_SIZE = 0xB80000
OOB = 0x2000000
FS = 32
PHI = 0x9E3779B8

SLOT = 24576
WIN = 49152
SCR = 147456
SPART = 98304
L_E, L_FL, L_EG = SCR, SCR + 4096, SCR + 8192
L_P2 = 3 * SLOT + 4096
LDS_BYTES = 163840

P_X, P_LRE, P_LIM, P_BRE, P_BIM, P_CRE, P_CIM, P_LDT = 4, 6, 8, 10, 12, 14, 16, 18
P_DSK, P_BX, P_WG, P_WU, P_WD, P_GW, P_OUT, P_DBG, P_WS = 20, 22, 24, 26, 28, 30, 32, 34, 36
SX, SWS = 40, 44
SBM, SW, SWD = 48, 52, 56
SC1, SC2, SOUT, SCODE = 48, 52, 56, 60
SWA = 60
sWAVE, sW, sRB, sCB, sK0, sRT, sCT, sNONCE, sSG0 = 64, 65, 66, 67, 68, 69, 70, 71, 72
T0, T1, T2, T3, T4, T5, T6 = 73, 74, 75, 76, 77, 78, 79
sNL2E = 80
sMA, sMB = 82, 84
sTBL = 86
sCNT = 97
sTS, sTW, sTD = 98, 99, 100
sMX, sMBm = 60, 61
sMW = 101
SPIN_MAX = 200000

SLEEP = [0, 0]
FL = {}


def ntf(key, stage):
    return 'nt ' if stage < FL.get(key, 0) else ''


LOG2E = 0x3fb8aa3b
NLOG2E = 0xbfb8aa3b


class Cfg:
    mimic = False
    mimic2 = False
    stamps = False
    rot1 = (2, 4, 2, 1)
    rot2 = 7
    rotF = 0
    rotS = None
    map2 = 84
    prewarm = 'v'
    pwn = 4
    esleep = 4
    slim = True
    blate = True
    lfirst = 0
    glds = True
    xloc = False
    defer = True
    apre = True
    NT = 2
    early = 200
    w0pos = None
    s1a = 2
    smallpos = 2
    pre_kernel = None
    lag = 0
    lagr = 4
    JL = 7
    prog = 'W2,G0|;W3,C0|sel;W4|g53;E0,W5,D0,D1,D2,D3|g;W6|P0;W7|P1H;|;C1,C2|F'
    p2cut = 72
    cbuf = (4, 0, 1, 4, 0, 1, 4, 0)
    tplan = ()
    zfill = True
    prioB = 0
    LA = 4
    posX = 10
    pren = 4
    asplit = True
    prioT = 1
    prioS = 0
    prioD = (0, 0)
    prioF2n = -1
    drain = ()
    hpad = (1280, 768)
    hlook = 9
    hearly = 0
    hnow = 4
    sleep = (1, 1)
    skew = None
    skip = ''
    flagpos = (0, 0, 3)
    alook = 18
    abet = 3
    posXB = -17
    fine = True
    snake = True
    chain = 'FSD'
    nt = {}
    pksc = True
    jitter = 0
    prioF2 = 1
    NVA = 10
    RB = 12
    NV0 = (12, 0)
    xdpos = 32
    NV = 12
    TL = 4
    pull0 = 3
    zg = ((0, 1), (2, 3))
    zlag = 3
    outflags = 'sc1_nt'
    selA = None
    selB = None
    prioA = 0
    amp = None


def srd(r):
    return 's[%d:%d]' % (r, r + 3)


def vr(a, n):
    return 'v[%d:%d]' % (a, a + n - 1) if n > 1 else 'v%d' % a


def mk_srd(e, r, p, nbytes):
    e.I('s_mov_b32 s%d, s%d\ns_mov_b32 s%d, s%d\ns_mov_b32 s%d, 0x%x\ns_mov_b32 s%d, 0x20000' %
        (r, p, r + 1, p + 1, r + 2, nbytes, r + 3))


def mk_srd_sel(e, r, p1, p0, nbytes):
    e.I('s_cselect_b32 s%d, s%d, s%d\ns_cselect_b32 s%d, s%d, s%d\ns_mov_b32 s%d, 0x%x\ns_mov_b32 s%d, 0x20000' %
        (r, p1, p0, r + 1, p1 + 1, p0 + 1, r + 2, nbytes, r + 3))


def mfma(e, d, a, b, first):
    e.I('v_mfma_f32_32x32x16_bf16 %s, %s, %s, %s' % (vr(d, 16), vr(a, 4), vr(b, 4), '0' if first else vr(d, 16)))


def mfma16(e, d, a, b, first):
    e.I('v_mfma_f32_16x16x32_bf16 %s, %s, %s, %s' % (vr(d, 4), vr(a, 4), vr(b, 4), '0' if first else vr(d, 4)))


class Stamps:
    def __init__(self, cfg, regs, role):
        self.amp = cfg.amp if cfg.amp else None
        self.role = role
        self.sel = (cfg.selA if role == 'A' else cfg.selB)
        if self.sel is not None:
            self.sel = self.sel.split(',')
        self.ins = 's_memtime' if cfg.stamps == 'cyc' else 's_memrealtime'
        self.on = cfg.stamps or bool(self.amp)
        self.regs = regs
        self.names = []

    def __call__(self, e, name):
        if not self.on:
            return
        if self.sel is not None:
            if name != 'start' and name not in self.sel:
                return
        elif name.startswith('_'):
            return
        r = self.regs[len(self.names)]
        self.names.append(name)
        if self.amp and name not in ('start', 'end', self.amp[1], self.amp[2]):
            return
        e.I('%s s[%d:%d]' % (self.ins, r, r + 1))

    def flush(self, e):
        if not self.on:
            return
        e.wait_smem()
        if self.amp:
            if self.amp[0] == self.role:
                R = dict(zip(self.names, self.regs))
                e.I('s_sub_u32 s%d, s%d, s%d' % (T0, R[self.amp[2]], R[self.amp[1]]))
                if self.amp[3] < 0:
                    e.I('s_min_u32 s%d, s%d, %d\ns_sub_u32 s%d, %d, s%d' % (T0, T0, self.amp[4], T0, self.amp[4], T0))
                e.I('s_mul_i32 s%d, s%d, %d\ns_min_u32 s%d, s%d, 50000' % (T0, T0, abs(self.amp[3]), T0, T0))
                if len(self.amp) > 5:
                    e.I('s_and_b32 s%d, s2, %d\ns_cmp_eq_u32 s%d, %d\ns_cselect_b32 s%d, s%d, 0' % (T1, self.amp[5], T1, self.amp[6], T0, T0))
                e.label('L_amp')
                e.I('s_memrealtime s[%d:%d]' % (T1, T1 + 1))
                e.wait_smem()
                e.I('s_sub_u32 s%d, s%d, s%d\ns_cmp_lt_u32 s%d, s%d\ns_cbranch_scc1 L_amp' % (T1, T1, R['end'], T1, T0))
            return
        e.I('s_lshl_b32 s%d, s2, 3\ns_add_u32 s%d, s%d, s%d\ns_lshl_b32 s%d, s%d, 6\ns_add_u32 s%d, s%d, 0x%x' %
            (T0, T0, T0, sWAVE, T0, T0, T0, T0, STAMP_OFF))
        e.I('s_mov_b64 exec, 1')
        for k in range(len(self.names)):
            e.I('v_mov_b32 v2, s%d' % self.regs[k])
            e.I('buffer_store_dword v2, off, %s, s%d offset:%d' % (srd(SWS), T0, 4 * k))


def jitter(e, cfg, key):
    if not cfg.jitter:
        return
    lab = 'L_jit%d' % key
    e.settle()
    e.I('s_lshl_b32 s%d, s2, 3\ns_add_u32 s%d, s%d, s%d' % (sCNT, sCNT, sCNT, sWAVE))
    e.I('s_mul_i32 s%d, s%d, 0x%x\ns_lshr_b32 s%d, s%d, 28' % (sCNT, sCNT, (0x9E3779B1 * (2 * key * cfg.jitter + 1)) & 0xffffffff, sCNT, sCNT))
    e.I('s_cmp_lt_u32 s%d, 12\ns_cbranch_scc1 %s_out' % (sCNT, lab))
    e.label(lab)
    e.I('s_sleep 40\ns_add_u32 s%d, s%d, 1\ns_cmp_lt_u32 s%d, 17\ns_cbranch_scc1 %s' % (sCNT, sCNT, sCNT, lab))
    e.label(lab + '_out')


def run(items):
    for it in items:
        it()


def poll(e, label, vt, vaddr, soff, mask, between=None):
    def look(tag=None):
        e.I('s_mov_b64 exec, %s' % mask)
        e.I('buffer_load_dword v%d, v%d, %s, s%d offen sc1' % (vt, vaddr, srd(SWS), soff), tag=tag)
        e.I('s_mov_b64 exec, -1')

    def check():
        e.I('v_cmp_ne_u32 vcc, s%d, v%d' % (sNONCE, vt))
        e.I('s_and_b64 vcc, vcc, %s' % mask)
    spin(e, label, look, check, between)


def spin(e, label, look, check, between):
    look('look')
    if between:
        between()
    e.wait(vm='look')
    check()
    e.I('s_cbranch_scc1 %s' % label)
    e.label(label + '_out')
    with e.cold_block():
        e.label(label)
        e.I('s_mov_b32 s%d, 0' % sCNT)
        e.label(label + '_l')
        if SLEEP[0]:
            e.I('s_sleep %d' % SLEEP[0])
        look()
        e.I('s_add_u32 s%d, s%d, 1' % (sCNT, sCNT))
        e.I('s_cmp_gt_u32 s%d, %d' % (sCNT, SPIN_MAX))
        e.wait(vm='all')
        e.I('s_cbranch_scc1 %s_out' % label)
        check()
        e.I('s_cbranch_scc1 %s_l' % label)
        e.I('s_branch %s_out' % label)


def code_touch(e, tag):
    e.I('s_getpc_b64 s[%d:%d]' % (sMA, sMA + 1))
    e.label('L_pc' + tag)
    e.I('s_sub_u32 s%d, s%d, L_pc%s-%s\ns_subb_u32 s%d, s%d, 0' % (sMA, sMA, tag, NAME, sMA + 1, sMA + 1))
    e.I('s_and_b32 s%d, s2, 0xf8\ns_add_u32 s%d, s%d, s%d\ns_lshl_b32 s%d, s%d, 6' % (T0, T0, T0, sWAVE, T0, T0))
    e.I('s_load_dword s3, s[%d:%d], s%d' % (sMA, sMA + 1, T0))
    e.I('s_add_u32 s%d, s%d, 16384\ns_min_u32 s%d, s%d, L_end-%s' % (T0, T0, T0, T0, NAME))
    e.I('s_load_dword s3, s[%d:%d], s%d' % (sMA, sMA + 1, T0))


def rot2_calc(e, cfg, dst, b):
    e.I('s_mul_i32 s%d, s%d, %d' % (dst, sCT, b))
    for k in range(1 if cfg.map2 == 84 else 2):
        e.I('s_add_u32 s%d, s%d, s%d' % (dst, dst, sRT))
    e.I('s_and_b32 s%d, s%d, %d' % (dst, dst, cfg.rot2))


def step_start(e, cfg, cur, beg, end, shift):
    rot2_calc(e, cfg, cur, cfg.rotF)
    e.I('s_cmp_eq_u32 s%d, 3\ns_cselect_b32 s%d, 10, 11' % (sW, end))
    e.I('s_mul_i32 s%d, s%d, s%d\ns_lshr_b32 s%d, s%d, 3\ns_mul_i32 s%d, s%d, 11' % (cur, cur, end, cur, cur, beg, sW))
    e.I('s_add_u32 s%d, s%d, s%d\ns_add_u32 s%d, s%d, s%d' % (cur, cur, beg, end, end, beg))
    for r in (cur, beg, end):
        e.I('s_lshl_b32 s%d, s%d, %d' % (r, r, shift))


def step_next(e, cur, beg, end, inc, wrap=True, last=False):
    e.I('s_add_u32 s%d, s%d, %d' % (cur, cur, inc))
    if wrap:
        e.I('s_cmp_eq_u32 s%d, s%d\ns_cselect_b32 s%d, s%d, s%d' % (cur, end, cur, beg, cur))
    if last:
        e.I('s_cmp_eq_u32 s%d, 3\ns_cselect_b32 s%d, 0x%x, s%d' % (sW, cur, OOB, cur))


def wd_next(e, n, cur, beg, end):
    step_next(e, cur, beg, end, 16384, n % 2 == 0, n == 20)


def set_m0(e, base, off):
    if getattr(e, 'm0', None) != (base, off):
        e.I('s_add_u32 m0, s%d, %d' % (base, off))
        e.m0 = (base, off)


def wd_lane_offsets(e, WDV, t0, t1):
    txt = 'v_lshrrev_b32 v%d, 4, v0\nv_lshlrev_b32 v%d, 1, v%d\nv_and_b32 v%d, 7, v0\nv_xor_b32 v%d, v%d, v%d\nv_lshlrev_b32 v%d, 4, v%d\n' % (
        t0, t0, t0, t1, t0, t0, t1, t0, t0)
    txt += 'v_lshrrev_b32 v%d, 3, v0\nv_lshl_add_u32 v%d, v%d, 10, v%d\n' % (t1, t0, t1, t0)
    txt += 's_lshl_b32 s%d, s%d, 7\n' % (T0, sCT)
    txt += 'v_add_u32 v%d, s%d, v%d\nv_add_u32 v%d, 7168, v%d' % (WDV, T0, t0, WDV + 1, WDV)
    return txt


RING = [(5, n) for n in range(3)] + [(4, 2)] + [(2 + n // 3, n % 3) for n in range(6)] + [(4, n) for n in range(2)] \
    + [(n // 3, n % 3) for n in range(6)] + [(2, n) for n in range(3)] + [(3, 0)]
PREV = {18: 4, 19: 5, 20: 6, 21: 7}


class Touch:
    def __init__(self, e, cfg, role):
        self.e, self.role = e, role
        self.plan = [p for p in cfg.tplan if p[0] == role]
        it = []
        for par in range(2):
            for p in (P_CRE, P_CIM):
                it += [(p, 128 * k + 64 * par) for k in range(4)]
        for par in range(2):
            it += [(P_WD, 128 * k + 64 * par) for k in range(11)]
        self.items = it

    def setup(self):
        if not self.plan:
            return
        e = self.e
        used = {self.items[k][0] for p in self.plan for k in range(p[2], p[3])}
        e.I('s_lshl_b32 s%d, s2, 2\ns_add_u32 s%d, s%d, s%d' % (T0, T0, T0, sW))
        for p in sorted(used):
            e.I('s_mul_i32 s%d, s%d, %d' % (T1, T0, 1376 if p == P_WD else 512))
            e.I('s_add_u32 s%d, s%d, s%d\ns_addc_u32 s%d, s%d, 0' % (p, p, T1, p + 1, p + 1))

    def at(self, place):
        for p in self.plan:
            if p[1] == place:
                for k in range(p[2], p[3]):
                    self.e.I('s_load_dword s3, s[%d:%d], %d' % (self.items[k][0], self.items[k][0] + 1, self.items[k][1]))


def flag_store(e, vt, soff, imm=0):
    e.I('s_mov_b64 exec, 1')
    e.I('buffer_store_dword v%d, off, %s, s%d offset:%d sc1' % (vt, srd(SWS), soff, imm), tag='flag')
    e.I('s_mov_b64 exec, -1')


def frag_addr(e, dst, t0, t1):
    e.I('v_lshrrev_b32 v%d, 5, v0' % t0)
    e.I('v_bfe_u32 v%d, v0, 1, 3' % t1)
    e.I('v_xor_b32 v%d, v%d, v%d' % (t0, t0, t1))
    e.I('v_and_b32 v%d, 31, v0' % t1)
    e.I('v_lshlrev_b32 v%d, 7, v%d' % (t1, t1))
    e.I('v_lshl_add_u32 v%d, v%d, 4, v%d' % (dst, t0, t1))
    for s in range(1, 4):
        e.I('v_xor_b32 v%d, %d, v%d' % (dst + s, 32 * s, dst))


def frag16_addr(e, dst, t0, t1):
    e.I('v_lshrrev_b32 v%d, 4, v0' % t0)
    e.I('v_bfe_u32 v%d, v0, 1, 3' % t1)
    e.I('v_xor_b32 v%d, v%d, v%d' % (t0, t0, t1))
    e.I('v_and_b32 v%d, 15, v0' % t1)
    e.I('v_lshlrev_b32 v%d, 7, v%d' % (t1, t1))
    e.I('v_lshl_add_u32 v%d, v%d, 4, v%d' % (dst, t0, t1))
    e.I('v_xor_b32 v%d, 64, v%d' % (dst + 1, dst))


def w_tr_addr(e, d, t0, t1):
    e.I('v_lshrrev_b32 v%d, 4, v0' % t0)
    e.I('v_bfe_u32 v%d, v0, 2, 2' % t1)
    e.I('v_lshl_add_u32 v%d, v%d, 3, v%d' % (t0, t0, t1))
    e.I('v_mul_u32_u24 v%d, 192, v%d' % (t0, t0))
    e.I('v_bfe_u32 v%d, v0, 4, 1' % t1)
    e.I('v_lshl_add_u32 v%d, v%d, 5, v%d' % (t0, t1, t0))
    e.I('v_and_b32 v%d, 3, v0' % t1)
    e.I('v_lshl_add_u32 v%d, v%d, 3, v%d' % (d, t1, t0))
    e.I('v_xor_b32 v%d, 32, v%d' % (d + 1, d))
    e.I('v_add_u32 v%d, %d, v%d\nv_add_u32 v%d, %d, v%d' % (d + 2, WIN, d, d + 3, WIN, d + 1))


W_SLOT = [0, 1, 2, 3, 0, 1, 2, 3]
S_SHIFT = [0]


def s_slot(i):
    return (i + 4) % 6 if S_SHIFT[0] < 0 else (i + S_SHIFT[0]) % 4


def w_frag_read(e, dst, wa, j, s2, g, mat, fh, mm, tag):
    slot = W_SLOT[j]
    off = (slot & 1) * SLOT + mat * 12288 + (32 * s2 + 4 * mm) * 192 + g * 64
    e.I('ds_read_b64_tr_b16 %s, v%d offset:%d' % (vr(dst + 2 * mm, 2), wa + 2 * (slot >> 1) + fh, off), tag=tag)


def act_items(e, cfg, G, U, tmp, out):
    items = []
    add = lambda t: items.append(lambda t=t: e.I(t))
    for b in range(2):
        g, u, o = G + 8 * b, U + 8 * b, out + 4 * b
        if cfg.mimic:
            for src in (g, u):
                for p in range(4):
                    add('v_cvt_pk_bf16_f32 v%d, v%d, v%d' % (tmp + p, src + 2 * p, src + 2 * p + 1))
                for p in range(4):
                    add('v_lshlrev_b32 v%d, 16, v%d' % (src + 2 * p, tmp + p))
                    add('v_and_b32 v%d, 0xffff0000, v%d' % (src + 2 * p + 1, tmp + p))
        for p in range(4):
            add('v_pk_mul_f32 %s, %s, s[%d:%d]' % (vr(tmp + 2 * p, 2), vr(g + 2 * p, 2), sNL2E, sNL2E + 1))
        for p in range(8):
            add('v_exp_f32 v%d, v%d' % (tmp + p, tmp + p))
        for p in range(4):
            add('v_pk_add_f32 %s, %s, 1.0 op_sel_hi:[1,0]' % (vr(tmp + 2 * p, 2), vr(tmp + 2 * p, 2)))
        for p in range(8):
            add('v_rcp_f32 v%d, v%d' % (tmp + p, tmp + p))
        for p in range(4):
            add('v_pk_mul_f32 %s, %s, %s' % (vr(g + 2 * p, 2), vr(g + 2 * p, 2), vr(tmp + 2 * p, 2)))
        if cfg.mimic:
            for p in range(4):
                add('v_cvt_pk_bf16_f32 v%d, v%d, v%d' % (tmp + p, g + 2 * p, g + 2 * p + 1))
            for p in range(4):
                add('v_lshlrev_b32 v%d, 16, v%d' % (g + 2 * p, tmp + p))
                add('v_and_b32 v%d, 0xffff0000, v%d' % (g + 2 * p + 1, tmp + p))
        for p in range(4):
            add('v_pk_mul_f32 %s, %s, %s' % (vr(u + 2 * p, 2), vr(g + 2 * p, 2), vr(u + 2 * p, 2)))
        for p in range(4):
            add('v_cvt_pk_bf16_f32 v%d, v%d, v%d' % (o + p, u + 2 * p, u + 2 * p + 1))
    return items


def act_items_scalar(e, cfg, G, U, tmp, out):
    if cfg.mimic:
        return act_items(e, cfg, G, U, tmp, out)
    items = []
    add = lambda t: items.append(lambda t=t: e.I(t))
    for b in range(4):
        g, u, o = G + 4 * b, U + 4 * b, out + 2 * b
        for p in range(4):
            add('v_mul_f32 v%d, s%d, v%d' % (tmp + p, sNL2E, g + p))
        for p in range(4):
            add('v_exp_f32 v%d, v%d' % (tmp + p, tmp + p))
            add('v_mul_f32 v%d, v%d, v%d' % (u + p, g + p, u + p))
        for p in range(4):
            add('v_add_f32 v%d, 1.0, v%d' % (tmp + p, tmp + p))
        for p in range(4):
            add('v_rcp_f32 v%d, v%d' % (tmp + p, tmp + p))
        for p in range(4):
            add('v_mul_f32 v%d, v%d, v%d' % (u + p, tmp + p, u + p))
        for p in range(2):
            add('v_cvt_pk_bf16_f32 v%d, v%d, v%d' % (o + p, u + 2 * p, u + 2 * p + 1))
    return items


def light_scc(e):
    e.I('s_and_b32 s%d, s%d, 3\ns_cmp_eq_u32 s%d, 3\ns_cselect_b32 s%d, 14, s%d\ns_cmp_eq_u32 s%d, 14' % (T0, sCB, T0, T0, sCB, T0))


def w_lane_offsets(e, cfg, WV, t0, t1):
    if cfg.zfill:
        light_scc(e)
        e.I('s_cselect_b32 s%d, 8, 12' % sTW)
    e.I('s_and_b32 s%d, s%d, 1' % (T1, sW))
    e.I('s_mul_i32 s%d, s%d, %d\ns_lshl_b32 s%d, s%d, 6\ns_add_u32 s%d, s%d, s%d' % (T0, T1, 32 * 2752, T1, sSG0, T0, T0, T1))
    for q in range(3):
        e.I('v_add_u32 v%d, %d, v0\nv_mul_u32_u24 v%d, 171, v%d\nv_lshrrev_b32 v%d, 11, v%d' % (t1, 64 * q, t0, t1, t0, t0))
        if cfg.zfill:
            e.I('v_mul_u32_u24 v%d, 12, v%d\nv_sub_u32 v%d, v%d, v%d\nv_cmp_gt_u32 vcc, s%d, v%d' % (WV + q, t0, t1, t1, WV + q, sTW, t1))
        e.I('v_lshrrev_b32 v%d, 3, v%d\nv_lshlrev_b32 v%d, 1, v%d\nv_xor_b32 v%d, v0, v%d' % (t1, t0, t1, t1, t1, t1))
        e.I('v_mul_u32_u24 v%d, %d, v%d' % (t0, 2752 - 192, t0))
        e.I('v_lshl_add_u32 v%d, v%d, 4, v%d' % (t0, t1, t0))
        e.I('v_add_u32 v%d, s%d, v%d' % (WV + q, T0, t0))
        if cfg.zfill:
            e.I('v_mov_b32 v%d, 0x%x\nv_cndmask_b32 v%d, v%d, v%d, vcc' % (t0, OOB, WV + q, t0, WV + q))
    e.I('s_mul_i32 s%d, s%d, 6144' % (sMW, sW))


def dma_W(e, WV, SWR, j):
    slot = W_SLOT[j] * SLOT
    its = []
    for grp in range(2):
        for q in range(3):
            def f(grp=grp, q=q):
                set_m0(e, sMW, slot + grp * 3072)
                if q == 0 and grp == 0:
                    e.I('s_add_u32 s%d, s%d, %d\ns_and_b32 s%d, s%d, 7\ns_mul_i32 s%d, s%d, %d' %
                        (sTW, sK0, j, sTW, sTW, sTW, sTW, 64 * 2752))
                if q == 0 and grp == 1:
                    e.I('s_add_u32 s%d, s%d, %d' % (sTW, sTW, 16 * 2752))
                e.I('buffer_load_dwordx4 v%d, %s, s%d offen offset:%d %slds' % ((WV + q, srd(SWR), sTW, 1024 * q) + (ntf('w', j),)), tag=('st', 8 + j))
            its.append(f)
    return its


C_LAND, C_CONS, C_Q, C_DONEA = 0, 32, 64, 68


def cnt_add(e, va, vone, off):
    e.I('s_mov_b64 exec, 1')
    e.I('ds_add_u32 v%d, v%d offset:%d' % (va, vone, off), tag='sig')
    e.I('s_mov_b64 exec, -1')


def cnt_look(e, va, vt, off, tag):
    e.I('ds_read_b32 v%d, v%d offset:%d' % (vt, va, off), tag=tag)


def cnt_check(e, label, va, vt, off, tag):
    e.wait(lg=tag)
    e.I('v_cmp_ne_u32 vcc, 4, v%d' % vt)
    e.I('s_cbranch_vccnz %s' % label)
    e.label(label + '_out')
    with e.cold_block():
        e.label(label)
        e.I('s_mov_b32 s%d, 0' % sCNT)
        e.label(label + '_l')
        if SLEEP[1]:
            e.I('s_sleep %d' % SLEEP[1])
        cnt_look(e, va, vt, off, None)
        e.I('s_add_u32 s%d, s%d, 1' % (sCNT, sCNT))
        e.I('s_cmp_gt_u32 s%d, %d' % (sCNT, 20 * SPIN_MAX))
        e.wait(lg='all')
        e.I('s_cbranch_scc1 %s_out' % label)
        e.I('v_cmp_ne_u32 vcc, 4, v%d' % vt)
        e.I('s_cbranch_vccnz %s_l' % label)
        e.I('s_branch %s_out' % label)


def cnt_spin(e, label, va, vt, off):
    cnt_look(e, va, vt, off, 'look')
    cnt_check(e, label, va, vt, off, 'look')


def act_offsets(e, k, s_data, s_flag, valid_scc=False):
    e.I('s_lshl_b32 s%d, s%d, 2\ns_add_u32 s%d, s%d, s%d' % (T0, sRB, T0, T0, sW))
    e.I('s_mul_i32 s%d, s%d, 43\ns_add_u32 s%d, s%d, s%d\ns_add_u32 s%d, s%d, %d\ns_lshl_b32 s%d, s%d, 11' %
        (T1, T0, T1, T1, sSG0, T1, T1, k, s_data, T1))
    e.I('s_lshr_b32 s%d, s%d, 1\ns_mul_i32 s%d, s%d, 44\ns_add_u32 s%d, s%d, s%d\ns_add_u32 s%d, s%d, %d' %
        (T1, T0, T1, T1, T1, T1, sSG0, T1, T1, k))
    e.I('s_lshl_b32 s%d, s%d, 1\ns_and_b32 s%d, s%d, 1\ns_add_u32 s%d, s%d, s%d\ns_mul_i32 s%d, s%d, %d\ns_add_u32 s%d, s%d, 0x%x' %
        (T1, T1, T0, T0, T1, T1, T0, T1, T1, FS, s_flag, T1, AF_OFF))


def part_write_addr(e, dst, t0, t1, piece_stride, wave_stride, base):
    e.I('v_lshrrev_b32 v%d, 4, v0' % t0)
    e.I('v_and_b32 v%d, 7, v0' % t1)
    e.I('v_xor_b32 v%d, v%d, v%d' % (t0, t0, t1))
    e.I('v_lshlrev_b32 v%d, 4, v%d' % (dst, t0))
    e.I('v_bfe_u32 v%d, v0, 3, 1' % t0)
    e.I('v_and_b32 v%d, 3, v0' % t1)
    e.I('v_lshl_add_u32 v%d, v%d, 2, v%d' % (t0, t0, t1))
    e.I('v_lshl_add_u32 v%d, v%d, 8, v%d' % (dst, t0, dst))
    e.I('v_bfe_u32 v%d, v0, 2, 1' % t0)
    e.I('v_mul_u32_u24 v%d, %d, v%d' % (t0, piece_stride, t0))
    e.I('s_mul_i32 s%d, s%d, %d\ns_add_u32 s%d, s%d, %d' % (T0, sW, wave_stride, T0, T0, base))
    e.I('v_add3_u32 v%d, v%d, v%d, s%d' % (dst, dst, t0, T0))
    e.I('v_xor_b32 v%d, 64, v%d' % (dst + 1, dst))


def acc2(t4, dq):
    return 64 + 16 * t4 + 4 * dq


def part_write(e, addr, piece_stride, tt, addr1=None):
    its = []
    for a in range(2):
        for dq in range(4):
            ad_, off = (addr + (dq & 1), (dq >> 1) * 128) if addr1 is None or dq < 2 else (addr1 + (dq & 1), 0)
            its.append(lambda ad_=ad_, off=off, dq=dq, a=a:
                       e.I('ds_write_b128 v%d, %s offset:%d' % (ad_, vr(acc2(2 * tt + a, dq), 4), tt * 2 * piece_stride + a * 2048 + off), tag=('pw', tt)))
    return its


def tile_ids(e, cfg, redo):
    if redo:
        e.I('s_and_b32 s%d, s2, 7\ns_lshr_b32 s%d, s2, 3' % (T0, T1))
        e.I('s_and_b32 s%d, s%d, 7\ns_lshr_b32 s%d, s%d, 3\ns_lshr_b32 s%d, s%d, 1' % (T2, T1, T3, T1, T4, T0))
    e.I('s_mul_i32 s%d, s%d, 11\ns_mul_i32 s%d, s%d, 3\ns_add_u32 s%d, s%d, s%d' % (sSG0, T4, T5, T3, sSG0, sSG0, T5))
    e.I('s_cmp_eq_u32 s%d, 15\ns_subb_u32 s%d, s%d, 0' % (sCB, sSG0, sSG0))
    if cfg.map2 == 84:
        if cfg.xloc:
            e.I('s_and_b32 s%d, s%d, 8\ns_add_u32 s%d, s%d, s%d\ns_and_b32 s%d, s%d, 2\ns_lshl_b32 s%d, s%d, 2\ns_add_u32 s%d, s%d, s%d' %
                (sRT, sRB, sRT, sRT, sRB, T5, T0, T5, T5, sRT, sRT, T5))
            e.I('s_and_b32 s%d, s%d, 4\ns_add_u32 s%d, s%d, s%d' % (sCT, T0, sCT, sCT, T3))
        else:
            e.I('s_lshl_b32 s%d, s%d, 3\ns_add_u32 s%d, s%d, s%d' % (sRT, T4, sRT, sRT, T2))
            e.I('s_and_b32 s%d, s%d, 1\ns_lshl_b32 s%d, s%d, 2\ns_add_u32 s%d, s%d, s%d' % (sCT, T0, sCT, sCT, sCT, sCT, T3))
    else:
        e.I('s_lshl_b32 s%d, s%d, 2\ns_and_b32 s%d, s%d, 3\ns_add_u32 s%d, s%d, s%d\ns_lshr_b32 s%d, s%d, 2' %
            (sRT, T0, T5, T1, sRT, sRT, T5, sCT, T1))


KARG2 = 's_load_dwordx16 s[20:35], s[0:1], 64\ns_load_dwordx2 s[36:37], s[0:1], 128'


def gen_entry(e, cfg, st):
    e.I('s_load_dwordx16 s[4:19], s[0:1], 0')
    e.I('s_cmp_ge_u32 s2, 256\ns_cbranch_scc1 L_end')
    e.I(KARG2)
    st(e, 'start')
    if 'v' in cfg.prewarm:
        n = cfg.pwn
        e.I('s_getpc_b64 s[%d:%d]' % (SCODE, SCODE + 1))
        e.label('L_pc')
        e.I('s_mov_b32 s%d, L_end-L_pc\ns_mov_b32 s%d, 0x20000' % (SCODE + 2, SCODE + 3))
        e.I('s_lshl_b32 s%d, s2, %d\ns_and_b32 s%d, s%d, 0x%x' % (T0, 7 + n.bit_length() - 1, T0, T0, 0x7fff & ~(1024 * n - 1)))
        e.I('v_lshlrev_b32 v1, %d, v0' % (1 + n.bit_length() - 1))
        m = sum(1 << (k * 64 // n) for k in range(n))
        e.I('s_mov_b32 exec_lo, 0x%x\ns_mov_b32 exec_hi, 0x%x' % (m & 0xffffffff, m >> 32))
        e.I('buffer_load_dword v63, v1, %s, s%d offen' % (srd(SCODE), T0), tag='pw')
        e.I('s_mov_b64 exec, -1')
    e.I('v_lshrrev_b32 v1, 6, v0\nv_and_b32 v0, 63, v0')
    e.I('v_readfirstlane_b32 s%d, v1' % sWAVE)
    if cfg.slim and cfg.rot1 == (2, 4, 2, 1):
        e.I('s_and_b32 s%d, s2, 7\ns_bfe_u32 s%d, s2, 0x30003\ns_lshr_b32 s%d, s2, 6' % (T0, T2, T3))
        e.I('s_lshl1_add_u32 s%d, s%d, s%d\ns_lshl2_add_u32 s%d, s%d, s%d\ns_and_b32 s%d, s%d, 7' % (sK0, T2, T0, sK0, T3, sK0, sK0, sK0))
        e.I('s_and_b32 s%d, s2, 1\ns_lshl3_add_u32 s%d, s%d, s%d' % (sRB, sRB, sRB, T2))
        e.I('s_lshr_b32 s%d, s%d, 1\ns_lshl2_add_u32 s%d, s%d, s%d' % (T4, T0, sCB, T4, T3))
        assert cfg.map2 == 84
    else:
        e.I('s_and_b32 s%d, s2, 7\ns_lshr_b32 s%d, s2, 3' % (T0, T1))
        e.I('s_and_b32 s%d, s%d, 7\ns_lshr_b32 s%d, s%d, 3' % (T2, T1, T3, T1))
        e.I('s_and_b32 s%d, s%d, 1\ns_lshl_b32 s%d, s%d, 3\ns_add_u32 s%d, s%d, s%d' % (sRB, T0, sRB, sRB, sRB, sRB, T2))
        e.I('s_lshr_b32 s%d, s%d, 1' % (T4, T0))
        e.I('s_lshl_b32 s%d, s%d, 2\ns_add_u32 s%d, s%d, s%d' % (sCB, T4, sCB, sCB, T3))
        e.I('s_mul_i32 s%d, s%d, %d' % (sK0, T2, cfg.rot1[0]))
        for src, mul in zip((T3, T4, None), cfg.rot1[1:]):
            if mul:
                if src is None:
                    e.I('s_and_b32 s%d, s%d, 1' % (T5, T0))
                e.I('s_mul_i32 s%d, s%d, %d\ns_add_u32 s%d, s%d, s%d' % (T5, T5 if src is None else src, mul, sK0, sK0, T5))
        e.I('s_and_b32 s%d, s%d, 7' % (sK0, sK0))
    if not cfg.slim:
        tile_ids(e, cfg, False)
    e.I('s_and_b32 s%d, s%d, 3' % (sW, sWAVE))
    e.I('s_cmp_lt_u32 s%d, 4\ns_cbranch_scc1 L_A' % sWAVE)


def gen_B(e, cfg, st):
    NPRE = cfg.prog.count('D')
    WA = 2
    EP = 42
    XV, BV, WV, XA = 32, 36, 38, 44
    sOD = 62
    if cfg.prioS:
        e.I('s_setprio %d' % cfg.prioS)
    e.I('v_lshrrev_b32 v8, 3, v0')
    e.I('v_and_b32 v9, 7, v0')
    e.I('v_lshrrev_b32 v10, 4, v0')
    e.I('v_xor_b32 v10, v9, v10\nv_lshlrev_b32 v10, 4, v10')
    e.I('v_lshrrev_b32 v11, 5, v0\nv_and_b32 v12, 3, v8\nv_lshl_add_u32 v11, v11, 4, v12')
    e.I('s_lshl2_add_u32 s%d, s%d, s%d\ns_lshl_b32 s%d, s%d, 15' % (T0, sRB, sW, T0, T0))
    e.I('v_lshl_add_u32 v11, v11, 10, s%d' % T0)
    e.I('s_lshl_b32 s%d, s%d, 6\ns_and_b32 s%d, s%d, 64' % (sOD, sW, sOD, sOD))
    e.I('v_xad_u32 v%d, v10, s%d, v11' % (XV, sOD))
    e.I('v_xor_b32 v13, 64, v%d' % XV)
    e.I('v_add_u32 v%d, 3072, v13\nv_add_u32 v%d, 6144, v%d\nv_add_u32 v%d, 9216, v13' % (XV + 1, XV + 2, XV, XV + 3))
    def b_setup():
        e.I('s_and_b32 s%d, s%d, 1\ns_lshl1_add_u32 s%d, s%d, s%d\ns_lshl_b32 s%d, s%d, 14' % (T1, sW, T0, sCB, T1, T0, T0))
        e.I('v_lshrrev_b32 v11, 5, v0\nv_lshl_add_u32 v11, v11, 3, v12')
        e.I('v_lshl_add_u32 v11, v11, 10, s%d' % T0)
        e.I('v_add_u32 v%d, v11, v10' % BV)
        e.I('v_xor_b32 v13, 64, v%d\nv_add_u32 v%d, 3072, v13' % (BV, BV + 1))
        e.I('s_lshl_b32 s%d, s%d, 11\ns_add_u32 s%d, s%d, 16384' % (sMBm, sW, sMBm, sMBm))
        e.I('s_mov_b32 s%d, 0x%x\ns_mov_b32 s%d, 0x20000' % (SBM + 2, 512 * 1024, SBM + 3))
    if not cfg.blate:
        b_setup()
    e.I('s_lshl_b32 s%d, s%d, 12' % (sMX, sW))
    e.I('s_lshl_b32 s%d, s%d, 7' % (T6, sK0))
    e.I('s_mov_b32 s%d, 0x%x\ns_mov_b32 s%d, 0x20000' % (SX + 2, 2048 * 1024, SX + 3))
    set_m0(e, sMX, s_slot(0) * SLOT)
    e.I('s_mov_b32 s%d, s%d' % (sTS, T6))
    st(e, '_prek')
    e.wait_smem()
    st(e, 'karg')
    jitter(e, cfg, 1)
    e.I('s_mov_b64 s[%d:%d], s[%d:%d]' % (SX, SX + 1, P_X, P_X + 1))

    def dma_S(i):
        slot = s_slot(i) * SLOT
        its = []
        for q in range(4):
            def f(q=q):
                if q == 0 and i:
                    set_m0(e, sMX, slot)
                    e.I('s_add_u32 s%d, s%d, %d\ns_and_b32 s%d, s%d, 1023' % (sTS, T6, i * 128, sTS, sTS))
                e.I('buffer_load_dwordx4 v%d, %s, s%d offen offset:%d %slds' % ((XV + q, srd(SX), sTS, 1024 * q) + (ntf('x', i),)), tag=('st', i))
            its.append(f)
        for q in range(2):
            def f(q=q):
                if q == 0 and i == 0 and cfg.blate:
                    b_setup()
                if q == 0:
                    set_m0(e, sMBm, slot)
                if q == 0 and i == 0:
                    e.I('s_cmp_ge_u32 s%d, 2\ns_cselect_b64 s[%d:%d], s[%d:%d], s[%d:%d]' % (sW, SBM, SBM + 1, P_BIM, P_BIM + 1, P_BRE, P_BRE + 1))
                e.I('buffer_load_dwordx4 v%d, %s, s%d offen offset:%d %slds' % ((BV + q, srd(SBM), sTS, 1024 * q) + (ntf('b', i),)), tag=('st', i))
            its.append(f)
        return its

    run(dma_S(0))
    st(e, 'dma0')
    s1 = dma_S(1)
    run(s1[:cfg.s1a])
    if 's' in cfg.prewarm:
        code_touch(e, 'B')
    frag16_addr(e, XA, 11, 12)
    for s in range(2):
        e.I('v_xor_b32 v%d, s%d, v%d\nv_add_u32 v%d, s%d, v%d' % (XA + s, sOD, XA + s, XA + s, sMX, XA + s))
        e.I('v_add_u32 v%d, %d, v%d' % (XA + 2 + s, WIN, XA + s))
        if cfg.lag:
            e.I('v_add_u32 v%d, %d, v%d' % (XA + 4 + s, 2 * WIN, XA + s))
    e.I('v_lshlrev_b32 v11, 2, v0\nv_add_u32 v11, %d, v11\nv_mov_b32 v12, 0' % L_FL)
    e.I('ds_write_b32 v11, v12', tag='init')

    def setup_a():
        if cfg.slim:
            tile_ids(e, cfg, True)
        mk_srd(e, SWS, P_WS, WS_SIZE)
        mk_srd(e, SWD, P_WD, 1376 * 1024)
        e.I('s_cmp_ge_u32 s%d, 2' % sW)
        mk_srd_sel(e, SW, P_WU, P_WG, 512 * 2752)
        w_tr_addr(e, WA, 13, 14)
        e.I('v_lshlrev_b32 v1, 4, v0')

    def setup_b():
        w_lane_offsets(e, cfg, WV, 13, 14)
    if not cfg.defer:
        setup_a()
        setup_b()

    sDC, sDB, sDE, sAC, sAB, sAE = 86, 87, 88, 89, 90, 91
    sD0, sF0, sD2, sF2 = T2, T3, T4, T5
    st(e, '_pro')
    sP0 = 92
    if isinstance(cfg.w0pos, tuple):
        tab = sum(p << (4 * r) for r, p in enumerate(cfg.w0pos))
        e.I('s_and_b32 s%d, s%d, 7\ns_lshl_b32 s%d, s%d, 2\ns_lshr_b32 s%d, 0x%x, s%d\ns_and_b32 s%d, s%d, 15' %
            (T0, sRB, T0, T0, sP0, tab, T0, sP0, sP0))

    def w0_hook(p):
        if cfg.w0pos == p:
            run(dma_W(e, WV, SW, 0))
        elif isinstance(cfg.w0pos, tuple) and p in cfg.w0pos:
            e.I('s_cmp_eq_u32 s%d, %d\ns_cbranch_scc1 L_w0_%d' % (sP0, p, p))
            e.label('L_w0_%d_out' % p)
            with e.cold_block():
                e.label('L_w0_%d' % p)
                run(dma_W(e, WV, SW, 0))
                e.I('s_branch L_w0_%d_out' % p)
            e.m0 = None
    run(s1[cfg.s1a:])
    st(e, '_dma1')
    w0_hook(1)
    e.wait(vm=('st', 0))
    st(e, '_sa0')
    e.I('s_barrier')
    st(e, 'b0')
    for i in range(8):
        if i == 1:
            e.I('s_mov_b32 s%d, 0x%x' % (T0, EPOCH_OFF))
            e.I('buffer_load_dword v%d, off, %s, s%d sc1' % (EP, srd(SWS), T0), tag='ep')
        if i < 6:
            run(dma_S(i + 2))
            w0_hook(i + 2)
        elif cfg.w0pos is None:
            run(dma_W(e, WV, SW, i - 6))
        elif i == 6 or 'W2' not in cfg.prog:
            run(dma_W(e, WV, SW, i - 5))
        for s in range(4):
            slot = s_slot(i)
            e.I('ds_read_b128 %s, v%d offset:%d' % (vr(128 + 4 * (4 * i + s), 4), XA + 2 * (slot >> 1) + (s >> 1), (slot & 1) * SLOT + (s & 1) * 2048), tag='x')
        if cfg.defer and i == 0:
            setup_a()
        if cfg.defer and i == 1:
            setup_b()
        if i == 4:
            e.wait(vm='ep')
            e.I('v_readfirstlane_b32 s%d, v%d' % (sNONCE, EP))
            e.I('s_add_u32 s%d, s%d, 0x%x\ns_or_b32 s%d, s%d, 1' % (sNONCE, sNONCE, PHI, sNONCE, sNONCE))
            e.I('s_mov_b32 s%d, 0x%x\ns_mov_b32 s%d, 0x%x' % (sNL2E, NLOG2E, sNL2E + 1, NLOG2E))
        if i == 2:
            step_start(e, cfg, sAC, sAB, sAE, 11)
        if i == 3:
            for k in range(3):
                e.I('s_lshl_b32 s%d, s%d, 4' % (sDC + k, sAC + k))
            for n in range(1, NPRE):
                wd_next(e, n, sDC, sDB, sDE)
        if i == 5:
            act_offsets(e, 0, sD0, sF0)
        if i == 6:
            e.I('s_add_u32 s%d, s%d, 4096\ns_add_u32 s%d, s%d, %d' % (sD2, sD0, sF2, sF0, 4 * FS))
            light_scc(e)
            e.I('s_cselect_b32 s%d, 0x%x, s%d\ns_cselect_b32 s%d, 0x%x, s%d' % (sD2, OOB, sD2, sF2, OOB, sF2))
            e.I('v_mov_b32 v7, %d\nv_mov_b32 v6, 1' % L_FL)
        if i < 7:
            e.wait(vm=('st', i + 1), lg='all')
            st(e, '_sa%d' % (i + 1))
            e.I('s_barrier')
            st(e, '_sd%d' % (i + 1))
            if i == 0:
                st(e, 'b1')
    NT = cfg.NT
    ops = []
    CH = 'F' in cfg.chain
    sm = [(s, mf) for mf in range(4) for s in range(2)] if CH else [(s, mf) for s in range(2) for mf in range(4)]
    for j in range(8 - NT):
        if CH:
            ops += [(j, s, g, mf) for g in range(3) for s, mf in sm]
        else:
            ops += [(j, s, g, mf) for s in range(2) for g in range(3) for mf in range(4)]
    tail0 = len(ops)
    for g in range(3):
        for j in range(8 - NT, 8):
            ops += [(j, s, g, mf) for s, mf in sm]
    NB, LA = 6, cfg.LA
    first = {j: min(q for q in range(len(ops)) if ops[q][0] == j) for j in range(8)}
    last = {j: max(q for q in range(len(ops)) if ops[q][0] == j) for j in range(8)}

    def rd(q, half):
        if q >= len(ops):
            return
        j, s, g, mf = ops[q]
        if q == first[j] and j <= cfg.JL and half == 0:
            e.wait(vm=('st', 8 + j), lg='all' if j in cfg.drain else 'x')
            st(e, '_a%d' % j)
            e.I('s_barrier')
            st(e, '_d%d' % j)
            if j in (0, 4, cfg.JL):
                st(e, 'b%d' % (8 + j))
            if j == 0 and cfg.prioB != cfg.prioS:
                e.I('s_setprio %d' % cfg.prioB)
        w_frag_read(e, 8 + 4 * (q % NB), WA, j, s, g, mf >> 1, mf & 1, half, ('wf', q))
        if q == last[7] and half == 1:
            cnt_add(e, 7, 6, C_CONS + 28)

    started = set()

    def mm(q, a):
        j, s, g, mf = ops[q]
        if a == 0 and q % 2 == 0:
            e.wait(lg=('wf', q + 1))
        t = a ^ (q & 1) if cfg.snake else a
        qq = q
        if CH:
            assert LA == 4
            i = 2 * (q & 1) + a
            qq = (q & ~1) + (1 if i in (1, 2) else 0)
            t = (i >> 1) ^ ((q >> 1) & 1)
            s = ops[qq][1]
        acc = 32 + 32 * g + 16 * (mf >> 1) + 8 * t + 4 * (mf & 1)
        mfma16(e, acc, 8 + 4 * (qq % NB), 128 + 16 * j + 8 * s + 4 * t, acc not in started)
        started.add(acc)
        rd(q + LA, a)

    def act_store(k, ms=(0, 1)):
        for m in ms:
            e.I('buffer_store_dwordx4 %s, v1, %s, s%d offen offset:%d sc1' %
                (vr(136 + 8 * k + 4 * m, 4), srd(SWS), sD2 if k == 2 else sD0, 1024 * m + (2048 if k == 1 else 0)), tag=('as', k))

    def with_stores(its, k):
        if not cfg.asplit:
            return its + [lambda: act_store(k)]
        h = len(its) // 2
        return its[:h] + [lambda: act_store(k, (0,))] + its[h:] + [lambda: act_store(k, (1,))]

    def act_flag(k):
        e.wait(vm=('as', k))
        flag_store(e, EP, sF2 if k == 2 else sF0, 2 * FS if k == 1 else 0)

    for q in range(LA):
        rd(q, 0)
        rd(q, 1)
    per = 8 * NT
    for q in range(tail0 + per):
        mm(q, 0)
        mm(q, 1)
    if cfg.prioT:
        e.I('s_setprio %d' % cfg.prioT)
    if NT:
        for g in (1, 2):
            main = [lambda q=q, a=a: mm(q, a) for q in range(tail0 + g * per, tail0 + (g + 1) * per) for a in range(2)]
            fill = with_stores(act_items_scalar(e, cfg, 32 * g, 32 * g + 16, 128, 136 + 8 * (g - 1)), g - 1)
            run(main[:3] + weave(main[3:], fill))
        st(e, 'f1end')
        run(with_stores(act_items(e, cfg, 96, 112, 128, 152), 2))
    else:
        st(e, 'f1end')
        for g in range(3):
            run(with_stores(act_items(e, cfg, 32 + 32 * g, 48 + 32 * g, 128, 136 + 8 * g), g))
    if cfg.prioD[0] != (cfg.prioT or cfg.prioB):
        e.I('s_setprio %d' % cfg.prioD[0])
    st(e, 'actst')
    jitter(e, cfg, 2)
    DA, AV, PW, WDV, EP = 2, 14, 16, 18, 23
    e.I('v_mov_b32 v%d, s%d' % (EP, sNONCE))
    e.I(wd_lane_offsets(e, WDV, 20, 21))
    e.I('v_mov_b32 v22, %d' % L_FL)
    cnt_spin(e, 'L_spinB', 22, 24, C_CONS + 28)
    st(e, 'ldsfree')

    def dma_D(n):
        sl, pos = RING[n]
        if n in PREV:
            e.wait(lg=('wr', PREV[n]))
        set_m0(e, sMW, sl * SLOT + pos * 2048)
        if n:
            wd_next(e, n, sDC, sDB, sDE)
        for q in range(2):
            e.I('buffer_load_dwordx4 v%d, %s, s%d offen offset:%d %slds' % ((WDV + q, srd(SWD), sDC, 1024 * q) + (ntf('d', n),)), tag=('wd', n))

    def wd_reg(n2):
        return 128 + 16 * n2 if n2 < 5 else 32 + 16 * (n2 - 5) if n2 < 7 else 128 + 16 * (n2 - 7)

    def wd_read(n, dqs=range(4)):
        sl, pos = RING[n]
        e.wait(vm=('wd', n))
        for dq in dqs:
            e.I('ds_read_b64_tr_b16 %s, v%d offset:%d' % (vr(wd_reg(n >> 1) + 4 * dq + 2 * (n & 1), 2), DA + 4 * (sl >> 1) + dq,
                                                         (sl & 1) * SLOT + pos * 2048), tag=('wr', n))

    def setup2():
        e.I('v_lshrrev_b32 v20, 2, v0\nv_lshlrev_b32 v20, 7, v20\nv_bfe_u32 v21, v0, 3, 2\nv_lshl_add_u32 v20, v21, 5, v20')
        e.I('v_and_b32 v21, 3, v0\nv_lshl_add_u32 v20, v21, 3, v20\nv_add_u32 v%d, s%d, v20' % (DA, sMW))
        for dq in range(1, 4):
            e.I('v_xor_b32 v%d, %d, v%d' % (DA + dq, 32 * dq, DA))
        for k in (1, 2):
            for dq in range(4):
                e.I('v_add_u32 v%d, %d, v%d' % (DA + 4 * k + dq, k * WIN, DA + dq))
        e.I('s_mul_i32 s%d, s%d, %d' % (T0, sRT, 2 * 88064))
        e.I('v_add_u32 v%d, s%d, v1\nv_add_u32 v%d, 88064, v%d' % (AV, T0, AV + 1, AV))
        e.I('s_mul_i32 s%d, s%d, 44\ns_mul_i32 s%d, s%d, 11\ns_add_u32 s%d, s%d, s%d\ns_mul_i32 s%d, s%d, %d\ns_add_u32 s%d, s%d, 0x%x' %
            (T0, sRT, T1, sW, T0, T0, T1, T0, T0, 2 * FS, T0, T0, AF_OFF))
        e.I('v_mul_u32_u24 v20, %d, v0' % FS)
        e.I('s_mov_b32 s%d, 0x3fffff\ns_cmp_eq_u32 s%d, 3\ns_cselect_b32 s%d, 0xfffff, s%d\ns_mov_b32 s%d, 0' % (sMA, sW, sMA, sMA, sMA + 1))

    for n in range(NPRE, 11):
        for k in range(3):
            if cfg.flagpos[k] + NPRE == n:
                if k == 2:
                    setup2()
                act_flag(k)
                if k == 2:
                    st(e, 'flagged')
        if n < 10:
            dma_D(n)
    st(e, '_d9')
    cnt_spin(e, 'L_spinB2', 22, 24, C_DONEA)
    if cfg.prioD[1] != cfg.prioD[0]:
        e.I('s_setprio %d' % cfg.prioD[1])
    st(e, '_da')
    jitter(e, cfg, 3)
    pulled = [0]

    def d_step(n):
        dma_D(n)
        while pulled[0] < min(14, 3 * (n - 9), n - 3):
            wd_read(pulled[0])
            pulled[0] += 1
        if n == 14:
            e.wait(lg=('wr', 9))
            set_m0(e, sMW, L_P2)
            e.I('s_mov_b64 exec, 1')
            e.I('buffer_load_dword off, %s, s%d lds' % (srd(SWD), SWD + 2), tag='init')
            e.I('s_mov_b64 exec, -1')
        if n == -cfg.posXB:
            bar_X()

    def bar_X():
        assert pulled[0] >= 12
        e.wait(vm='init', lg=('wr', 11))
        st(e, '_aX')
        e.I('s_barrier')

    for n in range(10, cfg.alook):
        d_step(n)
    st(e, 'wdiss')
    nd = cfg.alook + cfg.abet
    poll(e, 'L_pollA', 21, 20, T0, 's[%d:%d]' % (sMA, sMA + 1), lambda: [d_step(n) for n in range(cfg.alook, nd)])
    st(e, 'actrdy')
    jitter(e, cfg, 4)
    if cfg.prioF2n < 0:
        e.I('s_setprio %d' % cfg.prioF2)
    elif cfg.prioD[1]:
        e.I('s_setprio 0')

    TL = cfg.TL
    sSV = 92
    NM = 11 - TL

    def sets(lo, hi):
        st_ = 2 if 'D' in cfg.chain else 1
        return [tuple(range(n, min(n + st_, hi))) for n in range(lo, hi, st_)]
    groups = [[(n2, t4) for n2 in ss] for ss in sets(0, NM) for t4 in range(4)] + [[(n2, t4) for n2 in ss] for t4 in range(4) for ss in sets(NM, 11)]
    order = [f for g in groups for f in g]

    def a_reg(n2, t4):
        i = order.index((n2, t4)) % cfg.RB
        return 208 + 4 * i if i < 12 else 24 + 4 * (i - 12)

    pend = []
    rq = []

    def flush(n=99):
        for t in pend[:n]:
            e.I(t)
        del pend[:n]

    def a_load(n2, t4):
        if t4 == 0:
            flush()
        so = sAC if n2 == 0 else sSV + n2 % 5
        e.I('buffer_load_dwordx4 %s, v%d, %s, s%d offen offset:%d sc1' % (vr(a_reg(n2, t4), 4), AV + (t4 >> 1), srd(SWS), so, 1024 * (t4 & 1)),
            tag=('a', n2, t4))
        if n2 < 10 and t4 == 0:
            dst = sSV + (n2 + 1) % 5
            pend.append('s_add_u32 s%d, s%d, 2048' % (dst, so))
            pend.append('s_cmp_eq_u32 s%d, s%d\ns_cselect_b32 s%d, s%d, s%d' % (dst, sAE, dst, sAB, dst))
            if n2 == 9:
                pend.append('s_cmp_eq_u32 s%d, 3\ns_cselect_b32 s%d, 0x%x, s%d' % (sW, dst, OOB, dst))

    lq = []
    for k, t in enumerate(order):
        lq.append(('a', k))
        if k & 1 and nd < 22:
            lq.append(('d', nd))
            nd += 1
    dn = [cfg.alook + cfg.abet - 1]
    nis = [0]

    def issue(k, busy, most=99):
        while lq:
            t = lq[0]
            tag = ('a',) + order[k]
            nv = min(cfg.NV, cfg.NV0[0] + max(0, k - cfg.NV0[1]))
            if nis[0] > k and (len(e.vm) - 1 - e.vm.index(tag) >= nv - 1 if tag in e.vm else len(e.vm) >= nv):
                return
            if t[0] == 'a':
                if t[1] >= busy + cfg.RB:
                    return
                if most == 0:
                    return
                most -= 1
                a_load(*order[t[1]])
                nis[0] = t[1] + 1
            else:
                d_step(t[1])
                dn[0] = t[1]
            lq.pop(0)

    wq = []
    zq = [list(g) for g in cfg.zg]
    since = [0]

    def w_pop():
        t = wq.pop(0)
        if t is not None:
            t4, i = t
            assert not rq
            hi = 32768 if t4 == 3 else 0
            set_m0(e, sMW, hi)
            e.I('ds_write_addtid_b32 v%d offset:%d' % (acc2(t4, 0) + i, t4 * SLOT - hi + 256 * i), tag=('pw', t4))
            if i == 15 and t4 == zq[0][-1]:
                since[0] = cfg.zlag + 1
        if since[0]:
            since[0] -= 1
            if since[0] == 0:
                z_bar()

    def z_bar():
        e.wait(lg=('pw', zq.pop(0)[-1]))
        e.I('s_barrier')

    begun = set()

    def mm2(grp):
        k = order.index(grp[0])
        kn = k + len(grp)
        t4 = grp[0][1]
        if k == 0:
            issue(kn - 1, k)
        while rq and rq[0][0] >> 1 <= (max(f[0] for f in order[kn:kn + 2]) if kn + 1 < 4 * NM + TL else 99):
            t = rq.pop(0)
            wd_read(t[0], [t[1]])
        e.wait(vm=[('a',) + f for f in grp], lg=[('wr', 2 * f[0] + 1) for f in grp])
        slots = [(f, dq) for dq in range(4) for f in (grp if dq % 2 == 0 else grp[::-1])]
        for i, ((n2, _), dq) in enumerate(slots):
            d = 3 - dq if cfg.snake and n2 < NM and t4 & 1 else dq
            mfma16(e, acc2(t4, d), a_reg(n2, t4), wd_reg(n2) + 4 * d, acc2(t4, d) not in begun)
            begun.add(acc2(t4, d))
            if i % 4 == 0 and lq:
                issue(min(kn + i // 4, 43), k, 1 if k else 99)
            elif pend and i < len(slots) - 1:
                flush(1)
            elif rq and i < len(slots) - 1:
                t = rq.pop(0)
                wd_read(t[0], [t[1]])
            elif wq:
                w_pop()
        if grp[-1][0] == 10:
            if t4 == 0:
                wq.extend([None, None])
            wq.extend((t4, i) for i in range(16))

    assert cfg.pull0 + 4 <= NM and TL <= 4
    nxt = 7
    for grp in groups:
        n2, t4 = grp[-1]
        if t4 == 0 and n2 < NM:
            st(e, '_n%d' % grp[0][0])
            if grp[0][0] == cfg.prioF2n:
                e.I('s_setprio %d' % cfg.prioF2)
            while pulled[0] <= min(2 * n2 + 5, 13):
                assert dn[0] >= pulled[0]
                wd_read(pulled[0])
                pulled[0] += 1
            if grp[0][0] == cfg.posXB:
                bar_X()
        mm2(grp)
        if t4 == 3 and n2 < NM:
            while nxt <= 10 and nxt - 7 + cfg.pull0 <= n2:
                assert dn[0] >= 2 * nxt + 1
                rq.extend((2 * nxt + hf, dq) for hf in range(2) for dq in range(4))
                nxt += 1
    assert nxt == 11 and not lq
    if cfg.prioF2:
        e.I('s_setprio 0')
    st(e, 'f2end')
    jitter(e, cfg, 5)
    while wq:
        w_pop()
    while zq:
        z_bar()
    st(e, 'end')
    st.flush(e)
    e.I('s_endpgm')


def gen_A(e, cfg, st):
    LR, LI, L16, L128, L256, L16S, KAP, WV = 48, 49, 50, 52, 54, 56, 58, 60
    PP, L512 = 32, 34
    assert not cfg.lag and 'e0' not in cfg.prog and cfg.glds
    SIDX = 3
    RE, IM = 64, 80
    XA, BA = 192, 204
    CV, CA, CA4, WDV = 96, 100, 104, 108
    EV0, EV1, EOOB, ERD, ECNT, EEXP, ONE, FLA, XW, XR, P16 = range(110, 121)
    SEL = 216
    RINGX, RINGB = 128, 160
    sHD, sHF, sES, sEL, sROT, sDTX = 86, 87, 90, 91, 92, 80
    sDC, sDB, sDE = 93, 94, 95
    if cfg.slim:
        tile_ids(e, cfg, False)
    e.I('v_lshlrev_b32 v1, 4, v0')
    e.I('v_and_b32 v21, 3, v0\nv_bfe_u32 v22, v0, 2, 1\nv_lshl_add_u32 v21, v22, 3, v21\nv_bfe_u32 v22, v0, 3, 1\nv_lshl_add_u32 v21, v22, 2, v21')
    sSH, sTH = 81, 96
    e.I('s_and_b32 s%d, s%d, 1\ns_lshr_b32 s%d, s%d, 1' % (sSH, sW, sTH, sW))
    e.I('s_lshl1_add_u32 s%d, s%d, s%d\ns_lshl_b32 s%d, s%d, 5' % (T0, sCB, sSH, T0, T0))
    e.I('v_lshl_add_u32 v21, v21, 1, s%d' % T0)
    e.I('s_lshl_b32 s%d, s%d, 2\ns_add_u32 s%d, s%d, s%d\ns_lshl_b32 s%d, s%d, 4\ns_add_u32 s%d, s%d, s%d' %
        (T3, sRB, T3, T3, sW, T3, T3, T3, T3, sCB))
    e.I('s_lshl_b32 s%d, s%d, 11' % (T2, T3))
    frag16_addr(e, BA, 4, 5)
    def karg_block():
        e.wait_smem()
        st(e, '_karg')
        mk_srd(e, SX, P_X, 2048 * 1024)
        mk_srd(e, SWS, P_WS, WS_SIZE)
        if cfg.skew:
            e.I('s_lshl_b32 s%d, s2, 7\ns_add_u32 s%d, s%d, 0x%x\nv_mov_b32 v20, s38' % (T4, T4, T4, STAMP_OFF))
            flag_store(e, 20, T4)
        e.I('s_mov_b32 s%d, 0x%x\ns_lshl_b32 s%d, s%d, 6' % (T4, EPOCH_OFF, T0, sCB))
        e.I('s_load_dword s3, s[%d:%d], s%d' % (P_WS, P_WS + 1, T4))
        for p in (P_LRE, P_LIM, P_LDT):
            e.I('s_load_dword s3, s[%d:%d], s%d' % (p, p + 1, T0))
        e.I('s_lshr_b32 s%d, s2, 3\ns_lshl_b32 s%d, s%d, 2\ns_add_u32 s%d, s%d, s%d\ns_and_b32 s%d, s%d, 15\ns_lshl_b32 s%d, s%d, 6' %
            (T0, T0, T0, T0, T0, sW, T0, T0, T0, T0))
        for p in (P_GW, P_DSK):
            e.I('s_load_dword s3, s[%d:%d], s%d' % (p, p + 1, T0))
        if 's' in cfg.prewarm:
            code_touch(e, 'A')

    if not cfg.apre:
        karg_block()

    def small0():
        e.I('buffer_load_dword v19, off, %s, s%d sc1' % (srd(SWS), T4), tag='ep')
        e.I('global_load_ushort v16, v21, s[%d:%d]' % (P_LRE, P_LRE + 1), tag='par')
        e.I('global_load_ushort v17, v21, s[%d:%d]' % (P_LIM, P_LIM + 1), tag='par')
        e.I('global_load_ushort v18, v21, s[%d:%d]' % (P_LDT, P_LDT + 1), tag='par')

    small1 = [lambda: e.I('global_load_dwordx4 v[44:47], v1, s[%d:%d]' % (P_GW, P_GW + 1), tag='g'),
              lambda: e.I('buffer_load_dwordx4 v[36:39], v1, %s, s%d offen' % (srd(SX), T2), tag='g'),
              lambda: e.I('buffer_load_dwordx4 v[40:43], v1, %s, s%d offen offset:1024' % (srd(SX), T2), tag='g')]
    e.I('s_lshl_b32 s%d, s%d, 3\ns_add_u32 s%d, s%d, 0x%x' % (T6, T3, T6, T6, G_OFF))
    GA, GW0, GO = 121, 124, 126
    if cfg.glds:
        small1 = [lambda: e.I('global_load_dwordx4 v[44:47], v%d, s[%d:%d]' % (GW0, P_GW, P_GW + 1), tag='g'),
                  lambda: e.I('global_load_dwordx4 v[192:195], v%d, s[%d:%d]' % (GW0 + 1, P_GW, P_GW + 1), tag='g')]
        e.I('s_bfe_u32 s%d, s%d, 0x20001\ns_lshl_b32 s%d, s%d, 2\ns_lshr_b32 s%d, s%d, 3\ns_lshl_b32 s%d, s%d, 1\ns_add_u32 s%d, s%d, s%d' %
            (T0, sCB, T0, T0, T1, sCB, T1, T1, T0, T0, T1))
        e.I('s_and_b32 s%d, s%d, 1\ns_add_u32 s%d, s%d, s%d' % (T1, sCB, T0, T0, T1))
        e.I('s_and_b32 s%d, s%d, 7\ns_lshl_b32 s%d, s%d, 8\ns_lshl_b32 s%d, s%d, 12\ns_add_u32 s%d, s%d, s%d' % (T1, T0, T0, T0, T2, sW, T0, T0, T2))
        e.I('s_lshl_b32 s%d, s%d, 2\ns_xor_b32 s%d, s%d, s%d' % (T2, sSH, T1, T1, T2))
        e.I('v_and_b32 v4, 15, v0\nv_xor_b32 v4, s%d, v4\nv_lshl_add_u32 v%d, v4, 4, s%d' % (T1, GA, T0))
        e.I('v_add_u32 v%d, %d, v%d\nv_add_u32 v%d, %d, v%d' % (GA + 1, WIN, GA, GA + 2, 2 * WIN, GA))
        e.I('v_lshrrev_b32 v4, 4, v0\nv_add_u32 v4, s%d, v4\nv_and_b32 v4, 7, v4\nv_and_b32 v5, 7, v0\nv_lshlrev_b32 v5, 4, v5' % sK0)
        e.I('v_lshl_add_u32 v%d, v4, 7, v5\nv_xor_b32 v%d, 0x200, v%d' % (GW0, GW0 + 1, GW0))
        e.I('v_bfe_u32 v4, v0, 3, 1\nv_lshlrev_b32 v%d, 2, v4' % GO)

    e.I('v_bfe_u32 v4, v0, 3, 1\nv_and_b32 v5, 3, v0\nv_lshl_add_u32 v4, v4, 2, v5')
    e.I('v_lshrrev_b32 v5, 1, v4\nv_lshrrev_b32 v6, 4, v0\nv_xor_b32 v5, v5, v6\nv_and_b32 v6, 4, v0\nv_xor_b32 v5, v5, v6')
    e.I('s_lshl_b32 s%d, s%d, 13\ns_lshl_b32 s%d, s%d, 11' % (T0, sTH, T1, sSH))
    e.I('v_lshl_add_u32 v4, v4, 7, s%d\nv_lshl_add_u32 v4, v6, 10, v4\nv_lshl_add_u32 v%d, v5, 4, v4' % (T0, XA))
    e.I('v_xor_b32 v%d, 64, v%d' % (XA + 1, XA))
    for s in range(2):
        e.I('v_add_u32 v%d, s%d, v%d' % (BA + s, T1, BA + s))
        e.I('v_add_u32 v%d, %d, v%d\nv_add_u32 v%d, %d, v%d' % (XA + 2 + s, WIN, XA + s, BA + 2 + s, WIN, BA + s))
    w_lane_offsets(e, cfg, WV, 24, 25)
    e.I('v_lshrrev_b32 v24, 5, v0\nv_bfe_u32 v25, v0, 4, 1\nv_lshl_add_u32 v24, v25, 1, v24\ns_lshl_b32 s%d, s%d, 2' % (T0, sTH))
    e.I('v_add_u32 v%d, s%d, v24' % (SIDX, T0))
    if cfg.apre:
        karg_block()
    rot2_calc(e, cfg, sROT, 0)
    if cfg.rotS:
        e.I('s_and_b32 s%d, s%d, %d\ns_lshl_b32 s%d, s%d, %d\ns_xor_b32 s%d, s%d, s%d' % (T0, sCT, cfg.rotS[0], T0, T0, cfg.rotS[1], sROT, sROT, T0))
    e.I('s_and_b32 s%d, s%d, 1\ns_lshr_b32 s%d, s%d, 1' % (sDTX, sROT, sROT, sROT))
    e.I('s_bitcmp1_b32 s%d, 0' % sROT)
    mk_srd_sel(e, SC1, P_CIM, P_CRE, 512 * 1024)
    mk_srd_sel(e, SC2, P_CRE, P_CIM, 512 * 1024)
    mk_srd(e, SWD, P_WD, 1376 * 1024)
    step_start(e, cfg, sDC, sDB, sDE, 15)
    e.I('s_cmp_ge_u32 s%d, 2' % sW)
    mk_srd_sel(e, SWA, P_WU, P_WG, 512 * 2752)
    e.I('s_lshl_b32 s%d, s%d, 2\ns_add_u32 s%d, s%d, s%d' % (T0, sRB, T0, T0, sW))
    HW_ = 16384 + cfg.hpad[0]
    HT_ = 4 * HW_ + cfg.hpad[1]
    assert H_OFF + 64 * HT_ <= E_OFF
    e.I('s_mul_i32 s%d, s%d, %d\ns_lshr_b32 s%d, s%d, 1\ns_lshl_b32 s%d, s%d, 13\ns_add_u32 s%d, s%d, s%d' %
        (sHD, T0, HT_, T1, sCB, T1, T1, sHD, sHD, T1))
    e.I('s_mul_i32 s%d, s%d, %d\ns_sub_u32 s%d, s%d, s%d' % (T1, sSH, HT_ - 512, sHD, sHD, T1))
    e.I('s_lshr_b32 s%d, s%d, 2\ns_mul_i32 s%d, s%d, %d\ns_add_u32 s%d, s%d, s%d' % (T1, sCB, T1, T1, cfg.hpad[0], sHD, sHD, T1))
    e.I('s_and_b32 s%d, s%d, 1\ns_lshl_b32 s%d, s%d, 11\ns_add_u32 s%d, s%d, s%d\ns_add_u32 s%d, s%d, 0x%x' %
        (T1, sCB, T1, T1, sHD, sHD, T1, sHD, sHD, H_OFF))
    e.I('s_lshr_b32 s%d, s%d, 1\ns_lshl_b32 s%d, s%d, 4\ns_add_u32 s%d, s%d, s%d\ns_lshl_b32 s%d, s%d, 1' %
        (T1, T0, T1, T1, T1, T1, sCB, T1, T1))
    e.I('s_and_b32 s%d, s%d, 1\ns_add_u32 s%d, s%d, s%d\ns_mul_i32 s%d, s%d, %d\ns_add_u32 s%d, s%d, 0x%x' %
        (T0, T0, T1, T1, T0, T1, T1, FS, sHF, T1, HF_OFF))
    e.I('s_lshl_b32 s%d, s%d, 13\ns_add_u32 s%d, s%d, 0x%x' % (sEL, sCB, sEL, sEL, E_OFF))
    e.I('s_lshl_b32 s%d, s%d, 9\ns_add_u32 s%d, s%d, s%d\ns_cmp_eq_u32 s%d, 0\ns_cselect_b32 s%d, s%d, 0x%x' %
        (sES, sRB, sES, sES, sEL, sTH, sES, sES, OOB))
    e.I('s_sub_u32 s%d, s%d, 1024' % (sEL, sEL))

    tch = Touch(e, cfg, 'A')
    tch.setup()
    tch.at(-1)

    e.I('s_lshl_b32 s%d, s%d, 4' % (T0, sSH))
    e.I('v_and_b32 v6, 15, v0\nv_add_u32 v6, s%d, v6\nv_lshlrev_b32 v%d, 4, v6\nv_lshlrev_b32 v6, 3, v6\nv_add_u32 v%d, %d, v6' % (T0, P16, XR, L_E))
    e.I('v_lshl_add_u32 v%d, v%d, 8, v%d' % (XW, SIDX, XR))
    e.I('v_and_b32 v4, 3, v0\nv_bfe_u32 v5, v0, 3, 2\nv_lshl_add_u32 v4, v5, 2, v4')
    e.I('v_bfe_u32 v5, v0, 2, 1\nv_lshrrev_b32 v6, 5, v0\nv_xor_b32 v5, v5, v6\nv_lshl_add_u32 v4, v5, 4, v4')
    e.I('v_and_b32 v5, 1, v0\nv_lshlrev_b32 v5, 4, v5\nv_mov_b32 v6, 0x3f80\nv_lshlrev_b32 v5, v5, v6\nv_lshrrev_b32 v4, 1, v4')
    for n in range(8):
        e.I('v_cmp_eq_u32 vcc, %d, v4\nv_cndmask_b32 v%d, 0, v5, vcc' % (n, SEL + n))
    e.I('v_and_b32 v6, 7, v0\nv_lshrrev_b32 v7, 4, v0\nv_xor_b32 v6, v6, v7\nv_lshlrev_b32 v6, 4, v6')
    e.I('v_lshrrev_b32 v7, 3, v0\nv_lshl_add_u32 v6, v7, 10, v6')
    e.I('s_lshl_b32 s%d, s%d, 16\ns_lshl_b32 s%d, s%d, 8\ns_add_u32 s%d, s%d, s%d' % (T0, sCT, T1, sW, T0, T0, T1))
    e.I('v_add_u32 v%d, s%d, v6\nv_xor_b32 v7, 64, v%d' % (CV, T0, CV))
    e.I('v_add_u32 v%d, 7168, v7\nv_add_u32 v%d, 14336, v%d\nv_add_u32 v%d, 21504, v7' % (CV + 1, CV + 2, CV, CV + 3))
    frag16_addr(e, CA, 6, 7)
    for s in range(2):
        e.I('v_add_u32 v%d, s%d, v%d' % (CA + s, sMW, CA + s))
        e.I('v_add_u32 v%d, %d, v%d' % (CA4 + s, 4 * SLOT, CA + s))
    HS = CA + 2
    e.I('v_and_b32 v6, 15, v0\nv_lshlrev_b32 v6, 4, v6\nv_bfe_u32 v7, v0, 4, 1\nv_lshl_add_u32 v6, v7, 10, v6')
    e.I('v_lshrrev_b32 v7, 5, v0\nv_lshl_add_u32 v%d, v7, 8, v6' % HS)
    e.I('s_lshr_b32 s88, s%d, 1\ns_lshl_b32 s88, s88, 7\ns_lshl_b32 s89, s%d, 15\ns_add_u32 s88, s88, s89\ns_xor_b32 s89, s88, 128' % (sROT, sDTX))
    e.I(wd_lane_offsets(e, WDV, 6, 7))
    e.I('s_lshl_b32 s%d, s%d, 2\ns_sub_u32 s%d, s%d, s%d\ns_sub_u32 s%d, s%d, 1\ns_lshl_b32 s%d, s%d, 11' % (T0, sW, T0, sRB, T0, T0, T0, T5, sW))
    e.I('v_lshrrev_b32 v6, 5, v0\nv_sub_u32 v7, s%d, v6' % T0)
    e.I('v_cmp_le_i32 vcc, 0, v7\nv_cmp_le_i32 s[%d:%d], 2, v7' % (sMB, sMB + 1))
    e.I('v_and_b32 v4, 0x1f0, v1')
    e.I('v_lshl_add_u32 v7, v7, 9, v4\nv_add_u32 v7, 1024, v7\nv_subrev_u32 v5, 2048, v7\nv_mov_b32 v%d, 0x%x' % (EOOB, OOB))
    e.I('v_cndmask_b32 v%d, v%d, v7, vcc\nv_cndmask_b32 v%d, v%d, v5, s[%d:%d]' % (EV0, EOOB, EV1, EOOB, sMB, sMB + 1))
    e.I('v_lshrrev_b32 v6, 4, v0\nv_lshl_add_u32 v7, v6, 11, v%d\nv_add_u32 v%d, %d, v7' % (P16, ERD, L_EG))
    e.I('v_lshlrev_b32 v6, 2, v6\nv_sub_u32 v%d, s%d, v6\nv_med3_i32 v%d, v%d, 0, 4' % (ECNT, sRB, EEXP, ECNT))
    e.I('v_mov_b32 v%d, 1\nv_mov_b32 v%d, %d' % (ONE, FLA, L_FL))

    pro = []
    add = lambda t: [pro.append(lambda x=x: e.I(x)) for x in t.split('\n')]

    def csq(d, a):
        add('v_mul_f32 v30, v%d, v%d\nv_mul_f32 v31, v%d, v%d\nv_fma_f32 v%d, -v%d, v%d, v30\nv_add_f32 v%d, v31, v31' %
            (a, a, a, a + 1, d, a + 1, a + 1, d + 1))

    def cmul(d, a, b):
        add('v_mul_f32 v30, v%d, v%d\nv_mul_f32 v31, v%d, v%d\nv_fma_f32 v30, -v%d, v%d, v30\nv_fma_f32 v%d, v%d, v%d, v31\nv_mov_b32 v%d, v30' %
            (a, b, a, b + 1, a + 1, b + 1, d + 1, a + 1, b, d))

    pro.append(lambda: e.wait(vm=['ep', 'par']))
    add('v_readfirstlane_b32 s%d, v19' % sNONCE)
    add('v_lshlrev_b32 v16, 16, v16\nv_lshlrev_b32 v17, 16, v17\nv_lshlrev_b32 v18, 16, v18')
    add('s_add_u32 s%d, s%d, 0x%x\ns_or_b32 s%d, s%d, 1' % (sNONCE, sNONCE, PHI, sNONCE, sNONCE))
    add('v_mul_f32 v18, 0x%x, v18\nv_exp_f32 v18, v18\nv_cvt_pk_bf16_f32 v18, v18, v18\nv_lshlrev_b32 v18, 16, v18' % LOG2E)
    add('v_mul_f32 v21, v18, v16\nv_mul_f32 v22, v18, v17')
    add('v_mul_f32 v21, 0x%x, v21\nv_exp_f32 v21, v21' % LOG2E)
    add('v_mul_f32 v22, 0.15915494, v22\nv_rndne_f32 v23, v22\nv_sub_f32 v22, v22, v23\nv_sin_f32 v23, v22\nv_cos_f32 v22, v22')
    add('v_mul_f32 v%d, v21, v23\nv_mul_f32 v%d, v21, v22' % (LI, LR))
    add('v_mul_f32 v21, v16, v16\nv_fmac_f32 v21, v17, v17\nv_rcp_f32 v21, v21\nv_add_f32 v22, -1.0, v%d\nv_add_f32 v21, v21, v21' % LR)
    add('v_mul_f32 v23, v22, v16\nv_fmac_f32 v23, v%d, v17\nv_mul_f32 v%d, v23, v21' % (LI, KAP))
    add('v_mul_f32 v23, v%d, v16\nv_fma_f32 v23, -v22, v17, v23\nv_mul_f32 v%d, v23, v21' % (LI, KAP + 1))
    csq(22, LR); csq(22, 22); csq(22, 22); csq(L16, 22)
    csq(22, L16); csq(24, 22); csq(L128, 24); csq(L256, L128); csq(L512, L256); csq(L256, L512)
    for bit, src, dst in ((1, L16, L16S), (2, 22, 22), (4, 24, 24)):
        add('v_and_b32 v26, %d, v%d\nv_cmp_ne_u32 vcc, 0, v26' % (bit, SIDX))
        add('v_cndmask_b32 v%d, 1.0, v%d, vcc\nv_cndmask_b32 v%d, 0, v%d, vcc' % (dst, src, dst + 1, src + 1))
    cmul(L16S, L16S, 22); cmul(L16S, L16S, 24)
    add('v_mul_lo_u32 v%d, v%d, s%d\nv_mov_b32 v2, s%d' % (EEXP, EEXP, sNONCE, sNONCE))
    EDIR = 'e0' in cfg.prog
    EVK = 132
    if EDIR:
        for k in range(8):
            add('v_subrev_u32 v%d, %d, v%d\nv_cmp_le_i32 vcc, 2, v%d\nv_lshl_add_u32 v%d, v%d, 9, v%d\nv_cndmask_b32 v%d, v%d, v%d, vcc' %
                (EVK + k, k - 1, ECNT, EVK + k, EVK + k, EVK + k, P16, EVK + k, EOOB, EVK + k))

    par, pro = pro, []
    pro.append(lambda: e.wait(vm='g'))
    if cfg.glds:
        for k in range(8):
            gw, x = (44 + k if k < 4 else 188 + k), 36 + k
            add('v_lshlrev_b32 v24, 16, v%d\nv_and_b32 v25, 0xffff0000, v%d' % (gw, gw))
            add('v_lshlrev_b32 v26, 16, v%d\nv_and_b32 v27, 0xffff0000, v%d' % (x, x))
            add('v_mul_f32 v26, v26, v24\nv_mul_f32 v27, v27, v25\nv_cvt_pk_bf16_f32 v26, v26, v27')
            if k == 0:
                add('v_lshlrev_b32 v28, 16, v26\nv_and_b32 v29, 0xffff0000, v26')
            else:
                add('v_lshlrev_b32 v27, 16, v26\nv_and_b32 v26, 0xffff0000, v26\nv_add_f32 v28, v28, v27\nv_add_f32 v29, v29, v26')
        add('v_add_f32 v28, v28, v29')
        for sh in (1, 2, 4):
            add('v_add_f32_dpp v28, v28, v28 row_shr:%d row_mask:0xf bank_mask:0xf' % sh)
        for wd in (32, 16):
            add('v_mov_b32 v29, v28\nv_permlane%d_swap_b32 v28, v29\nv_add_f32 v28, v28, v29' % wd)
        add('v_cvt_pk_bf16_f32 v28, v28, v28\nv_lshlrev_b32 v28, 16, v28\nv_mul_f32 v28, 0x%x, v28\nv_exp_f32 v28, v28' % NLOG2E)
        add('v_add_f32 v28, 1.0, v28\nv_rcp_f32 v28, v28\nv_cvt_pk_bf16_f32 v28, v28, v28\nv_lshlrev_b32 v28, 16, v28')
    else:
        for k in range(4):
            add('v_lshlrev_b32 v24, 16, v%d\nv_and_b32 v25, 0xffff0000, v%d' % (44 + k, 44 + k))
            for row in range(2):
                x = 36 + 4 * row + k
                add('v_lshlrev_b32 v26, 16, v%d\nv_and_b32 v27, 0xffff0000, v%d' % (x, x))
                add('v_mul_f32 v26, v26, v24\nv_mul_f32 v27, v27, v25\nv_cvt_pk_bf16_f32 v26, v26, v27')
                add('v_lshlrev_b32 v27, 16, v26\nv_and_b32 v26, 0xffff0000, v26')
                if k == 0:
                    add('v_add_f32 v%d, v26, v27' % (28 + row))
                else:
                    add('v_add_f32 v26, v26, v27\nv_add_f32 v%d, v%d, v26' % (28 + row, 28 + row))
        for mod in ('row_shr:1 row_mask:0xf', 'row_shr:2 row_mask:0xf', 'row_shr:4 row_mask:0xf', 'row_shr:8 row_mask:0xf',
                    'row_bcast:15 row_mask:0xa', 'row_bcast:31 row_mask:0xc'):
            for row in range(2):
                add('v_add_f32_dpp v%d, v%d, v%d %s bank_mask:0xf' % (28 + row, 28 + row, 28 + row, mod))
        add('v_cvt_pk_bf16_f32 v26, v28, v29\nv_lshlrev_b32 v28, 16, v26\nv_and_b32 v29, 0xffff0000, v26')
        add('v_mul_f32 v28, 0x%x, v28\nv_mul_f32 v29, 0x%x, v29\nv_exp_f32 v28, v28\nv_exp_f32 v29, v29' % (NLOG2E, NLOG2E))
        add('v_add_f32 v28, 1.0, v28\nv_add_f32 v29, 1.0, v29\nv_rcp_f32 v28, v28\nv_rcp_f32 v29, v29')
        add('v_cvt_pk_bf16_f32 v26, v28, v29\nv_lshlrev_b32 v28, 16, v26\nv_and_b32 v29, 0xffff0000, v26')
    gate, pro = pro, par

    gdone = []

    def g_store():
        gdone.append(1)
        if cfg.glds:
            e.I('s_mov_b64 exec, 0x8080')
            e.I('buffer_store_dword v28, v%d, %s, s%d offen sc1' % (GO, srd(SWS), T6), tag='gs')
            e.I('s_mov_b64 exec, -1')
            return
        e.I('s_mov_b32 exec_lo, 0\ns_mov_b32 exec_hi, 0x80000000')
        e.I('buffer_store_dwordx2 v[28:29], off, %s, s%d sc1' % (srd(SWS), T6), tag='gs')
        e.I('s_mov_b64 exec, -1')

    nbar = [0]

    def s_bar(i):
        assert nbar[0] == i
        nbar[0] += 1
        e.I('s_barrier')
        if i in (0, 7):
            st(e, 'b%d' % i)

    def s_read(n):
        i, s = n >> 2, n & 3
        slot = s_slot(i)
        if s == 0 and not cfg.lag:
            s_bar(i)
        assert nbar[0] > i
        off = (slot & 1) * SLOT
        if cfg.glds and s == 2:
            m = 0xffff << (16 * (i & 3))
            e.I('s_mov_b32 exec_lo, 0x%x\ns_mov_b32 exec_hi, 0x%x' % (m & 0xffffffff, m >> 32))
            e.I('ds_read_b128 %s, v%d offset:%d' % (vr(36 + 4 * (i >> 2), 4), GA + (slot >> 1), off), tag='gx')
            e.I('s_mov_b64 exec, -1')
        bx, bb = RINGX + 8 * (n & 3), RINGB + 16 * (i & 1)

        def rb_(s2, part):
            if s == 0:
                e.I('ds_read_b128 %s, v%d offset:%d' % (vr(bb + 8 * part + 4 * s2, 4), BA + 2 * (slot >> 1) + s2, off + 16384 + part * 4096),
                    tag=('s', n, part))
        for s2 in range(2):
            rb_(s2, 0)
            e.I('ds_read_b128 %s, v%d offset:%d' % (vr(bx + 4 * s2, 4), XA + 2 * (slot >> 1) + (s2 ^ (s & 1)), off + s * 1024), tag=('s', n, 0))
        rb_(1, 1)
        rb_(0, 1)

    def s_mm(n, half):
        e.wait(lg=('s', n, half))
        i, a_ = n >> 2, n & 3
        part = half ^ (a_ & 1)
        for k in range(2):
            s2 = k ^ half
            mfma16(e, RE + 16 * part + 4 * a_, RINGX + 8 * (n & 3) + 4 * s2, RINGB + 16 * (i & 1) + 8 * part + 4 * s2, i == 0 and k == 0)

    D = 2
    seq = []
    for n in range(32):
        seq.append(lambda n=n: (s_mm(n, 0), s_read(n + D) if n + D < 32 else None))
        seq.append(lambda n=n: s_mm(n, 1))
    st(e, '_pro')
    if cfg.lag:
        L = cfg.lag
        npar = len(pro) // max(L - 1, 1) + 1
        for i in range(L):
            s_bar(i)
            tch.at(10 + i)
            if i == 0:
                small0()
            if i >= 1:
                run(pro[(i - 1) * npar:i * npar])
        s_bar(L)
        for n in range(D):
            s_read(n)
        r2 = 2 * cfg.lagr
        for k, it in enumerate(seq):
            it()
            i = L + (k + 1) // r2
            if (k + 1) % r2 == 0 and i <= 7:
                assert (k + 1) // 2 >= 4 * (i - 3)
                s_bar(i)
    else:
        for n in range(D):
            s_read(n)
        p0 = 2 * cfg.smallpos
        run(seq[:p0])
        small0()
        run(seq[p0:p0 + 10])
        run(weave(seq[p0 + 10:56], pro) + seq[56:])
    assert nbar[0] == 8
    st(e, 's1end')
    jitter(e, cfg, 6)
    if cfg.prioA:
        e.I('s_setprio %d' % cfg.prioA)

    def items(txt):
        return [lambda t=t: e.I(t) for t in txt.split('\n')]

    def cfma(d, l, a, c):
        return items('v_fma_f32 v%d, v%d, v%d, v%d\nv_fma_f32 v%d, v%d, v%d, v%d\nv_fma_f32 v%d, -v%d, v%d, v%d\nv_fmac_f32 v%d, v%d, v%d' %
                     (d, l, a, c, d + 1, l, a + 1, c + 1, d, l + 1, a + 1, d, d + 1, l + 1, a))

    e.raw('; ---- role A: local scan end states')
    prev = (RE, IM)
    for r in range(1, 16):
        cur = (20 + 2 * (r & 1), 21 + 2 * (r & 1))
        e.I('v_fma_f32 v%d, v%d, v%d, v%d' % (cur[0], LR, prev[0], RE + r))
        e.I('v_fma_f32 v%d, v%d, v%d, v%d' % (cur[1], LR, prev[1], IM + r))
        e.I('v_fma_f32 v%d, -v%d, v%d, v%d' % (cur[0], LI, prev[1], cur[0]))
        e.I('v_fmac_f32 v%d, v%d, v%d' % (cur[1], LI, prev[0]))
        prev = cur
    e.I('ds_write_b64 v%d, %s' % (XW, vr(prev[0], 2)), tag='ex')

    def c_reg(u, s2, dq):
        return 128 + 32 * u + 16 * s2 + 4 * dq

    CBUF = cfg.cbuf
    CPREV = {i: max(k for k in range(i) if CBUF[k] == CBUF[i]) for i in range(8) if CBUF[i] in CBUF[:i]}
    cdone = set()
    hdone = []

    def c_read(i):
        if i in cdone:
            return
        cdone.add(i)
        assert gdone or not cfg.glds or i < 4
        assert hdone or not EDIR
        assert i < 4 or hdone
        e.wait(vm=('c', i))
        for s in range(4):
            a_, off = (CA4 + (s >> 1), 0) if CBUF[i] == 4 else (CA + (s >> 1), CBUF[i] * SLOT)
            e.I('ds_read_b128 %s, v%d offset:%d' % (vr(c_reg(i >> 1, s >> 1, 2 * (i & 1) + (s & 1)), 4), a_, off + (s & 1) * 2048), tag=('cr', i))

    def c_loads(i):
        u, dt = i >> 1, i & 1
        its = []
        for q in range(4):
            def f(q=q):
                if q == 0:
                    if i in CPREV:
                        c_read(CPREV[i])
                        e.wait(lg=('cr', CPREV[i]))
                    elif CBUF[i] != 4 and (6 + CBUF[i] > cfg.JL or 4 + CBUF[i] >= 8 - cfg.NT):
                        assert kcur[0] >= cfg.JL
                        cnt_spin(e, 'L_cb%d' % i, FLA, 31, C_CONS + 28)
                    e.I('s_xor_b32 s%d, s%d, %d' % (sTD, 88 + (u >> 1), dt * 32768))
                set_m0(e, sMW, CBUF[i] * SLOT)
                e.I('buffer_load_dwordx4 v%d, %s, s%d offen offset:%d %slds' % ((CV + q, srd(SC2 if u & 1 else SC1), sTD, 1024 * q) + (ntf('c', i),)), tag=('c', i))
                if q == 3:
                    st(e, '_c%d' % i)
                if q == 3 and i >= 2:
                    c_read(i - 2)
            its.append(f)
        return its

    def d_loads(n):
        sl, pos = RING[n]
        its = []
        for q in range(2):
            def f(q=q):
                set_m0(e, sMW, sl * SLOT + pos * 2048)
                if q == 0 and n:
                    wd_next(e, n, sDC, sDB, sDE)
                e.I('buffer_load_dwordx4 v%d, %s, s%d offen offset:%d %slds' % ((WDV + q, srd(SWD), sDC, 1024 * q) + (ntf('d', n),)), tag='wd')
            its.append(f)
        return its

    wl = {j: dma_W(e, WV, SWA, j) for j in range(2, 8)}
    planned = set()

    def e_loads():
        its = []
        for q in range(2):
            def f(q=q):
                set_m0(e, T5, L_EG)
                e.I('buffer_load_dwordx4 v%d, %s, s%d offen offset:%d sc1 lds' % (EV0 + q, srd(SWS), sEL, 1024 * q), tag='eg')
            its.append(f)
        return its

    def expand(toks, k):
        r = []
        for t in toks.split(','):
            if not t:
                continue
            n = int(t[1])
            planned.add(t)
            if t[0] == 'W':
                assert n < 4 or k >= n - 2 or (k == n - 3 and k in cfg.drain)
                r += wl[n][:3] if t[2:] == 'a' else wl[n][3:] if t[2:] == 'b' else wl[n]
            elif t[0] == 'C':
                assert CBUF[n] == 4 or k >= min(6 + CBUF[n], cfg.JL)
                assert k >= 2 or cfg.w0pos is None
                r += c_loads(n)
            elif t[0] == 'D':
                r += d_loads(n)
            elif t[0] == 'R':
                r.append(lambda n=n: c_read(n))
            elif t[0] == 'S':
                r.append(lambda n=n: (hq[n](), hsent.add(n)))
            elif t[0] == 'G':
                r += small1
            elif t[0] == 'e':
                r += [lambda k=k: e.I('buffer_load_dwordx4 %s, v%d, %s, s%d offen sc1' % (vr(224 + 4 * k, 4), EVK + k, srd(SWS), sEL), tag='egv')
                      for k in range(8)]
            elif t[0] == 'E':
                r += e_loads()
            elif t[0] == 'T':
                r.append(lambda n=n: tch.at(n))
        return r

    def bar(k, extra=()):
        kk = 7 if k == cfg.JL else k
        assert kk < 2 or 'W%d' % kk in planned or 'W%db' % kk in planned or (kk == 2 and cfg.w0pos is not None)
        e.wait(vm=[('st', 8 + kk)] + list(extra))
        st(e, '_a%d' % k)
        e.I('s_barrier')
        st(e, '_d%d' % k)

    sc = []
    for r in range(16):
        sc += items('v_mul_f32 v4, v%d, v%d\nv_mul_f32 v5, v%d, v%d\nv_fma_f32 v%d, v%d, v%d, -v4\nv_fma_f32 v%d, v%d, v%d, v5' %
                    (KAP + 1, IM + r, KAP + 1, RE + r, RE + r, KAP, RE + r, IM + r, KAP, IM + r))
    if cfg.pksc:
        kp = vr(KAP, 2)
        for r in range(0, 16, 4):
            for o in (0, 2):
                e.I('v_pk_mul_f32 %s, %s, %s op_sel:[1,0] op_sel_hi:[1,1]' % (vr(4 + 2 * o, 2), kp, vr(IM + r + o, 2)))
                e.I('v_pk_mul_f32 %s, %s, %s op_sel:[1,0] op_sel_hi:[1,1]' % (vr(6 + 2 * o, 2), kp, vr(RE + r + o, 2)))
            for o in (0, 2):
                e.I('v_pk_fma_f32 %s, %s, %s, %s op_sel_hi:[0,1,1] neg_lo:[0,0,1] neg_hi:[0,0,1]' % (vr(RE + r + o, 2), kp, vr(RE + r + o, 2), vr(4 + 2 * o, 2)))
                e.I('v_pk_fma_f32 %s, %s, %s, %s op_sel_hi:[0,1,1]' % (vr(IM + r + o, 2), kp, vr(IM + r + o, 2), vr(6 + 2 * o, 2)))
        late = []
    else:
        run(sc[:cfg.early])
        late = sc[cfg.early:]
    e.wait(lg='all')
    bar(0)
    work = []
    for s in range(8):
        e.I('ds_read_b64 %s, v%d offset:%d' % (vr(4 + 2 * s, 2), XR, 256 * s), tag=('e', s))
    pf = []
    for s in range(1, 8):
        pf.append(lambda s=s: e.wait(lg=('e', s)))
        pf += cfma(4 + 2 * s, L16, 2 + 2 * s, 4 + 2 * s)
    segs = [[sub.split('|') for sub in sg.split('&')] for sg in cfg.prog.split(';')]
    issued_tok = set()
    q0 = expand(segs[0][0][0], 0)
    run(weave(q0[:cfg.pren], pf))
    e.I('v_mov_b32 v20, s%d\nv_mov_b32 v21, s%d' % (sNONCE, sNONCE))
    e.I('s_mov_b64 exec, 0xffff')
    e.I('buffer_store_dwordx4 v[18:21], v%d, %s, s%d offen sc1' % (P16, srd(SWS), sES), tag='es')
    e.I('s_mov_b64 exec, -1')
    st(e, 'epub')
    jitter(e, cfg, 7)
    run(q0[cfg.pren:])
    gate.append(g_store)
    sel = items('v_mov_b32 v%d, 0\nv_mov_b32 v%d, 0' % (PP, PP + 1))
    for s in range(1, 8):
        sel.append(lambda s=s: e.I('v_cmp_eq_u32 vcc, %d, v%d\nv_cndmask_b32 v%d, v%d, v%d, vcc\nv_cndmask_b32 v%d, v%d, v%d, vcc' %
                                   (s, SIDX, PP, PP, 2 + 2 * s, PP + 1, PP + 1, 3 + 2 * s)))
    EG = 224

    def e_check():
        e.I('v_add3_u32 v4, v%d, v%d, v%d\nv_add_u32 v4, v4, v%d' % tuple(EG + 4 * k + 2 for k in range(4)))
        e.I('v_cmp_ne_u32 vcc, v4, v%d' % EEXP)

    def e_verify():
        assert 'e0' in issued_tok or not EDIR
        e.wait(vm='egv', lg='eg')
        e_check()
        e.I('s_cbranch_vccnz L_pollE')
        e.label('L_pollE_out')
        st(e, 'egot')
        with e.cold_block():
            e.label('L_pollE')
            e.I('s_mov_b32 s%d, 0' % sCNT)
            e.label('L_pollE_l')
            if cfg.esleep:
                e.I('s_sleep %d' % cfg.esleep)
            for k in range(4):
                e.I('v_subrev_u32 v4, %d, v%d\nv_cmp_le_i32 vcc, 2, v4\nv_lshl_add_u32 v4, v4, 9, v%d\nv_cndmask_b32 v4, v%d, v4, vcc' % (k - 1, ECNT, P16, EOOB))
                e.I('buffer_load_dwordx4 %s, v4, %s, s%d offen sc1' % (vr(EG + 4 * k, 4), srd(SWS), sEL))
            e.I('s_add_u32 s%d, s%d, 1' % (sCNT, sCNT))
            e.I('s_cmp_gt_u32 s%d, %d' % (sCNT, SPIN_MAX))
            e.wait(vm='all')
            e.I('s_cbranch_scc1 L_pollE_out')
            e_check()
            e.I('s_cbranch_vccnz L_pollE_l')
            e.I('s_branch L_pollE_out')

    def second_pass():
        p2 = []
        if not EDIR:
            p2.append(lambda: [e.I('ds_read_b128 %s, v%d offset:%d' % (vr(EG + 4 * k, 4), ERD, 512 * k), tag='eg') for k in range(4)])
        p2.append(e_verify)
        for k in range(2, -1, -1):
            p2 += cfma(EG + 4 * k, L128, EG + 4 * k + 4, EG + 4 * k)
        p2 += items('v_mov_b32 v6, v%d\nv_mov_b32 v7, v%d\nv_permlane16_swap_b32 v6, v%d\nv_permlane16_swap_b32 v7, v%d' % (EG, EG + 1, EG, EG + 1))
        p2 += cfma(6, L512, EG, 6)
        p2 += items('v_mov_b32 v4, v6\nv_mov_b32 v5, v7\nv_permlane32_swap_b32 v4, v6\nv_permlane32_swap_b32 v5, v7')
        p2 += cfma(4, L256, 6, 4)
        p2 += cfma(PP, L16S, 4, PP)
        p2 += items('v_mul_f32 v6, v%d, v%d\nv_mul_f32 v7, v%d, v%d' % (KAP, PP, KAP, PP + 1))
        p2 += items('v_fma_f32 v6, -v%d, v%d, v6\nv_fmac_f32 v7, v%d, v%d' % (KAP + 1, PP + 1, KAP + 1, PP))
        prev = (6, 7)
        for r in range(16):
            p2 += items('v_fmac_f32 v%d, v%d, v%d\nv_fmac_f32 v%d, v%d, v%d\nv_fma_f32 v%d, -v%d, v%d, v%d\nv_fmac_f32 v%d, v%d, v%d' %
                        (RE + r, LR, prev[0], IM + r, LR, prev[1], RE + r, LI, prev[1], RE + r, IM + r, LI, prev[0]))
            prev = (RE + r, IM + r)
        return p2

    def store_h(loads):
        assert not p2
        for k in range(8):
            e.I('v_cvt_pk_bf16_f32 v%d, v%d, v%d' % (8 + k, RE + 2 * k, RE + 2 * k + 1))
            e.I('v_cvt_pk_bf16_f32 v%d, -v%d, -v%d' % (16 + k, IM + 2 * k, IM + 2 * k + 1))
        for k in range(8):
            e.I('v_permlane16_swap_b32 v%d, v%d' % (8 + k, 16 + k))
        e.I('s_add_u32 s%d, s%d, 4096\ns_add_u32 s%d, s%d, %d\ns_add_u32 s%d, s%d, %d' % (T0, sHD, T1, sHD, HT_, T2, sHD, HT_ + 4096))
        for tl in range(2):
            for m in range(2):
                mfma(e, RE + 16 * tl, 8 + 8 * tl + 4 * m, SEL + 4 * m, m == 0)
        hdone.append(1)
        run(loads)
        for tl in range(2):
            for part in range(2):
                o = 8 + 8 * tl + 4 * part
                for k in range(4):
                    e.I('v_cvt_pk_bf16_f32 v%d, v%d, v%d' % (o + k, RE + 16 * tl + 8 * part + 2 * k, RE + 16 * tl + 8 * part + 2 * k + 1))
                hq.append(lambda o=o, so=(sHD, T0, T1, T2)[2 * tl + part]:
                          e.I('buffer_store_dwordx4 %s, v%d, %s, s%d offen sc1' % (vr(o, 4), HS, srd(SWS), so), tag='hs'))
                if len(hq) <= cfg.hnow:
                    hq[-1]()
                    hsent.add(len(hq) - 1)

    hq = []
    hsent = set()
    kcur = [0]
    p2 = second_pass()
    for k, sub, toks, work in [(k, i, t, w) for k, sg in enumerate(segs) for i, (t, w) in enumerate(sg)]:
        if k == 0:
            continue
        if k <= cfg.JL and sub == 0:
            bar(k, ['eg'] if work[:1] == 'P' else [])
        kcur[0] = k
        q = expand(toks, k)
        if work[:3] == 'sel' or work[:1] == 'g':
            fill = []
            for wk in work.split('+'):
                if wk == 'sel':
                    fill += sel + ([] if 'late' in cfg.prog else late)
                else:
                    n = len(gate) if wk == 'g' else int(wk[1:])
                    fill += gate[:n]
                    del gate[:n]
            run(weave(q, fill) if not cfg.lfirst else q[:cfg.lfirst] + weave(q[cfg.lfirst:] or [lambda: None], fill))
        elif work == 'late':
            run(weave(q, late))
        elif work[:1] == 'P':
            assert EDIR or 'eg' not in e.vm
            wk = work.rstrip('H')
            n = cfg.p2cut if wk == 'P0' else len(p2) if wk in ('P', 'P1') else int(wk[1:])
            part = p2[:n]
            del p2[:n]
            run(part[:1] + (weave(q, part[1:]) if q else part[1:]))
            if work[-1] == 'H':
                st(e, 'p2done')
                store_h([])
        elif work[:1] == 'H':
            st(e, 'p2done')
            store_h(q)
            run(expand(work[2:], k))
        elif work == 'F':
            run(hq[n] for n in range(4) if n not in hsent)
            st(e, 'hst')
            jitter(e, cfg, 8)
            run(q)
            assert gdone and len(hq) == 4
            e.wait(vm=['hs', 'gs'])
            flag_store(e, 2, sHF)
            st(e, 'hflag')
            jitter(e, cfg, 9)
        else:
            run(q)
        issued_tok.update(toks.split(','))
    assert len(segs) > cfg.JL
    HV, PW = 6, 8
    rest = [i for i in range(8) if 'C%d' % i not in planned]
    run(c_loads(rest.pop(0)))
    e.I('s_mul_i32 s%d, s%d, %d\ns_mul_i32 s%d, s%d, %d\ns_add_u32 s%d, s%d, s%d\ns_add_u32 s%d, s%d, 0x%x' %
        (T0, sRT, 2 * HT_, T1, sW, HW_, T0, T0, T1, T0, T0, H_OFF))
    e.I('v_add_u32 v%d, s%d, v1\nv_add_u32 v%d, %d, v%d' % (HV, T0, HV + 1, HT_, HV))
    for u in range(4):
        e.I('s_xor_b32 s%d, s%d, %d\ns_lshl_b32 s%d, s%d, 12' % (93 + u, sROT, u, 93 + u, 93 + u))
    part_write_addr(e, PW, 12, 13, 16384, 4096, SPART)
    mk_srd(e, SOUT, P_OUT, 2048 * 2048)
    e.I('s_lshl_b32 s%d, s%d, 2\ns_add_u32 s%d, s%d, s%d\ns_mul_i32 s%d, s%d, %d\ns_add_u32 s%d, s%d, 0x%x' %
        (T0, sRT, T0, T0, sW, T0, T0, 8 * FS, T0, T0, HF_OFF))
    e.I('v_mul_u32_u24 v12, %d, v0\nv_mov_b32 v5, v2' % FS)

    def h_reg(k):
        return 16 + 4 * (k % 12)

    SC = 'S' in cfg.chain

    def h_idx(k):
        return (2 * (k >> 3) + (k & 1), (k >> 1) & 3) if SC else (k >> 2, k & 3)

    def h_load(k):
        n2, t4 = h_idx(k)
        e.I('buffer_load_dwordx4 %s, v%d, %s, s%d offen offset:%d sc1' % (vr(h_reg(k), 4), HV + (t4 >> 1), srd(SWS), 93 + (n2 >> 1),
                                                                            2048 * (n2 & 1) + 1024 * (t4 & 1)), tag=('h', k))

    def c_finish():
        for i in range(8):
            c_read(i)
        e.wait(vm='wd')
        cnt_add(e, FLA, ONE, C_DONEA)
        st(e, 'cgot')

    while rest and rest[0] < cfg.hlook:
        run(c_loads(rest.pop(0)))
    if cfg.hlook > 8:
        c_finish()
    poll(e, 'L_pollH', 13, 12, T0, '0xff',
         lambda: ([run(c_loads(i)) for i in rest], c_finish() if cfg.hearly == 0 and cfg.hlook <= 8 else None))
    st(e, 'hrdy')
    jitter(e, cfg, 10)
    XO, RA, GV, RF = 2, 3, 4, 14
    ROWS = (0, 8, 32, 40)
    XL, DL, GL, XD, PW1 = 128, 136, 138, 144, 10
    fin = items('s_lshl_b32 s%d, s%d, 6\ns_add_u32 s%d, s%d, s%d' % (T0, sRT, T0, T0, sW))
    fin += items('v_lshrrev_b32 v12, 4, v0\nv_lshrrev_b32 v13, 2, v0\nv_and_b32 v13, 2, v13\nv_xor_b32 v12, v12, v13')
    fin += items('v_and_b32 v15, 1, v12\nv_lshl_add_u32 v13, v15, 4, s%d\nv_lshrrev_b32 v3, 1, v12\nv_lshl_add_u32 v13, v3, 2, v13' % T0)
    fin += items('v_and_b32 v14, 15, v0\ns_lshl_b32 s%d, s%d, 7' % (T1, sCT))
    fin += items('v_lshl_add_u32 v1, v14, 3, s%d' % T1)
    fin += items('v_lshl_add_u32 v%d, v13, 10, v1' % XO)
    fin += items('v_lshlrev_b32 v%d, 2, v13\nv_add_u32 v%d, 0x%x, v%d' % (GV, GV, G_OFF, GV))
    fin += items('s_lshl_b32 s%d, s%d, 8\ns_add_u32 s%d, s%d, %d' % (T2, sW, T1, T2, SPART))
    fin += items('v_lshl_add_u32 v3, v3, 10, s%d\nv_lshl_add_u32 v3, v15, 14, v3' % T1)
    fin += items('v_lshl_or_b32 v13, v15, 2, s%d\nv_xor_b32 v13, v13, v14\nv_lshl_add_u32 v%d, v13, 4, v3' % (sW, RA))
    fin += items('v_lshl_add_u32 v12, v12, 6, s%d\nv_lshrrev_b32 v13, 2, v14\nv_lshl_add_u32 v12, v13, 10, v12' % T2)
    fin += items('v_and_b32 v13, 3, v0\nv_lshl_add_u32 v%d, v13, 4, v12\nv_add_u32 v%d, %d, v%d' % (RF, RF + 1, 2 * SLOT, RF))
    fin += items('s_lshl_b32 s%d, s%d, 7' % (T0, sDTX))
    for a in range(2):
        fin += items('v_xor_b32 v%d, s%d, v%d\nv_xor_b32 v%d, 0x80, v%d' % (PW + a, T0, PW + a, PW1 + a, PW + a))
    if cfg.posX < 0:
        run(fin)
    for k in range(cfg.NVA):
        if cfg.posX < 0 and k == -1 - cfg.posX:
            assert k >= cfg.hearly
            e.wait(lg='all')
            e.I('s_barrier')
        if k == cfg.hearly // 2 and k:
            c_read(6)
        if k == cfg.hearly and k:
            c_finish()
        h_load(k)
    e.wait(lg='all')
    if cfg.posX >= 0:
        run(fin)

    def fx_loads():
        e.I('global_load_dwordx2 %s, v1, s[%d:%d]' % (vr(DL, 2), P_DSK, P_DSK + 1), tag='fx')
        for n in range(4):
            e.I('s_mov_b32 s%d, %d' % (T2, 1024 * ROWS[n]))
            e.I('buffer_load_dwordx2 %s, v%d, %s, s%d offen' % (vr(XL + 2 * n, 2), XO, srd(SX), T2), tag='fx')

    def g_loads():
        for n in range(4):
            e.I('buffer_load_dword v%d, v%d, %s, 0 offen offset:%d sc1' % (GL + n, GV, srd(SWS), 4 * ROWS[n]), tag='fg')

    DU = 160
    xd = [lambda: e.wait(vm='fx')]
    xd += items('v_lshlrev_b32 v%d, 16, v%d\nv_and_b32 v%d, 0xffff0000, v%d\nv_lshlrev_b32 v%d, 16, v%d\nv_and_b32 v%d, 0xffff0000, v%d' %
                (DU, DL, DU + 1, DL, DU + 2, DL + 1, DU + 3, DL + 1))
    for n in range(4):
        for k in range(2):
            x = XL + 2 * n + k
            xd += items('v_lshlrev_b32 v12, 16, v%d\nv_and_b32 v13, 0xffff0000, v%d' % (x, x))
            xd += items('v_mul_f32 v12, v12, v%d\nv_mul_f32 v13, v13, v%d' % (DU + 2 * k, DU + 1 + 2 * k))
            xd += items('v_cvt_pk_bf16_f32 v13, v12, v13')
            xd += items('v_lshlrev_b32 v%d, 16, v13\nv_and_b32 v%d, 0xffff0000, v13' % (XD + 4 * n + 2 * k, XD + 4 * n + 2 * k + 1))
    xd += items('v_mov_b32 v12, %d\nv_mov_b32 v13, 1\nv_lshlrev_b32 v%d, 1, v%d' % (L_P2, XO, XO))

    sbegun = set()

    def s2_step(k):
        n2, t4 = h_idx(k)
        if k == 2 * cfg.posX:
            e.I('s_barrier')
        e.wait(vm=('h', k | 1 if SC else k))
        for dq in range(4):
            kk = k
            if SC:
                assert cfg.NVA <= 10
                i = 4 * (k & 1) + dq
                kk = (k & ~1) + ((i & 1) ^ ((i >> 1) & 1))
                d = i >> 1
                n2 = h_idx(kk)[0]
            else:
                d = dq
            if cfg.snake and t4 & 1:
                d = 3 - d
            mfma16(e, acc2(t4, d), c_reg(n2 >> 1, n2 & 1, d), h_reg(kk), acc2(t4, d) not in sbegun)
            sbegun.add(acc2(t4, d))
            if dq == (0 if cfg.NVA < 12 else 3) and k + cfg.NVA < 32:
                h_load(k + cfg.NVA)
        if k == 8:
            fx_loads()
        if k == max(8, 2 * cfg.posX):
            g_loads()
    steps = [lambda k=k: s2_step(k) for k in range(32)]
    if cfg.xdpos < 32:
        run(steps[:cfg.xdpos] + weave(steps[cfg.xdpos:], xd))
    else:
        run(steps + xd[-3:])
    st(e, 's2end')
    jitter(e, cfg, 11)
    if cfg.posX == 16:
        e.I('s_barrier')
        g_loads()
    st(e, '_X')
    run(part_write(e, PW, 16384, 0, PW1) + part_write(e, PW, 16384, 1, PW1))
    cnt_add(e, 12, 13, 0)
    if cfg.xdpos >= 32:
        run(xd[:-1])
    OM = 164
    e.wait(vm='fg')
    for n in range(4):
        e.I('v_sub_f32 v%d, 1.0, v%d' % (OM + n, GL + n))
        e.I('v_cvt_pk_bf16_f32 v%d, v%d, v%d\nv_lshlrev_b32 v%d, 16, v%d' % (OM + n, OM + n, OM + n, OM + n, OM + n))
    for n in range(4):
        e.I('s_mov_b32 s%d, %d' % (T2 + n, 2048 * ROWS[n]))
    e.I('s_lshl_b32 s%d, s%d, 5\ns_add_u32 s%d, s%d, s%d\ns_lshl_b32 s%d, s%d, 8\ns_add_u32 s%d, s%d, s%d' %
        (T0, sCT, T0, T0, sRT, T1, sW, T0, T0, T1))
    e.I('s_cmp_eq_u32 s%d, 31\ns_cselect_b32 s%d, 0x%x, s%d' % (T0, T0, EPOCH_OFF, SWS + 2))
    flag_store(e, 5, T0)
    cnt_spin(e, 'L_spinM', 12, 16, 0)
    e.wait(lg='all')
    for n in range(4):
        for w in range(4):
            e.I('ds_read_b128 %s, v%d offset:%d' % (vr(64 + 16 * n + 4 * w, 4), RA, w * 4096 + (n & 1) * 2048 + (n >> 1) * 32768), tag=('r', n))
    BS = XD
    for n in range(4):
        e.wait(lg=('r', n))
        b = 64 + 16 * n
        for k in range(4):
            e.I('v_add_f32 v%d, v%d, v%d\nv_add_f32 v%d, v%d, v%d' % (b + k, b + k, b + 4 + k, b + 8 + k, b + 8 + k, b + 12 + k))
        for k in range(4):
            e.I('v_add_f32 v%d, v%d, v%d' % (b + k, b + k, b + 8 + k))
        for k in range(4):
            e.I('v_add_f32 v%d, v%d, v%d' % (b + k, b + k, XD + 4 * n + k))
        for k in range(4):
            e.I('v_mul_f32 v%d, v%d, v%d' % (BS + 4 * n + k, GL + n, b + k))
    st(e, 'pre')
    jitter(e, cfg, 12)
    for grp in cfg.zg:
        e.I('s_barrier')
        st(e, 'Z' if 3 in grp else '_Z%d' % grp[0])
        for n in grp:
            for w in range(4):
                e.I('ds_read_b128 %s, v%d offset:%d' % (vr(64 + 16 * n + 4 * w, 4), RF + (n >> 1), w * 6144 + (n & 1) * SLOT), tag=('r', n, w >> 1))
        for n in grp:
            b = 64 + 16 * n
            for o, p in ((0, 4), (8, 12), (0, 8)):
                e.wait(lg=('r', n, o >> 3))
                if 3 in grp:
                    for k in (0, 2):
                        e.I('v_pk_add_f32 %s, %s, %s' % (vr(b + o + k, 2), vr(b + o + k, 2), vr(b + p + k, 2)))
                else:
                    for k in range(4):
                        e.I('v_add_f32 v%d, v%d, v%d' % (b + o + k, b + o + k, b + p + k))
            if cfg.mimic2:
                for rnd in range(2):
                    e.I('v_cvt_pk_bf16_f32 v%d, v%d, v%d\nv_cvt_pk_bf16_f32 v%d, v%d, v%d' % (b + 1, b, b + 1, b + 3, b + 2, b + 3))
                    for k in (0, 2):
                        e.I('v_lshlrev_b32 v%d, 16, v%d\nv_and_b32 v%d, 0xffff0000, v%d' % (b + k, b + k + 1, b + k + 1, b + k + 1))
                    if rnd == 0:
                        for k in range(4):
                            e.I('v_mul_f32 v%d, v%d, v%d' % (b + k, OM + n, b + k))
                for k in (0, 2):
                    e.I('v_pk_add_f32 %s, %s, %s' % (vr(b + k, 2), vr(b + k, 2), vr(BS + 4 * n + k, 2)))
            else:
                for k in range(4):
                    e.I('v_fma_f32 v%d, v%d, v%d, v%d' % (b + k, OM + n, b + k, BS + 4 * n + k))
            e.I('buffer_store_dwordx4 %s, v%d, %s, s%d offen %s' % (vr(b, 4), XO, srd(SOUT), T2 + n, cfg.outflags.replace('_', ' ') if isinstance(cfg.outflags, str) else cfg.outflags[n]), tag='out')
    if st.on:
        e.wait(vm='all')
    if cfg.skew:
        e.I('s_and_b32 s%d, s2, %d\ns_lshl_b32 s%d, s%d, 7\ns_add_u32 s%d, s%d, 0x%x' % (T4, cfg.skew[0], T4, T4, T4, T4, STAMP_OFF))
        e.I('buffer_load_dword v62, off, %s, s%d sc1' % (srd(SWS), T4))
        e.wait(vm='all')
        e.I('v_readfirstlane_b32 s12, v62')
        if cfg.skew[1] > 0:
            e.I('s_sub_u32 s12, s38, s12')
        else:
            e.I('s_sub_u32 s12, s12, s38')
        e.I('s_add_u32 s12, s12, 300\ns_add_u32 s10, s38, s12')
        st.names.append('skew')
    st(e, 'end')
    st.flush(e)


HEADER = open(os.path.join(os.path.dirname(os.path.abspath(__file__)), '..', 'cdna_kernels', BASE + '.s.ref')).read()


DOC = """;
;   S: B stages x and B_re/B_im through LDS (LDS-DMA) and keeps its x fragments in registers; A computes B.x.
;      local end states -> workgroup end state published in d_ws -> carry-in from ALL earlier row blocks ->
;      second pass; h is transposed with two selection MFMAs.  h, act (bf16, fragment order) and the gate go to d_ws.
; Hand-offs: write-through stores, counter wait, then a flag word; readers poll with L1-bypassing loads.
"""


def generate(cfg):
    SLEEP[:] = cfg.sleep
    FL.clear()
    FL.update(cfg.nt)
    W_SLOT[0] = 0 if cfg.w0pos is None else 4
    S_SHIFT[0] = -1 if cfg.lag else 0 if cfg.w0pos is None else 1
    assert cfg.w0pos is None
    hdr = []
    for line in HEADER.split('\n'):
        if not line.startswith(';'):
            break
        if '@launch' in line:
            line = '; @launch grid=(256,1,1) block=(512,1,1) lds=%d' % LDS_BYTES
            if cfg.pre_kernel is not None:
                line = '; @launch kernel=%s grid=(256,1,1) block=(512,1,1) lds=%d' % (NAME, LDS_BYTES)
                if cfg.pre_kernel:
                    line = '; @launch kernel=warm_kernel grid=(256,1,1) block=(256,1,1) lds=0\n' + line
        hdr.append(line)
    stB = Stamps(cfg, ([38, 84] if cfg.selB and '_prek' in cfg.selB else [38]) + [6, 8, 14, 16, 18, 20, 22, 30, 32, 34, 4, 10, 12, 24, 26], 'B')
    stA = Stamps(cfg, [38, 10, 12, 22, 34, 24, 26, 6, 8, 18, 28, 14, 16, 30, 36, 4], 'A')
    e = Em()
    gen_entry(e, cfg, stB)
    stA.names = list(stB.names)
    eA = Em()
    eA.hist = list(e.hist)
    eA.vm = list(e.vm)
    gen_B(e, cfg, stB)
    gen_A(eA, cfg, stA)
    txt = '\n'.join(hdr) + '\n' + DOC
    txt += '.amdgcn_target "amdgcn-amd-amdhsa--gfx950"\n.text\n.globl %s\n.p2align 8\n.type %s,@function\n%s:\n' % (NAME, NAME, NAME)
    txt += e.text() + '\n' + '\n'.join(e.cold) + '\n.p2align 6\nL_A:\n' + eA.text() + '\n    s_endpgm\n' + '\n'.join(eA.cold) + '\nL_end:\n    s_endpgm\n'
    if cfg.pre_kernel:
        w = Em()
        w.I('s_cmp_ge_u32 s2, 256\ns_cbranch_scc1 L_wend')
        if cfg.pre_kernel != 'empty':
            w.I('s_load_dwordx16 s[4:19], s[0:1], 0\ns_load_dwordx16 s[20:35], s[0:1], 64')
            w.I('s_lshl_b32 s3, s2, 8\nv_add_u32 v0, s3, v0\nv_lshlrev_b32 v1, 7, v0')
            w.wait_smem()
            base = 0
            for p, n in ((P_X, 2048 * 1024), (P_BRE, 524288), (P_BIM, 524288), (P_WG, 1409024), (P_WU, 1409024), (P_CRE, 524288), (P_CIM, 524288), (P_WD, 1409024)):
                mk_srd(w, 40, p, n)
                w.I('v_subrev_u32 v2, %d, v1\nv_cmp_gt_u32 vcc, %d, v2\ns_and_saveexec_b64 s[44:45], vcc\ns_cbranch_execz L_w%d' % (base, n, p))
                w.I('buffer_load_dword v3, v2, s[40:43], 0 offen')
                w.label('L_w%d' % p)
                w.I('s_mov_b64 exec, s[44:45]')
                base += n
            if cfg.pre_kernel == 'wait':
                w.I('s_waitcnt vmcnt(0)')
        txt += '.globl warm_kernel\n.p2align 8\n.type warm_kernel,@function\nwarm_kernel:\n' + w.text() + '\nL_wend:\n    s_endpgm\n'
    txt += '''.section .rodata,"a"
.p2align 6
.amdhsa_kernel %s
  .amdhsa_next_free_vgpr 256
  .amdhsa_next_free_sgpr 102
  .amdhsa_accum_offset 256
  .amdhsa_group_segment_fixed_size 0
  .amdhsa_kernarg_size 136
  .amdhsa_user_sgpr_count 2
  .amdhsa_user_sgpr_kernarg_segment_ptr 1
  .amdhsa_system_sgpr_workgroup_id_x 1
  .amdhsa_float_denorm_mode_32 3
.end_amdhsa_kernel
''' % NAME
    if cfg.pre_kernel:
        txt += '''.p2align 6
.amdhsa_kernel warm_kernel
  .amdhsa_next_free_vgpr 8
  .amdhsa_next_free_sgpr 48
  .amdhsa_accum_offset 8
  .amdhsa_group_segment_fixed_size 0
  .amdhsa_kernarg_size 136
  .amdhsa_user_sgpr_count 2
  .amdhsa_user_sgpr_kernarg_segment_ptr 1
  .amdhsa_system_sgpr_workgroup_id_x 1
.end_amdhsa_kernel
'''
    info = dict(A=eA.count, B=e.count, nopsA=eA.nops, nopsB=e.nops, stampsA=stA.names, stampsB=stB.names)
    return txt, info


def cfg_from(args):
    cfg = Cfg()
    for a in args:
        k, v = a.split('=')
        setattr(cfg, k, eval(v))
    return cfg


if __name__ == '__main__':
    out = sys.argv[1]
    cfg = cfg_from(sys.argv[2:])
    txt, info = generate(cfg)
    open(out, 'w').write(txt)
    print(info)
```

```python
import sys, os
sys.path.insert(0, os.path.dirname(os.path.abspath(__file__)))
from em import Em, weave

BASE = 'gated_mix__ssm_conv_s5__swiglu_ffn__prompt'
NAME = BASE + '_kernel'

ACT_OFF = 0
H_OFF = 0x600000
E_OFF = 0xB00000
G_OFF = 0xB20000
HF_OFF = 0xB22000
AF_OFF = 0xB24000
EPOCH_OFF = 0xB48000
STAMP_OFF = 0xB50000
WS_SIZE = 0xB80000
OOB = 0x2000000
FS = 8
assert FS == 8
PHI = 0x9E3779B8

SLOT = 24576
WIN = 49152
SCR = 147456
SPART = 98304
L_E, L_FL, L_EG = SCR, SCR + 4096, SCR + 8192
L_P2 = 3 * SLOT + 4096
LDS_BYTES = 163840

P_X, P_LRE, P_LIM, P_BRE, P_BIM, P_CRE, P_CIM, P_LDT = 4, 6, 8, 10, 12, 14, 16, 18
P_DSK, P_BX, P_WG, P_WU, P_WD, P_GW, P_OUT, P_DBG, P_WS = 20, 22, 24, 26, 28, 30, 32, 34, 36
SX, SWS = 40, 44
SBM, SW, SWD = 48, 52, 56
SC1, SC2, SOUT, SCODE = 48, 52, 56, 60
SWA = 60
sWAVE, sW, sRB, sCB, sK0, sRT, sCT, sNONCE, sSG0 = 64, 65, 66, 67, 68, 69, 70, 71, 72
T0, T1, T2, T3, T4, T5, T6 = 73, 74, 75, 76, 77, 78, 79
sNL2E = 80
sMA, sMB = 82, 84
sTBL = 86
sCNT = 97
sTS, sTW, sTD = 98, 99, 100
sMX, sMBm = 60, 61
sMW = 101
SPIN_MAX = 200000

SLEEP = [0, 0]
FL = {}


def ntf(key, stage):
    return 'nt ' if stage < FL.get(key, 0) else ''


LOG2E = 0x3fb8aa3b
NLOG2E = 0xbfb8aa3b


class Cfg:
    mimic = False
    mimic2 = False
    stamps = False
    rot1 = (2, 4, 2, 1)
    rot2 = 7
    rotF = 0
    rotS = None
    map2 = 84
    prewarm = 'v'
    pwn = 4
    esleep = 4
    slim = True
    blate = True
    lfirst = 0
    glds = True
    xloc = False
    defer = True
    apre = True
    NT = 2
    early = 200
    w0pos = None
    s1a = 2
    smallpos = 2
    pre_kernel = None
    lag = 0
    lagr = 4
    JL = 7
    prog = 'W2,G0|;W3,C0|sel;W4|g53;E0,W5,D0,D1,D2,D3|g;W6|P0;W7|P1H;|;C1,C2|F'
    p2cut = 72
    cbuf = (4, 0, 1, 4, 0, 1, 4, 0)
    tplan = ()
    zfill = True
    prioB = 0
    LA = 4
    posX = 10
    pren = 4
    asplit = True
    prioT = 1
    prioS = 0
    prioD = (0, 0)
    prioF2n = -1
    drain = ()
    hpad = (1280, 768)
    hlook = 9
    hearly = 0
    hnow = 4
    sleep = (1, 1)
    skew = None
    skip = ''
    flagpos = 3
    ftouch = True
    gmerge = True
    alook = 18
    abet = 3
    posXB = -17
    fine = True
    snake = True
    chain = 'FSD'
    nt = {}
    pksc = True
    jitter = 0
    prioF2 = 1
    NVA = 10
    RB = 12
    NV0 = (12, 0)
    xdpos = 32
    NV = 12
    TL = 4
    pull0 = 3
    zg = ((0, 1), (2, 3))
    zlag = 3
    outflags = 'sc1_nt'
    selA = None
    selB = None
    prioA = 0
    amp = None


def srd(r):
    return 's[%d:%d]' % (r, r + 3)


def vr(a, n):
    return 'v[%d:%d]' % (a, a + n - 1) if n > 1 else 'v%d' % a


def mk_srd(e, r, p, nbytes):
    e.I('s_mov_b32 s%d, s%d\ns_mov_b32 s%d, s%d\ns_mov_b32 s%d, 0x%x\ns_mov_b32 s%d, 0x20000' %
        (r, p, r + 1, p + 1, r + 2, nbytes, r + 3))


def mk_srd_sel(e, r, p1, p0, nbytes):
    e.I('s_cselect_b32 s%d, s%d, s%d\ns_cselect_b32 s%d, s%d, s%d\ns_mov_b32 s%d, 0x%x\ns_mov_b32 s%d, 0x20000' %
        (r, p1, p0, r + 1, p1 + 1, p0 + 1, r + 2, nbytes, r + 3))


def mfma(e, d, a, b, first):
    e.I('v_mfma_f32_32x32x16_bf16 %s, %s, %s, %s' % (vr(d, 16), vr(a, 4), vr(b, 4), '0' if first else vr(d, 16)))


def mfma16(e, d, a, b, first):
    e.I('v_mfma_f32_16x16x32_bf16 %s, %s, %s, %s' % (vr(d, 4), vr(a, 4), vr(b, 4), '0' if first else vr(d, 4)))


class Stamps:
    def __init__(self, cfg, regs, role):
        self.amp = cfg.amp if cfg.amp else None
        self.role = role
        self.sel = (cfg.selA if role == 'A' else cfg.selB)
        if self.sel is not None:
            self.sel = self.sel.split(',')
        self.ins = 's_memtime' if cfg.stamps == 'cyc' else 's_memrealtime'
        self.on = cfg.stamps or bool(self.amp)
        self.regs = regs
        self.names = []

    def __call__(self, e, name):
        if not self.on:
            return
        if self.sel is not None:
            if name != 'start' and name not in self.sel:
                return
        elif name.startswith('_'):
            return
        r = self.regs[len(self.names)]
        self.names.append(name)
        if self.amp and name not in ('start', 'end', self.amp[1], self.amp[2]):
            return
        e.I('%s s[%d:%d]' % (self.ins, r, r + 1))

    def flush(self, e):
        if not self.on:
            return
        e.wait_smem()
        if self.amp:
            if self.amp[0] == self.role:
                R = dict(zip(self.names, self.regs))
                e.I('s_sub_u32 s%d, s%d, s%d' % (T0, R[self.amp[2]], R[self.amp[1]]))
                if self.amp[3] < 0:
                    e.I('s_min_u32 s%d, s%d, %d\ns_sub_u32 s%d, %d, s%d' % (T0, T0, self.amp[4], T0, self.amp[4], T0))
                e.I('s_mul_i32 s%d, s%d, %d\ns_min_u32 s%d, s%d, 50000' % (T0, T0, abs(self.amp[3]), T0, T0))
                if len(self.amp) > 5:
                    e.I('s_and_b32 s%d, s2, %d\ns_cmp_eq_u32 s%d, %d\ns_cselect_b32 s%d, s%d, 0' % (T1, self.amp[5], T1, self.amp[6], T0, T0))
                e.label('L_amp')
                e.I('s_memrealtime s[%d:%d]' % (T1, T1 + 1))
                e.wait_smem()
                e.I('s_sub_u32 s%d, s%d, s%d\ns_cmp_lt_u32 s%d, s%d\ns_cbranch_scc1 L_amp' % (T1, T1, R['end'], T1, T0))
            return
        e.I('s_lshl_b32 s%d, s2, 3\ns_add_u32 s%d, s%d, s%d\ns_lshl_b32 s%d, s%d, 6\ns_add_u32 s%d, s%d, 0x%x' %
            (T0, T0, T0, sWAVE, T0, T0, T0, T0, STAMP_OFF))
        e.I('s_mov_b64 exec, 1')
        for k in range(len(self.names)):
            e.I('v_mov_b32 v2, s%d' % self.regs[k])
            e.I('buffer_store_dword v2, off, %s, s%d offset:%d' % (srd(SWS), T0, 4 * k))


def jitter(e, cfg, key):
    if not cfg.jitter:
        return
    lab = 'L_jit%d' % key
    e.settle()
    e.I('s_lshl_b32 s%d, s2, 3\ns_add_u32 s%d, s%d, s%d' % (sCNT, sCNT, sCNT, sWAVE))
    e.I('s_mul_i32 s%d, s%d, 0x%x\ns_lshr_b32 s%d, s%d, 28' % (sCNT, sCNT, (0x9E3779B1 * (2 * key * cfg.jitter + 1)) & 0xffffffff, sCNT, sCNT))
    e.I('s_cmp_lt_u32 s%d, 12\ns_cbranch_scc1 %s_out' % (sCNT, lab))
    e.label(lab)
    e.I('s_sleep 40\ns_add_u32 s%d, s%d, 1\ns_cmp_lt_u32 s%d, 17\ns_cbranch_scc1 %s' % (sCNT, sCNT, sCNT, lab))
    e.label(lab + '_out')


def run(items):
    for it in items:
        it()


def poll(e, label, vt, vaddr, soff, mask, between=None):
    def look(tag=None):
        e.I('s_mov_b64 exec, %s' % mask)
        e.I('buffer_load_dword v%d, v%d, %s, s%d offen sc1' % (vt, vaddr, srd(SWS), soff), tag=tag)
        e.I('s_mov_b64 exec, -1')

    def check():
        e.I('v_cmp_ne_u32 vcc, s%d, v%d' % (sNONCE, vt))
        e.I('s_and_b64 vcc, vcc, %s' % mask)
    spin(e, label, look, check, between)


def spin(e, label, look, check, between):
    look('look')
    if between:
        between()
    e.wait(vm='look')
    check()
    e.I('s_cbranch_scc1 %s' % label)
    e.label(label + '_out')
    with e.cold_block():
        e.label(label)
        e.I('s_mov_b32 s%d, 0' % sCNT)
        e.label(label + '_l')
        if SLEEP[0]:
            e.I('s_sleep %d' % SLEEP[0])
        look()
        e.I('s_add_u32 s%d, s%d, 1' % (sCNT, sCNT))
        e.I('s_cmp_gt_u32 s%d, %d' % (sCNT, SPIN_MAX))
        e.wait(vm='all')
        e.I('s_cbranch_scc1 %s_out' % label)
        check()
        e.I('s_cbranch_scc1 %s_l' % label)
        e.I('s_branch %s_out' % label)


def code_touch(e, tag):
    e.I('s_getpc_b64 s[%d:%d]' % (sMA, sMA + 1))
    e.label('L_pc' + tag)
    e.I('s_sub_u32 s%d, s%d, L_pc%s-%s\ns_subb_u32 s%d, s%d, 0' % (sMA, sMA, tag, NAME, sMA + 1, sMA + 1))
    e.I('s_and_b32 s%d, s2, 0xf8\ns_add_u32 s%d, s%d, s%d\ns_lshl_b32 s%d, s%d, 6' % (T0, T0, T0, sWAVE, T0, T0))
    e.I('s_load_dword s3, s[%d:%d], s%d' % (sMA, sMA + 1, T0))
    e.I('s_add_u32 s%d, s%d, 16384\ns_min_u32 s%d, s%d, L_end-%s' % (T0, T0, T0, T0, NAME))
    e.I('s_load_dword s3, s[%d:%d], s%d' % (sMA, sMA + 1, T0))


def rot2_calc(e, cfg, dst, b):
    e.I('s_mul_i32 s%d, s%d, %d' % (dst, sCT, b))
    for k in range(1 if cfg.map2 == 84 else 2):
        e.I('s_add_u32 s%d, s%d, s%d' % (dst, dst, sRT))
    e.I('s_and_b32 s%d, s%d, %d' % (dst, dst, cfg.rot2))


def step_start(e, cfg, cur, beg, end, shift):
    rot2_calc(e, cfg, cur, cfg.rotF)
    e.I('s_cmp_eq_u32 s%d, 3\ns_cselect_b32 s%d, 10, 11' % (sW, end))
    e.I('s_mul_i32 s%d, s%d, s%d\ns_lshr_b32 s%d, s%d, 3\ns_mul_i32 s%d, s%d, 11' % (cur, cur, end, cur, cur, beg, sW))
    e.I('s_add_u32 s%d, s%d, s%d\ns_add_u32 s%d, s%d, s%d' % (cur, cur, beg, end, end, beg))
    for r in (cur, beg, end):
        e.I('s_lshl_b32 s%d, s%d, %d' % (r, r, shift))


def step_next(e, cur, beg, end, inc, wrap=True, last=False):
    e.I('s_add_u32 s%d, s%d, %d' % (cur, cur, inc))
    if wrap:
        e.I('s_cmp_eq_u32 s%d, s%d\ns_cselect_b32 s%d, s%d, s%d' % (cur, end, cur, beg, cur))
    if last:
        e.I('s_cmp_eq_u32 s%d, 3\ns_cselect_b32 s%d, 0x%x, s%d' % (sW, cur, OOB, cur))


def wd_next(e, n, cur, beg, end):
    step_next(e, cur, beg, end, 16384, n % 2 == 0, n == 20)


def set_m0(e, base, off):
    if getattr(e, 'm0', None) != (base, off):
        e.I('s_add_u32 m0, s%d, %d' % (base, off))
        e.m0 = (base, off)


def wd_lane_offsets(e, WDV, t0, t1):
    txt = 'v_lshrrev_b32 v%d, 4, v0\nv_lshlrev_b32 v%d, 1, v%d\nv_and_b32 v%d, 7, v0\nv_xor_b32 v%d, v%d, v%d\nv_lshlrev_b32 v%d, 4, v%d\n' % (
        t0, t0, t0, t1, t0, t0, t1, t0, t0)
    txt += 'v_lshrrev_b32 v%d, 3, v0\nv_lshl_add_u32 v%d, v%d, 10, v%d\n' % (t1, t0, t1, t0)
    txt += 's_lshl_b32 s%d, s%d, 7\n' % (T0, sCT)
    txt += 'v_add_u32 v%d, s%d, v%d\nv_add_u32 v%d, 7168, v%d' % (WDV, T0, t0, WDV + 1, WDV)
    return txt


RING = [(5, n) for n in range(3)] + [(4, 2)] + [(2 + n // 3, n % 3) for n in range(6)] + [(4, n) for n in range(2)] \
    + [(n // 3, n % 3) for n in range(6)] + [(2, n) for n in range(3)] + [(3, 0)]
PREV = {18: 4, 19: 5, 20: 6, 21: 7}


class Touch:
    def __init__(self, e, cfg, role):
        self.e, self.role = e, role
        self.plan = [p for p in cfg.tplan if p[0] == role]
        it = []
        for par in range(2):
            for p in (P_CRE, P_CIM):
                it += [(p, 128 * k + 64 * par) for k in range(4)]
        for par in range(2):
            it += [(P_WD, 128 * k + 64 * par) for k in range(11)]
        self.items = it

    def setup(self):
        if not self.plan:
            return
        e = self.e
        used = {self.items[k][0] for p in self.plan for k in range(p[2], p[3])}
        e.I('s_lshl_b32 s%d, s2, 2\ns_add_u32 s%d, s%d, s%d' % (T0, T0, T0, sW))
        for p in sorted(used):
            e.I('s_mul_i32 s%d, s%d, %d' % (T1, T0, 1376 if p == P_WD else 512))
            e.I('s_add_u32 s%d, s%d, s%d\ns_addc_u32 s%d, s%d, 0' % (p, p, T1, p + 1, p + 1))

    def at(self, place):
        for p in self.plan:
            if p[1] == place:
                for k in range(p[2], p[3]):
                    self.e.I('s_load_dword s3, s[%d:%d], %d' % (self.items[k][0], self.items[k][0] + 1, self.items[k][1]))


def flag_store(e, vt, soff, imm=0):
    e.I('s_mov_b64 exec, 1')
    e.I('buffer_store_dword v%d, off, %s, s%d offset:%d sc1' % (vt, srd(SWS), soff, imm), tag='flag')
    e.I('s_mov_b64 exec, -1')


def frag_addr(e, dst, t0, t1):
    e.I('v_lshrrev_b32 v%d, 5, v0' % t0)
    e.I('v_bfe_u32 v%d, v0, 1, 3' % t1)
    e.I('v_xor_b32 v%d, v%d, v%d' % (t0, t0, t1))
    e.I('v_and_b32 v%d, 31, v0' % t1)
    e.I('v_lshlrev_b32 v%d, 7, v%d' % (t1, t1))
    e.I('v_lshl_add_u32 v%d, v%d, 4, v%d' % (dst, t0, t1))
    for s in range(1, 4):
        e.I('v_xor_b32 v%d, %d, v%d' % (dst + s, 32 * s, dst))


def frag16_addr(e, dst, t0, t1):
    e.I('v_lshrrev_b32 v%d, 4, v0' % t0)
    e.I('v_bfe_u32 v%d, v0, 1, 3' % t1)
    e.I('v_xor_b32 v%d, v%d, v%d' % (t0, t0, t1))
    e.I('v_and_b32 v%d, 15, v0' % t1)
    e.I('v_lshlrev_b32 v%d, 7, v%d' % (t1, t1))
    e.I('v_lshl_add_u32 v%d, v%d, 4, v%d' % (dst, t0, t1))
    e.I('v_xor_b32 v%d, 64, v%d' % (dst + 1, dst))


def w_tr_addr(e, d, t0, t1):
    e.I('v_lshrrev_b32 v%d, 4, v0' % t0)
    e.I('v_bfe_u32 v%d, v0, 2, 2' % t1)
    e.I('v_lshl_add_u32 v%d, v%d, 3, v%d' % (t0, t0, t1))
    e.I('v_mul_u32_u24 v%d, 192, v%d' % (t0, t0))
    e.I('v_bfe_u32 v%d, v0, 4, 1' % t1)
    e.I('v_lshl_add_u32 v%d, v%d, 5, v%d' % (t0, t1, t0))
    e.I('v_and_b32 v%d, 3, v0' % t1)
    e.I('v_lshl_add_u32 v%d, v%d, 3, v%d' % (d, t1, t0))
    e.I('v_xor_b32 v%d, 32, v%d' % (d + 1, d))
    e.I('v_add_u32 v%d, %d, v%d\nv_add_u32 v%d, %d, v%d' % (d + 2, WIN, d, d + 3, WIN, d + 1))


W_SLOT = [0, 1, 2, 3, 0, 1, 2, 3]
S_SHIFT = [0]


def s_slot(i):
    return (i + 4) % 6 if S_SHIFT[0] < 0 else (i + S_SHIFT[0]) % 4


def w_frag_read(e, dst, wa, j, s2, g, mat, fh, mm, tag):
    slot = W_SLOT[j]
    off = (slot & 1) * SLOT + mat * 12288 + (32 * s2 + 4 * mm) * 192 + g * 64
    e.I('ds_read_b64_tr_b16 %s, v%d offset:%d' % (vr(dst + 2 * mm, 2), wa + 2 * (slot >> 1) + fh, off), tag=tag)


def act_items(e, cfg, G, U, tmp, out):
    items = []
    add = lambda t: items.append(lambda t=t: e.I(t))
    for b in range(2):
        g, u, o = G + 8 * b, U + 8 * b, out + 4 * b
        if cfg.mimic:
            for src in (g, u):
                for p in range(4):
                    add('v_cvt_pk_bf16_f32 v%d, v%d, v%d' % (tmp + p, src + 2 * p, src + 2 * p + 1))
                for p in range(4):
                    add('v_lshlrev_b32 v%d, 16, v%d' % (src + 2 * p, tmp + p))
                    add('v_and_b32 v%d, 0xffff0000, v%d' % (src + 2 * p + 1, tmp + p))
        for p in range(4):
            add('v_pk_mul_f32 %s, %s, s[%d:%d]' % (vr(tmp + 2 * p, 2), vr(g + 2 * p, 2), sNL2E, sNL2E + 1))
        for p in range(8):
            add('v_exp_f32 v%d, v%d' % (tmp + p, tmp + p))
        for p in range(4):
            add('v_pk_add_f32 %s, %s, 1.0 op_sel_hi:[1,0]' % (vr(tmp + 2 * p, 2), vr(tmp + 2 * p, 2)))
        for p in range(8):
            add('v_rcp_f32 v%d, v%d' % (tmp + p, tmp + p))
        for p in range(4):
            add('v_pk_mul_f32 %s, %s, %s' % (vr(g + 2 * p, 2), vr(g + 2 * p, 2), vr(tmp + 2 * p, 2)))
        if cfg.mimic:
            for p in range(4):
                add('v_cvt_pk_bf16_f32 v%d, v%d, v%d' % (tmp + p, g + 2 * p, g + 2 * p + 1))
            for p in range(4):
                add('v_lshlrev_b32 v%d, 16, v%d' % (g + 2 * p, tmp + p))
                add('v_and_b32 v%d, 0xffff0000, v%d' % (g + 2 * p + 1, tmp + p))
        for p in range(4):
            add('v_pk_mul_f32 %s, %s, %s' % (vr(u + 2 * p, 2), vr(g + 2 * p, 2), vr(u + 2 * p, 2)))
        for p in range(4):
            add('v_cvt_pk_bf16_f32 v%d, v%d, v%d' % (o + p, u + 2 * p, u + 2 * p + 1))
    return items


def act_items_scalar(e, cfg, G, U, tmp, out):
    if cfg.mimic:
        return act_items(e, cfg, G, U, tmp, out)
    items = []
    add = lambda t: items.append(lambda t=t: e.I(t))
    for b in range(4):
        g, u, o = G + 4 * b, U + 4 * b, out + 2 * b
        for p in range(4):
            add('v_mul_f32 v%d, s%d, v%d' % (tmp + p, sNL2E, g + p))
        for p in range(4):
            add('v_exp_f32 v%d, v%d' % (tmp + p, tmp + p))
            add('v_mul_f32 v%d, v%d, v%d' % (u + p, g + p, u + p))
        for p in range(4):
            add('v_add_f32 v%d, 1.0, v%d' % (tmp + p, tmp + p))
        for p in range(4):
            add('v_rcp_f32 v%d, v%d' % (tmp + p, tmp + p))
        for p in range(4):
            add('v_mul_f32 v%d, v%d, v%d' % (u + p, tmp + p, u + p))
        for p in range(2):
            add('v_cvt_pk_bf16_f32 v%d, v%d, v%d' % (o + p, u + 2 * p, u + 2 * p + 1))
    return items


def light_scc(e):
    e.I('s_and_b32 s%d, s%d, 3\ns_cmp_eq_u32 s%d, 3\ns_cselect_b32 s%d, 14, s%d\ns_cmp_eq_u32 s%d, 14' % (T0, sCB, T0, T0, sCB, T0))


def w_lane_offsets(e, cfg, WV, t0, t1):
    if cfg.zfill:
        light_scc(e)
        e.I('s_cselect_b32 s%d, 8, 12' % sTW)
    e.I('s_and_b32 s%d, s%d, 1' % (T1, sW))
    e.I('s_mul_i32 s%d, s%d, %d\ns_lshl_b32 s%d, s%d, 6\ns_add_u32 s%d, s%d, s%d' % (T0, T1, 32 * 2752, T1, sSG0, T0, T0, T1))
    for q in range(3):
        e.I('v_add_u32 v%d, %d, v0\nv_mul_u32_u24 v%d, 171, v%d\nv_lshrrev_b32 v%d, 11, v%d' % (t1, 64 * q, t0, t1, t0, t0))
        if cfg.zfill:
            e.I('v_mul_u32_u24 v%d, 12, v%d\nv_sub_u32 v%d, v%d, v%d\nv_cmp_gt_u32 vcc, s%d, v%d' % (WV + q, t0, t1, t1, WV + q, sTW, t1))
        e.I('v_lshrrev_b32 v%d, 3, v%d\nv_lshlrev_b32 v%d, 1, v%d\nv_xor_b32 v%d, v0, v%d' % (t1, t0, t1, t1, t1, t1))
        e.I('v_mul_u32_u24 v%d, %d, v%d' % (t0, 2752 - 192, t0))
        e.I('v_lshl_add_u32 v%d, v%d, 4, v%d' % (t0, t1, t0))
        e.I('v_add_u32 v%d, s%d, v%d' % (WV + q, T0, t0))
        if cfg.zfill:
            e.I('v_mov_b32 v%d, 0x%x\nv_cndmask_b32 v%d, v%d, v%d, vcc' % (t0, OOB, WV + q, t0, WV + q))
    e.I('s_mul_i32 s%d, s%d, 6144' % (sMW, sW))


def dma_W(e, WV, SWR, j):
    slot = W_SLOT[j] * SLOT
    its = []
    for grp in range(2):
        for q in range(3):
            def f(grp=grp, q=q):
                set_m0(e, sMW, slot + grp * 3072)
                if q == 0 and grp == 0:
                    e.I('s_add_u32 s%d, s%d, %d\ns_and_b32 s%d, s%d, 7\ns_mul_i32 s%d, s%d, %d' %
                        (sTW, sK0, j, sTW, sTW, sTW, sTW, 64 * 2752))
                if q == 0 and grp == 1:
                    e.I('s_add_u32 s%d, s%d, %d' % (sTW, sTW, 16 * 2752))
                e.I('buffer_load_dwordx4 v%d, %s, s%d offen offset:%d %slds' % ((WV + q, srd(SWR), sTW, 1024 * q) + (ntf('w', j),)), tag=('st', 8 + j))
            its.append(f)
    return its


C_LAND, C_CONS, C_Q, C_DONEA = 0, 32, 64, 68


def cnt_add(e, va, vone, off):
    e.I('s_mov_b64 exec, 1')
    e.I('ds_add_u32 v%d, v%d offset:%d' % (va, vone, off), tag='sig')
    e.I('s_mov_b64 exec, -1')


def cnt_look(e, va, vt, off, tag):
    e.I('ds_read_b32 v%d, v%d offset:%d' % (vt, va, off), tag=tag)


def cnt_check(e, label, va, vt, off, tag):
    e.wait(lg=tag)
    e.I('v_cmp_ne_u32 vcc, 4, v%d' % vt)
    e.I('s_cbranch_vccnz %s' % label)
    e.label(label + '_out')
    with e.cold_block():
        e.label(label)
        e.I('s_mov_b32 s%d, 0' % sCNT)
        e.label(label + '_l')
        if SLEEP[1]:
            e.I('s_sleep %d' % SLEEP[1])
        cnt_look(e, va, vt, off, None)
        e.I('s_add_u32 s%d, s%d, 1' % (sCNT, sCNT))
        e.I('s_cmp_gt_u32 s%d, %d' % (sCNT, 20 * SPIN_MAX))
        e.wait(lg='all')
        e.I('s_cbranch_scc1 %s_out' % label)
        e.I('v_cmp_ne_u32 vcc, 4, v%d' % vt)
        e.I('s_cbranch_vccnz %s_l' % label)
        e.I('s_branch %s_out' % label)


def cnt_spin(e, label, va, vt, off):
    cnt_look(e, va, vt, off, 'look')
    cnt_check(e, label, va, vt, off, 'look')


def act_offsets(e, k, s_data, s_flag, valid_scc=False):
    e.I('s_lshl_b32 s%d, s%d, 2\ns_add_u32 s%d, s%d, s%d' % (T0, sRB, T0, T0, sW))
    e.I('s_mul_i32 s%d, s%d, 43\ns_add_u32 s%d, s%d, s%d\ns_add_u32 s%d, s%d, %d\ns_lshl_b32 s%d, s%d, 11' %
        (T1, T0, T1, T1, sSG0, T1, T1, k, s_data, T1))
    e.I('s_lshr_b32 s%d, s%d, 1\ns_lshl4_add_u32 s%d, s%d, s%d\ns_and_b32 s%d, s%d, 1\ns_lshl1_add_u32 s%d, s%d, s%d' %
        (T1, T0, T1, T1, sCB, T0, T0, T1, T1, T0))
    e.I('s_mul_i32 s%d, s%d, %d\ns_add_u32 s%d, s%d, 0x%x' % (T1, T1, FS, s_flag, T1, AF_OFF))


def part_write_addr(e, dst, t0, t1, piece_stride, wave_stride, base):
    e.I('v_lshrrev_b32 v%d, 4, v0' % t0)
    e.I('v_and_b32 v%d, 7, v0' % t1)
    e.I('v_xor_b32 v%d, v%d, v%d' % (t0, t0, t1))
    e.I('v_lshlrev_b32 v%d, 4, v%d' % (dst, t0))
    e.I('v_bfe_u32 v%d, v0, 3, 1' % t0)
    e.I('v_and_b32 v%d, 3, v0' % t1)
    e.I('v_lshl_add_u32 v%d, v%d, 2, v%d' % (t0, t0, t1))
    e.I('v_lshl_add_u32 v%d, v%d, 8, v%d' % (dst, t0, dst))
    e.I('v_bfe_u32 v%d, v0, 2, 1' % t0)
    e.I('v_mul_u32_u24 v%d, %d, v%d' % (t0, piece_stride, t0))
    e.I('s_mul_i32 s%d, s%d, %d\ns_add_u32 s%d, s%d, %d' % (T0, sW, wave_stride, T0, T0, base))
    e.I('v_add3_u32 v%d, v%d, v%d, s%d' % (dst, dst, t0, T0))
    e.I('v_xor_b32 v%d, 64, v%d' % (dst + 1, dst))


def acc2(t4, dq):
    return 64 + 16 * t4 + 4 * dq


def part_write(e, addr, piece_stride, tt, addr1=None):
    its = []
    for a in range(2):
        for dq in range(4):
            ad_, off = (addr + (dq & 1), (dq >> 1) * 128) if addr1 is None or dq < 2 else (addr1 + (dq & 1), 0)
            its.append(lambda ad_=ad_, off=off, dq=dq, a=a:
                       e.I('ds_write_b128 v%d, %s offset:%d' % (ad_, vr(acc2(2 * tt + a, dq), 4), tt * 2 * piece_stride + a * 2048 + off), tag=('pw', tt)))
    return its


def tile_ids(e, cfg, redo):
    if redo:
        e.I('s_and_b32 s%d, s2, 7\ns_lshr_b32 s%d, s2, 3' % (T0, T1))
        e.I('s_and_b32 s%d, s%d, 7\ns_lshr_b32 s%d, s%d, 3\ns_lshr_b32 s%d, s%d, 1' % (T2, T1, T3, T1, T4, T0))
    e.I('s_mul_i32 s%d, s%d, 11\ns_mul_i32 s%d, s%d, 3\ns_add_u32 s%d, s%d, s%d' % (sSG0, T4, T5, T3, sSG0, sSG0, T5))
    e.I('s_cmp_eq_u32 s%d, 15\ns_subb_u32 s%d, s%d, 0' % (sCB, sSG0, sSG0))
    if cfg.map2 == 84:
        if cfg.xloc:
            e.I('s_and_b32 s%d, s%d, 8\ns_add_u32 s%d, s%d, s%d\ns_and_b32 s%d, s%d, 2\ns_lshl_b32 s%d, s%d, 2\ns_add_u32 s%d, s%d, s%d' %
                (sRT, sRB, sRT, sRT, sRB, T5, T0, T5, T5, sRT, sRT, T5))
            e.I('s_and_b32 s%d, s%d, 4\ns_add_u32 s%d, s%d, s%d' % (sCT, T0, sCT, sCT, T3))
        else:
            e.I('s_lshl_b32 s%d, s%d, 3\ns_add_u32 s%d, s%d, s%d' % (sRT, T4, sRT, sRT, T2))
            e.I('s_and_b32 s%d, s%d, 1\ns_lshl_b32 s%d, s%d, 2\ns_add_u32 s%d, s%d, s%d' % (sCT, T0, sCT, sCT, sCT, sCT, T3))
    else:
        e.I('s_lshl_b32 s%d, s%d, 2\ns_and_b32 s%d, s%d, 3\ns_add_u32 s%d, s%d, s%d\ns_lshr_b32 s%d, s%d, 2' %
            (sRT, T0, T5, T1, sRT, sRT, T5, sCT, T1))


KARG2 = 's_load_dwordx16 s[20:35], s[0:1], 64\ns_load_dwordx2 s[36:37], s[0:1], 128'


def gen_entry(e, cfg, st):
    e.I('s_load_dwordx16 s[4:19], s[0:1], 0')
    e.I('s_cmp_ge_u32 s2, 256\ns_cbranch_scc1 L_end')
    e.I(KARG2)
    st(e, 'start')
    if 'v' in cfg.prewarm:
        n = cfg.pwn
        e.I('s_getpc_b64 s[%d:%d]' % (SCODE, SCODE + 1))
        e.label('L_pc')
        e.I('s_mov_b32 s%d, L_end-L_pc\ns_mov_b32 s%d, 0x20000' % (SCODE + 2, SCODE + 3))
        e.I('s_lshl_b32 s%d, s2, %d\ns_and_b32 s%d, s%d, 0x%x' % (T0, 7 + n.bit_length() - 1, T0, T0, 0x7fff & ~(1024 * n - 1)))
        e.I('v_lshlrev_b32 v1, %d, v0' % (1 + n.bit_length() - 1))
        m = sum(1 << (k * 64 // n) for k in range(n))
        e.I('s_mov_b32 exec_lo, 0x%x\ns_mov_b32 exec_hi, 0x%x' % (m & 0xffffffff, m >> 32))
        e.I('buffer_load_dword v63, v1, %s, s%d offen' % (srd(SCODE), T0), tag='pw')
        e.I('s_mov_b64 exec, -1')
    e.I('v_lshrrev_b32 v1, 6, v0\nv_and_b32 v0, 63, v0')
    e.I('v_readfirstlane_b32 s%d, v1' % sWAVE)
    if cfg.slim and cfg.rot1 == (2, 4, 2, 1):
        e.I('s_and_b32 s%d, s2, 7\ns_bfe_u32 s%d, s2, 0x30003\ns_lshr_b32 s%d, s2, 6' % (T0, T2, T3))
        e.I('s_lshl1_add_u32 s%d, s%d, s%d\ns_lshl2_add_u32 s%d, s%d, s%d\ns_and_b32 s%d, s%d, 7' % (sK0, T2, T0, sK0, T3, sK0, sK0, sK0))
        e.I('s_and_b32 s%d, s2, 1\ns_lshl3_add_u32 s%d, s%d, s%d' % (sRB, sRB, sRB, T2))
        e.I('s_lshr_b32 s%d, s%d, 1\ns_lshl2_add_u32 s%d, s%d, s%d' % (T4, T0, sCB, T4, T3))
        assert cfg.map2 == 84
    else:
        e.I('s_and_b32 s%d, s2, 7\ns_lshr_b32 s%d, s2, 3' % (T0, T1))
        e.I('s_and_b32 s%d, s%d, 7\ns_lshr_b32 s%d, s%d, 3' % (T2, T1, T3, T1))
        e.I('s_and_b32 s%d, s%d, 1\ns_lshl_b32 s%d, s%d, 3\ns_add_u32 s%d, s%d, s%d' % (sRB, T0, sRB, sRB, sRB, sRB, T2))
        e.I('s_lshr_b32 s%d, s%d, 1' % (T4, T0))
        e.I('s_lshl_b32 s%d, s%d, 2\ns_add_u32 s%d, s%d, s%d' % (sCB, T4, sCB, sCB, T3))
        e.I('s_mul_i32 s%d, s%d, %d' % (sK0, T2, cfg.rot1[0]))
        for src, mul in zip((T3, T4, None), cfg.rot1[1:]):
            if mul:
                if src is None:
                    e.I('s_and_b32 s%d, s%d, 1' % (T5, T0))
                e.I('s_mul_i32 s%d, s%d, %d\ns_add_u32 s%d, s%d, s%d' % (T5, T5 if src is None else src, mul, sK0, sK0, T5))
        e.I('s_and_b32 s%d, s%d, 7' % (sK0, sK0))
    if not cfg.slim:
        tile_ids(e, cfg, False)
    e.I('s_and_b32 s%d, s%d, 3' % (sW, sWAVE))
    e.I('s_cmp_lt_u32 s%d, 4\ns_cbranch_scc1 L_A' % sWAVE)


def gen_B(e, cfg, st):
    NPRE = cfg.prog.count('D')
    WA = 2
    EP = 42
    XV, BV, WV, XA = 32, 36, 38, 44
    sOD = 62
    if cfg.prioS:
        e.I('s_setprio %d' % cfg.prioS)
    e.I('v_lshrrev_b32 v8, 3, v0')
    e.I('v_and_b32 v9, 7, v0')
    e.I('v_lshrrev_b32 v10, 4, v0')
    e.I('v_xor_b32 v10, v9, v10\nv_lshlrev_b32 v10, 4, v10')
    e.I('v_lshrrev_b32 v11, 5, v0\nv_and_b32 v12, 3, v8\nv_lshl_add_u32 v11, v11, 4, v12')
    e.I('s_lshl2_add_u32 s%d, s%d, s%d\ns_lshl_b32 s%d, s%d, 15' % (T0, sRB, sW, T0, T0))
    e.I('v_lshl_add_u32 v11, v11, 10, s%d' % T0)
    e.I('s_lshl_b32 s%d, s%d, 6\ns_and_b32 s%d, s%d, 64' % (sOD, sW, sOD, sOD))
    e.I('v_xad_u32 v%d, v10, s%d, v11' % (XV, sOD))
    e.I('v_xor_b32 v13, 64, v%d' % XV)
    e.I('v_add_u32 v%d, 3072, v13\nv_add_u32 v%d, 6144, v%d\nv_add_u32 v%d, 9216, v13' % (XV + 1, XV + 2, XV, XV + 3))
    def b_setup():
        e.I('s_and_b32 s%d, s%d, 1\ns_lshl1_add_u32 s%d, s%d, s%d\ns_lshl_b32 s%d, s%d, 14' % (T1, sW, T0, sCB, T1, T0, T0))
        e.I('v_lshrrev_b32 v11, 5, v0\nv_lshl_add_u32 v11, v11, 3, v12')
        e.I('v_lshl_add_u32 v11, v11, 10, s%d' % T0)
        e.I('v_add_u32 v%d, v11, v10' % BV)
        e.I('v_xor_b32 v13, 64, v%d\nv_add_u32 v%d, 3072, v13' % (BV, BV + 1))
        e.I('s_lshl_b32 s%d, s%d, 11\ns_add_u32 s%d, s%d, 16384' % (sMBm, sW, sMBm, sMBm))
        e.I('s_mov_b32 s%d, 0x%x\ns_mov_b32 s%d, 0x20000' % (SBM + 2, 512 * 1024, SBM + 3))
    if not cfg.blate:
        b_setup()
    e.I('s_lshl_b32 s%d, s%d, 12' % (sMX, sW))
    e.I('s_lshl_b32 s%d, s%d, 7' % (T6, sK0))
    e.I('s_mov_b32 s%d, 0x%x\ns_mov_b32 s%d, 0x20000' % (SX + 2, 2048 * 1024, SX + 3))
    set_m0(e, sMX, s_slot(0) * SLOT)
    e.I('s_mov_b32 s%d, s%d' % (sTS, T6))
    st(e, '_prek')
    e.wait_smem()
    st(e, 'karg')
    jitter(e, cfg, 1)
    e.I('s_mov_b64 s[%d:%d], s[%d:%d]' % (SX, SX + 1, P_X, P_X + 1))

    def dma_S(i):
        slot = s_slot(i) * SLOT
        its = []
        for q in range(4):
            def f(q=q):
                if q == 0 and i:
                    set_m0(e, sMX, slot)
                    e.I('s_add_u32 s%d, s%d, %d\ns_and_b32 s%d, s%d, 1023' % (sTS, T6, i * 128, sTS, sTS))
                e.I('buffer_load_dwordx4 v%d, %s, s%d offen offset:%d %slds' % ((XV + q, srd(SX), sTS, 1024 * q) + (ntf('x', i),)), tag=('st', i))
            its.append(f)
        for q in range(2):
            def f(q=q):
                if q == 0 and i == 0 and cfg.blate:
                    b_setup()
                if q == 0:
                    set_m0(e, sMBm, slot)
                if q == 0 and i == 0:
                    e.I('s_cmp_ge_u32 s%d, 2\ns_cselect_b64 s[%d:%d], s[%d:%d], s[%d:%d]' % (sW, SBM, SBM + 1, P_BIM, P_BIM + 1, P_BRE, P_BRE + 1))
                e.I('buffer_load_dwordx4 v%d, %s, s%d offen offset:%d %slds' % ((BV + q, srd(SBM), sTS, 1024 * q) + (ntf('b', i),)), tag=('st', i))
            its.append(f)
        return its

    run(dma_S(0))
    st(e, 'dma0')
    s1 = dma_S(1)
    run(s1[:cfg.s1a])
    if 's' in cfg.prewarm:
        code_touch(e, 'B')
    frag16_addr(e, XA, 11, 12)
    for s in range(2):
        e.I('v_xor_b32 v%d, s%d, v%d\nv_add_u32 v%d, s%d, v%d' % (XA + s, sOD, XA + s, XA + s, sMX, XA + s))
        e.I('v_add_u32 v%d, %d, v%d' % (XA + 2 + s, WIN, XA + s))
        if cfg.lag:
            e.I('v_add_u32 v%d, %d, v%d' % (XA + 4 + s, 2 * WIN, XA + s))
    e.I('v_lshlrev_b32 v11, 2, v0\nv_add_u32 v11, %d, v11\nv_mov_b32 v12, 0' % L_FL)
    e.I('ds_write_b32 v11, v12', tag='init')

    def setup_a():
        if cfg.slim:
            tile_ids(e, cfg, True)
        mk_srd(e, SWS, P_WS, WS_SIZE)
        mk_srd(e, SWD, P_WD, 1376 * 1024)
        e.I('s_cmp_ge_u32 s%d, 2' % sW)
        mk_srd_sel(e, SW, P_WU, P_WG, 512 * 2752)
        w_tr_addr(e, WA, 13, 14)
        e.I('v_lshlrev_b32 v1, 4, v0')

    def setup_b():
        w_lane_offsets(e, cfg, WV, 13, 14)
    if not cfg.defer:
        setup_a()
        setup_b()

    sDC, sDB, sDE, sAC, sAB, sAE = 86, 87, 88, 89, 90, 91
    sD0, sF0, sD2, sF2 = T2, T3, T4, T5
    st(e, '_pro')
    sP0 = 92
    if isinstance(cfg.w0pos, tuple):
        tab = sum(p << (4 * r) for r, p in enumerate(cfg.w0pos))
        e.I('s_and_b32 s%d, s%d, 7\ns_lshl_b32 s%d, s%d, 2\ns_lshr_b32 s%d, 0x%x, s%d\ns_and_b32 s%d, s%d, 15' %
            (T0, sRB, T0, T0, sP0, tab, T0, sP0, sP0))

    def w0_hook(p):
        if cfg.w0pos == p:
            run(dma_W(e, WV, SW, 0))
        elif isinstance(cfg.w0pos, tuple) and p in cfg.w0pos:
            e.I('s_cmp_eq_u32 s%d, %d\ns_cbranch_scc1 L_w0_%d' % (sP0, p, p))
            e.label('L_w0_%d_out' % p)
            with e.cold_block():
                e.label('L_w0_%d' % p)
                run(dma_W(e, WV, SW, 0))
                e.I('s_branch L_w0_%d_out' % p)
            e.m0 = None
    run(s1[cfg.s1a:])
    st(e, '_dma1')
    w0_hook(1)
    e.wait(vm=('st', 0))
    st(e, '_sa0')
    e.I('s_barrier')
    st(e, 'b0')
    for i in range(8):
        if i == 1:
            e.I('s_mov_b32 s%d, 0x%x' % (T0, EPOCH_OFF))
            e.I('buffer_load_dword v%d, off, %s, s%d sc1' % (EP, srd(SWS), T0), tag='ep')
        if i < 6:
            run(dma_S(i + 2))
            w0_hook(i + 2)
        elif cfg.w0pos is None:
            run(dma_W(e, WV, SW, i - 6))
        elif i == 6 or 'W2' not in cfg.prog:
            run(dma_W(e, WV, SW, i - 5))
        for s in range(4):
            slot = s_slot(i)
            e.I('ds_read_b128 %s, v%d offset:%d' % (vr(128 + 4 * (4 * i + s), 4), XA + 2 * (slot >> 1) + (s >> 1), (slot & 1) * SLOT + (s & 1) * 2048), tag='x')
        if cfg.defer and i == 0:
            setup_a()
        if cfg.defer and i == 1:
            setup_b()
        if i == 4:
            e.wait(vm='ep')
            e.I('v_readfirstlane_b32 s%d, v%d' % (sNONCE, EP))
            e.I('s_add_u32 s%d, s%d, 0x%x\ns_or_b32 s%d, s%d, 1' % (sNONCE, sNONCE, PHI, sNONCE, sNONCE))
            e.I('s_mov_b32 s%d, 0x%x\ns_mov_b32 s%d, 0x%x' % (sNL2E, NLOG2E, sNL2E + 1, NLOG2E))
        if i == 2:
            step_start(e, cfg, sAC, sAB, sAE, 11)
        if i == 3:
            for k in range(3):
                e.I('s_lshl_b32 s%d, s%d, 4' % (sDC + k, sAC + k))
            for n in range(1, NPRE):
                wd_next(e, n, sDC, sDB, sDE)
        if i == 5:
            act_offsets(e, 0, sD0, sF0)
        if i == 6:
            e.I('s_add_u32 s%d, s%d, 4096' % (sD2, sD0))
            light_scc(e)
            e.I('s_cselect_b32 s%d, 0x%x, s%d' % (sD2, OOB, sD2))
            e.I('v_mov_b32 v7, %d\nv_mov_b32 v6, 1' % L_FL)
        if i < 7:
            e.wait(vm=('st', i + 1), lg='all')
            st(e, '_sa%d' % (i + 1))
            e.I('s_barrier')
            st(e, '_sd%d' % (i + 1))
            if i == 0:
                st(e, 'b1')
    NT = cfg.NT
    ops = []
    CH = 'F' in cfg.chain
    sm = [(s, mf) for mf in range(4) for s in range(2)] if CH else [(s, mf) for s in range(2) for mf in range(4)]
    for j in range(8 - NT):
        if CH:
            ops += [(j, s, g, mf) for g in range(3) for s, mf in sm]
        else:
            ops += [(j, s, g, mf) for s in range(2) for g in range(3) for mf in range(4)]
    tail0 = len(ops)
    for g in range(3):
        for j in range(8 - NT, 8):
            ops += [(j, s, g, mf) for s, mf in sm]
    NB, LA = 6, cfg.LA
    first = {j: min(q for q in range(len(ops)) if ops[q][0] == j) for j in range(8)}
    last = {j: max(q for q in range(len(ops)) if ops[q][0] == j) for j in range(8)}

    def rd(q, half):
        if q >= len(ops):
            return
        j, s, g, mf = ops[q]
        if q == first[j] and j <= cfg.JL and half == 0:
            e.wait(vm=('st', 8 + j), lg='all' if j in cfg.drain else 'x')
            st(e, '_a%d' % j)
            e.I('s_barrier')
            st(e, '_d%d' % j)
            if j in (0, 4, cfg.JL):
                st(e, 'b%d' % (8 + j))
            if j == 0 and cfg.prioB != cfg.prioS:
                e.I('s_setprio %d' % cfg.prioB)
        w_frag_read(e, 8 + 4 * (q % NB), WA, j, s, g, mf >> 1, mf & 1, half, ('wf', q))
        if q == last[7] and half == 1:
            cnt_add(e, 7, 6, C_CONS + 28)

    started = set()

    def mm(q, a):
        j, s, g, mf = ops[q]
        if a == 0 and q % 2 == 0:
            e.wait(lg=('wf', q + 1))
        t = a ^ (q & 1) if cfg.snake else a
        qq = q
        if CH:
            assert LA == 4
            i = 2 * (q & 1) + a
            qq = (q & ~1) + (1 if i in (1, 2) else 0)
            t = (i >> 1) ^ ((q >> 1) & 1)
            s = ops[qq][1]
        acc = 32 + 32 * g + 16 * (mf >> 1) + 8 * t + 4 * (mf & 1)
        mfma16(e, acc, 8 + 4 * (qq % NB), 128 + 16 * j + 8 * s + 4 * t, acc not in started)
        started.add(acc)
        rd(q + LA, a)

    def act_store(k, ms=(0, 1)):
        for m in ms:
            e.I('buffer_store_dwordx4 %s, v1, %s, s%d offen offset:%d sc1' %
                (vr(136 + 8 * k + 4 * m, 4), srd(SWS), sD2 if k == 2 else sD0, 1024 * m + (2048 if k == 1 else 0)), tag=('as', k))

    def with_stores(its, k):
        if not cfg.asplit:
            return its + [lambda: act_store(k)]
        h = len(its) // 2
        return its[:h] + [lambda: act_store(k, (0,))] + its[h:] + [lambda: act_store(k, (1,))]

    def act_flag():
        e.wait(vm=[('as', k) for k in range(3)])
        flag_store(e, EP, sF0)

    for q in range(LA):
        rd(q, 0)
        rd(q, 1)
    per = 8 * NT
    for q in range(tail0 + per):
        mm(q, 0)
        mm(q, 1)
    if cfg.prioT:
        e.I('s_setprio %d' % cfg.prioT)
    if NT:
        for g in (1, 2):
            main = [lambda q=q, a=a: mm(q, a) for q in range(tail0 + g * per, tail0 + (g + 1) * per) for a in range(2)]
            fill = with_stores(act_items_scalar(e, cfg, 32 * g, 32 * g + 16, 128, 136 + 8 * (g - 1)), g - 1)
            run(main[:3] + weave(main[3:], fill))
        st(e, 'f1end')
        run(with_stores(act_items(e, cfg, 96, 112, 128, 152), 2))
    else:
        st(e, 'f1end')
        for g in range(3):
            run(with_stores(act_items(e, cfg, 32 + 32 * g, 48 + 32 * g, 128, 136 + 8 * g), g))
    if cfg.prioD[0] != (cfg.prioT or cfg.prioB):
        e.I('s_setprio %d' % cfg.prioD[0])
    st(e, 'actst')
    jitter(e, cfg, 2)
    DA, AV, PW, WDV, EP = 2, 14, 16, 18, 23
    e.I('v_mov_b32 v%d, s%d' % (EP, sNONCE))
    e.I(wd_lane_offsets(e, WDV, 20, 21))
    e.I('v_mov_b32 v22, %d' % L_FL)
    cnt_spin(e, 'L_spinB', 22, 24, C_CONS + 28)
    st(e, 'ldsfree')

    def dma_D(n):
        sl, pos = RING[n]
        if n in PREV:
            e.wait(lg=('wr', PREV[n]))
        set_m0(e, sMW, sl * SLOT + pos * 2048)
        if n:
            wd_next(e, n, sDC, sDB, sDE)
        for q in range(2):
            e.I('buffer_load_dwordx4 v%d, %s, s%d offen offset:%d %slds' % ((WDV + q, srd(SWD), sDC, 1024 * q) + (ntf('d', n),)), tag=('wd', n))

    def wd_reg(n2):
        return 128 + 16 * n2 if n2 < 5 else 32 + 16 * (n2 - 5) if n2 < 7 else 128 + 16 * (n2 - 7)

    def wd_read(n, dqs=range(4)):
        sl, pos = RING[n]
        e.wait(vm=('wd', n))
        for dq in dqs:
            e.I('ds_read_b64_tr_b16 %s, v%d offset:%d' % (vr(wd_reg(n >> 1) + 4 * dq + 2 * (n & 1), 2), DA + 4 * (sl >> 1) + dq,
                                                         (sl & 1) * SLOT + pos * 2048), tag=('wr', n))

    def setup2():
        e.I('v_lshrrev_b32 v20, 2, v0\nv_lshlrev_b32 v20, 7, v20\nv_bfe_u32 v21, v0, 3, 2\nv_lshl_add_u32 v20, v21, 5, v20')
        e.I('v_and_b32 v21, 3, v0\nv_lshl_add_u32 v20, v21, 3, v20\nv_add_u32 v%d, s%d, v20' % (DA, sMW))
        for dq in range(1, 4):
            e.I('v_xor_b32 v%d, %d, v%d' % (DA + dq, 32 * dq, DA))
        for k in (1, 2):
            for dq in range(4):
                e.I('v_add_u32 v%d, %d, v%d' % (DA + 4 * k + dq, k * WIN, DA + dq))
        e.I('s_mul_i32 s%d, s%d, %d' % (T0, sRT, 2 * 88064))
        e.I('v_add_u32 v%d, s%d, v1\nv_add_u32 v%d, 88064, v%d' % (AV, T0, AV + 1, AV))
        e.I('s_lshl2_add_u32 s%d, s%d, s%d\ns_mul_i32 s%d, s%d, %d\ns_add_u32 s%d, s%d, 0x%x' % (T0, sRT, sW, T0, T0, 8 * FS, T0, T0, AF_OFF))
        e.I('v_mul_u32_u24 v20, %d, v0' % FS)

    for n in range(NPRE, 11):
        if min(cfg.flagpos + NPRE, 10) == n:
            setup2()
        if cfg.flagpos + NPRE == n:
            act_flag()
            st(e, 'flagged')
        if n < 10:
            dma_D(n)
    st(e, '_d9')
    cnt_spin(e, 'L_spinB2', 22, 24, C_DONEA)
    if cfg.prioD[1] != cfg.prioD[0]:
        e.I('s_setprio %d' % cfg.prioD[1])
    st(e, '_da')
    jitter(e, cfg, 3)
    pulled = [0]

    def d_step(n):
        if cfg.flagpos + NPRE == n and n > 10:
            assert n < min(cfg.alook, -cfg.posXB)
            act_flag()
            st(e, 'flagged')
        dma_D(n)
        while pulled[0] < min(14, 3 * (n - 9), n - 3):
            wd_read(pulled[0])
            pulled[0] += 1
        if n == 14:
            e.wait(lg=('wr', 9))
            set_m0(e, sMW, L_P2)
            e.I('s_mov_b64 exec, 1')
            e.I('buffer_load_dword off, %s, s%d lds' % (srd(SWD), SWD + 2), tag='init')
            e.I('s_mov_b64 exec, -1')
        if n == -cfg.posXB:
            bar_X()

    def bar_X():
        assert pulled[0] >= 12
        e.wait(vm='init', lg=('wr', 11))
        st(e, '_aX')
        e.I('s_barrier')

    for n in range(10, cfg.alook):
        d_step(n)
    st(e, 'wdiss')
    nd = cfg.alook + cfg.abet
    poll(e, 'L_pollA', 21, 20, T0, '0xff', lambda: [d_step(n) for n in range(cfg.alook, nd)])
    st(e, 'actrdy')
    jitter(e, cfg, 4)
    if cfg.prioF2n < 0:
        e.I('s_setprio %d' % cfg.prioF2)
    elif cfg.prioD[1]:
        e.I('s_setprio 0')

    TL = cfg.TL
    sSV = 92
    NM = 11 - TL

    def sets(lo, hi):
        st_ = 2 if 'D' in cfg.chain else 1
        return [tuple(range(n, min(n + st_, hi))) for n in range(lo, hi, st_)]
    groups = [[(n2, t4) for n2 in ss] for ss in sets(0, NM) for t4 in range(4)] + [[(n2, t4) for n2 in ss] for t4 in range(4) for ss in sets(NM, 11)]
    order = [f for g in groups for f in g]

    def a_reg(n2, t4):
        i = order.index((n2, t4)) % cfg.RB
        return 208 + 4 * i if i < 12 else 24 + 4 * (i - 12)

    pend = []
    rq = []

    def flush(n=99):
        for t in pend[:n]:
            e.I(t)
        del pend[:n]

    def a_load(n2, t4):
        if t4 == 0:
            flush()
        so = sAC if n2 == 0 else sSV + n2 % 5
        e.I('buffer_load_dwordx4 %s, v%d, %s, s%d offen offset:%d sc1' % (vr(a_reg(n2, t4), 4), AV + (t4 >> 1), srd(SWS), so, 1024 * (t4 & 1)),
            tag=('a', n2, t4))
        if n2 < 10 and t4 == 0:
            dst = sSV + (n2 + 1) % 5
            pend.append('s_add_u32 s%d, s%d, 2048' % (dst, so))
            pend.append('s_cmp_eq_u32 s%d, s%d\ns_cselect_b32 s%d, s%d, s%d' % (dst, sAE, dst, sAB, dst))
            if n2 == 9:
                pend.append('s_cmp_eq_u32 s%d, 3\ns_cselect_b32 s%d, 0x%x, s%d' % (sW, dst, OOB, dst))

    lq = []
    for k, t in enumerate(order):
        lq.append(('a', k))
        if k & 1 and nd < 22:
            lq.append(('d', nd))
            nd += 1
    dn = [cfg.alook + cfg.abet - 1]
    nis = [0]

    def issue(k, busy, most=99):
        while lq:
            t = lq[0]
            tag = ('a',) + order[k]
            nv = min(cfg.NV, cfg.NV0[0] + max(0, k - cfg.NV0[1]))
            if nis[0] > k and (len(e.vm) - 1 - e.vm.index(tag) >= nv - 1 if tag in e.vm else len(e.vm) >= nv):
                return
            if t[0] == 'a':
                if t[1] >= busy + cfg.RB:
                    return
                if most == 0:
                    return
                most -= 1
                a_load(*order[t[1]])
                nis[0] = t[1] + 1
            else:
                d_step(t[1])
                dn[0] = t[1]
            lq.pop(0)

    wq = []
    zq = [list(g) for g in cfg.zg]
    since = [0]

    def w_pop():
        t = wq.pop(0)
        if t is not None:
            t4, i = t
            assert not rq
            hi = 32768 if t4 == 3 else 0
            set_m0(e, sMW, hi)
            e.I('ds_write_addtid_b32 v%d offset:%d' % (acc2(t4, 0) + i, t4 * SLOT - hi + 256 * i), tag=('pw', t4))
            if i == 15 and t4 == zq[0][-1]:
                since[0] = cfg.zlag + 1
        if since[0]:
            since[0] -= 1
            if since[0] == 0:
                z_bar()

    def z_bar():
        e.wait(lg=('pw', zq.pop(0)[-1]))
        e.I('s_barrier')

    begun = set()

    def mm2(grp):
        k = order.index(grp[0])
        kn = k + len(grp)
        t4 = grp[0][1]
        if k == 0:
            issue(kn - 1, k)
        while rq and rq[0][0] >> 1 <= (max(f[0] for f in order[kn:kn + 2]) if kn + 1 < 4 * NM + TL else 99):
            t = rq.pop(0)
            wd_read(t[0], [t[1]])
        e.wait(vm=[('a',) + f for f in grp], lg=[('wr', 2 * f[0] + 1) for f in grp])
        slots = [(f, dq) for dq in range(4) for f in (grp if dq % 2 == 0 else grp[::-1])]
        for i, ((n2, _), dq) in enumerate(slots):
            d = 3 - dq if cfg.snake and n2 < NM and t4 & 1 else dq
            mfma16(e, acc2(t4, d), a_reg(n2, t4), wd_reg(n2) + 4 * d, acc2(t4, d) not in begun)
            begun.add(acc2(t4, d))
            if i % 4 == 0 and lq:
                issue(min(kn + i // 4, 43), k, 1 if k else 99)
            elif pend and i < len(slots) - 1:
                flush(1)
            elif rq and i < len(slots) - 1:
                t = rq.pop(0)
                wd_read(t[0], [t[1]])
            elif wq:
                w_pop()
        if grp[-1][0] == 10:
            if t4 == 0:
                wq.extend([None, None])
            wq.extend((t4, i) for i in range(16))

    assert cfg.pull0 + 4 <= NM and TL <= 4
    nxt = 7
    for grp in groups:
        n2, t4 = grp[-1]
        if t4 == 0 and n2 < NM:
            st(e, '_n%d' % grp[0][0])
            if grp[0][0] == cfg.prioF2n:
                e.I('s_setprio %d' % cfg.prioF2)
            while pulled[0] <= min(2 * n2 + 5, 13):
                assert dn[0] >= pulled[0]
                wd_read(pulled[0])
                pulled[0] += 1
            if grp[0][0] == cfg.posXB:
                bar_X()
        mm2(grp)
        if t4 == 3 and n2 < NM:
            while nxt <= 10 and nxt - 7 + cfg.pull0 <= n2:
                assert dn[0] >= 2 * nxt + 1
                rq.extend((2 * nxt + hf, dq) for hf in range(2) for dq in range(4))
                nxt += 1
    assert nxt == 11 and not lq
    if cfg.prioF2:
        e.I('s_setprio 0')
    st(e, 'f2end')
    jitter(e, cfg, 5)
    while wq:
        w_pop()
    while zq:
        z_bar()
    st(e, 'end')
    st.flush(e)
    e.I('s_endpgm')


def gen_A(e, cfg, st):
    LR, LI, L16, L128, L256, L16S, KAP, WV = 48, 49, 50, 52, 54, 56, 58, 60
    PP, L512 = 32, 34
    assert not cfg.lag and 'e0' not in cfg.prog and cfg.glds
    SIDX = 3
    RE, IM = 64, 80
    XA, BA = 192, 204
    CV, CA, CA4, WDV = 96, 100, 104, 108
    EV0, EV1, EOOB, ERD, ECNT, EEXP, ONE, FLA, XW, XR, P16 = range(110, 121)
    SEL = 216
    RINGX, RINGB = 128, 160
    sHD, sHF, sES, sEL, sROT, sDTX = 86, 87, 90, 91, 92, 80
    sDC, sDB, sDE = 93, 94, 95
    if cfg.slim:
        tile_ids(e, cfg, False)
    e.I('v_lshlrev_b32 v1, 4, v0')
    e.I('v_and_b32 v21, 3, v0\nv_bfe_u32 v22, v0, 2, 1\nv_lshl_add_u32 v21, v22, 3, v21\nv_bfe_u32 v22, v0, 3, 1\nv_lshl_add_u32 v21, v22, 2, v21')
    sSH, sTH = 81, 96
    e.I('s_and_b32 s%d, s%d, 1\ns_lshr_b32 s%d, s%d, 1' % (sSH, sW, sTH, sW))
    e.I('s_lshl1_add_u32 s%d, s%d, s%d\ns_lshl_b32 s%d, s%d, 5' % (T0, sCB, sSH, T0, T0))
    e.I('v_lshl_add_u32 v21, v21, 1, s%d' % T0)
    e.I('s_lshl_b32 s%d, s%d, 2\ns_add_u32 s%d, s%d, s%d\ns_lshl_b32 s%d, s%d, 4\ns_add_u32 s%d, s%d, s%d' %
        (T3, sRB, T3, T3, sW, T3, T3, T3, T3, sCB))
    e.I('s_lshl_b32 s%d, s%d, 11' % (T2, T3))
    frag16_addr(e, BA, 4, 5)
    def karg_block():
        e.wait_smem()
        st(e, '_karg')
        mk_srd(e, SX, P_X, 2048 * 1024)
        mk_srd(e, SWS, P_WS, WS_SIZE)
        if cfg.skew:
            e.I('s_lshl_b32 s%d, s2, 7\ns_add_u32 s%d, s%d, 0x%x\nv_mov_b32 v20, s38' % (T4, T4, T4, STAMP_OFF))
            flag_store(e, 20, T4)
        e.I('s_mov_b32 s%d, 0x%x\ns_lshl_b32 s%d, s%d, 6' % (T4, EPOCH_OFF, T0, sCB))
        e.I('s_load_dword s3, s[%d:%d], s%d' % (P_WS, P_WS + 1, T4))
        for p in (P_LRE, P_LIM, P_LDT):
            e.I('s_load_dword s3, s[%d:%d], s%d' % (p, p + 1, T0))
        e.I('s_lshr_b32 s%d, s2, 3\ns_lshl_b32 s%d, s%d, 2\ns_add_u32 s%d, s%d, s%d\ns_and_b32 s%d, s%d, 15\ns_lshl_b32 s%d, s%d, 6' %
            (T0, T0, T0, T0, T0, sW, T0, T0, T0, T0))
        for p in (P_GW, P_DSK):
            e.I('s_load_dword s3, s[%d:%d], s%d' % (p, p + 1, T0))
        if cfg.ftouch:
            e.I('s_lshl1_add_u32 s%d, s2, s%d\ns_min_u32 s%d, s%d, 383\ns_lshl_b32 s%d, s%d, 6\ns_add_u32 s%d, s%d, 0x%x' %
                (T0, sSH, T0, T0, T0, T0, T0, T0, G_OFF))
            e.I('s_load_dword s3, s[%d:%d], s%d' % (P_WS, P_WS + 1, T0))
        if 's' in cfg.prewarm:
            code_touch(e, 'A')

    if not cfg.apre:
        karg_block()

    def small0():
        e.I('buffer_load_dword v19, off, %s, s%d sc1' % (srd(SWS), T4), tag='ep')
        e.I('global_load_ushort v16, v21, s[%d:%d]' % (P_LRE, P_LRE + 1), tag='par')
        e.I('global_load_ushort v17, v21, s[%d:%d]' % (P_LIM, P_LIM + 1), tag='par')
        e.I('global_load_ushort v18, v21, s[%d:%d]' % (P_LDT, P_LDT + 1), tag='par')

    small1 = [lambda: e.I('global_load_dwordx4 v[44:47], v1, s[%d:%d]' % (P_GW, P_GW + 1), tag='g'),
              lambda: e.I('buffer_load_dwordx4 v[36:39], v1, %s, s%d offen' % (srd(SX), T2), tag='g'),
              lambda: e.I('buffer_load_dwordx4 v[40:43], v1, %s, s%d offen offset:1024' % (srd(SX), T2), tag='g')]
    e.I('s_lshl_b32 s%d, s%d, 3\ns_add_u32 s%d, s%d, 0x%x' % (T6, T3, T6, T6, G_OFF))
    GA, GW0, GO = 121, 124, 126
    if cfg.glds:
        small1 = [lambda: e.I('global_load_dwordx4 v[44:47], v%d, s[%d:%d]' % (GW0, P_GW, P_GW + 1), tag='g'),
                  lambda: e.I('global_load_dwordx4 v[192:195], v%d, s[%d:%d]' % (GW0 + 1, P_GW, P_GW + 1), tag='g')]
        e.I('s_bfe_u32 s%d, s%d, 0x20001\ns_lshl_b32 s%d, s%d, 2\ns_lshr_b32 s%d, s%d, 3\ns_lshl_b32 s%d, s%d, 1\ns_add_u32 s%d, s%d, s%d' %
            (T0, sCB, T0, T0, T1, sCB, T1, T1, T0, T0, T1))
        e.I('s_and_b32 s%d, s%d, 1\ns_add_u32 s%d, s%d, s%d' % (T1, sCB, T0, T0, T1))
        e.I('s_and_b32 s%d, s%d, 7\ns_lshl_b32 s%d, s%d, 8\ns_lshl_b32 s%d, s%d, 12\ns_add_u32 s%d, s%d, s%d' % (T1, T0, T0, T0, T2, sW, T0, T0, T2))
        e.I('s_lshl_b32 s%d, s%d, 2\ns_xor_b32 s%d, s%d, s%d' % (T2, sSH, T1, T1, T2))
        e.I('v_and_b32 v4, 15, v0\nv_xor_b32 v4, s%d, v4\nv_lshl_add_u32 v%d, v4, 4, s%d' % (T1, GA, T0))
        e.I('v_add_u32 v%d, %d, v%d\nv_add_u32 v%d, %d, v%d' % (GA + 1, WIN, GA, GA + 2, 2 * WIN, GA))
        e.I('v_lshrrev_b32 v4, 4, v0\nv_add_u32 v4, s%d, v4\nv_and_b32 v4, 7, v4\nv_and_b32 v5, 7, v0\nv_lshlrev_b32 v5, 4, v5' % sK0)
        e.I('v_lshl_add_u32 v%d, v4, 7, v5\nv_xor_b32 v%d, 0x200, v%d' % (GW0, GW0 + 1, GW0))
        e.I('v_bfe_u32 v4, v0, 3, 1\nv_lshlrev_b32 v%d, 2, v4' % GO)

    e.I('v_bfe_u32 v4, v0, 3, 1\nv_and_b32 v5, 3, v0\nv_lshl_add_u32 v4, v4, 2, v5')
    e.I('v_lshrrev_b32 v5, 1, v4\nv_lshrrev_b32 v6, 4, v0\nv_xor_b32 v5, v5, v6\nv_and_b32 v6, 4, v0\nv_xor_b32 v5, v5, v6')
    e.I('s_lshl_b32 s%d, s%d, 13\ns_lshl_b32 s%d, s%d, 11' % (T0, sTH, T1, sSH))
    e.I('v_lshl_add_u32 v4, v4, 7, s%d\nv_lshl_add_u32 v4, v6, 10, v4\nv_lshl_add_u32 v%d, v5, 4, v4' % (T0, XA))
    e.I('v_xor_b32 v%d, 64, v%d' % (XA + 1, XA))
    for s in range(2):
        e.I('v_add_u32 v%d, s%d, v%d' % (BA + s, T1, BA + s))
        e.I('v_add_u32 v%d, %d, v%d\nv_add_u32 v%d, %d, v%d' % (XA + 2 + s, WIN, XA + s, BA + 2 + s, WIN, BA + s))
    w_lane_offsets(e, cfg, WV, 24, 25)
    e.I('v_lshrrev_b32 v24, 5, v0\nv_bfe_u32 v25, v0, 4, 1\nv_lshl_add_u32 v24, v25, 1, v24\ns_lshl_b32 s%d, s%d, 2' % (T0, sTH))
    e.I('v_add_u32 v%d, s%d, v24' % (SIDX, T0))
    if cfg.apre:
        karg_block()
    rot2_calc(e, cfg, sROT, 0)
    if cfg.rotS:
        e.I('s_and_b32 s%d, s%d, %d\ns_lshl_b32 s%d, s%d, %d\ns_xor_b32 s%d, s%d, s%d' % (T0, sCT, cfg.rotS[0], T0, T0, cfg.rotS[1], sROT, sROT, T0))
    e.I('s_and_b32 s%d, s%d, 1\ns_lshr_b32 s%d, s%d, 1' % (sDTX, sROT, sROT, sROT))
    e.I('s_bitcmp1_b32 s%d, 0' % sROT)
    mk_srd_sel(e, SC1, P_CIM, P_CRE, 512 * 1024)
    mk_srd_sel(e, SC2, P_CRE, P_CIM, 512 * 1024)
    mk_srd(e, SWD, P_WD, 1376 * 1024)
    step_start(e, cfg, sDC, sDB, sDE, 15)
    e.I('s_cmp_ge_u32 s%d, 2' % sW)
    mk_srd_sel(e, SWA, P_WU, P_WG, 512 * 2752)
    e.I('s_lshl_b32 s%d, s%d, 2\ns_add_u32 s%d, s%d, s%d' % (T0, sRB, T0, T0, sW))
    HW_ = 16384 + cfg.hpad[0]
    HT_ = 4 * HW_ + cfg.hpad[1]
    assert H_OFF + 64 * HT_ <= E_OFF
    e.I('s_mul_i32 s%d, s%d, %d\ns_lshr_b32 s%d, s%d, 1\ns_lshl_b32 s%d, s%d, 13\ns_add_u32 s%d, s%d, s%d' %
        (sHD, T0, HT_, T1, sCB, T1, T1, sHD, sHD, T1))
    e.I('s_mul_i32 s%d, s%d, %d\ns_sub_u32 s%d, s%d, s%d' % (T1, sSH, HT_ - 512, sHD, sHD, T1))
    e.I('s_lshr_b32 s%d, s%d, 2\ns_mul_i32 s%d, s%d, %d\ns_add_u32 s%d, s%d, s%d' % (T1, sCB, T1, T1, cfg.hpad[0], sHD, sHD, T1))
    e.I('s_and_b32 s%d, s%d, 1\ns_lshl_b32 s%d, s%d, 11\ns_add_u32 s%d, s%d, s%d\ns_add_u32 s%d, s%d, 0x%x' %
        (T1, sCB, T1, T1, sHD, sHD, T1, sHD, sHD, H_OFF))
    e.I('s_lshr_b32 s%d, s%d, 1\ns_lshl_b32 s%d, s%d, 4\ns_add_u32 s%d, s%d, s%d\ns_lshl_b32 s%d, s%d, 1' %
        (T1, T0, T1, T1, T1, T1, sCB, T1, T1))
    e.I('s_and_b32 s%d, s%d, 1\ns_add_u32 s%d, s%d, s%d\ns_mul_i32 s%d, s%d, %d\ns_add_u32 s%d, s%d, 0x%x' %
        (T0, T0, T1, T1, T0, T1, T1, FS, sHF, T1, HF_OFF))
    e.I('s_lshl_b32 s%d, s%d, 13\ns_add_u32 s%d, s%d, 0x%x' % (sEL, sCB, sEL, sEL, E_OFF))
    e.I('s_lshl_b32 s%d, s%d, 9\ns_add_u32 s%d, s%d, s%d\ns_cmp_eq_u32 s%d, 0\ns_cselect_b32 s%d, s%d, 0x%x' %
        (sES, sRB, sES, sES, sEL, sTH, sES, sES, OOB))
    e.I('s_sub_u32 s%d, s%d, 1024' % (sEL, sEL))

    tch = Touch(e, cfg, 'A')
    tch.setup()
    tch.at(-1)

    e.I('s_lshl_b32 s%d, s%d, 4' % (T0, sSH))
    e.I('v_and_b32 v6, 15, v0\nv_add_u32 v6, s%d, v6\nv_lshlrev_b32 v%d, 4, v6\nv_lshlrev_b32 v6, 3, v6\nv_add_u32 v%d, %d, v6' % (T0, P16, XR, L_E))
    e.I('v_lshl_add_u32 v%d, v%d, 8, v%d' % (XW, SIDX, XR))
    e.I('v_and_b32 v4, 3, v0\nv_bfe_u32 v5, v0, 3, 2\nv_lshl_add_u32 v4, v5, 2, v4')
    e.I('v_bfe_u32 v5, v0, 2, 1\nv_lshrrev_b32 v6, 5, v0\nv_xor_b32 v5, v5, v6\nv_lshl_add_u32 v4, v5, 4, v4')
    e.I('v_and_b32 v5, 1, v0\nv_lshlrev_b32 v5, 4, v5\nv_mov_b32 v6, 0x3f80\nv_lshlrev_b32 v5, v5, v6\nv_lshrrev_b32 v4, 1, v4')
    for n in range(8):
        e.I('v_cmp_eq_u32 vcc, %d, v4\nv_cndmask_b32 v%d, 0, v5, vcc' % (n, SEL + n))
    e.I('v_and_b32 v6, 7, v0\nv_lshrrev_b32 v7, 4, v0\nv_xor_b32 v6, v6, v7\nv_lshlrev_b32 v6, 4, v6')
    e.I('v_lshrrev_b32 v7, 3, v0\nv_lshl_add_u32 v6, v7, 10, v6')
    e.I('s_lshl_b32 s%d, s%d, 16\ns_lshl_b32 s%d, s%d, 8\ns_add_u32 s%d, s%d, s%d' % (T0, sCT, T1, sW, T0, T0, T1))
    e.I('v_add_u32 v%d, s%d, v6\nv_xor_b32 v7, 64, v%d' % (CV, T0, CV))
    e.I('v_add_u32 v%d, 7168, v7\nv_add_u32 v%d, 14336, v%d\nv_add_u32 v%d, 21504, v7' % (CV + 1, CV + 2, CV, CV + 3))
    frag16_addr(e, CA, 6, 7)
    for s in range(2):
        e.I('v_add_u32 v%d, s%d, v%d' % (CA + s, sMW, CA + s))
        e.I('v_add_u32 v%d, %d, v%d' % (CA4 + s, 4 * SLOT, CA + s))
    HS = CA + 2
    e.I('v_and_b32 v6, 15, v0\nv_lshlrev_b32 v6, 4, v6\nv_bfe_u32 v7, v0, 4, 1\nv_lshl_add_u32 v6, v7, 10, v6')
    e.I('v_lshrrev_b32 v7, 5, v0\nv_lshl_add_u32 v%d, v7, 8, v6' % HS)
    e.I('s_lshr_b32 s88, s%d, 1\ns_lshl_b32 s88, s88, 7\ns_lshl_b32 s89, s%d, 15\ns_add_u32 s88, s88, s89\ns_xor_b32 s89, s88, 128' % (sROT, sDTX))
    e.I(wd_lane_offsets(e, WDV, 6, 7))
    e.I('s_lshl_b32 s%d, s%d, 2\ns_sub_u32 s%d, s%d, s%d\ns_sub_u32 s%d, s%d, 1\ns_lshl_b32 s%d, s%d, 11' % (T0, sW, T0, sRB, T0, T0, T0, T5, sW))
    e.I('v_lshrrev_b32 v6, 5, v0\nv_sub_u32 v7, s%d, v6' % T0)
    e.I('v_cmp_le_i32 vcc, 0, v7\nv_cmp_le_i32 s[%d:%d], 2, v7' % (sMB, sMB + 1))
    e.I('v_and_b32 v4, 0x1f0, v1')
    e.I('v_lshl_add_u32 v7, v7, 9, v4\nv_add_u32 v7, 1024, v7\nv_subrev_u32 v5, 2048, v7\nv_mov_b32 v%d, 0x%x' % (EOOB, OOB))
    e.I('v_cndmask_b32 v%d, v%d, v7, vcc\nv_cndmask_b32 v%d, v%d, v5, s[%d:%d]' % (EV0, EOOB, EV1, EOOB, sMB, sMB + 1))
    e.I('v_lshrrev_b32 v6, 4, v0\nv_lshl_add_u32 v7, v6, 11, v%d\nv_add_u32 v%d, %d, v7' % (P16, ERD, L_EG))
    e.I('v_lshlrev_b32 v6, 2, v6\nv_sub_u32 v%d, s%d, v6\nv_med3_i32 v%d, v%d, 0, 4' % (ECNT, sRB, EEXP, ECNT))
    e.I('v_mov_b32 v%d, 1\nv_mov_b32 v%d, %d' % (ONE, FLA, L_FL))

    pro = []
    add = lambda t: [pro.append(lambda x=x: e.I(x)) for x in t.split('\n')]

    def csq(d, a):
        add('v_mul_f32 v30, v%d, v%d\nv_mul_f32 v31, v%d, v%d\nv_fma_f32 v%d, -v%d, v%d, v30\nv_add_f32 v%d, v31, v31' %
            (a, a, a, a + 1, d, a + 1, a + 1, d + 1))

    def cmul(d, a, b):
        add('v_mul_f32 v30, v%d, v%d\nv_mul_f32 v31, v%d, v%d\nv_fma_f32 v30, -v%d, v%d, v30\nv_fma_f32 v%d, v%d, v%d, v31\nv_mov_b32 v%d, v30' %
            (a, b, a, b + 1, a + 1, b + 1, d + 1, a + 1, b, d))

    pro.append(lambda: e.wait(vm=['ep', 'par']))
    add('v_readfirstlane_b32 s%d, v19' % sNONCE)
    add('v_lshlrev_b32 v16, 16, v16\nv_lshlrev_b32 v17, 16, v17\nv_lshlrev_b32 v18, 16, v18')
    add('s_add_u32 s%d, s%d, 0x%x\ns_or_b32 s%d, s%d, 1' % (sNONCE, sNONCE, PHI, sNONCE, sNONCE))
    add('v_mul_f32 v18, 0x%x, v18\nv_exp_f32 v18, v18\nv_cvt_pk_bf16_f32 v18, v18, v18\nv_lshlrev_b32 v18, 16, v18' % LOG2E)
    add('v_mul_f32 v21, v18, v16\nv_mul_f32 v22, v18, v17')
    add('v_mul_f32 v21, 0x%x, v21\nv_exp_f32 v21, v21' % LOG2E)
    add('v_mul_f32 v22, 0.15915494, v22\nv_rndne_f32 v23, v22\nv_sub_f32 v22, v22, v23\nv_sin_f32 v23, v22\nv_cos_f32 v22, v22')
    add('v_mul_f32 v%d, v21, v23\nv_mul_f32 v%d, v21, v22' % (LI, LR))
    add('v_mul_f32 v21, v16, v16\nv_fmac_f32 v21, v17, v17\nv_rcp_f32 v21, v21\nv_add_f32 v22, -1.0, v%d\nv_add_f32 v21, v21, v21' % LR)
    add('v_mul_f32 v23, v22, v16\nv_fmac_f32 v23, v%d, v17\nv_mul_f32 v%d, v23, v21' % (LI, KAP))
    add('v_mul_f32 v23, v%d, v16\nv_fma_f32 v23, -v22, v17, v23\nv_mul_f32 v%d, v23, v21' % (LI, KAP + 1))
    csq(22, LR); csq(22, 22); csq(22, 22); csq(L16, 22)
    csq(22, L16); csq(24, 22); csq(L128, 24); csq(L256, L128); csq(L512, L256); csq(L256, L512)
    for bit, src, dst in ((1, L16, L16S), (2, 22, 22), (4, 24, 24)):
        add('v_and_b32 v26, %d, v%d\nv_cmp_ne_u32 vcc, 0, v26' % (bit, SIDX))
        add('v_cndmask_b32 v%d, 1.0, v%d, vcc\nv_cndmask_b32 v%d, 0, v%d, vcc' % (dst, src, dst + 1, src + 1))
    cmul(L16S, L16S, 22); cmul(L16S, L16S, 24)
    add('v_mul_lo_u32 v%d, v%d, s%d\nv_mov_b32 v2, s%d' % (EEXP, EEXP, sNONCE, sNONCE))
    EDIR = 'e0' in cfg.prog
    EVK = 132
    if EDIR:
        for k in range(8):
            add('v_subrev_u32 v%d, %d, v%d\nv_cmp_le_i32 vcc, 2, v%d\nv_lshl_add_u32 v%d, v%d, 9, v%d\nv_cndmask_b32 v%d, v%d, v%d, vcc' %
                (EVK + k, k - 1, ECNT, EVK + k, EVK + k, EVK + k, P16, EVK + k, EOOB, EVK + k))

    par, pro = pro, []
    pro.append(lambda: e.wait(vm='g'))
    if cfg.glds:
        for k in range(8):
            gw, x = (44 + k if k < 4 else 188 + k), 36 + k
            add('v_lshlrev_b32 v24, 16, v%d\nv_and_b32 v25, 0xffff0000, v%d' % (gw, gw))
            add('v_lshlrev_b32 v26, 16, v%d\nv_and_b32 v27, 0xffff0000, v%d' % (x, x))
            add('v_mul_f32 v26, v26, v24\nv_mul_f32 v27, v27, v25\nv_cvt_pk_bf16_f32 v26, v26, v27')
            if k == 0:
                add('v_lshlrev_b32 v28, 16, v26\nv_and_b32 v29, 0xffff0000, v26')
            else:
                add('v_lshlrev_b32 v27, 16, v26\nv_and_b32 v26, 0xffff0000, v26\nv_add_f32 v28, v28, v27\nv_add_f32 v29, v29, v26')
        add('v_add_f32 v28, v28, v29')
        for sh in (1, 2, 4):
            add('v_add_f32_dpp v28, v28, v28 row_shr:%d row_mask:0xf bank_mask:0xf' % sh)
        for wd in (32, 16):
            add('v_mov_b32 v29, v28\nv_permlane%d_swap_b32 v28, v29\nv_add_f32 v28, v28, v29' % wd)
        add('v_cvt_pk_bf16_f32 v28, v28, v28\nv_lshlrev_b32 v28, 16, v28\nv_mul_f32 v28, 0x%x, v28\nv_exp_f32 v28, v28' % NLOG2E)
        add('v_add_f32 v28, 1.0, v28\nv_rcp_f32 v28, v28\nv_cvt_pk_bf16_f32 v28, v28, v28\nv_lshlrev_b32 v28, 16, v28')
    else:
        for k in range(4):
            add('v_lshlrev_b32 v24, 16, v%d\nv_and_b32 v25, 0xffff0000, v%d' % (44 + k, 44 + k))
            for row in range(2):
                x = 36 + 4 * row + k
                add('v_lshlrev_b32 v26, 16, v%d\nv_and_b32 v27, 0xffff0000, v%d' % (x, x))
                add('v_mul_f32 v26, v26, v24\nv_mul_f32 v27, v27, v25\nv_cvt_pk_bf16_f32 v26, v26, v27')
                add('v_lshlrev_b32 v27, 16, v26\nv_and_b32 v26, 0xffff0000, v26')
                if k == 0:
                    add('v_add_f32 v%d, v26, v27' % (28 + row))
                else:
                    add('v_add_f32 v26, v26, v27\nv_add_f32 v%d, v%d, v26' % (28 + row, 28 + row))
        for mod in ('row_shr:1 row_mask:0xf', 'row_shr:2 row_mask:0xf', 'row_shr:4 row_mask:0xf', 'row_shr:8 row_mask:0xf',
                    'row_bcast:15 row_mask:0xa', 'row_bcast:31 row_mask:0xc'):
            for row in range(2):
                add('v_add_f32_dpp v%d, v%d, v%d %s bank_mask:0xf' % (28 + row, 28 + row, 28 + row, mod))
        add('v_cvt_pk_bf16_f32 v26, v28, v29\nv_lshlrev_b32 v28, 16, v26\nv_and_b32 v29, 0xffff0000, v26')
        add('v_mul_f32 v28, 0x%x, v28\nv_mul_f32 v29, 0x%x, v29\nv_exp_f32 v28, v28\nv_exp_f32 v29, v29' % (NLOG2E, NLOG2E))
        add('v_add_f32 v28, 1.0, v28\nv_add_f32 v29, 1.0, v29\nv_rcp_f32 v28, v28\nv_rcp_f32 v29, v29')
        add('v_cvt_pk_bf16_f32 v26, v28, v29\nv_lshlrev_b32 v28, 16, v26\nv_and_b32 v29, 0xffff0000, v26')
    gate, pro = pro, par

    gdone = []

    def g_store():
        gdone.append(1)
        if cfg.glds:
            e.I('s_mov_b64 exec, 0x8080')
            e.I('buffer_store_dword v28, v%d, %s, s%d offen sc1' % (GO, srd(SWS), T6), tag='gs')
            e.I('s_mov_b64 exec, -1')
            return
        e.I('s_mov_b32 exec_lo, 0\ns_mov_b32 exec_hi, 0x80000000')
        e.I('buffer_store_dwordx2 v[28:29], off, %s, s%d sc1' % (srd(SWS), T6), tag='gs')
        e.I('s_mov_b64 exec, -1')

    nbar = [0]

    def s_bar(i):
        assert nbar[0] == i
        nbar[0] += 1
        e.I('s_barrier')
        if i in (0, 7):
            st(e, 'b%d' % i)

    def s_read(n):
        i, s = n >> 2, n & 3
        slot = s_slot(i)
        if s == 0 and not cfg.lag:
            s_bar(i)
        assert nbar[0] > i
        off = (slot & 1) * SLOT
        if cfg.glds and s == 2:
            m = 0xffff << (16 * (i & 3))
            e.I('s_mov_b32 exec_lo, 0x%x\ns_mov_b32 exec_hi, 0x%x' % (m & 0xffffffff, m >> 32))
            e.I('ds_read_b128 %s, v%d offset:%d' % (vr(36 + 4 * (i >> 2), 4), GA + (slot >> 1), off), tag='gx')
            e.I('s_mov_b64 exec, -1')
        bx, bb = RINGX + 8 * (n & 3), RINGB + 16 * (i & 1)

        def rb_(s2, part):
            if s == 0:
                e.I('ds_read_b128 %s, v%d offset:%d' % (vr(bb + 8 * part + 4 * s2, 4), BA + 2 * (slot >> 1) + s2, off + 16384 + part * 4096),
                    tag=('s', n, part))
        for s2 in range(2):
            rb_(s2, 0)
            e.I('ds_read_b128 %s, v%d offset:%d' % (vr(bx + 4 * s2, 4), XA + 2 * (slot >> 1) + (s2 ^ (s & 1)), off + s * 1024), tag=('s', n, 0))
        rb_(1, 1)
        rb_(0, 1)

    def s_mm(n, half):
        e.wait(lg=('s', n, half))
        i, a_ = n >> 2, n & 3
        part = half ^ (a_ & 1)
        for k in range(2):
            s2 = k ^ half
            mfma16(e, RE + 16 * part + 4 * a_, RINGX + 8 * (n & 3) + 4 * s2, RINGB + 16 * (i & 1) + 8 * part + 4 * s2, i == 0 and k == 0)

    D = 2
    seq = []
    for n in range(32):
        seq.append(lambda n=n: (s_mm(n, 0), s_read(n + D) if n + D < 32 else None))
        seq.append(lambda n=n: s_mm(n, 1))
    st(e, '_pro')
    if cfg.lag:
        L = cfg.lag
        npar = len(pro) // max(L - 1, 1) + 1
        for i in range(L):
            s_bar(i)
            tch.at(10 + i)
            if i == 0:
                small0()
            if i >= 1:
                run(pro[(i - 1) * npar:i * npar])
        s_bar(L)
        for n in range(D):
            s_read(n)
        r2 = 2 * cfg.lagr
        for k, it in enumerate(seq):
            it()
            i = L + (k + 1) // r2
            if (k + 1) % r2 == 0 and i <= 7:
                assert (k + 1) // 2 >= 4 * (i - 3)
                s_bar(i)
    else:
        for n in range(D):
            s_read(n)
        p0 = 2 * cfg.smallpos
        run(seq[:p0])
        small0()
        run(seq[p0:p0 + 10])
        run(weave(seq[p0 + 10:56], pro) + seq[56:])
    assert nbar[0] == 8
    st(e, 's1end')
    jitter(e, cfg, 6)
    if cfg.prioA:
        e.I('s_setprio %d' % cfg.prioA)

    def items(txt):
        return [lambda t=t: e.I(t) for t in txt.split('\n')]

    def cfma(d, l, a, c):
        return items('v_fma_f32 v%d, v%d, v%d, v%d\nv_fma_f32 v%d, v%d, v%d, v%d\nv_fma_f32 v%d, -v%d, v%d, v%d\nv_fmac_f32 v%d, v%d, v%d' %
                     (d, l, a, c, d + 1, l, a + 1, c + 1, d, l + 1, a + 1, d, d + 1, l + 1, a))

    e.raw('; ---- role A: local scan end states')
    prev = (RE, IM)
    for r in range(1, 16):
        cur = (20 + 2 * (r & 1), 21 + 2 * (r & 1))
        e.I('v_fma_f32 v%d, v%d, v%d, v%d' % (cur[0], LR, prev[0], RE + r))
        e.I('v_fma_f32 v%d, v%d, v%d, v%d' % (cur[1], LR, prev[1], IM + r))
        e.I('v_fma_f32 v%d, -v%d, v%d, v%d' % (cur[0], LI, prev[1], cur[0]))
        e.I('v_fmac_f32 v%d, v%d, v%d' % (cur[1], LI, prev[0]))
        prev = cur
    e.I('ds_write_b64 v%d, %s' % (XW, vr(prev[0], 2)), tag='ex')

    def c_reg(u, s2, dq):
        return 128 + 32 * u + 16 * s2 + 4 * dq

    CBUF = cfg.cbuf
    CPREV = {i: max(k for k in range(i) if CBUF[k] == CBUF[i]) for i in range(8) if CBUF[i] in CBUF[:i]}
    cdone = set()
    hdone = []

    def c_read(i):
        if i in cdone:
            return
        cdone.add(i)
        assert gdone or not cfg.glds or i < 4
        assert hdone or not EDIR
        assert i < 4 or hdone
        e.wait(vm=('c', i))
        for s in range(4):
            a_, off = (CA4 + (s >> 1), 0) if CBUF[i] == 4 else (CA + (s >> 1), CBUF[i] * SLOT)
            e.I('ds_read_b128 %s, v%d offset:%d' % (vr(c_reg(i >> 1, s >> 1, 2 * (i & 1) + (s & 1)), 4), a_, off + (s & 1) * 2048), tag=('cr', i))

    def c_loads(i):
        u, dt = i >> 1, i & 1
        its = []
        for q in range(4):
            def f(q=q):
                if q == 0:
                    if i in CPREV:
                        c_read(CPREV[i])
                        e.wait(lg=('cr', CPREV[i]))
                    elif CBUF[i] != 4 and (6 + CBUF[i] > cfg.JL or 4 + CBUF[i] >= 8 - cfg.NT):
                        assert kcur[0] >= cfg.JL
                        cnt_spin(e, 'L_cb%d' % i, FLA, 31, C_CONS + 28)
                    e.I('s_xor_b32 s%d, s%d, %d' % (sTD, 88 + (u >> 1), dt * 32768))
                set_m0(e, sMW, CBUF[i] * SLOT)
                e.I('buffer_load_dwordx4 v%d, %s, s%d offen offset:%d %slds' % ((CV + q, srd(SC2 if u & 1 else SC1), sTD, 1024 * q) + (ntf('c', i),)), tag=('c', i))
                if q == 3:
                    st(e, '_c%d' % i)
                if q == 3 and i >= 2:
                    c_read(i - 2)
            its.append(f)
        return its

    def d_loads(n):
        sl, pos = RING[n]
        its = []
        for q in range(2):
            def f(q=q):
                set_m0(e, sMW, sl * SLOT + pos * 2048)
                if q == 0 and n:
                    wd_next(e, n, sDC, sDB, sDE)
                e.I('buffer_load_dwordx4 v%d, %s, s%d offen offset:%d %slds' % ((WDV + q, srd(SWD), sDC, 1024 * q) + (ntf('d', n),)), tag='wd')
            its.append(f)
        return its

    wl = {j: dma_W(e, WV, SWA, j) for j in range(2, 8)}
    planned = set()

    def e_loads():
        its = []
        for q in range(2):
            def f(q=q):
                set_m0(e, T5, L_EG)
                e.I('buffer_load_dwordx4 v%d, %s, s%d offen offset:%d sc1 lds' % (EV0 + q, srd(SWS), sEL, 1024 * q), tag='eg')
            its.append(f)
        return its

    def expand(toks, k):
        r = []
        for t in toks.split(','):
            if not t:
                continue
            n = int(t[1])
            planned.add(t)
            if t[0] == 'W':
                assert n < 4 or k >= n - 2 or (k == n - 3 and k in cfg.drain)
                r += wl[n][:3] if t[2:] == 'a' else wl[n][3:] if t[2:] == 'b' else wl[n]
            elif t[0] == 'C':
                assert CBUF[n] == 4 or k >= min(6 + CBUF[n], cfg.JL)
                assert k >= 2 or cfg.w0pos is None
                r += c_loads(n)
            elif t[0] == 'D':
                r += d_loads(n)
            elif t[0] == 'R':
                r.append(lambda n=n: c_read(n))
            elif t[0] == 'S':
                r.append(lambda n=n: (hq[n](), hsent.add(n)))
            elif t[0] == 'G':
                r += small1
            elif t[0] == 'e':
                r += [lambda k=k: e.I('buffer_load_dwordx4 %s, v%d, %s, s%d offen sc1' % (vr(224 + 4 * k, 4), EVK + k, srd(SWS), sEL), tag='egv')
                      for k in range(8)]
            elif t[0] == 'E':
                r += e_loads()
            elif t[0] == 'T':
                r.append(lambda n=n: tch.at(n))
        return r

    def bar(k, extra=()):
        kk = 7 if k == cfg.JL else k
        assert kk < 2 or 'W%d' % kk in planned or 'W%db' % kk in planned or (kk == 2 and cfg.w0pos is not None)
        e.wait(vm=[('st', 8 + kk)] + list(extra))
        st(e, '_a%d' % k)
        e.I('s_barrier')
        st(e, '_d%d' % k)

    sc = []
    for r in range(16):
        sc += items('v_mul_f32 v4, v%d, v%d\nv_mul_f32 v5, v%d, v%d\nv_fma_f32 v%d, v%d, v%d, -v4\nv_fma_f32 v%d, v%d, v%d, v5' %
                    (KAP + 1, IM + r, KAP + 1, RE + r, RE + r, KAP, RE + r, IM + r, KAP, IM + r))
    if cfg.pksc:
        kp = vr(KAP, 2)
        for r in range(0, 16, 4):
            for o in (0, 2):
                e.I('v_pk_mul_f32 %s, %s, %s op_sel:[1,0] op_sel_hi:[1,1]' % (vr(4 + 2 * o, 2), kp, vr(IM + r + o, 2)))
                e.I('v_pk_mul_f32 %s, %s, %s op_sel:[1,0] op_sel_hi:[1,1]' % (vr(6 + 2 * o, 2), kp, vr(RE + r + o, 2)))
            for o in (0, 2):
                e.I('v_pk_fma_f32 %s, %s, %s, %s op_sel_hi:[0,1,1] neg_lo:[0,0,1] neg_hi:[0,0,1]' % (vr(RE + r + o, 2), kp, vr(RE + r + o, 2), vr(4 + 2 * o, 2)))
                e.I('v_pk_fma_f32 %s, %s, %s, %s op_sel_hi:[0,1,1]' % (vr(IM + r + o, 2), kp, vr(IM + r + o, 2), vr(6 + 2 * o, 2)))
        late = []
    else:
        run(sc[:cfg.early])
        late = sc[cfg.early:]
    e.wait(lg='all')
    bar(0)
    work = []
    for s in range(8):
        e.I('ds_read_b64 %s, v%d offset:%d' % (vr(4 + 2 * s, 2), XR, 256 * s), tag=('e', s))
    pf = []
    for s in range(1, 8):
        pf.append(lambda s=s: e.wait(lg=('e', s)))
        pf += cfma(4 + 2 * s, L16, 2 + 2 * s, 4 + 2 * s)
    segs = [[sub.split('|') for sub in sg.split('&')] for sg in cfg.prog.split(';')]
    issued_tok = set()
    q0 = expand(segs[0][0][0], 0)
    run(weave(q0[:cfg.pren], pf))
    e.I('v_mov_b32 v20, s%d\nv_mov_b32 v21, s%d' % (sNONCE, sNONCE))
    e.I('s_mov_b64 exec, 0xffff')
    e.I('buffer_store_dwordx4 v[18:21], v%d, %s, s%d offen sc1' % (P16, srd(SWS), sES), tag='es')
    e.I('s_mov_b64 exec, -1')
    st(e, 'epub')
    jitter(e, cfg, 7)
    run(q0[cfg.pren:])
    if not cfg.gmerge:
        gate.append(g_store)
    sel = items('v_mov_b32 v%d, 0\nv_mov_b32 v%d, 0' % (PP, PP + 1))
    for s in range(1, 8):
        sel.append(lambda s=s: e.I('v_cmp_eq_u32 vcc, %d, v%d\nv_cndmask_b32 v%d, v%d, v%d, vcc\nv_cndmask_b32 v%d, v%d, v%d, vcc' %
                                   (s, SIDX, PP, PP, 2 + 2 * s, PP + 1, PP + 1, 3 + 2 * s)))
    EG = 224

    def e_check():
        e.I('v_add3_u32 v4, v%d, v%d, v%d\nv_add_u32 v4, v4, v%d' % tuple(EG + 4 * k + 2 for k in range(4)))
        e.I('v_cmp_ne_u32 vcc, v4, v%d' % EEXP)

    def e_verify():
        assert 'e0' in issued_tok or not EDIR
        e.wait(vm='egv', lg='eg')
        e_check()
        if 'E' not in cfg.skip:
            e.I('s_cbranch_vccnz L_pollE')
        e.label('L_pollE_out')
        st(e, 'egot')
        with e.cold_block():
            e.label('L_pollE')
            e.I('s_mov_b32 s%d, 0' % sCNT)
            e.label('L_pollE_l')
            if cfg.esleep:
                e.I('s_sleep %d' % cfg.esleep)
            for k in range(4):
                e.I('v_subrev_u32 v4, %d, v%d\nv_cmp_le_i32 vcc, 2, v4\nv_lshl_add_u32 v4, v4, 9, v%d\nv_cndmask_b32 v4, v%d, v4, vcc' % (k - 1, ECNT, P16, EOOB))
                e.I('buffer_load_dwordx4 %s, v4, %s, s%d offen sc1' % (vr(EG + 4 * k, 4), srd(SWS), sEL))
            e.I('s_add_u32 s%d, s%d, 1' % (sCNT, sCNT))
            e.I('s_cmp_gt_u32 s%d, %d' % (sCNT, SPIN_MAX))
            e.wait(vm='all')
            e.I('s_cbranch_scc1 L_pollE_out')
            e_check()
            e.I('s_cbranch_vccnz L_pollE_l')
            e.I('s_branch L_pollE_out')

    def second_pass():
        p2 = []
        if not EDIR:
            p2.append(lambda: [e.I('ds_read_b128 %s, v%d offset:%d' % (vr(EG + 4 * k, 4), ERD, 512 * k), tag='eg') for k in range(4)])
        p2.append(e_verify)
        for k in range(2, -1, -1):
            p2 += cfma(EG + 4 * k, L128, EG + 4 * k + 4, EG + 4 * k)
        p2 += items('v_mov_b32 v6, v%d\nv_mov_b32 v7, v%d\nv_permlane16_swap_b32 v6, v%d\nv_permlane16_swap_b32 v7, v%d' % (EG, EG + 1, EG, EG + 1))
        p2 += cfma(6, L512, EG, 6)
        p2 += items('v_mov_b32 v4, v6\nv_mov_b32 v5, v7\nv_permlane32_swap_b32 v4, v6\nv_permlane32_swap_b32 v5, v7')
        p2 += cfma(4, L256, 6, 4)
        p2 += cfma(PP, L16S, 4, PP)
        p2 += items('v_mul_f32 v6, v%d, v%d\nv_mul_f32 v7, v%d, v%d' % (KAP, PP, KAP, PP + 1))
        p2 += items('v_fma_f32 v6, -v%d, v%d, v6\nv_fmac_f32 v7, v%d, v%d' % (KAP + 1, PP + 1, KAP + 1, PP))
        prev = (6, 7)
        for r in range(16):
            p2 += items('v_fmac_f32 v%d, v%d, v%d\nv_fmac_f32 v%d, v%d, v%d\nv_fma_f32 v%d, -v%d, v%d, v%d\nv_fmac_f32 v%d, v%d, v%d' %
                        (RE + r, LR, prev[0], IM + r, LR, prev[1], RE + r, LI, prev[1], RE + r, IM + r, LI, prev[0]))
            prev = (RE + r, IM + r)
        return p2

    def store_h(loads):
        assert not p2
        for k in range(8):
            e.I('v_cvt_pk_bf16_f32 v%d, v%d, v%d' % (8 + k, RE + 2 * k, RE + 2 * k + 1))
            e.I('v_cvt_pk_bf16_f32 v%d, -v%d, -v%d' % (16 + k, IM + 2 * k, IM + 2 * k + 1))
        for k in range(8):
            e.I('v_permlane16_swap_b32 v%d, v%d' % (8 + k, 16 + k))
        e.I('s_add_u32 s%d, s%d, 4096\ns_add_u32 s%d, s%d, %d\ns_add_u32 s%d, s%d, %d' % (T0, sHD, T1, sHD, HT_, T2, sHD, HT_ + 4096))
        for tl in range(2):
            for m in range(2):
                mfma(e, RE + 16 * tl, 8 + 8 * tl + 4 * m, SEL + 4 * m, m == 0)
        hdone.append(1)
        run(loads)
        if cfg.gmerge:
            assert not gate
            g_store()
        for tl in range(2):
            for part in range(2):
                o = 8 + 8 * tl + 4 * part
                for k in range(4):
                    e.I('v_cvt_pk_bf16_f32 v%d, v%d, v%d' % (o + k, RE + 16 * tl + 8 * part + 2 * k, RE + 16 * tl + 8 * part + 2 * k + 1))
                hq.append(lambda o=o, so=(sHD, T0, T1, T2)[2 * tl + part]:
                          e.I('buffer_store_dwordx4 %s, v%d, %s, s%d offen sc1' % (vr(o, 4), HS, srd(SWS), so), tag='hs'))
                if len(hq) <= cfg.hnow:
                    hq[-1]()
                    hsent.add(len(hq) - 1)

    hq = []
    hsent = set()
    kcur = [0]
    p2 = second_pass()
    for k, sub, toks, work in [(k, i, t, w) for k, sg in enumerate(segs) for i, (t, w) in enumerate(sg)]:
        if k == 0:
            continue
        if k <= cfg.JL and sub == 0:
            bar(k, ['eg'] if work[:1] == 'P' else [])
        kcur[0] = k
        q = expand(toks, k)
        if work[:3] == 'sel' or work[:1] == 'g':
            fill = []
            for wk in work.split('+'):
                if wk == 'sel':
                    fill += sel + ([] if 'late' in cfg.prog else late)
                else:
                    n = len(gate) if wk == 'g' else int(wk[1:])
                    fill += gate[:n]
                    del gate[:n]
            run(weave(q, fill) if not cfg.lfirst else q[:cfg.lfirst] + weave(q[cfg.lfirst:] or [lambda: None], fill))
        elif work == 'late':
            run(weave(q, late))
        elif work[:1] == 'P':
            assert EDIR or 'eg' not in e.vm
            wk = work.rstrip('H')
            n = cfg.p2cut if wk == 'P0' else len(p2) if wk in ('P', 'P1') else int(wk[1:])
            part = p2[:n]
            del p2[:n]
            run(part[:1] + (weave(q, part[1:]) if q else part[1:]))
            if work[-1] == 'H':
                st(e, 'p2done')
                store_h([])
        elif work[:1] == 'H':
            st(e, 'p2done')
            store_h(q)
            run(expand(work[2:], k))
        elif work == 'F':
            run(hq[n] for n in range(4) if n not in hsent)
            st(e, 'hst')
            jitter(e, cfg, 8)
            run(q)
            assert gdone and len(hq) == 4
            e.wait(vm=['hs', 'gs'])
            flag_store(e, 2, sHF)
            st(e, 'hflag')
            jitter(e, cfg, 9)
        else:
            run(q)
        issued_tok.update(toks.split(','))
    assert len(segs) > cfg.JL
    HV, PW = 6, 8
    rest = [i for i in range(8) if 'C%d' % i not in planned]
    run(c_loads(rest.pop(0)))
    e.I('s_mul_i32 s%d, s%d, %d\ns_mul_i32 s%d, s%d, %d\ns_add_u32 s%d, s%d, s%d\ns_add_u32 s%d, s%d, 0x%x' %
        (T0, sRT, 2 * HT_, T1, sW, HW_, T0, T0, T1, T0, T0, H_OFF))
    e.I('v_add_u32 v%d, s%d, v1\nv_add_u32 v%d, %d, v%d' % (HV, T0, HV + 1, HT_, HV))
    for u in range(4):
        e.I('s_xor_b32 s%d, s%d, %d\ns_lshl_b32 s%d, s%d, 12' % (93 + u, sROT, u, 93 + u, 93 + u))
    part_write_addr(e, PW, 12, 13, 16384, 4096, SPART)
    mk_srd(e, SOUT, P_OUT, 2048 * 2048)
    e.I('s_lshl_b32 s%d, s%d, 2\ns_add_u32 s%d, s%d, s%d\ns_mul_i32 s%d, s%d, %d\ns_add_u32 s%d, s%d, 0x%x' %
        (T0, sRT, T0, T0, sW, T0, T0, 8 * FS, T0, T0, HF_OFF))
    e.I('v_mul_u32_u24 v12, %d, v0\nv_mov_b32 v5, v2' % FS)

    def h_reg(k):
        return 16 + 4 * (k % 12)

    SC = 'S' in cfg.chain

    def h_idx(k):
        return (2 * (k >> 3) + (k & 1), (k >> 1) & 3) if SC else (k >> 2, k & 3)

    def h_load(k):
        n2, t4 = h_idx(k)
        e.I('buffer_load_dwordx4 %s, v%d, %s, s%d offen offset:%d sc1' % (vr(h_reg(k), 4), HV + (t4 >> 1), srd(SWS), 93 + (n2 >> 1),
                                                                            2048 * (n2 & 1) + 1024 * (t4 & 1)), tag=('h', k))

    def c_finish():
        for i in range(8):
            c_read(i)
        e.wait(vm='wd')
        cnt_add(e, FLA, ONE, C_DONEA)
        st(e, 'cgot')

    while rest and rest[0] < cfg.hlook:
        run(c_loads(rest.pop(0)))
    if cfg.hlook > 8:
        c_finish()
    poll(e, 'L_pollH', 13, 12, T0, '0xff',
         lambda: ([run(c_loads(i)) for i in rest], c_finish() if cfg.hearly == 0 and cfg.hlook <= 8 else None))
    st(e, 'hrdy')
    jitter(e, cfg, 10)
    XO, RA, GV, RF = 2, 3, 4, 14
    ROWS = (0, 8, 32, 40)
    XL, DL, GL, XD, PW1 = 128, 136, 138, 144, 10
    fin = items('s_lshl_b32 s%d, s%d, 6\ns_add_u32 s%d, s%d, s%d' % (T0, sRT, T0, T0, sW))
    fin += items('v_lshrrev_b32 v12, 4, v0\nv_lshrrev_b32 v13, 2, v0\nv_and_b32 v13, 2, v13\nv_xor_b32 v12, v12, v13')
    fin += items('v_and_b32 v15, 1, v12\nv_lshl_add_u32 v13, v15, 4, s%d\nv_lshrrev_b32 v3, 1, v12\nv_lshl_add_u32 v13, v3, 2, v13' % T0)
    fin += items('v_and_b32 v14, 15, v0\ns_lshl_b32 s%d, s%d, 7' % (T1, sCT))
    fin += items('v_lshl_add_u32 v1, v14, 3, s%d' % T1)
    fin += items('v_lshl_add_u32 v%d, v13, 10, v1' % XO)
    fin += items('v_lshlrev_b32 v%d, 2, v13\nv_add_u32 v%d, 0x%x, v%d' % (GV, GV, G_OFF, GV))
    fin += items('s_lshl_b32 s%d, s%d, 8\ns_add_u32 s%d, s%d, %d' % (T2, sW, T1, T2, SPART))
    fin += items('v_lshl_add_u32 v3, v3, 10, s%d\nv_lshl_add_u32 v3, v15, 14, v3' % T1)
    fin += items('v_lshl_or_b32 v13, v15, 2, s%d\nv_xor_b32 v13, v13, v14\nv_lshl_add_u32 v%d, v13, 4, v3' % (sW, RA))
    fin += items('v_lshl_add_u32 v12, v12, 6, s%d\nv_lshrrev_b32 v13, 2, v14\nv_lshl_add_u32 v12, v13, 10, v12' % T2)
    fin += items('v_and_b32 v13, 3, v0\nv_lshl_add_u32 v%d, v13, 4, v12\nv_add_u32 v%d, %d, v%d' % (RF, RF + 1, 2 * SLOT, RF))
    fin += items('s_lshl_b32 s%d, s%d, 7' % (T0, sDTX))
    for a in range(2):
        fin += items('v_xor_b32 v%d, s%d, v%d\nv_xor_b32 v%d, 0x80, v%d' % (PW + a, T0, PW + a, PW1 + a, PW + a))
    if cfg.posX < 0:
        run(fin)
    for k in range(cfg.NVA):
        if cfg.posX < 0 and k == -1 - cfg.posX:
            assert k >= cfg.hearly
            e.wait(lg='all')
            e.I('s_barrier')
        if k == cfg.hearly // 2 and k:
            c_read(6)
        if k == cfg.hearly and k:
            c_finish()
        h_load(k)
    e.wait(lg='all')
    if cfg.posX >= 0:
        run(fin)

    def fx_loads():
        e.I('global_load_dwordx2 %s, v1, s[%d:%d]' % (vr(DL, 2), P_DSK, P_DSK + 1), tag='fx')
        for n in range(4):
            e.I('s_mov_b32 s%d, %d' % (T2, 1024 * ROWS[n]))
            e.I('buffer_load_dwordx2 %s, v%d, %s, s%d offen' % (vr(XL + 2 * n, 2), XO, srd(SX), T2), tag='fx')

    def g_loads():
        for n in range(4):
            e.I('buffer_load_dword v%d, v%d, %s, 0 offen offset:%d sc1' % (GL + n, GV, srd(SWS), 4 * ROWS[n]), tag='fg')

    DU = 160
    xd = [lambda: e.wait(vm='fx')]
    xd += items('v_lshlrev_b32 v%d, 16, v%d\nv_and_b32 v%d, 0xffff0000, v%d\nv_lshlrev_b32 v%d, 16, v%d\nv_and_b32 v%d, 0xffff0000, v%d' %
                (DU, DL, DU + 1, DL, DU + 2, DL + 1, DU + 3, DL + 1))
    for n in range(4):
        for k in range(2):
            x = XL + 2 * n + k
            xd += items('v_lshlrev_b32 v12, 16, v%d\nv_and_b32 v13, 0xffff0000, v%d' % (x, x))
            xd += items('v_mul_f32 v12, v12, v%d\nv_mul_f32 v13, v13, v%d' % (DU + 2 * k, DU + 1 + 2 * k))
            xd += items('v_cvt_pk_bf16_f32 v13, v12, v13')
            xd += items('v_lshlrev_b32 v%d, 16, v13\nv_and_b32 v%d, 0xffff0000, v13' % (XD + 4 * n + 2 * k, XD + 4 * n + 2 * k + 1))
    xd += items('v_mov_b32 v12, %d\nv_mov_b32 v13, 1\nv_lshlrev_b32 v%d, 1, v%d' % (L_P2, XO, XO))

    sbegun = set()

    def s2_step(k):
        n2, t4 = h_idx(k)
        if k == 2 * cfg.posX:
            e.I('s_barrier')
        e.wait(vm=('h', k | 1 if SC else k))
        for dq in range(4):
            kk = k
            if SC:
                assert cfg.NVA <= 10
                i = 4 * (k & 1) + dq
                kk = (k & ~1) + ((i & 1) ^ ((i >> 1) & 1))
                d = i >> 1
                n2 = h_idx(kk)[0]
            else:
                d = dq
            if cfg.snake and t4 & 1:
                d = 3 - d
            mfma16(e, acc2(t4, d), c_reg(n2 >> 1, n2 & 1, d), h_reg(kk), acc2(t4, d) not in sbegun)
            sbegun.add(acc2(t4, d))
            if dq == (0 if cfg.NVA < 12 else 3) and k + cfg.NVA < 32:
                h_load(k + cfg.NVA)
        if k == 8:
            fx_loads()
        if k == max(8, 2 * cfg.posX):
            g_loads()
    steps = [lambda k=k: s2_step(k) for k in range(32)]
    if cfg.xdpos < 32:
        run(steps[:cfg.xdpos] + weave(steps[cfg.xdpos:], xd))
    else:
        run(steps + xd[-3:])
    st(e, 's2end')
    jitter(e, cfg, 11)
    if cfg.posX == 16:
        e.I('s_barrier')
        g_loads()
    st(e, '_X')
    run(part_write(e, PW, 16384, 0, PW1) + part_write(e, PW, 16384, 1, PW1))
    cnt_add(e, 12, 13, 0)
    if cfg.xdpos >= 32:
        run(xd[:-1])
    OM = 164
    e.wait(vm='fg')
    for n in range(4):
        e.I('v_sub_f32 v%d, 1.0, v%d' % (OM + n, GL + n))
        e.I('v_cvt_pk_bf16_f32 v%d, v%d, v%d\nv_lshlrev_b32 v%d, 16, v%d' % (OM + n, OM + n, OM + n, OM + n, OM + n))
    for n in range(4):
        e.I('s_mov_b32 s%d, %d' % (T2 + n, 2048 * ROWS[n]))
    e.I('s_lshl_b32 s%d, s%d, 5\ns_add_u32 s%d, s%d, s%d\ns_lshl_b32 s%d, s%d, 8\ns_add_u32 s%d, s%d, s%d' %
        (T0, sCT, T0, T0, sRT, T1, sW, T0, T0, T1))
    e.I('s_cmp_eq_u32 s%d, 31\ns_cselect_b32 s%d, 0x%x, s%d' % (T0, T0, EPOCH_OFF, SWS + 2))
    flag_store(e, 5, T0)
    cnt_spin(e, 'L_spinM', 12, 16, 0)
    e.wait(lg='all')
    for n in range(4):
        for w in range(4):
            e.I('ds_read_b128 %s, v%d offset:%d' % (vr(64 + 16 * n + 4 * w, 4), RA, w * 4096 + (n & 1) * 2048 + (n >> 1) * 32768), tag=('r', n))
    BS = XD
    for n in range(4):
        e.wait(lg=('r', n))
        b = 64 + 16 * n
        for k in range(4):
            e.I('v_add_f32 v%d, v%d, v%d\nv_add_f32 v%d, v%d, v%d' % (b + k, b + k, b + 4 + k, b + 8 + k, b + 8 + k, b + 12 + k))
        for k in range(4):
            e.I('v_add_f32 v%d, v%d, v%d' % (b + k, b + k, b + 8 + k))
        for k in range(4):
            e.I('v_add_f32 v%d, v%d, v%d' % (b + k, b + k, XD + 4 * n + k))
        for k in range(4):
            e.I('v_mul_f32 v%d, v%d, v%d' % (BS + 4 * n + k, GL + n, b + k))
    st(e, 'pre')
    jitter(e, cfg, 12)
    for grp in cfg.zg:
        e.I('s_barrier')
        st(e, 'Z' if 3 in grp else '_Z%d' % grp[0])
        for n in grp:
            for w in range(4):
                e.I('ds_read_b128 %s, v%d offset:%d' % (vr(64 + 16 * n + 4 * w, 4), RF + (n >> 1), w * 6144 + (n & 1) * SLOT), tag=('r', n, w >> 1))
        for n in grp:
            b = 64 + 16 * n
            for o, p in ((0, 4), (8, 12), (0, 8)):
                e.wait(lg=('r', n, o >> 3))
                if 3 in grp:
                    for k in (0, 2):
                        e.I('v_pk_add_f32 %s, %s, %s' % (vr(b + o + k, 2), vr(b + o + k, 2), vr(b + p + k, 2)))
                else:
                    for k in range(4):
                        e.I('v_add_f32 v%d, v%d, v%d' % (b + o + k, b + o + k, b + p + k))
            if cfg.mimic2:
                for rnd in range(2):
                    e.I('v_cvt_pk_bf16_f32 v%d, v%d, v%d\nv_cvt_pk_bf16_f32 v%d, v%d, v%d' % (b + 1, b, b + 1, b + 3, b + 2, b + 3))
                    for k in (0, 2):
                        e.I('v_lshlrev_b32 v%d, 16, v%d\nv_and_b32 v%d, 0xffff0000, v%d' % (b + k, b + k + 1, b + k + 1, b + k + 1))
                    if rnd == 0:
                        for k in range(4):
                            e.I('v_mul_f32 v%d, v%d, v%d' % (b + k, OM + n, b + k))
                for k in (0, 2):
                    e.I('v_pk_add_f32 %s, %s, %s' % (vr(b + k, 2), vr(b + k, 2), vr(BS + 4 * n + k, 2)))
            else:
                for k in range(4):
                    e.I('v_fma_f32 v%d, v%d, v%d, v%d' % (b + k, OM + n, b + k, BS + 4 * n + k))
            e.I('buffer_store_dwordx4 %s, v%d, %s, s%d offen %s' % (vr(b, 4), XO, srd(SOUT), T2 + n, cfg.outflags.replace('_', ' ') if isinstance(cfg.outflags, str) else cfg.outflags[n]), tag='out')
    if st.on:
        e.wait(vm='all')
    if cfg.skew:
        e.I('s_and_b32 s%d, s2, %d\ns_lshl_b32 s%d, s%d, 7\ns_add_u32 s%d, s%d, 0x%x' % (T4, cfg.skew[0], T4, T4, T4, T4, STAMP_OFF))
        e.I('buffer_load_dword v62, off, %s, s%d sc1' % (srd(SWS), T4))
        e.wait(vm='all')
        e.I('v_readfirstlane_b32 s12, v62')
        if cfg.skew[1] > 0:
            e.I('s_sub_u32 s12, s38, s12')
        else:
            e.I('s_sub_u32 s12, s12, s38')
        e.I('s_add_u32 s12, s12, 300\ns_add_u32 s10, s38, s12')
        st.names.append('skew')
    st(e, 'end')
    st.flush(e)


HEADER = open(os.path.join(os.path.dirname(os.path.abspath(__file__)), '..', 'cdna_kernels', BASE + '.s.ref')).read()


DOC = """;
;   S: B stages x and B_re/B_im through LDS (LDS-DMA) and keeps its x fragments in registers; A computes B.x.
;      local end states -> workgroup end state published in d_ws -> carry-in from ALL earlier row blocks ->
;      second pass; h is transposed with two selection MFMAs.  h, act (bf16, fragment order) and the gate go to d_ws.
; Hand-offs: write-through stores, counter wait, then a flag word; readers poll with L1-bypassing loads.
"""


def generate(cfg):
    SLEEP[:] = cfg.sleep
    FL.clear()
    FL.update(cfg.nt)
    W_SLOT[0] = 0 if cfg.w0pos is None else 4
    S_SHIFT[0] = -1 if cfg.lag else 0 if cfg.w0pos is None else 1
    assert cfg.w0pos is None
    hdr = []
    for line in HEADER.split('\n'):
        if not line.startswith(';'):
            break
        if '@launch' in line:
            line = '; @launch grid=(256,1,1) block=(512,1,1) lds=%d' % LDS_BYTES
            if cfg.pre_kernel is not None:
                line = '; @launch kernel=%s grid=(256,1,1) block=(512,1,1) lds=%d' % (NAME, LDS_BYTES)
                if cfg.pre_kernel:
                    line = '; @launch kernel=warm_kernel grid=(256,1,1) block=(256,1,1) lds=0\n' + line
        hdr.append(line)
    stB = Stamps(cfg, ([38, 84] if cfg.selB and '_prek' in cfg.selB else [38]) + [6, 8, 14, 16, 18, 20, 22, 30, 32, 34, 4, 10, 12, 24, 26], 'B')
    stA = Stamps(cfg, [38, 10, 12, 22, 34, 24, 26, 6, 8, 18, 28, 14, 16, 30, 36, 4], 'A')
    e = Em()
    gen_entry(e, cfg, stB)
    stA.names = list(stB.names)
    eA = Em()
    eA.hist = list(e.hist)
    eA.vm = list(e.vm)
    gen_B(e, cfg, stB)
    gen_A(eA, cfg, stA)
    txt = '\n'.join(hdr) + '\n' + DOC
    txt += '.amdgcn_target "amdgcn-amd-amdhsa--gfx950"\n.text\n.globl %s\n.p2align 8\n.type %s,@function\n%s:\n' % (NAME, NAME, NAME)
    txt += e.text() + '\n' + '\n'.join(e.cold) + '\n.p2align 6\nL_A:\n' + eA.text() + '\n    s_endpgm\n' + '\n'.join(eA.cold) + '\nL_end:\n    s_endpgm\n'
    if cfg.pre_kernel:
        w = Em()
        w.I('s_cmp_ge_u32 s2, 256\ns_cbranch_scc1 L_wend')
        if cfg.pre_kernel != 'empty':
            w.I('s_load_dwordx16 s[4:19], s[0:1], 0\ns_load_dwordx16 s[20:35], s[0:1], 64')
            w.I('s_lshl_b32 s3, s2, 8\nv_add_u32 v0, s3, v0\nv_lshlrev_b32 v1, 7, v0')
            w.wait_smem()
            base = 0
            for p, n in ((P_X, 2048 * 1024), (P_BRE, 524288), (P_BIM, 524288), (P_WG, 1409024), (P_WU, 1409024), (P_CRE, 524288), (P_CIM, 524288), (P_WD, 1409024)):
                mk_srd(w, 40, p, n)
                w.I('v_subrev_u32 v2, %d, v1\nv_cmp_gt_u32 vcc, %d, v2\ns_and_saveexec_b64 s[44:45], vcc\ns_cbranch_execz L_w%d' % (base, n, p))
                w.I('buffer_load_dword v3, v2, s[40:43], 0 offen')
                w.label('L_w%d' % p)
                w.I('s_mov_b64 exec, s[44:45]')
                base += n
            if cfg.pre_kernel == 'wait':
                w.I('s_waitcnt vmcnt(0)')
        txt += '.globl warm_kernel\n.p2align 8\n.type warm_kernel,@function\nwarm_kernel:\n' + w.text() + '\nL_wend:\n    s_endpgm\n'
    txt += '''.section .rodata,"a"
.p2align 6
.amdhsa_kernel %s
  .amdhsa_next_free_vgpr 256
  .amdhsa_next_free_sgpr 102
  .amdhsa_accum_offset 256
  .amdhsa_group_segment_fixed_size 0
  .amdhsa_kernarg_size 136
  .amdhsa_user_sgpr_count 2
  .amdhsa_user_sgpr_kernarg_segment_ptr 1
  .amdhsa_system_sgpr_workgroup_id_x 1
  .amdhsa_float_denorm_mode_32 3
.end_amdhsa_kernel
''' % NAME
    if cfg.pre_kernel:
        txt += '''.p2align 6
.amdhsa_kernel warm_kernel
  .amdhsa_next_free_vgpr 8
  .amdhsa_next_free_sgpr 48
  .amdhsa_accum_offset 8
  .amdhsa_group_segment_fixed_size 0
  .amdhsa_kernarg_size 136
  .amdhsa_user_sgpr_count 2
  .amdhsa_user_sgpr_kernarg_segment_ptr 1
  .amdhsa_system_sgpr_workgroup_id_x 1
.end_amdhsa_kernel
'''
    info = dict(A=eA.count, B=e.count, nopsA=eA.nops, nopsB=e.nops, stampsA=stA.names, stampsB=stB.names)
    return txt, info


def cfg_from(args):
    cfg = Cfg()
    for a in args:
        k, v = a.split('=')
        setattr(cfg, k, eval(v))
    return cfg


if __name__ == '__main__':
    out = sys.argv[1]
    cfg = cfg_from(sys.argv[2:])
    txt, info = generate(cfg)
    open(out, 'w').write(txt)
    print(info)
```

```python
import sys, os
sys.path.insert(0, os.path.dirname(os.path.abspath(__file__)))
from em import Em, weave

BASE = 'gated_mix__ssm_conv_s5__swiglu_ffn__prompt'
NAME = BASE + '_kernel'

ACT_OFF = 0
H_OFF = 0x600000
E_OFF = 0xB00000
G_OFF = 0xB20000
HF_OFF = 0xB22000
AF_OFF = 0xB24000
EPOCH_OFF = 0xB48000
STAMP_OFF = 0xB50000
WS_SIZE = 0xB80000
OOB = 0x2000000
FS = 8
assert FS == 8
PHI = 0x9E3779B8

SLOT = 24576
WIN = 49152
SCR = 147456
SPART = 98304
L_E, L_FL, L_EG = SCR, SCR + 4096, SCR + 8192
L_P2 = 3 * SLOT + 4096
LDS_BYTES = 163840

P_X, P_LRE, P_LIM, P_BRE, P_BIM, P_CRE, P_CIM, P_LDT = 4, 6, 8, 10, 12, 14, 16, 18
P_DSK, P_BX, P_WG, P_WU, P_WD, P_GW, P_OUT, P_DBG, P_WS = 20, 22, 24, 26, 28, 30, 32, 34, 36
SX, SWS = 40, 44
SBM, SW, SWD = 48, 52, 56
SC1, SC2, SOUT, SCODE = 48, 52, 56, 60
SWA = 60
sWAVE, sW, sRB, sCB, sK0, sRT, sCT, sNONCE, sSG0 = 64, 65, 66, 67, 68, 69, 70, 71, 72
T0, T1, T2, T3, T4, T5, T6 = 73, 74, 75, 76, 77, 78, 79
sNL2E = 80
sMA, sMB = 82, 84
sTBL = 86
sCNT = 97
sTS, sTW, sTD = 98, 99, 100
sMX, sMBm = 60, 61
sMW = 101
SPIN_MAX = 200000

SLEEP = [0, 0]
FL = {}


def ntf(key, stage):
    return 'nt ' if stage < FL.get(key, 0) else ''


LOG2E = 0x3fb8aa3b
NLOG2E = 0xbfb8aa3b


class Cfg:
    mimic = False
    mimic2 = False
    stamps = False
    rot1 = (2, 4, 2, 1)
    rot2 = 7
    rotF = 0
    rxD = None
    rxC = None
    rotS = None
    map2 = 84
    prewarm = 'v'
    pwn = 4
    esleep = 4
    slim = True
    blate = True
    lfirst = 0
    glds = True
    xloc = False
    defer = True
    apre = True
    NT = 2
    early = 200
    w0pos = None
    s1a = 2
    smallpos = 2
    pre_kernel = None
    lag = 0
    lagr = 4
    JL = 7
    prog = 'W2,G0|;W3,C0|sel;W4|g53;E0,W5,D0,D1,D2,D3|g;W6|P0;W7|P1H;|;C1,C2|F'
    p2cut = 72
    cbuf = (4, 1, 4, 0, 1, 4, 0, 1)
    tplan = ()
    zfill = True
    prioB = 0
    LA = 4
    posX = 6
    pren = 4
    asplit = True
    prioT = 1
    prioS = 0
    prioD = (0, 0)
    prioF2n = -1
    drain = ()
    hpad = (1280, 768)
    hlook = 8
    hearly = 0
    hnow = 4
    sleep = (1, 1)
    skew = None
    skip = ''
    flagpos = 3
    ftouch = True
    clag = 2
    NA = 5
    SD = 3
    vend = 28
    ahead = 2
    aheadW = (2, 0)
    ybar = False
    ypos = 10
    gmerge = True
    alook = 18
    abet = 3
    posXB = -17
    fine = True
    snake = True
    chain = 'FSD'
    nt = {}
    pksc = True
    jitter = 0
    prioF2 = 0
    NVA = 10
    RB = 12
    NV0 = (12, 0)
    xdpos = 32
    NV = 12
    TL = 4
    pull0 = 3
    zg = ((0, 1), (2, 3))
    zlag = 3
    outflags = 'sc1_nt'
    selA = None
    selB = None
    prioA = 0
    amp = None


def srd(r):
    return 's[%d:%d]' % (r, r + 3)


def vr(a, n):
    return 'v[%d:%d]' % (a, a + n - 1) if n > 1 else 'v%d' % a


def mk_srd(e, r, p, nbytes):
    e.I('s_mov_b32 s%d, s%d\ns_mov_b32 s%d, s%d\ns_mov_b32 s%d, 0x%x\ns_mov_b32 s%d, 0x20000' %
        (r, p, r + 1, p + 1, r + 2, nbytes, r + 3))


def mk_srd_sel(e, r, p1, p0, nbytes):
    e.I('s_cselect_b32 s%d, s%d, s%d\ns_cselect_b32 s%d, s%d, s%d\ns_mov_b32 s%d, 0x%x\ns_mov_b32 s%d, 0x20000' %
        (r, p1, p0, r + 1, p1 + 1, p0 + 1, r + 2, nbytes, r + 3))


def mfma(e, d, a, b, first):
    e.I('v_mfma_f32_32x32x16_bf16 %s, %s, %s, %s' % (vr(d, 16), vr(a, 4), vr(b, 4), '0' if first else vr(d, 16)))


def mfma16(e, d, a, b, first):
    e.I('v_mfma_f32_16x16x32_bf16 %s, %s, %s, %s' % (vr(d, 4), vr(a, 4), vr(b, 4), '0' if first else vr(d, 4)))


class Stamps:
    def __init__(self, cfg, regs, role):
        self.amp = cfg.amp if cfg.amp else None
        self.role = role
        self.sel = (cfg.selA if role == 'A' else cfg.selB)
        if self.sel is not None:
            self.sel = self.sel.split(',')
        self.ins = 's_memtime' if cfg.stamps == 'cyc' else 's_memrealtime'
        self.on = cfg.stamps or bool(self.amp)
        self.regs = regs
        self.names = []

    def __call__(self, e, name):
        if not self.on:
            return
        if self.sel is not None:
            if name != 'start' and name not in self.sel:
                return
        elif name.startswith('_'):
            return
        r = self.regs[len(self.names)]
        self.names.append(name)
        if self.amp and name not in ('start', 'end', self.amp[1], self.amp[2]):
            return
        e.I('%s s[%d:%d]' % (self.ins, r, r + 1))

    def flush(self, e):
        if not self.on:
            return
        e.wait_smem()
        if self.amp:
            if self.amp[0] == self.role:
                R = dict(zip(self.names, self.regs))
                e.I('s_sub_u32 s%d, s%d, s%d' % (T0, R[self.amp[2]], R[self.amp[1]]))
                if self.amp[3] < 0:
                    e.I('s_min_u32 s%d, s%d, %d\ns_sub_u32 s%d, %d, s%d' % (T0, T0, self.amp[4], T0, self.amp[4], T0))
                e.I('s_mul_i32 s%d, s%d, %d\ns_min_u32 s%d, s%d, 50000' % (T0, T0, abs(self.amp[3]), T0, T0))
                if len(self.amp) > 5:
                    e.I('s_and_b32 s%d, s2, %d\ns_cmp_eq_u32 s%d, %d\ns_cselect_b32 s%d, s%d, 0' % (T1, self.amp[5], T1, self.amp[6], T0, T0))
                e.label('L_amp')
                e.I('s_memrealtime s[%d:%d]' % (T1, T1 + 1))
                e.wait_smem()
                e.I('s_sub_u32 s%d, s%d, s%d\ns_cmp_lt_u32 s%d, s%d\ns_cbranch_scc1 L_amp' % (T1, T1, R['end'], T1, T0))
            return
        e.I('s_lshl_b32 s%d, s2, 3\ns_add_u32 s%d, s%d, s%d\ns_lshl_b32 s%d, s%d, 6\ns_add_u32 s%d, s%d, 0x%x' %
            (T0, T0, T0, sWAVE, T0, T0, T0, T0, STAMP_OFF))
        e.I('s_mov_b64 exec, 1')
        for k in range(len(self.names)):
            e.I('v_mov_b32 v2, s%d' % self.regs[k])
            e.I('buffer_store_dword v2, off, %s, s%d offset:%d' % (srd(SWS), T0, 4 * k))


def jitter(e, cfg, key):
    if not cfg.jitter:
        return
    lab = 'L_jit%d' % key
    e.settle()
    e.I('s_lshl_b32 s%d, s2, 3\ns_add_u32 s%d, s%d, s%d' % (sCNT, sCNT, sCNT, sWAVE))
    e.I('s_mul_i32 s%d, s%d, 0x%x\ns_lshr_b32 s%d, s%d, 28' % (sCNT, sCNT, (0x9E3779B1 * (2 * key * cfg.jitter + 1)) & 0xffffffff, sCNT, sCNT))
    e.I('s_cmp_lt_u32 s%d, 12\ns_cbranch_scc1 %s_out' % (sCNT, lab))
    e.label(lab)
    e.I('s_sleep 40\ns_add_u32 s%d, s%d, 1\ns_cmp_lt_u32 s%d, 17\ns_cbranch_scc1 %s' % (sCNT, sCNT, sCNT, lab))
    e.label(lab + '_out')


def run(items):
    for it in items:
        it()


def poll(e, label, vt, vaddr, soff, mask, between=None):
    def look(tag=None):
        e.I('s_mov_b64 exec, %s' % mask)
        e.I('buffer_load_dword v%d, v%d, %s, s%d offen sc1' % (vt, vaddr, srd(SWS), soff), tag=tag)
        e.I('s_mov_b64 exec, -1')

    def check():
        e.I('v_cmp_ne_u32 vcc, s%d, v%d' % (sNONCE, vt))
        e.I('s_and_b64 vcc, vcc, %s' % mask)
    spin(e, label, look, check, between)


def spin(e, label, look, check, between):
    look('look')
    if between:
        between()
    e.wait(vm='look')
    check()
    e.I('s_cbranch_scc1 %s' % label)
    e.label(label + '_out')
    with e.cold_block():
        e.label(label)
        e.I('s_mov_b32 s%d, 0' % sCNT)
        e.label(label + '_l')
        if SLEEP[0]:
            e.I('s_sleep %d' % SLEEP[0])
        look()
        e.I('s_add_u32 s%d, s%d, 1' % (sCNT, sCNT))
        e.I('s_cmp_gt_u32 s%d, %d' % (sCNT, SPIN_MAX))
        e.wait(vm='all')
        e.I('s_cbranch_scc1 %s_out' % label)
        check()
        e.I('s_cbranch_scc1 %s_l' % label)
        e.I('s_branch %s_out' % label)


def code_touch(e, tag):
    e.I('s_getpc_b64 s[%d:%d]' % (sMA, sMA + 1))
    e.label('L_pc' + tag)
    e.I('s_sub_u32 s%d, s%d, L_pc%s-%s\ns_subb_u32 s%d, s%d, 0' % (sMA, sMA, tag, NAME, sMA + 1, sMA + 1))
    e.I('s_and_b32 s%d, s2, 0xf8\ns_add_u32 s%d, s%d, s%d\ns_lshl_b32 s%d, s%d, 6' % (T0, T0, T0, sWAVE, T0, T0))
    e.I('s_load_dword s3, s[%d:%d], s%d' % (sMA, sMA + 1, T0))
    e.I('s_add_u32 s%d, s%d, 16384\ns_min_u32 s%d, s%d, L_end-%s' % (T0, T0, T0, T0, NAME))
    e.I('s_load_dword s3, s[%d:%d], s%d' % (sMA, sMA + 1, T0))


def rot2_calc(e, cfg, dst, b, x=None):
    if x:
        e.I('s_lshr_b32 s%d, s%d, 3\ns_mul_i32 s%d, s%d, %d' % (dst, sRT, dst, dst, x[1]))
        for k in range(x[0]):
            e.I('s_add_u32 s%d, s%d, s%d' % (dst, dst, sRT))
        e.I('s_and_b32 s%d, s%d, 7' % (dst, dst))
        return
    e.I('s_mul_i32 s%d, s%d, %d' % (dst, sCT, b))
    for k in range(1 if cfg.map2 == 84 else 2):
        e.I('s_add_u32 s%d, s%d, s%d' % (dst, dst, sRT))
    e.I('s_and_b32 s%d, s%d, %d' % (dst, dst, cfg.rot2))


def step_start(e, cfg, cur, beg, end, shift):
    rot2_calc(e, cfg, cur, cfg.rotF, cfg.rxD)
    e.I('s_cmp_eq_u32 s%d, 3\ns_cselect_b32 s%d, 10, 11' % (sW, end))
    e.I('s_mul_i32 s%d, s%d, s%d\ns_lshr_b32 s%d, s%d, 3\ns_mul_i32 s%d, s%d, 11' % (cur, cur, end, cur, cur, beg, sW))
    e.I('s_add_u32 s%d, s%d, s%d\ns_add_u32 s%d, s%d, s%d' % (cur, cur, beg, end, end, beg))
    for r in (cur, beg, end):
        e.I('s_lshl_b32 s%d, s%d, %d' % (r, r, shift))


def step_next(e, cur, beg, end, inc, wrap=True, last=False):
    e.I('s_add_u32 s%d, s%d, %d' % (cur, cur, inc))
    if wrap:
        e.I('s_cmp_eq_u32 s%d, s%d\ns_cselect_b32 s%d, s%d, s%d' % (cur, end, cur, beg, cur))
    if last:
        e.I('s_cmp_eq_u32 s%d, 3\ns_cselect_b32 s%d, 0x%x, s%d' % (sW, cur, OOB, cur))


def wd_next(e, n, cur, beg, end):
    step_next(e, cur, beg, end, 16384, n % 2 == 0, n == 20)


def set_m0(e, base, off):
    if getattr(e, 'm0', None) != (base, off):
        e.I('s_add_u32 m0, s%d, %d' % (base, off))
        e.m0 = (base, off)


def wd_lane_offsets(e, WDV, t0, t1):
    txt = 'v_lshrrev_b32 v%d, 4, v0\nv_lshlrev_b32 v%d, 1, v%d\nv_and_b32 v%d, 7, v0\nv_xor_b32 v%d, v%d, v%d\nv_lshlrev_b32 v%d, 4, v%d\n' % (
        t0, t0, t0, t1, t0, t0, t1, t0, t0)
    txt += 'v_lshrrev_b32 v%d, 3, v0\nv_lshl_add_u32 v%d, v%d, 10, v%d\n' % (t1, t0, t1, t0)
    txt += 's_lshl_b32 s%d, s%d, 7\n' % (T0, sCT)
    txt += 'v_add_u32 v%d, s%d, v%d\nv_add_u32 v%d, 7168, v%d' % (WDV, T0, t0, WDV + 1, WDV)
    return txt


RING = [(5, n) for n in range(3)] + [(4, 2)] + [(2 + n // 3, n % 3) for n in range(6)] + [(4, n) for n in range(2)] \
    + [(n // 3, n % 3) for n in range(6)] + [(2, n) for n in range(3)] + [(3, 0)]
PREV = {18: 4, 19: 5, 20: 6, 21: 7}


class Touch:
    def __init__(self, e, cfg, role):
        self.e, self.role = e, role
        self.plan = [p for p in cfg.tplan if p[0] == role]
        it = []
        for par in range(2):
            for p in (P_CRE, P_CIM):
                it += [(p, 128 * k + 64 * par) for k in range(4)]
        for par in range(2):
            it += [(P_WD, 128 * k + 64 * par) for k in range(11)]
        self.items = it

    def setup(self):
        if not self.plan:
            return
        e = self.e
        used = {self.items[k][0] for p in self.plan for k in range(p[2], p[3])}
        e.I('s_lshl_b32 s%d, s2, 2\ns_add_u32 s%d, s%d, s%d' % (T0, T0, T0, sW))
        for p in sorted(used):
            e.I('s_mul_i32 s%d, s%d, %d' % (T1, T0, 1376 if p == P_WD else 512))
            e.I('s_add_u32 s%d, s%d, s%d\ns_addc_u32 s%d, s%d, 0' % (p, p, T1, p + 1, p + 1))

    def at(self, place):
        for p in self.plan:
            if p[1] == place:
                for k in range(p[2], p[3]):
                    self.e.I('s_load_dword s3, s[%d:%d], %d' % (self.items[k][0], self.items[k][0] + 1, self.items[k][1]))


def flag_store(e, vt, soff, imm=0):
    e.I('s_mov_b64 exec, 1')
    e.I('buffer_store_dword v%d, off, %s, s%d offset:%d sc1' % (vt, srd(SWS), soff, imm), tag='flag')
    e.I('s_mov_b64 exec, -1')


def frag_addr(e, dst, t0, t1):
    e.I('v_lshrrev_b32 v%d, 5, v0' % t0)
    e.I('v_bfe_u32 v%d, v0, 1, 3' % t1)
    e.I('v_xor_b32 v%d, v%d, v%d' % (t0, t0, t1))
    e.I('v_and_b32 v%d, 31, v0' % t1)
    e.I('v_lshlrev_b32 v%d, 7, v%d' % (t1, t1))
    e.I('v_lshl_add_u32 v%d, v%d, 4, v%d' % (dst, t0, t1))
    for s in range(1, 4):
        e.I('v_xor_b32 v%d, %d, v%d' % (dst + s, 32 * s, dst))


def frag16_addr(e, dst, t0, t1):
    e.I('v_lshrrev_b32 v%d, 4, v0' % t0)
    e.I('v_bfe_u32 v%d, v0, 1, 3' % t1)
    e.I('v_xor_b32 v%d, v%d, v%d' % (t0, t0, t1))
    e.I('v_and_b32 v%d, 15, v0' % t1)
    e.I('v_lshlrev_b32 v%d, 7, v%d' % (t1, t1))
    e.I('v_lshl_add_u32 v%d, v%d, 4, v%d' % (dst, t0, t1))
    e.I('v_xor_b32 v%d, 64, v%d' % (dst + 1, dst))


def w_tr_addr(e, d, t0, t1):
    e.I('v_lshrrev_b32 v%d, 4, v0' % t0)
    e.I('v_bfe_u32 v%d, v0, 2, 2' % t1)
    e.I('v_lshl_add_u32 v%d, v%d, 3, v%d' % (t0, t0, t1))
    e.I('v_mul_u32_u24 v%d, 192, v%d' % (t0, t0))
    e.I('v_bfe_u32 v%d, v0, 4, 1' % t1)
    e.I('v_lshl_add_u32 v%d, v%d, 5, v%d' % (t0, t1, t0))
    e.I('v_and_b32 v%d, 3, v0' % t1)
    e.I('v_lshl_add_u32 v%d, v%d, 3, v%d' % (d, t1, t0))
    e.I('v_xor_b32 v%d, 32, v%d' % (d + 1, d))
    e.I('v_add_u32 v%d, %d, v%d\nv_add_u32 v%d, %d, v%d' % (d + 2, WIN, d, d + 3, WIN, d + 1))


W_SLOT = [0, 1, 2, 3, 0, 1, 2, 3]
S_SHIFT = [0]


def s_slot(i):
    return (i + 4) % 6 if S_SHIFT[0] < 0 else (i + S_SHIFT[0]) % 4


def w_frag_read(e, dst, wa, j, s2, g, mat, fh, mm, tag):
    slot = W_SLOT[j]
    off = (slot & 1) * SLOT + mat * 12288 + (32 * s2 + 4 * mm) * 192 + g * 64
    e.I('ds_read_b64_tr_b16 %s, v%d offset:%d' % (vr(dst + 2 * mm, 2), wa + 2 * (slot >> 1) + fh, off), tag=tag)


def act_items(e, cfg, G, U, tmp, out):
    items = []
    add = lambda t: items.append(lambda t=t: e.I(t))
    for b in range(2):
        g, u, o = G + 8 * b, U + 8 * b, out + 4 * b
        if cfg.mimic:
            for src in (g, u):
                for p in range(4):
                    add('v_cvt_pk_bf16_f32 v%d, v%d, v%d' % (tmp + p, src + 2 * p, src + 2 * p + 1))
                for p in range(4):
                    add('v_lshlrev_b32 v%d, 16, v%d' % (src + 2 * p, tmp + p))
                    add('v_and_b32 v%d, 0xffff0000, v%d' % (src + 2 * p + 1, tmp + p))
        for p in range(4):
            add('v_pk_mul_f32 %s, %s, s[%d:%d]' % (vr(tmp + 2 * p, 2), vr(g + 2 * p, 2), sNL2E, sNL2E + 1))
        for p in range(8):
            add('v_exp_f32 v%d, v%d' % (tmp + p, tmp + p))
        for p in range(4):
            add('v_pk_add_f32 %s, %s, 1.0 op_sel_hi:[1,0]' % (vr(tmp + 2 * p, 2), vr(tmp + 2 * p, 2)))
        for p in range(8):
            add('v_rcp_f32 v%d, v%d' % (tmp + p, tmp + p))
        for p in range(4):
            add('v_pk_mul_f32 %s, %s, %s' % (vr(g + 2 * p, 2), vr(g + 2 * p, 2), vr(tmp + 2 * p, 2)))
        if cfg.mimic:
            for p in range(4):
                add('v_cvt_pk_bf16_f32 v%d, v%d, v%d' % (tmp + p, g + 2 * p, g + 2 * p + 1))
            for p in range(4):
                add('v_lshlrev_b32 v%d, 16, v%d' % (g + 2 * p, tmp + p))
                add('v_and_b32 v%d, 0xffff0000, v%d' % (g + 2 * p + 1, tmp + p))
        for p in range(4):
            add('v_pk_mul_f32 %s, %s, %s' % (vr(u + 2 * p, 2), vr(g + 2 * p, 2), vr(u + 2 * p, 2)))
        for p in range(4):
            add('v_cvt_pk_bf16_f32 v%d, v%d, v%d' % (o + p, u + 2 * p, u + 2 * p + 1))
    return items


def act_items_scalar(e, cfg, G, U, tmp, out):
    if cfg.mimic:
        return act_items(e, cfg, G, U, tmp, out)
    items = []
    add = lambda t: items.append(lambda t=t: e.I(t))
    for b in range(4):
        g, u, o = G + 4 * b, U + 4 * b, out + 2 * b
        for p in range(4):
            add('v_mul_f32 v%d, s%d, v%d' % (tmp + p, sNL2E, g + p))
        for p in range(4):
            add('v_exp_f32 v%d, v%d' % (tmp + p, tmp + p))
            add('v_mul_f32 v%d, v%d, v%d' % (u + p, g + p, u + p))
        for p in range(4):
            add('v_add_f32 v%d, 1.0, v%d' % (tmp + p, tmp + p))
        for p in range(4):
            add('v_rcp_f32 v%d, v%d' % (tmp + p, tmp + p))
        for p in range(4):
            add('v_mul_f32 v%d, v%d, v%d' % (u + p, tmp + p, u + p))
        for p in range(2):
            add('v_cvt_pk_bf16_f32 v%d, v%d, v%d' % (o + p, u + 2 * p, u + 2 * p + 1))
    return items


def light_scc(e):
    e.I('s_and_b32 s%d, s%d, 3\ns_cmp_eq_u32 s%d, 3\ns_cselect_b32 s%d, 14, s%d\ns_cmp_eq_u32 s%d, 14' % (T0, sCB, T0, T0, sCB, T0))


def w_lane_offsets(e, cfg, WV, t0, t1):
    if cfg.zfill:
        light_scc(e)
        e.I('s_cselect_b32 s%d, 8, 12' % sTW)
    e.I('s_and_b32 s%d, s%d, 1' % (T1, sW))
    e.I('s_mul_i32 s%d, s%d, %d\ns_lshl_b32 s%d, s%d, 6\ns_add_u32 s%d, s%d, s%d' % (T0, T1, 32 * 2752, T1, sSG0, T0, T0, T1))
    for q in range(3):
        e.I('v_add_u32 v%d, %d, v0\nv_mul_u32_u24 v%d, 171, v%d\nv_lshrrev_b32 v%d, 11, v%d' % (t1, 64 * q, t0, t1, t0, t0))
        if cfg.zfill:
            e.I('v_mul_u32_u24 v%d, 12, v%d\nv_sub_u32 v%d, v%d, v%d\nv_cmp_gt_u32 vcc, s%d, v%d' % (WV + q, t0, t1, t1, WV + q, sTW, t1))
        e.I('v_lshrrev_b32 v%d, 3, v%d\nv_lshlrev_b32 v%d, 1, v%d\nv_xor_b32 v%d, v0, v%d' % (t1, t0, t1, t1, t1, t1))
        e.I('v_mul_u32_u24 v%d, %d, v%d' % (t0, 2752 - 192, t0))
        e.I('v_lshl_add_u32 v%d, v%d, 4, v%d' % (t0, t1, t0))
        e.I('v_add_u32 v%d, s%d, v%d' % (WV + q, T0, t0))
        if cfg.zfill:
            e.I('v_mov_b32 v%d, 0x%x\nv_cndmask_b32 v%d, v%d, v%d, vcc' % (t0, OOB, WV + q, t0, WV + q))
    e.I('s_mul_i32 s%d, s%d, 6144' % (sMW, sW))


def dma_W(e, WV, SWR, j):
    slot = W_SLOT[j] * SLOT
    its = []
    for grp in range(2):
        for q in range(3):
            def f(grp=grp, q=q):
                set_m0(e, sMW, slot + grp * 3072)
                if q == 0 and grp == 0:
                    e.I('s_add_u32 s%d, s%d, %d\ns_and_b32 s%d, s%d, 7\ns_mul_i32 s%d, s%d, %d' %
                        (sTW, sK0, j, sTW, sTW, sTW, sTW, 64 * 2752))
                if q == 0 and grp == 1:
                    e.I('s_add_u32 s%d, s%d, %d' % (sTW, sTW, 16 * 2752))
                e.I('buffer_load_dwordx4 v%d, %s, s%d offen offset:%d %slds' % ((WV + q, srd(SWR), sTW, 1024 * q) + (ntf('w', j),)), tag=('st', 8 + j))
            its.append(f)
    return its


C_LAND, C_CONS, C_Q, C_DONEA = 0, 32, 64, 68


def cnt_add(e, va, vone, off):
    e.I('s_mov_b64 exec, 1')
    e.I('ds_add_u32 v%d, v%d offset:%d' % (va, vone, off), tag='sig')
    e.I('s_mov_b64 exec, -1')


def cnt_look(e, va, vt, off, tag):
    e.I('ds_read_b32 v%d, v%d offset:%d' % (vt, va, off), tag=tag)


def cnt_check(e, label, va, vt, off, tag):
    e.wait(lg=tag)
    e.I('v_cmp_ne_u32 vcc, 4, v%d' % vt)
    e.I('s_cbranch_vccnz %s' % label)
    e.label(label + '_out')
    with e.cold_block():
        e.label(label)
        e.I('s_mov_b32 s%d, 0' % sCNT)
        e.label(label + '_l')
        if SLEEP[1]:
            e.I('s_sleep %d' % SLEEP[1])
        cnt_look(e, va, vt, off, None)
        e.I('s_add_u32 s%d, s%d, 1' % (sCNT, sCNT))
        e.I('s_cmp_gt_u32 s%d, %d' % (sCNT, 20 * SPIN_MAX))
        e.wait(lg='all')
        e.I('s_cbranch_scc1 %s_out' % label)
        e.I('v_cmp_ne_u32 vcc, 4, v%d' % vt)
        e.I('s_cbranch_vccnz %s_l' % label)
        e.I('s_branch %s_out' % label)


def cnt_spin(e, label, va, vt, off):
    cnt_look(e, va, vt, off, 'look')
    cnt_check(e, label, va, vt, off, 'look')


def act_offsets(e, k, s_data, s_flag, valid_scc=False):
    e.I('s_lshl_b32 s%d, s%d, 2\ns_add_u32 s%d, s%d, s%d' % (T0, sRB, T0, T0, sW))
    e.I('s_mul_i32 s%d, s%d, 43\ns_add_u32 s%d, s%d, s%d\ns_add_u32 s%d, s%d, %d\ns_lshl_b32 s%d, s%d, 11' %
        (T1, T0, T1, T1, sSG0, T1, T1, k, s_data, T1))
    e.I('s_lshr_b32 s%d, s%d, 1\ns_lshl4_add_u32 s%d, s%d, s%d\ns_and_b32 s%d, s%d, 1\ns_lshl1_add_u32 s%d, s%d, s%d' %
        (T1, T0, T1, T1, sCB, T0, T0, T1, T1, T0))
    e.I('s_mul_i32 s%d, s%d, %d\ns_add_u32 s%d, s%d, 0x%x' % (T1, T1, FS, s_flag, T1, AF_OFF))


def part_write_addr(e, dst, t0, t1, piece_stride, wave_stride, base):
    e.I('v_lshrrev_b32 v%d, 4, v0' % t0)
    e.I('v_and_b32 v%d, 7, v0' % t1)
    e.I('v_xor_b32 v%d, v%d, v%d' % (t0, t0, t1))
    e.I('v_lshlrev_b32 v%d, 4, v%d' % (dst, t0))
    e.I('v_bfe_u32 v%d, v0, 3, 1' % t0)
    e.I('v_and_b32 v%d, 3, v0' % t1)
    e.I('v_lshl_add_u32 v%d, v%d, 2, v%d' % (t0, t0, t1))
    e.I('v_lshl_add_u32 v%d, v%d, 8, v%d' % (dst, t0, dst))
    e.I('v_bfe_u32 v%d, v0, 2, 1' % t0)
    e.I('v_mul_u32_u24 v%d, %d, v%d' % (t0, piece_stride, t0))
    e.I('s_mul_i32 s%d, s%d, %d\ns_add_u32 s%d, s%d, %d' % (T0, sW, wave_stride, T0, T0, base))
    e.I('v_add3_u32 v%d, v%d, v%d, s%d' % (dst, dst, t0, T0))
    e.I('v_xor_b32 v%d, 64, v%d' % (dst + 1, dst))


def acc2(t4, dq):
    return 64 + 16 * t4 + 4 * dq


def part_write(e, addr, piece_stride, tt, addr1=None):
    its = []
    for a in range(2):
        for dq in range(4):
            ad_, off = (addr + (dq & 1), (dq >> 1) * 128) if addr1 is None or dq < 2 else (addr1 + (dq & 1), 0)
            its.append(lambda ad_=ad_, off=off, dq=dq, a=a:
                       e.I('ds_write_b128 v%d, %s offset:%d' % (ad_, vr(acc2(2 * tt + a, dq), 4), tt * 2 * piece_stride + a * 2048 + off), tag=('pw', tt)))
    return its


def tile_ids(e, cfg, redo):
    if redo:
        e.I('s_and_b32 s%d, s2, 7\ns_lshr_b32 s%d, s2, 3' % (T0, T1))
        e.I('s_and_b32 s%d, s%d, 7\ns_lshr_b32 s%d, s%d, 3\ns_lshr_b32 s%d, s%d, 1' % (T2, T1, T3, T1, T4, T0))
    e.I('s_mul_i32 s%d, s%d, 11\ns_mul_i32 s%d, s%d, 3\ns_add_u32 s%d, s%d, s%d' % (sSG0, T4, T5, T3, sSG0, sSG0, T5))
    e.I('s_cmp_eq_u32 s%d, 15\ns_subb_u32 s%d, s%d, 0' % (sCB, sSG0, sSG0))
    if cfg.map2 == 84:
        if cfg.xloc:
            e.I('s_and_b32 s%d, s%d, 8\ns_add_u32 s%d, s%d, s%d\ns_and_b32 s%d, s%d, 2\ns_lshl_b32 s%d, s%d, 2\ns_add_u32 s%d, s%d, s%d' %
                (sRT, sRB, sRT, sRT, sRB, T5, T0, T5, T5, sRT, sRT, T5))
            e.I('s_and_b32 s%d, s%d, 4\ns_add_u32 s%d, s%d, s%d' % (sCT, T0, sCT, sCT, T3))
        else:
            e.I('s_lshl_b32 s%d, s%d, 3\ns_add_u32 s%d, s%d, s%d' % (sRT, T4, sRT, sRT, T2))
            e.I('s_and_b32 s%d, s%d, 1\ns_lshl_b32 s%d, s%d, 2\ns_add_u32 s%d, s%d, s%d' % (sCT, T0, sCT, sCT, sCT, sCT, T3))
    else:
        e.I('s_lshl_b32 s%d, s%d, 2\ns_and_b32 s%d, s%d, 3\ns_add_u32 s%d, s%d, s%d\ns_lshr_b32 s%d, s%d, 2' %
            (sRT, T0, T5, T1, sRT, sRT, T5, sCT, T1))


KARG2 = 's_load_dwordx16 s[20:35], s[0:1], 64\ns_load_dwordx2 s[36:37], s[0:1], 128'


def gen_entry(e, cfg, st):
    e.I('s_load_dwordx16 s[4:19], s[0:1], 0')
    e.I('s_cmp_ge_u32 s2, 256\ns_cbranch_scc1 L_end')
    e.I(KARG2)
    st(e, 'start')
    if 'v' in cfg.prewarm:
        n = cfg.pwn
        e.I('s_getpc_b64 s[%d:%d]' % (SCODE, SCODE + 1))
        e.label('L_pc')
        e.I('s_mov_b32 s%d, L_end-L_pc\ns_mov_b32 s%d, 0x20000' % (SCODE + 2, SCODE + 3))
        e.I('s_lshl_b32 s%d, s2, %d\ns_and_b32 s%d, s%d, 0x%x' % (T0, 7 + n.bit_length() - 1, T0, T0, 0x7fff & ~(1024 * n - 1)))
        e.I('v_lshlrev_b32 v1, %d, v0' % (1 + n.bit_length() - 1))
        m = sum(1 << (k * 64 // n) for k in range(n))
        e.I('s_mov_b32 exec_lo, 0x%x\ns_mov_b32 exec_hi, 0x%x' % (m & 0xffffffff, m >> 32))
        e.I('buffer_load_dword v63, v1, %s, s%d offen' % (srd(SCODE), T0), tag='pw')
        e.I('s_mov_b64 exec, -1')
    e.I('v_lshrrev_b32 v1, 6, v0\nv_and_b32 v0, 63, v0')
    e.I('v_readfirstlane_b32 s%d, v1' % sWAVE)
    if cfg.slim and cfg.rot1 == (2, 4, 2, 1):
        e.I('s_and_b32 s%d, s2, 7\ns_bfe_u32 s%d, s2, 0x30003\ns_lshr_b32 s%d, s2, 6' % (T0, T2, T3))
        e.I('s_lshl1_add_u32 s%d, s%d, s%d\ns_lshl2_add_u32 s%d, s%d, s%d\ns_and_b32 s%d, s%d, 7' % (sK0, T2, T0, sK0, T3, sK0, sK0, sK0))
        e.I('s_and_b32 s%d, s2, 1\ns_lshl3_add_u32 s%d, s%d, s%d' % (sRB, sRB, sRB, T2))
        e.I('s_lshr_b32 s%d, s%d, 1\ns_lshl2_add_u32 s%d, s%d, s%d' % (T4, T0, sCB, T4, T3))
        assert cfg.map2 == 84
    else:
        e.I('s_and_b32 s%d, s2, 7\ns_lshr_b32 s%d, s2, 3' % (T0, T1))
        e.I('s_and_b32 s%d, s%d, 7\ns_lshr_b32 s%d, s%d, 3' % (T2, T1, T3, T1))
        e.I('s_and_b32 s%d, s%d, 1\ns_lshl_b32 s%d, s%d, 3\ns_add_u32 s%d, s%d, s%d' % (sRB, T0, sRB, sRB, sRB, sRB, T2))
        e.I('s_lshr_b32 s%d, s%d, 1' % (T4, T0))
        e.I('s_lshl_b32 s%d, s%d, 2\ns_add_u32 s%d, s%d, s%d' % (sCB, T4, sCB, sCB, T3))
        e.I('s_mul_i32 s%d, s%d, %d' % (sK0, T2, cfg.rot1[0]))
        for src, mul in zip((T3, T4, None), cfg.rot1[1:]):
            if mul:
                if src is None:
                    e.I('s_and_b32 s%d, s%d, 1' % (T5, T0))
                e.I('s_mul_i32 s%d, s%d, %d\ns_add_u32 s%d, s%d, s%d' % (T5, T5 if src is None else src, mul, sK0, sK0, T5))
        e.I('s_and_b32 s%d, s%d, 7' % (sK0, sK0))
    if not cfg.slim:
        tile_ids(e, cfg, False)
    e.I('s_and_b32 s%d, s%d, 3' % (sW, sWAVE))
    e.I('s_cmp_lt_u32 s%d, 4\ns_cbranch_scc1 L_A' % sWAVE)


def gen_B(e, cfg, st):
    NPRE = cfg.prog.count('D')
    WA = 2
    EP = 42
    XV, BV, WV, XA = 32, 36, 38, 44
    sOD = 62
    if cfg.prioS:
        e.I('s_setprio %d' % cfg.prioS)
    e.I('v_lshrrev_b32 v8, 3, v0')
    e.I('v_and_b32 v9, 7, v0')
    e.I('v_lshrrev_b32 v10, 4, v0')
    e.I('v_xor_b32 v10, v9, v10\nv_lshlrev_b32 v10, 4, v10')
    e.I('v_lshrrev_b32 v11, 5, v0\nv_and_b32 v12, 3, v8\nv_lshl_add_u32 v11, v11, 4, v12')
    e.I('s_lshl2_add_u32 s%d, s%d, s%d\ns_lshl_b32 s%d, s%d, 15' % (T0, sRB, sW, T0, T0))
    e.I('v_lshl_add_u32 v11, v11, 10, s%d' % T0)
    e.I('s_lshl_b32 s%d, s%d, 6\ns_and_b32 s%d, s%d, 64' % (sOD, sW, sOD, sOD))
    e.I('v_xad_u32 v%d, v10, s%d, v11' % (XV, sOD))
    e.I('v_xor_b32 v13, 64, v%d' % XV)
    e.I('v_add_u32 v%d, 3072, v13\nv_add_u32 v%d, 6144, v%d\nv_add_u32 v%d, 9216, v13' % (XV + 1, XV + 2, XV, XV + 3))
    def b_setup():
        e.I('s_and_b32 s%d, s%d, 1\ns_lshl1_add_u32 s%d, s%d, s%d\ns_lshl_b32 s%d, s%d, 14' % (T1, sW, T0, sCB, T1, T0, T0))
        e.I('v_lshrrev_b32 v11, 5, v0\nv_lshl_add_u32 v11, v11, 3, v12')
        e.I('v_lshl_add_u32 v11, v11, 10, s%d' % T0)
        e.I('v_add_u32 v%d, v11, v10' % BV)
        e.I('v_xor_b32 v13, 64, v%d\nv_add_u32 v%d, 3072, v13' % (BV, BV + 1))
        e.I('s_lshl_b32 s%d, s%d, 11\ns_add_u32 s%d, s%d, 16384' % (sMBm, sW, sMBm, sMBm))
        e.I('s_mov_b32 s%d, 0x%x\ns_mov_b32 s%d, 0x20000' % (SBM + 2, 512 * 1024, SBM + 3))
    if not cfg.blate:
        b_setup()
    e.I('s_lshl_b32 s%d, s%d, 12' % (sMX, sW))
    e.I('s_lshl_b32 s%d, s%d, 7' % (T6, sK0))
    e.I('s_mov_b32 s%d, 0x%x\ns_mov_b32 s%d, 0x20000' % (SX + 2, 2048 * 1024, SX + 3))
    set_m0(e, sMX, s_slot(0) * SLOT)
    e.I('s_mov_b32 s%d, s%d' % (sTS, T6))
    st(e, '_prek')
    e.wait_smem()
    st(e, 'karg')
    jitter(e, cfg, 1)
    e.I('s_mov_b64 s[%d:%d], s[%d:%d]' % (SX, SX + 1, P_X, P_X + 1))

    def dma_S(i):
        slot = s_slot(i) * SLOT
        its = []
        for q in range(4):
            def f(q=q):
                if q == 0 and i:
                    set_m0(e, sMX, slot)
                    e.I('s_add_u32 s%d, s%d, %d\ns_and_b32 s%d, s%d, 1023' % (sTS, T6, i * 128, sTS, sTS))
                e.I('buffer_load_dwordx4 v%d, %s, s%d offen offset:%d %slds' % ((XV + q, srd(SX), sTS, 1024 * q) + (ntf('x', i),)), tag=('st', i))
            its.append(f)
        for q in range(2):
            def f(q=q):
                if q == 0 and i == 0 and cfg.blate:
                    b_setup()
                if q == 0:
                    set_m0(e, sMBm, slot)
                if q == 0 and i == 0:
                    e.I('s_cmp_ge_u32 s%d, 2\ns_cselect_b64 s[%d:%d], s[%d:%d], s[%d:%d]' % (sW, SBM, SBM + 1, P_BIM, P_BIM + 1, P_BRE, P_BRE + 1))
                e.I('buffer_load_dwordx4 v%d, %s, s%d offen offset:%d %slds' % ((BV + q, srd(SBM), sTS, 1024 * q) + (ntf('b', i),)), tag=('st', i))
            its.append(f)
        return its

    run(dma_S(0))
    st(e, 'dma0')
    s1 = dma_S(1)
    run(s1[:cfg.s1a])
    if 's' in cfg.prewarm:
        code_touch(e, 'B')
    frag16_addr(e, XA, 11, 12)
    for s in range(2):
        e.I('v_xor_b32 v%d, s%d, v%d\nv_add_u32 v%d, s%d, v%d' % (XA + s, sOD, XA + s, XA + s, sMX, XA + s))
        e.I('v_add_u32 v%d, %d, v%d' % (XA + 2 + s, WIN, XA + s))
        if cfg.ahead:
            e.I('v_add_u32 v%d, %d, v%d' % (XA + 4 + s, 2 * WIN, XA + s))
    e.I('v_lshlrev_b32 v11, 2, v0\nv_add_u32 v11, %d, v11\nv_mov_b32 v12, 0' % L_FL)
    e.I('ds_write_b32 v11, v12', tag='init')

    def setup_a():
        if cfg.slim:
            tile_ids(e, cfg, True)
        mk_srd(e, SWS, P_WS, WS_SIZE)
        mk_srd(e, SWD, P_WD, 1376 * 1024)
        e.I('s_cmp_ge_u32 s%d, 2' % sW)
        mk_srd_sel(e, SW, P_WU, P_WG, 512 * 2752)
        w_tr_addr(e, WA, 13, 14)
        e.I('v_lshlrev_b32 v1, 4, v0')

    def setup_b():
        w_lane_offsets(e, cfg, WV, 13, 14)
    if not cfg.defer:
        setup_a()
        setup_b()

    sDC, sDB, sDE, sAC, sAB, sAE = 86, 87, 88, 89, 90, 91
    sD0, sF0, sD2, sF2 = T2, T3, T4, T5
    st(e, '_pro')
    run(s1[cfg.s1a:])
    st(e, '_dma1')
    ldq = [f for i in range(2, 8) for f in dma_S(i)] + dma_W(e, WV, SW, 0) + dma_W(e, WV, SW, 1)
    lpos = [0]

    def upto(n):
        run(ldq[lpos[0]:n])
        lpos[0] = max(lpos[0], n)
    upto(cfg.ahead)
    e.wait(vm=('st', 0))
    st(e, '_sa0')
    e.I('s_barrier')
    st(e, 'b0')
    for i in range(8):
        if i == 1:
            e.I('s_mov_b32 s%d, 0x%x' % (T0, EPOCH_OFF))
            e.I('buffer_load_dword v%d, off, %s, s%d sc1' % (EP, srd(SWS), T0), tag='ep')
        upto(6 * (i + 1) + (cfg.ahead if i < 5 else cfg.aheadW[i - 5] if i < 7 and cfg.ahead else 0))
        for s in range(4):
            slot = s_slot(i)
            e.I('ds_read_b128 %s, v%d offset:%d' % (vr(128 + 4 * (4 * i + s), 4), XA + 2 * (slot >> 1) + (s >> 1), (slot & 1) * SLOT + (s & 1) * 2048), tag='x')
        if cfg.defer and i == 0:
            setup_a()
        if cfg.defer and i == 1:
            setup_b()
        if i == 4:
            e.wait(vm='ep')
            e.I('v_readfirstlane_b32 s%d, v%d' % (sNONCE, EP))
            e.I('s_add_u32 s%d, s%d, 0x%x\ns_or_b32 s%d, s%d, 1' % (sNONCE, sNONCE, PHI, sNONCE, sNONCE))
            e.I('s_mov_b32 s%d, 0x%x\ns_mov_b32 s%d, 0x%x' % (sNL2E, NLOG2E, sNL2E + 1, NLOG2E))
        if i == 2:
            step_start(e, cfg, sAC, sAB, sAE, 11)
        if i == 3:
            for k in range(3):
                e.I('s_lshl_b32 s%d, s%d, 4' % (sDC + k, sAC + k))
            for n in range(1, NPRE):
                wd_next(e, n, sDC, sDB, sDE)
        if i == 5:
            act_offsets(e, 0, sD0, sF0)
        if i == 6:
            e.I('s_add_u32 s%d, s%d, 4096' % (sD2, sD0))
            light_scc(e)
            e.I('s_cselect_b32 s%d, 0x%x, s%d' % (sD2, OOB, sD2))
            e.I('v_mov_b32 v7, %d\nv_mov_b32 v6, 1' % L_FL)
        if i < 7:
            e.wait(vm=('st', i + 1), lg='all')
            st(e, '_sa%d' % (i + 1))
            e.I('s_barrier')
            st(e, '_sd%d' % (i + 1))
            if i == 0:
                st(e, 'b1')
    NT = cfg.NT
    ops = []
    CH = 'F' in cfg.chain
    sm = [(s, mf) for mf in range(4) for s in range(2)] if CH else [(s, mf) for s in range(2) for mf in range(4)]
    for j in range(8 - NT):
        if CH:
            ops += [(j, s, g, mf) for g in range(3) for s, mf in sm]
        else:
            ops += [(j, s, g, mf) for s in range(2) for g in range(3) for mf in range(4)]
    tail0 = len(ops)
    for g in range(3):
        for j in range(8 - NT, 8):
            ops += [(j, s, g, mf) for s, mf in sm]
    NB, LA = 6, cfg.LA
    first = {j: min(q for q in range(len(ops)) if ops[q][0] == j) for j in range(8)}
    last = {j: max(q for q in range(len(ops)) if ops[q][0] == j) for j in range(8)}

    def rd(q, half):
        if q >= len(ops):
            return
        j, s, g, mf = ops[q]
        if q == first[j] and j <= cfg.JL and half == 0:
            e.wait(vm=('st', 8 + j), lg='all' if j in cfg.drain else 'x')
            st(e, '_a%d' % j)
            e.I('s_barrier')
            st(e, '_d%d' % j)
            if j in (0, 4, cfg.JL):
                st(e, 'b%d' % (8 + j))
            if j == 0 and cfg.prioB != cfg.prioS:
                e.I('s_setprio %d' % cfg.prioB)
        w_frag_read(e, 8 + 4 * (q % NB), WA, j, s, g, mf >> 1, mf & 1, half, ('wf', q))
        if q == last[7] and half == 1:
            cnt_add(e, 7, 6, C_CONS + 28)

    started = set()

    def mm(q, a):
        j, s, g, mf = ops[q]
        if a == 0 and q % 2 == 0:
            e.wait(lg=('wf', q + 1))
        t = a ^ (q & 1) if cfg.snake else a
        qq = q
        if CH:
            assert LA == 4
            i = 2 * (q & 1) + a
            qq = (q & ~1) + (1 if i in (1, 2) else 0)
            t = (i >> 1) ^ ((q >> 1) & 1)
            s = ops[qq][1]
        acc = 32 + 32 * g + 16 * (mf >> 1) + 8 * t + 4 * (mf & 1)
        mfma16(e, acc, 8 + 4 * (qq % NB), 128 + 16 * j + 8 * s + 4 * t, acc not in started)
        started.add(acc)
        rd(q + LA, a)

    def act_store(k, ms=(0, 1)):
        for m in ms:
            e.I('buffer_store_dwordx4 %s, v1, %s, s%d offen offset:%d sc1' %
                (vr(136 + 8 * k + 4 * m, 4), srd(SWS), sD2 if k == 2 else sD0, 1024 * m + (2048 if k == 1 else 0)), tag=('as', k))

    def with_stores(its, k):
        if not cfg.asplit:
            return its + [lambda: act_store(k)]
        h = len(its) // 2
        return its[:h] + [lambda: act_store(k, (0,))] + its[h:] + [lambda: act_store(k, (1,))]

    def act_flag():
        e.wait(vm=[('as', k) for k in range(3)])
        flag_store(e, EP, sF0)

    for q in range(LA):
        rd(q, 0)
        rd(q, 1)
    per = 8 * NT
    for q in range(tail0 + per):
        mm(q, 0)
        mm(q, 1)
    if cfg.prioT:
        e.I('s_setprio %d' % cfg.prioT)
    if NT:
        for g in (1, 2):
            main = [lambda q=q, a=a: mm(q, a) for q in range(tail0 + g * per, tail0 + (g + 1) * per) for a in range(2)]
            fill = with_stores(act_items_scalar(e, cfg, 32 * g, 32 * g + 16, 128, 136 + 8 * (g - 1)), g - 1)
            run(main[:3] + weave(main[3:], fill))
        st(e, 'f1end')
        run(with_stores(act_items(e, cfg, 96, 112, 128, 152), 2))
    else:
        st(e, 'f1end')
        for g in range(3):
            run(with_stores(act_items(e, cfg, 32 + 32 * g, 48 + 32 * g, 128, 136 + 8 * g), g))
    if cfg.prioD[0] != (cfg.prioT or cfg.prioB):
        e.I('s_setprio %d' % cfg.prioD[0])
    st(e, 'actst')
    jitter(e, cfg, 2)
    DA, AV, PW, WDV, EP = 2, 14, 16, 18, 23
    e.I('v_mov_b32 v%d, s%d' % (EP, sNONCE))
    e.I(wd_lane_offsets(e, WDV, 20, 21))
    e.I('v_mov_b32 v22, %d' % L_FL)
    cnt_spin(e, 'L_spinB', 22, 24, C_CONS + 28)
    st(e, 'ldsfree')

    def dma_D(n):
        sl, pos = RING[n]
        if n in PREV:
            e.wait(lg=('wr', PREV[n]))
        set_m0(e, sMW, sl * SLOT + pos * 2048)
        if n:
            wd_next(e, n, sDC, sDB, sDE)
        for q in range(2):
            e.I('buffer_load_dwordx4 v%d, %s, s%d offen offset:%d %slds' % ((WDV + q, srd(SWD), sDC, 1024 * q) + (ntf('d', n),)), tag=('wd', n))

    def wd_reg(n2):
        return 128 + 16 * n2 if n2 < 5 else 32 + 16 * (n2 - 5) if n2 < 7 else 128 + 16 * (n2 - 7)

    def wd_read(n, dqs=range(4)):
        sl, pos = RING[n]
        e.wait(vm=('wd', n))
        for dq in dqs:
            e.I('ds_read_b64_tr_b16 %s, v%d offset:%d' % (vr(wd_reg(n >> 1) + 4 * dq + 2 * (n & 1), 2), DA + 4 * (sl >> 1) + dq,
                                                         (sl & 1) * SLOT + pos * 2048), tag=('wr', n))

    def setup2():
        e.I('v_lshrrev_b32 v20, 2, v0\nv_lshlrev_b32 v20, 7, v20\nv_bfe_u32 v21, v0, 3, 2\nv_lshl_add_u32 v20, v21, 5, v20')
        e.I('v_and_b32 v21, 3, v0\nv_lshl_add_u32 v20, v21, 3, v20\nv_add_u32 v%d, s%d, v20' % (DA, sMW))
        for dq in range(1, 4):
            e.I('v_xor_b32 v%d, %d, v%d' % (DA + dq, 32 * dq, DA))
        for k in (1, 2):
            for dq in range(4):
                e.I('v_add_u32 v%d, %d, v%d' % (DA + 4 * k + dq, k * WIN, DA + dq))
        e.I('s_mul_i32 s%d, s%d, %d' % (T0, sRT, 2 * 88064))
        e.I('v_add_u32 v%d, s%d, v1\nv_add_u32 v%d, 88064, v%d' % (AV, T0, AV + 1, AV))
        e.I('s_lshl2_add_u32 s%d, s%d, s%d\ns_mul_i32 s%d, s%d, %d\ns_add_u32 s%d, s%d, 0x%x' % (T0, sRT, sW, T0, T0, 8 * FS, T0, T0, AF_OFF))
        e.I('v_mul_u32_u24 v20, %d, v0' % FS)

    for n in range(NPRE, 11):
        if min(cfg.flagpos + NPRE, 10) == n:
            setup2()
        if cfg.flagpos + NPRE == n:
            act_flag()
            st(e, 'flagged')
        if cfg.ybar and n == cfg.ypos:
            e.I('s_barrier')
        if n < 10:
            dma_D(n)
    st(e, '_d9')
    if not cfg.ybar:
        cnt_spin(e, 'L_spinB2', 22, 24, C_DONEA)
    if cfg.prioD[1] != cfg.prioD[0]:
        e.I('s_setprio %d' % cfg.prioD[1])
    st(e, '_da')
    jitter(e, cfg, 3)
    pulled = [0]

    def d_step(n):
        if cfg.flagpos + NPRE == n and n > 10:
            assert n < min(cfg.alook, -cfg.posXB)
            act_flag()
            st(e, 'flagged')
        if n < 10 + cfg.NA:
            wd_next(e, n, sDC, sDB, sDE)
        else:
            dma_D(n)
        while pulled[0] < min(14, 3 * (n - 9), n - 3):
            wd_read(pulled[0])
            pulled[0] += 1
        if n == 14:
            e.wait(lg=('wr', 9))
            set_m0(e, sMW, L_P2)
            e.I('s_mov_b64 exec, 1')
            e.I('buffer_load_dword off, %s, s%d lds' % (srd(SWD), SWD + 2), tag='init')
            e.I('s_mov_b64 exec, -1')
        if n == -cfg.posXB:
            bar_X()

    def bar_X():
        assert pulled[0] >= 12
        e.wait(vm='init', lg=('wr', 11))
        st(e, '_aX')
        e.I('s_barrier')

    for n in range(10, cfg.alook):
        d_step(n)
    st(e, 'wdiss')
    nd = cfg.alook + cfg.abet
    poll(e, 'L_pollA', 21, 20, T0, '0xff', lambda: [d_step(n) for n in range(cfg.alook, nd)])
    st(e, 'actrdy')
    jitter(e, cfg, 4)
    if cfg.prioF2n < 0:
        e.I('s_setprio %d' % cfg.prioF2)
    elif cfg.prioD[1]:
        e.I('s_setprio 0')

    TL = cfg.TL
    sSV = 92
    NM = 11 - TL

    def sets(lo, hi):
        st_ = 2 if 'D' in cfg.chain else 1
        return [tuple(range(n, min(n + st_, hi))) for n in range(lo, hi, st_)]
    groups = [[(n2, t4) for n2 in ss] for ss in sets(0, NM) for t4 in range(4)] + [[(n2, t4) for n2 in ss] for t4 in range(4) for ss in sets(NM, 11)]
    order = [f for g in groups for f in g]

    def a_reg(n2, t4):
        i = order.index((n2, t4)) % cfg.RB
        return 208 + 4 * i if i < 12 else 24 + 4 * (i - 12)

    pend = []
    rq = []

    def flush(n=99):
        for t in pend[:n]:
            e.I(t)
        del pend[:n]

    def a_load(n2, t4):
        if t4 == 0:
            flush()
        so = sAC if n2 == 0 else sSV + n2 % 5
        e.I('buffer_load_dwordx4 %s, v%d, %s, s%d offen offset:%d sc1' % (vr(a_reg(n2, t4), 4), AV + (t4 >> 1), srd(SWS), so, 1024 * (t4 & 1)),
            tag=('a', n2, t4))
        if n2 < 10 and t4 == 0:
            dst = sSV + (n2 + 1) % 5
            pend.append('s_add_u32 s%d, s%d, 2048' % (dst, so))
            pend.append('s_cmp_eq_u32 s%d, s%d\ns_cselect_b32 s%d, s%d, s%d' % (dst, sAE, dst, sAB, dst))
            if n2 == 9:
                pend.append('s_cmp_eq_u32 s%d, 3\ns_cselect_b32 s%d, 0x%x, s%d' % (sW, dst, OOB, dst))

    lq = []
    for k, t in enumerate(order):
        lq.append(('a', k))
        if k & 1 and nd < 22:
            lq.append(('d', nd))
            nd += 1
    dn = [cfg.alook + cfg.abet - 1]
    nis = [0]

    def issue(k, busy, most=99):
        while lq:
            t = lq[0]
            tag = ('a',) + order[k]
            nv = min(cfg.NV, cfg.NV0[0] + max(0, k - cfg.NV0[1]))
            if nis[0] > k and (len(e.vm) - 1 - e.vm.index(tag) >= nv - 1 if tag in e.vm else len(e.vm) >= nv):
                return
            if t[0] == 'a':
                if t[1] >= busy + cfg.RB:
                    return
                if most == 0:
                    return
                most -= 1
                a_load(*order[t[1]])
                nis[0] = t[1] + 1
            else:
                d_step(t[1])
                dn[0] = t[1]
            lq.pop(0)

    wq = []
    zq = [list(g) for g in cfg.zg]
    since = [0]

    def w_pop():
        t = wq.pop(0)
        if t is not None:
            t4, i = t
            assert not rq
            hi = 32768 if t4 == 3 else 0
            set_m0(e, sMW, hi)
            e.I('ds_write_addtid_b32 v%d offset:%d' % (acc2(t4, 0) + i, t4 * SLOT - hi + 256 * i), tag=('pw', t4))
            if i == 15 and t4 == zq[0][-1]:
                since[0] = cfg.zlag + 1
        if since[0]:
            since[0] -= 1
            if since[0] == 0:
                z_bar()

    def z_bar():
        e.wait(lg=('pw', zq.pop(0)[-1]))
        e.I('s_barrier')

    begun = set()

    def mm2(grp):
        k = order.index(grp[0])
        kn = k + len(grp)
        t4 = grp[0][1]
        if k == 0:
            issue(kn - 1, k)
        while rq and rq[0][0] >> 1 <= (max(f[0] for f in order[kn:kn + 2]) if kn + 1 < 4 * NM + TL else 99):
            t = rq.pop(0)
            wd_read(t[0], [t[1]])
        e.wait(vm=[('a',) + f for f in grp], lg=[('wr', 2 * f[0] + 1) for f in grp])
        slots = [(f, dq) for dq in range(4) for f in (grp if dq % 2 == 0 else grp[::-1])]
        for i, ((n2, _), dq) in enumerate(slots):
            d = 3 - dq if cfg.snake and n2 < NM and t4 & 1 else dq
            mfma16(e, acc2(t4, d), a_reg(n2, t4), wd_reg(n2) + 4 * d, acc2(t4, d) not in begun)
            begun.add(acc2(t4, d))
            if i % 4 == 0 and lq:
                issue(min(kn + i // 4, 43), k, 1 if k else 99)
            elif pend and i < len(slots) - 1:
                flush(1)
            elif rq and i < len(slots) - 1:
                t = rq.pop(0)
                wd_read(t[0], [t[1]])
            elif wq:
                w_pop()
        if grp[-1][0] == 10:
            if t4 == 0:
                wq.extend([None, None])
            wq.extend((t4, i) for i in range(16))

    assert cfg.pull0 + 4 <= NM and TL <= 4
    nxt = 7
    for grp in groups:
        n2, t4 = grp[-1]
        if t4 == 0 and n2 < NM:
            st(e, '_n%d' % grp[0][0])
            if grp[0][0] == cfg.prioF2n:
                e.I('s_setprio %d' % cfg.prioF2)
            while pulled[0] <= min(2 * n2 + 5, 13):
                assert dn[0] >= pulled[0]
                wd_read(pulled[0])
                pulled[0] += 1
            if grp[0][0] == cfg.posXB:
                bar_X()
        mm2(grp)
        if t4 == 3 and n2 < NM:
            while nxt <= 10 and nxt - 7 + cfg.pull0 <= n2:
                assert dn[0] >= 2 * nxt + 1
                rq.extend((2 * nxt + hf, dq) for hf in range(2) for dq in range(4))
                nxt += 1
    assert nxt == 11 and not lq
    if cfg.prioF2:
        e.I('s_setprio 0')
    st(e, 'f2end')
    jitter(e, cfg, 5)
    while wq:
        w_pop()
    while zq:
        z_bar()
    st(e, 'end')
    st.flush(e)
    e.I('s_endpgm')


def gen_A(e, cfg, st):
    LR, LI, L16, L128, L256, L16S, KAP, WV = 48, 49, 50, 52, 54, 56, 58, 60
    PP, L512 = 32, 34
    assert not cfg.lag and 'e0' not in cfg.prog and cfg.glds
    SIDX = 3
    RE, IM = 64, 80
    XA, BA = 192, 204
    CV, CA, CA4, WDV = 96, 100, 104, 108
    EV0, EV1, EOOB, ERD, ECNT, EEXP, ONE, FLA, XW, XR, P16 = range(110, 121)
    SEL = 216
    RINGX, RINGB = 128, 224
    sHD, sHF, sES, sEL, sROT, sDTX = 86, 87, 90, 91, 92, 80
    sDC, sDB, sDE = 93, 94, 95
    if cfg.slim:
        tile_ids(e, cfg, False)
    e.I('v_lshlrev_b32 v1, 4, v0')
    e.I('v_and_b32 v21, 3, v0\nv_bfe_u32 v22, v0, 2, 1\nv_lshl_add_u32 v21, v22, 3, v21\nv_bfe_u32 v22, v0, 3, 1\nv_lshl_add_u32 v21, v22, 2, v21')
    sSH, sTH = 81, 96
    e.I('s_and_b32 s%d, s%d, 1\ns_lshr_b32 s%d, s%d, 1' % (sSH, sW, sTH, sW))
    e.I('s_lshl1_add_u32 s%d, s%d, s%d\ns_lshl_b32 s%d, s%d, 5' % (T0, sCB, sSH, T0, T0))
    e.I('v_lshl_add_u32 v21, v21, 1, s%d' % T0)
    e.I('s_lshl_b32 s%d, s%d, 2\ns_add_u32 s%d, s%d, s%d\ns_lshl_b32 s%d, s%d, 4\ns_add_u32 s%d, s%d, s%d' %
        (T3, sRB, T3, T3, sW, T3, T3, T3, T3, sCB))
    e.I('s_lshl_b32 s%d, s%d, 11' % (T2, T3))
    frag16_addr(e, BA, 4, 5)
    def karg_block():
        e.wait_smem()
        st(e, '_karg')
        mk_srd(e, SX, P_X, 2048 * 1024)
        mk_srd(e, SWS, P_WS, WS_SIZE)
        if cfg.skew:
            e.I('s_lshl_b32 s%d, s2, 7\ns_add_u32 s%d, s%d, 0x%x\nv_mov_b32 v20, s38' % (T4, T4, T4, STAMP_OFF))
            flag_store(e, 20, T4)
        e.I('s_mov_b32 s%d, 0x%x\ns_lshl_b32 s%d, s%d, 6' % (T4, EPOCH_OFF, T0, sCB))
        e.I('s_lshl_b32 s%d, s%d, 6\ns_add_u32 s%d, s%d, s%d' % (T1, sSH, T1, T1, T4))
        e.I('s_load_dword s3, s[%d:%d], s%d' % (P_WS, P_WS + 1, T1))
        for p in (P_LRE, P_LIM, P_LDT):
            e.I('s_load_dword s3, s[%d:%d], s%d' % (p, p + 1, T0))
        e.I('s_lshr_b32 s%d, s2, 3\ns_lshl_b32 s%d, s%d, 2\ns_add_u32 s%d, s%d, s%d\ns_and_b32 s%d, s%d, 15\ns_lshl_b32 s%d, s%d, 6' %
            (T0, T0, T0, T0, T0, sW, T0, T0, T0, T0))
        for p in (P_GW, P_DSK):
            e.I('s_load_dword s3, s[%d:%d], s%d' % (p, p + 1, T0))
        if cfg.ftouch:
            e.I('s_lshl1_add_u32 s%d, s2, s%d\ns_min_u32 s%d, s%d, 383\ns_lshl_b32 s%d, s%d, 6\ns_add_u32 s%d, s%d, 0x%x' %
                (T0, sSH, T0, T0, T0, T0, T0, T0, G_OFF))
            e.I('s_load_dword s3, s[%d:%d], s%d' % (P_WS, P_WS + 1, T0))
        if 's' in cfg.prewarm:
            code_touch(e, 'A')

    if not cfg.apre:
        karg_block()

    def small0():
        e.I('buffer_load_dword v19, off, %s, s%d sc1' % (srd(SWS), T4), tag='ep')
        e.I('global_load_ushort v16, v21, s[%d:%d]' % (P_LRE, P_LRE + 1), tag='par')
        e.I('global_load_ushort v17, v21, s[%d:%d]' % (P_LIM, P_LIM + 1), tag='par')
        e.I('global_load_ushort v18, v21, s[%d:%d]' % (P_LDT, P_LDT + 1), tag='par')

    small1 = [lambda: e.I('global_load_dwordx4 v[44:47], v1, s[%d:%d]' % (P_GW, P_GW + 1), tag='g'),
              lambda: e.I('buffer_load_dwordx4 v[36:39], v1, %s, s%d offen' % (srd(SX), T2), tag='g'),
              lambda: e.I('buffer_load_dwordx4 v[40:43], v1, %s, s%d offen offset:1024' % (srd(SX), T2), tag='g')]
    e.I('s_lshl_b32 s%d, s%d, 3\ns_add_u32 s%d, s%d, 0x%x' % (T6, T3, T6, T6, G_OFF))
    GA, GW0, GO = 121, 124, 126
    if cfg.glds:
        small1 = [lambda: e.I('global_load_dwordx4 v[44:47], v%d, s[%d:%d]' % (GW0, P_GW, P_GW + 1), tag='g'),
                  lambda: e.I('global_load_dwordx4 v[192:195], v%d, s[%d:%d]' % (GW0 + 1, P_GW, P_GW + 1), tag='g')]
        e.I('s_bfe_u32 s%d, s%d, 0x20001\ns_lshl_b32 s%d, s%d, 2\ns_lshr_b32 s%d, s%d, 3\ns_lshl_b32 s%d, s%d, 1\ns_add_u32 s%d, s%d, s%d' %
            (T0, sCB, T0, T0, T1, sCB, T1, T1, T0, T0, T1))
        e.I('s_and_b32 s%d, s%d, 1\ns_add_u32 s%d, s%d, s%d' % (T1, sCB, T0, T0, T1))
        e.I('s_and_b32 s%d, s%d, 7\ns_lshl_b32 s%d, s%d, 8\ns_lshl_b32 s%d, s%d, 12\ns_add_u32 s%d, s%d, s%d' % (T1, T0, T0, T0, T2, sW, T0, T0, T2))
        e.I('s_lshl_b32 s%d, s%d, 2\ns_xor_b32 s%d, s%d, s%d' % (T2, sSH, T1, T1, T2))
        e.I('v_and_b32 v4, 15, v0\nv_xor_b32 v4, s%d, v4\nv_lshl_add_u32 v%d, v4, 4, s%d' % (T1, GA, T0))
        e.I('v_add_u32 v%d, %d, v%d\nv_add_u32 v%d, %d, v%d' % (GA + 1, WIN, GA, GA + 2, 2 * WIN, GA))
        e.I('v_lshrrev_b32 v4, 4, v0\nv_add_u32 v4, s%d, v4\nv_and_b32 v4, 7, v4\nv_and_b32 v5, 7, v0\nv_lshlrev_b32 v5, 4, v5' % sK0)
        e.I('v_lshl_add_u32 v%d, v4, 7, v5\nv_xor_b32 v%d, 0x200, v%d' % (GW0, GW0 + 1, GW0))
        e.I('v_bfe_u32 v4, v0, 3, 1\nv_lshlrev_b32 v%d, 2, v4' % GO)

    e.I('v_bfe_u32 v4, v0, 3, 1\nv_and_b32 v5, 3, v0\nv_lshl_add_u32 v4, v4, 2, v5')
    e.I('v_lshrrev_b32 v5, 1, v4\nv_lshrrev_b32 v6, 4, v0\nv_xor_b32 v5, v5, v6\nv_and_b32 v6, 4, v0\nv_xor_b32 v5, v5, v6')
    e.I('s_lshl_b32 s%d, s%d, 13\ns_lshl_b32 s%d, s%d, 11' % (T0, sTH, T1, sSH))
    e.I('v_lshl_add_u32 v4, v4, 7, s%d\nv_lshl_add_u32 v4, v6, 10, v4\nv_lshl_add_u32 v%d, v5, 4, v4' % (T0, XA))
    e.I('v_xor_b32 v%d, 64, v%d' % (XA + 1, XA))
    for s in range(2):
        e.I('v_add_u32 v%d, s%d, v%d' % (BA + s, T1, BA + s))
        e.I('v_add_u32 v%d, %d, v%d\nv_add_u32 v%d, %d, v%d' % (XA + 2 + s, WIN, XA + s, BA + 2 + s, WIN, BA + s))
        if cfg.ahead:
            e.I('v_add_u32 v%d, %d, v%d\nv_add_u32 v%d, %d, v%d' % (XA + 4 + s, 2 * WIN, XA + s, BA + 4 + s, 2 * WIN, BA + s))
    w_lane_offsets(e, cfg, WV, 24, 25)
    e.I('v_lshrrev_b32 v24, 5, v0\nv_bfe_u32 v25, v0, 4, 1\nv_lshl_add_u32 v24, v25, 1, v24\ns_lshl_b32 s%d, s%d, 2' % (T0, sTH))
    e.I('v_add_u32 v%d, s%d, v24' % (SIDX, T0))
    if cfg.apre:
        karg_block()
    rot2_calc(e, cfg, sROT, 0, cfg.rxC)
    if cfg.rotS:
        e.I('s_and_b32 s%d, s%d, %d\ns_lshl_b32 s%d, s%d, %d\ns_xor_b32 s%d, s%d, s%d' % (T0, sCT, cfg.rotS[0], T0, T0, cfg.rotS[1], sROT, sROT, T0))
    e.I('s_and_b32 s%d, s%d, 1\ns_lshr_b32 s%d, s%d, 1' % (sDTX, sROT, sROT, sROT))
    e.I('s_bitcmp1_b32 s%d, 0' % sROT)
    mk_srd_sel(e, SC1, P_CIM, P_CRE, 512 * 1024)
    mk_srd_sel(e, SC2, P_CRE, P_CIM, 512 * 1024)
    mk_srd(e, SWD, P_WD, 1376 * 1024)
    step_start(e, cfg, sDC, sDB, sDE, 15)
    e.I('s_cmp_ge_u32 s%d, 2' % sW)
    mk_srd_sel(e, SWA, P_WU, P_WG, 512 * 2752)
    e.I('s_lshl_b32 s%d, s%d, 2\ns_add_u32 s%d, s%d, s%d' % (T0, sRB, T0, T0, sW))
    HW_ = 16384 + cfg.hpad[0]
    HT_ = 4 * HW_ + cfg.hpad[1]
    assert H_OFF + 64 * HT_ <= E_OFF
    e.I('s_mul_i32 s%d, s%d, %d\ns_lshr_b32 s%d, s%d, 1\ns_lshl_b32 s%d, s%d, 13\ns_add_u32 s%d, s%d, s%d' %
        (sHD, T0, HT_, T1, sCB, T1, T1, sHD, sHD, T1))
    e.I('s_mul_i32 s%d, s%d, %d\ns_sub_u32 s%d, s%d, s%d' % (T1, sSH, HT_ - 512, sHD, sHD, T1))
    e.I('s_lshr_b32 s%d, s%d, 2\ns_mul_i32 s%d, s%d, %d\ns_add_u32 s%d, s%d, s%d' % (T1, sCB, T1, T1, cfg.hpad[0], sHD, sHD, T1))
    e.I('s_and_b32 s%d, s%d, 1\ns_lshl_b32 s%d, s%d, 11\ns_add_u32 s%d, s%d, s%d\ns_add_u32 s%d, s%d, 0x%x' %
        (T1, sCB, T1, T1, sHD, sHD, T1, sHD, sHD, H_OFF))
    e.I('s_lshr_b32 s%d, s%d, 1\ns_lshl_b32 s%d, s%d, 4\ns_add_u32 s%d, s%d, s%d\ns_lshl_b32 s%d, s%d, 1' %
        (T1, T0, T1, T1, T1, T1, sCB, T1, T1))
    e.I('s_and_b32 s%d, s%d, 1\ns_add_u32 s%d, s%d, s%d\ns_mul_i32 s%d, s%d, %d\ns_add_u32 s%d, s%d, 0x%x' %
        (T0, T0, T1, T1, T0, T1, T1, FS, sHF, T1, HF_OFF))
    e.I('s_lshl_b32 s%d, s%d, 13\ns_add_u32 s%d, s%d, 0x%x' % (sEL, sCB, sEL, sEL, E_OFF))
    e.I('s_lshl_b32 s%d, s%d, 9\ns_add_u32 s%d, s%d, s%d\ns_cmp_eq_u32 s%d, 0\ns_cselect_b32 s%d, s%d, 0x%x' %
        (sES, sRB, sES, sES, sEL, sTH, sES, sES, OOB))
    e.I('s_sub_u32 s%d, s%d, 1024' % (sEL, sEL))

    tch = Touch(e, cfg, 'A')
    tch.setup()
    tch.at(-1)

    e.I('s_lshl_b32 s%d, s%d, 4' % (T0, sSH))
    e.I('v_and_b32 v6, 15, v0\nv_add_u32 v6, s%d, v6\nv_lshlrev_b32 v%d, 4, v6\nv_lshlrev_b32 v6, 3, v6\nv_add_u32 v%d, %d, v6' % (T0, P16, XR, L_E))
    e.I('v_lshl_add_u32 v%d, v%d, 8, v%d' % (XW, SIDX, XR))
    e.I('v_and_b32 v4, 3, v0\nv_bfe_u32 v5, v0, 3, 2\nv_lshl_add_u32 v4, v5, 2, v4')
    e.I('v_bfe_u32 v5, v0, 2, 1\nv_lshrrev_b32 v6, 5, v0\nv_xor_b32 v5, v5, v6\nv_lshl_add_u32 v4, v5, 4, v4')
    e.I('v_and_b32 v5, 1, v0\nv_lshlrev_b32 v5, 4, v5\nv_mov_b32 v6, 0x3f80\nv_lshlrev_b32 v5, v5, v6\nv_lshrrev_b32 v4, 1, v4')
    for n in range(8):
        e.I('v_cmp_eq_u32 vcc, %d, v4\nv_cndmask_b32 v%d, 0, v5, vcc' % (n, SEL + n))
    e.I('v_and_b32 v6, 7, v0\nv_lshrrev_b32 v7, 4, v0\nv_xor_b32 v6, v6, v7\nv_lshlrev_b32 v6, 4, v6')
    e.I('v_lshrrev_b32 v7, 3, v0\nv_lshl_add_u32 v6, v7, 10, v6')
    e.I('s_lshl_b32 s%d, s%d, 16\ns_lshl_b32 s%d, s%d, 8\ns_add_u32 s%d, s%d, s%d' % (T0, sCT, T1, sW, T0, T0, T1))
    e.I('v_add_u32 v%d, s%d, v6\nv_xor_b32 v7, 64, v%d' % (CV, T0, CV))
    e.I('v_add_u32 v%d, 7168, v7\nv_add_u32 v%d, 14336, v%d\nv_add_u32 v%d, 21504, v7' % (CV + 1, CV + 2, CV, CV + 3))
    frag16_addr(e, CA, 6, 7)
    for s in range(2):
        e.I('v_add_u32 v%d, s%d, v%d' % (CA + s, sMW, CA + s))
        e.I('v_add_u32 v%d, %d, v%d' % (CA4 + s, 4 * SLOT, CA + s))
    HS = CA + 2
    e.I('v_and_b32 v6, 15, v0\nv_lshlrev_b32 v6, 4, v6\nv_bfe_u32 v7, v0, 4, 1\nv_lshl_add_u32 v6, v7, 10, v6')
    e.I('v_lshrrev_b32 v7, 5, v0\nv_lshl_add_u32 v%d, v7, 8, v6' % HS)
    e.I('s_lshr_b32 s88, s%d, 1\ns_lshl_b32 s88, s88, 7\ns_lshl_b32 s89, s%d, 15\ns_add_u32 s88, s88, s89\ns_xor_b32 s89, s88, 128' % (sROT, sDTX))
    e.I(wd_lane_offsets(e, WDV, 6, 7))
    e.I('s_lshl_b32 s%d, s%d, 2\ns_sub_u32 s%d, s%d, s%d\ns_sub_u32 s%d, s%d, 1\ns_lshl_b32 s%d, s%d, 11' % (T0, sW, T0, sRB, T0, T0, T0, T5, sW))
    e.I('v_lshrrev_b32 v6, 5, v0\nv_sub_u32 v7, s%d, v6' % T0)
    e.I('v_cmp_le_i32 vcc, 0, v7\nv_cmp_le_i32 s[%d:%d], 2, v7' % (sMB, sMB + 1))
    e.I('v_and_b32 v4, 0x1f0, v1')
    e.I('v_lshl_add_u32 v7, v7, 9, v4\nv_add_u32 v7, 1024, v7\nv_subrev_u32 v5, 2048, v7\nv_mov_b32 v%d, 0x%x' % (EOOB, OOB))
    e.I('v_cndmask_b32 v%d, v%d, v7, vcc\nv_cndmask_b32 v%d, v%d, v5, s[%d:%d]' % (EV0, EOOB, EV1, EOOB, sMB, sMB + 1))
    e.I('v_lshrrev_b32 v6, 4, v0\nv_lshl_add_u32 v7, v6, 11, v%d\nv_add_u32 v%d, %d, v7' % (P16, ERD, L_EG))
    e.I('v_lshlrev_b32 v6, 2, v6\nv_sub_u32 v%d, s%d, v6\nv_med3_i32 v%d, v%d, 0, 4' % (ECNT, sRB, EEXP, ECNT))
    e.I('v_mov_b32 v%d, 1\nv_mov_b32 v%d, %d' % (ONE, FLA, L_FL))

    pro = []
    add = lambda t: [pro.append(lambda x=x: e.I(x)) for x in t.split('\n')]

    def csq(d, a):
        add('v_mul_f32 v30, v%d, v%d\nv_mul_f32 v31, v%d, v%d\nv_fma_f32 v%d, -v%d, v%d, v30\nv_add_f32 v%d, v31, v31' %
            (a, a, a, a + 1, d, a + 1, a + 1, d + 1))

    def cmul(d, a, b):
        add('v_mul_f32 v30, v%d, v%d\nv_mul_f32 v31, v%d, v%d\nv_fma_f32 v30, -v%d, v%d, v30\nv_fma_f32 v%d, v%d, v%d, v31\nv_mov_b32 v%d, v30' %
            (a, b, a, b + 1, a + 1, b + 1, d + 1, a + 1, b, d))

    pro.append(lambda: e.wait(vm=['ep', 'par']))
    add('v_readfirstlane_b32 s%d, v19' % sNONCE)
    add('v_lshlrev_b32 v16, 16, v16\nv_lshlrev_b32 v17, 16, v17\nv_lshlrev_b32 v18, 16, v18')
    add('s_add_u32 s%d, s%d, 0x%x\ns_or_b32 s%d, s%d, 1' % (sNONCE, sNONCE, PHI, sNONCE, sNONCE))
    add('v_mul_f32 v18, 0x%x, v18\nv_exp_f32 v18, v18\nv_cvt_pk_bf16_f32 v18, v18, v18\nv_lshlrev_b32 v18, 16, v18' % LOG2E)
    add('v_mul_f32 v21, v18, v16\nv_mul_f32 v22, v18, v17')
    add('v_mul_f32 v21, 0x%x, v21\nv_exp_f32 v21, v21' % LOG2E)
    add('v_mul_f32 v22, 0.15915494, v22\nv_rndne_f32 v23, v22\nv_sub_f32 v22, v22, v23\nv_sin_f32 v23, v22\nv_cos_f32 v22, v22')
    add('v_mul_f32 v%d, v21, v23\nv_mul_f32 v%d, v21, v22' % (LI, LR))
    add('v_mul_f32 v21, v16, v16\nv_fmac_f32 v21, v17, v17\nv_rcp_f32 v21, v21\nv_add_f32 v22, -1.0, v%d\nv_add_f32 v21, v21, v21' % LR)
    add('v_mul_f32 v23, v22, v16\nv_fmac_f32 v23, v%d, v17\nv_mul_f32 v%d, v23, v21' % (LI, KAP))
    add('v_mul_f32 v23, v%d, v16\nv_fma_f32 v23, -v22, v17, v23\nv_mul_f32 v%d, v23, v21' % (LI, KAP + 1))
    csq(22, LR); csq(22, 22); csq(22, 22); csq(L16, 22)
    csq(22, L16); csq(24, 22); csq(L128, 24); csq(L256, L128); csq(L512, L256); csq(L256, L512)
    for bit, src, dst in ((1, L16, L16S), (2, 22, 22), (4, 24, 24)):
        add('v_and_b32 v26, %d, v%d\nv_cmp_ne_u32 vcc, 0, v26' % (bit, SIDX))
        add('v_cndmask_b32 v%d, 1.0, v%d, vcc\nv_cndmask_b32 v%d, 0, v%d, vcc' % (dst, src, dst + 1, src + 1))
    cmul(L16S, L16S, 22); cmul(L16S, L16S, 24)
    add('v_mul_lo_u32 v%d, v%d, s%d\nv_mov_b32 v2, s%d' % (EEXP, EEXP, sNONCE, sNONCE))
    EDIR = 'e0' in cfg.prog
    EVK = 132
    if EDIR:
        for k in range(8):
            add('v_subrev_u32 v%d, %d, v%d\nv_cmp_le_i32 vcc, 2, v%d\nv_lshl_add_u32 v%d, v%d, 9, v%d\nv_cndmask_b32 v%d, v%d, v%d, vcc' %
                (EVK + k, k - 1, ECNT, EVK + k, EVK + k, EVK + k, P16, EVK + k, EOOB, EVK + k))

    par, pro = pro, []
    pro.append(lambda: e.wait(vm='g'))
    if cfg.glds:
        for k in range(8):
            gw, x = (44 + k if k < 4 else 188 + k), 36 + k
            add('v_lshlrev_b32 v24, 16, v%d\nv_and_b32 v25, 0xffff0000, v%d' % (gw, gw))
            add('v_lshlrev_b32 v26, 16, v%d\nv_and_b32 v27, 0xffff0000, v%d' % (x, x))
            add('v_mul_f32 v26, v26, v24\nv_mul_f32 v27, v27, v25\nv_cvt_pk_bf16_f32 v26, v26, v27')
            if k == 0:
                add('v_lshlrev_b32 v28, 16, v26\nv_and_b32 v29, 0xffff0000, v26')
            else:
                add('v_lshlrev_b32 v27, 16, v26\nv_and_b32 v26, 0xffff0000, v26\nv_add_f32 v28, v28, v27\nv_add_f32 v29, v29, v26')
        add('v_add_f32 v28, v28, v29')
        for sh in (1, 2, 4):
            add('v_add_f32_dpp v28, v28, v28 row_shr:%d row_mask:0xf bank_mask:0xf' % sh)
        for wd in (32, 16):
            add('v_mov_b32 v29, v28\nv_permlane%d_swap_b32 v28, v29\nv_add_f32 v28, v28, v29' % wd)
        add('v_cvt_pk_bf16_f32 v28, v28, v28\nv_lshlrev_b32 v28, 16, v28\nv_mul_f32 v28, 0x%x, v28\nv_exp_f32 v28, v28' % NLOG2E)
        add('v_add_f32 v28, 1.0, v28\nv_rcp_f32 v28, v28\nv_cvt_pk_bf16_f32 v28, v28, v28\nv_lshlrev_b32 v28, 16, v28')
    else:
        for k in range(4):
            add('v_lshlrev_b32 v24, 16, v%d\nv_and_b32 v25, 0xffff0000, v%d' % (44 + k, 44 + k))
            for row in range(2):
                x = 36 + 4 * row + k
                add('v_lshlrev_b32 v26, 16, v%d\nv_and_b32 v27, 0xffff0000, v%d' % (x, x))
                add('v_mul_f32 v26, v26, v24\nv_mul_f32 v27, v27, v25\nv_cvt_pk_bf16_f32 v26, v26, v27')
                add('v_lshlrev_b32 v27, 16, v26\nv_and_b32 v26, 0xffff0000, v26')
                if k == 0:
                    add('v_add_f32 v%d, v26, v27' % (28 + row))
                else:
                    add('v_add_f32 v26, v26, v27\nv_add_f32 v%d, v%d, v26' % (28 + row, 28 + row))
        for mod in ('row_shr:1 row_mask:0xf', 'row_shr:2 row_mask:0xf', 'row_shr:4 row_mask:0xf', 'row_shr:8 row_mask:0xf',
                    'row_bcast:15 row_mask:0xa', 'row_bcast:31 row_mask:0xc'):
            for row in range(2):
                add('v_add_f32_dpp v%d, v%d, v%d %s bank_mask:0xf' % (28 + row, 28 + row, 28 + row, mod))
        add('v_cvt_pk_bf16_f32 v26, v28, v29\nv_lshlrev_b32 v28, 16, v26\nv_and_b32 v29, 0xffff0000, v26')
        add('v_mul_f32 v28, 0x%x, v28\nv_mul_f32 v29, 0x%x, v29\nv_exp_f32 v28, v28\nv_exp_f32 v29, v29' % (NLOG2E, NLOG2E))
        add('v_add_f32 v28, 1.0, v28\nv_add_f32 v29, 1.0, v29\nv_rcp_f32 v28, v28\nv_rcp_f32 v29, v29')
        add('v_cvt_pk_bf16_f32 v26, v28, v29\nv_lshlrev_b32 v28, 16, v26\nv_and_b32 v29, 0xffff0000, v26')
    gate, pro = pro, par

    gdone = []

    def g_store():
        gdone.append(1)
        if cfg.glds:
            e.I('s_mov_b64 exec, 0x8080')
            e.I('buffer_store_dword v28, v%d, %s, s%d offen sc1' % (GO, srd(SWS), T6), tag='gs')
            e.I('s_mov_b64 exec, -1')
            return
        e.I('s_mov_b32 exec_lo, 0\ns_mov_b32 exec_hi, 0x80000000')
        e.I('buffer_store_dwordx2 v[28:29], off, %s, s%d sc1' % (srd(SWS), T6), tag='gs')
        e.I('s_mov_b64 exec, -1')

    nbar = [0]

    def s_bar(i):
        assert nbar[0] == i
        nbar[0] += 1
        e.I('s_barrier')
        if i in (0, 7):
            st(e, 'b%d' % i)

    def s_read(n):
        i, s = n >> 2, n & 3
        slot = s_slot(i)
        off = (slot & 1) * SLOT
        bx, bb = RINGX + 8 * (n & 7), RINGB + 16 * (i & 1)
        its = []

        def rb_(s2, part, k):
            if s == 0:
                its.append(lambda: e.I('ds_read_b128 %s, v%d offset:%d' % (vr(bb + 8 * part + 4 * s2, 4), BA + 2 * (slot >> 1) + s2,
                                                                          off + 16384 + part * 4096), tag=('s', n, k)))
        for s2 in range(2):
            rb_(s2, 0, s2)
            its.append(lambda s2=s2: e.I('ds_read_b128 %s, v%d offset:%d' % (vr(bx + 4 * s2, 4), XA + 2 * (slot >> 1) + (s2 ^ (s & 1)), off + s * 1024),
                                         tag=('s', n, s2)))
        rb_(1, 1, 2)
        rb_(0, 1, 3)
        if s == 0:
            f0 = its[0]
            its[0] = lambda: (s_bar(i), f0())
        if s == 3:
            def gx():
                m = 0xffff << (16 * (i & 3))
                e.I('s_mov_b32 exec_lo, 0x%x\ns_mov_b32 exec_hi, 0x%x' % (m & 0xffffffff, m >> 32))
                e.I('ds_read_b128 %s, v%d offset:%d' % (vr(36 + 4 * (i >> 2), 4), GA + (slot >> 1), off), tag='gx')
                e.I('s_mov_b64 exec, -1')
            its.insert(0, gx)
        return its

    def s_mm(n, k):
        i, a_ = n >> 2, n & 3
        e.wait(lg=('s', n, k if a_ == 0 and i == 7 else k | 1))
        half = k >> 1
        part = half ^ (a_ & 1)
        s2 = (k & 1) ^ half
        mfma16(e, RE + 16 * part + 4 * a_, RINGX + 8 * (n & 7) + 4 * s2, RINGB + 16 * (i & 1) + 8 * part + 4 * s2, i == 0 and k & 1 == 0)

    D = cfg.SD
    st(e, '_pro')
    for n in range(D):
        run(s_read(n))
    v0, v1 = 4 * (cfg.smallpos + 5), 4 * cfg.vend
    nv = 0
    for n in range(32):
        if n == cfg.smallpos:
            small0()
        rq_ = s_read(n + D) if n + D < 32 else []
        for k in range(4):
            s_mm(n, k)
            take = (len(rq_) + 3 - k) // (4 - k) if len(rq_) <= 4 - k else 2
            run(rq_[:take])
            del rq_[:take]
            g = 4 * n + k + 1
            want = len(pro) * min(max(g - v0, 0), v1 - v0) // (v1 - v0)
            if take < 2 or k == 3:
                run(pro[nv:want])
                nv = max(nv, want)
        assert not rq_
    assert nv == len(pro)
    assert nbar[0] == 8
    st(e, 's1end')
    jitter(e, cfg, 6)
    if cfg.prioA:
        e.I('s_setprio %d' % cfg.prioA)

    def items(txt):
        return [lambda t=t: e.I(t) for t in txt.split('\n')]

    def cfma(d, l, a, c):
        return items('v_fma_f32 v%d, v%d, v%d, v%d\nv_fma_f32 v%d, v%d, v%d, v%d\nv_fma_f32 v%d, -v%d, v%d, v%d\nv_fmac_f32 v%d, v%d, v%d' %
                     (d, l, a, c, d + 1, l, a + 1, c + 1, d, l + 1, a + 1, d, d + 1, l + 1, a))

    e.raw('; ---- role A: local scan end states')
    prev = (RE, IM)
    for r in range(1, 16):
        cur = (20 + 2 * (r & 1), 21 + 2 * (r & 1))
        e.I('v_fma_f32 v%d, v%d, v%d, v%d' % (cur[0], LR, prev[0], RE + r))
        e.I('v_fma_f32 v%d, v%d, v%d, v%d' % (cur[1], LR, prev[1], IM + r))
        e.I('v_fma_f32 v%d, -v%d, v%d, v%d' % (cur[0], LI, prev[1], cur[0]))
        e.I('v_fmac_f32 v%d, v%d, v%d' % (cur[1], LI, prev[0]))
        prev = cur
    e.I('ds_write_b64 v%d, %s' % (XW, vr(prev[0], 2)), tag='ex')

    def c_reg(u, s2, dq):
        return 128 + 32 * u + 16 * s2 + 4 * dq

    CBUF = cfg.cbuf
    CPREV = {i: max(k for k in range(i) if CBUF[k] == CBUF[i]) for i in range(8) if CBUF[i] in CBUF[:i]}
    cdone = set()
    hdone = []

    def c_read(i):
        if i in cdone:
            return
        cdone.add(i)
        assert gdone or not cfg.glds or i < 4
        assert hdone or not EDIR
        assert i < 4 or hdone
        e.wait(vm=('c', i))
        for s in range(4):
            a_, off = (CA4 + (s >> 1), 0) if CBUF[i] == 4 else (CA + (s >> 1), CBUF[i] * SLOT)
            if CBUF[i] == 9:
                off = 4096 + (s & 1) * (SLOT - 2048)
            e.I('ds_read_b128 %s, v%d offset:%d' % (vr(c_reg(i >> 1, s >> 1, 2 * (i & 1) + (s & 1)), 4), a_, off + (s & 1) * 2048), tag=('cr', i))

    def c_loads(i):
        u, dt = i >> 1, i & 1
        its = []
        for q in range(4):
            def f(q=q):
                if q == 0:
                    if i in CPREV:
                        c_read(CPREV[i])
                        e.wait(lg=('cr', CPREV[i]))
                    elif CBUF[i] != 4 and (6 + CBUF[i] % 8 > cfg.JL or 4 + CBUF[i] % 8 >= 8 - cfg.NT):
                        assert kcur[0] >= cfg.JL
                        cnt_spin(e, 'L_cb%d' % i, FLA, 31, C_CONS + 28)
                    e.I('s_xor_b32 s%d, s%d, %d' % (sTD, 88 + (u >> 1), dt * 32768))
                set_m0(e, sMW, CBUF[i] * SLOT if CBUF[i] != 9 else 4096 + (q >> 1) * (SLOT - 2048))
                e.I('buffer_load_dwordx4 v%d, %s, s%d offen offset:%d %slds' % ((CV + q, srd(SC2 if u & 1 else SC1), sTD, 1024 * q) + (ntf('c', i),)), tag=('c', i))
                if q == 3:
                    st(e, '_c%d' % i)
                if q == 3 and i >= cfg.clag:
                    c_read(i - cfg.clag)
            its.append(f)
        return its

    def d_loads(n):
        sl, pos = RING[n]
        its = []
        for q in range(2):
            def f(q=q):
                set_m0(e, sMW, sl * SLOT + pos * 2048)
                if q == 0 and n:
                    wd_next(e, n, sDC, sDB, sDE)
                e.I('buffer_load_dwordx4 v%d, %s, s%d offen offset:%d %slds' % ((WDV + q, srd(SWD), sDC, 1024 * q) + (ntf('d', n),)), tag='wd')
            its.append(f)
        return its

    wl = {j: dma_W(e, WV, SWA, j) for j in range(2, 8)}
    planned = set()

    def e_loads():
        its = []
        for q in range(2):
            def f(q=q):
                set_m0(e, T5, L_EG)
                e.I('buffer_load_dwordx4 v%d, %s, s%d offen offset:%d sc1 lds' % (EV0 + q, srd(SWS), sEL, 1024 * q), tag='eg')
            its.append(f)
        return its

    def expand(toks, k):
        r = []
        for t in toks.split(','):
            if not t:
                continue
            n = int(t[1])
            planned.add(t)
            if t[0] == 'W':
                assert n < 4 or k >= n - 2 or (k == n - 3 and k in cfg.drain)
                r += wl[n][:3] if t[2:] == 'a' else wl[n][3:] if t[2:] == 'b' else wl[n]
            elif t[0] == 'C':
                assert CBUF[n] == 4 or k >= min(6 + CBUF[n] % 8, cfg.JL)
                assert k >= 2 or cfg.w0pos is None
                r += c_loads(n)
            elif t[0] == 'D':
                r += d_loads(n)
            elif t[0] == 'R':
                r.append(lambda n=n: c_read(n))
            elif t[0] == 'S':
                r.append(lambda n=n: (hq[n](), hsent.add(n)))
            elif t[0] == 'G':
                r += small1
            elif t[0] == 'e':
                r += [lambda k=k: e.I('buffer_load_dwordx4 %s, v%d, %s, s%d offen sc1' % (vr(224 + 4 * k, 4), EVK + k, srd(SWS), sEL), tag='egv')
                      for k in range(8)]
            elif t[0] == 'E':
                r += e_loads()
            elif t[0] == 'T':
                r.append(lambda n=n: tch.at(n))
        return r

    def bar(k, extra=()):
        kk = 7 if k == cfg.JL else k
        assert kk < 2 or 'W%d' % kk in planned or 'W%db' % kk in planned or (kk == 2 and cfg.w0pos is not None)
        e.wait(vm=[('st', 8 + kk)] + list(extra))
        st(e, '_a%d' % k)
        e.I('s_barrier')
        st(e, '_d%d' % k)

    sc = []
    for r in range(16):
        sc += items('v_mul_f32 v4, v%d, v%d\nv_mul_f32 v5, v%d, v%d\nv_fma_f32 v%d, v%d, v%d, -v4\nv_fma_f32 v%d, v%d, v%d, v5' %
                    (KAP + 1, IM + r, KAP + 1, RE + r, RE + r, KAP, RE + r, IM + r, KAP, IM + r))
    if cfg.pksc:
        kp = vr(KAP, 2)
        for r in range(0, 16, 4):
            for o in (0, 2):
                e.I('v_pk_mul_f32 %s, %s, %s op_sel:[1,0] op_sel_hi:[1,1]' % (vr(4 + 2 * o, 2), kp, vr(IM + r + o, 2)))
                e.I('v_pk_mul_f32 %s, %s, %s op_sel:[1,0] op_sel_hi:[1,1]' % (vr(6 + 2 * o, 2), kp, vr(RE + r + o, 2)))
            for o in (0, 2):
                e.I('v_pk_fma_f32 %s, %s, %s, %s op_sel_hi:[0,1,1] neg_lo:[0,0,1] neg_hi:[0,0,1]' % (vr(RE + r + o, 2), kp, vr(RE + r + o, 2), vr(4 + 2 * o, 2)))
                e.I('v_pk_fma_f32 %s, %s, %s, %s op_sel_hi:[0,1,1]' % (vr(IM + r + o, 2), kp, vr(IM + r + o, 2), vr(6 + 2 * o, 2)))
        late = []
    else:
        run(sc[:cfg.early])
        late = sc[cfg.early:]
    e.wait(lg='all')
    bar(0)
    work = []
    for s in range(8):
        e.I('ds_read_b64 %s, v%d offset:%d' % (vr(4 + 2 * s, 2), XR, 256 * s), tag=('e', s))
    pf = []
    for s in range(1, 8):
        pf.append(lambda s=s: e.wait(lg=('e', s)))
        pf += cfma(4 + 2 * s, L16, 2 + 2 * s, 4 + 2 * s)
    segs = [[sub.split('|') for sub in sg.split('&')] for sg in cfg.prog.split(';')]
    issued_tok = set()
    q0 = expand(segs[0][0][0], 0)
    run(weave(q0[:cfg.pren], pf))
    e.I('v_mov_b32 v20, s%d\nv_mov_b32 v21, s%d' % (sNONCE, sNONCE))
    e.I('s_mov_b64 exec, 0xffff')
    e.I('buffer_store_dwordx4 v[18:21], v%d, %s, s%d offen sc1' % (P16, srd(SWS), sES), tag='es')
    e.I('s_mov_b64 exec, -1')
    st(e, 'epub')
    jitter(e, cfg, 7)
    run(q0[cfg.pren:])
    if not cfg.gmerge:
        gate.append(g_store)
    sel = items('v_mov_b32 v%d, 0\nv_mov_b32 v%d, 0' % (PP, PP + 1))
    for s in range(1, 8):
        sel.append(lambda s=s: e.I('v_cmp_eq_u32 vcc, %d, v%d\nv_cndmask_b32 v%d, v%d, v%d, vcc\nv_cndmask_b32 v%d, v%d, v%d, vcc' %
                                   (s, SIDX, PP, PP, 2 + 2 * s, PP + 1, PP + 1, 3 + 2 * s)))
    EG = 224

    def e_check():
        e.I('v_add3_u32 v4, v%d, v%d, v%d\nv_add_u32 v4, v4, v%d' % tuple(EG + 4 * k + 2 for k in range(4)))
        e.I('v_cmp_ne_u32 vcc, v4, v%d' % EEXP)

    def e_verify():
        assert 'e0' in issued_tok or not EDIR
        e.wait(vm='egv', lg='eg')
        e_check()
        if 'E' not in cfg.skip:
            e.I('s_cbranch_vccnz L_pollE')
        e.label('L_pollE_out')
        st(e, 'egot')
        with e.cold_block():
            e.label('L_pollE')
            e.I('s_mov_b32 s%d, 0' % sCNT)
            e.label('L_pollE_l')
            if cfg.esleep:
                e.I('s_sleep %d' % cfg.esleep)
            for k in range(4):
                e.I('v_subrev_u32 v4, %d, v%d\nv_cmp_le_i32 vcc, 2, v4\nv_lshl_add_u32 v4, v4, 9, v%d\nv_cndmask_b32 v4, v%d, v4, vcc' % (k - 1, ECNT, P16, EOOB))
                e.I('buffer_load_dwordx4 %s, v4, %s, s%d offen sc1' % (vr(EG + 4 * k, 4), srd(SWS), sEL))
            e.I('s_add_u32 s%d, s%d, 1' % (sCNT, sCNT))
            e.I('s_cmp_gt_u32 s%d, %d' % (sCNT, SPIN_MAX))
            e.wait(vm='all')
            e.I('s_cbranch_scc1 L_pollE_out')
            e_check()
            e.I('s_cbranch_vccnz L_pollE_l')
            e.I('s_branch L_pollE_out')

    def second_pass():
        p2 = []
        if not EDIR:
            p2.append(lambda: [e.I('ds_read_b128 %s, v%d offset:%d' % (vr(EG + 4 * k, 4), ERD, 512 * k), tag='eg') for k in range(4)])
        p2.append(e_verify)
        for k in range(2, -1, -1):
            p2 += cfma(EG + 4 * k, L128, EG + 4 * k + 4, EG + 4 * k)
        p2 += items('v_mov_b32 v6, v%d\nv_mov_b32 v7, v%d\nv_permlane16_swap_b32 v6, v%d\nv_permlane16_swap_b32 v7, v%d' % (EG, EG + 1, EG, EG + 1))
        p2 += cfma(6, L512, EG, 6)
        p2 += items('v_mov_b32 v4, v6\nv_mov_b32 v5, v7\nv_permlane32_swap_b32 v4, v6\nv_permlane32_swap_b32 v5, v7')
        p2 += cfma(4, L256, 6, 4)
        p2 += cfma(PP, L16S, 4, PP)
        p2 += items('v_mul_f32 v6, v%d, v%d\nv_mul_f32 v7, v%d, v%d' % (KAP, PP, KAP, PP + 1))
        p2 += items('v_fma_f32 v6, -v%d, v%d, v6\nv_fmac_f32 v7, v%d, v%d' % (KAP + 1, PP + 1, KAP + 1, PP))
        prev = (6, 7)
        for r in range(16):
            p2 += items('v_fmac_f32 v%d, v%d, v%d\nv_fmac_f32 v%d, v%d, v%d\nv_fma_f32 v%d, -v%d, v%d, v%d\nv_fmac_f32 v%d, v%d, v%d' %
                        (RE + r, LR, prev[0], IM + r, LR, prev[1], RE + r, LI, prev[1], RE + r, IM + r, LI, prev[0]))
            prev = (RE + r, IM + r)
        return p2

    def store_h(loads):
        assert not p2
        for k in range(8):
            e.I('v_cvt_pk_bf16_f32 v%d, v%d, v%d' % (8 + k, RE + 2 * k, RE + 2 * k + 1))
            e.I('v_cvt_pk_bf16_f32 v%d, -v%d, -v%d' % (16 + k, IM + 2 * k, IM + 2 * k + 1))
        for k in range(8):
            e.I('v_permlane16_swap_b32 v%d, v%d' % (8 + k, 16 + k))
        e.I('s_add_u32 s%d, s%d, 4096\ns_add_u32 s%d, s%d, %d\ns_add_u32 s%d, s%d, %d' % (T0, sHD, T1, sHD, HT_, T2, sHD, HT_ + 4096))
        for tl in range(2):
            for m in range(2):
                mfma(e, RE + 16 * tl, 8 + 8 * tl + 4 * m, SEL + 4 * m, m == 0)
        hdone.append(1)
        run(loads)
        if cfg.gmerge:
            assert not gate
            g_store()
        for tl in range(2):
            for part in range(2):
                o = 8 + 8 * tl + 4 * part
                for k in range(4):
                    e.I('v_cvt_pk_bf16_f32 v%d, v%d, v%d' % (o + k, RE + 16 * tl + 8 * part + 2 * k, RE + 16 * tl + 8 * part + 2 * k + 1))
                hq.append(lambda o=o, so=(sHD, T0, T1, T2)[2 * tl + part]:
                          e.I('buffer_store_dwordx4 %s, v%d, %s, s%d offen sc1' % (vr(o, 4), HS, srd(SWS), so), tag='hs'))
                if len(hq) <= cfg.hnow:
                    hq[-1]()
                    hsent.add(len(hq) - 1)

    hq = []
    hsent = set()
    kcur = [0]
    p2 = second_pass()
    for k, sub, toks, work in [(k, i, t, w) for k, sg in enumerate(segs) for i, (t, w) in enumerate(sg)]:
        if k == 0:
            continue
        if k <= cfg.JL and sub == 0:
            bar(k, ['eg'] if work[:1] == 'P' else [])
        kcur[0] = k
        q = expand(toks, k)
        if work[:3] == 'sel' or work[:1] == 'g':
            fill = []
            for wk in work.split('+'):
                if wk == 'sel':
                    fill += sel + ([] if 'late' in cfg.prog else late)
                else:
                    n = len(gate) if wk == 'g' else int(wk[1:])
                    fill += gate[:n]
                    del gate[:n]
            run(weave(q, fill) if not cfg.lfirst else q[:cfg.lfirst] + weave(q[cfg.lfirst:] or [lambda: None], fill))
        elif work == 'late':
            run(weave(q, late))
        elif work[:1] == 'P':
            assert EDIR or 'eg' not in e.vm
            wk = work.rstrip('H')
            n = cfg.p2cut if wk == 'P0' else len(p2) if wk in ('P', 'P1') else int(wk[1:])
            part = p2[:n]
            del p2[:n]
            run(part[:1] + (weave(q, part[1:]) if q else part[1:]))
            if work[-1] == 'H':
                st(e, 'p2done')
                store_h([])
        elif work[:1] == 'H':
            st(e, 'p2done')
            store_h(q)
            run(expand(work[2:], k))
        elif work == 'F':
            run(hq[n] for n in range(4) if n not in hsent)
            st(e, 'hst')
            jitter(e, cfg, 8)
            run(q)
            assert gdone and len(hq) == 4
            e.wait(vm=['hs', 'gs'])
            flag_store(e, 2, sHF)
            st(e, 'hflag')
            jitter(e, cfg, 9)
        else:
            run(q)
        issued_tok.update(toks.split(','))
    assert len(segs) > cfg.JL
    HV, PW = 6, 8
    rest = [i for i in range(8) if 'C%d' % i not in planned]
    run(c_loads(rest.pop(0)))
    e.I('s_mul_i32 s%d, s%d, %d\ns_mul_i32 s%d, s%d, %d\ns_add_u32 s%d, s%d, s%d\ns_add_u32 s%d, s%d, 0x%x' %
        (T0, sRT, 2 * HT_, T1, sW, HW_, T0, T0, T1, T0, T0, H_OFF))
    e.I('v_add_u32 v%d, s%d, v1\nv_add_u32 v%d, %d, v%d' % (HV, T0, HV + 1, HT_, HV))
    def late_scalars():
        for u in range(4):
            e.I('s_xor_b32 s%d, s%d, %d\ns_lshl_b32 s%d, s%d, 12' % (93 + u, sROT, u, 93 + u, 93 + u))
        mk_srd(e, SOUT, P_OUT, 2048 * 2048)
    part_write_addr(e, PW, 12, 13, 16384, 4096, SPART)
    if cfg.NA:
        for n in range(cfg.prog.count('D'), 10):
            wd_next(e, n, sDC, sDB, sDE)
    else:
        late_scalars()
    e.I('s_lshl_b32 s%d, s%d, 2\ns_add_u32 s%d, s%d, s%d\ns_mul_i32 s%d, s%d, %d\ns_add_u32 s%d, s%d, 0x%x' %
        (T0, sRT, T0, T0, sW, T0, T0, 8 * FS, T0, T0, HF_OFF))
    e.I('v_mul_u32_u24 v12, %d, v0\nv_mov_b32 v5, v2' % FS)

    def h_reg(k):
        return 16 + 4 * (k % 12)

    SC = 'S' in cfg.chain

    def h_idx(k):
        return (2 * (k >> 3) + (k & 1), (k >> 1) & 3) if SC else (k >> 2, k & 3)

    def h_load(k):
        n2, t4 = h_idx(k)
        e.I('buffer_load_dwordx4 %s, v%d, %s, s%d offen offset:%d sc1' % (vr(h_reg(k), 4), HV + (t4 >> 1), srd(SWS), 93 + (n2 >> 1),
                                                                            2048 * (n2 & 1) + 1024 * (t4 & 1)), tag=('h', k))

    def c_finish():
        for i in range(8):
            c_read(i)
        e.wait(vm='wd')
        if cfg.ybar:
            e.wait(lg='all')
            e.I('s_barrier')
        else:
            cnt_add(e, FLA, ONE, C_DONEA)
        st(e, 'cgot')

    while rest and rest[0] < cfg.hlook:
        run(c_loads(rest.pop(0)))
    if cfg.NA:
        assert not rest and 9 not in CBUF
        for n in range(10, 10 + cfg.NA):
            last = max(i for i in range(8) if CBUF[i] == RING[n][0])
            c_read(last)
            e.wait(lg=('cr', last))
            run(d_loads(n))
            if n + 1 < 18 and RING[n + 1][1] == 0:
                c_read(max(i for i in range(8) if CBUF[i] == RING[n + 1][0]))
        late_scalars()
    if cfg.hlook > 8:
        c_finish()
    poll(e, 'L_pollH', 13, 12, T0, '0xff',
         lambda: ([run(c_loads(i)) for i in rest], c_finish() if cfg.hearly == 0 and cfg.hlook <= 8 else None))
    st(e, 'hrdy')
    jitter(e, cfg, 10)
    XO, RA, GV, RF = 2, 3, 4, 14
    ROWS = (0, 8, 32, 40)
    XL, DL, GL, XD, PW1 = 128, 136, 138, 144, 10
    fin = items('s_lshl_b32 s%d, s%d, 6\ns_add_u32 s%d, s%d, s%d' % (T0, sRT, T0, T0, sW))
    fin += items('v_lshrrev_b32 v12, 4, v0\nv_lshrrev_b32 v13, 2, v0\nv_and_b32 v13, 2, v13\nv_xor_b32 v12, v12, v13')
    fin += items('v_and_b32 v15, 1, v12\nv_lshl_add_u32 v13, v15, 4, s%d\nv_lshrrev_b32 v3, 1, v12\nv_lshl_add_u32 v13, v3, 2, v13' % T0)
    fin += items('v_and_b32 v14, 15, v0\ns_lshl_b32 s%d, s%d, 7' % (T1, sCT))
    fin += items('v_lshl_add_u32 v1, v14, 3, s%d' % T1)
    fin += items('v_lshl_add_u32 v%d, v13, 10, v1' % XO)
    fin += items('v_lshlrev_b32 v%d, 2, v13\nv_add_u32 v%d, 0x%x, v%d' % (GV, GV, G_OFF, GV))
    fin += items('s_lshl_b32 s%d, s%d, 8\ns_add_u32 s%d, s%d, %d' % (T2, sW, T1, T2, SPART))
    fin += items('v_lshl_add_u32 v3, v3, 10, s%d\nv_lshl_add_u32 v3, v15, 14, v3' % T1)
    fin += items('v_lshl_or_b32 v13, v15, 2, s%d\nv_xor_b32 v13, v13, v14\nv_lshl_add_u32 v%d, v13, 4, v3' % (sW, RA))
    fin += items('v_lshl_add_u32 v12, v12, 6, s%d\nv_lshrrev_b32 v13, 2, v14\nv_lshl_add_u32 v12, v13, 10, v12' % T2)
    fin += items('v_and_b32 v13, 3, v0\nv_lshl_add_u32 v%d, v13, 4, v12\nv_add_u32 v%d, %d, v%d' % (RF, RF + 1, 2 * SLOT, RF))
    fin += items('s_lshl_b32 s%d, s%d, 7' % (T0, sDTX))
    for a in range(2):
        fin += items('v_xor_b32 v%d, s%d, v%d\nv_xor_b32 v%d, 0x80, v%d' % (PW + a, T0, PW + a, PW1 + a, PW + a))
    if cfg.posX < 0:
        run(fin)
    for k in range(cfg.NVA):
        if cfg.posX < 0 and k == -1 - cfg.posX:
            assert k >= cfg.hearly
            e.wait(lg='all')
            e.I('s_barrier')
        if k == cfg.hearly // 2 and k:
            c_read(6)
        if k == cfg.hearly and k:
            c_finish()
        h_load(k)
    e.wait(lg='all')
    if cfg.posX >= 0:
        run(fin)

    def fx_loads():
        e.I('global_load_dwordx2 %s, v1, s[%d:%d]' % (vr(DL, 2), P_DSK, P_DSK + 1), tag='fx')
        for n in range(4):
            e.I('s_mov_b32 s%d, %d' % (T2, 1024 * ROWS[n]))
            e.I('buffer_load_dwordx2 %s, v%d, %s, s%d offen' % (vr(XL + 2 * n, 2), XO, srd(SX), T2), tag='fx')

    def g_loads():
        for n in range(4):
            e.I('buffer_load_dword v%d, v%d, %s, 0 offen offset:%d sc1' % (GL + n, GV, srd(SWS), 4 * ROWS[n]), tag='fg')

    DU = 160
    xd = [lambda: e.wait(vm='fx')]
    xd += items('v_lshlrev_b32 v%d, 16, v%d\nv_and_b32 v%d, 0xffff0000, v%d\nv_lshlrev_b32 v%d, 16, v%d\nv_and_b32 v%d, 0xffff0000, v%d' %
                (DU, DL, DU + 1, DL, DU + 2, DL + 1, DU + 3, DL + 1))
    for n in range(4):
        for k in range(2):
            x = XL + 2 * n + k
            xd += items('v_lshlrev_b32 v12, 16, v%d\nv_and_b32 v13, 0xffff0000, v%d' % (x, x))
            xd += items('v_mul_f32 v12, v12, v%d\nv_mul_f32 v13, v13, v%d' % (DU + 2 * k, DU + 1 + 2 * k))
            xd += items('v_cvt_pk_bf16_f32 v13, v12, v13')
            xd += items('v_lshlrev_b32 v%d, 16, v13\nv_and_b32 v%d, 0xffff0000, v13' % (XD + 4 * n + 2 * k, XD + 4 * n + 2 * k + 1))
    xd += items('v_mov_b32 v12, %d\nv_mov_b32 v13, 1\nv_lshlrev_b32 v%d, 1, v%d' % (L_P2, XO, XO))

    sbegun = set()

    def s2_step(k):
        n2, t4 = h_idx(k)
        if k == 2 * cfg.posX:
            e.I('s_barrier')
        e.wait(vm=('h', k | 1 if SC else k))
        for dq in range(4):
            kk = k
            if SC:
                assert cfg.NVA <= 10
                i = 4 * (k & 1) + dq
                kk = (k & ~1) + ((i & 1) ^ ((i >> 1) & 1))
                d = i >> 1
                n2 = h_idx(kk)[0]
            else:
                d = dq
            if cfg.snake and t4 & 1:
                d = 3 - d
            mfma16(e, acc2(t4, d), c_reg(n2 >> 1, n2 & 1, d), h_reg(kk), acc2(t4, d) not in sbegun)
            sbegun.add(acc2(t4, d))
            if dq == (0 if cfg.NVA < 12 else 3) and k + cfg.NVA < 32:
                h_load(k + cfg.NVA)
        if k == 8:
            fx_loads()
        if k == max(8, 2 * cfg.posX):
            g_loads()
    steps = [lambda k=k: s2_step(k) for k in range(32)]
    if cfg.xdpos < 32:
        run(steps[:cfg.xdpos] + weave(steps[cfg.xdpos:], xd))
    else:
        run(steps + xd[-3:])
    st(e, 's2end')
    jitter(e, cfg, 11)
    if cfg.posX == 16:
        e.I('s_barrier')
        g_loads()
    st(e, '_X')
    run(part_write(e, PW, 16384, 0, PW1) + part_write(e, PW, 16384, 1, PW1))
    cnt_add(e, 12, 13, 0)
    if cfg.xdpos >= 32:
        run(xd[:-1])
    OM = 164
    e.wait(vm='fg')
    for n in range(4):
        e.I('v_sub_f32 v%d, 1.0, v%d' % (OM + n, GL + n))
        e.I('v_cvt_pk_bf16_f32 v%d, v%d, v%d\nv_lshlrev_b32 v%d, 16, v%d' % (OM + n, OM + n, OM + n, OM + n, OM + n))
    for n in range(4):
        e.I('s_mov_b32 s%d, %d' % (T2 + n, 2048 * ROWS[n]))
    e.I('s_lshl_b32 s%d, s%d, 5\ns_add_u32 s%d, s%d, s%d\ns_lshl_b32 s%d, s%d, 8\ns_add_u32 s%d, s%d, s%d' %
        (T0, sCT, T0, T0, sRT, T1, sW, T0, T0, T1))
    e.I('s_cmp_eq_u32 s%d, 31\ns_cselect_b32 s%d, 0x%x, s%d' % (T0, T0, EPOCH_OFF, SWS + 2))
    flag_store(e, 5, T0)
    cnt_spin(e, 'L_spinM', 12, 16, 0)
    e.wait(lg='all')
    for n in range(4):
        for w in range(4):
            e.I('ds_read_b128 %s, v%d offset:%d' % (vr(64 + 16 * n + 4 * w, 4), RA, w * 4096 + (n & 1) * 2048 + (n >> 1) * 32768), tag=('r', n))
    BS = XD
    for n in range(4):
        e.wait(lg=('r', n))
        b = 64 + 16 * n
        for k in range(4):
            e.I('v_add_f32 v%d, v%d, v%d\nv_add_f32 v%d, v%d, v%d' % (b + k, b + k, b + 4 + k, b + 8 + k, b + 8 + k, b + 12 + k))
        for k in range(4):
            e.I('v_add_f32 v%d, v%d, v%d' % (b + k, b + k, b + 8 + k))
        for k in range(4):
            e.I('v_add_f32 v%d, v%d, v%d' % (b + k, b + k, XD + 4 * n + k))
        for k in range(4):
            e.I('v_mul_f32 v%d, v%d, v%d' % (BS + 4 * n + k, GL + n, b + k))
    st(e, 'pre')
    jitter(e, cfg, 12)
    for grp in cfg.zg:
        e.I('s_barrier')
        st(e, 'Z' if 3 in grp else '_Z%d' % grp[0])
        for n in grp:
            for w in range(4):
                e.I('ds_read_b128 %s, v%d offset:%d' % (vr(64 + 16 * n + 4 * w, 4), RF + (n >> 1), w * 6144 + (n & 1) * SLOT), tag=('r', n, w >> 1))
        for n in grp:
            b = 64 + 16 * n
            for o, p in ((0, 4), (8, 12), (0, 8)):
                e.wait(lg=('r', n, o >> 3))
                if 3 in grp:
                    for k in (0, 2):
                        e.I('v_pk_add_f32 %s, %s, %s' % (vr(b + o + k, 2), vr(b + o + k, 2), vr(b + p + k, 2)))
                else:
                    for k in range(4):
                        e.I('v_add_f32 v%d, v%d, v%d' % (b + o + k, b + o + k, b + p + k))
            if cfg.mimic2:
                for rnd in range(2):
                    e.I('v_cvt_pk_bf16_f32 v%d, v%d, v%d\nv_cvt_pk_bf16_f32 v%d, v%d, v%d' % (b + 1, b, b + 1, b + 3, b + 2, b + 3))
                    for k in (0, 2):
                        e.I('v_lshlrev_b32 v%d, 16, v%d\nv_and_b32 v%d, 0xffff0000, v%d' % (b + k, b + k + 1, b + k + 1, b + k + 1))
                    if rnd == 0:
                        for k in range(4):
                            e.I('v_mul_f32 v%d, v%d, v%d' % (b + k, OM + n, b + k))
                for k in (0, 2):
                    e.I('v_pk_add_f32 %s, %s, %s' % (vr(b + k, 2), vr(b + k, 2), vr(BS + 4 * n + k, 2)))
            else:
                for k in range(4):
                    e.I('v_fma_f32 v%d, v%d, v%d, v%d' % (b + k, OM + n, b + k, BS + 4 * n + k))
            e.I('buffer_store_dwordx4 %s, v%d, %s, s%d offen %s' % (vr(b, 4), XO, srd(SOUT), T2 + n, cfg.outflags.replace('_', ' ') if isinstance(cfg.outflags, str) else cfg.outflags[n]), tag='out')
    if st.on:
        e.wait(vm='all')
    if cfg.skew:
        e.I('s_and_b32 s%d, s2, %d\ns_lshl_b32 s%d, s%d, 7\ns_add_u32 s%d, s%d, 0x%x' % (T4, cfg.skew[0], T4, T4, T4, T4, STAMP_OFF))
        e.I('buffer_load_dword v62, off, %s, s%d sc1' % (srd(SWS), T4))
        e.wait(vm='all')
        e.I('v_readfirstlane_b32 s12, v62')
        if cfg.skew[1] > 0:
            e.I('s_sub_u32 s12, s38, s12')
        else:
            e.I('s_sub_u32 s12, s12, s38')
        e.I('s_add_u32 s12, s12, 300\ns_add_u32 s10, s38, s12')
        st.names.append('skew')
    st(e, 'end')
    st.flush(e)


HEADER = open(os.path.join(os.path.dirname(os.path.abspath(__file__)), '..', 'cdna_kernels', BASE + '.s.ref')).read()


DOC = """;
;   S: B stages x and B_re/B_im through LDS (LDS-DMA) and keeps its x fragments in registers; A computes B.x.
;      local end states -> workgroup end state published in d_ws -> carry-in from ALL earlier row blocks ->
;      second pass; h is transposed with two selection MFMAs.  h, act (bf16, fragment order) and the gate go to d_ws.
; Hand-offs: write-through stores, counter wait, then a flag word; readers poll with L1-bypassing loads.
"""


def generate(cfg):
    SLEEP[:] = cfg.sleep
    FL.clear()
    FL.update(cfg.nt)
    W_SLOT[0] = 0 if cfg.w0pos is None else 4
    S_SHIFT[0] = -1 if cfg.ahead else 0
    assert cfg.w0pos is None
    hdr = []
    for line in HEADER.split('\n'):
        if not line.startswith(';'):
            break
        if '@launch' in line:
            line = '; @launch grid=(256,1,1) block=(512,1,1) lds=%d' % LDS_BYTES
            if cfg.pre_kernel is not None:
                line = '; @launch kernel=%s grid=(256,1,1) block=(512,1,1) lds=%d' % (NAME, LDS_BYTES)
                if cfg.pre_kernel:
                    line = '; @launch kernel=warm_kernel grid=(256,1,1) block=(256,1,1) lds=0\n' + line
        hdr.append(line)
    stB = Stamps(cfg, ([38, 84] if cfg.selB and '_prek' in cfg.selB else [38]) + [6, 8, 14, 16, 18, 20, 22, 30, 32, 34, 4, 10, 12, 24, 26], 'B')
    stA = Stamps(cfg, [38, 10, 12, 22, 34, 24, 26, 6, 8, 18, 28, 14, 16, 30, 36, 4], 'A')
    e = Em()
    gen_entry(e, cfg, stB)
    stA.names = list(stB.names)
    eA = Em()
    eA.hist = list(e.hist)
    eA.vm = list(e.vm)
    gen_B(e, cfg, stB)
    gen_A(eA, cfg, stA)
    txt = '\n'.join(hdr) + '\n' + DOC
    txt += '.amdgcn_target "amdgcn-amd-amdhsa--gfx950"\n.text\n.globl %s\n.p2align 8\n.type %s,@function\n%s:\n' % (NAME, NAME, NAME)
    txt += e.text() + '\n' + '\n'.join(e.cold) + '\n.p2align 6\nL_A:\n' + eA.text() + '\n    s_endpgm\n' + '\n'.join(eA.cold) + '\nL_end:\n    s_endpgm\n'
    if cfg.pre_kernel:
        w = Em()
        w.I('s_cmp_ge_u32 s2, 256\ns_cbranch_scc1 L_wend')
        if cfg.pre_kernel != 'empty':
            w.I('s_load_dwordx16 s[4:19], s[0:1], 0\ns_load_dwordx16 s[20:35], s[0:1], 64')
            w.I('s_lshl_b32 s3, s2, 8\nv_add_u32 v0, s3, v0\nv_lshlrev_b32 v1, 7, v0')
            w.wait_smem()
            base = 0
            for p, n in ((P_X, 2048 * 1024), (P_BRE, 524288), (P_BIM, 524288), (P_WG, 1409024), (P_WU, 1409024), (P_CRE, 524288), (P_CIM, 524288), (P_WD, 1409024)):
                mk_srd(w, 40, p, n)
                w.I('v_subrev_u32 v2, %d, v1\nv_cmp_gt_u32 vcc, %d, v2\ns_and_saveexec_b64 s[44:45], vcc\ns_cbranch_execz L_w%d' % (base, n, p))
                w.I('buffer_load_dword v3, v2, s[40:43], 0 offen')
                w.label('L_w%d' % p)
                w.I('s_mov_b64 exec, s[44:45]')
                base += n
            if cfg.pre_kernel == 'wait':
                w.I('s_waitcnt vmcnt(0)')
        txt += '.globl warm_kernel\n.p2align 8\n.type warm_kernel,@function\nwarm_kernel:\n' + w.text() + '\nL_wend:\n    s_endpgm\n'
    txt += '''.section .rodata,"a"
.p2align 6
.amdhsa_kernel %s
  .amdhsa_next_free_vgpr 256
  .amdhsa_next_free_sgpr 102
  .amdhsa_accum_offset 256
  .amdhsa_group_segment_fixed_size 0
  .amdhsa_kernarg_size 136
  .amdhsa_user_sgpr_count 2
  .amdhsa_user_sgpr_kernarg_segment_ptr 1
  .amdhsa_system_sgpr_workgroup_id_x 1
  .amdhsa_float_denorm_mode_32 3
.end_amdhsa_kernel
''' % NAME
    if cfg.pre_kernel:
        txt += '''.p2align 6
.amdhsa_kernel warm_kernel
  .amdhsa_next_free_vgpr 8
  .amdhsa_next_free_sgpr 48
  .amdhsa_accum_offset 8
  .amdhsa_group_segment_fixed_size 0
  .amdhsa_kernarg_size 136
  .amdhsa_user_sgpr_count 2
  .amdhsa_user_sgpr_kernarg_segment_ptr 1
  .amdhsa_system_sgpr_workgroup_id_x 1
.end_amdhsa_kernel
'''
    info = dict(A=eA.count, B=e.count, nopsA=eA.nops, nopsB=e.nops, stampsA=stA.names, stampsB=stB.names)
    return txt, info


def cfg_from(args):
    cfg = Cfg()
    for a in args:
        k, v = a.split('=')
        setattr(cfg, k, eval(v))
    return cfg


if __name__ == '__main__':
    out = sys.argv[1]
    cfg = cfg_from(sys.argv[2:])
    txt, info = generate(cfg)
    open(out, 'w').write(txt)
    print(info)
```

```python
import sys, os
sys.path.insert(0, os.path.dirname(os.path.abspath(__file__)))
from em import Em, weave

BASE = 'gated_mix__ssm_conv_s5__swiglu_ffn__prompt'
NAME = BASE + '_kernel'

ACT_OFF = 0
H_OFF = 0x600000
E_OFF = 0xB00000
G_OFF = 0xB20000
HF_OFF = 0xB22000
AF_OFF = 0xB24000
EPOCH_OFF = 0xB48000
STAMP_OFF = 0xB50000
WS_SIZE = 0xB80000
OOB = 0x2000000
FS = 8
assert FS == 8
PHI = 0x9E3779B8

SLOT = 24576
WIN = 49152
SCR = 147456
SPART = 98304
L_E, L_FL, L_EG = SCR, SCR + 4096, SCR + 8192
L_P2 = 3 * SLOT + 4096
LDS_BYTES = 163840

P_X, P_LRE, P_LIM, P_BRE, P_BIM, P_CRE, P_CIM, P_LDT = 4, 6, 8, 10, 12, 14, 16, 18
P_DSK, P_BX, P_WG, P_WU, P_WD, P_GW, P_OUT, P_DBG, P_WS = 20, 22, 24, 26, 28, 30, 32, 34, 36
SX, SWS = 40, 44
SBM, SW, SWD = 48, 52, 56
SC1, SC2, SOUT, SCODE = 48, 52, 56, 60
SWA = 60
sWAVE, sW, sRB, sCB, sK0, sRT, sCT, sNONCE, sSG0 = 64, 65, 66, 67, 68, 69, 70, 71, 72
T0, T1, T2, T3, T4, T5, T6 = 73, 74, 75, 76, 77, 78, 79
sNL2E = 80
sMA, sMB = 82, 84
sTBL = 86
sCNT = 97
sTS, sTW, sTD = 98, 99, 100
sMX, sMBm = 60, 61
sMW = 101
SPIN_MAX = 200000

SLEEP = [0, 0]
FL = {}


def ntf(key, stage):
    return 'nt ' if stage < FL.get(key, 0) else ''


LOG2E = 0x3fb8aa3b
NLOG2E = 0xbfb8aa3b


class Cfg:
    mimic = False
    mimic2 = False
    stamps = False
    rot1 = (2, 4, 2, 1)
    rot2 = 7
    rotF = 0
    rxD = None
    rxC = None
    rotS = None
    map2 = 84
    prewarm = 'v'
    pwn = 4
    esleep = 4
    slim = True
    blate = True
    lfirst = 0
    glds = True
    xloc = False
    defer = True
    apre = True
    NT = 2
    early = 200
    w0pos = None
    s1a = 2
    smallpos = 2
    pre_kernel = None
    lag = 0
    lagr = 4
    JL = 7
    prog = 'W2,G0|;W3,C0|sel;W4|g53;E0,W5,D0,D1,D2,D3|g;W6|P0;W7|P1H;|;C1,C2|F'
    p2cut = 72
    cbuf = (4, 1, 4, 0, 1, 4, 0, 1)
    tplan = ()
    zfill = True
    prioB = 0
    LA = 4
    posX = 6
    pren = 4
    asplit = True
    prioT = 1
    prioS = 0
    prioD = (0, 0)
    prioF2n = -1
    drain = ()
    hpad = (1280, 768)
    hlook = 8
    hearly = 0
    hnow = 4
    sleep = (1, 1)
    skew = None
    skip = ''
    flagpos = 3
    ftouch = True
    clag = 2
    p1n = 7
    p1r = 2
    NA = 5
    SD = 3
    vend = 28
    ahead = 2
    aheadW = (2, 0)
    ybar = False
    ypos = 10
    gmerge = True
    alook = 18
    abet = 3
    posXB = -17
    fine = True
    snake = True
    chain = 'FSD'
    nt = {}
    pksc = True
    jitter = 0
    prioF2 = 0
    NVA = 10
    RB = 12
    NV0 = (12, 0)
    xdpos = 32
    NV = 12
    TL = 4
    pull0 = 3
    zg = ((0,), (1,), (2,), (3,))
    zlag = 2
    outflags = 'sc1_nt'
    selA = None
    selB = None
    prioA = 0
    amp = None


def srd(r):
    return 's[%d:%d]' % (r, r + 3)


def vr(a, n):
    return 'v[%d:%d]' % (a, a + n - 1) if n > 1 else 'v%d' % a


def mk_srd(e, r, p, nbytes):
    e.I('s_mov_b32 s%d, s%d\ns_mov_b32 s%d, s%d\ns_mov_b32 s%d, 0x%x\ns_mov_b32 s%d, 0x20000' %
        (r, p, r + 1, p + 1, r + 2, nbytes, r + 3))


def mk_srd_sel(e, r, p1, p0, nbytes):
    e.I('s_cselect_b32 s%d, s%d, s%d\ns_cselect_b32 s%d, s%d, s%d\ns_mov_b32 s%d, 0x%x\ns_mov_b32 s%d, 0x20000' %
        (r, p1, p0, r + 1, p1 + 1, p0 + 1, r + 2, nbytes, r + 3))


def mfma(e, d, a, b, first):
    e.I('v_mfma_f32_32x32x16_bf16 %s, %s, %s, %s' % (vr(d, 16), vr(a, 4), vr(b, 4), '0' if first else vr(d, 16)))


def mfma16(e, d, a, b, first):
    e.I('v_mfma_f32_16x16x32_bf16 %s, %s, %s, %s' % (vr(d, 4), vr(a, 4), vr(b, 4), '0' if first else vr(d, 4)))


class Stamps:
    def __init__(self, cfg, regs, role):
        self.amp = cfg.amp if cfg.amp else None
        self.role = role
        self.sel = (cfg.selA if role == 'A' else cfg.selB)
        if self.sel is not None:
            self.sel = self.sel.split(',')
        self.ins = 's_memtime' if cfg.stamps == 'cyc' else 's_memrealtime'
        self.on = cfg.stamps or bool(self.amp)
        self.regs = regs
        self.names = []

    def __call__(self, e, name):
        if not self.on:
            return
        if self.sel is not None:
            if name != 'start' and name not in self.sel:
                return
        elif name.startswith('_'):
            return
        r = self.regs[len(self.names)]
        self.names.append(name)
        if self.amp and name not in ('start', 'end', self.amp[1], self.amp[2]):
            return
        e.I('%s s[%d:%d]' % (self.ins, r, r + 1))

    def flush(self, e):
        if not self.on:
            return
        e.wait_smem()
        if self.amp:
            if self.amp[0] == self.role:
                R = dict(zip(self.names, self.regs))
                e.I('s_sub_u32 s%d, s%d, s%d' % (T0, R[self.amp[2]], R[self.amp[1]]))
                if self.amp[3] < 0:
                    e.I('s_min_u32 s%d, s%d, %d\ns_sub_u32 s%d, %d, s%d' % (T0, T0, self.amp[4], T0, self.amp[4], T0))
                e.I('s_mul_i32 s%d, s%d, %d\ns_min_u32 s%d, s%d, 50000' % (T0, T0, abs(self.amp[3]), T0, T0))
                if len(self.amp) > 5:
                    e.I('s_and_b32 s%d, s2, %d\ns_cmp_eq_u32 s%d, %d\ns_cselect_b32 s%d, s%d, 0' % (T1, self.amp[5], T1, self.amp[6], T0, T0))
                e.label('L_amp')
                e.I('s_memrealtime s[%d:%d]' % (T1, T1 + 1))
                e.wait_smem()
                e.I('s_sub_u32 s%d, s%d, s%d\ns_cmp_lt_u32 s%d, s%d\ns_cbranch_scc1 L_amp' % (T1, T1, R['end'], T1, T0))
            return
        e.I('s_lshl_b32 s%d, s2, 3\ns_add_u32 s%d, s%d, s%d\ns_lshl_b32 s%d, s%d, 6\ns_add_u32 s%d, s%d, 0x%x' %
            (T0, T0, T0, sWAVE, T0, T0, T0, T0, STAMP_OFF))
        e.I('s_mov_b64 exec, 1')
        for k in range(len(self.names)):
            e.I('v_mov_b32 v2, s%d' % self.regs[k])
            e.I('buffer_store_dword v2, off, %s, s%d offset:%d' % (srd(SWS), T0, 4 * k))


def jitter(e, cfg, key):
    if not cfg.jitter:
        return
    lab = 'L_jit%d' % key
    e.settle()
    e.I('s_lshl_b32 s%d, s2, 3\ns_add_u32 s%d, s%d, s%d' % (sCNT, sCNT, sCNT, sWAVE))
    e.I('s_mul_i32 s%d, s%d, 0x%x\ns_lshr_b32 s%d, s%d, 28' % (sCNT, sCNT, (0x9E3779B1 * (2 * key * cfg.jitter + 1)) & 0xffffffff, sCNT, sCNT))
    e.I('s_cmp_lt_u32 s%d, 12\ns_cbranch_scc1 %s_out' % (sCNT, lab))
    e.label(lab)
    e.I('s_sleep 40\ns_add_u32 s%d, s%d, 1\ns_cmp_lt_u32 s%d, 17\ns_cbranch_scc1 %s' % (sCNT, sCNT, sCNT, lab))
    e.label(lab + '_out')


def run(items):
    for it in items:
        it()


def poll(e, label, vt, vaddr, soff, mask, between=None):
    def look(tag=None):
        e.I('s_mov_b64 exec, %s' % mask)
        e.I('buffer_load_dword v%d, v%d, %s, s%d offen sc1' % (vt, vaddr, srd(SWS), soff), tag=tag)
        e.I('s_mov_b64 exec, -1')

    def check():
        e.I('v_cmp_ne_u32 vcc, s%d, v%d' % (sNONCE, vt))
        e.I('s_and_b64 vcc, vcc, %s' % mask)
    spin(e, label, look, check, between)


def spin(e, label, look, check, between):
    look('look')
    if between:
        between()
    e.wait(vm='look')
    check()
    e.I('s_cbranch_scc1 %s' % label)
    e.label(label + '_out')
    with e.cold_block():
        e.label(label)
        e.I('s_mov_b32 s%d, 0' % sCNT)
        e.label(label + '_l')
        if SLEEP[0]:
            e.I('s_sleep %d' % SLEEP[0])
        look()
        e.I('s_add_u32 s%d, s%d, 1' % (sCNT, sCNT))
        e.I('s_cmp_gt_u32 s%d, %d' % (sCNT, SPIN_MAX))
        e.wait(vm='all')
        e.I('s_cbranch_scc1 %s_out' % label)
        check()
        e.I('s_cbranch_scc1 %s_l' % label)
        e.I('s_branch %s_out' % label)


def code_touch(e, tag):
    e.I('s_getpc_b64 s[%d:%d]' % (sMA, sMA + 1))
    e.label('L_pc' + tag)
    e.I('s_sub_u32 s%d, s%d, L_pc%s-%s\ns_subb_u32 s%d, s%d, 0' % (sMA, sMA, tag, NAME, sMA + 1, sMA + 1))
    e.I('s_and_b32 s%d, s2, 0xf8\ns_add_u32 s%d, s%d, s%d\ns_lshl_b32 s%d, s%d, 6' % (T0, T0, T0, sWAVE, T0, T0))
    e.I('s_load_dword s3, s[%d:%d], s%d' % (sMA, sMA + 1, T0))
    e.I('s_add_u32 s%d, s%d, 16384\ns_min_u32 s%d, s%d, L_end-%s' % (T0, T0, T0, T0, NAME))
    e.I('s_load_dword s3, s[%d:%d], s%d' % (sMA, sMA + 1, T0))


def rot2_calc(e, cfg, dst, b, x=None):
    if x:
        e.I('s_lshr_b32 s%d, s%d, 3\ns_mul_i32 s%d, s%d, %d' % (dst, sRT, dst, dst, x[1]))
        for k in range(x[0]):
            e.I('s_add_u32 s%d, s%d, s%d' % (dst, dst, sRT))
        e.I('s_and_b32 s%d, s%d, 7' % (dst, dst))
        return
    e.I('s_mul_i32 s%d, s%d, %d' % (dst, sCT, b))
    for k in range(1 if cfg.map2 == 84 else 2):
        e.I('s_add_u32 s%d, s%d, s%d' % (dst, dst, sRT))
    e.I('s_and_b32 s%d, s%d, %d' % (dst, dst, cfg.rot2))


def step_start(e, cfg, cur, beg, end, shift):
    rot2_calc(e, cfg, cur, cfg.rotF, cfg.rxD)
    e.I('s_cmp_eq_u32 s%d, 3\ns_cselect_b32 s%d, 10, 11' % (sW, end))
    e.I('s_mul_i32 s%d, s%d, s%d\ns_lshr_b32 s%d, s%d, 3\ns_mul_i32 s%d, s%d, 11' % (cur, cur, end, cur, cur, beg, sW))
    e.I('s_add_u32 s%d, s%d, s%d\ns_add_u32 s%d, s%d, s%d' % (cur, cur, beg, end, end, beg))
    for r in (cur, beg, end):
        e.I('s_lshl_b32 s%d, s%d, %d' % (r, r, shift))


def step_next(e, cur, beg, end, inc, wrap=True, last=False):
    e.I('s_add_u32 s%d, s%d, %d' % (cur, cur, inc))
    if wrap:
        e.I('s_cmp_eq_u32 s%d, s%d\ns_cselect_b32 s%d, s%d, s%d' % (cur, end, cur, beg, cur))
    if last:
        e.I('s_cmp_eq_u32 s%d, 3\ns_cselect_b32 s%d, 0x%x, s%d' % (sW, cur, OOB, cur))


def wd_next(e, n, cur, beg, end):
    step_next(e, cur, beg, end, 16384, n % 2 == 0, n == 20)


def set_m0(e, base, off):
    if getattr(e, 'm0', None) != (base, off):
        e.I('s_add_u32 m0, s%d, %d' % (base, off))
        e.m0 = (base, off)


def wd_lane_offsets(e, WDV, t0, t1):
    txt = 'v_lshrrev_b32 v%d, 4, v0\nv_lshlrev_b32 v%d, 1, v%d\nv_and_b32 v%d, 7, v0\nv_xor_b32 v%d, v%d, v%d\nv_lshlrev_b32 v%d, 4, v%d\n' % (
        t0, t0, t0, t1, t0, t0, t1, t0, t0)
    txt += 'v_lshrrev_b32 v%d, 3, v0\nv_lshl_add_u32 v%d, v%d, 10, v%d\n' % (t1, t0, t1, t0)
    txt += 's_lshl_b32 s%d, s%d, 7\n' % (T0, sCT)
    txt += 'v_add_u32 v%d, s%d, v%d\nv_add_u32 v%d, 7168, v%d' % (WDV, T0, t0, WDV + 1, WDV)
    return txt


RING = [(5, n) for n in range(3)] + [(4, 2)] + [(2 + n // 3, n % 3) for n in range(6)] + [(4, n) for n in range(2)] \
    + [(n // 3, n % 3) for n in range(6)] + [(2, n) for n in range(3)] + [(3, 0)]
PREV = {18: 4, 19: 5, 20: 6, 21: 7}


class Touch:
    def __init__(self, e, cfg, role):
        self.e, self.role = e, role
        self.plan = [p for p in cfg.tplan if p[0] == role]
        it = []
        for par in range(2):
            for p in (P_CRE, P_CIM):
                it += [(p, 128 * k + 64 * par) for k in range(4)]
        for par in range(2):
            it += [(P_WD, 128 * k + 64 * par) for k in range(11)]
        self.items = it

    def setup(self):
        if not self.plan:
            return
        e = self.e
        used = {self.items[k][0] for p in self.plan for k in range(p[2], p[3])}
        e.I('s_lshl_b32 s%d, s2, 2\ns_add_u32 s%d, s%d, s%d' % (T0, T0, T0, sW))
        for p in sorted(used):
            e.I('s_mul_i32 s%d, s%d, %d' % (T1, T0, 1376 if p == P_WD else 512))
            e.I('s_add_u32 s%d, s%d, s%d\ns_addc_u32 s%d, s%d, 0' % (p, p, T1, p + 1, p + 1))

    def at(self, place):
        for p in self.plan:
            if p[1] == place:
                for k in range(p[2], p[3]):
                    self.e.I('s_load_dword s3, s[%d:%d], %d' % (self.items[k][0], self.items[k][0] + 1, self.items[k][1]))


def flag_store(e, vt, soff, imm=0):
    e.I('s_mov_b64 exec, 1')
    e.I('buffer_store_dword v%d, off, %s, s%d offset:%d sc1' % (vt, srd(SWS), soff, imm), tag='flag')
    e.I('s_mov_b64 exec, -1')


def frag_addr(e, dst, t0, t1):
    e.I('v_lshrrev_b32 v%d, 5, v0' % t0)
    e.I('v_bfe_u32 v%d, v0, 1, 3' % t1)
    e.I('v_xor_b32 v%d, v%d, v%d' % (t0, t0, t1))
    e.I('v_and_b32 v%d, 31, v0' % t1)
    e.I('v_lshlrev_b32 v%d, 7, v%d' % (t1, t1))
    e.I('v_lshl_add_u32 v%d, v%d, 4, v%d' % (dst, t0, t1))
    for s in range(1, 4):
        e.I('v_xor_b32 v%d, %d, v%d' % (dst + s, 32 * s, dst))


def frag16_addr(e, dst, t0, t1):
    e.I('v_lshrrev_b32 v%d, 4, v0' % t0)
    e.I('v_bfe_u32 v%d, v0, 1, 3' % t1)
    e.I('v_xor_b32 v%d, v%d, v%d' % (t0, t0, t1))
    e.I('v_and_b32 v%d, 15, v0' % t1)
    e.I('v_lshlrev_b32 v%d, 7, v%d' % (t1, t1))
    e.I('v_lshl_add_u32 v%d, v%d, 4, v%d' % (dst, t0, t1))
    e.I('v_xor_b32 v%d, 64, v%d' % (dst + 1, dst))


def w_tr_addr(e, d, t0, t1):
    e.I('v_lshrrev_b32 v%d, 4, v0' % t0)
    e.I('v_bfe_u32 v%d, v0, 2, 2' % t1)
    e.I('v_lshl_add_u32 v%d, v%d, 3, v%d' % (t0, t0, t1))
    e.I('v_mul_u32_u24 v%d, 192, v%d' % (t0, t0))
    e.I('v_bfe_u32 v%d, v0, 4, 1' % t1)
    e.I('v_lshl_add_u32 v%d, v%d, 5, v%d' % (t0, t1, t0))
    e.I('v_and_b32 v%d, 3, v0' % t1)
    e.I('v_lshl_add_u32 v%d, v%d, 3, v%d' % (d, t1, t0))
    e.I('v_xor_b32 v%d, 32, v%d' % (d + 1, d))
    e.I('v_add_u32 v%d, %d, v%d\nv_add_u32 v%d, %d, v%d' % (d + 2, WIN, d, d + 3, WIN, d + 1))


W_SLOT = [0, 1, 2, 3, 0, 1, 2, 3]
S_SHIFT = [0]


def s_slot(i):
    return (i + 4) % 6 if S_SHIFT[0] < 0 else (i + S_SHIFT[0]) % 4


def w_frag_read(e, dst, wa, j, s2, g, mat, fh, mm, tag):
    slot = W_SLOT[j]
    off = (slot & 1) * SLOT + mat * 12288 + (32 * s2 + 4 * mm) * 192 + g * 64
    e.I('ds_read_b64_tr_b16 %s, v%d offset:%d' % (vr(dst + 2 * mm, 2), wa + 2 * (slot >> 1) + fh, off), tag=tag)


def act_items(e, cfg, G, U, tmp, out):
    items = []
    add = lambda t: items.append(lambda t=t: e.I(t))
    for b in range(2):
        g, u, o = G + 8 * b, U + 8 * b, out + 4 * b
        if cfg.mimic:
            for src in (g, u):
                for p in range(4):
                    add('v_cvt_pk_bf16_f32 v%d, v%d, v%d' % (tmp + p, src + 2 * p, src + 2 * p + 1))
                for p in range(4):
                    add('v_lshlrev_b32 v%d, 16, v%d' % (src + 2 * p, tmp + p))
                    add('v_and_b32 v%d, 0xffff0000, v%d' % (src + 2 * p + 1, tmp + p))
        for p in range(4):
            add('v_pk_mul_f32 %s, %s, s[%d:%d]' % (vr(tmp + 2 * p, 2), vr(g + 2 * p, 2), sNL2E, sNL2E + 1))
        for p in range(8):
            add('v_exp_f32 v%d, v%d' % (tmp + p, tmp + p))
        for p in range(4):
            add('v_pk_add_f32 %s, %s, 1.0 op_sel_hi:[1,0]' % (vr(tmp + 2 * p, 2), vr(tmp + 2 * p, 2)))
        for p in range(8):
            add('v_rcp_f32 v%d, v%d' % (tmp + p, tmp + p))
        for p in range(4):
            add('v_pk_mul_f32 %s, %s, %s' % (vr(g + 2 * p, 2), vr(g + 2 * p, 2), vr(tmp + 2 * p, 2)))
        if cfg.mimic:
            for p in range(4):
                add('v_cvt_pk_bf16_f32 v%d, v%d, v%d' % (tmp + p, g + 2 * p, g + 2 * p + 1))
            for p in range(4):
                add('v_lshlrev_b32 v%d, 16, v%d' % (g + 2 * p, tmp + p))
                add('v_and_b32 v%d, 0xffff0000, v%d' % (g + 2 * p + 1, tmp + p))
        for p in range(4):
            add('v_pk_mul_f32 %s, %s, %s' % (vr(u + 2 * p, 2), vr(g + 2 * p, 2), vr(u + 2 * p, 2)))
        for p in range(4):
            add('v_cvt_pk_bf16_f32 v%d, v%d, v%d' % (o + p, u + 2 * p, u + 2 * p + 1))
    return items


def act_items_scalar(e, cfg, G, U, tmp, out):
    if cfg.mimic:
        return act_items(e, cfg, G, U, tmp, out)
    items = []
    add = lambda t: items.append(lambda t=t: e.I(t))
    for b in range(4):
        g, u, o = G + 4 * b, U + 4 * b, out + 2 * b
        for p in range(4):
            add('v_mul_f32 v%d, s%d, v%d' % (tmp + p, sNL2E, g + p))
        for p in range(4):
            add('v_exp_f32 v%d, v%d' % (tmp + p, tmp + p))
            add('v_mul_f32 v%d, v%d, v%d' % (u + p, g + p, u + p))
        for p in range(4):
            add('v_add_f32 v%d, 1.0, v%d' % (tmp + p, tmp + p))
        for p in range(4):
            add('v_rcp_f32 v%d, v%d' % (tmp + p, tmp + p))
        for p in range(4):
            add('v_mul_f32 v%d, v%d, v%d' % (u + p, tmp + p, u + p))
        for p in range(2):
            add('v_cvt_pk_bf16_f32 v%d, v%d, v%d' % (o + p, u + 2 * p, u + 2 * p + 1))
    return items


def light_scc(e):
    e.I('s_and_b32 s%d, s%d, 3\ns_cmp_eq_u32 s%d, 3\ns_cselect_b32 s%d, 14, s%d\ns_cmp_eq_u32 s%d, 14' % (T0, sCB, T0, T0, sCB, T0))


def w_lane_offsets(e, cfg, WV, t0, t1):
    if cfg.zfill:
        light_scc(e)
        e.I('s_cselect_b32 s%d, 8, 12' % sTW)
    e.I('s_and_b32 s%d, s%d, 1' % (T1, sW))
    e.I('s_mul_i32 s%d, s%d, %d\ns_lshl_b32 s%d, s%d, 6\ns_add_u32 s%d, s%d, s%d' % (T0, T1, 32 * 2752, T1, sSG0, T0, T0, T1))
    for q in range(3):
        e.I('v_add_u32 v%d, %d, v0\nv_mul_u32_u24 v%d, 171, v%d\nv_lshrrev_b32 v%d, 11, v%d' % (t1, 64 * q, t0, t1, t0, t0))
        if cfg.zfill:
            e.I('v_mul_u32_u24 v%d, 12, v%d\nv_sub_u32 v%d, v%d, v%d\nv_cmp_gt_u32 vcc, s%d, v%d' % (WV + q, t0, t1, t1, WV + q, sTW, t1))
        e.I('v_lshrrev_b32 v%d, 3, v%d\nv_lshlrev_b32 v%d, 1, v%d\nv_xor_b32 v%d, v0, v%d' % (t1, t0, t1, t1, t1, t1))
        e.I('v_mul_u32_u24 v%d, %d, v%d' % (t0, 2752 - 192, t0))
        e.I('v_lshl_add_u32 v%d, v%d, 4, v%d' % (t0, t1, t0))
        e.I('v_add_u32 v%d, s%d, v%d' % (WV + q, T0, t0))
        if cfg.zfill:
            e.I('v_mov_b32 v%d, 0x%x\nv_cndmask_b32 v%d, v%d, v%d, vcc' % (t0, OOB, WV + q, t0, WV + q))
    e.I('s_mul_i32 s%d, s%d, 6144' % (sMW, sW))


def dma_W(e, WV, SWR, j):
    slot = W_SLOT[j] * SLOT
    its = []
    for grp in range(2):
        for q in range(3):
            def f(grp=grp, q=q):
                set_m0(e, sMW, slot + grp * 3072)
                if q == 0 and grp == 0:
                    e.I('s_add_u32 s%d, s%d, %d\ns_and_b32 s%d, s%d, 7\ns_mul_i32 s%d, s%d, %d' %
                        (sTW, sK0, j, sTW, sTW, sTW, sTW, 64 * 2752))
                if q == 0 and grp == 1:
                    e.I('s_add_u32 s%d, s%d, %d' % (sTW, sTW, 16 * 2752))
                e.I('buffer_load_dwordx4 v%d, %s, s%d offen offset:%d %slds' % ((WV + q, srd(SWR), sTW, 1024 * q) + (ntf('w', j),)), tag=('st', 8 + j))
            its.append(f)
    return its


C_LAND, C_CONS, C_Q, C_DONEA = 0, 32, 64, 68


def cnt_add(e, va, vone, off):
    e.I('s_mov_b64 exec, 1')
    e.I('ds_add_u32 v%d, v%d offset:%d' % (va, vone, off), tag='sig')
    e.I('s_mov_b64 exec, -1')


def cnt_look(e, va, vt, off, tag):
    e.I('ds_read_b32 v%d, v%d offset:%d' % (vt, va, off), tag=tag)


def cnt_check(e, label, va, vt, off, tag):
    e.wait(lg=tag)
    e.I('v_cmp_ne_u32 vcc, 4, v%d' % vt)
    e.I('s_cbranch_vccnz %s' % label)
    e.label(label + '_out')
    with e.cold_block():
        e.label(label)
        e.I('s_mov_b32 s%d, 0' % sCNT)
        e.label(label + '_l')
        if SLEEP[1]:
            e.I('s_sleep %d' % SLEEP[1])
        cnt_look(e, va, vt, off, None)
        e.I('s_add_u32 s%d, s%d, 1' % (sCNT, sCNT))
        e.I('s_cmp_gt_u32 s%d, %d' % (sCNT, 20 * SPIN_MAX))
        e.wait(lg='all')
        e.I('s_cbranch_scc1 %s_out' % label)
        e.I('v_cmp_ne_u32 vcc, 4, v%d' % vt)
        e.I('s_cbranch_vccnz %s_l' % label)
        e.I('s_branch %s_out' % label)


def cnt_spin(e, label, va, vt, off):
    cnt_look(e, va, vt, off, 'look')
    cnt_check(e, label, va, vt, off, 'look')


def act_offsets(e, k, s_data, s_flag, valid_scc=False):
    e.I('s_lshl_b32 s%d, s%d, 2\ns_add_u32 s%d, s%d, s%d' % (T0, sRB, T0, T0, sW))
    e.I('s_mul_i32 s%d, s%d, 43\ns_add_u32 s%d, s%d, s%d\ns_add_u32 s%d, s%d, %d\ns_lshl_b32 s%d, s%d, 11' %
        (T1, T0, T1, T1, sSG0, T1, T1, k, s_data, T1))
    e.I('s_lshr_b32 s%d, s%d, 1\ns_lshl4_add_u32 s%d, s%d, s%d\ns_and_b32 s%d, s%d, 1\ns_lshl1_add_u32 s%d, s%d, s%d' %
        (T1, T0, T1, T1, sCB, T0, T0, T1, T1, T0))
    e.I('s_mul_i32 s%d, s%d, %d\ns_add_u32 s%d, s%d, 0x%x' % (T1, T1, FS, s_flag, T1, AF_OFF))


def part_write_addr(e, dst, t0, t1, piece_stride, wave_stride, base):
    e.I('v_lshrrev_b32 v%d, 4, v0' % t0)
    e.I('v_and_b32 v%d, 7, v0' % t1)
    e.I('v_xor_b32 v%d, v%d, v%d' % (t0, t0, t1))
    e.I('v_lshlrev_b32 v%d, 4, v%d' % (dst, t0))
    e.I('v_bfe_u32 v%d, v0, 3, 1' % t0)
    e.I('v_and_b32 v%d, 3, v0' % t1)
    e.I('v_lshl_add_u32 v%d, v%d, 2, v%d' % (t0, t0, t1))
    e.I('v_lshl_add_u32 v%d, v%d, 8, v%d' % (dst, t0, dst))
    e.I('v_bfe_u32 v%d, v0, 2, 1' % t0)
    e.I('v_mul_u32_u24 v%d, %d, v%d' % (t0, piece_stride, t0))
    e.I('s_mul_i32 s%d, s%d, %d\ns_add_u32 s%d, s%d, %d' % (T0, sW, wave_stride, T0, T0, base))
    e.I('v_add3_u32 v%d, v%d, v%d, s%d' % (dst, dst, t0, T0))
    e.I('v_xor_b32 v%d, 64, v%d' % (dst + 1, dst))


def acc2(t4, dq):
    return 64 + 16 * t4 + 4 * dq


def part_write(e, addr, piece_stride, tt, addr1=None):
    its = []
    for a in range(2):
        for dq in range(4):
            ad_, off = (addr + (dq & 1), (dq >> 1) * 128) if addr1 is None or dq < 2 else (addr1 + (dq & 1), 0)
            its.append(lambda ad_=ad_, off=off, dq=dq, a=a:
                       e.I('ds_write_b128 v%d, %s offset:%d' % (ad_, vr(acc2(2 * tt + a, dq), 4), tt * 2 * piece_stride + a * 2048 + off), tag=('pw', tt)))
    return its


def tile_ids(e, cfg, redo):
    if redo:
        e.I('s_and_b32 s%d, s2, 7\ns_lshr_b32 s%d, s2, 3' % (T0, T1))
        e.I('s_and_b32 s%d, s%d, 7\ns_lshr_b32 s%d, s%d, 3\ns_lshr_b32 s%d, s%d, 1' % (T2, T1, T3, T1, T4, T0))
    e.I('s_mul_i32 s%d, s%d, 11\ns_mul_i32 s%d, s%d, 3\ns_add_u32 s%d, s%d, s%d' % (sSG0, T4, T5, T3, sSG0, sSG0, T5))
    e.I('s_cmp_eq_u32 s%d, 15\ns_subb_u32 s%d, s%d, 0' % (sCB, sSG0, sSG0))
    if cfg.map2 == 84:
        if cfg.xloc:
            e.I('s_and_b32 s%d, s%d, 8\ns_add_u32 s%d, s%d, s%d\ns_and_b32 s%d, s%d, 2\ns_lshl_b32 s%d, s%d, 2\ns_add_u32 s%d, s%d, s%d' %
                (sRT, sRB, sRT, sRT, sRB, T5, T0, T5, T5, sRT, sRT, T5))
            e.I('s_and_b32 s%d, s%d, 4\ns_add_u32 s%d, s%d, s%d' % (sCT, T0, sCT, sCT, T3))
        else:
            e.I('s_lshl_b32 s%d, s%d, 3\ns_add_u32 s%d, s%d, s%d' % (sRT, T4, sRT, sRT, T2))
            e.I('s_and_b32 s%d, s%d, 1\ns_lshl_b32 s%d, s%d, 2\ns_add_u32 s%d, s%d, s%d' % (sCT, T0, sCT, sCT, sCT, sCT, T3))
    else:
        e.I('s_lshl_b32 s%d, s%d, 2\ns_and_b32 s%d, s%d, 3\ns_add_u32 s%d, s%d, s%d\ns_lshr_b32 s%d, s%d, 2' %
            (sRT, T0, T5, T1, sRT, sRT, T5, sCT, T1))


KARG2 = 's_load_dwordx16 s[20:35], s[0:1], 64\ns_load_dwordx2 s[36:37], s[0:1], 128'


def gen_entry(e, cfg, st):
    e.I('s_load_dwordx16 s[4:19], s[0:1], 0')
    e.I('s_cmp_ge_u32 s2, 256\ns_cbranch_scc1 L_end')
    e.I(KARG2)
    st(e, 'start')
    if 'v' in cfg.prewarm:
        n = cfg.pwn
        e.I('s_getpc_b64 s[%d:%d]' % (SCODE, SCODE + 1))
        e.label('L_pc')
        e.I('s_mov_b32 s%d, L_end-L_pc\ns_mov_b32 s%d, 0x20000' % (SCODE + 2, SCODE + 3))
        e.I('s_lshl_b32 s%d, s2, %d\ns_and_b32 s%d, s%d, 0x%x' % (T0, 7 + n.bit_length() - 1, T0, T0, 0x7fff & ~(1024 * n - 1)))
        e.I('v_lshlrev_b32 v1, %d, v0' % (1 + n.bit_length() - 1))
        m = sum(1 << (k * 64 // n) for k in range(n))
        e.I('s_mov_b32 exec_lo, 0x%x\ns_mov_b32 exec_hi, 0x%x' % (m & 0xffffffff, m >> 32))
        e.I('buffer_load_dword v63, v1, %s, s%d offen' % (srd(SCODE), T0), tag='pw')
        e.I('s_mov_b64 exec, -1')
    e.I('v_lshrrev_b32 v1, 6, v0\nv_and_b32 v0, 63, v0')
    e.I('v_readfirstlane_b32 s%d, v1' % sWAVE)
    if cfg.slim and cfg.rot1 == (2, 4, 2, 1):
        e.I('s_and_b32 s%d, s2, 7\ns_bfe_u32 s%d, s2, 0x30003\ns_lshr_b32 s%d, s2, 6' % (T0, T2, T3))
        e.I('s_lshl1_add_u32 s%d, s%d, s%d\ns_lshl2_add_u32 s%d, s%d, s%d\ns_and_b32 s%d, s%d, 7' % (sK0, T2, T0, sK0, T3, sK0, sK0, sK0))
        e.I('s_and_b32 s%d, s2, 1\ns_lshl3_add_u32 s%d, s%d, s%d' % (sRB, sRB, sRB, T2))
        e.I('s_lshr_b32 s%d, s%d, 1\ns_lshl2_add_u32 s%d, s%d, s%d' % (T4, T0, sCB, T4, T3))
        assert cfg.map2 == 84
    else:
        e.I('s_and_b32 s%d, s2, 7\ns_lshr_b32 s%d, s2, 3' % (T0, T1))
        e.I('s_and_b32 s%d, s%d, 7\ns_lshr_b32 s%d, s%d, 3' % (T2, T1, T3, T1))
        e.I('s_and_b32 s%d, s%d, 1\ns_lshl_b32 s%d, s%d, 3\ns_add_u32 s%d, s%d, s%d' % (sRB, T0, sRB, sRB, sRB, sRB, T2))
        e.I('s_lshr_b32 s%d, s%d, 1' % (T4, T0))
        e.I('s_lshl_b32 s%d, s%d, 2\ns_add_u32 s%d, s%d, s%d' % (sCB, T4, sCB, sCB, T3))
        e.I('s_mul_i32 s%d, s%d, %d' % (sK0, T2, cfg.rot1[0]))
        for src, mul in zip((T3, T4, None), cfg.rot1[1:]):
            if mul:
                if src is None:
                    e.I('s_and_b32 s%d, s%d, 1' % (T5, T0))
                e.I('s_mul_i32 s%d, s%d, %d\ns_add_u32 s%d, s%d, s%d' % (T5, T5 if src is None else src, mul, sK0, sK0, T5))
        e.I('s_and_b32 s%d, s%d, 7' % (sK0, sK0))
    if not cfg.slim:
        tile_ids(e, cfg, False)
    e.I('s_and_b32 s%d, s%d, 3' % (sW, sWAVE))
    e.I('s_cmp_lt_u32 s%d, 4\ns_cbranch_scc1 L_A' % sWAVE)


def gen_B(e, cfg, st):
    NPRE = cfg.prog.count('D')
    WA = 2
    EP = 42
    XV, BV, WV, XA = 32, 36, 38, 44
    sOD = 62
    if cfg.prioS:
        e.I('s_setprio %d' % cfg.prioS)
    e.I('v_lshrrev_b32 v8, 3, v0')
    e.I('v_and_b32 v9, 7, v0')
    e.I('v_lshrrev_b32 v10, 4, v0')
    e.I('v_xor_b32 v10, v9, v10\nv_lshlrev_b32 v10, 4, v10')
    e.I('v_lshrrev_b32 v11, 5, v0\nv_and_b32 v12, 3, v8\nv_lshl_add_u32 v11, v11, 4, v12')
    e.I('s_lshl2_add_u32 s%d, s%d, s%d\ns_lshl_b32 s%d, s%d, 15' % (T0, sRB, sW, T0, T0))
    e.I('v_lshl_add_u32 v11, v11, 10, s%d' % T0)
    e.I('s_lshl_b32 s%d, s%d, 6\ns_and_b32 s%d, s%d, 64' % (sOD, sW, sOD, sOD))
    e.I('v_xad_u32 v%d, v10, s%d, v11' % (XV, sOD))
    e.I('v_xor_b32 v13, 64, v%d' % XV)
    e.I('v_add_u32 v%d, 3072, v13\nv_add_u32 v%d, 6144, v%d\nv_add_u32 v%d, 9216, v13' % (XV + 1, XV + 2, XV, XV + 3))
    def b_setup():
        e.I('s_and_b32 s%d, s%d, 1\ns_lshl1_add_u32 s%d, s%d, s%d\ns_lshl_b32 s%d, s%d, 14' % (T1, sW, T0, sCB, T1, T0, T0))
        e.I('v_lshrrev_b32 v11, 5, v0\nv_lshl_add_u32 v11, v11, 3, v12')
        e.I('v_lshl_add_u32 v11, v11, 10, s%d' % T0)
        e.I('v_add_u32 v%d, v11, v10' % BV)
        e.I('v_xor_b32 v13, 64, v%d\nv_add_u32 v%d, 3072, v13' % (BV, BV + 1))
        e.I('s_lshl_b32 s%d, s%d, 11\ns_add_u32 s%d, s%d, 16384' % (sMBm, sW, sMBm, sMBm))
        e.I('s_mov_b32 s%d, 0x%x\ns_mov_b32 s%d, 0x20000' % (SBM + 2, 512 * 1024, SBM + 3))
    if not cfg.blate:
        b_setup()
    e.I('s_lshl_b32 s%d, s%d, 12' % (sMX, sW))
    e.I('s_lshl_b32 s%d, s%d, 7' % (T6, sK0))
    e.I('s_mov_b32 s%d, 0x%x\ns_mov_b32 s%d, 0x20000' % (SX + 2, 2048 * 1024, SX + 3))
    set_m0(e, sMX, s_slot(0) * SLOT)
    e.I('s_mov_b32 s%d, s%d' % (sTS, T6))
    st(e, '_prek')
    e.wait_smem()
    st(e, 'karg')
    jitter(e, cfg, 1)
    e.I('s_mov_b64 s[%d:%d], s[%d:%d]' % (SX, SX + 1, P_X, P_X + 1))

    def dma_S(i):
        slot = s_slot(i) * SLOT
        its = []
        for q in range(4):
            def f(q=q):
                if q == 0 and i:
                    set_m0(e, sMX, slot)
                    e.I('s_add_u32 s%d, s%d, %d\ns_and_b32 s%d, s%d, 1023' % (sTS, T6, i * 128, sTS, sTS))
                e.I('buffer_load_dwordx4 v%d, %s, s%d offen offset:%d %slds' % ((XV + q, srd(SX), sTS, 1024 * q) + (ntf('x', i),)), tag=('st', i))
            its.append(f)
        for q in range(2):
            def f(q=q):
                if q == 0 and i == 0 and cfg.blate:
                    b_setup()
                if q == 0:
                    set_m0(e, sMBm, slot)
                if q == 0 and i == 0:
                    e.I('s_cmp_ge_u32 s%d, 2\ns_cselect_b64 s[%d:%d], s[%d:%d], s[%d:%d]' % (sW, SBM, SBM + 1, P_BIM, P_BIM + 1, P_BRE, P_BRE + 1))
                e.I('buffer_load_dwordx4 v%d, %s, s%d offen offset:%d %slds' % ((BV + q, srd(SBM), sTS, 1024 * q) + (ntf('b', i),)), tag=('st', i))
            its.append(f)
        return its

    run(dma_S(0))
    st(e, 'dma0')
    s1 = dma_S(1)
    run(s1[:cfg.s1a])
    if 's' in cfg.prewarm:
        code_touch(e, 'B')
    frag16_addr(e, XA, 11, 12)
    for s in range(2):
        e.I('v_xor_b32 v%d, s%d, v%d\nv_add_u32 v%d, s%d, v%d' % (XA + s, sOD, XA + s, XA + s, sMX, XA + s))
        e.I('v_add_u32 v%d, %d, v%d' % (XA + 2 + s, WIN, XA + s))
        if cfg.ahead:
            e.I('v_add_u32 v%d, %d, v%d' % (XA + 4 + s, 2 * WIN, XA + s))
    e.I('v_lshlrev_b32 v11, 2, v0\nv_add_u32 v11, %d, v11\nv_mov_b32 v12, 0' % L_FL)
    e.I('ds_write_b32 v11, v12', tag='init')

    def setup_a():
        if cfg.slim:
            tile_ids(e, cfg, True)
        mk_srd(e, SWS, P_WS, WS_SIZE)
        mk_srd(e, SWD, P_WD, 1376 * 1024)
        e.I('s_cmp_ge_u32 s%d, 2' % sW)
        mk_srd_sel(e, SW, P_WU, P_WG, 512 * 2752)
        w_tr_addr(e, WA, 13, 14)
        e.I('v_lshlrev_b32 v1, 4, v0')

    def setup_b():
        w_lane_offsets(e, cfg, WV, 13, 14)
    if not cfg.defer:
        setup_a()
        setup_b()

    sDC, sDB, sDE, sAC, sAB, sAE = 86, 87, 88, 89, 90, 91
    sD0, sF0, sD2, sF2 = T2, T3, T4, T5
    st(e, '_pro')
    run(s1[cfg.s1a:])
    st(e, '_dma1')
    ldq = [f for i in range(2, 8) for f in dma_S(i)] + dma_W(e, WV, SW, 0) + dma_W(e, WV, SW, 1)
    lpos = [0]

    def upto(n):
        run(ldq[lpos[0]:n])
        lpos[0] = max(lpos[0], n)
    upto(cfg.ahead)
    e.wait(vm=('st', 0))
    st(e, '_sa0')
    e.I('s_barrier')
    st(e, 'b0')
    for i in range(8):
        if i == 1:
            e.I('s_mov_b32 s%d, 0x%x' % (T0, EPOCH_OFF))
            e.I('buffer_load_dword v%d, off, %s, s%d sc1' % (EP, srd(SWS), T0), tag='ep')
        upto(6 * (i + 1) + (cfg.ahead if i < 5 else cfg.aheadW[i - 5] if i < 7 and cfg.ahead else 0))
        for s in range(4):
            slot = s_slot(i)
            e.I('ds_read_b128 %s, v%d offset:%d' % (vr(128 + 4 * (4 * i + s), 4), XA + 2 * (slot >> 1) + (s >> 1), (slot & 1) * SLOT + (s & 1) * 2048), tag='x')
        if cfg.defer and i == 0:
            setup_a()
        if cfg.defer and i == 1:
            setup_b()
        if i == 4:
            e.wait(vm='ep')
            e.I('v_readfirstlane_b32 s%d, v%d' % (sNONCE, EP))
            e.I('s_add_u32 s%d, s%d, 0x%x\ns_or_b32 s%d, s%d, 1' % (sNONCE, sNONCE, PHI, sNONCE, sNONCE))
            e.I('s_mov_b32 s%d, 0x%x\ns_mov_b32 s%d, 0x%x' % (sNL2E, NLOG2E, sNL2E + 1, NLOG2E))
        if i == 2:
            step_start(e, cfg, sAC, sAB, sAE, 11)
        if i == 3:
            for k in range(3):
                e.I('s_lshl_b32 s%d, s%d, 4' % (sDC + k, sAC + k))
            for n in range(1, NPRE):
                wd_next(e, n, sDC, sDB, sDE)
        if i == 5:
            act_offsets(e, 0, sD0, sF0)
        if i == 6:
            e.I('s_add_u32 s%d, s%d, 4096' % (sD2, sD0))
            light_scc(e)
            e.I('s_cselect_b32 s%d, 0x%x, s%d' % (sD2, OOB, sD2))
            e.I('v_mov_b32 v7, %d\nv_mov_b32 v6, 1' % L_FL)
        if i < 7:
            e.wait(vm=('st', i + 1), lg='all')
            st(e, '_sa%d' % (i + 1))
            e.I('s_barrier')
            st(e, '_sd%d' % (i + 1))
            if i == 0:
                st(e, 'b1')
    NT = cfg.NT
    ops = []
    CH = 'F' in cfg.chain
    sm = [(s, mf) for mf in range(4) for s in range(2)] if CH else [(s, mf) for s in range(2) for mf in range(4)]
    for j in range(8 - NT):
        if CH:
            ops += [(j, s, g, mf) for g in range(3) for s, mf in sm]
        else:
            ops += [(j, s, g, mf) for s in range(2) for g in range(3) for mf in range(4)]
    tail0 = len(ops)
    for g in range(3):
        for j in range(8 - NT, 8):
            ops += [(j, s, g, mf) for s, mf in sm]
    NB, LA = 6, cfg.LA
    first = {j: min(q for q in range(len(ops)) if ops[q][0] == j) for j in range(8)}
    last = {j: max(q for q in range(len(ops)) if ops[q][0] == j) for j in range(8)}

    def rd(q, half):
        if q >= len(ops):
            return
        j, s, g, mf = ops[q]
        if q == first[j] and j <= cfg.JL and half == 0:
            e.wait(vm=('st', 8 + j), lg='all' if j in cfg.drain else 'x')
            st(e, '_a%d' % j)
            e.I('s_barrier')
            st(e, '_d%d' % j)
            if j in (0, 4, cfg.JL):
                st(e, 'b%d' % (8 + j))
            if j == 0 and cfg.prioB != cfg.prioS:
                e.I('s_setprio %d' % cfg.prioB)
        w_frag_read(e, 8 + 4 * (q % NB), WA, j, s, g, mf >> 1, mf & 1, half, ('wf', q))
        if q == last[7] and half == 1:
            cnt_add(e, 7, 6, C_CONS + 28)

    started = set()

    def mm(q, a):
        j, s, g, mf = ops[q]
        if a == 0 and q % 2 == 0:
            e.wait(lg=('wf', q + 1))
        t = a ^ (q & 1) if cfg.snake else a
        qq = q
        if CH:
            assert LA == 4
            i = 2 * (q & 1) + a
            qq = (q & ~1) + (1 if i in (1, 2) else 0)
            t = (i >> 1) ^ ((q >> 1) & 1)
            s = ops[qq][1]
        acc = 32 + 32 * g + 16 * (mf >> 1) + 8 * t + 4 * (mf & 1)
        mfma16(e, acc, 8 + 4 * (qq % NB), 128 + 16 * j + 8 * s + 4 * t, acc not in started)
        started.add(acc)
        rd(q + LA, a)

    def act_store(k, ms=(0, 1)):
        for m in ms:
            e.I('buffer_store_dwordx4 %s, v1, %s, s%d offen offset:%d sc1' %
                (vr(136 + 8 * k + 4 * m, 4), srd(SWS), sD2 if k == 2 else sD0, 1024 * m + (2048 if k == 1 else 0)), tag=('as', k))

    def with_stores(its, k):
        if not cfg.asplit:
            return its + [lambda: act_store(k)]
        h = len(its) // 2
        return its[:h] + [lambda: act_store(k, (0,))] + its[h:] + [lambda: act_store(k, (1,))]

    def act_flag():
        e.wait(vm=[('as', k) for k in range(3)])
        flag_store(e, EP, sF0)

    for q in range(LA):
        rd(q, 0)
        rd(q, 1)
    per = 8 * NT
    for q in range(tail0 + per):
        mm(q, 0)
        mm(q, 1)
    if cfg.prioT:
        e.I('s_setprio %d' % cfg.prioT)
    if NT:
        for g in (1, 2):
            main = [lambda q=q, a=a: mm(q, a) for q in range(tail0 + g * per, tail0 + (g + 1) * per) for a in range(2)]
            fill = with_stores(act_items_scalar(e, cfg, 32 * g, 32 * g + 16, 128, 136 + 8 * (g - 1)), g - 1)
            run(main[:3] + weave(main[3:], fill))
        st(e, 'f1end')
        run(with_stores(act_items(e, cfg, 96, 112, 128, 152), 2))
    else:
        st(e, 'f1end')
        for g in range(3):
            run(with_stores(act_items(e, cfg, 32 + 32 * g, 48 + 32 * g, 128, 136 + 8 * g), g))
    if cfg.prioD[0] != (cfg.prioT or cfg.prioB):
        e.I('s_setprio %d' % cfg.prioD[0])
    st(e, 'actst')
    jitter(e, cfg, 2)
    DA, AV, PW, WDV, EP = 2, 14, 16, 18, 23
    e.I('v_mov_b32 v%d, s%d' % (EP, sNONCE))
    e.I(wd_lane_offsets(e, WDV, 20, 21))
    e.I('v_mov_b32 v22, %d' % L_FL)
    cnt_spin(e, 'L_spinB', 22, 24, C_CONS + 28)
    st(e, 'ldsfree')

    def dma_D(n):
        sl, pos = RING[n]
        if n in PREV:
            e.wait(lg=('wr', PREV[n]))
        set_m0(e, sMW, sl * SLOT + pos * 2048)
        if n:
            wd_next(e, n, sDC, sDB, sDE)
        for q in range(2):
            e.I('buffer_load_dwordx4 v%d, %s, s%d offen offset:%d %slds' % ((WDV + q, srd(SWD), sDC, 1024 * q) + (ntf('d', n),)), tag=('wd', n))

    def wd_reg(n2):
        return 128 + 16 * n2 if n2 < 5 else 32 + 16 * (n2 - 5) if n2 < 7 else 128 + 16 * (n2 - 7)

    def wd_read(n, dqs=range(4)):
        sl, pos = RING[n]
        e.wait(vm=('wd', n))
        for dq in dqs:
            e.I('ds_read_b64_tr_b16 %s, v%d offset:%d' % (vr(wd_reg(n >> 1) + 4 * dq + 2 * (n & 1), 2), DA + 4 * (sl >> 1) + dq,
                                                         (sl & 1) * SLOT + pos * 2048), tag=('wr', n))

    def setup2():
        e.I('v_lshrrev_b32 v20, 2, v0\nv_lshlrev_b32 v20, 7, v20\nv_bfe_u32 v21, v0, 3, 2\nv_lshl_add_u32 v20, v21, 5, v20')
        e.I('v_and_b32 v21, 3, v0\nv_lshl_add_u32 v20, v21, 3, v20\nv_add_u32 v%d, s%d, v20' % (DA, sMW))
        for dq in range(1, 4):
            e.I('v_xor_b32 v%d, %d, v%d' % (DA + dq, 32 * dq, DA))
        for k in (1, 2):
            for dq in range(4):
                e.I('v_add_u32 v%d, %d, v%d' % (DA + 4 * k + dq, k * WIN, DA + dq))
        e.I('s_mul_i32 s%d, s%d, %d' % (T0, sRT, 2 * 88064))
        e.I('v_add_u32 v%d, s%d, v1\nv_add_u32 v%d, 88064, v%d' % (AV, T0, AV + 1, AV))
        e.I('s_lshl2_add_u32 s%d, s%d, s%d\ns_mul_i32 s%d, s%d, %d\ns_add_u32 s%d, s%d, 0x%x' % (T0, sRT, sW, T0, T0, 8 * FS, T0, T0, AF_OFF))
        e.I('v_mul_u32_u24 v20, %d, v0' % FS)

    for n in range(NPRE, 11):
        if min(cfg.flagpos + NPRE, 10) == n:
            setup2()
        if cfg.flagpos + NPRE == n:
            act_flag()
            st(e, 'flagged')
        if cfg.ybar and n == cfg.ypos:
            e.I('s_barrier')
        if n < 10:
            dma_D(n)
    st(e, '_d9')
    if not cfg.ybar:
        cnt_spin(e, 'L_spinB2', 22, 24, C_DONEA)
    if cfg.prioD[1] != cfg.prioD[0]:
        e.I('s_setprio %d' % cfg.prioD[1])
    st(e, '_da')
    jitter(e, cfg, 3)
    pulled = [0]

    def d_step(n):
        if cfg.flagpos + NPRE == n and n > 10:
            assert n < min(cfg.alook, -cfg.posXB)
            act_flag()
            st(e, 'flagged')
        if n < 10 + cfg.NA:
            wd_next(e, n, sDC, sDB, sDE)
        else:
            dma_D(n)
        while pulled[0] < min(14, 3 * (n - 9), n - 3):
            wd_read(pulled[0])
            pulled[0] += 1
        if n == 14:
            e.wait(lg=('wr', 9))
            set_m0(e, sMW, L_P2)
            e.I('s_mov_b64 exec, 1')
            e.I('buffer_load_dword off, %s, s%d lds' % (srd(SWD), SWD + 2), tag='init')
            e.I('s_mov_b64 exec, -1')
        if n == -cfg.posXB:
            bar_X()

    def bar_X():
        assert pulled[0] >= 12
        e.wait(vm='init', lg=('wr', 11))
        st(e, '_aX')
        e.I('s_barrier')

    for n in range(10, cfg.alook):
        d_step(n)
    st(e, 'wdiss')
    nd = cfg.alook + cfg.abet
    poll(e, 'L_pollA', 21, 20, T0, '0xff', lambda: [d_step(n) for n in range(cfg.alook, nd)])
    st(e, 'actrdy')
    jitter(e, cfg, 4)
    if cfg.prioF2n < 0:
        e.I('s_setprio %d' % cfg.prioF2)
    elif cfg.prioD[1]:
        e.I('s_setprio 0')

    TL = cfg.TL
    sSV = 92
    NM = 11 - TL

    def sets(lo, hi):
        st_ = 2 if 'D' in cfg.chain else 1
        return [tuple(range(n, min(n + st_, hi))) for n in range(lo, hi, st_)]
    groups = [[(n2, t4) for n2 in ss] for ss in sets(0, NM) for t4 in range(4)] + [[(n2, t4) for n2 in ss] for t4 in range(4) for ss in sets(NM, 11)]
    order = [f for g in groups for f in g]

    def a_reg(n2, t4):
        i = order.index((n2, t4)) % cfg.RB
        return 208 + 4 * i if i < 12 else 24 + 4 * (i - 12)

    pend = []
    rq = []

    def flush(n=99):
        for t in pend[:n]:
            e.I(t)
        del pend[:n]

    def a_load(n2, t4):
        if t4 == 0:
            flush()
        so = sAC if n2 == 0 else sSV + n2 % 5
        e.I('buffer_load_dwordx4 %s, v%d, %s, s%d offen offset:%d sc1' % (vr(a_reg(n2, t4), 4), AV + (t4 >> 1), srd(SWS), so, 1024 * (t4 & 1)),
            tag=('a', n2, t4))
        if n2 < 10 and t4 == 0:
            dst = sSV + (n2 + 1) % 5
            pend.append('s_add_u32 s%d, s%d, 2048' % (dst, so))
            pend.append('s_cmp_eq_u32 s%d, s%d\ns_cselect_b32 s%d, s%d, s%d' % (dst, sAE, dst, sAB, dst))
            if n2 == 9:
                pend.append('s_cmp_eq_u32 s%d, 3\ns_cselect_b32 s%d, 0x%x, s%d' % (sW, dst, OOB, dst))

    lq = []
    for k, t in enumerate(order):
        lq.append(('a', k))
        if k & 1 and nd < 22:
            lq.append(('d', nd))
            nd += 1
    dn = [cfg.alook + cfg.abet - 1]
    nis = [0]

    def issue(k, busy, most=99):
        while lq:
            t = lq[0]
            tag = ('a',) + order[k]
            nv = min(cfg.NV, cfg.NV0[0] + max(0, k - cfg.NV0[1]))
            if nis[0] > k and (len(e.vm) - 1 - e.vm.index(tag) >= nv - 1 if tag in e.vm else len(e.vm) >= nv):
                return
            if t[0] == 'a':
                if t[1] >= busy + cfg.RB:
                    return
                if most == 0:
                    return
                most -= 1
                a_load(*order[t[1]])
                nis[0] = t[1] + 1
            else:
                d_step(t[1])
                dn[0] = t[1]
            lq.pop(0)

    wq = []
    zq = [list(g) for g in cfg.zg]
    since = [0]

    def w_pop():
        t = wq.pop(0)
        if t is not None:
            t4, i = t
            assert not rq
            hi = 32768 if t4 == 3 else 0
            set_m0(e, sMW, hi)
            e.I('ds_write_addtid_b32 v%d offset:%d' % (acc2(t4, 0) + i, t4 * SLOT - hi + 256 * i), tag=('pw', t4))
            if i == 15 and t4 == zq[0][-1]:
                since[0] = cfg.zlag + 1
        if since[0]:
            since[0] -= 1
            if since[0] == 0:
                z_bar()

    def z_bar():
        e.wait(lg=('pw', zq.pop(0)[-1]))
        e.I('s_barrier')

    begun = set()

    def mm2(grp):
        k = order.index(grp[0])
        kn = k + len(grp)
        t4 = grp[0][1]
        if k == 0:
            issue(kn - 1, k)
        while rq and rq[0][0] >> 1 <= (max(f[0] for f in order[kn:kn + 2]) if kn + 1 < 4 * NM + TL else 99):
            t = rq.pop(0)
            wd_read(t[0], [t[1]])
        e.wait(vm=[('a',) + f for f in grp], lg=[('wr', 2 * f[0] + 1) for f in grp])
        slots = [(f, dq) for dq in range(4) for f in (grp if dq % 2 == 0 else grp[::-1])]
        for i, ((n2, _), dq) in enumerate(slots):
            d = 3 - dq if cfg.snake and n2 < NM and t4 & 1 else dq
            mfma16(e, acc2(t4, d), a_reg(n2, t4), wd_reg(n2) + 4 * d, acc2(t4, d) not in begun)
            begun.add(acc2(t4, d))
            if i % 4 == 0 and lq:
                issue(min(kn + i // 4, 43), k, 1 if k else 99)
            elif pend and i < len(slots) - 1:
                flush(1)
            elif rq and i < len(slots) - 1:
                t = rq.pop(0)
                wd_read(t[0], [t[1]])
            elif wq:
                w_pop()
        if grp[-1][0] == 10:
            if t4 == 0:
                wq.extend([None, None])
            wq.extend((t4, i) for i in range(16))

    assert cfg.pull0 + 4 <= NM and TL <= 4
    nxt = 7
    for grp in groups:
        n2, t4 = grp[-1]
        if t4 == 0 and n2 < NM:
            st(e, '_n%d' % grp[0][0])
            if grp[0][0] == cfg.prioF2n:
                e.I('s_setprio %d' % cfg.prioF2)
            while pulled[0] <= min(2 * n2 + 5, 13):
                assert dn[0] >= pulled[0]
                wd_read(pulled[0])
                pulled[0] += 1
            if grp[0][0] == cfg.posXB:
                bar_X()
        mm2(grp)
        if t4 == 3 and n2 < NM:
            while nxt <= 10 and nxt - 7 + cfg.pull0 <= n2:
                assert dn[0] >= 2 * nxt + 1
                rq.extend((2 * nxt + hf, dq) for hf in range(2) for dq in range(4))
                nxt += 1
    assert nxt == 11 and not lq
    if cfg.prioF2:
        e.I('s_setprio 0')
    st(e, 'f2end')
    jitter(e, cfg, 5)
    while wq:
        w_pop()
    while zq:
        z_bar()
    st(e, 'end')
    st.flush(e)
    e.I('s_endpgm')


def gen_A(e, cfg, st):
    LR, LI, L16, L128, L256, L16S, KAP, WV = 48, 49, 50, 52, 54, 56, 58, 60
    PP, L512 = 32, 34
    assert not cfg.lag and 'e0' not in cfg.prog and cfg.glds
    SIDX = 3
    RE, IM = 64, 80
    XA, BA = 192, 204
    CV, CA, CA4, WDV = 96, 100, 104, 108
    EV0, EV1, EOOB, ERD, ECNT, EEXP, ONE, FLA, XW, XR, P16 = range(110, 121)
    SEL = 216
    RINGX, RINGB = 128, 224
    sHD, sHF, sES, sEL, sROT, sDTX = 86, 87, 90, 91, 92, 80
    sDC, sDB, sDE = 93, 94, 95
    if cfg.slim:
        tile_ids(e, cfg, False)
    e.I('v_lshlrev_b32 v1, 4, v0')
    e.I('v_and_b32 v21, 3, v0\nv_bfe_u32 v22, v0, 2, 1\nv_lshl_add_u32 v21, v22, 3, v21\nv_bfe_u32 v22, v0, 3, 1\nv_lshl_add_u32 v21, v22, 2, v21')
    sSH, sTH = 81, 96
    e.I('s_and_b32 s%d, s%d, 1\ns_lshr_b32 s%d, s%d, 1' % (sSH, sW, sTH, sW))
    e.I('s_lshl1_add_u32 s%d, s%d, s%d\ns_lshl_b32 s%d, s%d, 5' % (T0, sCB, sSH, T0, T0))
    e.I('v_lshl_add_u32 v21, v21, 1, s%d' % T0)
    e.I('s_lshl_b32 s%d, s%d, 2\ns_add_u32 s%d, s%d, s%d\ns_lshl_b32 s%d, s%d, 4\ns_add_u32 s%d, s%d, s%d' %
        (T3, sRB, T3, T3, sW, T3, T3, T3, T3, sCB))
    e.I('s_lshl_b32 s%d, s%d, 11' % (T2, T3))
    frag16_addr(e, BA, 4, 5)
    def karg_block():
        e.wait_smem()
        st(e, '_karg')
        mk_srd(e, SX, P_X, 2048 * 1024)
        mk_srd(e, SWS, P_WS, WS_SIZE)
        if cfg.skew:
            e.I('s_lshl_b32 s%d, s2, 7\ns_add_u32 s%d, s%d, 0x%x\nv_mov_b32 v20, s38' % (T4, T4, T4, STAMP_OFF))
            flag_store(e, 20, T4)
        e.I('s_mov_b32 s%d, 0x%x\ns_lshl_b32 s%d, s%d, 6' % (T4, EPOCH_OFF, T0, sCB))
        e.I('s_lshl_b32 s%d, s%d, 6\ns_add_u32 s%d, s%d, s%d' % (T1, sSH, T1, T1, T4))
        e.I('s_load_dword s3, s[%d:%d], s%d' % (P_WS, P_WS + 1, T1))
        for p in (P_LRE, P_LIM, P_LDT):
            e.I('s_load_dword s3, s[%d:%d], s%d' % (p, p + 1, T0))
        e.I('s_lshr_b32 s%d, s2, 3\ns_lshl_b32 s%d, s%d, 2\ns_add_u32 s%d, s%d, s%d\ns_and_b32 s%d, s%d, 15\ns_lshl_b32 s%d, s%d, 6' %
            (T0, T0, T0, T0, T0, sW, T0, T0, T0, T0))
        for p in (P_GW, P_DSK):
            e.I('s_load_dword s3, s[%d:%d], s%d' % (p, p + 1, T0))
        if cfg.ftouch:
            e.I('s_lshl1_add_u32 s%d, s2, s%d\ns_min_u32 s%d, s%d, 383\ns_lshl_b32 s%d, s%d, 6\ns_add_u32 s%d, s%d, 0x%x' %
                (T0, sSH, T0, T0, T0, T0, T0, T0, G_OFF))
            e.I('s_load_dword s3, s[%d:%d], s%d' % (P_WS, P_WS + 1, T0))
        if 's' in cfg.prewarm:
            code_touch(e, 'A')

    if not cfg.apre:
        karg_block()

    def small0():
        e.I('buffer_load_dword v19, off, %s, s%d sc1' % (srd(SWS), T4), tag='ep')
        e.I('global_load_ushort v16, v21, s[%d:%d]' % (P_LRE, P_LRE + 1), tag='par')
        e.I('global_load_ushort v17, v21, s[%d:%d]' % (P_LIM, P_LIM + 1), tag='par')
        e.I('global_load_ushort v18, v21, s[%d:%d]' % (P_LDT, P_LDT + 1), tag='par')

    small1 = [lambda: e.I('global_load_dwordx4 v[44:47], v1, s[%d:%d]' % (P_GW, P_GW + 1), tag='g'),
              lambda: e.I('buffer_load_dwordx4 v[36:39], v1, %s, s%d offen' % (srd(SX), T2), tag='g'),
              lambda: e.I('buffer_load_dwordx4 v[40:43], v1, %s, s%d offen offset:1024' % (srd(SX), T2), tag='g')]
    e.I('s_lshl_b32 s%d, s%d, 3\ns_add_u32 s%d, s%d, 0x%x' % (T6, T3, T6, T6, G_OFF))
    GA, GW0, GO = 121, 124, 126
    if cfg.glds:
        small1 = [lambda: e.I('global_load_dwordx4 v[44:47], v%d, s[%d:%d]' % (GW0, P_GW, P_GW + 1), tag='g'),
                  lambda: e.I('global_load_dwordx4 v[192:195], v%d, s[%d:%d]' % (GW0 + 1, P_GW, P_GW + 1), tag='g')]
        e.I('s_bfe_u32 s%d, s%d, 0x20001\ns_lshl_b32 s%d, s%d, 2\ns_lshr_b32 s%d, s%d, 3\ns_lshl_b32 s%d, s%d, 1\ns_add_u32 s%d, s%d, s%d' %
            (T0, sCB, T0, T0, T1, sCB, T1, T1, T0, T0, T1))
        e.I('s_and_b32 s%d, s%d, 1\ns_add_u32 s%d, s%d, s%d' % (T1, sCB, T0, T0, T1))
        e.I('s_and_b32 s%d, s%d, 7\ns_lshl_b32 s%d, s%d, 8\ns_lshl_b32 s%d, s%d, 12\ns_add_u32 s%d, s%d, s%d' % (T1, T0, T0, T0, T2, sW, T0, T0, T2))
        e.I('s_lshl_b32 s%d, s%d, 2\ns_xor_b32 s%d, s%d, s%d' % (T2, sSH, T1, T1, T2))
        e.I('v_and_b32 v4, 15, v0\nv_xor_b32 v4, s%d, v4\nv_lshl_add_u32 v%d, v4, 4, s%d' % (T1, GA, T0))
        e.I('v_add_u32 v%d, %d, v%d\nv_add_u32 v%d, %d, v%d' % (GA + 1, WIN, GA, GA + 2, 2 * WIN, GA))
        e.I('v_lshrrev_b32 v4, 4, v0\nv_add_u32 v4, s%d, v4\nv_and_b32 v4, 7, v4\nv_and_b32 v5, 7, v0\nv_lshlrev_b32 v5, 4, v5' % sK0)
        e.I('v_lshl_add_u32 v%d, v4, 7, v5\nv_xor_b32 v%d, 0x200, v%d' % (GW0, GW0 + 1, GW0))
        e.I('v_bfe_u32 v4, v0, 3, 1\nv_lshlrev_b32 v%d, 2, v4' % GO)

    e.I('v_bfe_u32 v4, v0, 3, 1\nv_and_b32 v5, 3, v0\nv_lshl_add_u32 v4, v4, 2, v5')
    e.I('v_lshrrev_b32 v5, 1, v4\nv_lshrrev_b32 v6, 4, v0\nv_xor_b32 v5, v5, v6\nv_and_b32 v6, 4, v0\nv_xor_b32 v5, v5, v6')
    e.I('s_lshl_b32 s%d, s%d, 13\ns_lshl_b32 s%d, s%d, 11' % (T0, sTH, T1, sSH))
    e.I('v_lshl_add_u32 v4, v4, 7, s%d\nv_lshl_add_u32 v4, v6, 10, v4\nv_lshl_add_u32 v%d, v5, 4, v4' % (T0, XA))
    e.I('v_xor_b32 v%d, 64, v%d' % (XA + 1, XA))
    for s in range(2):
        e.I('v_add_u32 v%d, s%d, v%d' % (BA + s, T1, BA + s))
        e.I('v_add_u32 v%d, %d, v%d\nv_add_u32 v%d, %d, v%d' % (XA + 2 + s, WIN, XA + s, BA + 2 + s, WIN, BA + s))
        if cfg.ahead:
            e.I('v_add_u32 v%d, %d, v%d\nv_add_u32 v%d, %d, v%d' % (XA + 4 + s, 2 * WIN, XA + s, BA + 4 + s, 2 * WIN, BA + s))
    w_lane_offsets(e, cfg, WV, 24, 25)
    e.I('v_lshrrev_b32 v24, 5, v0\nv_bfe_u32 v25, v0, 4, 1\nv_lshl_add_u32 v24, v25, 1, v24\ns_lshl_b32 s%d, s%d, 2' % (T0, sTH))
    e.I('v_add_u32 v%d, s%d, v24' % (SIDX, T0))
    if cfg.apre:
        karg_block()
    rot2_calc(e, cfg, sROT, 0, cfg.rxC)
    if cfg.rotS:
        e.I('s_and_b32 s%d, s%d, %d\ns_lshl_b32 s%d, s%d, %d\ns_xor_b32 s%d, s%d, s%d' % (T0, sCT, cfg.rotS[0], T0, T0, cfg.rotS[1], sROT, sROT, T0))
    e.I('s_and_b32 s%d, s%d, 1\ns_lshr_b32 s%d, s%d, 1' % (sDTX, sROT, sROT, sROT))
    e.I('s_bitcmp1_b32 s%d, 0' % sROT)
    mk_srd_sel(e, SC1, P_CIM, P_CRE, 512 * 1024)
    mk_srd_sel(e, SC2, P_CRE, P_CIM, 512 * 1024)
    mk_srd(e, SWD, P_WD, 1376 * 1024)
    step_start(e, cfg, sDC, sDB, sDE, 15)
    e.I('s_cmp_ge_u32 s%d, 2' % sW)
    mk_srd_sel(e, SWA, P_WU, P_WG, 512 * 2752)
    e.I('s_lshl_b32 s%d, s%d, 2\ns_add_u32 s%d, s%d, s%d' % (T0, sRB, T0, T0, sW))
    HW_ = 16384 + cfg.hpad[0]
    HT_ = 4 * HW_ + cfg.hpad[1]
    assert H_OFF + 64 * HT_ <= E_OFF
    e.I('s_mul_i32 s%d, s%d, %d\ns_lshr_b32 s%d, s%d, 1\ns_lshl_b32 s%d, s%d, 13\ns_add_u32 s%d, s%d, s%d' %
        (sHD, T0, HT_, T1, sCB, T1, T1, sHD, sHD, T1))
    e.I('s_mul_i32 s%d, s%d, %d\ns_sub_u32 s%d, s%d, s%d' % (T1, sSH, HT_ - 512, sHD, sHD, T1))
    e.I('s_lshr_b32 s%d, s%d, 2\ns_mul_i32 s%d, s%d, %d\ns_add_u32 s%d, s%d, s%d' % (T1, sCB, T1, T1, cfg.hpad[0], sHD, sHD, T1))
    e.I('s_and_b32 s%d, s%d, 1\ns_lshl_b32 s%d, s%d, 11\ns_add_u32 s%d, s%d, s%d\ns_add_u32 s%d, s%d, 0x%x' %
        (T1, sCB, T1, T1, sHD, sHD, T1, sHD, sHD, H_OFF))
    e.I('s_lshr_b32 s%d, s%d, 1\ns_lshl_b32 s%d, s%d, 4\ns_add_u32 s%d, s%d, s%d\ns_lshl_b32 s%d, s%d, 1' %
        (T1, T0, T1, T1, T1, T1, sCB, T1, T1))
    e.I('s_and_b32 s%d, s%d, 1\ns_add_u32 s%d, s%d, s%d\ns_mul_i32 s%d, s%d, %d\ns_add_u32 s%d, s%d, 0x%x' %
        (T0, T0, T1, T1, T0, T1, T1, FS, sHF, T1, HF_OFF))
    e.I('s_lshl_b32 s%d, s%d, 13\ns_add_u32 s%d, s%d, 0x%x' % (sEL, sCB, sEL, sEL, E_OFF))
    e.I('s_lshl_b32 s%d, s%d, 9\ns_add_u32 s%d, s%d, s%d\ns_cmp_eq_u32 s%d, 0\ns_cselect_b32 s%d, s%d, 0x%x' %
        (sES, sRB, sES, sES, sEL, sTH, sES, sES, OOB))
    e.I('s_sub_u32 s%d, s%d, 1024' % (sEL, sEL))

    tch = Touch(e, cfg, 'A')
    tch.setup()
    tch.at(-1)

    e.I('s_lshl_b32 s%d, s%d, 4' % (T0, sSH))
    e.I('v_and_b32 v6, 15, v0\nv_add_u32 v6, s%d, v6\nv_lshlrev_b32 v%d, 4, v6\nv_lshlrev_b32 v6, 3, v6\nv_add_u32 v%d, %d, v6' % (T0, P16, XR, L_E))
    e.I('v_lshl_add_u32 v%d, v%d, 8, v%d' % (XW, SIDX, XR))
    e.I('v_and_b32 v4, 3, v0\nv_bfe_u32 v5, v0, 3, 2\nv_lshl_add_u32 v4, v5, 2, v4')
    e.I('v_bfe_u32 v5, v0, 2, 1\nv_lshrrev_b32 v6, 5, v0\nv_xor_b32 v5, v5, v6\nv_lshl_add_u32 v4, v5, 4, v4')
    e.I('v_and_b32 v5, 1, v0\nv_lshlrev_b32 v5, 4, v5\nv_mov_b32 v6, 0x3f80\nv_lshlrev_b32 v5, v5, v6\nv_lshrrev_b32 v4, 1, v4')
    for n in range(8):
        e.I('v_cmp_eq_u32 vcc, %d, v4\nv_cndmask_b32 v%d, 0, v5, vcc' % (n, SEL + n))
    e.I('v_and_b32 v6, 7, v0\nv_lshrrev_b32 v7, 4, v0\nv_xor_b32 v6, v6, v7\nv_lshlrev_b32 v6, 4, v6')
    e.I('v_lshrrev_b32 v7, 3, v0\nv_lshl_add_u32 v6, v7, 10, v6')
    e.I('s_lshl_b32 s%d, s%d, 16\ns_lshl_b32 s%d, s%d, 8\ns_add_u32 s%d, s%d, s%d' % (T0, sCT, T1, sW, T0, T0, T1))
    e.I('v_add_u32 v%d, s%d, v6\nv_xor_b32 v7, 64, v%d' % (CV, T0, CV))
    e.I('v_add_u32 v%d, 7168, v7\nv_add_u32 v%d, 14336, v%d\nv_add_u32 v%d, 21504, v7' % (CV + 1, CV + 2, CV, CV + 3))
    frag16_addr(e, CA, 6, 7)
    for s in range(2):
        e.I('v_add_u32 v%d, s%d, v%d' % (CA + s, sMW, CA + s))
        e.I('v_add_u32 v%d, %d, v%d' % (CA4 + s, 4 * SLOT, CA + s))
    HS = CA + 2
    e.I('v_and_b32 v6, 15, v0\nv_lshlrev_b32 v6, 4, v6\nv_bfe_u32 v7, v0, 4, 1\nv_lshl_add_u32 v6, v7, 10, v6')
    e.I('v_lshrrev_b32 v7, 5, v0\nv_lshl_add_u32 v%d, v7, 8, v6' % HS)
    e.I('s_lshr_b32 s88, s%d, 1\ns_lshl_b32 s88, s88, 7\ns_lshl_b32 s89, s%d, 15\ns_add_u32 s88, s88, s89\ns_xor_b32 s89, s88, 128' % (sROT, sDTX))
    e.I(wd_lane_offsets(e, WDV, 6, 7))
    e.I('s_lshl_b32 s%d, s%d, 2\ns_sub_u32 s%d, s%d, s%d\ns_sub_u32 s%d, s%d, 1\ns_lshl_b32 s%d, s%d, 11' % (T0, sW, T0, sRB, T0, T0, T0, T5, sW))
    e.I('v_lshrrev_b32 v6, 5, v0\nv_sub_u32 v7, s%d, v6' % T0)
    e.I('v_cmp_le_i32 vcc, 0, v7\nv_cmp_le_i32 s[%d:%d], 2, v7' % (sMB, sMB + 1))
    e.I('v_and_b32 v4, 0x1f0, v1')
    e.I('v_lshl_add_u32 v7, v7, 9, v4\nv_add_u32 v7, 1024, v7\nv_subrev_u32 v5, 2048, v7\nv_mov_b32 v%d, 0x%x' % (EOOB, OOB))
    e.I('v_cndmask_b32 v%d, v%d, v7, vcc\nv_cndmask_b32 v%d, v%d, v5, s[%d:%d]' % (EV0, EOOB, EV1, EOOB, sMB, sMB + 1))
    e.I('v_lshrrev_b32 v6, 4, v0\nv_lshl_add_u32 v7, v6, 11, v%d\nv_add_u32 v%d, %d, v7' % (P16, ERD, L_EG))
    e.I('v_lshlrev_b32 v6, 2, v6\nv_sub_u32 v%d, s%d, v6\nv_med3_i32 v%d, v%d, 0, 4' % (ECNT, sRB, EEXP, ECNT))
    e.I('v_mov_b32 v%d, 1\nv_mov_b32 v%d, %d' % (ONE, FLA, L_FL))

    pro = []
    add = lambda t: [pro.append(lambda x=x: e.I(x)) for x in t.split('\n')]

    def csq(d, a):
        add('v_mul_f32 v30, v%d, v%d\nv_mul_f32 v31, v%d, v%d\nv_fma_f32 v%d, -v%d, v%d, v30\nv_add_f32 v%d, v31, v31' %
            (a, a, a, a + 1, d, a + 1, a + 1, d + 1))

    def cmul(d, a, b):
        add('v_mul_f32 v30, v%d, v%d\nv_mul_f32 v31, v%d, v%d\nv_fma_f32 v30, -v%d, v%d, v30\nv_fma_f32 v%d, v%d, v%d, v31\nv_mov_b32 v%d, v30' %
            (a, b, a, b + 1, a + 1, b + 1, d + 1, a + 1, b, d))

    pro.append(lambda: e.wait(vm=['ep', 'par']))
    add('v_readfirstlane_b32 s%d, v19' % sNONCE)
    add('v_lshlrev_b32 v16, 16, v16\nv_lshlrev_b32 v17, 16, v17\nv_lshlrev_b32 v18, 16, v18')
    add('s_add_u32 s%d, s%d, 0x%x\ns_or_b32 s%d, s%d, 1' % (sNONCE, sNONCE, PHI, sNONCE, sNONCE))
    add('v_mul_f32 v18, 0x%x, v18\nv_exp_f32 v18, v18\nv_cvt_pk_bf16_f32 v18, v18, v18\nv_lshlrev_b32 v18, 16, v18' % LOG2E)
    add('v_mul_f32 v21, v18, v16\nv_mul_f32 v22, v18, v17')
    add('v_mul_f32 v21, 0x%x, v21\nv_exp_f32 v21, v21' % LOG2E)
    add('v_mul_f32 v22, 0.15915494, v22\nv_rndne_f32 v23, v22\nv_sub_f32 v22, v22, v23\nv_sin_f32 v23, v22\nv_cos_f32 v22, v22')
    add('v_mul_f32 v%d, v21, v23\nv_mul_f32 v%d, v21, v22' % (LI, LR))
    add('v_mul_f32 v21, v16, v16\nv_fmac_f32 v21, v17, v17\nv_rcp_f32 v21, v21\nv_add_f32 v22, -1.0, v%d\nv_add_f32 v21, v21, v21' % LR)
    add('v_mul_f32 v23, v22, v16\nv_fmac_f32 v23, v%d, v17\nv_mul_f32 v%d, v23, v21' % (LI, KAP))
    add('v_mul_f32 v23, v%d, v16\nv_fma_f32 v23, -v22, v17, v23\nv_mul_f32 v%d, v23, v21' % (LI, KAP + 1))
    csq(22, LR); csq(22, 22); csq(22, 22); csq(L16, 22)
    csq(22, L16); csq(24, 22); csq(L128, 24); csq(L256, L128); csq(L512, L256); csq(L256, L512)
    for bit, src, dst in ((1, L16, L16S), (2, 22, 22), (4, 24, 24)):
        add('v_and_b32 v26, %d, v%d\nv_cmp_ne_u32 vcc, 0, v26' % (bit, SIDX))
        add('v_cndmask_b32 v%d, 1.0, v%d, vcc\nv_cndmask_b32 v%d, 0, v%d, vcc' % (dst, src, dst + 1, src + 1))
    cmul(L16S, L16S, 22); cmul(L16S, L16S, 24)
    add('v_mul_lo_u32 v%d, v%d, s%d\nv_mov_b32 v2, s%d' % (EEXP, EEXP, sNONCE, sNONCE))
    EDIR = 'e0' in cfg.prog
    EVK = 132
    if EDIR:
        for k in range(8):
            add('v_subrev_u32 v%d, %d, v%d\nv_cmp_le_i32 vcc, 2, v%d\nv_lshl_add_u32 v%d, v%d, 9, v%d\nv_cndmask_b32 v%d, v%d, v%d, vcc' %
                (EVK + k, k - 1, ECNT, EVK + k, EVK + k, EVK + k, P16, EVK + k, EOOB, EVK + k))

    par, pro = pro, []
    pro.append(lambda: e.wait(vm='g'))
    if cfg.glds:
        for k in range(8):
            gw, x = (44 + k if k < 4 else 188 + k), 36 + k
            add('v_lshlrev_b32 v24, 16, v%d\nv_and_b32 v25, 0xffff0000, v%d' % (gw, gw))
            add('v_lshlrev_b32 v26, 16, v%d\nv_and_b32 v27, 0xffff0000, v%d' % (x, x))
            add('v_mul_f32 v26, v26, v24\nv_mul_f32 v27, v27, v25\nv_cvt_pk_bf16_f32 v26, v26, v27')
            if k == 0:
                add('v_lshlrev_b32 v28, 16, v26\nv_and_b32 v29, 0xffff0000, v26')
            else:
                add('v_lshlrev_b32 v27, 16, v26\nv_and_b32 v26, 0xffff0000, v26\nv_add_f32 v28, v28, v27\nv_add_f32 v29, v29, v26')
        add('v_add_f32 v28, v28, v29')
        for sh in (1, 2, 4):
            add('v_add_f32_dpp v28, v28, v28 row_shr:%d row_mask:0xf bank_mask:0xf' % sh)
        for wd in (32, 16):
            add('v_mov_b32 v29, v28\nv_permlane%d_swap_b32 v28, v29\nv_add_f32 v28, v28, v29' % wd)
        add('v_cvt_pk_bf16_f32 v28, v28, v28\nv_lshlrev_b32 v28, 16, v28\nv_mul_f32 v28, 0x%x, v28\nv_exp_f32 v28, v28' % NLOG2E)
        add('v_add_f32 v28, 1.0, v28\nv_rcp_f32 v28, v28\nv_cvt_pk_bf16_f32 v28, v28, v28\nv_lshlrev_b32 v28, 16, v28')
    else:
        for k in range(4):
            add('v_lshlrev_b32 v24, 16, v%d\nv_and_b32 v25, 0xffff0000, v%d' % (44 + k, 44 + k))
            for row in range(2):
                x = 36 + 4 * row + k
                add('v_lshlrev_b32 v26, 16, v%d\nv_and_b32 v27, 0xffff0000, v%d' % (x, x))
                add('v_mul_f32 v26, v26, v24\nv_mul_f32 v27, v27, v25\nv_cvt_pk_bf16_f32 v26, v26, v27')
                add('v_lshlrev_b32 v27, 16, v26\nv_and_b32 v26, 0xffff0000, v26')
                if k == 0:
                    add('v_add_f32 v%d, v26, v27' % (28 + row))
                else:
                    add('v_add_f32 v26, v26, v27\nv_add_f32 v%d, v%d, v26' % (28 + row, 28 + row))
        for mod in ('row_shr:1 row_mask:0xf', 'row_shr:2 row_mask:0xf', 'row_shr:4 row_mask:0xf', 'row_shr:8 row_mask:0xf',
                    'row_bcast:15 row_mask:0xa', 'row_bcast:31 row_mask:0xc'):
            for row in range(2):
                add('v_add_f32_dpp v%d, v%d, v%d %s bank_mask:0xf' % (28 + row, 28 + row, 28 + row, mod))
        add('v_cvt_pk_bf16_f32 v26, v28, v29\nv_lshlrev_b32 v28, 16, v26\nv_and_b32 v29, 0xffff0000, v26')
        add('v_mul_f32 v28, 0x%x, v28\nv_mul_f32 v29, 0x%x, v29\nv_exp_f32 v28, v28\nv_exp_f32 v29, v29' % (NLOG2E, NLOG2E))
        add('v_add_f32 v28, 1.0, v28\nv_add_f32 v29, 1.0, v29\nv_rcp_f32 v28, v28\nv_rcp_f32 v29, v29')
        add('v_cvt_pk_bf16_f32 v26, v28, v29\nv_lshlrev_b32 v28, 16, v26\nv_and_b32 v29, 0xffff0000, v26')
    gate, pro = pro, par

    gdone = []

    def g_store():
        gdone.append(1)
        if cfg.glds:
            e.I('s_mov_b64 exec, 0x8080')
            e.I('buffer_store_dword v28, v%d, %s, s%d offen sc1' % (GO, srd(SWS), T6), tag='gs')
            e.I('s_mov_b64 exec, -1')
            return
        e.I('s_mov_b32 exec_lo, 0\ns_mov_b32 exec_hi, 0x80000000')
        e.I('buffer_store_dwordx2 v[28:29], off, %s, s%d sc1' % (srd(SWS), T6), tag='gs')
        e.I('s_mov_b64 exec, -1')

    nbar = [0]

    def s_bar(i):
        assert nbar[0] == i
        nbar[0] += 1
        e.I('s_barrier')
        if i in (0, 7):
            st(e, 'b%d' % i)

    def s_read(n):
        i, s = n >> 2, n & 3
        slot = s_slot(i)
        off = (slot & 1) * SLOT
        bx, bb = RINGX + 8 * (n & 7), RINGB + 16 * (i & 1)
        its = []

        def rb_(s2, part, k):
            if s == 0:
                its.append(lambda: e.I('ds_read_b128 %s, v%d offset:%d' % (vr(bb + 8 * part + 4 * s2, 4), BA + 2 * (slot >> 1) + s2,
                                                                          off + 16384 + part * 4096), tag=('s', n, k)))
        for s2 in range(2):
            rb_(s2, 0, s2)
            its.append(lambda s2=s2: e.I('ds_read_b128 %s, v%d offset:%d' % (vr(bx + 4 * s2, 4), XA + 2 * (slot >> 1) + (s2 ^ (s & 1)), off + s * 1024),
                                         tag=('s', n, s2)))
        rb_(1, 1, 2)
        rb_(0, 1, 3)
        if s == 0:
            f0 = its[0]
            its[0] = lambda: (s_bar(i), f0())
        if s == 3:
            def gx():
                m = 0xffff << (16 * (i & 3))
                e.I('s_mov_b32 exec_lo, 0x%x\ns_mov_b32 exec_hi, 0x%x' % (m & 0xffffffff, m >> 32))
                e.I('ds_read_b128 %s, v%d offset:%d' % (vr(36 + 4 * (i >> 2), 4), GA + (slot >> 1), off), tag='gx')
                e.I('s_mov_b64 exec, -1')
            its.insert(0, gx)
        return its

    def s_mm(n, k):
        i, a_ = n >> 2, n & 3
        e.wait(lg=('s', n, k if a_ == 0 and i == 7 else k | 1))
        half = k >> 1
        part = half ^ (a_ & 1)
        s2 = (k & 1) ^ half
        mfma16(e, RE + 16 * part + 4 * a_, RINGX + 8 * (n & 7) + 4 * s2, RINGB + 16 * (i & 1) + 8 * part + 4 * s2, i == 0 and k & 1 == 0)

    p1 = []
    prev = (RE, IM)
    for r in range(1, 16):
        cur = (20 + 2 * (r & 1), 21 + 2 * (r & 1))
        for t in ('v_fma_f32 v%d, v%d, v%d, v%d' % (cur[0], LR, prev[0], RE + r), 'v_fma_f32 v%d, v%d, v%d, v%d' % (cur[1], LR, prev[1], IM + r),
                  'v_fma_f32 v%d, -v%d, v%d, v%d' % (cur[0], LI, prev[1], cur[0]), 'v_fmac_f32 v%d, v%d, v%d' % (cur[1], LI, prev[0])):
            p1.append(lambda t=t: e.I(t))
        prev = cur
    D = cfg.SD
    st(e, '_pro')
    for n in range(D):
        run(s_read(n))
    v0, v1 = 4 * (cfg.smallpos + 5), 4 * cfg.vend
    nv = 0
    for n in range(32):
        if n == cfg.smallpos:
            small0()
        rq_ = s_read(n + D) if n + D < 32 else []
        for k in range(4):
            s_mm(n, k)
            take = (len(rq_) + 3 - k) // (4 - k) if len(rq_) <= 4 - k else 2
            run(rq_[:take])
            del rq_[:take]
            g = 4 * n + k + 1
            want = len(pro) * min(max(g - v0, 0), v1 - v0) // (v1 - v0)
            if take < 2 or k == 3:
                run(pro[nv:want])
                nv = max(nv, want)
            if g > 128 - cfg.p1n:
                run(p1[:cfg.p1r])
                del p1[:cfg.p1r]
        assert not rq_
    assert nv == len(pro) and cfg.p1n <= 8
    assert nbar[0] == 8
    st(e, 's1end')
    jitter(e, cfg, 6)
    if cfg.prioA:
        e.I('s_setprio %d' % cfg.prioA)

    def items(txt):
        return [lambda t=t: e.I(t) for t in txt.split('\n')]

    def cfma(d, l, a, c):
        return items('v_fma_f32 v%d, v%d, v%d, v%d\nv_fma_f32 v%d, v%d, v%d, v%d\nv_fma_f32 v%d, -v%d, v%d, v%d\nv_fmac_f32 v%d, v%d, v%d' %
                     (d, l, a, c, d + 1, l, a + 1, c + 1, d, l + 1, a + 1, d, d + 1, l + 1, a))

    e.raw('; ---- role A: local scan end states')
    run(p1)
    prev = (22, 23)
    e.I('ds_write_b64 v%d, %s' % (XW, vr(prev[0], 2)), tag='ex')

    def c_reg(u, s2, dq):
        return 128 + 32 * u + 16 * s2 + 4 * dq

    CBUF = cfg.cbuf
    CPREV = {i: max(k for k in range(i) if CBUF[k] == CBUF[i]) for i in range(8) if CBUF[i] in CBUF[:i]}
    cdone = set()
    hdone = []

    def c_read(i):
        if i in cdone:
            return
        cdone.add(i)
        assert gdone or not cfg.glds or i < 4
        assert hdone or not EDIR
        assert i < 4 or hdone
        e.wait(vm=('c', i))
        for s in range(4):
            a_, off = (CA4 + (s >> 1), 0) if CBUF[i] == 4 else (CA + (s >> 1), CBUF[i] * SLOT)
            if CBUF[i] == 9:
                off = 4096 + (s & 1) * (SLOT - 2048)
            e.I('ds_read_b128 %s, v%d offset:%d' % (vr(c_reg(i >> 1, s >> 1, 2 * (i & 1) + (s & 1)), 4), a_, off + (s & 1) * 2048), tag=('cr', i))

    def c_loads(i):
        u, dt = i >> 1, i & 1
        its = []
        for q in range(4):
            def f(q=q):
                if q == 0:
                    if i in CPREV:
                        c_read(CPREV[i])
                        e.wait(lg=('cr', CPREV[i]))
                    elif CBUF[i] != 4 and (6 + CBUF[i] % 8 > cfg.JL or 4 + CBUF[i] % 8 >= 8 - cfg.NT):
                        assert kcur[0] >= cfg.JL
                        cnt_spin(e, 'L_cb%d' % i, FLA, 31, C_CONS + 28)
                    e.I('s_xor_b32 s%d, s%d, %d' % (sTD, 88 + (u >> 1), dt * 32768))
                set_m0(e, sMW, CBUF[i] * SLOT if CBUF[i] != 9 else 4096 + (q >> 1) * (SLOT - 2048))
                e.I('buffer_load_dwordx4 v%d, %s, s%d offen offset:%d %slds' % ((CV + q, srd(SC2 if u & 1 else SC1), sTD, 1024 * q) + (ntf('c', i),)), tag=('c', i))
                if q == 3:
                    st(e, '_c%d' % i)
                if q == 3 and i >= cfg.clag:
                    c_read(i - cfg.clag)
            its.append(f)
        return its

    def d_loads(n):
        sl, pos = RING[n]
        its = []
        for q in range(2):
            def f(q=q):
                set_m0(e, sMW, sl * SLOT + pos * 2048)
                if q == 0 and n:
                    wd_next(e, n, sDC, sDB, sDE)
                e.I('buffer_load_dwordx4 v%d, %s, s%d offen offset:%d %slds' % ((WDV + q, srd(SWD), sDC, 1024 * q) + (ntf('d', n),)), tag='wd')
            its.append(f)
        return its

    wl = {j: dma_W(e, WV, SWA, j) for j in range(2, 8)}
    planned = set()

    def e_loads():
        its = []
        for q in range(2):
            def f(q=q):
                set_m0(e, T5, L_EG)
                e.I('buffer_load_dwordx4 v%d, %s, s%d offen offset:%d sc1 lds' % (EV0 + q, srd(SWS), sEL, 1024 * q), tag='eg')
            its.append(f)
        return its

    def expand(toks, k):
        r = []
        for t in toks.split(','):
            if not t:
                continue
            n = int(t[1])
            planned.add(t)
            if t[0] == 'W':
                assert n < 4 or k >= n - 2 or (k == n - 3 and k in cfg.drain)
                r += wl[n][:3] if t[2:] == 'a' else wl[n][3:] if t[2:] == 'b' else wl[n]
            elif t[0] == 'C':
                assert CBUF[n] == 4 or k >= min(6 + CBUF[n] % 8, cfg.JL)
                assert k >= 2 or cfg.w0pos is None
                r += c_loads(n)
            elif t[0] == 'D':
                r += d_loads(n)
            elif t[0] == 'R':
                r.append(lambda n=n: c_read(n))
            elif t[0] == 'S':
                r.append(lambda n=n: (hq[n](), hsent.add(n)))
            elif t[0] == 'G':
                r += small1
            elif t[0] == 'e':
                r += [lambda k=k: e.I('buffer_load_dwordx4 %s, v%d, %s, s%d offen sc1' % (vr(224 + 4 * k, 4), EVK + k, srd(SWS), sEL), tag='egv')
                      for k in range(8)]
            elif t[0] == 'E':
                r += e_loads()
            elif t[0] == 'T':
                r.append(lambda n=n: tch.at(n))
        return r

    def bar(k, extra=()):
        kk = 7 if k == cfg.JL else k
        assert kk < 2 or 'W%d' % kk in planned or 'W%db' % kk in planned or (kk == 2 and cfg.w0pos is not None)
        e.wait(vm=[('st', 8 + kk)] + list(extra))
        st(e, '_a%d' % k)
        e.I('s_barrier')
        st(e, '_d%d' % k)

    sc = []
    for r in range(16):
        sc += items('v_mul_f32 v4, v%d, v%d\nv_mul_f32 v5, v%d, v%d\nv_fma_f32 v%d, v%d, v%d, -v4\nv_fma_f32 v%d, v%d, v%d, v5' %
                    (KAP + 1, IM + r, KAP + 1, RE + r, RE + r, KAP, RE + r, IM + r, KAP, IM + r))
    if cfg.pksc:
        kp = vr(KAP, 2)
        for r in range(0, 16, 4):
            for o in (0, 2):
                e.I('v_pk_mul_f32 %s, %s, %s op_sel:[1,0] op_sel_hi:[1,1]' % (vr(4 + 2 * o, 2), kp, vr(IM + r + o, 2)))
                e.I('v_pk_mul_f32 %s, %s, %s op_sel:[1,0] op_sel_hi:[1,1]' % (vr(6 + 2 * o, 2), kp, vr(RE + r + o, 2)))
            for o in (0, 2):
                e.I('v_pk_fma_f32 %s, %s, %s, %s op_sel_hi:[0,1,1] neg_lo:[0,0,1] neg_hi:[0,0,1]' % (vr(RE + r + o, 2), kp, vr(RE + r + o, 2), vr(4 + 2 * o, 2)))
                e.I('v_pk_fma_f32 %s, %s, %s, %s op_sel_hi:[0,1,1]' % (vr(IM + r + o, 2), kp, vr(IM + r + o, 2), vr(6 + 2 * o, 2)))
        late = []
    else:
        run(sc[:cfg.early])
        late = sc[cfg.early:]
    e.wait(lg='all')
    bar(0)
    work = []
    for s in range(8):
        e.I('ds_read_b64 %s, v%d offset:%d' % (vr(4 + 2 * s, 2), XR, 256 * s), tag=('e', s))
    pf = []
    for s in range(1, 8):
        pf.append(lambda s=s: e.wait(lg=('e', s)))
        pf += cfma(4 + 2 * s, L16, 2 + 2 * s, 4 + 2 * s)
    segs = [[sub.split('|') for sub in sg.split('&')] for sg in cfg.prog.split(';')]
    issued_tok = set()
    q0 = expand(segs[0][0][0], 0)
    run(weave(q0[:cfg.pren], pf))
    e.I('v_mov_b32 v20, s%d\nv_mov_b32 v21, s%d' % (sNONCE, sNONCE))
    e.I('s_mov_b64 exec, 0xffff')
    e.I('buffer_store_dwordx4 v[18:21], v%d, %s, s%d offen sc1' % (P16, srd(SWS), sES), tag='es')
    e.I('s_mov_b64 exec, -1')
    st(e, 'epub')
    jitter(e, cfg, 7)
    run(q0[cfg.pren:])
    if not cfg.gmerge:
        gate.append(g_store)
    sel = items('v_mov_b32 v%d, 0\nv_mov_b32 v%d, 0' % (PP, PP + 1))
    for s in range(1, 8):
        sel.append(lambda s=s: e.I('v_cmp_eq_u32 vcc, %d, v%d\nv_cndmask_b32 v%d, v%d, v%d, vcc\nv_cndmask_b32 v%d, v%d, v%d, vcc' %
                                   (s, SIDX, PP, PP, 2 + 2 * s, PP + 1, PP + 1, 3 + 2 * s)))
    EG = 224

    def e_check():
        e.I('v_add3_u32 v4, v%d, v%d, v%d\nv_add_u32 v4, v4, v%d' % tuple(EG + 4 * k + 2 for k in range(4)))
        e.I('v_cmp_ne_u32 vcc, v4, v%d' % EEXP)

    def e_verify():
        assert 'e0' in issued_tok or not EDIR
        e.wait(vm='egv', lg='eg')
        e_check()
        if 'E' not in cfg.skip:
            e.I('s_cbranch_vccnz L_pollE')
        e.label('L_pollE_out')
        st(e, 'egot')
        with e.cold_block():
            e.label('L_pollE')
            e.I('s_mov_b32 s%d, 0' % sCNT)
            e.label('L_pollE_l')
            if cfg.esleep:
                e.I('s_sleep %d' % cfg.esleep)
            for k in range(4):
                e.I('v_subrev_u32 v4, %d, v%d\nv_cmp_le_i32 vcc, 2, v4\nv_lshl_add_u32 v4, v4, 9, v%d\nv_cndmask_b32 v4, v%d, v4, vcc' % (k - 1, ECNT, P16, EOOB))
                e.I('buffer_load_dwordx4 %s, v4, %s, s%d offen sc1' % (vr(EG + 4 * k, 4), srd(SWS), sEL))
            e.I('s_add_u32 s%d, s%d, 1' % (sCNT, sCNT))
            e.I('s_cmp_gt_u32 s%d, %d' % (sCNT, SPIN_MAX))
            e.wait(vm='all')
            e.I('s_cbranch_scc1 L_pollE_out')
            e_check()
            e.I('s_cbranch_vccnz L_pollE_l')
            e.I('s_branch L_pollE_out')

    def second_pass():
        p2 = []
        if not EDIR:
            p2.append(lambda: [e.I('ds_read_b128 %s, v%d offset:%d' % (vr(EG + 4 * k, 4), ERD, 512 * k), tag='eg') for k in range(4)])
        p2.append(e_verify)
        for k in range(2, -1, -1):
            p2 += cfma(EG + 4 * k, L128, EG + 4 * k + 4, EG + 4 * k)
        p2 += items('v_mov_b32 v6, v%d\nv_mov_b32 v7, v%d\nv_permlane16_swap_b32 v6, v%d\nv_permlane16_swap_b32 v7, v%d' % (EG, EG + 1, EG, EG + 1))
        p2 += cfma(6, L512, EG, 6)
        p2 += items('v_mov_b32 v4, v6\nv_mov_b32 v5, v7\nv_permlane32_swap_b32 v4, v6\nv_permlane32_swap_b32 v5, v7')
        p2 += cfma(4, L256, 6, 4)
        p2 += cfma(PP, L16S, 4, PP)
        p2 += items('v_mul_f32 v6, v%d, v%d\nv_mul_f32 v7, v%d, v%d' % (KAP, PP, KAP, PP + 1))
        p2 += items('v_fma_f32 v6, -v%d, v%d, v6\nv_fmac_f32 v7, v%d, v%d' % (KAP + 1, PP + 1, KAP + 1, PP))
        prev = (6, 7)
        for r in range(16):
            p2 += items('v_fmac_f32 v%d, v%d, v%d\nv_fmac_f32 v%d, v%d, v%d\nv_fma_f32 v%d, -v%d, v%d, v%d\nv_fmac_f32 v%d, v%d, v%d' %
                        (RE + r, LR, prev[0], IM + r, LR, prev[1], RE + r, LI, prev[1], RE + r, IM + r, LI, prev[0]))
            prev = (RE + r, IM + r)
        return p2

    def store_h(loads):
        assert not p2
        for k in range(8):
            e.I('v_cvt_pk_bf16_f32 v%d, v%d, v%d' % (8 + k, RE + 2 * k, RE + 2 * k + 1))
            e.I('v_cvt_pk_bf16_f32 v%d, -v%d, -v%d' % (16 + k, IM + 2 * k, IM + 2 * k + 1))
        for k in range(8):
            e.I('v_permlane16_swap_b32 v%d, v%d' % (8 + k, 16 + k))
        e.I('s_add_u32 s%d, s%d, 4096\ns_add_u32 s%d, s%d, %d\ns_add_u32 s%d, s%d, %d' % (T0, sHD, T1, sHD, HT_, T2, sHD, HT_ + 4096))
        for tl in range(2):
            for m in range(2):
                mfma(e, RE + 16 * tl, 8 + 8 * tl + 4 * m, SEL + 4 * m, m == 0)
        hdone.append(1)
        run(loads)
        if cfg.gmerge:
            assert not gate
            g_store()
        for tl in range(2):
            for part in range(2):
                o = 8 + 8 * tl + 4 * part
                for k in range(4):
                    e.I('v_cvt_pk_bf16_f32 v%d, v%d, v%d' % (o + k, RE + 16 * tl + 8 * part + 2 * k, RE + 16 * tl + 8 * part + 2 * k + 1))
                hq.append(lambda o=o, so=(sHD, T0, T1, T2)[2 * tl + part]:
                          e.I('buffer_store_dwordx4 %s, v%d, %s, s%d offen sc1' % (vr(o, 4), HS, srd(SWS), so), tag='hs'))
                if len(hq) <= cfg.hnow:
                    hq[-1]()
                    hsent.add(len(hq) - 1)

    hq = []
    hsent = set()
    kcur = [0]
    p2 = second_pass()
    for k, sub, toks, work in [(k, i, t, w) for k, sg in enumerate(segs) for i, (t, w) in enumerate(sg)]:
        if k == 0:
            continue
        if k <= cfg.JL and sub == 0:
            bar(k, ['eg'] if work[:1] == 'P' else [])
        kcur[0] = k
        q = expand(toks, k)
        if work[:3] == 'sel' or work[:1] == 'g':
            fill = []
            for wk in work.split('+'):
                if wk == 'sel':
                    fill += sel + ([] if 'late' in cfg.prog else late)
                else:
                    n = len(gate) if wk == 'g' else int(wk[1:])
                    fill += gate[:n]
                    del gate[:n]
            run(weave(q, fill) if not cfg.lfirst else q[:cfg.lfirst] + weave(q[cfg.lfirst:] or [lambda: None], fill))
        elif work == 'late':
            run(weave(q, late))
        elif work[:1] == 'P':
            assert EDIR or 'eg' not in e.vm
            wk = work.rstrip('H')
            n = cfg.p2cut if wk == 'P0' else len(p2) if wk in ('P', 'P1') else int(wk[1:])
            part = p2[:n]
            del p2[:n]
            run(part[:1] + (weave(q, part[1:]) if q else part[1:]))
            if work[-1] == 'H':
                st(e, 'p2done')
                store_h([])
        elif work[:1] == 'H':
            st(e, 'p2done')
            store_h(q)
            run(expand(work[2:], k))
        elif work == 'F':
            run(hq[n] for n in range(4) if n not in hsent)
            st(e, 'hst')
            jitter(e, cfg, 8)
            run(q)
            assert gdone and len(hq) == 4
            e.wait(vm=['hs', 'gs'])
            flag_store(e, 2, sHF)
            st(e, 'hflag')
            jitter(e, cfg, 9)
        else:
            run(q)
        issued_tok.update(toks.split(','))
    assert len(segs) > cfg.JL
    HV, PW = 6, 8
    rest = [i for i in range(8) if 'C%d' % i not in planned]
    run(c_loads(rest.pop(0)))
    e.I('s_mul_i32 s%d, s%d, %d\ns_mul_i32 s%d, s%d, %d\ns_add_u32 s%d, s%d, s%d\ns_add_u32 s%d, s%d, 0x%x' %
        (T0, sRT, 2 * HT_, T1, sW, HW_, T0, T0, T1, T0, T0, H_OFF))
    e.I('v_add_u32 v%d, s%d, v1\nv_add_u32 v%d, %d, v%d' % (HV, T0, HV + 1, HT_, HV))
    def late_scalars():
        for u in range(4):
            e.I('s_xor_b32 s%d, s%d, %d\ns_lshl_b32 s%d, s%d, 12' % (93 + u, sROT, u, 93 + u, 93 + u))
        mk_srd(e, SOUT, P_OUT, 2048 * 2048)
    part_write_addr(e, PW, 12, 13, 16384, 4096, SPART)
    if cfg.NA:
        for n in range(cfg.prog.count('D'), 10):
            wd_next(e, n, sDC, sDB, sDE)
    else:
        late_scalars()
    e.I('s_lshl_b32 s%d, s%d, 2\ns_add_u32 s%d, s%d, s%d\ns_mul_i32 s%d, s%d, %d\ns_add_u32 s%d, s%d, 0x%x' %
        (T0, sRT, T0, T0, sW, T0, T0, 8 * FS, T0, T0, HF_OFF))
    e.I('v_mul_u32_u24 v12, %d, v0\nv_mov_b32 v5, v2' % FS)

    def h_reg(k):
        return 16 + 4 * (k % 12)

    SC = 'S' in cfg.chain

    def h_idx(k):
        return (2 * (k >> 3) + (k & 1), (k >> 1) & 3) if SC else (k >> 2, k & 3)

    def h_load(k):
        n2, t4 = h_idx(k)
        e.I('buffer_load_dwordx4 %s, v%d, %s, s%d offen offset:%d sc1' % (vr(h_reg(k), 4), HV + (t4 >> 1), srd(SWS), 93 + (n2 >> 1),
                                                                            2048 * (n2 & 1) + 1024 * (t4 & 1)), tag=('h', k))

    def c_finish():
        for i in range(8):
            c_read(i)
        e.wait(vm='wd')
        if cfg.ybar:
            e.wait(lg='all')
            e.I('s_barrier')
        else:
            cnt_add(e, FLA, ONE, C_DONEA)
        st(e, 'cgot')

    while rest and rest[0] < cfg.hlook:
        run(c_loads(rest.pop(0)))
    if cfg.NA:
        assert not rest and 9 not in CBUF
        for n in range(10, 10 + cfg.NA):
            last = max(i for i in range(8) if CBUF[i] == RING[n][0])
            c_read(last)
            e.wait(lg=('cr', last))
            run(d_loads(n))
            if n + 1 < 18 and RING[n + 1][1] == 0:
                c_read(max(i for i in range(8) if CBUF[i] == RING[n + 1][0]))
        late_scalars()
    if cfg.hlook > 8:
        c_finish()
    poll(e, 'L_pollH', 13, 12, T0, '0xff',
         lambda: ([run(c_loads(i)) for i in rest], c_finish() if cfg.hearly == 0 and cfg.hlook <= 8 else None))
    st(e, 'hrdy')
    jitter(e, cfg, 10)
    XO, RA, GV, RF = 2, 3, 4, 14
    ROWS = (0, 8, 32, 40)
    XL, DL, GL, XD, PW1 = 128, 136, 138, 144, 10
    fin = items('s_lshl_b32 s%d, s%d, 6\ns_add_u32 s%d, s%d, s%d' % (T0, sRT, T0, T0, sW))
    fin += items('v_lshrrev_b32 v15, 5, v0\nv_bfe_u32 v13, v0, 3, 1\nv_xor_b32 v15, v15, v13\nv_bfe_u32 v3, v0, 4, 1\nv_lshl_add_u32 v12, v3, 1, v15')
    fin += items('v_lshl_add_u32 v13, v15, 4, s%d\nv_lshl_add_u32 v13, v3, 2, v13' % T0)
    fin += items('v_and_b32 v14, 15, v0\ns_lshl_b32 s%d, s%d, 7' % (T1, sCT))
    fin += items('v_lshl_add_u32 v1, v14, 3, s%d' % T1)
    fin += items('v_lshl_add_u32 v%d, v13, 10, v1' % XO)
    fin += items('v_lshlrev_b32 v%d, 2, v13\nv_add_u32 v%d, 0x%x, v%d' % (GV, GV, G_OFF, GV))
    fin += items('s_lshl_b32 s%d, s%d, 8\ns_add_u32 s%d, s%d, %d' % (T2, sW, T1, T2, SPART))
    fin += items('v_lshl_add_u32 v3, v3, 10, s%d\nv_lshl_add_u32 v3, v15, 14, v3' % T1)
    fin += items('v_lshl_or_b32 v13, v15, 2, s%d\nv_xor_b32 v13, v13, v14\nv_lshl_add_u32 v%d, v13, 4, v3' % (sW, RA))
    fin += items('v_lshl_add_u32 v12, v12, 6, s%d\nv_lshrrev_b32 v13, 2, v14\nv_lshl_add_u32 v12, v13, 10, v12' % T2)
    fin += items('v_and_b32 v13, 3, v0\nv_lshl_add_u32 v%d, v13, 4, v12\nv_add_u32 v%d, %d, v%d' % (RF, RF + 1, 2 * SLOT, RF))
    fin += items('s_lshl_b32 s%d, s%d, 7' % (T0, sDTX))
    for a in range(2):
        fin += items('v_xor_b32 v%d, s%d, v%d\nv_xor_b32 v%d, 0x80, v%d' % (PW + a, T0, PW + a, PW1 + a, PW + a))
    if cfg.posX < 0:
        run(fin)
    for k in range(cfg.NVA):
        if cfg.posX < 0 and k == -1 - cfg.posX:
            assert k >= cfg.hearly
            e.wait(lg='all')
            e.I('s_barrier')
        if k == cfg.hearly // 2 and k:
            c_read(6)
        if k == cfg.hearly and k:
            c_finish()
        h_load(k)
    e.wait(lg='all')
    if cfg.posX >= 0:
        run(fin)

    def fx_loads():
        e.I('global_load_dwordx2 %s, v1, s[%d:%d]' % (vr(DL, 2), P_DSK, P_DSK + 1), tag='fx')
        for n in range(4):
            e.I('s_mov_b32 s%d, %d' % (T2, 1024 * ROWS[n]))
            e.I('buffer_load_dwordx2 %s, v%d, %s, s%d offen' % (vr(XL + 2 * n, 2), XO, srd(SX), T2), tag='fx')

    def g_loads():
        for n in range(4):
            e.I('buffer_load_dword v%d, v%d, %s, 0 offen offset:%d sc1' % (GL + n, GV, srd(SWS), 4 * ROWS[n]), tag='fg')

    DU = 160
    xd = [lambda: e.wait(vm='fx')]
    xd += items('v_lshlrev_b32 v%d, 16, v%d\nv_and_b32 v%d, 0xffff0000, v%d\nv_lshlrev_b32 v%d, 16, v%d\nv_and_b32 v%d, 0xffff0000, v%d' %
                (DU, DL, DU + 1, DL, DU + 2, DL + 1, DU + 3, DL + 1))
    for n in range(4):
        for k in range(2):
            x = XL + 2 * n + k
            xd += items('v_lshlrev_b32 v12, 16, v%d\nv_and_b32 v13, 0xffff0000, v%d' % (x, x))
            xd += items('v_mul_f32 v12, v12, v%d\nv_mul_f32 v13, v13, v%d' % (DU + 2 * k, DU + 1 + 2 * k))
            xd += items('v_cvt_pk_bf16_f32 v13, v12, v13')
            xd += items('v_lshlrev_b32 v%d, 16, v13\nv_and_b32 v%d, 0xffff0000, v13' % (XD + 4 * n + 2 * k, XD + 4 * n + 2 * k + 1))
    xd += items('v_mov_b32 v12, %d\nv_mov_b32 v13, 1\nv_lshlrev_b32 v%d, 1, v%d' % (L_P2, XO, XO))

    sbegun = set()

    def s2_step(k):
        n2, t4 = h_idx(k)
        if k == 2 * cfg.posX:
            e.I('s_barrier')
        e.wait(vm=('h', k | 1 if SC else k))
        for dq in range(4):
            kk = k
            if SC:
                assert cfg.NVA <= 10
                i = 4 * (k & 1) + dq
                kk = (k & ~1) + ((i & 1) ^ ((i >> 1) & 1))
                d = i >> 1
                n2 = h_idx(kk)[0]
            else:
                d = dq
            if cfg.snake and t4 & 1:
                d = 3 - d
            mfma16(e, acc2(t4, d), c_reg(n2 >> 1, n2 & 1, d), h_reg(kk), acc2(t4, d) not in sbegun)
            sbegun.add(acc2(t4, d))
            if dq == (0 if cfg.NVA < 12 else 3) and k + cfg.NVA < 32:
                h_load(k + cfg.NVA)
        if k == 8:
            fx_loads()
        if k == max(8, 2 * cfg.posX):
            g_loads()
    steps = [lambda k=k: s2_step(k) for k in range(32)]
    if cfg.xdpos < 32:
        run(steps[:cfg.xdpos] + weave(steps[cfg.xdpos:], xd))
    else:
        run(steps + xd[-3:])
    st(e, 's2end')
    jitter(e, cfg, 11)
    if cfg.posX == 16:
        e.I('s_barrier')
        g_loads()
    st(e, '_X')
    run(part_write(e, PW, 16384, 0, PW1) + part_write(e, PW, 16384, 1, PW1))
    cnt_add(e, 12, 13, 0)
    if cfg.xdpos >= 32:
        run(xd[:-1])
    OM = 164
    e.wait(vm='fg')
    for n in range(4):
        e.I('v_sub_f32 v%d, 1.0, v%d' % (OM + n, GL + n))
        e.I('v_cvt_pk_bf16_f32 v%d, v%d, v%d\nv_lshlrev_b32 v%d, 16, v%d' % (OM + n, OM + n, OM + n, OM + n, OM + n))
    for n in range(4):
        e.I('s_mov_b32 s%d, %d' % (T2 + n, 2048 * ROWS[n]))
    e.I('s_lshl_b32 s%d, s%d, 5\ns_add_u32 s%d, s%d, s%d\ns_lshl_b32 s%d, s%d, 8\ns_add_u32 s%d, s%d, s%d' %
        (T0, sCT, T0, T0, sRT, T1, sW, T0, T0, T1))
    e.I('s_cmp_eq_u32 s%d, 31\ns_cselect_b32 s%d, 0x%x, s%d' % (T0, T0, EPOCH_OFF, SWS + 2))
    flag_store(e, 5, T0)
    cnt_spin(e, 'L_spinM', 12, 16, 0)
    e.wait(lg='all')
    for n in range(4):
        for w in range(4):
            e.I('ds_read_b128 %s, v%d offset:%d' % (vr(64 + 16 * n + 4 * w, 4), RA, w * 4096 + (n & 1) * 2048 + (n >> 1) * 32768), tag=('r', n))
    BS = XD
    for n in range(4):
        e.wait(lg=('r', n))
        b = 64 + 16 * n
        for k in range(4):
            e.I('v_add_f32 v%d, v%d, v%d\nv_add_f32 v%d, v%d, v%d' % (b + k, b + k, b + 4 + k, b + 8 + k, b + 8 + k, b + 12 + k))
        for k in range(4):
            e.I('v_add_f32 v%d, v%d, v%d' % (b + k, b + k, b + 8 + k))
        for k in range(4):
            e.I('v_add_f32 v%d, v%d, v%d' % (b + k, b + k, XD + 4 * n + k))
        for k in range(4):
            e.I('v_mul_f32 v%d, v%d, v%d' % (BS + 4 * n + k, GL + n, b + k))
    st(e, 'pre')
    jitter(e, cfg, 12)
    for grp in cfg.zg:
        e.I('s_barrier')
        st(e, 'Z' if 3 in grp else '_Z%d' % grp[0])
        for n in grp:
            for w in range(4):
                e.I('ds_read_b128 %s, v%d offset:%d' % (vr(64 + 16 * n + 4 * w, 4), RF + (n >> 1), w * 6144 + (n & 1) * SLOT), tag=('r', n, w >> 1))
        for n in grp:
            b = 64 + 16 * n
            for o, p in ((0, 4), (8, 12), (0, 8)):
                e.wait(lg=('r', n, o >> 3))
                if 3 in grp:
                    for k in (0, 2):
                        e.I('v_pk_add_f32 %s, %s, %s' % (vr(b + o + k, 2), vr(b + o + k, 2), vr(b + p + k, 2)))
                else:
                    for k in range(4):
                        e.I('v_add_f32 v%d, v%d, v%d' % (b + o + k, b + o + k, b + p + k))
            if cfg.mimic2:
                for rnd in range(2):
                    e.I('v_cvt_pk_bf16_f32 v%d, v%d, v%d\nv_cvt_pk_bf16_f32 v%d, v%d, v%d' % (b + 1, b, b + 1, b + 3, b + 2, b + 3))
                    for k in (0, 2):
                        e.I('v_lshlrev_b32 v%d, 16, v%d\nv_and_b32 v%d, 0xffff0000, v%d' % (b + k, b + k + 1, b + k + 1, b + k + 1))
                    if rnd == 0:
                        for k in range(4):
                            e.I('v_mul_f32 v%d, v%d, v%d' % (b + k, OM + n, b + k))
                for k in (0, 2):
                    e.I('v_pk_add_f32 %s, %s, %s' % (vr(b + k, 2), vr(b + k, 2), vr(BS + 4 * n + k, 2)))
            else:
                for k in range(4):
                    e.I('v_fma_f32 v%d, v%d, v%d, v%d' % (b + k, OM + n, b + k, BS + 4 * n + k))
            e.I('buffer_store_dwordx4 %s, v%d, %s, s%d offen %s' % (vr(b, 4), XO, srd(SOUT), T2 + n, cfg.outflags.replace('_', ' ') if isinstance(cfg.outflags, str) else cfg.outflags[n]), tag='out')
    if st.on:
        e.wait(vm='all')
    if cfg.skew:
        e.I('s_and_b32 s%d, s2, %d\ns_lshl_b32 s%d, s%d, 7\ns_add_u32 s%d, s%d, 0x%x' % (T4, cfg.skew[0], T4, T4, T4, T4, STAMP_OFF))
        e.I('buffer_load_dword v62, off, %s, s%d sc1' % (srd(SWS), T4))
        e.wait(vm='all')
        e.I('v_readfirstlane_b32 s12, v62')
        if cfg.skew[1] > 0:
            e.I('s_sub_u32 s12, s38, s12')
        else:
            e.I('s_sub_u32 s12, s12, s38')
        e.I('s_add_u32 s12, s12, 300\ns_add_u32 s10, s38, s12')
        st.names.append('skew')
    st(e, 'end')
    st.flush(e)


HEADER = open(os.path.join(os.path.dirname(os.path.abspath(__file__)), '..', 'cdna_kernels', BASE + '.s.ref')).read()


DOC = """;
;   S: B stages x and B_re/B_im through LDS (LDS-DMA) and keeps its x fragments in registers; A computes B.x.
;      local end states -> workgroup end state published in d_ws -> carry-in from ALL earlier row blocks ->
;      second pass; h is transposed with two selection MFMAs.  h, act (bf16, fragment order) and the gate go to d_ws.
; Hand-offs: write-through stores, counter wait, then a flag word; readers poll with L1-bypassing loads.
"""


def generate(cfg):
    SLEEP[:] = cfg.sleep
    FL.clear()
    FL.update(cfg.nt)
    W_SLOT[0] = 0 if cfg.w0pos is None else 4
    S_SHIFT[0] = -1 if cfg.ahead else 0
    assert cfg.w0pos is None
    hdr = []
    for line in HEADER.split('\n'):
        if not line.startswith(';'):
            break
        if '@launch' in line:
            line = '; @launch grid=(256,1,1) block=(512,1,1) lds=%d' % LDS_BYTES
            if cfg.pre_kernel is not None:
                line = '; @launch kernel=%s grid=(256,1,1) block=(512,1,1) lds=%d' % (NAME, LDS_BYTES)
                if cfg.pre_kernel:
                    line = '; @launch kernel=warm_kernel grid=(256,1,1) block=(256,1,1) lds=0\n' + line
        hdr.append(line)
    stB = Stamps(cfg, ([38, 84] if cfg.selB and '_prek' in cfg.selB else [38]) + [6, 8, 14, 16, 18, 20, 22, 30, 32, 34, 4, 10, 12, 24, 26], 'B')
    stA = Stamps(cfg, [38, 10, 12, 22, 34, 24, 26, 6, 8, 18, 28, 14, 16, 30, 36, 4], 'A')
    e = Em()
    gen_entry(e, cfg, stB)
    stA.names = list(stB.names)
    eA = Em()
    eA.hist = list(e.hist)
    eA.vm = list(e.vm)
    gen_B(e, cfg, stB)
    gen_A(eA, cfg, stA)
    txt = '\n'.join(hdr) + '\n' + DOC
    txt += '.amdgcn_target "amdgcn-amd-amdhsa--gfx950"\n.text\n.globl %s\n.p2align 8\n.type %s,@function\n%s:\n' % (NAME, NAME, NAME)
    txt += e.text() + '\n' + '\n'.join(e.cold) + '\n.p2align 6\nL_A:\n' + eA.text() + '\n    s_endpgm\n' + '\n'.join(eA.cold) + '\nL_end:\n    s_endpgm\n'
    if cfg.pre_kernel:
        w = Em()
        w.I('s_cmp_ge_u32 s2, 256\ns_cbranch_scc1 L_wend')
        if cfg.pre_kernel != 'empty':
            w.I('s_load_dwordx16 s[4:19], s[0:1], 0\ns_load_dwordx16 s[20:35], s[0:1], 64')
            w.I('s_lshl_b32 s3, s2, 8\nv_add_u32 v0, s3, v0\nv_lshlrev_b32 v1, 7, v0')
            w.wait_smem()
            base = 0
            for p, n in ((P_X, 2048 * 1024), (P_BRE, 524288), (P_BIM, 524288), (P_WG, 1409024), (P_WU, 1409024), (P_CRE, 524288), (P_CIM, 524288), (P_WD, 1409024)):
                mk_srd(w, 40, p, n)
                w.I('v_subrev_u32 v2, %d, v1\nv_cmp_gt_u32 vcc, %d, v2\ns_and_saveexec_b64 s[44:45], vcc\ns_cbranch_execz L_w%d' % (base, n, p))
                w.I('buffer_load_dword v3, v2, s[40:43], 0 offen')
                w.label('L_w%d' % p)
                w.I('s_mov_b64 exec, s[44:45]')
                base += n
            if cfg.pre_kernel == 'wait':
                w.I('s_waitcnt vmcnt(0)')
        txt += '.globl warm_kernel\n.p2align 8\n.type warm_kernel,@function\nwarm_kernel:\n' + w.text() + '\nL_wend:\n    s_endpgm\n'
    txt += '''.section .rodata,"a"
.p2align 6
.amdhsa_kernel %s
  .amdhsa_next_free_vgpr 256
  .amdhsa_next_free_sgpr 102
  .amdhsa_accum_offset 256
  .amdhsa_group_segment_fixed_size 0
  .amdhsa_kernarg_size 136
  .amdhsa_user_sgpr_count 2
  .amdhsa_user_sgpr_kernarg_segment_ptr 1
  .amdhsa_system_sgpr_workgroup_id_x 1
  .amdhsa_float_denorm_mode_32 3
.end_amdhsa_kernel
''' % NAME
    if cfg.pre_kernel:
        txt += '''.p2align 6
.amdhsa_kernel warm_kernel
  .amdhsa_next_free_vgpr 8
  .amdhsa_next_free_sgpr 48
  .amdhsa_accum_offset 8
  .amdhsa_group_segment_fixed_size 0
  .amdhsa_kernarg_size 136
  .amdhsa_user_sgpr_count 2
  .amdhsa_user_sgpr_kernarg_segment_ptr 1
  .amdhsa_system_sgpr_workgroup_id_x 1
.end_amdhsa_kernel
'''
    info = dict(A=eA.count, B=e.count, nopsA=eA.nops, nopsB=e.nops, stampsA=stA.names, stampsB=stB.names)
    return txt, info


def cfg_from(args):
    cfg = Cfg()
    for a in args:
        k, v = a.split('=')
        setattr(cfg, k, eval(v))
    return cfg


if __name__ == '__main__':
    out = sys.argv[1]
    cfg = cfg_from(sys.argv[2:])
    txt, info = generate(cfg)
    open(out, 'w').write(txt)
    print(info)
```
